```python
import torch

def _softmax(x, axis=-1):
    return torch.softmax(x, dim=axis)
def _gelu(x):
    return torch.nn.functional.gelu(x, approximate="tanh")
def _silu(x):
    return torch.nn.functional.silu(x)
def _sigmoid(x):
    return torch.sigmoid(x)
def _layernorm(x, axis=-1, eps=1e-5):
    m = x.mean(dim=axis, keepdim=True)
    v = x.var(dim=axis, keepdim=True, unbiased=False)
    return (x - m) / torch.sqrt(v + eps)
def _scatter_add(tgt, idx, src, axis=0):
    return tgt.clone().index_add_(axis, idx, src)
def _segment_sum(src, seg, n):
    out = torch.zeros((n,) + src.shape[1:], dtype=src.dtype)
    return out.index_add_(0, seg, src)
def _pad(x, pw):
    flat = tuple(v for pair in reversed(pw) for v in pair)
    return torch.nn.functional.pad(x, flat)

kernel_name = 'gated_mix__grouped_kv_mqa__glu_gated_geglu__prompt'

def setup_inputs():

    _w = (lambda a: (lambda t: t.to(torch.bfloat16) if t.is_floating_point() else t)(torch.as_tensor(a)))
    def _A_setup():
        B, S, D, H = 1, 2048, 512, 32
        Dh = D // H
        return {
            "x": _w((lambda *s: torch.randn(*s, dtype=torch.bfloat16) * 0.05)(B, S, D)),
            "wq": _w((lambda *s: torch.randn(*s, dtype=torch.bfloat16) * 0.8)(D, H * Dh)),
            "wk": _w((lambda *s: torch.randn(*s, dtype=torch.bfloat16) * 0.8)(D, Dh)),
            "wv": _w((lambda *s: torch.randn(*s, dtype=torch.bfloat16) * 0.05)(D, Dh)),
            "wo": _w((lambda *s: torch.randn(*s, dtype=torch.bfloat16) * 0.05)(H * Dh, D)),
        }
    _A_in = _A_setup()

    def _B_setup():
        B, S, Dm, Df = 1, 2048, 512, 1376
        return {
            "x": _w((lambda *s: torch.randn(*s, dtype=torch.bfloat16) * 0.05)(B, S, Dm)),
            "w_gate": _w((lambda *s: torch.randn(*s, dtype=torch.bfloat16) * 0.8)(Dm, Df) * (Dm ** -0.5)),
            "w_up": _w((lambda *s: torch.randn(*s, dtype=torch.bfloat16) * 0.8)(Dm, Df) * (Dm ** -0.5)),
            "w_down": _w((lambda *s: torch.randn(*s, dtype=torch.bfloat16) * 0.8)(Df, Dm) * (Df ** -0.5)),
        }
    _B_in = _B_setup()

    return {
        "A_x": _A_in["x"],
        "A_wq": _A_in["wq"],
        "A_wk": _A_in["wk"],
        "A_wv": _A_in["wv"],
        "A_wo": _A_in["wo"],
        "B_x": _B_in["x"],
        "B_w_gate": _B_in["w_gate"],
        "B_w_up": _B_in["w_up"],
        "B_w_down": _B_in["w_down"],
        "gate_w": _w((lambda *s: torch.randn(*s, dtype=torch.bfloat16) * 0.05)(512) * 16.0),
    }

def reference(A_x, A_wq, A_wk, A_wv, A_wo, B_x, B_w_gate, B_w_up, B_w_down, gate_w):
    def _A_ref(x, wq, wk, wv, wo):
        B, S, D = x.shape
        H = 32
        Dh = D // H
        q = (lambda x, *d: x.permute(*d))((x @ wq).reshape(B, S, H, Dh), 0, 2, 1, 3)
        k = x @ wk
        v = x @ wv
        scores = torch.einsum("bhqd,bkd->bhqk", q, k) * (Dh ** -0.5)
        p = _softmax(scores, axis=-1)
        o = torch.einsum("bhqk,bkd->bhqd", p, v)
        return (lambda x, *d: x.permute(*d))(o, 0, 2, 1, 3).reshape(B, S, H * Dh) @ wo

    def _B_ref(x, w_gate, w_up, w_down):
        g = torch.einsum("bsd,df->bsf", x, w_gate)
        u = torch.einsum("bsd,df->bsf", x, w_up)
        h = _gelu(g) * u
        return torch.einsum("bsf,fd->bsd", h, w_down)

    x = A_x
    g = _sigmoid((x * gate_w).sum(-1, keepdims=True))
    a = _A_ref(x, A_wq, A_wk, A_wv, A_wo)
    b = _B_ref(x, B_w_gate, B_w_up, B_w_down)
    return g * a + (1 - g) * b
```

```python
import re

TRANS = ("v_exp_f32", "v_log_f32", "v_rcp_f32", "v_rsq_f32", "v_sqrt_f32", "v_sin_f32", "v_cos_f32", "v_exp_f16", "v_rcp_iflag_f32")

def _regs(tok, pfx):
    tok = tok.strip()
    tok = tok.lstrip("-")
    m = re.fullmatch(r"abs\((.*)\)", tok)
    if m: tok = m.group(1)
    m = re.fullmatch(r"\|(.*)\|", tok)
    if m: tok = m.group(1)
    m = re.fullmatch(pfx + r"(\d+)", tok)
    if m: return {int(m.group(1))}
    m = re.fullmatch(pfx + r"\[(\d+):(\d+)\]", tok)
    if m: return set(range(int(m.group(1)), int(m.group(2)) + 1))
    return set()

def _sregs(tok):
    tok = tok.strip()
    if tok == "vcc": return {"vcc"}
    if tok in ("vcc_lo", "vcc_hi"): return {"vcc"}
    if tok == "exec": return {"exec"}
    if tok == "m0": return {"m0"}
    return _regs(tok, "s")

class Inst:
    __slots__ = ("text", "op", "kind", "vr", "vw", "sr", "sw", "tag", "mf", "meta")
    def __init__(self, text, tag=None, meta=None):
        self.text = text; self.tag = tag; self.meta = meta
        self.vr = set(); self.vw = set(); self.sr = set(); self.sw = set(); self.mf = None
        t = text.split(";")[0].strip()
        if t.endswith(":") or t.startswith("."):
            self.op = t; self.kind = "label" if t.endswith(":") else "directive"; return
        if t.startswith("@"):
            self.op = t; self.kind = "pseudo"; return
        parts = t.split(None, 1)
        op = parts[0]; self.op = op
        rest = parts[1] if len(parts) > 1 else ""
        raw = [x.strip() for x in rest.split(",")] if rest else []
        ops = []; mods = []
        for i, x in enumerate(raw):
            pieces = x.split()
            if not pieces: continue
            ops.append(pieces[0]); mods += pieces[1:]
        V = lambda k: _regs(ops[k], "v") if k < len(ops) else set()
        S = lambda k: _sregs(ops[k]) if k < len(ops) else set()
        base = op.replace("_e32", "").replace("_e64", "")
        if op.startswith("v_mfma"):
            self.kind = "mfma"
            self.vw = V(0); self.vr = V(1) | V(2) | V(3)
            passes = 8 if "32x32x16" in op else 4
            self.mf = dict(D=V(0), A=V(1), B=V(2), C=V(3), passes=passes)
        elif op.startswith("v_"):
            self.kind = "trans" if base in TRANS else "valu"
            if base.startswith("v_cmp"):
                self.sw = S(0)
                if base.startswith("v_cmpx"): self.sw |= {"exec"}
                for k in range(1, len(ops)): self.vr |= V(k); self.sr |= S(k)
            elif base in ("v_readfirstlane_b32", "v_readlane_b32"):
                self.sw = S(0); self.vr = V(1)
                for k in range(2, len(ops)): self.sr |= S(k)
            elif base.startswith("v_permlane") and "swap" in base:
                self.vw = V(0) | V(1); self.vr = V(0) | V(1)
            elif base in ("v_add_co_u32", "v_addc_co_u32", "v_sub_co_u32", "v_subb_co_u32"):
                self.vw = V(0); self.sw = S(1)
                for k in range(2, len(ops)): self.vr |= V(k); self.sr |= S(k)
            else:
                self.vw = V(0)
                for k in range(1, len(ops)): self.vr |= V(k); self.sr |= S(k)
                if base in ("v_fmac_f32", "v_writelane_b32", "v_pk_fmac_f16", "v_dot2c_f32_bf16") or "UNUSED_PRESERVE" in t:
                    self.vr |= V(0)
        elif op.startswith("ds_"):
            if op.startswith("ds_read") or op.startswith("ds_bpermute") or op.startswith("ds_swizzle") or op.startswith("ds_permute"):
                self.kind = "ds_rd"; self.vw = V(0)
                for k in range(1, len(ops)): self.vr |= V(k)
            else:
                self.kind = "ds_wr"
                for k in range(0, len(ops)): self.vr |= V(k)
        elif op.startswith("buffer_load") or op.startswith("global_load"):
            if "lds" in mods or op.startswith("global_load_lds"):
                self.kind = "dma"
                for k in range(0, len(ops)): self.vr |= V(k); self.sr |= S(k)
                self.sr |= {"m0"}
            else:
                self.kind = "vm_ld"; self.vw = V(0)
                for k in range(1, len(ops)): self.vr |= V(k); self.sr |= S(k)
        elif op.startswith("buffer_store") or op.startswith("global_store"):
            self.kind = "vm_st"
            for k in range(0, len(ops)): self.vr |= V(k); self.sr |= S(k)
            d = V(0) if op.startswith("buffer") else V(1)
            self.meta = dict(self.meta or {}, data=d, wide=("x4" in op or "x3" in op))
        elif op.startswith("buffer_atomic") or op.startswith("global_atomic"):
            self.kind = "vm_st"
            for k in range(0, len(ops)): self.vr |= V(k); self.sr |= S(k)
            self.meta = dict(self.meta or {}, data=set(), wide=False)
        elif op in ("buffer_inv", "buffer_wbl2"):
            self.kind = "vm_st"; self.meta = dict(data=set(), wide=False)
        elif op == "s_waitcnt": self.kind = "wait"
        elif op == "s_barrier": self.kind = "barrier"
        elif op == "s_nop": self.kind = "nop"
        elif op.startswith("s_load") or op.startswith("s_memtime") or op.startswith("s_memrealtime") or op.startswith("s_buffer_load"):
            self.kind = "smem"; self.sw = S(0)
            for k in range(1, len(ops)): self.sr |= S(k)
        elif op.startswith("s_cbranch") or op in ("s_branch", "s_endpgm", "s_setpc_b64"):
            self.kind = "branch"
        elif op.startswith("s_"):
            self.kind = "salu"
            if op.startswith("s_cmp") or op in ("s_setprio", "s_sleep"):
                for k in range(0, len(ops)): self.sr |= S(k)
            else:
                self.sw = S(0)
                for k in range(1, len(ops)): self.sr |= S(k)
                if "saveexec" in op: self.sw |= {"exec"}
        else:
            raise ValueError("unknown instr: " + text)

    def states(self):
        if self.kind in ("label", "directive", "pseudo"): return 0
        if self.kind == "nop": return int(self.text.split(";")[0].split()[1]) + 1
        return 1

class Prog:
    def __init__(self):
        self.I = []
    def e(self, text, tag=None):
        for line in text.split("\n"):
            line = line.strip()
            if not line or line.startswith(";"): continue
            self.I.append(Inst(line, tag=tag))
        return self
    __call__ = e
    def add(self, insts):
        self.I += insts
    def wait_tag(self, *tags): self.I.append(Inst("@wait_tag", meta=dict(tags=set(tags))))
    def wait_vm_all(self): self.I.append(Inst("@wait_vm_all"))
    def wait_lgkm_all(self): self.I.append(Inst("@wait_lgkm_all"))
    def cond_begin(self): self.I.append(Inst("@cond_begin"))
    def cond_end(self): self.I.append(Inst("@cond_end"))
    def opaque_begin(self): self.I.append(Inst("@opaque_begin"))
    def opaque_end(self): self.I.append(Inst("@opaque_end"))

def insert_waits(I):
    out = []
    lg = []
    vm = []
    cond_stack = []
    opaque = False
    def w(vmn=None, lgn=None):
        nonlocal lg, vm
        parts = []
        if vmn is not None and vmn < len(vm):
            parts.append(f"vmcnt({min(vmn,63)})"); vm = vm[len(vm) - min(vmn,63):] if min(vmn,63) else []
        if lgn is not None and lgn < len(lg):
            parts.append(f"lgkmcnt({min(lgn,15)})"); lg = lg[len(lg) - min(lgn,15):] if min(lgn,15) else []
        if parts: out.append(Inst("s_waitcnt " + " ".join(parts)))
    for ins in I:
        if ins.kind == "pseudo":
            if ins.op == "@opaque_begin":
                w(0, 0); opaque = True
            elif ins.op == "@opaque_end":
                opaque = False; lg = []; vm = []
            elif ins.op == "@wait_tag":
                idx = [k for k, x in enumerate(vm) if x.tag in ins.meta["tags"]]
                if idx: w(vmn=len(vm) - 1 - max(idx))
            elif ins.op == "@wait_vm_all": w(vmn=0)
            elif ins.op == "@wait_lgkm_all": w(lgn=0)
            elif ins.op == "@cond_begin":
                cond_stack.append((list(lg), list(vm)))
            elif ins.op == "@cond_end":
                lg0, vm0 = cond_stack.pop()
                inb = [k for k, x in enumerate(vm) if all(x is not y for y in vm0) and x.kind in ("vm_ld", "dma")]
                if inb: w(vmn=len(vm) - 1 - max(inb))
                if any(all(x is not y for y in lg0) for x in lg): w(lgn=0)
                lg, vm = lg0, vm0
                out.append(Inst("@cond_end"))
                continue
            out.append(ins); continue
        if opaque:
            out.append(ins); continue
        if ins.kind == "wait":
            m = re.search(r"vmcnt\((\d+)\)", ins.text)
            if m:
                n = int(m.group(1)); vm = vm[len(vm) - n:] if n and n < len(vm) else ([] if n == 0 else vm)
            m = re.search(r"lgkmcnt\((\d+)\)", ins.text)
            if m:
                n = int(m.group(1)); lg = lg[len(lg) - n:] if n and n < len(lg) else ([] if n == 0 else lg)
            out.append(ins); continue
        touch = ins.vr | ins.vw
        lgn = None; vmn = None
        for k, x in enumerate(lg):
            if x.vw & touch: lgn = len(lg) - 1 - k
        for k, x in enumerate(vm):
            if x.vw & touch: vmn = len(vm) - 1 - k
        w(vmn, lgn)
        out.append(ins)
        if ins.kind in ("ds_rd", "ds_wr"): lg.append(ins)
        if ins.kind in ("vm_ld", "vm_st", "dma"): vm.append(ins)
        if ins.kind == "smem": pass
    return out

def need_states(p, c):
    n = 0
    pv = p.kind in ("valu", "trans")
    cv = c.kind in ("valu", "trans")
    cmem = c.kind in ("ds_rd", "ds_wr", "vm_ld", "vm_st", "dma")
    if pv and c.kind == "mfma" and (p.vw & c.vr): n = max(n, 2)
    if p.kind == "mfma":
        P = p.mf["passes"]; D = p.mf["D"]
        if c.kind == "mfma":
            if D & (c.mf["A"] | c.mf["B"]): n = max(n, P + 4)
            if D & c.mf["C"]:
                if not (c.mf["C"] == D and c.mf["passes"] == P): n = max(n, P + 2)
            elif D & c.mf["D"]:
                if c.mf["passes"] != P: n = max(n, P + 2)
        if (cv or cmem) and (D & (c.vr | c.vw)): n = max(n, P + 4)
        if cv and (p.mf["C"] & c.vw): n = max(n, P - 1)
        if cmem and (p.mf["C"] & c.vw): n = max(n, P - 1)
    if p.kind == "trans" and (c.kind in ("valu", "mfma") or cmem) and (p.vw & c.vr): n = max(n, 2 if c.kind == "mfma" else 1)
    if pv and p.sw:
        if cmem and (p.sw & c.sr): n = max(n, 5)
        if cv and (p.sw & c.sr): n = max(n, 4 if c.op.startswith(("v_readlane", "v_writelane")) else 2)
        if cv and "vcc" in p.sw and (c.op.startswith("v_cndmask") or c.op.startswith("v_addc") ): n = max(n, 2)
        if "exec" in p.sw and (c.kind == "mfma" or c.op.startswith(("v_readfirst", "v_readlane", "v_permlane"))): n = max(n, 4)
        if c.kind == "salu" and (p.sw & c.sr): n = max(n, 1)
        if c.kind == "branch" and "vcc" in p.sw: n = max(n, 5) if False else n
    if pv and c.op.startswith(("v_readfirstlane", "v_readlane")) and (p.vw & c.vr): n = max(n, 1)
    if pv and c.op.startswith("v_permlane") and (p.vw & c.vr): n = max(n, 2)
    if pv and cv and "dpp" in c.text and (p.vw & c.vr): n = max(n, 2)
    if pv and cv and (("sdwa" in p.text) or ("op_sel" in p.text)) and (p.vw & (c.vr | c.vw)): n = max(n, 1)
    if p.kind == "salu" and "m0" in p.sw and c.kind == "dma": n = max(n, 1)
    if p.kind == "vm_st" and p.meta and p.meta.get("wide") and (p.meta["data"] & c.vw): n = max(n, 2)
    return n

def insert_nops(I, window=24):
    out = []
    for c in I:
        if c.kind in ("label", "directive", "pseudo"):
            if c.kind == "pseudo" and c.op in ("@cond_end", "@opaque_begin", "@opaque_end", "@cond_begin"):
                dist = 0; need = 0
                for p in reversed(out):
                    if dist >= 13: break
                    if p.kind == "mfma": need = max(need, p.mf["passes"] + 4 - dist)
                    elif p.kind in ("valu", "trans"): need = max(need, 5 - dist)
                    elif p.kind in ("vm_st",): need = max(need, 2 - dist)
                    dist += p.states()
                while need > 0:
                    k = min(need, 16); out.append(Inst(f"s_nop {k-1}")); need -= k
            out.append(c); continue
        dist = 0; need = 0
        for p in reversed(out):
            if dist >= window: break
            if p.kind not in ("label", "directive", "pseudo"):
                need = max(need, need_states(p, c) - dist)
            dist += p.states()
        while need > 0:
            k = min(need, 16); out.append(Inst(f"s_nop {k-1}")); need -= k
        out.append(c)
    return out

def finalize(prog):
    I = insert_nops(insert_waits(prog.I))
    lines = []
    for x in I:
        if x.kind == "pseudo": continue
        lines.append(x.text if x.kind in ("label", "directive") else "    " + x.text)
    return "\n".join(lines) + "\n", I

class Regs:
    def __init__(self, start, limit, pfx):
        self.free = set(range(start, limit)); self.pfx = pfx; self.names = {}; self.hi = start
    def alloc(self, name, n=1, align=None):
        align = align or (1 if n == 1 else (2 if n == 2 else 4))
        lim = max(self.free) + 1 if self.free else 0
        for b in range(0, lim):
            if b % align: continue
            if all((b + k) in self.free for k in range(n)):
                for k in range(n): self.free.discard(b + k)
                self.names[name] = (b, n); self.hi = max(self.hi, b + n)
                return b
        raise RuntimeError(f"out of {self.pfx} regs allocating {name} ({n}); names={self.names}")
    def release(self, name):
        b, n = self.names.pop(name)
        for k in range(n): self.free.add(b + k)

def vr(b, n=1): return f"v{b}" if n == 1 else f"v[{b}:{b+n-1}]"
def sr(b, n=1): return f"s{b}" if n == 1 else f"s[{b}:{b+n-1}]"

KD = """.section .rodata,"a"
.p2align 6
.amdhsa_kernel {name}
  .amdhsa_next_free_vgpr {vgpr}
  .amdhsa_next_free_sgpr {sgpr}
  .amdhsa_accum_offset {accum}
  .amdhsa_group_segment_fixed_size 0
  .amdhsa_kernarg_size 104
  .amdhsa_user_sgpr_count 2
  .amdhsa_user_sgpr_kernarg_segment_ptr 1
  .amdhsa_system_sgpr_workgroup_id_x 1
.end_amdhsa_kernel
"""
```

```python
from asmlib import *
import math
NAME = "gated_mix__grouped_kv_mqa__glu_gated_geglu__prompt"
HEADER = open("cdna_kernels/" + NAME + ".s.ref").read().split("; Override launch")[0]

WS_KF = 0
WS_VF = 65536
WS_G  = 131072
WS_FLAG = 147456
WS_QF = 1 << 20
WS_OH = 4 << 20
OH_STRIDE = 118 * 1024
WS_BYTES = 16 << 20
OOB = 0x40000000

LOG2E = 1.4426950408889634
def f2u(x):
    import struct
    return struct.unpack("<I", struct.pack("<f", x))[0]
def hexf(x): return f"0x{f2u(x):08x}"

KA = dict(x=0, wq=8, wk=16, wv=24, wo=32, bx=40, wg=48, wu=56, wd=64, gw=72, out=80, dbg=88, ws=96)
SZ = dict(x=2048*1024, wq=512*1024, wk=512*32, wv=512*32, wo=512*1024, wg=512*2752, wu=512*2752, wd=1376*1024, gw=1024, out=2048*1024, ws=WS_BYTES, dbg=256)

def mk_srd(P, d, ptr_lo, size):
    P(f"s_mov_b32 s{d}, s{ptr_lo}")
    P(f"s_and_b32 s{d+1}, s{ptr_lo+1}, 0xffff")
    P(f"s_mov_b32 s{d+2}, 0x{size:x}")
    P(f"s_mov_b32 s{d+3}, 0x20000")

def kernel_text(name, prog, vgpr, sgpr):
    body, I = finalize(prog)
    txt = f".text\n.globl {name}\n.p2align 8\n.type {name},@function\n{name}:\n" + body
    accum = (vgpr + 3) // 4 * 4
    txt += KD.format(name=name, vgpr=vgpr, sgpr=sgpr, accum=accum)
    return txt, I

def mfma(d, a, b, c=None):
    cs = "0" if c is None else vr(c, 16)
    return f"v_mfma_f32_32x32x16_bf16 {vr(d,16)}, {vr(a,4)}, {vr(b,4)}, {cs}"
```

```python
from common import *

X_OFF = 0; X_STRIDE = 1040
SLOT = [66560, 91392, 116224]; SLOT_SZ = 24832; UP_OFF = 12352
REG_A = 91392; REG_B = 124160; WV_OFF = 16512
KV_RING = 141056; ONES = 157440; GWL = 159488; MISC = 160512
LDS_BYTES = 163840

S_X, S_WQ, S_WKV, S_WM, S_GW, S_WS, S_OUT, S_WO, S_WD, S_DBG = 32, 36, 40, 44, 48, 52, 56, 60, 64, 68
S_W, S_J, S_G, S_TT, S_T0, S_T1, S_T2, S_T3, S_U0, S_NU = 72, 73, 74, 75, 76, 77, 78, 79, 80, 81
S_WOFF, S_WLDS, S_C1, S_C2, S_TILE, S_T4, S_T5, S_T6, S_T7 = 82, 83, 84, 85, 86, 87, 88, 89, 90
S_KVOFF, S_KVLDS, S_EX = 91, 92, 94
SGPR_N = 96

def prologue(P, V, endlabel):
    P("s_cmp_ge_u32 s2, 256")
    P(f"s_cbranch_scc1 {endlabel}")
    P("s_load_dwordx16 s[4:19], s[0:1], 0")
    P("s_load_dwordx8 s[20:27], s[0:1], 64")
    P("s_load_dwordx2 s[28:29], s[0:1], 96")
    lane = V.alloc("lane"); l16 = V.alloc("l16")
    P(f"v_lshrrev_b32 v1, 6, v0")
    P(f"v_and_b32 v{lane}, 63, v0")
    P(f"v_readfirstlane_b32 s{S_W}, v1")
    P(f"v_lshlrev_b32 v{l16}, 4, v{lane}")
    P(f"s_lshr_b32 s{S_J}, s2, 3")
    P(f"s_and_b32 s{S_J}, s{S_J}, 7")
    P(f"s_and_b32 s{S_G}, s2, 7")
    P(f"s_lshl_b32 s{S_G}, s{S_G}, 2")
    P(f"s_lshr_b32 s{S_T0}, s2, 6")
    P(f"s_add_u32 s{S_G}, s{S_G}, s{S_T0}")
    P(f"s_and_b32 s{S_TT}, s{S_W}, 1")
    P(f"s_lshl_b32 s{S_TILE}, s{S_G}, 1")
    P(f"s_add_u32 s{S_TILE}, s{S_TILE}, s{S_TT}")
    P("s_waitcnt lgkmcnt(0)")
    mk_srd(P, S_X, 4, SZ["x"])
    mk_srd(P, S_WQ, 6, SZ["wq"])
    P(f"s_cmp_eq_u32 s{S_TT}, 0")
    P(f"s_cselect_b32 s{S_WKV}, s8, s10")
    P(f"s_cselect_b32 s{S_WKV+1}, s9, s11")
    P(f"s_cselect_b32 s{S_WM}, s16, s18")
    P(f"s_cselect_b32 s{S_WM+1}, s17, s19")
    P(f"s_and_b32 s{S_WKV+1}, s{S_WKV+1}, 0xffff")
    P(f"s_mov_b32 s{S_WKV+2}, 0x{SZ['wk']:x}")
    P(f"s_mov_b32 s{S_WKV+3}, 0x20000")
    P(f"s_and_b32 s{S_WM+1}, s{S_WM+1}, 0xffff")
    P(f"s_mov_b32 s{S_WM+2}, 0x{SZ['wg']:x}")
    P(f"s_mov_b32 s{S_WM+3}, 0x20000")
    mk_srd(P, S_GW, 22, SZ["gw"])
    mk_srd(P, S_WS, 28, SZ["ws"])
    mk_srd(P, S_OUT, 24, SZ["out"])
    mk_srd(P, S_WO, 12, SZ["wo"])
    mk_srd(P, S_WD, 20, SZ["wd"])
    mk_srd(P, S_DBG, 26, SZ["dbg"])
    return lane, l16

def dma(P, vaddr, srd, soff, m0expr, offset=0, tag=None, mods=""):
    s, imm = m0expr
    if s is None: P(f"s_mov_b32 m0, 0x{imm:x}")
    elif imm == 0: P(f"s_mov_b32 m0, s{s}")
    else: P(f"s_add_u32 m0, s{s}, 0x{imm:x}")
    o = f" offset:{offset}" if offset else ""
    P(f"buffer_load_dwordx4 v{vaddr}, s[{srd}:{srd+3}], {soff} offen{o} lds{mods}", tag=tag)

def slice_pattern(P, V, lane, tmp):
    v = V.alloc("vslice")
    P(f"v_lshrrev_b32 v{tmp}, 3, v{lane}")
    P(f"v_lshlrev_b32 v{v}, 10, v{tmp}")
    P(f"v_lshlrev_b32 v{tmp}, 1, v{tmp}")
    P(f"v_and_b32 v{tmp}, 4, v{tmp}")
    P(f"v_xor_b32 v{tmp}, v{tmp}, v{lane}")
    P(f"v_and_b32 v{tmp}, 7, v{tmp}")
    P(f"v_lshl_add_u32 v{v}, v{tmp}, 4, v{v}")
    return v

def tr_slice_addr(P, V, name, lane, tmp, tmp2, base, s_col, hmul):
    v = V.alloc(name)
    P(f"v_lshrrev_b32 v{tmp}, 5, v{lane}")
    P(f"v_mul_u32_u24 v{v}, {hmul}, v{tmp}")
    P(f"v_bfe_u32 v{tmp}, v{lane}, 2, 2")
    P(f"v_add_u32 v{v}, v{v}, v{tmp}")
    P(f"v_lshlrev_b32 v{v}, 7, v{v}")
    P(f"v_lshlrev_b32 v{tmp}, 1, v{tmp}")
    P(f"v_and_b32 v{tmp}, 4, v{tmp}")
    P(f"v_bfe_u32 v{tmp2}, v{lane}, 4, 1")
    P(f"v_lshlrev_b32 v{tmp2}, 1, v{tmp2}")
    P(f"v_xor_b32 v{tmp}, v{tmp}, v{tmp2}")
    P(f"v_bfe_u32 v{tmp2}, v{lane}, 1, 1")
    P(f"v_xor_b32 v{tmp}, v{tmp}, v{tmp2}")
    P(f"s_lshl_b32 s{S_T0}, s{s_col}, 2")
    P(f"v_xor_b32 v{tmp}, s{S_T0}, v{tmp}")
    P(f"v_lshl_add_u32 v{v}, v{tmp}, 4, v{v}")
    P(f"v_and_b32 v{tmp}, 1, v{lane}")
    P(f"v_lshl_add_u32 v{v}, v{tmp}, 3, v{v}")
    P(f"v_add_u32 v{v}, 0x{base:x}, v{v}")
    return v

def xfrag_addr(P, V, name, lane, tmp, s_tt):
    v = V.alloc(name)
    P(f"v_and_b32 v{tmp}, 31, v{lane}")
    P(f"s_lshl_b32 s{S_T0}, s{s_tt}, 5")
    P(f"v_add_u32 v{tmp}, s{S_T0}, v{tmp}")
    P(f"v_mul_u32_u24 v{v}, {X_STRIDE}, v{tmp}")
    P(f"v_lshrrev_b32 v{tmp}, 5, v{lane}")
    P(f"v_lshl_add_u32 v{v}, v{tmp}, 4, v{v}")
    return v

def w_patterns(P, V, lane, tmp, tmp2):
    P(f"s_mul_i32 s{S_U0}, s{S_J}, 11")
    P(f"s_min_u32 s{S_U0}, s{S_U0}, 76")
    P(f"s_cmp_ge_u32 s{S_J}, 6")
    P(f"s_cselect_b32 s{S_NU}, 10, 11")
    P(f"s_lshr_b32 s{S_T0}, s{S_W}, 1")
    P(f"s_mul_i32 s{S_WOFF}, s{S_T0}, {8*2752}")
    P(f"s_lshl_b32 s{S_T1}, s{S_U0}, 5")
    P(f"s_add_u32 s{S_WOFF}, s{S_WOFF}, s{S_T1}")
    P(f"s_mul_i32 s{S_WLDS}, s{S_T0}, 3072")
    P(f"s_mul_i32 s{S_T1}, s{S_TT}, {UP_OFF}")
    P(f"s_add_u32 s{S_WLDS}, s{S_WLDS}, s{S_T1}")
    pats = []
    for i in range(3):
        v = V.alloc(f"wpat{i}")
        P(f"v_add_u32 v{tmp}, {64*i}, v{lane}")
        P(f"v_mul_u32_u24 v{v}, 2731, v{tmp}")
        P(f"v_lshrrev_b32 v{v}, 16, v{v}")
        P(f"v_mul_u32_u24 v{tmp2}, 24, v{v}")
        P(f"v_sub_u32 v{tmp}, v{tmp}, v{tmp2}")
        P(f"v_and_b32 v{tmp2}, 2, v{v}")
        P(f"v_xor_b32 v{tmp}, v{tmp}, v{tmp2}")
        P(f"v_mul_u32_u24 v{v}, 2752, v{v}")
        P(f"v_lshl_add_u32 v{v}, v{tmp}, 4, v{v}")
        P(f"v_lshrrev_b32 v{tmp}, 1, v{tmp}")
        P(f"v_mov_b32 v{tmp2}, 0x{OOB:x}")
        P(f"v_cmp_gt_u32 vcc, s{S_NU}, v{tmp}")
        P(f"v_cndmask_b32 v{v}, v{tmp2}, v{v}, vcc")
        pats.append(v)
    return pats

def w_tr_addrs(P, V, lane, tmp, tmp2):
    res = []
    P(f"s_lshr_b32 s{S_T0}, s{S_W}, 1")
    P(f"s_mul_i32 s{S_T0}, s{S_T0}, 3")
    b = V.alloc("wtrb")
    P(f"v_lshrrev_b32 v{tmp}, 5, v{lane}")
    P(f"v_lshlrev_b32 v{tmp}, 3, v{tmp}")
    P(f"v_bfe_u32 v{tmp2}, v{lane}, 2, 2")
    P(f"v_add_u32 v{tmp}, v{tmp}, v{tmp2}")
    P(f"v_mul_u32_u24 v{b}, 384, v{tmp}")
    P(f"v_bfe_u32 v{tmp}, v{lane}, 4, 1")
    P(f"v_mul_u32_u24 v{tmp}, {UP_OFF}, v{tmp}")
    P(f"v_add_u32 v{b}, v{b}, v{tmp}")
    P(f"v_and_b32 v{tmp}, 3, v{lane}")
    P(f"v_lshl_add_u32 v{b}, v{tmp}, 3, v{b}")
    P(f"v_add_u32 v{b}, 0x{SLOT[0]:x}, v{b}")
    P(f"v_bfe_u32 v{tmp2}, v{lane}, 3, 1")
    for i in range(3):
        v = V.alloc(f"wtr{i}")
        P(f"s_add_u32 s{S_T1}, s{S_T0}, {i}")
        P(f"v_xor_b32 v{tmp}, s{S_T1}, v{tmp2}")
        P(f"v_lshl_add_u32 v{v}, v{tmp}, 5, v{b}")
        res.append(v)
    V.release("wtrb")
    return res

def w_stage_dma(P, pats, s, tag):
    slot = SLOT[s % 3]
    P(f"s_add_u32 s{S_T2}, s{S_WOFF}, 0x{32*s*2752:x}")
    for i in range(3):
        dma(P, pats[i], S_WM, f"s{S_T2}", (S_WLDS, slot + 1024 * i), tag=tag)

def gelu_tile(acc, dst, tmp):
    L = []
    for r in range(8): L.append(f"v_mul_f32 v{tmp+r}, v{acc+r}, v{acc+r}")
    for r in range(8): L.append(f"v_fma_f32 v{tmp+r}, v{tmp+r}, s{S_C2}, v{tmp+8}")
    for r in range(8): L.append(f"v_mul_f32 v{tmp+r}, v{tmp+r}, v{acc+r}")
    for r in range(8): L.append(f"v_exp_f32 v{tmp+r}, v{tmp+r}")
    for r in range(8): L.append(f"v_mul_f32 v{acc+8+r}, v{acc+8+r}, v{acc+r}")
    for r in range(8): L.append(f"v_add_f32 v{tmp+r}, 1.0, v{tmp+r}")
    for r in range(8): L.append(f"v_rcp_f32 v{tmp+r}, v{tmp+r}")
    for r in range(8): L.append(f"v_mul_f32 v{tmp+r}, v{tmp+r}, v{acc+8+r}")
    for r in range(4): L.append(f"v_cvt_pk_bf16_f32 v{dst+r}, v{tmp+2*r}, v{tmp+2*r+1}")
    return L
GELU_C1 = -2.0 * math.sqrt(2.0 / math.pi) * LOG2E
GELU_C2 = GELU_C1 * 0.044715
QK_SCALE = 0.25 * LOG2E
```

```python
from parts import *

def kernel_A():
    P = Prog(); V = Regs(2, 256, "v")
    lane, l16 = prologue(P, V, "LA_end")
    t0 = V.alloc("t0"); t1 = V.alloc("t1")
    P(f"s_lshl_b32 s{S_T0}, s{S_G}, 16")
    P(f"s_lshl_b32 s{S_T1}, s{S_W}, 13")
    P(f"s_add_u32 s{S_T0}, s{S_T0}, s{S_T1}")
    P(f"s_mul_i32 s{S_T1}, s{S_W}, {8*X_STRIDE}")
    for i in range(8):
        P(f"s_add_u32 s{S_T2}, s{S_T0}, {1024*i}")
        dma(P, l16, S_X, f"s{S_T2}", (S_T1, X_STRIDE * i), tag="x")
    vsl = slice_pattern(P, V, lane, t0)
    P(f"s_lshl_b32 s{S_T4}, s{S_W}, 15")
    P(f"s_lshl_b32 s{S_T0}, s{S_J}, 7")
    P(f"s_add_u32 s{S_T4}, s{S_T4}, s{S_T0}")
    P(f"s_lshl_b32 s{S_T5}, s{S_W}, 12")
    def wq_half(hb, tag):
        for i in range(4):
            P(f"s_add_u32 s{S_T2}, s{S_T4}, 0x{hb*256*1024 + i*8192:x}")
            dma(P, vsl, S_WQ, f"s{S_T2}", (S_T5, (REG_A if hb == 0 else REG_B) + 1024 * i), tag=tag)
    P(f"s_cmp_ge_u32 s{S_J}, 6")
    P("s_cbranch_scc1 LA_des0")
    P.cond_begin
    wq_half(1, "b0")
    P("s_branch LA_j0")
    P("LA_des0:")
    n0 = len(P.I)
    P(f"s_lshr_b32 s{S_T0}, s{S_W}, 1")
    P(f"s_lshl_b32 s{S_T0}, s{S_T0}, 12")
    P(f"s_mul_i32 s{S_T1}, s{S_TT}, {WV_OFF}")
    P(f"s_add_u32 s{S_T1}, s{S_T1}, s{S_T0}")
    P(f"s_add_u32 m0, s{S_T1}, 0x{REG_B:x}")
    P("s_nop 0")
    for i in range(4):
        P(f"@raw")
        P.I[-1] = Inst(f"buffer_load_dwordx4 v{l16}, s[{S_WKV}:{S_WKV+3}], s{S_T0} offen offset:{1024*i} lds")
        P.I[-1].kind = "salu"
    P("LA_j0:")
    wq_half(0, "a0")
    dma(P, l16, S_GW, "0", (None, GWL), tag="a0")
    pats = w_patterns(P, V, lane, t0, t1)
    w_stage_dma(P, pats, 0, "w0")
    vxa = xfrag_addr(P, V, "vxa", lane, t0, S_TT)
    P(f"s_lshr_b32 s{S_T3}, s{S_W}, 1")
    P(f"s_and_b32 s{S_T3}, s{S_T3}, 1")
    vtn = tr_slice_addr(P, V, "vtn", lane, t0, t1, REG_A, S_T3, 8)
    vgw = V.alloc("vgw")
    P(f"v_lshrrev_b32 v{t0}, 5, v{lane}")
    P(f"v_lshlrev_b32 v{vgw}, 4, v{t0}")
    P(f"v_add_u32 v{vgw}, 0x{GWL:x}, v{vgw}")
    wtr = w_tr_addrs(P, V, lane, t0, t1)
    accq = V.alloc("accq", 16); accz = V.alloc("accz", 16)
    fx = [V.alloc(f"fx{i}", 4) for i in range(2)]
    fw = [V.alloc(f"fw{i}", 4) for i in range(6)]
    fg = [V.alloc(f"fg{i}", 4) for i in range(2)]
    P.wait_tag("x", "b0", "a0")
    P("s_barrier")
    P(f"s_cmp_lt_u32 s{S_J}, 6")
    P("s_cbranch_scc1 LA_nokv")
    P(f"s_cmp_ge_u32 s{S_W}, 2")
    P("s_cbranch_scc1 LA_nokv")
    P.cond_begin()
    P(f"s_sub_u32 s{S_T6}, s{S_J}, 6")
    vxk = xfrag_addr(P, V, "vxk", lane, t0, S_T6)
    vkw = V.alloc("vkw")
    P(f"v_lshrrev_b32 v{t0}, 5, v{lane}")
    P(f"v_lshlrev_b32 v{t0}, 3, v{t0}")
    P(f"v_bfe_u32 v{t1}, v{lane}, 2, 2")
    P(f"v_add_u32 v{t0}, v{t0}, v{t1}")
    P(f"v_lshlrev_b32 v{vkw}, 5, v{t0}")
    P(f"v_bfe_u32 v{t0}, v{lane}, 4, 1")
    P(f"v_mul_u32_u24 v{t0}, {WV_OFF}, v{t0}")
    P(f"v_add_u32 v{vkw}, v{vkw}, v{t0}")
    P(f"v_and_b32 v{t0}, 3, v{lane}")
    P(f"v_lshl_add_u32 v{vkw}, v{t0}, 3, v{vkw}")
    P(f"v_add_u32 v{vkw}, 0x{REG_B:x}, v{vkw}")
    P(f"s_lshl_b32 s{S_T7}, s{S_G}, 1")
    P(f"s_add_u32 s{S_T7}, s{S_T7}, s{S_T6}")
    P(f"s_lshl_b32 s{S_T7}, s{S_T7}, 10")
    def kv_chain(which):
        def loads(ks):
            P(f"ds_read_b128 {vr(fx[ks%2],4)}, v{vxk} offset:{ks*32}")
            P(f"ds_read_b64_tr_b16 {vr(fw[ks%2],2)}, v{vkw} offset:{ks*512}")
            P(f"ds_read_b64_tr_b16 {vr(fw[ks%2]+2,2)}, v{vkw} offset:{ks*512+128}")
        loads(0)
        for ks in range(32):
            if ks + 1 < 32: loads(ks + 1)
            a, b = (fw[ks%2], fx[ks%2]) if which == 0 else (fx[ks%2], fw[ks%2])
            P(mfma(accq, a, b, accq if ks else None))
    P(f"s_cmp_eq_u32 s{S_W}, 1")
    P("s_cbranch_scc1 LA_vchain")
    P.cond_begin()
    kv_chain(0)
    P(f"s_mov_b32 s{S_T0}, {hexf(QK_SCALE)}")
    for r in range(8): P(f"v_mul_f32 v{accq+r}, s{S_T0}, v{accq+r}")
    for r in range(4): P(f"v_cvt_pk_bf16_f32 v{fw[2]+r}, v{accq+2*r}, v{accq+2*r+1}")
    P(f"s_add_u32 s{S_T7}, s{S_T7}, 0x{WS_KF:x}")
    P(f"buffer_store_dwordx4 {vr(fw[2],4)}, v{l16}, s[{S_WS}:{S_WS+3}], s{S_T7} offen")
    P.cond_end()
    P("s_branch LA_nokv")
    P("LA_vchain:")
    P.cond_begin()
    kv_chain(1)
    for r in range(4): P(f"v_cvt_pk_bf16_f32 v{fw[2]+r}, v{accq+2*r}, v{accq+2*r+1}")
    for r in range(4): P(f"v_cvt_pk_bf16_f32 v{fw[3]+r}, v{accq+8+2*r}, v{accq+8+2*r+1}")
    P(f"v_lshrrev_b32 v{t0}, 5, v{lane}")
    P(f"v_lshlrev_b32 v{t0}, 8, v{t0}")
    P(f"v_and_b32 v{t1}, 15, v{lane}")
    P(f"v_lshl_add_u32 v{t0}, v{t1}, 4, v{t0}")
    P(f"v_and_b32 v{t1}, 16, v{lane}")
    P(f"v_cmp_eq_u32 vcc, 0, v{t1}")
    P(f"v_mov_b32 v{t1}, 0x{OOB:x}")
    P(f"v_cndmask_b32 v{t0}, v{t0}, v{t1}, vcc")
    P(f"s_add_u32 s{S_T7}, s{S_T7}, 0x{WS_VF:x}")
    P(f"buffer_store_dwordx4 {vr(fw[2],4)}, v{t0}, s[{S_WS}:{S_WS+3}], s{S_T7} offen")
    P(f"buffer_store_dwordx4 {vr(fw[3],4)}, v{t0}, s[{S_WS}:{S_WS+3}], s{S_T7} offen offset:512")
    P.cond_end()
    P.cond_end()
    P("LA_nokv:")
    V.release("vxk"); V.release("vkw")
    def q_loads(ks):
        P(f"ds_read_b128 {vr(fx[ks%2],4)}, v{vxa} offset:{ks*32}")
        P(f"ds_read_b64_tr_b16 {vr(fw[ks%2],2)}, v{vtn} offset:{ks*2048}")
        P(f"ds_read_b64_tr_b16 {vr(fw[ks%2]+2,2)}, v{vtn} offset:{ks*2048+512}")
        P(f"ds_read_b128 {vr(fg[ks%2],4)}, v{vgw} offset:{ks*32}")
    def q_half(k0):
        q_loads(k0)
        for ks in range(k0, k0 + 16):
            if ks + 1 < k0 + 16: q_loads(ks + 1)
            P(mfma(accq, fw[ks%2], fx[ks%2], accq if ks else None))
            P(mfma(accz, fg[ks%2], fx[ks%2], accz if ks else None))
    q_half(0)
    P("s_barrier")
    w_stage_dma(P, pats, 1, "w1")
    P(f"s_cmp_lt_u32 s{S_J}, 6")
    P("s_cbranch_scc1 LA_nob")
    P.cond_begin()
    wq_half(1, "b1")
    P.wait_tag("b1")
    P("s_barrier")
    P.cond_end()
    P("LA_nob:")
    q_half(16)
    P("s_barrier")
    w_stage_dma(P, pats, 2, "w2")
    qf = V.alloc("qf", 8)
    for r in range(8): P(f"v_cvt_pk_bf16_f32 v{qf+r}, v{accq+2*r}, v{accq+2*r+1}")
    P(f"s_lshl_b32 s{S_T0}, s{S_TILE}, 5")
    P(f"s_lshl_b32 s{S_T1}, s{S_J}, 2")
    P(f"s_add_u32 s{S_T0}, s{S_T0}, s{S_T1}")
    P(f"s_lshl_b32 s{S_T1}, s{S_T3}, 1")
    P(f"s_add_u32 s{S_T0}, s{S_T0}, s{S_T1}")
    P(f"s_lshl_b32 s{S_T0}, s{S_T0}, 10")
    P(f"s_add_u32 s{S_T0}, s{S_T0}, 0x{WS_QF:x}")
    P(f"buffer_store_dwordx4 {vr(qf,4)}, v{l16}, s[{S_WS}:{S_WS+3}], s{S_T0} offen")
    P(f"buffer_store_dwordx4 {vr(qf+4,4)}, v{l16}, s[{S_WS}:{S_WS+3}], s{S_T0} offen offset:1024")
    vg = V.alloc("vg")
    P(f"v_mul_f32 v{t0}, {hexf(-LOG2E)}, v{accz}")
    P(f"v_exp_f32 v{t0}, v{t0}")
    P(f"v_add_f32 v{t0}, 1.0, v{t0}")
    P(f"v_rcp_f32 v{vg}, v{t0}")
    P(f"v_and_b32 v{t0}, 31, v{lane}")
    P(f"v_lshlrev_b32 v{t0}, 2, v{t0}")
    P(f"s_lshl_b32 s{S_T0}, s{S_TILE}, 7")
    P(f"s_add_u32 s{S_T0}, s{S_T0}, 0x{WS_G:x}")
    P(f"buffer_store_dword v{vg}, v{t0}, s[{S_WS}:{S_WS+3}], s{S_T0} offen")
    V.release("accq"); V.release("accz")
    acc = [V.alloc(f"acc{i}", 16) for i in range(3)]
    def gu_loads(ks):
        s, kk = ks // 2, ks % 2
        so = SLOT[s % 3] - SLOT[0] + kk * 6144
        P(f"ds_read_b128 {vr(fx[ks%2],4)}, v{vxa} offset:{ks*32}")
        for i in range(3):
            f = fw[3 * (ks % 2) + i]
            P(f"ds_read_b64_tr_b16 {vr(f,2)}, v{wtr[i]} offset:{so}")
            P(f"ds_read_b64_tr_b16 {vr(f+2,2)}, v{wtr[i]} offset:{so+1536}")
    for s in range(16):
        P.wait_tag(f"w{s}")
        P("s_barrier")
        if s >= 1 and s + 2 < 16: w_stage_dma(P, pats, s + 2, f"w{s+2}")
        gu_loads(2 * s); gu_loads(2 * s + 1)
        for ks in (2 * s, 2 * s + 1):
            for i in range(3):
                P(mfma(acc[i], fw[3 * (ks % 2) + i], fx[ks % 2], acc[i] if ks else None))
    tmp = V.alloc("gt", 9)
    P(f"s_mov_b32 s{S_C2}, {hexf(GELU_C2)}")
    P(f"v_mov_b32 v{tmp+8}, {hexf(GELU_C1)}")
    P(f"s_lshr_b32 s{S_T0}, s{S_W}, 1")
    P(f"s_mul_i32 s{S_T0}, s{S_T0}, 3")
    P(f"s_mul_i32 s{S_T1}, s{S_TILE}, 118")
    P(f"s_add_u32 s{S_T1}, s{S_T1}, s{S_U0}")
    for i in range(3):
        for x in gelu_tile(acc[i], fw[i], tmp): P(x)
        P(f"s_add_u32 s{S_T2}, s{S_T0}, {i}")
        P(f"s_add_u32 s{S_T4}, s{S_T1}, s{S_T2}")
        P(f"s_lshl_b32 s{S_T4}, s{S_T4}, 10")
        P(f"s_add_u32 s{S_T4}, s{S_T4}, 0x{WS_OH:x}")
        P(f"s_cmp_lt_u32 s{S_T2}, s{S_NU}")
        P(f"s_cselect_b32 s{S_T4}, s{S_T4}, 0x{OOB:x}")
        P(f"buffer_store_dwordx4 {vr(fw[i],4)}, v{l16}, s[{S_WS}:{S_WS+3}], s{S_T4} offen")
    P("LA_end:")
    P("s_endpgm")
    return kernel_text("ka_kernel", P, max(V.hi, 8), SGPR_N)

if __name__ == "__main__":
    import sys
    ta, IA = kernel_A()
    hdr = HEADER + f"; @launch kernel=ka_kernel grid=(256,1,1) block=(512,1,1) lds={LDS_BYTES}\n"
    hdr += '.amdgcn_target "amdgcn-amd-amdhsa--gfx950"\n'
    open("v1a.s", "w").write(hdr + ta)
    print("insts", len(IA))
```

```python
from parts import *

def attn_setup(P, V, lane, l16, t0, t1):
    A = {}
    P(f"s_lshr_b32 s{S_T0}, s{S_W}, 2")
    P(f"s_lshl_b32 s{S_T1}, s{S_T0}, 12")
    vk = V.alloc("vk"); vv = [V.alloc("vv0"), V.alloc("vv1")]
    P(f"s_add_u32 s{S_T1}, s{S_T1}, 0x{KV_RING:x}")
    P(f"v_add_u32 v{vk}, s{S_T1}, v{l16}")
    P(f"v_lshrrev_b32 v{t0}, 5, v{lane}")
    P(f"v_lshlrev_b32 v{t0}, 8, v{t0}")
    P(f"v_and_b32 v{t1}, 15, v{lane}")
    P(f"v_lshl_add_u32 v{t0}, v{t1}, 4, v{t0}")
    P(f"v_and_b32 v{t1}, 16, v{lane}")
    P(f"v_cmp_eq_u32 vcc, 0, v{t1}")
    P(f"s_add_u32 s{S_T1}, s{S_T1}, 2048")
    for s in range(2):
        P(f"v_mov_b32 v{t1}, s{S_T1}")
        P(f"v_add_u32 v{t1}, {8192*s}, v{t1}")
        P(f"v_mov_b32 v{vv[s]}, 0x{ONES:x}")
        P(f"v_cndmask_b32 v{vv[s]}, v{t1}, v{vv[s]}, vcc")
        P(f"v_add_u32 v{vv[s]}, v{vv[s]}, v{t0}")
    P(f"s_lshl_b32 s{S_KVOFF}, s{S_T0}, 15")
    P(f"s_lshr_b32 s{S_T1}, s{S_W}, 1")
    P(f"s_and_b32 s{S_T1}, s{S_T1}, 1")
    P(f"s_lshl_b32 s{S_T1}, s{S_T1}, 16")
    P(f"s_add_u32 s{S_KVOFF}, s{S_KVOFF}, s{S_T1}")
    P(f"s_lshl_b32 s{S_T1}, s{S_TT}, 10")
    P(f"s_add_u32 s{S_KVOFF}, s{S_KVOFF}, s{S_T1}")
    P(f"s_lshl_b32 s{S_KVLDS}, s{S_W}, 10")
    P(f"s_add_u32 s{S_KVLDS}, s{S_KVLDS}, 0x{KV_RING:x}")
    A.update(vk=vk, vv=vv)
    return A

def ones_init(P, lane, t0, t1):
    P(f"s_lshl_b32 s{S_T0}, s{S_W}, 8")
    P(f"s_add_u32 s{S_T0}, s{S_T0}, 0x{ONES:x}")
    P(f"v_lshlrev_b32 v{t0}, 2, v{lane}")
    P(f"v_add_u32 v{t0}, s{S_T0}, v{t0}")
    P(f"v_mov_b32 v{t1}, 0x3f803f80")
    P(f"ds_write_b32 v{t0}, v{t1}")

def kv_dma(P, l16, c, mods=""):
    P(f"s_add_u32 s{S_T2}, s{S_KVOFF}, {2048*c}")
    dma(P, l16, S_WS, f"s{S_T2}", (S_KVLDS, 8192 * (c & 1)), tag=f"kv{c}", mods=mods)

def attention(P, V, A, qa, qb, l16, hook=None, mods="", prio=False):
    S = [V.alloc("Sa", 16), V.alloc("Sb", 16)]
    O = [V.alloc("Oa", 16), V.alloc("Ob", 16)]
    fk = V.alloc("fk", 4); fv = [V.alloc("fv1", 4), V.alloc("fv2", 4)]
    q = [qa, qb]
    H = hook or (lambda it, ph, pos: None)
    def rdK(it): P(f"ds_read_b128 {vr(fk,4)}, v{A['vk']} offset:{((it>>1)&1)*8192 + (it&1)*1024}")
    def rdV(it, half): P(f"ds_read_b128 {vr(fv[half],4)}, v{A['vv'][(it>>1)&1]} offset:{(it&1)*1024 + half*512}")
    E = lambda x, i: P(f"v_exp_f32 v{S[x]+i}, v{S[x]+i}")
    def C(x, i):
        b = S[x] + (8 if i >= 4 else 0); k = i & 3
        P(f"v_cvt_pk_bf16_f32 v{b+k}, v{b+2*k}, v{b+2*k+1}")
    rdK(0); rdV(0, 0)
    P(mfma(S[0], fk, q[0]))
    for it in range(32):
        for x in range(2):
            y = 1 - x
            first = (it == 0)
            if prio: P(f"s_setprio {3 - (2*((it+1)&1) + x)}") if True else None
            E(x, 0); E(x, 1)
            if x == 0:
                if it > 0: P(mfma(O[1], fv[1], S[1] + 8, O[1]))
                rdV(it, 1)
            else:
                P(mfma(O[0], fv[1], S[0] + 8, O[0]))
            H(it, x, 0)
            for i in range(2, 7): E(x, i)
            if x == 0: P(mfma(S[1], fk, q[1]))
            elif it < 31: P(mfma(S[0], fk, q[0]))
            H(it, x, 1)
            E(x, 7)
            for i in range(4): C(x, i)
            E(x, 8); E(x, 9)
            if x == 0 and (it & 1) and it < 31:
                c = it >> 1
                P.wait_tag(f"kv{c+1}"); H(it, x, "presync"); P.wait_lgkm_all()
                P("s_barrier")
            P(mfma(O[x], fv[0], S[x], None if first else O[x]))
            if x == 0:
                if it < 31: rdK(it + 1)
                if (it & 1) and (it >> 1) + 2 < 16: kv_dma(P, l16, (it >> 1) + 2, mods)
            else:
                if it < 31: rdV(it + 1, 0)
            H(it, x, 2)
            for i in range(10, 13): E(x, i)
            H(it, x, 3)
            for i in range(13, 16): E(x, i)
            for i in range(4, 8): C(x, i)
    P(mfma(O[1], fv[1], S[1] + 8, O[1]))
    for n in ("Sa", "Sb", "fk", "fv1", "fv2"): V.release(n)
    return O

def attn_finish(P, V, O, lane, l16, vg, t0, scratch, mods=""):
    va = V.alloc("xaddr")
    P(f"s_mul_i32 s{S_T0}, s{S_W}, 3072")
    P(f"s_add_u32 s{S_T0}, s{S_T0}, 0x{scratch:x}")
    P(f"v_add_u32 v{va}, s{S_T0}, v{l16}")
    for i in range(3): P(f"ds_write_b128 v{va}, {vr(O[1]+4+4*i,4)} offset:{1024*i}")
    P(f"s_xor_b32 s{S_T1}, s{S_W}, 4")
    P(f"s_mul_i32 s{S_T0}, s{S_T1}, 3072")
    P(f"s_add_u32 s{S_T0}, s{S_T0}, 0x{scratch:x}")
    P(f"v_add_u32 v{va}, s{S_T0}, v{l16}")
    P.wait_lgkm_all()
    P("s_barrier")
    for i in range(3): P(f"ds_read_b128 {vr(O[1]+4+4*i,4)}, v{va} offset:{1024*i}")
    P(f"v_add_f32 v{O[0]+7}, v{O[0]+7}, v{O[1]+7}")
    for r in range(8, 16): P(f"v_add_f32 v{O[0]+r}, v{O[0]+r}, v{O[1]+r}")
    P(f"v_rcp_f32 v{t0}, v{O[0]+7}")
    P(f"v_mul_f32 v{t0}, v{t0}, v{vg}")
    for r in range(8, 16): P(f"v_mul_f32 v{O[0]+r}, v{O[0]+r}, v{t0}")
    for r in range(4): P(f"v_cvt_pk_bf16_f32 v{O[1]+r}, v{O[0]+8+2*r}, v{O[0]+9+2*r}")
    P(f"s_lshr_b32 s{S_T0}, s{S_W}, 1")
    P(f"s_and_b32 s{S_T0}, s{S_T0}, 1")
    P(f"s_lshl_b32 s{S_T0}, s{S_T0}, 1")
    P(f"s_lshr_b32 s{S_T1}, s{S_W}, 2")
    P(f"s_add_u32 s{S_T0}, s{S_T0}, s{S_T1}")
    P(f"s_lshl_b32 s{S_T1}, s{S_J}, 2")
    P(f"s_add_u32 s{S_T0}, s{S_T0}, s{S_T1}")
    P(f"s_mul_i32 s{S_T1}, s{S_TILE}, 118")
    P(f"s_add_u32 s{S_T0}, s{S_T0}, s{S_T1}")
    P(f"s_lshl_b32 s{S_T0}, s{S_T0}, 10")
    P(f"s_add_u32 s{S_T0}, s{S_T0}, 0x{WS_OH + 86*1024:x}")
    P(f"buffer_store_dwordx4 {vr(O[1],4)}, v{l16}, s[{S_WS}:{S_WS+3}], s{S_T0} offen{mods}", tag="ost")
    V.release("xaddr")

def kernel_B(prio=False):
    P = Prog(); V = Regs(2, 256, "v")
    lane, l16 = prologue(P, V, "LB_end")
    t0 = V.alloc("t0"); t1 = V.alloc("t1")
    A = attn_setup(P, V, lane, l16, t0, t1)
    kv_dma(P, l16, 0); kv_dma(P, l16, 1)
    qf = V.alloc("qf", 8); vg = V.alloc("vg")
    P(f"s_lshr_b32 s{S_T0}, s{S_W}, 1")
    P(f"s_and_b32 s{S_T0}, s{S_T0}, 1")
    P(f"s_lshl_b32 s{S_T0}, s{S_T0}, 1")
    P(f"s_lshl_b32 s{S_T1}, s{S_J}, 2")
    P(f"s_add_u32 s{S_T0}, s{S_T0}, s{S_T1}")
    P(f"s_lshl_b32 s{S_T1}, s{S_TILE}, 5")
    P(f"s_add_u32 s{S_T0}, s{S_T0}, s{S_T1}")
    P(f"s_lshr_b32 s{S_T1}, s{S_W}, 2")
    P(f"s_add_u32 s{S_T3}, s{S_T0}, s{S_T1}")
    P(f"s_xor_b32 s{S_T4}, s{S_T3}, 1")
    for s, r in ((S_T3, qf), (S_T4, qf + 4)):
        P(f"s_lshl_b32 s{s}, s{s}, 10")
        P(f"s_add_u32 s{s}, s{s}, 0x{WS_QF:x}")
        P(f"buffer_load_dwordx4 {vr(r,4)}, v{l16}, s[{S_WS}:{S_WS+3}], s{s} offen")
    P(f"v_and_b32 v{t0}, 31, v{lane}")
    P(f"v_lshlrev_b32 v{t0}, 2, v{t0}")
    P(f"s_lshl_b32 s{S_T0}, s{S_TILE}, 7")
    P(f"s_add_u32 s{S_T0}, s{S_T0}, 0x{WS_G:x}")
    P(f"buffer_load_dword v{vg}, v{t0}, s[{S_WS}:{S_WS+3}], s{S_T0} offen")
    ones_init(P, lane, t0, t1)
    P.wait_vm_all(); P.wait_lgkm_all()
    P("s_barrier")
    O = attention(P, V, A, qf, qf + 4, l16, prio=prio)
    attn_finish(P, V, O, lane, l16, vg, t0, 0)
    P("LB_end:")
    P("s_endpgm")
    return kernel_text("kb_kernel", P, max(V.hi, 8), SGPR_N)

FSLOT = [0, 32768, 65536, 98304]
S_FW, S_FB, S_FL = S_WOFF, S_WLDS, S_U0
def fin_setup(P, V, lane, l16, t0, t1):
    F = {}
    P(f"s_lshr_b32 s{S_T3}, s{S_W}, 1")
    P(f"s_and_b32 s{S_T3}, s{S_T3}, 1")
    va0 = tr_slice_addr(P, V, "fa0", lane, t0, t1, 0, S_T3, 4)
    P(f"s_lshr_b32 s{S_T0}, s{S_W}, 2")
    P(f"s_lshl_b32 s{S_T1}, s{S_T0}, 5")
    P(f"v_xor_b32 v{va0}, s{S_T1}, v{va0}")
    P(f"s_lshl_b32 s{S_T1}, s{S_T0}, 11")
    P(f"v_add_u32 v{va0}, s{S_T1}, v{va0}")
    va1 = V.alloc("fa1"); vb0 = V.alloc("fb0"); vb1 = V.alloc("fb1")
    P(f"v_add_u32 v{va1}, 0x10000, v{va0}")
    P(f"s_lshl_b32 s{S_T1}, s{S_T0}, 10")
    P(f"s_lshl_b32 s{S_T2}, s{S_TT}, 13")
    P(f"s_add_u32 s{S_T1}, s{S_T1}, s{S_T2}")
    P(f"s_add_u32 s{S_T1}, s{S_T1}, 16384")
    P(f"v_add_u32 v{vb0}, s{S_T1}, v{l16}")
    P(f"v_add_u32 v{vb1}, 0x10000, v{vb0}")
    P(f"s_lshl_b32 s{S_FW}, s{S_W}, 14")
    P(f"s_lshl_b32 s{S_T1}, s{S_J}, 7")
    P(f"s_add_u32 s{S_FW}, s{S_FW}, s{S_T1}")
    P(f"s_mul_i32 s{S_FB}, s{S_G}, {2*118}")
    P(f"s_add_u32 s{S_FB}, s{S_FB}, s{S_W}")
    P(f"s_lshl_b32 s{S_FB}, s{S_FB}, 10")
    P(f"s_add_u32 s{S_FB}, s{S_FB}, 0x{WS_OH:x}")
    P(f"s_lshl_b32 s{S_FL}, s{S_W}, 10")
    F.update(va=[va0, va1], vb=[vb0, vb1])
    return F

def fin_dma_w(P, vsl, st, slot, tag):
    srd, u0 = (S_WD, 8 * st) if st < 11 else (S_WO, 8 * (st - 11))
    P(f"s_lshl_b32 s{S_T4}, s{S_FL}, 1")
    for i in range(2):
        P(f"s_add_u32 s{S_T2}, s{S_FW}, 0x{(16*u0 + 8*i)*1024:x}")
        dma(P, vsl, srd, f"s{S_T2}", (S_T4, slot + 1024 * i), tag=tag)

def fin_dma_b(P, l16, st, slot, tag, mods=""):
    u0 = 8 * st if st < 11 else 86 + 8 * (st - 11)
    for t in range(2):
        P(f"s_add_u32 s{S_T2}, s{S_FB}, 0x{(t*118 + u0)*1024:x}")
        if st == 10:
            P(f"s_cmp_lt_u32 s{S_W}, 6")
            P(f"s_cselect_b32 s{S_T2}, s{S_T2}, 0x{OOB:x}")
        dma(P, l16, S_WS, f"s{S_T2}", (S_FL, slot + 16384 + 8192 * t), tag=tag, mods=mods)

def fin_reads(P, F, slot, i, fa, fb):
    hi = 1 if slot >= 65536 else 0
    o = slot - 65536 * hi
    return [f"ds_read_b64_tr_b16 {vr(fa,2)}, v{F['va'][hi]} offset:{o + 4096*i}",
            f"ds_read_b64_tr_b16 {vr(fa+2,2)}, v{F['va'][hi]} offset:{o + 4096*i + 1024}",
            f"ds_read_b128 {vr(fb,4)}, v{F['vb'][hi]} offset:{o + 2048*i}"]

def fin_epilogue(P, V, acc, lane, l16, t0, t1, scratch):
    va = V.alloc("xaddr"); tmp = V.alloc("ftmp", 8)
    P(f"s_lshl_b32 s{S_T0}, s{S_W}, 11")
    P(f"s_add_u32 s{S_T0}, s{S_T0}, 0x{scratch:x}")
    P(f"v_add_u32 v{va}, s{S_T0}, v{l16}")
    for i in range(2): P(f"ds_write_b128 v{va}, {vr(acc+8+4*i,4)} offset:{1024*i}")
    P(f"v_xor_b32 v{va}, 0x2000, v{va}") if scratch % 16384 == 0 else None
    assert scratch % 16384 == 0
    P(f"v_and_b32 v{t0}, 31, v{lane}")
    P(f"v_lshlrev_b32 v{t0}, 10, v{t0}")
    P(f"v_lshrrev_b32 v{t1}, 5, v{lane}")
    P(f"v_lshl_add_u32 v{t0}, v{t1}, 4, v{t0}")
    P(f"s_lshl_b32 s{S_T0}, s{S_TILE}, 15")
    P(f"s_lshl_b32 s{S_T1}, s{S_J}, 7")
    P(f"s_add_u32 s{S_T0}, s{S_T0}, s{S_T1}")
    P(f"s_lshr_b32 s{S_T1}, s{S_W}, 1")
    P(f"s_and_b32 s{S_T1}, s{S_T1}, 1")
    P(f"s_lshl_b32 s{S_T1}, s{S_T1}, 6")
    P(f"s_add_u32 s{S_T0}, s{S_T0}, s{S_T1}")
    P(f"s_lshr_b32 s{S_T1}, s{S_W}, 2")
    P(f"s_lshl_b32 s{S_T1}, s{S_T1}, 5")
    P(f"s_add_u32 s{S_T0}, s{S_T0}, s{S_T1}")
    P.wait_lgkm_all()
    P("s_barrier")
    for i in range(2): P(f"ds_read_b128 {vr(tmp+4*i,4)}, v{va} offset:{1024*i}")
    for r in range(8): P(f"v_add_f32 v{acc+r}, v{acc+r}, v{tmp+r}")
    for r in range(4): P(f"v_cvt_pk_bf16_f32 v{tmp+r}, v{acc+2*r}, v{acc+2*r+1}")
    P(f"v_permlane32_swap_b32 v{tmp}, v{tmp+2}")
    P(f"v_permlane32_swap_b32 v{tmp+1}, v{tmp+3}")
    P(f"buffer_store_dwordx4 {vr(tmp,4)}, v{t0}, s[{S_OUT}:{S_OUT+3}], s{S_T0} offen")

def kernel_C():
    P = Prog(); V = Regs(2, 256, "v")
    lane, l16 = prologue(P, V, "LC_end")
    t0 = V.alloc("t0"); t1 = V.alloc("t1")
    vsl = slice_pattern(P, V, lane, t0)
    F = fin_setup(P, V, lane, l16, t0, t1)
    for st in range(3):
        fin_dma_w(P, vsl, st, FSLOT[st % 4], f"f{st}"); fin_dma_b(P, l16, st, FSLOT[st % 4], f"f{st}")
    vg = V.alloc("vg")
    P(f"v_and_b32 v{t0}, 31, v{lane}")
    P(f"v_lshlrev_b32 v{t0}, 2, v{t0}")
    P(f"s_lshl_b32 s{S_T0}, s{S_TILE}, 7")
    P(f"s_add_u32 s{S_T0}, s{S_T0}, 0x{WS_G:x}")
    P(f"buffer_load_dword v{vg}, v{t0}, s[{S_WS}:{S_WS+3}], s{S_T0} offen")
    acc = V.alloc("acc", 16)
    fa = [V.alloc(f"fa_{i}", 4) for i in range(4)]; fb = [V.alloc(f"fb_{i}", 4) for i in range(4)]
    for st in range(15):
        P.wait_tag(f"f{st}")
        P("s_barrier")
        if st + 3 < 15:
            fin_dma_w(P, vsl, st + 3, FSLOT[(st + 3) % 4], f"f{st+3}"); fin_dma_b(P, l16, st + 3, FSLOT[(st + 3) % 4], f"f{st+3}")
        n = 3 if st == 10 else 4
        for i in range(n):
            for x in fin_reads(P, F, FSLOT[st % 4], i, fa[i], fb[i]): P(x)
        for i in range(n):
            P(mfma(acc, fa[i], fb[i], acc if (st or i) else None))
        if st == 10:
            P(f"v_sub_f32 v{t0}, 1.0, v{vg}")
            for r in range(16): P(f"v_mul_f32 v{acc+r}, v{acc+r}, v{t0}")
    fin_epilogue(P, V, acc, lane, l16, t0, t1, 131072)
    P("LC_end:")
    P("s_endpgm")
    return kernel_text("kc_kernel", P, max(V.hi, 8), SGPR_N)

if __name__ == "__main__":
    from v1 import kernel_A
    import sys
    ta, IA = kernel_A(); tb, IB = kernel_B(prio=("prio" in sys.argv)); tc, IC = kernel_C()
    hdr = HEADER
    for k in ("ka", "kb", "kc"):
        hdr += f"; @launch kernel={k}_kernel grid=(256,1,1) block=(512,1,1) lds={LDS_BYTES}\n"
    hdr += '.amdgcn_target "amdgcn-amd-amdhsa--gfx950"\n'
    open("v1.s", "w").write(hdr + ta + tb + tc)
    print("insts", len(IA), len(IB), len(IC))
```

```python
import re

TRANS = ("v_exp_f32", "v_log_f32", "v_rcp_f32", "v_rsq_f32", "v_sqrt_f32", "v_sin_f32", "v_cos_f32", "v_exp_f16", "v_rcp_iflag_f32")

def _regs(tok, pfx):
    tok = tok.strip()
    tok = tok.lstrip("-")
    m = re.fullmatch(r"abs\((.*)\)", tok)
    if m: tok = m.group(1)
    m = re.fullmatch(r"\|(.*)\|", tok)
    if m: tok = m.group(1)
    m = re.fullmatch(pfx + r"(\d+)", tok)
    if m: return {int(m.group(1))}
    m = re.fullmatch(pfx + r"\[(\d+):(\d+)\]", tok)
    if m: return set(range(int(m.group(1)), int(m.group(2)) + 1))
    return set()

def _sregs(tok):
    tok = tok.strip()
    if tok == "vcc": return {"vcc"}
    if tok in ("vcc_lo", "vcc_hi"): return {"vcc"}
    if tok == "exec": return {"exec"}
    if tok == "m0": return {"m0"}
    return _regs(tok, "s")

class Inst:
    __slots__ = ("text", "op", "kind", "vr", "vw", "sr", "sw", "tag", "mf", "meta")
    def __init__(self, text, tag=None, meta=None):
        self.text = text; self.tag = tag; self.meta = meta
        self.vr = set(); self.vw = set(); self.sr = set(); self.sw = set(); self.mf = None
        t = text.split(";")[0].strip()
        if t.endswith(":") or t.startswith("."):
            self.op = t; self.kind = "label" if t.endswith(":") else "directive"; return
        if t.startswith("@"):
            self.op = t; self.kind = "pseudo"; return
        parts = t.split(None, 1)
        op = parts[0]; self.op = op
        rest = parts[1] if len(parts) > 1 else ""
        raw = [x.strip() for x in rest.split(",")] if rest else []
        ops = []; mods = []
        for i, x in enumerate(raw):
            pieces = x.split()
            if not pieces: continue
            ops.append(pieces[0]); mods += pieces[1:]
        V = lambda k: _regs(ops[k], "v") if k < len(ops) else set()
        S = lambda k: _sregs(ops[k]) if k < len(ops) else set()
        base = op.replace("_e32", "").replace("_e64", "")
        if op.startswith("v_mfma"):
            self.kind = "mfma"
            self.vw = V(0); self.vr = V(1) | V(2) | V(3)
            passes = 8 if "32x32x16" in op else 4
            self.mf = dict(D=V(0), A=V(1), B=V(2), C=V(3), passes=passes)
        elif op.startswith("v_"):
            self.kind = "trans" if base in TRANS else "valu"
            if base.startswith("v_cmp"):
                self.sw = S(0)
                if base.startswith("v_cmpx"): self.sw |= {"exec"}
                for k in range(1, len(ops)): self.vr |= V(k); self.sr |= S(k)
            elif base in ("v_readfirstlane_b32", "v_readlane_b32"):
                self.sw = S(0); self.vr = V(1)
                for k in range(2, len(ops)): self.sr |= S(k)
            elif base.startswith("v_permlane") and "swap" in base:
                self.vw = V(0) | V(1); self.vr = V(0) | V(1)
            elif base in ("v_add_co_u32", "v_addc_co_u32", "v_sub_co_u32", "v_subb_co_u32"):
                self.vw = V(0); self.sw = S(1)
                for k in range(2, len(ops)): self.vr |= V(k); self.sr |= S(k)
            else:
                self.vw = V(0)
                for k in range(1, len(ops)): self.vr |= V(k); self.sr |= S(k)
                if base in ("v_fmac_f32", "v_writelane_b32", "v_pk_fmac_f16", "v_dot2c_f32_bf16") or "UNUSED_PRESERVE" in t:
                    self.vr |= V(0)
        elif op.startswith("ds_"):
            if op.startswith("ds_read") or op.startswith("ds_bpermute") or op.startswith("ds_swizzle") or op.startswith("ds_permute"):
                self.kind = "ds_rd"; self.vw = V(0)
                for k in range(1, len(ops)): self.vr |= V(k)
            else:
                self.kind = "ds_wr"
                for k in range(0, len(ops)): self.vr |= V(k)
        elif op.startswith("buffer_load") or op.startswith("global_load"):
            if "lds" in mods or op.startswith("global_load_lds"):
                self.kind = "dma"
                for k in range(0, len(ops)): self.vr |= V(k); self.sr |= S(k)
                self.sr |= {"m0"}
            else:
                self.kind = "vm_ld"; self.vw = V(0)
                for k in range(1, len(ops)): self.vr |= V(k); self.sr |= S(k)
        elif op.startswith("buffer_store") or op.startswith("global_store"):
            self.kind = "vm_st"
            for k in range(0, len(ops)): self.vr |= V(k); self.sr |= S(k)
            d = V(0) if op.startswith("buffer") else V(1)
            self.meta = dict(self.meta or {}, data=d, wide=("x4" in op or "x3" in op))
        elif op.startswith("buffer_atomic") or op.startswith("global_atomic"):
            self.kind = "vm_st"
            for k in range(0, len(ops)): self.vr |= V(k); self.sr |= S(k)
            self.meta = dict(self.meta or {}, data=set(), wide=False)
        elif op in ("buffer_inv", "buffer_wbl2"):
            self.kind = "vm_st"; self.meta = dict(data=set(), wide=False)
        elif op == "s_waitcnt": self.kind = "wait"
        elif op == "s_barrier": self.kind = "barrier"
        elif op == "s_nop": self.kind = "nop"
        elif op.startswith("s_load") or op.startswith("s_memtime") or op.startswith("s_memrealtime") or op.startswith("s_buffer_load"):
            self.kind = "smem"; self.sw = S(0)
            for k in range(1, len(ops)): self.sr |= S(k)
        elif op.startswith("s_cbranch") or op in ("s_branch", "s_endpgm", "s_setpc_b64"):
            self.kind = "branch"
        elif op.startswith("s_"):
            self.kind = "salu"
            if op.startswith("s_cmp") or op in ("s_setprio", "s_sleep"):
                for k in range(0, len(ops)): self.sr |= S(k)
            else:
                self.sw = S(0)
                for k in range(1, len(ops)): self.sr |= S(k)
                if "saveexec" in op: self.sw |= {"exec"}
        else:
            raise ValueError("unknown instr: " + text)

    def states(self):
        if self.kind in ("label", "directive", "pseudo"): return 0
        if self.kind == "nop": return int(self.text.split(";")[0].split()[1]) + 1
        return 1

class Prog:
    def __init__(self):
        self.I = []
    def e(self, text, tag=None):
        for line in text.split("\n"):
            line = line.strip()
            if not line or line.startswith(";"): continue
            self.I.append(Inst(line, tag=tag))
        return self
    __call__ = e
    def add(self, insts):
        self.I += insts
    def wait_tag(self, *tags): self.I.append(Inst("@wait_tag", meta=dict(tags=set(tags))))
    def wait_vm_all(self): self.I.append(Inst("@wait_vm_all"))
    def wait_lgkm_all(self): self.I.append(Inst("@wait_lgkm_all"))
    def cond_begin(self): self.I.append(Inst("@cond_begin"))
    def cond_end(self, keep=False, nowait=False): self.I.append(Inst("@cond_end", meta=dict(keep=keep, nowait=nowait)))
    def join(self): self.I.append(Inst("@join"))
    def opaque_begin(self): self.I.append(Inst("@opaque_begin"))
    def opaque_end(self): self.I.append(Inst("@opaque_end"))

def insert_waits(I):
    out = []
    lg = []
    vm = []
    cond_stack = []
    carry = []
    opaque = False
    def w(vmn=None, lgn=None):
        nonlocal lg, vm
        parts = []
        if vmn is not None and vmn < len(vm):
            parts.append(f"vmcnt({min(vmn,63)})"); vm = vm[len(vm) - min(vmn,63):] if min(vmn,63) else []
        if lgn is not None and lgn < len(lg):
            parts.append(f"lgkmcnt({min(lgn,15)})"); lg = lg[len(lg) - min(lgn,15):] if min(lgn,15) else []
        if parts: out.append(Inst("s_waitcnt " + " ".join(parts)))
    def flush_carry():
        idx = [k for k, x in enumerate(vm) if x.tag == "@carry"]
        if idx: w(vmn=len(vm) - 1 - max(idx))
        carry.clear()
    for ins in I:
        if ins.kind == "pseudo":
            if ins.op == "@opaque_begin":
                w(0, 0); opaque = True
            elif ins.op == "@opaque_end":
                opaque = False; lg = []; vm = []
            elif ins.op == "@wait_tag":
                if any(x.tag in ins.meta["tags"] for x in carry) and any(x.tag == "@carry" for x in vm): flush_carry()
                idx = [k for k, x in enumerate(vm) if x.tag in ins.meta["tags"]]
                if idx: w(vmn=len(vm) - 1 - max(idx))
            elif ins.op == "@join":
                vm = [Inst("buffer_inv", tag="@carry")]
            elif ins.op == "@wait_vm_all":
                if any(x.tag == "@carry" for x in vm): carry.clear()
                w(vmn=0)
            elif ins.op == "@wait_lgkm_all": w(lgn=0)
            elif ins.op == "@cond_begin":
                cond_stack.append((list(lg), list(vm)))
            elif ins.op == "@cond_end":
                lg0, vm0 = cond_stack.pop()
                if ins.meta and ins.meta.get("keep"):
                    w(lgn=0)
                    pend = [x for x in vm if x.kind in ("vm_ld", "dma")]
                    carry.extend(pend)
                    lg, vm = list(lg0), list(vm0)
                    out.append(Inst("@cond_end")); continue
                inb = [k for k, x in enumerate(vm) if all(x is not y for y in vm0) and x.kind in ("vm_ld", "dma")]
                if inb and not (ins.meta and ins.meta.get("nowait")): w(vmn=len(vm) - 1 - max(inb))
                if any(all(x is not y for y in lg0) for x in lg): w(lgn=0)
                lg, vm = lg0, vm0
                out.append(Inst("@cond_end"))
                continue
            out.append(ins); continue
        if opaque:
            out.append(ins); continue
        if ins.kind == "wait":
            m = re.search(r"vmcnt\((\d+)\)", ins.text)
            if m:
                n = int(m.group(1)); vm = vm[len(vm) - n:] if n and n < len(vm) else ([] if n == 0 else vm)
            m = re.search(r"lgkmcnt\((\d+)\)", ins.text)
            if m:
                n = int(m.group(1)); lg = lg[len(lg) - n:] if n and n < len(lg) else ([] if n == 0 else lg)
            out.append(ins); continue
        touch = ins.vr | ins.vw
        if any(x.vw & touch for x in carry) and any(x.tag == "@carry" for x in vm): flush_carry()
        lgn = None; vmn = None
        for k, x in enumerate(lg):
            if x.vw & touch: lgn = len(lg) - 1 - k
        for k, x in enumerate(vm):
            if x.vw & touch: vmn = len(vm) - 1 - k
        w(vmn, lgn)
        out.append(ins)
        if ins.kind in ("ds_rd", "ds_wr"): lg.append(ins)
        if ins.kind in ("vm_ld", "vm_st", "dma"): vm.append(ins)
        if ins.kind == "smem": pass
    return out

def need_states(p, c):
    n = 0
    pv = p.kind in ("valu", "trans")
    cv = c.kind in ("valu", "trans")
    cmem = c.kind in ("ds_rd", "ds_wr", "vm_ld", "vm_st", "dma")
    if pv and c.kind == "mfma" and (p.vw & c.vr): n = max(n, 2)
    if p.kind == "mfma":
        P = p.mf["passes"]; D = p.mf["D"]
        if c.kind == "mfma":
            if D & (c.mf["A"] | c.mf["B"]): n = max(n, P + 4)
            if D & c.mf["C"]:
                if not (c.mf["C"] == D and c.mf["passes"] == P): n = max(n, P + 2)
            elif D & c.mf["D"]:
                if c.mf["passes"] != P: n = max(n, P + 2)
        if (cv or cmem) and (D & (c.vr | c.vw)): n = max(n, P + 4)
        if cv and (p.mf["C"] & c.vw): n = max(n, P - 1)
        if cmem and (p.mf["C"] & c.vw): n = max(n, P - 1)
    if p.kind == "trans" and (c.kind in ("valu", "mfma") or cmem) and (p.vw & c.vr): n = max(n, 2 if c.kind == "mfma" else 1)
    if pv and p.sw:
        if cmem and (p.sw & c.sr): n = max(n, 5)
        if cv and (p.sw & c.sr): n = max(n, 4 if c.op.startswith(("v_readlane", "v_writelane")) else 2)
        if cv and "vcc" in p.sw and (c.op.startswith("v_cndmask") or c.op.startswith("v_addc") ): n = max(n, 2)
        if "exec" in p.sw and (c.kind == "mfma" or c.op.startswith(("v_readfirst", "v_readlane", "v_permlane"))): n = max(n, 4)
        if c.kind == "salu" and (p.sw & c.sr): n = max(n, 1)
        if c.kind == "branch" and "vcc" in p.sw: n = max(n, 5) if False else n
    if pv and c.op.startswith(("v_readfirstlane", "v_readlane")) and (p.vw & c.vr): n = max(n, 1)
    if pv and c.op.startswith("v_permlane") and (p.vw & c.vr): n = max(n, 2)
    if pv and cv and "dpp" in c.text and (p.vw & c.vr): n = max(n, 2)
    if pv and cv and (("sdwa" in p.text) or ("op_sel" in p.text)) and (p.vw & (c.vr | c.vw)): n = max(n, 1)
    if p.kind == "salu" and "m0" in p.sw and c.kind == "dma": n = max(n, 1)
    if p.kind == "vm_st" and p.meta and p.meta.get("wide") and (p.meta["data"] & c.vw): n = max(n, 2)
    return n

def insert_nops(I, window=24):
    out = []
    for c in I:
        if c.kind in ("label", "directive", "pseudo"):
            if c.kind == "pseudo" and c.op in ("@cond_end", "@opaque_begin", "@opaque_end", "@cond_begin"):
                dist = 0; need = 0
                for p in reversed(out):
                    if dist >= 13: break
                    if p.kind == "mfma": need = max(need, p.mf["passes"] + 4 - dist)
                    elif p.kind in ("valu", "trans"): need = max(need, 5 - dist)
                    elif p.kind in ("vm_st",): need = max(need, 2 - dist)
                    dist += p.states()
                while need > 0:
                    k = min(need, 16); out.append(Inst(f"s_nop {k-1}")); need -= k
            out.append(c); continue
        dist = 0; need = 0
        for p in reversed(out):
            if dist >= window: break
            if p.kind not in ("label", "directive", "pseudo"):
                need = max(need, need_states(p, c) - dist)
            dist += p.states()
        while need > 0:
            k = min(need, 16); out.append(Inst(f"s_nop {k-1}")); need -= k
        out.append(c)
    return out

def finalize(prog):
    I = insert_nops(insert_waits(prog.I))
    lines = []
    for x in I:
        if x.kind == "pseudo": continue
        lines.append(x.text if x.kind in ("label", "directive") else "    " + x.text)
    return "\n".join(lines) + "\n", I

class Regs:
    def __init__(self, start, limit, pfx):
        self.free = set(range(start, limit)); self.pfx = pfx; self.names = {}; self.hi = start
    def alloc(self, name, n=1, align=None):
        align = align or (1 if n == 1 else (2 if n == 2 else 4))
        lim = max(self.free) + 1 if self.free else 0
        for b in range(0, lim):
            if b % align: continue
            if all((b + k) in self.free for k in range(n)):
                for k in range(n): self.free.discard(b + k)
                self.names[name] = (b, n); self.hi = max(self.hi, b + n)
                return b
        raise RuntimeError(f"out of {self.pfx} regs allocating {name} ({n}); names={self.names}")
    def release(self, name):
        b, n = self.names.pop(name)
        for k in range(n): self.free.add(b + k)

def vr(b, n=1): return f"v{b}" if n == 1 else f"v[{b}:{b+n-1}]"
def sr(b, n=1): return f"s{b}" if n == 1 else f"s[{b}:{b+n-1}]"

KD = """.section .rodata,"a"
.p2align 6
.amdhsa_kernel {name}
  .amdhsa_next_free_vgpr {vgpr}
  .amdhsa_next_free_sgpr {sgpr}
  .amdhsa_accum_offset {accum}
  .amdhsa_group_segment_fixed_size 0
  .amdhsa_kernarg_size 104
  .amdhsa_user_sgpr_count 2
  .amdhsa_user_sgpr_kernarg_segment_ptr 1
  .amdhsa_system_sgpr_workgroup_id_x 1
.end_amdhsa_kernel
"""
```

```python
from common import *

X_OFF = 0; X_STRIDE = 1040
SLOT = [66560, 91392, 116224]; SLOT_SZ = 24832; UP_OFF = 12352
REG_A = 91392; REG_B = 124160; WV_OFF = 16512
KV_RING = 141056; ONES = 157440; GWL = 159488; MISC = 160512
LDS_BYTES = 163840

S_X, S_WQ, S_WKV, S_WM, S_GW, S_WS, S_OUT, S_WO, S_WD, S_DBG = 32, 36, 40, 44, 48, 52, 56, 60, 64, 68
S_W, S_J, S_G, S_TT, S_T0, S_T1, S_T2, S_T3, S_U0, S_NU = 72, 73, 74, 75, 76, 77, 78, 79, 80, 81
S_WOFF, S_WLDS, S_C1, S_C2, S_TILE, S_T4, S_T5, S_T6, S_T7 = 82, 83, 84, 85, 86, 87, 88, 89, 90
S_KVOFF, S_KVLDS, S_EX = 91, 92, 94
SGPR_N = 100

def prologue(P, V, endlabel):
    P("s_cmp_ge_u32 s2, 256")
    P(f"s_cbranch_scc1 {endlabel}")
    P("s_load_dwordx16 s[4:19], s[0:1], 0")
    P("s_load_dwordx8 s[20:27], s[0:1], 64")
    P("s_load_dwordx2 s[28:29], s[0:1], 96")
    lane = V.alloc("lane"); l16 = V.alloc("l16")
    P(f"v_lshrrev_b32 v1, 6, v0")
    P(f"v_and_b32 v{lane}, 63, v0")
    P(f"v_readfirstlane_b32 s{S_W}, v1")
    P(f"v_lshlrev_b32 v{l16}, 4, v{lane}")
    P(f"s_lshr_b32 s{S_J}, s2, 3")
    P(f"s_and_b32 s{S_J}, s{S_J}, 7")
    P(f"s_and_b32 s{S_G}, s2, 7")
    P(f"s_lshl_b32 s{S_G}, s{S_G}, 2")
    P(f"s_lshr_b32 s{S_T0}, s2, 6")
    P(f"s_add_u32 s{S_G}, s{S_G}, s{S_T0}")
    P(f"s_and_b32 s{S_TT}, s{S_W}, 1")
    P(f"s_lshl_b32 s{S_TILE}, s{S_G}, 1")
    P(f"s_add_u32 s{S_TILE}, s{S_TILE}, s{S_TT}")
    P("s_waitcnt lgkmcnt(0)")
    mk_srd(P, S_X, 4, SZ["x"])
    mk_srd(P, S_WQ, 6, SZ["wq"])
    P(f"s_cmp_eq_u32 s{S_TT}, 0")
    P(f"s_cselect_b32 s{S_WKV}, s8, s10")
    P(f"s_cselect_b32 s{S_WKV+1}, s9, s11")
    P(f"s_cselect_b32 s{S_WM}, s16, s18")
    P(f"s_cselect_b32 s{S_WM+1}, s17, s19")
    P(f"s_and_b32 s{S_WKV+1}, s{S_WKV+1}, 0xffff")
    P(f"s_mov_b32 s{S_WKV+2}, 0x{SZ['wk']:x}")
    P(f"s_mov_b32 s{S_WKV+3}, 0x20000")
    P(f"s_and_b32 s{S_WM+1}, s{S_WM+1}, 0xffff")
    P(f"s_mov_b32 s{S_WM+2}, 0x{SZ['wg']:x}")
    P(f"s_mov_b32 s{S_WM+3}, 0x20000")
    mk_srd(P, S_GW, 22, SZ["gw"])
    mk_srd(P, S_WS, 28, SZ["ws"])
    mk_srd(P, S_OUT, 24, SZ["out"])
    mk_srd(P, S_WO, 12, SZ["wo"])
    mk_srd(P, S_WD, 20, SZ["wd"])
    mk_srd(P, S_DBG, 26, SZ["dbg"])
    return lane, l16

STAMP = {"on": False}
WS_STAMP = 12 << 20
S_ST = 96
def stamp(P, idx, kidx=0):
    if not STAMP["on"]: return
    P.opaque_begin() if False else None
    P(f"s_memrealtime s[{S_ST}:{S_ST+1}]")
    P(f"s_lshl_b32 s{S_ST+2}, s2, 10")
    P(f"s_lshl_b32 s{S_ST+3}, s{S_W}, 7")
    P(f"s_add_u32 s{S_ST+2}, s{S_ST+2}, s{S_ST+3}")
    P(f"s_add_u32 s{S_ST+2}, s{S_ST+2}, 0x{WS_STAMP + kidx*(1<<18) + idx*4:x}")
    P("s_waitcnt lgkmcnt(0)")
    P(f"v_mov_b32 v1, s{S_ST}")
    P(f"v_mov_b32 v0, 0")
    P(f"buffer_store_dword v1, v0, s[{S_WS}:{S_WS+3}], s{S_ST+2} offen")
    P(f"s_memtime s[{S_ST}:{S_ST+1}]")
    P("s_waitcnt lgkmcnt(0)")
    P(f"v_mov_b32 v1, s{S_ST}")
    P(f"buffer_store_dword v1, v0, s[{S_WS}:{S_WS+3}], s{S_ST+2} offen offset:64")

def dma(P, vaddr, srd, soff, m0expr, offset=0, tag=None, mods=""):
    s, imm = m0expr
    if s is None: P(f"s_mov_b32 m0, 0x{imm:x}")
    elif imm == 0: P(f"s_mov_b32 m0, s{s}")
    else: P(f"s_add_u32 m0, s{s}, 0x{imm:x}")
    o = f" offset:{offset}" if offset else ""
    P(f"buffer_load_dwordx4 v{vaddr}, s[{srd}:{srd+3}], {soff} offen{o}{mods} lds", tag=tag)

def slice_pattern(P, V, lane, tmp):
    v = V.alloc("vslice")
    P(f"v_lshrrev_b32 v{tmp}, 3, v{lane}")
    P(f"v_lshlrev_b32 v{v}, 10, v{tmp}")
    P(f"v_lshlrev_b32 v{tmp}, 1, v{tmp}")
    P(f"v_and_b32 v{tmp}, 4, v{tmp}")
    P(f"v_xor_b32 v{tmp}, v{tmp}, v{lane}")
    P(f"v_and_b32 v{tmp}, 7, v{tmp}")
    P(f"v_lshl_add_u32 v{v}, v{tmp}, 4, v{v}")
    return v

def tr_slice_addr(P, V, name, lane, tmp, tmp2, base, s_col, hmul):
    v = V.alloc(name)
    P(f"v_lshrrev_b32 v{tmp}, 5, v{lane}")
    P(f"v_mul_u32_u24 v{v}, {hmul}, v{tmp}")
    P(f"v_bfe_u32 v{tmp}, v{lane}, 2, 2")
    P(f"v_add_u32 v{v}, v{v}, v{tmp}")
    P(f"v_lshlrev_b32 v{v}, 7, v{v}")
    P(f"v_lshlrev_b32 v{tmp}, 1, v{tmp}")
    P(f"v_and_b32 v{tmp}, 4, v{tmp}")
    P(f"v_bfe_u32 v{tmp2}, v{lane}, 4, 1")
    P(f"v_lshlrev_b32 v{tmp2}, 1, v{tmp2}")
    P(f"v_xor_b32 v{tmp}, v{tmp}, v{tmp2}")
    P(f"v_bfe_u32 v{tmp2}, v{lane}, 1, 1")
    P(f"v_xor_b32 v{tmp}, v{tmp}, v{tmp2}")
    P(f"s_lshl_b32 s{S_T0}, s{s_col}, 2")
    P(f"v_xor_b32 v{tmp}, s{S_T0}, v{tmp}")
    P(f"v_lshl_add_u32 v{v}, v{tmp}, 4, v{v}")
    P(f"v_and_b32 v{tmp}, 1, v{lane}")
    P(f"v_lshl_add_u32 v{v}, v{tmp}, 3, v{v}")
    P(f"v_add_u32 v{v}, 0x{base:x}, v{v}")
    return v

def xfrag_addr(P, V, name, lane, tmp, s_tt):
    v = V.alloc(name)
    P(f"v_and_b32 v{tmp}, 31, v{lane}")
    P(f"s_lshl_b32 s{S_T0}, s{s_tt}, 5")
    P(f"v_add_u32 v{tmp}, s{S_T0}, v{tmp}")
    P(f"v_mul_u32_u24 v{v}, {X_STRIDE}, v{tmp}")
    P(f"v_lshrrev_b32 v{tmp}, 5, v{lane}")
    P(f"v_lshl_add_u32 v{v}, v{tmp}, 4, v{v}")
    return v

def w_patterns(P, V, lane, tmp, tmp2):
    P(f"s_mul_i32 s{S_U0}, s{S_J}, 11")
    P(f"s_min_u32 s{S_U0}, s{S_U0}, 76")
    P(f"s_cmp_ge_u32 s{S_J}, 6")
    P(f"s_cselect_b32 s{S_NU}, 10, 11")
    P(f"s_lshr_b32 s{S_T0}, s{S_W}, 1")
    P(f"s_mul_i32 s{S_WOFF}, s{S_T0}, {8*2752}")
    P(f"s_lshl_b32 s{S_T1}, s{S_U0}, 5")
    P(f"s_add_u32 s{S_WOFF}, s{S_WOFF}, s{S_T1}")
    P(f"s_mul_i32 s{S_WLDS}, s{S_T0}, 3072")
    P(f"s_mul_i32 s{S_T1}, s{S_TT}, {UP_OFF}")
    P(f"s_add_u32 s{S_WLDS}, s{S_WLDS}, s{S_T1}")
    pats = []
    for i in range(3):
        v = V.alloc(f"wpat{i}")
        P(f"v_add_u32 v{tmp}, {64*i}, v{lane}")
        P(f"v_mul_u32_u24 v{v}, 2731, v{tmp}")
        P(f"v_lshrrev_b32 v{v}, 16, v{v}")
        P(f"v_mul_u32_u24 v{tmp2}, 24, v{v}")
        P(f"v_sub_u32 v{tmp}, v{tmp}, v{tmp2}")
        P(f"v_and_b32 v{tmp2}, 2, v{v}")
        P(f"v_xor_b32 v{tmp}, v{tmp}, v{tmp2}")
        P(f"v_mul_u32_u24 v{v}, 2752, v{v}")
        P(f"v_lshl_add_u32 v{v}, v{tmp}, 4, v{v}")
        P(f"v_lshrrev_b32 v{tmp}, 1, v{tmp}")
        P(f"v_mov_b32 v{tmp2}, 0x{OOB:x}")
        P(f"v_cmp_gt_u32 vcc, s{S_NU}, v{tmp}")
        P(f"v_cndmask_b32 v{v}, v{tmp2}, v{v}, vcc")
        pats.append(v)
    return pats

def w_tr_addrs(P, V, lane, tmp, tmp2, s_w=None):
    res = []
    P(f"s_lshr_b32 s{S_T0}, s{s_w or S_W}, 1")
    P(f"s_mul_i32 s{S_T0}, s{S_T0}, 3")
    b = V.alloc("wtrb")
    P(f"v_lshrrev_b32 v{tmp}, 5, v{lane}")
    P(f"v_lshlrev_b32 v{tmp}, 3, v{tmp}")
    P(f"v_bfe_u32 v{tmp2}, v{lane}, 2, 2")
    P(f"v_add_u32 v{tmp}, v{tmp}, v{tmp2}")
    P(f"v_mul_u32_u24 v{b}, 384, v{tmp}")
    P(f"v_bfe_u32 v{tmp}, v{lane}, 4, 1")
    P(f"v_mul_u32_u24 v{tmp}, {UP_OFF}, v{tmp}")
    P(f"v_add_u32 v{b}, v{b}, v{tmp}")
    P(f"v_and_b32 v{tmp}, 3, v{lane}")
    P(f"v_lshl_add_u32 v{b}, v{tmp}, 3, v{b}")
    P(f"v_add_u32 v{b}, 0x{SLOT[0]:x}, v{b}")
    P(f"v_bfe_u32 v{tmp2}, v{lane}, 3, 1")
    for i in range(3):
        v = V.alloc(f"wtr{i}")
        P(f"s_add_u32 s{S_T1}, s{S_T0}, {i}")
        P(f"v_xor_b32 v{tmp}, s{S_T1}, v{tmp2}")
        P(f"v_lshl_add_u32 v{v}, v{tmp}, 5, v{b}")
        res.append(v)
    V.release("wtrb")
    return res

def w_stage_dma(P, pats, s, tag):
    slot = SLOT[s % 3]
    P(f"s_add_u32 s{S_T2}, s{S_WOFF}, 0x{32*s*2752:x}")
    for i in range(3):
        dma(P, pats[i], S_WM, f"s{S_T2}", (S_WLDS, slot + 1024 * i), tag=tag)

def gelu_tile(acc, dst, tmp):
    L = []
    for r in range(8): L.append(f"v_mul_f32 v{tmp+r}, v{acc+r}, v{acc+r}")
    for r in range(8): L.append(f"v_fma_f32 v{tmp+r}, v{tmp+r}, s{S_C2}, v{tmp+8}")
    for r in range(8): L.append(f"v_mul_f32 v{tmp+r}, v{tmp+r}, v{acc+r}")
    for r in range(8): L.append(f"v_exp_f32 v{tmp+r}, v{tmp+r}")
    for r in range(8): L.append(f"v_mul_f32 v{acc+8+r}, v{acc+8+r}, v{acc+r}")
    for r in range(8): L.append(f"v_add_f32 v{tmp+r}, 1.0, v{tmp+r}")
    for r in range(8): L.append(f"v_rcp_f32 v{tmp+r}, v{tmp+r}")
    for r in range(8): L.append(f"v_mul_f32 v{tmp+r}, v{tmp+r}, v{acc+8+r}")
    for r in range(4): L.append(f"v_cvt_pk_bf16_f32 v{dst+r}, v{tmp+2*r}, v{tmp+2*r+1}")
    return L
GELU_C1 = -2.0 * math.sqrt(2.0 / math.pi) * LOG2E
GELU_C2 = GELU_C1 * 0.044715
QK_SCALE = 0.25 * LOG2E

def gelu_tile_pk(acc, dst, tmp, cst):
    L = []
    p = lambda b: f"v[{b}:{b+1}]"
    for r in range(0, 8, 2): L.append(f"v_pk_mul_f32 {p(tmp+r)}, {p(acc+r)}, {p(acc+r)}")
    for r in range(0, 8, 2): L.append(f"v_pk_fma_f32 {p(tmp+r)}, {p(tmp+r)}, {p(cst+2)}, {p(cst)}")
    for r in range(0, 8, 2): L.append(f"v_pk_mul_f32 {p(tmp+r)}, {p(tmp+r)}, {p(acc+r)}")
    for r in range(8): L.append(f"v_exp_f32 v{tmp+r}, v{tmp+r}")
    for r in range(0, 8, 2): L.append(f"v_pk_mul_f32 {p(acc+8+r)}, {p(acc+8+r)}, {p(acc+r)}")
    for r in range(0, 8, 2): L.append(f"v_pk_add_f32 {p(tmp+r)}, {p(tmp+r)}, 1.0 op_sel_hi:[1,0]")
    for r in range(8): L.append(f"v_rcp_f32 v{tmp+r}, v{tmp+r}")
    for r in range(0, 8, 2): L.append(f"v_pk_mul_f32 {p(tmp+r)}, {p(tmp+r)}, {p(acc+8+r)}")
    for r in range(4): L.append(f"v_cvt_pk_bf16_f32 v{dst+r}, v{tmp+2*r}, v{tmp+2*r+1}")
    return L
```

```python
from parts import *

def kernel_A():
    P = Prog(); V = Regs(2, 256, "v")
    lane, l16 = prologue(P, V, "LA_end")
    t0 = V.alloc("t0"); t1 = V.alloc("t1")
    stamp(P, 0, 0)
    P(f"s_lshl_b32 s{S_T0}, s{S_G}, 16")
    P(f"s_lshl_b32 s{S_T1}, s{S_W}, 13")
    P(f"s_add_u32 s{S_T0}, s{S_T0}, s{S_T1}")
    P(f"s_mul_i32 s{S_T1}, s{S_W}, {8*X_STRIDE}")
    for i in range(8):
        P(f"s_add_u32 s{S_T2}, s{S_T0}, {1024*i}")
        dma(P, l16, S_X, f"s{S_T2}", (S_T1, X_STRIDE * i), tag="x")
    vsl = slice_pattern(P, V, lane, t0)
    P(f"s_lshl_b32 s{S_T4}, s{S_W}, 15")
    P(f"s_lshl_b32 s{S_T0}, s{S_J}, 7")
    P(f"s_add_u32 s{S_T4}, s{S_T4}, s{S_T0}")
    P(f"s_lshl_b32 s{S_T5}, s{S_W}, 12")
    def wq_half(hb, tag):
        for i in range(4):
            P(f"s_add_u32 s{S_T2}, s{S_T4}, 0x{hb*256*1024 + i*8192:x}")
            dma(P, vsl, S_WQ, f"s{S_T2}", (S_T5, (REG_A if hb == 0 else REG_B) + 1024 * i), tag=tag)
    P(f"s_cmp_ge_u32 s{S_J}, 6")
    P("s_cbranch_scc1 LA_des0")
    P.cond_begin
    wq_half(1, "b0")
    P("s_branch LA_j0")
    P("LA_des0:")
    n0 = len(P.I)
    P(f"s_lshr_b32 s{S_T0}, s{S_W}, 1")
    P(f"s_lshl_b32 s{S_T0}, s{S_T0}, 12")
    P(f"s_mul_i32 s{S_T1}, s{S_TT}, {WV_OFF}")
    P(f"s_add_u32 s{S_T1}, s{S_T1}, s{S_T0}")
    P(f"s_add_u32 m0, s{S_T1}, 0x{REG_B:x}")
    P("s_nop 0")
    for i in range(4):
        P(f"@raw")
        P.I[-1] = Inst(f"buffer_load_dwordx4 v{l16}, s[{S_WKV}:{S_WKV+3}], s{S_T0} offen offset:{1024*i} lds")
        P.I[-1].kind = "salu"
    P("LA_j0:")
    wq_half(0, "a0")
    dma(P, l16, S_GW, "0", (None, GWL), tag="a0")
    pats = w_patterns(P, V, lane, t0, t1)
    w_stage_dma(P, pats, 0, "w0")
    vxa = xfrag_addr(P, V, "vxa", lane, t0, S_TT)
    P(f"s_lshr_b32 s{S_T3}, s{S_W}, 1")
    P(f"s_and_b32 s{S_T3}, s{S_T3}, 1")
    vtn = tr_slice_addr(P, V, "vtn", lane, t0, t1, REG_A, S_T3, 8)
    vgw = V.alloc("vgw")
    P(f"v_lshrrev_b32 v{t0}, 5, v{lane}")
    P(f"v_lshlrev_b32 v{vgw}, 4, v{t0}")
    P(f"v_add_u32 v{vgw}, 0x{GWL:x}, v{vgw}")
    wtr = w_tr_addrs(P, V, lane, t0, t1)
    accq = V.alloc("accq", 16); accz = V.alloc("accz", 16)
    fx = [V.alloc(f"fx{i}", 4) for i in range(2)]
    fw = [V.alloc(f"fw{i}", 4) for i in range(6)]
    fg = [V.alloc(f"fg{i}", 4) for i in range(2)]
    P.wait_tag("x", "b0", "a0")
    P("s_barrier")
    stamp(P, 1, 0)
    P(f"s_cmp_lt_u32 s{S_J}, 6")
    P("s_cbranch_scc1 LA_nokv")
    P(f"s_cmp_ge_u32 s{S_W}, 2")
    P("s_cbranch_scc1 LA_nokv")
    P.cond_begin()
    P(f"s_sub_u32 s{S_T6}, s{S_J}, 6")
    vxk = xfrag_addr(P, V, "vxk", lane, t0, S_T6)
    vkw = V.alloc("vkw")
    P(f"v_lshrrev_b32 v{t0}, 5, v{lane}")
    P(f"v_lshlrev_b32 v{t0}, 3, v{t0}")
    P(f"v_bfe_u32 v{t1}, v{lane}, 2, 2")
    P(f"v_add_u32 v{t0}, v{t0}, v{t1}")
    P(f"v_lshlrev_b32 v{vkw}, 5, v{t0}")
    P(f"v_bfe_u32 v{t0}, v{lane}, 4, 1")
    P(f"v_mul_u32_u24 v{t0}, {WV_OFF}, v{t0}")
    P(f"v_add_u32 v{vkw}, v{vkw}, v{t0}")
    P(f"v_and_b32 v{t0}, 3, v{lane}")
    P(f"v_lshl_add_u32 v{vkw}, v{t0}, 3, v{vkw}")
    P(f"v_add_u32 v{vkw}, 0x{REG_B:x}, v{vkw}")
    P(f"s_lshl_b32 s{S_T7}, s{S_G}, 1")
    P(f"s_add_u32 s{S_T7}, s{S_T7}, s{S_T6}")
    P(f"s_lshl_b32 s{S_T7}, s{S_T7}, 10")
    def kv_chain(which):
        def loads(ks):
            P(f"ds_read_b128 {vr(fx[ks%2],4)}, v{vxk} offset:{ks*32}")
            P(f"ds_read_b64_tr_b16 {vr(fw[ks%2],2)}, v{vkw} offset:{ks*512}")
            P(f"ds_read_b64_tr_b16 {vr(fw[ks%2]+2,2)}, v{vkw} offset:{ks*512+128}")
        loads(0)
        for ks in range(32):
            if ks + 1 < 32: loads(ks + 1)
            a, b = (fw[ks%2], fx[ks%2]) if which == 0 else (fx[ks%2], fw[ks%2])
            P(mfma(accq, a, b, accq if ks else None))
    P(f"s_cmp_eq_u32 s{S_W}, 1")
    P("s_cbranch_scc1 LA_vchain")
    P.cond_begin()
    kv_chain(0)
    P(f"s_mov_b32 s{S_T0}, {hexf(QK_SCALE)}")
    for r in range(8): P(f"v_mul_f32 v{accq+r}, s{S_T0}, v{accq+r}")
    for r in range(4): P(f"v_cvt_pk_bf16_f32 v{fw[2]+r}, v{accq+2*r}, v{accq+2*r+1}")
    P(f"s_add_u32 s{S_T7}, s{S_T7}, 0x{WS_KF:x}")
    P(f"buffer_store_dwordx4 {vr(fw[2],4)}, v{l16}, s[{S_WS}:{S_WS+3}], s{S_T7} offen")
    P.cond_end()
    P("s_branch LA_nokv")
    P("LA_vchain:")
    P.cond_begin()
    kv_chain(1)
    for r in range(4): P(f"v_cvt_pk_bf16_f32 v{fw[2]+r}, v{accq+2*r}, v{accq+2*r+1}")
    for r in range(4): P(f"v_cvt_pk_bf16_f32 v{fw[3]+r}, v{accq+8+2*r}, v{accq+8+2*r+1}")
    P(f"v_lshrrev_b32 v{t0}, 5, v{lane}")
    P(f"v_lshlrev_b32 v{t0}, 8, v{t0}")
    P(f"v_and_b32 v{t1}, 15, v{lane}")
    P(f"v_lshl_add_u32 v{t0}, v{t1}, 4, v{t0}")
    P(f"v_and_b32 v{t1}, 16, v{lane}")
    P(f"v_cmp_eq_u32 vcc, 0, v{t1}")
    P(f"v_mov_b32 v{t1}, 0x{OOB:x}")
    P(f"v_cndmask_b32 v{t0}, v{t0}, v{t1}, vcc")
    P(f"s_add_u32 s{S_T7}, s{S_T7}, 0x{WS_VF:x}")
    P(f"buffer_store_dwordx4 {vr(fw[2],4)}, v{t0}, s[{S_WS}:{S_WS+3}], s{S_T7} offen")
    P(f"buffer_store_dwordx4 {vr(fw[3],4)}, v{t0}, s[{S_WS}:{S_WS+3}], s{S_T7} offen offset:512")
    P.cond_end()
    P.cond_end()
    P("LA_nokv:")
    V.release("vxk"); V.release("vkw")
    def q_loads(ks):
        P(f"ds_read_b128 {vr(fx[ks%2],4)}, v{vxa} offset:{ks*32}")
        P(f"ds_read_b64_tr_b16 {vr(fw[ks%2],2)}, v{vtn} offset:{ks*2048}")
        P(f"ds_read_b64_tr_b16 {vr(fw[ks%2]+2,2)}, v{vtn} offset:{ks*2048+512}")
        P(f"ds_read_b128 {vr(fg[ks%2],4)}, v{vgw} offset:{ks*32}")
    def q_half(k0):
        q_loads(k0)
        for ks in range(k0, k0 + 16):
            if ks + 1 < k0 + 16: q_loads(ks + 1)
            P(mfma(accq, fw[ks%2], fx[ks%2], accq if ks else None))
            P(mfma(accz, fg[ks%2], fx[ks%2], accz if ks else None))
    q_half(0)
    P("s_barrier")
    w_stage_dma(P, pats, 1, "w1")
    P(f"s_cmp_lt_u32 s{S_J}, 6")
    P("s_cbranch_scc1 LA_nob")
    P.cond_begin()
    wq_half(1, "b1")
    P.wait_tag("b1")
    P("s_barrier")
    P.cond_end()
    P("LA_nob:")
    q_half(16)
    P("s_barrier")
    w_stage_dma(P, pats, 2, "w2")
    stamp(P, 2, 0)
    qf = V.alloc("qf", 8)
    for r in range(8): P(f"v_cvt_pk_bf16_f32 v{qf+r}, v{accq+2*r}, v{accq+2*r+1}")
    P(f"s_lshl_b32 s{S_T0}, s{S_TILE}, 5")
    P(f"s_lshl_b32 s{S_T1}, s{S_J}, 2")
    P(f"s_add_u32 s{S_T0}, s{S_T0}, s{S_T1}")
    P(f"s_lshl_b32 s{S_T1}, s{S_T3}, 1")
    P(f"s_add_u32 s{S_T0}, s{S_T0}, s{S_T1}")
    P(f"s_lshl_b32 s{S_T0}, s{S_T0}, 10")
    P(f"s_add_u32 s{S_T0}, s{S_T0}, 0x{WS_QF:x}")
    P(f"buffer_store_dwordx4 {vr(qf,4)}, v{l16}, s[{S_WS}:{S_WS+3}], s{S_T0} offen")
    P(f"buffer_store_dwordx4 {vr(qf+4,4)}, v{l16}, s[{S_WS}:{S_WS+3}], s{S_T0} offen offset:1024")
    vg = V.alloc("vg")
    P(f"v_mul_f32 v{t0}, {hexf(-LOG2E)}, v{accz}")
    P(f"v_exp_f32 v{t0}, v{t0}")
    P(f"v_add_f32 v{t0}, 1.0, v{t0}")
    P(f"v_rcp_f32 v{vg}, v{t0}")
    P(f"v_and_b32 v{t0}, 31, v{lane}")
    P(f"v_lshlrev_b32 v{t0}, 2, v{t0}")
    P(f"s_lshl_b32 s{S_T0}, s{S_TILE}, 7")
    P(f"s_add_u32 s{S_T0}, s{S_T0}, 0x{WS_G:x}")
    P(f"buffer_store_dword v{vg}, v{t0}, s[{S_WS}:{S_WS+3}], s{S_T0} offen")
    V.release("accq"); V.release("accz")
    acc = [V.alloc(f"acc{i}", 16) for i in range(3)]
    def gu_loads(ks):
        s, kk = ks // 2, ks % 2
        so = SLOT[s % 3] - SLOT[0] + kk * 6144
        P(f"ds_read_b128 {vr(fx[ks%2],4)}, v{vxa} offset:{ks*32}")
        for i in range(3):
            f = fw[3 * (ks % 2) + i]
            P(f"ds_read_b64_tr_b16 {vr(f,2)}, v{wtr[i]} offset:{so}")
            P(f"ds_read_b64_tr_b16 {vr(f+2,2)}, v{wtr[i]} offset:{so+1536}")
    for s in range(16):
        P.wait_tag(f"w{s}")
        P("s_barrier")
        if s >= 1 and s + 2 < 16: w_stage_dma(P, pats, s + 2, f"w{s+2}")
        gu_loads(2 * s); gu_loads(2 * s + 1)
        for ks in (2 * s, 2 * s + 1):
            for i in range(3):
                P(mfma(acc[i], fw[3 * (ks % 2) + i], fx[ks % 2], acc[i] if ks else None))
    stamp(P, 3, 0)
    tmp = V.alloc("gt", 9)
    P(f"s_mov_b32 s{S_C2}, {hexf(GELU_C2)}")
    P(f"v_mov_b32 v{tmp+8}, {hexf(GELU_C1)}")
    P(f"s_lshr_b32 s{S_T0}, s{S_W}, 1")
    P(f"s_mul_i32 s{S_T0}, s{S_T0}, 3")
    P(f"s_mul_i32 s{S_T1}, s{S_TILE}, 118")
    P(f"s_add_u32 s{S_T1}, s{S_T1}, s{S_U0}")
    for i in range(3):
        for x in gelu_tile(acc[i], fw[i], tmp): P(x)
        P(f"s_add_u32 s{S_T2}, s{S_T0}, {i}")
        P(f"s_add_u32 s{S_T4}, s{S_T1}, s{S_T2}")
        P(f"s_lshl_b32 s{S_T4}, s{S_T4}, 10")
        P(f"s_add_u32 s{S_T4}, s{S_T4}, 0x{WS_OH:x}")
        P(f"s_cmp_lt_u32 s{S_T2}, s{S_NU}")
        P(f"s_cselect_b32 s{S_T4}, s{S_T4}, 0x{OOB:x}")
        P(f"buffer_store_dwordx4 {vr(fw[i],4)}, v{l16}, s[{S_WS}:{S_WS+3}], s{S_T4} offen")
    P.wait_vm_all()
    stamp(P, 4, 0)
    P("LA_end:")
    P("s_endpgm")
    return kernel_text("ka_kernel", P, max(V.hi, 8), SGPR_N)

if __name__ == "__main__":
    import sys
    ta, IA = kernel_A()
    hdr = HEADER + f"; @launch kernel=ka_kernel grid=(256,1,1) block=(512,1,1) lds={LDS_BYTES}\n"
    hdr += '.amdgcn_target "amdgcn-amd-amdhsa--gfx950"\n'
    open("v1a.s", "w").write(hdr + ta)
    print("insts", len(IA))
```

```python
from parts import *
EXP = {}

def attn_setup(P, V, lane, l16, t0, t1):
    A = {}
    P(f"s_lshr_b32 s{S_T0}, s{S_W}, 2")
    P(f"s_lshl_b32 s{S_T1}, s{S_T0}, 12")
    vk = V.alloc("vk"); vv = [V.alloc("vv0"), V.alloc("vv1")]
    P(f"s_add_u32 s{S_T1}, s{S_T1}, 0x{KV_RING:x}")
    P(f"v_add_u32 v{vk}, s{S_T1}, v{l16}")
    P(f"v_lshrrev_b32 v{t0}, 5, v{lane}")
    P(f"v_lshlrev_b32 v{t0}, 8, v{t0}")
    P(f"v_and_b32 v{t1}, 15, v{lane}")
    P(f"v_lshl_add_u32 v{t0}, v{t1}, 4, v{t0}")
    P(f"v_and_b32 v{t1}, 16, v{lane}")
    P(f"v_cmp_eq_u32 vcc, 0, v{t1}")
    P(f"s_add_u32 s{S_T1}, s{S_T1}, 2048")
    for s in range(2):
        P(f"v_mov_b32 v{t1}, s{S_T1}")
        P(f"v_add_u32 v{t1}, {8192*s}, v{t1}")
        P(f"v_mov_b32 v{vv[s]}, 0x{ONES:x}")
        P(f"v_cndmask_b32 v{vv[s]}, v{t1}, v{vv[s]}, vcc")
        P(f"v_add_u32 v{vv[s]}, v{vv[s]}, v{t0}")
    P(f"s_lshl_b32 s{S_KVOFF}, s{S_T0}, 15")
    P(f"s_lshr_b32 s{S_T1}, s{S_W}, 1")
    P(f"s_and_b32 s{S_T1}, s{S_T1}, 1")
    P(f"s_lshl_b32 s{S_T1}, s{S_T1}, 16")
    P(f"s_add_u32 s{S_KVOFF}, s{S_KVOFF}, s{S_T1}")
    P(f"s_lshl_b32 s{S_T1}, s{S_TT}, 10")
    P(f"s_add_u32 s{S_KVOFF}, s{S_KVOFF}, s{S_T1}")
    P(f"s_lshl_b32 s{S_KVLDS}, s{S_W}, 10")
    P(f"s_add_u32 s{S_KVLDS}, s{S_KVLDS}, 0x{KV_RING:x}")
    A.update(vk=vk, vv=vv)
    return A

def ones_init(P, lane, t0, t1, half=False):
    P(f"s_lshl_b32 s{S_T0}, s{S_W}, 8")
    P(f"s_add_u32 s{S_T0}, s{S_T0}, 0x{ONES:x}")
    P(f"v_lshlrev_b32 v{t0}, 2, v{lane}")
    P(f"v_add_u32 v{t0}, s{S_T0}, v{t0}")
    P(f"v_mov_b32 v{t1}, 0x3f803f80")
    if EXP.get("sparse_ones"):
        P(f"v_lshrrev_b32 v1, 2, v{lane}")
        P(f"v_and_b32 v1, 11, v1")
        P(f"v_cmp_eq_u32 vcc, 0, v1")
        P(f"v_cndmask_b32 v{t1}, 0, v{t1}, vcc")
    P(f"ds_write_b32 v{t0}, v{t1}")
    if half:
        P(f"v_subrev_u32 v{t0}, 1024, v{t0}")
        P(f"ds_write_b32 v{t0}, v{t1}")

def kv_dma(P, l16, c, mods=""):
    P(f"s_add_u32 s{S_T2}, s{S_KVOFF}, {2048*c}")
    dma(P, l16, S_WS, f"s{S_T2}", (S_KVLDS, 8192 * (c & 1)), tag=f"kv{c}", mods=mods)

def attention(P, V, A, qa, qb, l16, hook=None, mods="", prio=False):
    S = [V.alloc("Sa", 16), V.alloc("Sb", 16)]
    O = [V.alloc("Oa", 16), V.alloc("Ob", 16)]
    fk = V.alloc("fk", 4); fv = [V.alloc("fv1", 4), V.alloc("fv2", 4)]
    q = [qa, qb]
    H = hook or (lambda it, ph, pos: None)
    def rdK(it): P(f"ds_read_b128 {vr(fk,4)}, v{A['vk']} offset:{((it>>1)&1)*8192 + (it&1)*1024}")
    def rdV(it, half): P(f"ds_read_b128 {vr(fv[half],4)}, v{A['vv'][(it>>1)&1]} offset:{(it&1)*1024 + half*512}")
    E = lambda x, i: P(f"v_exp_f32 v{S[x]+i}, v{S[x]+i}")
    P0 = P
    if EXP.get("nopv") or EXP.get("nomfma"):
        class PP:
            def __call__(self, t, tag=None):
                if "v_mfma" in t and (EXP.get("nomfma") or t.startswith(f"v_mfma_f32_32x32x16_bf16 v[{O[0]}:") or t.startswith(f"v_mfma_f32_32x32x16_bf16 v[{O[1]}:")):
                    return P0("s_nop 1")
                return P0(t, tag=tag)
            def __getattr__(self, k): return getattr(P0, k)
        P = PP()
    def C(x, i):
        b = S[x] + (8 if i >= 4 else 0); k = i & 3
        P(f"v_cvt_pk_bf16_f32 v{b+k}, v{b+2*k}, v{b+2*k+1}")
    rdK(0); rdV(0, 0)
    P(mfma(S[0], fk, q[0]))
    for it in range(32):
        for x in range(2):
            y = 1 - x
            first = (it == 0)
            E(x, 0); E(x, 1)
            if x == 0:
                if it > 0: P(mfma(O[1], fv[1], S[1] + 8, O[1]))
                rdV(it, 1)
            else:
                P(mfma(O[0], fv[1], S[0] + 8, O[0]))
            H(it, x, 0)
            for i in range(2, 7): E(x, i)
            if x == 0: P(mfma(S[1], fk, q[1]))
            elif it < 31: P(mfma(S[0], fk, q[0]))
            H(it, x, 1)
            E(x, 7)
            for i in range(4): C(x, i)
            E(x, 8); E(x, 9)
            if x == 0 and (it & 1) and it < 31:
                c = it >> 1
                H(it, x, "presync0"); P.wait_tag(f"kv{c+1}"); H(it, x, "presync"); P.wait_lgkm_all()
                P("s_barrier")
            P(mfma(O[x], fv[0], S[x], None if first else O[x]))
            if prio: P(f"s_setprio {3 - (2*((it+1)&1) + x)}")
            if x == 0:
                if it < 31: rdK(it + 1)
                if (it & 1) and (it >> 1) + 2 < 16: kv_dma(P, l16, (it >> 1) + 2, mods)
            else:
                if it < 31: rdV(it + 1, 0)
            H(it, x, 2)
            for i in range(10, 13): E(x, i)
            H(it, x, 3)
            for i in range(13, 16): E(x, i)
            for i in range(4, 8): C(x, i)
    P(mfma(O[1], fv[1], S[1] + 8, O[1]))
    for n in ("Sa", "Sb", "fk", "fv1", "fv2"): V.release(n)
    return O

def attn_finish(P, V, O, lane, l16, vg, t0, scratch, mods=""):
    va = V.alloc("xaddr")
    P(f"s_mul_i32 s{S_T0}, s{S_W}, 3072")
    P(f"s_add_u32 s{S_T0}, s{S_T0}, 0x{scratch:x}")
    P(f"v_add_u32 v{va}, s{S_T0}, v{l16}")
    P(f"v_mov_b32 v{O[0]+7}, v{O[0]}")
    P(f"v_mov_b32 v{O[1]+7}, v{O[1]}")
    for i in range(3): P(f"ds_write_b128 v{va}, {vr(O[1]+4+4*i,4)} offset:{1024*i}")
    P(f"s_xor_b32 s{S_T1}, s{S_W}, 4")
    P(f"s_mul_i32 s{S_T0}, s{S_T1}, 3072")
    P(f"s_add_u32 s{S_T0}, s{S_T0}, 0x{scratch:x}")
    P(f"v_add_u32 v{va}, s{S_T0}, v{l16}")
    P.wait_lgkm_all()
    P("s_barrier")
    for i in range(3): P(f"ds_read_b128 {vr(O[1]+4+4*i,4)}, v{va} offset:{1024*i}")
    P(f"v_add_f32 v{O[0]+7}, v{O[0]+7}, v{O[1]+7}")
    for r in range(8, 16): P(f"v_add_f32 v{O[0]+r}, v{O[0]+r}, v{O[1]+r}")
    P(f"v_rcp_f32 v{t0}, v{O[0]+7}")
    P(f"v_mul_f32 v{t0}, v{t0}, v{vg}")
    for r in range(8, 16): P(f"v_mul_f32 v{O[0]+r}, v{O[0]+r}, v{t0}")
    for r in range(4): P(f"v_cvt_pk_bf16_f32 v{O[1]+r}, v{O[0]+8+2*r}, v{O[0]+9+2*r}")
    P(f"s_lshr_b32 s{S_T0}, s{S_W}, 1")
    P(f"s_and_b32 s{S_T0}, s{S_T0}, 1")
    P(f"s_lshl_b32 s{S_T0}, s{S_T0}, 1")
    P(f"s_lshr_b32 s{S_T1}, s{S_W}, 2")
    P(f"s_add_u32 s{S_T0}, s{S_T0}, s{S_T1}")
    P(f"s_lshl_b32 s{S_T1}, s{S_J}, 2")
    P(f"s_add_u32 s{S_T0}, s{S_T0}, s{S_T1}")
    P(f"s_mul_i32 s{S_T1}, s{S_TILE}, 118")
    P(f"s_add_u32 s{S_T0}, s{S_T0}, s{S_T1}")
    P(f"s_lshl_b32 s{S_T0}, s{S_T0}, 10")
    P(f"s_add_u32 s{S_T0}, s{S_T0}, 0x{WS_OH + 86*1024:x}")
    P(f"buffer_store_dwordx4 {vr(O[1],4)}, v{l16}, s[{S_WS}:{S_WS+3}], s{S_T0} offen{mods}", tag="ost")
    V.release("xaddr")

def kernel_B(prio=False):
    P = Prog(); V = Regs(2, 256, "v")
    lane, l16 = prologue(P, V, "LB_end")
    t0 = V.alloc("t0"); t1 = V.alloc("t1")
    stamp(P, 0, 1)
    A = attn_setup(P, V, lane, l16, t0, t1)
    kv_dma(P, l16, 0); kv_dma(P, l16, 1)
    qf = V.alloc("qf", 8); vg = V.alloc("vg")
    P(f"s_lshr_b32 s{S_T0}, s{S_W}, 1")
    P(f"s_and_b32 s{S_T0}, s{S_T0}, 1")
    P(f"s_lshl_b32 s{S_T0}, s{S_T0}, 1")
    P(f"s_lshl_b32 s{S_T1}, s{S_J}, 2")
    P(f"s_add_u32 s{S_T0}, s{S_T0}, s{S_T1}")
    P(f"s_lshl_b32 s{S_T1}, s{S_TILE}, 5")
    P(f"s_add_u32 s{S_T0}, s{S_T0}, s{S_T1}")
    P(f"s_lshr_b32 s{S_T1}, s{S_W}, 2")
    P(f"s_add_u32 s{S_T3}, s{S_T0}, s{S_T1}")
    P(f"s_xor_b32 s{S_T4}, s{S_T3}, 1")
    for s, r in ((S_T3, qf), (S_T4, qf + 4)):
        P(f"s_lshl_b32 s{s}, s{s}, 10")
        P(f"s_add_u32 s{s}, s{s}, 0x{WS_QF:x}")
        P(f"buffer_load_dwordx4 {vr(r,4)}, v{l16}, s[{S_WS}:{S_WS+3}], s{s} offen")
    P(f"v_and_b32 v{t0}, 31, v{lane}")
    P(f"v_lshlrev_b32 v{t0}, 2, v{t0}")
    P(f"s_lshl_b32 s{S_T0}, s{S_TILE}, 7")
    P(f"s_add_u32 s{S_T0}, s{S_T0}, 0x{WS_G:x}")
    P(f"buffer_load_dword v{vg}, v{t0}, s[{S_WS}:{S_WS+3}], s{S_T0} offen")
    ones_init(P, lane, t0, t1)
    P.wait_vm_all(); P.wait_lgkm_all()
    P("s_barrier")
    stamp(P, 1, 1)
    O = attention(P, V, A, qf, qf + 4, l16, prio=prio)
    stamp(P, 2, 1)
    attn_finish(P, V, O, lane, l16, vg, t0, 0)
    P.wait_vm_all()
    stamp(P, 3, 1)
    P("LB_end:")
    P("s_endpgm")
    return kernel_text("kb_kernel", P, max(V.hi, 8), SGPR_N)

FSLOT = [0, 32768, 65536, 98304]
S_FW, S_FB, S_FL, S_FL2 = S_WOFF, S_WLDS, S_U0, S_NU
def fin_setup(P, V, lane, l16, t0, t1):
    F = {}
    P(f"s_lshr_b32 s{S_T3}, s{S_W}, 1")
    P(f"s_and_b32 s{S_T3}, s{S_T3}, 1")
    va0 = tr_slice_addr(P, V, "fa0", lane, t0, t1, 0, S_T3, 4)
    P(f"s_lshr_b32 s{S_T0}, s{S_W}, 2")
    P(f"s_lshl_b32 s{S_T1}, s{S_T0}, 5")
    P(f"v_xor_b32 v{va0}, s{S_T1}, v{va0}")
    P(f"s_lshl_b32 s{S_T1}, s{S_T0}, 11")
    P(f"v_add_u32 v{va0}, s{S_T1}, v{va0}")
    va1 = V.alloc("fa1"); vb0 = V.alloc("fb0"); vb1 = V.alloc("fb1")
    P(f"v_add_u32 v{va1}, 0x10000, v{va0}")
    P(f"s_lshl_b32 s{S_T1}, s{S_T0}, 10")
    P(f"s_lshl_b32 s{S_T2}, s{S_TT}, 13")
    P(f"s_add_u32 s{S_T1}, s{S_T1}, s{S_T2}")
    P(f"s_add_u32 s{S_T1}, s{S_T1}, 16384")
    P(f"v_add_u32 v{vb0}, s{S_T1}, v{l16}")
    P(f"v_add_u32 v{vb1}, 0x10000, v{vb0}")
    P(f"s_lshl_b32 s{S_FW}, s{S_W}, 14")
    P(f"s_lshl_b32 s{S_T1}, s{S_J}, 7")
    P(f"s_add_u32 s{S_FW}, s{S_FW}, s{S_T1}")
    P(f"s_mul_i32 s{S_FB}, s{S_G}, {2*118}")
    P(f"s_add_u32 s{S_FB}, s{S_FB}, s{S_W}")
    P(f"s_lshl_b32 s{S_FB}, s{S_FB}, 10")
    P(f"s_add_u32 s{S_FB}, s{S_FB}, 0x{WS_OH:x}")
    P(f"s_lshl_b32 s{S_FL}, s{S_W}, 10")
    P(f"s_lshl_b32 s{S_FL2}, s{S_W}, 11")
    F.update(va=[va0, va1], vb=[vb0, vb1])
    return F

def fin_dma_w1(P, vsl, st, slot, tag, i):
    srd, u0 = (S_WD, 8 * st) if st < 11 else (S_WO, 8 * (st - 11))
    P(f"s_add_u32 s{S_T2}, s{S_FW}, 0x{(16*u0 + 8*i)*1024:x}")
    dma(P, vsl, srd, f"s{S_T2}", (S_FL2, slot + 1024 * i), tag=tag)

def fin_dma_b1(P, l16, st, slot, tag, t, mods=""):
    u0 = 8 * st if st < 11 else 86 + 8 * (st - 11)
    P(f"s_add_u32 s{S_T2}, s{S_FB}, 0x{(t*118 + u0)*1024:x}")
    if st == 10:
        P(f"s_cmp_lt_u32 s{S_W}, 6")
        P(f"s_cselect_b32 s{S_T2}, s{S_T2}, 0x{OOB:x}")
    dma(P, l16, S_WS, f"s{S_T2}", (S_FL, slot + 16384 + 8192 * t), tag=tag, mods=mods)

def fin_dma_w(P, vsl, st, slot, tag):
    srd, u0 = (S_WD, 8 * st) if st < 11 else (S_WO, 8 * (st - 11))
    P(f"s_lshl_b32 s{S_T4}, s{S_FL}, 1")
    for i in range(2):
        P(f"s_add_u32 s{S_T2}, s{S_FW}, 0x{(16*u0 + 8*i)*1024:x}")
        dma(P, vsl, srd, f"s{S_T2}", (S_T4, slot + 1024 * i), tag=tag)

def fin_dma_b(P, l16, st, slot, tag, mods=""):
    u0 = 8 * st if st < 11 else 86 + 8 * (st - 11)
    for t in range(2):
        P(f"s_add_u32 s{S_T2}, s{S_FB}, 0x{(t*118 + u0)*1024:x}")
        if st == 10:
            P(f"s_cmp_lt_u32 s{S_W}, 6")
            P(f"s_cselect_b32 s{S_T2}, s{S_T2}, 0x{OOB:x}")
        dma(P, l16, S_WS, f"s{S_T2}", (S_FL, slot + 16384 + 8192 * t), tag=tag, mods=mods)

def fin_reads(P, F, slot, i, fa, fb):
    hi = 1 if slot >= 65536 else 0
    o = slot - 65536 * hi
    return [f"ds_read_b64_tr_b16 {vr(fa,2)}, v{F['va'][hi]} offset:{o + 4096*i}",
            f"ds_read_b64_tr_b16 {vr(fa+2,2)}, v{F['va'][hi]} offset:{o + 4096*i + 1024}",
            f"ds_read_b128 {vr(fb,4)}, v{F['vb'][hi]} offset:{o + 2048*i}"]

def fin_epilogue(P, V, acc, lane, l16, t0, t1, scratch):
    va = V.alloc("xaddr"); tmp = V.alloc("ftmp", 8)
    P(f"s_lshl_b32 s{S_T0}, s{S_W}, 11")
    P(f"s_add_u32 s{S_T0}, s{S_T0}, 0x{scratch:x}")
    P(f"v_add_u32 v{va}, s{S_T0}, v{l16}")
    for i in range(2): P(f"ds_write_b128 v{va}, {vr(acc+8+4*i,4)} offset:{1024*i}")
    P(f"v_xor_b32 v{va}, 0x2000, v{va}") if scratch % 16384 == 0 else None
    assert scratch % 16384 == 0
    P(f"v_and_b32 v{t0}, 31, v{lane}")
    P(f"v_lshlrev_b32 v{t0}, 10, v{t0}")
    P(f"v_lshrrev_b32 v{t1}, 5, v{lane}")
    P(f"v_lshl_add_u32 v{t0}, v{t1}, 4, v{t0}")
    P(f"s_lshl_b32 s{S_T0}, s{S_TILE}, 15")
    P(f"s_lshl_b32 s{S_T1}, s{S_J}, 7")
    P(f"s_add_u32 s{S_T0}, s{S_T0}, s{S_T1}")
    P(f"s_lshr_b32 s{S_T1}, s{S_W}, 1")
    P(f"s_and_b32 s{S_T1}, s{S_T1}, 1")
    P(f"s_lshl_b32 s{S_T1}, s{S_T1}, 6")
    P(f"s_add_u32 s{S_T0}, s{S_T0}, s{S_T1}")
    P(f"s_lshr_b32 s{S_T1}, s{S_W}, 2")
    P(f"s_lshl_b32 s{S_T1}, s{S_T1}, 5")
    P(f"s_add_u32 s{S_T0}, s{S_T0}, s{S_T1}")
    P.wait_lgkm_all()
    P("s_barrier")
    for i in range(2): P(f"ds_read_b128 {vr(tmp+4*i,4)}, v{va} offset:{1024*i}")
    for r in range(8): P(f"v_add_f32 v{acc+r}, v{acc+r}, v{tmp+r}")
    for r in range(4): P(f"v_cvt_pk_bf16_f32 v{tmp+r}, v{acc+2*r}, v{acc+2*r+1}")
    P(f"v_permlane32_swap_b32 v{tmp}, v{tmp+2}")
    P(f"v_permlane32_swap_b32 v{tmp+1}, v{tmp+3}")
    P(f"buffer_store_dwordx4 {vr(tmp,4)}, v{t0}, s[{S_OUT}:{S_OUT+3}], s{S_T0} offen")

def kernel_C():
    P = Prog(); V = Regs(2, 256, "v")
    lane, l16 = prologue(P, V, "LC_end")
    t0 = V.alloc("t0"); t1 = V.alloc("t1")
    stamp(P, 0, 2)
    vsl = slice_pattern(P, V, lane, t0)
    F = fin_setup(P, V, lane, l16, t0, t1)
    for st in range(3):
        fin_dma_w(P, vsl, st, FSLOT[st % 4], f"f{st}"); fin_dma_b(P, l16, st, FSLOT[st % 4], f"f{st}")
    vg = V.alloc("vg")
    P(f"v_and_b32 v{t0}, 31, v{lane}")
    P(f"v_lshlrev_b32 v{t0}, 2, v{t0}")
    P(f"s_lshl_b32 s{S_T0}, s{S_TILE}, 7")
    P(f"s_add_u32 s{S_T0}, s{S_T0}, 0x{WS_G:x}")
    P(f"buffer_load_dword v{vg}, v{t0}, s[{S_WS}:{S_WS+3}], s{S_T0} offen")
    acc = V.alloc("acc", 16)
    fa = [V.alloc(f"fa_{i}", 4) for i in range(4)]; fb = [V.alloc(f"fb_{i}", 4) for i in range(4)]
    for st in range(15):
        P.wait_tag(f"f{st}")
        P("s_barrier")
        if st + 3 < 15:
            fin_dma_w(P, vsl, st + 3, FSLOT[(st + 3) % 4], f"f{st+3}"); fin_dma_b(P, l16, st + 3, FSLOT[(st + 3) % 4], f"f{st+3}")
        n = 3 if st == 10 else 4
        for i in range(n):
            for x in fin_reads(P, F, FSLOT[st % 4], i, fa[i], fb[i]): P(x)
        for i in range(n):
            P(mfma(acc, fa[i], fb[i], acc if (st or i) else None))
        if st == 10:
            P(f"v_sub_f32 v{t0}, 1.0, v{vg}")
            for r in range(16): P(f"v_mul_f32 v{acc+r}, v{acc+r}, v{t0}")
    stamp(P, 1, 2)
    fin_epilogue(P, V, acc, lane, l16, t0, t1, 131072)
    P.wait_vm_all()
    stamp(P, 2, 2)
    P("LC_end:")
    P("s_endpgm")
    return kernel_text("kc_kernel", P, max(V.hi, 8), SGPR_N)

if __name__ == "__main__":
    from v1 import kernel_A
    import sys
    STAMP["on"] = "stamp" in sys.argv
    for a in sys.argv[1:]: EXP[a] = True
    ta, IA = kernel_A(); tb, IB = kernel_B(prio=("prio" in sys.argv)); tc, IC = kernel_C()
    hdr = HEADER
    for k in ("ka", "kb", "kc"):
        hdr += f"; @launch kernel={k}_kernel grid=(256,1,1) block=(512,1,1) lds={LDS_BYTES}\n"
    hdr += '.amdgcn_target "amdgcn-amd-amdhsa--gfx950"\n'
    open("v1.s", "w").write(hdr + ta + tb + tc)
    print("insts", len(IA), len(IB), len(IC))
```

```python
import sys
from parts import *
import parts, v1bc
from v1bc import fin_dma_w1, fin_dma_b1, attn_setup, kv_dma, fin_setup, fin_dma_w, fin_dma_b, fin_reads, FSLOT, S_FW, S_FB, S_FL
OPT = {}
S_NONCE = 93
S_HP, S_KH = 30, 31
FL_KV, FL_H, FL_O = WS_FLAG, WS_FLAG + 4096, WS_FLAG + 16384
QSCR = KV_RING
SC1 = " sc1"
SPIN_MAX = 1 << 22

def prologue_f(P, V, endlabel):
    P("s_cmp_ge_u32 s2, 256")
    P(f"s_cbranch_scc1 {endlabel}")
    P("s_load_dwordx16 s[4:19], s[0:1], 0")
    P("s_load_dwordx8 s[20:27], s[0:1], 64")
    P("s_load_dwordx2 s[28:29], s[0:1], 96")
    lane = V.alloc("lane"); l16 = V.alloc("l16")
    P(f"v_lshrrev_b32 v1, 6, v0")
    P(f"v_and_b32 v{lane}, 63, v0")
    P(f"v_readfirstlane_b32 s{S_W}, v1")
    P(f"v_lshlrev_b32 v{l16}, 4, v{lane}")
    P(f"s_lshr_b32 s{S_T0}, s2, 3")
    P(f"s_and_b32 s{S_J}, s{S_T0}, 3")
    P(f"s_and_b32 s{S_T1}, s2, 1")
    P(f"s_lshl_b32 s{S_T1}, s{S_T1}, 2")
    P(f"s_add_u32 s{S_J}, s{S_J}, s{S_T1}")
    P(f"s_and_b32 s{S_G}, s2, 6")
    P(f"s_lshl_b32 s{S_G}, s{S_G}, 2")
    P(f"s_lshr_b32 s{S_T0}, s{S_T0}, 2")
    P(f"s_add_u32 s{S_G}, s{S_G}, s{S_T0}")
    P(f"s_and_b32 s{S_TT}, s{S_W}, 1")
    P(f"s_lshl_b32 s{S_TILE}, s{S_G}, 1")
    P(f"s_add_u32 s{S_TILE}, s{S_TILE}, s{S_TT}")
    P(f"s_lshr_b32 s{S_HP}, s{S_W}, 1")
    P(f"s_and_b32 s{S_HP}, s{S_HP}, 1")
    P(f"s_lshr_b32 s{S_KH}, s{S_W}, 2")
    P(f"s_lshl_b32 s{S_T0}, s{S_G}, 16")
    P(f"s_lshl_b32 s{S_T1}, s{S_W}, 13")
    P(f"s_add_u32 s{S_T0}, s{S_T0}, s{S_T1}")
    P(f"s_mul_i32 s{S_T1}, s{S_W}, {8*X_STRIDE}")
    P("s_waitcnt lgkmcnt(0)")
    mk_srd(P, S_X, 4, SZ["x"])
    for i in range(8):
        P(f"s_add_u32 s{S_T2}, s{S_T0}, {1024*i}")
        dma(P, l16, S_X, f"s{S_T2}", (S_T1, X_STRIDE * i), tag="x")
    P(f"s_and_b32 s{S_T0}, s{S_J}, 1")
    P(f"s_cmp_eq_u32 s{S_T0}, 0")
    P(f"s_cselect_b32 s{S_WKV}, s8, s10")
    P(f"s_cselect_b32 s{S_WKV+1}, s9, s11")
    P(f"s_and_b32 s{S_WKV+1}, s{S_WKV+1}, 0xffff")
    P(f"s_mov_b32 s{S_WKV+2}, 0x{SZ['wk']:x}")
    P(f"s_mov_b32 s{S_WKV+3}, 0x20000")
    P(f"s_lshl_b32 s{S_T0}, s{S_W}, 11")
    dma(P, l16, S_WKV, f"s{S_T0}", (S_T0, SLOT[0]), tag="x")
    P(f"buffer_load_dwordx4 v{l16}, s[{S_WKV}:{S_WKV+3}], s{S_T0} offen offset:1024 lds", tag="x")
    mk_srd(P, S_WQ, 6, SZ["wq"])
    return lane, l16

def rest_srds(P):
    P(f"s_cmp_eq_u32 s{S_TT}, 0")
    P(f"s_cselect_b32 s{S_WM}, s16, s18")
    P(f"s_cselect_b32 s{S_WM+1}, s17, s19")
    P(f"s_and_b32 s{S_WM+1}, s{S_WM+1}, 0xffff")
    P(f"s_mov_b32 s{S_WM+2}, 0x{SZ['wg']:x}")
    P(f"s_mov_b32 s{S_WM+3}, 0x20000")
    mk_srd(P, S_GW, 22, SZ["gw"])
    mk_srd(P, S_WS, 28, SZ["ws"])
    mk_srd(P, S_OUT, 24, SZ["out"])
    mk_srd(P, S_WO, 12, SZ["wo"])
    mk_srd(P, S_WD, 20, SZ["wd"])
    mk_srd(P, S_DBG, 26, SZ["dbg"])

class Slow:
    def __init__(self): self.txt = []; self.n = 0
    def add(self, t): self.txt.append(t)

def nonce_check(P, SL, vn, vz):
    k = SL.n; SL.n += 1
    P(f"v_readfirstlane_b32 s{S_NONCE}, v{vn}")
    P(f"s_cmp_eq_u32 s{S_NONCE}, 0")
    P(f"s_cbranch_scc1 LS{k}")
    P(f"LR{k}:")
    SL.add(f"""LS{k}:
    s_mov_b32 s{S_T7}, 0
LS{k}_l:
    s_sleep 2
    buffer_load_dword v{vn}, v{vz}, s[{S_DBG}:{S_DBG+3}], 0 offen sc1
    s_waitcnt vmcnt(0)
    v_readfirstlane_b32 s{S_NONCE}, v{vn}
    s_add_u32 s{S_T7}, s{S_T7}, 1
    s_cmp_ge_u32 s{S_T7}, 0x{SPIN_MAX:x}
    s_cbranch_scc1 LR{k}
    s_cmp_eq_u32 s{S_NONCE}, 0
    s_cbranch_scc1 LS{k}_l
    s_branch LR{k}
""")

def flag_load(vf, n, vaddr, soff):
    op = {1: "buffer_load_dword", 4: "buffer_load_dwordx4"}[n]
    return f"{op} {vr(vf,n)}, v{vaddr}, s[{S_WS}:{S_WS+3}], {soff} offen sc1"

def flag_cmp(vf, n, t):
    L = [f"v_xor_b32 v{t}, s{S_NONCE}, v{vf}"]
    for i in range(1, n):
        L += [f"v_xor_b32 v{vf+i}, s{S_NONCE}, v{vf+i}", f"v_or_b32 v{t}, v{t}, v{vf+i}"]
    L += [f"v_cmp_ne_u32 vcc, 0, v{t}"]
    return L

def flag_check(P, SL, vf, n, vaddr, soff, t):
    k = SL.n; SL.n += 1
    for x in flag_cmp(vf, n, t): P(x)
    P(f"s_cbranch_vccnz LS{k}")
    P(f"LR{k}:")
    body = "\n    ".join(flag_cmp(vf, n, t))
    SL.add(f"""LS{k}:
    s_mov_b32 s{S_T7}, 0
LS{k}_l:
    s_sleep 1
    {flag_load(vf, n, vaddr, soff)}
    s_waitcnt vmcnt(0)
    {body}
    s_add_u32 s{S_T7}, s{S_T7}, 1
    s_cmp_ge_u32 s{S_T7}, 0x{SPIN_MAX:x}
    s_cbranch_scc1 LR{k}
    s_cbranch_vccnz LS{k}_l
    s_branch LR{k}
""")

def flag_store(P, vz, t, soff):
    P(f"v_mov_b32 v{t}, s{S_NONCE}")
    P("s_mov_b64 exec, 1")
    P(f"buffer_store_dword v{t}, v{vz}, s[{S_WS}:{S_WS+3}], s{soff} offen sc1", tag="flag")
    P("s_mov_b64 exec, -1")

def kernel_F():
    P = Prog(); V = Regs(2, 256, "v"); SL = Slow()
    lane, l16 = prologue_f(P, V, "LF_end")
    t0 = V.alloc("t0"); t1 = V.alloc("t1"); vz = V.alloc("vz")
    vsl = slice_pattern(P, V, lane, t0)
    P(f"s_lshl_b32 s{S_T4}, s{S_W}, 16")
    P(f"s_lshl_b32 s{S_T0}, s{S_J}, 7")
    P(f"s_add_u32 s{S_T4}, s{S_T4}, s{S_T0}")
    P(f"s_lshl_b32 s{S_T5}, s{S_W}, 13")
    for i in range(8):
        P(f"s_add_u32 s{S_T2}, s{S_T4}, 0x{i*8192:x}")
        dma(P, vsl, S_WQ, f"s{S_T2}", (S_T5, REG_A + 1024 * i), tag="q")
    rest_srds(P)
    P(f"v_mov_b32 v{vz}, 0")
    dma(P, l16, S_GW, "0", (None, GWL), tag="q")
    stamp(P, 0)
    P(f"s_or_b32 s{S_T0}, s2, s{S_W}")
    P(f"s_cmp_lg_u32 s{S_T0}, 0")
    P("s_cbranch_scc1 LF_non")
    P.cond_begin()
    P(f"s_memrealtime s[{S_EX}:{S_EX+1}]")
    P("s_waitcnt lgkmcnt(0)")
    P(f"s_mul_i32 s{S_EX+1}, s{S_EX+1}, 0x9e3779b1")
    P(f"s_xor_b32 s{S_EX}, s{S_EX}, s{S_EX+1}")
    P(f"s_or_b32 s{S_EX}, s{S_EX}, 1")
    P(f"v_mov_b32 v{t0}, s{S_EX}")
    P("s_mov_b64 exec, 1")
    P(f"buffer_store_dword v{t0}, v{vz}, s[{S_DBG}:{S_DBG+3}], 0 offen sc1")
    P("s_mov_b64 exec, -1")
    P.cond_end()
    P("LF_non:")
    pats = w_patterns(P, V, lane, t0, t1)
    P(f"s_lshl_b32 s{S_T0}, s{S_HP}, 1")
    P(f"s_mul_i32 s{S_WOFF}, s{S_T0}, {8*2752}")
    P(f"s_lshl_b32 s{S_T1}, s{S_U0}, 5")
    P(f"s_add_u32 s{S_WOFF}, s{S_WOFF}, s{S_T1}")
    P(f"s_mul_i32 s{S_WLDS}, s{S_T0}, 3072")
    P(f"s_mul_i32 s{S_T1}, s{S_TT}, {UP_OFF}")
    P(f"s_add_u32 s{S_WLDS}, s{S_WLDS}, s{S_T1}")
    def w_dma6(s, tag):
        for g in range(2):
            P(f"s_add_u32 s{S_T2}, s{S_WOFF}, 0x{(32*s + 8*g)*2752:x}")
            for i in range(3):
                dma(P, pats[i], S_WM, f"s{S_T2}", (S_WLDS, SLOT[s % 3] + 3072 * g + 1024 * i), tag=tag)
    vxa = xfrag_addr(P, V, "vxa", lane, t0, S_TT)
    vx0 = V.alloc("vx0")
    P(f"s_mul_i32 s{S_T0}, s{S_TT}, {32*X_STRIDE}")
    P(f"v_subrev_u32 v{vx0}, s{S_T0}, v{vxa}")
    vtn = tr_slice_addr(P, V, "vtn", lane, t0, t1, REG_A, S_HP, 8)
    vgw = V.alloc("vgw")
    P(f"v_lshrrev_b32 v{t0}, 5, v{lane}")
    P(f"v_lshlrev_b32 v{vgw}, 4, v{t0}")
    P(f"v_add_u32 v{vgw}, 0x{GWL:x}, v{vgw}")
    P(f"s_lshl_b32 s{S_T4}, s{S_W}, 1")
    wtr = w_tr_addrs(P, V, lane, t0, t1, s_w=S_T4)
    acc = [[V.alloc(f"acc{i}{t}", 16) for t in range(2)] for i in range(3)]
    fx = [[V.alloc(f"fx{b}{t}", 4) for t in range(2)] for b in range(2)]
    fw = [[V.alloc(f"fw{b}{i}", 4) for i in range(3)] for b in range(2)]
    qf = V.alloc("qf", 8); vn = V.alloc("vn"); vfl = V.alloc("vfl", 4)
    vq = V.alloc("vq"); vzs = V.alloc("vzs")
    P(f"s_and_b32 s{S_T0}, s{S_W}, 3")
    P(f"s_lshl_b32 s{S_T1}, s{S_T0}, 11")
    P(f"s_add_u32 s{S_T1}, s{S_T1}, 0x{QSCR:x}")
    P(f"v_add_u32 v{vq}, s{S_T1}, v{l16}")
    A = attn_setup(P, V, lane, l16, t0, t1)
    vpf = V.alloc("vpf")
    P(f"v_lshrrev_b32 v{t0}, 4, v{lane}")
    P(f"v_mul_u32_u24 v{vpf}, 2752, v{t0}")
    P(f"v_and_b32 v{t0}, 15, v{lane}")
    P(f"v_lshl_add_u32 v{vpf}, v{t0}, 7, v{vpf}")
    P(f"v_cmp_gt_u32 vcc, 12, v{t0}")
    P(f"v_mov_b32 v{t1}, 0x{OOB:x}")
    P(f"v_cndmask_b32 v{vpf}, v{t1}, v{vpf}, vcc")
    P(f"s_lshr_b32 s{S_T0}, s2, 3")
    P(f"s_lshl_b32 s{S_T0}, s{S_T0}, 1")
    P(f"s_add_u32 s{S_T0}, s{S_T0}, s{S_HP}")
    P(f"s_mul_i32 s{S_T0}, s{S_T0}, {4*2752}")
    P(f"s_and_b32 s{S_T1}, s2, 1")
    P(f"s_mul_i32 s{S_T1}, s{S_T1}, {44*32}")
    P(f"s_add_u32 s{S_T6}, s{S_T0}, s{S_T1}")
    def prefetch():
        P(f"buffer_load_dword v{vfl}, v{vpf}, s[{S_WM}:{S_WM+3}], s{S_T6} offen", tag="pf")
        P(f"s_add_u32 s{S_T6}, s{S_T6}, {256*2752}")
        P(f"buffer_load_dword v{vfl+1}, v{vpf}, s[{S_WM}:{S_WM+3}], s{S_T6} offen", tag="pf")
    P.wait_tag("x")
    P("s_barrier")
    stamp(P, 1)
    P(f"s_cmp_lg_u32 s{S_KH}, 0")
    P("s_cbranch_scc1 LF_helper")
    P.cond_begin()
    if OPT.get("pf", 1) == 1: prefetch()
    P.wait_tag("q")
    P("s_barrier")
    stamp(P, 2)
    if OPT.get("pf", 1) == 2: prefetch()
    xb = [fx[0][0], fx[0][1], fx[1][0], fx[1][1]]; wb = [fw[0][0], fw[0][1], fw[0][2], fw[1][0]]
    def q_loads(ks):
        P(f"ds_read_b128 {vr(xb[ks%4],4)}, v{vxa} offset:{ks*32}")
        P(f"ds_read_b64_tr_b16 {vr(wb[ks%4],2)}, v{vtn} offset:{ks*2048}")
        P(f"ds_read_b64_tr_b16 {vr(wb[ks%4]+2,2)}, v{vtn} offset:{ks*2048+512}")
    for ks in range(3): q_loads(ks)
    for ks in range(32):
        P(mfma(acc[0][0], wb[ks%4], xb[ks%4], acc[0][0] if ks else None))
        if ks + 3 < 32: q_loads(ks + 3)
    for r in range(8): P(f"v_cvt_pk_bf16_f32 v{qf+r}, v{acc[0][0]+2*r}, v{acc[0][0]+2*r+1}")
    def gu_reads(ks):
        s, kk = ks // 2, ks % 2
        so = SLOT[s % 3] - SLOT[0] + kk * 6144
        L = [f"ds_read_b128 {vr(fx[ks%2][0],4)}, v{vx0} offset:{ks*32}"]
        for i in range(3):
            f = fw[ks % 2][i]
            L += [f"ds_read_b64_tr_b16 {vr(f,2)}, v{wtr[i]} offset:{so}", f"ds_read_b64_tr_b16 {vr(f+2,2)}, v{wtr[i]} offset:{so+1536}"]
            if i == 0: L.append(f"ds_read_b128 {vr(fx[ks%2][1],4)}, v{vx0} offset:{ks*32 + 32*X_STRIDE}")
        return L
    P("s_barrier")
    stamp(P, 3)
    for x in gu_reads(0): P(x)
    P(f"ds_write_b128 v{vq}, {vr(qf,4)}")
    P(f"ds_write_b128 v{vq}, {vr(qf+4,4)} offset:1024")
    for ks in range(32):
        if ks % 2 == 1 and ks < 31:
            P.wait_lgkm_all(); P("s_barrier")
        R = gu_reads(ks + 1) if ks < 31 else []
        m = 0
        for i in range(3):
            for t in range(2):
                P(mfma(acc[i][t], fw[ks % 2][i], fx[ks % 2][t], acc[i][t] if ks else None))
                for x in R[2 * m: 2 * m + 2]: P(x)
                m += 1
    P(f"s_mul_i32 s{S_T0}, s{S_W}, 3")
    P(f"s_mul_i32 s{S_T1}, s{S_G}, 236")
    P(f"s_add_u32 s{S_T1}, s{S_T1}, s{S_U0}")
    SH = [4, 5, 6]
    for i in range(3):
        P(f"s_add_u32 s{S_T2}, s{S_T0}, {i}")
        P(f"s_add_u32 s{SH[i]}, s{S_T1}, s{S_T2}")
        P(f"s_lshl_b32 s{SH[i]}, s{SH[i]}, 10")
        P(f"s_add_u32 s{SH[i]}, s{SH[i]}, 0x{WS_OH:x}")
        P(f"s_cmp_lt_u32 s{S_T2}, s{S_NU}")
        P(f"s_cselect_b32 s{SH[i]}, s{SH[i]}, 0x{OOB:x}")
    P("s_barrier")
    stamp(P, 4)
    P(f"buffer_load_dword v{vn}, v{vz}, s[{S_DBG}:{S_DBG+3}], 0 offen sc1")
    tmp = fx[0][0]; cst = fx[1][0]
    assert fx[0][1] == fx[0][0] + 4
    P(f"v_mov_b32 v{cst}, {hexf(GELU_C1)}"); P(f"v_mov_b32 v{cst+1}, {hexf(GELU_C1)}")
    P(f"v_mov_b32 v{cst+2}, {hexf(GELU_C2)}"); P(f"v_mov_b32 v{cst+3}, {hexf(GELU_C2)}")
    k = 0
    for i in range(3):
        for t in range(2):
            d = fw[k % 2][k // 2]; k += 1
            for x in gelu_tile_pk(acc[i][t], d, tmp, cst): P(x)
            if t == 1: P(f"s_add_u32 s{SH[i]}, s{SH[i]}, {118*1024}")
            P(f"buffer_store_dwordx4 {vr(d,4)}, v{l16}, s[{S_WS}:{S_WS+3}], s{SH[i]} offen sc1", tag="hst")
    stamp(P, 11)
    P.cond_end(keep=True)
    P("s_branch LF_join")
    P("LF_helper:")
    P.cond_begin()
    P(f"s_cmp_lg_u32 s{S_W}, 7")
    P("s_cbranch_scc1 LF_nokv")
    P.cond_begin()
    vx16 = V.alloc("vx16"); vw16 = V.alloc("vw16"); vst = V.alloc("vst")
    P(f"s_lshr_b32 s{S_T0}, s{S_J}, 1")
    P(f"s_lshl_b32 s{S_T1}, s{S_T0}, 4")
    P(f"v_and_b32 v{t0}, 15, v{lane}")
    P(f"v_add_u32 v{t1}, s{S_T1}, v{t0}")
    P(f"v_mul_u32_u24 v{vx16}, {X_STRIDE}, v{t1}")
    P(f"v_lshrrev_b32 v{t1}, 4, v{lane}")
    P(f"v_lshl_add_u32 v{vx16}, v{t1}, 4, v{vx16}")
    P(f"v_lshlrev_b32 v{vw16}, 8, v{t1}")
    P(f"v_lshl_add_u32 v{vw16}, v{t0}, 3, v{vw16}")
    P(f"v_add_u32 v{vw16}, 0x{SLOT[0]:x}, v{vw16}")
    P(f"s_and_b32 s{S_T2}, s{S_J}, 1")
    P(f"s_cmp_eq_u32 s{S_T2}, 0")
    P(f"s_cselect_b32 s{S_T3}, 9, 8")
    P(f"s_cselect_b32 s{S_T4}, 8, 9")
    P(f"s_cselect_b32 s{S_T5}, 0x{WS_KF:x}, 0x{WS_VF:x}")
    P(f"v_lshlrev_b32 v{vst}, 4, v{t0}")
    P(f"v_lshrrev_b32 v{t0}, 1, v{t1}")
    P(f"v_lshl_add_u32 v{vst}, v{t0}, 3, v{vst}")
    P(f"v_and_b32 v{t0}, 1, v{t1}")
    P(f"v_lshlrev_b32 v{t0}, s{S_T3}, v{t0}")
    P(f"v_add_u32 v{vst}, v{vst}, v{t0}")
    P(f"s_and_b32 s{S_T1}, s{S_T0}, 1")
    P(f"s_lshl_b32 s{S_T1}, s{S_T1}, s{S_T4}")
    P(f"s_add_u32 s{S_T5}, s{S_T5}, s{S_T1}")
    P(f"s_lshr_b32 s{S_T0}, s{S_T0}, 1")
    P(f"s_lshl_b32 s{S_T1}, s{S_G}, 1")
    P(f"s_add_u32 s{S_T0}, s{S_T0}, s{S_T1}")
    P(f"s_lshl_b32 s{S_T0}, s{S_T0}, 10")
    P(f"s_add_u32 s{S_T5}, s{S_T5}, s{S_T0}")
    def kv16(which):
        d = acc[0][0]
        xb = [acc[1][0] + 4 * i for i in range(4)]; wb = [acc[2][0] + 4 * i for i in range(4)]
        def ld(ks):
            P(f"ds_read_b128 {vr(xb[ks%4],4)}, v{vx16} offset:{ks*64}")
            P(f"ds_read_b64_tr_b16 {vr(wb[ks%4],2)}, v{vw16} offset:{ks*1024}")
            P(f"ds_read_b64_tr_b16 {vr(wb[ks%4]+2,2)}, v{vw16} offset:{ks*1024+128}")
        for ks in range(3): ld(ks)
        for ks in range(16):
            a, b = (wb[ks%4], xb[ks%4]) if which == 0 else (xb[ks%4], wb[ks%4])
            P(f"v_mfma_f32_16x16x32_bf16 {vr(d,4)}, {vr(a,4)}, {vr(b,4)}, {vr(d,4) if ks else 0}")
            if ks + 3 < 16: ld(ks + 3)
        if which == 0:
            P(f"s_mov_b32 s{S_T0}, {hexf(QK_SCALE)}")
            for r in range(4): P(f"v_mul_f32 v{d+r}, s{S_T0}, v{d+r}")
    P(f"s_cmp_eq_u32 s{S_T2}, 1")
    P("s_cbranch_scc1 LF_vch")
    P.cond_begin(); kv16(0); P.cond_end()
    P("s_branch LF_kvj")
    P("LF_vch:")
    P.cond_begin(); kv16(1); P.cond_end()
    P("LF_kvj:")
    for r in range(2): P(f"v_cvt_pk_bf16_f32 v{acc[0][0]+4+r}, v{acc[0][0]+2*r}, v{acc[0][0]+2*r+1}")
    P(f"buffer_store_dwordx2 {vr(acc[0][0]+4,2)}, v{vst}, s[{S_WS}:{S_WS+3}], s{S_T5} offen sc1")
    P.cond_end()
    P("LF_nokv:")
    for n in ("vx16", "vw16", "vst"): V.release(n)
    P.wait_tag("q")
    P("s_barrier")
    stamp(P, 2)
    w_dma6(0, "w0")
    P(f"buffer_load_dword v{vn}, v{vz}, s[{S_DBG}:{S_DBG+3}], 0 offen sc1")
    za = acc[0][0]; zx = [acc[1][0] + 4 * i for i in range(4)]; zg = [acc[2][0] + 4 * i for i in range(4)]
    P(f"s_lshl_b32 s{S_T0}, s{S_HP}, 9")
    P(f"v_add_u32 v{vxa}, s{S_T0}, v{vxa}")
    P(f"v_add_u32 v{vgw}, s{S_T0}, v{vgw}")
    for r in range(4): P(f"v_mov_b32 v{za+r}, 0")
    def zld(k):
        P(f"ds_read_b128 {vr(zx[k%4],4)}, v{vxa} offset:{k*32}")
        P(f"ds_read_b128 {vr(zg[k%4],4)}, v{vgw} offset:{k*32}")
    for k in range(3): zld(k)
    for k in range(16):
        for r in range(4): P(f"v_dot2c_f32_bf16 v{za+r}, v{zx[k%4]+r}, v{zg[k%4]+r}")
        if k + 3 < 16: zld(k + 3)
    P("s_nop 2")
    P(f"v_add_f32 v{za}, v{za}, v{za+1}")
    P(f"v_add_f32 v{za+2}, v{za+2}, v{za+3}")
    P(f"v_add_f32 v{za}, v{za}, v{za+2}")
    P(f"s_and_b32 s{S_T0}, s{S_W}, 3")
    P(f"s_lshl_b32 s{S_T0}, s{S_T0}, 8")
    P(f"s_add_u32 s{S_T0}, s{S_T0}, 0x{MISC:x}")
    P(f"v_lshlrev_b32 v{t0}, 2, v{lane}")
    P(f"v_add_u32 v{t0}, s{S_T0}, v{t0}")
    P(f"ds_write_b32 v{t0}, v{za}")
    P.wait_vm_all()
    nonce_check(P, SL, vn, vz)
    P(f"s_cmp_lg_u32 s{S_W}, 7")
    P("s_cbranch_scc1 LF_nokvf")
    P.cond_begin()
    P(f"s_lshl_b32 s{S_T0}, s{S_G}, 3")
    P(f"s_add_u32 s{S_T0}, s{S_T0}, s{S_J}")
    P(f"s_lshl_b32 s{S_T0}, s{S_T0}, 2")
    P(f"s_add_u32 s{S_T0}, s{S_T0}, 0x{FL_KV:x}")
    flag_store(P, vz, t0, S_T0)
    P.cond_end()
    P("LF_nokvf:")
    P.wait_lgkm_all()
    P("s_barrier")
    stamp(P, 3)
    w_dma6(1, "w1"); w_dma6(2, "w2")
    for s in range(1, 16):
        if s == 12:
            flag_check(P, SL, vfl, 4, l16, f"s{S_T6}", t0)
            for c in range(2):
                kv_dma(P, l16, c, SC1)
                P(f"s_sub_u32 s{S_T2}, s{S_T2}, 32768")
                dma(P, l16, S_WS, f"s{S_T2}", (S_KVLDS, (8192 * c - 4096) & 0xffffffff), tag=f"kv{c}", mods=SC1)
        P.wait_tag(f"w{s}"); P.wait_lgkm_all()
        P("s_barrier")
        if s == 10:
            P(f"s_mov_b32 s{S_T6}, 0x{FL_KV:x}")
            P(flag_load(vfl, 4, l16, f"s{S_T6}"))
        if s + 2 < 16 and not OPT.get("nodma"): w_dma6(s + 2, f"w{s+2}")
        if s == 1:
            P(f"ds_read_b128 {vr(qf,4)}, v{vq} offset:1024")
            P(f"ds_read_b128 {vr(qf+4,4)}, v{vq}")
        if s == 3:
            v1bc.ones_init(P, lane, t0, t1, half=True)
    P("s_barrier")
    stamp(P, 4)
    stamp(P, 11)
    P.cond_end(keep=True)
    P("LF_join:")
    P.join()
    for n in ["wpat0", "wpat1", "wpat2", "wtr0", "wtr1", "wtr2", "vxa", "vx0", "vgw", "vtn", "vq", "vpf"] + \
             [f"acc{i}{t}" for i in range(3) for t in range(2)] + [f"fx{b}{t}" for b in range(2) for t in range(2)]: V.release(n)
    F = fin_setup(P, V, lane, l16, t0, t1)
    vg = V.alloc("vg"); zt = V.alloc("zt", 2)
    P(f"s_lshl_b32 s{S_T0}, s{S_TT}, 8")
    P(f"s_add_u32 s{S_T0}, s{S_T0}, 0x{MISC:x}")
    P(f"v_lshlrev_b32 v{t0}, 2, v{lane}")
    P(f"v_add_u32 v{t0}, s{S_T0}, v{t0}")
    P(f"ds_read_b32 v{zt}, v{t0}")
    P(f"ds_read_b32 v{zt+1}, v{t0} offset:512")
    P(f"v_add_f32 v{zt}, v{zt}, v{zt+1}")
    P(f"v_mov_b32 v{zt+1}, v{zt}")
    P(f"v_permlane32_swap_b32 v{zt}, v{zt+1}")
    P(f"v_add_f32 v{zt}, v{zt}, v{zt+1}")
    P(f"v_mul_f32 v{t0}, {hexf(-LOG2E)}, v{zt}")
    P(f"v_exp_f32 v{t0}, v{t0}")
    P(f"v_add_f32 v{t0}, 1.0, v{t0}")
    P(f"v_rcp_f32 v{vg}, v{t0}")
    V.release("zt")
    for b_ in range(2):
        for i in range(3): V.release(f"fw{b_}{i}")
    S_FS, S_FP = 7, 8
    P(f"s_lshl_b32 s{S_FP}, s{S_G}, 8")
    P(f"s_lshl_b32 s{S_FS}, s{S_J}, 3")
    P(f"s_add_u32 s{S_FS}, s{S_FS}, s{S_W}")
    P(f"s_lshl_b32 s{S_FS}, s{S_FS}, 2")
    P(f"s_add_u32 s{S_FS}, s{S_FS}, s{S_FP}")
    P(f"s_add_u32 s{S_FS}, s{S_FS}, 0x{FL_H:x}")
    P(f"s_add_u32 s{S_FP}, s{S_FP}, 0x{FL_H:x}")
    vl4 = V.alloc("vl4")
    P(f"v_lshlrev_b32 v{vl4}, 2, v{lane}")
    P.wait_lgkm_all()
    P("s_barrier")
    stamp(P, 5)
    facc = V.alloc("facc", 16); fa = V.alloc("ffa", 4); fb = V.alloc("ffb", 4)
    C0 = OPT.get("c0", 3)
    units = []
    for st in range(11):
        for i in range(3 if st == 10 else 4): units.append((st, i))
    state = dict(pend=None, nm=0); dq = []
    vsig = V.alloc("vsig")
    def hook(it, x, pos):
        if pos == "presync0":
            if OPT.get("sig"): P(f"s_memtime s[98:99]"); P("s_waitcnt lgkmcnt(0)"); P(f"v_writelane_b32 v{vsig}, s98, {2*(it>>1)}")
            return
        if pos == "presync":
            c = it >> 1
            if c == 0: P.wait_vm_all()
            st = c - C0
            if 0 <= st <= 10: P.wait_tag(f"fw{st}", f"fb{st}")
            if OPT.get("sig"): P(f"s_memtime s[98:99]"); P("s_waitcnt lgkmcnt(0)"); P(f"v_writelane_b32 v{vsig}, s98, {2*(it>>1)+1}")
            return
        if pos == 2 and x == 0 and (it & 1):
            c = it >> 1
            if c == 0:
                nonce_check(P, SL, vn, vz)
                flag_store(P, vz, t0, S_FS)
                for st in range(3):
                    for i in range(2): dq.append(lambda st=st, i=i: fin_dma_w1(P, vsl, st, FSLOT[st % 4], f"fw{st}", i))
            if c == C0 - 2: P(flag_load(vfl, 1, vl4, f"s{S_FP}"))
            if c == C0 - 1:
                flag_check(P, SL, vfl, 1, vl4, f"s{S_FP}", t0)
                for st in range(3):
                    for t in range(2): dq.append(lambda st=st, t=t: fin_dma_b1(P, l16, st, FSLOT[st % 4], f"fb{st}", t, SC1))
            st = c - C0 + 3
            if st >= 3 and st <= 14:
                for i in range(2): dq.append(lambda st=st, i=i: fin_dma_w1(P, vsl, st, FSLOT[st % 4], f"fw{st}", i))
                if st <= 10:
                    for t in range(2): dq.append(lambda st=st, t=t: fin_dma_b1(P, l16, st, FSLOT[st % 4], f"fb{st}", t, SC1))
            if OPT.get("burst"):
                while dq: dq.pop(0)()
        elif pos in (0, 1, 2) and dq and (pos == 1 or len(dq) > 4 or (pos == 0 and x == 1 and False)):
            dq.pop(0)()
        if pos == 3:
            ph = 2 * it + x - (2 * (2 * C0 + 1))
            if state["pend"] is not None:
                P(mfma(facc, fa, fb, facc if state["nm"] else None)); state["nm"] += 1; state["pend"] = None
            if ph >= 0:
                st, i = ph // 4, ph % 4
                if (st, i) in units:
                    for t in fin_reads(P, F, FSLOT[st % 4], i, fa, fb): P(t)
                    state["pend"] = (st, i)
            if it == 31 and x == 0:
                assert state["nm"] == 43 and state["pend"] is None
        if pos == 1 and it == 31 and x == 0:
            P(f"v_sub_f32 v{t1}, 1.0, v{vg}")
            for r in range(16): P(f"v_mul_f32 v{facc+r}, v{facc+r}, v{t1}")
    O = v1bc.attention(P, V, A, qf, qf + 4, l16, hook=hook, mods=SC1, prio=OPT.get("prio"))
    assert not dq
    stamp(P, 6)
    if OPT.get("sig"):
        P(f"s_lshl_b32 s98, s2, 11")
        P(f"s_lshl_b32 s99, s{S_W}, 8")
        P(f"s_add_u32 s98, s98, s99")
        P(f"s_add_u32 s98, s98, 0x{WS_STAMP + (1<<20):x}")
        P(f"buffer_store_dword v{vsig}, v{vl4}, s[{S_WS}:{S_WS+3}], s98 offen")
    if OPT.get("prio"): P("s_setprio 0")
    va = V.alloc("xaddr"); vb = V.alloc("xaddr2")
    P(f"s_and_b32 s{S_T0}, s{S_W}, 3")
    P(f"s_lshl_b32 s{S_T0}, s{S_T0}, 12")
    P(f"s_lshl_b32 s{S_T1}, s{S_KH}, 15")
    P(f"s_add_u32 s{S_T0}, s{S_T0}, s{S_T1}")
    P(f"s_add_u32 s{S_T0}, s{S_T0}, 16384")
    P(f"v_add_u32 v{va}, s{S_T0}, v{l16}")
    P(f"v_xor_b32 v{vb}, 0x8000, v{va}")
    P(f"v_mov_b32 v{O[1]+7}, v{O[1]}")
    for i in range(3): P(f"ds_write_b128 v{va}, {vr(O[1]+4+4*i,4)} offset:{1024*i}")
    P(f"s_lshl_b32 s{S_T0}, s{S_HP}, 1")
    P(f"s_add_u32 s{S_T0}, s{S_T0}, s{S_KH}")
    P(f"s_lshl_b32 s{S_T1}, s{S_J}, 2")
    P(f"s_add_u32 s{S_T0}, s{S_T0}, s{S_T1}")
    P(f"s_mul_i32 s{S_T1}, s{S_TILE}, 118")
    P(f"s_add_u32 s{S_T0}, s{S_T0}, s{S_T1}")
    P(f"s_lshl_b32 s{S_T0}, s{S_T0}, 10")
    P(f"s_add_u32 s{S_T0}, s{S_T0}, 0x{WS_OH + 86*1024:x}")
    P.wait_lgkm_all()
    P("s_barrier")
    for i in range(3): P(f"ds_read_b128 {vr(O[1]+4+4*i,4)}, v{vb} offset:{1024*i}")
    P(f"v_add_f32 v{O[0]}, v{O[0]}, v{O[1]+7}")
    P(f"v_rcp_f32 v{t0}, v{O[0]}")
    for r in range(8, 16): P(f"v_add_f32 v{O[0]+r}, v{O[0]+r}, v{O[1]+r}")
    P(f"v_mul_f32 v{t0}, v{t0}, v{vg}")
    for r in range(8, 16): P(f"v_mul_f32 v{O[0]+r}, v{O[0]+r}, v{t0}")
    for r in range(4): P(f"v_cvt_pk_bf16_f32 v{O[1]+r}, v{O[0]+8+2*r}, v{O[0]+9+2*r}")
    P(f"buffer_store_dwordx4 {vr(O[1],4)}, v{l16}, s[{S_WS}:{S_WS+3}], s{S_T0} offen sc1", tag="ost")
    P(f"s_add_u32 s{S_FS}, s{S_FS}, {FL_O - FL_H}")
    P(f"s_add_u32 s{S_FP}, s{S_FP}, {FL_O - FL_H}")
    P.wait_vm_all()
    flag_store(P, vz, t0, S_FS)
    stamp(P, 7)
    P(flag_load(vfl, 1, vl4, f"s{S_FP}"))
    P("s_barrier")
    flag_check(P, SL, vfl, 1, vl4, f"s{S_FP}", t0)
    stamp(P, 8)
    for st in range(11, 15): fin_dma_b(P, l16, st, FSLOT[st % 4], f"fb{st}", SC1)
    for n in ("Oa", "Ob", "xaddr", "xaddr2"): V.release(n)
    ga = [V.alloc(f"ga{i}", 4) for i in range(4)]; gb = [V.alloc(f"gb{i}", 4) for i in range(4)]
    va = V.alloc("xaddr"); vb = V.alloc("xaddr2"); tmp = V.alloc("ftmp", 8)
    P(f"s_lshl_b32 s{S_T0}, s{S_W}, 11")
    P(f"s_add_u32 s{S_T0}, s{S_T0}, 0x{KV_RING:x}")
    P(f"v_add_u32 v{va}, s{S_T0}, v{l16}")
    P(f"s_xor_b32 s{S_T0}, s{S_W}, 4")
    P(f"s_lshl_b32 s{S_T0}, s{S_T0}, 11")
    P(f"s_add_u32 s{S_T0}, s{S_T0}, 0x{KV_RING:x}")
    P(f"v_add_u32 v{vb}, s{S_T0}, v{l16}")
    P(f"v_and_b32 v{t0}, 31, v{lane}")
    P(f"v_lshlrev_b32 v{t0}, 10, v{t0}")
    P(f"v_lshrrev_b32 v{t1}, 5, v{lane}")
    P(f"v_lshl_add_u32 v{t0}, v{t1}, 4, v{t0}")
    P(f"s_lshl_b32 s{S_T0}, s{S_TILE}, 15")
    P(f"s_lshl_b32 s{S_T1}, s{S_J}, 7")
    P(f"s_add_u32 s{S_T0}, s{S_T0}, s{S_T1}")
    P(f"s_lshl_b32 s{S_T1}, s{S_HP}, 6")
    P(f"s_add_u32 s{S_T0}, s{S_T0}, s{S_T1}")
    P(f"s_lshl_b32 s{S_T1}, s{S_KH}, 5")
    P(f"s_add_u32 s{S_T0}, s{S_T0}, s{S_T1}")
    seq = [(st, i) for st in range(11, 15) for i in range(4)]
    def rd(k):
        st, i = seq[k]
        for t in fin_reads(P, F, FSLOT[st % 4], i, ga[k % 4], gb[k % 4]): P(t)
    for half in range(2):
        P.wait_tag(f"fb{12 + 2*half}", f"fw{12 + 2*half}")
        P("s_barrier")
        if half == 0: stamp(P, 9)
        k0 = 8 * half
        for k in range(k0, k0 + 3): rd(k)
        for k in range(k0, k0 + 8):
            P(mfma(facc, ga[k % 4], gb[k % 4], facc))
            if k + 3 < k0 + 8: rd(k + 3)
    for i in range(2): P(f"ds_write_b128 v{va}, {vr(facc+8+4*i,4)} offset:{1024*i}")
    P.wait_lgkm_all()
    P("s_barrier")
    for i in range(2): P(f"ds_read_b128 {vr(tmp+4*i,4)}, v{vb} offset:{1024*i}")
    for r in range(8): P(f"v_add_f32 v{facc+r}, v{facc+r}, v{tmp+r}")
    for r in range(4): P(f"v_cvt_pk_bf16_f32 v{tmp+r}, v{facc+2*r}, v{facc+2*r+1}")
    P(f"v_permlane32_swap_b32 v{tmp}, v{tmp+2}")
    P(f"v_permlane32_swap_b32 v{tmp+1}, v{tmp+3}")
    P(f"buffer_store_dwordx4 {vr(tmp,4)}, v{t0}, s[{S_OUT}:{S_OUT+3}], s{S_T0} offen")
    if STAMP["on"]:
        P.wait_vm_all(); stamp(P, 10)
    P("LF_end:")
    P("s_endpgm")
    name = NAME + "_kernel"
    body, I = finalize(P)
    txt = f".text\n.globl {name}\n.p2align 8\n.type {name},@function\n{name}:\n" + body + "".join(SL.txt)
    vg_ = max(V.hi, 8)
    txt += KD.format(name=name, vgpr=vg_, sgpr=SGPR_N, accum=(vg_ + 3) // 4 * 4)
    return txt, I, vg_

if __name__ == "__main__":
    out = sys.argv[1]
    STAMP["on"] = "stamp" in sys.argv
    v1bc.EXP["sparse_ones"] = True
    for a in sys.argv[2:]:
        if "=" in a: k, v = a.split("="); OPT[k] = int(v)
        else: OPT[a] = True
    t, I, vg_ = kernel_F()
    hdr = HEADER + f"; @launch grid=(256,1,1) block=(512,1,1) lds={LDS_BYTES}\n" + '.amdgcn_target "amdgcn-amd-amdhsa--gfx950"\n'
    open(out, "w").write(hdr + t)
    print("insts", len(I), "vgpr", vg_, "nops", sum(1 for x in I if x.kind == "nop"))
```

```python
from common import *

X_OFF = 0; X_STRIDE = 1040
SLOT = [66560, 91392, 116224]; SLOT_SZ = 24832; UP_OFF = 12352
REG_A = 91392; REG_B = 124160; WV_OFF = 16512
KV_RING = 141056; ONES = 157440; GWL = 159488; MISC = 160512
LDS_BYTES = 163840

S_X, S_WQ, S_WKV, S_WM, S_GW, S_WS, S_OUT, S_WO, S_WD, S_DBG = 32, 36, 40, 44, 48, 52, 56, 60, 64, 68
S_W, S_J, S_G, S_TT, S_T0, S_T1, S_T2, S_T3, S_U0, S_NU = 72, 73, 74, 75, 76, 77, 78, 79, 80, 81
S_WOFF, S_WLDS, S_C1, S_C2, S_TILE, S_T4, S_T5, S_T6, S_T7 = 82, 83, 84, 85, 86, 87, 88, 89, 90
S_KVOFF, S_KVLDS, S_EX = 91, 92, 94
SGPR_N = 100

def prologue(P, V, endlabel):
    P("s_cmp_ge_u32 s2, 256")
    P(f"s_cbranch_scc1 {endlabel}")
    P("s_load_dwordx16 s[4:19], s[0:1], 0")
    P("s_load_dwordx8 s[20:27], s[0:1], 64")
    P("s_load_dwordx2 s[28:29], s[0:1], 96")
    lane = V.alloc("lane"); l16 = V.alloc("l16")
    P(f"v_lshrrev_b32 v1, 6, v0")
    P(f"v_and_b32 v{lane}, 63, v0")
    P(f"v_readfirstlane_b32 s{S_W}, v1")
    P(f"v_lshlrev_b32 v{l16}, 4, v{lane}")
    P(f"s_lshr_b32 s{S_J}, s2, 3")
    P(f"s_and_b32 s{S_J}, s{S_J}, 7")
    P(f"s_and_b32 s{S_G}, s2, 7")
    P(f"s_lshl_b32 s{S_G}, s{S_G}, 2")
    P(f"s_lshr_b32 s{S_T0}, s2, 6")
    P(f"s_add_u32 s{S_G}, s{S_G}, s{S_T0}")
    P(f"s_and_b32 s{S_TT}, s{S_W}, 1")
    P(f"s_lshl_b32 s{S_TILE}, s{S_G}, 1")
    P(f"s_add_u32 s{S_TILE}, s{S_TILE}, s{S_TT}")
    P("s_waitcnt lgkmcnt(0)")
    mk_srd(P, S_X, 4, SZ["x"])
    mk_srd(P, S_WQ, 6, SZ["wq"])
    P(f"s_cmp_eq_u32 s{S_TT}, 0")
    P(f"s_cselect_b32 s{S_WKV}, s8, s10")
    P(f"s_cselect_b32 s{S_WKV+1}, s9, s11")
    P(f"s_cselect_b32 s{S_WM}, s16, s18")
    P(f"s_cselect_b32 s{S_WM+1}, s17, s19")
    P(f"s_and_b32 s{S_WKV+1}, s{S_WKV+1}, 0xffff")
    P(f"s_mov_b32 s{S_WKV+2}, 0x{SZ['wk']:x}")
    P(f"s_mov_b32 s{S_WKV+3}, 0x20000")
    P(f"s_and_b32 s{S_WM+1}, s{S_WM+1}, 0xffff")
    P(f"s_mov_b32 s{S_WM+2}, 0x{SZ['wg']:x}")
    P(f"s_mov_b32 s{S_WM+3}, 0x20000")
    mk_srd(P, S_GW, 22, SZ["gw"])
    mk_srd(P, S_WS, 28, SZ["ws"])
    mk_srd(P, S_OUT, 24, SZ["out"])
    mk_srd(P, S_WO, 12, SZ["wo"])
    mk_srd(P, S_WD, 20, SZ["wd"])
    mk_srd(P, S_DBG, 26, SZ["dbg"])
    return lane, l16

STAMP = {"on": False}
WS_STAMP = 12 << 20
S_ST = 96
VSTAMP = 255
def stamp(P, idx, kidx=0):
    if not STAMP["on"]: return
    if STAMP.get("min") and idx not in STAMP["min"]: return
    P(f"s_memrealtime s[{S_ST}:{S_ST+1}]")
    P(f"s_memtime s[{S_ST+2}:{S_ST+3}]")
    P("s_waitcnt lgkmcnt(0)")
    P(f"v_writelane_b32 v{VSTAMP}, s{S_ST}, {idx}")
    P(f"v_writelane_b32 v{VSTAMP}, s{S_ST+2}, {16+idx}")

def stamp_dump(P, lane):
    if not STAMP["on"]: return
    P(f"v_writelane_b32 v{VSTAMP}, s100, 12")
    P(f"s_lshl_b32 s{S_ST+2}, s2, 10")
    P(f"s_lshl_b32 s{S_ST+3}, s{S_W}, 7")
    P(f"s_add_u32 s{S_ST+2}, s{S_ST+2}, s{S_ST+3}")
    P(f"s_add_u32 s{S_ST+2}, s{S_ST+2}, 0x{WS_STAMP:x}")
    P(f"v_lshlrev_b32 v1, 2, v{lane}")
    P("s_mov_b64 exec, 0xffffffff")
    P(f"buffer_store_dword v{VSTAMP}, v1, s[{S_WS}:{S_WS+3}], s{S_ST+2} offen")

def dma(P, vaddr, srd, soff, m0expr, offset=0, tag=None, mods="", pre=None):
    s, imm = m0expr
    if s is None: P(f"s_mov_b32 m0, 0x{imm:x}")
    elif imm == 0: P(f"s_mov_b32 m0, s{s}")
    else: P(f"s_add_u32 m0, s{s}, 0x{imm:x}")
    for x in (pre or []): P(x)
    o = f" offset:{offset}" if offset else ""
    P(f"buffer_load_dwordx4 v{vaddr}, s[{srd}:{srd+3}], {soff} offen{o}{mods} lds", tag=tag)

def slice_pattern(P, V, lane, tmp):
    v = V.alloc("vslice")
    P(f"v_lshrrev_b32 v{tmp}, 3, v{lane}")
    P(f"v_lshlrev_b32 v{v}, 10, v{tmp}")
    P(f"v_lshlrev_b32 v{tmp}, 1, v{tmp}")
    P(f"v_and_b32 v{tmp}, 4, v{tmp}")
    P(f"v_xor_b32 v{tmp}, v{tmp}, v{lane}")
    P(f"v_and_b32 v{tmp}, 7, v{tmp}")
    P(f"v_lshl_add_u32 v{v}, v{tmp}, 4, v{v}")
    return v

def tr_slice_addr(P, V, name, lane, tmp, tmp2, base, s_col, hmul):
    v = V.alloc(name)
    P(f"v_lshrrev_b32 v{tmp}, 5, v{lane}")
    P(f"v_mul_u32_u24 v{v}, {hmul}, v{tmp}")
    P(f"v_bfe_u32 v{tmp}, v{lane}, 2, 2")
    P(f"v_add_u32 v{v}, v{v}, v{tmp}")
    P(f"v_lshlrev_b32 v{v}, 7, v{v}")
    P(f"v_lshlrev_b32 v{tmp}, 1, v{tmp}")
    P(f"v_and_b32 v{tmp}, 4, v{tmp}")
    P(f"v_bfe_u32 v{tmp2}, v{lane}, 4, 1")
    P(f"v_lshlrev_b32 v{tmp2}, 1, v{tmp2}")
    P(f"v_xor_b32 v{tmp}, v{tmp}, v{tmp2}")
    P(f"v_bfe_u32 v{tmp2}, v{lane}, 1, 1")
    P(f"v_xor_b32 v{tmp}, v{tmp}, v{tmp2}")
    P(f"s_lshl_b32 s{S_T0}, s{s_col}, 2")
    P(f"v_xor_b32 v{tmp}, s{S_T0}, v{tmp}")
    P(f"v_lshl_add_u32 v{v}, v{tmp}, 4, v{v}")
    P(f"v_and_b32 v{tmp}, 1, v{lane}")
    P(f"v_lshl_add_u32 v{v}, v{tmp}, 3, v{v}")
    P(f"v_add_u32 v{v}, 0x{base:x}, v{v}")
    return v

def xfrag_addr(P, V, name, lane, tmp, s_tt):
    v = V.alloc(name)
    P(f"v_and_b32 v{tmp}, 31, v{lane}")
    P(f"s_lshl_b32 s{S_T0}, s{s_tt}, 5")
    P(f"v_add_u32 v{tmp}, s{S_T0}, v{tmp}")
    P(f"v_mul_u32_u24 v{v}, {X_STRIDE}, v{tmp}")
    P(f"v_lshrrev_b32 v{tmp}, 5, v{lane}")
    P(f"v_lshl_add_u32 v{v}, v{tmp}, 4, v{v}")
    return v

def w_patterns(P, V, lane, tmp, tmp2):
    P(f"s_mul_i32 s{S_U0}, s{S_J}, 11")
    P(f"s_min_u32 s{S_U0}, s{S_U0}, 76")
    P(f"s_cmp_ge_u32 s{S_J}, 6")
    P(f"s_cselect_b32 s{S_NU}, 10, 11")
    P(f"s_lshr_b32 s{S_T0}, s{S_W}, 1")
    P(f"s_mul_i32 s{S_WOFF}, s{S_T0}, {8*2752}")
    P(f"s_lshl_b32 s{S_T1}, s{S_U0}, 5")
    P(f"s_add_u32 s{S_WOFF}, s{S_WOFF}, s{S_T1}")
    P(f"s_mul_i32 s{S_WLDS}, s{S_T0}, 3072")
    P(f"s_mul_i32 s{S_T1}, s{S_TT}, {UP_OFF}")
    P(f"s_add_u32 s{S_WLDS}, s{S_WLDS}, s{S_T1}")
    pats = []
    for i in range(3):
        v = V.alloc(f"wpat{i}")
        P(f"v_add_u32 v{tmp}, {64*i}, v{lane}")
        P(f"v_mul_u32_u24 v{v}, 2731, v{tmp}")
        P(f"v_lshrrev_b32 v{v}, 16, v{v}")
        P(f"v_mul_u32_u24 v{tmp2}, 24, v{v}")
        P(f"v_sub_u32 v{tmp}, v{tmp}, v{tmp2}")
        P(f"v_and_b32 v{tmp2}, 2, v{v}")
        P(f"v_xor_b32 v{tmp}, v{tmp}, v{tmp2}")
        P(f"v_mul_u32_u24 v{v}, 2752, v{v}")
        P(f"v_lshl_add_u32 v{v}, v{tmp}, 4, v{v}")
        P(f"v_lshrrev_b32 v{tmp}, 1, v{tmp}")
        P(f"v_mov_b32 v{tmp2}, 0x{OOB:x}")
        P(f"v_cmp_gt_u32 vcc, s{S_NU}, v{tmp}")
        P(f"v_cndmask_b32 v{v}, v{tmp2}, v{v}, vcc")
        pats.append(v)
    return pats

def w_tr_addrs(P, V, lane, tmp, tmp2, s_w=None):
    res = []
    P(f"s_lshr_b32 s{S_T0}, s{s_w or S_W}, 1")
    P(f"s_mul_i32 s{S_T0}, s{S_T0}, 3")
    b = V.alloc("wtrb")
    P(f"v_lshrrev_b32 v{tmp}, 5, v{lane}")
    P(f"v_lshlrev_b32 v{tmp}, 3, v{tmp}")
    P(f"v_bfe_u32 v{tmp2}, v{lane}, 2, 2")
    P(f"v_add_u32 v{tmp}, v{tmp}, v{tmp2}")
    P(f"v_mul_u32_u24 v{b}, 384, v{tmp}")
    P(f"v_bfe_u32 v{tmp}, v{lane}, 4, 1")
    P(f"v_mul_u32_u24 v{tmp}, {UP_OFF}, v{tmp}")
    P(f"v_add_u32 v{b}, v{b}, v{tmp}")
    P(f"v_and_b32 v{tmp}, 3, v{lane}")
    P(f"v_lshl_add_u32 v{b}, v{tmp}, 3, v{b}")
    P(f"v_add_u32 v{b}, 0x{SLOT[0]:x}, v{b}")
    P(f"v_bfe_u32 v{tmp2}, v{lane}, 3, 1")
    for i in range(3):
        v = V.alloc(f"wtr{i}")
        P(f"s_add_u32 s{S_T1}, s{S_T0}, {i}")
        P(f"v_xor_b32 v{tmp}, s{S_T1}, v{tmp2}")
        P(f"v_lshl_add_u32 v{v}, v{tmp}, 5, v{b}")
        res.append(v)
    V.release("wtrb")
    return res

def w_stage_dma(P, pats, s, tag):
    slot = SLOT[s % 3]
    P(f"s_add_u32 s{S_T2}, s{S_WOFF}, 0x{32*s*2752:x}")
    for i in range(3):
        dma(P, pats[i], S_WM, f"s{S_T2}", (S_WLDS, slot + 1024 * i), tag=tag)

def gelu_tile(acc, dst, tmp):
    L = []
    for r in range(8): L.append(f"v_mul_f32 v{tmp+r}, v{acc+r}, v{acc+r}")
    for r in range(8): L.append(f"v_fma_f32 v{tmp+r}, v{tmp+r}, s{S_C2}, v{tmp+8}")
    for r in range(8): L.append(f"v_mul_f32 v{tmp+r}, v{tmp+r}, v{acc+r}")
    for r in range(8): L.append(f"v_exp_f32 v{tmp+r}, v{tmp+r}")
    for r in range(8): L.append(f"v_mul_f32 v{acc+8+r}, v{acc+8+r}, v{acc+r}")
    for r in range(8): L.append(f"v_add_f32 v{tmp+r}, 1.0, v{tmp+r}")
    for r in range(8): L.append(f"v_rcp_f32 v{tmp+r}, v{tmp+r}")
    for r in range(8): L.append(f"v_mul_f32 v{tmp+r}, v{tmp+r}, v{acc+8+r}")
    for r in range(4): L.append(f"v_cvt_pk_bf16_f32 v{dst+r}, v{tmp+2*r}, v{tmp+2*r+1}")
    return L
GELU_C1 = -2.0 * math.sqrt(2.0 / math.pi) * LOG2E
GELU_C2 = GELU_C1 * 0.044715
QK_SCALE = 0.25 * LOG2E

def gelu_tile_pk(acc, dst, tmp, cst):
    L = []
    p = lambda b: f"v[{b}:{b+1}]"
    for r in range(0, 8, 2): L.append(f"v_pk_mul_f32 {p(tmp+r)}, {p(acc+r)}, {p(acc+r)}")
    for r in range(0, 8, 2): L.append(f"v_pk_fma_f32 {p(tmp+r)}, {p(tmp+r)}, {p(cst+2)}, {p(cst)}")
    for r in range(0, 8, 2): L.append(f"v_pk_mul_f32 {p(tmp+r)}, {p(tmp+r)}, {p(acc+r)}")
    for r in range(8): L.append(f"v_exp_f32 v{tmp+r}, v{tmp+r}")
    for r in range(0, 8, 2): L.append(f"v_pk_mul_f32 {p(acc+8+r)}, {p(acc+8+r)}, {p(acc+r)}")
    for r in range(0, 8, 2): L.append(f"v_pk_add_f32 {p(tmp+r)}, {p(tmp+r)}, 1.0 op_sel_hi:[1,0]")
    for r in range(8): L.append(f"v_rcp_f32 v{tmp+r}, v{tmp+r}")
    for r in range(0, 8, 2): L.append(f"v_pk_mul_f32 {p(tmp+r)}, {p(tmp+r)}, {p(acc+8+r)}")
    for r in range(4): L.append(f"v_cvt_pk_bf16_f32 v{dst+r}, v{tmp+2*r}, v{tmp+2*r+1}")
    return L
```

```python
import sys
from parts import *
OPT = {}
S_NONCE = 93
S_HP, S_KH = 30, 31
SH = [4, 5, 6]
S_FS, S_FP, S_OD, S_OL = 7, 8, 9, 10
S_FW, S_FB, S_FL, S_FL2 = 12, 13, 14, 15
S_PM = 16
FL_KV, FL_H = WS_FLAG, WS_FLAG + 4096
WKV_L = KV_RING
QSCR = KV_RING + 8192
FSLOT = [0, 32768, 65536, 98304]
WO_CH = [98304, 114688, 0, 32768]
SC1 = " sc1"
SPIN_MAX = 1 << 22
WSR = f"s[{S_WS}:{S_WS+3}]"


class Slow:
    def __init__(self): self.txt = []; self.n = 0
    def add(self, t): self.txt.append(t)


LOADS = {}
def emit_loads(P, l16, vsl):
    P(f"s_sub_u32 s{S_T3}, s{S_W}, 3")
    P(f"s_cmp_lt_u32 s{S_T3}, 4")
    P("s_cbranch_scc1 LF_ldq")
    P(f"s_lshr_b32 s{S_T4}, s{S_J}, 1")
    P(f"s_add_u32 s{S_T4}, s{S_T4}, s{S_W}")
    P(f"s_add_u32 s{S_T4}, s{S_T4}, 1")
    P(f"s_and_b32 s{S_T4}, s{S_T4}, 3")
    P(f"s_lshl_b32 s{S_T0}, s{S_G}, 16")
    P(f"s_lshl_b32 s{S_T2}, s{S_T4}, 14")
    P(f"s_add_u32 s{S_T2}, s{S_T2}, s{S_T0}")
    P(f"s_mul_i32 m0, s{S_T4}, {16*X_STRIDE}")
    P(f"s_mov_b32 s{S_T5}, 16")
    P("s_waitcnt lgkmcnt(0)")
    mk_srd(P, S_X, 4, SZ["x"])
    P("LF_ldx1:")
    P(f"buffer_load_dwordx4 v{l16}, s[{S_X}:{S_X+3}], s{S_T2} offen lds", tag="q")
    P(f"s_add_u32 s{S_T2}, s{S_T2}, 1024")
    P(f"s_add_u32 m0, m0, {X_STRIDE}")
    P(f"s_sub_u32 s{S_T5}, s{S_T5}, 1")
    P(f"s_cmp_lg_u32 s{S_T5}, 0")
    P("s_cbranch_scc1 LF_ldx1")
    P("s_branch LF_ldj")
    P("LF_ldq:")
    P(f"s_lshl_b32 s{S_T4}, s{S_T3}, 4")
    P(f"s_add_u32 s{S_T5}, s{S_T4}, 16")
    P(f"s_lshl_b32 s{S_T2}, s{S_T3}, 17")
    P(f"s_lshl_b32 s{S_T0}, s{S_J}, 7")
    P(f"s_add_u32 s{S_T2}, s{S_T2}, s{S_T0}")
    P("s_waitcnt lgkmcnt(0)")
    mk_srd(P, S_WQ, 6, SZ["wq"])
    P("LF_ldq1:")
    P(f"s_mul_i32 s{S_T0}, s{S_T4}, 171")
    P(f"s_lshr_b32 s{S_T0}, s{S_T0}, 12")
    P(f"s_lshl_b32 s{S_T1}, s{S_T4}, 2")
    P(f"s_add_u32 s{S_T0}, s{S_T0}, s{S_T1}")
    P(f"s_lshl_b32 s{S_T0}, s{S_T0}, 8")
    P(f"s_add_u32 m0, s{S_T0}, 0x{SLOT[0]:x}")
    P(f"s_add_u32 s{S_T4}, s{S_T4}, 1")
    P(f"buffer_load_dwordx4 v{vsl}, s[{S_WQ}:{S_WQ+3}], s{S_T2} offen lds")
    P.I[-1].kind = "salu"
    P(f"s_add_u32 s{S_T2}, s{S_T2}, 8192")
    P(f"s_cmp_lg_u32 s{S_T4}, s{S_T5}")
    P("s_cbranch_scc1 LF_ldq1")
    P("LF_ldj:")


def prologue_f(P, V, endlabel):
    if STAMP["on"]: P("s_memrealtime s[100:101]")
    P("s_cmp_ge_u32 s2, 256")
    P(f"s_cbranch_scc1 {endlabel}")
    P("s_load_dwordx16 s[4:19], s[0:1], 0")
    P("s_load_dwordx8 s[20:27], s[0:1], 64")
    P("s_load_dwordx2 s[28:29], s[0:1], 96")
    lane = V.alloc("lane"); l16 = V.alloc("l16")
    P(f"v_lshrrev_b32 v1, 6, v0")
    P(f"v_and_b32 v{lane}, 63, v0")
    P(f"v_readfirstlane_b32 s{S_W}, v1")
    P(f"v_lshlrev_b32 v{l16}, 4, v{lane}")
    P(f"s_lshr_b32 s{S_T0}, s2, 3")
    if OPT.get("jrot"): P(f"s_add_u32 s{S_J}, s{S_T0}, {OPT['jrot']}"); P(f"s_and_b32 s{S_J}, s{S_J}, 3")
    else: P(f"s_and_b32 s{S_J}, s{S_T0}, 3")
    P(f"s_and_b32 s{S_T1}, s2, 1")
    P(f"s_lshl_b32 s{S_T1}, s{S_T1}, 2")
    P(f"s_add_u32 s{S_J}, s{S_J}, s{S_T1}")
    P(f"s_and_b32 s{S_G}, s2, 6")
    P(f"s_lshl_b32 s{S_G}, s{S_G}, 2")
    P(f"s_lshr_b32 s{S_T0}, s{S_T0}, 2")
    P(f"s_add_u32 s{S_G}, s{S_G}, s{S_T0}")
    t0 = V.alloc("t0"); t1 = V.alloc("t1")
    vsl = slice_pattern(P, V, lane, t0)
    LOADS["f"] = lambda: emit_loads(P, l16, vsl)
    if OPT.get("delay", 1):
        P("s_waitcnt lgkmcnt(0)")
    else:
        emit_loads(P, l16, vsl)
    P(f"s_and_b32 s{S_TT}, s{S_W}, 1")
    P(f"s_lshl_b32 s{S_TILE}, s{S_G}, 1")
    P(f"s_add_u32 s{S_TILE}, s{S_TILE}, s{S_TT}")
    P(f"s_lshr_b32 s{S_HP}, s{S_W}, 1")
    P(f"s_and_b32 s{S_HP}, s{S_HP}, 1")
    P(f"s_lshr_b32 s{S_KH}, s{S_W}, 2")
    assert all((p * 171) >> 12 == p // 24 for p in range(64)) and SLOT_SZ == 3 * 8192 + 256
    return lane, l16, t0, t1, vsl


def rest_srds(P):
    P(f"s_cmp_eq_u32 s{S_TT}, 0")
    P(f"s_cselect_b32 s{S_WM}, s16, s18")
    P(f"s_cselect_b32 s{S_WM+1}, s17, s19")
    P(f"s_and_b32 s{S_WM+1}, s{S_WM+1}, 0xffff")
    P(f"s_mov_b32 s{S_WM+2}, 0x{SZ['wg']:x}")
    P(f"s_mov_b32 s{S_WM+3}, 0x20000")
    mk_srd(P, S_OUT, 24, SZ["out"])
    mk_srd(P, S_WO, 12, SZ["wo"])
    mk_srd(P, S_WD, 20, SZ["wd"])


def nonce_check(P, SL, vn, vz):
    k = SL.n; SL.n += 1
    P(f"v_readfirstlane_b32 s{S_NONCE}, v{vn}")
    P(f"s_cmp_eq_u32 s{S_NONCE}, 0")
    P(f"s_cbranch_scc1 LS{k}")
    P(f"LR{k}:")
    SL.add(f"""LS{k}:
    s_mov_b32 s{S_T7}, 0
LS{k}_l:
    s_sleep 2
    buffer_load_dword v{vn}, v{vz}, s[{S_DBG}:{S_DBG+3}], 0 offen sc1
    s_waitcnt vmcnt(0)
    v_readfirstlane_b32 s{S_NONCE}, v{vn}
    s_add_u32 s{S_T7}, s{S_T7}, 1
    s_cmp_ge_u32 s{S_T7}, 0x{SPIN_MAX:x}
    s_cbranch_scc1 LR{k}
    s_cmp_eq_u32 s{S_NONCE}, 0
    s_cbranch_scc1 LS{k}_l
    s_branch LR{k}
""")


def flag_load(vf, n, vaddr, soff):
    op = {1: "buffer_load_dword", 4: "buffer_load_dwordx4"}[n]
    return f"{op} {vr(vf,n)}, v{vaddr}, {WSR}, {soff} offen sc1"


def flag_cmp(vf, n, t):
    L = [f"v_xor_b32 v{t}, s{S_NONCE}, v{vf}"]
    for i in range(1, n):
        L += [f"v_xor_b32 v{vf+i}, s{S_NONCE}, v{vf+i}", f"v_or_b32 v{t}, v{t}, v{vf+i}"]
    L += [f"v_cmp_ne_u32 vcc, 0, v{t}"]
    return L


def spin_check(P, SL, loads, cmps, sleep=1):
    k = SL.n; SL.n += 1
    for x in cmps: P(x)
    P(f"s_cbranch_vccnz LS{k}")
    P(f"LR{k}:")
    nl = "\n    "
    SL.add(f"""LS{k}:
    s_mov_b32 s{S_T7}, 0
LS{k}_l:
    {f"s_sleep {sleep}" if sleep else "s_nop 0"}
    {nl.join(loads)}
    s_waitcnt vmcnt(0)
    {nl.join(cmps)}
    s_add_u32 s{S_T7}, s{S_T7}, 1
    s_cmp_ge_u32 s{S_T7}, 0x{SPIN_MAX:x}
    s_cbranch_scc1 LR{k}
    s_cbranch_vccnz LS{k}_l
    s_nop 1
    s_branch LR{k}
""")


def flag_store(P, vz, t, soff):
    P(f"v_mov_b32 v{t}, s{S_NONCE}")
    P("s_mov_b64 exec, 1")
    P(f"buffer_store_dword v{t}, v{vz}, {WSR}, s{soff} offen sc1", tag="flag")
    P("s_mov_b64 exec, -1")


def attn_setup(P, V, lane, l16, t0, t1):
    A = {}
    P(f"s_lshl_b32 s{S_T1}, s{S_KH}, 12")
    vk = V.alloc("vk"); vv = [V.alloc("vv0"), V.alloc("vv1")]
    P(f"s_add_u32 s{S_T1}, s{S_T1}, 0x{KV_RING:x}")
    P(f"v_add_u32 v{vk}, s{S_T1}, v{l16}")
    P(f"v_lshrrev_b32 v{t0}, 5, v{lane}")
    P(f"v_lshlrev_b32 v{t0}, 8, v{t0}")
    P(f"v_and_b32 v{t1}, 15, v{lane}")
    P(f"v_lshl_add_u32 v{t0}, v{t1}, 4, v{t0}")
    P(f"v_and_b32 v{t1}, 16, v{lane}")
    P(f"v_cmp_eq_u32 vcc, 0, v{t1}")
    P(f"s_add_u32 s{S_T1}, s{S_T1}, 2048")
    for s in range(2):
        P(f"v_mov_b32 v{t1}, s{S_T1}")
        P(f"v_add_u32 v{t1}, {8192*s}, v{t1}")
        P(f"v_mov_b32 v{vv[s]}, 0x{ONES:x}")
        P(f"v_cndmask_b32 v{vv[s]}, v{t1}, v{vv[s]}, vcc")
        P(f"v_add_u32 v{vv[s]}, v{vv[s]}, v{t0}")
    P(f"s_lshl_b32 s{S_KVOFF}, s{S_KH}, 15")
    P(f"s_lshl_b32 s{S_T1}, s{S_HP}, 16")
    P(f"s_add_u32 s{S_KVOFF}, s{S_KVOFF}, s{S_T1}")
    P(f"s_lshl_b32 s{S_T1}, s{S_TT}, 10")
    P(f"s_add_u32 s{S_KVOFF}, s{S_KVOFF}, s{S_T1}")
    P(f"s_lshl_b32 s{S_KVLDS}, s{S_W}, 10")
    P(f"s_add_u32 s{S_KVLDS}, s{S_KVLDS}, 0x{KV_RING:x}")
    A.update(vk=vk, vv=vv)
    A["S"] = [V.alloc("Sa", 16), V.alloc("Sb", 16)]
    A["O"] = [V.alloc("Oa", 16), V.alloc("Ob", 16)]
    A["fk"] = V.alloc("fk", 4); A["fv"] = [V.alloc("fv1", 4), V.alloc("fv2", 4)]
    A["q"] = V.alloc("qf", 8)
    return A


def kv_dma(P, l16, c):
    P(f"s_add_u32 s{S_T2}, s{S_KVOFF}, {2048*c}")
    dma(P, l16, S_WS, f"s{S_T2}", (S_KVLDS, 8192 * (c & 1)), tag=f"kv{c}", mods=SC1)


def attention(P, A, l16, its, hook, prio):
    S, O, fk, fv = A["S"], A["O"], A["fk"], A["fv"]
    q = [A["q"], A["q"] + 4]
    def rdK(it): P(f"ds_read_b128 {vr(fk,4)}, v{A['vk']} offset:{((it>>1)&1)*8192 + (it&1)*1024}")
    def rdV(it, half): P(f"ds_read_b128 {vr(fv[half],4)}, v{A['vv'][(it>>1)&1]} offset:{(it&1)*1024 + half*512}")
    E = lambda x, i: P(f"v_exp_f32 v{S[x]+i}, v{S[x]+i}")
    def C(x, i):
        b = S[x] + (8 if i >= 4 else 0); k = i & 3
        P(f"v_cvt_pk_bf16_f32 v{b+k}, v{b+2*k}, v{b+2*k+1}")
    for it in its:
        if it == 0:
            rdK(0); rdV(0, 0)
            hook(0, 0, "start")
            P(mfma(S[0], fk, q[0]))
        for x in range(2):
            H = lambda pos: hook(it, x, pos)
            E(x, 0); E(x, 1)
            if x == 0:
                if it > 0: P(mfma(O[1], fv[1], S[1] + 8, O[1]))
                rdV(it, 1)
            else:
                P(mfma(O[0], fv[1], S[0] + 8, O[0]))
            H("pv2")
            E(x, 2); E(x, 3); H("g1")
            E(x, 4); E(x, 5); H("g2")
            E(x, 6); E(x, 7)
            if x == 0: P(mfma(S[1], fk, q[1]))
            elif it < 31: P(mfma(S[0], fk, q[0]))
            H("qk")
            for i in range(4): C(x, i)
            H("g3")
            E(x, 8); E(x, 9)
            sig = (x == 0 and (it & 1) and it < 31)
            if sig or (x == 0 and hook(it, x, "sync?")):
                H("pre0")
                if sig: P.wait_tag(f"kv{(it>>1)+1}")
                H("pre"); P.wait_lgkm_all()
                P("s_barrier")
            P(mfma(O[x], fv[0], S[x], None if it == 0 else O[x]))
            p = prio(it, x)
            if p is not None: P(f"s_setprio {p}")
            if x == 0:
                if it < 31: rdK(it + 1)
                if (it & 1) and (it >> 1) + 2 < 16: kv_dma(P, l16, (it >> 1) + 2)
            else:
                if it < 31: rdV(it + 1, 0)
            H("pv1")
            E(x, 10); E(x, 11); H("g4")
            E(x, 12); E(x, 13); H("g5")
            E(x, 14); E(x, 15); H("g6")
            for i in range(4, 8): C(x, i)
        if it == 31: P(mfma(O[1], fv[1], S[1] + 8, O[1]))


def fin_dma_w1(P, vsl, st, slot, tag, i):
    srd, u0 = (S_WD, 8 * st) if st < 11 else (S_WO, 8 * (st - 11))
    P(f"s_add_u32 s{S_T2}, s{S_FW}, 0x{(16*u0 + 8*i)*1024:x}")
    dma(P, vsl, srd, f"s{S_T2}", (S_FL2, slot + 1024 * i), tag=tag)


def fin_dma_b1(P, l16, st, slot, tag, t):
    P(f"s_add_u32 s{S_T2}, s{S_FB}, 0x{(t*118 + 8*st)*1024:x}")
    if st == 10:
        P(f"s_cmp_lt_u32 s{S_W}, 6")
        P(f"s_cselect_b32 s{S_T2}, s{S_T2}, 0x{OOB:x}")
    dma(P, l16, S_WS, f"s{S_T2}", (S_FL, slot + 16384 + 8192 * t), tag=tag, mods=SC1)


def kernel_F():
    P = Prog(); V = Regs(2, 255, "v"); SL = Slow()
    NP = OPT.get("np", 4)
    JIT = 16 - NP
    GPP = OPT.get("gpp", 2)
    UNI = OPT.get("uni", JIT + 2)
    HF = OPT.get("hf", UNI | 1)
    lane, l16, t0, t1, vsl = prologue_f(P, V, "LF_end")
    vz = V.alloc("vz")
    P(f"s_cmp_lg_u32 s{S_W}, 7")
    P("s_cbranch_scc1 LF_not7")
    P.cond_begin()
    if OPT.get("delay", 1):
        P(f"s_lshr_b32 s{S_T4}, s{S_J}, 1")
        P(f"s_lshl_b32 s{S_T0}, s{S_G}, 16")
        P(f"s_lshl_b32 s{S_T2}, s{S_T4}, 14")
        P(f"s_add_u32 s{S_T2}, s{S_T2}, s{S_T0}")
        P(f"s_mul_i32 m0, s{S_T4}, {16*X_STRIDE}")
        P(f"s_mov_b32 s{S_T5}, 16")
        mk_srd(P, S_X, 4, SZ["x"])
        P("LF_ldx7:")
        P(f"buffer_load_dwordx4 v{l16}, s[{S_X}:{S_X+3}], s{S_T2} offen lds", tag="c")
        P(f"s_add_u32 s{S_T2}, s{S_T2}, 1024")
        P(f"s_add_u32 m0, m0, {X_STRIDE}")
        P(f"s_sub_u32 s{S_T5}, s{S_T5}, 1")
        P(f"s_cmp_lg_u32 s{S_T5}, 0")
        P("s_cbranch_scc1 LF_ldx7")
    P(f"s_and_b32 s{S_T3}, s{S_J}, 1")
    P(f"s_cmp_eq_u32 s{S_T3}, 0")
    P(f"s_cselect_b32 s{S_WKV}, s8, s10")
    P(f"s_cselect_b32 s{S_WKV+1}, s9, s11")
    P(f"s_and_b32 s{S_WKV+1}, s{S_WKV+1}, 0xffff")
    P(f"s_mov_b32 s{S_WKV+2}, 0x{SZ['wk']:x}")
    P(f"s_mov_b32 s{S_WKV+3}, 0x20000")
    for g in range(4):
        P(f"s_mov_b32 s{S_T7}, {4096*g}")
        P(f"s_mov_b32 m0, 0x{WKV_L + 4096*g:x}")
        for i in range(4): P(f"buffer_load_dwordx4 v{l16}, s[{S_WKV}:{S_WKV+3}], s{S_T7} offen offset:{1024*i} lds", tag="c")
    P.cond_end(nowait=True)
    P("LF_not7:")
    if OPT.get("cpf", 1):
        c = V.alloc("cpf")
        P(f"s_getpc_b64 s[{S_EX}:{S_EX+1}]")
        P("LF_pc0:")
        P(f"s_lshr_b32 s{S_T3}, s2, 3")
        P(f"s_lshl_b32 s{S_T3}, s{S_T3}, 3")
        P(f"s_add_u32 s{S_T3}, s{S_T3}, s{S_W}")
        P(f"s_lshl_b32 s{S_T3}, s{S_T3}, 8")
        P(f"v_lshlrev_b32 v{c}, 7, v{lane}")
        P(f"v_add_u32 v{c}, s{S_T3}, v{c}")
        P(f"v_min_u32 v{c}, LF_last-LF_pc0, v{c}")
        P("s_mov_b64 exec, 3")
        P(f"global_load_dword v{c}, v{c}, s[{S_EX}:{S_EX+1}]", tag="cpf")
        P("s_mov_b64 exec, -1")
    P(f"v_mov_b32 v{vz}, 0")
    mk_srd(P, S_WS, 28, SZ["ws"])
    mk_srd(P, S_DBG, 26, SZ["dbg"])
    stamp(P, 0)
    vn = V.alloc("vn")
    KT = 192; vx16 = 240; vw16 = 241; vst = 242
    P(f"s_or_b32 s{S_T0}, s2, s{S_W}")
    P(f"s_cmp_lg_u32 s{S_T0}, 0")
    P("s_cbranch_scc1 LF_non")
    P.cond_begin()
    P(f"s_memrealtime s[{S_EX}:{S_EX+1}]")
    P("s_waitcnt lgkmcnt(0)")
    P(f"s_mul_i32 s{S_EX+1}, s{S_EX+1}, 0x9e3779b1")
    P(f"s_xor_b32 s{S_EX}, s{S_EX}, s{S_EX+1}")
    P(f"s_or_b32 s{S_EX}, s{S_EX}, 1")
    P(f"v_mov_b32 v{t0}, s{S_EX}")
    P("s_mov_b64 exec, 1")
    P(f"buffer_store_dword v{t0}, v{vz}, s[{S_DBG}:{S_DBG+3}], 0 offen sc1")
    P("s_mov_b64 exec, -1")
    P.cond_end()
    P("LF_non:")
    if OPT.get("delay", 1):
        P(f"s_cmp_eq_u32 s{S_W}, 7")
        P("s_cbranch_scc1 LF_is7b")
        if OPT.get("dsl"): P(f"s_sleep {OPT['dsl']}")
        LOADS["f"]()
        P("s_branch LF_not7b")
        P("LF_is7b:")
    else:
        P(f"s_cmp_lg_u32 s{S_W}, 7")
        P("s_cbranch_scc1 LF_not7b")
    P.cond_begin()
    P(f"s_lshr_b32 s{S_T0}, s{S_J}, 1")
    P(f"s_lshl_b32 s{S_T1}, s{S_T0}, 4")
    P(f"v_and_b32 v{t0}, 15, v{lane}")
    P(f"v_add_u32 v{t1}, s{S_T1}, v{t0}")
    P(f"v_mul_u32_u24 v{vx16}, {X_STRIDE}, v{t1}")
    P(f"v_lshrrev_b32 v{t1}, 4, v{lane}")
    P(f"v_lshl_add_u32 v{vx16}, v{t1}, 4, v{vx16}")
    P(f"v_lshlrev_b32 v{vw16}, 8, v{t1}")
    P(f"v_lshl_add_u32 v{vw16}, v{t0}, 3, v{vw16}")
    P(f"v_add_u32 v{vw16}, 0x{WKV_L:x}, v{vw16}")
    P(f"s_and_b32 s{S_T6}, s{S_J}, 1")
    P(f"s_cmp_eq_u32 s{S_T6}, 0")
    P(f"s_cselect_b32 s{S_T3}, 9, 8")
    P(f"s_cselect_b32 s{S_T4}, 8, 9")
    P(f"s_cselect_b32 s{S_T5}, 0x{WS_KF:x}, 0x{WS_VF:x}")
    P(f"v_lshlrev_b32 v{vst}, 4, v{t0}")
    P(f"v_lshrrev_b32 v{t0}, 1, v{t1}")
    P(f"v_lshl_add_u32 v{vst}, v{t0}, 3, v{vst}")
    P(f"v_and_b32 v{t0}, 1, v{t1}")
    P(f"v_lshlrev_b32 v{t0}, s{S_T3}, v{t0}")
    P(f"v_add_u32 v{vst}, v{vst}, v{t0}")
    P(f"s_and_b32 s{S_T1}, s{S_T0}, 1")
    P(f"s_lshl_b32 s{S_T1}, s{S_T1}, s{S_T4}")
    P(f"s_add_u32 s{S_T5}, s{S_T5}, s{S_T1}")
    P(f"s_lshr_b32 s{S_T0}, s{S_T0}, 1")
    P(f"s_lshl_b32 s{S_T1}, s{S_G}, 1")
    P(f"s_add_u32 s{S_T0}, s{S_T0}, s{S_T1}")
    P(f"s_lshl_b32 s{S_T0}, s{S_T0}, 10")
    P(f"s_add_u32 s{S_T5}, s{S_T5}, s{S_T0}")
    P("s_waitcnt vmcnt(0)")
    P(f"buffer_load_dword v{vn}, v{vz}, s[{S_DBG}:{S_DBG+3}], 0 offen sc1")
    def kv16(which):
        d = KT
        xb = [(KT+16) + 4 * i for i in range(4)]; wb = [(KT+32) + 4 * i for i in range(4)]
        def ld(ks):
            P(f"ds_read_b128 {vr(xb[ks%4],4)}, v{vx16} offset:{ks*64}")
            P(f"ds_read_b64_tr_b16 {vr(wb[ks%4],2)}, v{vw16} offset:{ks*1024}")
            P(f"ds_read_b64_tr_b16 {vr(wb[ks%4]+2,2)}, v{vw16} offset:{ks*1024+128}")
        for ks in range(3): ld(ks)
        for ks in range(16):
            a, b = (wb[ks%4], xb[ks%4]) if which == 0 else (xb[ks%4], wb[ks%4])
            P(f"v_mfma_f32_16x16x32_bf16 {vr(d,4)}, {vr(a,4)}, {vr(b,4)}, {vr(d,4) if ks else 0}")
            if ks + 3 < 16: ld(ks + 3)
        if which == 0:
            P(f"s_mov_b32 s{S_T0}, {hexf(QK_SCALE)}")
            for r in range(4): P(f"v_mul_f32 v{d+r}, s{S_T0}, v{d+r}")
    P(f"s_cmp_eq_u32 s{S_T6}, 1")
    P("s_cbranch_scc1 LF_vch")
    P.cond_begin(); kv16(0); P.cond_end()
    P("s_branch LF_kvj")
    P("LF_vch:")
    P.cond_begin(); kv16(1); P.cond_end()
    P("LF_kvj:")
    for r in range(2): P(f"v_cvt_pk_bf16_f32 v{KT+4+r}, v{KT+2*r}, v{KT+2*r+1}")
    P(f"buffer_store_dwordx2 {vr(KT+4,2)}, v{vst}, {WSR}, s{S_T5} offen sc1")
    P(f"s_lshl_b32 s{S_T0}, s{S_G}, 3")
    P(f"s_add_u32 s{S_T0}, s{S_T0}, s{S_J}")
    P(f"s_lshl_b32 s{S_T0}, s{S_T0}, 2")
    P(f"s_add_u32 s{S_T0}, s{S_T0}, 0x{FL_KV:x}")
    P("s_waitcnt vmcnt(0)")
    nonce_check(P, SL, vn, vz)
    flag_store(P, vz, t0, S_T0)
    if OPT.get("pf7", 0):
        P(f"v_lshrrev_b32 v{t0}, 4, v{lane}")
        P(f"v_mul_u32_u24 v{vx16}, 2752, v{t0}")
        P(f"v_and_b32 v{t0}, 15, v{lane}")
        P(f"v_lshl_add_u32 v{vx16}, v{t0}, 7, v{vx16}")
        P(f"v_cmp_gt_u32 vcc, 12, v{t0}")
        P(f"v_mov_b32 v{t1}, 0x{OOB:x}")
        P(f"v_cndmask_b32 v{vx16}, v{t1}, v{vx16}, vcc")
        P(f"s_lshr_b32 s{S_T0}, s2, 3")
        P(f"s_mul_i32 s{S_T0}, s{S_T0}, {4*2752}")
        P(f"s_and_b32 s{S_T1}, s2, 1")
        P(f"s_mul_i32 s{S_T1}, s{S_T1}, {44*32}")
        P(f"s_add_u32 s{S_T0}, s{S_T0}, s{S_T1}")
        for m in range(2):
            mk_srd(P, S_WKV, 16 + 2 * m, SZ["wg"])
            P(f"buffer_load_dword v{KT+m}, v{vx16}, s[{S_WKV}:{S_WKV+3}], s{S_T0} offen")
    P.cond_end(nowait=True)
    P("LF_not7b:")
    stamp(P, 1)
    rest_srds(P)
    mk_srd(P, S_GW, 22, SZ["gw"])
    P(f"s_mov_b32 s{S_C1}, {hexf(2.0**120)}")
    A = attn_setup(P, V, lane, l16, t0, t1)
    qf = A["q"]; O = A["O"]; S = A["S"]
    vfl = V.alloc("vfl", 4)
    P(f"s_lshl_b32 s{S_T0}, s{S_HP}, 1")
    P(f"s_add_u32 s{S_T0}, s{S_T0}, s{S_KH}")
    P(f"s_lshl_b32 s{S_T1}, s{S_J}, 2")
    P(f"s_add_u32 s{S_T0}, s{S_T0}, s{S_T1}")
    P(f"s_mul_i32 s{S_T1}, s{S_TILE}, 118")
    P(f"s_add_u32 s{S_T0}, s{S_T0}, s{S_T1}")
    P(f"s_lshl_b32 s{S_T0}, s{S_T0}, 10")
    P(f"s_add_u32 s{S_OD}, s{S_T0}, 0x{WS_OH + 86*1024:x}")
    def poison():
        for r in range(4): P(f"v_mov_b32 v{O[0]+r}, -1")
        P(f"buffer_store_dwordx4 {vr(O[0],4)}, v{l16}, {WSR}, s{S_OD} offen sc1", tag="poison")
    P(f"s_lshr_b32 s{S_T0}, s{S_W}, 1")
    P(f"s_lshl_b32 s{S_T0}, s{S_T0}, 3")
    P(f"s_add_u32 s{S_T0}, s{S_T0}, s{S_T1}")
    P(f"s_lshl_b32 s{S_T0}, s{S_T0}, 10")
    P(f"s_add_u32 s{S_OL}, s{S_T0}, 0x{WS_OH + 86*1024:x}")
    P(f"s_lshl_b32 s{S_FP}, s{S_G}, 8")
    P(f"s_lshl_b32 s{S_FS}, s{S_J}, 3")
    P(f"s_add_u32 s{S_FS}, s{S_FS}, s{S_W}")
    P(f"s_lshl_b32 s{S_FS}, s{S_FS}, 2")
    P(f"s_add_u32 s{S_FS}, s{S_FS}, s{S_FP}")
    P(f"s_add_u32 s{S_FS}, s{S_FS}, 0x{FL_H:x}")
    P(f"s_add_u32 s{S_FP}, s{S_FP}, 0x{FL_H:x}")
    P(f"s_lshl_b32 s{S_FW}, s{S_W}, 14")
    P(f"s_lshl_b32 s{S_T1}, s{S_J}, 7")
    P(f"s_add_u32 s{S_FW}, s{S_FW}, s{S_T1}")
    P(f"s_lshl_b32 s{S_FL2}, s{S_W}, 11")
    P(f"s_mul_i32 s{S_U0}, s{S_J}, 11")
    P(f"s_min_u32 s{S_U0}, s{S_U0}, 76")
    P(f"s_cmp_ge_u32 s{S_J}, 6")
    P(f"s_cselect_b32 s{S_NU}, 10, 11")
    vxa = xfrag_addr(P, V, "vxa", lane, t0, S_TT)
    vq = V.alloc("vq")
    P(f"s_and_b32 s{S_T0}, s{S_W}, 3")
    P(f"s_lshl_b32 s{S_T1}, s{S_T0}, 11")
    P(f"s_add_u32 s{S_T1}, s{S_T1}, 0x{QSCR:x}")
    P(f"v_add_u32 v{vq}, s{S_T1}, v{l16}")
    acc = [[V.alloc(f"acc{i}{t}", 16) for t in range(2)] for i in range(3)]
    fx = [[V.alloc(f"fx{b}{t}", 4) for t in range(2)] for b in range(2)]
    fw = [[V.alloc(f"fw{b}{i}", 4) for i in range(3)] for b in range(2)]
    P(f"s_cmp_lg_u32 s{S_KH}, 0")
    P("s_cbranch_scc1 LF_light")

    def sigstamp(it, k):
        if OPT.get("sig"):
            P(f"s_memtime s[98:99]"); P("s_waitcnt lgkmcnt(0)"); P(f"v_writelane_b32 v{vsig}, s98, {2*it+k}")
    vsig = V.alloc("vsig") if OPT.get("sig") else None

    P.cond_begin()
    vx0 = V.alloc("vx0")
    P(f"s_mul_i32 s{S_T0}, s{S_TT}, {32*X_STRIDE}")
    P(f"v_subrev_u32 v{vx0}, s{S_T0}, v{vxa}")
    vtn = tr_slice_addr(P, V, "vtn", lane, t0, t1, SLOT[0], S_HP, 8)
    P(f"s_lshl_b32 s{S_T4}, s{S_W}, 1")
    wtr = w_tr_addrs(P, V, lane, t0, t1, s_w=S_T4)
    P(f"s_mul_i32 s{S_T0}, s{S_W}, 3")
    P(f"s_mul_i32 s{S_T1}, s{S_G}, 236")
    P(f"s_add_u32 s{S_T1}, s{S_T1}, s{S_U0}")
    for i in range(3):
        P(f"s_add_u32 s{S_T2}, s{S_T0}, {i}")
        P(f"s_add_u32 s{SH[i]}, s{S_T1}, s{S_T2}")
        P(f"s_lshl_b32 s{SH[i]}, s{SH[i]}, 10")
        P(f"s_add_u32 s{SH[i]}, s{SH[i]}, 0x{WS_OH:x}")
        P(f"s_cmp_lt_u32 s{S_T2}, s{S_NU}")
        P(f"s_cselect_b32 s{SH[i]}, s{SH[i]}, 0x{OOB:x}")
    vpf = S[0]
    P(f"v_bfe_u32 v{t0}, v{lane}, 4, 1")
    P(f"v_lshrrev_b32 v{t1}, 5, v{lane}")
    P(f"v_lshl_add_u32 v{t0}, v{t1}, 7, v{t0}")
    P(f"v_mul_u32_u24 v{vpf}, 2752, v{t0}")
    P(f"v_and_b32 v{t0}, 15, v{lane}")
    P(f"v_lshl_add_u32 v{vpf}, v{t0}, 7, v{vpf}")
    P(f"v_cmp_gt_u32 vcc, 12, v{t0}")
    P(f"v_mov_b32 v{t1}, 0x{OOB:x}")
    P(f"v_cndmask_b32 v{vpf}, v{t1}, v{vpf}, vcc")
    P(f"s_lshr_b32 s{S_T0}, s2, 3")
    P(f"s_lshl_b32 s{S_T0}, s{S_T0}, 1")
    P(f"s_add_u32 s{S_T0}, s{S_T0}, s{S_HP}")
    P(f"s_mul_i32 s{S_T0}, s{S_T0}, {2*2752}")
    P(f"s_and_b32 s{S_T1}, s2, 1")
    P(f"s_mul_i32 s{S_T1}, s{S_T1}, {44*32}")
    P(f"s_add_u32 s{S_T6}, s{S_T0}, s{S_T1}")
    def pf(blk, half):
        P(f"s_add_u32 s{S_T5}, s{S_T6}, {128*2752*blk}")
        if half: P("s_mov_b64 exec, 0xffffffff")
        P(f"buffer_load_dword v{S[1]+blk}, v{vpf}, s[{S_WM}:{S_WM+3}], s{S_T5} offen", tag="pf")
        if half: P("s_mov_b64 exec, -1")
    PF = OPT.get("pf", 0)
    if PF in (1, 4): pf(0, True)
    if PF == 2: pf(0, False)
    P.wait_tag("q")
    P("s_barrier")
    stamp(P, 2)
    if PF == 1: pf(1, False)
    if PF == 2: pf(2, False)
    if PF == 3: pf(0, False)
    QD = 6
    xb = [acc[1][0] + 4 * i for i in range(QD)]; wb = [acc[2][0] + 4 * i for i in range(QD)]
    assert acc[1][1] == acc[1][0] + 16 and acc[2][1] == acc[2][0] + 16
    def q_loads(ks):
        o = SLOT[ks // 12] - SLOT[0] + (ks % 12) * 2048
        P(f"ds_read_b128 {vr(xb[ks%QD],4)}, v{vxa} offset:{ks*32}")
        P(f"ds_read_b64_tr_b16 {vr(wb[ks%QD],2)}, v{vtn} offset:{o}")
        P(f"ds_read_b64_tr_b16 {vr(wb[ks%QD]+2,2)}, v{vtn} offset:{o+512}")
    for ks in range(QD - 1): q_loads(ks)
    for ks in range(32):
        P(mfma(acc[0][0], wb[ks%QD], xb[ks%QD], acc[0][0] if ks else None))
        if ks in (11, 23):
            stamp(P, 11 if ks == 11 else 13)
            P("s_barrier")
        if ks + QD - 1 < 32: q_loads(ks + QD - 1)
        if ks == OPT.get("pk", 20):
            P(f"s_mov_b32 s{S_T5}, 0x{FL_KV:x}")
            P(f"buffer_load_dword v{vn}, v{vz}, s[{S_DBG}:{S_DBG+3}], 0 offen sc1")
            P(flag_load(vfl, 4, l16, f"s{S_T5}"))
    for r in range(8): P(f"v_cvt_pk_bf16_f32 v{qf+r}, v{acc[0][0]+2*r}, v{acc[0][0]+2*r+1}")
    P(f"ds_write_b128 v{vq}, {vr(qf,4)}")
    P(f"ds_write_b128 v{vq}, {vr(qf+4,4)} offset:1024")
    nonce_check(P, SL, vn, vz)
    spin_check(P, SL, [flag_load(vfl, 4, l16, f"s{S_T5}")], flag_cmp(vfl, 4, t0))
    kv_dma(P, l16, 0)
    P(f"s_add_u32 s{S_T2}, s{S_T2}, 32768")
    dma(P, l16, S_WS, f"s{S_T2}", (S_KVLDS, 4096), tag="kv0", mods=SC1)
    def gu_reads(ks):
        s, kk = ks // 2, ks % 2
        so = SLOT[s % 3] - SLOT[0] + kk * 6144
        L = [f"ds_read_b128 {vr(fx[ks%2][0],4)}, v{vx0} offset:{ks*32}"]
        for i in range(3):
            f = fw[ks % 2][i]
            L += [f"ds_read_b64_tr_b16 {vr(f,2)}, v{wtr[i]} offset:{so}", f"ds_read_b64_tr_b16 {vr(f+2,2)}, v{wtr[i]} offset:{so+1536}"]
            if i == 0: L.append(f"ds_read_b128 {vr(fx[ks%2][1],4)}, v{vx0} offset:{ks*32 + 32*X_STRIDE}")
        return L
    def gu_groups(ks):
        R = gu_reads(ks + 1) if ks < 31 else []
        G = []
        for m in range(6):
            i, t = m // 2, m % 2
            G.append([mfma(acc[i][t], fw[ks % 2][i], fx[ks % 2][t], acc[i][t] if ks else None)] + R[2 * m: 2 * m + 2])
        return G
    P.wait_lgkm_all()
    stamp(P, 14)
    P("s_barrier")
    stamp(P, 3)
    for x in gu_reads(0): P(x)
    poison()
    for ks in range(2 * NP - 1):
        if ks % 2 == 1:
            P.wait_lgkm_all(); P("s_barrier")
        for g in gu_groups(ks):
            for x in g: P(x)
    P.wait_tag("kv0"); P.wait_lgkm_all(); P("s_barrier")
    stamp(P, 4)
    gq = []
    tmp = fx[0][0]; cst = fx[1][0]
    assert fx[0][1] == fx[0][0] + 4
    gel = []
    def load_window(k):
        n = 2 * (NP + k) - 1
        assert not gq
        gq.extend(gu_groups(n))
        if n < 31: gq.extend(gu_groups(n + 1))
    def hookH(it, x, pos):
        if pos == "sync?": return 1 <= it <= JIT
        if pos == "pre0": sigstamp(it, 0); return
        if pos == "pre": sigstamp(it, 1); return
        if pos == "start": load_window(0); return
        midprio(it, x, pos)
        if pos == "pv1" and x == 0 and 1 <= it <= JIT: load_window(it)
        if pos in ("g1", "g2", "g3", "g4", "g5", "g6"):
            if gq and not (it == 0 and pos in ("g1", "g3", "g5") and False):
                for t in gq.pop(0): P(t)
                if not gq and it == JIT and x == 1:
                    L = [f"v_mov_b32 v{cst}, {hexf(GELU_C1)}", f"v_mov_b32 v{cst+1}, {hexf(GELU_C1)}",
                         f"v_mov_b32 v{cst+2}, {hexf(GELU_C2)}", f"v_mov_b32 v{cst+3}, {hexf(GELU_C2)}"]
                    k = 0
                    for i in range(3):
                        for t in range(2):
                            d = fw[k % 2][k // 2]; k += 1
                            L += gelu_tile_pk(acc[i][t], d, tmp, cst)
                            if t == 1: L.append(f"s_add_u32 s{SH[i]}, s{SH[i]}, {118*1024}")
                            L.append(f"buffer_store_dwordx4 {vr(d,4)}, v{l16}, {WSR}, s{SH[i]} offen sc1")
                    ns = 3 + 12 * (UNI - JIT - 1)
                    n = (len(L) + ns - 1) // ns
                    gel.extend(L[i:i + n] for i in range(0, len(L), n))
            elif gel:
                for t in gel.pop(0): P(t, tag="hst" if "store" in t else None)
    PM = OPT.get("pm", 1)
    def prioH(it, x):
        if PM == 1: return 3 if (it == 0 and x == 0) else None
        if PM == 3: return 3 - 2 * x
        if PM == 5: return (3 - 2 * x) if it < JIT else 3
        if PM == 6: return 3 if it >= JIT else None
        return None
    def prioL(it, x):
        if PM in (2, 6): return 1 if (it == 0 and x == 0) else None
        if PM == 3: return 3 - 2 * x
        if PM == 5: return (3 - 2 * x) if it < JIT else 0
        return None
    def midprio(it, x, pos):
        if PM in (3, 5) and pos == "pv2" and (PM == 3 or it <= JIT): P(f"s_setprio {2 * x}")
    attention(P, A, l16, range(0, UNI), hookH, prioH)
    assert not gq and not gel, (len(gq), len(gel))
    P.cond_end(keep=True)
    P("s_branch LF_join")
    for n in ("vx0", "vtn", "wtr0", "wtr1", "wtr2"): V.release(n)

    P("LF_light:")
    P.cond_begin()
    pats = w_patterns(P, V, lane, t0, t1)
    P(f"s_lshl_b32 s{S_T0}, s{S_HP}, 1")
    P(f"s_mul_i32 s{S_WOFF}, s{S_T0}, {8*2752}")
    P(f"s_lshl_b32 s{S_T1}, s{S_U0}, 5")
    P(f"s_add_u32 s{S_WOFF}, s{S_WOFF}, s{S_T1}")
    P(f"s_mul_i32 s{S_WLDS}, s{S_T0}, 3072")
    P(f"s_mul_i32 s{S_T1}, s{S_TT}, {UP_OFF}")
    P(f"s_add_u32 s{S_WLDS}, s{S_WLDS}, s{S_T1}")
    def w_dma1(s, k):
        g, i = k // 3, k % 3
        if i == 0: P(f"s_add_u32 s{S_T3}, s{S_WOFF}, 0x{(32*s + 8*g)*2752:x}")
        dma(P, pats[i], S_WM, f"s{S_T3}", (S_WLDS, SLOT[s % 3] + 3072 * g + 1024 * i), tag=f"w{s}")
    def w_dma6(s):
        for k in range(6): w_dma1(s, k)
    vgw = acc[0][1]
    dma(P, l16, S_GW, "0", (None, GWL), tag="q")
    P(f"v_lshrrev_b32 v{t0}, 5, v{lane}")
    P(f"v_lshlrev_b32 v{vgw}, 4, v{t0}")
    P(f"s_lshl_b32 s{S_T0}, s{S_HP}, 9")
    P(f"v_add_u32 v{vxa}, s{S_T0}, v{vxa}")
    P(f"s_add_u32 s{S_T0}, s{S_T0}, 0x{GWL:x}")
    P(f"v_add_u32 v{vgw}, s{S_T0}, v{vgw}")
    P(f"s_lshl_b32 s{S_T0}, s{S_W}, 8")
    P(f"s_add_u32 s{S_T0}, s{S_T0}, 0x{ONES - 1024:x}")
    P(f"v_lshlrev_b32 v{t0}, 2, v{lane}")
    P(f"v_add_u32 v{t0}, s{S_T0}, v{t0}")
    P(f"v_mov_b32 v{t1}, 0x3f803f80")
    P(f"v_lshrrev_b32 v1, 2, v{lane}")
    P(f"v_and_b32 v1, 11, v1")
    P(f"v_cmp_eq_u32 vcc, 0, v1")
    P(f"v_cndmask_b32 v{t1}, 0, v{t1}, vcc")
    P(f"ds_write_b32 v{t0}, v{t1}")
    P(f"ds_write_b32 v{t0}, v{t1} offset:1024")
    P.wait_tag("q")
    P("s_barrier")
    stamp(P, 2)
    stamp(P, 11)
    P("s_barrier")
    w_dma6(0)
    stamp(P, 13)
    P("s_barrier")
    w_dma6(1)
    poison()
    za = acc[0][0]; zx = [acc[1][0] + 4 * i for i in range(4)]; zg = [acc[2][0] + 4 * i for i in range(4)]
    def zjob():
        for r in range(4): P(f"v_mov_b32 v{za+r}, 0")
        def zld(k):
            P(f"ds_read_b128 {vr(zx[k%4],4)}, v{vxa} offset:{k*32}")
            P(f"ds_read_b128 {vr(zg[k%4],4)}, v{vgw} offset:{k*32}")
        for k in range(3): zld(k)
        for k in range(16):
            for r in range(4): P(f"v_dot2c_f32_bf16 v{za+r}, v{zx[k%4]+r}, v{zg[k%4]+r}")
            if k + 3 < 16: zld(k + 3)
        P("s_nop 2")
        P(f"v_add_f32 v{za}, v{za}, v{za+1}")
        P(f"v_add_f32 v{za+2}, v{za+2}, v{za+3}")
        P(f"v_add_f32 v{za}, v{za}, v{za+2}")
        P(f"s_and_b32 s{S_T0}, s{S_W}, 3")
        P(f"s_lshl_b32 s{S_T0}, s{S_T0}, 8")
        P(f"s_add_u32 s{S_T0}, s{S_T0}, 0x{MISC:x}")
        P(f"v_lshlrev_b32 v{t0}, 2, v{lane}")
        P(f"v_add_u32 v{t0}, s{S_T0}, v{t0}")
        P(f"ds_write_b32 v{t0}, v{za}")
    P(f"s_mov_b32 s{S_T6}, 0x{FL_KV:x}")
    def kv_both(c):
        kv_dma(P, l16, c)
        P(f"s_sub_u32 s{S_T2}, s{S_T2}, 32768")
        dma(P, l16, S_WS, f"s{S_T2}", (S_KVLDS, (8192 * c - 4096) & 0xffffffff), tag=f"kv{c}", mods=SC1)
    def poll_issue():
        P(f"buffer_load_dword v{vn}, v{vz}, s[{S_DBG}:{S_DBG+3}], 0 offen sc1")
        P(flag_load(vfl, 4, l16, f"s{S_T6}"))
    for s in range(0, NP + 1):
        P.wait_tag(f"w{s}")
        P.wait_lgkm_all()
        if s == 0: stamp(P, 14)
        P("s_barrier")
        if s == 0:
            stamp(P, 3)
            P(f"ds_read_b128 {vr(qf,4)}, v{vq} offset:1024")
            P(f"ds_read_b128 {vr(qf+4,4)}, v{vq}")
        if s == NP: kv_both(1)
        if s < NP: w_dma6(s + 2)
        if s == 0:
            P(f"buffer_load_dword v{vn}, v{vz}, s[{S_DBG}:{S_DBG+3}], 0 offen sc1")
            zjob()
    assert NP >= 1
    stamp(P, 4)
    dq = []
    def hookL(it, x, pos):
        if pos == "sync?": return 1 <= it <= JIT
        if pos == "pre0": sigstamp(it, 0); return
        if pos == "pre":
            if NP + it < 16: P.wait_tag(f"w{NP+it}")
            sigstamp(it, 1); return
        if (pos == "start" or (pos == "pv1" and x == 0 and it >= 1)) and NP + it + 2 < 16:
            assert not dq
            for k in range(6): dq.append(lambda s=NP + it + 2, k=k: w_dma1(s, k))
        midprio(it, x, pos)
        if pos in ("pv2", "qk", "pv1") and dq: dq.pop(0)()
        if pos == "g2" and x == 1 and it in (3, 5, 7, 9) and OPT.get("wpf", 1):
            k = (it >> 1) - 1
            P(f"s_cmp_lg_u32 s{S_W}, {4+k}")
            P(f"s_cbranch_scc1 LF_wp{k}")
            P.cond_begin()
            P(f"buffer_load_dword v{vgw+4}, v{vgw+5}, s[{S_EX-0}:{S_EX+3}], 0 offen".replace(f"s[{S_EX}:{S_EX+3}]", f"s[{S_PFS}:{S_PFS+3}]"))
            P.cond_end(nowait=True)
            P(f"LF_wp{k}:")
    S_PFS = S_WKV
    P(f"s_mov_b32 s{S_PFS+3}, 0x20000")
    P(f"s_lshr_b32 s{S_T0}, s2, 3")
    P(f"s_lshl_b32 s{S_T0}, s{S_T0}, 2")
    P(f"s_and_b32 s{S_T1}, s{S_W}, 3")
    P(f"s_add_u32 s{S_T0}, s{S_T0}, s{S_T1}")
    P(f"s_cmp_lt_u32 s{S_T0}, 86")
    P(f"s_cselect_b32 s{S_PFS}, s{S_WD}, s{S_WO}")
    P(f"s_cselect_b32 s{S_PFS+1}, s{S_WD+1}, s{S_WO+1}")
    P(f"s_cselect_b32 s{S_PFS+2}, s{S_WD+2}, s{S_WO+2}")
    P(f"s_cselect_b32 s{S_T1}, 0, 86")
    P(f"s_sub_u32 s{S_T0}, s{S_T0}, s{S_T1}")
    P(f"s_lshl_b32 s{S_T0}, s{S_T0}, 14")
    P(f"s_and_b32 s{S_T1}, s2, 1")
    P(f"s_lshl_b32 s{S_T1}, s{S_T1}, 9")
    P(f"s_add_u32 s{S_T0}, s{S_T0}, s{S_T1}")
    P(f"v_lshrrev_b32 v{t0}, 2, v{lane}")
    P(f"v_lshlrev_b32 v{t0}, 10, v{t0}")
    P(f"v_and_b32 v{t1}, 3, v{lane}")
    P(f"v_lshl_add_u32 v{t0}, v{t1}, 7, v{t0}")
    P(f"v_add_u32 v{vgw+5}, s{S_T0}, v{t0}")
    attention(P, A, l16, range(0, UNI), hookL, prioL)
    assert not dq
    P.cond_end(keep=True)
    P("LF_join:")
    P.join()
    for n in ["wpat0", "wpat1", "wpat2", "vxa", "vq"] + [f"acc{i}{t}" for i in range(3) for t in range(2)] + \
             [f"fx{b}{t}" for b in range(2) for t in range(2)] + [f"fw{b}{i}" for b in range(2) for i in range(3)]: V.release(n)
    stamp(P, 5)

    facc = V.alloc("facc", 16); facc1 = V.alloc("facc1", 16); fa = V.alloc("ffa", 8)
    NB = OPT.get("nb", 6)
    hb = [V.alloc(f"hb{i}", 4) for i in range(NB)]; fb = hb[0]
    vl4 = V.alloc("vl4"); vg = V.alloc("vg"); zt = V.alloc("zt", 2)
    va0 = tr_slice_addr(P, V, "fa0", lane, t0, t1, 0, S_KH, 4)
    vA = [[va0, V.alloc("fa0h")], [V.alloc("fa1"), V.alloc("fa1h")]]
    P(f"s_lshl_b32 s{S_T1}, s{S_HP}, 5")
    P(f"v_xor_b32 v{va0}, s{S_T1}, v{va0}")
    P(f"s_lshr_b32 s{S_T0}, s{S_W}, 1")
    P(f"s_lshl_b32 s{S_T1}, s{S_T0}, 11")
    P(f"v_add_u32 v{va0}, s{S_T1}, v{va0}")
    P(f"v_xor_b32 v{vA[1][0]}, 64, v{va0}")
    P(f"v_add_u32 v{vA[0][1]}, 0x10000, v{va0}")
    P(f"v_add_u32 v{vA[1][1]}, 0x10000, v{vA[1][0]}")
    P(f"s_mul_i32 s{S_FB}, s{S_TILE}, 118")
    P(f"s_add_u32 s{S_FB}, s{S_FB}, s{S_T0}")
    P(f"s_lshl_b32 s{S_FB}, s{S_FB}, 10")
    P(f"s_add_u32 s{S_FB}, s{S_FB}, 0x{WS_OH:x}")
    P(f"v_lshlrev_b32 v{vl4}, 2, v{lane}")
    P(f"s_lshl_b32 s{S_T0}, s{S_TT}, 8")
    P(f"s_add_u32 s{S_T0}, s{S_T0}, 0x{MISC:x}")
    P(f"v_add_u32 v{t0}, s{S_T0}, v{vl4}")
    P(f"ds_read_b32 v{zt}, v{t0}")
    P(f"ds_read_b32 v{zt+1}, v{t0} offset:512")
    P(f"v_add_f32 v{zt}, v{zt}, v{zt+1}")
    P(f"v_mov_b32 v{zt+1}, v{zt}")
    P(f"v_permlane32_swap_b32 v{zt}, v{zt+1}")
    P(f"v_add_f32 v{zt}, v{zt}, v{zt+1}")
    P(f"v_mul_f32 v{t0}, {hexf(-LOG2E)}, v{zt}")
    P(f"v_exp_f32 v{t0}, v{t0}")
    P(f"v_add_f32 v{t0}, 1.0, v{t0}")
    P(f"v_rcp_f32 v{vg}, v{t0}")
    V.release("zt")
    BSLOT = lambda b: ((b % 8) if b < 11 else (b - 8)) * 16384
    def a_reads(r, d):
        o = (4 * r % 64) * 2048; hi = o >> 16; o &= 0xffff
        assert r // 2 in vis, (r, vis)
        rd_done[r // 2] = rd_done.get(r // 2, 0) + 1
        P(f"ds_read_b64_tr_b16 {vr(fa+4*d,2)}, v{vA[d][hi]} offset:{o}")
        P(f"ds_read_b64_tr_b16 {vr(fa+4*d+2,2)}, v{vA[d][hi]} offset:{o+1024}")
    def h_load(r):
        P(f"s_add_u32 s{S_T2}, s{S_FB}, {4096*r}")
        if r == 21:
            P(f"s_cmp_lt_u32 s{S_W}, 4")
            P(f"s_cselect_b32 s{S_T2}, s{S_T2}, 0x{OOB:x}")
        P(f"buffer_load_dwordx4 {vr(hb[r%NB],4)}, v{l16}, {WSR}, s{S_T2} offen sc1")
    dq = []; vis = set(); issued = {}; rd_done = {}; nxt = dict(b=0, r=0, d=0, pre=False)
    def qW(b):
        def f(i):
            fin_dma_w1(P, vsl, b, BSLOT(b), f"fw{b}", i); issued[b] = issued.get(b, 0) + 1
        for i in range(2): dq.append(lambda i=i: f(i))
    CH = OPT.get("ch", HF + 3); R0 = OPT.get("r0", 2 * (CH + 2))
    DBL = OPT.get("dbl", 64)
    def mstep():
        r, d = nxt["r"], nxt["d"]
        if r >= 22: return
        if not nxt["pre"]:
            a_reads(0, 0); a_reads(0, 1); nxt["pre"] = True; return
        P(mfma([facc, facc1][d], fa + 4 * d, hb[r % NB], [facc, facc1][d] if r else None))
        if r + 1 < 22: a_reads(r + 1, d)
        if d == 1 and r + NB < 22: dq.insert(0, lambda r=r: h_load(r + NB))
        nxt["d"] = 1 - d; nxt["r"] = r + d
    def hookU(it, x, pos):
        sig = (x == 0 and (it & 1)); ph = 2 * it + x
        if pos == "sync?": return False
        if pos == "pre0": sigstamp(it, 0); return
        if pos == "pre":
            if it == HF: P.wait_vm_all()
            need = [b for b in issued if issued[b] == 2 and b not in vis and (b >= 11 and it == 29 and False or b <= min(10, (max(0, ph + 6 - R0) * (2 if ph + 4 >= DBL else 1)) // 2))]
            if need: P.wait_tag(*[f"fw{b}" for b in need]); vis.update(need)
            sigstamp(it, 1); return
        if pos == "pv1" and sig:
            if it == HF:
                nonce_check(P, SL, vn, vz)
                flag_store(P, vz, t0, S_FS)
            while it >= HF and nxt["b"] < 15:
                b = nxt["b"]; prev = {8: 0, 9: 1, 10: 2, 11: 3, 12: 4, 13: 5, 14: 6}.get(b)
                if prev is not None and rd_done.get(prev, 0) < 4: break
                qW(b); nxt["b"] += 1
        if pos == "pv2" and x == 0 and it == CH - 1: P(flag_load(vfl, 1, vl4, f"s{S_FP}"))
        if pos == "pv2" and x == 0 and it == CH:
            spin_check(P, SL, [flag_load(vfl, 1, vl4, f"s{S_FP}")], flag_cmp(vfl, 1, t0))
            for r in range(NB): dq.insert(r, lambda r=r: h_load(r))
        elif dq and (pos in ("pv2", "qk") or (pos in ("g2", "g5") and it in (CH, CH + 1)) or (pos == "g5" and OPT.get("d3"))): dq.pop(0)()
        if (pos in ("g1", "g4") and ph >= R0) or (pos == "g4" and ph == R0 - 1) or (pos in ("g3", "g6") and ph >= DBL): mstep()
        if pos == "g6" and it == 31 and x == 1:
            assert nxt["b"] == 15, nxt
            print("rounds left for tail:", 22 - nxt["r"])
    def prioU(it, x):
        if not OPT.get("prio", 1): return None
        return 3 - (2 * ((it + 1) & 1) + x)
    attention(P, A, l16, range(UNI, 32), hookU, prioU)
    assert not dq
    stamp(P, 6)
    if OPT.get("sig"):
        P(f"s_lshl_b32 s98, s2, 11")
        P(f"s_lshl_b32 s99, s{S_W}, 8")
        P(f"s_add_u32 s98, s98, s99")
        P(f"s_add_u32 s98, s98, 0x{WS_STAMP + (1<<20):x}")
        P(f"buffer_store_dword v{vsig}, v{vl4}, {WSR}, s98 offen")
    P("s_setprio 0")
    va = V.alloc("cva"); vb = V.alloc("cvb"); fb = V.alloc("cvon")
    P(f"s_mul_i32 s{S_T0}, s{S_W}, 3072")
    P(f"s_add_u32 s{S_T0}, s{S_T0}, 114688")
    P(f"v_add_u32 v{va}, s{S_T0}, v{l16}")
    P(f"s_xor_b32 s{S_T0}, s{S_W}, 4")
    P(f"s_mul_i32 s{S_T0}, s{S_T0}, 3072")
    P(f"s_add_u32 s{S_T0}, s{S_T0}, 114688")
    P(f"v_add_u32 v{vb}, s{S_T0}, v{l16}")
    P(f"v_mov_b32 v{O[1]+7}, v{O[1]}")
    for i in range(3): P(f"ds_write_b128 v{va}, {vr(O[1]+4+4*i,4)} offset:{1024*i}")
    P.wait_tag("fw11", "fw12", "fw13", "fw14"); P.wait_lgkm_all()
    P("s_barrier")
    for i in range(3): P(f"ds_read_b128 {vr(O[1]+4+4*i,4)}, v{vb} offset:{1024*i}")
    P(f"v_add_f32 v{O[0]}, v{O[0]}, v{O[1]+7}")
    for r in range(8, 16): P(f"v_add_f32 v{O[0]+r}, v{O[0]+r}, v{O[1]+r}")
    P(f"v_mov_b32 v{t1}, 0x207")
    P(f"v_cmp_nle_f32 vcc, {hexf(2.0**-90)}, v{O[0]}")
    P(f"v_cmp_nge_f32 s[{S_PM}:{S_PM+1}], {'s' + str(S_T0)}, v{O[0]}".replace(f"s{S_T0}", f"s{S_C1}"))
    P(f"s_or_b64 vcc, vcc, s[{S_PM}:{S_PM+1}]")
    for r in range(8, 16):
        P(f"v_cmp_class_f32 s[{S_PM}:{S_PM+1}], v{O[0]+r}, v{t1}")
        P(f"s_or_b64 vcc, vcc, s[{S_PM}:{S_PM+1}]")
    if OPT.get("forcefb"): P("s_mov_b64 vcc, -1")
    P("s_cmp_lg_u64 vcc, 0")
    P("s_cbranch_scc1 LF_fb")
    P("LF_fbr:")
    P(f"v_rcp_f32 v{t0}, v{O[0]}")
    P(f"v_mul_f32 v{t0}, v{t0}, v{vg}")
    for r in range(8, 16): P(f"v_mul_f32 v{O[0]+r}, v{O[0]+r}, v{t0}")
    for r in range(4): P(f"v_cvt_pk_bf16_f32 v{O[1]+r}, v{O[0]+8+2*r}, v{O[0]+9+2*r}")
    for r in range(4): P(f"v_min_u32 v{O[1]+r}, 0xfffffffe, v{O[1]+r}")
    P(f"buffer_store_dwordx4 {vr(O[1],4)}, v{l16}, {WSR}, s{S_OD} offen sc1", tag="ost")
    stamp(P, 7)
    while nxt["r"] < 22: mstep(); assert not dq
    P(f"v_sub_f32 v{t1}, 1.0, v{vg}")
    for r in range(16): P(f"v_mul_f32 v{facc+r}, v{facc+r}, v{t1}")
    for r in range(16): P(f"v_mul_f32 v{facc1+r}, v{facc1+r}, v{t1}")
    K4, V8, ON, CM = A["fk"], A["fv"][0], fb, O[1]
    assert A["fv"][1] == V8 + 4
    nl = "\n    "
    fbk = f"""LF_fb:
    s_waitcnt vmcnt(0) lgkmcnt(0)
    v_mov_b32 v{t0}, 0xff800000
    s_mov_b32 s{S_T0}, 0x{WS_KF:x}
LF_fb1:
    buffer_load_dwordx4 {vr(K4,4)}, v{l16}, {WSR}, s{S_T0} offen sc1
    s_waitcnt vmcnt(0)
    {mfma(S[0], K4, qf)}
    s_nop 15
    {nl.join(f"v_max3_f32 v{t0}, v{S[0]+2*r}, v{S[0]+2*r+1}, v{t0}" for r in range(8))}
    s_add_u32 s{S_T0}, s{S_T0}, 1024
    s_cmp_lt_u32 s{S_T0}, 0x{WS_KF + 65536:x}
    s_cbranch_scc1 LF_fb1
    v_mov_b32 v{t1}, v{t0}
    s_nop 1
    v_permlane32_swap_b32 v{t0}, v{t1}
    s_nop 1
    v_max_f32 v{t0}, v{t0}, v{t1}
    {nl.join(f"v_sub_f32 v{CM+r}, 0, v{t0}" for r in range(16))}
    {nl.join(f"v_mov_b32 v{O[0]+r}, 0" for r in range(16))}
    v_lshrrev_b32 v{t0}, 5, v{lane}
    v_lshlrev_b32 v{t0}, 8, v{t0}
    v_and_b32 v{t1}, 15, v{lane}
    v_lshl_add_u32 v{t0}, v{t1}, 4, v{t0}
    v_and_b32 v{t1}, 16, v{lane}
    v_cmp_eq_u32 vcc, 0, v{t1}
    v_mov_b32 v{t1}, 0x{OOB:x}
    s_nop 1
    v_cndmask_b32 v{t0}, v{t0}, v{t1}, vcc
    v_and_b32 v{t1}, 27, v{lane}
    v_cmp_eq_u32 vcc, 0, v{t1}
    v_mov_b32 v{ON}, 0x3f803f80
    s_nop 1
    v_cndmask_b32 v{ON}, 0, v{ON}, vcc
    s_mov_b32 s{S_T0}, 0x{WS_KF:x}
LF_fb2:
    s_add_u32 s{S_T1}, s{S_T0}, 0x{WS_VF - WS_KF:x}
    buffer_load_dwordx4 {vr(K4,4)}, v{l16}, {WSR}, s{S_T0} offen sc1
    buffer_load_dwordx4 {vr(V8,4)}, v{t0}, {WSR}, s{S_T1} offen sc1
    buffer_load_dwordx4 {vr(V8+4,4)}, v{t0}, {WSR}, s{S_T1} offen offset:512 sc1
    s_waitcnt vmcnt(0)
    {mfma(S[0], K4, qf, CM)}
    {nl.join(f"v_or_b32 v{V8+r}, v{V8+r}, v{ON}" for r in range(8))}
    s_nop 7
    {nl.join(f"v_exp_f32 v{S[0]+r}, v{S[0]+r}" for r in range(16))}
    s_nop 1
    {nl.join(f"v_cvt_pk_bf16_f32 v{S[1]+r}, v{S[0]+2*r}, v{S[0]+2*r+1}" for r in range(8))}
    s_nop 1
    {mfma(O[0], V8, S[1], O[0])}
    {mfma(O[0], V8+4, S[1]+4, O[0])}
    s_add_u32 s{S_T0}, s{S_T0}, 1024
    s_cmp_lt_u32 s{S_T0}, 0x{WS_KF + 65536:x}
    s_cbranch_scc1 LF_fb2
    s_nop 15
    s_branch LF_fbr
"""
    SL.add(fbk)
    for n in ("Sa", "Sb", "Oa", "qf", "fk", "fv1", "fv2"): V.release(n)
    ob = V.alloc("ob", 32); wa = [V.alloc(f"wa{u}", 8) for u in range(8)]
    P(f"s_add_u32 s{S_T6}, s{S_OL}, 4096")
    def oloads(g): return [f"buffer_load_dwordx4 {vr(ob+16*g+4*u,4)}, v{l16}, {WSR}, s{[S_OL,S_T6][g]} offen offset:{1024*u} sc1" for u in range(4)]
    def ocheck(g):
        b = ob + 16 * g
        L = [f"v_max3_u32 v{t0}, v{b}, v{b+1}, v{b+2}"]
        for k in range(3, 15, 2): L.append(f"v_max3_u32 v{t0}, v{b+k}, v{b+k+1}, v{t0}")
        L += [f"v_max_u32 v{t0}, v{b+15}, v{t0}", f"v_cmp_eq_u32 vcc, -1, v{t0}"]
        return L
    vt0, vt1 = vA[0][1], vA[1][1]
    P(f"s_lshr_b32 s{S_T0}, s{S_W}, 1")
    P(f"s_mul_i32 s{S_T0}, s{S_T0}, {16384 - 2048}")
    P(f"s_add_u32 s{S_T0}, s{S_T0}, {3*16384}")
    P(f"v_add_u32 v{vt0}, s{S_T0}, v{vA[0][0]}")
    P(f"v_add_u32 v{vt1}, s{S_T0}, v{vA[1][0]}")
    for u in range(8):
        for d, v in ((0, vt0), (1, vt1)):
            P(f"ds_read_b64_tr_b16 {vr(wa[u]+4*d,2)}, v{v} offset:{u*2048}")
            P(f"ds_read_b64_tr_b16 {vr(wa[u]+4*d+2,2)}, v{v} offset:{u*2048+1024}")
    vw = [V.alloc(f"vw{i}") for i in range(3)]; vrd = V.alloc("vrd"); vo = V.alloc("vo")
    def sbase(dst, w):
        P(f"s_mul_i32 s{S_T1}, s{w}, 6144")
        P(f"v_add_u32 v{dst}, s{S_T1}, v{l16}")
    sbase(vrd, S_W)
    for b in range(1, 4):
        P(f"s_xor_b32 s{S_T0}, s{S_W}, {b << 1}")
        sbase(vw[b - 1], S_T0)
    P(f"v_and_b32 v{vo}, 31, v{lane}")
    P(f"v_lshlrev_b32 v{vo}, 10, v{vo}")
    P(f"v_lshrrev_b32 v{t1}, 5, v{lane}")
    P(f"v_lshl_add_u32 v{vo}, v{t1}, 4, v{vo}")
    P(f"s_lshl_b32 s{S_T0}, s{S_TILE}, 15")
    P(f"s_lshl_b32 s{S_T1}, s{S_J}, 7")
    P(f"s_add_u32 s{S_T0}, s{S_T0}, s{S_T1}")
    P(f"s_lshl_b32 s{S_T1}, s{S_KH}, 6")
    P(f"s_add_u32 s{S_T0}, s{S_T0}, s{S_T1}")
    P(f"s_lshl_b32 s{S_T1}, s{S_HP}, 5")
    P(f"s_add_u32 s{S_T0}, s{S_T0}, s{S_T1}")
    vp = V.alloc("vp"); vpa = V.alloc("vpa")
    P(f"v_lshlrev_b32 v{vpa}, 10, v{lane}")
    probe = ["s_mov_b64 exec, 0xff", f"buffer_load_dword v{vp}, v{vpa}, {WSR}, s{S_OL} offen offset:1020 sc1"]
    pchk = [f"v_cmp_eq_u32 vcc, -1, v{vp}", "s_mov_b64 exec, -1"]
    if OPT.get("tbar", 1): P.wait_lgkm_all(); P("s_barrier")
    for x in probe: P(x)
    spin_check(P, SL, probe, pchk, sleep=OPT.get("psl", 1))
    stamp(P, 8)
    for g in range(2):
        for x in oloads(g): P(x)
    for g in range(2):
        spin_check(P, SL, oloads(g), ocheck(g), sleep=2)
        for u in range(4 * g, 4 * g + 4):
            P(mfma(facc1, wa[u] + 4, ob + 4 * u, facc1))
            P(mfma(facc, wa[u], ob + 4 * u, facc))
    stamp(P, 9)
    for b, src in ((2, facc1), (3, facc1 + 8), (1, facc + 8)):
        for i in range(2): P(f"ds_write_b128 v{vw[b-1]}, {vr(src+4*i,4)} offset:{2048*(b-1) + 1024*i}")
    P.wait_lgkm_all()
    P("s_barrier")
    for i in range(6): P(f"ds_read_b128 {vr(ob+4*i,4)}, v{vrd} offset:{1024*i}")
    for b in range(3):
        for r in range(8): P(f"v_add_f32 v{facc+r}, v{facc+r}, v{ob+8*b+r}")
    for r in range(4): P(f"v_cvt_pk_bf16_f32 v{facc1+r}, v{facc+2*r}, v{facc+2*r+1}")
    P(f"v_permlane32_swap_b32 v{facc1}, v{facc1+2}")
    P(f"v_permlane32_swap_b32 v{facc1+1}, v{facc1+3}")
    P(f"buffer_store_dwordx4 {vr(facc1,4)}, v{vo}, s[{S_OUT}:{S_OUT+3}], s{S_T0} offen")
    if STAMP["on"]:
        P.wait_vm_all(); stamp(P, 10); stamp_dump(P, lane)
    P("LF_end:")
    P("s_endpgm")
    name = NAME + "_kernel"
    body, I = finalize(P)
    txt = f".text\n.globl {name}\n.p2align 8\n.type {name},@function\n{name}:\n" + body + "".join(SL.txt) + "LF_last:\n    s_endpgm\n"
    vg_ = 256 if STAMP["on"] else max(V.hi, 8)
    txt += KD.format(name=name, vgpr=vg_, sgpr=102 if STAMP['on'] else 96, accum=(vg_ + 3) // 4 * 4)
    return txt, I, vg_


if __name__ == "__main__":
    out = sys.argv[1]
    STAMP["on"] = "stamp" in sys.argv
    for a in sys.argv[2:]:
        if "=" in a: k, v = a.split("="); OPT[k] = int(v)
        else: OPT[a] = True
    t, I, vg_ = kernel_F()
    hdr = HEADER + f"; @launch grid=(256,1,1) block=(512,1,1) lds={LDS_BYTES}\n" + '.amdgcn_target "amdgcn-amd-amdhsa--gfx950"\n'
    open(out, "w").write(hdr + t)
    print("insts", len(I), "vgpr", vg_, "nops", sum(1 for x in I if x.kind == "nop"))
```

```python
import sys
from parts import *
OPT = {}
S_NONCE = 93
S_HP, S_KH = 30, 31
SH = [4, 5, 6]
S_FS, S_FP, S_OD, S_OL = 7, 8, 9, 10
S_FW, S_FB, S_FL, S_FL2 = 12, 13, 14, 15
S_PM = 16
FL_KV, FL_H = WS_FLAG, WS_FLAG + 4096
WKV_L = KV_RING
QSCR = KV_RING + 8192
FSLOT = [0, 32768, 65536, 98304]
WO_CH = [98304, 114688, 0, 32768]
SC1 = " sc1"
SPIN_MAX = 1 << 22
WSR = f"s[{S_WS}:{S_WS+3}]"


class Slow:
    def __init__(self): self.txt = []; self.n = 0
    def add(self, t): self.txt.append(t)


LOADS = {}
def emit_loads(P, l16, vsl):
    P(f"s_sub_u32 s{S_T3}, s{S_W}, 3")
    P(f"s_cmp_lt_u32 s{S_T3}, 4")
    P("s_cbranch_scc1 LF_ldq")
    P(f"s_lshr_b32 s{S_T4}, s{S_J}, 1")
    P(f"s_add_u32 s{S_T4}, s{S_T4}, s{S_W}")
    P(f"s_add_u32 s{S_T4}, s{S_T4}, 1")
    P(f"s_and_b32 s{S_T4}, s{S_T4}, 3")
    P(f"s_lshl_b32 s{S_T0}, s{S_G}, 16")
    P(f"s_lshl_b32 s{S_T2}, s{S_T4}, 14")
    P(f"s_add_u32 s{S_T2}, s{S_T2}, s{S_T0}")
    P(f"s_mul_i32 m0, s{S_T4}, {16*X_STRIDE}")
    P(f"s_mov_b32 s{S_T5}, 16")
    P("s_waitcnt lgkmcnt(0)")
    mk_srd(P, S_X, 4, SZ["x"])
    P("LF_ldx1:")
    P(f"buffer_load_dwordx4 v{l16}, s[{S_X}:{S_X+3}], s{S_T2} offen lds", tag="q")
    P(f"s_add_u32 s{S_T2}, s{S_T2}, 1024")
    P(f"s_add_u32 m0, m0, {X_STRIDE}")
    P(f"s_sub_u32 s{S_T5}, s{S_T5}, 1")
    P(f"s_cmp_lg_u32 s{S_T5}, 0")
    P("s_cbranch_scc1 LF_ldx1")
    P("s_branch LF_ldj")
    P("LF_ldq:")
    P(f"s_lshl_b32 s{S_T4}, s{S_T3}, 4")
    P(f"s_add_u32 s{S_T5}, s{S_T4}, 16")
    P(f"s_lshl_b32 s{S_T2}, s{S_T3}, 17")
    P(f"s_lshl_b32 s{S_T0}, s{S_J}, 7")
    P(f"s_add_u32 s{S_T2}, s{S_T2}, s{S_T0}")
    P("s_waitcnt lgkmcnt(0)")
    mk_srd(P, S_WQ, 6, SZ["wq"])
    P("LF_ldq1:")
    P(f"s_mul_i32 s{S_T0}, s{S_T4}, 171")
    P(f"s_lshr_b32 s{S_T0}, s{S_T0}, 12")
    P(f"s_lshl_b32 s{S_T1}, s{S_T4}, 2")
    P(f"s_add_u32 s{S_T0}, s{S_T0}, s{S_T1}")
    P(f"s_lshl_b32 s{S_T0}, s{S_T0}, 8")
    P(f"s_add_u32 m0, s{S_T0}, 0x{SLOT[0]:x}")
    P(f"s_add_u32 s{S_T4}, s{S_T4}, 1")
    P(f"buffer_load_dwordx4 v{vsl}, s[{S_WQ}:{S_WQ+3}], s{S_T2} offen lds")
    P.I[-1].kind = "salu"
    P(f"s_add_u32 s{S_T2}, s{S_T2}, 8192")
    P(f"s_cmp_lg_u32 s{S_T4}, s{S_T5}")
    P("s_cbranch_scc1 LF_ldq1")
    P("LF_ldj:")


def prologue_f(P, V, endlabel):
    if STAMP["on"]: P("s_memrealtime s[100:101]")
    P("s_cmp_ge_u32 s2, 256")
    P(f"s_cbranch_scc1 {endlabel}")
    P("s_load_dwordx16 s[4:19], s[0:1], 0")
    P("s_load_dwordx8 s[20:27], s[0:1], 64")
    P("s_load_dwordx2 s[28:29], s[0:1], 96")
    lane = V.alloc("lane"); l16 = V.alloc("l16")
    P(f"v_lshrrev_b32 v1, 6, v0")
    P(f"v_and_b32 v{lane}, 63, v0")
    P(f"v_readfirstlane_b32 s{S_W}, v1")
    P(f"v_lshlrev_b32 v{l16}, 4, v{lane}")
    P(f"s_lshr_b32 s{S_T0}, s2, 3")
    if OPT.get("jrot"): P(f"s_add_u32 s{S_J}, s{S_T0}, {OPT['jrot']}"); P(f"s_and_b32 s{S_J}, s{S_J}, 3")
    else: P(f"s_and_b32 s{S_J}, s{S_T0}, 3")
    P(f"s_and_b32 s{S_T1}, s2, 1")
    P(f"s_lshl_b32 s{S_T1}, s{S_T1}, 2")
    P(f"s_add_u32 s{S_J}, s{S_J}, s{S_T1}")
    P(f"s_and_b32 s{S_G}, s2, 6")
    P(f"s_lshl_b32 s{S_G}, s{S_G}, 2")
    P(f"s_lshr_b32 s{S_T0}, s{S_T0}, 2")
    P(f"s_add_u32 s{S_G}, s{S_G}, s{S_T0}")
    t0 = V.alloc("t0"); t1 = V.alloc("t1")
    vsl = slice_pattern(P, V, lane, t0)
    LOADS["f"] = lambda: emit_loads(P, l16, vsl)
    if OPT.get("delay", 1):
        P("s_waitcnt lgkmcnt(0)")
    else:
        emit_loads(P, l16, vsl)
    P(f"s_and_b32 s{S_TT}, s{S_W}, 1")
    P(f"s_lshl_b32 s{S_TILE}, s{S_G}, 1")
    P(f"s_add_u32 s{S_TILE}, s{S_TILE}, s{S_TT}")
    P(f"s_lshr_b32 s{S_HP}, s{S_W}, 1")
    P(f"s_and_b32 s{S_HP}, s{S_HP}, 1")
    P(f"s_lshr_b32 s{S_KH}, s{S_W}, 2")
    assert all((p * 171) >> 12 == p // 24 for p in range(64)) and SLOT_SZ == 3 * 8192 + 256
    return lane, l16, t0, t1, vsl


def rest_srds(P):
    P(f"s_cmp_eq_u32 s{S_TT}, 0")
    P(f"s_cselect_b32 s{S_WM}, s16, s18")
    P(f"s_cselect_b32 s{S_WM+1}, s17, s19")
    P(f"s_and_b32 s{S_WM+1}, s{S_WM+1}, 0xffff")
    P(f"s_mov_b32 s{S_WM+2}, 0x{SZ['wg']:x}")
    P(f"s_mov_b32 s{S_WM+3}, 0x20000")
    mk_srd(P, S_OUT, 24, SZ["out"])
    mk_srd(P, S_WO, 12, SZ["wo"])
    mk_srd(P, S_WD, 20, SZ["wd"])


def nonce_check(P, SL, vn, vz):
    k = SL.n; SL.n += 1
    P(f"v_readfirstlane_b32 s{S_NONCE}, v{vn}")
    P(f"s_cmp_eq_u32 s{S_NONCE}, 0")
    P(f"s_cbranch_scc1 LS{k}")
    P(f"LR{k}:")
    SL.add(f"""LS{k}:
    s_mov_b32 s{S_T7}, 0
LS{k}_l:
    s_sleep 2
    buffer_load_dword v{vn}, v{vz}, s[{S_DBG}:{S_DBG+3}], 0 offen sc1
    s_waitcnt vmcnt(0)
    v_readfirstlane_b32 s{S_NONCE}, v{vn}
    s_add_u32 s{S_T7}, s{S_T7}, 1
    s_cmp_ge_u32 s{S_T7}, 0x{SPIN_MAX:x}
    s_cbranch_scc1 LR{k}
    s_cmp_eq_u32 s{S_NONCE}, 0
    s_cbranch_scc1 LS{k}_l
    s_branch LR{k}
""")


def flag_load(vf, n, vaddr, soff):
    op = {1: "buffer_load_dword", 4: "buffer_load_dwordx4"}[n]
    return f"{op} {vr(vf,n)}, v{vaddr}, {WSR}, {soff} offen sc1"


def flag_cmp(vf, n, t):
    L = [f"v_xor_b32 v{t}, s{S_NONCE}, v{vf}"]
    for i in range(1, n):
        L += [f"v_xor_b32 v{vf+i}, s{S_NONCE}, v{vf+i}", f"v_or_b32 v{t}, v{t}, v{vf+i}"]
    L += [f"v_cmp_ne_u32 vcc, 0, v{t}"]
    return L


def spin_check(P, SL, loads, cmps, sleep=1):
    k = SL.n; SL.n += 1
    for x in cmps: P(x)
    P(f"s_cbranch_vccnz LS{k}")
    P(f"LR{k}:")
    nl = "\n    "
    SL.add(f"""LS{k}:
    s_mov_b32 s{S_T7}, 0
LS{k}_l:
    {f"s_sleep {sleep}" if sleep else "s_nop 0"}
    {nl.join(loads)}
    s_waitcnt vmcnt(0)
    {nl.join(cmps)}
    s_add_u32 s{S_T7}, s{S_T7}, 1
    s_cmp_ge_u32 s{S_T7}, 0x{SPIN_MAX:x}
    s_cbranch_scc1 LR{k}
    s_cbranch_vccnz LS{k}_l
    s_nop 1
    s_branch LR{k}
""")


def flag_store(P, vz, t, soff):
    P(f"v_mov_b32 v{t}, s{S_NONCE}")
    P("s_mov_b64 exec, 1")
    P(f"buffer_store_dword v{t}, v{vz}, {WSR}, s{soff} offen sc1", tag="flag")
    P("s_mov_b64 exec, -1")


def attn_setup(P, V, lane, l16, t0, t1):
    A = {}
    P(f"s_lshl_b32 s{S_T1}, s{S_KH}, 12")
    vk = V.alloc("vk"); vv = [V.alloc("vv0"), V.alloc("vv1")]
    P(f"s_add_u32 s{S_T1}, s{S_T1}, 0x{KV_RING:x}")
    P(f"v_add_u32 v{vk}, s{S_T1}, v{l16}")
    P(f"v_lshrrev_b32 v{t0}, 5, v{lane}")
    P(f"v_lshlrev_b32 v{t0}, 8, v{t0}")
    P(f"v_and_b32 v{t1}, 15, v{lane}")
    P(f"v_lshl_add_u32 v{t0}, v{t1}, 4, v{t0}")
    P(f"v_and_b32 v{t1}, 16, v{lane}")
    P(f"v_cmp_eq_u32 vcc, 0, v{t1}")
    P(f"s_add_u32 s{S_T1}, s{S_T1}, 2048")
    for s in range(2):
        P(f"v_mov_b32 v{t1}, s{S_T1}")
        P(f"v_add_u32 v{t1}, {8192*s}, v{t1}")
        P(f"v_mov_b32 v{vv[s]}, 0x{ONES:x}")
        P(f"v_cndmask_b32 v{vv[s]}, v{t1}, v{vv[s]}, vcc")
        P(f"v_add_u32 v{vv[s]}, v{vv[s]}, v{t0}")
    P(f"s_lshl_b32 s{S_KVOFF}, s{S_KH}, 15")
    P(f"s_lshl_b32 s{S_T1}, s{S_HP}, 16")
    P(f"s_add_u32 s{S_KVOFF}, s{S_KVOFF}, s{S_T1}")
    P(f"s_lshl_b32 s{S_T1}, s{S_TT}, 10")
    P(f"s_add_u32 s{S_KVOFF}, s{S_KVOFF}, s{S_T1}")
    P(f"s_lshl_b32 s{S_KVLDS}, s{S_W}, 10")
    P(f"s_add_u32 s{S_KVLDS}, s{S_KVLDS}, 0x{KV_RING:x}")
    A.update(vk=vk, vv=vv)
    A["S"] = [V.alloc("Sa", 16), V.alloc("Sb", 16)]
    A["O"] = [V.alloc("Oa", 16), V.alloc("Ob", 16)]
    A["fk"] = V.alloc("fk", 4); A["fv"] = [V.alloc("fv1", 4), V.alloc("fv2", 4)]
    A["q"] = V.alloc("qf", 8)
    return A


def kv_dma(P, l16, c):
    P(f"s_add_u32 s{S_T2}, s{S_KVOFF}, {2048*c}")
    dma(P, l16, S_WS, f"s{S_T2}", (S_KVLDS, 8192 * (c & 1)), tag=f"kv{c}", mods=SC1)


def attention(P, A, l16, its, hook, prio):
    S, O, fk, fv = A["S"], A["O"], A["fk"], A["fv"]
    q = [A["q"], A["q"] + 4]
    def rdK(it): P(f"ds_read_b128 {vr(fk,4)}, v{A['vk']} offset:{((it>>1)&1)*8192 + (it&1)*1024}")
    def rdV(it, half): P(f"ds_read_b128 {vr(fv[half],4)}, v{A['vv'][(it>>1)&1]} offset:{(it&1)*1024 + half*512}")
    E = lambda x, i: P(f"v_exp_f32 v{S[x]+i}, v{S[x]+i}")
    def C(x, i):
        b = S[x] + (8 if i >= 4 else 0); k = i & 3
        P(f"v_cvt_pk_bf16_f32 v{b+k}, v{b+2*k}, v{b+2*k+1}")
    for it in its:
        if it == 0:
            rdK(0); rdV(0, 0)
            hook(0, 0, "start")
            P(mfma(S[0], fk, q[0]))
        for x in range(2):
            H = lambda pos: hook(it, x, pos)
            E(x, 0); E(x, 1)
            if x == 0:
                if it > 0: P(mfma(O[1], fv[1], S[1] + 8, O[1]))
                rdV(it, 1)
            else:
                P(mfma(O[0], fv[1], S[0] + 8, O[0]))
            H("pv2")
            E(x, 2); E(x, 3); H("g1")
            E(x, 4); E(x, 5); H("g2")
            E(x, 6); E(x, 7)
            if x == 0: P(mfma(S[1], fk, q[1]))
            elif it < 31: P(mfma(S[0], fk, q[0]))
            H("qk")
            for i in range(4): C(x, i)
            H("g3")
            E(x, 8); E(x, 9)
            sig = (x == 0 and (it & 1) and it < 31)
            if sig or (x == 0 and hook(it, x, "sync?")):
                H("pre0")
                if sig: P.wait_tag(f"kv{(it>>1)+1}")
                H("pre"); P.wait_lgkm_all()
                P("s_barrier")
            P(mfma(O[x], fv[0], S[x], None if it == 0 else O[x]))
            p = prio(it, x)
            if p is not None: P(f"s_setprio {p}")
            if x == 0:
                if it < 31: rdK(it + 1)
                if (it & 1) and (it >> 1) + 2 < 16: kv_dma(P, l16, (it >> 1) + 2)
            else:
                if it < 31: rdV(it + 1, 0)
            H("pv1")
            E(x, 10); E(x, 11); H("g4")
            E(x, 12); E(x, 13); H("g5")
            E(x, 14); E(x, 15); H("g6")
            for i in range(4, 8): C(x, i)
        if it == 31: P(mfma(O[1], fv[1], S[1] + 8, O[1]))


def fin_dma_w1(P, vsl, st, slot, tag, i):
    srd, u0 = (S_WD, 8 * st) if st < 11 else (S_WO, 8 * (st - 11))
    P(f"s_add_u32 s{S_T2}, s{S_FW}, 0x{(16*u0 + 8*i)*1024:x}")
    dma(P, vsl, srd, f"s{S_T2}", (S_FL2, slot + 1024 * i), tag=tag)


def fin_dma_b1(P, l16, st, slot, tag, t):
    P(f"s_add_u32 s{S_T2}, s{S_FB}, 0x{(t*118 + 8*st)*1024:x}")
    if st == 10:
        P(f"s_cmp_lt_u32 s{S_W}, 6")
        P(f"s_cselect_b32 s{S_T2}, s{S_T2}, 0x{OOB:x}")
    dma(P, l16, S_WS, f"s{S_T2}", (S_FL, slot + 16384 + 8192 * t), tag=tag, mods=SC1)


def kernel_F():
    P = Prog(); V = Regs(2, 255, "v"); SL = Slow()
    NP = OPT.get("np", 4)
    JIT = 16 - NP
    GPP = OPT.get("gpp", 2)
    UNI = OPT.get("uni", JIT + 2)
    HF = OPT.get("hf", UNI | 1)
    lane, l16, t0, t1, vsl = prologue_f(P, V, "LF_end")
    vz = V.alloc("vz")
    P(f"s_cmp_lg_u32 s{S_W}, 7")
    P("s_cbranch_scc1 LF_not7")
    P.cond_begin()
    if OPT.get("delay", 1):
        P(f"s_lshr_b32 s{S_T4}, s{S_J}, 1")
        P(f"s_lshl_b32 s{S_T0}, s{S_G}, 16")
        P(f"s_lshl_b32 s{S_T2}, s{S_T4}, 14")
        P(f"s_add_u32 s{S_T2}, s{S_T2}, s{S_T0}")
        P(f"s_mul_i32 m0, s{S_T4}, {16*X_STRIDE}")
        P(f"s_mov_b32 s{S_T5}, 16")
        mk_srd(P, S_X, 4, SZ["x"])
        P("LF_ldx7:")
        P(f"buffer_load_dwordx4 v{l16}, s[{S_X}:{S_X+3}], s{S_T2} offen lds", tag="c")
        P(f"s_add_u32 s{S_T2}, s{S_T2}, 1024")
        P(f"s_add_u32 m0, m0, {X_STRIDE}")
        P(f"s_sub_u32 s{S_T5}, s{S_T5}, 1")
        P(f"s_cmp_lg_u32 s{S_T5}, 0")
        P("s_cbranch_scc1 LF_ldx7")
    P(f"s_and_b32 s{S_T3}, s{S_J}, 1")
    P(f"s_cmp_eq_u32 s{S_T3}, 0")
    P(f"s_cselect_b32 s{S_WKV}, s8, s10")
    P(f"s_cselect_b32 s{S_WKV+1}, s9, s11")
    P(f"s_and_b32 s{S_WKV+1}, s{S_WKV+1}, 0xffff")
    P(f"s_mov_b32 s{S_WKV+2}, 0x{SZ['wk']:x}")
    P(f"s_mov_b32 s{S_WKV+3}, 0x20000")
    for g in range(4):
        P(f"s_mov_b32 s{S_T7}, {4096*g}")
        P(f"s_mov_b32 m0, 0x{WKV_L + 4096*g:x}")
        for i in range(4): P(f"buffer_load_dwordx4 v{l16}, s[{S_WKV}:{S_WKV+3}], s{S_T7} offen offset:{1024*i} lds", tag="c")
    P.cond_end(nowait=True)
    P("LF_not7:")
    if OPT.get("cpf", 1):
        c = V.alloc("cpf")
        P(f"s_getpc_b64 s[{S_EX}:{S_EX+1}]")
        P("LF_pc0:")
        P(f"s_lshr_b32 s{S_T3}, s2, 3")
        P(f"s_lshl_b32 s{S_T3}, s{S_T3}, 3")
        P(f"s_add_u32 s{S_T3}, s{S_T3}, s{S_W}")
        P(f"s_lshl_b32 s{S_T3}, s{S_T3}, 8")
        P(f"v_lshlrev_b32 v{c}, 7, v{lane}")
        P(f"v_add_u32 v{c}, s{S_T3}, v{c}")
        P(f"v_min_u32 v{c}, LF_last-LF_pc0, v{c}")
        P("s_mov_b64 exec, 3")
        P(f"global_load_dword v{c}, v{c}, s[{S_EX}:{S_EX+1}]", tag="cpf")
        P("s_mov_b64 exec, -1")
    P(f"v_mov_b32 v{vz}, 0")
    mk_srd(P, S_WS, 28, SZ["ws"])
    mk_srd(P, S_DBG, 26, SZ["dbg"])
    stamp(P, 0)
    vn = V.alloc("vn")
    KT = 192; vx16 = 240; vw16 = 241; vst = 242
    P(f"s_or_b32 s{S_T0}, s2, s{S_W}")
    P(f"s_cmp_lg_u32 s{S_T0}, 0")
    P("s_cbranch_scc1 LF_non")
    P.cond_begin()
    P(f"s_memrealtime s[{S_EX}:{S_EX+1}]")
    P("s_waitcnt lgkmcnt(0)")
    P(f"s_mul_i32 s{S_EX+1}, s{S_EX+1}, 0x9e3779b1")
    P(f"s_xor_b32 s{S_EX}, s{S_EX}, s{S_EX+1}")
    P(f"s_or_b32 s{S_EX}, s{S_EX}, 1")
    P(f"v_mov_b32 v{t0}, s{S_EX}")
    P("s_mov_b64 exec, 1")
    P(f"buffer_store_dword v{t0}, v{vz}, s[{S_DBG}:{S_DBG+3}], 0 offen sc1")
    P("s_mov_b64 exec, -1")
    P.cond_end()
    P("LF_non:")
    if OPT.get("delay", 1):
        P(f"s_cmp_eq_u32 s{S_W}, 7")
        P("s_cbranch_scc1 LF_is7b")
        if OPT.get("dsl"): P(f"s_sleep {OPT['dsl']}")
        LOADS["f"]()
        P("s_branch LF_not7b")
        P("LF_is7b:")
    else:
        P(f"s_cmp_lg_u32 s{S_W}, 7")
        P("s_cbranch_scc1 LF_not7b")
    P.cond_begin()
    P(f"s_lshr_b32 s{S_T0}, s{S_J}, 1")
    P(f"s_lshl_b32 s{S_T1}, s{S_T0}, 4")
    P(f"v_and_b32 v{t0}, 15, v{lane}")
    P(f"v_add_u32 v{t1}, s{S_T1}, v{t0}")
    P(f"v_mul_u32_u24 v{vx16}, {X_STRIDE}, v{t1}")
    P(f"v_lshrrev_b32 v{t1}, 4, v{lane}")
    P(f"v_lshl_add_u32 v{vx16}, v{t1}, 4, v{vx16}")
    P(f"v_lshlrev_b32 v{vw16}, 8, v{t1}")
    P(f"v_lshl_add_u32 v{vw16}, v{t0}, 3, v{vw16}")
    P(f"v_add_u32 v{vw16}, 0x{WKV_L:x}, v{vw16}")
    P(f"s_and_b32 s{S_T6}, s{S_J}, 1")
    P(f"s_cmp_eq_u32 s{S_T6}, 0")
    P(f"s_cselect_b32 s{S_T3}, 9, 8")
    P(f"s_cselect_b32 s{S_T4}, 8, 9")
    P(f"s_cselect_b32 s{S_T5}, 0x{WS_KF:x}, 0x{WS_VF:x}")
    P(f"v_lshlrev_b32 v{vst}, 4, v{t0}")
    P(f"v_lshrrev_b32 v{t0}, 1, v{t1}")
    P(f"v_lshl_add_u32 v{vst}, v{t0}, 3, v{vst}")
    P(f"v_and_b32 v{t0}, 1, v{t1}")
    P(f"v_lshlrev_b32 v{t0}, s{S_T3}, v{t0}")
    P(f"v_add_u32 v{vst}, v{vst}, v{t0}")
    P(f"s_and_b32 s{S_T1}, s{S_T0}, 1")
    P(f"s_lshl_b32 s{S_T1}, s{S_T1}, s{S_T4}")
    P(f"s_add_u32 s{S_T5}, s{S_T5}, s{S_T1}")
    P(f"s_lshr_b32 s{S_T0}, s{S_T0}, 1")
    P(f"s_lshl_b32 s{S_T1}, s{S_G}, 1")
    P(f"s_add_u32 s{S_T0}, s{S_T0}, s{S_T1}")
    P(f"s_lshl_b32 s{S_T0}, s{S_T0}, 10")
    P(f"s_add_u32 s{S_T5}, s{S_T5}, s{S_T0}")
    P("s_waitcnt vmcnt(0)")
    P(f"buffer_load_dword v{vn}, v{vz}, s[{S_DBG}:{S_DBG+3}], 0 offen sc1")
    def kv16(which):
        d = KT
        xb = [(KT+16) + 4 * i for i in range(4)]; wb = [(KT+32) + 4 * i for i in range(4)]
        def ld(ks):
            P(f"ds_read_b128 {vr(xb[ks%4],4)}, v{vx16} offset:{ks*64}")
            P(f"ds_read_b64_tr_b16 {vr(wb[ks%4],2)}, v{vw16} offset:{ks*1024}")
            P(f"ds_read_b64_tr_b16 {vr(wb[ks%4]+2,2)}, v{vw16} offset:{ks*1024+128}")
        for ks in range(3): ld(ks)
        for ks in range(16):
            a, b = (wb[ks%4], xb[ks%4]) if which == 0 else (xb[ks%4], wb[ks%4])
            P(f"v_mfma_f32_16x16x32_bf16 {vr(d,4)}, {vr(a,4)}, {vr(b,4)}, {vr(d,4) if ks else 0}")
            if ks + 3 < 16: ld(ks + 3)
        if which == 0:
            P(f"s_mov_b32 s{S_T0}, {hexf(QK_SCALE)}")
            for r in range(4): P(f"v_mul_f32 v{d+r}, s{S_T0}, v{d+r}")
    P(f"s_cmp_eq_u32 s{S_T6}, 1")
    P("s_cbranch_scc1 LF_vch")
    P.cond_begin(); kv16(0); P.cond_end()
    P("s_branch LF_kvj")
    P("LF_vch:")
    P.cond_begin(); kv16(1); P.cond_end()
    P("LF_kvj:")
    for r in range(2): P(f"v_cvt_pk_bf16_f32 v{KT+4+r}, v{KT+2*r}, v{KT+2*r+1}")
    P(f"buffer_store_dwordx2 {vr(KT+4,2)}, v{vst}, {WSR}, s{S_T5} offen sc1")
    P(f"s_lshl_b32 s{S_T0}, s{S_G}, 3")
    P(f"s_add_u32 s{S_T0}, s{S_T0}, s{S_J}")
    P(f"s_lshl_b32 s{S_T0}, s{S_T0}, 2")
    P(f"s_add_u32 s{S_T0}, s{S_T0}, 0x{FL_KV:x}")
    P("s_waitcnt vmcnt(0)")
    nonce_check(P, SL, vn, vz)
    flag_store(P, vz, t0, S_T0)
    if OPT.get("pf7", 0):
        P(f"v_lshrrev_b32 v{t0}, 4, v{lane}")
        P(f"v_mul_u32_u24 v{vx16}, 2752, v{t0}")
        P(f"v_and_b32 v{t0}, 15, v{lane}")
        P(f"v_lshl_add_u32 v{vx16}, v{t0}, 7, v{vx16}")
        P(f"v_cmp_gt_u32 vcc, 12, v{t0}")
        P(f"v_mov_b32 v{t1}, 0x{OOB:x}")
        P(f"v_cndmask_b32 v{vx16}, v{t1}, v{vx16}, vcc")
        P(f"s_lshr_b32 s{S_T0}, s2, 3")
        P(f"s_mul_i32 s{S_T0}, s{S_T0}, {4*2752}")
        P(f"s_and_b32 s{S_T1}, s2, 1")
        P(f"s_mul_i32 s{S_T1}, s{S_T1}, {44*32}")
        P(f"s_add_u32 s{S_T0}, s{S_T0}, s{S_T1}")
        for m in range(2):
            mk_srd(P, S_WKV, 16 + 2 * m, SZ["wg"])
            P(f"buffer_load_dword v{KT+m}, v{vx16}, s[{S_WKV}:{S_WKV+3}], s{S_T0} offen")
    P.cond_end(nowait=True)
    P("LF_not7b:")
    stamp(P, 1)
    rest_srds(P)
    mk_srd(P, S_GW, 22, SZ["gw"])
    P(f"s_mov_b32 s{S_C1}, {hexf(2.0**120)}")
    A = attn_setup(P, V, lane, l16, t0, t1)
    qf = A["q"]; O = A["O"]; S = A["S"]
    vfl = V.alloc("vfl", 4)
    P(f"s_lshl_b32 s{S_T0}, s{S_HP}, 1")
    P(f"s_add_u32 s{S_T0}, s{S_T0}, s{S_KH}")
    P(f"s_lshl_b32 s{S_T1}, s{S_J}, 2")
    P(f"s_add_u32 s{S_T0}, s{S_T0}, s{S_T1}")
    P(f"s_mul_i32 s{S_T1}, s{S_TILE}, 118")
    P(f"s_add_u32 s{S_T0}, s{S_T0}, s{S_T1}")
    P(f"s_lshl_b32 s{S_T0}, s{S_T0}, 10")
    P(f"s_add_u32 s{S_OD}, s{S_T0}, 0x{WS_OH + 86*1024:x}")
    def poison():
        for r in range(4): P(f"v_mov_b32 v{O[0]+r}, -1")
        P(f"buffer_store_dwordx4 {vr(O[0],4)}, v{l16}, {WSR}, s{S_OD} offen sc1", tag="poison")
    P(f"s_lshr_b32 s{S_T0}, s{S_W}, 1")
    P(f"s_lshl_b32 s{S_T0}, s{S_T0}, 3")
    P(f"s_add_u32 s{S_T0}, s{S_T0}, s{S_T1}")
    P(f"s_lshl_b32 s{S_T0}, s{S_T0}, 10")
    P(f"s_add_u32 s{S_OL}, s{S_T0}, 0x{WS_OH + 86*1024:x}")
    P(f"s_lshl_b32 s{S_FP}, s{S_G}, 8")
    P(f"s_lshl_b32 s{S_FS}, s{S_J}, 3")
    P(f"s_add_u32 s{S_FS}, s{S_FS}, s{S_W}")
    P(f"s_lshl_b32 s{S_FS}, s{S_FS}, 2")
    P(f"s_add_u32 s{S_FS}, s{S_FS}, s{S_FP}")
    P(f"s_add_u32 s{S_FS}, s{S_FS}, 0x{FL_H:x}")
    P(f"s_add_u32 s{S_FP}, s{S_FP}, 0x{FL_H:x}")
    P(f"s_lshl_b32 s{S_FW}, s{S_W}, 14")
    P(f"s_lshl_b32 s{S_T1}, s{S_J}, 7")
    P(f"s_add_u32 s{S_FW}, s{S_FW}, s{S_T1}")
    P(f"s_lshl_b32 s{S_FL2}, s{S_W}, 11")
    P(f"s_mul_i32 s{S_U0}, s{S_J}, 11")
    P(f"s_min_u32 s{S_U0}, s{S_U0}, 76")
    P(f"s_cmp_ge_u32 s{S_J}, 6")
    P(f"s_cselect_b32 s{S_NU}, 10, 11")
    vxa = xfrag_addr(P, V, "vxa", lane, t0, S_TT)
    vq = V.alloc("vq")
    P(f"s_and_b32 s{S_T0}, s{S_W}, 3")
    P(f"s_lshl_b32 s{S_T1}, s{S_T0}, 11")
    P(f"s_add_u32 s{S_T1}, s{S_T1}, 0x{QSCR:x}")
    P(f"v_add_u32 v{vq}, s{S_T1}, v{l16}")
    acc = [[V.alloc(f"acc{i}{t}", 16) for t in range(2)] for i in range(3)]
    fx = [[V.alloc(f"fx{b}{t}", 4) for t in range(2)] for b in range(2)]
    fw = [[V.alloc(f"fw{b}{i}", 4) for i in range(3)] for b in range(2)]
    P(f"s_cmp_lg_u32 s{S_KH}, 0")
    P("s_cbranch_scc1 LF_light")

    def sigstamp(it, k):
        if OPT.get("sig"):
            P(f"s_memtime s[98:99]"); P("s_waitcnt lgkmcnt(0)"); P(f"v_writelane_b32 v{vsig}, s98, {2*it+k}")
    vsig = V.alloc("vsig") if OPT.get("sig") else None

    P.cond_begin()
    vx0 = V.alloc("vx0")
    P(f"s_mul_i32 s{S_T0}, s{S_TT}, {32*X_STRIDE}")
    P(f"v_subrev_u32 v{vx0}, s{S_T0}, v{vxa}")
    vtn = tr_slice_addr(P, V, "vtn", lane, t0, t1, SLOT[0], S_HP, 8)
    P(f"s_lshl_b32 s{S_T4}, s{S_W}, 1")
    wtr = w_tr_addrs(P, V, lane, t0, t1, s_w=S_T4)
    P(f"s_mul_i32 s{S_T0}, s{S_W}, 3")
    P(f"s_mul_i32 s{S_T1}, s{S_G}, 236")
    P(f"s_add_u32 s{S_T1}, s{S_T1}, s{S_U0}")
    for i in range(3):
        P(f"s_add_u32 s{S_T2}, s{S_T0}, {i}")
        P(f"s_add_u32 s{SH[i]}, s{S_T1}, s{S_T2}")
        P(f"s_lshl_b32 s{SH[i]}, s{SH[i]}, 10")
        P(f"s_add_u32 s{SH[i]}, s{SH[i]}, 0x{WS_OH:x}")
        P(f"s_cmp_lt_u32 s{S_T2}, s{S_NU}")
        P(f"s_cselect_b32 s{SH[i]}, s{SH[i]}, 0x{OOB:x}")
    vpf = S[0]
    P(f"v_bfe_u32 v{t0}, v{lane}, 4, 1")
    P(f"v_lshrrev_b32 v{t1}, 5, v{lane}")
    P(f"v_lshl_add_u32 v{t0}, v{t1}, 7, v{t0}")
    P(f"v_mul_u32_u24 v{vpf}, 2752, v{t0}")
    P(f"v_and_b32 v{t0}, 15, v{lane}")
    P(f"v_lshl_add_u32 v{vpf}, v{t0}, 7, v{vpf}")
    P(f"v_cmp_gt_u32 vcc, 12, v{t0}")
    P(f"v_mov_b32 v{t1}, 0x{OOB:x}")
    P(f"v_cndmask_b32 v{vpf}, v{t1}, v{vpf}, vcc")
    P(f"s_lshr_b32 s{S_T0}, s2, 3")
    P(f"s_lshl_b32 s{S_T0}, s{S_T0}, 1")
    P(f"s_add_u32 s{S_T0}, s{S_T0}, s{S_HP}")
    P(f"s_mul_i32 s{S_T0}, s{S_T0}, {2*2752}")
    P(f"s_and_b32 s{S_T1}, s2, 1")
    P(f"s_mul_i32 s{S_T1}, s{S_T1}, {44*32}")
    P(f"s_add_u32 s{S_T6}, s{S_T0}, s{S_T1}")
    def pf(blk, half):
        P(f"s_add_u32 s{S_T5}, s{S_T6}, {128*2752*blk}")
        if half: P("s_mov_b64 exec, 0xffffffff")
        P(f"buffer_load_dword v{S[1]+blk}, v{vpf}, s[{S_WM}:{S_WM+3}], s{S_T5} offen", tag="pf")
        if half: P("s_mov_b64 exec, -1")
    PF = OPT.get("pf", 0)
    if PF in (1, 4): pf(0, True)
    if PF == 2: pf(0, False)
    P.wait_tag("q")
    P("s_barrier")
    stamp(P, 2)
    if PF == 1: pf(1, False)
    if PF == 2: pf(2, False)
    if PF == 3: pf(0, False)
    QD = 6
    xb = [acc[1][0] + 4 * i for i in range(QD)]; wb = [acc[2][0] + 4 * i for i in range(QD)]
    assert acc[1][1] == acc[1][0] + 16 and acc[2][1] == acc[2][0] + 16
    def q_loads(ks):
        o = SLOT[ks // 12] - SLOT[0] + (ks % 12) * 2048
        P(f"ds_read_b128 {vr(xb[ks%QD],4)}, v{vxa} offset:{ks*32}")
        P(f"ds_read_b64_tr_b16 {vr(wb[ks%QD],2)}, v{vtn} offset:{o}")
        P(f"ds_read_b64_tr_b16 {vr(wb[ks%QD]+2,2)}, v{vtn} offset:{o+512}")
    for ks in range(QD - 1): q_loads(ks)
    for ks in range(32):
        P(mfma(acc[0][0], wb[ks%QD], xb[ks%QD], acc[0][0] if ks else None))
        if ks in (11, 23):
            stamp(P, 11 if ks == 11 else 13)
            P("s_barrier")
        if ks + QD - 1 < 32: q_loads(ks + QD - 1)
        if ks == OPT.get("pk", 20):
            P(f"s_mov_b32 s{S_T5}, 0x{FL_KV:x}")
            P(f"buffer_load_dword v{vn}, v{vz}, s[{S_DBG}:{S_DBG+3}], 0 offen sc1")
            P(flag_load(vfl, 4, l16, f"s{S_T5}"))
    for r in range(8): P(f"v_cvt_pk_bf16_f32 v{qf+r}, v{acc[0][0]+2*r}, v{acc[0][0]+2*r+1}")
    P(f"ds_write_b128 v{vq}, {vr(qf,4)}")
    P(f"ds_write_b128 v{vq}, {vr(qf+4,4)} offset:1024")
    nonce_check(P, SL, vn, vz)
    spin_check(P, SL, [flag_load(vfl, 4, l16, f"s{S_T5}")], flag_cmp(vfl, 4, t0))
    kv_dma(P, l16, 0)
    P(f"s_add_u32 s{S_T2}, s{S_T2}, 32768")
    dma(P, l16, S_WS, f"s{S_T2}", (S_KVLDS, 4096), tag="kv0", mods=SC1)
    def gu_reads(ks):
        s, kk = ks // 2, ks % 2
        so = SLOT[s % 3] - SLOT[0] + kk * 6144
        L = [f"ds_read_b128 {vr(fx[ks%2][0],4)}, v{vx0} offset:{ks*32}"]
        for i in range(3):
            f = fw[ks % 2][i]
            L += [f"ds_read_b64_tr_b16 {vr(f,2)}, v{wtr[i]} offset:{so}", f"ds_read_b64_tr_b16 {vr(f+2,2)}, v{wtr[i]} offset:{so+1536}"]
            if i == 0: L.append(f"ds_read_b128 {vr(fx[ks%2][1],4)}, v{vx0} offset:{ks*32 + 32*X_STRIDE}")
        return L
    def gu_groups(ks):
        R = gu_reads(ks + 1) if ks < 31 else []
        G = []
        for m in range(6):
            i, t = m // 2, m % 2
            G.append([mfma(acc[i][t], fw[ks % 2][i], fx[ks % 2][t], acc[i][t] if ks else None)] + R[2 * m: 2 * m + 2])
        return G
    P.wait_lgkm_all()
    stamp(P, 14)
    P("s_barrier")
    stamp(P, 3)
    for x in gu_reads(0): P(x)
    poison()
    for ks in range(2 * NP - 1):
        if ks % 2 == 1:
            P.wait_lgkm_all(); P("s_barrier")
        for g in gu_groups(ks):
            for x in g: P(x)
    P.wait_tag("kv0"); P.wait_lgkm_all(); P("s_barrier")
    stamp(P, 4)
    gq = []
    tmp = fx[0][0]; cst = fx[1][0]
    assert fx[0][1] == fx[0][0] + 4
    gel = []
    def load_window(k):
        n = 2 * (NP + k) - 1
        assert not gq
        gq.extend(gu_groups(n))
        if n < 31: gq.extend(gu_groups(n + 1))
    def hookH(it, x, pos):
        if pos == "sync?": return 1 <= it <= JIT
        if pos == "pre0": sigstamp(it, 0); return
        if pos == "pre": sigstamp(it, 1); return
        if pos == "start": load_window(0); return
        midprio(it, x, pos)
        if pos == "pv1" and x == 0 and 1 <= it <= JIT: load_window(it)
        if pos in ("g1", "g2", "g3", "g4", "g5", "g6"):
            if gq and not (it == 0 and pos in ("g1", "g3", "g5") and False):
                for t in gq.pop(0): P(t)
                if not gq and it == JIT and x == 1:
                    L = [f"v_mov_b32 v{cst}, {hexf(GELU_C1)}", f"v_mov_b32 v{cst+1}, {hexf(GELU_C1)}",
                         f"v_mov_b32 v{cst+2}, {hexf(GELU_C2)}", f"v_mov_b32 v{cst+3}, {hexf(GELU_C2)}"]
                    k = 0
                    for i in range(3):
                        for t in range(2):
                            d = fw[k % 2][k // 2]; k += 1
                            L += gelu_tile_pk(acc[i][t], d, tmp, cst)
                            if t == 1: L.append(f"s_add_u32 s{SH[i]}, s{SH[i]}, {118*1024}")
                            L.append(f"buffer_store_dwordx4 {vr(d,4)}, v{l16}, {WSR}, s{SH[i]} offen sc1")
                    ns = 3 + 12 * (UNI - JIT - 1)
                    n = (len(L) + ns - 1) // ns
                    gel.extend(L[i:i + n] for i in range(0, len(L), n))
            elif gel:
                for t in gel.pop(0): P(t, tag="hst" if "store" in t else None)
    PM = OPT.get("pm", 1)
    def prioH(it, x):
        if PM == 1: return 3 if (it == 0 and x == 0) else None
        if PM == 3: return 3 - 2 * x
        if PM == 5: return (3 - 2 * x) if it < JIT else 3
        if PM == 6: return 3 if it >= JIT else None
        return None
    def prioL(it, x):
        if PM in (2, 6): return 1 if (it == 0 and x == 0) else None
        if PM == 3: return 3 - 2 * x
        if PM == 5: return (3 - 2 * x) if it < JIT else 0
        return None
    def midprio(it, x, pos):
        if PM in (3, 5) and pos == "pv2" and (PM == 3 or it <= JIT): P(f"s_setprio {2 * x}")
    attention(P, A, l16, range(0, UNI), hookH, prioH)
    assert not gq and not gel, (len(gq), len(gel))
    P.cond_end(keep=True)
    P("s_branch LF_join")
    for n in ("vx0", "vtn", "wtr0", "wtr1", "wtr2"): V.release(n)

    P("LF_light:")
    P.cond_begin()
    pats = w_patterns(P, V, lane, t0, t1)
    P(f"s_lshl_b32 s{S_T0}, s{S_HP}, 1")
    P(f"s_mul_i32 s{S_WOFF}, s{S_T0}, {8*2752}")
    P(f"s_lshl_b32 s{S_T1}, s{S_U0}, 5")
    P(f"s_add_u32 s{S_WOFF}, s{S_WOFF}, s{S_T1}")
    P(f"s_mul_i32 s{S_WLDS}, s{S_T0}, 3072")
    P(f"s_mul_i32 s{S_T1}, s{S_TT}, {UP_OFF}")
    P(f"s_add_u32 s{S_WLDS}, s{S_WLDS}, s{S_T1}")
    def w_dma1(s, k):
        g, i = k // 3, k % 3
        if i == 0: P(f"s_add_u32 s{S_T3}, s{S_WOFF}, 0x{(32*s + 8*g)*2752:x}")
        dma(P, pats[i], S_WM, f"s{S_T3}", (S_WLDS, SLOT[s % 3] + 3072 * g + 1024 * i), tag=f"w{s}")
    def w_dma6(s):
        for k in range(6): w_dma1(s, k)
    vgw = acc[0][1]
    dma(P, l16, S_GW, "0", (None, GWL), tag="q")
    P(f"v_lshrrev_b32 v{t0}, 5, v{lane}")
    P(f"v_lshlrev_b32 v{vgw}, 4, v{t0}")
    P(f"s_lshl_b32 s{S_T0}, s{S_HP}, 9")
    P(f"v_add_u32 v{vxa}, s{S_T0}, v{vxa}")
    P(f"s_add_u32 s{S_T0}, s{S_T0}, 0x{GWL:x}")
    P(f"v_add_u32 v{vgw}, s{S_T0}, v{vgw}")
    P(f"s_lshl_b32 s{S_T0}, s{S_W}, 8")
    P(f"s_add_u32 s{S_T0}, s{S_T0}, 0x{ONES - 1024:x}")
    P(f"v_lshlrev_b32 v{t0}, 2, v{lane}")
    P(f"v_add_u32 v{t0}, s{S_T0}, v{t0}")
    P(f"v_mov_b32 v{t1}, 0x3f803f80")
    P(f"v_lshrrev_b32 v1, 2, v{lane}")
    P(f"v_and_b32 v1, 11, v1")
    P(f"v_cmp_eq_u32 vcc, 0, v1")
    P(f"v_cndmask_b32 v{t1}, 0, v{t1}, vcc")
    P(f"ds_write_b32 v{t0}, v{t1}")
    P(f"ds_write_b32 v{t0}, v{t1} offset:1024")
    P.wait_tag("q")
    P("s_barrier")
    stamp(P, 2)
    stamp(P, 11)
    P("s_barrier")
    w_dma6(0)
    stamp(P, 13)
    P("s_barrier")
    w_dma6(1)
    poison()
    za = acc[0][0]; zx = [acc[1][0] + 4 * i for i in range(4)]; zg = [acc[2][0] + 4 * i for i in range(4)]
    def zjob():
        for r in range(4): P(f"v_mov_b32 v{za+r}, 0")
        def zld(k):
            P(f"ds_read_b128 {vr(zx[k%4],4)}, v{vxa} offset:{k*32}")
            P(f"ds_read_b128 {vr(zg[k%4],4)}, v{vgw} offset:{k*32}")
        for k in range(3): zld(k)
        for k in range(16):
            for r in range(4): P(f"v_dot2c_f32_bf16 v{za+r}, v{zx[k%4]+r}, v{zg[k%4]+r}")
            if k + 3 < 16: zld(k + 3)
        P("s_nop 2")
        P(f"v_add_f32 v{za}, v{za}, v{za+1}")
        P(f"v_add_f32 v{za+2}, v{za+2}, v{za+3}")
        P(f"v_add_f32 v{za}, v{za}, v{za+2}")
        P(f"s_and_b32 s{S_T0}, s{S_W}, 3")
        P(f"s_lshl_b32 s{S_T0}, s{S_T0}, 8")
        P(f"s_add_u32 s{S_T0}, s{S_T0}, 0x{MISC:x}")
        P(f"v_lshlrev_b32 v{t0}, 2, v{lane}")
        P(f"v_add_u32 v{t0}, s{S_T0}, v{t0}")
        P(f"ds_write_b32 v{t0}, v{za}")
    P(f"s_mov_b32 s{S_T6}, 0x{FL_KV:x}")
    def kv_both(c):
        kv_dma(P, l16, c)
        P(f"s_sub_u32 s{S_T2}, s{S_T2}, 32768")
        dma(P, l16, S_WS, f"s{S_T2}", (S_KVLDS, (8192 * c - 4096) & 0xffffffff), tag=f"kv{c}", mods=SC1)
    def poll_issue():
        P(f"buffer_load_dword v{vn}, v{vz}, s[{S_DBG}:{S_DBG+3}], 0 offen sc1")
        P(flag_load(vfl, 4, l16, f"s{S_T6}"))
    for s in range(0, NP + 1):
        P.wait_tag(f"w{s}")
        P.wait_lgkm_all()
        if s == 0: stamp(P, 14)
        P("s_barrier")
        if s == 0:
            stamp(P, 3)
            P(f"ds_read_b128 {vr(qf,4)}, v{vq} offset:1024")
            P(f"ds_read_b128 {vr(qf+4,4)}, v{vq}")
        if s == NP: kv_both(1)
        if s < NP: w_dma6(s + 2)
        if s == 0:
            P(f"buffer_load_dword v{vn}, v{vz}, s[{S_DBG}:{S_DBG+3}], 0 offen sc1")
            zjob()
    assert NP >= 1
    stamp(P, 4)
    dq = []
    def hookL(it, x, pos):
        if pos == "sync?": return 1 <= it <= JIT
        if pos == "pre0": sigstamp(it, 0); return
        if pos == "pre":
            if NP + it < 16: P.wait_tag(f"w{NP+it}")
            sigstamp(it, 1); return
        if (pos == "start" or (pos == "pv1" and x == 0 and it >= 1)) and NP + it + 2 < 16:
            assert not dq
            for k in range(6): dq.append(lambda s=NP + it + 2, k=k: w_dma1(s, k))
        midprio(it, x, pos)
        if pos in ("pv2", "qk", "pv1") and dq: dq.pop(0)()
        if pos == "g2" and x == 1 and it in (3, 5, 7, 9) and OPT.get("wpf", 1):
            k = (it >> 1) - 1
            P(f"s_cmp_lg_u32 s{S_W}, {4+k}")
            P(f"s_cbranch_scc1 LF_wp{k}")
            P.cond_begin()
            P(f"buffer_load_dword v{vgw+4}, v{vgw+5}, s[{S_EX-0}:{S_EX+3}], 0 offen".replace(f"s[{S_EX}:{S_EX+3}]", f"s[{S_PFS}:{S_PFS+3}]"))
            P.cond_end(nowait=True)
            P(f"LF_wp{k}:")
    S_PFS = S_WKV
    P(f"s_mov_b32 s{S_PFS+3}, 0x20000")
    P(f"s_lshr_b32 s{S_T0}, s2, 3")
    P(f"s_lshl_b32 s{S_T0}, s{S_T0}, 2")
    P(f"s_and_b32 s{S_T1}, s{S_W}, 3")
    P(f"s_add_u32 s{S_T0}, s{S_T0}, s{S_T1}")
    P(f"s_cmp_lt_u32 s{S_T0}, 86")
    P(f"s_cselect_b32 s{S_PFS}, s{S_WD}, s{S_WO}")
    P(f"s_cselect_b32 s{S_PFS+1}, s{S_WD+1}, s{S_WO+1}")
    P(f"s_cselect_b32 s{S_PFS+2}, s{S_WD+2}, s{S_WO+2}")
    P(f"s_cselect_b32 s{S_T1}, 0, 86")
    P(f"s_sub_u32 s{S_T0}, s{S_T0}, s{S_T1}")
    P(f"s_lshl_b32 s{S_T0}, s{S_T0}, 14")
    P(f"s_and_b32 s{S_T1}, s2, 1")
    P(f"s_lshl_b32 s{S_T1}, s{S_T1}, 9")
    P(f"s_add_u32 s{S_T0}, s{S_T0}, s{S_T1}")
    P(f"v_lshrrev_b32 v{t0}, 2, v{lane}")
    P(f"v_lshlrev_b32 v{t0}, 10, v{t0}")
    P(f"v_and_b32 v{t1}, 3, v{lane}")
    P(f"v_lshl_add_u32 v{t0}, v{t1}, 7, v{t0}")
    P(f"v_add_u32 v{vgw+5}, s{S_T0}, v{t0}")
    attention(P, A, l16, range(0, UNI), hookL, prioL)
    assert not dq
    P.cond_end(keep=True)
    P("LF_join:")
    P.join()
    for n in ["wpat0", "wpat1", "wpat2", "vxa", "vq"] + [f"acc{i}{t}" for i in range(3) for t in range(2)] + \
             [f"fx{b}{t}" for b in range(2) for t in range(2)] + [f"fw{b}{i}" for b in range(2) for i in range(3)]: V.release(n)
    stamp(P, 5)

    facc = V.alloc("facc", 16); facc1 = V.alloc("facc1", 16); fa = V.alloc("ffa", 8)
    NB = OPT.get("nb", 6)
    hb = [V.alloc(f"hb{i}", 4) for i in range(NB)]; fb = hb[0]
    vl4 = V.alloc("vl4"); vg = V.alloc("vg"); zt = V.alloc("zt", 2)
    va0 = tr_slice_addr(P, V, "fa0", lane, t0, t1, 0, S_KH, 4)
    vA = [[va0, V.alloc("fa0h")], [V.alloc("fa1"), V.alloc("fa1h")]]
    P(f"s_lshl_b32 s{S_T1}, s{S_HP}, 5")
    P(f"v_xor_b32 v{va0}, s{S_T1}, v{va0}")
    P(f"s_lshr_b32 s{S_T0}, s{S_W}, 1")
    P(f"s_lshl_b32 s{S_T1}, s{S_T0}, 11")
    P(f"v_add_u32 v{va0}, s{S_T1}, v{va0}")
    P(f"v_xor_b32 v{vA[1][0]}, 64, v{va0}")
    P(f"v_add_u32 v{vA[0][1]}, 0x10000, v{va0}")
    P(f"v_add_u32 v{vA[1][1]}, 0x10000, v{vA[1][0]}")
    P(f"s_mul_i32 s{S_FB}, s{S_TILE}, 118")
    P(f"s_add_u32 s{S_FB}, s{S_FB}, s{S_T0}")
    P(f"s_lshl_b32 s{S_FB}, s{S_FB}, 10")
    P(f"s_add_u32 s{S_FB}, s{S_FB}, 0x{WS_OH:x}")
    P(f"v_lshlrev_b32 v{vl4}, 2, v{lane}")
    P(f"s_lshl_b32 s{S_T0}, s{S_TT}, 8")
    P(f"s_add_u32 s{S_T0}, s{S_T0}, 0x{MISC:x}")
    P(f"v_add_u32 v{t0}, s{S_T0}, v{vl4}")
    P(f"ds_read_b32 v{zt}, v{t0}")
    P(f"ds_read_b32 v{zt+1}, v{t0} offset:512")
    P(f"v_add_f32 v{zt}, v{zt}, v{zt+1}")
    P(f"v_mov_b32 v{zt+1}, v{zt}")
    P(f"v_permlane32_swap_b32 v{zt}, v{zt+1}")
    P(f"v_add_f32 v{zt}, v{zt}, v{zt+1}")
    P(f"v_mul_f32 v{t0}, {hexf(-LOG2E)}, v{zt}")
    P(f"v_exp_f32 v{t0}, v{t0}")
    P(f"v_add_f32 v{t0}, 1.0, v{t0}")
    P(f"v_rcp_f32 v{vg}, v{t0}")
    V.release("zt")
    BSLOT = lambda b: ((b % 8) if b < 11 else (b - 8)) * 16384
    def a_reads(r, d):
        o = (4 * r % 64) * 2048; hi = o >> 16; o &= 0xffff
        assert r // 2 in vis, (r, vis)
        rd_done[r // 2] = rd_done.get(r // 2, 0) + 1
        P(f"ds_read_b64_tr_b16 {vr(fa+4*d,2)}, v{vA[d][hi]} offset:{o}")
        P(f"ds_read_b64_tr_b16 {vr(fa+4*d+2,2)}, v{vA[d][hi]} offset:{o+1024}")
    def h_load(r):
        P(f"s_add_u32 s{S_T2}, s{S_FB}, {4096*r}")
        if r == 21:
            P(f"s_cmp_lt_u32 s{S_W}, 4")
            P(f"s_cselect_b32 s{S_T2}, s{S_T2}, 0x{OOB:x}")
        P(f"buffer_load_dwordx4 {vr(hb[r%NB],4)}, v{l16}, {WSR}, s{S_T2} offen sc1")
    dq = []; vis = set(); issued = {}; rd_done = {}; nxt = dict(b=0, r=0, d=0, pre=False)
    def qW(b):
        def f(i):
            fin_dma_w1(P, vsl, b, BSLOT(b), f"fw{b}", i); issued[b] = issued.get(b, 0) + 1
        for i in range(2): dq.append(lambda i=i: f(i))
    CH = OPT.get("ch", HF + 3); R0 = OPT.get("r0", 2 * (CH + 2))
    DBL = OPT.get("dbl", 64)
    def mstep():
        r, d = nxt["r"], nxt["d"]
        if r >= 22: return
        if not nxt["pre"]:
            a_reads(0, 0); a_reads(0, 1); nxt["pre"] = True; return
        P(mfma([facc, facc1][d], fa + 4 * d, hb[r % NB], [facc, facc1][d] if r else None))
        if r + 1 < 22: a_reads(r + 1, d)
        if d == 1 and r + NB < 22: dq.insert(0, lambda r=r: h_load(r + NB))
        nxt["d"] = 1 - d; nxt["r"] = r + d
    def hookU(it, x, pos):
        sig = (x == 0 and (it & 1)); ph = 2 * it + x
        if pos == "sync?": return False
        if pos == "pre0": sigstamp(it, 0); return
        if pos == "pre":
            if it == HF: P.wait_vm_all()
            need = [b for b in issued if issued[b] == 2 and b not in vis and (b >= 11 and it == 29 and False or b <= min(10, (max(0, ph + 6 - R0) * (2 if ph + 4 >= DBL else 1)) // 2))]
            if need: P.wait_tag(*[f"fw{b}" for b in need]); vis.update(need)
            sigstamp(it, 1); return
        if pos == "pv1" and sig:
            if it == HF:
                nonce_check(P, SL, vn, vz)
                flag_store(P, vz, t0, S_FS)
            while it >= HF and nxt["b"] < 15:
                b = nxt["b"]; prev = {8: 0, 9: 1, 10: 2, 11: 3, 12: 4, 13: 5, 14: 6}.get(b)
                if prev is not None and rd_done.get(prev, 0) < 4: break
                qW(b); nxt["b"] += 1
        if pos == "pv2" and x == 0 and it == CH - 1: P(flag_load(vfl, 1, vl4, f"s{S_FP}"))
        if pos == "pv2" and x == 0 and it == CH:
            spin_check(P, SL, [flag_load(vfl, 1, vl4, f"s{S_FP}")], flag_cmp(vfl, 1, t0))
            for r in range(NB): dq.insert(r, lambda r=r: h_load(r))
        elif dq and (pos in ("pv2", "qk") or (pos in ("g2", "g5") and it in (CH, CH + 1)) or (pos == "g5" and OPT.get("d3"))): dq.pop(0)()
        if (pos in ("g1", "g4") and ph >= R0) or (pos == "g4" and ph == R0 - 1) or (pos in ("g3", "g6") and ph >= DBL): mstep()
        if pos == "g6" and it == 31 and x == 1:
            assert nxt["b"] == 15, nxt
            print("rounds left for tail:", 22 - nxt["r"])
    def prioU(it, x):
        if not OPT.get("prio", 1): return None
        return 3 - (2 * ((it + 1) & 1) + x)
    attention(P, A, l16, range(UNI, 32), hookU, prioU)
    assert not dq
    stamp(P, 6)
    if OPT.get("sig"):
        P(f"s_lshl_b32 s98, s2, 11")
        P(f"s_lshl_b32 s99, s{S_W}, 8")
        P(f"s_add_u32 s98, s98, s99")
        P(f"s_add_u32 s98, s98, 0x{WS_STAMP + (1<<20):x}")
        P(f"buffer_store_dword v{vsig}, v{vl4}, {WSR}, s98 offen")
    P("s_setprio 0")
    va = V.alloc("cva"); vb = V.alloc("cvb"); fb = V.alloc("cvon")
    P(f"s_mul_i32 s{S_T0}, s{S_W}, 3072")
    P(f"s_add_u32 s{S_T0}, s{S_T0}, 114688")
    P(f"v_add_u32 v{va}, s{S_T0}, v{l16}")
    P(f"s_xor_b32 s{S_T0}, s{S_W}, 4")
    P(f"s_mul_i32 s{S_T0}, s{S_T0}, 3072")
    P(f"s_add_u32 s{S_T0}, s{S_T0}, 114688")
    P(f"v_add_u32 v{vb}, s{S_T0}, v{l16}")
    P(f"v_mov_b32 v{O[1]+7}, v{O[1]}")
    for i in range(3): P(f"ds_write_b128 v{va}, {vr(O[1]+4+4*i,4)} offset:{1024*i}")
    P.wait_tag("fw11", "fw12", "fw13", "fw14"); P.wait_lgkm_all()
    P("s_barrier")
    for i in range(3): P(f"ds_read_b128 {vr(O[1]+4+4*i,4)}, v{vb} offset:{1024*i}")
    P(f"v_add_f32 v{O[0]}, v{O[0]}, v{O[1]+7}")
    for r in range(8, 16): P(f"v_add_f32 v{O[0]+r}, v{O[0]+r}, v{O[1]+r}")
    P(f"v_mov_b32 v{t1}, 0x207")
    P(f"v_cmp_nle_f32 vcc, {hexf(2.0**-90)}, v{O[0]}")
    P(f"v_cmp_nge_f32 s[{S_PM}:{S_PM+1}], {'s' + str(S_T0)}, v{O[0]}".replace(f"s{S_T0}", f"s{S_C1}"))
    P(f"s_or_b64 vcc, vcc, s[{S_PM}:{S_PM+1}]")
    for r in range(8, 16):
        P(f"v_cmp_class_f32 s[{S_PM}:{S_PM+1}], v{O[0]+r}, v{t1}")
        P(f"s_or_b64 vcc, vcc, s[{S_PM}:{S_PM+1}]")
    if OPT.get("forcefb"): P("s_mov_b64 vcc, -1")
    P("s_cmp_lg_u64 vcc, 0")
    P("s_cbranch_scc1 LF_fb")
    P("LF_fbr:")
    P(f"v_rcp_f32 v{t0}, v{O[0]}")
    P(f"v_mul_f32 v{t0}, v{t0}, v{vg}")
    for r in range(8, 16): P(f"v_mul_f32 v{O[0]+r}, v{O[0]+r}, v{t0}")
    for r in range(4): P(f"v_cvt_pk_bf16_f32 v{O[1]+r}, v{O[0]+8+2*r}, v{O[0]+9+2*r}")
    for r in range(4): P(f"v_min_u32 v{O[1]+r}, 0xfffffffe, v{O[1]+r}")
    P(f"buffer_store_dwordx4 {vr(O[1],4)}, v{l16}, {WSR}, s{S_OD} offen sc1", tag="ost")
    stamp(P, 7)
    while nxt["r"] < 22: mstep(); assert not dq
    P(f"v_sub_f32 v{t1}, 1.0, v{vg}")
    for r in range(16): P(f"v_mul_f32 v{facc+r}, v{facc+r}, v{t1}")
    for r in range(16): P(f"v_mul_f32 v{facc1+r}, v{facc1+r}, v{t1}")
    K4, V8, ON, CM = A["fk"], A["fv"][0], fb, O[1]
    assert A["fv"][1] == V8 + 4
    nl = "\n    "
    fbk = f"""LF_fb:
    s_waitcnt vmcnt(0) lgkmcnt(0)
    v_mov_b32 v{t0}, 0xff800000
    s_mov_b32 s{S_T0}, 0x{WS_KF:x}
LF_fb1:
    buffer_load_dwordx4 {vr(K4,4)}, v{l16}, {WSR}, s{S_T0} offen sc1
    s_waitcnt vmcnt(0)
    {mfma(S[0], K4, qf)}
    s_nop 15
    {nl.join(f"v_max3_f32 v{t0}, v{S[0]+2*r}, v{S[0]+2*r+1}, v{t0}" for r in range(8))}
    s_add_u32 s{S_T0}, s{S_T0}, 1024
    s_cmp_lt_u32 s{S_T0}, 0x{WS_KF + 65536:x}
    s_cbranch_scc1 LF_fb1
    v_mov_b32 v{t1}, v{t0}
    s_nop 1
    v_permlane32_swap_b32 v{t0}, v{t1}
    s_nop 1
    v_max_f32 v{t0}, v{t0}, v{t1}
    {nl.join(f"v_sub_f32 v{CM+r}, 0, v{t0}" for r in range(16))}
    {nl.join(f"v_mov_b32 v{O[0]+r}, 0" for r in range(16))}
    v_lshrrev_b32 v{t0}, 5, v{lane}
    v_lshlrev_b32 v{t0}, 8, v{t0}
    v_and_b32 v{t1}, 15, v{lane}
    v_lshl_add_u32 v{t0}, v{t1}, 4, v{t0}
    v_and_b32 v{t1}, 16, v{lane}
    v_cmp_eq_u32 vcc, 0, v{t1}
    v_mov_b32 v{t1}, 0x{OOB:x}
    s_nop 1
    v_cndmask_b32 v{t0}, v{t0}, v{t1}, vcc
    v_and_b32 v{t1}, 27, v{lane}
    v_cmp_eq_u32 vcc, 0, v{t1}
    v_mov_b32 v{ON}, 0x3f803f80
    s_nop 1
    v_cndmask_b32 v{ON}, 0, v{ON}, vcc
    s_mov_b32 s{S_T0}, 0x{WS_KF:x}
LF_fb2:
    s_add_u32 s{S_T1}, s{S_T0}, 0x{WS_VF - WS_KF:x}
    buffer_load_dwordx4 {vr(K4,4)}, v{l16}, {WSR}, s{S_T0} offen sc1
    buffer_load_dwordx4 {vr(V8,4)}, v{t0}, {WSR}, s{S_T1} offen sc1
    buffer_load_dwordx4 {vr(V8+4,4)}, v{t0}, {WSR}, s{S_T1} offen offset:512 sc1
    s_waitcnt vmcnt(0)
    {mfma(S[0], K4, qf, CM)}
    {nl.join(f"v_or_b32 v{V8+r}, v{V8+r}, v{ON}" for r in range(8))}
    s_nop 7
    {nl.join(f"v_exp_f32 v{S[0]+r}, v{S[0]+r}" for r in range(16))}
    s_nop 1
    {nl.join(f"v_cvt_pk_bf16_f32 v{S[1]+r}, v{S[0]+2*r}, v{S[0]+2*r+1}" for r in range(8))}
    s_nop 1
    {mfma(O[0], V8, S[1], O[0])}
    {mfma(O[0], V8+4, S[1]+4, O[0])}
    s_add_u32 s{S_T0}, s{S_T0}, 1024
    s_cmp_lt_u32 s{S_T0}, 0x{WS_KF + 65536:x}
    s_cbranch_scc1 LF_fb2
    s_nop 15
    s_branch LF_fbr
"""
    SL.add(fbk)
    for n in ("Sa", "Sb", "Oa", "qf", "fk", "fv1", "fv2"): V.release(n)
    ob = V.alloc("ob", 32); wa = [V.alloc(f"wa{u}", 8) for u in range(8)]
    P(f"s_add_u32 s{S_T6}, s{S_OL}, 4096")
    def oloads(g): return [f"buffer_load_dwordx4 {vr(ob+16*g+4*u,4)}, v{l16}, {WSR}, s{[S_OL,S_T6][g]} offen offset:{1024*u} sc1" for u in range(4)]
    def ocheck(g):
        b = ob + 16 * g
        L = [f"v_max3_u32 v{t0}, v{b}, v{b+1}, v{b+2}"]
        for k in range(3, 15, 2): L.append(f"v_max3_u32 v{t0}, v{b+k}, v{b+k+1}, v{t0}")
        L += [f"v_max_u32 v{t0}, v{b+15}, v{t0}", f"v_cmp_eq_u32 vcc, -1, v{t0}"]
        return L
    vt0, vt1 = vA[0][1], vA[1][1]
    P(f"s_lshr_b32 s{S_T0}, s{S_W}, 1")
    P(f"s_mul_i32 s{S_T0}, s{S_T0}, {16384 - 2048}")
    P(f"s_add_u32 s{S_T0}, s{S_T0}, {3*16384}")
    P(f"v_add_u32 v{vt0}, s{S_T0}, v{vA[0][0]}")
    P(f"v_add_u32 v{vt1}, s{S_T0}, v{vA[1][0]}")
    for u in range(8):
        for d, v in ((0, vt0), (1, vt1)):
            P(f"ds_read_b64_tr_b16 {vr(wa[u]+4*d,2)}, v{v} offset:{u*2048}")
            P(f"ds_read_b64_tr_b16 {vr(wa[u]+4*d+2,2)}, v{v} offset:{u*2048+1024}")
    vw = [V.alloc(f"vw{i}") for i in range(3)]; vrd = V.alloc("vrd"); vo = V.alloc("vo")
    def sbase(dst, w):
        P(f"s_mul_i32 s{S_T1}, s{w}, 6144")
        P(f"v_add_u32 v{dst}, s{S_T1}, v{l16}")
    sbase(vrd, S_W)
    for b in range(1, 4):
        P(f"s_xor_b32 s{S_T0}, s{S_W}, {b << 1}")
        sbase(vw[b - 1], S_T0)
    P(f"v_and_b32 v{vo}, 31, v{lane}")
    P(f"v_lshlrev_b32 v{vo}, 10, v{vo}")
    P(f"v_lshrrev_b32 v{t1}, 5, v{lane}")
    P(f"v_lshl_add_u32 v{vo}, v{t1}, 4, v{vo}")
    P(f"s_lshl_b32 s{S_T0}, s{S_TILE}, 15")
    P(f"s_lshl_b32 s{S_T1}, s{S_J}, 7")
    P(f"s_add_u32 s{S_T0}, s{S_T0}, s{S_T1}")
    P(f"s_lshl_b32 s{S_T1}, s{S_KH}, 6")
    P(f"s_add_u32 s{S_T0}, s{S_T0}, s{S_T1}")
    P(f"s_lshl_b32 s{S_T1}, s{S_HP}, 5")
    P(f"s_add_u32 s{S_T0}, s{S_T0}, s{S_T1}")
    vp = V.alloc("vp"); vpa = V.alloc("vpa")
    P(f"v_lshlrev_b32 v{vpa}, 10, v{lane}")
    probe = ["s_mov_b64 exec, 0xff", f"buffer_load_dword v{vp}, v{vpa}, {WSR}, s{S_OL} offen offset:1020 sc1"]
    pchk = [f"v_cmp_eq_u32 vcc, -1, v{vp}", "s_mov_b64 exec, -1"]
    if OPT.get("tbar", 1): P.wait_lgkm_all(); P("s_barrier")
    for x in probe: P(x)
    spin_check(P, SL, probe, pchk, sleep=OPT.get("psl", 1))
    stamp(P, 8)
    for g in range(2):
        for x in oloads(g): P(x)
    for g in range(2):
        spin_check(P, SL, oloads(g), ocheck(g), sleep=2)
        for u in range(4 * g, 4 * g + 4):
            P(mfma(facc1, wa[u] + 4, ob + 4 * u, facc1))
            P(mfma(facc, wa[u], ob + 4 * u, facc))
    stamp(P, 9)
    for b, src in ((2, facc1), (3, facc1 + 8), (1, facc + 8)):
        for i in range(2): P(f"ds_write_b128 v{vw[b-1]}, {vr(src+4*i,4)} offset:{2048*(b-1) + 1024*i}")
    P.wait_lgkm_all()
    P("s_barrier")
    for i in range(6): P(f"ds_read_b128 {vr(ob+4*i,4)}, v{vrd} offset:{1024*i}")
    for b in range(3):
        for r in range(8): P(f"v_add_f32 v{facc+r}, v{facc+r}, v{ob+8*b+r}")
    for r in range(4): P(f"v_cvt_pk_bf16_f32 v{facc1+r}, v{facc+2*r}, v{facc+2*r+1}")
    P(f"v_permlane32_swap_b32 v{facc1}, v{facc1+2}")
    P(f"v_permlane32_swap_b32 v{facc1+1}, v{facc1+3}")
    P(f"buffer_store_dwordx4 {vr(facc1,4)}, v{vo}, s[{S_OUT}:{S_OUT+3}], s{S_T0} offen")
    if STAMP["on"]:
        P.wait_vm_all(); stamp(P, 10); stamp_dump(P, lane)
        if OPT.get("dbgst") is not None:
            P(f"s_cmp_lg_u32 s2, {OPT['dbgst']}")
            P("s_cbranch_scc1 LF_end")
            P(f"s_cmp_lg_u32 s{S_W}, {OPT.get('dbgw', 0)}")
            P("s_cbranch_scc1 LF_end")
            P(f"v_subrev_u32 v{VSTAMP}, s100, v{VSTAMP}")
            P("s_mov_b64 exec, 0x7fff")
            P(f"buffer_store_dword v{VSTAMP}, v1, s[{S_DBG}:{S_DBG+3}], 0 offen offset:4")
    P("LF_end:")
    P("s_endpgm")
    name = NAME + "_kernel"
    body, I = finalize(P)
    txt = f".text\n.globl {name}\n.p2align 8\n.type {name},@function\n{name}:\n" + body + "".join(SL.txt) + "LF_last:\n    s_endpgm\n"
    vg_ = 256 if STAMP["on"] else max(V.hi, 8)
    txt += KD.format(name=name, vgpr=vg_, sgpr=102 if STAMP['on'] else 96, accum=(vg_ + 3) // 4 * 4)
    return txt, I, vg_


if __name__ == "__main__":
    out = sys.argv[1]
    STAMP["on"] = "stamp" in sys.argv
    for a in sys.argv[2:]:
        if "=" in a: k, v = a.split("="); OPT[k] = int(v)
        else: OPT[a] = True
    t, I, vg_ = kernel_F()
    hdr = HEADER + f"; @launch grid=(256,1,1) block=(512,1,1) lds={LDS_BYTES}\n" + '.amdgcn_target "amdgcn-amd-amdhsa--gfx950"\n'
    open(out, "w").write(hdr + t)
    print("insts", len(I), "vgpr", vg_, "nops", sum(1 for x in I if x.kind == "nop"))
```

```python
import re

TRANS = ("v_exp_f32", "v_log_f32", "v_rcp_f32", "v_rsq_f32", "v_sqrt_f32", "v_sin_f32", "v_cos_f32", "v_exp_f16", "v_rcp_iflag_f32")

def _regs(tok, pfx):
    tok = tok.strip()
    tok = tok.lstrip("-")
    m = re.fullmatch(r"abs\((.*)\)", tok)
    if m: tok = m.group(1)
    m = re.fullmatch(r"\|(.*)\|", tok)
    if m: tok = m.group(1)
    m = re.fullmatch(pfx + r"(\d+)", tok)
    if m: return {int(m.group(1))}
    m = re.fullmatch(pfx + r"\[(\d+):(\d+)\]", tok)
    if m: return set(range(int(m.group(1)), int(m.group(2)) + 1))
    return set()

def _sregs(tok):
    tok = tok.strip()
    if tok == "vcc": return {"vcc"}
    if tok in ("vcc_lo", "vcc_hi"): return {"vcc"}
    if tok == "exec": return {"exec"}
    if tok == "m0": return {"m0"}
    return _regs(tok, "s")

class Inst:
    __slots__ = ("text", "op", "kind", "vr", "vw", "sr", "sw", "tag", "mf", "meta")
    def __init__(self, text, tag=None, meta=None):
        self.text = text; self.tag = tag; self.meta = meta
        self.vr = set(); self.vw = set(); self.sr = set(); self.sw = set(); self.mf = None
        t = text.split(";")[0].strip()
        if t.endswith(":") or t.startswith("."):
            self.op = t; self.kind = "label" if t.endswith(":") else "directive"; return
        if t.startswith("@"):
            self.op = t; self.kind = "pseudo"; return
        parts = t.split(None, 1)
        op = parts[0]; self.op = op
        rest = parts[1] if len(parts) > 1 else ""
        raw = [x.strip() for x in rest.split(",")] if rest else []
        ops = []; mods = []
        for i, x in enumerate(raw):
            pieces = x.split()
            if not pieces: continue
            ops.append(pieces[0]); mods += pieces[1:]
        V = lambda k: _regs(ops[k], "v") if k < len(ops) else set()
        S = lambda k: _sregs(ops[k]) if k < len(ops) else set()
        base = op.replace("_e32", "").replace("_e64", "")
        if op.startswith("v_mfma"):
            self.kind = "mfma"
            self.vw = V(0); self.vr = V(1) | V(2) | V(3)
            passes = 8 if "32x32x16" in op else 4
            self.mf = dict(D=V(0), A=V(1), B=V(2), C=V(3), passes=passes)
        elif op.startswith("v_"):
            self.kind = "trans" if base in TRANS else "valu"
            if base.startswith("v_cmp"):
                self.sw = S(0)
                if base.startswith("v_cmpx"): self.sw |= {"exec"}
                for k in range(1, len(ops)): self.vr |= V(k); self.sr |= S(k)
            elif base in ("v_readfirstlane_b32", "v_readlane_b32"):
                self.sw = S(0); self.vr = V(1)
                for k in range(2, len(ops)): self.sr |= S(k)
            elif base.startswith("v_permlane") and "swap" in base:
                self.vw = V(0) | V(1); self.vr = V(0) | V(1)
            elif base in ("v_add_co_u32", "v_addc_co_u32", "v_sub_co_u32", "v_subb_co_u32"):
                self.vw = V(0); self.sw = S(1)
                for k in range(2, len(ops)): self.vr |= V(k); self.sr |= S(k)
            else:
                self.vw = V(0)
                for k in range(1, len(ops)): self.vr |= V(k); self.sr |= S(k)
                if base in ("v_fmac_f32", "v_writelane_b32", "v_pk_fmac_f16", "v_dot2c_f32_bf16") or "UNUSED_PRESERVE" in t:
                    self.vr |= V(0)
        elif op.startswith("ds_"):
            if op.startswith("ds_read") or op.startswith("ds_bpermute") or op.startswith("ds_swizzle") or op.startswith("ds_permute"):
                self.kind = "ds_rd"; self.vw = V(0)
                for k in range(1, len(ops)): self.vr |= V(k)
            else:
                self.kind = "ds_wr"
                for k in range(0, len(ops)): self.vr |= V(k)
        elif op.startswith("buffer_load") or op.startswith("global_load"):
            if "lds" in mods or op.startswith("global_load_lds"):
                self.kind = "dma"
                for k in range(0, len(ops)): self.vr |= V(k); self.sr |= S(k)
                self.sr |= {"m0"}
            else:
                self.kind = "vm_ld"; self.vw = V(0)
                for k in range(1, len(ops)): self.vr |= V(k); self.sr |= S(k)
        elif op.startswith("buffer_store") or op.startswith("global_store"):
            self.kind = "vm_st"
            for k in range(0, len(ops)): self.vr |= V(k); self.sr |= S(k)
            d = V(0) if op.startswith("buffer") else V(1)
            self.meta = dict(self.meta or {}, data=d, wide=("x4" in op or "x3" in op))
        elif op.startswith("buffer_atomic") or op.startswith("global_atomic"):
            self.kind = "vm_st"
            for k in range(0, len(ops)): self.vr |= V(k); self.sr |= S(k)
            self.meta = dict(self.meta or {}, data=set(), wide=False)
        elif op in ("buffer_inv", "buffer_wbl2"):
            self.kind = "vm_st"; self.meta = dict(data=set(), wide=False)
        elif op == "s_waitcnt": self.kind = "wait"
        elif op == "s_barrier": self.kind = "barrier"
        elif op == "s_nop": self.kind = "nop"
        elif op.startswith("s_load") or op.startswith("s_memtime") or op.startswith("s_memrealtime") or op.startswith("s_buffer_load"):
            self.kind = "smem"; self.sw = S(0)
            for k in range(1, len(ops)): self.sr |= S(k)
        elif op.startswith("s_cbranch") or op in ("s_branch", "s_endpgm", "s_setpc_b64"):
            self.kind = "branch"
        elif op.startswith("s_"):
            self.kind = "salu"
            if op.startswith("s_cmp") or op in ("s_setprio", "s_sleep"):
                for k in range(0, len(ops)): self.sr |= S(k)
            else:
                self.sw = S(0)
                for k in range(1, len(ops)): self.sr |= S(k)
                if "saveexec" in op: self.sw |= {"exec"}
        else:
            raise ValueError("unknown instr: " + text)

    def states(self):
        if self.kind in ("label", "directive", "pseudo"): return 0
        if self.meta and self.meta.get("skip"): return 0
        if self.kind == "nop": return int(self.text.split(";")[0].split()[1]) + 1
        return 1

class Prog:
    def __init__(self):
        self.I = []
    def e(self, text, tag=None):
        for line in text.split("\n"):
            line = line.strip()
            if not line or line.startswith(";"): continue
            self.I.append(Inst(line, tag=tag))
        return self
    __call__ = e
    def add(self, insts):
        self.I += insts
    def wait_tag(self, *tags): self.I.append(Inst("@wait_tag", meta=dict(tags=set(tags))))
    def wait_vm_all(self): self.I.append(Inst("@wait_vm_all"))
    def wait_lgkm_all(self): self.I.append(Inst("@wait_lgkm_all"))
    def cond_begin(self): self.I.append(Inst("@cond_begin"))
    def cond_end(self, keep=False, nowait=False): self.I.append(Inst("@cond_end", meta=dict(keep=keep, nowait=nowait)))
    def join(self): self.I.append(Inst("@join"))
    def opaque_begin(self): self.I.append(Inst("@opaque_begin"))
    def opaque_end(self): self.I.append(Inst("@opaque_end"))

MERGE_D = 0
def insert_waits(I):
    out = []; pos = {}
    lg = []
    vm = []
    cond_stack = []
    carry = []
    opaque = False
    def w(vmn=None, lgn=None):
        nonlocal lg, vm
        parts = []
        if vmn is not None and vmn < len(vm):
            parts.append(f"vmcnt({min(vmn,63)})"); vm = vm[len(vm) - min(vmn,63):] if min(vmn,63) else []
        if lgn is not None and lgn < len(lg):
            parts.append(f"lgkmcnt({min(lgn,15)})"); lg = lg[len(lg) - min(lgn,15):] if min(lgn,15) else []
        if parts: out.append(Inst("s_waitcnt " + " ".join(parts)))
    def flush_carry():
        idx = [k for k, x in enumerate(vm) if x.tag == "@carry"]
        if idx: w(vmn=len(vm) - 1 - max(idx))
        carry.clear()
    for ins in I:
        if ins.kind == "pseudo":
            if ins.op == "@opaque_begin":
                w(0, 0); opaque = True
            elif ins.op == "@opaque_end":
                opaque = False; lg = []; vm = []
            elif ins.op == "@wait_tag":
                if any(x.tag in ins.meta["tags"] for x in carry) and any(x.tag == "@carry" for x in vm): flush_carry()
                idx = [k for k, x in enumerate(vm) if x.tag in ins.meta["tags"]]
                if idx: w(vmn=len(vm) - 1 - max(idx))
            elif ins.op == "@join":
                vm = [Inst("buffer_inv", tag="@carry")]
            elif ins.op == "@wait_vm_all":
                if any(x.tag == "@carry" for x in vm): carry.clear()
                w(vmn=0)
            elif ins.op == "@wait_lgkm_all": w(lgn=0)
            elif ins.op == "@cond_begin":
                cond_stack.append((list(lg), list(vm)))
            elif ins.op == "@cond_end":
                lg0, vm0 = cond_stack.pop()
                if ins.meta and ins.meta.get("keep"):
                    w(lgn=0)
                    pend = [x for x in vm if x.kind in ("vm_ld", "dma")]
                    carry.extend(pend)
                    lg, vm = list(lg0), list(vm0)
                    out.append(Inst("@cond_end")); continue
                inb = [k for k, x in enumerate(vm) if all(x is not y for y in vm0) and x.kind in ("vm_ld", "dma")]
                if inb and not (ins.meta and ins.meta.get("nowait")): w(vmn=len(vm) - 1 - max(inb))
                if any(all(x is not y for y in lg0) for x in lg): w(lgn=0)
                lg, vm = lg0, vm0
                out.append(Inst("@cond_end"))
                continue
            out.append(ins); continue
        if opaque:
            out.append(ins); continue
        if ins.kind == "wait":
            m = re.search(r"vmcnt\((\d+)\)", ins.text)
            if m:
                n = int(m.group(1)); vm = vm[len(vm) - n:] if n and n < len(vm) else ([] if n == 0 else vm)
            m = re.search(r"lgkmcnt\((\d+)\)", ins.text)
            if m:
                n = int(m.group(1)); lg = lg[len(lg) - n:] if n and n < len(lg) else ([] if n == 0 else lg)
            out.append(ins); continue
        touch = ins.vr | ins.vw
        if any(x.vw & touch for x in carry) and any(x.tag == "@carry" for x in vm): flush_carry()
        lgn = None; vmn = None
        for k, x in enumerate(lg):
            if x.vw & touch: lgn = len(lg) - 1 - k
        for k, x in enumerate(vm):
            if x.vw & touch: vmn = len(vm) - 1 - k
        if lgn is not None and MERGE_D:
            old = [k for k, x in enumerate(lg) if len(out) - pos[id(x)] >= MERGE_D]
            if old: lgn = min(lgn, len(lg) - 1 - max(old))
        w(vmn, lgn)
        pos[id(ins)] = len(out)
        out.append(ins)
        if ins.kind in ("ds_rd", "ds_wr"): lg.append(ins)
        if ins.kind in ("vm_ld", "vm_st", "dma"): vm.append(ins)
        if ins.kind == "smem": pass
    return out

def need_states(p, c):
    n = 0
    pv = p.kind in ("valu", "trans")
    cv = c.kind in ("valu", "trans")
    cmem = c.kind in ("ds_rd", "ds_wr", "vm_ld", "vm_st", "dma")
    if pv and c.kind == "mfma" and (p.vw & c.vr): n = max(n, 2)
    if p.kind == "mfma":
        P = p.mf["passes"]; D = p.mf["D"]
        if c.kind == "mfma":
            if D & (c.mf["A"] | c.mf["B"]): n = max(n, P + 4)
            if D & c.mf["C"]:
                if not (c.mf["C"] == D and c.mf["passes"] == P): n = max(n, P + 2)
            elif D & c.mf["D"]:
                if c.mf["passes"] != P: n = max(n, P + 2)
        if (cv or cmem) and (D & (c.vr | c.vw)): n = max(n, P + 4)
        if cv and (p.mf["C"] & c.vw): n = max(n, P - 1)
        if cmem and (p.mf["C"] & c.vw): n = max(n, P - 1)
    if p.kind == "trans" and (c.kind in ("valu", "mfma") or cmem) and (p.vw & c.vr): n = max(n, 2 if c.kind == "mfma" else 1)
    if pv and p.sw:
        if cmem and (p.sw & c.sr): n = max(n, 5)
        if cv and (p.sw & c.sr): n = max(n, 4 if c.op.startswith(("v_readlane", "v_writelane")) else 2)
        if cv and "vcc" in p.sw and (c.op.startswith("v_cndmask") or c.op.startswith("v_addc") ): n = max(n, 2)
        if "exec" in p.sw and (c.kind == "mfma" or c.op.startswith(("v_readfirst", "v_readlane", "v_permlane"))): n = max(n, 4)
        if c.kind == "salu" and (p.sw & c.sr): n = max(n, 1)
        if c.kind == "branch" and "vcc" in p.sw: n = max(n, 5) if False else n
    if pv and c.op.startswith(("v_readfirstlane", "v_readlane")) and (p.vw & c.vr): n = max(n, 1)
    if pv and c.op.startswith("v_permlane") and (p.vw & c.vr): n = max(n, 2)
    if pv and cv and "dpp" in c.text and (p.vw & c.vr): n = max(n, 2)
    if pv and cv and (("sdwa" in p.text) or ("op_sel" in p.text)) and (p.vw & (c.vr | c.vw)): n = max(n, 1)
    if p.kind == "salu" and "m0" in p.sw and c.kind == "dma": n = max(n, 1)
    if p.kind == "vm_st" and p.meta and p.meta.get("wide") and (p.meta["data"] & c.vw): n = max(n, 2)
    return n

def insert_nops(I, window=24):
    out = []
    for c in I:
        if c.kind in ("label", "directive", "pseudo"):
            if c.kind == "pseudo" and c.op in ("@cond_end", "@opaque_begin", "@opaque_end", "@cond_begin"):
                dist = 0; need = 0
                for p in reversed(out):
                    if dist >= 13: break
                    if p.kind == "mfma": need = max(need, p.mf["passes"] + 4 - dist)
                    elif p.kind in ("valu", "trans"): need = max(need, 5 - dist)
                    elif p.kind in ("vm_st",): need = max(need, 2 - dist)
                    dist += p.states()
                while need > 0:
                    k = min(need, 16); out.append(Inst(f"s_nop {k-1}")); need -= k
            out.append(c); continue
        dist = 0; need = 0
        for p in reversed(out):
            if dist >= window: break
            if p.kind not in ("label", "directive", "pseudo"):
                need = max(need, need_states(p, c) - dist)
            dist += p.states()
        while need > 0:
            k = min(need, 16); out.append(Inst(f"s_nop {k-1}")); need -= k
        out.append(c)
    return out

def finalize(prog):
    I = insert_nops(insert_waits(prog.I))
    lines = []
    for x in I:
        if x.kind == "pseudo": continue
        lines.append(x.text if x.kind in ("label", "directive") else "    " + x.text)
    return "\n".join(lines) + "\n", I

class Regs:
    def __init__(self, start, limit, pfx):
        self.free = set(range(start, limit)); self.pfx = pfx; self.names = {}; self.hi = start
    def alloc(self, name, n=1, align=None):
        align = align or (1 if n == 1 else (2 if n == 2 else 4))
        lim = max(self.free) + 1 if self.free else 0
        for b in range(0, lim):
            if b % align: continue
            if all((b + k) in self.free for k in range(n)):
                for k in range(n): self.free.discard(b + k)
                self.names[name] = (b, n); self.hi = max(self.hi, b + n)
                return b
        raise RuntimeError(f"out of {self.pfx} regs allocating {name} ({n}); names={self.names}")
    def release(self, name):
        b, n = self.names.pop(name)
        for k in range(n): self.free.add(b + k)

def vr(b, n=1): return f"v{b}" if n == 1 else f"v[{b}:{b+n-1}]"
def sr(b, n=1): return f"s{b}" if n == 1 else f"s[{b}:{b+n-1}]"

KD = """.section .rodata,"a"
.p2align 6
.amdhsa_kernel {name}
  .amdhsa_next_free_vgpr {vgpr}
  .amdhsa_next_free_sgpr {sgpr}
  .amdhsa_accum_offset {accum}
  .amdhsa_group_segment_fixed_size 0
  .amdhsa_kernarg_size 104
  .amdhsa_user_sgpr_count 2
  .amdhsa_user_sgpr_kernarg_segment_ptr 1
  .amdhsa_system_sgpr_workgroup_id_x 1
.end_amdhsa_kernel
"""
```

```python
import sys
from parts import *
OPT = {}
S_NONCE = 93
S_HP, S_KH = 30, 31
SH = [4, 5, 6]
S_FS, S_FP, S_OD, S_OL = 7, 8, 9, 10
S_FW, S_FB, S_FL, S_FL2 = 12, 13, 14, 15
S_OO, S_OL2 = 11, 18
S_PM = 16
FL_KV, FL_H = WS_FLAG, WS_FLAG + 4096
WKV_L = KV_RING
QSCR = KV_RING + 8192
FSLOT = [0, 32768, 65536, 98304]
WO_CH = [98304, 114688, 0, 32768]
SC1 = " sc1"
SPIN_MAX = 1 << 22
WSR = f"s[{S_WS}:{S_WS+3}]"


class Slow:
    def __init__(self): self.txt = []; self.n = 0
    def add(self, t): self.txt.append(t)


LOADS = {}
def emit_loads(P, l16, vsl):
    P(f"s_sub_u32 s{S_T3}, s{S_W}, 3")
    P(f"s_cmp_lt_u32 s{S_T3}, 4")
    P("s_cbranch_scc1 LF_ldq")
    P(f"s_lshr_b32 s{S_T4}, s{S_J}, 1")
    P(f"s_add_u32 s{S_T4}, s{S_T4}, s{S_W}")
    P(f"s_add_u32 s{S_T4}, s{S_T4}, 1")
    P(f"s_and_b32 s{S_T4}, s{S_T4}, 3")
    P(f"s_lshl_b32 s{S_T0}, s{S_G}, 16")
    P(f"s_lshl_b32 s{S_T2}, s{S_T4}, 14")
    P(f"s_add_u32 s{S_T2}, s{S_T2}, s{S_T0}")
    P(f"s_mul_i32 m0, s{S_T4}, {16*X_STRIDE}")
    P(f"s_mov_b32 s{S_T5}, 16")
    P("s_waitcnt lgkmcnt(0)")
    mk_srd(P, S_X, 4, SZ["x"])
    P("LF_ldx1:")
    P(f"buffer_load_dwordx4 v{l16}, s[{S_X}:{S_X+3}], s{S_T2} offen lds", tag="q")
    P(f"s_add_u32 s{S_T2}, s{S_T2}, 1024")
    P(f"s_add_u32 m0, m0, {X_STRIDE}")
    P(f"s_sub_u32 s{S_T5}, s{S_T5}, 1")
    P(f"s_cmp_lg_u32 s{S_T5}, 0")
    P("s_cbranch_scc1 LF_ldx1")
    P("s_branch LF_ldj")
    P("LF_ldq:")
    P(f"s_lshl_b32 s{S_T4}, s{S_T3}, 4")
    P(f"s_add_u32 s{S_T5}, s{S_T4}, 16")
    P(f"s_lshl_b32 s{S_T2}, s{S_T3}, 17")
    P(f"s_lshl_b32 s{S_T0}, s{S_J}, 7")
    P(f"s_add_u32 s{S_T2}, s{S_T2}, s{S_T0}")
    P("s_waitcnt lgkmcnt(0)")
    mk_srd(P, S_WQ, 6, SZ["wq"])
    P("LF_ldq1:")
    P(f"s_mul_i32 s{S_T0}, s{S_T4}, 171")
    P(f"s_lshr_b32 s{S_T0}, s{S_T0}, 12")
    P(f"s_lshl_b32 s{S_T1}, s{S_T4}, 2")
    P(f"s_add_u32 s{S_T0}, s{S_T0}, s{S_T1}")
    P(f"s_lshl_b32 s{S_T0}, s{S_T0}, 8")
    P(f"s_add_u32 m0, s{S_T0}, 0x{SLOT[0]:x}")
    P(f"s_add_u32 s{S_T4}, s{S_T4}, 1")
    P(f"buffer_load_dwordx4 v{vsl}, s[{S_WQ}:{S_WQ+3}], s{S_T2} offen lds")
    P.I[-1].kind = "salu"
    P(f"s_add_u32 s{S_T2}, s{S_T2}, 8192")
    P(f"s_cmp_lg_u32 s{S_T4}, s{S_T5}")
    P("s_cbranch_scc1 LF_ldq1")
    P("LF_ldj:")


def prologue_f(P, V, endlabel):
    if STAMP["on"]: P("s_memrealtime s[100:101]")
    P("s_cmp_ge_u32 s2, 256")
    P(f"s_cbranch_scc1 {endlabel}")
    P("s_load_dwordx16 s[4:19], s[0:1], 0")
    P("s_load_dwordx8 s[20:27], s[0:1], 64")
    P("s_load_dwordx2 s[28:29], s[0:1], 96")
    lane = V.alloc("lane"); l16 = V.alloc("l16")
    P(f"v_lshrrev_b32 v1, 6, v0")
    P(f"v_and_b32 v{lane}, 63, v0")
    P(f"v_readfirstlane_b32 s{S_W}, v1")
    P(f"v_lshlrev_b32 v{l16}, 4, v{lane}")
    P(f"s_lshr_b32 s{S_T0}, s2, 3")
    if OPT.get("jrot"): P(f"s_add_u32 s{S_J}, s{S_T0}, {OPT['jrot']}"); P(f"s_and_b32 s{S_J}, s{S_J}, 3")
    else: P(f"s_and_b32 s{S_J}, s{S_T0}, 3")
    P(f"s_and_b32 s{S_T1}, s2, 1")
    P(f"s_lshl_b32 s{S_T1}, s{S_T1}, 2")
    P(f"s_add_u32 s{S_J}, s{S_J}, s{S_T1}")
    P(f"s_and_b32 s{S_G}, s2, 6")
    P(f"s_lshl_b32 s{S_G}, s{S_G}, 2")
    P(f"s_lshr_b32 s{S_T0}, s{S_T0}, 2")
    P(f"s_add_u32 s{S_G}, s{S_G}, s{S_T0}")
    t0 = V.alloc("t0"); t1 = V.alloc("t1")
    vsl = slice_pattern(P, V, lane, t0)
    LOADS["f"] = lambda: emit_loads(P, l16, vsl)
    if OPT.get("delay", 1):
        P("s_waitcnt lgkmcnt(0)")
    else:
        emit_loads(P, l16, vsl)
    P(f"s_and_b32 s{S_TT}, s{S_W}, 1")
    P(f"s_lshl_b32 s{S_TILE}, s{S_G}, 1")
    P(f"s_add_u32 s{S_TILE}, s{S_TILE}, s{S_TT}")
    P(f"s_lshr_b32 s{S_HP}, s{S_W}, 1")
    P(f"s_and_b32 s{S_HP}, s{S_HP}, 1")
    P(f"s_lshr_b32 s{S_KH}, s{S_W}, 2")
    assert all((p * 171) >> 12 == p // 24 for p in range(64)) and SLOT_SZ == 3 * 8192 + 256
    return lane, l16, t0, t1, vsl


def rest_srds(P):
    P(f"s_cmp_eq_u32 s{S_TT}, 0")
    P(f"s_cselect_b32 s{S_WM}, s16, s18")
    P(f"s_cselect_b32 s{S_WM+1}, s17, s19")
    P(f"s_and_b32 s{S_WM+1}, s{S_WM+1}, 0xffff")
    P(f"s_mov_b32 s{S_WM+2}, 0x{SZ['wg']:x}")
    P(f"s_mov_b32 s{S_WM+3}, 0x20000")
    mk_srd(P, S_OUT, 24, SZ["out"])
    mk_srd(P, S_WO, 12, SZ["wo"])
    mk_srd(P, S_WD, 20, SZ["wd"])


def nonce_check(P, SL, vn, vz):
    k = SL.n; SL.n += 1
    P(f"v_readfirstlane_b32 s{S_NONCE}, v{vn}")
    P(f"s_cmp_eq_u32 s{S_NONCE}, 0")
    P(f"s_cbranch_scc1 LS{k}")
    P(f"LR{k}:")
    SL.add(f"""LS{k}:
    s_mov_b32 s{S_T7}, 0
LS{k}_l:
    s_sleep 2
    buffer_load_dword v{vn}, v{vz}, s[{S_DBG}:{S_DBG+3}], 0 offen sc1
    s_waitcnt vmcnt(0)
    v_readfirstlane_b32 s{S_NONCE}, v{vn}
    s_add_u32 s{S_T7}, s{S_T7}, 1
    s_cmp_ge_u32 s{S_T7}, 0x{SPIN_MAX:x}
    s_cbranch_scc1 LR{k}
    s_cmp_eq_u32 s{S_NONCE}, 0
    s_cbranch_scc1 LS{k}_l
    s_branch LR{k}
""")


def flag_load(vf, n, vaddr, soff):
    op = {1: "buffer_load_dword", 4: "buffer_load_dwordx4"}[n]
    return f"{op} {vr(vf,n)}, v{vaddr}, {WSR}, {soff} offen sc1"


def flag_cmp(vf, n, t):
    L = [f"v_xor_b32 v{t}, s{S_NONCE}, v{vf}"]
    for i in range(1, n):
        L += [f"v_xor_b32 v{vf+i}, s{S_NONCE}, v{vf+i}", f"v_or_b32 v{t}, v{t}, v{vf+i}"]
    L += [f"v_cmp_ne_u32 vcc, 0, v{t}"]
    return L


def spin_check(P, SL, loads, cmps, sleep=1):
    k = SL.n; SL.n += 1
    for x in cmps: P(x)
    P(f"s_cbranch_vccnz LS{k}")
    P(f"LR{k}:")
    nl = "\n    "
    SL.add(f"""LS{k}:
    s_mov_b32 s{S_T7}, 0
LS{k}_l:
    {f"s_sleep {sleep}" if sleep else "s_nop 0"}
    {nl.join(loads)}
    s_waitcnt vmcnt(0)
    {nl.join(cmps)}
    s_add_u32 s{S_T7}, s{S_T7}, 1
    s_cmp_ge_u32 s{S_T7}, 0x{SPIN_MAX:x}
    s_cbranch_scc1 LR{k}
    s_cbranch_vccnz LS{k}_l
    s_nop 1
    s_branch LR{k}
""")


def flag_store(P, vz, t, soff):
    P(f"v_mov_b32 v{t}, s{S_NONCE}")
    P("s_mov_b64 exec, 1")
    P(f"buffer_store_dword v{t}, v{vz}, {WSR}, s{soff} offen sc1", tag="flag")
    P("s_mov_b64 exec, -1")


PROG = MISC + 1024
class SplitBar:
    def __init__(self, P, V, SL, lane, t0):
        self.P, self.SL, self.n = P, SL, 0
        self.va = V.alloc("sba"); self.vr = V.alloc("sbr"); self.one = V.alloc("sb1"); self.vg = V.alloc("sbg")
        P(f"s_lshl_b32 s{S_T0}, s{S_W}, 8")
        P(f"s_add_u32 s{S_T0}, s{S_T0}, 0x{PROG:x}")
        P(f"v_lshlrev_b32 v{t0}, 2, v{lane}")
        P(f"v_add_u32 v{self.va}, s{S_T0}, v{t0}")
        P(f"v_and_b32 v{t0}, 7, v{lane}")
        P(f"v_mul_u32_u24 v{t0}, 260, v{t0}")
        P(f"v_add_u32 v{self.vr}, 0x{PROG:x}, v{t0}")
        P(f"v_mov_b32 v{self.one}, 0")
        P(f"ds_write_b32 v{self.va}, v{self.one}")
        P(f"v_mov_b32 v{self.one}, 1")
    def arrive(self):
        self.n += 1
        self.P(f"ds_add_u32 v{self.va}, v{self.one}")
    def peek(self): self.P(f"ds_read_b32 v{self.vg}, v{self.vr}")
    def check(self):
        k = self.SL.n; self.SL.n += 1
        self.P(f"v_cmp_gt_u32 vcc, {self.n}, v{self.vg}")
        self.P(f"s_cbranch_vccz LR{k}")
        self.P(f"LS{k}:")
        for t in ([f"s_sleep {OPT['ssl']}"] if OPT.get("ssl") else []) + [f"ds_read_b32 v{self.vg}, v{self.vr}", "s_waitcnt lgkmcnt(0)", f"v_cmp_gt_u32 vcc, {self.n}, v{self.vg}", f"s_cbranch_vccnz LS{k}"]:
            self.P(t); self.P.I[-1].kind = "salu"; self.P.I[-1].vw = set(); self.P.I[-1].vr = set()
        self.P(f"LR{k}:")


def attn_setup(P, V, lane, l16, t0, t1):
    A = {}
    P(f"s_lshl_b32 s{S_T1}, s{S_KH}, 12")
    vk = V.alloc("vk"); vv = [V.alloc("vv0"), V.alloc("vv1")]
    P(f"s_add_u32 s{S_T1}, s{S_T1}, 0x{KV_RING:x}")
    P(f"v_add_u32 v{vk}, s{S_T1}, v{l16}")
    P(f"v_lshrrev_b32 v{t0}, 5, v{lane}")
    P(f"v_lshlrev_b32 v{t0}, 8, v{t0}")
    P(f"v_and_b32 v{t1}, 15, v{lane}")
    P(f"v_lshl_add_u32 v{t0}, v{t1}, 4, v{t0}")
    P(f"v_and_b32 v{t1}, 16, v{lane}")
    P(f"v_cmp_eq_u32 vcc, 0, v{t1}")
    P(f"s_add_u32 s{S_T1}, s{S_T1}, 2048")
    for s in range(2):
        P(f"v_mov_b32 v{t1}, s{S_T1}")
        P(f"v_add_u32 v{t1}, {8192*s}, v{t1}")
        P(f"v_mov_b32 v{vv[s]}, 0x{ONES:x}")
        P(f"v_cndmask_b32 v{vv[s]}, v{t1}, v{vv[s]}, vcc")
        P(f"v_add_u32 v{vv[s]}, v{vv[s]}, v{t0}")
    P(f"s_lshl_b32 s{S_KVOFF}, s{S_KH}, 15")
    P(f"s_lshl_b32 s{S_T1}, s{S_HP}, 16")
    P(f"s_add_u32 s{S_KVOFF}, s{S_KVOFF}, s{S_T1}")
    P(f"s_lshl_b32 s{S_T1}, s{S_TT}, 10")
    P(f"s_add_u32 s{S_KVOFF}, s{S_KVOFF}, s{S_T1}")
    P(f"s_lshl_b32 s{S_KVLDS}, s{S_W}, 10")
    P(f"s_add_u32 s{S_KVLDS}, s{S_KVLDS}, 0x{KV_RING:x}")
    A.update(vk=vk, vv=vv)
    A["S"] = [V.alloc("Sa", 16), V.alloc("Sb", 16)]
    A["O"] = [V.alloc("Oa", 16), V.alloc("Ob", 16)]
    A["fk"] = V.alloc("fk", 4); A["fv"] = [V.alloc("fv1", 4), V.alloc("fv2", 4)]
    A["q"] = V.alloc("qf", 8)
    return A


def kv_dma(P, l16, c):
    dma(P, l16, S_WS, f"s{S_T2}", (S_KVLDS, 8192 * (c & 1)), tag=f"kv{c}", mods=SC1, pre=[f"s_add_u32 s{S_T2}, s{S_KVOFF}, {2048*c}"])


def attention(P, A, l16, its, hook, prio, kvf=None):
    S, O, fk, fv = A["S"], A["O"], A["fk"], A["fv"]
    SB = OPT.get("sb", 0)
    q = [A["q"], A["q"] + 4]
    def rdK(it): P(f"ds_read_b128 {vr(fk,4)}, v{A['vk']} offset:{((it>>1)&1)*8192 + (it&1)*1024}")
    def rdV(it, half): P(f"ds_read_b128 {vr(fv[half],4)}, v{A['vv'][(it>>1)&1]} offset:{(it&1)*1024 + half*512}")
    E = lambda x, i: P(f"v_exp_f32 v{S[x]+i}, v{S[x]+i}")
    def C(x, i):
        b = S[x] + (8 if i >= 4 else 0); k = i & 3
        P(f"v_cvt_pk_bf16_f32 v{b+k}, v{b+2*k}, v{b+2*k+1}")
    for it in its:
        if it == 0:
            rdK(0); rdV(0, 0)
            hook(0, 0, "start")
            P(mfma(S[0], fk, q[0]))
        for x in range(2):
            H = lambda pos: hook(it, x, pos)
            E(x, 0); E(x, 1)
            if x == 0:
                if it > 0: P(mfma(O[1], fv[1], S[1] + 8, O[1]))
                rdV(it, 1)
            else:
                P(mfma(O[0], fv[1], S[0] + 8, O[0]))
                if SB and A["syn"]:
                    A["sb"].check(); after_sync()
            H("pv2")
            E(x, 2); E(x, 3); H("g1")
            E(x, 4); E(x, 5); H("g2")
            E(x, 6); E(x, 7)
            if x == 0: P(mfma(S[1], fk, q[1]))
            elif it < 31: P(mfma(S[0], fk, q[0]))
            H("qk")
            for i in range(4): C(x, i)
            H("g3")
            E(x, 8); E(x, 9)
            sig = (x == 0 and (it & 1) and it < 31)
            syn = sig or (x == 0 and hook(it, x, "sync?"))
            if syn:
                H("pre0")
                if sig: P.wait_tag(f"kv{(it>>1)+1}")
                H("pre"); P.wait_lgkm_all()
                if SB: A["sb"].arrive()
                else: P("s_barrier")
            P(mfma(O[x], fv[0], S[x], None if it == 0 else O[x]))
            p = prio(it, x)
            if p is not None: P(f"s_setprio {p}")
            def after_sync():
                if it < 31: rdK(it + 1)
                if (it & 1) and (it >> 1) + 2 < 16: (kvf or (lambda c: kv_dma(P, l16, c)))((it >> 1) + 2)
                if A["syn"]: hook(it, 0, "chk")
            if x == 0:
                A["syn"] = syn
                if not (SB and syn): after_sync()
            else:
                if it < 31: rdV(it + 1, 0)
            H("pv1")
            E(x, 10); E(x, 11); H("g4")
            E(x, 12); E(x, 13); H("g5")
            E(x, 14); E(x, 15); H("g6")
            if x == 0 and SB and A["syn"]: A["sb"].peek()
            for i in range(4, 8): C(x, i)
        if it == 31: P(mfma(O[1], fv[1], S[1] + 8, O[1]))


def fin_dma_w1(P, vsl, st, slot, tag, i):
    srd, u0 = (S_WD, 8 * st) if st < 11 else (S_WO, 8 * (st - 11))
    dma(P, vsl, srd, f"s{S_T2}", (S_FL2, slot + 1024 * i), tag=tag, pre=[f"s_add_u32 s{S_T2}, s{S_FW}, 0x{(16*u0 + 8*i)*1024:x}"])


def fin_dma_b1(P, l16, st, slot, tag, t):
    P(f"s_add_u32 s{S_T2}, s{S_FB}, 0x{(t*118 + 8*st)*1024:x}")
    if st == 10:
        P(f"s_cmp_lt_u32 s{S_W}, 6")
        P(f"s_cselect_b32 s{S_T2}, s{S_T2}, 0x{OOB:x}")
    dma(P, l16, S_WS, f"s{S_T2}", (S_FL, slot + 16384 + 8192 * t), tag=tag, mods=SC1)


def kernel_F():
    P = Prog(); V = Regs(2, 255, "v"); SL = Slow()
    NP = OPT.get("np", 4)
    JIT = 16 - NP
    GPP = OPT.get("gpp", 2)
    UNI = OPT.get("uni", JIT + 2)
    HF = OPT.get("hf", UNI | 1)
    lane, l16, t0, t1, vsl = prologue_f(P, V, "LF_end")
    vz = V.alloc("vz")
    P(f"s_cmp_lg_u32 s{S_W}, 7")
    P("s_cbranch_scc1 LF_not7")
    P.cond_begin()
    if OPT.get("delay", 1):
        P(f"s_lshr_b32 s{S_T4}, s{S_J}, 1")
        P(f"s_lshl_b32 s{S_T0}, s{S_G}, 16")
        P(f"s_lshl_b32 s{S_T2}, s{S_T4}, 14")
        P(f"s_add_u32 s{S_T2}, s{S_T2}, s{S_T0}")
        P(f"s_mul_i32 m0, s{S_T4}, {16*X_STRIDE}")
        P(f"s_mov_b32 s{S_T5}, 16")
        mk_srd(P, S_X, 4, SZ["x"])
        P("LF_ldx7:")
        P(f"buffer_load_dwordx4 v{l16}, s[{S_X}:{S_X+3}], s{S_T2} offen lds", tag="c")
        P(f"s_add_u32 s{S_T2}, s{S_T2}, 1024")
        P(f"s_add_u32 m0, m0, {X_STRIDE}")
        P(f"s_sub_u32 s{S_T5}, s{S_T5}, 1")
        P(f"s_cmp_lg_u32 s{S_T5}, 0")
        P("s_cbranch_scc1 LF_ldx7")
    P(f"s_and_b32 s{S_T3}, s{S_J}, 1")
    P(f"s_cmp_eq_u32 s{S_T3}, 0")
    P(f"s_cselect_b32 s{S_WKV}, s8, s10")
    P(f"s_cselect_b32 s{S_WKV+1}, s9, s11")
    P(f"s_and_b32 s{S_WKV+1}, s{S_WKV+1}, 0xffff")
    P(f"s_mov_b32 s{S_WKV+2}, 0x{SZ['wk']:x}")
    P(f"s_mov_b32 s{S_WKV+3}, 0x20000")
    for g in range(4):
        P(f"s_mov_b32 s{S_T7}, {4096*g}")
        P(f"s_mov_b32 m0, 0x{WKV_L + 4096*g:x}")
        for i in range(4): P(f"buffer_load_dwordx4 v{l16}, s[{S_WKV}:{S_WKV+3}], s{S_T7} offen offset:{1024*i} lds", tag="c")
    P.cond_end(nowait=True)
    P("LF_not7:")
    if OPT.get("cpf", 1):
        c = V.alloc("cpf")
        P(f"s_getpc_b64 s[{S_EX}:{S_EX+1}]")
        P("LF_pc0:")
        P(f"s_lshr_b32 s{S_T3}, s2, 3")
        P(f"s_lshl_b32 s{S_T3}, s{S_T3}, 3")
        P(f"s_add_u32 s{S_T3}, s{S_T3}, s{S_W}")
        P(f"s_lshl_b32 s{S_T3}, s{S_T3}, 8")
        P(f"v_lshlrev_b32 v{c}, 7, v{lane}")
        P(f"v_add_u32 v{c}, s{S_T3}, v{c}")
        P(f"v_min_u32 v{c}, LF_last-LF_pc0, v{c}")
        P("s_mov_b64 exec, 3")
        P(f"global_load_dword v{c}, v{c}, s[{S_EX}:{S_EX+1}]", tag="cpf")
        P("s_mov_b64 exec, -1")
    P(f"v_mov_b32 v{vz}, 0")
    mk_srd(P, S_WS, 28, SZ["ws"])
    mk_srd(P, S_DBG, 26, SZ["dbg"])
    stamp(P, 0)
    vn = V.alloc("vn")
    KT = 192; vx16 = 240; vw16 = 241; vst = 242
    P(f"s_or_b32 s{S_T0}, s2, s{S_W}")
    P(f"s_cmp_lg_u32 s{S_T0}, 0")
    P("s_cbranch_scc1 LF_non")
    P.cond_begin()
    P(f"s_memrealtime s[{S_EX}:{S_EX+1}]")
    P("s_waitcnt lgkmcnt(0)")
    P(f"s_mul_i32 s{S_EX+1}, s{S_EX+1}, 0x9e3779b1")
    P(f"s_xor_b32 s{S_EX}, s{S_EX}, s{S_EX+1}")
    P(f"s_or_b32 s{S_EX}, s{S_EX}, 1")
    P(f"v_mov_b32 v{t0}, s{S_EX}")
    P("s_mov_b64 exec, 1")
    P(f"buffer_store_dword v{t0}, v{vz}, s[{S_DBG}:{S_DBG+3}], 0 offen sc1")
    P("s_mov_b64 exec, -1")
    P.cond_end()
    P("LF_non:")
    if OPT.get("delay", 1):
        P(f"s_cmp_eq_u32 s{S_W}, 7")
        P("s_cbranch_scc1 LF_is7b")
        if OPT.get("dsl"): P(f"s_sleep {OPT['dsl']}")
        LOADS["f"]()
        P("s_branch LF_not7b")
        P("LF_is7b:")
    else:
        P(f"s_cmp_lg_u32 s{S_W}, 7")
        P("s_cbranch_scc1 LF_not7b")
    P.cond_begin()
    P(f"s_lshr_b32 s{S_T0}, s{S_J}, 1")
    P(f"s_lshl_b32 s{S_T1}, s{S_T0}, 4")
    P(f"v_and_b32 v{t0}, 15, v{lane}")
    P(f"v_add_u32 v{t1}, s{S_T1}, v{t0}")
    P(f"v_mul_u32_u24 v{vx16}, {X_STRIDE}, v{t1}")
    P(f"v_lshrrev_b32 v{t1}, 4, v{lane}")
    P(f"v_lshl_add_u32 v{vx16}, v{t1}, 4, v{vx16}")
    P(f"v_lshlrev_b32 v{vw16}, 8, v{t1}")
    P(f"v_lshl_add_u32 v{vw16}, v{t0}, 3, v{vw16}")
    P(f"v_add_u32 v{vw16}, 0x{WKV_L:x}, v{vw16}")
    P(f"s_and_b32 s{S_T6}, s{S_J}, 1")
    P(f"s_cmp_eq_u32 s{S_T6}, 0")
    P(f"s_cselect_b32 s{S_T3}, 9, 8")
    P(f"s_cselect_b32 s{S_T4}, 8, 9")
    P(f"s_cselect_b32 s{S_T5}, 0x{WS_KF:x}, 0x{WS_VF:x}")
    P(f"v_lshlrev_b32 v{vst}, 4, v{t0}")
    P(f"v_lshrrev_b32 v{t0}, 1, v{t1}")
    P(f"v_lshl_add_u32 v{vst}, v{t0}, 3, v{vst}")
    P(f"v_and_b32 v{t0}, 1, v{t1}")
    P(f"v_lshlrev_b32 v{t0}, s{S_T3}, v{t0}")
    P(f"v_add_u32 v{vst}, v{vst}, v{t0}")
    P(f"s_and_b32 s{S_T1}, s{S_T0}, 1")
    P(f"s_lshl_b32 s{S_T1}, s{S_T1}, s{S_T4}")
    P(f"s_add_u32 s{S_T5}, s{S_T5}, s{S_T1}")
    P(f"s_lshr_b32 s{S_T0}, s{S_T0}, 1")
    P(f"s_lshl_b32 s{S_T1}, s{S_G}, 1")
    P(f"s_add_u32 s{S_T0}, s{S_T0}, s{S_T1}")
    P(f"s_lshl_b32 s{S_T0}, s{S_T0}, 10")
    P(f"s_add_u32 s{S_T5}, s{S_T5}, s{S_T0}")
    P("s_waitcnt vmcnt(0)")
    P(f"buffer_load_dword v{vn}, v{vz}, s[{S_DBG}:{S_DBG+3}], 0 offen sc1")
    def kv16(which):
        d = KT
        xb = [(KT+16) + 4 * i for i in range(4)]; wb = [(KT+32) + 4 * i for i in range(4)]
        def ld(ks):
            P(f"ds_read_b128 {vr(xb[ks%4],4)}, v{vx16} offset:{ks*64}")
            P(f"ds_read_b64_tr_b16 {vr(wb[ks%4],2)}, v{vw16} offset:{ks*1024}")
            P(f"ds_read_b64_tr_b16 {vr(wb[ks%4]+2,2)}, v{vw16} offset:{ks*1024+128}")
        for ks in range(3): ld(ks)
        for ks in range(16):
            a, b = (wb[ks%4], xb[ks%4]) if which == 0 else (xb[ks%4], wb[ks%4])
            P(f"v_mfma_f32_16x16x32_bf16 {vr(d,4)}, {vr(a,4)}, {vr(b,4)}, {vr(d,4) if ks else 0}")
            if ks + 3 < 16: ld(ks + 3)
        if which == 0:
            P(f"s_mov_b32 s{S_T0}, {hexf(QK_SCALE)}")
            for r in range(4): P(f"v_mul_f32 v{d+r}, s{S_T0}, v{d+r}")
    P(f"s_cmp_eq_u32 s{S_T6}, 1")
    P("s_cbranch_scc1 LF_vch")
    P.cond_begin(); kv16(0); P.cond_end()
    P("s_branch LF_kvj")
    P("LF_vch:")
    P.cond_begin(); kv16(1); P.cond_end()
    P("LF_kvj:")
    for r in range(2): P(f"v_cvt_pk_bf16_f32 v{KT+4+r}, v{KT+2*r}, v{KT+2*r+1}")
    P(f"buffer_store_dwordx2 {vr(KT+4,2)}, v{vst}, {WSR}, s{S_T5} offen sc1")
    P(f"s_lshl_b32 s{S_T0}, s{S_G}, 3")
    P(f"s_add_u32 s{S_T0}, s{S_T0}, s{S_J}")
    P(f"s_lshl_b32 s{S_T0}, s{S_T0}, 2")
    P(f"s_add_u32 s{S_T0}, s{S_T0}, 0x{FL_KV:x}")
    P("s_waitcnt vmcnt(0)")
    nonce_check(P, SL, vn, vz)
    flag_store(P, vz, t0, S_T0)
    if OPT.get("pf7", 0):
        P(f"v_lshrrev_b32 v{t0}, 4, v{lane}")
        P(f"v_mul_u32_u24 v{vx16}, 2752, v{t0}")
        P(f"v_and_b32 v{t0}, 15, v{lane}")
        P(f"v_lshl_add_u32 v{vx16}, v{t0}, 7, v{vx16}")
        P(f"v_cmp_gt_u32 vcc, 12, v{t0}")
        P(f"v_mov_b32 v{t1}, 0x{OOB:x}")
        P(f"v_cndmask_b32 v{vx16}, v{t1}, v{vx16}, vcc")
        P(f"s_lshr_b32 s{S_T0}, s2, 3")
        P(f"s_mul_i32 s{S_T0}, s{S_T0}, {4*2752}")
        P(f"s_and_b32 s{S_T1}, s2, 1")
        P(f"s_mul_i32 s{S_T1}, s{S_T1}, {44*32}")
        P(f"s_add_u32 s{S_T0}, s{S_T0}, s{S_T1}")
        for m in range(2):
            mk_srd(P, S_WKV, 16 + 2 * m, SZ["wg"])
            P(f"buffer_load_dword v{KT+m}, v{vx16}, s[{S_WKV}:{S_WKV+3}], s{S_T0} offen")
    P.cond_end(nowait=True)
    P("LF_not7b:")
    stamp(P, 1)
    rest_srds(P)
    mk_srd(P, S_GW, 22, SZ["gw"])
    P(f"s_mov_b32 s{S_C1}, {hexf(2.0**120)}")
    A = attn_setup(P, V, lane, l16, t0, t1)
    qf = A["q"]; O = A["O"]; S = A["S"]
    A["sb"] = SplitBar(P, V, SL, lane, t0) if OPT.get("sb", 0) else type("X", (), dict(n=0))()
    vfl = V.alloc("vfl", 4)
    P(f"s_lshl_b32 s{S_T0}, s{S_HP}, 1")
    P(f"s_add_u32 s{S_T0}, s{S_T0}, s{S_KH}")
    P(f"s_lshl_b32 s{S_T1}, s{S_J}, 2")
    P(f"s_add_u32 s{S_T0}, s{S_T0}, s{S_T1}")
    P(f"s_mul_i32 s{S_T1}, s{S_TILE}, 118")
    P(f"s_add_u32 s{S_T0}, s{S_T0}, s{S_T1}")
    P(f"s_lshl_b32 s{S_T0}, s{S_T0}, 10")
    P(f"s_add_u32 s{S_OD}, s{S_T0}, 0x{WS_OH + 86*1024:x}")
    def poison():
        for r in range(4): P(f"v_mov_b32 v{O[0]+r}, -1")
        P(f"buffer_store_dwordx4 {vr(O[0],4)}, v{l16}, {WSR}, s{S_OD} offen sc1", tag="poison")
    P(f"s_lshr_b32 s{S_T0}, s{S_W}, 1")
    P(f"s_lshl_b32 s{S_T0}, s{S_T0}, 3")
    P(f"s_add_u32 s{S_T0}, s{S_T0}, s{S_T1}")
    P(f"s_lshl_b32 s{S_T0}, s{S_T0}, 10")
    P(f"s_add_u32 s{S_OL}, s{S_T0}, 0x{WS_OH + 86*1024:x}")
    P(f"s_lshl_b32 s{S_FP}, s{S_G}, 8")
    P(f"s_lshl_b32 s{S_FS}, s{S_J}, 3")
    P(f"s_add_u32 s{S_FS}, s{S_FS}, s{S_W}")
    P(f"s_lshl_b32 s{S_FS}, s{S_FS}, 2")
    P(f"s_add_u32 s{S_FS}, s{S_FS}, s{S_FP}")
    P(f"s_add_u32 s{S_FS}, s{S_FS}, 0x{FL_H:x}")
    P(f"s_add_u32 s{S_FP}, s{S_FP}, 0x{FL_H:x}")
    P(f"s_lshl_b32 s{S_FW}, s{S_W}, 14")
    P(f"s_lshl_b32 s{S_T1}, s{S_J}, 7")
    P(f"s_add_u32 s{S_FW}, s{S_FW}, s{S_T1}")
    P(f"s_lshl_b32 s{S_FL2}, s{S_W}, 11")
    P(f"s_mul_i32 s{S_U0}, s{S_J}, 11")
    P(f"s_min_u32 s{S_U0}, s{S_U0}, 76")
    P(f"s_cmp_ge_u32 s{S_J}, 6")
    P(f"s_cselect_b32 s{S_NU}, 10, 11")
    vxa = xfrag_addr(P, V, "vxa", lane, t0, S_TT)
    vq = V.alloc("vq")
    P(f"s_and_b32 s{S_T0}, s{S_W}, 3")
    P(f"s_lshl_b32 s{S_T1}, s{S_T0}, 11")
    P(f"s_add_u32 s{S_T1}, s{S_T1}, 0x{QSCR:x}")
    P(f"v_add_u32 v{vq}, s{S_T1}, v{l16}")
    acc = [[V.alloc(f"acc{i}{t}", 16) for t in range(2)] for i in range(3)]
    fx = [[V.alloc(f"fx{b}{t}", 4) for t in range(2)] for b in range(2)]
    fw = [[V.alloc(f"fw{b}{i}", 4) for i in range(3)] for b in range(2)]
    P(f"s_cmp_lg_u32 s{S_KH}, 0")
    P("s_cbranch_scc1 LF_light")

    def sigstamp(it, k):
        if OPT.get("sig"):
            P(f"s_memtime s[98:99]"); P("s_waitcnt lgkmcnt(0)"); P(f"v_writelane_b32 v{vsig}, s98, {2*it+k}")
    vsig = V.alloc("vsig") if OPT.get("sig") else None

    P.cond_begin()
    vx0 = V.alloc("vx0")
    P(f"s_mul_i32 s{S_T0}, s{S_TT}, {32*X_STRIDE}")
    P(f"v_subrev_u32 v{vx0}, s{S_T0}, v{vxa}")
    vtn = tr_slice_addr(P, V, "vtn", lane, t0, t1, SLOT[0], S_HP, 8)
    P(f"s_lshl_b32 s{S_T4}, s{S_W}, 1")
    wtr = w_tr_addrs(P, V, lane, t0, t1, s_w=S_T4)
    P(f"s_mul_i32 s{S_T0}, s{S_W}, 3")
    P(f"s_mul_i32 s{S_T1}, s{S_G}, 236")
    P(f"s_add_u32 s{S_T1}, s{S_T1}, s{S_U0}")
    for i in range(3):
        P(f"s_add_u32 s{S_T2}, s{S_T0}, {i}")
        P(f"s_add_u32 s{SH[i]}, s{S_T1}, s{S_T2}")
        P(f"s_lshl_b32 s{SH[i]}, s{SH[i]}, 10")
        P(f"s_add_u32 s{SH[i]}, s{SH[i]}, 0x{WS_OH:x}")
        P(f"s_cmp_lt_u32 s{S_T2}, s{S_NU}")
        P(f"s_cselect_b32 s{SH[i]}, s{SH[i]}, 0x{OOB:x}")
    vpf = V.alloc("vpf"); vpd = V.alloc("vpd"); vpw = V.alloc("vpw")
    P(f"v_bfe_u32 v{t0}, v{lane}, 4, 1")
    P(f"v_lshrrev_b32 v{t1}, 5, v{lane}")
    P(f"v_lshl_add_u32 v{t0}, v{t1}, 7, v{t0}")
    P(f"v_mul_u32_u24 v{vpf}, 2752, v{t0}")
    P(f"v_and_b32 v{t0}, 15, v{lane}")
    P(f"v_lshl_add_u32 v{vpf}, v{t0}, 7, v{vpf}")
    P(f"v_cmp_gt_u32 vcc, 12, v{t0}")
    P(f"v_mov_b32 v{t1}, 0x{OOB:x}")
    P(f"v_cndmask_b32 v{vpf}, v{t1}, v{vpf}, vcc")
    P(f"s_lshr_b32 s{S_T0}, s2, 3")
    P(f"s_lshl_b32 s{S_T0}, s{S_T0}, 1")
    P(f"s_add_u32 s{S_T0}, s{S_T0}, s{S_HP}")
    P(f"s_mul_i32 s{S_T0}, s{S_T0}, {2*2752}")
    P(f"s_and_b32 s{S_T1}, s2, 1")
    P(f"s_mul_i32 s{S_T1}, s{S_T1}, {44*32}")
    P(f"s_add_u32 s{S_T6}, s{S_T0}, s{S_T1}")
    def pf(blk, half):
        P(f"s_add_u32 s{S_T4}, s{S_T6}, {128*2752*blk}")
        if half: P("s_mov_b64 exec, 0xffffffff")
        P(f"buffer_load_dword v{vpd}, v{vpf}, s[{S_WM}:{S_WM+3}], s{S_T4} offen", tag="pf")
        P.I[-1].vw = set()
        if half: P("s_mov_b64 exec, -1")
    PF = OPT.get("pf", 1)
    S_PFS = S_WKV
    P(f"s_lshr_b32 s{S_T0}, s2, 3")
    P(f"s_lshl_b32 s{S_T0}, s{S_T0}, 2")
    P(f"s_add_u32 s{S_T0}, s{S_T0}, s{S_W}")
    P(f"s_cmp_lt_u32 s{S_T0}, 86")
    P(f"s_cselect_b32 s{S_PFS}, s{S_WD}, s{S_WO}")
    P(f"s_cselect_b32 s{S_PFS+1}, s{S_WD+1}, s{S_WO+1}")
    P(f"s_cselect_b32 s{S_PFS+2}, s{S_WD+2}, s{S_WO+2}")
    P(f"s_cselect_b32 s{S_T1}, 0, 86")
    P(f"s_mov_b32 s{S_PFS+3}, 0x20000")
    P(f"s_sub_u32 s{S_T0}, s{S_T0}, s{S_T1}")
    P(f"s_lshl_b32 s{S_T0}, s{S_T0}, 14")
    P(f"s_and_b32 s{S_T1}, s2, 1")
    P(f"s_lshl_b32 s{S_T1}, s{S_T1}, 9")
    P(f"s_add_u32 s{S_T0}, s{S_T0}, s{S_T1}")
    P(f"v_lshrrev_b32 v{t0}, 2, v{lane}")
    P(f"v_lshlrev_b32 v{t0}, 10, v{t0}")
    P(f"v_and_b32 v{t1}, 3, v{lane}")
    P(f"v_lshl_add_u32 v{t0}, v{t1}, 7, v{t0}")
    P(f"v_add_u32 v{vpw}, s{S_T0}, v{t0}")
    P.wait_tag("q")
    P("s_barrier")
    stamp(P, 2)
    if PF & 2: pf(0, True)
    QD = 6
    xb = [acc[1][0] + 4 * i for i in range(QD)]; wb = [acc[2][0] + 4 * i for i in range(QD)]
    assert acc[1][1] == acc[1][0] + 16 and acc[2][1] == acc[2][0] + 16
    def q_loads(ks):
        o = SLOT[ks // 12] - SLOT[0] + (ks % 12) * 2048
        P(f"ds_read_b128 {vr(xb[ks%QD],4)}, v{vxa} offset:{ks*32}")
        P(f"ds_read_b64_tr_b16 {vr(wb[ks%QD],2)}, v{vtn} offset:{o}")
        P(f"ds_read_b64_tr_b16 {vr(wb[ks%QD]+2,2)}, v{vtn} offset:{o+512}")
    for ks in range(QD - 1): q_loads(ks)
    for ks in range(32):
        P(mfma(acc[0][0], wb[ks%QD], xb[ks%QD], acc[0][0] if ks else None))
        if ks in (11, 23):
            stamp(P, 11 if ks == 11 else 13)
            P("s_barrier")
        if ks + QD - 1 < 32: q_loads(ks + QD - 1)
        if ks == OPT.get("pk", 20):
            P(f"s_mov_b32 s{S_T5}, 0x{FL_KV:x}")
            P(f"buffer_load_dword v{vn}, v{vz}, s[{S_DBG}:{S_DBG+3}], 0 offen sc1")
            P(flag_load(vfl, 4, l16, f"s{S_T5}"))
    for r in range(8): P(f"v_cvt_pk_bf16_f32 v{qf+r}, v{acc[0][0]+2*r}, v{acc[0][0]+2*r+1}")
    P(f"ds_write_b128 v{vq}, {vr(qf,4)}")
    P(f"ds_write_b128 v{vq}, {vr(qf+4,4)} offset:1024")
    nonce_check(P, SL, vn, vz)
    spin_check(P, SL, [flag_load(vfl, 4, l16, f"s{S_T5}")], flag_cmp(vfl, 4, t0))
    kv_dma(P, l16, 0)
    P(f"s_add_u32 s{S_T2}, s{S_T2}, 32768")
    dma(P, l16, S_WS, f"s{S_T2}", (S_KVLDS, 4096), tag="kv0", mods=SC1)
    def gu_reads(ks):
        s, kk = ks // 2, ks % 2
        so = SLOT[s % 3] - SLOT[0] + kk * 6144
        L = [f"ds_read_b128 {vr(fx[ks%2][0],4)}, v{vx0} offset:{ks*32}"]
        for i in range(3):
            f = fw[ks % 2][i]
            L += [f"ds_read_b64_tr_b16 {vr(f,2)}, v{wtr[i]} offset:{so}", f"ds_read_b64_tr_b16 {vr(f+2,2)}, v{wtr[i]} offset:{so+1536}"]
            if i == 0: L.append(f"ds_read_b128 {vr(fx[ks%2][1],4)}, v{vx0} offset:{ks*32 + 32*X_STRIDE}")
        return L
    def gu_groups(ks, late=False):
        R = gu_reads(ks + 1) if ks < 31 else []
        if OPT.get("abl_hds") and ks >= 2 * NP - 1: R = []
        G = []
        for m in range(6):
            i, t = m // 2, m % 2
            mm = [mfma(acc[i][t], fw[ks % 2][i], fx[ks % 2][t], acc[i][t] if ks else None)]
            if OPT.get("abl_hm") and ks >= 2 * NP - 1: mm = []
            G.append(mm + (R[2 * m: 2 * m + 2] if not late else ([] if m < 3 else R[3 * (m - 3): 3 * (m - 3) + 3])))
        return G
    P.wait_lgkm_all()
    stamp(P, 14)
    P("s_barrier")
    stamp(P, 3)
    for x in gu_reads(0): P(x)
    poison()
    PFI = OPT.get("pfi", 0)
    for ks in range(2 * NP - 1):
        if ks % 2 == 1:
            P.wait_lgkm_all(); P("s_barrier")
        for g in gu_groups(ks):
            for x in g: P(x)
    P.wait_tag("kv0"); P.wait_lgkm_all(); P("s_barrier")
    stamp(P, 4)
    gq = []
    tmp = fx[0][0]; cst = fx[1][0]
    assert fx[0][1] == fx[0][0] + 4
    gel = []
    def load_window(k):
        n = 2 * (NP + k) - 1
        assert not gq
        gq.extend(gu_groups(n, late=(k > 0 and OPT.get("sb", 0))))
        if n < 31: gq.extend(gu_groups(n + 1))
    def hookH(it, x, pos):
        if pos == "sync?": return 1 <= it <= JIT
        if pos == "pre0": sigstamp(it, 0); return
        if pos == "pre": sigstamp(it, 1); return
        if pos == "start": load_window(0); return
        midprio(it, x, pos)
        if pos == "pv2" and x == 1 and PF & 1:
            if it == PFI: pf(1, True)
            if it == PFI + 2: pf(2, True)
            if it == PFI + 5: pf(3, True)
        if pos == "pv2" and x == 1 and OPT.get("wpf", 1) and it in (7, 8, 9, 10):
            k = it - 7
            P(f"s_cmp_lg_u32 s{S_W}, {k}")
            P(f"s_cbranch_scc1 LF_wp{k}")
            P(f"buffer_load_dword v{vpd}, v{vpw}, s[{S_PFS}:{S_PFS+3}], 0 offen")
            P.I[-1].kind = "salu"; P.I[-1].vw = set()
            P(f"LF_wp{k}:")
        if pos == "pv1" and x == 0 and 1 <= it <= JIT: load_window(it)
        if pos in ("g1", "g2", "g3", "g4", "g5", "g6"):
            if gq and not (it == 0 and pos in ("g1", "g3", "g5") and False):
                for t in gq.pop(0): P(t)
                if not gq and it == JIT and x == 1:
                    L = [f"v_mov_b32 v{cst}, {hexf(GELU_C1)}", f"v_mov_b32 v{cst+1}, {hexf(GELU_C1)}",
                         f"v_mov_b32 v{cst+2}, {hexf(GELU_C2)}", f"v_mov_b32 v{cst+3}, {hexf(GELU_C2)}"]
                    k = 0
                    for i in range(3):
                        for t in range(2):
                            d = fw[k % 2][k // 2]; k += 1
                            L += gelu_tile_pk(acc[i][t], d, tmp, cst)
                            if t == 1: L.append(f"s_add_u32 s{SH[i]}, s{SH[i]}, {118*1024}")
                            L.append(f"buffer_store_dwordx4 {vr(d,4)}, v{l16}, {WSR}, s{SH[i]} offen sc1")
                    ns = 3 + 12 * (UNI - JIT - 1)
                    n = (len(L) + ns - 1) // ns
                    gel.extend(L[i:i + n] for i in range(0, len(L), n))
            elif gel:
                for t in gel.pop(0): P(t, tag="hst" if "store" in t else None)
    PM = OPT.get("pm", 1)
    def prioH(it, x):
        if PM == 1: return 3 if (it == 0 and x == 0) else None
        if PM == 3: return 3 - 2 * x
        if PM == 5: return (3 - 2 * x) if it < JIT else 3
        if PM == 6: return 3 if it >= JIT else None
        return None
    def prioL(it, x):
        if PM in (2, 6): return 1 if (it == 0 and x == 0) else None
        if PM == 3: return 3 - 2 * x
        if PM == 5: return (3 - 2 * x) if it < JIT else 0
        return None
    def midprio(it, x, pos):
        if PM in (3, 5) and pos == "pv2" and (PM == 3 or it <= JIT): P(f"s_setprio {2 * x}")
    attention(P, A, l16, range(0, UNI), hookH, prioH, kvf=lambda c: None)
    nsb = A["sb"].n; A["sb"].n = 0
    assert not gq and not gel, (len(gq), len(gel))
    P.cond_end(keep=True)
    P("s_branch LF_join")
    for n in ("vx0", "vtn", "wtr0", "wtr1", "wtr2", "vpf", "vpw"): V.release(n)

    P("LF_light:")
    P.cond_begin()
    pats = w_patterns(P, V, lane, t0, t1)
    P(f"s_lshl_b32 s{S_T0}, s{S_HP}, 1")
    P(f"s_mul_i32 s{S_WOFF}, s{S_T0}, {8*2752}")
    P(f"s_lshl_b32 s{S_T1}, s{S_U0}, 5")
    P(f"s_add_u32 s{S_WOFF}, s{S_WOFF}, s{S_T1}")
    P(f"s_mul_i32 s{S_WLDS}, s{S_T0}, 3072")
    P(f"s_mul_i32 s{S_T1}, s{S_TT}, {UP_OFF}")
    P(f"s_add_u32 s{S_WLDS}, s{S_WLDS}, s{S_T1}")
    inattn = dict(on=False)
    P(f"s_add_u32 s{S_WOFF}, s{S_WOFF}, 0")
    P(f"v_subrev_u32 v{pats[1]}, 1024, v{pats[1]}")
    P(f"v_subrev_u32 v{pats[2]}, 2048, v{pats[2]}")
    def w_dma1(s, k):
        g, i = k // 3, k % 3
        solo = not OPT.get("wm0", 1) or inattn["on"]
        if i == 0 or solo:
            dma(P, pats[i], S_WM, f"s{S_T3}", (S_WLDS, SLOT[s % 3] + 3072 * g), offset=1024 * i, tag=f"w{s}",
                pre=[f"s_add_u32 s{S_T3}, s{S_WOFF}, 0x{(32*s + 8*g)*2752:x}"] if i == 0 else None)
        else:
            P(f"buffer_load_dwordx4 v{pats[i]}, s[{S_WM}:{S_WM+3}], s{S_T3} offen offset:{1024*i} lds", tag=f"w{s}")
    def w_dma6(s):
        for k in range(6): w_dma1(s, k)
    vgw = acc[0][1]
    dma(P, l16, S_GW, "0", (None, GWL), tag="q")
    P(f"v_lshrrev_b32 v{t0}, 5, v{lane}")
    P(f"v_lshlrev_b32 v{vgw}, 4, v{t0}")
    P(f"s_lshl_b32 s{S_T0}, s{S_HP}, 9")
    P(f"v_add_u32 v{vxa}, s{S_T0}, v{vxa}")
    P(f"s_add_u32 s{S_T0}, s{S_T0}, 0x{GWL:x}")
    P(f"v_add_u32 v{vgw}, s{S_T0}, v{vgw}")
    P(f"s_lshl_b32 s{S_T0}, s{S_W}, 8")
    P(f"s_add_u32 s{S_T0}, s{S_T0}, 0x{ONES - 1024:x}")
    P(f"v_lshlrev_b32 v{t0}, 2, v{lane}")
    P(f"v_add_u32 v{t0}, s{S_T0}, v{t0}")
    P(f"v_mov_b32 v{t1}, 0x3f803f80")
    P(f"v_lshrrev_b32 v1, 2, v{lane}")
    P(f"v_and_b32 v1, 11, v1")
    P(f"v_cmp_eq_u32 vcc, 0, v1")
    P(f"v_cndmask_b32 v{t1}, 0, v{t1}, vcc")
    P(f"ds_write_b32 v{t0}, v{t1}")
    P(f"ds_write_b32 v{t0}, v{t1} offset:1024")
    P.wait_tag("q")
    P("s_barrier")
    stamp(P, 2)
    stamp(P, 11)
    P("s_barrier")
    w_dma6(0)
    stamp(P, 13)
    P("s_barrier")
    w_dma6(1)
    poison()
    za = acc[0][0]; zx = [acc[1][0] + 4 * i for i in range(4)]; zg = [acc[2][0] + 4 * i for i in range(4)]
    def zjob():
        for r in range(4): P(f"v_mov_b32 v{za+r}, 0")
        def zld(k):
            P(f"ds_read_b128 {vr(zx[k%4],4)}, v{vxa} offset:{k*32}")
            P(f"ds_read_b128 {vr(zg[k%4],4)}, v{vgw} offset:{k*32}")
        for k in range(3): zld(k)
        for k in range(16):
            for r in range(4): P(f"v_dot2c_f32_bf16 v{za+r}, v{zx[k%4]+r}, v{zg[k%4]+r}")
            if k + 3 < 16: zld(k + 3)
        P("s_nop 2")
        P(f"v_add_f32 v{za}, v{za}, v{za+1}")
        P(f"v_add_f32 v{za+2}, v{za+2}, v{za+3}")
        P(f"v_add_f32 v{za}, v{za}, v{za+2}")
        P(f"s_and_b32 s{S_T0}, s{S_W}, 3")
        P(f"s_lshl_b32 s{S_T0}, s{S_T0}, 8")
        P(f"s_add_u32 s{S_T0}, s{S_T0}, 0x{MISC:x}")
        P(f"v_lshlrev_b32 v{t0}, 2, v{lane}")
        P(f"v_add_u32 v{t0}, s{S_T0}, v{t0}")
        P(f"ds_write_b32 v{t0}, v{za}")
    P(f"s_mov_b32 s{S_T6}, 0x{FL_KV:x}")
    def kv_both(c):
        kv_dma(P, l16, c)
        dma(P, l16, S_WS, f"s{S_T2}", (S_KVLDS, (8192 * (c & 1) - 4096) & 0xffffffff), tag=f"kv{c}", mods=SC1, pre=[f"s_sub_u32 s{S_T2}, s{S_T2}, 32768"])
    def poll_issue():
        P(f"buffer_load_dword v{vn}, v{vz}, s[{S_DBG}:{S_DBG+3}], 0 offen sc1")
        P(flag_load(vfl, 4, l16, f"s{S_T6}"))
    for s in range(0, NP + 1):
        P.wait_tag(f"w{s}")
        P.wait_lgkm_all()
        if s == 0: stamp(P, 14)
        P("s_barrier")
        if s == 0:
            stamp(P, 3)
            P(f"ds_read_b128 {vr(qf,4)}, v{vq} offset:1024")
            P(f"ds_read_b128 {vr(qf+4,4)}, v{vq}")
        if s == NP: kv_both(1)
        if s < NP: w_dma6(s + 2)
        if s == 0:
            P(f"buffer_load_dword v{vn}, v{vz}, s[{S_DBG}:{S_DBG+3}], 0 offen sc1")
            zjob()
    assert NP >= 1
    stamp(P, 4)
    dq = []
    def hookL(it, x, pos):
        if pos == "sync?": return 1 <= it <= JIT
        if pos == "pre0": sigstamp(it, 0); return
        if pos == "pre":
            if NP + it < 16: P.wait_tag(f"w{NP+it}")
            sigstamp(it, 1); return
        if (pos == "start" or pos == "chk") and NP + it + 2 < 16:
            assert not dq
            for k in range(0 if OPT.get("abl_ldma") else 6): dq.append(lambda s=NP + it + 2, k=k: w_dma1(s, k))
        midprio(it, x, pos)
        if (pos in ("pv2", "qk", "pv1") or (pos == "g5" and x == 1 and OPT.get("sb", 0))) and dq: dq.pop(0)()
    attention(P, A, l16, range(0, UNI), hookL, prioL, kvf=kv_both)
    assert A["sb"].n == nsb
    assert not dq
    P.cond_end(keep=True)
    P("LF_join:")
    P.join()
    for n in ["wpat0", "wpat1", "wpat2", "vxa", "vq"] + [f"acc{i}{t}" for i in range(3) for t in range(2)] + \
             [f"fx{b}{t}" for b in range(2) for t in range(2)] + [f"fw{b}{i}" for b in range(2) for i in range(3)]: V.release(n)
    stamp(P, 5)

    facc = V.alloc("facc", 16); facc1 = V.alloc("facc1", 16); fa = V.alloc("ffa", 8)
    NB = OPT.get("nb", 6)
    hb = [V.alloc(f"hb{i}", 4) for i in range(NB)]; fb = hb[0]
    vl4 = V.alloc("vl4"); vg = V.alloc("vg"); zt = V.alloc("zt", 2)
    va0 = tr_slice_addr(P, V, "fa0", lane, t0, t1, 0, S_KH, 4)
    vA = [[va0, V.alloc("fa0h")], [V.alloc("fa1"), V.alloc("fa1h")]]
    P(f"s_lshl_b32 s{S_T1}, s{S_HP}, 5")
    P(f"v_xor_b32 v{va0}, s{S_T1}, v{va0}")
    P(f"s_lshr_b32 s{S_T0}, s{S_W}, 1")
    P(f"s_lshl_b32 s{S_T1}, s{S_T0}, 11")
    P(f"v_add_u32 v{va0}, s{S_T1}, v{va0}")
    P(f"v_xor_b32 v{vA[1][0]}, 64, v{va0}")
    P(f"v_add_u32 v{vA[0][1]}, 0x10000, v{va0}")
    P(f"v_add_u32 v{vA[1][1]}, 0x10000, v{vA[1][0]}")
    P(f"s_mul_i32 s{S_FB}, s{S_TILE}, 118")
    P(f"s_add_u32 s{S_FB}, s{S_FB}, s{S_T0}")
    P(f"s_lshl_b32 s{S_FB}, s{S_FB}, 10")
    P(f"s_add_u32 s{S_FB}, s{S_FB}, 0x{WS_OH:x}")
    P(f"v_lshlrev_b32 v{vl4}, 2, v{lane}")
    P(f"s_lshl_b32 s{S_T0}, s{S_TT}, 8")
    P(f"s_add_u32 s{S_T0}, s{S_T0}, 0x{MISC:x}")
    P(f"v_add_u32 v{t0}, s{S_T0}, v{vl4}")
    P(f"ds_read_b32 v{zt}, v{t0}")
    P(f"ds_read_b32 v{zt+1}, v{t0} offset:512")
    P(f"v_add_f32 v{zt}, v{zt}, v{zt+1}")
    P(f"v_mov_b32 v{zt+1}, v{zt}")
    P(f"v_permlane32_swap_b32 v{zt}, v{zt+1}")
    P(f"v_add_f32 v{zt}, v{zt}, v{zt+1}")
    P(f"v_mul_f32 v{t0}, {hexf(-LOG2E)}, v{zt}")
    P(f"v_exp_f32 v{t0}, v{t0}")
    P(f"v_add_f32 v{t0}, 1.0, v{t0}")
    P(f"v_rcp_f32 v{vg}, v{t0}")
    V.release("zt")
    vw = [V.alloc(f"vw{i}") for i in range(3)]; vrd = V.alloc("vrd"); vo = V.alloc("vo")
    def sbase(dst, w):
        P(f"s_mul_i32 s{S_T1}, s{w}, 6144")
        P(f"v_add_u32 v{dst}, s{S_T1}, v{l16}")
    sbase(vrd, S_W)
    for b in range(1, 4):
        P(f"s_xor_b32 s{S_T0}, s{S_W}, {b << 1}")
        sbase(vw[b - 1], S_T0)
    P(f"v_and_b32 v{vo}, 31, v{lane}")
    P(f"v_lshlrev_b32 v{vo}, 10, v{vo}")
    P(f"v_lshrrev_b32 v{t1}, 5, v{lane}")
    P(f"v_lshl_add_u32 v{vo}, v{t1}, 4, v{vo}")
    P(f"s_lshl_b32 s{S_OO}, s{S_TILE}, 15")
    P(f"s_lshl_b32 s{S_T1}, s{S_J}, 7")
    P(f"s_add_u32 s{S_OO}, s{S_OO}, s{S_T1}")
    P(f"s_lshl_b32 s{S_T1}, s{S_KH}, 6")
    P(f"s_add_u32 s{S_OO}, s{S_OO}, s{S_T1}")
    P(f"s_lshl_b32 s{S_T1}, s{S_HP}, 5")
    P(f"s_add_u32 s{S_OO}, s{S_OO}, s{S_T1}")
    vp = V.alloc("vp"); vpa = V.alloc("vpa")
    P(f"v_lshlrev_b32 v{vpa}, 10, v{lane}")
    vt0 = V.alloc("vt0"); vt1 = V.alloc("vt1")
    P(f"s_lshr_b32 s{S_T1}, s{S_W}, 1")
    P(f"s_mul_i32 s{S_T1}, s{S_T1}, {16384 - 2048}")
    P(f"s_add_u32 s{S_T1}, s{S_T1}, {3*16384}")
    P(f"v_add_u32 v{vt0}, s{S_T1}, v{vA[0][0]}")
    P(f"v_add_u32 v{vt1}, s{S_T1}, v{vA[1][0]}")
    va = V.alloc("cva"); vb = V.alloc("cvb"); fb = V.alloc("cvon")
    P(f"s_mul_i32 s{S_T0}, s{S_W}, 3072")
    P(f"s_add_u32 s{S_T0}, s{S_T0}, 114688")
    P(f"v_add_u32 v{va}, s{S_T0}, v{l16}")
    P(f"s_xor_b32 s{S_T0}, s{S_W}, 4")
    P(f"s_mul_i32 s{S_T0}, s{S_T0}, 3072")
    P(f"s_add_u32 s{S_T0}, s{S_T0}, 114688")
    P(f"v_add_u32 v{vb}, s{S_T0}, v{l16}")
    P(f"s_add_u32 s{S_OL2}, s{S_OL}, 4096")
    BSLOT = lambda b: ((b % 8) if b < 11 else (b - 8)) * 16384
    def a_reads(r, d):
        o = (4 * r % 64) * 2048; hi = o >> 16; o &= 0xffff
        assert r // 2 in vis, (r, vis)
        rd_done[r // 2] = rd_done.get(r // 2, 0) + 1
        if OPT.get("abl_uds"): return
        P(f"ds_read_b64_tr_b16 {vr(fa+4*d,2)}, v{vA[d][hi]} offset:{o}")
        P(f"ds_read_b64_tr_b16 {vr(fa+4*d+2,2)}, v{vA[d][hi]} offset:{o+1024}")
    def h_load(r):
        if OPT.get("abl_uh"): return
        P(f"s_add_u32 s{S_T2}, s{S_FB}, {4096*r}")
        if r == 21:
            P(f"s_cmp_lt_u32 s{S_W}, 4")
            P(f"s_cselect_b32 s{S_T2}, s{S_T2}, 0x{OOB:x}")
        P(f"buffer_load_dwordx4 {vr(hb[r%NB],4)}, v{l16}, {WSR}, s{S_T2} offen sc1")
    pend = {}
    dq = []; vis = set(); issued = {}; rd_done = {}; nxt = dict(b=0, r=0, d=0, pre=False)
    def qW(b):
        def f(i):
            if not OPT.get("abl_uw"): fin_dma_w1(P, vsl, b, BSLOT(b), f"fw{b}", i)
            issued[b] = issued.get(b, 0) + 1
        for i in range(2): dq.append(lambda i=i: f(i))
    CH = OPT.get("ch", HF + 3); R0 = OPT.get("r0", 2 * (CH + 2))
    DBL = OPT.get("dbl", 64)
    def mstep():
        r, d = nxt["r"], nxt["d"]
        if r >= 22: return
        if not nxt["pre"]:
            a_reads(0, 0); a_reads(0, 1); nxt["pre"] = True; return
        if not OPT.get("abl_um"): P(mfma([facc, facc1][d], fa + 4 * d, hb[r % NB], [facc, facc1][d] if r else None))
        if r + 1 < 22: a_reads(r + 1, d)
        if d == 1 and r + NB < 22: dq.insert(0, lambda r=r: h_load(r + NB))
        nxt["d"] = 1 - d; nxt["r"] = r + d
    def hookU(it, x, pos):
        sig = (x == 0 and (it & 1)); ph = 2 * it + x
        if pos == "sync?": return False
        if pos == "pre0": sigstamp(it, 0); return
        if pos == "pre":
            if it == HF: P.wait_vm_all()
            need = [b for b in issued if issued[b] == 2 and b not in vis and (it == 29 or b <= (max(0, ph + 8 - R0) * (2 if ph + 6 >= DBL else 1)) // 2) and b <= 10]
            if need: P.wait_tag(*[f"fw{b}" for b in need])
            pend["vis"] = need; pend["free"] = {b for b in rd_done if rd_done[b] >= 4}
            sigstamp(it, 1); return
        if pos == "pv1" and sig and it == HF:
            nonce_check(P, SL, vn, vz)
            flag_store(P, vz, t0, S_FS)
        if pos == "chk":
            vis.update(pend["vis"])
            while it >= HF and nxt["b"] < 15:
                b = nxt["b"]; prev = {8: 0, 9: 1, 10: 2, 11: 3, 12: 4, 13: 5, 14: 6}.get(b)
                if prev is not None and prev not in pend["free"]: break
                qW(b); nxt["b"] += 1
            return
        if pos == "pv2" and x == 0 and it == CH - 1: P(flag_load(vfl, 1, vl4, f"s{S_FP}"))
        if pos == "pv2" and x == 0 and it == CH:
            spin_check(P, SL, [flag_load(vfl, 1, vl4, f"s{S_FP}")], flag_cmp(vfl, 1, t0))
            for r in range(NB): dq.insert(r, lambda r=r: h_load(r))
        elif dq and (pos in ("pv2", "qk") or (pos in ("g2", "g5") and it in (CH, CH + 1)) or (pos == "g5" and OPT.get("d3"))): dq.pop(0)()
        if nxt["r"] >= 22 - OPT.get("tr", 3) and nxt["d"] == 0: pass
        elif (pos in ("g1", "g4") and ph >= R0) or (pos == "g4" and ph == R0 - 1) or (pos in ("g3", "g6") and ph >= DBL): mstep()
        if pos == "g6" and it == 31 and x == 1:
            assert nxt["b"] == 15, nxt
            print("rounds left for tail:", 22 - nxt["r"])
    def prioU(it, x):
        if not OPT.get("prio", 1): return None
        return 3 - (2 * ((it + 1) & 1) + x)
    attention(P, A, l16, range(UNI, 32), hookU, prioU)
    assert not dq
    stamp(P, 6)
    if OPT.get("sig"):
        P(f"s_lshl_b32 s98, s2, 11")
        P(f"s_lshl_b32 s99, s{S_W}, 8")
        P(f"s_add_u32 s98, s98, s99")
        P(f"s_add_u32 s98, s98, 0x{WS_STAMP + (1<<20):x}")
        P(f"buffer_store_dword v{vsig}, v{vl4}, {WSR}, s98 offen")
    P("s_setprio 0")
    P(f"v_mov_b32 v{O[1]+7}, v{O[1]}")
    for i in range(3): P(f"ds_write_b128 v{va}, {vr(O[1]+4+4*i,4)} offset:{1024*i}")
    P.wait_tag(*[f"fw{b}" for b in range(8, 15)]); P.wait_lgkm_all()
    P("s_barrier")
    vis.update(range(11))
    for i in range(3): P(f"ds_read_b128 {vr(O[1]+4+4*i,4)}, v{vb} offset:{1024*i}")
    P(f"v_add_f32 v{O[0]}, v{O[0]}, v{O[1]+7}")
    for r in range(8, 16): P(f"v_add_f32 v{O[0]+r}, v{O[0]+r}, v{O[1]+r}")
    P(f"v_mov_b32 v{t1}, 0x207")
    P(f"v_cmp_nle_f32 vcc, {hexf(2.0**-90)}, v{O[0]}")
    P(f"v_cmp_nge_f32 s[{S_PM}:{S_PM+1}], {'s' + str(S_T0)}, v{O[0]}".replace(f"s{S_T0}", f"s{S_C1}"))
    P(f"s_or_b64 vcc, vcc, s[{S_PM}:{S_PM+1}]")
    P(f"v_add3_u32 v{t0}, v{O[0]+8}, 0, 0".replace("v_add3_u32", "v_add_f32").replace(", 0, 0", f", v{O[0]+9}"))
    for r in range(10, 16): P(f"v_add_f32 v{t0}, v{t0}, v{O[0]+r}")
    P(f"v_cmp_class_f32 s[{S_PM}:{S_PM+1}], v{t0}, v{t1}")
    P(f"s_or_b64 vcc, vcc, s[{S_PM}:{S_PM+1}]")
    if OPT.get("forcefb"): P("s_mov_b64 vcc, -1")
    P("s_cmp_lg_u64 vcc, 0")
    P("s_cbranch_scc1 LF_fb")
    P("LF_fbr:")
    P(f"v_rcp_f32 v{t0}, v{O[0]}")
    P(f"v_mul_f32 v{t0}, v{t0}, v{vg}")
    for r in range(8, 16): P(f"v_mul_f32 v{O[0]+r}, v{O[0]+r}, v{t0}")
    for r in range(4): P(f"v_cvt_pk_bf16_f32 v{O[1]+r}, v{O[0]+8+2*r}, v{O[0]+9+2*r}")
    for r in range(4): P(f"v_min_u32 v{O[1]+r}, 0xfffffffe, v{O[1]+r}")
    P(f"buffer_store_dwordx4 {vr(O[1],4)}, v{l16}, {WSR}, s{S_OD} offen sc1", tag="ost")
    stamp(P, 7)
    K4, V8, ON, CM = A["fk"], A["fv"][0], fb, O[1]
    assert A["fv"][1] == V8 + 4
    nl = "\n    "
    fbk = f"""LF_fb:
    s_waitcnt vmcnt(0) lgkmcnt(0)
    v_mov_b32 v{t0}, 0xff800000
    s_mov_b32 s{S_T0}, 0x{WS_KF:x}
LF_fb1:
    buffer_load_dwordx4 {vr(K4,4)}, v{l16}, {WSR}, s{S_T0} offen sc1
    s_waitcnt vmcnt(0)
    {mfma(S[0], K4, qf)}
    s_nop 15
    {nl.join(f"v_max3_f32 v{t0}, v{S[0]+2*r}, v{S[0]+2*r+1}, v{t0}" for r in range(8))}
    s_add_u32 s{S_T0}, s{S_T0}, 1024
    s_cmp_lt_u32 s{S_T0}, 0x{WS_KF + 65536:x}
    s_cbranch_scc1 LF_fb1
    v_mov_b32 v{t1}, v{t0}
    s_nop 1
    v_permlane32_swap_b32 v{t0}, v{t1}
    s_nop 1
    v_max_f32 v{t0}, v{t0}, v{t1}
    {nl.join(f"v_sub_f32 v{CM+r}, 0, v{t0}" for r in range(16))}
    {nl.join(f"v_mov_b32 v{O[0]+r}, 0" for r in range(16))}
    v_lshrrev_b32 v{t0}, 5, v{lane}
    v_lshlrev_b32 v{t0}, 8, v{t0}
    v_and_b32 v{t1}, 15, v{lane}
    v_lshl_add_u32 v{t0}, v{t1}, 4, v{t0}
    v_and_b32 v{t1}, 16, v{lane}
    v_cmp_eq_u32 vcc, 0, v{t1}
    v_mov_b32 v{t1}, 0x{OOB:x}
    s_nop 1
    v_cndmask_b32 v{t0}, v{t0}, v{t1}, vcc
    v_and_b32 v{t1}, 27, v{lane}
    v_cmp_eq_u32 vcc, 0, v{t1}
    v_mov_b32 v{ON}, 0x3f803f80
    s_nop 1
    v_cndmask_b32 v{ON}, 0, v{ON}, vcc
    s_mov_b32 s{S_T0}, 0x{WS_KF:x}
LF_fb2:
    s_add_u32 s{S_T1}, s{S_T0}, 0x{WS_VF - WS_KF:x}
    buffer_load_dwordx4 {vr(K4,4)}, v{l16}, {WSR}, s{S_T0} offen sc1
    buffer_load_dwordx4 {vr(V8,4)}, v{t0}, {WSR}, s{S_T1} offen sc1
    buffer_load_dwordx4 {vr(V8+4,4)}, v{t0}, {WSR}, s{S_T1} offen offset:512 sc1
    s_waitcnt vmcnt(0)
    {mfma(S[0], K4, qf, CM)}
    {nl.join(f"v_or_b32 v{V8+r}, v{V8+r}, v{ON}" for r in range(8))}
    s_nop 7
    {nl.join(f"v_exp_f32 v{S[0]+r}, v{S[0]+r}" for r in range(16))}
    s_nop 1
    {nl.join(f"v_cvt_pk_bf16_f32 v{S[1]+r}, v{S[0]+2*r}, v{S[0]+2*r+1}" for r in range(8))}
    s_nop 1
    {mfma(O[0], V8, S[1], O[0])}
    {mfma(O[0], V8+4, S[1]+4, O[0])}
    s_add_u32 s{S_T0}, s{S_T0}, 1024
    s_cmp_lt_u32 s{S_T0}, 0x{WS_KF + 65536:x}
    s_cbranch_scc1 LF_fb2
    s_nop 15
    s_branch LF_fbr
"""
    SL.add(fbk)
    for n in ("Sa", "Sb", "Oa", "qf", "fk", "fv1", "fv2"): V.release(n)
    ob = V.alloc("ob", 32); wa = [V.alloc(f"wa{u}", 8) for u in range(8)]
    def oloads(g): return [f"buffer_load_dwordx4 {vr(ob+16*g+4*u,4)}, v{l16}, {WSR}, s{[S_OL,S_OL2][g]} offen offset:{1024*u} sc1" for u in range(4)]
    def ocheck(g):
        b = ob + 16 * g
        L = [f"v_max3_u32 v{t0}, v{b}, v{b+1}, v{b+2}"]
        for k in range(3, 15, 2): L.append(f"v_max3_u32 v{t0}, v{b+k}, v{b+k+1}, v{t0}")
        L += [f"v_max_u32 v{t0}, v{b+15}, v{t0}", f"v_cmp_eq_u32 vcc, -1, v{t0}"]
        return L
    fa2 = V.alloc("ffa2", 8)
    wr = []
    for u in range(8):
        for d, v in ((0, vt0), (1, vt1)):
            wr.append([f"ds_read_b64_tr_b16 {vr(wa[u]+4*d,2)}, v{v} offset:{u*2048}", f"ds_read_b64_tr_b16 {vr(wa[u]+4*d+2,2)}, v{v} offset:{u*2048+1024}"])
    r0 = nxt["r"]; assert nxt["d"] == 0 and not dq
    def tr_reads(r, d):
        o = (4 * r % 64) * 2048; hi = o >> 16; o &= 0xffff; f = [fa, fa2][(r - r0) % 2] + 4 * d
        P(f"ds_read_b64_tr_b16 {vr(f,2)}, v{vA[d][hi]} offset:{o}")
        P(f"ds_read_b64_tr_b16 {vr(f+2,2)}, v{vA[d][hi]} offset:{o+1024}")
    if r0 + 1 < 22: tr_reads(r0 + 1, 0); tr_reads(r0 + 1, 1)
    OL = min(r0 + OPT.get("ol", 99), 22)
    for r in range(r0, 22):
        if r == OL:
            for g in range(2):
                for x in oloads(g): P(x)
        for d in range(2):
            P(mfma([facc, facc1][d], [fa, fa2][(r - r0) % 2] + 4 * d, hb[r % NB], [facc, facc1][d]))
            if r + 2 < 22: tr_reads(r + 2, d)
            elif wr:
                for g in wr[:4]:
                    for x in g: P(x)
                del wr[:4]
    for g in wr:
        for x in g: P(x)
    assert 22 - r0 <= NB and r0 >= 16
    if OPT.get("oab"): P.wait_lgkm_all(); P("s_barrier")
    if OL == 22:
        for g in range(2):
            for x in oloads(g): P(x)
    P(f"v_sub_f32 v{t1}, 1.0, v{vg}")
    P(f"v_mov_b32 v{t0}, v{t1}")
    assert t1 == t0 + 1 and t0 % 2 == 0
    for r in range(0, 16, 2): P(f"v_pk_mul_f32 v[{facc+r}:{facc+r+1}], v[{facc+r}:{facc+r+1}], v[{t0}:{t1}]")
    for r in range(0, 16, 2): P(f"v_pk_mul_f32 v[{facc1+r}:{facc1+r+1}], v[{facc1+r}:{facc1+r+1}], v[{t0}:{t1}]")
    if not OPT.get("oab"): P.wait_lgkm_all(); P("s_barrier")
    stamp(P, 8)
    nl = "\n    "
    for g in range(2):
        k = SL.n; SL.n += 1
        for x in ocheck(g): P(x)
        P(f"s_cbranch_vccnz LS{k}")
        P(f"LR{k}:")
        SL.add(f"""LS{k}:
    s_mov_b32 s{S_T7}, 0
LS{k}_p:
    s_mov_b64 exec, 0xf
    buffer_load_dword v{vp}, v{vpa}, {WSR}, s{[S_OL,S_OL2][g]} offen offset:1020 sc1
    s_waitcnt vmcnt(0)
    v_cmp_eq_u32 vcc, -1, v{vp}
    s_mov_b64 exec, -1
    s_add_u32 s{S_T7}, s{S_T7}, 1
    s_cmp_ge_u32 s{S_T7}, 0x{SPIN_MAX:x}
    s_cbranch_scc1 LR{k}
    s_cbranch_vccnz LS{k}_p
    {nl.join(oloads(g))}
    s_waitcnt vmcnt(0)
    {nl.join(ocheck(g))}
    s_cbranch_vccnz LS{k}_p
    s_nop 1
    s_branch LR{k}
""")
        for u in range(4 * g, 4 * g + 4):
            P(mfma(facc1, wa[u] + 4, ob + 4 * u, facc1))
    W1 = [f"ds_write_b128 v{vw[b-1]}, {vr(src+4*i,4)} offset:{2048*(b-1) + 1024*i}" for b, src in ((2, facc1), (3, facc1 + 8)) for i in range(2)]
    for u in range(8):
        P(mfma(facc, wa[u], ob + 4 * u, facc))
        if u >= 3 and W1:
            if u == 3: P("s_nop 7")
            P(W1.pop(0))
    stamp(P, 9)
    for b, src in ((1, facc + 8),):
        for i in range(2): P(f"ds_write_b128 v{vw[b-1]}, {vr(src+4*i,4)} offset:{2048*(b-1) + 1024*i}")
    P.wait_lgkm_all()
    P("s_barrier")
    for i in range(6): P(f"ds_read_b128 {vr(ob+4*i,4)}, v{vrd} offset:{1024*i}")
    for b in range(3):
        for r in range(8): P(f"v_add_f32 v{facc+r}, v{facc+r}, v{ob+8*b+r}")
    for r in range(4): P(f"v_cvt_pk_bf16_f32 v{facc1+r}, v{facc+2*r}, v{facc+2*r+1}")
    P(f"v_permlane32_swap_b32 v{facc1}, v{facc1+2}")
    P(f"v_permlane32_swap_b32 v{facc1+1}, v{facc1+3}")
    P(f"buffer_store_dwordx4 {vr(facc1,4)}, v{vo}, s[{S_OUT}:{S_OUT+3}], s{S_OO} offen{OPT.get('omod','')}")
    if STAMP["on"]:
        P.wait_vm_all(); stamp(P, 10); stamp_dump(P, lane)
        if OPT.get("dbgst") is not None:
            P(f"s_cmp_lg_u32 s2, {OPT['dbgst']}")
            P("s_cbranch_scc1 LF_end")
            P(f"s_cmp_lg_u32 s{S_W}, {OPT.get('dbgw', 0)}")
            P("s_cbranch_scc1 LF_end")
            P(f"v_subrev_u32 v{VSTAMP}, s100, v{VSTAMP}")
            P("s_mov_b64 exec, 0x7fff")
            P(f"buffer_store_dword v{VSTAMP}, v1, s[{S_DBG}:{S_DBG+3}], 0 offen offset:4")
    P("LF_end:")
    P("s_endpgm")
    name = NAME + "_kernel"
    body, I = finalize(P)
    txt = f".text\n.globl {name}\n.p2align 8\n.type {name},@function\n{name}:\n" + body + "".join(SL.txt) + "LF_last:\n    s_endpgm\n"
    vg_ = 256 if STAMP["on"] else max(V.hi, 8)
    txt += KD.format(name=name, vgpr=vg_, sgpr=102 if STAMP['on'] else 96, accum=(vg_ + 3) // 4 * 4)
    return txt, I, vg_


if __name__ == "__main__":
    out = sys.argv[1]
    STAMP["on"] = "stamp" in sys.argv
    for a in sys.argv[2:]:
        if "=" in a: k, v = a.split("="); OPT[k] = int(v)
        else: OPT[a] = True
    import asmlib; asmlib.MERGE_D = OPT.get("md", 9)
    t, I, vg_ = kernel_F()
    hdr = HEADER + f"; @launch grid=(256,1,1) block=(512,1,1) lds={LDS_BYTES}\n" + '.amdgcn_target "amdgcn-amd-amdhsa--gfx950"\n'
    open(out, "w").write(hdr + t)
    print("insts", len(I), "vgpr", vg_, "nops", sum(1 for x in I if x.kind == "nop"))
```

```python
import sys
from parts import *
OPT = {}
S_NONCE = 93
S_HP, S_KH = 30, 31
SH = [4, 5, 6]
S_FS, S_FP, S_OD, S_OL = 7, 8, 9, 10
S_FW, S_FB, S_FL, S_FL2 = 12, 13, 14, 15
S_OO, S_OL2 = 11, 18
S_PM = 16
FL_KV, FL_H = WS_FLAG, WS_FLAG + 4096
WKV_L = KV_RING
QSCR = KV_RING + 8192
FSLOT = [0, 32768, 65536, 98304]
WO_CH = [98304, 114688, 0, 32768]
SC1 = " sc1"
SPIN_MAX = 1 << 22
WSR = f"s[{S_WS}:{S_WS+3}]"


class Slow:
    def __init__(self): self.txt = []; self.n = 0
    def add(self, t): self.txt.append(t)


LOADS = {}
def emit_loads(P, l16, vsl):
    P(f"s_sub_u32 s{S_T3}, s{S_W}, 3")
    P(f"s_cmp_lt_u32 s{S_T3}, 4")
    P("s_cbranch_scc1 LF_ldq")
    P(f"s_lshr_b32 s{S_T4}, s{S_J}, 1")
    P(f"s_add_u32 s{S_T4}, s{S_T4}, s{S_W}")
    P(f"s_add_u32 s{S_T4}, s{S_T4}, 1")
    P(f"s_and_b32 s{S_T4}, s{S_T4}, 3")
    P(f"s_lshl_b32 s{S_T0}, s{S_G}, 16")
    P(f"s_lshl_b32 s{S_T4}, s{S_T4}, 4")
    ROT = OPT.get("rot", 1)
    P(f"s_and_b32 s{S_T6}, s{S_J}, 3")
    P(f"s_lshl_b32 s{S_T6}, s{S_T6}, 2")
    if not ROT: P(f"s_mov_b32 s{S_T6}, 0")
    P(f"s_add_u32 s{S_T5}, s{S_T6}, 16")
    P("s_waitcnt lgkmcnt(0)")
    mk_srd(P, S_X, 4, SZ["x"])
    P("LF_ldx1:")
    P(f"s_and_b32 s{S_T1}, s{S_T6}, 15")
    P(f"s_add_u32 s{S_T1}, s{S_T1}, s{S_T4}")
    P(f"s_mul_i32 m0, s{S_T1}, {X_STRIDE}")
    P(f"s_lshl_b32 s{S_T2}, s{S_T1}, 10")
    P(f"s_add_u32 s{S_T2}, s{S_T2}, s{S_T0}")
    P(f"s_add_u32 s{S_T6}, s{S_T6}, 1")
    P(f"buffer_load_dwordx4 v{l16}, s[{S_X}:{S_X+3}], s{S_T2} offen lds", tag="q")
    P(f"s_cmp_lg_u32 s{S_T6}, s{S_T5}")
    P("s_cbranch_scc1 LF_ldx1")
    P("s_branch LF_ldj")
    P("LF_ldq:")
    P(f"s_lshl_b32 s{S_T3}, s{S_T3}, 4")
    P(f"s_and_b32 s{S_T6}, s{S_G}, 7")
    P(f"s_lshl_b32 s{S_T6}, s{S_T6}, 1")
    if not ROT: P(f"s_mov_b32 s{S_T6}, 0")
    P(f"s_add_u32 s{S_T5}, s{S_T6}, 16")
    P(f"s_lshl_b32 s{S_T7}, s{S_J}, 7")
    P("s_waitcnt lgkmcnt(0)")
    mk_srd(P, S_WQ, 6, SZ["wq"])
    P("LF_ldq1:")
    P(f"s_and_b32 s{S_T4}, s{S_T6}, 15")
    P(f"s_add_u32 s{S_T4}, s{S_T4}, s{S_T3}")
    P(f"s_mul_i32 s{S_T0}, s{S_T4}, 171")
    P(f"s_lshr_b32 s{S_T0}, s{S_T0}, 12")
    P(f"s_lshl_b32 s{S_T1}, s{S_T4}, 2")
    P(f"s_add_u32 s{S_T0}, s{S_T0}, s{S_T1}")
    P(f"s_lshl_b32 s{S_T0}, s{S_T0}, 8")
    P(f"s_add_u32 m0, s{S_T0}, 0x{SLOT[0]:x}")
    P(f"s_lshl_b32 s{S_T2}, s{S_T4}, 13")
    P(f"s_add_u32 s{S_T2}, s{S_T2}, s{S_T7}")
    P(f"s_add_u32 s{S_T6}, s{S_T6}, 1")
    P(f"buffer_load_dwordx4 v{vsl}, s[{S_WQ}:{S_WQ+3}], s{S_T2} offen lds")
    P.I[-1].kind = "salu"
    P(f"s_cmp_lg_u32 s{S_T6}, s{S_T5}")
    P("s_cbranch_scc1 LF_ldq1")
    P("LF_ldj:")


def prologue_f(P, V, endlabel):
    if STAMP["on"]: P("s_memrealtime s[100:101]")
    P("s_cmp_ge_u32 s2, 256")
    P(f"s_cbranch_scc1 {endlabel}")
    P("s_load_dwordx16 s[4:19], s[0:1], 0")
    P("s_load_dwordx8 s[20:27], s[0:1], 64")
    P("s_load_dwordx2 s[28:29], s[0:1], 96")
    lane = V.alloc("lane"); l16 = V.alloc("l16")
    P(f"v_lshrrev_b32 v1, 6, v0")
    P(f"v_and_b32 v{lane}, 63, v0")
    P(f"v_readfirstlane_b32 s{S_W}, v1")
    P(f"v_lshlrev_b32 v{l16}, 4, v{lane}")
    P(f"s_lshr_b32 s{S_T0}, s2, 3")
    if OPT.get("jrot"): P(f"s_add_u32 s{S_J}, s{S_T0}, {OPT['jrot']}"); P(f"s_and_b32 s{S_J}, s{S_J}, 3")
    else: P(f"s_and_b32 s{S_J}, s{S_T0}, 3")
    P(f"s_and_b32 s{S_T1}, s2, 1")
    P(f"s_lshl_b32 s{S_T1}, s{S_T1}, 2")
    P(f"s_add_u32 s{S_J}, s{S_J}, s{S_T1}")
    P(f"s_and_b32 s{S_G}, s2, 6")
    P(f"s_lshl_b32 s{S_G}, s{S_G}, 2")
    P(f"s_lshr_b32 s{S_T0}, s{S_T0}, 2")
    P(f"s_add_u32 s{S_G}, s{S_G}, s{S_T0}")
    t0 = V.alloc("t0"); t1 = V.alloc("t1")
    vsl = slice_pattern(P, V, lane, t0)
    LOADS["f"] = lambda: emit_loads(P, l16, vsl)
    P(f"s_and_b32 s{S_TT}, s{S_W}, 1")
    P(f"s_lshl_b32 s{S_TILE}, s{S_G}, 1")
    P(f"s_add_u32 s{S_TILE}, s{S_TILE}, s{S_TT}")
    P(f"s_lshr_b32 s{S_HP}, s{S_W}, 1")
    P(f"s_and_b32 s{S_HP}, s{S_HP}, 1")
    P(f"s_lshr_b32 s{S_KH}, s{S_W}, 2")
    assert all((p * 171) >> 12 == p // 24 for p in range(64)) and SLOT_SZ == 3 * 8192 + 256
    return lane, l16, t0, t1, vsl


def rest_srds(P):
    P(f"s_cmp_eq_u32 s{S_TT}, 0")
    P(f"s_cselect_b32 s{S_WM}, s16, s18")
    P(f"s_cselect_b32 s{S_WM+1}, s17, s19")
    P(f"s_and_b32 s{S_WM+1}, s{S_WM+1}, 0xffff")
    P(f"s_mov_b32 s{S_WM+2}, 0x{SZ['wg']:x}")
    P(f"s_mov_b32 s{S_WM+3}, 0x20000")
    mk_srd(P, S_OUT, 24, SZ["out"])
    mk_srd(P, S_WO, 12, SZ["wo"])
    mk_srd(P, S_WD, 20, SZ["wd"])


def nonce_check(P, SL, vn, vz):
    k = SL.n; SL.n += 1
    P(f"v_readfirstlane_b32 s{S_NONCE}, v{vn}")
    P(f"s_cmp_eq_u32 s{S_NONCE}, 0")
    P(f"s_cbranch_scc1 LS{k}")
    P(f"LR{k}:")
    SL.add(f"""LS{k}:
    s_mov_b32 s{S_T7}, 0
LS{k}_l:
    s_sleep 2
    buffer_load_dword v{vn}, v{vz}, s[{S_DBG}:{S_DBG+3}], 0 offen sc1
    s_waitcnt vmcnt(0)
    v_readfirstlane_b32 s{S_NONCE}, v{vn}
    s_add_u32 s{S_T7}, s{S_T7}, 1
    s_cmp_ge_u32 s{S_T7}, 0x{SPIN_MAX:x}
    s_cbranch_scc1 LR{k}
    s_cmp_eq_u32 s{S_NONCE}, 0
    s_cbranch_scc1 LS{k}_l
    s_branch LR{k}
""")


def flag_load(vf, n, vaddr, soff):
    op = {1: "buffer_load_dword", 4: "buffer_load_dwordx4"}[n]
    return f"{op} {vr(vf,n)}, v{vaddr}, {WSR}, {soff} offen sc1"


def flag_cmp(vf, n, t):
    L = [f"v_xor_b32 v{t}, s{S_NONCE}, v{vf}"]
    for i in range(1, n):
        L += [f"v_xor_b32 v{vf+i}, s{S_NONCE}, v{vf+i}", f"v_or_b32 v{t}, v{t}, v{vf+i}"]
    L += [f"v_cmp_ne_u32 vcc, 0, v{t}"]
    return L


def spin_check(P, SL, loads, cmps, sleep=1):
    k = SL.n; SL.n += 1
    for x in cmps: P(x)
    P(f"s_cbranch_vccnz LS{k}")
    P(f"LR{k}:")
    nl = "\n    "
    SL.add(f"""LS{k}:
    s_mov_b32 s{S_T7}, 0
LS{k}_l:
    {f"s_sleep {sleep}" if sleep else "s_nop 0"}
    {nl.join(loads)}
    s_waitcnt vmcnt(0)
    {nl.join(cmps)}
    s_add_u32 s{S_T7}, s{S_T7}, 1
    s_cmp_ge_u32 s{S_T7}, 0x{SPIN_MAX:x}
    s_cbranch_scc1 LR{k}
    s_cbranch_vccnz LS{k}_l
    s_nop 1
    s_branch LR{k}
""")


def flag_store(P, vz, t, soff):
    P(f"v_mov_b32 v{t}, s{S_NONCE}")
    P("s_mov_b64 exec, 1")
    P(f"buffer_store_dword v{t}, v{vz}, {WSR}, s{soff} offen sc1", tag="flag")
    P("s_mov_b64 exec, -1")


PROG = MISC + 1024
class SplitBar:
    def __init__(self, P, V, SL, lane, t0):
        self.P, self.SL, self.n = P, SL, 0
        self.va = V.alloc("sba"); self.vr = V.alloc("sbr"); self.one = V.alloc("sb1"); self.vg = V.alloc("sbg")
        P(f"s_lshl_b32 s{S_T0}, s{S_W}, 8")
        P(f"s_add_u32 s{S_T0}, s{S_T0}, 0x{PROG:x}")
        P(f"v_lshlrev_b32 v{t0}, 2, v{lane}")
        P(f"v_add_u32 v{self.va}, s{S_T0}, v{t0}")
        P(f"v_and_b32 v{t0}, 7, v{lane}")
        P(f"v_mul_u32_u24 v{t0}, 260, v{t0}")
        P(f"v_add_u32 v{self.vr}, 0x{PROG:x}, v{t0}")
        P(f"v_mov_b32 v{self.one}, 0")
        P(f"ds_write_b32 v{self.va}, v{self.one}")
        P(f"v_mov_b32 v{self.one}, 1")
    def arrive(self):
        self.n += 1
        self.P(f"ds_add_u32 v{self.va}, v{self.one}")
    def peek(self): self.P(f"ds_read_b32 v{self.vg}, v{self.vr}")
    def check(self):
        k = self.SL.n; self.SL.n += 1
        self.P(f"v_cmp_gt_u32 vcc, {self.n}, v{self.vg}")
        self.P(f"s_cbranch_vccz LR{k}")
        self.P(f"LS{k}:")
        for t in ([f"s_sleep {OPT['ssl']}"] if OPT.get("ssl") else []) + [f"ds_read_b32 v{self.vg}, v{self.vr}", "s_waitcnt lgkmcnt(0)", f"v_cmp_gt_u32 vcc, {self.n}, v{self.vg}", f"s_cbranch_vccnz LS{k}"]:
            self.P(t); self.P.I[-1].kind = "salu"; self.P.I[-1].vw = set(); self.P.I[-1].vr = set()
        self.P(f"LR{k}:")


def attn_setup(P, V, lane, l16, t0, t1):
    A = {}
    P(f"s_lshl_b32 s{S_T1}, s{S_KH}, 12")
    vk = V.alloc("vk"); vv = [V.alloc("vv0"), V.alloc("vv1")]
    P(f"s_add_u32 s{S_T1}, s{S_T1}, 0x{KV_RING:x}")
    P(f"v_add_u32 v{vk}, s{S_T1}, v{l16}")
    P(f"v_lshrrev_b32 v{t0}, 5, v{lane}")
    P(f"v_lshlrev_b32 v{t0}, 8, v{t0}")
    P(f"v_and_b32 v{t1}, 15, v{lane}")
    P(f"v_lshl_add_u32 v{t0}, v{t1}, 4, v{t0}")
    P(f"v_and_b32 v{t1}, 16, v{lane}")
    P(f"v_cmp_eq_u32 vcc, 0, v{t1}")
    P(f"s_add_u32 s{S_T1}, s{S_T1}, 2048")
    for s in range(2):
        P(f"v_mov_b32 v{t1}, s{S_T1}")
        P(f"v_add_u32 v{t1}, {8192*s}, v{t1}")
        P(f"v_mov_b32 v{vv[s]}, 0x{ONES:x}")
        P(f"v_cndmask_b32 v{vv[s]}, v{t1}, v{vv[s]}, vcc")
        P(f"v_add_u32 v{vv[s]}, v{vv[s]}, v{t0}")
    P(f"s_lshl_b32 s{S_KVOFF}, s{S_KH}, 15")
    P(f"s_lshl_b32 s{S_T1}, s{S_HP}, 16")
    P(f"s_add_u32 s{S_KVOFF}, s{S_KVOFF}, s{S_T1}")
    P(f"s_lshl_b32 s{S_T1}, s{S_TT}, 10")
    P(f"s_add_u32 s{S_KVOFF}, s{S_KVOFF}, s{S_T1}")
    P(f"s_lshl_b32 s{S_KVLDS}, s{S_W}, 10")
    P(f"s_add_u32 s{S_KVLDS}, s{S_KVLDS}, 0x{KV_RING:x}")
    A.update(vk=vk, vv=vv)
    A["S"] = [V.alloc("Sa", 16), V.alloc("Sb", 16)]
    A["O"] = [V.alloc("Oa", 16), V.alloc("Ob", 16)]
    A["fk"] = V.alloc("fk", 4); A["fv"] = [V.alloc("fv1", 4), V.alloc("fv2", 4)]
    A["q"] = V.alloc("qf", 8)
    return A


def kv_dma(P, l16, c):
    dma(P, l16, S_WS, f"s{S_T2}", (S_KVLDS, 8192 * (c & 1)), tag=f"kv{c}", mods=SC1, pre=[f"s_add_u32 s{S_T2}, s{S_KVOFF}, {2048*c}"])


def attention(P, A, l16, its, hook, prio, kvf=None):
    S, O, fk, fv = A["S"], A["O"], A["fk"], A["fv"]
    SB = OPT.get("sb", 0)
    q = [A["q"], A["q"] + 4]
    def rdK(it): P(f"ds_read_b128 {vr(fk,4)}, v{A['vk']} offset:{((it>>1)&1)*8192 + (it&1)*1024}")
    def rdV(it, half): P(f"ds_read_b128 {vr(fv[half],4)}, v{A['vv'][(it>>1)&1]} offset:{(it&1)*1024 + half*512}")
    E = lambda x, i: P(f"v_exp_f32 v{S[x]+i}, v{S[x]+i}")
    def C(x, i):
        b = S[x] + (8 if i >= 4 else 0); k = i & 3
        P(f"v_cvt_pk_bf16_f32 v{b+k}, v{b+2*k}, v{b+2*k+1}")
    for it in its:
        if it == 0:
            rdK(0); rdV(0, 0)
            hook(0, 0, "start")
            P(mfma(S[0], fk, q[0]))
        for x in range(2):
            H = lambda pos: hook(it, x, pos)
            E(x, 0); E(x, 1)
            if x == 0:
                if it > 0: P(mfma(O[1], fv[1], S[1] + 8, O[1]))
                rdV(it, 1)
            else:
                P(mfma(O[0], fv[1], S[0] + 8, O[0]))
                if SB and A["syn"]:
                    A["sb"].check(); after_sync()
            H("pv2")
            E(x, 2); E(x, 3); H("g1")
            E(x, 4); E(x, 5); H("g2")
            E(x, 6); E(x, 7)
            if x == 0: P(mfma(S[1], fk, q[1]))
            elif it < 31: P(mfma(S[0], fk, q[0]))
            H("qk")
            for i in range(4): C(x, i)
            H("g3")
            E(x, 8); E(x, 9)
            sig = (x == 0 and (it & 1) and it < 31)
            syn = sig or (x == 0 and hook(it, x, "sync?"))
            if syn:
                H("pre0")
                if sig: P.wait_tag(f"kv{(it>>1)+1}")
                H("pre"); P.wait_lgkm_all()
                if SB: A["sb"].arrive()
                else: P("s_barrier")
            P(mfma(O[x], fv[0], S[x], None if it == 0 else O[x]))
            p = prio(it, x)
            if p is not None: P(f"s_setprio {p}")
            def after_sync():
                if it < 31: rdK(it + 1)
                if (it & 1) and (it >> 1) + 2 < 16: (kvf or (lambda c: kv_dma(P, l16, c)))((it >> 1) + 2)
                if A["syn"]: hook(it, 0, "chk")
            if x == 0:
                A["syn"] = syn
                if not (SB and syn): after_sync()
            else:
                if it < 31: rdV(it + 1, 0)
            H("pv1")
            E(x, 10); E(x, 11); H("g4")
            E(x, 12); E(x, 13); H("g5")
            E(x, 14); E(x, 15); H("g6")
            if x == 0 and SB and A["syn"]: A["sb"].peek()
            for i in range(4, 8): C(x, i)
        if it == 31: P(mfma(O[1], fv[1], S[1] + 8, O[1]))


def fin_dma_w1(P, vsl, st, slot, tag, i):
    srd, u0 = (S_WD, 8 * st) if st < 11 else (S_WO, 8 * (st - 11))
    dma(P, vsl, srd, f"s{S_T2}", (S_FL2, slot + 1024 * i), tag=tag, pre=[f"s_add_u32 s{S_T2}, s{S_FW}, 0x{(16*u0 + 8*i)*1024:x}"])


def fin_dma_b1(P, l16, st, slot, tag, t):
    P(f"s_add_u32 s{S_T2}, s{S_FB}, 0x{(t*118 + 8*st)*1024:x}")
    if st == 10:
        P(f"s_cmp_lt_u32 s{S_W}, 6")
        P(f"s_cselect_b32 s{S_T2}, s{S_T2}, 0x{OOB:x}")
    dma(P, l16, S_WS, f"s{S_T2}", (S_FL, slot + 16384 + 8192 * t), tag=tag, mods=SC1)


def kernel_F():
    P = Prog(); V = Regs(2, 255, "v"); SL = Slow()
    NP = OPT.get("np", 2)
    JIT = 16 - NP
    GPP = OPT.get("gpp", 2)
    UNI = OPT.get("uni", JIT + 2)
    HF = OPT.get("hf", UNI | 1)
    lane, l16, t0, t1, vsl = prologue_f(P, V, "LF_end")
    vz = V.alloc("vz")
    P(f"s_lshr_b32 s{S_T4}, s{S_J}, 1")
    P(f"s_lshl_b32 s{S_T4}, s{S_T4}, 4")
    P(f"s_lshl_b32 s{S_T5}, s{S_W}, 1")
    P(f"s_add_u32 s{S_T5}, s{S_T5}, s{S_T4}")
    P(f"s_lshl_b32 s{S_T0}, s{S_G}, 16")
    P(f"s_lshl_b32 s{S_T2}, s{S_T5}, 10")
    P(f"s_add_u32 s{S_T2}, s{S_T2}, s{S_T0}")
    P(f"s_mul_i32 s{S_T1}, s{S_T5}, {X_STRIDE}")
    P(f"s_and_b32 s{S_T3}, s{S_J}, 1")
    P(f"s_lshl_b32 s{S_T7}, s{S_W}, 11")
    P("s_waitcnt lgkmcnt(0)")
    mk_srd(P, S_X, 4, SZ["x"])
    dma(P, l16, S_X, f"s{S_T2}", (S_T1, 0), tag="c")
    dma(P, l16, S_X, f"s{S_T2}", (S_T1, X_STRIDE), tag="c", pre=[f"s_add_u32 s{S_T2}, s{S_T2}, 1024"])
    P(f"s_cmp_eq_u32 s{S_T3}, 0")
    P(f"s_cselect_b32 s{S_WKV}, s8, s10")
    P(f"s_cselect_b32 s{S_WKV+1}, s9, s11")
    P(f"s_and_b32 s{S_WKV+1}, s{S_WKV+1}, 0xffff")
    P(f"s_mov_b32 s{S_WKV+2}, 0x{SZ['wk']:x}")
    dma(P, l16, S_WKV, f"s{S_T7}", (S_T7, WKV_L), tag="c", pre=[f"s_mov_b32 s{S_WKV+3}, 0x20000"])
    P(f"buffer_load_dwordx4 v{l16}, s[{S_WKV}:{S_WKV+3}], s{S_T7} offen offset:1024 lds", tag="c")
    if OPT.get("cpf", 1):
        c = V.alloc("cpf")
        P(f"s_getpc_b64 s[{S_EX}:{S_EX+1}]")
        P("LF_pc0:")
        P(f"s_lshr_b32 s{S_T3}, s2, 3")
        P(f"s_lshl_b32 s{S_T3}, s{S_T3}, 3")
        P(f"s_add_u32 s{S_T3}, s{S_T3}, s{S_W}")
        P(f"s_lshl_b32 s{S_T3}, s{S_T3}, 8")
        P(f"v_lshlrev_b32 v{c}, 7, v{lane}")
        P(f"v_add_u32 v{c}, s{S_T3}, v{c}")
        P(f"v_min_u32 v{c}, LF_last-LF_pc0, v{c}")
        P("s_mov_b64 exec, 3")
        P(f"global_load_dword v{c}, v{c}, s[{S_EX}:{S_EX+1}]", tag="cpf")
        P("s_mov_b64 exec, -1")
    P(f"v_mov_b32 v{vz}, 0")
    mk_srd(P, S_WS, 28, SZ["ws"])
    mk_srd(P, S_DBG, 26, SZ["dbg"])
    stamp(P, 0)
    vn = V.alloc("vn")
    P(f"s_or_b32 s{S_T0}, s2, s{S_W}")
    P(f"s_cmp_lg_u32 s{S_T0}, 0")
    P("s_cbranch_scc1 LF_non")
    P.cond_begin()
    P(f"s_memrealtime s[{S_EX}:{S_EX+1}]")
    P("s_waitcnt lgkmcnt(0)")
    P(f"s_mul_i32 s{S_EX+1}, s{S_EX+1}, 0x9e3779b1")
    P(f"s_xor_b32 s{S_EX}, s{S_EX}, s{S_EX+1}")
    P(f"s_or_b32 s{S_EX}, s{S_EX}, 1")
    P(f"v_mov_b32 v{t0}, s{S_EX}")
    P("s_mov_b64 exec, 1")
    P(f"buffer_store_dword v{t0}, v{vz}, s[{S_DBG}:{S_DBG+3}], 0 offen sc1")
    P("s_mov_b64 exec, -1")
    P.cond_end()
    P("LF_non:")
    KT = 192; vx16 = 240; vw16 = 241; vst = 242; S_K5, S_K6 = S_T5, S_T6
    P(f"s_cmp_lg_u32 s{S_W}, 7")
    P("s_cbranch_scc1 LF_not7b")
    P.cond_begin()
    P(f"s_lshr_b32 s{S_T0}, s{S_J}, 1")
    P(f"s_lshl_b32 s{S_T1}, s{S_T0}, 4")
    P(f"v_and_b32 v{t0}, 15, v{lane}")
    P(f"v_add_u32 v{t1}, s{S_T1}, v{t0}")
    P(f"v_mul_u32_u24 v{vx16}, {X_STRIDE}, v{t1}")
    P(f"v_lshrrev_b32 v{t1}, 4, v{lane}")
    P(f"v_lshl_add_u32 v{vx16}, v{t1}, 4, v{vx16}")
    P(f"v_lshlrev_b32 v{vw16}, 8, v{t1}")
    P(f"v_lshl_add_u32 v{vw16}, v{t0}, 3, v{vw16}")
    P(f"v_add_u32 v{vw16}, 0x{WKV_L:x}, v{vw16}")
    P(f"s_and_b32 s{S_K6}, s{S_J}, 1")
    P(f"s_cmp_eq_u32 s{S_K6}, 0")
    P(f"s_cselect_b32 s{S_T3}, 9, 8")
    P(f"s_cselect_b32 s{S_T4}, 8, 9")
    P(f"s_cselect_b32 s{S_K5}, 0x{WS_KF:x}, 0x{WS_VF:x}")
    P(f"v_lshlrev_b32 v{vst}, 4, v{t0}")
    P(f"v_lshrrev_b32 v{t0}, 1, v{t1}")
    P(f"v_lshl_add_u32 v{vst}, v{t0}, 3, v{vst}")
    P(f"v_and_b32 v{t0}, 1, v{t1}")
    P(f"v_lshlrev_b32 v{t0}, s{S_T3}, v{t0}")
    P(f"v_add_u32 v{vst}, v{vst}, v{t0}")
    P(f"s_and_b32 s{S_T1}, s{S_T0}, 1")
    P(f"s_lshl_b32 s{S_T1}, s{S_T1}, s{S_T4}")
    P(f"s_add_u32 s{S_K5}, s{S_K5}, s{S_T1}")
    P(f"s_lshr_b32 s{S_T0}, s{S_T0}, 1")
    P(f"s_lshl_b32 s{S_T1}, s{S_G}, 1")
    P(f"s_add_u32 s{S_T0}, s{S_T0}, s{S_T1}")
    P(f"s_lshl_b32 s{S_T0}, s{S_T0}, 10")
    P(f"s_add_u32 s{S_K5}, s{S_K5}, s{S_T0}")
    P.wait_tag("c")
    P("s_barrier")
    P(f"buffer_load_dword v{vn}, v{vz}, s[{S_DBG}:{S_DBG+3}], 0 offen sc1")
    def kv16(which):
        d = KT
        xb = [(KT+16) + 4 * i for i in range(4)]; wb = [(KT+32) + 4 * i for i in range(4)]
        def ld(ks):
            P(f"ds_read_b128 {vr(xb[ks%4],4)}, v{vx16} offset:{ks*64}")
            P(f"ds_read_b64_tr_b16 {vr(wb[ks%4],2)}, v{vw16} offset:{ks*1024}")
            P(f"ds_read_b64_tr_b16 {vr(wb[ks%4]+2,2)}, v{vw16} offset:{ks*1024+128}")
        for ks in range(3): ld(ks)
        for ks in range(16):
            a, b = (wb[ks%4], xb[ks%4]) if which == 0 else (xb[ks%4], wb[ks%4])
            P(f"v_mfma_f32_16x16x32_bf16 {vr(d,4)}, {vr(a,4)}, {vr(b,4)}, {vr(d,4) if ks else 0}")
            if ks + 3 < 16: ld(ks + 3)
        if which == 0:
            P(f"s_mov_b32 s{S_T0}, {hexf(QK_SCALE)}")
            for r in range(4): P(f"v_mul_f32 v{d+r}, s{S_T0}, v{d+r}")
    P(f"s_cmp_eq_u32 s{S_K6}, 1")
    P("s_cbranch_scc1 LF_vch")
    P.cond_begin(); kv16(0); P.cond_end()
    P("s_branch LF_kvj")
    P("LF_vch:")
    P.cond_begin(); kv16(1); P.cond_end()
    P("LF_kvj:")
    for r in range(2): P(f"v_cvt_pk_bf16_f32 v{KT+4+r}, v{KT+2*r}, v{KT+2*r+1}")
    P(f"buffer_store_dwordx2 {vr(KT+4,2)}, v{vst}, {WSR}, s{S_K5} offen sc1")
    P(f"s_lshl_b32 s{S_T0}, s{S_G}, 3")
    P(f"s_add_u32 s{S_T0}, s{S_T0}, s{S_J}")
    P(f"s_lshl_b32 s{S_T0}, s{S_T0}, 2")
    P(f"s_add_u32 s{S_T0}, s{S_T0}, 0x{FL_KV:x}")
    P("s_waitcnt vmcnt(0)")
    nonce_check(P, SL, vn, vz)
    flag_store(P, vz, t0, S_T0)
    P.cond_end()
    P("s_branch LF_b0j")
    P("LF_not7b:")
    P.wait_tag("c")
    P("s_barrier")
    LOADS["f"]()
    P("LF_b0j:")
    stamp(P, 1)
    rest_srds(P)
    mk_srd(P, S_GW, 22, SZ["gw"])
    P(f"s_mov_b32 s{S_C1}, {hexf(2.0**120)}")
    A = attn_setup(P, V, lane, l16, t0, t1)
    qf = A["q"]; O = A["O"]; S = A["S"]
    A["sb"] = SplitBar(P, V, SL, lane, t0) if OPT.get("sb", 0) else type("X", (), dict(n=0))()
    vfl = V.alloc("vfl", 4)
    P(f"s_lshl_b32 s{S_T0}, s{S_HP}, 1")
    P(f"s_add_u32 s{S_T0}, s{S_T0}, s{S_KH}")
    P(f"s_lshl_b32 s{S_T1}, s{S_J}, 2")
    P(f"s_add_u32 s{S_T0}, s{S_T0}, s{S_T1}")
    P(f"s_mul_i32 s{S_T1}, s{S_TILE}, 118")
    P(f"s_add_u32 s{S_T0}, s{S_T0}, s{S_T1}")
    P(f"s_lshl_b32 s{S_T0}, s{S_T0}, 10")
    P(f"s_add_u32 s{S_OD}, s{S_T0}, 0x{WS_OH + 86*1024:x}")
    def poison():
        for r in range(4): P(f"v_mov_b32 v{O[0]+r}, -1")
        P(f"buffer_store_dwordx4 {vr(O[0],4)}, v{l16}, {WSR}, s{S_OD} offen sc1", tag="poison")
    P(f"s_lshr_b32 s{S_T0}, s{S_W}, 1")
    P(f"s_lshl_b32 s{S_T0}, s{S_T0}, 3")
    P(f"s_add_u32 s{S_T0}, s{S_T0}, s{S_T1}")
    P(f"s_lshl_b32 s{S_T0}, s{S_T0}, 10")
    P(f"s_add_u32 s{S_OL}, s{S_T0}, 0x{WS_OH + 86*1024:x}")
    P(f"s_lshl_b32 s{S_FP}, s{S_G}, 8")
    P(f"s_lshl_b32 s{S_FS}, s{S_J}, 3")
    P(f"s_add_u32 s{S_FS}, s{S_FS}, s{S_W}")
    P(f"s_lshl_b32 s{S_FS}, s{S_FS}, 2")
    P(f"s_add_u32 s{S_FS}, s{S_FS}, s{S_FP}")
    P(f"s_add_u32 s{S_FS}, s{S_FS}, 0x{FL_H:x}")
    P(f"s_add_u32 s{S_FP}, s{S_FP}, 0x{FL_H:x}")
    P(f"s_lshl_b32 s{S_FW}, s{S_W}, 14")
    P(f"s_lshl_b32 s{S_T1}, s{S_J}, 7")
    P(f"s_add_u32 s{S_FW}, s{S_FW}, s{S_T1}")
    P(f"s_lshl_b32 s{S_FL2}, s{S_W}, 11")
    P(f"s_mul_i32 s{S_U0}, s{S_J}, 11")
    P(f"s_min_u32 s{S_U0}, s{S_U0}, 76")
    P(f"s_cmp_ge_u32 s{S_J}, 6")
    P(f"s_cselect_b32 s{S_NU}, 10, 11")
    vxa = xfrag_addr(P, V, "vxa", lane, t0, S_TT)
    vq = V.alloc("vq")
    P(f"s_and_b32 s{S_T0}, s{S_W}, 3")
    P(f"s_lshl_b32 s{S_T1}, s{S_T0}, 11")
    P(f"s_add_u32 s{S_T1}, s{S_T1}, 0x{QSCR:x}")
    P(f"v_add_u32 v{vq}, s{S_T1}, v{l16}")
    acc = [[V.alloc(f"acc{i}{t}", 16) for t in range(2)] for i in range(3)]
    fx = [[V.alloc(f"fx{b}{t}", 4) for t in range(2)] for b in range(2)]
    fw = [[V.alloc(f"fw{b}{i}", 4) for i in range(3)] for b in range(2)]
    P(f"s_cmp_lg_u32 s{S_KH}, 0")
    P("s_cbranch_scc1 LF_light")

    def sigstamp(it, k):
        if OPT.get("sig"):
            P(f"s_memtime s[98:99]"); P("s_waitcnt lgkmcnt(0)"); P(f"v_writelane_b32 v{vsig}, s98, {2*it+k}")
    vsig = V.alloc("vsig") if OPT.get("sig") else None

    P.cond_begin()
    vx0 = V.alloc("vx0")
    P(f"s_mul_i32 s{S_T0}, s{S_TT}, {32*X_STRIDE}")
    P(f"v_subrev_u32 v{vx0}, s{S_T0}, v{vxa}")
    vtn = tr_slice_addr(P, V, "vtn", lane, t0, t1, SLOT[0], S_HP, 8)
    P(f"s_lshl_b32 s{S_T4}, s{S_W}, 1")
    wtr = w_tr_addrs(P, V, lane, t0, t1, s_w=S_T4)
    P(f"s_mul_i32 s{S_T0}, s{S_W}, 3")
    P(f"s_mul_i32 s{S_T1}, s{S_G}, 236")
    P(f"s_add_u32 s{S_T1}, s{S_T1}, s{S_U0}")
    for i in range(3):
        P(f"s_add_u32 s{S_T2}, s{S_T0}, {i}")
        P(f"s_add_u32 s{SH[i]}, s{S_T1}, s{S_T2}")
        P(f"s_lshl_b32 s{SH[i]}, s{SH[i]}, 10")
        P(f"s_add_u32 s{SH[i]}, s{SH[i]}, 0x{WS_OH:x}")
        P(f"s_cmp_lt_u32 s{S_T2}, s{S_NU}")
        P(f"s_cselect_b32 s{SH[i]}, s{SH[i]}, 0x{OOB:x}")
    vpf = V.alloc("vpf"); vpd = V.alloc("vpd"); vpw = V.alloc("vpw")
    P(f"v_bfe_u32 v{t0}, v{lane}, 4, 1")
    P(f"v_lshrrev_b32 v{t1}, 5, v{lane}")
    P(f"v_lshl_add_u32 v{t0}, v{t1}, 7, v{t0}")
    P(f"v_mul_u32_u24 v{vpf}, 2752, v{t0}")
    P(f"v_and_b32 v{t0}, 15, v{lane}")
    P(f"v_lshl_add_u32 v{vpf}, v{t0}, 7, v{vpf}")
    P(f"v_cmp_gt_u32 vcc, 12, v{t0}")
    P(f"v_mov_b32 v{t1}, 0x{OOB:x}")
    P(f"v_cndmask_b32 v{vpf}, v{t1}, v{vpf}, vcc")
    P(f"s_lshr_b32 s{S_T0}, s2, 3")
    P(f"s_lshl_b32 s{S_T0}, s{S_T0}, 1")
    P(f"s_add_u32 s{S_T0}, s{S_T0}, s{S_HP}")
    P(f"s_mul_i32 s{S_T0}, s{S_T0}, {2*2752}")
    P(f"s_and_b32 s{S_T1}, s2, 1")
    P(f"s_mul_i32 s{S_T1}, s{S_T1}, {44*32}")
    P(f"s_add_u32 s{S_T6}, s{S_T0}, s{S_T1}")
    def pf(blk, half):
        P(f"s_add_u32 s{S_T4}, s{S_T6}, {128*2752*blk}")
        if half: P("s_mov_b64 exec, 0xffffffff")
        P(f"buffer_load_dword v{vpd}, v{vpf}, s[{S_WM}:{S_WM+3}], s{S_T4} offen", tag="pf")
        P.I[-1].vw = set()
        if half: P("s_mov_b64 exec, -1")
    PF = OPT.get("pf", 3)
    if PF & 4: pf(0, True)
    S_PFS = S_WKV
    P(f"s_lshr_b32 s{S_T0}, s2, 3")
    P(f"s_lshl_b32 s{S_T0}, s{S_T0}, 2")
    P(f"s_add_u32 s{S_T0}, s{S_T0}, s{S_W}")
    P(f"s_cmp_lt_u32 s{S_T0}, 86")
    P(f"s_cselect_b32 s{S_PFS}, s{S_WD}, s{S_WO}")
    P(f"s_cselect_b32 s{S_PFS+1}, s{S_WD+1}, s{S_WO+1}")
    P(f"s_cselect_b32 s{S_PFS+2}, s{S_WD+2}, s{S_WO+2}")
    P(f"s_cselect_b32 s{S_T1}, 0, 86")
    P(f"s_mov_b32 s{S_PFS+3}, 0x20000")
    P(f"s_sub_u32 s{S_T0}, s{S_T0}, s{S_T1}")
    P(f"s_lshl_b32 s{S_T0}, s{S_T0}, 14")
    P(f"s_and_b32 s{S_T1}, s2, 1")
    P(f"s_lshl_b32 s{S_T1}, s{S_T1}, 9")
    P(f"s_add_u32 s{S_T0}, s{S_T0}, s{S_T1}")
    P(f"v_lshrrev_b32 v{t0}, 2, v{lane}")
    P(f"v_lshlrev_b32 v{t0}, 10, v{t0}")
    P(f"v_and_b32 v{t1}, 3, v{lane}")
    P(f"v_lshl_add_u32 v{t0}, v{t1}, 7, v{t0}")
    P(f"v_add_u32 v{vpw}, s{S_T0}, v{t0}")
    P.wait_tag("q")
    P("s_barrier")
    stamp(P, 2)
    if PF & 2: pf(0, True)
    QD = 6
    xb = [acc[1][0] + 4 * i for i in range(QD)]; wb = [acc[2][0] + 4 * i for i in range(QD)]
    assert acc[1][1] == acc[1][0] + 16 and acc[2][1] == acc[2][0] + 16
    def q_loads(ks):
        o = SLOT[ks // 12] - SLOT[0] + (ks % 12) * 2048
        P(f"ds_read_b128 {vr(xb[ks%QD],4)}, v{vxa} offset:{ks*32}")
        P(f"ds_read_b64_tr_b16 {vr(wb[ks%QD],2)}, v{vtn} offset:{o}")
        P(f"ds_read_b64_tr_b16 {vr(wb[ks%QD]+2,2)}, v{vtn} offset:{o+512}")
    for ks in range(QD - 1): q_loads(ks)
    for ks in range(32):
        P(mfma(acc[0][0], wb[ks%QD], xb[ks%QD], acc[0][0] if ks else None))
        if ks in (11, 23):
            stamp(P, 11 if ks == 11 else 13)
            P("s_barrier")
        if ks + QD - 1 < 32: q_loads(ks + QD - 1)
        if ks == OPT.get("pk", 20):
            P(f"s_mov_b32 s{S_T5}, 0x{FL_KV:x}")
            P(f"buffer_load_dword v{vn}, v{vz}, s[{S_DBG}:{S_DBG+3}], 0 offen sc1")
            P(flag_load(vfl, 4, l16, f"s{S_T5}"))
    for r in range(8): P(f"v_cvt_pk_bf16_f32 v{qf+r}, v{acc[0][0]+2*r}, v{acc[0][0]+2*r+1}")
    P(f"ds_write_b128 v{vq}, {vr(qf,4)}")
    P(f"ds_write_b128 v{vq}, {vr(qf+4,4)} offset:1024")
    nonce_check(P, SL, vn, vz)
    spin_check(P, SL, [flag_load(vfl, 4, l16, f"s{S_T5}")], flag_cmp(vfl, 4, t0))
    kv_dma(P, l16, 0)
    P(f"s_add_u32 s{S_T2}, s{S_T2}, 32768")
    dma(P, l16, S_WS, f"s{S_T2}", (S_KVLDS, 4096), tag="kv0", mods=SC1)
    def gu_reads(ks):
        s, kk = ks // 2, ks % 2
        so = SLOT[s % 3] - SLOT[0] + kk * 6144
        L = [f"ds_read_b128 {vr(fx[ks%2][0],4)}, v{vx0} offset:{ks*32}"]
        for i in range(3):
            f = fw[ks % 2][i]
            L += [f"ds_read_b64_tr_b16 {vr(f,2)}, v{wtr[i]} offset:{so}", f"ds_read_b64_tr_b16 {vr(f+2,2)}, v{wtr[i]} offset:{so+1536}"]
            if i == 0: L.append(f"ds_read_b128 {vr(fx[ks%2][1],4)}, v{vx0} offset:{ks*32 + 32*X_STRIDE}")
        return L
    def gu_groups(ks, late=False):
        R = gu_reads(ks + 1) if ks < 31 else []
        if OPT.get("abl_hds") and ks >= 2 * NP - 1: R = []
        G = []
        for m in range(6):
            i, t = m // 2, m % 2
            mm = [mfma(acc[i][t], fw[ks % 2][i], fx[ks % 2][t], acc[i][t] if ks else None)]
            if OPT.get("abl_hm") and ks >= 2 * NP - 1: mm = []
            G.append(mm + (R[2 * m: 2 * m + 2] if not late else ([] if m < 3 else R[3 * (m - 3): 3 * (m - 3) + 3])))
        return G
    P.wait_lgkm_all()
    stamp(P, 14)
    P("s_barrier")
    stamp(P, 3)
    for x in gu_reads(0): P(x)
    poison()
    PFI = OPT.get("pfi", 0)
    for ks in range(2 * NP - 1):
        if ks % 2 == 1:
            P.wait_lgkm_all(); P("s_barrier")
        for g in gu_groups(ks):
            for x in g: P(x)
    P.wait_tag("kv0"); P.wait_lgkm_all(); P("s_barrier")
    stamp(P, 4)
    gq = []
    tmp = fx[0][0]; cst = fx[1][0]
    assert fx[0][1] == fx[0][0] + 4
    gel = []
    def load_window(k):
        n = 2 * (NP + k) - 1
        assert not gq
        gq.extend(gu_groups(n, late=(k > 0 and OPT.get("sb", 0))))
        if n < 31: gq.extend(gu_groups(n + 1))
    def hookH(it, x, pos):
        if pos == "sync?": return 1 <= it <= JIT
        if pos == "pre0": sigstamp(it, 0); return
        if pos == "pre": sigstamp(it, 1); return
        if pos == "start": load_window(0); return
        midprio(it, x, pos)
        if pos == "pv2" and x == 1 and PF & 1:
            if it == PFI: pf(1, True)
            if it == PFI + 2: pf(2, True)
            if it == PFI + 5: pf(3, True)
        if pos == "pv2" and x == 1 and OPT.get("wpf", 1) and it in (7, 8, 9, 10):
            k = it - 7
            P(f"s_cmp_lg_u32 s{S_W}, {k}")
            P(f"s_cbranch_scc1 LF_wp{k}")
            P(f"buffer_load_dword v{vpd}, v{vpw}, s[{S_PFS}:{S_PFS+3}], 0 offen")
            P.I[-1].kind = "salu"; P.I[-1].vw = set()
            P(f"LF_wp{k}:")
        if pos == "pv1" and x == 0 and 1 <= it <= JIT: load_window(it)
        if pos in ("g1", "g2", "g3", "g4", "g5", "g6"):
            if gq and not (it == 0 and pos in ("g1", "g3", "g5") and False):
                for t in gq.pop(0): P(t)
                if not gq and it == JIT and x == 1:
                    L = [f"v_mov_b32 v{cst}, {hexf(GELU_C1)}", f"v_mov_b32 v{cst+1}, {hexf(GELU_C1)}",
                         f"v_mov_b32 v{cst+2}, {hexf(GELU_C2)}", f"v_mov_b32 v{cst+3}, {hexf(GELU_C2)}"]
                    k = 0
                    for i in range(3):
                        for t in range(2):
                            d = fw[k % 2][k // 2]; k += 1
                            L += gelu_tile_pk(acc[i][t], d, tmp, cst)
                            if t == 1: L.append(f"s_add_u32 s{SH[i]}, s{SH[i]}, {118*1024}")
                            L.append(f"buffer_store_dwordx4 {vr(d,4)}, v{l16}, {WSR}, s{SH[i]} offen sc1")
                    ns = 3 + 12 * (UNI - JIT - 1)
                    n = (len(L) + ns - 1) // ns
                    gel.extend(L[i:i + n] for i in range(0, len(L), n))
            elif gel:
                for t in gel.pop(0): P(t, tag="hst" if "store" in t else None)
    PM = OPT.get("pm", 5)
    def prioH(it, x):
        if PM == 1: return 3 if (it == 0 and x == 0) else None
        if PM == 3: return 3 - 2 * x
        if PM == 5: return (3 - 2 * x) if it < JIT else 3
        if PM == 6: return 3 if it >= JIT else None
        return None
    def prioL(it, x):
        if PM in (2, 6): return 1 if (it == 0 and x == 0) else None
        if PM == 3: return 3 - 2 * x
        if PM == 5: return (3 - 2 * x) if it < JIT else 0
        return None
    def midprio(it, x, pos):
        if PM in (3, 5) and pos == "pv2" and (PM == 3 or it <= JIT): P(f"s_setprio {2 * x}")
    attention(P, A, l16, range(0, UNI), hookH, prioH, kvf=lambda c: None)
    nsb = A["sb"].n; A["sb"].n = 0
    assert not gq and not gel, (len(gq), len(gel))
    P.cond_end(keep=True)
    P("s_branch LF_join")
    for n in ("vx0", "vtn", "wtr0", "wtr1", "wtr2", "vpf", "vpw"): V.release(n)

    P("LF_light:")
    P.cond_begin()
    pats = w_patterns(P, V, lane, t0, t1)
    P(f"s_lshl_b32 s{S_T0}, s{S_HP}, 1")
    P(f"s_mul_i32 s{S_WOFF}, s{S_T0}, {8*2752}")
    P(f"s_lshl_b32 s{S_T1}, s{S_U0}, 5")
    P(f"s_add_u32 s{S_WOFF}, s{S_WOFF}, s{S_T1}")
    P(f"s_mul_i32 s{S_WLDS}, s{S_T0}, 3072")
    P(f"s_mul_i32 s{S_T1}, s{S_TT}, {UP_OFF}")
    P(f"s_add_u32 s{S_WLDS}, s{S_WLDS}, s{S_T1}")
    inattn = dict(on=False)
    P(f"s_add_u32 s{S_WOFF}, s{S_WOFF}, 0")
    P(f"v_subrev_u32 v{pats[1]}, 1024, v{pats[1]}")
    P(f"v_subrev_u32 v{pats[2]}, 2048, v{pats[2]}")
    def w_dma1(s, k):
        g, i = k // 3, k % 3
        solo = not OPT.get("wm0", 1) or inattn["on"]
        if i == 0 or solo:
            dma(P, pats[i], S_WM, f"s{S_T3}", (S_WLDS, SLOT[s % 3] + 3072 * g), offset=1024 * i, tag=f"w{s}",
                pre=[f"s_add_u32 s{S_T3}, s{S_WOFF}, 0x{(32*s + 8*g)*2752:x}"] if i == 0 else None)
        else:
            P(f"buffer_load_dwordx4 v{pats[i]}, s[{S_WM}:{S_WM+3}], s{S_T3} offen offset:{1024*i} lds", tag=f"w{s}")
    def w_dma6(s):
        for k in range(6): w_dma1(s, k)
    vgw = acc[0][1]
    P(f"v_lshrrev_b32 v{t0}, 5, v{lane}")
    P(f"v_lshlrev_b32 v{vgw}, 4, v{t0}")
    P(f"s_lshl_b32 s{S_T0}, s{S_HP}, 9")
    P(f"v_add_u32 v{vxa}, s{S_T0}, v{vxa}")
    P(f"s_add_u32 s{S_T0}, s{S_T0}, 0x{GWL:x}")
    P(f"v_add_u32 v{vgw}, s{S_T0}, v{vgw}")
    P(f"s_lshl_b32 s{S_T0}, s{S_W}, 8")
    P(f"s_add_u32 s{S_T0}, s{S_T0}, 0x{ONES - 1024:x}")
    P(f"v_lshlrev_b32 v{t0}, 2, v{lane}")
    P(f"v_add_u32 v{t0}, s{S_T0}, v{t0}")
    P(f"v_mov_b32 v{t1}, 0x3f803f80")
    P(f"v_lshrrev_b32 v1, 2, v{lane}")
    P(f"v_and_b32 v1, 11, v1")
    P(f"v_cmp_eq_u32 vcc, 0, v1")
    P(f"v_cndmask_b32 v{t1}, 0, v{t1}, vcc")
    P(f"ds_write_b32 v{t0}, v{t1}")
    P(f"ds_write_b32 v{t0}, v{t1} offset:1024")
    dma(P, l16, S_GW, "0", (None, GWL), tag="q")
    P.wait_tag("q")
    P("s_barrier")
    stamp(P, 2)
    stamp(P, 11)
    P("s_barrier")
    w_dma6(0)
    stamp(P, 13)
    P("s_barrier")
    w_dma6(1)
    poison()
    za = acc[0][0]; zx = [acc[1][0] + 4 * i for i in range(4)]; zg = [acc[2][0] + 4 * i for i in range(4)]
    def zjob():
        for r in range(4): P(f"v_mov_b32 v{za+r}, 0")
        def zld(k):
            P(f"ds_read_b128 {vr(zx[k%4],4)}, v{vxa} offset:{k*32}")
            P(f"ds_read_b128 {vr(zg[k%4],4)}, v{vgw} offset:{k*32}")
        for k in range(3): zld(k)
        for k in range(16):
            for r in range(4): P(f"v_dot2c_f32_bf16 v{za+r}, v{zx[k%4]+r}, v{zg[k%4]+r}")
            if k + 3 < 16: zld(k + 3)
        P("s_nop 2")
        P(f"v_add_f32 v{za}, v{za}, v{za+1}")
        P(f"v_add_f32 v{za+2}, v{za+2}, v{za+3}")
        P(f"v_add_f32 v{za}, v{za}, v{za+2}")
        P(f"s_and_b32 s{S_T0}, s{S_W}, 3")
        P(f"s_lshl_b32 s{S_T0}, s{S_T0}, 8")
        P(f"s_add_u32 s{S_T0}, s{S_T0}, 0x{MISC:x}")
        P(f"v_lshlrev_b32 v{t0}, 2, v{lane}")
        P(f"v_add_u32 v{t0}, s{S_T0}, v{t0}")
        P(f"ds_write_b32 v{t0}, v{za}")
    P(f"s_mov_b32 s{S_T6}, 0x{FL_KV:x}")
    def kv_both(c):
        kv_dma(P, l16, c)
        dma(P, l16, S_WS, f"s{S_T2}", (S_KVLDS, (8192 * (c & 1) - 4096) & 0xffffffff), tag=f"kv{c}", mods=SC1, pre=[f"s_sub_u32 s{S_T2}, s{S_T2}, 32768"])
    def poll_issue():
        P(f"buffer_load_dword v{vn}, v{vz}, s[{S_DBG}:{S_DBG+3}], 0 offen sc1")
        P(flag_load(vfl, 4, l16, f"s{S_T6}"))
    for s in range(0, NP + 1):
        P.wait_tag(f"w{s}")
        P.wait_lgkm_all()
        if s == 0: stamp(P, 14)
        P("s_barrier")
        if s == 0:
            stamp(P, 3)
            P(f"ds_read_b128 {vr(qf,4)}, v{vq} offset:1024")
            P(f"ds_read_b128 {vr(qf+4,4)}, v{vq}")
        if s == NP: kv_both(1)
        if s < NP: w_dma6(s + 2)
        if s == 0:
            P(f"buffer_load_dword v{vn}, v{vz}, s[{S_DBG}:{S_DBG+3}], 0 offen sc1")
            zjob()
    assert NP >= 1
    stamp(P, 4)
    dq = []
    def hookL(it, x, pos):
        if pos == "sync?": return 1 <= it <= JIT
        if pos == "pre0": sigstamp(it, 0); return
        if pos == "pre":
            if NP + it < 16: P.wait_tag(f"w{NP+it}")
            sigstamp(it, 1); return
        if (pos == "start" or pos == "chk") and NP + it + 2 < 16:
            assert not dq
            for k in range(0 if OPT.get("abl_ldma") else 6): dq.append(lambda s=NP + it + 2, k=k: w_dma1(s, k))
        midprio(it, x, pos)
        if (pos in ("pv2", "qk", "pv1") or (pos == "g5" and x == 1 and OPT.get("sb", 0))) and dq: dq.pop(0)()
    attention(P, A, l16, range(0, UNI), hookL, prioL, kvf=kv_both)
    assert A["sb"].n == nsb
    assert not dq
    P.cond_end(keep=True)
    P("LF_join:")
    P.join()
    for n in ["wpat0", "wpat1", "wpat2", "vxa", "vq"] + [f"acc{i}{t}" for i in range(3) for t in range(2)] + \
             [f"fx{b}{t}" for b in range(2) for t in range(2)] + [f"fw{b}{i}" for b in range(2) for i in range(3)]: V.release(n)
    stamp(P, 5)

    facc = V.alloc("facc", 16); facc1 = V.alloc("facc1", 16); fa = V.alloc("ffa", 8)
    NB = OPT.get("nb", 6)
    hb = [V.alloc(f"hb{i}", 4) for i in range(NB)]; fb = hb[0]
    vl4 = V.alloc("vl4"); vg = V.alloc("vg"); zt = V.alloc("zt", 2)
    va0 = tr_slice_addr(P, V, "fa0", lane, t0, t1, 0, S_KH, 4)
    vA = [[va0, V.alloc("fa0h")], [V.alloc("fa1"), V.alloc("fa1h")]]
    P(f"s_lshl_b32 s{S_T1}, s{S_HP}, 5")
    P(f"v_xor_b32 v{va0}, s{S_T1}, v{va0}")
    P(f"s_lshr_b32 s{S_T0}, s{S_W}, 1")
    P(f"s_lshl_b32 s{S_T1}, s{S_T0}, 11")
    P(f"v_add_u32 v{va0}, s{S_T1}, v{va0}")
    P(f"v_xor_b32 v{vA[1][0]}, 64, v{va0}")
    P(f"v_add_u32 v{vA[0][1]}, 0x10000, v{va0}")
    P(f"v_add_u32 v{vA[1][1]}, 0x10000, v{vA[1][0]}")
    P(f"s_mul_i32 s{S_FB}, s{S_TILE}, 118")
    P(f"s_add_u32 s{S_FB}, s{S_FB}, s{S_T0}")
    P(f"s_lshl_b32 s{S_FB}, s{S_FB}, 10")
    P(f"s_add_u32 s{S_FB}, s{S_FB}, 0x{WS_OH:x}")
    P(f"v_lshlrev_b32 v{vl4}, 2, v{lane}")
    P(f"s_lshl_b32 s{S_T0}, s{S_TT}, 8")
    P(f"s_add_u32 s{S_T0}, s{S_T0}, 0x{MISC:x}")
    P(f"v_add_u32 v{t0}, s{S_T0}, v{vl4}")
    P(f"ds_read_b32 v{zt}, v{t0}")
    P(f"ds_read_b32 v{zt+1}, v{t0} offset:512")
    P(f"v_add_f32 v{zt}, v{zt}, v{zt+1}")
    P(f"v_mov_b32 v{zt+1}, v{zt}")
    P(f"v_permlane32_swap_b32 v{zt}, v{zt+1}")
    P(f"v_add_f32 v{zt}, v{zt}, v{zt+1}")
    P(f"v_mul_f32 v{t0}, {hexf(-LOG2E)}, v{zt}")
    P(f"v_exp_f32 v{t0}, v{t0}")
    P(f"v_add_f32 v{t0}, 1.0, v{t0}")
    P(f"v_rcp_f32 v{vg}, v{t0}")
    V.release("zt")
    vw = [V.alloc(f"vw{i}") for i in range(3)]; vrd = V.alloc("vrd"); vo = V.alloc("vo")
    def sbase(dst, w):
        P(f"s_mul_i32 s{S_T1}, s{w}, 6144")
        P(f"v_add_u32 v{dst}, s{S_T1}, v{l16}")
    sbase(vrd, S_W)
    for b in range(1, 4):
        P(f"s_xor_b32 s{S_T0}, s{S_W}, {b << 1}")
        sbase(vw[b - 1], S_T0)
    P(f"v_and_b32 v{vo}, 31, v{lane}")
    P(f"v_lshlrev_b32 v{vo}, 10, v{vo}")
    P(f"v_lshrrev_b32 v{t1}, 5, v{lane}")
    P(f"v_lshl_add_u32 v{vo}, v{t1}, 4, v{vo}")
    P(f"s_lshl_b32 s{S_OO}, s{S_TILE}, 15")
    P(f"s_lshl_b32 s{S_T1}, s{S_J}, 7")
    P(f"s_add_u32 s{S_OO}, s{S_OO}, s{S_T1}")
    P(f"s_lshl_b32 s{S_T1}, s{S_KH}, 6")
    P(f"s_add_u32 s{S_OO}, s{S_OO}, s{S_T1}")
    P(f"s_lshl_b32 s{S_T1}, s{S_HP}, 5")
    P(f"s_add_u32 s{S_OO}, s{S_OO}, s{S_T1}")
    vp = V.alloc("vp"); vpa = V.alloc("vpa")
    P(f"v_lshlrev_b32 v{vpa}, 10, v{lane}")
    vt0 = V.alloc("vt0"); vt1 = V.alloc("vt1")
    P(f"s_lshr_b32 s{S_T1}, s{S_W}, 1")
    P(f"s_mul_i32 s{S_T1}, s{S_T1}, {16384 - 2048}")
    P(f"s_add_u32 s{S_T1}, s{S_T1}, {3*16384}")
    P(f"v_add_u32 v{vt0}, s{S_T1}, v{vA[0][0]}")
    P(f"v_add_u32 v{vt1}, s{S_T1}, v{vA[1][0]}")
    va = V.alloc("cva"); vb = V.alloc("cvb"); fb = V.alloc("cvon")
    P(f"s_mul_i32 s{S_T0}, s{S_W}, 3072")
    P(f"s_add_u32 s{S_T0}, s{S_T0}, 114688")
    P(f"v_add_u32 v{va}, s{S_T0}, v{l16}")
    P(f"s_xor_b32 s{S_T0}, s{S_W}, 4")
    P(f"s_mul_i32 s{S_T0}, s{S_T0}, 3072")
    P(f"s_add_u32 s{S_T0}, s{S_T0}, 114688")
    P(f"v_add_u32 v{vb}, s{S_T0}, v{l16}")
    P(f"s_add_u32 s{S_OL2}, s{S_OL}, 4096")
    BSLOT = lambda b: ((b % 8) if b < 11 else (b - 8)) * 16384
    def a_reads(r, d):
        o = (4 * r % 64) * 2048; hi = o >> 16; o &= 0xffff
        assert r // 2 in vis, (r, vis)
        rd_done[r // 2] = rd_done.get(r // 2, 0) + 1
        if OPT.get("abl_uds"): return
        P(f"ds_read_b64_tr_b16 {vr(fa+4*d,2)}, v{vA[d][hi]} offset:{o}")
        P(f"ds_read_b64_tr_b16 {vr(fa+4*d+2,2)}, v{vA[d][hi]} offset:{o+1024}")
    def h_load(r):
        if OPT.get("abl_uh"): return
        P(f"s_add_u32 s{S_T2}, s{S_FB}, {4096*r}")
        if r == 21:
            P(f"s_cmp_lt_u32 s{S_W}, 4")
            P(f"s_cselect_b32 s{S_T2}, s{S_T2}, 0x{OOB:x}")
        P(f"buffer_load_dwordx4 {vr(hb[r%NB],4)}, v{l16}, {WSR}, s{S_T2} offen sc1")
    pend = {}
    dq = []; vis = set(); issued = {}; rd_done = {}; nxt = dict(b=0, r=0, d=0, pre=False)
    def qW(b):
        def f(i):
            if not OPT.get("abl_uw"): fin_dma_w1(P, vsl, b, BSLOT(b), f"fw{b}", i)
            issued[b] = issued.get(b, 0) + 1
        for i in range(2): dq.append(lambda i=i: f(i))
    CH = OPT.get("ch", HF + 3); R0 = OPT.get("r0", 2 * (CH + 2))
    DBL = OPT.get("dbl", 64)
    def mstep():
        r, d = nxt["r"], nxt["d"]
        if r >= 22: return
        if not nxt["pre"]:
            a_reads(0, 0); a_reads(0, 1); nxt["pre"] = True; return
        if not OPT.get("abl_um"): P(mfma([facc, facc1][d], fa + 4 * d, hb[r % NB], [facc, facc1][d] if r else None))
        if r + 1 < 22: a_reads(r + 1, d)
        if d == 1 and r + NB < 22: dq.insert(0, lambda r=r: h_load(r + NB))
        nxt["d"] = 1 - d; nxt["r"] = r + d
    def hookU(it, x, pos):
        sig = (x == 0 and (it & 1)); ph = 2 * it + x
        if pos == "sync?": return False
        if pos == "pre0": sigstamp(it, 0); return
        if pos == "pre":
            if it == HF: P.wait_vm_all()
            need = [b for b in issued if issued[b] == 2 and b not in vis and (it == 29 or b <= (max(0, ph + 8 - R0) * (2 if ph + 6 >= DBL else 1)) // 2) and b <= 10]
            if need: P.wait_tag(*[f"fw{b}" for b in need])
            pend["vis"] = need; pend["free"] = {b for b in rd_done if rd_done[b] >= 4}
            sigstamp(it, 1); return
        if pos == "pv1" and sig and it == HF:
            nonce_check(P, SL, vn, vz)
            flag_store(P, vz, t0, S_FS)
        if pos == "chk":
            vis.update(pend["vis"])
            while it >= HF and nxt["b"] < 15:
                b = nxt["b"]; prev = {8: 0, 9: 1, 10: 2, 11: 3, 12: 4, 13: 5, 14: 6}.get(b)
                if prev is not None and prev not in pend["free"]: break
                qW(b); nxt["b"] += 1
            return
        if pos == "pv2" and x == 0 and it == CH - 1: P(flag_load(vfl, 1, vl4, f"s{S_FP}"))
        if pos == "pv2" and x == 0 and it == CH:
            spin_check(P, SL, [flag_load(vfl, 1, vl4, f"s{S_FP}")], flag_cmp(vfl, 1, t0))
            for r in range(NB): dq.insert(r, lambda r=r: h_load(r))
        elif dq and (pos in ("pv2", "qk") or (pos in ("g2", "g5") and it in (CH, CH + 1)) or (pos == "g5" and OPT.get("d3"))): dq.pop(0)()
        if nxt["r"] >= 22 - OPT.get("tr", 5) and nxt["d"] == 0: pass
        elif (pos in ("g1", "g4") and ph >= R0) or (pos == "g4" and ph == R0 - 1) or (pos in ("g3", "g6") and ph >= DBL): mstep()
        if pos == "g6" and it == 31 and x == 1:
            assert nxt["b"] == 15, nxt
            print("rounds left for tail:", 22 - nxt["r"])
    def prioU(it, x):
        if not OPT.get("prio", 1): return None
        return 3 - (2 * ((it + 1) & 1) + x)
    attention(P, A, l16, range(UNI, 32), hookU, prioU)
    assert not dq
    stamp(P, 6)
    if OPT.get("sig"):
        P(f"s_lshl_b32 s98, s2, 11")
        P(f"s_lshl_b32 s99, s{S_W}, 8")
        P(f"s_add_u32 s98, s98, s99")
        P(f"s_add_u32 s98, s98, 0x{WS_STAMP + (1<<20):x}")
        P(f"buffer_store_dword v{vsig}, v{vl4}, {WSR}, s98 offen")
    P("s_setprio 0")
    P(f"v_mov_b32 v{O[1]+7}, v{O[1]}")
    for i in range(3): P(f"ds_write_b128 v{va}, {vr(O[1]+4+4*i,4)} offset:{1024*i}")
    P.wait_tag(*[f"fw{b}" for b in range(8, 15)]); P.wait_lgkm_all()
    P("s_barrier")
    vis.update(range(11))
    for i in range(3): P(f"ds_read_b128 {vr(O[1]+4+4*i,4)}, v{vb} offset:{1024*i}")
    P(f"v_add_f32 v{O[0]}, v{O[0]}, v{O[1]+7}")
    for r in range(8, 16): P(f"v_add_f32 v{O[0]+r}, v{O[0]+r}, v{O[1]+r}")
    P(f"v_mov_b32 v{t1}, 0x207")
    P(f"v_cmp_nle_f32 vcc, {hexf(2.0**-90)}, v{O[0]}")
    P(f"v_cmp_nge_f32 s[{S_PM}:{S_PM+1}], {'s' + str(S_T0)}, v{O[0]}".replace(f"s{S_T0}", f"s{S_C1}"))
    P(f"s_or_b64 vcc, vcc, s[{S_PM}:{S_PM+1}]")
    P(f"v_add3_u32 v{t0}, v{O[0]+8}, 0, 0".replace("v_add3_u32", "v_add_f32").replace(", 0, 0", f", v{O[0]+9}"))
    for r in range(10, 16): P(f"v_add_f32 v{t0}, v{t0}, v{O[0]+r}")
    P(f"v_cmp_class_f32 s[{S_PM}:{S_PM+1}], v{t0}, v{t1}")
    P(f"s_or_b64 vcc, vcc, s[{S_PM}:{S_PM+1}]")
    if OPT.get("forcefb"): P("s_mov_b64 vcc, -1")
    P("s_cmp_lg_u64 vcc, 0")
    P("s_cbranch_scc1 LF_fb")
    P("LF_fbr:")
    P(f"v_rcp_f32 v{t0}, v{O[0]}")
    P(f"v_mul_f32 v{t0}, v{t0}, v{vg}")
    for r in range(8, 16): P(f"v_mul_f32 v{O[0]+r}, v{O[0]+r}, v{t0}")
    for r in range(4): P(f"v_cvt_pk_bf16_f32 v{O[1]+r}, v{O[0]+8+2*r}, v{O[0]+9+2*r}")
    for r in range(4): P(f"v_min_u32 v{O[1]+r}, 0xfffffffe, v{O[1]+r}")
    P(f"buffer_store_dwordx4 {vr(O[1],4)}, v{l16}, {WSR}, s{S_OD} offen sc1", tag="ost")
    stamp(P, 7)
    K4, V8, ON, CM = A["fk"], A["fv"][0], fb, O[1]
    assert A["fv"][1] == V8 + 4
    nl = "\n    "
    fbk = f"""LF_fb:
    s_waitcnt vmcnt(0) lgkmcnt(0)
    v_mov_b32 v{t0}, 0xff800000
    s_mov_b32 s{S_T0}, 0x{WS_KF:x}
LF_fb1:
    buffer_load_dwordx4 {vr(K4,4)}, v{l16}, {WSR}, s{S_T0} offen sc1
    s_waitcnt vmcnt(0)
    {mfma(S[0], K4, qf)}
    s_nop 15
    {nl.join(f"v_max3_f32 v{t0}, v{S[0]+2*r}, v{S[0]+2*r+1}, v{t0}" for r in range(8))}
    s_add_u32 s{S_T0}, s{S_T0}, 1024
    s_cmp_lt_u32 s{S_T0}, 0x{WS_KF + 65536:x}
    s_cbranch_scc1 LF_fb1
    v_mov_b32 v{t1}, v{t0}
    s_nop 1
    v_permlane32_swap_b32 v{t0}, v{t1}
    s_nop 1
    v_max_f32 v{t0}, v{t0}, v{t1}
    {nl.join(f"v_sub_f32 v{CM+r}, 0, v{t0}" for r in range(16))}
    {nl.join(f"v_mov_b32 v{O[0]+r}, 0" for r in range(16))}
    v_lshrrev_b32 v{t0}, 5, v{lane}
    v_lshlrev_b32 v{t0}, 8, v{t0}
    v_and_b32 v{t1}, 15, v{lane}
    v_lshl_add_u32 v{t0}, v{t1}, 4, v{t0}
    v_and_b32 v{t1}, 16, v{lane}
    v_cmp_eq_u32 vcc, 0, v{t1}
    v_mov_b32 v{t1}, 0x{OOB:x}
    s_nop 1
    v_cndmask_b32 v{t0}, v{t0}, v{t1}, vcc
    v_and_b32 v{t1}, 27, v{lane}
    v_cmp_eq_u32 vcc, 0, v{t1}
    v_mov_b32 v{ON}, 0x3f803f80
    s_nop 1
    v_cndmask_b32 v{ON}, 0, v{ON}, vcc
    s_mov_b32 s{S_T0}, 0x{WS_KF:x}
LF_fb2:
    s_add_u32 s{S_T1}, s{S_T0}, 0x{WS_VF - WS_KF:x}
    buffer_load_dwordx4 {vr(K4,4)}, v{l16}, {WSR}, s{S_T0} offen sc1
    buffer_load_dwordx4 {vr(V8,4)}, v{t0}, {WSR}, s{S_T1} offen sc1
    buffer_load_dwordx4 {vr(V8+4,4)}, v{t0}, {WSR}, s{S_T1} offen offset:512 sc1
    s_waitcnt vmcnt(0)
    {mfma(S[0], K4, qf, CM)}
    {nl.join(f"v_or_b32 v{V8+r}, v{V8+r}, v{ON}" for r in range(8))}
    s_nop 7
    {nl.join(f"v_exp_f32 v{S[0]+r}, v{S[0]+r}" for r in range(16))}
    s_nop 1
    {nl.join(f"v_cvt_pk_bf16_f32 v{S[1]+r}, v{S[0]+2*r}, v{S[0]+2*r+1}" for r in range(8))}
    s_nop 1
    {mfma(O[0], V8, S[1], O[0])}
    {mfma(O[0], V8+4, S[1]+4, O[0])}
    s_add_u32 s{S_T0}, s{S_T0}, 1024
    s_cmp_lt_u32 s{S_T0}, 0x{WS_KF + 65536:x}
    s_cbranch_scc1 LF_fb2
    s_nop 15
    s_branch LF_fbr
"""
    SL.add(fbk)
    for n in ("Sa", "Sb", "Oa", "qf", "fk", "fv1", "fv2"): V.release(n)
    ob = V.alloc("ob", 32); wa = [V.alloc(f"wa{u}", 8) for u in range(8)]
    def oloads(g): return [f"buffer_load_dwordx4 {vr(ob+16*g+4*u,4)}, v{l16}, {WSR}, s{[S_OL,S_OL2][g]} offen offset:{1024*u} sc1" for u in range(4)]
    def ocheck(g):
        b = ob + 16 * g
        L = [f"v_max3_u32 v{t0}, v{b}, v{b+1}, v{b+2}"]
        for k in range(3, 15, 2): L.append(f"v_max3_u32 v{t0}, v{b+k}, v{b+k+1}, v{t0}")
        L += [f"v_max_u32 v{t0}, v{b+15}, v{t0}", f"v_cmp_eq_u32 vcc, -1, v{t0}"]
        return L
    fa2 = V.alloc("ffa2", 8)
    wr = []
    for u in range(8):
        for d, v in ((0, vt0), (1, vt1)):
            wr.append([f"ds_read_b64_tr_b16 {vr(wa[u]+4*d,2)}, v{v} offset:{u*2048}", f"ds_read_b64_tr_b16 {vr(wa[u]+4*d+2,2)}, v{v} offset:{u*2048+1024}"])
    r0 = nxt["r"]; assert nxt["d"] == 0 and not dq
    def tr_reads(r, d):
        o = (4 * r % 64) * 2048; hi = o >> 16; o &= 0xffff; f = [fa, fa2][(r - r0) % 2] + 4 * d
        P(f"ds_read_b64_tr_b16 {vr(f,2)}, v{vA[d][hi]} offset:{o}")
        P(f"ds_read_b64_tr_b16 {vr(f+2,2)}, v{vA[d][hi]} offset:{o+1024}")
    if r0 + 1 < 22: tr_reads(r0 + 1, 0); tr_reads(r0 + 1, 1)
    OL = min(r0 + OPT.get("ol", 99), 22)
    for r in range(r0, 22):
        if r == OL:
            for g in range(2):
                for x in oloads(g): P(x)
        for d in range(2):
            P(mfma([facc, facc1][d], [fa, fa2][(r - r0) % 2] + 4 * d, hb[r % NB], [facc, facc1][d]))
            if r + 2 < 22: tr_reads(r + 2, d)
            elif wr:
                for g in wr[:4]:
                    for x in g: P(x)
                del wr[:4]
    for g in wr:
        for x in g: P(x)
    assert 22 - r0 <= NB and r0 >= 16
    if OPT.get("oab", 1): P.wait_lgkm_all(); P("s_barrier")
    if OL == 22:
        for g in range(2):
            for x in oloads(g): P(x)
    P(f"v_sub_f32 v{t1}, 1.0, v{vg}")
    P(f"v_mov_b32 v{t0}, v{t1}")
    assert t1 == t0 + 1 and t0 % 2 == 0
    for r in range(0, 16, 2): P(f"v_pk_mul_f32 v[{facc+r}:{facc+r+1}], v[{facc+r}:{facc+r+1}], v[{t0}:{t1}]")
    for r in range(0, 16, 2): P(f"v_pk_mul_f32 v[{facc1+r}:{facc1+r+1}], v[{facc1+r}:{facc1+r+1}], v[{t0}:{t1}]")
    if not OPT.get("oab", 1): P.wait_lgkm_all(); P("s_barrier")
    stamp(P, 8)
    nl = "\n    "
    for g in range(2):
        k = SL.n; SL.n += 1
        for x in ocheck(g): P(x)
        P(f"s_cbranch_vccnz LS{k}")
        P(f"LR{k}:")
        SL.add(f"""LS{k}:
    s_mov_b32 s{S_T7}, 0
LS{k}_p:
    s_mov_b64 exec, 0xf
    buffer_load_dword v{vp}, v{vpa}, {WSR}, s{[S_OL,S_OL2][g]} offen offset:1020 sc1
    s_waitcnt vmcnt(0)
    v_cmp_eq_u32 vcc, -1, v{vp}
    s_mov_b64 exec, -1
    s_add_u32 s{S_T7}, s{S_T7}, 1
    s_cmp_ge_u32 s{S_T7}, 0x{SPIN_MAX:x}
    s_cbranch_scc1 LR{k}
    s_cbranch_vccnz LS{k}_p
    {nl.join(oloads(g))}
    s_waitcnt vmcnt(0)
    {nl.join(ocheck(g))}
    s_cbranch_vccnz LS{k}_p
    s_nop 1
    s_branch LR{k}
""")
        for u in range(4 * g, 4 * g + 4):
            P(mfma(facc1, wa[u] + 4, ob + 4 * u, facc1))
    W1 = [f"ds_write_b128 v{vw[b-1]}, {vr(src+4*i,4)} offset:{2048*(b-1) + 1024*i}" for b, src in ((2, facc1), (3, facc1 + 8)) for i in range(2)]
    for u in range(8):
        P(mfma(facc, wa[u], ob + 4 * u, facc))
        if u >= 3 and W1:
            if u == 3: P("s_nop 7")
            P(W1.pop(0))
    stamp(P, 9)
    for b, src in ((1, facc + 8),):
        for i in range(2): P(f"ds_write_b128 v{vw[b-1]}, {vr(src+4*i,4)} offset:{2048*(b-1) + 1024*i}")
    P.wait_lgkm_all()
    P("s_barrier")
    for i in range(6): P(f"ds_read_b128 {vr(ob+4*i,4)}, v{vrd} offset:{1024*i}")
    for b in range(3):
        for r in range(8): P(f"v_add_f32 v{facc+r}, v{facc+r}, v{ob+8*b+r}")
    for r in range(4): P(f"v_cvt_pk_bf16_f32 v{facc1+r}, v{facc+2*r}, v{facc+2*r+1}")
    P(f"v_permlane32_swap_b32 v{facc1}, v{facc1+2}")
    P(f"v_permlane32_swap_b32 v{facc1+1}, v{facc1+3}")
    P(f"buffer_store_dwordx4 {vr(facc1,4)}, v{vo}, s[{S_OUT}:{S_OUT+3}], s{S_OO} offen{OPT.get('omod','')}")
    if STAMP["on"]:
        P.wait_vm_all(); stamp(P, 10); stamp_dump(P, lane)
        if OPT.get("dbgst") is not None:
            P(f"s_cmp_lg_u32 s2, {OPT['dbgst']}")
            P("s_cbranch_scc1 LF_end")
            P(f"s_cmp_lg_u32 s{S_W}, {OPT.get('dbgw', 0)}")
            P("s_cbranch_scc1 LF_end")
            P(f"v_subrev_u32 v{VSTAMP}, s100, v{VSTAMP}")
            P("s_mov_b64 exec, 0x7fff")
            P(f"buffer_store_dword v{VSTAMP}, v1, s[{S_DBG}:{S_DBG+3}], 0 offen offset:4")
    P("LF_end:")
    P("s_endpgm")
    name = NAME + "_kernel"
    body, I = finalize(P)
    txt = f".text\n.globl {name}\n.p2align 8\n.type {name},@function\n{name}:\n" + body + "".join(SL.txt) + "LF_last:\n    s_endpgm\n"
    vg_ = 256 if STAMP["on"] else max(V.hi, 8)
    txt += KD.format(name=name, vgpr=vg_, sgpr=102 if STAMP['on'] else 96, accum=(vg_ + 3) // 4 * 4)
    return txt, I, vg_


if __name__ == "__main__":
    out = sys.argv[1]
    STAMP["on"] = "stamp" in sys.argv
    for a in sys.argv[2:]:
        if "=" in a: k, v = a.split("="); OPT[k] = int(v)
        else: OPT[a] = True
    import asmlib; asmlib.MERGE_D = OPT.get("md", 9)
    t, I, vg_ = kernel_F()
    hdr = HEADER + f"; @launch grid=(256,1,1) block=(512,1,1) lds={LDS_BYTES}\n" + '.amdgcn_target "amdgcn-amd-amdhsa--gfx950"\n'
    open(out, "w").write(hdr + t)
    print("insts", len(I), "vgpr", vg_, "nops", sum(1 for x in I if x.kind == "nop"))
```

```python
import sys
from parts import *
OPT = {}
S_NONCE = 93
S_HP, S_KH = 30, 31
SH = [4, 5, 6]
S_FS, S_FP, S_OD, S_OL = 7, 8, 9, 10
S_FW, S_FB, S_FL, S_FL2 = 12, 13, 14, 15
S_OO, S_OL2 = 11, 18
S_PM = 16
FL_KV, FL_H = WS_FLAG, WS_FLAG + 4096
WKV_L = KV_RING
QSCR = KV_RING + 8192
FSLOT = [0, 32768, 65536, 98304]
WO_CH = [98304, 114688, 0, 32768]
SC1 = " sc1"
SPIN_MAX = 1 << 22
WSR = f"s[{S_WS}:{S_WS+3}]"


class Slow:
    def __init__(self): self.txt = []; self.n = 0
    def add(self, t): self.txt.append(t)


LOADS = {}
def emit_loads(P, l16, vsl):
    P(f"s_sub_u32 s{S_T3}, s{S_W}, 3")
    P(f"s_cmp_lt_u32 s{S_T3}, 4")
    P("s_cbranch_scc1 LF_ldq")
    P(f"s_lshr_b32 s{S_T4}, s{S_J}, 1")
    P(f"s_add_u32 s{S_T4}, s{S_T4}, s{S_W}")
    P(f"s_add_u32 s{S_T4}, s{S_T4}, 1")
    P(f"s_and_b32 s{S_T4}, s{S_T4}, 3")
    P(f"s_lshl_b32 s{S_T0}, s{S_G}, 16")
    P(f"s_lshl_b32 s{S_T4}, s{S_T4}, 4")
    ROT = OPT.get("rot", 1)
    P(f"s_and_b32 s{S_T6}, s{S_J}, 3")
    P(f"s_lshl_b32 s{S_T6}, s{S_T6}, 2")
    if not ROT: P(f"s_mov_b32 s{S_T6}, 0")
    P(f"s_add_u32 s{S_T5}, s{S_T6}, 16")
    P("s_waitcnt lgkmcnt(0)")
    mk_srd(P, S_X, 4, SZ["x"])
    P("LF_ldx1:")
    P(f"s_and_b32 s{S_T1}, s{S_T6}, 15")
    P(f"s_add_u32 s{S_T1}, s{S_T1}, s{S_T4}")
    P(f"s_mul_i32 m0, s{S_T1}, {X_STRIDE}")
    P(f"s_lshl_b32 s{S_T2}, s{S_T1}, 10")
    P(f"s_add_u32 s{S_T2}, s{S_T2}, s{S_T0}")
    P(f"s_add_u32 s{S_T6}, s{S_T6}, 1")
    P(f"buffer_load_dwordx4 v{l16}, s[{S_X}:{S_X+3}], s{S_T2} offen lds", tag="q")
    P(f"s_cmp_lg_u32 s{S_T6}, s{S_T5}")
    P("s_cbranch_scc1 LF_ldx1")
    P("s_branch LF_ldj")
    P("LF_ldq:")
    P(f"s_lshl_b32 s{S_T3}, s{S_T3}, 4")
    P(f"s_and_b32 s{S_T6}, s{S_G}, 7")
    P(f"s_lshl_b32 s{S_T6}, s{S_T6}, 1")
    if not ROT: P(f"s_mov_b32 s{S_T6}, 0")
    P(f"s_add_u32 s{S_T5}, s{S_T6}, 16")
    P(f"s_lshl_b32 s{S_T7}, s{S_J}, 7")
    P("s_waitcnt lgkmcnt(0)")
    mk_srd(P, S_WQ, 6, SZ["wq"])
    P("LF_ldq1:")
    P(f"s_and_b32 s{S_T4}, s{S_T6}, 15")
    P(f"s_add_u32 s{S_T4}, s{S_T4}, s{S_T3}")
    P(f"s_mul_i32 s{S_T0}, s{S_T4}, 171")
    P(f"s_lshr_b32 s{S_T0}, s{S_T0}, 12")
    P(f"s_lshl_b32 s{S_T1}, s{S_T4}, 2")
    P(f"s_add_u32 s{S_T0}, s{S_T0}, s{S_T1}")
    P(f"s_lshl_b32 s{S_T0}, s{S_T0}, 8")
    P(f"s_add_u32 m0, s{S_T0}, 0x{SLOT[0]:x}")
    P(f"s_lshl_b32 s{S_T2}, s{S_T4}, 13")
    P(f"s_add_u32 s{S_T2}, s{S_T2}, s{S_T7}")
    P(f"s_add_u32 s{S_T6}, s{S_T6}, 1")
    P(f"buffer_load_dwordx4 v{vsl}, s[{S_WQ}:{S_WQ+3}], s{S_T2} offen lds")
    P.I[-1].kind = "salu"
    P(f"s_cmp_lg_u32 s{S_T6}, s{S_T5}")
    P("s_cbranch_scc1 LF_ldq1")
    P("LF_ldj:")


def prologue_f(P, V, endlabel):
    if STAMP["on"]: P("s_memrealtime s[100:101]")
    P("s_cmp_ge_u32 s2, 256")
    P(f"s_cbranch_scc1 {endlabel}")
    P("s_load_dwordx16 s[4:19], s[0:1], 0")
    P("s_load_dwordx8 s[20:27], s[0:1], 64")
    P("s_load_dwordx2 s[28:29], s[0:1], 96")
    lane = V.alloc("lane"); l16 = V.alloc("l16")
    P(f"v_lshrrev_b32 v1, 6, v0")
    P(f"v_and_b32 v{lane}, 63, v0")
    P(f"v_readfirstlane_b32 s{S_W}, v1")
    P(f"v_lshlrev_b32 v{l16}, 4, v{lane}")
    P(f"s_lshr_b32 s{S_T0}, s2, 3")
    if OPT.get("jrot"): P(f"s_add_u32 s{S_J}, s{S_T0}, {OPT['jrot']}"); P(f"s_and_b32 s{S_J}, s{S_J}, 3")
    else: P(f"s_and_b32 s{S_J}, s{S_T0}, 3")
    P(f"s_and_b32 s{S_T1}, s2, 1")
    P(f"s_lshl_b32 s{S_T1}, s{S_T1}, 2")
    P(f"s_add_u32 s{S_J}, s{S_J}, s{S_T1}")
    P(f"s_and_b32 s{S_G}, s2, 6")
    P(f"s_lshl_b32 s{S_G}, s{S_G}, 2")
    P(f"s_lshr_b32 s{S_T0}, s{S_T0}, 2")
    P(f"s_add_u32 s{S_G}, s{S_G}, s{S_T0}")
    t0 = V.alloc("t0"); t1 = V.alloc("t1")
    vsl = slice_pattern(P, V, lane, t0)
    LOADS["f"] = lambda: emit_loads(P, l16, vsl)
    P(f"s_and_b32 s{S_TT}, s{S_W}, 1")
    P(f"s_lshl_b32 s{S_TILE}, s{S_G}, 1")
    P(f"s_add_u32 s{S_TILE}, s{S_TILE}, s{S_TT}")
    P(f"s_lshr_b32 s{S_HP}, s{S_W}, 1")
    P(f"s_and_b32 s{S_HP}, s{S_HP}, 1")
    P(f"s_lshr_b32 s{S_KH}, s{S_W}, 2")
    assert all((p * 171) >> 12 == p // 24 for p in range(64)) and SLOT_SZ == 3 * 8192 + 256
    return lane, l16, t0, t1, vsl


def rest_srds(P):
    P(f"s_cmp_eq_u32 s{S_TT}, 0")
    P(f"s_cselect_b32 s{S_WM}, s16, s18")
    P(f"s_cselect_b32 s{S_WM+1}, s17, s19")
    P(f"s_and_b32 s{S_WM+1}, s{S_WM+1}, 0xffff")
    P(f"s_mov_b32 s{S_WM+2}, 0x{SZ['wg']:x}")
    P(f"s_mov_b32 s{S_WM+3}, 0x20000")
    mk_srd(P, S_OUT, 24, SZ["out"])
    mk_srd(P, S_WO, 12, SZ["wo"])
    mk_srd(P, S_WD, 20, SZ["wd"])


def nonce_check(P, SL, vn, vz):
    k = SL.n; SL.n += 1
    P(f"v_readfirstlane_b32 s{S_NONCE}, v{vn}")
    P(f"s_cmp_eq_u32 s{S_NONCE}, 0")
    P(f"s_cbranch_scc1 LS{k}")
    P(f"LR{k}:")
    SL.add(f"""LS{k}:
    s_mov_b32 s{S_T7}, 0
LS{k}_l:
    s_sleep 2
    buffer_load_dword v{vn}, v{vz}, s[{S_DBG}:{S_DBG+3}], 0 offen sc1
    s_waitcnt vmcnt(0)
    v_readfirstlane_b32 s{S_NONCE}, v{vn}
    s_add_u32 s{S_T7}, s{S_T7}, 1
    s_cmp_ge_u32 s{S_T7}, 0x{SPIN_MAX:x}
    s_cbranch_scc1 LR{k}
    s_cmp_eq_u32 s{S_NONCE}, 0
    s_cbranch_scc1 LS{k}_l
    s_branch LR{k}
""")


def flag_load(vf, n, vaddr, soff):
    op = {1: "buffer_load_dword", 4: "buffer_load_dwordx4"}[n]
    return f"{op} {vr(vf,n)}, v{vaddr}, {WSR}, {soff} offen sc1"


def flag_cmp(vf, n, t):
    L = [f"v_xor_b32 v{t}, s{S_NONCE}, v{vf}"]
    for i in range(1, n):
        L += [f"v_xor_b32 v{vf+i}, s{S_NONCE}, v{vf+i}", f"v_or_b32 v{t}, v{t}, v{vf+i}"]
    L += [f"v_cmp_ne_u32 vcc, 0, v{t}"]
    return L


def spin_check(P, SL, loads, cmps, sleep=1):
    k = SL.n; SL.n += 1
    for x in cmps: P(x)
    P(f"s_cbranch_vccnz LS{k}")
    P(f"LR{k}:")
    nl = "\n    "
    SL.add(f"""LS{k}:
    s_mov_b32 s{S_T7}, 0
LS{k}_l:
    {f"s_sleep {sleep}" if sleep else "s_nop 0"}
    {nl.join(loads)}
    s_waitcnt vmcnt(0)
    {nl.join(cmps)}
    s_add_u32 s{S_T7}, s{S_T7}, 1
    s_cmp_ge_u32 s{S_T7}, 0x{SPIN_MAX:x}
    s_cbranch_scc1 LR{k}
    s_cbranch_vccnz LS{k}_l
    s_nop 1
    s_branch LR{k}
""")


def flag_store(P, vz, t, soff):
    P(f"v_mov_b32 v{t}, s{S_NONCE}")
    P("s_mov_b64 exec, 1")
    P(f"buffer_store_dword v{t}, v{vz}, {WSR}, s{soff} offen sc1", tag="flag")
    P("s_mov_b64 exec, -1")


PROG = MISC + 1024
class SplitBar:
    def __init__(self, P, V, SL, lane, t0):
        self.P, self.SL, self.n = P, SL, 0
        self.va = V.alloc("sba"); self.vr = V.alloc("sbr"); self.one = V.alloc("sb1"); self.vg = V.alloc("sbg")
        P(f"s_lshl_b32 s{S_T0}, s{S_W}, 8")
        P(f"s_add_u32 s{S_T0}, s{S_T0}, 0x{PROG:x}")
        P(f"v_lshlrev_b32 v{t0}, 2, v{lane}")
        P(f"v_add_u32 v{self.va}, s{S_T0}, v{t0}")
        P(f"v_and_b32 v{t0}, 7, v{lane}")
        P(f"v_mul_u32_u24 v{t0}, 260, v{t0}")
        P(f"v_add_u32 v{self.vr}, 0x{PROG:x}, v{t0}")
        P(f"v_mov_b32 v{self.one}, 0")
        P(f"ds_write_b32 v{self.va}, v{self.one}")
        P(f"v_mov_b32 v{self.one}, 1")
    def arrive(self):
        self.n += 1
        self.P(f"ds_add_u32 v{self.va}, v{self.one}")
    def peek(self): self.P(f"ds_read_b32 v{self.vg}, v{self.vr}")
    def check(self):
        k = self.SL.n; self.SL.n += 1
        self.P(f"v_cmp_gt_u32 vcc, {self.n}, v{self.vg}")
        self.P(f"s_cbranch_vccz LR{k}")
        self.P(f"LS{k}:")
        for t in ([f"s_sleep {OPT['ssl']}"] if OPT.get("ssl") else []) + [f"ds_read_b32 v{self.vg}, v{self.vr}", "s_waitcnt lgkmcnt(0)", f"v_cmp_gt_u32 vcc, {self.n}, v{self.vg}", f"s_cbranch_vccnz LS{k}"]:
            self.P(t); self.P.I[-1].kind = "salu"; self.P.I[-1].vw = set(); self.P.I[-1].vr = set()
        self.P(f"LR{k}:")


def attn_setup(P, V, lane, l16, t0, t1):
    A = {}
    P(f"s_lshl_b32 s{S_T1}, s{S_KH}, 12")
    vk = V.alloc("vk"); vv = [V.alloc("vv0"), V.alloc("vv1")]
    P(f"s_add_u32 s{S_T1}, s{S_T1}, 0x{KV_RING:x}")
    P(f"v_add_u32 v{vk}, s{S_T1}, v{l16}")
    P(f"v_lshrrev_b32 v{t0}, 5, v{lane}")
    P(f"v_lshlrev_b32 v{t0}, 8, v{t0}")
    P(f"v_and_b32 v{t1}, 15, v{lane}")
    P(f"v_lshl_add_u32 v{t0}, v{t1}, 4, v{t0}")
    P(f"v_and_b32 v{t1}, 16, v{lane}")
    P(f"v_cmp_eq_u32 vcc, 0, v{t1}")
    P(f"s_add_u32 s{S_T1}, s{S_T1}, 2048")
    for s in range(2):
        P(f"v_mov_b32 v{t1}, s{S_T1}")
        P(f"v_add_u32 v{t1}, {8192*s}, v{t1}")
        P(f"v_mov_b32 v{vv[s]}, 0x{ONES:x}")
        P(f"v_cndmask_b32 v{vv[s]}, v{t1}, v{vv[s]}, vcc")
        P(f"v_add_u32 v{vv[s]}, v{vv[s]}, v{t0}")
    P(f"s_lshl_b32 s{S_KVOFF}, s{S_KH}, 15")
    P(f"s_lshl_b32 s{S_T1}, s{S_HP}, 16")
    P(f"s_add_u32 s{S_KVOFF}, s{S_KVOFF}, s{S_T1}")
    P(f"s_lshl_b32 s{S_T1}, s{S_TT}, 10")
    P(f"s_add_u32 s{S_KVOFF}, s{S_KVOFF}, s{S_T1}")
    P(f"s_lshl_b32 s{S_KVLDS}, s{S_W}, 10")
    P(f"s_add_u32 s{S_KVLDS}, s{S_KVLDS}, 0x{KV_RING:x}")
    A.update(vk=vk, vv=vv)
    A["S"] = [V.alloc("Sa", 16), V.alloc("Sb", 16)]
    A["O"] = [V.alloc("Oa", 16), V.alloc("Ob", 16)]
    A["fk"] = V.alloc("fk", 4); A["fv"] = [V.alloc("fv1", 4), V.alloc("fv2", 4)]
    A["q"] = V.alloc("qf", 8)
    return A


def kv_dma(P, l16, c):
    dma(P, l16, S_WS, f"s{S_T2}", (S_KVLDS, 8192 * (c & 1)), tag=f"kv{c}", mods=SC1, pre=[f"s_add_u32 s{S_T2}, s{S_KVOFF}, {2048*c}"])


def attention(P, A, l16, its, hook, prio, kvf=None):
    S, O, fk, fv = A["S"], A["O"], A["fk"], A["fv"]
    SB = OPT.get("sb", 0)
    q = [A["q"], A["q"] + 4]
    def rdK(it): P(f"ds_read_b128 {vr(fk,4)}, v{A['vk']} offset:{((it>>1)&1)*8192 + (it&1)*1024}")
    def rdV(it, half): P(f"ds_read_b128 {vr(fv[half],4)}, v{A['vv'][(it>>1)&1]} offset:{(it&1)*1024 + half*512}")
    E = lambda x, i: P(f"v_exp_f32 v{S[x]+i}, v{S[x]+i}")
    def C(x, i):
        b = S[x] + (8 if i >= 4 else 0); k = i & 3
        P(f"v_cvt_pk_bf16_f32 v{b+k}, v{b+2*k}, v{b+2*k+1}")
    for it in its:
        if it == 0:
            rdK(0); rdV(0, 0)
            hook(0, 0, "start")
            P(mfma(S[0], fk, q[0]))
        for x in range(2):
            H = lambda pos: hook(it, x, pos)
            E(x, 0); E(x, 1)
            if x == 0:
                if it > 0: P(mfma(O[1], fv[1], S[1] + 8, O[1]))
                rdV(it, 1)
            else:
                P(mfma(O[0], fv[1], S[0] + 8, O[0]))
                if SB and A["syn"]:
                    A["sb"].check(); after_sync()
            H("pv2")
            E(x, 2); E(x, 3); H("g1")
            E(x, 4); E(x, 5); H("g2")
            E(x, 6); E(x, 7)
            if x == 0: P(mfma(S[1], fk, q[1]))
            elif it < 31: P(mfma(S[0], fk, q[0]))
            H("qk")
            sig = (x == 0 and (it & 1) and it < 31)
            syn = sig or (x == 0 and hook(it, x, "sync?"))
            ORD = OPT.get("ord", 2) if syn else 0
            for i in range(4): C(x, i)
            if ORD == 0: H("g3")
            E(x, 8); E(x, 9)
            if ORD == 2: P(mfma(O[x], fv[0], S[x], None if it == 0 else O[x]))
            if ORD: H("g3")
            if syn:
                H("pre0")
                if sig: P.wait_tag(f"kv{(it>>1)+1}")
                H("pre"); P.wait_lgkm_all()
                if SB: A["sb"].arrive()
                else: P("s_barrier")
            if ORD == 1: E(x, 10); E(x, 11)
            if ORD != 2: P(mfma(O[x], fv[0], S[x], None if it == 0 else O[x]))
            p = prio(it, x)
            if p is not None: P(f"s_setprio {p}")
            def after_sync():
                if it < 31: rdK(it + 1)
                if (it & 1) and (it >> 1) + 2 < 16: (kvf or (lambda c: kv_dma(P, l16, c)))((it >> 1) + 2)
                if A["syn"]: hook(it, 0, "chk")
            if x == 0:
                A["syn"] = syn
                if not (SB and syn): after_sync()
            else:
                if it < 31: rdV(it + 1, 0)
            H("pv1")
            if ORD != 1: E(x, 10); E(x, 11)
            else: E(x, 12)
            H("g4")
            if ORD != 1: E(x, 12)
            E(x, 13); H("g5")
            E(x, 14); E(x, 15); H("g6")
            if x == 0 and SB and A["syn"]: A["sb"].peek()
            for i in range(4, 8): C(x, i)
        if it == 31: P(mfma(O[1], fv[1], S[1] + 8, O[1]))


def fin_dma_w1(P, vsl, st, slot, tag, i):
    srd, u0 = (S_WD, 8 * st) if st < 11 else (S_WO, 8 * (st - 11))
    dma(P, vsl, srd, f"s{S_T2}", (S_FL2, slot + 1024 * i), tag=tag, pre=[f"s_add_u32 s{S_T2}, s{S_FW}, 0x{(16*u0 + 8*i)*1024:x}"])


def fin_dma_b1(P, l16, st, slot, tag, t):
    P(f"s_add_u32 s{S_T2}, s{S_FB}, 0x{(t*118 + 8*st)*1024:x}")
    if st == 10:
        P(f"s_cmp_lt_u32 s{S_W}, 6")
        P(f"s_cselect_b32 s{S_T2}, s{S_T2}, 0x{OOB:x}")
    dma(P, l16, S_WS, f"s{S_T2}", (S_FL, slot + 16384 + 8192 * t), tag=tag, mods=SC1)


def kernel_F():
    P = Prog(); V = Regs(2, 255, "v"); SL = Slow()
    NP = OPT.get("np", 2)
    JIT = 16 - NP
    GPP = OPT.get("gpp", 2)
    UNI = OPT.get("uni", JIT + 2)
    HF = OPT.get("hf", UNI | 1)
    lane, l16, t0, t1, vsl = prologue_f(P, V, "LF_end")
    vz = V.alloc("vz")
    P(f"s_cmp_lg_u32 s{S_W}, 7")
    P("s_cbranch_scc1 LF_not7")
    P(f"s_lshr_b32 s{S_T4}, s{S_J}, 1")
    P(f"s_lshl_b32 s{S_T0}, s{S_G}, 16")
    P(f"s_lshl_b32 s{S_T2}, s{S_T4}, 14")
    P(f"s_add_u32 s{S_T2}, s{S_T2}, s{S_T0}")
    P(f"s_mul_i32 m0, s{S_T4}, {16*X_STRIDE}")
    P(f"s_and_b32 s{S_T3}, s{S_J}, 1")
    P(f"s_mov_b32 s{S_T5}, 0")
    P("s_waitcnt lgkmcnt(0)")
    mk_srd(P, S_X, 4, SZ["x"])
    P("LF_ldx7:")
    P(f"buffer_load_dwordx4 v{l16}, s[{S_X}:{S_X+3}], s{S_T2} offen lds", tag="c")
    P(f"s_add_u32 m0, m0, {X_STRIDE}")
    P(f"s_add_u32 s{S_T2}, s{S_T2}, 1024")
    P(f"s_add_u32 s{S_T5}, s{S_T5}, 1")
    P(f"s_cmp_lg_u32 s{S_T5}, 16")
    P("s_cbranch_scc1 LF_ldx7")
    P(f"s_cmp_eq_u32 s{S_T3}, 0")
    P(f"s_cselect_b32 s{S_WKV}, s8, s10")
    P(f"s_cselect_b32 s{S_WKV+1}, s9, s11")
    P(f"s_and_b32 s{S_WKV+1}, s{S_WKV+1}, 0xffff")
    P(f"s_mov_b32 s{S_WKV+2}, 0x{SZ['wk']:x}")
    P(f"s_mov_b32 s{S_WKV+3}, 0x20000")
    P(f"s_mov_b32 m0, 0x{WKV_L:x}")
    P(f"s_mov_b32 s{S_T5}, 0")
    P("LF_ldw7:")
    for i in range(4):
        P(f"buffer_load_dwordx4 v{l16}, s[{S_WKV}:{S_WKV+3}], s{S_T5} offen offset:{1024*i} lds")
        P.I[-1].kind = "salu"
    P(f"s_add_u32 m0, m0, 4096")
    P(f"s_add_u32 s{S_T5}, s{S_T5}, 4096")
    P(f"s_cmp_lg_u32 s{S_T5}, 16384")
    P("s_cbranch_scc1 LF_ldw7")
    P("s_barrier")
    P("LF_not7:")
    P("s_waitcnt lgkmcnt(0)")
    if OPT.get("cpf", 1):
        c = V.alloc("cpf")
        P(f"s_getpc_b64 s[{S_EX}:{S_EX+1}]")
        P("LF_pc0:")
        P(f"s_lshr_b32 s{S_T3}, s2, 3")
        P(f"s_lshl_b32 s{S_T3}, s{S_T3}, 3")
        P(f"s_add_u32 s{S_T3}, s{S_T3}, s{S_W}")
        P(f"s_lshl_b32 s{S_T3}, s{S_T3}, 8")
        P(f"v_lshlrev_b32 v{c}, 7, v{lane}")
        P(f"v_add_u32 v{c}, s{S_T3}, v{c}")
        P(f"v_min_u32 v{c}, LF_last-LF_pc0, v{c}")
        P("s_mov_b64 exec, 3")
        P(f"global_load_dword v{c}, v{c}, s[{S_EX}:{S_EX+1}]", tag="cpf")
        P("s_mov_b64 exec, -1")
    P(f"v_mov_b32 v{vz}, 0")
    mk_srd(P, S_WS, 28, SZ["ws"])
    mk_srd(P, S_DBG, 26, SZ["dbg"])
    stamp(P, 0)
    vn = V.alloc("vn")
    P(f"s_or_b32 s{S_T0}, s2, s{S_W}")
    P(f"s_cmp_lg_u32 s{S_T0}, 0")
    P("s_cbranch_scc1 LF_non")
    P.cond_begin()
    P(f"s_memrealtime s[{S_EX}:{S_EX+1}]")
    P("s_waitcnt lgkmcnt(0)")
    P(f"s_mul_i32 s{S_EX+1}, s{S_EX+1}, 0x9e3779b1")
    P(f"s_xor_b32 s{S_EX}, s{S_EX}, s{S_EX+1}")
    P(f"s_or_b32 s{S_EX}, s{S_EX}, 1")
    P(f"v_mov_b32 v{t0}, s{S_EX}")
    P("s_mov_b64 exec, 1")
    P(f"buffer_store_dword v{t0}, v{vz}, s[{S_DBG}:{S_DBG+3}], 0 offen sc1")
    P("s_mov_b64 exec, -1")
    P.cond_end()
    P("LF_non:")
    KT = 192; vx16 = 240; vw16 = 241; vst = 242; S_K5, S_K6 = S_T5, S_T6
    P(f"s_cmp_lg_u32 s{S_W}, 7")
    P("s_cbranch_scc1 LF_not7b")
    P.cond_begin()
    P(f"s_lshr_b32 s{S_T0}, s{S_J}, 1")
    P(f"s_lshl_b32 s{S_T1}, s{S_T0}, 4")
    P(f"v_and_b32 v{t0}, 15, v{lane}")
    P(f"v_add_u32 v{t1}, s{S_T1}, v{t0}")
    P(f"v_mul_u32_u24 v{vx16}, {X_STRIDE}, v{t1}")
    P(f"v_lshrrev_b32 v{t1}, 4, v{lane}")
    P(f"v_lshl_add_u32 v{vx16}, v{t1}, 4, v{vx16}")
    P(f"v_lshlrev_b32 v{vw16}, 8, v{t1}")
    P(f"v_lshl_add_u32 v{vw16}, v{t0}, 3, v{vw16}")
    P(f"v_add_u32 v{vw16}, 0x{WKV_L:x}, v{vw16}")
    P(f"s_and_b32 s{S_K6}, s{S_J}, 1")
    P(f"s_cmp_eq_u32 s{S_K6}, 0")
    P(f"s_cselect_b32 s{S_T3}, 9, 8")
    P(f"s_cselect_b32 s{S_T4}, 8, 9")
    P(f"s_cselect_b32 s{S_K5}, 0x{WS_KF:x}, 0x{WS_VF:x}")
    P(f"v_lshlrev_b32 v{vst}, 4, v{t0}")
    P(f"v_lshrrev_b32 v{t0}, 1, v{t1}")
    P(f"v_lshl_add_u32 v{vst}, v{t0}, 3, v{vst}")
    P(f"v_and_b32 v{t0}, 1, v{t1}")
    P(f"v_lshlrev_b32 v{t0}, s{S_T3}, v{t0}")
    P(f"v_add_u32 v{vst}, v{vst}, v{t0}")
    P(f"s_and_b32 s{S_T1}, s{S_T0}, 1")
    P(f"s_lshl_b32 s{S_T1}, s{S_T1}, s{S_T4}")
    P(f"s_add_u32 s{S_K5}, s{S_K5}, s{S_T1}")
    P(f"s_lshr_b32 s{S_T0}, s{S_T0}, 1")
    P(f"s_lshl_b32 s{S_T1}, s{S_G}, 1")
    P(f"s_add_u32 s{S_T0}, s{S_T0}, s{S_T1}")
    P(f"s_lshl_b32 s{S_T0}, s{S_T0}, 10")
    P(f"s_add_u32 s{S_K5}, s{S_K5}, s{S_T0}")
    P("s_waitcnt vmcnt(0)")
    P(f"buffer_load_dword v{vn}, v{vz}, s[{S_DBG}:{S_DBG+3}], 0 offen sc1")
    def kv16(which):
        d = KT
        xb = [(KT+16) + 4 * i for i in range(4)]; wb = [(KT+32) + 4 * i for i in range(4)]
        def ld(ks):
            P(f"ds_read_b128 {vr(xb[ks%4],4)}, v{vx16} offset:{ks*64}")
            P(f"ds_read_b64_tr_b16 {vr(wb[ks%4],2)}, v{vw16} offset:{ks*1024}")
            P(f"ds_read_b64_tr_b16 {vr(wb[ks%4]+2,2)}, v{vw16} offset:{ks*1024+128}")
        for ks in range(3): ld(ks)
        for ks in range(16):
            a, b = (wb[ks%4], xb[ks%4]) if which == 0 else (xb[ks%4], wb[ks%4])
            P(f"v_mfma_f32_16x16x32_bf16 {vr(d,4)}, {vr(a,4)}, {vr(b,4)}, {vr(d,4) if ks else 0}")
            if ks + 3 < 16: ld(ks + 3)
        if which == 0:
            P(f"s_mov_b32 s{S_T0}, {hexf(QK_SCALE)}")
            for r in range(4): P(f"v_mul_f32 v{d+r}, s{S_T0}, v{d+r}")
    P(f"s_cmp_eq_u32 s{S_K6}, 1")
    P("s_cbranch_scc1 LF_vch")
    P.cond_begin(); kv16(0); P.cond_end()
    P("s_branch LF_kvj")
    P("LF_vch:")
    P.cond_begin(); kv16(1); P.cond_end()
    P("LF_kvj:")
    for r in range(2): P(f"v_cvt_pk_bf16_f32 v{KT+4+r}, v{KT+2*r}, v{KT+2*r+1}")
    P(f"buffer_store_dwordx2 {vr(KT+4,2)}, v{vst}, {WSR}, s{S_K5} offen sc1")
    P(f"s_lshl_b32 s{S_T0}, s{S_G}, 3")
    P(f"s_add_u32 s{S_T0}, s{S_T0}, s{S_J}")
    P(f"s_lshl_b32 s{S_T0}, s{S_T0}, 2")
    P(f"s_add_u32 s{S_T0}, s{S_T0}, 0x{FL_KV:x}")
    P("s_waitcnt vmcnt(0)")
    nonce_check(P, SL, vn, vz)
    flag_store(P, vz, t0, S_T0)
    P.cond_end()
    P("s_branch LF_b0j")
    P("LF_not7b:")
    P("s_barrier")
    LOADS["f"]()
    P("LF_b0j:")
    stamp(P, 1)
    rest_srds(P)
    mk_srd(P, S_GW, 22, SZ["gw"])
    P(f"s_mov_b32 s{S_C1}, {hexf(2.0**120)}")
    A = attn_setup(P, V, lane, l16, t0, t1)
    qf = A["q"]; O = A["O"]; S = A["S"]
    A["sb"] = SplitBar(P, V, SL, lane, t0) if OPT.get("sb", 0) else type("X", (), dict(n=0))()
    vfl = V.alloc("vfl", 4)
    P(f"s_lshl_b32 s{S_T0}, s{S_HP}, 1")
    P(f"s_add_u32 s{S_T0}, s{S_T0}, s{S_KH}")
    P(f"s_lshl_b32 s{S_T1}, s{S_J}, 2")
    P(f"s_add_u32 s{S_T0}, s{S_T0}, s{S_T1}")
    P(f"s_mul_i32 s{S_T1}, s{S_TILE}, 118")
    P(f"s_add_u32 s{S_T0}, s{S_T0}, s{S_T1}")
    P(f"s_lshl_b32 s{S_T0}, s{S_T0}, 10")
    P(f"s_add_u32 s{S_OD}, s{S_T0}, 0x{WS_OH + 86*1024:x}")
    def poison():
        for r in range(4): P(f"v_mov_b32 v{O[0]+r}, -1")
        P(f"buffer_store_dwordx4 {vr(O[0],4)}, v{l16}, {WSR}, s{S_OD} offen sc1", tag="poison")
    P(f"s_lshr_b32 s{S_T0}, s{S_W}, 1")
    P(f"s_lshl_b32 s{S_T0}, s{S_T0}, 3")
    P(f"s_add_u32 s{S_T0}, s{S_T0}, s{S_T1}")
    P(f"s_lshl_b32 s{S_T0}, s{S_T0}, 10")
    P(f"s_add_u32 s{S_OL}, s{S_T0}, 0x{WS_OH + 86*1024:x}")
    P(f"s_lshl_b32 s{S_FP}, s{S_G}, 8")
    P(f"s_lshl_b32 s{S_FS}, s{S_J}, 3")
    P(f"s_add_u32 s{S_FS}, s{S_FS}, s{S_W}")
    P(f"s_lshl_b32 s{S_FS}, s{S_FS}, 2")
    P(f"s_add_u32 s{S_FS}, s{S_FS}, s{S_FP}")
    P(f"s_add_u32 s{S_FS}, s{S_FS}, 0x{FL_H:x}")
    P(f"s_add_u32 s{S_FP}, s{S_FP}, 0x{FL_H:x}")
    P(f"s_lshl_b32 s{S_FW}, s{S_W}, 14")
    P(f"s_lshl_b32 s{S_T1}, s{S_J}, 7")
    P(f"s_add_u32 s{S_FW}, s{S_FW}, s{S_T1}")
    P(f"s_lshl_b32 s{S_FL2}, s{S_W}, 11")
    P(f"s_mul_i32 s{S_U0}, s{S_J}, 11")
    P(f"s_min_u32 s{S_U0}, s{S_U0}, 76")
    P(f"s_cmp_ge_u32 s{S_J}, 6")
    P(f"s_cselect_b32 s{S_NU}, 10, 11")
    vxa = xfrag_addr(P, V, "vxa", lane, t0, S_TT)
    vq = V.alloc("vq")
    P(f"s_and_b32 s{S_T0}, s{S_W}, 3")
    P(f"s_lshl_b32 s{S_T1}, s{S_T0}, 11")
    P(f"s_add_u32 s{S_T1}, s{S_T1}, 0x{QSCR:x}")
    P(f"v_add_u32 v{vq}, s{S_T1}, v{l16}")
    acc = [[V.alloc(f"acc{i}{t}", 16) for t in range(2)] for i in range(3)]
    fx = [[V.alloc(f"fx{b}{t}", 4) for t in range(2)] for b in range(2)]
    fw = [[V.alloc(f"fw{b}{i}", 4) for i in range(3)] for b in range(2)]
    P(f"s_cmp_lg_u32 s{S_KH}, 0")
    P("s_cbranch_scc1 LF_light")

    def sigstamp(it, k):
        if OPT.get("sig"):
            P(f"s_memtime s[98:99]"); P("s_waitcnt lgkmcnt(0)"); P(f"v_writelane_b32 v{vsig}, s98, {2*it+k}")
    vsig = V.alloc("vsig") if OPT.get("sig") else None

    P.cond_begin()
    vx0 = V.alloc("vx0")
    P(f"s_mul_i32 s{S_T0}, s{S_TT}, {32*X_STRIDE}")
    P(f"v_subrev_u32 v{vx0}, s{S_T0}, v{vxa}")
    vtn = tr_slice_addr(P, V, "vtn", lane, t0, t1, SLOT[0], S_HP, 8)
    P(f"s_lshl_b32 s{S_T4}, s{S_W}, 1")
    wtr = w_tr_addrs(P, V, lane, t0, t1, s_w=S_T4)
    P(f"s_mul_i32 s{S_T0}, s{S_W}, 3")
    P(f"s_mul_i32 s{S_T1}, s{S_G}, 236")
    P(f"s_add_u32 s{S_T1}, s{S_T1}, s{S_U0}")
    for i in range(3):
        P(f"s_add_u32 s{S_T2}, s{S_T0}, {i}")
        P(f"s_add_u32 s{SH[i]}, s{S_T1}, s{S_T2}")
        P(f"s_lshl_b32 s{SH[i]}, s{SH[i]}, 10")
        P(f"s_add_u32 s{SH[i]}, s{SH[i]}, 0x{WS_OH:x}")
        P(f"s_cmp_lt_u32 s{S_T2}, s{S_NU}")
        P(f"s_cselect_b32 s{SH[i]}, s{SH[i]}, 0x{OOB:x}")
    vpf = V.alloc("vpf"); vpd = V.alloc("vpd"); vpw = V.alloc("vpw")
    P(f"v_bfe_u32 v{t0}, v{lane}, 4, 1")
    P(f"v_lshrrev_b32 v{t1}, 5, v{lane}")
    P(f"v_lshl_add_u32 v{t0}, v{t1}, 7, v{t0}")
    P(f"v_mul_u32_u24 v{vpf}, 2752, v{t0}")
    P(f"v_and_b32 v{t0}, 15, v{lane}")
    P(f"v_lshl_add_u32 v{vpf}, v{t0}, 7, v{vpf}")
    P(f"v_cmp_gt_u32 vcc, 12, v{t0}")
    P(f"v_mov_b32 v{t1}, 0x{OOB:x}")
    P(f"v_cndmask_b32 v{vpf}, v{t1}, v{vpf}, vcc")
    P(f"s_lshr_b32 s{S_T0}, s2, 3")
    P(f"s_lshl_b32 s{S_T0}, s{S_T0}, 1")
    P(f"s_add_u32 s{S_T0}, s{S_T0}, s{S_HP}")
    P(f"s_mul_i32 s{S_T0}, s{S_T0}, {2*2752}")
    P(f"s_and_b32 s{S_T1}, s2, 1")
    P(f"s_mul_i32 s{S_T1}, s{S_T1}, {44*32}")
    P(f"s_add_u32 s{S_T6}, s{S_T0}, s{S_T1}")
    def pf(blk, half):
        P(f"s_add_u32 s{S_T4}, s{S_T6}, {128*2752*blk}")
        if half: P("s_mov_b64 exec, 0xffffffff")
        P(f"buffer_load_dword v{vpd}, v{vpf}, s[{S_WM}:{S_WM+3}], s{S_T4} offen", tag="pf")
        P.I[-1].vw = set()
        if half: P("s_mov_b64 exec, -1")
    PF = OPT.get("pf", 3)
    if PF & 4: pf(0, True)
    S_PFS = S_WKV
    P(f"s_lshr_b32 s{S_T0}, s2, 3")
    P(f"s_lshl_b32 s{S_T0}, s{S_T0}, 2")
    P(f"s_add_u32 s{S_T0}, s{S_T0}, s{S_W}")
    P(f"s_cmp_lt_u32 s{S_T0}, 86")
    P(f"s_cselect_b32 s{S_PFS}, s{S_WD}, s{S_WO}")
    P(f"s_cselect_b32 s{S_PFS+1}, s{S_WD+1}, s{S_WO+1}")
    P(f"s_cselect_b32 s{S_PFS+2}, s{S_WD+2}, s{S_WO+2}")
    P(f"s_cselect_b32 s{S_T1}, 0, 86")
    P(f"s_mov_b32 s{S_PFS+3}, 0x20000")
    P(f"s_sub_u32 s{S_T0}, s{S_T0}, s{S_T1}")
    P(f"s_lshl_b32 s{S_T0}, s{S_T0}, 14")
    P(f"s_and_b32 s{S_T1}, s2, 1")
    P(f"s_lshl_b32 s{S_T1}, s{S_T1}, 9")
    P(f"s_add_u32 s{S_T0}, s{S_T0}, s{S_T1}")
    P(f"v_lshrrev_b32 v{t0}, 2, v{lane}")
    P(f"v_lshlrev_b32 v{t0}, 10, v{t0}")
    P(f"v_and_b32 v{t1}, 3, v{lane}")
    P(f"v_lshl_add_u32 v{t0}, v{t1}, 7, v{t0}")
    P(f"v_add_u32 v{vpw}, s{S_T0}, v{t0}")
    P.wait_tag("q")
    P("s_barrier")
    stamp(P, 2)
    if PF & 2: pf(0, True)
    QD = 6
    xb = [acc[1][0] + 4 * i for i in range(QD)]; wb = [acc[2][0] + 4 * i for i in range(QD)]
    assert acc[1][1] == acc[1][0] + 16 and acc[2][1] == acc[2][0] + 16
    def q_loads(ks):
        o = SLOT[ks // 12] - SLOT[0] + (ks % 12) * 2048
        P(f"ds_read_b128 {vr(xb[ks%QD],4)}, v{vxa} offset:{ks*32}")
        P(f"ds_read_b64_tr_b16 {vr(wb[ks%QD],2)}, v{vtn} offset:{o}")
        P(f"ds_read_b64_tr_b16 {vr(wb[ks%QD]+2,2)}, v{vtn} offset:{o+512}")
    for ks in range(QD - 1): q_loads(ks)
    for ks in range(32):
        P(mfma(acc[0][0], wb[ks%QD], xb[ks%QD], acc[0][0] if ks else None))
        if ks in (11, 23):
            stamp(P, 11 if ks == 11 else 13)
            P("s_barrier")
        if ks + QD - 1 < 32: q_loads(ks + QD - 1)
        if ks == OPT.get("pk", 20):
            P(f"s_mov_b32 s{S_T5}, 0x{FL_KV:x}")
            P(f"buffer_load_dword v{vn}, v{vz}, s[{S_DBG}:{S_DBG+3}], 0 offen sc1")
            P(flag_load(vfl, 4, l16, f"s{S_T5}"))
    for r in range(8): P(f"v_cvt_pk_bf16_f32 v{qf+r}, v{acc[0][0]+2*r}, v{acc[0][0]+2*r+1}")
    P(f"ds_write_b128 v{vq}, {vr(qf,4)}")
    P(f"ds_write_b128 v{vq}, {vr(qf+4,4)} offset:1024")
    nonce_check(P, SL, vn, vz)
    spin_check(P, SL, [flag_load(vfl, 4, l16, f"s{S_T5}")], flag_cmp(vfl, 4, t0))
    kv_dma(P, l16, 0)
    P(f"s_add_u32 s{S_T2}, s{S_T2}, 32768")
    dma(P, l16, S_WS, f"s{S_T2}", (S_KVLDS, 4096), tag="kv0", mods=SC1)
    def gu_reads(ks):
        s, kk = ks // 2, ks % 2
        so = SLOT[s % 3] - SLOT[0] + kk * 6144
        L = [f"ds_read_b128 {vr(fx[ks%2][0],4)}, v{vx0} offset:{ks*32}"]
        for i in range(3):
            f = fw[ks % 2][i]
            L += [f"ds_read_b64_tr_b16 {vr(f,2)}, v{wtr[i]} offset:{so}", f"ds_read_b64_tr_b16 {vr(f+2,2)}, v{wtr[i]} offset:{so+1536}"]
            if i == 0: L.append(f"ds_read_b128 {vr(fx[ks%2][1],4)}, v{vx0} offset:{ks*32 + 32*X_STRIDE}")
        return L
    def gu_groups(ks, late=False):
        R = gu_reads(ks + 1) if ks < 31 else []
        if OPT.get("abl_hds") and ks >= 2 * NP - 1: R = []
        G = []
        for m in range(6):
            i, t = m // 2, m % 2
            mm = [mfma(acc[i][t], fw[ks % 2][i], fx[ks % 2][t], acc[i][t] if ks else None)]
            if OPT.get("abl_hm") and ks >= 2 * NP - 1: mm = []
            G.append(mm + (R[2 * m: 2 * m + 2] if not late else ([] if m < 3 else R[3 * (m - 3): 3 * (m - 3) + 3])))
        return G
    P.wait_lgkm_all()
    stamp(P, 14)
    P("s_barrier")
    stamp(P, 3)
    for x in gu_reads(0): P(x)
    poison()
    PFI = OPT.get("pfi", 0)
    for ks in range(2 * NP - 1):
        if ks % 2 == 1:
            P.wait_lgkm_all(); P("s_barrier")
        for g in gu_groups(ks):
            for x in g: P(x)
    P.wait_tag("kv0"); P.wait_lgkm_all(); P("s_barrier")
    stamp(P, 4)
    gq = []
    tmp = fx[0][0]; cst = fx[1][0]
    assert fx[0][1] == fx[0][0] + 4
    gel = []
    def load_window(k):
        n = 2 * (NP + k) - 1
        assert not gq
        gq.extend(gu_groups(n, late=(k > 0 and OPT.get("sb", 0))))
        if n < 31: gq.extend(gu_groups(n + 1))
    def hookH(it, x, pos):
        if pos == "sync?": return 1 <= it <= JIT
        if pos == "pre0": sigstamp(it, 0); return
        if pos == "pre": sigstamp(it, 1); return
        if pos == "start": load_window(0); return
        midprio(it, x, pos)
        if pos == "pv2" and x == 1 and PF & 1:
            if it == PFI: pf(1, True)
            if it == PFI + 2: pf(2, True)
            if it == PFI + 5: pf(3, True)
        if pos == "pv2" and x == 1 and OPT.get("wpf", 1) and it in (7, 8, 9, 10):
            k = it - 7
            P(f"s_cmp_lg_u32 s{S_W}, {k}")
            P(f"s_cbranch_scc1 LF_wp{k}")
            P(f"buffer_load_dword v{vpd}, v{vpw}, s[{S_PFS}:{S_PFS+3}], 0 offen")
            P.I[-1].kind = "salu"; P.I[-1].vw = set()
            P(f"LF_wp{k}:")
        if pos == "pv1" and x == 0 and 1 <= it <= JIT: load_window(it)
        if pos in ("g1", "g2", "g3", "g4", "g5", "g6"):
            if gq and not (it == 0 and pos in ("g1", "g3", "g5") and False):
                for t in gq.pop(0): P(t)
                if not gq and it == JIT and x == 1:
                    L = [f"v_mov_b32 v{cst}, {hexf(GELU_C1)}", f"v_mov_b32 v{cst+1}, {hexf(GELU_C1)}",
                         f"v_mov_b32 v{cst+2}, {hexf(GELU_C2)}", f"v_mov_b32 v{cst+3}, {hexf(GELU_C2)}"]
                    k = 0
                    for i in range(3):
                        for t in range(2):
                            d = fw[k % 2][k // 2]; k += 1
                            L += gelu_tile_pk(acc[i][t], d, tmp, cst)
                            if t == 1: L.append(f"s_add_u32 s{SH[i]}, s{SH[i]}, {118*1024}")
                            L.append(f"buffer_store_dwordx4 {vr(d,4)}, v{l16}, {WSR}, s{SH[i]} offen sc1")
                    ns = 3 + 12 * (UNI - JIT - 1)
                    n = (len(L) + ns - 1) // ns
                    gel.extend(L[i:i + n] for i in range(0, len(L), n))
            elif gel:
                for t in gel.pop(0): P(t, tag="hst" if "store" in t else None)
    PM = OPT.get("pm", 5)
    def prioH(it, x):
        if PM == 1: return 3 if (it == 0 and x == 0) else None
        if PM == 3: return 3 - 2 * x
        if PM == 5: return (3 - 2 * x) if it < JIT else 3
        if PM == 6: return 3 if it >= JIT else None
        return None
    def prioL(it, x):
        if PM in (2, 6): return 1 if (it == 0 and x == 0) else None
        if PM == 3: return 3 - 2 * x
        if PM == 5: return (3 - 2 * x) if it < JIT else 0
        return None
    def midprio(it, x, pos):
        if PM in (3, 5) and pos == "pv2" and (PM == 3 or it <= JIT): P(f"s_setprio {2 * x}")
    attention(P, A, l16, range(0, UNI), hookH, prioH, kvf=lambda c: None)
    nsb = A["sb"].n; A["sb"].n = 0
    assert not gq and not gel, (len(gq), len(gel))
    P.cond_end(keep=True)
    P("s_branch LF_join")
    for n in ("vx0", "vtn", "wtr0", "wtr1", "wtr2", "vpf", "vpw"): V.release(n)

    P("LF_light:")
    P.cond_begin()
    pats = w_patterns(P, V, lane, t0, t1)
    P(f"s_lshl_b32 s{S_T0}, s{S_HP}, 1")
    P(f"s_mul_i32 s{S_WOFF}, s{S_T0}, {8*2752}")
    P(f"s_lshl_b32 s{S_T1}, s{S_U0}, 5")
    P(f"s_add_u32 s{S_WOFF}, s{S_WOFF}, s{S_T1}")
    P(f"s_mul_i32 s{S_WLDS}, s{S_T0}, 3072")
    P(f"s_mul_i32 s{S_T1}, s{S_TT}, {UP_OFF}")
    P(f"s_add_u32 s{S_WLDS}, s{S_WLDS}, s{S_T1}")
    inattn = dict(on=False)
    P(f"s_add_u32 s{S_WOFF}, s{S_WOFF}, 0")
    P(f"v_subrev_u32 v{pats[1]}, 1024, v{pats[1]}")
    P(f"v_subrev_u32 v{pats[2]}, 2048, v{pats[2]}")
    def w_dma1(s, k):
        g, i = k // 3, k % 3
        solo = not OPT.get("wm0", 1) or inattn["on"]
        if i == 0 or solo:
            dma(P, pats[i], S_WM, f"s{S_T3}", (S_WLDS, SLOT[s % 3] + 3072 * g), offset=1024 * i, tag=f"w{s}",
                pre=[f"s_add_u32 s{S_T3}, s{S_WOFF}, 0x{(32*s + 8*g)*2752:x}"] if i == 0 else None)
        else:
            P(f"buffer_load_dwordx4 v{pats[i]}, s[{S_WM}:{S_WM+3}], s{S_T3} offen offset:{1024*i} lds", tag=f"w{s}")
    def w_dma6(s):
        for k in range(6): w_dma1(s, k)
    vgw = acc[0][1]
    P(f"v_lshrrev_b32 v{t0}, 5, v{lane}")
    P(f"v_lshlrev_b32 v{vgw}, 4, v{t0}")
    P(f"s_lshl_b32 s{S_T0}, s{S_HP}, 9")
    P(f"v_add_u32 v{vxa}, s{S_T0}, v{vxa}")
    P(f"s_add_u32 s{S_T0}, s{S_T0}, 0x{GWL:x}")
    P(f"v_add_u32 v{vgw}, s{S_T0}, v{vgw}")
    P(f"s_lshl_b32 s{S_T0}, s{S_W}, 8")
    P(f"s_add_u32 s{S_T0}, s{S_T0}, 0x{ONES - 1024:x}")
    P(f"v_lshlrev_b32 v{t0}, 2, v{lane}")
    P(f"v_add_u32 v{t0}, s{S_T0}, v{t0}")
    P(f"v_mov_b32 v{t1}, 0x3f803f80")
    P(f"v_lshrrev_b32 v1, 2, v{lane}")
    P(f"v_and_b32 v1, 11, v1")
    P(f"v_cmp_eq_u32 vcc, 0, v1")
    P(f"v_cndmask_b32 v{t1}, 0, v{t1}, vcc")
    P(f"ds_write_b32 v{t0}, v{t1}")
    P(f"ds_write_b32 v{t0}, v{t1} offset:1024")
    dma(P, l16, S_GW, "0", (None, GWL), tag="q")
    P.wait_tag("q")
    P("s_barrier")
    stamp(P, 2)
    stamp(P, 11)
    P("s_barrier")
    w_dma6(0)
    stamp(P, 13)
    P("s_barrier")
    w_dma6(1)
    poison()
    za = acc[0][0]; zx = [acc[1][0] + 4 * i for i in range(4)]; zg = [acc[2][0] + 4 * i for i in range(4)]
    def zjob():
        for r in range(4): P(f"v_mov_b32 v{za+r}, 0")
        def zld(k):
            P(f"ds_read_b128 {vr(zx[k%4],4)}, v{vxa} offset:{k*32}")
            P(f"ds_read_b128 {vr(zg[k%4],4)}, v{vgw} offset:{k*32}")
        for k in range(3): zld(k)
        for k in range(16):
            for r in range(4): P(f"v_dot2c_f32_bf16 v{za+r}, v{zx[k%4]+r}, v{zg[k%4]+r}")
            if k + 3 < 16: zld(k + 3)
        P("s_nop 2")
        P(f"v_add_f32 v{za}, v{za}, v{za+1}")
        P(f"v_add_f32 v{za+2}, v{za+2}, v{za+3}")
        P(f"v_add_f32 v{za}, v{za}, v{za+2}")
        P(f"s_and_b32 s{S_T0}, s{S_W}, 3")
        P(f"s_lshl_b32 s{S_T0}, s{S_T0}, 8")
        P(f"s_add_u32 s{S_T0}, s{S_T0}, 0x{MISC:x}")
        P(f"v_lshlrev_b32 v{t0}, 2, v{lane}")
        P(f"v_add_u32 v{t0}, s{S_T0}, v{t0}")
        P(f"ds_write_b32 v{t0}, v{za}")
    P(f"s_mov_b32 s{S_T6}, 0x{FL_KV:x}")
    def kv_both(c):
        kv_dma(P, l16, c)
        dma(P, l16, S_WS, f"s{S_T2}", (S_KVLDS, (8192 * (c & 1) - 4096) & 0xffffffff), tag=f"kv{c}", mods=SC1, pre=[f"s_sub_u32 s{S_T2}, s{S_T2}, 32768"])
    def poll_issue():
        P(f"buffer_load_dword v{vn}, v{vz}, s[{S_DBG}:{S_DBG+3}], 0 offen sc1")
        P(flag_load(vfl, 4, l16, f"s{S_T6}"))
    for s in range(0, NP + 1):
        P.wait_tag(f"w{s}")
        P.wait_lgkm_all()
        if s == 0: stamp(P, 14)
        P("s_barrier")
        if s == 0:
            stamp(P, 3)
            P(f"ds_read_b128 {vr(qf,4)}, v{vq} offset:1024")
            P(f"ds_read_b128 {vr(qf+4,4)}, v{vq}")
        if s == NP: kv_both(1)
        if s < NP: w_dma6(s + 2)
        if s == 0:
            P(f"buffer_load_dword v{vn}, v{vz}, s[{S_DBG}:{S_DBG+3}], 0 offen sc1")
            zjob()
    assert NP >= 1
    stamp(P, 4)
    dq = []
    def hookL(it, x, pos):
        if pos == "sync?": return 1 <= it <= JIT
        if pos == "pre0": sigstamp(it, 0); return
        if pos == "pre":
            if NP + it < 16: P.wait_tag(f"w{NP+it}")
            sigstamp(it, 1); return
        if (pos == "start" or pos == "chk") and NP + it + 2 < 16:
            assert not dq
            for k in range(0 if OPT.get("abl_ldma") else 6): dq.append(lambda s=NP + it + 2, k=k: w_dma1(s, k))
        midprio(it, x, pos)
        if (pos in ("pv2", "qk", "pv1") or (pos == "g5" and x == 1 and OPT.get("sb", 0))) and dq: dq.pop(0)()
    attention(P, A, l16, range(0, UNI), hookL, prioL, kvf=kv_both)
    assert A["sb"].n == nsb
    assert not dq
    P.cond_end(keep=True)
    P("LF_join:")
    P.join()
    for n in ["wpat0", "wpat1", "wpat2", "vxa", "vq"] + [f"acc{i}{t}" for i in range(3) for t in range(2)] + \
             [f"fx{b}{t}" for b in range(2) for t in range(2)] + [f"fw{b}{i}" for b in range(2) for i in range(3)]: V.release(n)
    stamp(P, 5)

    facc = V.alloc("facc", 16); facc1 = V.alloc("facc1", 16); fa = V.alloc("ffa", 8)
    NB = OPT.get("nb", 6)
    hb = [V.alloc(f"hb{i}", 4) for i in range(NB)]; fb = hb[0]
    vl4 = V.alloc("vl4"); vg = V.alloc("vg"); zt = V.alloc("zt", 2)
    va0 = tr_slice_addr(P, V, "fa0", lane, t0, t1, 0, S_KH, 4)
    vA = [[va0, V.alloc("fa0h")], [V.alloc("fa1"), V.alloc("fa1h")]]
    P(f"s_lshl_b32 s{S_T1}, s{S_HP}, 5")
    P(f"v_xor_b32 v{va0}, s{S_T1}, v{va0}")
    P(f"s_lshr_b32 s{S_T0}, s{S_W}, 1")
    P(f"s_lshl_b32 s{S_T1}, s{S_T0}, 11")
    P(f"v_add_u32 v{va0}, s{S_T1}, v{va0}")
    P(f"v_xor_b32 v{vA[1][0]}, 64, v{va0}")
    P(f"v_add_u32 v{vA[0][1]}, 0x10000, v{va0}")
    P(f"v_add_u32 v{vA[1][1]}, 0x10000, v{vA[1][0]}")
    P(f"s_mul_i32 s{S_FB}, s{S_TILE}, 118")
    P(f"s_add_u32 s{S_FB}, s{S_FB}, s{S_T0}")
    P(f"s_lshl_b32 s{S_FB}, s{S_FB}, 10")
    P(f"s_add_u32 s{S_FB}, s{S_FB}, 0x{WS_OH:x}")
    P(f"v_lshlrev_b32 v{vl4}, 2, v{lane}")
    P(f"s_lshl_b32 s{S_T0}, s{S_TT}, 8")
    P(f"s_add_u32 s{S_T0}, s{S_T0}, 0x{MISC:x}")
    P(f"v_add_u32 v{t0}, s{S_T0}, v{vl4}")
    P(f"ds_read_b32 v{zt}, v{t0}")
    P(f"ds_read_b32 v{zt+1}, v{t0} offset:512")
    P(f"v_add_f32 v{zt}, v{zt}, v{zt+1}")
    P(f"v_mov_b32 v{zt+1}, v{zt}")
    P(f"v_permlane32_swap_b32 v{zt}, v{zt+1}")
    P(f"v_add_f32 v{zt}, v{zt}, v{zt+1}")
    P(f"v_mul_f32 v{t0}, {hexf(-LOG2E)}, v{zt}")
    P(f"v_exp_f32 v{t0}, v{t0}")
    P(f"v_add_f32 v{t0}, 1.0, v{t0}")
    P(f"v_rcp_f32 v{vg}, v{t0}")
    V.release("zt")
    vw = [V.alloc(f"vw{i}") for i in range(3)]; vrd = V.alloc("vrd"); vo = V.alloc("vo")
    def sbase(dst, w):
        P(f"s_mul_i32 s{S_T1}, s{w}, 6144")
        P(f"v_add_u32 v{dst}, s{S_T1}, v{l16}")
    sbase(vrd, S_W)
    for b in range(1, 4):
        P(f"s_xor_b32 s{S_T0}, s{S_W}, {b << 1}")
        sbase(vw[b - 1], S_T0)
    P(f"v_and_b32 v{vo}, 31, v{lane}")
    P(f"v_lshlrev_b32 v{vo}, 10, v{vo}")
    P(f"v_lshrrev_b32 v{t1}, 5, v{lane}")
    P(f"v_lshl_add_u32 v{vo}, v{t1}, 4, v{vo}")
    P(f"s_lshl_b32 s{S_OO}, s{S_TILE}, 15")
    P(f"s_lshl_b32 s{S_T1}, s{S_J}, 7")
    P(f"s_add_u32 s{S_OO}, s{S_OO}, s{S_T1}")
    P(f"s_lshl_b32 s{S_T1}, s{S_KH}, 6")
    P(f"s_add_u32 s{S_OO}, s{S_OO}, s{S_T1}")
    P(f"s_lshl_b32 s{S_T1}, s{S_HP}, 5")
    P(f"s_add_u32 s{S_OO}, s{S_OO}, s{S_T1}")
    vp = V.alloc("vp"); vpa = V.alloc("vpa")
    P(f"v_lshlrev_b32 v{vpa}, 10, v{lane}")
    vt0 = V.alloc("vt0"); vt1 = V.alloc("vt1")
    P(f"s_lshr_b32 s{S_T1}, s{S_W}, 1")
    P(f"s_mul_i32 s{S_T1}, s{S_T1}, {16384 - 2048}")
    P(f"s_add_u32 s{S_T1}, s{S_T1}, {3*16384}")
    P(f"v_add_u32 v{vt0}, s{S_T1}, v{vA[0][0]}")
    P(f"v_add_u32 v{vt1}, s{S_T1}, v{vA[1][0]}")
    va = V.alloc("cva"); vb = V.alloc("cvb"); fb = V.alloc("cvon")
    P(f"s_mul_i32 s{S_T0}, s{S_W}, 3072")
    P(f"s_add_u32 s{S_T0}, s{S_T0}, 114688")
    P(f"v_add_u32 v{va}, s{S_T0}, v{l16}")
    P(f"s_xor_b32 s{S_T0}, s{S_W}, 4")
    P(f"s_mul_i32 s{S_T0}, s{S_T0}, 3072")
    P(f"s_add_u32 s{S_T0}, s{S_T0}, 114688")
    P(f"v_add_u32 v{vb}, s{S_T0}, v{l16}")
    P(f"s_add_u32 s{S_OL2}, s{S_OL}, 4096")
    BSLOT = lambda b: ((b % 8) if b < 11 else (b - 8)) * 16384
    def a_reads(r, d):
        o = (4 * r % 64) * 2048; hi = o >> 16; o &= 0xffff
        assert r // 2 in vis, (r, vis)
        rd_done[r // 2] = rd_done.get(r // 2, 0) + 1
        if OPT.get("abl_uds"): return
        P(f"ds_read_b64_tr_b16 {vr(fa+4*d,2)}, v{vA[d][hi]} offset:{o}")
        P(f"ds_read_b64_tr_b16 {vr(fa+4*d+2,2)}, v{vA[d][hi]} offset:{o+1024}")
    def h_load(r):
        if OPT.get("abl_uh"): return
        P(f"s_add_u32 s{S_T2}, s{S_FB}, {4096*r}")
        if r == 21:
            P(f"s_cmp_lt_u32 s{S_W}, 4")
            P(f"s_cselect_b32 s{S_T2}, s{S_T2}, 0x{OOB:x}")
        P(f"buffer_load_dwordx4 {vr(hb[r%NB],4)}, v{l16}, {WSR}, s{S_T2} offen sc1")
    pend = {}
    dq = []; vis = set(); issued = {}; rd_done = {}; nxt = dict(b=0, r=0, d=0, pre=False)
    def qW(b):
        def f(i):
            if not OPT.get("abl_uw"): fin_dma_w1(P, vsl, b, BSLOT(b), f"fw{b}", i)
            issued[b] = issued.get(b, 0) + 1
        for i in range(2): dq.append(lambda i=i: f(i))
    CH = OPT.get("ch", HF + 3); R0 = OPT.get("r0", 2 * (CH + 2))
    DBL = OPT.get("dbl", 64)
    def mstep():
        r, d = nxt["r"], nxt["d"]
        if r >= 22: return
        if not nxt["pre"]:
            a_reads(0, 0); a_reads(0, 1); nxt["pre"] = True; return
        if not OPT.get("abl_um"): P(mfma([facc, facc1][d], fa + 4 * d, hb[r % NB], [facc, facc1][d] if r else None))
        if r + 1 < 22: a_reads(r + 1, d)
        if d == 1 and r + NB < 22: dq.insert(0, lambda r=r: h_load(r + NB))
        nxt["d"] = 1 - d; nxt["r"] = r + d
    def hookU(it, x, pos):
        sig = (x == 0 and (it & 1)); ph = 2 * it + x
        if pos == "sync?": return False
        if pos == "pre0": sigstamp(it, 0); return
        if pos == "pre":
            if it == HF: P.wait_vm_all()
            need = [b for b in issued if issued[b] == 2 and b not in vis and (it == 29 or b <= (max(0, ph + 8 - R0) * (2 if ph + 6 >= DBL else 1)) // 2) and b <= 10]
            if need: P.wait_tag(*[f"fw{b}" for b in need])
            pend["vis"] = need; pend["free"] = {b for b in rd_done if rd_done[b] >= 4}
            sigstamp(it, 1); return
        if pos == "pv1" and sig and it == HF:
            nonce_check(P, SL, vn, vz)
            flag_store(P, vz, t0, S_FS)
        if pos == "chk":
            vis.update(pend["vis"])
            while it >= HF and nxt["b"] < 15:
                b = nxt["b"]; prev = {8: 0, 9: 1, 10: 2, 11: 3, 12: 4, 13: 5, 14: 6}.get(b)
                if prev is not None and prev not in pend["free"]: break
                qW(b); nxt["b"] += 1
            return
        if pos == "pv2" and x == 0 and it == CH - 1: P(flag_load(vfl, 1, vl4, f"s{S_FP}"))
        if pos == "pv2" and x == 0 and it == CH:
            spin_check(P, SL, [flag_load(vfl, 1, vl4, f"s{S_FP}")], flag_cmp(vfl, 1, t0))
            for r in range(NB): dq.insert(r, lambda r=r: h_load(r))
        elif dq and (pos in ("pv2", "qk") or (pos in ("g2", "g5") and it in (CH, CH + 1)) or (pos == "g5" and OPT.get("d3"))): dq.pop(0)()
        if nxt["r"] >= 22 - OPT.get("tr", 5) and nxt["d"] == 0: pass
        elif (pos in ("g1", "g4") and ph >= R0) or (pos == "g4" and ph == R0 - 1) or (pos in ("g3", "g6") and ph >= DBL): mstep()
        if pos == "g6" and it == 31 and x == 1:
            assert nxt["b"] == 15, nxt
            print("rounds left for tail:", 22 - nxt["r"])
    def prioU(it, x):
        if not OPT.get("prio", 1): return None
        return 3 - (2 * ((it + 1) & 1) + x)
    attention(P, A, l16, range(UNI, 32), hookU, prioU)
    assert not dq
    stamp(P, 6)
    if OPT.get("sig"):
        P(f"s_lshl_b32 s98, s2, 11")
        P(f"s_lshl_b32 s99, s{S_W}, 8")
        P(f"s_add_u32 s98, s98, s99")
        P(f"s_add_u32 s98, s98, 0x{WS_STAMP + (1<<20):x}")
        P(f"buffer_store_dword v{vsig}, v{vl4}, {WSR}, s98 offen")
    P("s_setprio 0")
    P(f"v_mov_b32 v{O[1]+7}, v{O[1]}")
    for i in range(3): P(f"ds_write_b128 v{va}, {vr(O[1]+4+4*i,4)} offset:{1024*i}")
    P.wait_tag(*[f"fw{b}" for b in range(8, 15)]); P.wait_lgkm_all()
    P("s_barrier")
    vis.update(range(11))
    for i in range(3): P(f"ds_read_b128 {vr(O[1]+4+4*i,4)}, v{vb} offset:{1024*i}")
    P(f"v_add_f32 v{O[0]}, v{O[0]}, v{O[1]+7}")
    for r in range(8, 16): P(f"v_add_f32 v{O[0]+r}, v{O[0]+r}, v{O[1]+r}")
    P(f"v_mov_b32 v{t1}, 0x207")
    P(f"v_cmp_nle_f32 vcc, {hexf(2.0**-90)}, v{O[0]}")
    P(f"v_cmp_nge_f32 s[{S_PM}:{S_PM+1}], {'s' + str(S_T0)}, v{O[0]}".replace(f"s{S_T0}", f"s{S_C1}"))
    P(f"s_or_b64 vcc, vcc, s[{S_PM}:{S_PM+1}]")
    P(f"v_add3_u32 v{t0}, v{O[0]+8}, 0, 0".replace("v_add3_u32", "v_add_f32").replace(", 0, 0", f", v{O[0]+9}"))
    for r in range(10, 16): P(f"v_add_f32 v{t0}, v{t0}, v{O[0]+r}")
    P(f"v_cmp_class_f32 s[{S_PM}:{S_PM+1}], v{t0}, v{t1}")
    P(f"s_or_b64 vcc, vcc, s[{S_PM}:{S_PM+1}]")
    if OPT.get("forcefb"): P("s_mov_b64 vcc, -1")
    P("s_cmp_lg_u64 vcc, 0")
    P("s_cbranch_scc1 LF_fb")
    P("LF_fbr:")
    P(f"v_rcp_f32 v{t0}, v{O[0]}")
    P(f"v_mul_f32 v{t0}, v{t0}, v{vg}")
    for r in range(8, 16): P(f"v_mul_f32 v{O[0]+r}, v{O[0]+r}, v{t0}")
    for r in range(4): P(f"v_cvt_pk_bf16_f32 v{O[1]+r}, v{O[0]+8+2*r}, v{O[0]+9+2*r}")
    for r in range(4): P(f"v_min_u32 v{O[1]+r}, 0xfffffffe, v{O[1]+r}")
    P(f"buffer_store_dwordx4 {vr(O[1],4)}, v{l16}, {WSR}, s{S_OD} offen sc1", tag="ost")
    stamp(P, 7)
    K4, V8, ON, CM = A["fk"], A["fv"][0], fb, O[1]
    assert A["fv"][1] == V8 + 4
    nl = "\n    "
    fbk = f"""LF_fb:
    s_waitcnt vmcnt(0) lgkmcnt(0)
    v_mov_b32 v{t0}, 0xff800000
    s_mov_b32 s{S_T0}, 0x{WS_KF:x}
LF_fb1:
    buffer_load_dwordx4 {vr(K4,4)}, v{l16}, {WSR}, s{S_T0} offen sc1
    s_waitcnt vmcnt(0)
    {mfma(S[0], K4, qf)}
    s_nop 15
    {nl.join(f"v_max3_f32 v{t0}, v{S[0]+2*r}, v{S[0]+2*r+1}, v{t0}" for r in range(8))}
    s_add_u32 s{S_T0}, s{S_T0}, 1024
    s_cmp_lt_u32 s{S_T0}, 0x{WS_KF + 65536:x}
    s_cbranch_scc1 LF_fb1
    v_mov_b32 v{t1}, v{t0}
    s_nop 1
    v_permlane32_swap_b32 v{t0}, v{t1}
    s_nop 1
    v_max_f32 v{t0}, v{t0}, v{t1}
    {nl.join(f"v_sub_f32 v{CM+r}, 0, v{t0}" for r in range(16))}
    {nl.join(f"v_mov_b32 v{O[0]+r}, 0" for r in range(16))}
    v_lshrrev_b32 v{t0}, 5, v{lane}
    v_lshlrev_b32 v{t0}, 8, v{t0}
    v_and_b32 v{t1}, 15, v{lane}
    v_lshl_add_u32 v{t0}, v{t1}, 4, v{t0}
    v_and_b32 v{t1}, 16, v{lane}
    v_cmp_eq_u32 vcc, 0, v{t1}
    v_mov_b32 v{t1}, 0x{OOB:x}
    s_nop 1
    v_cndmask_b32 v{t0}, v{t0}, v{t1}, vcc
    v_and_b32 v{t1}, 27, v{lane}
    v_cmp_eq_u32 vcc, 0, v{t1}
    v_mov_b32 v{ON}, 0x3f803f80
    s_nop 1
    v_cndmask_b32 v{ON}, 0, v{ON}, vcc
    s_mov_b32 s{S_T0}, 0x{WS_KF:x}
LF_fb2:
    s_add_u32 s{S_T1}, s{S_T0}, 0x{WS_VF - WS_KF:x}
    buffer_load_dwordx4 {vr(K4,4)}, v{l16}, {WSR}, s{S_T0} offen sc1
    buffer_load_dwordx4 {vr(V8,4)}, v{t0}, {WSR}, s{S_T1} offen sc1
    buffer_load_dwordx4 {vr(V8+4,4)}, v{t0}, {WSR}, s{S_T1} offen offset:512 sc1
    s_waitcnt vmcnt(0)
    {mfma(S[0], K4, qf, CM)}
    {nl.join(f"v_or_b32 v{V8+r}, v{V8+r}, v{ON}" for r in range(8))}
    s_nop 7
    {nl.join(f"v_exp_f32 v{S[0]+r}, v{S[0]+r}" for r in range(16))}
    s_nop 1
    {nl.join(f"v_cvt_pk_bf16_f32 v{S[1]+r}, v{S[0]+2*r}, v{S[0]+2*r+1}" for r in range(8))}
    s_nop 1
    {mfma(O[0], V8, S[1], O[0])}
    {mfma(O[0], V8+4, S[1]+4, O[0])}
    s_add_u32 s{S_T0}, s{S_T0}, 1024
    s_cmp_lt_u32 s{S_T0}, 0x{WS_KF + 65536:x}
    s_cbranch_scc1 LF_fb2
    s_nop 15
    s_branch LF_fbr
"""
    SL.add(fbk)
    for n in ("Sa", "Sb", "Oa", "qf", "fk", "fv1", "fv2"): V.release(n)
    ob = V.alloc("ob", 32); wa = [V.alloc(f"wa{u}", 8) for u in range(8)]
    def oloads(g): return [f"buffer_load_dwordx4 {vr(ob+16*g+4*u,4)}, v{l16}, {WSR}, s{[S_OL,S_OL2][g]} offen offset:{1024*u} sc1" for u in range(4)]
    def ocheck(g):
        b = ob + 16 * g
        L = [f"v_max3_u32 v{t0}, v{b}, v{b+1}, v{b+2}"]
        for k in range(3, 15, 2): L.append(f"v_max3_u32 v{t0}, v{b+k}, v{b+k+1}, v{t0}")
        L += [f"v_max_u32 v{t0}, v{b+15}, v{t0}", f"v_cmp_eq_u32 vcc, -1, v{t0}"]
        return L
    fa2 = V.alloc("ffa2", 8)
    wr = []
    for u in range(8):
        for d, v in ((0, vt0), (1, vt1)):
            wr.append([f"ds_read_b64_tr_b16 {vr(wa[u]+4*d,2)}, v{v} offset:{u*2048}", f"ds_read_b64_tr_b16 {vr(wa[u]+4*d+2,2)}, v{v} offset:{u*2048+1024}"])
    r0 = nxt["r"]; assert nxt["d"] == 0 and not dq
    def tr_reads(r, d):
        o = (4 * r % 64) * 2048; hi = o >> 16; o &= 0xffff; f = [fa, fa2][(r - r0) % 2] + 4 * d
        P(f"ds_read_b64_tr_b16 {vr(f,2)}, v{vA[d][hi]} offset:{o}")
        P(f"ds_read_b64_tr_b16 {vr(f+2,2)}, v{vA[d][hi]} offset:{o+1024}")
    if r0 + 1 < 22: tr_reads(r0 + 1, 0); tr_reads(r0 + 1, 1)
    OL = min(r0 + OPT.get("ol", 99), 22)
    for r in range(r0, 22):
        if r == OL:
            for g in range(2):
                for x in oloads(g): P(x)
        for d in range(2):
            P(mfma([facc, facc1][d], [fa, fa2][(r - r0) % 2] + 4 * d, hb[r % NB], [facc, facc1][d]))
            if r + 2 < 22: tr_reads(r + 2, d)
            elif wr:
                for g in wr[:4]:
                    for x in g: P(x)
                del wr[:4]
    for g in wr:
        for x in g: P(x)
    assert 22 - r0 <= NB and r0 >= 16
    if OPT.get("oab", 1): P.wait_lgkm_all(); P("s_barrier")
    if OL == 22:
        for g in range(2):
            for x in oloads(g): P(x)
    P(f"v_sub_f32 v{t1}, 1.0, v{vg}")
    P(f"v_mov_b32 v{t0}, v{t1}")
    assert t1 == t0 + 1 and t0 % 2 == 0
    for r in range(0, 16, 2): P(f"v_pk_mul_f32 v[{facc+r}:{facc+r+1}], v[{facc+r}:{facc+r+1}], v[{t0}:{t1}]")
    for r in range(0, 16, 2): P(f"v_pk_mul_f32 v[{facc1+r}:{facc1+r+1}], v[{facc1+r}:{facc1+r+1}], v[{t0}:{t1}]")
    if not OPT.get("oab", 1): P.wait_lgkm_all(); P("s_barrier")
    stamp(P, 8)
    nl = "\n    "
    for g in range(2):
        k = SL.n; SL.n += 1
        for x in ocheck(g): P(x)
        P(f"s_cbranch_vccnz LS{k}")
        P(f"LR{k}:")
        SL.add(f"""LS{k}:
    s_mov_b32 s{S_T7}, 0
LS{k}_p:
    s_mov_b64 exec, 0xf
    buffer_load_dword v{vp}, v{vpa}, {WSR}, s{[S_OL,S_OL2][g]} offen offset:1020 sc1
    s_waitcnt vmcnt(0)
    v_cmp_eq_u32 vcc, -1, v{vp}
    s_mov_b64 exec, -1
    s_add_u32 s{S_T7}, s{S_T7}, 1
    s_cmp_ge_u32 s{S_T7}, 0x{SPIN_MAX:x}
    s_cbranch_scc1 LR{k}
    s_cbranch_vccnz LS{k}_p
    {nl.join(oloads(g))}
    s_waitcnt vmcnt(0)
    {nl.join(ocheck(g))}
    s_cbranch_vccnz LS{k}_p
    s_nop 1
    s_branch LR{k}
""")
        for u in range(4 * g, 4 * g + 4):
            P(mfma(facc1, wa[u] + 4, ob + 4 * u, facc1))
    W1 = [f"ds_write_b128 v{vw[b-1]}, {vr(src+4*i,4)} offset:{2048*(b-1) + 1024*i}" for b, src in ((2, facc1), (3, facc1 + 8)) for i in range(2)]
    for u in range(8):
        P(mfma(facc, wa[u], ob + 4 * u, facc))
        if u >= 3 and W1:
            if u == 3: P("s_nop 7")
            P(W1.pop(0))
    stamp(P, 9)
    for b, src in ((1, facc + 8),):
        for i in range(2): P(f"ds_write_b128 v{vw[b-1]}, {vr(src+4*i,4)} offset:{2048*(b-1) + 1024*i}")
    P.wait_lgkm_all()
    P("s_barrier")
    for i in range(6): P(f"ds_read_b128 {vr(ob+4*i,4)}, v{vrd} offset:{1024*i}")
    for b in range(3):
        for r in range(8): P(f"v_add_f32 v{facc+r}, v{facc+r}, v{ob+8*b+r}")
    for r in range(4): P(f"v_cvt_pk_bf16_f32 v{facc1+r}, v{facc+2*r}, v{facc+2*r+1}")
    P(f"v_permlane32_swap_b32 v{facc1}, v{facc1+2}")
    P(f"v_permlane32_swap_b32 v{facc1+1}, v{facc1+3}")
    P(f"buffer_store_dwordx4 {vr(facc1,4)}, v{vo}, s[{S_OUT}:{S_OUT+3}], s{S_OO} offen{OPT.get('omod','')}")
    if STAMP["on"]:
        P.wait_vm_all(); stamp(P, 10); stamp_dump(P, lane)
        if OPT.get("dbgst") is not None:
            P(f"s_cmp_lg_u32 s2, {OPT['dbgst']}")
            P("s_cbranch_scc1 LF_end")
            P(f"s_cmp_lg_u32 s{S_W}, {OPT.get('dbgw', 0)}")
            P("s_cbranch_scc1 LF_end")
            P(f"v_subrev_u32 v{VSTAMP}, s100, v{VSTAMP}")
            P("s_mov_b64 exec, 0x7fff")
            P(f"buffer_store_dword v{VSTAMP}, v1, s[{S_DBG}:{S_DBG+3}], 0 offen offset:4")
    P("LF_end:")
    P("s_endpgm")
    name = NAME + "_kernel"
    body, I = finalize(P)
    txt = f".text\n.globl {name}\n.p2align 8\n.type {name},@function\n{name}:\n" + body + "".join(SL.txt) + "LF_last:\n    s_endpgm\n"
    vg_ = 256 if STAMP["on"] else max(V.hi, 8)
    txt += KD.format(name=name, vgpr=vg_, sgpr=102 if STAMP['on'] else 96, accum=(vg_ + 3) // 4 * 4)
    return txt, I, vg_


if __name__ == "__main__":
    out = sys.argv[1]
    STAMP["on"] = "stamp" in sys.argv
    for a in sys.argv[2:]:
        if "=" in a: k, v = a.split("="); OPT[k] = int(v)
        else: OPT[a] = True
    import asmlib; asmlib.MERGE_D = OPT.get("md", 9)
    t, I, vg_ = kernel_F()
    hdr = HEADER + f"; @launch grid=(256,1,1) block=(512,1,1) lds={LDS_BYTES}\n" + '.amdgcn_target "amdgcn-amd-amdhsa--gfx950"\n'
    open(out, "w").write(hdr + t)
    print("insts", len(I), "vgpr", vg_, "nops", sum(1 for x in I if x.kind == "nop"))
```

```python
import sys
from parts import *
OPT = {}
S_NONCE = 93
S_HP, S_KH = 30, 31
SH = [4, 5, 6]
S_FS, S_FP, S_OD, S_OL = 7, 8, 9, 10
S_FW, S_FB, S_FL, S_FL2 = 12, 13, 14, 15
S_OO, S_OL2 = 11, 18
S_PM = 16
FL_KV, FL_H = WS_FLAG, WS_FLAG + 8192
WKV_L = KV_RING
QSCR = KV_RING + 8192
FSLOT = [0, 32768, 65536, 98304]
WO_CH = [98304, 114688, 0, 32768]
SC1 = " sc1"
SPIN_MAX = 1 << 22
WSR = f"s[{S_WS}:{S_WS+3}]"


class Slow:
    def __init__(self): self.txt = []; self.n = 0
    def add(self, t): self.txt.append(t)


LOADS = {}
def emit_loads(P, l16, vsl):
    P(f"s_sub_u32 s{S_T3}, s{S_W}, 3")
    P(f"s_cmp_lt_u32 s{S_T3}, 4")
    P("s_cbranch_scc1 LF_ldq")
    P(f"s_lshr_b32 s{S_T4}, s{S_J}, 1")
    P(f"s_add_u32 s{S_T4}, s{S_T4}, s{S_W}")
    P(f"s_add_u32 s{S_T4}, s{S_T4}, 1")
    P(f"s_and_b32 s{S_T4}, s{S_T4}, 3")
    P(f"s_lshl_b32 s{S_T0}, s{S_G}, 16")
    P(f"s_lshl_b32 s{S_T4}, s{S_T4}, 4")
    ROT = OPT.get("rot", 1)
    P(f"s_and_b32 s{S_T6}, s{S_J}, 3")
    P(f"s_lshl_b32 s{S_T6}, s{S_T6}, 2")
    if not ROT: P(f"s_mov_b32 s{S_T6}, 0")
    P(f"s_add_u32 s{S_T5}, s{S_T6}, 16")
    P("s_waitcnt lgkmcnt(0)")
    mk_srd(P, S_X, 4, SZ["x"])
    P("LF_ldx1:")
    P(f"s_and_b32 s{S_T1}, s{S_T6}, 15")
    P(f"s_add_u32 s{S_T1}, s{S_T1}, s{S_T4}")
    P(f"s_mul_i32 m0, s{S_T1}, {X_STRIDE}")
    P(f"s_lshl_b32 s{S_T2}, s{S_T1}, 10")
    P(f"s_add_u32 s{S_T2}, s{S_T2}, s{S_T0}")
    P(f"s_add_u32 s{S_T6}, s{S_T6}, 1")
    P(f"buffer_load_dwordx4 v{l16}, s[{S_X}:{S_X+3}], s{S_T2} offen lds", tag="q")
    P(f"s_cmp_lg_u32 s{S_T6}, s{S_T5}")
    P("s_cbranch_scc1 LF_ldx1")
    P("s_branch LF_ldj")
    P("LF_ldq:")
    P(f"s_lshl_b32 s{S_T3}, s{S_T3}, 4")
    P(f"s_and_b32 s{S_T6}, s{S_G}, 7")
    P(f"s_lshl_b32 s{S_T6}, s{S_T6}, 1")
    if not ROT: P(f"s_mov_b32 s{S_T6}, 0")
    P(f"s_add_u32 s{S_T5}, s{S_T6}, 16")
    P(f"s_lshl_b32 s{S_T7}, s{S_J}, 7")
    P("s_waitcnt lgkmcnt(0)")
    mk_srd(P, S_WQ, 6, SZ["wq"])
    P("LF_ldq1:")
    P(f"s_and_b32 s{S_T4}, s{S_T6}, 15")
    P(f"s_add_u32 s{S_T4}, s{S_T4}, s{S_T3}")
    P(f"s_mul_i32 s{S_T0}, s{S_T4}, 171")
    P(f"s_lshr_b32 s{S_T0}, s{S_T0}, 12")
    P(f"s_lshl_b32 s{S_T1}, s{S_T4}, 2")
    P(f"s_add_u32 s{S_T0}, s{S_T0}, s{S_T1}")
    P(f"s_lshl_b32 s{S_T0}, s{S_T0}, 8")
    P(f"s_add_u32 m0, s{S_T0}, 0x{SLOT[0]:x}")
    P(f"s_lshl_b32 s{S_T2}, s{S_T4}, 13")
    P(f"s_add_u32 s{S_T2}, s{S_T2}, s{S_T7}")
    P(f"s_add_u32 s{S_T6}, s{S_T6}, 1")
    P(f"buffer_load_dwordx4 v{vsl}, s[{S_WQ}:{S_WQ+3}], s{S_T2} offen lds")
    P.I[-1].kind = "salu"
    P(f"s_cmp_lg_u32 s{S_T6}, s{S_T5}")
    P("s_cbranch_scc1 LF_ldq1")
    P("LF_ldj:")


def prologue_f(P, V, endlabel):
    if STAMP["on"]: P("s_memrealtime s[100:101]")
    P("s_cmp_ge_u32 s2, 256")
    P(f"s_cbranch_scc1 {endlabel}")
    P("s_load_dwordx16 s[4:19], s[0:1], 0")
    P("s_load_dwordx8 s[20:27], s[0:1], 64")
    P("s_load_dwordx2 s[28:29], s[0:1], 96")
    lane = V.alloc("lane"); l16 = V.alloc("l16")
    P(f"v_lshrrev_b32 v1, 6, v0")
    P(f"v_and_b32 v{lane}, 63, v0")
    P(f"v_readfirstlane_b32 s{S_W}, v1")
    P(f"v_lshlrev_b32 v{l16}, 4, v{lane}")
    P(f"s_lshr_b32 s{S_T0}, s2, 3")
    if OPT.get("jrot"): P(f"s_add_u32 s{S_J}, s{S_T0}, {OPT['jrot']}"); P(f"s_and_b32 s{S_J}, s{S_J}, 3")
    else: P(f"s_and_b32 s{S_J}, s{S_T0}, 3")
    P(f"s_and_b32 s{S_T1}, s2, 1")
    P(f"s_lshl_b32 s{S_T1}, s{S_T1}, 2")
    P(f"s_add_u32 s{S_J}, s{S_J}, s{S_T1}")
    P(f"s_and_b32 s{S_G}, s2, 6")
    P(f"s_lshl_b32 s{S_G}, s{S_G}, 2")
    P(f"s_lshr_b32 s{S_T0}, s{S_T0}, 2")
    P(f"s_add_u32 s{S_G}, s{S_G}, s{S_T0}")
    t0 = V.alloc("t0"); t1 = V.alloc("t1")
    vsl = slice_pattern(P, V, lane, t0)
    LOADS["f"] = lambda: emit_loads(P, l16, vsl)
    P(f"s_and_b32 s{S_TT}, s{S_W}, 1")
    P(f"s_lshl_b32 s{S_TILE}, s{S_G}, 1")
    P(f"s_add_u32 s{S_TILE}, s{S_TILE}, s{S_TT}")
    P(f"s_lshr_b32 s{S_HP}, s{S_W}, 1")
    P(f"s_and_b32 s{S_HP}, s{S_HP}, 1")
    P(f"s_lshr_b32 s{S_KH}, s{S_W}, 2")
    assert all((p * 171) >> 12 == p // 24 for p in range(64)) and SLOT_SZ == 3 * 8192 + 256
    return lane, l16, t0, t1, vsl


def rest_srds(P):
    P(f"s_cmp_eq_u32 s{S_TT}, 0")
    P(f"s_cselect_b32 s{S_WM}, s16, s18")
    P(f"s_cselect_b32 s{S_WM+1}, s17, s19")
    P(f"s_and_b32 s{S_WM+1}, s{S_WM+1}, 0xffff")
    P(f"s_mov_b32 s{S_WM+2}, 0x{SZ['wg']:x}")
    P(f"s_mov_b32 s{S_WM+3}, 0x20000")
    mk_srd(P, S_OUT, 24, SZ["out"])
    mk_srd(P, S_WO, 12, SZ["wo"])
    mk_srd(P, S_WD, 20, SZ["wd"])


def nonce_check(P, SL, vn, vz):
    k = SL.n; SL.n += 1
    P(f"v_readfirstlane_b32 s{S_NONCE}, v{vn}")
    P(f"s_cmp_eq_u32 s{S_NONCE}, 0")
    P(f"s_cbranch_scc1 LS{k}")
    P(f"LR{k}:")
    SL.add(f"""LS{k}:
    s_mov_b32 s{S_T7}, 0
LS{k}_l:
    s_sleep 2
    buffer_load_dword v{vn}, v{vz}, s[{S_DBG}:{S_DBG+3}], 0 offen sc1
    s_waitcnt vmcnt(0)
    v_readfirstlane_b32 s{S_NONCE}, v{vn}
    s_add_u32 s{S_T7}, s{S_T7}, 1
    s_cmp_ge_u32 s{S_T7}, 0x{SPIN_MAX:x}
    s_cbranch_scc1 LR{k}
    s_cmp_eq_u32 s{S_NONCE}, 0
    s_cbranch_scc1 LS{k}_l
    s_branch LR{k}
""")


def flag_load(vf, n, vaddr, soff):
    op = {1: "buffer_load_dword", 4: "buffer_load_dwordx4"}[n]
    return f"{op} {vr(vf,n)}, v{vaddr}, {WSR}, {soff} offen " + ["sc1", "sc1 nt", "sc0 sc1", "sc0 sc1 nt", "nt"][OPT.get("pmod", 0)]


def flag_cmp(vf, n, t):
    L = [f"v_xor_b32 v{t}, s{S_NONCE}, v{vf}"]
    for i in range(1, n):
        L += [f"v_xor_b32 v{vf+i}, s{S_NONCE}, v{vf+i}", f"v_or_b32 v{t}, v{t}, v{vf+i}"]
    L += [f"v_cmp_ne_u32 vcc, 0, v{t}"]
    return L


def spin_check(P, SL, loads, cmps, sleep=1):
    k = SL.n; SL.n += 1
    for x in cmps: P(x)
    P(f"s_cbranch_vccnz LS{k}")
    P(f"LR{k}:")
    nl = "\n    "
    SL.add(f"""LS{k}:
    s_mov_b32 s{S_T7}, 0
LS{k}_l:
    {f"s_sleep {sleep}" if sleep else "s_nop 0"}
    {nl.join(loads)}
    s_waitcnt vmcnt(0)
    {nl.join(cmps)}
    s_add_u32 s{S_T7}, s{S_T7}, 1
    s_cmp_ge_u32 s{S_T7}, 0x{SPIN_MAX:x}
    s_cbranch_scc1 LR{k}
    s_cbranch_vccnz LS{k}_l
    s_nop 1
    s_branch LR{k}
""")


def flag_store(P, vz, t, soff):
    P(f"v_mov_b32 v{t}, s{S_NONCE}")
    P("s_mov_b64 exec, 1")
    P(f"buffer_store_dword v{t}, v{vz}, {WSR}, s{soff} offen " + ["sc1", "sc0 sc1", "sc0 sc1 nt", "sc1 nt"][OPT.get("smod", 0)], tag="flag")
    P("s_mov_b64 exec, -1")


PROG = MISC + 1024
class SplitBar:
    def __init__(self, P, V, SL, lane, t0):
        self.P, self.SL, self.n = P, SL, 0
        self.va = V.alloc("sba"); self.vr = V.alloc("sbr"); self.one = V.alloc("sb1"); self.vg = V.alloc("sbg")
        P(f"s_lshl_b32 s{S_T0}, s{S_W}, 8")
        P(f"s_add_u32 s{S_T0}, s{S_T0}, 0x{PROG:x}")
        P(f"v_lshlrev_b32 v{t0}, 2, v{lane}")
        P(f"v_add_u32 v{self.va}, s{S_T0}, v{t0}")
        P(f"v_and_b32 v{t0}, 7, v{lane}")
        P(f"v_mul_u32_u24 v{t0}, 260, v{t0}")
        P(f"v_add_u32 v{self.vr}, 0x{PROG:x}, v{t0}")
        P(f"v_mov_b32 v{self.one}, 0")
        P(f"ds_write_b32 v{self.va}, v{self.one}")
        P(f"v_mov_b32 v{self.one}, 1")
    def arrive(self):
        self.n += 1
        self.P(f"ds_add_u32 v{self.va}, v{self.one}")
    def peek(self): self.P(f"ds_read_b32 v{self.vg}, v{self.vr}")
    def check(self):
        k = self.SL.n; self.SL.n += 1
        self.P(f"v_cmp_gt_u32 vcc, {self.n}, v{self.vg}")
        self.P(f"s_cbranch_vccz LR{k}")
        self.P(f"LS{k}:")
        for t in ([f"s_sleep {OPT['ssl']}"] if OPT.get("ssl") else []) + [f"ds_read_b32 v{self.vg}, v{self.vr}", "s_waitcnt lgkmcnt(0)", f"v_cmp_gt_u32 vcc, {self.n}, v{self.vg}", f"s_cbranch_vccnz LS{k}"]:
            self.P(t); self.P.I[-1].kind = "salu"; self.P.I[-1].vw = set(); self.P.I[-1].vr = set()
        self.P(f"LR{k}:")


def attn_setup(P, V, lane, l16, t0, t1):
    A = {}
    P(f"s_lshl_b32 s{S_T1}, s{S_KH}, 12")
    vk = V.alloc("vk"); vv = [V.alloc("vv0"), V.alloc("vv1")]
    P(f"s_add_u32 s{S_T1}, s{S_T1}, 0x{KV_RING:x}")
    P(f"v_add_u32 v{vk}, s{S_T1}, v{l16}")
    P(f"v_lshrrev_b32 v{t0}, 5, v{lane}")
    P(f"v_lshlrev_b32 v{t0}, 8, v{t0}")
    P(f"v_and_b32 v{t1}, 15, v{lane}")
    P(f"v_lshl_add_u32 v{t0}, v{t1}, 4, v{t0}")
    P(f"v_and_b32 v{t1}, 16, v{lane}")
    P(f"v_cmp_eq_u32 vcc, 0, v{t1}")
    P(f"s_add_u32 s{S_T1}, s{S_T1}, 2048")
    for s in range(2):
        P(f"v_mov_b32 v{t1}, s{S_T1}")
        P(f"v_add_u32 v{t1}, {8192*s}, v{t1}")
        P(f"v_mov_b32 v{vv[s]}, 0x{ONES:x}")
        P(f"v_cndmask_b32 v{vv[s]}, v{t1}, v{vv[s]}, vcc")
        P(f"v_add_u32 v{vv[s]}, v{vv[s]}, v{t0}")
    P(f"s_lshl_b32 s{S_KVOFF}, s{S_KH}, 15")
    P(f"s_lshl_b32 s{S_T1}, s{S_HP}, 16")
    P(f"s_add_u32 s{S_KVOFF}, s{S_KVOFF}, s{S_T1}")
    P(f"s_lshl_b32 s{S_T1}, s{S_TT}, 10")
    P(f"s_add_u32 s{S_KVOFF}, s{S_KVOFF}, s{S_T1}")
    P(f"s_lshl_b32 s{S_KVLDS}, s{S_W}, 10")
    P(f"s_add_u32 s{S_KVLDS}, s{S_KVLDS}, 0x{KV_RING:x}")
    A.update(vk=vk, vv=vv)
    A["S"] = [V.alloc("Sa", 16), V.alloc("Sb", 16)]
    A["O"] = [V.alloc("Oa", 16), V.alloc("Ob", 16)]
    A["fk"] = V.alloc("fk", 4); A["fv"] = [V.alloc("fv1", 4), V.alloc("fv2", 4)]
    A["q"] = V.alloc("qf", 8)
    return A


def kv_dma(P, l16, c):
    dma(P, l16, S_WS, f"s{S_T2}", (S_KVLDS, 8192 * (c & 1)), tag=f"kv{c}", mods=SC1, pre=[f"s_add_u32 s{S_T2}, s{S_KVOFF}, {2048*c}"])


def attention(P, A, l16, its, hook, prio, kvf=None):
    S, O, fk, fv = A["S"], A["O"], A["fk"], A["fv"]
    SB = OPT.get("sb", 0)
    q = [A["q"], A["q"] + 4]
    def rdK(it): P(f"ds_read_b128 {vr(fk,4)}, v{A['vk']} offset:{((it>>1)&1)*8192 + (it&1)*1024}")
    def rdV(it, half): P(f"ds_read_b128 {vr(fv[half],4)}, v{A['vv'][(it>>1)&1]} offset:{(it&1)*1024 + half*512}")
    E = lambda x, i: P(f"v_exp_f32 v{S[x]+i}, v{S[x]+i}")
    def C(x, i):
        b = S[x] + (8 if i >= 4 else 0); k = i & 3
        P(f"v_cvt_pk_bf16_f32 v{b+k}, v{b+2*k}, v{b+2*k+1}")
    for it in its:
        if it == 0:
            rdK(0); rdV(0, 0)
            hook(0, 0, "start")
            P(mfma(S[0], fk, q[0]))
        for x in range(2):
            H = lambda pos: hook(it, x, pos)
            E(x, 0); E(x, 1)
            if x == 0:
                if it > 0: P(mfma(O[1], fv[1], S[1] + 8, O[1]))
                rdV(it, 1)
            else:
                P(mfma(O[0], fv[1], S[0] + 8, O[0]))
                if SB and A["syn"]:
                    A["sb"].check(); after_sync()
            H("pv2")
            E(x, 2); E(x, 3); H("g1")
            E(x, 4); E(x, 5); H("g2")
            E(x, 6); E(x, 7)
            if x == 0: P(mfma(S[1], fk, q[1]))
            elif it < 31: P(mfma(S[0], fk, q[0]))
            H("qk")
            sig = (x == 0 and (it & 1) and it < 31)
            syn = sig or (x == 0 and hook(it, x, "sync?"))
            ORD = OPT.get("ord", 2) if syn else 0
            for i in range(4): C(x, i)
            if ORD == 0: H("g3")
            E(x, 8); E(x, 9)
            if ORD == 2: P(mfma(O[x], fv[0], S[x], None if it == 0 else O[x]))
            if ORD: H("g3")
            if syn:
                H("pre0")
                if sig: P.wait_tag(f"kv{(it>>1)+1}")
                H("pre"); P.wait_lgkm_all()
                if SB: A["sb"].arrive()
                else: P("s_barrier")
            if ORD == 1: E(x, 10); E(x, 11)
            if ORD != 2: P(mfma(O[x], fv[0], S[x], None if it == 0 else O[x]))
            p = prio(it, x)
            if p is not None: P(f"s_setprio {p}")
            def after_sync():
                if it < 31: rdK(it + 1)
                if (it & 1) and (it >> 1) + 2 < 16: (kvf or (lambda c: kv_dma(P, l16, c)))((it >> 1) + 2)
                if A["syn"]: hook(it, 0, "chk")
            if x == 0:
                A["syn"] = syn
                if not (SB and syn): after_sync()
            else:
                if it < 31: rdV(it + 1, 0)
            H("pv1")
            if ORD != 1: E(x, 10); E(x, 11)
            else: E(x, 12)
            H("g4")
            if ORD != 1: E(x, 12)
            E(x, 13); H("g5")
            E(x, 14); E(x, 15); H("g6")
            if x == 0 and SB and A["syn"]: A["sb"].peek()
            for i in range(4, 8): C(x, i)
        if it == 31: P(mfma(O[1], fv[1], S[1] + 8, O[1]))


def fin_dma_w1(P, vsl, st, slot, tag, i):
    srd, u0 = (S_WD, 8 * st) if st < 11 else (S_WO, 8 * (st - 11))
    dma(P, vsl, srd, f"s{S_T2}", (S_FL2, slot + 1024 * i), tag=tag, pre=[f"s_add_u32 s{S_T2}, s{S_FW}, 0x{(16*u0 + 8*i)*1024:x}"])


def fin_dma_b1(P, l16, st, slot, tag, t):
    P(f"s_add_u32 s{S_T2}, s{S_FB}, 0x{(t*118 + 8*st)*1024:x}")
    if st == 10:
        P(f"s_cmp_lt_u32 s{S_W}, 6")
        P(f"s_cselect_b32 s{S_T2}, s{S_T2}, 0x{OOB:x}")
    dma(P, l16, S_WS, f"s{S_T2}", (S_FL, slot + 16384 + 8192 * t), tag=tag, mods=SC1)


def kernel_F():
    P = Prog(); V = Regs(2, 255, "v"); SL = Slow()
    NP = OPT.get("np", 2)
    JIT = 16 - NP
    GPP = OPT.get("gpp", 2)
    UNI = OPT.get("uni", JIT + 2)
    HF = OPT.get("hf", UNI | 1)
    lane, l16, t0, t1, vsl = prologue_f(P, V, "LF_end")
    vz = V.alloc("vz")
    P(f"s_cmp_lg_u32 s{S_W}, 7")
    P("s_cbranch_scc1 LF_not7")
    P(f"s_lshr_b32 s{S_T4}, s{S_J}, 1")
    P(f"s_lshl_b32 s{S_T0}, s{S_G}, 16")
    P(f"s_lshl_b32 s{S_T2}, s{S_T4}, 14")
    P(f"s_add_u32 s{S_T2}, s{S_T2}, s{S_T0}")
    P(f"s_mul_i32 m0, s{S_T4}, {16*X_STRIDE}")
    P(f"s_and_b32 s{S_T3}, s{S_J}, 1")
    P(f"s_mov_b32 s{S_T5}, 0")
    P("s_waitcnt lgkmcnt(0)")
    mk_srd(P, S_X, 4, SZ["x"])
    P("LF_ldx7:")
    P(f"buffer_load_dwordx4 v{l16}, s[{S_X}:{S_X+3}], s{S_T2} offen lds", tag="c")
    P(f"s_add_u32 m0, m0, {X_STRIDE}")
    P(f"s_add_u32 s{S_T2}, s{S_T2}, 1024")
    P(f"s_add_u32 s{S_T5}, s{S_T5}, 1")
    P(f"s_cmp_lg_u32 s{S_T5}, 16")
    P("s_cbranch_scc1 LF_ldx7")
    P(f"s_cmp_eq_u32 s{S_T3}, 0")
    P(f"s_cselect_b32 s{S_WKV}, s8, s10")
    P(f"s_cselect_b32 s{S_WKV+1}, s9, s11")
    P(f"s_and_b32 s{S_WKV+1}, s{S_WKV+1}, 0xffff")
    P(f"s_mov_b32 s{S_WKV+2}, 0x{SZ['wk']:x}")
    P(f"s_mov_b32 s{S_WKV+3}, 0x20000")
    P(f"s_mov_b32 m0, 0x{WKV_L:x}")
    P(f"s_mov_b32 s{S_T5}, 0")
    P("LF_ldw7:")
    for i in range(4):
        P(f"buffer_load_dwordx4 v{l16}, s[{S_WKV}:{S_WKV+3}], s{S_T5} offen offset:{1024*i} lds")
        P.I[-1].kind = "salu"
    P(f"s_add_u32 m0, m0, 4096")
    P(f"s_add_u32 s{S_T5}, s{S_T5}, 4096")
    P(f"s_cmp_lg_u32 s{S_T5}, 16384")
    P("s_cbranch_scc1 LF_ldw7")
    P("s_barrier")
    P("LF_not7:")
    P("s_waitcnt lgkmcnt(0)")
    if OPT.get("cpf", 1):
        c = V.alloc("cpf")
        P(f"s_getpc_b64 s[{S_EX}:{S_EX+1}]")
        P("LF_pc0:")
        P(f"s_lshr_b32 s{S_T3}, s2, 3")
        P(f"s_lshl_b32 s{S_T3}, s{S_T3}, 3")
        P(f"s_add_u32 s{S_T3}, s{S_T3}, s{S_W}")
        P(f"s_lshl_b32 s{S_T3}, s{S_T3}, 8")
        P(f"v_lshlrev_b32 v{c}, 7, v{lane}")
        P(f"v_add_u32 v{c}, s{S_T3}, v{c}")
        P(f"v_min_u32 v{c}, LF_last-LF_pc0, v{c}")
        P("s_mov_b64 exec, 3")
        P(f"global_load_dword v{c}, v{c}, s[{S_EX}:{S_EX+1}]", tag="cpf")
        P("s_mov_b64 exec, -1")
    P(f"v_mov_b32 v{vz}, 0")
    mk_srd(P, S_WS, 28, SZ["ws"])
    mk_srd(P, S_DBG, 26, SZ["dbg"])
    stamp(P, 0)
    vn = V.alloc("vn")
    P(f"s_or_b32 s{S_T0}, s2, s{S_W}")
    P(f"s_cmp_lg_u32 s{S_T0}, 0")
    P("s_cbranch_scc1 LF_non")
    P.cond_begin()
    P(f"s_memrealtime s[{S_EX}:{S_EX+1}]")
    P("s_waitcnt lgkmcnt(0)")
    P(f"s_mul_i32 s{S_EX+1}, s{S_EX+1}, 0x9e3779b1")
    P(f"s_xor_b32 s{S_EX}, s{S_EX}, s{S_EX+1}")
    P(f"s_or_b32 s{S_EX}, s{S_EX}, 1")
    P(f"v_mov_b32 v{t0}, s{S_EX}")
    P("s_mov_b64 exec, 1")
    P(f"buffer_store_dword v{t0}, v{vz}, s[{S_DBG}:{S_DBG+3}], 0 offen sc1")
    P("s_mov_b64 exec, -1")
    P.cond_end()
    P("LF_non:")
    KT = 192; vx16 = 240; vw16 = 241; vst = 242; S_K5, S_K6 = S_T5, S_T6
    P(f"s_cmp_lg_u32 s{S_W}, 7")
    P("s_cbranch_scc1 LF_not7b")
    P.cond_begin()
    P(f"s_lshr_b32 s{S_T0}, s{S_J}, 1")
    P(f"s_lshl_b32 s{S_T1}, s{S_T0}, 4")
    P(f"v_and_b32 v{t0}, 15, v{lane}")
    P(f"v_add_u32 v{t1}, s{S_T1}, v{t0}")
    P(f"v_mul_u32_u24 v{vx16}, {X_STRIDE}, v{t1}")
    P(f"v_lshrrev_b32 v{t1}, 4, v{lane}")
    P(f"v_lshl_add_u32 v{vx16}, v{t1}, 4, v{vx16}")
    P(f"v_lshlrev_b32 v{vw16}, 8, v{t1}")
    P(f"v_lshl_add_u32 v{vw16}, v{t0}, 3, v{vw16}")
    P(f"v_add_u32 v{vw16}, 0x{WKV_L:x}, v{vw16}")
    P(f"s_and_b32 s{S_K6}, s{S_J}, 1")
    P(f"s_cmp_eq_u32 s{S_K6}, 0")
    P(f"s_cselect_b32 s{S_T3}, 9, 8")
    P(f"s_cselect_b32 s{S_T4}, 8, 9")
    P(f"s_cselect_b32 s{S_K5}, 0x{WS_KF:x}, 0x{WS_VF:x}")
    P(f"v_lshlrev_b32 v{vst}, 4, v{t0}")
    P(f"v_lshrrev_b32 v{t0}, 1, v{t1}")
    P(f"v_lshl_add_u32 v{vst}, v{t0}, 3, v{vst}")
    P(f"v_and_b32 v{t0}, 1, v{t1}")
    P(f"v_lshlrev_b32 v{t0}, s{S_T3}, v{t0}")
    P(f"v_add_u32 v{vst}, v{vst}, v{t0}")
    P(f"s_and_b32 s{S_T1}, s{S_T0}, 1")
    P(f"s_lshl_b32 s{S_T1}, s{S_T1}, s{S_T4}")
    P(f"s_add_u32 s{S_K5}, s{S_K5}, s{S_T1}")
    P(f"s_lshr_b32 s{S_T0}, s{S_T0}, 1")
    P(f"s_lshl_b32 s{S_T1}, s{S_G}, 1")
    P(f"s_add_u32 s{S_T0}, s{S_T0}, s{S_T1}")
    P(f"s_lshl_b32 s{S_T0}, s{S_T0}, 10")
    P(f"s_add_u32 s{S_K5}, s{S_K5}, s{S_T0}")
    P("s_waitcnt vmcnt(0)")
    P(f"buffer_load_dword v{vn}, v{vz}, s[{S_DBG}:{S_DBG+3}], 0 offen sc1")
    def kv16(which):
        d = KT
        xb = [(KT+16) + 4 * i for i in range(4)]; wb = [(KT+32) + 4 * i for i in range(4)]
        def ld(ks):
            P(f"ds_read_b128 {vr(xb[ks%4],4)}, v{vx16} offset:{ks*64}")
            P(f"ds_read_b64_tr_b16 {vr(wb[ks%4],2)}, v{vw16} offset:{ks*1024}")
            P(f"ds_read_b64_tr_b16 {vr(wb[ks%4]+2,2)}, v{vw16} offset:{ks*1024+128}")
        for ks in range(3): ld(ks)
        for ks in range(16):
            a, b = (wb[ks%4], xb[ks%4]) if which == 0 else (xb[ks%4], wb[ks%4])
            P(f"v_mfma_f32_16x16x32_bf16 {vr(d,4)}, {vr(a,4)}, {vr(b,4)}, {vr(d,4) if ks else 0}")
            if ks + 3 < 16: ld(ks + 3)
        if which == 0:
            P(f"s_mov_b32 s{S_T0}, {hexf(QK_SCALE)}")
            for r in range(4): P(f"v_mul_f32 v{d+r}, s{S_T0}, v{d+r}")
    P(f"s_cmp_eq_u32 s{S_K6}, 1")
    P("s_cbranch_scc1 LF_vch")
    P.cond_begin(); kv16(0); P.cond_end()
    P("s_branch LF_kvj")
    P("LF_vch:")
    P.cond_begin(); kv16(1); P.cond_end()
    P("LF_kvj:")
    for r in range(2): P(f"v_cvt_pk_bf16_f32 v{KT+4+r}, v{KT+2*r}, v{KT+2*r+1}")
    P(f"buffer_store_dwordx2 {vr(KT+4,2)}, v{vst}, {WSR}, s{S_K5} offen sc1")
    P(f"s_lshl_b32 s{S_T0}, s{S_G}, 3")
    P(f"s_add_u32 s{S_T0}, s{S_T0}, s{S_J}")
    P(f"s_lshl_b32 s{S_T0}, s{S_T0}, 2")
    P(f"s_add_u32 s{S_T0}, s{S_T0}, 0x{FL_KV:x}")
    P("s_waitcnt vmcnt(0)")
    nonce_check(P, SL, vn, vz)
    flag_store(P, vz, t0, S_T0)
    P.cond_end()
    P("s_branch LF_b0j")
    P("LF_not7b:")
    P("s_barrier")
    LOADS["f"]()
    P("LF_b0j:")
    stamp(P, 1)
    rest_srds(P)
    mk_srd(P, S_GW, 22, SZ["gw"])
    P(f"s_mov_b32 s{S_C1}, {hexf(2.0**120)}")
    A = attn_setup(P, V, lane, l16, t0, t1)
    qf = A["q"]; O = A["O"]; S = A["S"]
    A["sb"] = SplitBar(P, V, SL, lane, t0) if OPT.get("sb", 0) else type("X", (), dict(n=0))()
    vfl = V.alloc("vfl", 4)
    P(f"s_lshl_b32 s{S_T0}, s{S_HP}, 1")
    P(f"s_add_u32 s{S_T0}, s{S_T0}, s{S_KH}")
    P(f"s_lshl_b32 s{S_T1}, s{S_J}, 2")
    P(f"s_add_u32 s{S_T0}, s{S_T0}, s{S_T1}")
    P(f"s_mul_i32 s{S_T1}, s{S_TILE}, 118")
    P(f"s_add_u32 s{S_T0}, s{S_T0}, s{S_T1}")
    P(f"s_lshl_b32 s{S_T0}, s{S_T0}, 10")
    P(f"s_add_u32 s{S_OD}, s{S_T0}, 0x{WS_OH + 86*1024:x}")
    def poison():
        for r in range(4): P(f"v_mov_b32 v{O[0]+r}, -1")
        P(f"buffer_store_dwordx4 {vr(O[0],4)}, v{l16}, {WSR}, s{S_OD} offen sc1", tag="poison")
    P(f"s_lshr_b32 s{S_T0}, s{S_W}, 1")
    P(f"s_lshl_b32 s{S_T0}, s{S_T0}, 3")
    P(f"s_add_u32 s{S_T0}, s{S_T0}, s{S_T1}")
    P(f"s_lshl_b32 s{S_T0}, s{S_T0}, 10")
    P(f"s_add_u32 s{S_OL}, s{S_T0}, 0x{WS_OH + 86*1024:x}")
    P(f"s_lshl_b32 s{S_FP}, s{S_G}, 10")
    P(f"s_lshl_b32 s{S_FS}, s{S_J}, {5 if OPT.get('hsp', 1) else 3}")
    P(f"s_add_u32 s{S_FS}, s{S_FS}, s{S_W}")
    P(f"s_lshl_b32 s{S_FS}, s{S_FS}, 2")
    P(f"s_add_u32 s{S_FS}, s{S_FS}, s{S_FP}")
    P(f"s_add_u32 s{S_FS}, s{S_FS}, 0x{FL_H:x}")
    P(f"s_add_u32 s{S_FP}, s{S_FP}, 0x{FL_H:x}")
    P(f"s_lshl_b32 s{S_FW}, s{S_W}, 14")
    P(f"s_lshl_b32 s{S_T1}, s{S_J}, 7")
    P(f"s_add_u32 s{S_FW}, s{S_FW}, s{S_T1}")
    P(f"s_lshl_b32 s{S_FL2}, s{S_W}, 11")
    P(f"s_mul_i32 s{S_U0}, s{S_J}, 11")
    P(f"s_min_u32 s{S_U0}, s{S_U0}, 76")
    P(f"s_cmp_ge_u32 s{S_J}, 6")
    P(f"s_cselect_b32 s{S_NU}, 10, 11")
    vxa = xfrag_addr(P, V, "vxa", lane, t0, S_TT)
    vq = V.alloc("vq")
    P(f"s_and_b32 s{S_T0}, s{S_W}, 3")
    P(f"s_lshl_b32 s{S_T1}, s{S_T0}, 11")
    P(f"s_add_u32 s{S_T1}, s{S_T1}, 0x{QSCR:x}")
    P(f"v_add_u32 v{vq}, s{S_T1}, v{l16}")
    acc = [[V.alloc(f"acc{i}{t}", 16) for t in range(2)] for i in range(3)]
    fx = [[V.alloc(f"fx{b}{t}", 4) for t in range(2)] for b in range(2)]
    fw = [[V.alloc(f"fw{b}{i}", 4) for i in range(3)] for b in range(2)]
    P(f"s_cmp_lg_u32 s{S_KH}, 0")
    P("s_cbranch_scc1 LF_light")

    def sigstamp(it, k):
        if OPT.get("sig"):
            P(f"s_memtime s[98:99]"); P("s_waitcnt lgkmcnt(0)"); P(f"v_writelane_b32 v{vsig}, s98, {2*it+k}")
    vsig = V.alloc("vsig") if OPT.get("sig") else None

    P.cond_begin()
    vx0 = V.alloc("vx0")
    P(f"s_mul_i32 s{S_T0}, s{S_TT}, {32*X_STRIDE}")
    P(f"v_subrev_u32 v{vx0}, s{S_T0}, v{vxa}")
    vtn = tr_slice_addr(P, V, "vtn", lane, t0, t1, SLOT[0], S_HP, 8)
    P(f"s_lshl_b32 s{S_T4}, s{S_W}, 1")
    wtr = w_tr_addrs(P, V, lane, t0, t1, s_w=S_T4)
    P(f"s_mul_i32 s{S_T0}, s{S_W}, 3")
    P(f"s_mul_i32 s{S_T1}, s{S_G}, 236")
    P(f"s_add_u32 s{S_T1}, s{S_T1}, s{S_U0}")
    for i in range(3):
        P(f"s_add_u32 s{S_T2}, s{S_T0}, {i}")
        P(f"s_add_u32 s{SH[i]}, s{S_T1}, s{S_T2}")
        P(f"s_lshl_b32 s{SH[i]}, s{SH[i]}, 10")
        P(f"s_add_u32 s{SH[i]}, s{SH[i]}, 0x{WS_OH:x}")
        P(f"s_cmp_lt_u32 s{S_T2}, s{S_NU}")
        P(f"s_cselect_b32 s{SH[i]}, s{SH[i]}, 0x{OOB:x}")
    vpf = V.alloc("vpf"); vpd = V.alloc("vpd"); vpw = V.alloc("vpw")
    P(f"v_bfe_u32 v{t0}, v{lane}, 4, 1")
    P(f"v_lshrrev_b32 v{t1}, 5, v{lane}")
    P(f"v_lshl_add_u32 v{t0}, v{t1}, 7, v{t0}")
    P(f"v_mul_u32_u24 v{vpf}, 2752, v{t0}")
    P(f"v_and_b32 v{t0}, 15, v{lane}")
    P(f"v_lshl_add_u32 v{vpf}, v{t0}, 7, v{vpf}")
    P(f"v_cmp_gt_u32 vcc, 12, v{t0}")
    P(f"v_mov_b32 v{t1}, 0x{OOB:x}")
    P(f"v_cndmask_b32 v{vpf}, v{t1}, v{vpf}, vcc")
    P(f"s_lshr_b32 s{S_T0}, s2, 3")
    P(f"s_lshl_b32 s{S_T0}, s{S_T0}, 1")
    P(f"s_add_u32 s{S_T0}, s{S_T0}, s{S_HP}")
    P(f"s_mul_i32 s{S_T0}, s{S_T0}, {2*2752}")
    P(f"s_and_b32 s{S_T1}, s2, 1")
    P(f"s_mul_i32 s{S_T1}, s{S_T1}, {44*32}")
    P(f"s_add_u32 s{S_T6}, s{S_T0}, s{S_T1}")
    def pf(blk, half):
        P(f"s_add_u32 s{S_T4}, s{S_T6}, {128*2752*blk}")
        if half: P("s_mov_b64 exec, 0xffffffff")
        P(f"buffer_load_dword v{vpd}, v{vpf}, s[{S_WM}:{S_WM+3}], s{S_T4} offen", tag="pf")
        P.I[-1].vw = set()
        if half: P("s_mov_b64 exec, -1")
    PF = OPT.get("pf", 5)
    if PF & 4: pf(0, True)
    S_PFS = S_WKV
    P(f"s_lshr_b32 s{S_T0}, s2, 3")
    P(f"s_lshl_b32 s{S_T0}, s{S_T0}, 2")
    P(f"s_add_u32 s{S_T0}, s{S_T0}, s{S_W}")
    P(f"s_cmp_lt_u32 s{S_T0}, 86")
    P(f"s_cselect_b32 s{S_PFS}, s{S_WD}, s{S_WO}")
    P(f"s_cselect_b32 s{S_PFS+1}, s{S_WD+1}, s{S_WO+1}")
    P(f"s_cselect_b32 s{S_PFS+2}, s{S_WD+2}, s{S_WO+2}")
    P(f"s_cselect_b32 s{S_T1}, 0, 86")
    P(f"s_mov_b32 s{S_PFS+3}, 0x20000")
    P(f"s_sub_u32 s{S_T0}, s{S_T0}, s{S_T1}")
    P(f"s_lshl_b32 s{S_T0}, s{S_T0}, 14")
    P(f"s_and_b32 s{S_T1}, s2, 1")
    P(f"s_lshl_b32 s{S_T1}, s{S_T1}, 9")
    P(f"s_add_u32 s{S_T0}, s{S_T0}, s{S_T1}")
    P(f"v_lshrrev_b32 v{t0}, 2, v{lane}")
    P(f"v_lshlrev_b32 v{t0}, 10, v{t0}")
    P(f"v_and_b32 v{t1}, 3, v{lane}")
    P(f"v_lshl_add_u32 v{t0}, v{t1}, 7, v{t0}")
    P(f"v_add_u32 v{vpw}, s{S_T0}, v{t0}")
    P.wait_tag("q")
    P("s_barrier")
    stamp(P, 2)
    if PF & 2: pf(0, True)
    QD = 6
    xb = [acc[1][0] + 4 * i for i in range(QD)]; wb = [acc[2][0] + 4 * i for i in range(QD)]
    assert acc[1][1] == acc[1][0] + 16 and acc[2][1] == acc[2][0] + 16
    def q_loads(ks):
        o = SLOT[ks // 12] - SLOT[0] + (ks % 12) * 2048
        P(f"ds_read_b128 {vr(xb[ks%QD],4)}, v{vxa} offset:{ks*32}")
        P(f"ds_read_b64_tr_b16 {vr(wb[ks%QD],2)}, v{vtn} offset:{o}")
        P(f"ds_read_b64_tr_b16 {vr(wb[ks%QD]+2,2)}, v{vtn} offset:{o+512}")
    for ks in range(QD - 1): q_loads(ks)
    for ks in range(32):
        P(mfma(acc[0][0], wb[ks%QD], xb[ks%QD], acc[0][0] if ks else None))
        if ks in (11, 23):
            stamp(P, 11 if ks == 11 else 13)
            P("s_barrier")
        if ks + QD - 1 < 32: q_loads(ks + QD - 1)
        if ks == OPT.get("pk", 20):
            P(f"s_mov_b32 s{S_T5}, 0x{FL_KV:x}")
            P(f"buffer_load_dword v{vn}, v{vz}, s[{S_DBG}:{S_DBG+3}], 0 offen sc1")
            P(flag_load(vfl, 4, l16, f"s{S_T5}"))
    for r in range(8): P(f"v_cvt_pk_bf16_f32 v{qf+r}, v{acc[0][0]+2*r}, v{acc[0][0]+2*r+1}")
    P(f"ds_write_b128 v{vq}, {vr(qf,4)}")
    P(f"ds_write_b128 v{vq}, {vr(qf+4,4)} offset:1024")
    nonce_check(P, SL, vn, vz)
    spin_check(P, SL, [flag_load(vfl, 4, l16, f"s{S_T5}")], flag_cmp(vfl, 4, t0), sleep=OPT.get("ksl", 6))
    kv_dma(P, l16, 0)
    P(f"s_add_u32 s{S_T2}, s{S_T2}, 32768")
    dma(P, l16, S_WS, f"s{S_T2}", (S_KVLDS, 4096), tag="kv0", mods=SC1)
    def gu_reads(ks):
        s, kk = ks // 2, ks % 2
        so = SLOT[s % 3] - SLOT[0] + kk * 6144
        L = [f"ds_read_b128 {vr(fx[ks%2][0],4)}, v{vx0} offset:{ks*32}"]
        for i in range(3):
            f = fw[ks % 2][i]
            L += [f"ds_read_b64_tr_b16 {vr(f,2)}, v{wtr[i]} offset:{so}", f"ds_read_b64_tr_b16 {vr(f+2,2)}, v{wtr[i]} offset:{so+1536}"]
            if i == 0: L.append(f"ds_read_b128 {vr(fx[ks%2][1],4)}, v{vx0} offset:{ks*32 + 32*X_STRIDE}")
        return L
    def gu_groups(ks, late=False):
        R = gu_reads(ks + 1) if ks < 31 else []
        if OPT.get("abl_hds") and ks >= 2 * NP - 1: R = []
        G = []
        for m in range(6):
            i, t = m // 2, m % 2
            mm = [mfma(acc[i][t], fw[ks % 2][i], fx[ks % 2][t], acc[i][t] if ks else None)]
            if OPT.get("abl_hm") and ks >= 2 * NP - 1: mm = []
            G.append(mm + (R[2 * m: 2 * m + 2] if not late else ([] if m < 3 else R[3 * (m - 3): 3 * (m - 3) + 3])))
        return G
    P.wait_lgkm_all()
    stamp(P, 14)
    P("s_barrier")
    stamp(P, 3)
    for x in gu_reads(0): P(x)
    poison()
    PFI = OPT.get("pfi", 0)
    for ks in range(2 * NP - 1):
        if ks % 2 == 1:
            P.wait_lgkm_all(); P("s_barrier")
        for g in gu_groups(ks):
            for x in g: P(x)
    P.wait_tag("kv0"); P.wait_lgkm_all(); P("s_barrier")
    stamp(P, 4)
    gq = []
    tmp = fx[0][0]; cst = fx[1][0]
    assert fx[0][1] == fx[0][0] + 4
    gel = []
    def load_window(k):
        n = 2 * (NP + k) - 1
        assert not gq
        gq.extend(gu_groups(n, late=(k > 0 and OPT.get("sb", 0))))
        if n < 31: gq.extend(gu_groups(n + 1))
    def hookH(it, x, pos):
        if pos == "sync?": return 1 <= it <= JIT
        if pos == "pre0": sigstamp(it, 0); return
        if pos == "pre": sigstamp(it, 1); return
        if pos == "start": load_window(0); return
        midprio(it, x, pos)
        if pos == "pv2" and x == 1 and PF & 1:
            if it == PFI: pf(1, True)
            if it == PFI + 2: pf(2, True)
            if it == PFI + 5: pf(3, True)
        if pos == "pv2" and x == 1 and OPT.get("wpf", 1) and it in (7, 8, 9, 10):
            k = it - 7
            P(f"s_cmp_lg_u32 s{S_W}, {k}")
            P(f"s_cbranch_scc1 LF_wp{k}")
            P(f"buffer_load_dword v{vpd}, v{vpw}, s[{S_PFS}:{S_PFS+3}], 0 offen")
            P.I[-1].kind = "salu"; P.I[-1].vw = set()
            P(f"LF_wp{k}:")
        if pos == "pv1" and x == 0 and 1 <= it <= JIT: load_window(it)
        if pos in ("g1", "g2", "g3", "g4", "g5", "g6"):
            if gq and not (it == 0 and pos in ("g1", "g3", "g5") and False):
                for t in gq.pop(0): P(t)
                if not gq and it == JIT and x == 1:
                    L = [f"v_mov_b32 v{cst}, {hexf(GELU_C1)}", f"v_mov_b32 v{cst+1}, {hexf(GELU_C1)}",
                         f"v_mov_b32 v{cst+2}, {hexf(GELU_C2)}", f"v_mov_b32 v{cst+3}, {hexf(GELU_C2)}"]
                    k = 0
                    for i in range(3):
                        for t in range(2):
                            d = fw[k % 2][k // 2]; k += 1
                            L += gelu_tile_pk(acc[i][t], d, tmp, cst)
                            if t == 1: L.append(f"s_add_u32 s{SH[i]}, s{SH[i]}, {118*1024}")
                            L.append(f"buffer_store_dwordx4 {vr(d,4)}, v{l16}, {WSR}, s{SH[i]} offen sc1")
                    ns = 3 + 12 * (UNI - JIT - 1)
                    n = (len(L) + ns - 1) // ns
                    gel.extend(L[i:i + n] for i in range(0, len(L), n))
            elif gel:
                for t in gel.pop(0): P(t, tag="hst" if "store" in t else None)
    PM = OPT.get("pm", 5)
    def prioH(it, x):
        if PM == 1: return 3 if (it == 0 and x == 0) else None
        if PM == 3: return 3 - 2 * x
        if PM == 5: return (3 - 2 * x) if it < JIT else 3
        if PM == 6: return 3 if it >= JIT else None
        return None
    def prioL(it, x):
        if PM in (2, 6): return 1 if (it == 0 and x == 0) else None
        if PM == 3: return 3 - 2 * x
        if PM == 5: return (3 - 2 * x) if it < JIT else 0
        return None
    def midprio(it, x, pos):
        if PM in (3, 5) and pos == "pv2" and (PM == 3 or it <= JIT): P(f"s_setprio {2 * x}")
    attention(P, A, l16, range(0, UNI), hookH, prioH, kvf=lambda c: None)
    nsb = A["sb"].n; A["sb"].n = 0
    assert not gq and not gel, (len(gq), len(gel))
    P.cond_end(keep=True)
    P("s_branch LF_join")
    for n in ("vx0", "vtn", "wtr0", "wtr1", "wtr2", "vpf", "vpw"): V.release(n)

    P("LF_light:")
    P.cond_begin()
    pats = w_patterns(P, V, lane, t0, t1)
    P(f"s_lshl_b32 s{S_T0}, s{S_HP}, 1")
    P(f"s_mul_i32 s{S_WOFF}, s{S_T0}, {8*2752}")
    P(f"s_lshl_b32 s{S_T1}, s{S_U0}, 5")
    P(f"s_add_u32 s{S_WOFF}, s{S_WOFF}, s{S_T1}")
    P(f"s_mul_i32 s{S_WLDS}, s{S_T0}, 3072")
    P(f"s_mul_i32 s{S_T1}, s{S_TT}, {UP_OFF}")
    P(f"s_add_u32 s{S_WLDS}, s{S_WLDS}, s{S_T1}")
    inattn = dict(on=False)
    P(f"s_add_u32 s{S_WOFF}, s{S_WOFF}, 0")
    P(f"v_subrev_u32 v{pats[1]}, 1024, v{pats[1]}")
    P(f"v_subrev_u32 v{pats[2]}, 2048, v{pats[2]}")
    def w_dma1(s, k):
        g, i = k // 3, k % 3
        solo = not OPT.get("wm0", 1) or inattn["on"]
        if i == 0 or solo:
            dma(P, pats[i], S_WM, f"s{S_T3}", (S_WLDS, SLOT[s % 3] + 3072 * g), offset=1024 * i, tag=f"w{s}",
                pre=[f"s_add_u32 s{S_T3}, s{S_WOFF}, 0x{(32*s + 8*g)*2752:x}"] if i == 0 else None)
        else:
            P(f"buffer_load_dwordx4 v{pats[i]}, s[{S_WM}:{S_WM+3}], s{S_T3} offen offset:{1024*i} lds", tag=f"w{s}")
    def w_dma6(s):
        for k in range(6): w_dma1(s, k)
    vgw = acc[0][1]
    P(f"v_lshrrev_b32 v{t0}, 5, v{lane}")
    P(f"v_lshlrev_b32 v{vgw}, 4, v{t0}")
    P(f"s_lshl_b32 s{S_T0}, s{S_HP}, 9")
    P(f"v_add_u32 v{vxa}, s{S_T0}, v{vxa}")
    P(f"s_add_u32 s{S_T0}, s{S_T0}, 0x{GWL:x}")
    P(f"v_add_u32 v{vgw}, s{S_T0}, v{vgw}")
    P(f"s_lshl_b32 s{S_T0}, s{S_W}, 8")
    P(f"s_add_u32 s{S_T0}, s{S_T0}, 0x{ONES - 1024:x}")
    P(f"v_lshlrev_b32 v{t0}, 2, v{lane}")
    P(f"v_add_u32 v{t0}, s{S_T0}, v{t0}")
    P(f"v_mov_b32 v{t1}, 0x3f803f80")
    P(f"v_lshrrev_b32 v1, 2, v{lane}")
    P(f"v_and_b32 v1, 11, v1")
    P(f"v_cmp_eq_u32 vcc, 0, v1")
    P(f"v_cndmask_b32 v{t1}, 0, v{t1}, vcc")
    P(f"ds_write_b32 v{t0}, v{t1}")
    P(f"ds_write_b32 v{t0}, v{t1} offset:1024")
    dma(P, l16, S_GW, "0", (None, GWL), tag="q")
    P.wait_tag("q")
    P("s_barrier")
    stamp(P, 2)
    stamp(P, 11)
    P("s_barrier")
    w_dma6(0)
    stamp(P, 13)
    P("s_barrier")
    w_dma6(1)
    poison()
    za = acc[0][0]; zx = [acc[1][0] + 4 * i for i in range(4)]; zg = [acc[2][0] + 4 * i for i in range(4)]
    def zjob():
        def zld(k):
            P(f"ds_read_b128 {vr(zx[k%4],4)}, v{vxa} offset:{k*32}")
            P(f"ds_read_b128 {vr(zg[k%4],4)}, v{vgw} offset:{k*32}")
        for k in range(3): zld(k)
        if OPT.get("zm", 1):
            for k in range(16):
                P(mfma(za, zg[k % 4], zx[k % 4], za if k else None))
                if k + 3 < 16: zld(k + 3)
            P(f"v_mul_f32 v{za}, 0.5, v{za}")
        else:
            for r in range(4): P(f"v_mov_b32 v{za+r}, 0")
            for k in range(16):
                for r in range(4): P(f"v_dot2c_f32_bf16 v{za+r}, v{zx[k%4]+r}, v{zg[k%4]+r}")
                if k + 3 < 16: zld(k + 3)
            P("s_nop 2")
            P(f"v_add_f32 v{za}, v{za}, v{za+1}")
            P(f"v_add_f32 v{za+2}, v{za+2}, v{za+3}")
            P(f"v_add_f32 v{za}, v{za}, v{za+2}")
        P(f"s_and_b32 s{S_T0}, s{S_W}, 3")
        P(f"s_lshl_b32 s{S_T0}, s{S_T0}, 8")
        P(f"s_add_u32 s{S_T0}, s{S_T0}, 0x{MISC:x}")
        P(f"v_lshlrev_b32 v{t0}, 2, v{lane}")
        P(f"v_add_u32 v{t0}, s{S_T0}, v{t0}")
        P(f"ds_write_b32 v{t0}, v{za}")
    P(f"s_mov_b32 s{S_T6}, 0x{FL_KV:x}")
    def kv_both(c):
        kv_dma(P, l16, c)
        dma(P, l16, S_WS, f"s{S_T2}", (S_KVLDS, (8192 * (c & 1) - 4096) & 0xffffffff), tag=f"kv{c}", mods=SC1, pre=[f"s_sub_u32 s{S_T2}, s{S_T2}, 32768"])
    def poll_issue():
        P(f"buffer_load_dword v{vn}, v{vz}, s[{S_DBG}:{S_DBG+3}], 0 offen sc1")
        P(flag_load(vfl, 4, l16, f"s{S_T6}"))
    for s in range(0, NP + 1):
        P.wait_tag(f"w{s}")
        P.wait_lgkm_all()
        if s == 0: stamp(P, 14)
        P("s_barrier")
        if s == 0:
            stamp(P, 3)
            P(f"ds_read_b128 {vr(qf,4)}, v{vq} offset:1024")
            P(f"ds_read_b128 {vr(qf+4,4)}, v{vq}")
        if s == NP: kv_both(1)
        if s < NP: w_dma6(s + 2)
        if s == 0: P(f"buffer_load_dword v{vn}, v{vz}, s[{S_DBG}:{S_DBG+3}], 0 offen sc1")
        if s == min(OPT.get("zs", 9), NP - 1) and OPT.get("zs", 9) < 9: zjob()
    assert NP >= 1
    stamp(P, 4)
    dq = []; zq = []
    if OPT.get("zs", 9) == 9:
        P_main = P; P = Prog(); zjob(); ZL = [x.text for x in P.I]; P = P_main
        cur = []
        for t in ZL:
            if t.startswith("v_mfma") and cur: zq.append(cur); cur = []
            cur.append(t)
        k = next(i for i, t in enumerate(cur) if t.startswith("v_mul"))
        zq += [cur[:k], [], cur[k:]]
    def hookL(it, x, pos):
        if pos == "g5" and zq:
            for t in zq.pop(0): P(t)
        if pos == "sync?": return 1 <= it <= JIT
        if pos == "pre0": sigstamp(it, 0); return
        if pos == "pre":
            if NP + it < 16: P.wait_tag(f"w{NP+it}")
            sigstamp(it, 1); return
        if (pos == "start" or pos == "chk") and NP + it + 2 < 16:
            assert not dq
            for k in range(0 if OPT.get("abl_ldma") else 6): dq.append(lambda s=NP + it + 2, k=k: w_dma1(s, k))
        midprio(it, x, pos)
        if (pos in ("pv2", "qk", "pv1") or (pos == "g5" and x == 1 and OPT.get("sb", 0))) and dq: dq.pop(0)()
    attention(P, A, l16, range(0, UNI), hookL, prioL, kvf=kv_both)
    assert not zq
    assert A["sb"].n == nsb
    assert not dq
    P.cond_end(keep=True)
    P("LF_join:")
    P.join()
    for n in ["wpat0", "wpat1", "wpat2", "vxa", "vq"] + [f"acc{i}{t}" for i in range(3) for t in range(2)] + \
             [f"fx{b}{t}" for b in range(2) for t in range(2)] + [f"fw{b}{i}" for b in range(2) for i in range(3)]: V.release(n)
    stamp(P, 5)

    facc = V.alloc("facc", 16); facc1 = V.alloc("facc1", 16); fa = V.alloc("ffa", 8)
    NB = OPT.get("nb", 6)
    hb = [V.alloc(f"hb{i}", 4) for i in range(NB)]; fb = hb[0]
    vl4 = V.alloc("vl4"); vg = V.alloc("vg"); zt = V.alloc("zt", 2)
    va0 = tr_slice_addr(P, V, "fa0", lane, t0, t1, 0, S_KH, 4)
    vA = [[va0, V.alloc("fa0h")], [V.alloc("fa1"), V.alloc("fa1h")]]
    P(f"s_lshl_b32 s{S_T1}, s{S_HP}, 5")
    P(f"v_xor_b32 v{va0}, s{S_T1}, v{va0}")
    P(f"s_lshr_b32 s{S_T0}, s{S_W}, 1")
    P(f"s_lshl_b32 s{S_T1}, s{S_T0}, 11")
    P(f"v_add_u32 v{va0}, s{S_T1}, v{va0}")
    P(f"v_xor_b32 v{vA[1][0]}, 64, v{va0}")
    P(f"v_add_u32 v{vA[0][1]}, 0x10000, v{va0}")
    P(f"v_add_u32 v{vA[1][1]}, 0x10000, v{vA[1][0]}")
    P(f"s_mul_i32 s{S_FB}, s{S_TILE}, 118")
    P(f"s_add_u32 s{S_FB}, s{S_FB}, s{S_T0}")
    P(f"s_lshl_b32 s{S_FB}, s{S_FB}, 10")
    P(f"s_add_u32 s{S_FB}, s{S_FB}, 0x{WS_OH:x}")
    P(f"v_lshlrev_b32 v{vl4}, 2, v{lane}")
    vhf = V.alloc("vhf")
    P(f"v_lshrrev_b32 v{t0}, 3, v{lane}")
    P(f"v_mul_u32_u24 v{t0}, {96 if OPT.get('hsp', 1) else 0}, v{t0}")
    P(f"v_add_u32 v{vhf}, v{t0}, v{vl4}")
    P(f"s_lshl_b32 s{S_T0}, s{S_TT}, 8")
    P(f"s_add_u32 s{S_T0}, s{S_T0}, 0x{MISC:x}")
    P(f"v_add_u32 v{t0}, s{S_T0}, v{vl4}")
    P(f"ds_read_b32 v{zt}, v{t0}")
    P(f"ds_read_b32 v{zt+1}, v{t0} offset:512")
    P(f"v_add_f32 v{zt}, v{zt}, v{zt+1}")
    P(f"v_mov_b32 v{zt+1}, v{zt}")
    P(f"v_permlane32_swap_b32 v{zt}, v{zt+1}")
    P(f"v_add_f32 v{zt}, v{zt}, v{zt+1}")
    P(f"v_mul_f32 v{t0}, {hexf(-LOG2E)}, v{zt}")
    P(f"v_exp_f32 v{t0}, v{t0}")
    P(f"v_add_f32 v{t0}, 1.0, v{t0}")
    P(f"v_rcp_f32 v{vg}, v{t0}")
    V.release("zt")
    vw = [V.alloc(f"vw{i}") for i in range(3)]; vrd = V.alloc("vrd"); vo = V.alloc("vo")
    def sbase(dst, w):
        P(f"s_mul_i32 s{S_T1}, s{w}, 6144")
        P(f"v_add_u32 v{dst}, s{S_T1}, v{l16}")
    sbase(vrd, S_W)
    for b in range(1, 4):
        P(f"s_xor_b32 s{S_T0}, s{S_W}, {b << 1}")
        sbase(vw[b - 1], S_T0)
    P(f"v_and_b32 v{vo}, 31, v{lane}")
    P(f"v_lshlrev_b32 v{vo}, 10, v{vo}")
    P(f"v_lshrrev_b32 v{t1}, 5, v{lane}")
    P(f"v_lshl_add_u32 v{vo}, v{t1}, 4, v{vo}")
    P(f"s_lshl_b32 s{S_OO}, s{S_TILE}, 15")
    P(f"s_lshl_b32 s{S_T1}, s{S_J}, 7")
    P(f"s_add_u32 s{S_OO}, s{S_OO}, s{S_T1}")
    P(f"s_lshl_b32 s{S_T1}, s{S_KH}, 6")
    P(f"s_add_u32 s{S_OO}, s{S_OO}, s{S_T1}")
    P(f"s_lshl_b32 s{S_T1}, s{S_HP}, 5")
    P(f"s_add_u32 s{S_OO}, s{S_OO}, s{S_T1}")
    vp = V.alloc("vp"); vpa = V.alloc("vpa")
    P(f"v_lshlrev_b32 v{vpa}, 10, v{lane}")
    vt0 = V.alloc("vt0"); vt1 = V.alloc("vt1")
    P(f"s_lshr_b32 s{S_T1}, s{S_W}, 1")
    P(f"s_mul_i32 s{S_T1}, s{S_T1}, {16384 - 2048}")
    P(f"s_add_u32 s{S_T1}, s{S_T1}, {3*16384}")
    P(f"v_add_u32 v{vt0}, s{S_T1}, v{vA[0][0]}")
    P(f"v_add_u32 v{vt1}, s{S_T1}, v{vA[1][0]}")
    va = V.alloc("cva"); vb = V.alloc("cvb"); fb = V.alloc("cvon")
    P(f"s_mul_i32 s{S_T0}, s{S_W}, 3072")
    P(f"s_add_u32 s{S_T0}, s{S_T0}, 114688")
    P(f"v_add_u32 v{va}, s{S_T0}, v{l16}")
    P(f"s_xor_b32 s{S_T0}, s{S_W}, 4")
    P(f"s_mul_i32 s{S_T0}, s{S_T0}, 3072")
    P(f"s_add_u32 s{S_T0}, s{S_T0}, 114688")
    P(f"v_add_u32 v{vb}, s{S_T0}, v{l16}")
    P(f"s_add_u32 s{S_OL2}, s{S_OL}, 4096")
    BSLOT = lambda b: ((b % 8) if b < 11 else (b - 8)) * 16384
    def a_reads(r, d):
        o = (4 * r % 64) * 2048; hi = o >> 16; o &= 0xffff
        assert r // 2 in vis, (r, vis)
        rd_done[r // 2] = rd_done.get(r // 2, 0) + 1
        if OPT.get("abl_uds"): return
        P(f"ds_read_b64_tr_b16 {vr(fa+4*d,2)}, v{vA[d][hi]} offset:{o}")
        P(f"ds_read_b64_tr_b16 {vr(fa+4*d+2,2)}, v{vA[d][hi]} offset:{o+1024}")
    def h_load(r):
        if OPT.get("abl_uh"): return
        P(f"s_add_u32 s{S_T2}, s{S_FB}, {4096*r}")
        if r == 21:
            P(f"s_cmp_lt_u32 s{S_W}, 4")
            P(f"s_cselect_b32 s{S_T2}, s{S_T2}, 0x{OOB:x}")
        P(f"buffer_load_dwordx4 {vr(hb[r%NB],4)}, v{l16}, {WSR}, s{S_T2} offen sc1")
    pend = {}
    dq = []; vis = set(); issued = {}; rd_done = {}; nxt = dict(b=0, r=0, d=0, pre=False)
    def qW(b):
        def f(i):
            if not OPT.get("abl_uw"): fin_dma_w1(P, vsl, b, BSLOT(b), f"fw{b}", i)
            issued[b] = issued.get(b, 0) + 1
        for i in range(2): dq.append(lambda i=i: f(i))
    CH = OPT.get("ch", HF + 3); R0 = OPT.get("r0", 2 * (CH + 2))
    DBL = OPT.get("dbl", 64)
    def mstep():
        r, d = nxt["r"], nxt["d"]
        if r >= 22: return
        if not nxt["pre"]:
            a_reads(0, 0); a_reads(0, 1); nxt["pre"] = True; return
        if not OPT.get("abl_um"): P(mfma([facc, facc1][d], fa + 4 * d, hb[r % NB], [facc, facc1][d] if r else None))
        if r + 1 < 22: a_reads(r + 1, d)
        if d == 1 and r + NB < 22: dq.insert(0, lambda r=r: h_load(r + NB))
        nxt["d"] = 1 - d; nxt["r"] = r + d
    def hookU(it, x, pos):
        sig = (x == 0 and (it & 1)); ph = 2 * it + x
        if pos == "sync?": return False
        if pos == "pre0": sigstamp(it, 0); return
        if pos == "pre":
            if it == HF: P.wait_vm_all()
            need = [b for b in issued if issued[b] == 2 and b not in vis and (it == 29 or b <= (max(0, ph + 8 - R0) * (2 if ph + 6 >= DBL else 1)) // 2) and b <= 10]
            if need: P.wait_tag(*[f"fw{b}" for b in need])
            pend["vis"] = need; pend["free"] = {b for b in rd_done if rd_done[b] >= 4}
            sigstamp(it, 1); return
        if pos == "pv1" and sig and it == HF:
            nonce_check(P, SL, vn, vz)
            flag_store(P, vz, t0, S_FS)
        if pos == "chk":
            vis.update(pend["vis"])
            while it >= HF and nxt["b"] < 15:
                b = nxt["b"]; prev = {8: 0, 9: 1, 10: 2, 11: 3, 12: 4, 13: 5, 14: 6}.get(b)
                if prev is not None and prev not in pend["free"]: break
                qW(b); nxt["b"] += 1
            return
        if pos == "pv2" and x == 0 and it == CH - 1: P(flag_load(vfl, 1, vhf, f"s{S_FP}"))
        if pos == "pv2" and x == 0 and it == CH:
            spin_check(P, SL, [flag_load(vfl, 1, vhf, f"s{S_FP}")], flag_cmp(vfl, 1, t0), sleep=OPT.get("hsl", 4))
            for r in range(NB): dq.insert(r, lambda r=r: h_load(r))
        elif dq and (pos in ("pv2", "qk") or (pos in ("g2", "g5") and it in (CH, CH + 1)) or (pos == "g5" and OPT.get("d3"))): dq.pop(0)()
        if nxt["r"] >= 22 - OPT.get("tr", 5) and nxt["d"] == 0: pass
        elif (pos in ("g1", "g4") and ph >= R0) or (pos == "g4" and ph == R0 - 1) or (pos in ("g3", "g6") and ph >= DBL): mstep()
        if pos == "g6" and it == 31 and x == 1:
            assert nxt["b"] == 15, nxt
            print("rounds left for tail:", 22 - nxt["r"])
    def prioU(it, x):
        if not OPT.get("prio", 1): return None
        return 3 - (2 * ((it + 1) & 1) + x)
    attention(P, A, l16, range(UNI, 32), hookU, prioU)
    assert not dq
    stamp(P, 6)
    if OPT.get("sig"):
        P(f"s_lshl_b32 s98, s2, 11")
        P(f"s_lshl_b32 s99, s{S_W}, 8")
        P(f"s_add_u32 s98, s98, s99")
        P(f"s_add_u32 s98, s98, 0x{WS_STAMP + (1<<20):x}")
        P(f"buffer_store_dword v{vsig}, v{vl4}, {WSR}, s98 offen")
    P("s_setprio 0")
    P(f"v_mov_b32 v{O[1]+7}, v{O[1]}")
    for i in range(3): P(f"ds_write_b128 v{va}, {vr(O[1]+4+4*i,4)} offset:{1024*i}")
    P.wait_tag(*[f"fw{b}" for b in range(8, 15)]); P.wait_lgkm_all()
    P("s_barrier")
    vis.update(range(11))
    for i in range(3): P(f"ds_read_b128 {vr(O[1]+4+4*i,4)}, v{vb} offset:{1024*i}")
    P(f"v_add_f32 v{O[0]}, v{O[0]}, v{O[1]+7}")
    for r in range(8, 16): P(f"v_add_f32 v{O[0]+r}, v{O[0]+r}, v{O[1]+r}")
    P(f"v_mov_b32 v{t1}, 0x207")
    P(f"v_cmp_nle_f32 vcc, {hexf(2.0**-90)}, v{O[0]}")
    P(f"v_cmp_nge_f32 s[{S_PM}:{S_PM+1}], {'s' + str(S_T0)}, v{O[0]}".replace(f"s{S_T0}", f"s{S_C1}"))
    P(f"s_or_b64 vcc, vcc, s[{S_PM}:{S_PM+1}]")
    P(f"v_add3_u32 v{t0}, v{O[0]+8}, 0, 0".replace("v_add3_u32", "v_add_f32").replace(", 0, 0", f", v{O[0]+9}"))
    for r in range(10, 16): P(f"v_add_f32 v{t0}, v{t0}, v{O[0]+r}")
    P(f"v_cmp_class_f32 s[{S_PM}:{S_PM+1}], v{t0}, v{t1}")
    P(f"s_or_b64 vcc, vcc, s[{S_PM}:{S_PM+1}]")
    if OPT.get("forcefb"): P("s_mov_b64 vcc, -1")
    P("s_cmp_lg_u64 vcc, 0")
    P("s_cbranch_scc1 LF_fb")
    P("LF_fbr:")
    P(f"v_rcp_f32 v{t0}, v{O[0]}")
    P(f"v_mul_f32 v{t0}, v{t0}, v{vg}")
    for r in range(8, 16): P(f"v_mul_f32 v{O[0]+r}, v{O[0]+r}, v{t0}")
    for r in range(4): P(f"v_cvt_pk_bf16_f32 v{O[1]+r}, v{O[0]+8+2*r}, v{O[0]+9+2*r}")
    for r in range(4): P(f"v_min_u32 v{O[1]+r}, 0xfffffffe, v{O[1]+r}")
    P(f"buffer_store_dwordx4 {vr(O[1],4)}, v{l16}, {WSR}, s{S_OD} offen sc1", tag="ost")
    stamp(P, 7)
    K4, V8, ON, CM = A["fk"], A["fv"][0], fb, O[1]
    assert A["fv"][1] == V8 + 4
    nl = "\n    "
    fbk = f"""LF_fb:
    s_waitcnt vmcnt(0) lgkmcnt(0)
    v_mov_b32 v{t0}, 0xff800000
    s_mov_b32 s{S_T0}, 0x{WS_KF:x}
LF_fb1:
    buffer_load_dwordx4 {vr(K4,4)}, v{l16}, {WSR}, s{S_T0} offen sc1
    s_waitcnt vmcnt(0)
    {mfma(S[0], K4, qf)}
    s_nop 15
    {nl.join(f"v_max3_f32 v{t0}, v{S[0]+2*r}, v{S[0]+2*r+1}, v{t0}" for r in range(8))}
    s_add_u32 s{S_T0}, s{S_T0}, 1024
    s_cmp_lt_u32 s{S_T0}, 0x{WS_KF + 65536:x}
    s_cbranch_scc1 LF_fb1
    v_mov_b32 v{t1}, v{t0}
    s_nop 1
    v_permlane32_swap_b32 v{t0}, v{t1}
    s_nop 1
    v_max_f32 v{t0}, v{t0}, v{t1}
    {nl.join(f"v_sub_f32 v{CM+r}, 0, v{t0}" for r in range(16))}
    {nl.join(f"v_mov_b32 v{O[0]+r}, 0" for r in range(16))}
    v_lshrrev_b32 v{t0}, 5, v{lane}
    v_lshlrev_b32 v{t0}, 8, v{t0}
    v_and_b32 v{t1}, 15, v{lane}
    v_lshl_add_u32 v{t0}, v{t1}, 4, v{t0}
    v_and_b32 v{t1}, 16, v{lane}
    v_cmp_eq_u32 vcc, 0, v{t1}
    v_mov_b32 v{t1}, 0x{OOB:x}
    s_nop 1
    v_cndmask_b32 v{t0}, v{t0}, v{t1}, vcc
    v_and_b32 v{t1}, 27, v{lane}
    v_cmp_eq_u32 vcc, 0, v{t1}
    v_mov_b32 v{ON}, 0x3f803f80
    s_nop 1
    v_cndmask_b32 v{ON}, 0, v{ON}, vcc
    s_mov_b32 s{S_T0}, 0x{WS_KF:x}
LF_fb2:
    s_add_u32 s{S_T1}, s{S_T0}, 0x{WS_VF - WS_KF:x}
    buffer_load_dwordx4 {vr(K4,4)}, v{l16}, {WSR}, s{S_T0} offen sc1
    buffer_load_dwordx4 {vr(V8,4)}, v{t0}, {WSR}, s{S_T1} offen sc1
    buffer_load_dwordx4 {vr(V8+4,4)}, v{t0}, {WSR}, s{S_T1} offen offset:512 sc1
    s_waitcnt vmcnt(0)
    {mfma(S[0], K4, qf, CM)}
    {nl.join(f"v_or_b32 v{V8+r}, v{V8+r}, v{ON}" for r in range(8))}
    s_nop 7
    {nl.join(f"v_exp_f32 v{S[0]+r}, v{S[0]+r}" for r in range(16))}
    s_nop 1
    {nl.join(f"v_cvt_pk_bf16_f32 v{S[1]+r}, v{S[0]+2*r}, v{S[0]+2*r+1}" for r in range(8))}
    s_nop 1
    {mfma(O[0], V8, S[1], O[0])}
    {mfma(O[0], V8+4, S[1]+4, O[0])}
    s_add_u32 s{S_T0}, s{S_T0}, 1024
    s_cmp_lt_u32 s{S_T0}, 0x{WS_KF + 65536:x}
    s_cbranch_scc1 LF_fb2
    s_nop 15
    s_branch LF_fbr
"""
    SL.add(fbk)
    for n in ("Sa", "Sb", "Oa", "qf", "fk", "fv1", "fv2"): V.release(n)
    ob = V.alloc("ob", 32); wa = [V.alloc(f"wa{u}", 8) for u in range(8)]
    def oloads(g): return [f"buffer_load_dwordx4 {vr(ob+16*g+4*u,4)}, v{l16}, {WSR}, s{[S_OL,S_OL2][g]} offen offset:{1024*u} sc1" for u in range(4)]
    def ocheck(g):
        b = ob + 16 * g
        L = [f"v_max3_u32 v{t0}, v{b}, v{b+1}, v{b+2}"]
        for k in range(3, 15, 2): L.append(f"v_max3_u32 v{t0}, v{b+k}, v{b+k+1}, v{t0}")
        L += [f"v_max_u32 v{t0}, v{b+15}, v{t0}", f"v_cmp_eq_u32 vcc, -1, v{t0}"]
        return L
    fa2 = V.alloc("ffa2", 8)
    wr = []
    for u in range(8):
        for d, v in ((0, vt0), (1, vt1)):
            wr.append([f"ds_read_b64_tr_b16 {vr(wa[u]+4*d,2)}, v{v} offset:{u*2048}", f"ds_read_b64_tr_b16 {vr(wa[u]+4*d+2,2)}, v{v} offset:{u*2048+1024}"])
    r0 = nxt["r"]; assert nxt["d"] == 0 and not dq
    def tr_reads(r, d):
        o = (4 * r % 64) * 2048; hi = o >> 16; o &= 0xffff; f = [fa, fa2][(r - r0) % 2] + 4 * d
        P(f"ds_read_b64_tr_b16 {vr(f,2)}, v{vA[d][hi]} offset:{o}")
        P(f"ds_read_b64_tr_b16 {vr(f+2,2)}, v{vA[d][hi]} offset:{o+1024}")
    if r0 + 1 < 22: tr_reads(r0 + 1, 0); tr_reads(r0 + 1, 1)
    OL = min(r0 + OPT.get("ol", 99), 22)
    for r in range(r0, 22):
        if r == OL:
            for g in range(2):
                for x in oloads(g): P(x)
        for d in range(2):
            P(mfma([facc, facc1][d], [fa, fa2][(r - r0) % 2] + 4 * d, hb[r % NB], [facc, facc1][d]))
            if r + 2 < 22: tr_reads(r + 2, d)
            elif wr:
                for g in wr[:4]:
                    for x in g: P(x)
                del wr[:4]
    for g in wr:
        for x in g: P(x)
    assert 22 - r0 <= NB and r0 >= 16
    OPR = OPT.get("opr", 0)
    probe = ["s_mov_b64 exec, 0xff", f"buffer_load_dword v{vp}, v{vpa}, {WSR}, s{S_OL} offen offset:1020 sc1", "s_mov_b64 exec, -1"]
    pchk = ["s_mov_b64 exec, 0xff", f"v_cmp_eq_u32 vcc, -1, v{vp}", "s_mov_b64 exec, -1"]
    if OPR == 1:
        for x in probe: P(x)
    if OPT.get("oab", 1): P.wait_lgkm_all(); P("s_barrier")
    if OPR == 2:
        for x in probe: P(x)
    if OPR: spin_check(P, SL, probe, pchk, sleep=1)
    if OL == 22:
        for g in range(2):
            for x in oloads(g): P(x)
    P(f"v_sub_f32 v{t1}, 1.0, v{vg}")
    P(f"v_mov_b32 v{t0}, v{t1}")
    assert t1 == t0 + 1 and t0 % 2 == 0
    for r in range(0, 16, 2): P(f"v_pk_mul_f32 v[{facc+r}:{facc+r+1}], v[{facc+r}:{facc+r+1}], v[{t0}:{t1}]")
    for r in range(0, 16, 2): P(f"v_pk_mul_f32 v[{facc1+r}:{facc1+r+1}], v[{facc1+r}:{facc1+r+1}], v[{t0}:{t1}]")
    if not OPT.get("oab", 1): P.wait_lgkm_all(); P("s_barrier")
    stamp(P, 8)
    nl = "\n    "
    for g in range(2):
        k = SL.n; SL.n += 1
        for x in ocheck(g): P(x)
        P(f"s_cbranch_vccnz LS{k}")
        P(f"LR{k}:")
        SL.add(f"""LS{k}:
    s_mov_b32 s{S_T7}, 0
LS{k}_p:
    s_mov_b64 exec, 0xf
    buffer_load_dword v{vp}, v{vpa}, {WSR}, s{[S_OL,S_OL2][g]} offen offset:1020 sc1
    s_waitcnt vmcnt(0)
    v_cmp_eq_u32 vcc, -1, v{vp}
    s_mov_b64 exec, -1
    s_add_u32 s{S_T7}, s{S_T7}, 1
    s_cmp_ge_u32 s{S_T7}, 0x{SPIN_MAX:x}
    s_cbranch_scc1 LR{k}
    s_cbranch_vccnz LS{k}_p
    {nl.join(oloads(g))}
    s_waitcnt vmcnt(0)
    {nl.join(ocheck(g))}
    s_cbranch_vccnz LS{k}_p
    s_nop 1
    s_branch LR{k}
""")
        for u in range(4 * g, 4 * g + 4):
            P(mfma(facc1, wa[u] + 4, ob + 4 * u, facc1))
    W1 = [f"ds_write_b128 v{vw[b-1]}, {vr(src+4*i,4)} offset:{2048*(b-1) + 1024*i}" for b, src in ((2, facc1), (3, facc1 + 8)) for i in range(2)]
    for u in range(8):
        P(mfma(facc, wa[u], ob + 4 * u, facc))
        if u >= 3 and W1:
            if u == 3: P("s_nop 7")
            P(W1.pop(0))
    stamp(P, 9)
    for b, src in ((1, facc + 8),):
        for i in range(2): P(f"ds_write_b128 v{vw[b-1]}, {vr(src+4*i,4)} offset:{2048*(b-1) + 1024*i}")
    P.wait_lgkm_all()
    P("s_barrier")
    for i in range(6): P(f"ds_read_b128 {vr(ob+4*i,4)}, v{vrd} offset:{1024*i}")
    for b in range(3):
        for r in range(8): P(f"v_add_f32 v{facc+r}, v{facc+r}, v{ob+8*b+r}")
    for r in range(4): P(f"v_cvt_pk_bf16_f32 v{facc1+r}, v{facc+2*r}, v{facc+2*r+1}")
    P(f"v_permlane32_swap_b32 v{facc1}, v{facc1+2}")
    P(f"v_permlane32_swap_b32 v{facc1+1}, v{facc1+3}")
    P(f"buffer_store_dwordx4 {vr(facc1,4)}, v{vo}, s[{S_OUT}:{S_OUT+3}], s{S_OO} offen{['', ' sc1', ' nt', ' sc0 sc1'][OPT.get('omod', 0)]}")
    if STAMP["on"]:
        P.wait_vm_all(); stamp(P, 10); stamp_dump(P, lane)
        if OPT.get("dbgst") is not None:
            P(f"s_cmp_lg_u32 s2, {OPT['dbgst']}")
            P("s_cbranch_scc1 LF_end")
            P(f"s_cmp_lg_u32 s{S_W}, {OPT.get('dbgw', 0)}")
            P("s_cbranch_scc1 LF_end")
            P(f"v_subrev_u32 v{VSTAMP}, s100, v{VSTAMP}")
            P("s_mov_b64 exec, 0x7fff")
            P(f"buffer_store_dword v{VSTAMP}, v1, s[{S_DBG}:{S_DBG+3}], 0 offen offset:4")
    P("LF_end:")
    P("s_endpgm")
    name = NAME + "_kernel"
    body, I = finalize(P)
    txt = f".text\n.globl {name}\n.p2align 8\n.type {name},@function\n{name}:\n" + body + "".join(SL.txt) + "LF_last:\n    s_endpgm\n"
    vg_ = 256 if STAMP["on"] else max(V.hi, 8)
    txt += KD.format(name=name, vgpr=vg_, sgpr=102 if STAMP['on'] else 96, accum=(vg_ + 3) // 4 * 4)
    return txt, I, vg_


if __name__ == "__main__":
    out = sys.argv[1]
    STAMP["on"] = "stamp" in sys.argv
    for a in sys.argv[2:]:
        if "=" in a: k, v = a.split("="); OPT[k] = int(v)
        else: OPT[a] = True
    import asmlib; asmlib.MERGE_D = OPT.get("md", 9)
    t, I, vg_ = kernel_F()
    hdr = HEADER + f"; @launch grid=(256,1,1) block=(512,1,1) lds={LDS_BYTES}\n" + '.amdgcn_target "amdgcn-amd-amdhsa--gfx950"\n'
    open(out, "w").write(hdr + t)
    print("insts", len(I), "vgpr", vg_, "nops", sum(1 for x in I if x.kind == "nop"))
```

```python
import sys
from parts import *
OPT = {}
S_NONCE = 93
S_HP, S_KH = 30, 31
SH = [4, 5, 6]
S_FS, S_FP, S_OD, S_OL = 7, 8, 9, 10
S_FW, S_FB, S_FL, S_FL2 = 12, 13, 14, 15
S_OO, S_OL2 = 11, 18
S_PM = 16
FL_KV, FL_H = WS_FLAG, WS_FLAG + 8192
WKV_L = KV_RING
QSCR = KV_RING + 8192
FSLOT = [0, 32768, 65536, 98304]
WO_CH = [98304, 114688, 0, 32768]
SC1 = " sc1"
SPIN_MAX = 1 << 22
WSR = f"s[{S_WS}:{S_WS+3}]"


class Slow:
    def __init__(self): self.txt = []; self.n = 0
    def add(self, t): self.txt.append(t)


LOADS = {}
def emit_loads(P, l16, vsl):
    P(f"s_sub_u32 s{S_T3}, s{S_W}, 3")
    P(f"s_cmp_lt_u32 s{S_T3}, 4")
    P("s_cbranch_scc1 LF_ldq")
    P(f"s_lshr_b32 s{S_T4}, s{S_J}, 1")
    P(f"s_add_u32 s{S_T4}, s{S_T4}, s{S_W}")
    P(f"s_add_u32 s{S_T4}, s{S_T4}, 1")
    P(f"s_and_b32 s{S_T4}, s{S_T4}, 3")
    P(f"s_lshl_b32 s{S_T0}, s{S_G}, 16")
    P(f"s_lshl_b32 s{S_T4}, s{S_T4}, 4")
    ROT = OPT.get("rot", 1)
    P(f"s_and_b32 s{S_T6}, s{S_J}, 3")
    P(f"s_lshl_b32 s{S_T6}, s{S_T6}, 2")
    if not ROT: P(f"s_mov_b32 s{S_T6}, 0")
    P(f"s_add_u32 s{S_T5}, s{S_T6}, 16")
    P("s_waitcnt lgkmcnt(0)")
    mk_srd(P, S_X, 4, SZ["x"])
    P("LF_ldx1:")
    P(f"s_and_b32 s{S_T1}, s{S_T6}, 15")
    P(f"s_add_u32 s{S_T1}, s{S_T1}, s{S_T4}")
    P(f"s_mul_i32 m0, s{S_T1}, {X_STRIDE}")
    P(f"s_lshl_b32 s{S_T2}, s{S_T1}, 10")
    P(f"s_add_u32 s{S_T2}, s{S_T2}, s{S_T0}")
    P(f"s_add_u32 s{S_T6}, s{S_T6}, 1")
    P(f"buffer_load_dwordx4 v{l16}, s[{S_X}:{S_X+3}], s{S_T2} offen lds", tag="q")
    P(f"s_cmp_lg_u32 s{S_T6}, s{S_T5}")
    P("s_cbranch_scc1 LF_ldx1")
    P("s_branch LF_ldj")
    P("LF_ldq:")
    P(f"s_lshl_b32 s{S_T3}, s{S_T3}, 4")
    P(f"s_and_b32 s{S_T6}, s{S_G}, 7")
    P(f"s_lshl_b32 s{S_T6}, s{S_T6}, 1")
    if not ROT: P(f"s_mov_b32 s{S_T6}, 0")
    P(f"s_add_u32 s{S_T5}, s{S_T6}, 16")
    P(f"s_lshl_b32 s{S_T7}, s{S_J}, 7")
    P("s_waitcnt lgkmcnt(0)")
    mk_srd(P, S_WQ, 6, SZ["wq"])
    P("LF_ldq1:")
    P(f"s_and_b32 s{S_T4}, s{S_T6}, 15")
    P(f"s_add_u32 s{S_T4}, s{S_T4}, s{S_T3}")
    P(f"s_mul_i32 s{S_T0}, s{S_T4}, 171")
    P(f"s_lshr_b32 s{S_T0}, s{S_T0}, 12")
    P(f"s_lshl_b32 s{S_T1}, s{S_T4}, 2")
    P(f"s_add_u32 s{S_T0}, s{S_T0}, s{S_T1}")
    P(f"s_lshl_b32 s{S_T0}, s{S_T0}, 8")
    P(f"s_add_u32 m0, s{S_T0}, 0x{SLOT[0]:x}")
    P(f"s_lshl_b32 s{S_T2}, s{S_T4}, 13")
    P(f"s_add_u32 s{S_T2}, s{S_T2}, s{S_T7}")
    P(f"s_add_u32 s{S_T6}, s{S_T6}, 1")
    P(f"buffer_load_dwordx4 v{vsl}, s[{S_WQ}:{S_WQ+3}], s{S_T2} offen lds")
    P.I[-1].kind = "salu"
    P(f"s_cmp_lg_u32 s{S_T6}, s{S_T5}")
    P("s_cbranch_scc1 LF_ldq1")
    P("LF_ldj:")


def prologue_f(P, V, endlabel):
    if STAMP["on"]: P("s_memrealtime s[100:101]")
    P("s_cmp_ge_u32 s2, 256")
    P(f"s_cbranch_scc1 {endlabel}")
    P("s_load_dwordx16 s[4:19], s[0:1], 0")
    P("s_load_dwordx8 s[20:27], s[0:1], 64")
    P("s_load_dwordx2 s[28:29], s[0:1], 96")
    lane = V.alloc("lane"); l16 = V.alloc("l16")
    P(f"v_lshrrev_b32 v1, 6, v0")
    P(f"v_and_b32 v{lane}, 63, v0")
    P(f"v_readfirstlane_b32 s{S_W}, v1")
    P(f"v_lshlrev_b32 v{l16}, 4, v{lane}")
    P(f"s_lshr_b32 s{S_T0}, s2, 3")
    if OPT.get("jrot"): P(f"s_add_u32 s{S_J}, s{S_T0}, {OPT['jrot']}"); P(f"s_and_b32 s{S_J}, s{S_J}, 3")
    else: P(f"s_and_b32 s{S_J}, s{S_T0}, 3")
    P(f"s_and_b32 s{S_T1}, s2, 1")
    P(f"s_lshl_b32 s{S_T1}, s{S_T1}, 2")
    P(f"s_add_u32 s{S_J}, s{S_J}, s{S_T1}")
    P(f"s_and_b32 s{S_G}, s2, 6")
    P(f"s_lshl_b32 s{S_G}, s{S_G}, 2")
    P(f"s_lshr_b32 s{S_T0}, s{S_T0}, 2")
    P(f"s_add_u32 s{S_G}, s{S_G}, s{S_T0}")
    t0 = V.alloc("t0"); t1 = V.alloc("t1")
    vsl = slice_pattern(P, V, lane, t0)
    LOADS["f"] = lambda: emit_loads(P, l16, vsl)
    P(f"s_and_b32 s{S_TT}, s{S_W}, 1")
    P(f"s_lshl_b32 s{S_TILE}, s{S_G}, 1")
    P(f"s_add_u32 s{S_TILE}, s{S_TILE}, s{S_TT}")
    P(f"s_lshr_b32 s{S_HP}, s{S_W}, 1")
    P(f"s_and_b32 s{S_HP}, s{S_HP}, 1")
    P(f"s_lshr_b32 s{S_KH}, s{S_W}, 2")
    assert all((p * 171) >> 12 == p // 24 for p in range(64)) and SLOT_SZ == 3 * 8192 + 256
    return lane, l16, t0, t1, vsl


def rest_srds(P):
    P(f"s_cmp_eq_u32 s{S_TT}, 0")
    P(f"s_cselect_b32 s{S_WM}, s16, s18")
    P(f"s_cselect_b32 s{S_WM+1}, s17, s19")
    P(f"s_and_b32 s{S_WM+1}, s{S_WM+1}, 0xffff")
    P(f"s_mov_b32 s{S_WM+2}, 0x{SZ['wg']:x}")
    P(f"s_mov_b32 s{S_WM+3}, 0x20000")
    mk_srd(P, S_OUT, 24, SZ["out"])
    mk_srd(P, S_WO, 12, SZ["wo"])
    mk_srd(P, S_WD, 20, SZ["wd"])


def nonce_check(P, SL, vn, vz):
    k = SL.n; SL.n += 1
    P(f"v_readfirstlane_b32 s{S_NONCE}, v{vn}")
    P(f"s_cmp_eq_u32 s{S_NONCE}, 0")
    P(f"s_cbranch_scc1 LS{k}")
    P(f"LR{k}:")
    SL.add(f"""LS{k}:
    s_mov_b32 s{S_T7}, 0
LS{k}_l:
    s_sleep 2
    buffer_load_dword v{vn}, v{vz}, s[{S_DBG}:{S_DBG+3}], 0 offen sc1
    s_waitcnt vmcnt(0)
    v_readfirstlane_b32 s{S_NONCE}, v{vn}
    s_add_u32 s{S_T7}, s{S_T7}, 1
    s_cmp_ge_u32 s{S_T7}, 0x{SPIN_MAX:x}
    s_cbranch_scc1 LR{k}
    s_cmp_eq_u32 s{S_NONCE}, 0
    s_cbranch_scc1 LS{k}_l
    s_branch LR{k}
""")


def flag_load(vf, n, vaddr, soff):
    op = {1: "buffer_load_dword", 4: "buffer_load_dwordx4"}[n]
    return f"{op} {vr(vf,n)}, v{vaddr}, {WSR}, {soff} offen " + ["sc1", "sc1 nt", "sc0 sc1", "sc0 sc1 nt", "nt"][OPT.get("pmod", 0)]


def flag_cmp(vf, n, t):
    L = [f"v_xor_b32 v{t}, s{S_NONCE}, v{vf}"]
    for i in range(1, n):
        L += [f"v_xor_b32 v{vf+i}, s{S_NONCE}, v{vf+i}", f"v_or_b32 v{t}, v{t}, v{vf+i}"]
    L += [f"v_cmp_ne_u32 vcc, 0, v{t}"]
    return L


def spin_check(P, SL, loads, cmps, sleep=1):
    k = SL.n; SL.n += 1
    for x in cmps: P(x)
    P(f"s_cbranch_vccnz LS{k}")
    P(f"LR{k}:")
    nl = "\n    "
    SL.add(f"""LS{k}:
    s_mov_b32 s{S_T7}, 0
LS{k}_l:
    {f"s_sleep {sleep}" if sleep else "s_nop 0"}
    {nl.join(loads)}
    s_waitcnt vmcnt(0)
    {nl.join(cmps)}
    s_add_u32 s{S_T7}, s{S_T7}, 1
    s_cmp_ge_u32 s{S_T7}, 0x{SPIN_MAX:x}
    s_cbranch_scc1 LR{k}
    s_cbranch_vccnz LS{k}_l
    s_nop 1
    s_branch LR{k}
""")


def flag_store(P, vz, t, soff):
    P(f"v_mov_b32 v{t}, s{S_NONCE}")
    P("s_mov_b64 exec, 1")
    P(f"buffer_store_dword v{t}, v{vz}, {WSR}, s{soff} offen " + ["sc1", "sc0 sc1", "sc0 sc1 nt", "sc1 nt"][OPT.get("smod", 0)], tag="flag")
    P("s_mov_b64 exec, -1")


PROG = MISC + 1024
class SplitBar:
    def __init__(self, P, V, SL, lane, t0):
        self.P, self.SL, self.n = P, SL, 0
        self.va = V.alloc("sba"); self.vr = V.alloc("sbr"); self.one = V.alloc("sb1"); self.vg = V.alloc("sbg")
        P(f"s_lshl_b32 s{S_T0}, s{S_W}, 8")
        P(f"s_add_u32 s{S_T0}, s{S_T0}, 0x{PROG:x}")
        P(f"v_lshlrev_b32 v{t0}, 2, v{lane}")
        P(f"v_add_u32 v{self.va}, s{S_T0}, v{t0}")
        P(f"v_and_b32 v{t0}, 7, v{lane}")
        P(f"v_mul_u32_u24 v{t0}, 260, v{t0}")
        P(f"v_add_u32 v{self.vr}, 0x{PROG:x}, v{t0}")
        P(f"v_mov_b32 v{self.one}, 0")
        P(f"ds_write_b32 v{self.va}, v{self.one}")
        P(f"v_mov_b32 v{self.one}, 1")
    def arrive(self):
        self.n += 1
        self.P(f"ds_add_u32 v{self.va}, v{self.one}")
    def peek(self): self.P(f"ds_read_b32 v{self.vg}, v{self.vr}")
    def check(self):
        k = self.SL.n; self.SL.n += 1
        self.P(f"v_cmp_gt_u32 vcc, {self.n}, v{self.vg}")
        self.P(f"s_cbranch_vccz LR{k}")
        self.P(f"LS{k}:")
        for t in ([f"s_sleep {OPT['ssl']}"] if OPT.get("ssl") else []) + [f"ds_read_b32 v{self.vg}, v{self.vr}", "s_waitcnt lgkmcnt(0)", f"v_cmp_gt_u32 vcc, {self.n}, v{self.vg}", f"s_cbranch_vccnz LS{k}"]:
            self.P(t); self.P.I[-1].kind = "salu"; self.P.I[-1].vw = set(); self.P.I[-1].vr = set()
        self.P(f"LR{k}:")


def attn_setup(P, V, lane, l16, t0, t1):
    A = {}
    P(f"s_lshl_b32 s{S_T1}, s{S_KH}, 12")
    vk = V.alloc("vk"); vv = [V.alloc("vv0"), V.alloc("vv1")]
    P(f"s_add_u32 s{S_T1}, s{S_T1}, 0x{KV_RING:x}")
    P(f"v_add_u32 v{vk}, s{S_T1}, v{l16}")
    P(f"v_lshrrev_b32 v{t0}, 5, v{lane}")
    P(f"v_lshlrev_b32 v{t0}, 8, v{t0}")
    P(f"v_and_b32 v{t1}, 15, v{lane}")
    P(f"v_lshl_add_u32 v{t0}, v{t1}, 4, v{t0}")
    P(f"v_and_b32 v{t1}, 16, v{lane}")
    P(f"v_cmp_eq_u32 vcc, 0, v{t1}")
    P(f"s_add_u32 s{S_T1}, s{S_T1}, 2048")
    for s in range(2):
        P(f"v_mov_b32 v{t1}, s{S_T1}")
        P(f"v_add_u32 v{t1}, {8192*s}, v{t1}")
        P(f"v_mov_b32 v{vv[s]}, 0x{ONES:x}")
        P(f"v_cndmask_b32 v{vv[s]}, v{t1}, v{vv[s]}, vcc")
        P(f"v_add_u32 v{vv[s]}, v{vv[s]}, v{t0}")
    P(f"s_lshl_b32 s{S_KVOFF}, s{S_KH}, 15")
    P(f"s_lshl_b32 s{S_T1}, s{S_HP}, 16")
    P(f"s_add_u32 s{S_KVOFF}, s{S_KVOFF}, s{S_T1}")
    P(f"s_lshl_b32 s{S_T1}, s{S_TT}, 10")
    P(f"s_add_u32 s{S_KVOFF}, s{S_KVOFF}, s{S_T1}")
    P(f"s_lshl_b32 s{S_KVLDS}, s{S_W}, 10")
    P(f"s_add_u32 s{S_KVLDS}, s{S_KVLDS}, 0x{KV_RING:x}")
    A.update(vk=vk, vv=vv)
    A["S"] = [V.alloc("Sa", 16), V.alloc("Sb", 16)]
    A["O"] = [V.alloc("Oa", 16), V.alloc("Ob", 16)]
    A["fk"] = V.alloc("fk", 4); A["fv"] = [V.alloc("fv1", 4), V.alloc("fv2", 4)]
    A["q"] = V.alloc("qf", 8)
    return A


def kv_dma(P, l16, c):
    dma(P, l16, S_WS, f"s{S_T2}", (S_KVLDS, 8192 * (c & 1)), tag=f"kv{c}", mods=SC1, pre=[f"s_add_u32 s{S_T2}, s{S_KVOFF}, {2048*c}"])


def attention(P, A, l16, its, hook, prio, kvf=None):
    S, O, fk, fv = A["S"], A["O"], A["fk"], A["fv"]
    SB = OPT.get("sb", 0)
    q = [A["q"], A["q"] + 4]
    def rdK(it): P(f"ds_read_b128 {vr(fk,4)}, v{A['vk']} offset:{((it>>1)&1)*8192 + (it&1)*1024}")
    def rdV(it, half): P(f"ds_read_b128 {vr(fv[half],4)}, v{A['vv'][(it>>1)&1]} offset:{(it&1)*1024 + half*512}")
    E = lambda x, i: P(f"v_exp_f32 v{S[x]+i}, v{S[x]+i}")
    def C(x, i):
        b = S[x] + (8 if i >= 4 else 0); k = i & 3
        P(f"v_cvt_pk_bf16_f32 v{b+k}, v{b+2*k}, v{b+2*k+1}")
    for it in its:
        if it == 0:
            rdK(0); rdV(0, 0)
            hook(0, 0, "start")
            P(mfma(S[0], fk, q[0]))
        for x in range(2):
            H = lambda pos: hook(it, x, pos)
            E(x, 0); E(x, 1)
            if x == 0:
                if it > 0: P(mfma(O[1], fv[1], S[1] + 8, O[1]))
                rdV(it, 1)
            else:
                P(mfma(O[0], fv[1], S[0] + 8, O[0]))
                if SB and A["syn"]:
                    A["sb"].check(); after_sync()
            H("pv2")
            E(x, 2); E(x, 3); H("g1")
            E(x, 4); E(x, 5); H("g2")
            E(x, 6); E(x, 7)
            if x == 0: P(mfma(S[1], fk, q[1]))
            elif it < 31: P(mfma(S[0], fk, q[0]))
            H("qk")
            sig = (x == 0 and (it & 1) and it < 31)
            syn = sig or (x == 0 and hook(it, x, "sync?"))
            ORD = OPT.get("ord", 2) if syn else 0
            for i in range(4): C(x, i)
            if ORD == 0: H("g3")
            E(x, 8); E(x, 9)
            if ORD == 2: P(mfma(O[x], fv[0], S[x], None if it == 0 else O[x]))
            if ORD: H("g3")
            if syn:
                H("pre0")
                if sig: P.wait_tag(f"kv{(it>>1)+1}")
                H("pre"); P.wait_lgkm_all()
                if SB: A["sb"].arrive()
                else: P("s_barrier")
            if ORD == 1: E(x, 10); E(x, 11)
            if ORD != 2: P(mfma(O[x], fv[0], S[x], None if it == 0 else O[x]))
            p = prio(it, x)
            if p is not None: P(f"s_setprio {p}")
            def after_sync():
                if it < 31: rdK(it + 1)
                if (it & 1) and (it >> 1) + 2 < 16: (kvf or (lambda c: kv_dma(P, l16, c)))((it >> 1) + 2)
                if A["syn"]: hook(it, 0, "chk")
            if x == 0:
                A["syn"] = syn
                if not (SB and syn): after_sync()
            else:
                if it < 31: rdV(it + 1, 0)
            H("pv1")
            if ORD != 1: E(x, 10); E(x, 11)
            else: E(x, 12)
            H("g4")
            if ORD != 1: E(x, 12)
            E(x, 13); H("g5")
            E(x, 14); E(x, 15); H("g6")
            if x == 0 and SB and A["syn"]: A["sb"].peek()
            for i in range(4, 8): C(x, i)
        if it == 31: P(mfma(O[1], fv[1], S[1] + 8, O[1]))


def fin_dma_w1(P, vsl, st, slot, tag, i):
    srd, u0 = (S_WD, 8 * st) if st < 11 else (S_WO, 8 * (st - 11))
    dma(P, vsl, srd, f"s{S_T2}", (S_FL2, slot + 1024 * i), tag=tag, pre=[f"s_add_u32 s{S_T2}, s{S_FW}, 0x{(16*u0 + 8*i)*1024:x}"])


def fin_dma_b1(P, l16, st, slot, tag, t):
    P(f"s_add_u32 s{S_T2}, s{S_FB}, 0x{(t*118 + 8*st)*1024:x}")
    if st == 10:
        P(f"s_cmp_lt_u32 s{S_W}, 6")
        P(f"s_cselect_b32 s{S_T2}, s{S_T2}, 0x{OOB:x}")
    dma(P, l16, S_WS, f"s{S_T2}", (S_FL, slot + 16384 + 8192 * t), tag=tag, mods=SC1)


def kernel_F():
    P = Prog(); V = Regs(2, 255, "v"); SL = Slow()
    NP = OPT.get("np", 2)
    JIT = 16 - NP
    GPP = OPT.get("gpp", 2)
    UNI = OPT.get("uni", JIT + 2)
    HF = OPT.get("hf", UNI | 1)
    lane, l16, t0, t1, vsl = prologue_f(P, V, "LF_end")
    vz = V.alloc("vz")
    P(f"s_cmp_lg_u32 s{S_W}, 7")
    P("s_cbranch_scc1 LF_not7")
    P(f"s_lshr_b32 s{S_T4}, s{S_J}, 1")
    P(f"s_lshl_b32 s{S_T0}, s{S_G}, 16")
    P(f"s_lshl_b32 s{S_T2}, s{S_T4}, 14")
    P(f"s_add_u32 s{S_T2}, s{S_T2}, s{S_T0}")
    P(f"s_mul_i32 m0, s{S_T4}, {16*X_STRIDE}")
    P(f"s_and_b32 s{S_T3}, s{S_J}, 1")
    P(f"s_mov_b32 s{S_T5}, 0")
    P("s_waitcnt lgkmcnt(0)")
    mk_srd(P, S_X, 4, SZ["x"])
    P("LF_ldx7:")
    P(f"buffer_load_dwordx4 v{l16}, s[{S_X}:{S_X+3}], s{S_T2} offen lds", tag="c")
    P(f"s_add_u32 m0, m0, {X_STRIDE}")
    P(f"s_add_u32 s{S_T2}, s{S_T2}, 1024")
    P(f"s_add_u32 s{S_T5}, s{S_T5}, 1")
    P(f"s_cmp_lg_u32 s{S_T5}, 16")
    P("s_cbranch_scc1 LF_ldx7")
    P(f"s_cmp_eq_u32 s{S_T3}, 0")
    P(f"s_cselect_b32 s{S_WKV}, s8, s10")
    P(f"s_cselect_b32 s{S_WKV+1}, s9, s11")
    P(f"s_and_b32 s{S_WKV+1}, s{S_WKV+1}, 0xffff")
    P(f"s_mov_b32 s{S_WKV+2}, 0x{SZ['wk']:x}")
    P(f"s_mov_b32 s{S_WKV+3}, 0x20000")
    P(f"s_mov_b32 m0, 0x{WKV_L:x}")
    P(f"s_mov_b32 s{S_T5}, 0")
    P("LF_ldw7:")
    for i in range(4):
        P(f"buffer_load_dwordx4 v{l16}, s[{S_WKV}:{S_WKV+3}], s{S_T5} offen offset:{1024*i} lds")
        P.I[-1].kind = "salu"
    P(f"s_add_u32 m0, m0, 4096")
    P(f"s_add_u32 s{S_T5}, s{S_T5}, 4096")
    P(f"s_cmp_lg_u32 s{S_T5}, 16384")
    P("s_cbranch_scc1 LF_ldw7")
    P("s_barrier")
    P("LF_not7:")
    P("s_waitcnt lgkmcnt(0)")
    if OPT.get("cpf", 1):
        c = V.alloc("cpf")
        P(f"s_getpc_b64 s[{S_EX}:{S_EX+1}]")
        P("LF_pc0:")
        P(f"s_lshr_b32 s{S_T3}, s2, 3")
        P(f"s_lshl_b32 s{S_T3}, s{S_T3}, 3")
        P(f"s_add_u32 s{S_T3}, s{S_T3}, s{S_W}")
        P(f"s_lshl_b32 s{S_T3}, s{S_T3}, 8")
        P(f"v_lshlrev_b32 v{c}, 7, v{lane}")
        P(f"v_add_u32 v{c}, s{S_T3}, v{c}")
        P(f"v_min_u32 v{c}, LF_last-LF_pc0, v{c}")
        P("s_mov_b64 exec, 3")
        P(f"global_load_dword v{c}, v{c}, s[{S_EX}:{S_EX+1}]", tag="cpf")
        P("s_mov_b64 exec, -1")
    P(f"v_mov_b32 v{vz}, 0")
    mk_srd(P, S_WS, 28, SZ["ws"])
    mk_srd(P, S_DBG, 26, SZ["dbg"])
    stamp(P, 0)
    vn = V.alloc("vn")
    P(f"s_or_b32 s{S_T0}, s2, s{S_W}")
    P(f"s_cmp_lg_u32 s{S_T0}, 0")
    P("s_cbranch_scc1 LF_non")
    P.cond_begin()
    P(f"s_memrealtime s[{S_EX}:{S_EX+1}]")
    P("s_waitcnt lgkmcnt(0)")
    P(f"s_mul_i32 s{S_EX+1}, s{S_EX+1}, 0x9e3779b1")
    P(f"s_xor_b32 s{S_EX}, s{S_EX}, s{S_EX+1}")
    P(f"s_or_b32 s{S_EX}, s{S_EX}, 1")
    P(f"v_mov_b32 v{t0}, s{S_EX}")
    P("s_mov_b64 exec, 1")
    P(f"buffer_store_dword v{t0}, v{vz}, s[{S_DBG}:{S_DBG+3}], 0 offen sc1")
    P("s_mov_b64 exec, -1")
    P.cond_end()
    P("LF_non:")
    KT = 192; vx16 = 240; vw16 = 241; vst = 242; S_K5, S_K6 = S_T5, S_T6
    P(f"s_cmp_lg_u32 s{S_W}, 7")
    P("s_cbranch_scc1 LF_not7b")
    P.cond_begin()
    P(f"s_lshr_b32 s{S_T0}, s{S_J}, 1")
    P(f"s_lshl_b32 s{S_T1}, s{S_T0}, 4")
    P(f"v_and_b32 v{t0}, 15, v{lane}")
    P(f"v_add_u32 v{t1}, s{S_T1}, v{t0}")
    P(f"v_mul_u32_u24 v{vx16}, {X_STRIDE}, v{t1}")
    P(f"v_lshrrev_b32 v{t1}, 4, v{lane}")
    P(f"v_lshl_add_u32 v{vx16}, v{t1}, 4, v{vx16}")
    P(f"v_lshlrev_b32 v{vw16}, 8, v{t1}")
    P(f"v_lshl_add_u32 v{vw16}, v{t0}, 3, v{vw16}")
    P(f"v_add_u32 v{vw16}, 0x{WKV_L:x}, v{vw16}")
    P(f"s_and_b32 s{S_K6}, s{S_J}, 1")
    P(f"s_cmp_eq_u32 s{S_K6}, 0")
    P(f"s_cselect_b32 s{S_T3}, 9, 8")
    P(f"s_cselect_b32 s{S_T4}, 8, 9")
    P(f"s_cselect_b32 s{S_K5}, 0x{WS_KF:x}, 0x{WS_VF:x}")
    P(f"v_lshlrev_b32 v{vst}, 4, v{t0}")
    P(f"v_lshrrev_b32 v{t0}, 1, v{t1}")
    P(f"v_lshl_add_u32 v{vst}, v{t0}, 3, v{vst}")
    P(f"v_and_b32 v{t0}, 1, v{t1}")
    P(f"v_lshlrev_b32 v{t0}, s{S_T3}, v{t0}")
    P(f"v_add_u32 v{vst}, v{vst}, v{t0}")
    P(f"s_and_b32 s{S_T1}, s{S_T0}, 1")
    P(f"s_lshl_b32 s{S_T1}, s{S_T1}, s{S_T4}")
    P(f"s_add_u32 s{S_K5}, s{S_K5}, s{S_T1}")
    P(f"s_lshr_b32 s{S_T0}, s{S_T0}, 1")
    P(f"s_lshl_b32 s{S_T1}, s{S_G}, 1")
    P(f"s_add_u32 s{S_T0}, s{S_T0}, s{S_T1}")
    P(f"s_lshl_b32 s{S_T0}, s{S_T0}, 10")
    P(f"s_add_u32 s{S_K5}, s{S_K5}, s{S_T0}")
    P("s_waitcnt vmcnt(0)")
    P(f"buffer_load_dword v{vn}, v{vz}, s[{S_DBG}:{S_DBG+3}], 0 offen sc1")
    def kv16(which):
        d = KT
        xb = [(KT+16) + 4 * i for i in range(4)]; wb = [(KT+32) + 4 * i for i in range(4)]
        def ld(ks):
            P(f"ds_read_b128 {vr(xb[ks%4],4)}, v{vx16} offset:{ks*64}")
            P(f"ds_read_b64_tr_b16 {vr(wb[ks%4],2)}, v{vw16} offset:{ks*1024}")
            P(f"ds_read_b64_tr_b16 {vr(wb[ks%4]+2,2)}, v{vw16} offset:{ks*1024+128}")
        for ks in range(3): ld(ks)
        for ks in range(16):
            a, b = (wb[ks%4], xb[ks%4]) if which == 0 else (xb[ks%4], wb[ks%4])
            P(f"v_mfma_f32_16x16x32_bf16 {vr(d,4)}, {vr(a,4)}, {vr(b,4)}, {vr(d,4) if ks else 0}")
            if ks + 3 < 16: ld(ks + 3)
        if which == 0:
            P(f"s_mov_b32 s{S_T0}, {hexf(QK_SCALE)}")
            for r in range(4): P(f"v_mul_f32 v{d+r}, s{S_T0}, v{d+r}")
    P(f"s_cmp_eq_u32 s{S_K6}, 1")
    P("s_cbranch_scc1 LF_vch")
    P.cond_begin(); kv16(0); P.cond_end()
    P("s_branch LF_kvj")
    P("LF_vch:")
    P.cond_begin(); kv16(1); P.cond_end()
    P("LF_kvj:")
    for r in range(2): P(f"v_cvt_pk_bf16_f32 v{KT+4+r}, v{KT+2*r}, v{KT+2*r+1}")
    P(f"buffer_store_dwordx2 {vr(KT+4,2)}, v{vst}, {WSR}, s{S_K5} offen sc1")
    P(f"s_lshl_b32 s{S_T0}, s{S_G}, 3")
    P(f"s_add_u32 s{S_T0}, s{S_T0}, s{S_J}")
    P(f"s_lshl_b32 s{S_T0}, s{S_T0}, 2")
    P(f"s_add_u32 s{S_T0}, s{S_T0}, 0x{FL_KV:x}")
    P("s_waitcnt vmcnt(0)")
    nonce_check(P, SL, vn, vz)
    flag_store(P, vz, t0, S_T0)
    P.cond_end()
    P("s_branch LF_b0j")
    P("LF_not7b:")
    P("s_barrier")
    LOADS["f"]()
    P("LF_b0j:")
    stamp(P, 1)
    rest_srds(P)
    mk_srd(P, S_GW, 22, SZ["gw"])
    P(f"s_mov_b32 s{S_C1}, {hexf(2.0**120)}")
    A = attn_setup(P, V, lane, l16, t0, t1)
    qf = A["q"]; O = A["O"]; S = A["S"]
    A["sb"] = SplitBar(P, V, SL, lane, t0) if OPT.get("sb", 0) else type("X", (), dict(n=0))()
    vfl = V.alloc("vfl", 4)
    P(f"s_lshl_b32 s{S_T0}, s{S_HP}, 1")
    P(f"s_add_u32 s{S_T0}, s{S_T0}, s{S_KH}")
    P(f"s_lshl_b32 s{S_T1}, s{S_J}, 2")
    P(f"s_add_u32 s{S_T0}, s{S_T0}, s{S_T1}")
    P(f"s_mul_i32 s{S_T1}, s{S_TILE}, 118")
    P(f"s_add_u32 s{S_T0}, s{S_T0}, s{S_T1}")
    P(f"s_lshl_b32 s{S_T0}, s{S_T0}, 10")
    P(f"s_add_u32 s{S_OD}, s{S_T0}, 0x{WS_OH + 86*1024:x}")
    def poison():
        for r in range(4): P(f"v_mov_b32 v{O[0]+r}, -1")
        P(f"buffer_store_dwordx4 {vr(O[0],4)}, v{l16}, {WSR}, s{S_OD} offen sc1", tag="poison")
    P(f"s_lshr_b32 s{S_T0}, s{S_W}, 1")
    P(f"s_lshl_b32 s{S_T0}, s{S_T0}, 3")
    P(f"s_add_u32 s{S_T0}, s{S_T0}, s{S_T1}")
    P(f"s_lshl_b32 s{S_T0}, s{S_T0}, 10")
    P(f"s_add_u32 s{S_OL}, s{S_T0}, 0x{WS_OH + 86*1024:x}")
    P(f"s_lshl_b32 s{S_FP}, s{S_G}, 10")
    P(f"s_lshl_b32 s{S_FS}, s{S_J}, {5 if OPT.get('hsp', 1) else 3}")
    P(f"s_add_u32 s{S_FS}, s{S_FS}, s{S_W}")
    P(f"s_lshl_b32 s{S_FS}, s{S_FS}, 2")
    P(f"s_add_u32 s{S_FS}, s{S_FS}, s{S_FP}")
    P(f"s_add_u32 s{S_FS}, s{S_FS}, 0x{FL_H:x}")
    P(f"s_add_u32 s{S_FP}, s{S_FP}, 0x{FL_H:x}")
    P(f"s_lshl_b32 s{S_FW}, s{S_W}, 14")
    P(f"s_lshl_b32 s{S_T1}, s{S_J}, 7")
    P(f"s_add_u32 s{S_FW}, s{S_FW}, s{S_T1}")
    P(f"s_lshl_b32 s{S_FL2}, s{S_W}, 11")
    P(f"s_mul_i32 s{S_U0}, s{S_J}, 11")
    P(f"s_min_u32 s{S_U0}, s{S_U0}, 76")
    P(f"s_cmp_ge_u32 s{S_J}, 6")
    P(f"s_cselect_b32 s{S_NU}, 10, 11")
    vxa = xfrag_addr(P, V, "vxa", lane, t0, S_TT)
    vq = V.alloc("vq")
    P(f"s_and_b32 s{S_T0}, s{S_W}, 3")
    P(f"s_lshl_b32 s{S_T1}, s{S_T0}, 11")
    P(f"s_add_u32 s{S_T1}, s{S_T1}, 0x{QSCR:x}")
    P(f"v_add_u32 v{vq}, s{S_T1}, v{l16}")
    acc = [[V.alloc(f"acc{i}{t}", 16) for t in range(2)] for i in range(3)]
    fx = [[V.alloc(f"fx{b}{t}", 4) for t in range(2)] for b in range(2)]
    fw = [[V.alloc(f"fw{b}{i}", 4) for i in range(3)] for b in range(2)]
    P(f"s_cmp_lg_u32 s{S_KH}, 0")
    P("s_cbranch_scc1 LF_light")

    def sigstamp(it, k):
        if OPT.get("sig"):
            P(f"s_memtime s[98:99]"); P("s_waitcnt lgkmcnt(0)"); P(f"v_writelane_b32 v{vsig}, s98, {2*it+k}")
    vsig = V.alloc("vsig") if OPT.get("sig") else None

    P.cond_begin()
    vx0 = V.alloc("vx0")
    P(f"s_mul_i32 s{S_T0}, s{S_TT}, {32*X_STRIDE}")
    P(f"v_subrev_u32 v{vx0}, s{S_T0}, v{vxa}")
    vtn = tr_slice_addr(P, V, "vtn", lane, t0, t1, SLOT[0], S_HP, 8)
    P(f"s_lshl_b32 s{S_T4}, s{S_W}, 1")
    wtr = w_tr_addrs(P, V, lane, t0, t1, s_w=S_T4)
    P(f"s_mul_i32 s{S_T0}, s{S_W}, 3")
    P(f"s_mul_i32 s{S_T1}, s{S_G}, 236")
    P(f"s_add_u32 s{S_T1}, s{S_T1}, s{S_U0}")
    for i in range(3):
        P(f"s_add_u32 s{S_T2}, s{S_T0}, {i}")
        P(f"s_add_u32 s{SH[i]}, s{S_T1}, s{S_T2}")
        P(f"s_lshl_b32 s{SH[i]}, s{SH[i]}, 10")
        P(f"s_add_u32 s{SH[i]}, s{SH[i]}, 0x{WS_OH:x}")
        P(f"s_cmp_lt_u32 s{S_T2}, s{S_NU}")
        P(f"s_cselect_b32 s{SH[i]}, s{SH[i]}, 0x{OOB:x}")
    vpf = V.alloc("vpf"); vpd = V.alloc("vpd"); vpw = V.alloc("vpw")
    P(f"v_bfe_u32 v{t0}, v{lane}, 4, 1")
    P(f"v_lshrrev_b32 v{t1}, 5, v{lane}")
    P(f"v_lshl_add_u32 v{t0}, v{t1}, 7, v{t0}")
    P(f"v_mul_u32_u24 v{vpf}, 2752, v{t0}")
    P(f"v_and_b32 v{t0}, 15, v{lane}")
    P(f"v_lshl_add_u32 v{vpf}, v{t0}, 7, v{vpf}")
    P(f"v_cmp_gt_u32 vcc, 12, v{t0}")
    P(f"v_mov_b32 v{t1}, 0x{OOB:x}")
    P(f"v_cndmask_b32 v{vpf}, v{t1}, v{vpf}, vcc")
    P(f"s_lshr_b32 s{S_T0}, s2, 3")
    P(f"s_lshl_b32 s{S_T0}, s{S_T0}, 1")
    P(f"s_add_u32 s{S_T0}, s{S_T0}, s{S_HP}")
    P(f"s_mul_i32 s{S_T0}, s{S_T0}, {2*2752}")
    P(f"s_and_b32 s{S_T1}, s2, 1")
    P(f"s_mul_i32 s{S_T1}, s{S_T1}, {44*32}")
    P(f"s_add_u32 s{S_T6}, s{S_T0}, s{S_T1}")
    def pf(blk, half):
        P(f"s_add_u32 s{S_T4}, s{S_T6}, {128*2752*blk}")
        if half: P("s_mov_b64 exec, 0xffffffff")
        P(f"buffer_load_dword v{vpd}, v{vpf}, s[{S_WM}:{S_WM+3}], s{S_T4} offen", tag="pf")
        P.I[-1].vw = set()
        if half: P("s_mov_b64 exec, -1")
    PF = OPT.get("pf", 5)
    if PF & 4: pf(0, True)
    S_PFS = S_WKV
    P(f"s_lshr_b32 s{S_T0}, s2, 3")
    P(f"s_lshl_b32 s{S_T0}, s{S_T0}, 2")
    P(f"s_add_u32 s{S_T0}, s{S_T0}, s{S_W}")
    P(f"s_cmp_lt_u32 s{S_T0}, 86")
    P(f"s_cselect_b32 s{S_PFS}, s{S_WD}, s{S_WO}")
    P(f"s_cselect_b32 s{S_PFS+1}, s{S_WD+1}, s{S_WO+1}")
    P(f"s_cselect_b32 s{S_PFS+2}, s{S_WD+2}, s{S_WO+2}")
    P(f"s_cselect_b32 s{S_T1}, 0, 86")
    P(f"s_mov_b32 s{S_PFS+3}, 0x20000")
    P(f"s_sub_u32 s{S_T0}, s{S_T0}, s{S_T1}")
    P(f"s_lshl_b32 s{S_T0}, s{S_T0}, 14")
    P(f"s_and_b32 s{S_T1}, s2, 1")
    P(f"s_lshl_b32 s{S_T1}, s{S_T1}, 9")
    P(f"s_add_u32 s{S_T0}, s{S_T0}, s{S_T1}")
    P(f"v_lshrrev_b32 v{t0}, 2, v{lane}")
    P(f"v_lshlrev_b32 v{t0}, 10, v{t0}")
    P(f"v_and_b32 v{t1}, 3, v{lane}")
    P(f"v_lshl_add_u32 v{t0}, v{t1}, 7, v{t0}")
    P(f"v_add_u32 v{vpw}, s{S_T0}, v{t0}")
    P.wait_tag("q")
    P("s_barrier")
    stamp(P, 2)
    if PF & 2: pf(0, True)
    QD = 6
    xb = [acc[1][0] + 4 * i for i in range(QD)]; wb = [acc[2][0] + 4 * i for i in range(QD)]
    assert acc[1][1] == acc[1][0] + 16 and acc[2][1] == acc[2][0] + 16
    def q_loads(ks):
        o = SLOT[ks // 12] - SLOT[0] + (ks % 12) * 2048
        P(f"ds_read_b128 {vr(xb[ks%QD],4)}, v{vxa} offset:{ks*32}")
        P(f"ds_read_b64_tr_b16 {vr(wb[ks%QD],2)}, v{vtn} offset:{o}")
        P(f"ds_read_b64_tr_b16 {vr(wb[ks%QD]+2,2)}, v{vtn} offset:{o+512}")
    for ks in range(QD - 1): q_loads(ks)
    for ks in range(32):
        P(mfma(acc[0][0], wb[ks%QD], xb[ks%QD], acc[0][0] if ks else None))
        if ks in (11, 23):
            stamp(P, 11 if ks == 11 else 13)
            P("s_barrier")
        if ks + QD - 1 < 32: q_loads(ks + QD - 1)
        if ks == OPT.get("pk", 20):
            P(f"s_mov_b32 s{S_T5}, 0x{FL_KV:x}")
            P(f"buffer_load_dword v{vn}, v{vz}, s[{S_DBG}:{S_DBG+3}], 0 offen sc1")
            P(flag_load(vfl, 4, l16, f"s{S_T5}"))
    for r in range(8): P(f"v_cvt_pk_bf16_f32 v{qf+r}, v{acc[0][0]+2*r}, v{acc[0][0]+2*r+1}")
    P(f"ds_write_b128 v{vq}, {vr(qf,4)}")
    P(f"ds_write_b128 v{vq}, {vr(qf+4,4)} offset:1024")
    nonce_check(P, SL, vn, vz)
    spin_check(P, SL, [flag_load(vfl, 4, l16, f"s{S_T5}")], flag_cmp(vfl, 4, t0), sleep=OPT.get("ksl", 6))
    kv_dma(P, l16, 0)
    P(f"s_add_u32 s{S_T2}, s{S_T2}, 32768")
    dma(P, l16, S_WS, f"s{S_T2}", (S_KVLDS, 4096), tag="kv0", mods=SC1)
    def gu_reads(ks):
        s, kk = ks // 2, ks % 2
        so = SLOT[s % 3] - SLOT[0] + kk * 6144
        L = [f"ds_read_b128 {vr(fx[ks%2][0],4)}, v{vx0} offset:{ks*32}"]
        for i in range(3):
            f = fw[ks % 2][i]
            L += [f"ds_read_b64_tr_b16 {vr(f,2)}, v{wtr[i]} offset:{so}", f"ds_read_b64_tr_b16 {vr(f+2,2)}, v{wtr[i]} offset:{so+1536}"]
            if i == 0: L.append(f"ds_read_b128 {vr(fx[ks%2][1],4)}, v{vx0} offset:{ks*32 + 32*X_STRIDE}")
        return L
    def gu_groups(ks, late=False):
        R = gu_reads(ks + 1) if ks < 31 else []
        if OPT.get("abl_hds") and ks >= 2 * NP - 1: R = []
        G = []
        for m in range(6):
            i, t = m // 2, m % 2
            mm = [mfma(acc[i][t], fw[ks % 2][i], fx[ks % 2][t], acc[i][t] if ks else None)]
            if OPT.get("abl_hm") and ks >= 2 * NP - 1: mm = []
            G.append(mm + (R[2 * m: 2 * m + 2] if not late else ([] if m < 3 else R[3 * (m - 3): 3 * (m - 3) + 3])))
        return G
    P.wait_lgkm_all()
    stamp(P, 14)
    P("s_barrier")
    stamp(P, 3)
    for x in gu_reads(0): P(x)
    poison()
    PFI = OPT.get("pfi", 0)
    for ks in range(2 * NP - 1):
        if ks % 2 == 1:
            P.wait_lgkm_all(); P("s_barrier")
        for g in gu_groups(ks):
            for x in g: P(x)
    P.wait_tag("kv0"); P.wait_lgkm_all(); P("s_barrier")
    stamp(P, 4)
    gq = []
    tmp = fx[0][0]; cst = fx[1][0]
    assert fx[0][1] == fx[0][0] + 4
    gel = []
    def load_window(k):
        n = 2 * (NP + k) - 1
        assert not gq
        gq.extend(gu_groups(n, late=(k > 0 and OPT.get("sb", 0))))
        if n < 31: gq.extend(gu_groups(n + 1))
    def hookH(it, x, pos):
        if pos == "sync?": return 1 <= it <= JIT
        if pos == "pre0": sigstamp(it, 0); return
        if pos == "pre": sigstamp(it, 1); return
        if pos == "start": load_window(0); return
        midprio(it, x, pos)
        if pos == "pv2" and x == 1 and PF & 1:
            if it == PFI: pf(1, True)
            if it == PFI + 2: pf(2, True)
            if it == PFI + 5: pf(3, True)
        if pos == "pv2" and x == 1 and OPT.get("wpf", 1) and it in (7, 8, 9, 10):
            k = it - 7
            P(f"s_cmp_lg_u32 s{S_W}, {k}")
            P(f"s_cbranch_scc1 LF_wp{k}")
            P(f"buffer_load_dword v{vpd}, v{vpw}, s[{S_PFS}:{S_PFS+3}], 0 offen")
            P.I[-1].kind = "salu"; P.I[-1].vw = set()
            P(f"LF_wp{k}:")
        if pos == "pv1" and x == 0 and 1 <= it <= JIT: load_window(it)
        if pos in ("g1", "g2", "g3", "g4", "g5", "g6"):
            if gq and not (it == 0 and pos in ("g1", "g3", "g5") and False):
                for t in gq.pop(0): P(t)
                if not gq and it == JIT and x == 1:
                    L = [f"v_mov_b32 v{cst}, {hexf(GELU_C1)}", f"v_mov_b32 v{cst+1}, {hexf(GELU_C1)}",
                         f"v_mov_b32 v{cst+2}, {hexf(GELU_C2)}", f"v_mov_b32 v{cst+3}, {hexf(GELU_C2)}"]
                    k = 0
                    for i in range(3):
                        for t in range(2):
                            d = fw[k % 2][k // 2]; k += 1
                            L += gelu_tile_pk(acc[i][t], d, tmp, cst)
                            if t == 1: L.append(f"s_add_u32 s{SH[i]}, s{SH[i]}, {118*1024}")
                            L.append(f"buffer_store_dwordx4 {vr(d,4)}, v{l16}, {WSR}, s{SH[i]} offen sc1")
                    ns = 3 + 12 * (UNI - JIT - 1)
                    n = (len(L) + ns - 1) // ns
                    gel.extend(L[i:i + n] for i in range(0, len(L), n))
            elif gel:
                for t in gel.pop(0): P(t, tag="hst" if "store" in t else None)
    PM = OPT.get("pm", 5)
    def prioH(it, x):
        if PM == 1: return 3 if (it == 0 and x == 0) else None
        if PM == 3: return 3 - 2 * x
        if PM == 5: return (3 - 2 * x) if it < JIT else 3
        if PM == 6: return 3 if it >= JIT else None
        return None
    def prioL(it, x):
        if PM in (2, 6): return 1 if (it == 0 and x == 0) else None
        if PM == 3: return 3 - 2 * x
        if PM == 5: return (3 - 2 * x) if it < JIT else 0
        return None
    def midprio(it, x, pos):
        if PM in (3, 5) and pos == "pv2" and (PM == 3 or it <= JIT): P(f"s_setprio {2 * x}")
    attention(P, A, l16, range(0, UNI), hookH, prioH, kvf=lambda c: None)
    nsb = A["sb"].n; A["sb"].n = 0
    assert not gq and not gel, (len(gq), len(gel))
    P.cond_end(keep=True)
    P("s_branch LF_join")
    for n in ("vx0", "vtn", "wtr0", "wtr1", "wtr2", "vpf", "vpw"): V.release(n)

    P("LF_light:")
    P.cond_begin()
    pats = w_patterns(P, V, lane, t0, t1)
    P(f"s_lshl_b32 s{S_T0}, s{S_HP}, 1")
    P(f"s_mul_i32 s{S_WOFF}, s{S_T0}, {8*2752}")
    P(f"s_lshl_b32 s{S_T1}, s{S_U0}, 5")
    P(f"s_add_u32 s{S_WOFF}, s{S_WOFF}, s{S_T1}")
    P(f"s_mul_i32 s{S_WLDS}, s{S_T0}, 3072")
    P(f"s_mul_i32 s{S_T1}, s{S_TT}, {UP_OFF}")
    P(f"s_add_u32 s{S_WLDS}, s{S_WLDS}, s{S_T1}")
    inattn = dict(on=False)
    P(f"s_add_u32 s{S_WOFF}, s{S_WOFF}, 0")
    P(f"v_subrev_u32 v{pats[1]}, 1024, v{pats[1]}")
    P(f"v_subrev_u32 v{pats[2]}, 2048, v{pats[2]}")
    def w_dma1(s, k):
        g, i = k // 3, k % 3
        solo = not OPT.get("wm0", 1) or inattn["on"]
        if i == 0 or solo:
            dma(P, pats[i], S_WM, f"s{S_T3}", (S_WLDS, SLOT[s % 3] + 3072 * g), offset=1024 * i, tag=f"w{s}",
                pre=[f"s_add_u32 s{S_T3}, s{S_WOFF}, 0x{(32*s + 8*g)*2752:x}"] if i == 0 else None)
        else:
            P(f"buffer_load_dwordx4 v{pats[i]}, s[{S_WM}:{S_WM+3}], s{S_T3} offen offset:{1024*i} lds", tag=f"w{s}")
    def w_dma6(s):
        for k in range(6): w_dma1(s, k)
    vgw = acc[0][1]
    P(f"v_lshrrev_b32 v{t0}, 5, v{lane}")
    P(f"v_lshlrev_b32 v{vgw}, 4, v{t0}")
    P(f"s_lshl_b32 s{S_T0}, s{S_HP}, 9")
    P(f"v_add_u32 v{vxa}, s{S_T0}, v{vxa}")
    P(f"s_add_u32 s{S_T0}, s{S_T0}, 0x{GWL:x}")
    P(f"v_add_u32 v{vgw}, s{S_T0}, v{vgw}")
    P(f"s_lshl_b32 s{S_T0}, s{S_W}, 8")
    P(f"s_add_u32 s{S_T0}, s{S_T0}, 0x{ONES - 1024:x}")
    P(f"v_lshlrev_b32 v{t0}, 2, v{lane}")
    P(f"v_add_u32 v{t0}, s{S_T0}, v{t0}")
    P(f"v_mov_b32 v{t1}, 0x3f803f80")
    P(f"v_lshrrev_b32 v1, 2, v{lane}")
    P(f"v_and_b32 v1, 11, v1")
    P(f"v_cmp_eq_u32 vcc, 0, v1")
    P(f"v_cndmask_b32 v{t1}, 0, v{t1}, vcc")
    P(f"ds_write_b32 v{t0}, v{t1}")
    P(f"ds_write_b32 v{t0}, v{t1} offset:1024")
    dma(P, l16, S_GW, "0", (None, GWL), tag="q")
    P.wait_tag("q")
    P("s_barrier")
    stamp(P, 2)
    stamp(P, 11)
    P("s_barrier")
    w_dma6(0)
    stamp(P, 13)
    P("s_barrier")
    w_dma6(1)
    poison()
    za = acc[0][0]; zx = [acc[1][0] + 4 * i for i in range(4)]; zg = [acc[2][0] + 4 * i for i in range(4)]
    def zjob():
        def zld(k):
            P(f"ds_read_b128 {vr(zx[k%4],4)}, v{vxa} offset:{k*32}")
            P(f"ds_read_b128 {vr(zg[k%4],4)}, v{vgw} offset:{k*32}")
        for k in range(3): zld(k)
        if OPT.get("zm", 0):
            for k in range(16):
                P(mfma(za, zg[k % 4], zx[k % 4], za if k else None))
                if k + 3 < 16: zld(k + 3)
            P(f"v_mul_f32 v{za}, 0.5, v{za}")
        else:
            for r in range(4): P(f"v_mov_b32 v{za+r}, 0")
            for k in range(16):
                for r in range(4): P(f"v_dot2c_f32_bf16 v{za+r}, v{zx[k%4]+r}, v{zg[k%4]+r}")
                if k + 3 < 16: zld(k + 3)
            P("s_nop 2")
            P(f"v_add_f32 v{za}, v{za}, v{za+1}")
            P(f"v_add_f32 v{za+2}, v{za+2}, v{za+3}")
            P(f"v_add_f32 v{za}, v{za}, v{za+2}")
        P(f"s_and_b32 s{S_T0}, s{S_W}, 3")
        P(f"s_lshl_b32 s{S_T0}, s{S_T0}, 8")
        P(f"s_add_u32 s{S_T0}, s{S_T0}, 0x{MISC:x}")
        P(f"v_lshlrev_b32 v{t0}, 2, v{lane}")
        P(f"v_add_u32 v{t0}, s{S_T0}, v{t0}")
        P(f"ds_write_b32 v{t0}, v{za}")
    P(f"s_mov_b32 s{S_T6}, 0x{FL_KV:x}")
    def kv_both(c):
        kv_dma(P, l16, c)
        dma(P, l16, S_WS, f"s{S_T2}", (S_KVLDS, (8192 * (c & 1) - 4096) & 0xffffffff), tag=f"kv{c}", mods=SC1, pre=[f"s_sub_u32 s{S_T2}, s{S_T2}, 32768"])
    def poll_issue():
        P(f"buffer_load_dword v{vn}, v{vz}, s[{S_DBG}:{S_DBG+3}], 0 offen sc1")
        P(flag_load(vfl, 4, l16, f"s{S_T6}"))
    for s in range(0, NP + 1):
        P.wait_tag(f"w{s}")
        P.wait_lgkm_all()
        if s == 0: stamp(P, 14)
        P("s_barrier")
        if s == 0:
            stamp(P, 3)
            P(f"ds_read_b128 {vr(qf,4)}, v{vq} offset:1024")
            P(f"ds_read_b128 {vr(qf+4,4)}, v{vq}")
        if s == NP: kv_both(1)
        if s < NP: w_dma6(s + 2)
        if s == 0: P(f"buffer_load_dword v{vn}, v{vz}, s[{S_DBG}:{S_DBG+3}], 0 offen sc1")
        if s == min(OPT.get("zs", 0), NP - 1) and OPT.get("zs", 0) < 9: zjob()
    assert NP >= 1
    stamp(P, 4)
    dq = []; zq = []
    if OPT.get("zs", 0) == 9:
        P_main = P; P = Prog(); zjob(); ZL = [x.text for x in P.I]; P = P_main
        cur = []
        for t in ZL:
            if t.startswith("v_mfma") and cur: zq.append(cur); cur = []
            cur.append(t)
        k = next(i for i, t in enumerate(cur) if t.startswith("v_mul"))
        zq += [cur[:k], [], cur[k:]]
    def hookL(it, x, pos):
        if pos == "g5" and zq:
            for t in zq.pop(0): P(t)
        if pos == "sync?": return 1 <= it <= JIT
        if pos == "pre0": sigstamp(it, 0); return
        if pos == "pre":
            if NP + it < 16: P.wait_tag(f"w{NP+it}")
            sigstamp(it, 1); return
        if (pos == "start" or pos == "chk") and NP + it + 2 < 16:
            assert not dq
            for k in range(0 if OPT.get("abl_ldma") else 6): dq.append(lambda s=NP + it + 2, k=k: w_dma1(s, k))
        midprio(it, x, pos)
        if (pos in ("pv2", "qk", "pv1") or (pos == "g5" and x == 1 and OPT.get("sb", 0))) and dq: dq.pop(0)()
    attention(P, A, l16, range(0, UNI), hookL, prioL, kvf=kv_both)
    assert not zq
    assert A["sb"].n == nsb
    assert not dq
    P.cond_end(keep=True)
    P("LF_join:")
    P.join()
    for n in ["wpat0", "wpat1", "wpat2", "vxa", "vq"] + [f"acc{i}{t}" for i in range(3) for t in range(2)] + \
             [f"fx{b}{t}" for b in range(2) for t in range(2)] + [f"fw{b}{i}" for b in range(2) for i in range(3)]: V.release(n)
    stamp(P, 5)

    facc = V.alloc("facc", 16); facc1 = V.alloc("facc1", 16); fa = V.alloc("ffa", 8)
    NB = OPT.get("nb", 6)
    hb = [V.alloc(f"hb{i}", 4) for i in range(NB)]; fb = hb[0]
    vl4 = V.alloc("vl4"); vg = V.alloc("vg"); zt = V.alloc("zt", 2)
    va0 = tr_slice_addr(P, V, "fa0", lane, t0, t1, 0, S_KH, 4)
    vA = [[va0, V.alloc("fa0h")], [V.alloc("fa1"), V.alloc("fa1h")]]
    P(f"s_lshl_b32 s{S_T1}, s{S_HP}, 5")
    P(f"v_xor_b32 v{va0}, s{S_T1}, v{va0}")
    P(f"s_lshr_b32 s{S_T0}, s{S_W}, 1")
    P(f"s_lshl_b32 s{S_T1}, s{S_T0}, 11")
    P(f"v_add_u32 v{va0}, s{S_T1}, v{va0}")
    P(f"v_xor_b32 v{vA[1][0]}, 64, v{va0}")
    P(f"v_add_u32 v{vA[0][1]}, 0x10000, v{va0}")
    P(f"v_add_u32 v{vA[1][1]}, 0x10000, v{vA[1][0]}")
    P(f"s_mul_i32 s{S_FB}, s{S_TILE}, 118")
    P(f"s_add_u32 s{S_FB}, s{S_FB}, s{S_T0}")
    P(f"s_lshl_b32 s{S_FB}, s{S_FB}, 10")
    P(f"s_add_u32 s{S_FB}, s{S_FB}, 0x{WS_OH:x}")
    P(f"v_lshlrev_b32 v{vl4}, 2, v{lane}")
    vhf = V.alloc("vhf")
    P(f"v_lshrrev_b32 v{t0}, 3, v{lane}")
    P(f"v_mul_u32_u24 v{t0}, {96 if OPT.get('hsp', 1) else 0}, v{t0}")
    P(f"v_add_u32 v{vhf}, v{t0}, v{vl4}")
    P(f"s_lshl_b32 s{S_T0}, s{S_TT}, 8")
    P(f"s_add_u32 s{S_T0}, s{S_T0}, 0x{MISC:x}")
    P(f"v_add_u32 v{t0}, s{S_T0}, v{vl4}")
    P(f"ds_read_b32 v{zt}, v{t0}")
    P(f"ds_read_b32 v{zt+1}, v{t0} offset:512")
    P(f"v_add_f32 v{zt}, v{zt}, v{zt+1}")
    P(f"v_mov_b32 v{zt+1}, v{zt}")
    P(f"v_permlane32_swap_b32 v{zt}, v{zt+1}")
    P(f"v_add_f32 v{zt}, v{zt}, v{zt+1}")
    P(f"v_mul_f32 v{t0}, {hexf(-LOG2E)}, v{zt}")
    P(f"v_exp_f32 v{t0}, v{t0}")
    P(f"v_add_f32 v{t0}, 1.0, v{t0}")
    P(f"v_rcp_f32 v{vg}, v{t0}")
    V.release("zt")
    vw = [V.alloc(f"vw{i}") for i in range(3)]; vrd = V.alloc("vrd"); vo = V.alloc("vo")
    def sbase(dst, w):
        P(f"s_mul_i32 s{S_T1}, s{w}, 6144")
        P(f"v_add_u32 v{dst}, s{S_T1}, v{l16}")
    sbase(vrd, S_W)
    for b in range(1, 4):
        P(f"s_xor_b32 s{S_T0}, s{S_W}, {b << 1}")
        sbase(vw[b - 1], S_T0)
    P(f"v_and_b32 v{vo}, 31, v{lane}")
    P(f"v_lshlrev_b32 v{vo}, 10, v{vo}")
    P(f"v_lshrrev_b32 v{t1}, 5, v{lane}")
    P(f"v_lshl_add_u32 v{vo}, v{t1}, 4, v{vo}")
    P(f"s_lshl_b32 s{S_OO}, s{S_TILE}, 15")
    P(f"s_lshl_b32 s{S_T1}, s{S_J}, 7")
    P(f"s_add_u32 s{S_OO}, s{S_OO}, s{S_T1}")
    P(f"s_lshl_b32 s{S_T1}, s{S_KH}, 6")
    P(f"s_add_u32 s{S_OO}, s{S_OO}, s{S_T1}")
    P(f"s_lshl_b32 s{S_T1}, s{S_HP}, 5")
    P(f"s_add_u32 s{S_OO}, s{S_OO}, s{S_T1}")
    vp = V.alloc("vp"); vpa = V.alloc("vpa")
    P(f"v_lshlrev_b32 v{vpa}, 10, v{lane}")
    vt0 = V.alloc("vt0"); vt1 = V.alloc("vt1")
    P(f"s_lshr_b32 s{S_T1}, s{S_W}, 1")
    P(f"s_mul_i32 s{S_T1}, s{S_T1}, {16384 - 2048}")
    P(f"s_add_u32 s{S_T1}, s{S_T1}, {3*16384}")
    P(f"v_add_u32 v{vt0}, s{S_T1}, v{vA[0][0]}")
    P(f"v_add_u32 v{vt1}, s{S_T1}, v{vA[1][0]}")
    va = V.alloc("cva"); vb = V.alloc("cvb"); fb = V.alloc("cvon")
    P(f"s_mul_i32 s{S_T0}, s{S_W}, 3072")
    P(f"s_add_u32 s{S_T0}, s{S_T0}, 114688")
    P(f"v_add_u32 v{va}, s{S_T0}, v{l16}")
    P(f"s_xor_b32 s{S_T0}, s{S_W}, 4")
    P(f"s_mul_i32 s{S_T0}, s{S_T0}, 3072")
    P(f"s_add_u32 s{S_T0}, s{S_T0}, 114688")
    P(f"v_add_u32 v{vb}, s{S_T0}, v{l16}")
    P(f"s_add_u32 s{S_OL2}, s{S_OL}, 4096")
    BSLOT = lambda b: ((b % 8) if b < 11 else (b - 8)) * 16384
    def a_reads(r, d):
        o = (4 * r % 64) * 2048; hi = o >> 16; o &= 0xffff
        assert r // 2 in vis, (r, vis)
        rd_done[r // 2] = rd_done.get(r // 2, 0) + 1
        if OPT.get("abl_uds"): return
        P(f"ds_read_b64_tr_b16 {vr(fa+4*d,2)}, v{vA[d][hi]} offset:{o}")
        P(f"ds_read_b64_tr_b16 {vr(fa+4*d+2,2)}, v{vA[d][hi]} offset:{o+1024}")
    def h_load(r):
        if OPT.get("abl_uh"): return
        P(f"s_add_u32 s{S_T2}, s{S_FB}, {4096*r}")
        if r == 21:
            P(f"s_cmp_lt_u32 s{S_W}, 4")
            P(f"s_cselect_b32 s{S_T2}, s{S_T2}, 0x{OOB:x}")
        P(f"buffer_load_dwordx4 {vr(hb[r%NB],4)}, v{l16}, {WSR}, s{S_T2} offen sc1")
    pend = {}
    dq = []; vis = set(); issued = {}; rd_done = {}; nxt = dict(b=0, r=0, d=0, pre=False)
    def qW(b):
        def f(i):
            if not OPT.get("abl_uw"): fin_dma_w1(P, vsl, b, BSLOT(b), f"fw{b}", i)
            issued[b] = issued.get(b, 0) + 1
        for i in range(2): dq.append(lambda i=i: f(i))
    CH = OPT.get("ch", HF + 3); R0 = OPT.get("r0", 2 * (CH + 2))
    DBL = OPT.get("dbl", 64)
    def mstep():
        r, d = nxt["r"], nxt["d"]
        if r >= 22: return
        if not nxt["pre"]:
            a_reads(0, 0); a_reads(0, 1); nxt["pre"] = True; return
        if not OPT.get("abl_um"): P(mfma([facc, facc1][d], fa + 4 * d, hb[r % NB], [facc, facc1][d] if r else None))
        if r + 1 < 22: a_reads(r + 1, d)
        if d == 1 and r + NB < 22: dq.insert(0, lambda r=r: h_load(r + NB))
        nxt["d"] = 1 - d; nxt["r"] = r + d
    def hookU(it, x, pos):
        sig = (x == 0 and (it & 1)); ph = 2 * it + x
        if pos == "sync?": return False
        if pos == "pre0": sigstamp(it, 0); return
        if pos == "pre":
            if it == HF: P.wait_vm_all()
            need = [b for b in issued if issued[b] == 2 and b not in vis and (it == 29 or b <= (max(0, ph + 8 - R0) * (2 if ph + 6 >= DBL else 1)) // 2) and b <= 10]
            if need: P.wait_tag(*[f"fw{b}" for b in need])
            pend["vis"] = need; pend["free"] = {b for b in rd_done if rd_done[b] >= 4}
            sigstamp(it, 1); return
        if pos == "pv1" and sig and it == HF:
            nonce_check(P, SL, vn, vz)
            flag_store(P, vz, t0, S_FS)
        if pos == "chk":
            vis.update(pend["vis"])
            while it >= HF and nxt["b"] < 15:
                b = nxt["b"]; prev = {8: 0, 9: 1, 10: 2, 11: 3, 12: 4, 13: 5, 14: 6}.get(b)
                if prev is not None and prev not in pend["free"]: break
                qW(b); nxt["b"] += 1
            return
        if pos == "pv2" and x == 0 and it == CH - 1: P(flag_load(vfl, 1, vhf, f"s{S_FP}"))
        if pos == "pv2" and x == 0 and it == CH:
            spin_check(P, SL, [flag_load(vfl, 1, vhf, f"s{S_FP}")], flag_cmp(vfl, 1, t0), sleep=OPT.get("hsl", 4))
            for r in range(NB): dq.insert(r, lambda r=r: h_load(r))
        elif dq and (pos in ("pv2", "qk") or (pos in ("g2", "g5") and it in (CH, CH + 1)) or (pos == "g5" and OPT.get("d3"))): dq.pop(0)()
        if nxt["r"] >= 22 - OPT.get("tr", 5) and nxt["d"] == 0: pass
        elif (pos in ("g1", "g4") and ph >= R0) or (pos == "g4" and ph == R0 - 1) or (pos in ("g3", "g6") and ph >= DBL): mstep()
        if pos == "g6" and it == 31 and x == 1:
            assert nxt["b"] == 15, nxt
            print("rounds left for tail:", 22 - nxt["r"])
    def prioU(it, x):
        if not OPT.get("prio", 1): return None
        return 3 - (2 * ((it + 1) & 1) + x)
    attention(P, A, l16, range(UNI, 32), hookU, prioU)
    assert not dq
    stamp(P, 6)
    if OPT.get("sig"):
        P(f"s_lshl_b32 s98, s2, 11")
        P(f"s_lshl_b32 s99, s{S_W}, 8")
        P(f"s_add_u32 s98, s98, s99")
        P(f"s_add_u32 s98, s98, 0x{WS_STAMP + (1<<20):x}")
        P(f"buffer_store_dword v{vsig}, v{vl4}, {WSR}, s98 offen")
    P("s_setprio 0")
    P(f"v_mov_b32 v{O[1]+7}, v{O[1]}")
    for i in range(3): P(f"ds_write_b128 v{va}, {vr(O[1]+4+4*i,4)} offset:{1024*i}")
    P.wait_tag(*[f"fw{b}" for b in range(8, 15)]); P.wait_lgkm_all()
    P("s_barrier")
    vis.update(range(11))
    for i in range(3): P(f"ds_read_b128 {vr(O[1]+4+4*i,4)}, v{vb} offset:{1024*i}")
    P(f"v_add_f32 v{O[0]}, v{O[0]}, v{O[1]+7}")
    for r in range(8, 16): P(f"v_add_f32 v{O[0]+r}, v{O[0]+r}, v{O[1]+r}")
    P(f"v_mov_b32 v{t1}, 0x207")
    P(f"v_cmp_nle_f32 vcc, {hexf(2.0**-90)}, v{O[0]}")
    P(f"v_cmp_nge_f32 s[{S_PM}:{S_PM+1}], {'s' + str(S_T0)}, v{O[0]}".replace(f"s{S_T0}", f"s{S_C1}"))
    P(f"s_or_b64 vcc, vcc, s[{S_PM}:{S_PM+1}]")
    P(f"v_add3_u32 v{t0}, v{O[0]+8}, 0, 0".replace("v_add3_u32", "v_add_f32").replace(", 0, 0", f", v{O[0]+9}"))
    for r in range(10, 16): P(f"v_add_f32 v{t0}, v{t0}, v{O[0]+r}")
    P(f"v_cmp_class_f32 s[{S_PM}:{S_PM+1}], v{t0}, v{t1}")
    P(f"s_or_b64 vcc, vcc, s[{S_PM}:{S_PM+1}]")
    if OPT.get("forcefb"): P("s_mov_b64 vcc, -1")
    P("s_cmp_lg_u64 vcc, 0")
    P("s_cbranch_scc1 LF_fb")
    P("LF_fbr:")
    P(f"v_rcp_f32 v{t0}, v{O[0]}")
    P(f"v_mul_f32 v{t0}, v{t0}, v{vg}")
    for r in range(8, 16): P(f"v_mul_f32 v{O[0]+r}, v{O[0]+r}, v{t0}")
    for r in range(4): P(f"v_cvt_pk_bf16_f32 v{O[1]+r}, v{O[0]+8+2*r}, v{O[0]+9+2*r}")
    for r in range(4): P(f"v_min_u32 v{O[1]+r}, 0xfffffffe, v{O[1]+r}")
    P(f"buffer_store_dwordx4 {vr(O[1],4)}, v{l16}, {WSR}, s{S_OD} offen sc1", tag="ost")
    stamp(P, 7)
    K4, V8, ON, CM = A["fk"], A["fv"][0], fb, O[1]
    assert A["fv"][1] == V8 + 4
    nl = "\n    "
    fbk = f"""LF_fb:
    s_waitcnt vmcnt(0) lgkmcnt(0)
    v_mov_b32 v{t0}, 0xff800000
    s_mov_b32 s{S_T0}, 0x{WS_KF:x}
LF_fb1:
    buffer_load_dwordx4 {vr(K4,4)}, v{l16}, {WSR}, s{S_T0} offen sc1
    s_waitcnt vmcnt(0)
    {mfma(S[0], K4, qf)}
    s_nop 15
    {nl.join(f"v_max3_f32 v{t0}, v{S[0]+2*r}, v{S[0]+2*r+1}, v{t0}" for r in range(8))}
    s_add_u32 s{S_T0}, s{S_T0}, 1024
    s_cmp_lt_u32 s{S_T0}, 0x{WS_KF + 65536:x}
    s_cbranch_scc1 LF_fb1
    v_mov_b32 v{t1}, v{t0}
    s_nop 1
    v_permlane32_swap_b32 v{t0}, v{t1}
    s_nop 1
    v_max_f32 v{t0}, v{t0}, v{t1}
    {nl.join(f"v_sub_f32 v{CM+r}, 0, v{t0}" for r in range(16))}
    {nl.join(f"v_mov_b32 v{O[0]+r}, 0" for r in range(16))}
    v_lshrrev_b32 v{t0}, 5, v{lane}
    v_lshlrev_b32 v{t0}, 8, v{t0}
    v_and_b32 v{t1}, 15, v{lane}
    v_lshl_add_u32 v{t0}, v{t1}, 4, v{t0}
    v_and_b32 v{t1}, 16, v{lane}
    v_cmp_eq_u32 vcc, 0, v{t1}
    v_mov_b32 v{t1}, 0x{OOB:x}
    s_nop 1
    v_cndmask_b32 v{t0}, v{t0}, v{t1}, vcc
    v_and_b32 v{t1}, 27, v{lane}
    v_cmp_eq_u32 vcc, 0, v{t1}
    v_mov_b32 v{ON}, 0x3f803f80
    s_nop 1
    v_cndmask_b32 v{ON}, 0, v{ON}, vcc
    s_mov_b32 s{S_T0}, 0x{WS_KF:x}
LF_fb2:
    s_add_u32 s{S_T1}, s{S_T0}, 0x{WS_VF - WS_KF:x}
    buffer_load_dwordx4 {vr(K4,4)}, v{l16}, {WSR}, s{S_T0} offen sc1
    buffer_load_dwordx4 {vr(V8,4)}, v{t0}, {WSR}, s{S_T1} offen sc1
    buffer_load_dwordx4 {vr(V8+4,4)}, v{t0}, {WSR}, s{S_T1} offen offset:512 sc1
    s_waitcnt vmcnt(0)
    {mfma(S[0], K4, qf, CM)}
    {nl.join(f"v_or_b32 v{V8+r}, v{V8+r}, v{ON}" for r in range(8))}
    s_nop 7
    {nl.join(f"v_exp_f32 v{S[0]+r}, v{S[0]+r}" for r in range(16))}
    s_nop 1
    {nl.join(f"v_cvt_pk_bf16_f32 v{S[1]+r}, v{S[0]+2*r}, v{S[0]+2*r+1}" for r in range(8))}
    s_nop 1
    {mfma(O[0], V8, S[1], O[0])}
    {mfma(O[0], V8+4, S[1]+4, O[0])}
    s_add_u32 s{S_T0}, s{S_T0}, 1024
    s_cmp_lt_u32 s{S_T0}, 0x{WS_KF + 65536:x}
    s_cbranch_scc1 LF_fb2
    s_nop 15
    s_branch LF_fbr
"""
    SL.add(fbk)
    for n in ("Sa", "Sb", "Oa", "qf", "fk", "fv1", "fv2"): V.release(n)
    ob = V.alloc("ob", 32); wa = [V.alloc(f"wa{u}", 8) for u in range(8)]
    def oloads(g): return [f"buffer_load_dwordx4 {vr(ob+16*g+4*u,4)}, v{l16}, {WSR}, s{[S_OL,S_OL2][g]} offen offset:{1024*u} sc1" for u in range(4)]
    def ocheck(g):
        b = ob + 16 * g
        L = [f"v_max3_u32 v{t0}, v{b}, v{b+1}, v{b+2}"]
        for k in range(3, 15, 2): L.append(f"v_max3_u32 v{t0}, v{b+k}, v{b+k+1}, v{t0}")
        L += [f"v_max_u32 v{t0}, v{b+15}, v{t0}", f"v_cmp_eq_u32 vcc, -1, v{t0}"]
        return L
    fa2 = V.alloc("ffa2", 8)
    wr = []
    for u in range(8):
        for d, v in ((0, vt0), (1, vt1)):
            wr.append([f"ds_read_b64_tr_b16 {vr(wa[u]+4*d,2)}, v{v} offset:{u*2048}", f"ds_read_b64_tr_b16 {vr(wa[u]+4*d+2,2)}, v{v} offset:{u*2048+1024}"])
    r0 = nxt["r"]; assert nxt["d"] == 0 and not dq
    def tr_reads(r, d):
        o = (4 * r % 64) * 2048; hi = o >> 16; o &= 0xffff; f = [fa, fa2][(r - r0) % 2] + 4 * d
        P(f"ds_read_b64_tr_b16 {vr(f,2)}, v{vA[d][hi]} offset:{o}")
        P(f"ds_read_b64_tr_b16 {vr(f+2,2)}, v{vA[d][hi]} offset:{o+1024}")
    if r0 + 1 < 22: tr_reads(r0 + 1, 0); tr_reads(r0 + 1, 1)
    OL = min(r0 + OPT.get("ol", 99), 22)
    for r in range(r0, 22):
        if r == OL:
            for g in range(2):
                for x in oloads(g): P(x)
        for d in range(2):
            P(mfma([facc, facc1][d], [fa, fa2][(r - r0) % 2] + 4 * d, hb[r % NB], [facc, facc1][d]))
            if r + 2 < 22: tr_reads(r + 2, d)
            elif wr:
                for g in wr[:4]:
                    for x in g: P(x)
                del wr[:4]
    for g in wr:
        for x in g: P(x)
    assert 22 - r0 <= NB and r0 >= 16
    OPR = OPT.get("opr", 0)
    probe = ["s_mov_b64 exec, 0xff", f"buffer_load_dword v{vp}, v{vpa}, {WSR}, s{S_OL} offen offset:1020 sc1", "s_mov_b64 exec, -1"]
    pchk = ["s_mov_b64 exec, 0xff", f"v_cmp_eq_u32 vcc, -1, v{vp}", "s_mov_b64 exec, -1"]
    if OPR == 1:
        for x in probe: P(x)
    if OPT.get("oab", 1): P.wait_lgkm_all(); P("s_barrier")
    if OPR == 2:
        for x in probe: P(x)
    if OPR: spin_check(P, SL, probe, pchk, sleep=1)
    if OL == 22:
        for g in range(2):
            for x in oloads(g): P(x)
    P(f"v_sub_f32 v{t1}, 1.0, v{vg}")
    P(f"v_mov_b32 v{t0}, v{t1}")
    assert t1 == t0 + 1 and t0 % 2 == 0
    for r in range(0, 16, 2): P(f"v_pk_mul_f32 v[{facc+r}:{facc+r+1}], v[{facc+r}:{facc+r+1}], v[{t0}:{t1}]")
    for r in range(0, 16, 2): P(f"v_pk_mul_f32 v[{facc1+r}:{facc1+r+1}], v[{facc1+r}:{facc1+r+1}], v[{t0}:{t1}]")
    if not OPT.get("oab", 1): P.wait_lgkm_all(); P("s_barrier")
    stamp(P, 8)
    nl = "\n    "
    for g in range(2):
        k = SL.n; SL.n += 1
        for x in ocheck(g): P(x)
        P(f"s_cbranch_vccnz LS{k}")
        P(f"LR{k}:")
        SL.add(f"""LS{k}:
    s_mov_b32 s{S_T7}, 0
LS{k}_p:
    {f"s_sleep {OPT['osl']}" if OPT.get("osl") else "s_nop 0"}
    s_mov_b64 exec, {"0x1" if OPT.get("op1") else "0xf"}
    buffer_load_dword v{vp}, v{vpa}, {WSR}, s{[S_OL,S_OL2][g]} offen offset:1020 sc1
    s_waitcnt vmcnt(0)
    v_cmp_eq_u32 vcc, -1, v{vp}
    s_mov_b64 exec, -1
    s_add_u32 s{S_T7}, s{S_T7}, 1
    s_cmp_ge_u32 s{S_T7}, 0x{SPIN_MAX:x}
    s_cbranch_scc1 LR{k}
    s_cbranch_vccnz LS{k}_p
    {nl.join(oloads(g))}
    s_waitcnt vmcnt(0)
    {nl.join(ocheck(g))}
    s_cbranch_vccnz LS{k}_p
    s_nop 1
    s_branch LR{k}
""")
        for u in range(4 * g, 4 * g + 4):
            P(mfma(facc1, wa[u] + 4, ob + 4 * u, facc1))
    W1 = [f"ds_write_b128 v{vw[b-1]}, {vr(src+4*i,4)} offset:{2048*(b-1) + 1024*i}" for b, src in ((2, facc1), (3, facc1 + 8)) for i in range(2)]
    for u in range(8):
        P(mfma(facc, wa[u], ob + 4 * u, facc))
        if u >= 3 and W1:
            if u == 3: P("s_nop 7")
            P(W1.pop(0))
    stamp(P, 9)
    for b, src in ((1, facc + 8),):
        for i in range(2): P(f"ds_write_b128 v{vw[b-1]}, {vr(src+4*i,4)} offset:{2048*(b-1) + 1024*i}")
    P.wait_lgkm_all()
    P("s_barrier")
    for i in range(6): P(f"ds_read_b128 {vr(ob+4*i,4)}, v{vrd} offset:{1024*i}")
    for b in range(3):
        for r in range(8): P(f"v_add_f32 v{facc+r}, v{facc+r}, v{ob+8*b+r}")
    for r in range(4): P(f"v_cvt_pk_bf16_f32 v{facc1+r}, v{facc+2*r}, v{facc+2*r+1}")
    P(f"v_permlane32_swap_b32 v{facc1}, v{facc1+2}")
    P(f"v_permlane32_swap_b32 v{facc1+1}, v{facc1+3}")
    P(f"buffer_store_dwordx4 {vr(facc1,4)}, v{vo}, s[{S_OUT}:{S_OUT+3}], s{S_OO} offen{['', ' sc1', ' nt', ' sc0 sc1'][OPT.get('omod', 0)]}")
    if STAMP["on"]:
        P.wait_vm_all(); stamp(P, 10); stamp_dump(P, lane)
        if OPT.get("dbgst") is not None:
            P(f"s_cmp_lg_u32 s2, {OPT['dbgst']}")
            P("s_cbranch_scc1 LF_end")
            P(f"s_cmp_lg_u32 s{S_W}, {OPT.get('dbgw', 0)}")
            P("s_cbranch_scc1 LF_end")
            P(f"v_subrev_u32 v{VSTAMP}, s100, v{VSTAMP}")
            P("s_mov_b64 exec, 0x7fff")
            P(f"buffer_store_dword v{VSTAMP}, v1, s[{S_DBG}:{S_DBG+3}], 0 offen offset:4")
    P("LF_end:")
    P("s_endpgm")
    name = NAME + "_kernel"
    body, I = finalize(P)
    txt = f".text\n.globl {name}\n.p2align 8\n.type {name},@function\n{name}:\n" + body + "".join(SL.txt) + "LF_last:\n    s_endpgm\n"
    vg_ = 256 if STAMP["on"] else max(V.hi, 8)
    txt += KD.format(name=name, vgpr=vg_, sgpr=102 if STAMP['on'] else 96, accum=(vg_ + 3) // 4 * 4)
    return txt, I, vg_


if __name__ == "__main__":
    out = sys.argv[1]
    STAMP["on"] = "stamp" in sys.argv
    for a in sys.argv[2:]:
        if "=" in a: k, v = a.split("="); OPT[k] = int(v)
        else: OPT[a] = True
    import asmlib; asmlib.MERGE_D = OPT.get("md", 9)
    t, I, vg_ = kernel_F()
    hdr = HEADER + f"; @launch grid=(256,1,1) block=(512,1,1) lds={LDS_BYTES}\n" + '.amdgcn_target "amdgcn-amd-amdhsa--gfx950"\n'
    open(out, "w").write(hdr + t)
    print("insts", len(I), "vgpr", vg_, "nops", sum(1 for x in I if x.kind == "nop"))
```

```python
import sys, re
from parts import *
OPT = {}
S_NONCE = 93
S_HP, S_KH = 30, 31
SH = [4, 5, 6]
S_FS, S_FP, S_OD, S_OL = 7, 8, 9, 10
S_FW, S_FB, S_FL, S_FL2 = 12, 13, 14, 15
S_OO, S_OL2 = 11, 18
S_PM = 16
FL_KV, FL_H = WS_FLAG, WS_FLAG + 8192
WKV_L = KV_RING
QSCR = KV_RING + 8192
FSLOT = [0, 32768, 65536, 98304]
WO_CH = [98304, 114688, 0, 32768]
SC1 = " sc1"
SPIN_MAX = 1 << 22
WSR = f"s[{S_WS}:{S_WS+3}]"


class Slow:
    def __init__(self): self.txt = []; self.n = 0
    def add(self, t): self.txt.append(t)


LOADS = {}
def wq_pieces(P, vsl, s_first, n, label, rot):
    P(f"s_and_b32 s{S_T6}, s{S_G}, 7")
    if rot > 1: P(f"s_mul_i32 s{S_T6}, s{S_T6}, {rot}")
    P(f"s_add_u32 s{S_T5}, s{S_T6}, {n}")
    P(f"s_lshl_b32 s{S_T7}, s{S_J}, 7")
    P(f"{label}:")
    P(f"s_and_b32 s{S_T4}, s{S_T6}, {n-1}")
    P(f"s_add_u32 s{S_T4}, s{S_T4}, s{s_first}")
    P(f"s_mul_i32 s{S_T0}, s{S_T4}, 171")
    P(f"s_lshr_b32 s{S_T0}, s{S_T0}, 12")
    P(f"s_lshl_b32 s{S_T1}, s{S_T4}, 2")
    P(f"s_add_u32 s{S_T0}, s{S_T0}, s{S_T1}")
    P(f"s_lshl_b32 s{S_T0}, s{S_T0}, 8")
    P(f"s_add_u32 m0, s{S_T0}, 0x{SLOT[0]:x}")
    P(f"s_lshl_b32 s{S_T2}, s{S_T4}, 13")
    P(f"s_add_u32 s{S_T2}, s{S_T2}, s{S_T7}")
    P(f"s_add_u32 s{S_T6}, s{S_T6}, 1")
    P(f"buffer_load_dwordx4 v{vsl}, s[{S_WQ}:{S_WQ+3}], s{S_T2} offen lds")
    P.I[-1].kind = "salu"
    P(f"s_cmp_lg_u32 s{S_T6}, s{S_T5}")
    P(f"s_cbranch_scc1 {label}")


def emit_loads(P, l16, vsl, sfx):
    if sfx == "h":
        P(f"s_lshr_b32 s{S_T4}, s{S_J}, 1")
        P(f"s_lshl_b32 s{S_T4}, s{S_T4}, 4")
        P(f"s_mul_i32 s{S_T1}, s{S_W}, 12")
        P(f"s_add_u32 s{S_T4}, s{S_T4}, s{S_T1}")
        P(f"s_add_u32 s{S_T4}, s{S_T4}, 16")
        P(f"s_lshl_b32 s{S_T0}, s{S_G}, 16")
        P(f"s_and_b32 s{S_T6}, s{S_J}, 3")
        P(f"s_mul_i32 s{S_T6}, s{S_T6}, 3")
        P(f"s_mov_b32 s{S_T5}, 12")
        mk_srd(P, S_X, 4, SZ["x"])
        P("LF_ldx1:")
        P(f"s_add_u32 s{S_T1}, s{S_T6}, s{S_T4}")
        P(f"s_and_b32 s{S_T1}, s{S_T1}, 63")
        P(f"s_mul_i32 m0, s{S_T1}, {X_STRIDE}")
        P(f"s_lshl_b32 s{S_T2}, s{S_T1}, 10")
        P(f"s_add_u32 s{S_T2}, s{S_T2}, s{S_T0}")
        P(f"s_add_u32 s{S_T6}, s{S_T6}, 1")
        P(f"s_cmp_eq_u32 s{S_T6}, 12")
        P(f"s_cselect_b32 s{S_T6}, 0, s{S_T6}")
        P(f"buffer_load_dwordx4 v{l16}, s[{S_X}:{S_X+3}], s{S_T2} offen lds", tag="q")
        P(f"s_sub_u32 s{S_T5}, s{S_T5}, 1")
        P(f"s_cmp_lg_u32 s{S_T5}, 0")
        P("s_cbranch_scc1 LF_ldx1")
    else:
        mk_srd(P, S_WQ, 6, SZ["wq"])
        P(f"s_and_b32 s{S_T3}, s{S_W}, 3")
        P(f"s_lshl_b32 s{S_T3}, s{S_T3}, 3")
        wq_pieces(P, vsl, S_T3, 8, "LF_ldq1", 1)
        P(f"s_add_u32 s{S_T3}, s{S_T3}, 24")
        wq_pieces(P, vsl, S_T3, 8, "LF_ldq2", 1)


def prologue_f(P, V, endlabel):
    if STAMP["on"]: P("s_memrealtime s[100:101]")
    P("s_cmp_ge_u32 s2, 256")
    P(f"s_cbranch_scc1 {endlabel}")
    P("s_load_dwordx16 s[4:19], s[0:1], 0")
    P("s_load_dwordx8 s[20:27], s[0:1], 64")
    P("s_load_dwordx2 s[28:29], s[0:1], 96")
    lane = V.alloc("lane"); l16 = V.alloc("l16")
    P(f"v_lshrrev_b32 v1, 6, v0")
    P(f"v_and_b32 v{lane}, 63, v0")
    P(f"v_readfirstlane_b32 s{S_W}, v1")
    P(f"v_lshlrev_b32 v{l16}, 4, v{lane}")
    P(f"s_lshr_b32 s{S_T0}, s2, 3")
    if OPT.get("jrot"): P(f"s_add_u32 s{S_J}, s{S_T0}, {OPT['jrot']}"); P(f"s_and_b32 s{S_J}, s{S_J}, 3")
    else: P(f"s_and_b32 s{S_J}, s{S_T0}, 3")
    P(f"s_and_b32 s{S_T1}, s2, 1")
    P(f"s_lshl_b32 s{S_T1}, s{S_T1}, 2")
    P(f"s_add_u32 s{S_J}, s{S_J}, s{S_T1}")
    P(f"s_and_b32 s{S_G}, s2, 6")
    P(f"s_lshl_b32 s{S_G}, s{S_G}, 2")
    P(f"s_lshr_b32 s{S_T0}, s{S_T0}, 2")
    P(f"s_add_u32 s{S_G}, s{S_G}, s{S_T0}")
    t0 = V.alloc("t0"); t1 = V.alloc("t1")
    vsl = slice_pattern(P, V, lane, t0)
    LOADS["f"] = lambda sfx: emit_loads(P, l16, vsl, sfx)
    P(f"s_and_b32 s{S_TT}, s{S_W}, 1")
    P(f"s_lshl_b32 s{S_TILE}, s{S_G}, 1")
    P(f"s_add_u32 s{S_TILE}, s{S_TILE}, s{S_TT}")
    P(f"s_lshr_b32 s{S_HP}, s{S_W}, 1")
    P(f"s_and_b32 s{S_HP}, s{S_HP}, 1")
    P(f"s_lshr_b32 s{S_KH}, s{S_W}, 2")
    assert all((p * 171) >> 12 == p // 24 for p in range(64)) and SLOT_SZ == 3 * 8192 + 256
    return lane, l16, t0, t1, vsl


def rest_srds(P):
    P(f"s_cmp_eq_u32 s{S_TT}, 0")
    P(f"s_cselect_b32 s{S_WM}, s16, s18")
    P(f"s_cselect_b32 s{S_WM+1}, s17, s19")
    P(f"s_and_b32 s{S_WM+1}, s{S_WM+1}, 0xffff")
    P(f"s_mov_b32 s{S_WM+2}, 0x{SZ['wg']:x}")
    P(f"s_mov_b32 s{S_WM+3}, 0x20000")
    mk_srd(P, S_OUT, 24, SZ["out"])
    mk_srd(P, S_WO, 12, SZ["wo"])
    mk_srd(P, S_WD, 20, SZ["wd"])


def nonce_check(P, SL, vn, vz):
    k = SL.n; SL.n += 1
    P(f"v_readfirstlane_b32 s{S_NONCE}, v{vn}")
    P(f"s_cmp_eq_u32 s{S_NONCE}, 0")
    P(f"s_cbranch_scc1 LS{k}")
    P(f"LR{k}:")
    SL.add(f"""LS{k}:
    s_mov_b32 s{S_T7}, 0
LS{k}_l:
    s_sleep 2
    buffer_load_dword v{vn}, v{vz}, s[{S_DBG}:{S_DBG+3}], 0 offen sc1
    s_waitcnt vmcnt(0)
    v_readfirstlane_b32 s{S_NONCE}, v{vn}
    s_add_u32 s{S_T7}, s{S_T7}, 1
    s_cmp_ge_u32 s{S_T7}, 0x{SPIN_MAX:x}
    s_cbranch_scc1 LR{k}
    s_cmp_eq_u32 s{S_NONCE}, 0
    s_cbranch_scc1 LS{k}_l
    s_branch LR{k}
""")


def flag_load(vf, n, vaddr, soff):
    op = {1: "buffer_load_dword", 4: "buffer_load_dwordx4"}[n]
    return f"{op} {vr(vf,n)}, v{vaddr}, {WSR}, {soff} offen sc1"


def flag_cmp(vf, n, t):
    L = [f"v_xor_b32 v{t}, s{S_NONCE}, v{vf}"]
    for i in range(1, n):
        L += [f"v_xor_b32 v{vf+i}, s{S_NONCE}, v{vf+i}", f"v_or_b32 v{t}, v{t}, v{vf+i}"]
    L += [f"v_cmp_ne_u32 vcc, 0, v{t}"]
    return L


def spin_check(P, SL, loads, cmps, sleep=1):
    k = SL.n; SL.n += 1
    for x in cmps: P(x)
    P(f"s_cbranch_vccnz LS{k}")
    P(f"LR{k}:")
    nl = "\n    "
    SL.add(f"""LS{k}:
    s_mov_b32 s{S_T7}, 0
LS{k}_l:
    {f"s_sleep {sleep}" if sleep else "s_nop 0"}
    {nl.join(loads)}
    s_waitcnt vmcnt(0)
    {nl.join(cmps)}
    s_add_u32 s{S_T7}, s{S_T7}, 1
    s_cmp_ge_u32 s{S_T7}, 0x{SPIN_MAX:x}
    s_cbranch_scc1 LR{k}
    s_cbranch_vccnz LS{k}_l
    s_nop 1
    s_branch LR{k}
""")


def flag_store(P, vz, t, soff):
    P(f"v_mov_b32 v{t}, s{S_NONCE}")
    P("s_mov_b64 exec, 1")
    P(f"buffer_store_dword v{t}, v{vz}, {WSR}, s{soff} offen sc1", tag="flag")
    P("s_mov_b64 exec, -1")


PROG = MISC + 1024
class SplitBar:
    def __init__(self, P, V, SL, lane, t0):
        self.P, self.SL, self.n = P, SL, 0
        self.va = V.alloc("sba"); self.vr = V.alloc("sbr"); self.one = V.alloc("sb1"); self.vg = V.alloc("sbg")
        P(f"s_lshl_b32 s{S_T0}, s{S_W}, 8")
        P(f"s_add_u32 s{S_T0}, s{S_T0}, 0x{PROG:x}")
        P(f"v_lshlrev_b32 v{t0}, 2, v{lane}")
        P(f"v_add_u32 v{self.va}, s{S_T0}, v{t0}")
        P(f"v_and_b32 v{t0}, 7, v{lane}")
        P(f"v_mul_u32_u24 v{t0}, 260, v{t0}")
        P(f"v_add_u32 v{self.vr}, 0x{PROG:x}, v{t0}")
        P(f"v_mov_b32 v{self.one}, 0")
        P(f"ds_write_b32 v{self.va}, v{self.one}")
        P(f"v_mov_b32 v{self.one}, 1")
    def arrive(self):
        self.n += 1
        self.P(f"ds_add_u32 v{self.va}, v{self.one}")
    def peek(self): self.P(f"ds_read_b32 v{self.vg}, v{self.vr}")
    def check(self):
        k = self.SL.n; self.SL.n += 1
        self.P(f"v_cmp_gt_u32 vcc, {self.n}, v{self.vg}")
        self.P(f"s_cbranch_vccz LR{k}")
        self.P(f"LS{k}:")
        for t in ([f"s_sleep {OPT['ssl']}"] if OPT.get("ssl") else []) + [f"ds_read_b32 v{self.vg}, v{self.vr}", "s_waitcnt lgkmcnt(0)", f"v_cmp_gt_u32 vcc, {self.n}, v{self.vg}", f"s_cbranch_vccnz LS{k}"]:
            self.P(t); self.P.I[-1].kind = "salu"; self.P.I[-1].vw = set(); self.P.I[-1].vr = set()
        self.P(f"LR{k}:")


def attn_setup(P, V, lane, l16, t0, t1):
    A = {}
    P(f"s_lshl_b32 s{S_T1}, s{S_KH}, 12")
    vk = V.alloc("vk"); vv = [V.alloc("vv0"), V.alloc("vv1")]
    P(f"s_add_u32 s{S_T1}, s{S_T1}, 0x{KV_RING:x}")
    P(f"v_add_u32 v{vk}, s{S_T1}, v{l16}")
    P(f"v_lshrrev_b32 v{t0}, 5, v{lane}")
    P(f"v_lshlrev_b32 v{t0}, 8, v{t0}")
    P(f"v_and_b32 v{t1}, 15, v{lane}")
    P(f"v_lshl_add_u32 v{t0}, v{t1}, 4, v{t0}")
    P(f"v_and_b32 v{t1}, 16, v{lane}")
    P(f"v_cmp_eq_u32 vcc, 0, v{t1}")
    P(f"s_add_u32 s{S_T1}, s{S_T1}, 2048")
    for s in range(2):
        P(f"v_mov_b32 v{t1}, s{S_T1}")
        P(f"v_add_u32 v{t1}, {8192*s}, v{t1}")
        P(f"v_mov_b32 v{vv[s]}, 0x{ONES:x}")
        P(f"v_cndmask_b32 v{vv[s]}, v{t1}, v{vv[s]}, vcc")
        P(f"v_add_u32 v{vv[s]}, v{vv[s]}, v{t0}")
    P(f"s_lshl_b32 s{S_KVOFF}, s{S_KH}, 15")
    P(f"s_lshl_b32 s{S_T1}, s{S_HP}, 16")
    P(f"s_add_u32 s{S_KVOFF}, s{S_KVOFF}, s{S_T1}")
    P(f"s_lshl_b32 s{S_T1}, s{S_TT}, 10")
    P(f"s_add_u32 s{S_KVOFF}, s{S_KVOFF}, s{S_T1}")
    P(f"s_lshl_b32 s{S_KVLDS}, s{S_W}, 10")
    P(f"s_add_u32 s{S_KVLDS}, s{S_KVLDS}, 0x{KV_RING:x}")
    A.update(vk=vk, vv=vv)
    A["S"] = [V.alloc("Sa", 16), V.alloc("Sb", 16)]
    A["O"] = [V.alloc("Oa", 16), V.alloc("Ob", 16)]
    A["fk"] = V.alloc("fk", 4); A["fv"] = [V.alloc("fv1", 4), V.alloc("fv2", 4)]
    A["q"] = V.alloc("qf", 8)
    return A


def kv_dma(P, l16, c):
    dma(P, l16, S_WS, f"s{S_T2}", (S_KVLDS, 8192 * (c & 1)), tag=f"kv{c}", mods=SC1, pre=[f"s_add_u32 s{S_T2}, s{S_KVOFF}, {2048*c}"])


def attention(P, A, l16, its, hook, prio, kvf=None):
    S, O, fk, fv = A["S"], A["O"], A["fk"], A["fv"]
    SB = OPT.get("sb", 0)
    q = [A["q"], A["q"] + 4]
    def rdK(it): P(f"ds_read_b128 {vr(fk,4)}, v{A['vk']} offset:{((it>>1)&1)*8192 + (it&1)*1024}")
    def rdV(it, half): P(f"ds_read_b128 {vr(fv[half],4)}, v{A['vv'][(it>>1)&1]} offset:{(it&1)*1024 + half*512}")
    E = lambda x, i: P(f"v_exp_f32 v{S[x]+i}, v{S[x]+i}")
    def C(x, i):
        b = S[x] + (8 if i >= 4 else 0); k = i & 3
        P(f"v_cvt_pk_bf16_f32 v{b+k}, v{b+2*k}, v{b+2*k+1}")
    for it in its:
        if it == 0:
            rdK(0); rdV(0, 0)
            hook(0, 0, "start")
            P(mfma(S[0], fk, q[0]))
        for x in range(2):
            H = lambda pos: hook(it, x, pos)
            E(x, 0); E(x, 1)
            if x == 0:
                if it > 0: P(mfma(O[1], fv[1], S[1] + 8, O[1]))
                rdV(it, 1)
            else:
                P(mfma(O[0], fv[1], S[0] + 8, O[0]))
                if SB and A["syn"]:
                    A["sb"].check(); after_sync()
            H("pv2")
            E(x, 2); E(x, 3); H("g1")
            E(x, 4); E(x, 5); H("g2")
            E(x, 6); E(x, 7)
            if x == 0: P(mfma(S[1], fk, q[1]))
            elif it < 31: P(mfma(S[0], fk, q[0]))
            H("qk")
            sig = (x == 0 and (it & 1) and it < 31)
            syn = sig or (x == 0 and hook(it, x, "sync?"))
            ORD = OPT.get("ord", 2) if syn else 0
            for i in range(4): C(x, i)
            if ORD == 0: H("g3")
            E(x, 8); E(x, 9)
            if ORD == 2: P(mfma(O[x], fv[0], S[x], None if it == 0 else O[x]))
            if ORD: H("g3")
            if syn:
                H("pre0")
                if sig: P.wait_tag(f"kv{(it>>1)+1}")
                H("pre"); P.wait_lgkm_all()
                if SB: A["sb"].arrive()
                else: P("s_barrier")
            if ORD == 1: E(x, 10); E(x, 11)
            if ORD != 2: P(mfma(O[x], fv[0], S[x], None if it == 0 else O[x]))
            p = prio(it, x)
            if p is not None: P(f"s_setprio {p}")
            def after_sync():
                if it < 31: rdK(it + 1)
                if (it & 1) and (it >> 1) + 2 < 16: (kvf or (lambda c: kv_dma(P, l16, c)))((it >> 1) + 2)
                if A["syn"]: hook(it, 0, "chk")
            if x == 0:
                A["syn"] = syn
                if not (SB and syn): after_sync()
            else:
                if it < 31: rdV(it + 1, 0)
            H("pv1")
            if ORD != 1: E(x, 10); E(x, 11)
            else: E(x, 12)
            H("g4")
            if ORD != 1: E(x, 12)
            E(x, 13); H("g5")
            E(x, 14); E(x, 15); H("g6")
            if x == 0 and SB and A["syn"]: A["sb"].peek()
            for i in range(4, 8): C(x, i)
        if it == 31: P(mfma(O[1], fv[1], S[1] + 8, O[1]))


def fin_dma_w1(P, vsl, st, slot, tag, i):
    srd, u0 = (S_WD, 8 * st) if st < 11 else (S_WO, 8 * (st - 11))
    dma(P, vsl, srd, f"s{S_T2}", (S_FL2, slot + 1024 * i), tag=tag, pre=[f"s_add_u32 s{S_T2}, s{S_FW}, 0x{(16*u0 + 8*i)*1024:x}"])


def fin_dma_b1(P, l16, st, slot, tag, t):
    P(f"s_add_u32 s{S_T2}, s{S_FB}, 0x{(t*118 + 8*st)*1024:x}")
    if st == 10:
        P(f"s_cmp_lt_u32 s{S_W}, 6")
        P(f"s_cselect_b32 s{S_T2}, s{S_T2}, 0x{OOB:x}")
    dma(P, l16, S_WS, f"s{S_T2}", (S_FL, slot + 16384 + 8192 * t), tag=tag, mods=SC1)


def kernel_F():
    P = Prog(); V = Regs(2, 255, "v"); SL = Slow()
    NP = OPT.get("np", 2)
    JIT = 16 - NP
    GPP = OPT.get("gpp", 2)
    UNI = OPT.get("uni", JIT + 2)
    HF = OPT.get("hf", UNI | 1)
    lane, l16, t0, t1, vsl = prologue_f(P, V, "LF_end")
    vz = V.alloc("vz")
    P(f"s_cmp_lg_u32 s{S_W}, 7")
    P("s_cbranch_scc1 LF_not7")
    P(f"s_lshr_b32 s{S_T4}, s{S_J}, 1")
    P(f"s_lshl_b32 s{S_T0}, s{S_G}, 16")
    P(f"s_lshl_b32 s{S_T2}, s{S_T4}, 14")
    P(f"s_add_u32 s{S_T2}, s{S_T2}, s{S_T0}")
    P(f"s_mul_i32 m0, s{S_T4}, {16*X_STRIDE}")
    P(f"s_and_b32 s{S_T3}, s{S_J}, 1")
    P(f"s_mov_b32 s{S_T5}, 0")
    P("s_waitcnt lgkmcnt(0)")
    mk_srd(P, S_X, 4, SZ["x"])
    if OPT.get("u7", 1):
        P(f"s_sub_u32 s{S_X}, s{S_X}, 64")
        P(f"s_subb_u32 s{S_X+1}, s{S_X+1}, 0")
        P(f"s_mov_b32 s{S_X+2}, 0x{SZ['x'] + 64:x}")
        P(f"s_add_u32 s{S_T2}, s{S_T2}, 64")
        for g in range(4):
            for k in range(4):
                if k == 0:
                    if g: P(f"s_add_u32 m0, m0, {4*X_STRIDE}"); P(f"s_add_u32 s{S_T2}, s{S_T2}, {4096 + 48}")
                else: P(f"s_sub_u32 s{S_T2}, s{S_T2}, 16")
                P(f"buffer_load_dwordx4 v{l16}, s[{S_X}:{S_X+3}], s{S_T2} offen offset:{X_STRIDE*k} lds", tag="c")
    else:
        P("LF_ldx7:")
        P(f"buffer_load_dwordx4 v{l16}, s[{S_X}:{S_X+3}], s{S_T2} offen lds", tag="c")
        P(f"s_add_u32 m0, m0, {X_STRIDE}")
        P(f"s_add_u32 s{S_T2}, s{S_T2}, 1024")
        P(f"s_add_u32 s{S_T5}, s{S_T5}, 1")
        P(f"s_cmp_lg_u32 s{S_T5}, 16")
        P("s_cbranch_scc1 LF_ldx7")
    P(f"s_cmp_eq_u32 s{S_T3}, 0")
    P(f"s_cselect_b32 s{S_WKV}, s8, s10")
    P(f"s_cselect_b32 s{S_WKV+1}, s9, s11")
    P(f"s_and_b32 s{S_WKV+1}, s{S_WKV+1}, 0xffff")
    P(f"s_mov_b32 s{S_WKV+2}, 0x{SZ['wk']:x}")
    P(f"s_mov_b32 s{S_WKV+3}, 0x20000")
    P(f"s_mov_b32 m0, 0x{WKV_L:x}")
    P(f"s_mov_b32 s{S_T5}, 0")
    P("LF_ldw7:")
    for i in range(4):
        P(f"buffer_load_dwordx4 v{l16}, s[{S_WKV}:{S_WKV+3}], s{S_T5} offen offset:{1024*i} lds")
        P.I[-1].kind = "salu"
    P(f"s_add_u32 m0, m0, 4096")
    P(f"s_add_u32 s{S_T5}, s{S_T5}, 4096")
    P(f"s_cmp_lg_u32 s{S_T5}, 16384")
    P("s_cbranch_scc1 LF_ldw7")
    stamp(P, 15)
    P("s_barrier")
    P("LF_not7:")
    P("s_waitcnt lgkmcnt(0)")
    if OPT.get("cpf", 1):
        c = V.alloc("cpf")
        P(f"s_getpc_b64 s[{S_EX}:{S_EX+1}]")
        P("LF_pc0:")
        P(f"s_lshr_b32 s{S_T3}, s2, 3")
        P(f"s_lshl_b32 s{S_T3}, s{S_T3}, 3")
        P(f"s_add_u32 s{S_T3}, s{S_T3}, s{S_W}")
        P(f"s_lshl_b32 s{S_T3}, s{S_T3}, 8")
        P(f"v_lshlrev_b32 v{c}, 7, v{lane}")
        P(f"v_add_u32 v{c}, s{S_T3}, v{c}")
        P(f"v_min_u32 v{c}, LF_last-LF_pc0, v{c}")
        P("s_mov_b64 exec, 3")
        P(f"global_load_dword v{c}, v{c}, s[{S_EX}:{S_EX+1}]", tag="cpf")
        P("s_mov_b64 exec, -1")
    P(f"v_mov_b32 v{vz}, 0")
    mk_srd(P, S_WS, 28, SZ["ws"])
    mk_srd(P, S_DBG, 26, SZ["dbg"])
    vn = V.alloc("vn")
    P(f"s_or_b32 s{S_T0}, s2, s{S_W}")
    P(f"s_cmp_lg_u32 s{S_T0}, 0")
    P("s_cbranch_scc1 LF_non")
    P.cond_begin()
    P(f"s_memrealtime s[{S_EX}:{S_EX+1}]")
    P("s_waitcnt lgkmcnt(0)")
    P(f"s_mul_i32 s{S_EX+1}, s{S_EX+1}, 0x9e3779b1")
    P(f"s_xor_b32 s{S_EX}, s{S_EX}, s{S_EX+1}")
    P(f"s_or_b32 s{S_EX}, s{S_EX}, 1")
    P(f"v_mov_b32 v{t0}, s{S_EX}")
    P("s_mov_b64 exec, 1")
    P(f"buffer_store_dword v{t0}, v{vz}, s[{S_DBG}:{S_DBG+3}], 0 offen sc1")
    P("s_mov_b64 exec, -1")
    P.cond_end()
    P("LF_non:")
    P_main = P; P = Prog()
    rest_srds(P)
    mk_srd(P, S_GW, 22, SZ["gw"])
    P(f"s_mov_b32 s{S_C1}, {hexf(2.0**120)}")
    A = attn_setup(P, V, lane, l16, t0, t1)
    qf = A["q"]; O = A["O"]; S = A["S"]
    A["sb"] = SplitBar(P, V, SL, lane, t0) if OPT.get("sb", 0) else type("X", (), dict(n=0))()
    vfl = V.alloc("vfl", 4)
    P(f"s_lshl_b32 s{S_T0}, s{S_HP}, 1")
    P(f"s_add_u32 s{S_T0}, s{S_T0}, s{S_KH}")
    P(f"s_lshl_b32 s{S_T1}, s{S_J}, 2")
    P(f"s_add_u32 s{S_T0}, s{S_T0}, s{S_T1}")
    P(f"s_mul_i32 s{S_T1}, s{S_TILE}, 118")
    P(f"s_add_u32 s{S_T0}, s{S_T0}, s{S_T1}")
    P(f"s_lshl_b32 s{S_T0}, s{S_T0}, 10")
    P(f"s_add_u32 s{S_OD}, s{S_T0}, 0x{WS_OH + 86*1024:x}")
    def poison():
        for r in range(4): P(f"v_mov_b32 v{O[0]+r}, -1")
        P(f"buffer_store_dwordx4 {vr(O[0],4)}, v{l16}, {WSR}, s{S_OD} offen sc1", tag="poison")
    P(f"s_lshr_b32 s{S_T0}, s{S_W}, 1")
    P(f"s_lshl_b32 s{S_T0}, s{S_T0}, 3")
    P(f"s_add_u32 s{S_T0}, s{S_T0}, s{S_T1}")
    P(f"s_lshl_b32 s{S_T0}, s{S_T0}, 10")
    P(f"s_add_u32 s{S_OL}, s{S_T0}, 0x{WS_OH + 86*1024:x}")
    P(f"s_lshl_b32 s{S_FP}, s{S_G}, 10")
    P(f"s_lshl_b32 s{S_FS}, s{S_J}, 5")
    P(f"s_add_u32 s{S_FS}, s{S_FS}, s{S_W}")
    P(f"s_lshl_b32 s{S_FS}, s{S_FS}, 2")
    P(f"s_add_u32 s{S_FS}, s{S_FS}, s{S_FP}")
    P(f"s_add_u32 s{S_FS}, s{S_FS}, 0x{FL_H:x}")
    P(f"s_add_u32 s{S_FP}, s{S_FP}, 0x{FL_H:x}")
    P(f"s_lshl_b32 s{S_FW}, s{S_W}, 14")
    P(f"s_lshl_b32 s{S_T1}, s{S_J}, 7")
    P(f"s_add_u32 s{S_FW}, s{S_FW}, s{S_T1}")
    P(f"s_lshl_b32 s{S_FL2}, s{S_W}, 11")
    P(f"s_mul_i32 s{S_U0}, s{S_J}, 11")
    P(f"s_min_u32 s{S_U0}, s{S_U0}, 76")
    P(f"s_cmp_ge_u32 s{S_J}, 6")
    P(f"s_cselect_b32 s{S_NU}, 10, 11")
    vxa = xfrag_addr(P, V, "vxa", lane, t0, S_TT)
    vq = V.alloc("vq")
    P(f"s_and_b32 s{S_T0}, s{S_W}, 3")
    P(f"s_lshl_b32 s{S_T1}, s{S_T0}, 11")
    P(f"s_add_u32 s{S_T1}, s{S_T1}, 0x{QSCR:x}")
    P(f"v_add_u32 v{vq}, s{S_T1}, v{l16}")
    COMMON = P.I; P = P_main
    def emit(L):
        for x in L: P(x.text, tag=x.tag)
    iw = next(i for i, x in enumerate(COMMON) if x.text.startswith(f"s_mov_b32 s{S_WM+3},")) + 1
    iu = next(i for i, x in enumerate(COMMON) if x.text.startswith(f"s_mul_i32 s{S_U0},"))
    C_EARLY = COMMON[:iw] + COMMON[iu:iu + 4]; C_LATE = COMMON[iw:iu] + COMMON[iu + 4:]
    acc = [[V.alloc(f"acc{i}{t}", 16) for t in range(2)] for i in range(3)]
    fx = [[V.alloc(f"fx{b}{t}", 4) for t in range(2)] for b in range(2)]
    fw = [[V.alloc(f"fw{b}{i}", 4) for i in range(3)] for b in range(2)]
    S_PFB = 19
    def capture(f):
        nonlocal P
        P0 = P; P = Prog(); f(); L = P.I; P = P0
        return L
    R = {}
    def f1():
        vtn = tr_slice_addr(P, V, "vtn", lane, t0, t1, SLOT[0], S_HP, 8)
        vpf = V.alloc("vpf"); vpd = V.alloc("vpd"); vpw = V.alloc("vpw")
        P(f"v_bfe_u32 v{t0}, v{lane}, 4, 1")
        P(f"v_lshrrev_b32 v{t1}, 5, v{lane}")
        P(f"v_lshl_add_u32 v{t0}, v{t1}, 7, v{t0}")
        P(f"v_mul_u32_u24 v{vpf}, 2752, v{t0}")
        P(f"v_and_b32 v{t0}, 15, v{lane}")
        P(f"v_lshl_add_u32 v{vpf}, v{t0}, 7, v{vpf}")
        P(f"v_cmp_gt_u32 vcc, 12, v{t0}")
        P(f"v_mov_b32 v{t1}, 0x{OOB:x}")
        P(f"v_cndmask_b32 v{vpf}, v{t1}, v{vpf}, vcc")
        P(f"s_lshr_b32 s{S_T0}, s2, 3")
        P(f"s_lshl_b32 s{S_T0}, s{S_T0}, 1")
        P(f"s_add_u32 s{S_T0}, s{S_T0}, s{S_HP}")
        P(f"s_mul_i32 s{S_T0}, s{S_T0}, {2*2752}")
        P(f"s_and_b32 s{S_T1}, s2, 1")
        P(f"s_mul_i32 s{S_T1}, s{S_T1}, {44*32}")
        P(f"s_add_u32 s{S_PFB}, s{S_T0}, s{S_T1}")
        R.update(vtn=vtn, vpf=vpf, vpd=vpd, vpw=vpw)
    def f2():
        vx0 = V.alloc("vx0")
        P(f"s_mul_i32 s{S_T0}, s{S_TT}, {32*X_STRIDE}")
        P(f"v_subrev_u32 v{vx0}, s{S_T0}, v{vxa}")
        P(f"s_lshl_b32 s{S_T4}, s{S_W}, 1")
        wtr = w_tr_addrs(P, V, lane, t0, t1, s_w=S_T4)
        R.update(vx0=vx0, wtr=wtr)
    def f3():
        P(f"s_mul_i32 s{S_T0}, s{S_W}, 3")
        P(f"s_mul_i32 s{S_T1}, s{S_G}, 236")
        P(f"s_add_u32 s{S_T1}, s{S_T1}, s{S_U0}")
        for i in range(3):
            P(f"s_add_u32 s{S_T2}, s{S_T0}, {i}")
            P(f"s_add_u32 s{SH[i]}, s{S_T1}, s{S_T2}")
            P(f"s_lshl_b32 s{SH[i]}, s{SH[i]}, 10")
            P(f"s_add_u32 s{SH[i]}, s{SH[i]}, 0x{WS_OH:x}")
            P(f"s_cmp_lt_u32 s{S_T2}, s{S_NU}")
            P(f"s_cselect_b32 s{SH[i]}, s{SH[i]}, 0x{OOB:x}")
    def f4():
        vpw = R["vpw"]
        S_PFS = S_WKV
        P(f"s_lshr_b32 s{S_T0}, s2, 3")
        P(f"s_lshl_b32 s{S_T0}, s{S_T0}, 2")
        P(f"s_add_u32 s{S_T0}, s{S_T0}, s{S_W}")
        P(f"s_cmp_lt_u32 s{S_T0}, 86")
        P(f"s_cselect_b32 s{S_PFS}, s{S_WD}, s{S_WO}")
        P(f"s_cselect_b32 s{S_PFS+1}, s{S_WD+1}, s{S_WO+1}")
        P(f"s_cselect_b32 s{S_PFS+2}, s{S_WD+2}, s{S_WO+2}")
        P(f"s_cselect_b32 s{S_T1}, 0, 86")
        P(f"s_mov_b32 s{S_PFS+3}, 0x20000")
        P(f"s_sub_u32 s{S_T0}, s{S_T0}, s{S_T1}")
        P(f"s_lshl_b32 s{S_T0}, s{S_T0}, 14")
        P(f"s_and_b32 s{S_T1}, s2, 1")
        P(f"s_lshl_b32 s{S_T1}, s{S_T1}, 9")
        P(f"s_add_u32 s{S_T0}, s{S_T0}, s{S_T1}")
        P(f"v_lshrrev_b32 v{t0}, 2, v{lane}")
        P(f"v_lshlrev_b32 v{t0}, 10, v{t0}")
        P(f"v_and_b32 v{t1}, 3, v{lane}")
        P(f"v_lshl_add_u32 v{t0}, v{t1}, 7, v{t0}")
        P(f"v_add_u32 v{vpw}, s{S_T0}, v{t0}")
    ix = next(i for i, x in enumerate(COMMON) if x.text.startswith(f"v_and_b32 v{t0}, 31, v{lane}"))
    ia = next(i for i, x in enumerate(COMMON) if x.text.startswith(f"s_mov_b32 s{S_C1},")) + 1
    io = next(i for i, x in enumerate(COMMON) if x.text.startswith(f"s_lshl_b32 s{S_T0}, s{S_HP}, 1"))
    ifl = next(i for i, x in enumerate(COMMON) if x.text.startswith(f"s_lshl_b32 s{S_FP},"))
    H_PRE = COMMON[ix:ix + 6] + COMMON[:iw] + capture(f1)
    H_MID = COMMON[ia:io] + COMMON[ix + 6:] + capture(f2) + COMMON[io:ifl]
    H_LATE = [COMMON[iw:iw + 8], COMMON[iw + 8:ia], COMMON[ifl:iu], COMMON[iu:iu + 4]]
    sh = capture(f3); H_LATE += [sh[:9], sh[9:15], sh[15:]]
    wp = capture(f4); H_LATE += [wp[:14], wp[14:]]
    vtn, vpf, vpd, vpw, vx0, wtr = (R[k] for k in ("vtn", "vpf", "vpd", "vpw", "vx0", "wtr"))
    S_PFS = S_WKV
    def pf(blk, half):
        P(f"s_add_u32 s{S_T4}, s{S_PFB}, {128*2752*blk}")
        if half: P("s_mov_b64 exec, 0xffffffff")
        P(f"buffer_load_dword v{vpd}, v{vpf}, s[{S_WM}:{S_WM+3}], s{S_T4} offen", tag="pf")
        P.I[-1].vw = set()
        if half: P("s_mov_b64 exec, -1")
    PF = OPT.get("pf", 5)
    KT = 192; vx16 = 240; vw16 = 241; vst = 242; S_K5, S_K6 = S_T5, S_T6
    P(f"s_cmp_lg_u32 s{S_W}, 7")
    P("s_cbranch_scc1 LF_not7b")
    P.cond_begin()
    P(f"s_lshr_b32 s{S_T0}, s{S_J}, 1")
    P(f"s_lshl_b32 s{S_T1}, s{S_T0}, 4")
    P(f"v_and_b32 v{t0}, 15, v{lane}")
    P(f"v_add_u32 v{t1}, s{S_T1}, v{t0}")
    P(f"v_mul_u32_u24 v{vx16}, {X_STRIDE}, v{t1}")
    P(f"v_lshrrev_b32 v{t1}, 4, v{lane}")
    P(f"v_lshl_add_u32 v{vx16}, v{t1}, 4, v{vx16}")
    P(f"v_lshlrev_b32 v{vw16}, 8, v{t1}")
    P(f"v_lshl_add_u32 v{vw16}, v{t0}, 3, v{vw16}")
    P(f"v_add_u32 v{vw16}, 0x{WKV_L:x}, v{vw16}")
    P(f"s_and_b32 s{S_K6}, s{S_J}, 1")
    P(f"s_cmp_eq_u32 s{S_K6}, 0")
    P(f"s_cselect_b32 s{S_T3}, 9, 8")
    P(f"s_cselect_b32 s{S_T4}, 8, 9")
    P(f"s_cselect_b32 s{S_K5}, 0x{WS_KF:x}, 0x{WS_VF:x}")
    P(f"v_lshlrev_b32 v{vst}, 4, v{t0}")
    P(f"v_lshrrev_b32 v{t0}, 1, v{t1}")
    P(f"v_lshl_add_u32 v{vst}, v{t0}, 3, v{vst}")
    P(f"v_and_b32 v{t0}, 1, v{t1}")
    P(f"v_lshlrev_b32 v{t0}, s{S_T3}, v{t0}")
    P(f"v_add_u32 v{vst}, v{vst}, v{t0}")
    P(f"s_and_b32 s{S_T1}, s{S_T0}, 1")
    P(f"s_lshl_b32 s{S_T1}, s{S_T1}, s{S_T4}")
    P(f"s_add_u32 s{S_K5}, s{S_K5}, s{S_T1}")
    P(f"s_lshr_b32 s{S_T0}, s{S_T0}, 1")
    P(f"s_lshl_b32 s{S_T1}, s{S_G}, 1")
    P(f"s_add_u32 s{S_T0}, s{S_T0}, s{S_T1}")
    P(f"s_lshl_b32 s{S_T0}, s{S_T0}, 10")
    P(f"s_add_u32 s{S_K5}, s{S_K5}, s{S_T0}")
    P("s_waitcnt vmcnt(0)")
    P(f"buffer_load_dword v{vn}, v{vz}, s[{S_DBG}:{S_DBG+3}], 0 offen sc1")
    def kv16(which):
        d = KT
        xb = [(KT+16) + 4 * i for i in range(4)]; wb = [(KT+32) + 4 * i for i in range(4)]
        def ld(ks):
            P(f"ds_read_b128 {vr(xb[ks%4],4)}, v{vx16} offset:{ks*64}")
            P(f"ds_read_b64_tr_b16 {vr(wb[ks%4],2)}, v{vw16} offset:{ks*1024}")
            P(f"ds_read_b64_tr_b16 {vr(wb[ks%4]+2,2)}, v{vw16} offset:{ks*1024+128}")
        for ks in range(3): ld(ks)
        for ks in range(16):
            a, b = (wb[ks%4], xb[ks%4]) if which == 0 else (xb[ks%4], wb[ks%4])
            P(f"v_mfma_f32_16x16x32_bf16 {vr(d,4)}, {vr(a,4)}, {vr(b,4)}, {vr(d,4) if ks else 0}")
            if ks + 3 < 16: ld(ks + 3)
        if which == 0:
            P(f"s_mov_b32 s{S_T0}, {hexf(QK_SCALE)}")
            for r in range(4): P(f"v_mul_f32 v{d+r}, s{S_T0}, v{d+r}")
    P(f"s_cmp_eq_u32 s{S_K6}, 1")
    P("s_cbranch_scc1 LF_vch")
    P.cond_begin(); kv16(0); P.cond_end()
    P("s_branch LF_kvj")
    P("LF_vch:")
    P.cond_begin(); kv16(1); P.cond_end()
    P("LF_kvj:")
    for r in range(2): P(f"v_cvt_pk_bf16_f32 v{KT+4+r}, v{KT+2*r}, v{KT+2*r+1}")
    P(f"buffer_store_dwordx2 {vr(KT+4,2)}, v{vst}, {WSR}, s{S_K5} offen sc1")
    FB2 = OPT.get("fb2", 0)
    def w7flag():
        P(f"s_lshl_b32 s{S_T0}, s{S_G}, 3")
        P(f"s_add_u32 s{S_T0}, s{S_T0}, s{S_J}")
        P(f"s_lshl_b32 s{S_T0}, s{S_T0}, 2")
        P(f"s_add_u32 s{S_T0}, s{S_T0}, 0x{FL_KV:x}")
        P("s_waitcnt vmcnt(0)")
        nonce_check(P, SL, vn, vz)
        flag_store(P, vz, t0, S_T0)
    if not FB2: w7flag()
    stamp(P, 1)
    P("s_barrier")
    stamp(P, 2)
    if FB2 == 1: w7flag()
    P("s_barrier")
    if FB2 == 2: w7flag()
    P.cond_end(nowait=True)
    P("s_branch LF_light")
    P("LF_not7b:")
    P(f"s_cmp_lg_u32 s{S_KH}, 0")
    P("s_cbranch_scc1 LF_l0")

    def sigstamp(it, k):
        if OPT.get("sig"):
            P(f"s_memtime s[98:99]"); P("s_waitcnt lgkmcnt(0)"); P(f"v_writelane_b32 v{vsig}, s98, {2*it+k}")
    vsig = V.alloc("vsig") if OPT.get("sig") else None

    P.cond_begin()
    emit(H_PRE)
    stamp(P, 15)
    P("s_barrier")
    stamp(P, 0)
    LOADS["f"]("h")
    stamp(P, 1)
    if PF & 4: pf(0, True)
    P.wait_tag("q")
    P("s_barrier")
    stamp(P, 2)
    if PF & 2: pf(0, True)
    QD = 6
    xb = [acc[1][0] + 4 * i for i in range(QD)]; wb = [acc[2][0] + 4 * i for i in range(QD)]
    assert acc[1][1] == acc[1][0] + 16 and acc[2][1] == acc[2][0] + 16
    def q_loads(ks):
        o = SLOT[ks // 12] - SLOT[0] + (ks % 12) * 2048
        P(f"ds_read_b128 {vr(xb[ks%QD],4)}, v{vxa} offset:{ks*32}")
        P(f"ds_read_b64_tr_b16 {vr(wb[ks%QD],2)}, v{vtn} offset:{o}")
        P(f"ds_read_b64_tr_b16 {vr(wb[ks%QD]+2,2)}, v{vtn} offset:{o+512}")
    for ks in range(QD - 1): q_loads(ks)
    for ks in range(32):
        P(mfma(acc[0][0], wb[ks%QD], xb[ks%QD], acc[0][0] if ks else None))
        if ks in (11, 23):
            stamp(P, 11 if ks == 11 else 13)
            P("s_barrier")
        if ks + QD - 1 in (12, 24): P("s_barrier")
        if ks + QD - 1 < 32: q_loads(ks + QD - 1)
        nf = -(-len(H_MID) // 28)
        emit(H_MID[ks * nf:(ks + 1) * nf])
        if ks == OPT.get("pk", 20):
            P(f"s_mov_b32 s{S_T5}, 0x{FL_KV:x}")
            P(f"buffer_load_dword v{vn}, v{vz}, s[{S_DBG}:{S_DBG+3}], 0 offen sc1")
            P(flag_load(vfl, 4, l16, f"s{S_T5}"))
    for r in range(8): P(f"v_cvt_pk_bf16_f32 v{qf+r}, v{acc[0][0]+2*r}, v{acc[0][0]+2*r+1}")
    P(f"ds_write_b128 v{vq}, {vr(qf,4)}")
    P(f"ds_write_b128 v{vq}, {vr(qf+4,4)} offset:1024")
    nonce_check(P, SL, vn, vz)
    spin_check(P, SL, [flag_load(vfl, 4, l16, f"s{S_T5}")], flag_cmp(vfl, 4, t0), sleep=OPT.get("ksl", 6))
    kv_dma(P, l16, 0)
    P(f"s_add_u32 s{S_T2}, s{S_T2}, 32768")
    dma(P, l16, S_WS, f"s{S_T2}", (S_KVLDS, 4096), tag="kv0", mods=SC1)
    def gu_reads(ks):
        s, kk = ks // 2, ks % 2
        so = SLOT[s % 3] - SLOT[0] + kk * 6144
        L = [f"ds_read_b128 {vr(fx[ks%2][0],4)}, v{vx0} offset:{ks*32}"]
        for i in range(3):
            f = fw[ks % 2][i]
            L += [f"ds_read_b64_tr_b16 {vr(f,2)}, v{wtr[i]} offset:{so}", f"ds_read_b64_tr_b16 {vr(f+2,2)}, v{wtr[i]} offset:{so+1536}"]
            if i == 0: L.append(f"ds_read_b128 {vr(fx[ks%2][1],4)}, v{vx0} offset:{ks*32 + 32*X_STRIDE}")
        return L
    def gu_groups(ks, late=False):
        R = gu_reads(ks + 1) if ks < 31 else []
        if OPT.get("abl_hds") and ks >= 2 * NP - 1: R = []
        G = []
        for m in range(6):
            i, t = m // 2, m % 2
            mm = [mfma(acc[i][t], fw[ks % 2][i], fx[ks % 2][t], acc[i][t] if ks else None)]
            if OPT.get("abl_hm") and ks >= 2 * NP - 1: mm = []
            G.append(mm + (R[2 * m: 2 * m + 2] if not late else ([] if m < 3 else R[3 * (m - 3): 3 * (m - 3) + 3])))
        return G
    P.wait_lgkm_all()
    stamp(P, 14)
    P("s_barrier")
    stamp(P, 3)
    for x in gu_reads(0): P(x)
    poison()
    PFI = OPT.get("pfi", 0)
    for ks in range(2 * NP - 1):
        if ks % 2 == 1:
            P.wait_lgkm_all(); P("s_barrier")
        for g in gu_groups(ks):
            for x in g: P(x)
    P.wait_tag("kv0"); P.wait_lgkm_all(); P("s_barrier")
    stamp(P, 4)
    gq = []
    tmp = fx[0][0]; cst = fx[1][0]
    assert fx[0][1] == fx[0][0] + 4
    gel = []
    def load_window(k):
        n = 2 * (NP + k) - 1
        assert not gq
        gq.extend(gu_groups(n, late=(k > 0 and OPT.get("sb", 0))))
        if n < 31: gq.extend(gu_groups(n + 1))
    def hookH(it, x, pos):
        if pos == "sync?": return 1 <= it <= JIT
        if pos == "pre0": sigstamp(it, 0); return
        if pos == "pre": sigstamp(it, 1); return
        if pos == "start": load_window(0); return
        midprio(it, x, pos)
        if pos in ("qk", "pv1") and H_LATE: emit(H_LATE.pop(0))
        if pos == "pv2" and x == 1 and PF & 1:
            if it == PFI: pf(1, True)
            if it == PFI + 2: pf(2, True)
            if it == PFI + 5: pf(3, True)
        if pos == "pv2" and x == 1 and OPT.get("wpf", 1) and it in (7, 8, 9, 10):
            k = it - 7
            P(f"s_cmp_lg_u32 s{S_W}, {k}")
            P(f"s_cbranch_scc1 LF_wp{k}")
            P(f"buffer_load_dword v{vpd}, v{vpw}, s[{S_PFS}:{S_PFS+3}], 0 offen")
            P.I[-1].kind = "salu"; P.I[-1].vw = set()
            P(f"LF_wp{k}:")
        if pos == "pv1" and x == 0 and 1 <= it <= JIT: load_window(it)
        if pos in ("g1", "g2", "g3", "g4", "g5", "g6"):
            if gq and not (it == 0 and pos in ("g1", "g3", "g5") and False):
                for t in gq.pop(0): P(t)
                if not gq and it == JIT and x == 1:
                    L = [f"v_mov_b32 v{cst}, {hexf(GELU_C1)}", f"v_mov_b32 v{cst+1}, {hexf(GELU_C1)}",
                         f"v_mov_b32 v{cst+2}, {hexf(GELU_C2)}", f"v_mov_b32 v{cst+3}, {hexf(GELU_C2)}"]
                    k = 0
                    for i in range(3):
                        for t in range(2):
                            d = fw[k % 2][k // 2]; k += 1
                            L += gelu_tile_pk(acc[i][t], d, tmp, cst)
                            if t == 1: L.append(f"s_add_u32 s{SH[i]}, s{SH[i]}, {118*1024}")
                            L.append(f"buffer_store_dwordx4 {vr(d,4)}, v{l16}, {WSR}, s{SH[i]} offen sc1")
                    ns = 3 + 12 * (UNI - JIT - 1)
                    n = (len(L) + ns - 1) // ns
                    gel.extend(L[i:i + n] for i in range(0, len(L), n))
            elif gel:
                for t in gel.pop(0): P(t, tag="hst" if "store" in t else None)
    PM = OPT.get("pm", 5)
    def prioH(it, x):
        if PM == 1: return 3 if (it == 0 and x == 0) else None
        if PM == 3: return 3 - 2 * x
        if PM == 5: return (3 - 2 * x) if it < JIT else 3
        if PM == 6: return 3 if it >= JIT else None
        return None
    def prioL(it, x):
        if PM in (2, 6): return 1 if (it == 0 and x == 0) else None
        if PM == 3: return 3 - 2 * x
        if PM == 5: return (3 - 2 * x) if it < JIT else 0
        return None
    def midprio(it, x, pos):
        if PM in (3, 5) and pos == "pv2" and (PM == 3 or it <= JIT): P(f"s_setprio {2 * x}")
    attention(P, A, l16, range(0, UNI), hookH, prioH, kvf=lambda c: None)
    nsb = A["sb"].n; A["sb"].n = 0
    assert not gq and not gel, (len(gq), len(gel))
    P.cond_end(keep=True)
    P("s_branch LF_join")
    for n in ("vx0", "vtn", "wtr0", "wtr1", "wtr2", "vpf", "vpw"): V.release(n)

    P("LF_l0:")
    P.cond_begin()
    P("s_barrier")
    LOADS["f"]("l")
    stamp(P, 1)
    P("s_waitcnt vmcnt(8)")
    P("s_barrier")
    stamp(P, 2)
    P(f"s_cmp_eq_u32 s{S_W}, 6")
    P("s_cbranch_scc1 LF_l6")
    P(f"s_add_u32 s{S_T3}, s{S_T3}, 24")
    wq_pieces(P, vsl, S_T3, 8, "LF_ldq3", 1)
    P("s_waitcnt vmcnt(8)")
    P("s_branch LF_l6j")
    P("LF_l6:")
    P("s_waitcnt vmcnt(0)")
    P("LF_l6j:")
    P("s_barrier")
    P("LF_light:")
    emit(C_EARLY)

    pats = w_patterns(P, V, lane, t0, t1)
    P(f"s_lshl_b32 s{S_T0}, s{S_HP}, 1")
    P(f"s_mul_i32 s{S_WOFF}, s{S_T0}, {8*2752}")
    P(f"s_lshl_b32 s{S_T1}, s{S_U0}, 5")
    P(f"s_add_u32 s{S_WOFF}, s{S_WOFF}, s{S_T1}")
    P(f"s_mul_i32 s{S_WLDS}, s{S_T0}, 3072")
    P(f"s_mul_i32 s{S_T1}, s{S_TT}, {UP_OFF}")
    P(f"s_add_u32 s{S_WLDS}, s{S_WLDS}, s{S_T1}")
    inattn = dict(on=False)
    P(f"s_add_u32 s{S_WOFF}, s{S_WOFF}, 0")
    P(f"v_subrev_u32 v{pats[1]}, 1024, v{pats[1]}")
    P(f"v_subrev_u32 v{pats[2]}, 2048, v{pats[2]}")
    def w_dma1(s, k):
        g, i = k // 3, k % 3
        solo = not OPT.get("wm0", 1) or inattn["on"]
        if i == 0 or solo:
            dma(P, pats[i], S_WM, f"s{S_T3}", (S_WLDS, SLOT[s % 3] + 3072 * g), offset=1024 * i, tag=f"w{s}",
                pre=[f"s_add_u32 s{S_T3}, s{S_WOFF}, 0x{(32*s + 8*g)*2752:x}"] if i == 0 else None)
        else:
            P(f"buffer_load_dwordx4 v{pats[i]}, s[{S_WM}:{S_WM+3}], s{S_T3} offen offset:{1024*i} lds", tag=f"w{s}")
    def w_dma6(s):
        for k in range(6): w_dma1(s, k)
    stamp(P, 11)
    P("s_barrier")
    w_dma6(0)
    P("s_waitcnt vmcnt(6)"); P.I[-1].kind = "salu"
    P("s_barrier")
    h = len(C_LATE) // 4
    emit(C_LATE[:h])
    stamp(P, 13)
    P("s_barrier")
    w_dma6(1)
    emit(C_LATE[h:])
    dma(P, l16, S_GW, "0", (None, GWL), tag="gw")
    vgw = acc[0][1]
    P(f"v_lshrrev_b32 v{t0}, 5, v{lane}")
    P(f"v_lshlrev_b32 v{vgw}, 4, v{t0}")
    P(f"s_lshl_b32 s{S_T0}, s{S_HP}, 9")
    P(f"v_add_u32 v{vxa}, s{S_T0}, v{vxa}")
    P(f"s_add_u32 s{S_T0}, s{S_T0}, 0x{GWL:x}")
    P(f"v_add_u32 v{vgw}, s{S_T0}, v{vgw}")
    P(f"s_lshl_b32 s{S_T0}, s{S_W}, 8")
    P(f"s_add_u32 s{S_T0}, s{S_T0}, 0x{ONES - 1024:x}")
    P(f"v_lshlrev_b32 v{t0}, 2, v{lane}")
    P(f"v_add_u32 v{t0}, s{S_T0}, v{t0}")
    P(f"v_mov_b32 v{t1}, 0x3f803f80")
    P(f"v_lshrrev_b32 v1, 2, v{lane}")
    P(f"v_and_b32 v1, 11, v1")
    P(f"v_cmp_eq_u32 vcc, 0, v1")
    P(f"v_cndmask_b32 v{t1}, 0, v{t1}, vcc")
    P(f"ds_write_b32 v{t0}, v{t1}")
    P(f"ds_write_b32 v{t0}, v{t1} offset:1024")
    poison()
    za = acc[0][0]; zx = [acc[1][0] + 4 * i for i in range(4)]; zg = [acc[2][0] + 4 * i for i in range(4)]
    def zjob():
        for r in range(4): P(f"v_mov_b32 v{za+r}, 0")
        def zld(k):
            P(f"ds_read_b128 {vr(zx[k%4],4)}, v{vxa} offset:{k*32}")
            P(f"ds_read_b128 {vr(zg[k%4],4)}, v{vgw} offset:{k*32}")
        for k in range(3): zld(k)
        for k in range(16):
            for r in range(4): P(f"v_dot2c_f32_bf16 v{za+r}, v{zx[k%4]+r}, v{zg[k%4]+r}")
            if k + 3 < 16: zld(k + 3)
        P("s_nop 2")
        P(f"v_add_f32 v{za}, v{za}, v{za+1}")
        P(f"v_add_f32 v{za+2}, v{za+2}, v{za+3}")
        P(f"v_add_f32 v{za}, v{za}, v{za+2}")
        P(f"s_and_b32 s{S_T0}, s{S_W}, 3")
        P(f"s_lshl_b32 s{S_T0}, s{S_T0}, 8")
        P(f"s_add_u32 s{S_T0}, s{S_T0}, 0x{MISC:x}")
        P(f"v_lshlrev_b32 v{t0}, 2, v{lane}")
        P(f"v_add_u32 v{t0}, s{S_T0}, v{t0}")
        P(f"ds_write_b32 v{t0}, v{za}")
    P(f"s_mov_b32 s{S_T6}, 0x{FL_KV:x}")
    def kv_both(c):
        kv_dma(P, l16, c)
        dma(P, l16, S_WS, f"s{S_T2}", (S_KVLDS, (8192 * (c & 1) - 4096) & 0xffffffff), tag=f"kv{c}", mods=SC1, pre=[f"s_sub_u32 s{S_T2}, s{S_T2}, 32768"])
    def poll_issue():
        P(f"buffer_load_dword v{vn}, v{vz}, s[{S_DBG}:{S_DBG+3}], 0 offen sc1")
        P(flag_load(vfl, 4, l16, f"s{S_T6}"))
    for s in range(0, NP + 1):
        P.wait_tag(f"w{s}")
        P.wait_lgkm_all()
        if s == 0: stamp(P, 14)
        P("s_barrier")
        if s == 0:
            stamp(P, 3)
            P(f"ds_read_b128 {vr(qf,4)}, v{vq} offset:1024")
            P(f"ds_read_b128 {vr(qf+4,4)}, v{vq}")
        if s == NP: kv_both(1)
        if s < NP: w_dma6(s + 2)
        if s == 0:
            P(f"buffer_load_dword v{vn}, v{vz}, s[{S_DBG}:{S_DBG+3}], 0 offen sc1")
            P.wait_tag("gw")
            zjob()
    assert NP >= 1
    stamp(P, 4)
    dq = []
    def hookL(it, x, pos):
        if pos == "sync?": return 1 <= it <= JIT
        if pos == "pre0": sigstamp(it, 0); return
        if pos == "pre":
            if NP + it < 16: P.wait_tag(f"w{NP+it}")
            sigstamp(it, 1); return
        if (pos == "start" or pos == "chk") and NP + it + 2 < 16:
            assert not dq
            for k in range(0 if OPT.get("abl_ldma") else 6): dq.append(lambda s=NP + it + 2, k=k: w_dma1(s, k))
        midprio(it, x, pos)
        if (pos in ("pv2", "qk", "pv1") or (pos == "g5" and x == 1 and OPT.get("sb", 0))) and dq: dq.pop(0)()
    attention(P, A, l16, range(0, UNI), hookL, prioL, kvf=kv_both)
    assert A["sb"].n == nsb
    assert not dq
    P.cond_end(keep=True)
    P("LF_join:")
    P.join()
    for n in ["wpat0", "wpat1", "wpat2", "vxa", "vq"] + [f"acc{i}{t}" for i in range(3) for t in range(2)] + \
             [f"fx{b}{t}" for b in range(2) for t in range(2)] + [f"fw{b}{i}" for b in range(2) for i in range(3)]: V.release(n)
    stamp(P, 5)

    facc = V.alloc("facc", 16); facc1 = V.alloc("facc1", 16); fa = V.alloc("ffa", 8)
    NB = OPT.get("nb", 6)
    hb = [V.alloc(f"hb{i}", 4) for i in range(NB)]; fb = hb[0]
    vl4 = V.alloc("vl4"); vg = V.alloc("vg"); zt = V.alloc("zt", 2)
    va0 = tr_slice_addr(P, V, "fa0", lane, t0, t1, 0, S_KH, 4)
    vA = [[va0, V.alloc("fa0h")], [V.alloc("fa1"), V.alloc("fa1h")]]
    P(f"s_lshl_b32 s{S_T1}, s{S_HP}, 5")
    P(f"v_xor_b32 v{va0}, s{S_T1}, v{va0}")
    P(f"s_lshr_b32 s{S_T0}, s{S_W}, 1")
    P(f"s_lshl_b32 s{S_T1}, s{S_T0}, 11")
    P(f"v_add_u32 v{va0}, s{S_T1}, v{va0}")
    P(f"v_xor_b32 v{vA[1][0]}, 64, v{va0}")
    P(f"v_add_u32 v{vA[0][1]}, 0x10000, v{va0}")
    P(f"v_add_u32 v{vA[1][1]}, 0x10000, v{vA[1][0]}")
    P(f"s_mul_i32 s{S_FB}, s{S_TILE}, 118")
    P(f"s_add_u32 s{S_FB}, s{S_FB}, s{S_T0}")
    P(f"s_lshl_b32 s{S_FB}, s{S_FB}, 10")
    P(f"s_add_u32 s{S_FB}, s{S_FB}, 0x{WS_OH:x}")
    P(f"v_lshlrev_b32 v{vl4}, 2, v{lane}")
    vhf = V.alloc("vhf")
    P(f"v_lshrrev_b32 v{t0}, 3, v{lane}")
    P(f"v_mul_u32_u24 v{t0}, 96, v{t0}")
    P(f"v_add_u32 v{vhf}, v{t0}, v{vl4}")
    P(f"s_lshl_b32 s{S_T0}, s{S_TT}, 8")
    P(f"s_add_u32 s{S_T0}, s{S_T0}, 0x{MISC:x}")
    P(f"v_add_u32 v{t0}, s{S_T0}, v{vl4}")
    P(f"ds_read_b32 v{zt}, v{t0}")
    P(f"ds_read_b32 v{zt+1}, v{t0} offset:512")
    P(f"v_add_f32 v{zt}, v{zt}, v{zt+1}")
    P(f"v_mov_b32 v{zt+1}, v{zt}")
    P(f"v_permlane32_swap_b32 v{zt}, v{zt+1}")
    P(f"v_add_f32 v{zt}, v{zt}, v{zt+1}")
    P(f"v_mul_f32 v{t0}, {hexf(-LOG2E)}, v{zt}")
    P(f"v_exp_f32 v{t0}, v{t0}")
    P(f"v_add_f32 v{t0}, 1.0, v{t0}")
    P(f"v_rcp_f32 v{vg}, v{t0}")
    V.release("zt")
    vw = [V.alloc(f"vw{i}") for i in range(3)]; vrd = V.alloc("vrd"); vo = V.alloc("vo")
    def sbase(dst, w):
        P(f"s_mul_i32 s{S_T1}, s{w}, 6144")
        P(f"v_add_u32 v{dst}, s{S_T1}, v{l16}")
    sbase(vrd, S_W)
    for b in range(1, 4):
        P(f"s_xor_b32 s{S_T0}, s{S_W}, {b << 1}")
        sbase(vw[b - 1], S_T0)
    P(f"v_and_b32 v{vo}, 31, v{lane}")
    P(f"v_lshlrev_b32 v{vo}, 10, v{vo}")
    P(f"v_lshrrev_b32 v{t1}, 5, v{lane}")
    P(f"v_lshl_add_u32 v{vo}, v{t1}, 4, v{vo}")
    P(f"s_lshl_b32 s{S_OO}, s{S_TILE}, 15")
    P(f"s_lshl_b32 s{S_T1}, s{S_J}, 7")
    P(f"s_add_u32 s{S_OO}, s{S_OO}, s{S_T1}")
    P(f"s_lshl_b32 s{S_T1}, s{S_KH}, 6")
    P(f"s_add_u32 s{S_OO}, s{S_OO}, s{S_T1}")
    P(f"s_lshl_b32 s{S_T1}, s{S_HP}, 5")
    P(f"s_add_u32 s{S_OO}, s{S_OO}, s{S_T1}")
    vp = V.alloc("vp"); vpa = V.alloc("vpa")
    P(f"v_lshlrev_b32 v{vpa}, 10, v{lane}")
    vt0 = V.alloc("vt0"); vt1 = V.alloc("vt1")
    P(f"s_lshr_b32 s{S_T1}, s{S_W}, 1")
    P(f"s_mul_i32 s{S_T1}, s{S_T1}, {16384 - 2048}")
    P(f"s_add_u32 s{S_T1}, s{S_T1}, {3*16384}")
    P(f"v_add_u32 v{vt0}, s{S_T1}, v{vA[0][0]}")
    P(f"v_add_u32 v{vt1}, s{S_T1}, v{vA[1][0]}")
    va = V.alloc("cva"); vb = V.alloc("cvb"); fb = V.alloc("cvon")
    P(f"s_mul_i32 s{S_T0}, s{S_W}, 3072")
    P(f"s_add_u32 s{S_T0}, s{S_T0}, 114688")
    P(f"v_add_u32 v{va}, s{S_T0}, v{l16}")
    P(f"s_xor_b32 s{S_T0}, s{S_W}, 4")
    P(f"s_mul_i32 s{S_T0}, s{S_T0}, 3072")
    P(f"s_add_u32 s{S_T0}, s{S_T0}, 114688")
    P(f"v_add_u32 v{vb}, s{S_T0}, v{l16}")
    P(f"s_add_u32 s{S_OL2}, s{S_OL}, 4096")
    BSLOT = lambda b: ((b % 8) if b < 11 else (b - 8)) * 16384
    def a_reads(r, d):
        o = (4 * r % 64) * 2048; hi = o >> 16; o &= 0xffff
        assert r // 2 in vis, (r, vis)
        rd_done[r // 2] = rd_done.get(r // 2, 0) + 1
        if OPT.get("abl_uds"): return
        P(f"ds_read_b64_tr_b16 {vr(fa+4*d,2)}, v{vA[d][hi]} offset:{o}")
        P(f"ds_read_b64_tr_b16 {vr(fa+4*d+2,2)}, v{vA[d][hi]} offset:{o+1024}")
    def h_load(r):
        if OPT.get("abl_uh"): return
        P(f"s_add_u32 s{S_T2}, s{S_FB}, {4096*r}")
        if r == 21:
            P(f"s_cmp_lt_u32 s{S_W}, 4")
            P(f"s_cselect_b32 s{S_T2}, s{S_T2}, 0x{OOB:x}")
        P(f"buffer_load_dwordx4 {vr(hb[r%NB],4)}, v{l16}, {WSR}, s{S_T2} offen sc1")
    pend = {}
    dq = []; vis = set(); issued = {}; rd_done = {}; nxt = dict(b=0, r=0, d=0, pre=False)
    def qW(b):
        def f(i):
            if not OPT.get("abl_uw"): fin_dma_w1(P, vsl, b, BSLOT(b), f"fw{b}", i)
            issued[b] = issued.get(b, 0) + 1
        for i in range(2): dq.append(lambda i=i: f(i))
    CH = OPT.get("ch", HF + 3); R0 = OPT.get("r0", 2 * (CH + 2))
    DBL = OPT.get("dbl", 64)
    def mstep():
        r, d = nxt["r"], nxt["d"]
        if r >= 22: return
        if not nxt["pre"]:
            a_reads(0, 0); a_reads(0, 1); nxt["pre"] = True; return
        if not OPT.get("abl_um"): P(mfma([facc, facc1][d], fa + 4 * d, hb[r % NB], [facc, facc1][d] if r else None))
        if r + 1 < 22: a_reads(r + 1, d)
        if d == 1 and r + NB < 22: dq.insert(0, lambda r=r: h_load(r + NB))
        nxt["d"] = 1 - d; nxt["r"] = r + d
    def hookU(it, x, pos):
        sig = (x == 0 and (it & 1)); ph = 2 * it + x
        if pos == "sync?": return False
        if pos == "pre0": sigstamp(it, 0); return
        if pos == "pre":
            if it == HF: P.wait_vm_all()
            need = [b for b in issued if issued[b] == 2 and b not in vis and (it == 29 or b <= (max(0, ph + 8 - R0) * (2 if ph + 6 >= DBL else 1)) // 2) and b <= 10]
            if need: P.wait_tag(*[f"fw{b}" for b in need])
            pend["vis"] = need; pend["free"] = {b for b in rd_done if rd_done[b] >= 4}
            sigstamp(it, 1); return
        if pos == "pv1" and sig and it == HF:
            nonce_check(P, SL, vn, vz)
            flag_store(P, vz, t0, S_FS)
        if pos == "chk":
            vis.update(pend["vis"])
            while it >= HF and nxt["b"] < 15:
                b = nxt["b"]; prev = {8: 0, 9: 1, 10: 2, 11: 3, 12: 4, 13: 5, 14: 6}.get(b)
                if prev is not None and prev not in pend["free"]: break
                qW(b); nxt["b"] += 1
            return
        if pos == "pv2" and x == 0 and it == CH - 1: P(flag_load(vfl, 1, vhf, f"s{S_FP}"))
        if pos == "pv2" and x == 0 and it == CH:
            spin_check(P, SL, [flag_load(vfl, 1, vhf, f"s{S_FP}")], flag_cmp(vfl, 1, t0), sleep=OPT.get("hsl", 4))
            for r in range(NB): dq.insert(r, lambda r=r: h_load(r))
        elif dq and (pos in ("pv2", "qk") or (pos in ("g2", "g5") and it in (CH, CH + 1)) or (pos == "g5" and OPT.get("d3"))): dq.pop(0)()
        if nxt["r"] >= 22 - OPT.get("tr", 5) and nxt["d"] == 0: pass
        elif (pos in ("g1", "g4") and ph >= R0) or (pos == "g4" and ph == R0 - 1) or (pos in ("g3", "g6") and ph >= DBL): mstep()
        if pos == "g6" and it == 31 and x == 1:
            assert nxt["b"] == 15, nxt
            print("rounds left for tail:", 22 - nxt["r"])
    def prioU(it, x):
        if not OPT.get("prio", 1): return None
        return 3 - (2 * ((it + 1) & 1) + x)
    attention(P, A, l16, range(UNI, 32), hookU, prioU)
    assert not dq
    stamp(P, 6)
    if OPT.get("sig"):
        P(f"s_lshl_b32 s98, s2, 11")
        P(f"s_lshl_b32 s99, s{S_W}, 8")
        P(f"s_add_u32 s98, s98, s99")
        P(f"s_add_u32 s98, s98, 0x{WS_STAMP + (1<<20):x}")
        P(f"buffer_store_dword v{vsig}, v{vl4}, {WSR}, s98 offen")
    P("s_setprio 0")
    P(f"v_mov_b32 v{O[1]+7}, v{O[1]}")
    for i in range(3): P(f"ds_write_b128 v{va}, {vr(O[1]+4+4*i,4)} offset:{1024*i}")
    P.wait_tag(*[f"fw{b}" for b in range(8, 15)]); P.wait_lgkm_all()
    P("s_barrier")
    vis.update(range(11))
    for i in range(3): P(f"ds_read_b128 {vr(O[1]+4+4*i,4)}, v{vb} offset:{1024*i}")
    P(f"v_add_f32 v{O[0]}, v{O[0]}, v{O[1]+7}")
    for r in range(8, 16): P(f"v_add_f32 v{O[0]+r}, v{O[0]+r}, v{O[1]+r}")
    P(f"v_mov_b32 v{t1}, 0x207")
    P(f"v_cmp_nle_f32 vcc, {hexf(2.0**-90)}, v{O[0]}")
    P(f"v_cmp_nge_f32 s[{S_PM}:{S_PM+1}], {'s' + str(S_T0)}, v{O[0]}".replace(f"s{S_T0}", f"s{S_C1}"))
    P(f"s_or_b64 vcc, vcc, s[{S_PM}:{S_PM+1}]")
    P(f"v_add3_u32 v{t0}, v{O[0]+8}, 0, 0".replace("v_add3_u32", "v_add_f32").replace(", 0, 0", f", v{O[0]+9}"))
    for r in range(10, 16): P(f"v_add_f32 v{t0}, v{t0}, v{O[0]+r}")
    P(f"v_cmp_class_f32 s[{S_PM}:{S_PM+1}], v{t0}, v{t1}")
    P(f"s_or_b64 vcc, vcc, s[{S_PM}:{S_PM+1}]")
    if OPT.get("forcefb"): P("s_mov_b64 vcc, -1")
    P("s_cmp_lg_u64 vcc, 0")
    P("s_cbranch_scc1 LF_fb")
    P("LF_fbr:")
    P(f"v_rcp_f32 v{t0}, v{O[0]}")
    P(f"v_mul_f32 v{t0}, v{t0}, v{vg}")
    for r in range(8, 16): P(f"v_mul_f32 v{O[0]+r}, v{O[0]+r}, v{t0}")
    for r in range(4): P(f"v_cvt_pk_bf16_f32 v{O[1]+r}, v{O[0]+8+2*r}, v{O[0]+9+2*r}")
    for r in range(4): P(f"v_min_u32 v{O[1]+r}, 0xfffffffe, v{O[1]+r}")
    P(f"buffer_store_dwordx4 {vr(O[1],4)}, v{l16}, {WSR}, s{S_OD} offen sc1", tag="ost")
    stamp(P, 7)
    K4, V8, ON, CM = A["fk"], A["fv"][0], fb, O[1]
    assert A["fv"][1] == V8 + 4
    nl = "\n    "
    fbk = f"""LF_fb:
    s_waitcnt vmcnt(0) lgkmcnt(0)
    v_mov_b32 v{t0}, 0xff800000
    s_mov_b32 s{S_T0}, 0x{WS_KF:x}
LF_fb1:
    buffer_load_dwordx4 {vr(K4,4)}, v{l16}, {WSR}, s{S_T0} offen sc1
    s_waitcnt vmcnt(0)
    {mfma(S[0], K4, qf)}
    s_nop 15
    {nl.join(f"v_max3_f32 v{t0}, v{S[0]+2*r}, v{S[0]+2*r+1}, v{t0}" for r in range(8))}
    s_add_u32 s{S_T0}, s{S_T0}, 1024
    s_cmp_lt_u32 s{S_T0}, 0x{WS_KF + 65536:x}
    s_cbranch_scc1 LF_fb1
    v_mov_b32 v{t1}, v{t0}
    s_nop 1
    v_permlane32_swap_b32 v{t0}, v{t1}
    s_nop 1
    v_max_f32 v{t0}, v{t0}, v{t1}
    {nl.join(f"v_sub_f32 v{CM+r}, 0, v{t0}" for r in range(16))}
    {nl.join(f"v_mov_b32 v{O[0]+r}, 0" for r in range(16))}
    v_lshrrev_b32 v{t0}, 5, v{lane}
    v_lshlrev_b32 v{t0}, 8, v{t0}
    v_and_b32 v{t1}, 15, v{lane}
    v_lshl_add_u32 v{t0}, v{t1}, 4, v{t0}
    v_and_b32 v{t1}, 16, v{lane}
    v_cmp_eq_u32 vcc, 0, v{t1}
    v_mov_b32 v{t1}, 0x{OOB:x}
    s_nop 1
    v_cndmask_b32 v{t0}, v{t0}, v{t1}, vcc
    v_and_b32 v{t1}, 27, v{lane}
    v_cmp_eq_u32 vcc, 0, v{t1}
    v_mov_b32 v{ON}, 0x3f803f80
    s_nop 1
    v_cndmask_b32 v{ON}, 0, v{ON}, vcc
    s_mov_b32 s{S_T0}, 0x{WS_KF:x}
LF_fb2:
    s_add_u32 s{S_T1}, s{S_T0}, 0x{WS_VF - WS_KF:x}
    buffer_load_dwordx4 {vr(K4,4)}, v{l16}, {WSR}, s{S_T0} offen sc1
    buffer_load_dwordx4 {vr(V8,4)}, v{t0}, {WSR}, s{S_T1} offen sc1
    buffer_load_dwordx4 {vr(V8+4,4)}, v{t0}, {WSR}, s{S_T1} offen offset:512 sc1
    s_waitcnt vmcnt(0)
    {mfma(S[0], K4, qf, CM)}
    {nl.join(f"v_or_b32 v{V8+r}, v{V8+r}, v{ON}" for r in range(8))}
    s_nop 7
    {nl.join(f"v_exp_f32 v{S[0]+r}, v{S[0]+r}" for r in range(16))}
    s_nop 1
    {nl.join(f"v_cvt_pk_bf16_f32 v{S[1]+r}, v{S[0]+2*r}, v{S[0]+2*r+1}" for r in range(8))}
    s_nop 1
    {mfma(O[0], V8, S[1], O[0])}
    {mfma(O[0], V8+4, S[1]+4, O[0])}
    s_add_u32 s{S_T0}, s{S_T0}, 1024
    s_cmp_lt_u32 s{S_T0}, 0x{WS_KF + 65536:x}
    s_cbranch_scc1 LF_fb2
    s_nop 15
    s_branch LF_fbr
"""
    SL.add(fbk)
    for n in ("Sa", "Sb", "Oa", "qf", "fk", "fv1", "fv2"): V.release(n)
    ob = V.alloc("ob", 32); wa = [V.alloc(f"wa{u}", 8) for u in range(8)]
    def oloads(g): return [f"buffer_load_dwordx4 {vr(ob+16*g+4*u,4)}, v{l16}, {WSR}, s{[S_OL,S_OL2][g]} offen offset:{1024*u} sc1" for u in range(4)]
    def ocheck(g):
        b = ob + 16 * g
        L = [f"v_max3_u32 v{t0}, v{b}, v{b+1}, v{b+2}"]
        for k in range(3, 15, 2): L.append(f"v_max3_u32 v{t0}, v{b+k}, v{b+k+1}, v{t0}")
        L += [f"v_max_u32 v{t0}, v{b+15}, v{t0}", f"v_cmp_eq_u32 vcc, -1, v{t0}"]
        return L
    fa2 = V.alloc("ffa2", 8)
    wr = []
    for u in range(8):
        for d, v in ((0, vt0), (1, vt1)):
            wr.append([f"ds_read_b64_tr_b16 {vr(wa[u]+4*d,2)}, v{v} offset:{u*2048}", f"ds_read_b64_tr_b16 {vr(wa[u]+4*d+2,2)}, v{v} offset:{u*2048+1024}"])
    r0 = nxt["r"]; assert nxt["d"] == 0 and not dq
    def tr_reads(r, d):
        o = (4 * r % 64) * 2048; hi = o >> 16; o &= 0xffff; f = [fa, fa2][(r - r0) % 2] + 4 * d
        P(f"ds_read_b64_tr_b16 {vr(f,2)}, v{vA[d][hi]} offset:{o}")
        P(f"ds_read_b64_tr_b16 {vr(f+2,2)}, v{vA[d][hi]} offset:{o+1024}")
    if r0 + 1 < 22: tr_reads(r0 + 1, 0); tr_reads(r0 + 1, 1)
    OL = min(r0 + OPT.get("ol", 99), 22)
    for r in range(r0, 22):
        if r == OL:
            for g in range(2):
                for x in oloads(g): P(x)
        for d in range(2):
            P(mfma([facc, facc1][d], [fa, fa2][(r - r0) % 2] + 4 * d, hb[r % NB], [facc, facc1][d]))
            if r + 2 < 22: tr_reads(r + 2, d)
            elif wr:
                for g in wr[:4]:
                    for x in g: P(x)
                del wr[:4]
    for g in wr:
        for x in g: P(x)
    assert 22 - r0 <= NB and r0 >= 16
    if OPT.get("oab", 1): P.wait_lgkm_all(); P("s_barrier")
    if OL == 22:
        for g in range(2):
            for x in oloads(g): P(x)
    P(f"v_sub_f32 v{t1}, 1.0, v{vg}")
    P(f"v_mov_b32 v{t0}, v{t1}")
    assert t1 == t0 + 1 and t0 % 2 == 0
    for r in range(0, 16, 2): P(f"v_pk_mul_f32 v[{facc+r}:{facc+r+1}], v[{facc+r}:{facc+r+1}], v[{t0}:{t1}]")
    for r in range(0, 16, 2): P(f"v_pk_mul_f32 v[{facc1+r}:{facc1+r+1}], v[{facc1+r}:{facc1+r+1}], v[{t0}:{t1}]")
    if not OPT.get("oab", 1): P.wait_lgkm_all(); P("s_barrier")
    stamp(P, 8)
    nl = "\n    "
    for g in range(2):
        k = SL.n; SL.n += 1
        for x in ocheck(g): P(x)
        P(f"s_cbranch_vccnz LS{k}")
        P(f"LR{k}:")
        SL.add(f"""LS{k}:
    s_mov_b32 s{S_T7}, 0
LS{k}_p:
    s_sleep {OPT.get("osl", 2)}
    s_mov_b64 exec, 0xf
    buffer_load_dword v{vp}, v{vpa}, {WSR}, s{[S_OL,S_OL2][g]} offen offset:1020 sc1
    s_waitcnt vmcnt(0)
    v_cmp_eq_u32 vcc, -1, v{vp}
    s_mov_b64 exec, -1
    s_add_u32 s{S_T7}, s{S_T7}, 1
    s_cmp_ge_u32 s{S_T7}, 0x{SPIN_MAX:x}
    s_cbranch_scc1 LR{k}
    s_cbranch_vccnz LS{k}_p
    {nl.join(oloads(g))}
    s_waitcnt vmcnt(0)
    {nl.join(ocheck(g))}
    s_cbranch_vccnz LS{k}_p
    s_nop 1
    s_branch LR{k}
""")
        for u in range(4 * g, 4 * g + 4):
            P(mfma(facc1, wa[u] + 4, ob + 4 * u, facc1))
    W1 = [f"ds_write_b128 v{vw[b-1]}, {vr(src+4*i,4)} offset:{2048*(b-1) + 1024*i}" for b, src in ((2, facc1), (3, facc1 + 8)) for i in range(2)]
    for u in range(8):
        P(mfma(facc, wa[u], ob + 4 * u, facc))
        if u >= 3 and W1:
            if u == 3: P("s_nop 7")
            P(W1.pop(0))
    stamp(P, 9)
    for b, src in ((1, facc + 8),):
        for i in range(2): P(f"ds_write_b128 v{vw[b-1]}, {vr(src+4*i,4)} offset:{2048*(b-1) + 1024*i}")
    P.wait_lgkm_all()
    P("s_barrier")
    for i in range(6): P(f"ds_read_b128 {vr(ob+4*i,4)}, v{vrd} offset:{1024*i}")
    for b in range(3):
        for r in range(8): P(f"v_add_f32 v{facc+r}, v{facc+r}, v{ob+8*b+r}")
    for r in range(4): P(f"v_cvt_pk_bf16_f32 v{facc1+r}, v{facc+2*r}, v{facc+2*r+1}")
    P(f"v_permlane32_swap_b32 v{facc1}, v{facc1+2}")
    P(f"v_permlane32_swap_b32 v{facc1+1}, v{facc1+3}")
    P(f"buffer_store_dwordx4 {vr(facc1,4)}, v{vo}, s[{S_OUT}:{S_OUT+3}], s{S_OO} offen")
    if STAMP["on"]:
        P.wait_vm_all(); stamp(P, 10); stamp_dump(P, lane)
        if OPT.get("dbgst") is not None:
            P(f"s_cmp_lg_u32 s2, {OPT['dbgst']}")
            P("s_cbranch_scc1 LF_end")
            P(f"s_cmp_lg_u32 s{S_W}, {OPT.get('dbgw', 0)}")
            P("s_cbranch_scc1 LF_end")
            P(f"v_subrev_u32 v{VSTAMP}, s100, v{VSTAMP}")
            P("s_mov_b64 exec, 0x7fff")
            P(f"buffer_store_dword v{VSTAMP}, v1, s[{S_DBG}:{S_DBG+3}], 0 offen offset:4")
    P("LF_end:")
    P("s_endpgm")
    name = NAME + "_kernel"
    body, I = finalize(P)
    txt = f".text\n.globl {name}\n.p2align 8\n.type {name},@function\n{name}:\n" + body + "".join(SL.txt) + "LF_last:\n    s_endpgm\n"
    vg_ = 256 if STAMP["on"] else max(V.hi, 8)
    txt += KD.format(name=name, vgpr=vg_, sgpr=102 if STAMP['on'] else 96, accum=(vg_ + 3) // 4 * 4)
    return txt, I, vg_


if __name__ == "__main__":
    out = sys.argv[1]
    STAMP["on"] = "stamp" in sys.argv
    for a in sys.argv[2:]:
        if "=" in a: k, v = a.split("="); OPT[k] = int(v)
        else: OPT[a] = True
    import asmlib; asmlib.MERGE_D = OPT.get("md", 9)
    t, I, vg_ = kernel_F()
    hdr = HEADER + f"; @launch grid=(256,1,1) block=(512,1,1) lds={LDS_BYTES}\n" + '.amdgcn_target "amdgcn-amd-amdhsa--gfx950"\n'
    open(out, "w").write(hdr + t)
    print("insts", len(I), "vgpr", vg_, "nops", sum(1 for x in I if x.kind == "nop"))
```

```python
import sys, re
from parts import *
OPT = {}
S_NONCE = 93
S_HP, S_KH = 30, 31
SH = [4, 5, 6]
S_FS, S_FP, S_OD, S_OL = 7, 8, 9, 10
S_FW, S_FB, S_FL, S_FL2 = 12, 13, 14, 15
S_OO, S_OL2 = 11, 18
S_PM = 16
FL_KV, FL_H = WS_FLAG, WS_FLAG + 8192
WKV_L = KV_RING
QSCR = KV_RING + 8192
FSLOT = [0, 32768, 65536, 98304]
WO_CH = [98304, 114688, 0, 32768]
SC1 = " sc1"
SPIN_MAX = 1 << 22
WSR = f"s[{S_WS}:{S_WS+3}]"


class Slow:
    def __init__(self): self.txt = []; self.n = 0
    def add(self, t): self.txt.append(t)


LOADS = {}
def wq_pieces(P, vsl, s_first, n, label, rot):
    P(f"s_and_b32 s{S_T6}, s{S_G}, 7")
    if rot > 1: P(f"s_mul_i32 s{S_T6}, s{S_T6}, {rot}")
    P(f"s_add_u32 s{S_T5}, s{S_T6}, {n}")
    P(f"s_lshl_b32 s{S_T7}, s{S_J}, 7")
    P(f"{label}:")
    P(f"s_and_b32 s{S_T4}, s{S_T6}, {n-1}")
    P(f"s_add_u32 s{S_T4}, s{S_T4}, s{s_first}")
    P(f"s_mul_i32 s{S_T0}, s{S_T4}, 171")
    P(f"s_lshr_b32 s{S_T0}, s{S_T0}, 12")
    P(f"s_lshl_b32 s{S_T1}, s{S_T4}, 2")
    P(f"s_add_u32 s{S_T0}, s{S_T0}, s{S_T1}")
    P(f"s_lshl_b32 s{S_T0}, s{S_T0}, 8")
    P(f"s_add_u32 m0, s{S_T0}, 0x{SLOT[0]:x}")
    P(f"s_lshl_b32 s{S_T2}, s{S_T4}, 13")
    P(f"s_add_u32 s{S_T2}, s{S_T2}, s{S_T7}")
    P(f"s_add_u32 s{S_T6}, s{S_T6}, 1")
    P(f"buffer_load_dwordx4 v{vsl}, s[{S_WQ}:{S_WQ+3}], s{S_T2} offen lds")
    P.I[-1].kind = "salu"
    P(f"s_cmp_lg_u32 s{S_T6}, s{S_T5}")
    P(f"s_cbranch_scc1 {label}")


def emit_loads(P, l16, vsl, sfx):
    if sfx == "h":
        P(f"s_lshr_b32 s{S_T4}, s{S_J}, 1")
        P(f"s_lshl_b32 s{S_T4}, s{S_T4}, 4")
        P(f"s_mul_i32 s{S_T1}, s{S_W}, 12")
        P(f"s_add_u32 s{S_T4}, s{S_T4}, s{S_T1}")
        P(f"s_add_u32 s{S_T4}, s{S_T4}, 16")
        P(f"s_lshl_b32 s{S_T0}, s{S_G}, 16")
        P(f"s_and_b32 s{S_T6}, s{S_J}, 3")
        P(f"s_mul_i32 s{S_T6}, s{S_T6}, 3")
        P(f"s_mov_b32 s{S_T5}, 12")
        mk_srd(P, S_X, 4, SZ["x"])
        P("LF_ldx1:")
        P(f"s_add_u32 s{S_T1}, s{S_T6}, s{S_T4}")
        P(f"s_and_b32 s{S_T1}, s{S_T1}, 63")
        P(f"s_mul_i32 m0, s{S_T1}, {X_STRIDE}")
        P(f"s_lshl_b32 s{S_T2}, s{S_T1}, 10")
        P(f"s_add_u32 s{S_T2}, s{S_T2}, s{S_T0}")
        P(f"s_add_u32 s{S_T6}, s{S_T6}, 1")
        P(f"s_cmp_eq_u32 s{S_T6}, 12")
        P(f"s_cselect_b32 s{S_T6}, 0, s{S_T6}")
        P(f"buffer_load_dwordx4 v{l16}, s[{S_X}:{S_X+3}], s{S_T2} offen lds", tag="q")
        P(f"s_sub_u32 s{S_T5}, s{S_T5}, 1")
        P(f"s_cmp_lg_u32 s{S_T5}, 0")
        P("s_cbranch_scc1 LF_ldx1")
    else:
        mk_srd(P, S_WQ, 6, SZ["wq"])
        P(f"s_and_b32 s{S_T3}, s{S_W}, 3")
        P(f"s_lshl_b32 s{S_T3}, s{S_T3}, 3")
        wq_pieces(P, vsl, S_T3, 8, "LF_ldq1", 1)
        P(f"s_add_u32 s{S_T3}, s{S_T3}, 24")
        wq_pieces(P, vsl, S_T3, 8, "LF_ldq2", 1)


def prologue_f(P, V, endlabel):
    if STAMP["on"]: P("s_memrealtime s[100:101]")
    P("s_cmp_ge_u32 s2, 256")
    P(f"s_cbranch_scc1 {endlabel}")
    P("s_load_dwordx16 s[4:19], s[0:1], 0")
    P("s_load_dwordx8 s[20:27], s[0:1], 64")
    P("s_load_dwordx2 s[28:29], s[0:1], 96")
    lane = V.alloc("lane"); l16 = V.alloc("l16")
    P(f"v_lshrrev_b32 v1, 6, v0")
    P(f"v_and_b32 v{lane}, 63, v0")
    P(f"v_readfirstlane_b32 s{S_W}, v1")
    P(f"v_lshlrev_b32 v{l16}, 4, v{lane}")
    P(f"s_lshr_b32 s{S_T0}, s2, 3")
    if OPT.get("jrot"): P(f"s_add_u32 s{S_J}, s{S_T0}, {OPT['jrot']}"); P(f"s_and_b32 s{S_J}, s{S_J}, 3")
    else: P(f"s_and_b32 s{S_J}, s{S_T0}, 3")
    P(f"s_and_b32 s{S_T1}, s2, 1")
    P(f"s_lshl_b32 s{S_T1}, s{S_T1}, 2")
    P(f"s_add_u32 s{S_J}, s{S_J}, s{S_T1}")
    P(f"s_and_b32 s{S_G}, s2, 6")
    P(f"s_lshl_b32 s{S_G}, s{S_G}, 2")
    P(f"s_lshr_b32 s{S_T0}, s{S_T0}, 2")
    P(f"s_add_u32 s{S_G}, s{S_G}, s{S_T0}")
    t0 = V.alloc("t0"); t1 = V.alloc("t1")
    vsl = slice_pattern(P, V, lane, t0)
    LOADS["f"] = lambda sfx: emit_loads(P, l16, vsl, sfx)
    P(f"s_and_b32 s{S_TT}, s{S_W}, 1")
    P(f"s_lshl_b32 s{S_TILE}, s{S_G}, 1")
    P(f"s_add_u32 s{S_TILE}, s{S_TILE}, s{S_TT}")
    P(f"s_lshr_b32 s{S_HP}, s{S_W}, 1")
    P(f"s_and_b32 s{S_HP}, s{S_HP}, 1")
    P(f"s_lshr_b32 s{S_KH}, s{S_W}, 2")
    assert all((p * 171) >> 12 == p // 24 for p in range(64)) and SLOT_SZ == 3 * 8192 + 256
    return lane, l16, t0, t1, vsl


def rest_srds(P):
    P(f"s_cmp_eq_u32 s{S_TT}, 0")
    P(f"s_cselect_b32 s{S_WM}, s16, s18")
    P(f"s_cselect_b32 s{S_WM+1}, s17, s19")
    P(f"s_and_b32 s{S_WM+1}, s{S_WM+1}, 0xffff")
    P(f"s_mov_b32 s{S_WM+2}, 0x{SZ['wg']:x}")
    P(f"s_mov_b32 s{S_WM+3}, 0x20000")
    mk_srd(P, S_OUT, 24, SZ["out"])
    mk_srd(P, S_WO, 12, SZ["wo"])
    mk_srd(P, S_WD, 20, SZ["wd"])


def nonce_check(P, SL, vn, vz):
    k = SL.n; SL.n += 1
    P(f"v_readfirstlane_b32 s{S_NONCE}, v{vn}")
    P(f"s_cmp_eq_u32 s{S_NONCE}, 0")
    P(f"s_cbranch_scc1 LS{k}")
    P(f"LR{k}:")
    SL.add(f"""LS{k}:
    s_mov_b32 s{S_T7}, 0
LS{k}_l:
    s_sleep 2
    buffer_load_dword v{vn}, v{vz}, s[{S_DBG}:{S_DBG+3}], 0 offen sc1
    s_waitcnt vmcnt(0)
    v_readfirstlane_b32 s{S_NONCE}, v{vn}
    s_add_u32 s{S_T7}, s{S_T7}, 1
    s_cmp_ge_u32 s{S_T7}, 0x{SPIN_MAX:x}
    s_cbranch_scc1 LR{k}
    s_cmp_eq_u32 s{S_NONCE}, 0
    s_cbranch_scc1 LS{k}_l
    s_branch LR{k}
""")


def flag_load(vf, n, vaddr, soff):
    op = {1: "buffer_load_dword", 4: "buffer_load_dwordx4"}[n]
    return f"{op} {vr(vf,n)}, v{vaddr}, {WSR}, {soff} offen sc1"


def flag_cmp(vf, n, t):
    L = [f"v_xor_b32 v{t}, s{S_NONCE}, v{vf}"]
    for i in range(1, n):
        L += [f"v_xor_b32 v{vf+i}, s{S_NONCE}, v{vf+i}", f"v_or_b32 v{t}, v{t}, v{vf+i}"]
    L += [f"v_cmp_ne_u32 vcc, 0, v{t}"]
    return L


def spin_check(P, SL, loads, cmps, sleep=1):
    k = SL.n; SL.n += 1
    for x in cmps: P(x)
    P(f"s_cbranch_vccnz LS{k}")
    P(f"LR{k}:")
    nl = "\n    "
    SL.add(f"""LS{k}:
    s_mov_b32 s{S_T7}, 0
LS{k}_l:
    {f"s_sleep {sleep}" if sleep else "s_nop 0"}
    {nl.join(loads)}
    s_waitcnt vmcnt(0)
    {nl.join(cmps)}
    s_add_u32 s{S_T7}, s{S_T7}, 1
    s_cmp_ge_u32 s{S_T7}, 0x{SPIN_MAX:x}
    s_cbranch_scc1 LR{k}
    s_cbranch_vccnz LS{k}_l
    s_nop 1
    s_branch LR{k}
""")


def flag_store(P, vz, t, soff):
    P(f"v_mov_b32 v{t}, s{S_NONCE}")
    P("s_mov_b64 exec, 1")
    P(f"buffer_store_dword v{t}, v{vz}, {WSR}, s{soff} offen sc1", tag="flag")
    P("s_mov_b64 exec, -1")


PROG = MISC + 1024
class SplitBar:
    def __init__(self, P, V, SL, lane, t0):
        self.P, self.SL, self.n = P, SL, 0
        self.va = V.alloc("sba"); self.vr = V.alloc("sbr"); self.one = V.alloc("sb1"); self.vg = V.alloc("sbg")
        P(f"s_lshl_b32 s{S_T0}, s{S_W}, 8")
        P(f"s_add_u32 s{S_T0}, s{S_T0}, 0x{PROG:x}")
        P(f"v_lshlrev_b32 v{t0}, 2, v{lane}")
        P(f"v_add_u32 v{self.va}, s{S_T0}, v{t0}")
        P(f"v_and_b32 v{t0}, 7, v{lane}")
        P(f"v_mul_u32_u24 v{t0}, 260, v{t0}")
        P(f"v_add_u32 v{self.vr}, 0x{PROG:x}, v{t0}")
        P(f"v_mov_b32 v{self.one}, 0")
        P(f"ds_write_b32 v{self.va}, v{self.one}")
        P(f"v_mov_b32 v{self.one}, 1")
    def arrive(self):
        self.n += 1
        self.P(f"ds_add_u32 v{self.va}, v{self.one}")
    def peek(self): self.P(f"ds_read_b32 v{self.vg}, v{self.vr}")
    def check(self):
        k = self.SL.n; self.SL.n += 1
        self.P(f"v_cmp_gt_u32 vcc, {self.n}, v{self.vg}")
        self.P(f"s_cbranch_vccz LR{k}")
        self.P(f"LS{k}:")
        for t in ([f"s_sleep {OPT['ssl']}"] if OPT.get("ssl") else []) + [f"ds_read_b32 v{self.vg}, v{self.vr}", "s_waitcnt lgkmcnt(0)", f"v_cmp_gt_u32 vcc, {self.n}, v{self.vg}", f"s_cbranch_vccnz LS{k}"]:
            self.P(t); self.P.I[-1].kind = "salu"; self.P.I[-1].vw = set(); self.P.I[-1].vr = set()
        self.P(f"LR{k}:")


def attn_setup(P, V, lane, l16, t0, t1):
    A = {}
    P(f"s_lshl_b32 s{S_T1}, s{S_KH}, 12")
    vk = V.alloc("vk"); vv = [V.alloc("vv0"), V.alloc("vv1")]
    P(f"s_add_u32 s{S_T1}, s{S_T1}, 0x{KV_RING:x}")
    P(f"v_add_u32 v{vk}, s{S_T1}, v{l16}")
    P(f"v_lshrrev_b32 v{t0}, 5, v{lane}")
    P(f"v_lshlrev_b32 v{t0}, 8, v{t0}")
    P(f"v_and_b32 v{t1}, 15, v{lane}")
    P(f"v_lshl_add_u32 v{t0}, v{t1}, 4, v{t0}")
    P(f"v_and_b32 v{t1}, 16, v{lane}")
    P(f"v_cmp_eq_u32 vcc, 0, v{t1}")
    P(f"s_add_u32 s{S_T1}, s{S_T1}, 2048")
    for s in range(2):
        P(f"v_mov_b32 v{t1}, s{S_T1}")
        P(f"v_add_u32 v{t1}, {8192*s}, v{t1}")
        P(f"v_mov_b32 v{vv[s]}, 0x{ONES:x}")
        P(f"v_cndmask_b32 v{vv[s]}, v{t1}, v{vv[s]}, vcc")
        P(f"v_add_u32 v{vv[s]}, v{vv[s]}, v{t0}")
    P(f"s_lshl_b32 s{S_KVOFF}, s{S_KH}, 15")
    P(f"s_lshl_b32 s{S_T1}, s{S_HP}, 16")
    P(f"s_add_u32 s{S_KVOFF}, s{S_KVOFF}, s{S_T1}")
    P(f"s_lshl_b32 s{S_T1}, s{S_TT}, 10")
    P(f"s_add_u32 s{S_KVOFF}, s{S_KVOFF}, s{S_T1}")
    P(f"s_lshl_b32 s{S_KVLDS}, s{S_W}, 10")
    P(f"s_add_u32 s{S_KVLDS}, s{S_KVLDS}, 0x{KV_RING:x}")
    A.update(vk=vk, vv=vv)
    A["S"] = [V.alloc("Sa", 16), V.alloc("Sb", 16)]
    A["O"] = [V.alloc("Oa", 16), V.alloc("Ob", 16)]
    A["fk"] = V.alloc("fk", 4); A["fv"] = [V.alloc("fv1", 4), V.alloc("fv2", 4)]
    A["q"] = V.alloc("qf", 8)
    return A


def kv_dma(P, l16, c):
    dma(P, l16, S_WS, f"s{S_T2}", (S_KVLDS, 8192 * (c & 1)), tag=f"kv{c}", mods=SC1, pre=[f"s_add_u32 s{S_T2}, s{S_KVOFF}, {2048*c}"])


def attention(P, A, l16, its, hook, prio, kvf=None):
    S, O, fk, fv = A["S"], A["O"], A["fk"], A["fv"]
    SB = OPT.get("sb", 0)
    q = [A["q"], A["q"] + 4]
    def rdK(it): P(f"ds_read_b128 {vr(fk,4)}, v{A['vk']} offset:{((it>>1)&1)*8192 + (it&1)*1024}")
    def rdV(it, half): P(f"ds_read_b128 {vr(fv[half],4)}, v{A['vv'][(it>>1)&1]} offset:{(it&1)*1024 + half*512}")
    E = lambda x, i: P(f"v_exp_f32 v{S[x]+i}, v{S[x]+i}")
    def C(x, i):
        b = S[x] + (8 if i >= 4 else 0); k = i & 3
        P(f"v_cvt_pk_bf16_f32 v{b+k}, v{b+2*k}, v{b+2*k+1}")
    for it in its:
        if it == 0:
            rdK(0); rdV(0, 0)
            hook(0, 0, "start")
            P(mfma(S[0], fk, q[0]))
        for x in range(2):
            H = lambda pos: hook(it, x, pos)
            E(x, 0); E(x, 1)
            if x == 0:
                if it > 0: P(mfma(O[1], fv[1], S[1] + 8, O[1]))
                rdV(it, 1)
            else:
                P(mfma(O[0], fv[1], S[0] + 8, O[0]))
                if SB and A["syn"]:
                    A["sb"].check(); after_sync()
            H("pv2")
            E(x, 2); E(x, 3); H("g1")
            E(x, 4); E(x, 5); H("g2")
            E(x, 6); E(x, 7)
            if x == 0: P(mfma(S[1], fk, q[1]))
            elif it < 31: P(mfma(S[0], fk, q[0]))
            H("qk")
            sig = (x == 0 and (it & 1) and it < 31)
            syn = sig or (x == 0 and hook(it, x, "sync?"))
            ORD = OPT.get("ord", 2) if syn else 0
            for i in range(4): C(x, i)
            if ORD == 0: H("g3")
            E(x, 8); E(x, 9)
            if ORD == 2: P(mfma(O[x], fv[0], S[x], None if it == 0 else O[x]))
            if ORD: H("g3")
            if syn:
                H("pre0")
                if sig: P.wait_tag(f"kv{(it>>1)+1}")
                H("pre"); P.wait_lgkm_all()
                if SB: A["sb"].arrive()
                else: P("s_barrier")
            if ORD == 1: E(x, 10); E(x, 11)
            if ORD != 2: P(mfma(O[x], fv[0], S[x], None if it == 0 else O[x]))
            p = prio(it, x)
            if p is not None: P(f"s_setprio {p}")
            def after_sync():
                if it < 31: rdK(it + 1)
                if (it & 1) and (it >> 1) + 2 < 16: (kvf or (lambda c: kv_dma(P, l16, c)))((it >> 1) + 2)
                if A["syn"]: hook(it, 0, "chk")
            if x == 0:
                A["syn"] = syn
                if not (SB and syn): after_sync()
            else:
                if it < 31: rdV(it + 1, 0)
            H("pv1")
            if ORD != 1: E(x, 10); E(x, 11)
            else: E(x, 12)
            H("g4")
            if ORD != 1: E(x, 12)
            E(x, 13); H("g5")
            E(x, 14); E(x, 15); H("g6")
            if x == 0 and SB and A["syn"]: A["sb"].peek()
            for i in range(4, 8): C(x, i)
        if it == 31: P(mfma(O[1], fv[1], S[1] + 8, O[1]))


def fin_dma_w1(P, vsl, st, slot, tag, i):
    srd, u0 = (S_WD, 8 * st) if st < 11 else (S_WO, 8 * (st - 11))
    dma(P, vsl, srd, f"s{S_T2}", (S_FL2, slot + 1024 * i), tag=tag, pre=[f"s_add_u32 s{S_T2}, s{S_FW}, 0x{(16*u0 + 8*i)*1024:x}"])


def fin_dma_b1(P, l16, st, slot, tag, t):
    P(f"s_add_u32 s{S_T2}, s{S_FB}, 0x{(t*118 + 8*st)*1024:x}")
    if st == 10:
        P(f"s_cmp_lt_u32 s{S_W}, 6")
        P(f"s_cselect_b32 s{S_T2}, s{S_T2}, 0x{OOB:x}")
    dma(P, l16, S_WS, f"s{S_T2}", (S_FL, slot + 16384 + 8192 * t), tag=tag, mods=SC1)


def kernel_F():
    P = Prog(); V = Regs(2, 255, "v"); SL = Slow()
    NP = OPT.get("np", 2)
    JIT = 16 - NP
    GPP = OPT.get("gpp", 2)
    UNI = OPT.get("uni", JIT + 2)
    HF = OPT.get("hf", UNI | 1)
    lane, l16, t0, t1, vsl = prologue_f(P, V, "LF_end")
    vz = V.alloc("vz")
    P(f"s_cmp_lg_u32 s{S_W}, 7")
    P("s_cbranch_scc1 LF_not7")
    P(f"s_lshr_b32 s{S_T4}, s{S_J}, 1")
    P(f"s_lshl_b32 s{S_T0}, s{S_G}, 16")
    P(f"s_lshl_b32 s{S_T2}, s{S_T4}, 14")
    P(f"s_add_u32 s{S_T2}, s{S_T2}, s{S_T0}")
    P(f"s_mul_i32 m0, s{S_T4}, {16*X_STRIDE}")
    P(f"s_and_b32 s{S_T3}, s{S_J}, 1")
    P(f"s_mov_b32 s{S_T5}, 0")
    P("s_waitcnt lgkmcnt(0)")
    mk_srd(P, S_X, 4, SZ["x"])
    if OPT.get("u7", 1):
        P(f"s_sub_u32 s{S_X}, s{S_X}, 64")
        P(f"s_subb_u32 s{S_X+1}, s{S_X+1}, 0")
        P(f"s_mov_b32 s{S_X+2}, 0x{SZ['x'] + 64:x}")
        P(f"s_add_u32 s{S_T2}, s{S_T2}, 64")
        for g in range(4):
            for k in range(4):
                if k == 0:
                    if g: P(f"s_add_u32 m0, m0, {4*X_STRIDE}"); P(f"s_add_u32 s{S_T2}, s{S_T2}, {4096 + 48}")
                else: P(f"s_sub_u32 s{S_T2}, s{S_T2}, 16")
                P(f"buffer_load_dwordx4 v{l16}, s[{S_X}:{S_X+3}], s{S_T2} offen offset:{X_STRIDE*k} lds", tag="c")
    else:
        P("LF_ldx7:")
        P(f"buffer_load_dwordx4 v{l16}, s[{S_X}:{S_X+3}], s{S_T2} offen lds", tag="c")
        P(f"s_add_u32 m0, m0, {X_STRIDE}")
        P(f"s_add_u32 s{S_T2}, s{S_T2}, 1024")
        P(f"s_add_u32 s{S_T5}, s{S_T5}, 1")
        P(f"s_cmp_lg_u32 s{S_T5}, 16")
        P("s_cbranch_scc1 LF_ldx7")
    P(f"s_cmp_eq_u32 s{S_T3}, 0")
    P(f"s_cselect_b32 s{S_WKV}, s8, s10")
    P(f"s_cselect_b32 s{S_WKV+1}, s9, s11")
    P(f"s_and_b32 s{S_WKV+1}, s{S_WKV+1}, 0xffff")
    P(f"s_mov_b32 s{S_WKV+2}, 0x{SZ['wk']:x}")
    P(f"s_mov_b32 s{S_WKV+3}, 0x20000")
    P(f"s_mov_b32 m0, 0x{WKV_L:x}")
    P(f"s_mov_b32 s{S_T5}, 0")
    P("LF_ldw7:")
    for i in range(4):
        P(f"buffer_load_dwordx4 v{l16}, s[{S_WKV}:{S_WKV+3}], s{S_T5} offen offset:{1024*i} lds")
        P.I[-1].kind = "salu"
    P(f"s_add_u32 m0, m0, 4096")
    P(f"s_add_u32 s{S_T5}, s{S_T5}, 4096")
    P(f"s_cmp_lg_u32 s{S_T5}, 16384")
    P("s_cbranch_scc1 LF_ldw7")
    stamp(P, 15)
    P("s_barrier")
    P("LF_not7:")
    P("s_waitcnt lgkmcnt(0)")
    if OPT.get("cpf", 1):
        c = V.alloc("cpf")
        P(f"s_getpc_b64 s[{S_EX}:{S_EX+1}]")
        P("LF_pc0:")
        P(f"s_lshr_b32 s{S_T3}, s2, 3")
        P(f"s_lshl_b32 s{S_T3}, s{S_T3}, 3")
        P(f"s_add_u32 s{S_T3}, s{S_T3}, s{S_W}")
        P(f"s_lshl_b32 s{S_T3}, s{S_T3}, 8")
        P(f"v_lshlrev_b32 v{c}, 7, v{lane}")
        P(f"v_add_u32 v{c}, s{S_T3}, v{c}")
        P(f"v_min_u32 v{c}, LF_last-LF_pc0, v{c}")
        P("s_mov_b64 exec, 3")
        P(f"global_load_dword v{c}, v{c}, s[{S_EX}:{S_EX+1}]", tag="cpf")
        P("s_mov_b64 exec, -1")
    P(f"v_mov_b32 v{vz}, 0")
    mk_srd(P, S_WS, 28, SZ["ws"])
    mk_srd(P, S_DBG, 26, SZ["dbg"])
    vn = V.alloc("vn")
    P(f"s_or_b32 s{S_T0}, s2, s{S_W}")
    P(f"s_cmp_lg_u32 s{S_T0}, 0")
    P("s_cbranch_scc1 LF_non")
    P.cond_begin()
    P(f"s_memrealtime s[{S_EX}:{S_EX+1}]")
    P("s_waitcnt lgkmcnt(0)")
    P(f"s_mul_i32 s{S_EX+1}, s{S_EX+1}, 0x9e3779b1")
    P(f"s_xor_b32 s{S_EX}, s{S_EX}, s{S_EX+1}")
    P(f"s_or_b32 s{S_EX}, s{S_EX}, 1")
    P(f"v_mov_b32 v{t0}, s{S_EX}")
    P("s_mov_b64 exec, 1")
    P(f"buffer_store_dword v{t0}, v{vz}, s[{S_DBG}:{S_DBG+3}], 0 offen sc1")
    P("s_mov_b64 exec, -1")
    P.cond_end()
    P("LF_non:")
    P_main = P; P = Prog()
    rest_srds(P)
    mk_srd(P, S_GW, 22, SZ["gw"])
    P(f"s_mov_b32 s{S_C1}, {hexf(2.0**120)}")
    A = attn_setup(P, V, lane, l16, t0, t1)
    qf = A["q"]; O = A["O"]; S = A["S"]
    A["sb"] = SplitBar(P, V, SL, lane, t0) if OPT.get("sb", 0) else type("X", (), dict(n=0))()
    vfl = V.alloc("vfl", 4)
    P(f"s_lshl_b32 s{S_T0}, s{S_HP}, 1")
    P(f"s_add_u32 s{S_T0}, s{S_T0}, s{S_KH}")
    P(f"s_lshl_b32 s{S_T1}, s{S_J}, 2")
    P(f"s_add_u32 s{S_T0}, s{S_T0}, s{S_T1}")
    P(f"s_mul_i32 s{S_T1}, s{S_TILE}, 118")
    P(f"s_add_u32 s{S_T0}, s{S_T0}, s{S_T1}")
    P(f"s_lshl_b32 s{S_T0}, s{S_T0}, 10")
    P(f"s_add_u32 s{S_OD}, s{S_T0}, 0x{WS_OH + 86*1024:x}")
    def poison():
        for r in range(4): P(f"v_mov_b32 v{O[0]+r}, -1")
        P(f"buffer_store_dwordx4 {vr(O[0],4)}, v{l16}, {WSR}, s{S_OD} offen sc1", tag="poison")
    P(f"s_lshr_b32 s{S_T0}, s{S_W}, 1")
    P(f"s_lshl_b32 s{S_T0}, s{S_T0}, 3")
    P(f"s_add_u32 s{S_T0}, s{S_T0}, s{S_T1}")
    P(f"s_lshl_b32 s{S_T0}, s{S_T0}, 10")
    P(f"s_add_u32 s{S_OL}, s{S_T0}, 0x{WS_OH + 86*1024:x}")
    P(f"s_lshl_b32 s{S_FP}, s{S_G}, 10")
    P(f"s_lshl_b32 s{S_FS}, s{S_J}, 5")
    P(f"s_add_u32 s{S_FS}, s{S_FS}, s{S_W}")
    P(f"s_lshl_b32 s{S_FS}, s{S_FS}, 2")
    P(f"s_add_u32 s{S_FS}, s{S_FS}, s{S_FP}")
    P(f"s_add_u32 s{S_FS}, s{S_FS}, 0x{FL_H:x}")
    P(f"s_add_u32 s{S_FP}, s{S_FP}, 0x{FL_H:x}")
    P(f"s_lshl_b32 s{S_FW}, s{S_W}, 14")
    P(f"s_lshl_b32 s{S_T1}, s{S_J}, 7")
    P(f"s_add_u32 s{S_FW}, s{S_FW}, s{S_T1}")
    P(f"s_lshl_b32 s{S_FL2}, s{S_W}, 11")
    P(f"s_mul_i32 s{S_U0}, s{S_J}, 11")
    P(f"s_min_u32 s{S_U0}, s{S_U0}, 76")
    P(f"s_cmp_ge_u32 s{S_J}, 6")
    P(f"s_cselect_b32 s{S_NU}, 10, 11")
    vxa = xfrag_addr(P, V, "vxa", lane, t0, S_TT)
    vq = V.alloc("vq")
    P(f"s_and_b32 s{S_T0}, s{S_W}, 3")
    P(f"s_lshl_b32 s{S_T1}, s{S_T0}, 11")
    P(f"s_add_u32 s{S_T1}, s{S_T1}, 0x{QSCR:x}")
    P(f"v_add_u32 v{vq}, s{S_T1}, v{l16}")
    COMMON = P.I; P = P_main
    def emit(L):
        for x in L: P(x.text, tag=x.tag)
    iw = next(i for i, x in enumerate(COMMON) if x.text.startswith(f"s_mov_b32 s{S_WM+3},")) + 1
    iu = next(i for i, x in enumerate(COMMON) if x.text.startswith(f"s_mul_i32 s{S_U0},"))
    C_EARLY = COMMON[:iw] + COMMON[iu:iu + 4]; C_LATE = COMMON[iw:iu] + COMMON[iu + 4:]
    acc = [[V.alloc(f"acc{i}{t}", 16) for t in range(2)] for i in range(3)]
    fx = [[V.alloc(f"fx{b}{t}", 4) for t in range(2)] for b in range(2)]
    fw = [[V.alloc(f"fw{b}{i}", 4) for i in range(3)] for b in range(2)]
    S_PFB = 19
    def capture(f):
        nonlocal P
        P0 = P; P = Prog(); f(); L = P.I; P = P0
        return L
    R = {}
    def f1():
        vtn = tr_slice_addr(P, V, "vtn", lane, t0, t1, SLOT[0], S_HP, 8)
        vpf = V.alloc("vpf"); vpd = V.alloc("vpd"); vpw = V.alloc("vpw")
        P(f"v_bfe_u32 v{t0}, v{lane}, 4, 1")
        P(f"v_lshrrev_b32 v{t1}, 5, v{lane}")
        P(f"v_lshl_add_u32 v{t0}, v{t1}, 7, v{t0}")
        P(f"v_mul_u32_u24 v{vpf}, 2752, v{t0}")
        P(f"v_and_b32 v{t0}, 15, v{lane}")
        P(f"v_lshl_add_u32 v{vpf}, v{t0}, 7, v{vpf}")
        P(f"v_cmp_gt_u32 vcc, 12, v{t0}")
        P(f"v_mov_b32 v{t1}, 0x{OOB:x}")
        P(f"v_cndmask_b32 v{vpf}, v{t1}, v{vpf}, vcc")
        P(f"s_lshr_b32 s{S_T0}, s2, 3")
        P(f"s_lshl_b32 s{S_T0}, s{S_T0}, 1")
        P(f"s_add_u32 s{S_T0}, s{S_T0}, s{S_HP}")
        P(f"s_mul_i32 s{S_T0}, s{S_T0}, {2*2752}")
        P(f"s_and_b32 s{S_T1}, s2, 1")
        P(f"s_mul_i32 s{S_T1}, s{S_T1}, {44*32}")
        P(f"s_add_u32 s{S_PFB}, s{S_T0}, s{S_T1}")
        R.update(vtn=vtn, vpf=vpf, vpd=vpd, vpw=vpw)
    def f2():
        vx0 = V.alloc("vx0")
        P(f"s_mul_i32 s{S_T0}, s{S_TT}, {32*X_STRIDE}")
        P(f"v_subrev_u32 v{vx0}, s{S_T0}, v{vxa}")
        P(f"s_lshl_b32 s{S_T4}, s{S_W}, 1")
        wtr = w_tr_addrs(P, V, lane, t0, t1, s_w=S_T4)
        R.update(vx0=vx0, wtr=wtr)
    def f3():
        P(f"s_mul_i32 s{S_T0}, s{S_W}, 3")
        P(f"s_mul_i32 s{S_T1}, s{S_G}, 236")
        P(f"s_add_u32 s{S_T1}, s{S_T1}, s{S_U0}")
        for i in range(3):
            P(f"s_add_u32 s{S_T2}, s{S_T0}, {i}")
            P(f"s_add_u32 s{SH[i]}, s{S_T1}, s{S_T2}")
            P(f"s_lshl_b32 s{SH[i]}, s{SH[i]}, 10")
            P(f"s_add_u32 s{SH[i]}, s{SH[i]}, 0x{WS_OH:x}")
            P(f"s_cmp_lt_u32 s{S_T2}, s{S_NU}")
            P(f"s_cselect_b32 s{SH[i]}, s{SH[i]}, 0x{OOB:x}")
    def f4():
        vpw = R["vpw"]
        S_PFS = S_WKV
        P(f"s_lshr_b32 s{S_T0}, s2, 3")
        P(f"s_lshl_b32 s{S_T0}, s{S_T0}, 2")
        P(f"s_add_u32 s{S_T0}, s{S_T0}, s{S_W}")
        P(f"s_cmp_lt_u32 s{S_T0}, 86")
        P(f"s_cselect_b32 s{S_PFS}, s{S_WD}, s{S_WO}")
        P(f"s_cselect_b32 s{S_PFS+1}, s{S_WD+1}, s{S_WO+1}")
        P(f"s_cselect_b32 s{S_PFS+2}, s{S_WD+2}, s{S_WO+2}")
        P(f"s_cselect_b32 s{S_T1}, 0, 86")
        P(f"s_mov_b32 s{S_PFS+3}, 0x20000")
        P(f"s_sub_u32 s{S_T0}, s{S_T0}, s{S_T1}")
        P(f"s_lshl_b32 s{S_T0}, s{S_T0}, 14")
        P(f"s_and_b32 s{S_T1}, s2, 1")
        P(f"s_lshl_b32 s{S_T1}, s{S_T1}, 9")
        P(f"s_add_u32 s{S_T0}, s{S_T0}, s{S_T1}")
        P(f"v_lshrrev_b32 v{t0}, 2, v{lane}")
        P(f"v_lshlrev_b32 v{t0}, 10, v{t0}")
        P(f"v_and_b32 v{t1}, 3, v{lane}")
        P(f"v_lshl_add_u32 v{t0}, v{t1}, 7, v{t0}")
        P(f"v_add_u32 v{vpw}, s{S_T0}, v{t0}")
    ix = next(i for i, x in enumerate(COMMON) if x.text.startswith(f"v_and_b32 v{t0}, 31, v{lane}"))
    ia = next(i for i, x in enumerate(COMMON) if x.text.startswith(f"s_mov_b32 s{S_C1},")) + 1
    io = next(i for i, x in enumerate(COMMON) if x.text.startswith(f"s_lshl_b32 s{S_T0}, s{S_HP}, 1"))
    ifl = next(i for i, x in enumerate(COMMON) if x.text.startswith(f"s_lshl_b32 s{S_FP},"))
    H_PRE = COMMON[ix:ix + 6] + COMMON[:iw] + capture(f1)
    H_MID = COMMON[ia:io] + COMMON[ix + 6:] + capture(f2) + COMMON[io:ifl]
    H_LATE = [COMMON[iw:iw + 8], COMMON[iw + 8:ia], COMMON[ifl:iu], COMMON[iu:iu + 4]]
    sh = capture(f3); H_LATE += [sh[:9], sh[9:15], sh[15:]]
    wp = capture(f4); H_LATE += [wp[:14], wp[14:]]
    vtn, vpf, vpd, vpw, vx0, wtr = (R[k] for k in ("vtn", "vpf", "vpd", "vpw", "vx0", "wtr"))
    S_PFS = S_WKV
    def pf(blk, half):
        P(f"s_add_u32 s{S_T4}, s{S_PFB}, {128*2752*blk}")
        if half: P("s_mov_b64 exec, 0xffffffff")
        P(f"buffer_load_dword v{vpd}, v{vpf}, s[{S_WM}:{S_WM+3}], s{S_T4} offen", tag="pf")
        P.I[-1].vw = set()
        if half: P("s_mov_b64 exec, -1")
    PF = OPT.get("pf", 1)
    KT = 192; vx16 = 240; vw16 = 241; vst = 242; S_K5, S_K6 = S_T5, S_T6
    P(f"s_cmp_lg_u32 s{S_W}, 7")
    P("s_cbranch_scc1 LF_not7b")
    P.cond_begin()
    P(f"s_lshr_b32 s{S_T0}, s{S_J}, 1")
    P(f"s_lshl_b32 s{S_T1}, s{S_T0}, 4")
    P(f"v_and_b32 v{t0}, 15, v{lane}")
    P(f"v_add_u32 v{t1}, s{S_T1}, v{t0}")
    P(f"v_mul_u32_u24 v{vx16}, {X_STRIDE}, v{t1}")
    P(f"v_lshrrev_b32 v{t1}, 4, v{lane}")
    P(f"v_lshl_add_u32 v{vx16}, v{t1}, 4, v{vx16}")
    P(f"v_lshlrev_b32 v{vw16}, 8, v{t1}")
    P(f"v_lshl_add_u32 v{vw16}, v{t0}, 3, v{vw16}")
    P(f"v_add_u32 v{vw16}, 0x{WKV_L:x}, v{vw16}")
    P(f"s_and_b32 s{S_K6}, s{S_J}, 1")
    P(f"s_cmp_eq_u32 s{S_K6}, 0")
    P(f"s_cselect_b32 s{S_T3}, 9, 8")
    P(f"s_cselect_b32 s{S_T4}, 8, 9")
    P(f"s_cselect_b32 s{S_K5}, 0x{WS_KF:x}, 0x{WS_VF:x}")
    P(f"v_lshlrev_b32 v{vst}, 4, v{t0}")
    P(f"v_lshrrev_b32 v{t0}, 1, v{t1}")
    P(f"v_lshl_add_u32 v{vst}, v{t0}, 3, v{vst}")
    P(f"v_and_b32 v{t0}, 1, v{t1}")
    P(f"v_lshlrev_b32 v{t0}, s{S_T3}, v{t0}")
    P(f"v_add_u32 v{vst}, v{vst}, v{t0}")
    P(f"s_and_b32 s{S_T1}, s{S_T0}, 1")
    P(f"s_lshl_b32 s{S_T1}, s{S_T1}, s{S_T4}")
    P(f"s_add_u32 s{S_K5}, s{S_K5}, s{S_T1}")
    P(f"s_lshr_b32 s{S_T0}, s{S_T0}, 1")
    P(f"s_lshl_b32 s{S_T1}, s{S_G}, 1")
    P(f"s_add_u32 s{S_T0}, s{S_T0}, s{S_T1}")
    P(f"s_lshl_b32 s{S_T0}, s{S_T0}, 10")
    P(f"s_add_u32 s{S_K5}, s{S_K5}, s{S_T0}")
    P("s_waitcnt vmcnt(0)")
    P(f"buffer_load_dword v{vn}, v{vz}, s[{S_DBG}:{S_DBG+3}], 0 offen sc1")
    def kv16(which):
        d = KT
        xb = [(KT+16) + 4 * i for i in range(4)]; wb = [(KT+32) + 4 * i for i in range(4)]
        def ld(ks):
            P(f"ds_read_b128 {vr(xb[ks%4],4)}, v{vx16} offset:{ks*64}")
            P(f"ds_read_b64_tr_b16 {vr(wb[ks%4],2)}, v{vw16} offset:{ks*1024}")
            P(f"ds_read_b64_tr_b16 {vr(wb[ks%4]+2,2)}, v{vw16} offset:{ks*1024+128}")
        for ks in range(3): ld(ks)
        for ks in range(16):
            a, b = (wb[ks%4], xb[ks%4]) if which == 0 else (xb[ks%4], wb[ks%4])
            P(f"v_mfma_f32_16x16x32_bf16 {vr(d,4)}, {vr(a,4)}, {vr(b,4)}, {vr(d,4) if ks else 0}")
            if ks + 3 < 16: ld(ks + 3)
        if which == 0:
            P(f"s_mov_b32 s{S_T0}, {hexf(QK_SCALE)}")
            for r in range(4): P(f"v_mul_f32 v{d+r}, s{S_T0}, v{d+r}")
    P(f"s_cmp_eq_u32 s{S_K6}, 1")
    P("s_cbranch_scc1 LF_vch")
    P.cond_begin(); kv16(0); P.cond_end()
    P("s_branch LF_kvj")
    P("LF_vch:")
    P.cond_begin(); kv16(1); P.cond_end()
    P("LF_kvj:")
    for r in range(2): P(f"v_cvt_pk_bf16_f32 v{KT+4+r}, v{KT+2*r}, v{KT+2*r+1}")
    P(f"buffer_store_dwordx2 {vr(KT+4,2)}, v{vst}, {WSR}, s{S_K5} offen sc1")
    FB2 = OPT.get("fb2", 0)
    def w7flag():
        P(f"s_lshl_b32 s{S_T0}, s{S_G}, 3")
        P(f"s_add_u32 s{S_T0}, s{S_T0}, s{S_J}")
        P(f"s_lshl_b32 s{S_T0}, s{S_T0}, 2")
        P(f"s_add_u32 s{S_T0}, s{S_T0}, 0x{FL_KV:x}")
        P("s_waitcnt vmcnt(0)")
        nonce_check(P, SL, vn, vz)
        flag_store(P, vz, t0, S_T0)
    if not FB2: w7flag()
    stamp(P, 1)
    P("s_barrier")
    stamp(P, 2)
    if FB2 == 1: w7flag()
    P("s_barrier")
    if FB2 == 2: w7flag()
    P.cond_end(nowait=True)
    P("s_branch LF_light")
    P("LF_not7b:")
    P(f"s_cmp_lg_u32 s{S_KH}, 0")
    P("s_cbranch_scc1 LF_l0")

    def sigstamp(it, k):
        if OPT.get("sig"):
            P(f"s_memtime s[98:99]"); P("s_waitcnt lgkmcnt(0)"); P(f"v_writelane_b32 v{vsig}, s98, {2*it+k}")
    vsig = V.alloc("vsig") if OPT.get("sig") else None

    P.cond_begin()
    emit(H_PRE)
    stamp(P, 15)
    P("s_barrier")
    stamp(P, 0)
    LOADS["f"]("h")
    stamp(P, 1)
    if PF & 4: pf(0, True)
    P.wait_tag("q")
    P("s_barrier")
    stamp(P, 2)
    if PF & 2: pf(0, True)
    QD = 6
    xb = [acc[1][0] + 4 * i for i in range(QD)]; wb = [acc[2][0] + 4 * i for i in range(QD)]
    assert acc[1][1] == acc[1][0] + 16 and acc[2][1] == acc[2][0] + 16
    def q_loads(ks):
        o = SLOT[ks // 12] - SLOT[0] + (ks % 12) * 2048
        P(f"ds_read_b128 {vr(xb[ks%QD],4)}, v{vxa} offset:{ks*32}")
        P(f"ds_read_b64_tr_b16 {vr(wb[ks%QD],2)}, v{vtn} offset:{o}")
        P(f"ds_read_b64_tr_b16 {vr(wb[ks%QD]+2,2)}, v{vtn} offset:{o+512}")
    for ks in range(QD - 1): q_loads(ks)
    for ks in range(32):
        P(mfma(acc[0][0], wb[ks%QD], xb[ks%QD], acc[0][0] if ks else None))
        if ks in (11, 23):
            stamp(P, 11 if ks == 11 else 13)
            P("s_barrier")
        if ks + QD - 1 in (12, 24): P("s_barrier")
        if ks + QD - 1 < 32: q_loads(ks + QD - 1)
        nf = -(-len(H_MID) // 28)
        emit(H_MID[ks * nf:(ks + 1) * nf])
        if ks == OPT.get("pk", 24):
            P(f"s_mov_b32 s{S_T5}, 0x{FL_KV:x}")
            P(f"buffer_load_dword v{vn}, v{vz}, s[{S_DBG}:{S_DBG+3}], 0 offen sc1")
            P(flag_load(vfl, 4, l16, f"s{S_T5}"))
    for r in range(8): P(f"v_cvt_pk_bf16_f32 v{qf+r}, v{acc[0][0]+2*r}, v{acc[0][0]+2*r+1}")
    P(f"ds_write_b128 v{vq}, {vr(qf,4)}")
    P(f"ds_write_b128 v{vq}, {vr(qf+4,4)} offset:1024")
    nonce_check(P, SL, vn, vz)
    spin_check(P, SL, [flag_load(vfl, 4, l16, f"s{S_T5}")], flag_cmp(vfl, 4, t0), sleep=OPT.get("ksl", 6))
    kv_dma(P, l16, 0)
    P(f"s_add_u32 s{S_T2}, s{S_T2}, 32768")
    dma(P, l16, S_WS, f"s{S_T2}", (S_KVLDS, 4096), tag="kv0", mods=SC1)
    def gu_reads(ks):
        s, kk = ks // 2, ks % 2
        so = SLOT[s % 3] - SLOT[0] + kk * 6144
        L = [f"ds_read_b128 {vr(fx[ks%2][0],4)}, v{vx0} offset:{ks*32}"]
        for i in range(3):
            f = fw[ks % 2][i]
            L += [f"ds_read_b64_tr_b16 {vr(f,2)}, v{wtr[i]} offset:{so}", f"ds_read_b64_tr_b16 {vr(f+2,2)}, v{wtr[i]} offset:{so+1536}"]
            if i == 0: L.append(f"ds_read_b128 {vr(fx[ks%2][1],4)}, v{vx0} offset:{ks*32 + 32*X_STRIDE}")
        return L
    def gu_groups(ks, late=False):
        R = gu_reads(ks + 1) if ks < 31 else []
        if OPT.get("abl_hds") and ks >= 2 * NP - 1: R = []
        G = []
        for m in range(6):
            i, t = m // 2, m % 2
            mm = [mfma(acc[i][t], fw[ks % 2][i], fx[ks % 2][t], acc[i][t] if ks else None)]
            if OPT.get("abl_hm") and ks >= 2 * NP - 1: mm = []
            G.append(mm + (R[2 * m: 2 * m + 2] if not late else ([] if m < 3 else R[3 * (m - 3): 3 * (m - 3) + 3])))
        return G
    P.wait_lgkm_all()
    stamp(P, 14)
    P("s_barrier")
    stamp(P, 3)
    for x in gu_reads(0): P(x)
    poison()
    PFI = OPT.get("pfi", 0)
    for ks in range(2 * NP - 1):
        if ks % 2 == 1:
            P.wait_lgkm_all(); P("s_barrier")
        for g in gu_groups(ks):
            for x in g: P(x)
    P.wait_tag("kv0"); P.wait_lgkm_all(); P("s_barrier")
    stamp(P, 4)
    gq = []
    tmp = fx[0][0]; cst = fx[1][0]
    assert fx[0][1] == fx[0][0] + 4
    gel = []
    def load_window(k):
        n = 2 * (NP + k) - 1
        assert not gq
        gq.extend(gu_groups(n, late=(k > 0 and OPT.get("sb", 0))))
        if n < 31: gq.extend(gu_groups(n + 1))
    def hookH(it, x, pos):
        if pos == "sync?": return 1 <= it <= JIT
        if pos == "pre0": sigstamp(it, 0); return
        if pos == "pre": sigstamp(it, 1); return
        if pos == "start": load_window(0); return
        midprio(it, x, pos)
        if pos in ("qk", "pv1") and H_LATE: emit(H_LATE.pop(0))
        if pos == "pv2" and x == 1 and PF & 1:
            if it == PFI: pf(1, True)
            if it == PFI + 2: pf(2, True)
            if it == PFI + 5: pf(3, True)
        if pos == "pv2" and x == 1 and OPT.get("wpf", 1) and it in (7, 8, 9, 10):
            k = it - 7
            P(f"s_cmp_lg_u32 s{S_W}, {k}")
            P(f"s_cbranch_scc1 LF_wp{k}")
            P(f"buffer_load_dword v{vpd}, v{vpw}, s[{S_PFS}:{S_PFS+3}], 0 offen")
            P.I[-1].kind = "salu"; P.I[-1].vw = set()
            P(f"LF_wp{k}:")
        if pos == "pv1" and x == 0 and 1 <= it <= JIT: load_window(it)
        if pos in ("g1", "g2", "g3", "g4", "g5", "g6"):
            if gq and not (it == 0 and pos in ("g1", "g3", "g5") and False):
                for t in gq.pop(0): P(t)
                if not gq and it == JIT and x == 1:
                    L = [f"v_mov_b32 v{cst}, {hexf(GELU_C1)}", f"v_mov_b32 v{cst+1}, {hexf(GELU_C1)}",
                         f"v_mov_b32 v{cst+2}, {hexf(GELU_C2)}", f"v_mov_b32 v{cst+3}, {hexf(GELU_C2)}"]
                    k = 0
                    for i in range(3):
                        for t in range(2):
                            d = fw[k % 2][k // 2]; k += 1
                            L += gelu_tile_pk(acc[i][t], d, tmp, cst)
                            if t == 1: L.append(f"s_add_u32 s{SH[i]}, s{SH[i]}, {118*1024}")
                            L.append(f"buffer_store_dwordx4 {vr(d,4)}, v{l16}, {WSR}, s{SH[i]} offen sc1")
                    ns = 3 + 12 * (UNI - JIT - 1)
                    n = (len(L) + ns - 1) // ns
                    gel.extend(L[i:i + n] for i in range(0, len(L), n))
            elif gel:
                for t in gel.pop(0): P(t, tag="hst" if "store" in t else None)
    PM = OPT.get("pm", 5)
    def prioH(it, x):
        if PM == 1: return 3 if (it == 0 and x == 0) else None
        if PM == 3: return 3 - 2 * x
        if PM == 5: return (3 - 2 * x) if it < JIT else 3
        if PM == 6: return 3 if it >= JIT else None
        return None
    def prioL(it, x):
        if PM in (2, 6): return 1 if (it == 0 and x == 0) else None
        if PM == 3: return 3 - 2 * x
        if PM == 5: return (3 - 2 * x) if it < JIT else 0
        return None
    def midprio(it, x, pos):
        if PM in (3, 5) and pos == "pv2" and (PM == 3 or it <= JIT): P(f"s_setprio {2 * x}")
    attention(P, A, l16, range(0, UNI), hookH, prioH, kvf=lambda c: None)
    nsb = A["sb"].n; A["sb"].n = 0
    assert not gq and not gel, (len(gq), len(gel))
    P.cond_end(keep=True)
    P("s_branch LF_join")
    for n in ("vx0", "vtn", "wtr0", "wtr1", "wtr2", "vpf", "vpw"): V.release(n)

    P("LF_l0:")
    P.cond_begin()
    P("s_barrier")
    LOADS["f"]("l")
    stamp(P, 1)
    P("s_waitcnt vmcnt(8)")
    P("s_barrier")
    stamp(P, 2)
    P(f"s_cmp_eq_u32 s{S_W}, 6")
    P("s_cbranch_scc1 LF_l6")
    P(f"s_add_u32 s{S_T3}, s{S_T3}, 24")
    wq_pieces(P, vsl, S_T3, 8, "LF_ldq3", 1)
    P("s_waitcnt vmcnt(8)")
    P("s_branch LF_l6j")
    P("LF_l6:")
    P("s_waitcnt vmcnt(0)")
    P("LF_l6j:")
    P("s_barrier")
    P("LF_light:")
    emit(C_EARLY)

    pats = w_patterns(P, V, lane, t0, t1)
    P(f"s_lshl_b32 s{S_T0}, s{S_HP}, 1")
    P(f"s_mul_i32 s{S_WOFF}, s{S_T0}, {8*2752}")
    P(f"s_lshl_b32 s{S_T1}, s{S_U0}, 5")
    P(f"s_add_u32 s{S_WOFF}, s{S_WOFF}, s{S_T1}")
    P(f"s_mul_i32 s{S_WLDS}, s{S_T0}, 3072")
    P(f"s_mul_i32 s{S_T1}, s{S_TT}, {UP_OFF}")
    P(f"s_add_u32 s{S_WLDS}, s{S_WLDS}, s{S_T1}")
    inattn = dict(on=False)
    P(f"s_add_u32 s{S_WOFF}, s{S_WOFF}, 0")
    P(f"v_subrev_u32 v{pats[1]}, 1024, v{pats[1]}")
    P(f"v_subrev_u32 v{pats[2]}, 2048, v{pats[2]}")
    def w_dma1(s, k):
        g, i = k // 3, k % 3
        solo = not OPT.get("wm0", 1) or inattn["on"]
        if i == 0 or solo:
            dma(P, pats[i], S_WM, f"s{S_T3}", (S_WLDS, SLOT[s % 3] + 3072 * g), offset=1024 * i, tag=f"w{s}",
                pre=[f"s_add_u32 s{S_T3}, s{S_WOFF}, 0x{(32*s + 8*g)*2752:x}"] if i == 0 else None)
        else:
            P(f"buffer_load_dwordx4 v{pats[i]}, s[{S_WM}:{S_WM+3}], s{S_T3} offen offset:{1024*i} lds", tag=f"w{s}")
    def w_dma6(s):
        for k in range(6): w_dma1(s, k)
    stamp(P, 11)
    P("s_barrier")
    w_dma6(0)
    P("s_waitcnt vmcnt(6)"); P.I[-1].kind = "salu"
    P("s_barrier")
    h = len(C_LATE) // 4
    emit(C_LATE[:h])
    stamp(P, 13)
    P("s_barrier")
    w_dma6(1)
    emit(C_LATE[h:])
    dma(P, l16, S_GW, "0", (None, GWL), tag="gw")
    vgw = acc[0][1]
    P(f"v_lshrrev_b32 v{t0}, 5, v{lane}")
    P(f"v_lshlrev_b32 v{vgw}, 4, v{t0}")
    P(f"s_lshl_b32 s{S_T0}, s{S_HP}, 9")
    P(f"v_add_u32 v{vxa}, s{S_T0}, v{vxa}")
    P(f"s_add_u32 s{S_T0}, s{S_T0}, 0x{GWL:x}")
    P(f"v_add_u32 v{vgw}, s{S_T0}, v{vgw}")
    P(f"s_lshl_b32 s{S_T0}, s{S_W}, 8")
    P(f"s_add_u32 s{S_T0}, s{S_T0}, 0x{ONES - 1024:x}")
    P(f"v_lshlrev_b32 v{t0}, 2, v{lane}")
    P(f"v_add_u32 v{t0}, s{S_T0}, v{t0}")
    P(f"v_mov_b32 v{t1}, 0x3f803f80")
    P(f"v_lshrrev_b32 v1, 2, v{lane}")
    P(f"v_and_b32 v1, 11, v1")
    P(f"v_cmp_eq_u32 vcc, 0, v1")
    P(f"v_cndmask_b32 v{t1}, 0, v{t1}, vcc")
    P(f"ds_write_b32 v{t0}, v{t1}")
    P(f"ds_write_b32 v{t0}, v{t1} offset:1024")
    poison()
    za = acc[0][0]; zx = [acc[1][0] + 4 * i for i in range(4)]; zg = [acc[2][0] + 4 * i for i in range(4)]
    def zjob():
        for r in range(4): P(f"v_mov_b32 v{za+r}, 0")
        def zld(k):
            P(f"ds_read_b128 {vr(zx[k%4],4)}, v{vxa} offset:{k*32}")
            P(f"ds_read_b128 {vr(zg[k%4],4)}, v{vgw} offset:{k*32}")
        for k in range(3): zld(k)
        for k in range(16):
            for r in range(4): P(f"v_dot2c_f32_bf16 v{za+r}, v{zx[k%4]+r}, v{zg[k%4]+r}")
            if k + 3 < 16: zld(k + 3)
        P("s_nop 2")
        P(f"v_add_f32 v{za}, v{za}, v{za+1}")
        P(f"v_add_f32 v{za+2}, v{za+2}, v{za+3}")
        P(f"v_add_f32 v{za}, v{za}, v{za+2}")
        P(f"s_and_b32 s{S_T0}, s{S_W}, 3")
        P(f"s_lshl_b32 s{S_T0}, s{S_T0}, 8")
        P(f"s_add_u32 s{S_T0}, s{S_T0}, 0x{MISC:x}")
        P(f"v_lshlrev_b32 v{t0}, 2, v{lane}")
        P(f"v_add_u32 v{t0}, s{S_T0}, v{t0}")
        P(f"ds_write_b32 v{t0}, v{za}")
    P(f"s_mov_b32 s{S_T6}, 0x{FL_KV:x}")
    def kv_both(c):
        kv_dma(P, l16, c)
        dma(P, l16, S_WS, f"s{S_T2}", (S_KVLDS, (8192 * (c & 1) - 4096) & 0xffffffff), tag=f"kv{c}", mods=SC1, pre=[f"s_sub_u32 s{S_T2}, s{S_T2}, 32768"])
    def poll_issue():
        P(f"buffer_load_dword v{vn}, v{vz}, s[{S_DBG}:{S_DBG+3}], 0 offen sc1")
        P(flag_load(vfl, 4, l16, f"s{S_T6}"))
    for s in range(0, NP + 1):
        P.wait_tag(f"w{s}")
        P.wait_lgkm_all()
        if s == 0: stamp(P, 14)
        P("s_barrier")
        if s == 0:
            stamp(P, 3)
            P(f"ds_read_b128 {vr(qf,4)}, v{vq} offset:1024")
            P(f"ds_read_b128 {vr(qf+4,4)}, v{vq}")
        if s == NP: kv_both(1)
        if s < NP: w_dma6(s + 2)
        if s == 0:
            P(f"buffer_load_dword v{vn}, v{vz}, s[{S_DBG}:{S_DBG+3}], 0 offen sc1")
            P.wait_tag("gw")
            zjob()
    assert NP >= 1
    stamp(P, 4)
    dq = []
    def hookL(it, x, pos):
        if pos == "sync?": return 1 <= it <= JIT
        if pos == "pre0": sigstamp(it, 0); return
        if pos == "pre":
            if NP + it < 16: P.wait_tag(f"w{NP+it}")
            sigstamp(it, 1); return
        if (pos == "start" or pos == "chk") and NP + it + 2 < 16:
            assert not dq
            for k in range(0 if OPT.get("abl_ldma") else 6): dq.append(lambda s=NP + it + 2, k=k: w_dma1(s, k))
        midprio(it, x, pos)
        if (pos in ("pv2", "qk", "pv1") or (pos == "g5" and x == 1 and OPT.get("sb", 0))) and dq: dq.pop(0)()
    attention(P, A, l16, range(0, UNI), hookL, prioL, kvf=kv_both)
    assert A["sb"].n == nsb
    assert not dq
    P.cond_end(keep=True)
    P("LF_join:")
    P.join()
    for n in ["wpat0", "wpat1", "wpat2", "vxa", "vq"] + [f"acc{i}{t}" for i in range(3) for t in range(2)] + \
             [f"fx{b}{t}" for b in range(2) for t in range(2)] + [f"fw{b}{i}" for b in range(2) for i in range(3)]: V.release(n)
    stamp(P, 5)

    facc = V.alloc("facc", 16); facc1 = V.alloc("facc1", 16); fa = V.alloc("ffa", 8)
    NB = OPT.get("nb", 6)
    hb = [V.alloc(f"hb{i}", 4) for i in range(NB)]; fb = hb[0]
    vl4 = V.alloc("vl4"); vg = V.alloc("vg"); zt = V.alloc("zt", 2)
    va0 = tr_slice_addr(P, V, "fa0", lane, t0, t1, 0, S_KH, 4)
    vA = [[va0, V.alloc("fa0h")], [V.alloc("fa1"), V.alloc("fa1h")]]
    P(f"s_lshl_b32 s{S_T1}, s{S_HP}, 5")
    P(f"v_xor_b32 v{va0}, s{S_T1}, v{va0}")
    P(f"s_lshr_b32 s{S_T0}, s{S_W}, 1")
    P(f"s_lshl_b32 s{S_T1}, s{S_T0}, 11")
    P(f"v_add_u32 v{va0}, s{S_T1}, v{va0}")
    P(f"v_xor_b32 v{vA[1][0]}, 64, v{va0}")
    P(f"v_add_u32 v{vA[0][1]}, 0x10000, v{va0}")
    P(f"v_add_u32 v{vA[1][1]}, 0x10000, v{vA[1][0]}")
    P(f"s_mul_i32 s{S_FB}, s{S_TILE}, 118")
    P(f"s_add_u32 s{S_FB}, s{S_FB}, s{S_T0}")
    P(f"s_lshl_b32 s{S_FB}, s{S_FB}, 10")
    P(f"s_add_u32 s{S_FB}, s{S_FB}, 0x{WS_OH:x}")
    P(f"v_lshlrev_b32 v{vl4}, 2, v{lane}")
    vhf = V.alloc("vhf")
    P(f"v_lshrrev_b32 v{t0}, 3, v{lane}")
    P(f"v_mul_u32_u24 v{t0}, 96, v{t0}")
    P(f"v_add_u32 v{vhf}, v{t0}, v{vl4}")
    P(f"s_lshl_b32 s{S_T0}, s{S_TT}, 8")
    P(f"s_add_u32 s{S_T0}, s{S_T0}, 0x{MISC:x}")
    P(f"v_add_u32 v{t0}, s{S_T0}, v{vl4}")
    P(f"ds_read_b32 v{zt}, v{t0}")
    P(f"ds_read_b32 v{zt+1}, v{t0} offset:512")
    P(f"v_add_f32 v{zt}, v{zt}, v{zt+1}")
    P(f"v_mov_b32 v{zt+1}, v{zt}")
    P(f"v_permlane32_swap_b32 v{zt}, v{zt+1}")
    P(f"v_add_f32 v{zt}, v{zt}, v{zt+1}")
    P(f"v_mul_f32 v{t0}, {hexf(-LOG2E)}, v{zt}")
    P(f"v_exp_f32 v{t0}, v{t0}")
    P(f"v_add_f32 v{t0}, 1.0, v{t0}")
    P(f"v_rcp_f32 v{vg}, v{t0}")
    V.release("zt")
    vw = [V.alloc(f"vw{i}") for i in range(3)]; vrd = V.alloc("vrd"); vo = V.alloc("vo")
    def sbase(dst, w):
        P(f"s_mul_i32 s{S_T1}, s{w}, 6144")
        P(f"v_add_u32 v{dst}, s{S_T1}, v{l16}")
    sbase(vrd, S_W)
    for b in range(1, 4):
        P(f"s_xor_b32 s{S_T0}, s{S_W}, {b << 1}")
        sbase(vw[b - 1], S_T0)
    P(f"v_and_b32 v{vo}, 31, v{lane}")
    P(f"v_lshlrev_b32 v{vo}, 10, v{vo}")
    P(f"v_lshrrev_b32 v{t1}, 5, v{lane}")
    P(f"v_lshl_add_u32 v{vo}, v{t1}, 4, v{vo}")
    P(f"s_lshl_b32 s{S_OO}, s{S_TILE}, 15")
    P(f"s_lshl_b32 s{S_T1}, s{S_J}, 7")
    P(f"s_add_u32 s{S_OO}, s{S_OO}, s{S_T1}")
    P(f"s_lshl_b32 s{S_T1}, s{S_KH}, 6")
    P(f"s_add_u32 s{S_OO}, s{S_OO}, s{S_T1}")
    P(f"s_lshl_b32 s{S_T1}, s{S_HP}, 5")
    P(f"s_add_u32 s{S_OO}, s{S_OO}, s{S_T1}")
    vp = V.alloc("vp"); vpa = V.alloc("vpa")
    P(f"v_lshlrev_b32 v{vpa}, 10, v{lane}")
    vt0 = V.alloc("vt0"); vt1 = V.alloc("vt1")
    P(f"s_lshr_b32 s{S_T1}, s{S_W}, 1")
    P(f"s_mul_i32 s{S_T1}, s{S_T1}, {16384 - 2048}")
    P(f"s_add_u32 s{S_T1}, s{S_T1}, {3*16384}")
    P(f"v_add_u32 v{vt0}, s{S_T1}, v{vA[0][0]}")
    P(f"v_add_u32 v{vt1}, s{S_T1}, v{vA[1][0]}")
    va = V.alloc("cva"); vb = V.alloc("cvb"); fb = V.alloc("cvon")
    P(f"s_mul_i32 s{S_T0}, s{S_W}, 3072")
    P(f"s_add_u32 s{S_T0}, s{S_T0}, 114688")
    P(f"v_add_u32 v{va}, s{S_T0}, v{l16}")
    P(f"s_xor_b32 s{S_T0}, s{S_W}, 4")
    P(f"s_mul_i32 s{S_T0}, s{S_T0}, 3072")
    P(f"s_add_u32 s{S_T0}, s{S_T0}, 114688")
    P(f"v_add_u32 v{vb}, s{S_T0}, v{l16}")
    P(f"s_add_u32 s{S_OL2}, s{S_OL}, 4096")
    BSLOT = lambda b: ((b % 8) if b < 11 else (b - 8)) * 16384
    def a_reads(r, d):
        o = (4 * r % 64) * 2048; hi = o >> 16; o &= 0xffff
        assert r // 2 in vis, (r, vis)
        rd_done[r // 2] = rd_done.get(r // 2, 0) + 1
        if OPT.get("abl_uds"): return
        P(f"ds_read_b64_tr_b16 {vr(fa+4*d,2)}, v{vA[d][hi]} offset:{o}")
        P(f"ds_read_b64_tr_b16 {vr(fa+4*d+2,2)}, v{vA[d][hi]} offset:{o+1024}")
    def h_load(r):
        if OPT.get("abl_uh"): return
        P(f"s_add_u32 s{S_T2}, s{S_FB}, {4096*r}")
        if r == 21:
            P(f"s_cmp_lt_u32 s{S_W}, 4")
            P(f"s_cselect_b32 s{S_T2}, s{S_T2}, 0x{OOB:x}")
        P(f"buffer_load_dwordx4 {vr(hb[r%NB],4)}, v{l16}, {WSR}, s{S_T2} offen sc1")
    pend = {}
    dq = []; vis = set(); issued = {}; rd_done = {}; nxt = dict(b=0, r=0, d=0, pre=False)
    def qW(b):
        def f(i):
            if not OPT.get("abl_uw"): fin_dma_w1(P, vsl, b, BSLOT(b), f"fw{b}", i)
            issued[b] = issued.get(b, 0) + 1
        for i in range(2): dq.append(lambda i=i: f(i))
    CH = OPT.get("ch", HF + 3); R0 = OPT.get("r0", 2 * (CH + 2))
    DBL = OPT.get("dbl", 64)
    def mstep():
        r, d = nxt["r"], nxt["d"]
        if r >= 22: return
        if not nxt["pre"]:
            a_reads(0, 0); a_reads(0, 1); nxt["pre"] = True; return
        if not OPT.get("abl_um"): P(mfma([facc, facc1][d], fa + 4 * d, hb[r % NB], [facc, facc1][d] if r else None))
        if r + 1 < 22: a_reads(r + 1, d)
        if d == 1 and r + NB < 22: dq.insert(0, lambda r=r: h_load(r + NB))
        nxt["d"] = 1 - d; nxt["r"] = r + d
    def hookU(it, x, pos):
        sig = (x == 0 and (it & 1)); ph = 2 * it + x
        if pos == "sync?": return False
        if pos == "pre0": sigstamp(it, 0); return
        if pos == "pre":
            if it == HF: P.wait_vm_all()
            need = [b for b in issued if issued[b] == 2 and b not in vis and (it == 29 or b <= (max(0, ph + 8 - R0) * (2 if ph + 6 >= DBL else 1)) // 2) and b <= 10]
            if need: P.wait_tag(*[f"fw{b}" for b in need])
            pend["vis"] = need; pend["free"] = {b for b in rd_done if rd_done[b] >= 4}
            sigstamp(it, 1); return
        if pos == "pv1" and sig and it == HF:
            nonce_check(P, SL, vn, vz)
            flag_store(P, vz, t0, S_FS)
        if pos == "chk":
            vis.update(pend["vis"])
            while it >= HF and nxt["b"] < 15:
                b = nxt["b"]; prev = {8: 0, 9: 1, 10: 2, 11: 3, 12: 4, 13: 5, 14: 6}.get(b)
                if prev is not None and prev not in pend["free"]: break
                qW(b); nxt["b"] += 1
            return
        if pos == "pv2" and x == 0 and it == CH - 1: P(flag_load(vfl, 1, vhf, f"s{S_FP}"))
        if pos == "pv2" and x == 0 and it == CH:
            spin_check(P, SL, [flag_load(vfl, 1, vhf, f"s{S_FP}")], flag_cmp(vfl, 1, t0), sleep=OPT.get("hsl", 4))
            for r in range(NB): dq.insert(r, lambda r=r: h_load(r))
        elif dq and (pos in ("pv2", "qk") or (pos in ("g2", "g5") and it in (CH, CH + 1)) or (pos == "g5" and OPT.get("d3"))): dq.pop(0)()
        if nxt["r"] >= 22 - OPT.get("tr", 5) and nxt["d"] == 0: pass
        elif (pos in ("g1", "g4") and ph >= R0) or (pos == "g4" and ph == R0 - 1) or (pos in ("g3", "g6") and ph >= DBL): mstep()
        if pos == "g6" and it == 31 and x == 1:
            assert nxt["b"] == 15, nxt
            print("rounds left for tail:", 22 - nxt["r"])
    def prioU(it, x):
        if not OPT.get("prio", 1): return None
        return 3 - (2 * ((it + 1) & 1) + x)
    attention(P, A, l16, range(UNI, 32), hookU, prioU)
    assert not dq
    stamp(P, 6)
    if OPT.get("sig"):
        P(f"s_lshl_b32 s98, s2, 11")
        P(f"s_lshl_b32 s99, s{S_W}, 8")
        P(f"s_add_u32 s98, s98, s99")
        P(f"s_add_u32 s98, s98, 0x{WS_STAMP + (1<<20):x}")
        P(f"buffer_store_dword v{vsig}, v{vl4}, {WSR}, s98 offen")
    P("s_setprio 0")
    P(f"v_mov_b32 v{O[1]+7}, v{O[1]}")
    for i in range(3): P(f"ds_write_b128 v{va}, {vr(O[1]+4+4*i,4)} offset:{1024*i}")
    P.wait_tag(*[f"fw{b}" for b in range(8, 15)]); P.wait_lgkm_all()
    P("s_barrier")
    vis.update(range(11))
    for i in range(3): P(f"ds_read_b128 {vr(O[1]+4+4*i,4)}, v{vb} offset:{1024*i}")
    P(f"v_add_f32 v{O[0]}, v{O[0]}, v{O[1]+7}")
    for r in range(8, 16): P(f"v_add_f32 v{O[0]+r}, v{O[0]+r}, v{O[1]+r}")
    P(f"v_mov_b32 v{t1}, 0x207")
    P(f"v_cmp_nle_f32 vcc, {hexf(2.0**-90)}, v{O[0]}")
    P(f"v_cmp_nge_f32 s[{S_PM}:{S_PM+1}], {'s' + str(S_T0)}, v{O[0]}".replace(f"s{S_T0}", f"s{S_C1}"))
    P(f"s_or_b64 vcc, vcc, s[{S_PM}:{S_PM+1}]")
    P(f"v_add3_u32 v{t0}, v{O[0]+8}, 0, 0".replace("v_add3_u32", "v_add_f32").replace(", 0, 0", f", v{O[0]+9}"))
    for r in range(10, 16): P(f"v_add_f32 v{t0}, v{t0}, v{O[0]+r}")
    P(f"v_cmp_class_f32 s[{S_PM}:{S_PM+1}], v{t0}, v{t1}")
    P(f"s_or_b64 vcc, vcc, s[{S_PM}:{S_PM+1}]")
    if OPT.get("forcefb"): P("s_mov_b64 vcc, -1")
    P("s_cmp_lg_u64 vcc, 0")
    P("s_cbranch_scc1 LF_fb")
    P("LF_fbr:")
    P(f"v_rcp_f32 v{t0}, v{O[0]}")
    P(f"v_mul_f32 v{t0}, v{t0}, v{vg}")
    for r in range(8, 16): P(f"v_mul_f32 v{O[0]+r}, v{O[0]+r}, v{t0}")
    for r in range(4): P(f"v_cvt_pk_bf16_f32 v{O[1]+r}, v{O[0]+8+2*r}, v{O[0]+9+2*r}")
    for r in range(4): P(f"v_min_u32 v{O[1]+r}, 0xfffffffe, v{O[1]+r}")
    P(f"buffer_store_dwordx4 {vr(O[1],4)}, v{l16}, {WSR}, s{S_OD} offen sc1", tag="ost")
    stamp(P, 7)
    K4, V8, ON, CM = A["fk"], A["fv"][0], fb, O[1]
    assert A["fv"][1] == V8 + 4
    nl = "\n    "
    fbk = f"""LF_fb:
    s_waitcnt vmcnt(0) lgkmcnt(0)
    v_mov_b32 v{t0}, 0xff800000
    s_mov_b32 s{S_T0}, 0x{WS_KF:x}
LF_fb1:
    buffer_load_dwordx4 {vr(K4,4)}, v{l16}, {WSR}, s{S_T0} offen sc1
    s_waitcnt vmcnt(0)
    {mfma(S[0], K4, qf)}
    s_nop 15
    {nl.join(f"v_max3_f32 v{t0}, v{S[0]+2*r}, v{S[0]+2*r+1}, v{t0}" for r in range(8))}
    s_add_u32 s{S_T0}, s{S_T0}, 1024
    s_cmp_lt_u32 s{S_T0}, 0x{WS_KF + 65536:x}
    s_cbranch_scc1 LF_fb1
    v_mov_b32 v{t1}, v{t0}
    s_nop 1
    v_permlane32_swap_b32 v{t0}, v{t1}
    s_nop 1
    v_max_f32 v{t0}, v{t0}, v{t1}
    {nl.join(f"v_sub_f32 v{CM+r}, 0, v{t0}" for r in range(16))}
    {nl.join(f"v_mov_b32 v{O[0]+r}, 0" for r in range(16))}
    v_lshrrev_b32 v{t0}, 5, v{lane}
    v_lshlrev_b32 v{t0}, 8, v{t0}
    v_and_b32 v{t1}, 15, v{lane}
    v_lshl_add_u32 v{t0}, v{t1}, 4, v{t0}
    v_and_b32 v{t1}, 16, v{lane}
    v_cmp_eq_u32 vcc, 0, v{t1}
    v_mov_b32 v{t1}, 0x{OOB:x}
    s_nop 1
    v_cndmask_b32 v{t0}, v{t0}, v{t1}, vcc
    v_and_b32 v{t1}, 27, v{lane}
    v_cmp_eq_u32 vcc, 0, v{t1}
    v_mov_b32 v{ON}, 0x3f803f80
    s_nop 1
    v_cndmask_b32 v{ON}, 0, v{ON}, vcc
    s_mov_b32 s{S_T0}, 0x{WS_KF:x}
LF_fb2:
    s_add_u32 s{S_T1}, s{S_T0}, 0x{WS_VF - WS_KF:x}
    buffer_load_dwordx4 {vr(K4,4)}, v{l16}, {WSR}, s{S_T0} offen sc1
    buffer_load_dwordx4 {vr(V8,4)}, v{t0}, {WSR}, s{S_T1} offen sc1
    buffer_load_dwordx4 {vr(V8+4,4)}, v{t0}, {WSR}, s{S_T1} offen offset:512 sc1
    s_waitcnt vmcnt(0)
    {mfma(S[0], K4, qf, CM)}
    {nl.join(f"v_or_b32 v{V8+r}, v{V8+r}, v{ON}" for r in range(8))}
    s_nop 7
    {nl.join(f"v_exp_f32 v{S[0]+r}, v{S[0]+r}" for r in range(16))}
    s_nop 1
    {nl.join(f"v_cvt_pk_bf16_f32 v{S[1]+r}, v{S[0]+2*r}, v{S[0]+2*r+1}" for r in range(8))}
    s_nop 1
    {mfma(O[0], V8, S[1], O[0])}
    {mfma(O[0], V8+4, S[1]+4, O[0])}
    s_add_u32 s{S_T0}, s{S_T0}, 1024
    s_cmp_lt_u32 s{S_T0}, 0x{WS_KF + 65536:x}
    s_cbranch_scc1 LF_fb2
    s_nop 15
    s_branch LF_fbr
"""
    SL.add(fbk)
    for n in ("Sa", "Sb", "Oa", "qf", "fk", "fv1", "fv2"): V.release(n)
    ob = V.alloc("ob", 32); wa = [V.alloc(f"wa{u}", 8) for u in range(8)]
    def oloads(g): return [f"buffer_load_dwordx4 {vr(ob+16*g+4*u,4)}, v{l16}, {WSR}, s{[S_OL,S_OL2][g]} offen offset:{1024*u} sc1" for u in range(4)]
    def ocheck(g):
        b = ob + 16 * g
        L = [f"v_max3_u32 v{t0}, v{b}, v{b+1}, v{b+2}"]
        for k in range(3, 15, 2): L.append(f"v_max3_u32 v{t0}, v{b+k}, v{b+k+1}, v{t0}")
        L += [f"v_max_u32 v{t0}, v{b+15}, v{t0}", f"v_cmp_eq_u32 vcc, -1, v{t0}"]
        return L
    fa2 = V.alloc("ffa2", 8)
    wr = []
    for u in range(8):
        for d, v in ((0, vt0), (1, vt1)):
            wr.append([f"ds_read_b64_tr_b16 {vr(wa[u]+4*d,2)}, v{v} offset:{u*2048}", f"ds_read_b64_tr_b16 {vr(wa[u]+4*d+2,2)}, v{v} offset:{u*2048+1024}"])
    r0 = nxt["r"]; assert nxt["d"] == 0 and not dq
    def tr_reads(r, d):
        o = (4 * r % 64) * 2048; hi = o >> 16; o &= 0xffff; f = [fa, fa2][(r - r0) % 2] + 4 * d
        P(f"ds_read_b64_tr_b16 {vr(f,2)}, v{vA[d][hi]} offset:{o}")
        P(f"ds_read_b64_tr_b16 {vr(f+2,2)}, v{vA[d][hi]} offset:{o+1024}")
    if r0 + 1 < 22: tr_reads(r0 + 1, 0); tr_reads(r0 + 1, 1)
    OL = min(r0 + OPT.get("ol", 99), 22)
    for r in range(r0, 22):
        if r == OL:
            for g in range(2):
                for x in oloads(g): P(x)
        for d in range(2):
            P(mfma([facc, facc1][d], [fa, fa2][(r - r0) % 2] + 4 * d, hb[r % NB], [facc, facc1][d]))
            if r + 2 < 22: tr_reads(r + 2, d)
            elif wr:
                for g in wr[:4]:
                    for x in g: P(x)
                del wr[:4]
    for g in wr:
        for x in g: P(x)
    assert 22 - r0 <= NB and r0 >= 16
    if OPT.get("oab", 1): P.wait_lgkm_all(); P("s_barrier")
    if OL == 22:
        for g in range(2):
            for x in oloads(g): P(x)
    P(f"v_sub_f32 v{t1}, 1.0, v{vg}")
    P(f"v_mov_b32 v{t0}, v{t1}")
    assert t1 == t0 + 1 and t0 % 2 == 0
    for r in range(0, 16, 2): P(f"v_pk_mul_f32 v[{facc+r}:{facc+r+1}], v[{facc+r}:{facc+r+1}], v[{t0}:{t1}]")
    for r in range(0, 16, 2): P(f"v_pk_mul_f32 v[{facc1+r}:{facc1+r+1}], v[{facc1+r}:{facc1+r+1}], v[{t0}:{t1}]")
    if not OPT.get("oab", 1): P.wait_lgkm_all(); P("s_barrier")
    stamp(P, 8)
    nl = "\n    "
    for g in range(2):
        k = SL.n; SL.n += 1
        for x in ocheck(g): P(x)
        P(f"s_cbranch_vccnz LS{k}")
        P(f"LR{k}:")
        SL.add(f"""LS{k}:
    s_mov_b32 s{S_T7}, 0
LS{k}_p:
    s_sleep {OPT.get("osl", 2)}
    s_mov_b64 exec, 0xf
    buffer_load_dword v{vp}, v{vpa}, {WSR}, s{[S_OL,S_OL2][g]} offen offset:1020 sc1
    s_waitcnt vmcnt(0)
    v_cmp_eq_u32 vcc, -1, v{vp}
    s_mov_b64 exec, -1
    s_add_u32 s{S_T7}, s{S_T7}, 1
    s_cmp_ge_u32 s{S_T7}, 0x{SPIN_MAX:x}
    s_cbranch_scc1 LR{k}
    s_cbranch_vccnz LS{k}_p
    {nl.join(oloads(g))}
    s_waitcnt vmcnt(0)
    {nl.join(ocheck(g))}
    s_cbranch_vccnz LS{k}_p
    s_nop 1
    s_branch LR{k}
""")
        for u in range(4 * g, 4 * g + 4):
            P(mfma(facc1, wa[u] + 4, ob + 4 * u, facc1))
    W1 = [f"ds_write_b128 v{vw[b-1]}, {vr(src+4*i,4)} offset:{2048*(b-1) + 1024*i}" for b, src in ((2, facc1), (3, facc1 + 8)) for i in range(2)]
    for u in range(8):
        P(mfma(facc, wa[u], ob + 4 * u, facc))
        if u >= 3 and W1:
            if u == 3: P("s_nop 7")
            P(W1.pop(0))
    stamp(P, 9)
    for b, src in ((1, facc + 8),):
        for i in range(2): P(f"ds_write_b128 v{vw[b-1]}, {vr(src+4*i,4)} offset:{2048*(b-1) + 1024*i}")
    P.wait_lgkm_all()
    P("s_barrier")
    for i in range(6): P(f"ds_read_b128 {vr(ob+4*i,4)}, v{vrd} offset:{1024*i}")
    for b in range(3):
        for r in range(8): P(f"v_add_f32 v{facc+r}, v{facc+r}, v{ob+8*b+r}")
    for r in range(4): P(f"v_cvt_pk_bf16_f32 v{facc1+r}, v{facc+2*r}, v{facc+2*r+1}")
    P(f"v_permlane32_swap_b32 v{facc1}, v{facc1+2}")
    P(f"v_permlane32_swap_b32 v{facc1+1}, v{facc1+3}")
    P(f"buffer_store_dwordx4 {vr(facc1,4)}, v{vo}, s[{S_OUT}:{S_OUT+3}], s{S_OO} offen")
    if STAMP["on"]:
        P.wait_vm_all(); stamp(P, 10); stamp_dump(P, lane)
        if OPT.get("dbgst") is not None:
            P(f"s_cmp_lg_u32 s2, {OPT['dbgst']}")
            P("s_cbranch_scc1 LF_end")
            P(f"s_cmp_lg_u32 s{S_W}, {OPT.get('dbgw', 0)}")
            P("s_cbranch_scc1 LF_end")
            P(f"v_subrev_u32 v{VSTAMP}, s100, v{VSTAMP}")
            P("s_mov_b64 exec, 0x7fff")
            P(f"buffer_store_dword v{VSTAMP}, v1, s[{S_DBG}:{S_DBG+3}], 0 offen offset:4")
    P("LF_end:")
    P("s_endpgm")
    name = NAME + "_kernel"
    body, I = finalize(P)
    txt = f".text\n.globl {name}\n.p2align 8\n.type {name},@function\n{name}:\n" + body + "".join(SL.txt) + "LF_last:\n    s_endpgm\n"
    vg_ = 256 if STAMP["on"] else max(V.hi, 8)
    txt += KD.format(name=name, vgpr=vg_, sgpr=102 if STAMP['on'] else 96, accum=(vg_ + 3) // 4 * 4)
    return txt, I, vg_


if __name__ == "__main__":
    out = sys.argv[1]
    STAMP["on"] = "stamp" in sys.argv
    for a in sys.argv[2:]:
        if "=" in a: k, v = a.split("="); OPT[k] = int(v)
        else: OPT[a] = True
    import asmlib; asmlib.MERGE_D = OPT.get("md", 9)
    t, I, vg_ = kernel_F()
    hdr = HEADER + f"; @launch grid=(256,1,1) block=(512,1,1) lds={LDS_BYTES}\n" + '.amdgcn_target "amdgcn-amd-amdhsa--gfx950"\n'
    open(out, "w").write(hdr + t)
    import subprocess
    r = subprocess.run(["clang", "-x", "assembler", "-target", "amdgcn-amd-amdhsa", "-mcpu=gfx950", "-c", out, "-o", "_chk.o"], capture_output=True, text=True)
    if r.returncode: print("ASM ERROR", r.stderr[:500])
    print("insts", len(I), "vgpr", vg_, "nops", sum(1 for x in I if x.kind == "nop"))
```

```python
import sys, re
from parts import *
OPT = {}
S_NONCE = 93
S_HP, S_KH = 30, 31
SH = [4, 5, 6]
S_FS, S_FP, S_OD, S_OL = 7, 8, 9, 10
S_FW, S_FB, S_FL, S_FL2 = 12, 13, 14, 15
S_OO, S_OL2 = 11, 18
S_VM = 28
S_PM = 16
FL_KV, FL_H = WS_FLAG, WS_FLAG + 8192
WKV_L = KV_RING
QSCR = KV_RING + 8192
FSLOT = [0, 32768, 65536, 98304]
WO_CH = [98304, 114688, 0, 32768]
SC1 = " sc1"
SPIN_MAX = 1 << 22
WSR = f"s[{S_WS}:{S_WS+3}]"


class Slow:
    def __init__(self): self.txt = []; self.n = 0
    def add(self, t): self.txt.append(t)


LOADS = {}
def wq_pieces(P, vsl, s_first, n, label, rot):
    P(f"s_and_b32 s{S_T6}, s{S_G}, 7")
    if rot > 1: P(f"s_mul_i32 s{S_T6}, s{S_T6}, {rot}")
    P(f"s_add_u32 s{S_T5}, s{S_T6}, {n}")
    P(f"s_lshl_b32 s{S_T7}, s{S_J}, 7")
    P(f"{label}:")
    P(f"s_and_b32 s{S_T4}, s{S_T6}, {n-1}")
    P(f"s_add_u32 s{S_T4}, s{S_T4}, s{s_first}")
    P(f"s_mul_i32 s{S_T0}, s{S_T4}, 171")
    P(f"s_lshr_b32 s{S_T0}, s{S_T0}, 12")
    P(f"s_lshl_b32 s{S_T1}, s{S_T4}, 2")
    P(f"s_add_u32 s{S_T0}, s{S_T0}, s{S_T1}")
    P(f"s_lshl_b32 s{S_T0}, s{S_T0}, 8")
    P(f"s_add_u32 m0, s{S_T0}, 0x{SLOT[0]:x}")
    P(f"s_lshl_b32 s{S_T2}, s{S_T4}, 13")
    P(f"s_add_u32 s{S_T2}, s{S_T2}, s{S_T7}")
    P(f"s_add_u32 s{S_T6}, s{S_T6}, 1")
    P(f"buffer_load_dwordx4 v{vsl}, s[{S_WQ}:{S_WQ+3}], s{S_T2} offen lds")
    P.I[-1].kind = "salu"
    P(f"s_cmp_lg_u32 s{S_T6}, s{S_T5}")
    P(f"s_cbranch_scc1 {label}")


def emit_loads(P, l16, vsl, sfx):
    if sfx == "h":
        P(f"s_lshr_b32 s{S_T4}, s{S_J}, 1")
        P(f"s_lshl_b32 s{S_T4}, s{S_T4}, 4")
        P(f"s_mul_i32 s{S_T1}, s{S_W}, 12")
        P(f"s_add_u32 s{S_T4}, s{S_T4}, s{S_T1}")
        P(f"s_add_u32 s{S_T4}, s{S_T4}, 16")
        P(f"s_lshl_b32 s{S_T0}, s{S_G}, 16")
        P(f"s_and_b32 s{S_T6}, s{S_J}, 3")
        P(f"s_mul_i32 s{S_T6}, s{S_T6}, 3")
        P(f"s_mov_b32 s{S_T5}, 12")
        mk_srd(P, S_X, 4, SZ["x"])
        P("LF_ldx1:")
        P(f"s_add_u32 s{S_T1}, s{S_T6}, s{S_T4}")
        P(f"s_and_b32 s{S_T1}, s{S_T1}, 63")
        P(f"s_mul_i32 m0, s{S_T1}, {X_STRIDE}")
        P(f"s_lshl_b32 s{S_T2}, s{S_T1}, 10")
        P(f"s_add_u32 s{S_T2}, s{S_T2}, s{S_T0}")
        P(f"s_add_u32 s{S_T6}, s{S_T6}, 1")
        P(f"s_cmp_eq_u32 s{S_T6}, 12")
        P(f"s_cselect_b32 s{S_T6}, 0, s{S_T6}")
        P(f"buffer_load_dwordx4 v{l16}, s[{S_X}:{S_X+3}], s{S_T2} offen lds", tag="q")
        P(f"s_sub_u32 s{S_T5}, s{S_T5}, 1")
        P(f"s_cmp_lg_u32 s{S_T5}, 0")
        P("s_cbranch_scc1 LF_ldx1")
    else:
        mk_srd(P, S_WQ, 6, SZ["wq"])
        P(f"s_and_b32 s{S_T3}, s{S_W}, 3")
        P(f"s_lshl_b32 s{S_T3}, s{S_T3}, 3")
        wq_pieces(P, vsl, S_T3, 8, "LF_ldq1", 1)
        P(f"s_add_u32 s{S_T3}, s{S_T3}, 24")
        wq_pieces(P, vsl, S_T3, 8, "LF_ldq2", 1)


def prologue_f(P, V, endlabel):
    if STAMP["on"]: P("s_memrealtime s[100:101]")
    P("s_cmp_ge_u32 s2, 256")
    P(f"s_cbranch_scc1 {endlabel}")
    P("s_load_dwordx16 s[4:19], s[0:1], 0")
    P("s_load_dwordx8 s[20:27], s[0:1], 64")
    P("s_load_dwordx2 s[28:29], s[0:1], 96")
    lane = V.alloc("lane"); l16 = V.alloc("l16")
    P(f"v_lshrrev_b32 v1, 6, v0")
    P(f"v_and_b32 v{lane}, 63, v0")
    P(f"v_readfirstlane_b32 s{S_W}, v1")
    P(f"v_lshlrev_b32 v{l16}, 4, v{lane}")
    P(f"s_lshr_b32 s{S_T0}, s2, 3")
    if OPT.get("jrot"): P(f"s_add_u32 s{S_J}, s{S_T0}, {OPT['jrot']}"); P(f"s_and_b32 s{S_J}, s{S_J}, 3")
    else: P(f"s_and_b32 s{S_J}, s{S_T0}, 3")
    P(f"s_and_b32 s{S_T1}, s2, 1")
    P(f"s_lshl_b32 s{S_T1}, s{S_T1}, 2")
    P(f"s_add_u32 s{S_J}, s{S_J}, s{S_T1}")
    P(f"s_and_b32 s{S_G}, s2, 6")
    P(f"s_lshl_b32 s{S_G}, s{S_G}, 2")
    P(f"s_lshr_b32 s{S_T0}, s{S_T0}, 2")
    P(f"s_add_u32 s{S_G}, s{S_G}, s{S_T0}")
    t0 = V.alloc("t0"); t1 = V.alloc("t1")
    vsl = slice_pattern(P, V, lane, t0)
    LOADS["f"] = lambda sfx: emit_loads(P, l16, vsl, sfx)
    P(f"s_and_b32 s{S_TT}, s{S_W}, 1")
    P(f"s_lshl_b32 s{S_TILE}, s{S_G}, 1")
    P(f"s_add_u32 s{S_TILE}, s{S_TILE}, s{S_TT}")
    P(f"s_lshr_b32 s{S_HP}, s{S_W}, 1")
    P(f"s_and_b32 s{S_HP}, s{S_HP}, 1")
    P(f"s_lshr_b32 s{S_KH}, s{S_W}, 2")
    assert all((p * 171) >> 12 == p // 24 for p in range(64)) and SLOT_SZ == 3 * 8192 + 256
    return lane, l16, t0, t1, vsl


def rest_srds(P):
    P(f"s_cmp_eq_u32 s{S_TT}, 0")
    P(f"s_cselect_b32 s{S_WM}, s16, s18")
    P(f"s_cselect_b32 s{S_WM+1}, s17, s19")
    P(f"s_and_b32 s{S_WM+1}, s{S_WM+1}, 0xffff")
    P(f"s_mov_b32 s{S_WM+2}, 0x{SZ['wg']:x}")
    P(f"s_mov_b32 s{S_WM+3}, 0x20000")
    mk_srd(P, S_OUT, 24, SZ["out"])
    mk_srd(P, S_WO, 12, SZ["wo"])
    mk_srd(P, S_WD, 20, SZ["wd"])


def nonce_check(P, SL, vn, vz):
    k = SL.n; SL.n += 1
    P(f"v_readfirstlane_b32 s{S_NONCE}, v{vn}")
    P(f"s_cmp_eq_u32 s{S_NONCE}, 0")
    P(f"s_cbranch_scc1 LS{k}")
    P(f"LR{k}:")
    SL.add(f"""LS{k}:
    s_mov_b32 s{S_T7}, 0
LS{k}_l:
    s_sleep 2
    buffer_load_dword v{vn}, v{vz}, s[{S_DBG}:{S_DBG+3}], 0 offen sc1
    s_waitcnt vmcnt(0)
    v_readfirstlane_b32 s{S_NONCE}, v{vn}
    s_add_u32 s{S_T7}, s{S_T7}, 1
    s_cmp_ge_u32 s{S_T7}, 0x{SPIN_MAX:x}
    s_cbranch_scc1 LR{k}
    s_cmp_eq_u32 s{S_NONCE}, 0
    s_cbranch_scc1 LS{k}_l
    s_branch LR{k}
""")


def flag_load(vf, n, vaddr, soff):
    op = {1: "buffer_load_dword", 4: "buffer_load_dwordx4"}[n]
    return f"{op} {vr(vf,n)}, v{vaddr}, {WSR}, {soff} offen sc1"


def flag_cmp(vf, n, t):
    L = [f"v_xor_b32 v{t}, s{S_NONCE}, v{vf}"]
    for i in range(1, n):
        L += [f"v_xor_b32 v{vf+i}, s{S_NONCE}, v{vf+i}", f"v_or_b32 v{t}, v{t}, v{vf+i}"]
    L += [f"v_cmp_ne_u32 vcc, 0, v{t}"]
    return L


def spin_check(P, SL, loads, cmps, sleep=1):
    k = SL.n; SL.n += 1
    for x in cmps: P(x)
    P(f"s_cbranch_vccnz LS{k}")
    P(f"LR{k}:")
    nl = "\n    "
    SL.add(f"""LS{k}:
    s_mov_b32 s{S_T7}, 0
LS{k}_l:
    {f"s_sleep {sleep}" if sleep else "s_nop 0"}
    {nl.join(loads)}
    s_waitcnt vmcnt(0)
    {nl.join(cmps)}
    s_add_u32 s{S_T7}, s{S_T7}, 1
    s_cmp_ge_u32 s{S_T7}, 0x{SPIN_MAX:x}
    s_cbranch_scc1 LR{k}
    s_cbranch_vccnz LS{k}_l
    s_nop 1
    s_branch LR{k}
""")


def flag_store(P, vz, t, soff):
    P(f"v_mov_b32 v{t}, s{S_NONCE}")
    P("s_mov_b64 exec, 1")
    P(f"buffer_store_dword v{t}, v{vz}, {WSR}, s{soff} offen sc1", tag="flag")
    P("s_mov_b64 exec, -1")


PROG = MISC + 1024
class SplitBar:
    def __init__(self, P, V, SL, lane, t0):
        self.P, self.SL, self.n = P, SL, 0
        self.va = V.alloc("sba"); self.vr = V.alloc("sbr"); self.one = V.alloc("sb1"); self.vg = V.alloc("sbg")
        P(f"s_lshl_b32 s{S_T0}, s{S_W}, 8")
        P(f"s_add_u32 s{S_T0}, s{S_T0}, 0x{PROG:x}")
        P(f"v_lshlrev_b32 v{t0}, 2, v{lane}")
        P(f"v_add_u32 v{self.va}, s{S_T0}, v{t0}")
        P(f"v_and_b32 v{t0}, 7, v{lane}")
        P(f"v_mul_u32_u24 v{t0}, 260, v{t0}")
        P(f"v_add_u32 v{self.vr}, 0x{PROG:x}, v{t0}")
        P(f"v_mov_b32 v{self.one}, 0")
        P(f"ds_write_b32 v{self.va}, v{self.one}")
        P(f"v_mov_b32 v{self.one}, 1")
    def arrive(self):
        self.n += 1
        self.P(f"ds_add_u32 v{self.va}, v{self.one}")
    def peek(self): self.P(f"ds_read_b32 v{self.vg}, v{self.vr}")
    def check(self):
        k = self.SL.n; self.SL.n += 1
        self.P(f"v_cmp_gt_u32 vcc, {self.n}, v{self.vg}")
        self.P(f"s_cbranch_vccz LR{k}")
        self.P(f"LS{k}:")
        for t in ([f"s_sleep {OPT['ssl']}"] if OPT.get("ssl") else []) + [f"ds_read_b32 v{self.vg}, v{self.vr}", "s_waitcnt lgkmcnt(0)", f"v_cmp_gt_u32 vcc, {self.n}, v{self.vg}", f"s_cbranch_vccnz LS{k}"]:
            self.P(t); self.P.I[-1].kind = "salu"; self.P.I[-1].vw = set(); self.P.I[-1].vr = set()
        self.P(f"LR{k}:")


def attn_setup(P, V, lane, l16, t0, t1):
    A = {}
    P(f"s_lshl_b32 s{S_T1}, s{S_KH}, 12")
    vk = V.alloc("vk"); vv = [V.alloc("vv0"), V.alloc("vv1")]
    P(f"s_add_u32 s{S_T1}, s{S_T1}, 0x{KV_RING:x}")
    P(f"v_add_u32 v{vk}, s{S_T1}, v{l16}")
    P(f"v_lshrrev_b32 v{t0}, 5, v{lane}")
    P(f"v_lshlrev_b32 v{t0}, 8, v{t0}")
    P(f"v_and_b32 v{t1}, 15, v{lane}")
    P(f"v_lshl_add_u32 v{t0}, v{t1}, 4, v{t0}")
    P(f"v_and_b32 v{t1}, 16, v{lane}")
    P(f"v_cmp_eq_u32 vcc, 0, v{t1}")
    P(f"s_add_u32 s{S_T1}, s{S_T1}, 2048")
    for s in range(2):
        P(f"v_mov_b32 v{t1}, s{S_T1}")
        P(f"v_add_u32 v{t1}, {8192*s}, v{t1}")
        P(f"v_mov_b32 v{vv[s]}, 0x{ONES:x}")
        P(f"v_cndmask_b32 v{vv[s]}, v{t1}, v{vv[s]}, vcc")
        P(f"v_add_u32 v{vv[s]}, v{vv[s]}, v{t0}")
    P(f"s_lshl_b32 s{S_KVOFF}, s{S_KH}, 15")
    P(f"s_lshl_b32 s{S_T1}, s{S_HP}, 16")
    P(f"s_add_u32 s{S_KVOFF}, s{S_KVOFF}, s{S_T1}")
    P(f"s_lshl_b32 s{S_T1}, s{S_TT}, 10")
    P(f"s_add_u32 s{S_KVOFF}, s{S_KVOFF}, s{S_T1}")
    P(f"s_lshl_b32 s{S_KVLDS}, s{S_W}, 10")
    P(f"s_add_u32 s{S_KVLDS}, s{S_KVLDS}, 0x{KV_RING:x}")
    A.update(vk=vk, vv=vv)
    A["S"] = [V.alloc("Sa", 16), V.alloc("Sb", 16)]
    A["O"] = [V.alloc("Oa", 16), V.alloc("Ob", 16)]
    A["fk"] = V.alloc("fk", 4); A["fv"] = [V.alloc("fv1", 4), V.alloc("fv2", 4)]
    A["q"] = V.alloc("qf", 8)
    return A


def kv_dma(P, l16, c):
    dma(P, l16, S_WS, f"s{S_T2}", (S_KVLDS, 8192 * (c & 1)), tag=f"kv{c}", mods=SC1, pre=[f"s_add_u32 s{S_T2}, s{S_KVOFF}, {2048*c}"])


def attention(P, A, l16, its, hook, prio, kvf=None):
    S, O, fk, fv = A["S"], A["O"], A["fk"], A["fv"]
    SB = OPT.get("sb", 0)
    q = [A["q"], A["q"] + 4]
    def rdK(it): P(f"ds_read_b128 {vr(fk,4)}, v{A['vk']} offset:{((it>>1)&1)*8192 + (it&1)*1024}")
    def rdV(it, half):
        m = OPT.get("vmask", 1) and it > 0
        if m: P(f"s_mov_b64 exec, s[{S_VM}:{S_VM+1}]")
        P(f"ds_read_b128 {vr(fv[half],4)}, v{A['vv'][(it>>1)&1]} offset:{(it&1)*1024 + half*512}")
        if m: P("s_mov_b64 exec, -1")
    E = lambda x, i: P(f"v_exp_f32 v{S[x]+i}, v{S[x]+i}")
    def C(x, i):
        b = S[x] + (8 if i >= 4 else 0); k = i & 3
        P(f"v_cvt_pk_bf16_f32 v{b+k}, v{b+2*k}, v{b+2*k+1}")
    for it in its:
        if it == 0:
            if OPT.get("vmask", 1): P(f"s_mov_b32 s{S_VM}, 0xffff0000"); P(f"s_mov_b32 s{S_VM+1}, 0xffff0000")
            rdK(0); rdV(0, 0)
            hook(0, 0, "start")
            P(mfma(S[0], fk, q[0]))
        for x in range(2):
            H = lambda pos: hook(it, x, pos)
            E(x, 0); E(x, 1)
            if x == 0:
                if it > 0: P(mfma(O[1], fv[1], S[1] + 8, O[1]))
                rdV(it, 1)
            else:
                P(mfma(O[0], fv[1], S[0] + 8, O[0]))
                if SB and A["syn"]:
                    A["sb"].check(); after_sync()
            H("pv2")
            E(x, 2); E(x, 3); H("g1")
            E(x, 4); E(x, 5); H("g2")
            E(x, 6); E(x, 7)
            if x == 0: P(mfma(S[1], fk, q[1]))
            elif it < 31: P(mfma(S[0], fk, q[0]))
            H("qk")
            sig = (x == 0 and (it & 1) and it < 31)
            syn = sig or (x == 0 and hook(it, x, "sync?"))
            ORD = OPT.get("ord", 2) if syn else 0
            for i in range(4): C(x, i)
            if ORD == 0: H("g3")
            E(x, 8); E(x, 9)
            if ORD == 2: P(mfma(O[x], fv[0], S[x], None if it == 0 else O[x]))
            if ORD: H("g3")
            if syn:
                H("pre0")
                if sig: P.wait_tag(f"kv{(it>>1)+1}")
                H("pre")
                if not OPT.get("nolg"): P.wait_lgkm_all()
                if SB: A["sb"].arrive()
                elif not OPT.get("nobar"): P("s_barrier")
            if ORD == 1: E(x, 10); E(x, 11)
            if ORD != 2: P(mfma(O[x], fv[0], S[x], None if it == 0 else O[x]))
            p = prio(it, x)
            if p is not None: P(f"s_setprio {p}")
            def after_sync():
                if it < 31: rdK(it + 1)
                if (it & 1) and (it >> 1) + 2 < 16: (kvf or (lambda c: kv_dma(P, l16, c)))((it >> 1) + 2)
                if A["syn"]: hook(it, 0, "chk")
            if x == 0:
                A["syn"] = syn
                if not (SB and syn): after_sync()
            else:
                if it < 31: rdV(it + 1, 0)
            H("pv1")
            if ORD != 1: E(x, 10); E(x, 11)
            else: E(x, 12)
            H("g4")
            if ORD != 1: E(x, 12)
            E(x, 13); H("g5")
            E(x, 14); E(x, 15); H("g6")
            if x == 0 and SB and A["syn"]: A["sb"].peek()
            for i in range(4, 8): C(x, i)
        if it == 31: P(mfma(O[1], fv[1], S[1] + 8, O[1]))


def fin_dma_w1(P, vsl, st, slot, tag, i):
    srd, u0 = (S_WD, 8 * st) if st < 11 else (S_WO, 8 * (st - 11))
    dma(P, vsl, srd, f"s{S_T2}", (S_FL2, slot + 1024 * i), tag=tag, pre=[f"s_add_u32 s{S_T2}, s{S_FW}, 0x{(16*u0 + 8*i)*1024:x}"])


def fin_dma_b1(P, l16, st, slot, tag, t):
    P(f"s_add_u32 s{S_T2}, s{S_FB}, 0x{(t*118 + 8*st)*1024:x}")
    if st == 10:
        P(f"s_cmp_lt_u32 s{S_W}, 6")
        P(f"s_cselect_b32 s{S_T2}, s{S_T2}, 0x{OOB:x}")
    dma(P, l16, S_WS, f"s{S_T2}", (S_FL, slot + 16384 + 8192 * t), tag=tag, mods=SC1)


def kernel_F():
    P = Prog(); V = Regs(2, 255, "v"); SL = Slow()
    NP = OPT.get("np", 2)
    JIT = 16 - NP
    GPP = OPT.get("gpp", 2)
    UNI = OPT.get("uni", JIT + 2)
    HF = OPT.get("hf", UNI | 1)
    lane, l16, t0, t1, vsl = prologue_f(P, V, "LF_end")
    vz = V.alloc("vz")
    P(f"s_cmp_lg_u32 s{S_W}, 7")
    P("s_cbranch_scc1 LF_not7")
    P(f"s_lshr_b32 s{S_T4}, s{S_J}, 1")
    P(f"s_lshl_b32 s{S_T0}, s{S_G}, 16")
    P(f"s_lshl_b32 s{S_T2}, s{S_T4}, 14")
    P(f"s_add_u32 s{S_T2}, s{S_T2}, s{S_T0}")
    P(f"s_mul_i32 m0, s{S_T4}, {16*X_STRIDE}")
    P(f"s_and_b32 s{S_T3}, s{S_J}, 1")
    P(f"s_mov_b32 s{S_T5}, 0")
    P("s_waitcnt lgkmcnt(0)")
    mk_srd(P, S_X, 4, SZ["x"])
    if OPT.get("u7", 1):
        P(f"s_sub_u32 s{S_X}, s{S_X}, 64")
        P(f"s_subb_u32 s{S_X+1}, s{S_X+1}, 0")
        P(f"s_mov_b32 s{S_X+2}, 0x{SZ['x'] + 64:x}")
        P(f"s_add_u32 s{S_T2}, s{S_T2}, 64")
        for g in range(4):
            for k in range(4):
                if k == 0:
                    if g: P(f"s_add_u32 m0, m0, {4*X_STRIDE}"); P(f"s_add_u32 s{S_T2}, s{S_T2}, {4096 + 48}")
                else: P(f"s_sub_u32 s{S_T2}, s{S_T2}, 16")
                P(f"buffer_load_dwordx4 v{l16}, s[{S_X}:{S_X+3}], s{S_T2} offen offset:{X_STRIDE*k} lds", tag="c")
    else:
        P("LF_ldx7:")
        P(f"buffer_load_dwordx4 v{l16}, s[{S_X}:{S_X+3}], s{S_T2} offen lds", tag="c")
        P(f"s_add_u32 m0, m0, {X_STRIDE}")
        P(f"s_add_u32 s{S_T2}, s{S_T2}, 1024")
        P(f"s_add_u32 s{S_T5}, s{S_T5}, 1")
        P(f"s_cmp_lg_u32 s{S_T5}, 16")
        P("s_cbranch_scc1 LF_ldx7")
    P(f"s_cmp_eq_u32 s{S_T3}, 0")
    P(f"s_cselect_b32 s{S_WKV}, s8, s10")
    P(f"s_cselect_b32 s{S_WKV+1}, s9, s11")
    P(f"s_and_b32 s{S_WKV+1}, s{S_WKV+1}, 0xffff")
    P(f"s_mov_b32 s{S_WKV+2}, 0x{SZ['wk']:x}")
    P(f"s_mov_b32 s{S_WKV+3}, 0x20000")
    P(f"s_mov_b32 m0, 0x{WKV_L:x}")
    P(f"s_mov_b32 s{S_T5}, 0")
    P("LF_ldw7:")
    for i in range(4):
        P(f"buffer_load_dwordx4 v{l16}, s[{S_WKV}:{S_WKV+3}], s{S_T5} offen offset:{1024*i} lds")
        P.I[-1].kind = "salu"
    P(f"s_add_u32 m0, m0, 4096")
    P(f"s_add_u32 s{S_T5}, s{S_T5}, 4096")
    P(f"s_cmp_lg_u32 s{S_T5}, 16384")
    P("s_cbranch_scc1 LF_ldw7")
    stamp(P, 15)
    P("s_barrier")
    P("LF_not7:")
    P("s_waitcnt lgkmcnt(0)")
    if OPT.get("cpf", 1):
        c = V.alloc("cpf")
        P(f"s_getpc_b64 s[{S_EX}:{S_EX+1}]")
        P("LF_pc0:")
        P(f"s_lshr_b32 s{S_T3}, s2, 3")
        P(f"s_lshl_b32 s{S_T3}, s{S_T3}, 3")
        P(f"s_add_u32 s{S_T3}, s{S_T3}, s{S_W}")
        P(f"s_lshl_b32 s{S_T3}, s{S_T3}, 8")
        P(f"v_lshlrev_b32 v{c}, 7, v{lane}")
        P(f"v_add_u32 v{c}, s{S_T3}, v{c}")
        P(f"v_min_u32 v{c}, LF_last-LF_pc0, v{c}")
        P("s_mov_b64 exec, 3")
        P(f"global_load_dword v{c}, v{c}, s[{S_EX}:{S_EX+1}]", tag="cpf")
        P("s_mov_b64 exec, -1")
    P(f"v_mov_b32 v{vz}, 0")
    mk_srd(P, S_WS, 28, SZ["ws"])
    mk_srd(P, S_DBG, 26, SZ["dbg"])
    vn = V.alloc("vn")
    P(f"s_or_b32 s{S_T0}, s2, s{S_W}")
    P(f"s_cmp_lg_u32 s{S_T0}, 0")
    P("s_cbranch_scc1 LF_non")
    P.cond_begin()
    P(f"s_memrealtime s[{S_EX}:{S_EX+1}]")
    P("s_waitcnt lgkmcnt(0)")
    P(f"s_mul_i32 s{S_EX+1}, s{S_EX+1}, 0x9e3779b1")
    P(f"s_xor_b32 s{S_EX}, s{S_EX}, s{S_EX+1}")
    P(f"s_or_b32 s{S_EX}, s{S_EX}, 1")
    P(f"v_mov_b32 v{t0}, s{S_EX}")
    P("s_mov_b64 exec, 1")
    P(f"buffer_store_dword v{t0}, v{vz}, s[{S_DBG}:{S_DBG+3}], 0 offen sc1")
    P("s_mov_b64 exec, -1")
    P.cond_end()
    P("LF_non:")
    P_main = P; P = Prog()
    rest_srds(P)
    mk_srd(P, S_GW, 22, SZ["gw"])
    P(f"s_mov_b32 s{S_C1}, {hexf(2.0**120)}")
    A = attn_setup(P, V, lane, l16, t0, t1)
    qf = A["q"]; O = A["O"]; S = A["S"]
    A["sb"] = SplitBar(P, V, SL, lane, t0) if OPT.get("sb", 0) else type("X", (), dict(n=0))()
    vfl = V.alloc("vfl", 4)
    P(f"s_lshl_b32 s{S_T0}, s{S_HP}, 1")
    P(f"s_add_u32 s{S_T0}, s{S_T0}, s{S_KH}")
    P(f"s_lshl_b32 s{S_T1}, s{S_J}, 2")
    P(f"s_add_u32 s{S_T0}, s{S_T0}, s{S_T1}")
    P(f"s_mul_i32 s{S_T1}, s{S_TILE}, 118")
    P(f"s_add_u32 s{S_T0}, s{S_T0}, s{S_T1}")
    P(f"s_lshl_b32 s{S_T0}, s{S_T0}, 10")
    P(f"s_add_u32 s{S_OD}, s{S_T0}, 0x{WS_OH + 86*1024:x}")
    def poison():
        for r in range(4): P(f"v_mov_b32 v{O[0]+r}, -1")
        P(f"buffer_store_dwordx4 {vr(O[0],4)}, v{l16}, {WSR}, s{S_OD} offen sc1", tag="poison")
    P(f"s_lshr_b32 s{S_T0}, s{S_W}, 1")
    P(f"s_lshl_b32 s{S_T0}, s{S_T0}, 3")
    P(f"s_add_u32 s{S_T0}, s{S_T0}, s{S_T1}")
    P(f"s_lshl_b32 s{S_T0}, s{S_T0}, 10")
    P(f"s_add_u32 s{S_OL}, s{S_T0}, 0x{WS_OH + 86*1024:x}")
    P(f"s_lshl_b32 s{S_FP}, s{S_G}, 10")
    P(f"s_lshl_b32 s{S_FS}, s{S_J}, 5")
    P(f"s_add_u32 s{S_FS}, s{S_FS}, s{S_W}")
    P(f"s_lshl_b32 s{S_FS}, s{S_FS}, 2")
    P(f"s_add_u32 s{S_FS}, s{S_FS}, s{S_FP}")
    P(f"s_add_u32 s{S_FS}, s{S_FS}, 0x{FL_H:x}")
    P(f"s_add_u32 s{S_FP}, s{S_FP}, 0x{FL_H:x}")
    P(f"s_lshl_b32 s{S_FW}, s{S_W}, 14")
    P(f"s_lshl_b32 s{S_T1}, s{S_J}, 7")
    P(f"s_add_u32 s{S_FW}, s{S_FW}, s{S_T1}")
    P(f"s_lshl_b32 s{S_FL2}, s{S_W}, 11")
    P(f"s_mul_i32 s{S_U0}, s{S_J}, 11")
    P(f"s_min_u32 s{S_U0}, s{S_U0}, 76")
    P(f"s_cmp_ge_u32 s{S_J}, 6")
    P(f"s_cselect_b32 s{S_NU}, 10, 11")
    vxa = xfrag_addr(P, V, "vxa", lane, t0, S_TT)
    vq = V.alloc("vq")
    P(f"s_and_b32 s{S_T0}, s{S_W}, 3")
    P(f"s_lshl_b32 s{S_T1}, s{S_T0}, 11")
    P(f"s_add_u32 s{S_T1}, s{S_T1}, 0x{QSCR:x}")
    P(f"v_add_u32 v{vq}, s{S_T1}, v{l16}")
    COMMON = P.I; P = P_main
    def emit(L):
        for x in L: P(x.text, tag=x.tag)
    iw = next(i for i, x in enumerate(COMMON) if x.text.startswith(f"s_mov_b32 s{S_WM+3},")) + 1
    iu = next(i for i, x in enumerate(COMMON) if x.text.startswith(f"s_mul_i32 s{S_U0},"))
    C_EARLY = COMMON[:iw] + COMMON[iu:iu + 4]; C_LATE = COMMON[iw:iu] + COMMON[iu + 4:]
    acc = [[V.alloc(f"acc{i}{t}", 16) for t in range(2)] for i in range(3)]
    fx = [[V.alloc(f"fx{b}{t}", 4) for t in range(2)] for b in range(2)]
    fw = [[V.alloc(f"fw{b}{i}", 4) for i in range(3)] for b in range(2)]
    S_PFB = 19
    def capture(f):
        nonlocal P
        P0 = P; P = Prog(); f(); L = P.I; P = P0
        return L
    R = {}
    def f1():
        vtn = tr_slice_addr(P, V, "vtn", lane, t0, t1, SLOT[0], S_HP, 8)
        vpf = V.alloc("vpf"); vpd = V.alloc("vpd"); vpw = V.alloc("vpw")
        P(f"v_bfe_u32 v{t0}, v{lane}, 4, 1")
        P(f"v_lshrrev_b32 v{t1}, 5, v{lane}")
        P(f"v_lshl_add_u32 v{t0}, v{t1}, 7, v{t0}")
        P(f"v_mul_u32_u24 v{vpf}, 2752, v{t0}")
        P(f"v_and_b32 v{t0}, 15, v{lane}")
        P(f"v_lshl_add_u32 v{vpf}, v{t0}, 7, v{vpf}")
        P(f"v_cmp_gt_u32 vcc, 12, v{t0}")
        P(f"v_mov_b32 v{t1}, 0x{OOB:x}")
        P(f"v_cndmask_b32 v{vpf}, v{t1}, v{vpf}, vcc")
        P(f"s_lshr_b32 s{S_T0}, s2, 3")
        P(f"s_lshl_b32 s{S_T0}, s{S_T0}, 1")
        P(f"s_add_u32 s{S_T0}, s{S_T0}, s{S_HP}")
        P(f"s_mul_i32 s{S_T0}, s{S_T0}, {2*2752}")
        P(f"s_and_b32 s{S_T1}, s2, 1")
        P(f"s_mul_i32 s{S_T1}, s{S_T1}, {44*32}")
        P(f"s_add_u32 s{S_PFB}, s{S_T0}, s{S_T1}")
        R.update(vtn=vtn, vpf=vpf, vpd=vpd, vpw=vpw)
    def f2():
        vx0 = V.alloc("vx0")
        P(f"s_mul_i32 s{S_T0}, s{S_TT}, {32*X_STRIDE}")
        P(f"v_subrev_u32 v{vx0}, s{S_T0}, v{vxa}")
        P(f"s_lshl_b32 s{S_T4}, s{S_W}, 1")
        wtr = w_tr_addrs(P, V, lane, t0, t1, s_w=S_T4)
        R.update(vx0=vx0, wtr=wtr)
    def f3():
        P(f"s_mul_i32 s{S_T0}, s{S_W}, 3")
        P(f"s_mul_i32 s{S_T1}, s{S_G}, 236")
        P(f"s_add_u32 s{S_T1}, s{S_T1}, s{S_U0}")
        for i in range(3):
            P(f"s_add_u32 s{S_T2}, s{S_T0}, {i}")
            P(f"s_add_u32 s{SH[i]}, s{S_T1}, s{S_T2}")
            P(f"s_lshl_b32 s{SH[i]}, s{SH[i]}, 10")
            P(f"s_add_u32 s{SH[i]}, s{SH[i]}, 0x{WS_OH:x}")
            P(f"s_cmp_lt_u32 s{S_T2}, s{S_NU}")
            P(f"s_cselect_b32 s{SH[i]}, s{SH[i]}, 0x{OOB:x}")
    def f4():
        vpw = R["vpw"]
        S_PFS = S_WKV
        P(f"s_lshr_b32 s{S_T0}, s2, 3")
        P(f"s_lshl_b32 s{S_T0}, s{S_T0}, 2")
        P(f"s_add_u32 s{S_T0}, s{S_T0}, s{S_W}")
        P(f"s_cmp_lt_u32 s{S_T0}, 86")
        P(f"s_cselect_b32 s{S_PFS}, s{S_WD}, s{S_WO}")
        P(f"s_cselect_b32 s{S_PFS+1}, s{S_WD+1}, s{S_WO+1}")
        P(f"s_cselect_b32 s{S_PFS+2}, s{S_WD+2}, s{S_WO+2}")
        P(f"s_cselect_b32 s{S_T1}, 0, 86")
        P(f"s_mov_b32 s{S_PFS+3}, 0x20000")
        P(f"s_sub_u32 s{S_T0}, s{S_T0}, s{S_T1}")
        P(f"s_lshl_b32 s{S_T0}, s{S_T0}, 14")
        P(f"s_and_b32 s{S_T1}, s2, 1")
        P(f"s_lshl_b32 s{S_T1}, s{S_T1}, 9")
        P(f"s_add_u32 s{S_T0}, s{S_T0}, s{S_T1}")
        P(f"v_lshrrev_b32 v{t0}, 2, v{lane}")
        P(f"v_lshlrev_b32 v{t0}, 10, v{t0}")
        P(f"v_and_b32 v{t1}, 3, v{lane}")
        P(f"v_lshl_add_u32 v{t0}, v{t1}, 7, v{t0}")
        P(f"v_add_u32 v{vpw}, s{S_T0}, v{t0}")
    ix = next(i for i, x in enumerate(COMMON) if x.text.startswith(f"v_and_b32 v{t0}, 31, v{lane}"))
    ia = next(i for i, x in enumerate(COMMON) if x.text.startswith(f"s_mov_b32 s{S_C1},")) + 1
    io = next(i for i, x in enumerate(COMMON) if x.text.startswith(f"s_lshl_b32 s{S_T0}, s{S_HP}, 1"))
    ifl = next(i for i, x in enumerate(COMMON) if x.text.startswith(f"s_lshl_b32 s{S_FP},"))
    H_PRE = COMMON[ix:ix + 6] + COMMON[:iw] + capture(f1)
    H_MID = COMMON[ia:io] + COMMON[ix + 6:] + capture(f2) + COMMON[io:ifl]
    H_LATE = [COMMON[iw:iw + 8], COMMON[iw + 8:ia], COMMON[ifl:iu], COMMON[iu:iu + 4]]
    sh = capture(f3); H_LATE += [sh[:9], sh[9:15], sh[15:]]
    wp = capture(f4); H_LATE += [wp[:14], wp[14:]]
    vtn, vpf, vpd, vpw, vx0, wtr = (R[k] for k in ("vtn", "vpf", "vpd", "vpw", "vx0", "wtr"))
    S_PFS = S_WKV
    def pf(blk, half):
        P(f"s_add_u32 s{S_T4}, s{S_PFB}, {128*2752*blk}")
        if half: P("s_mov_b64 exec, 0xffffffff")
        P(f"buffer_load_dword v{vpd}, v{vpf}, s[{S_WM}:{S_WM+3}], s{S_T4} offen", tag="pf")
        P.I[-1].vw = set()
        if half: P("s_mov_b64 exec, -1")
    PF = OPT.get("pf", 1)
    KT = 192; vx16 = 240; vw16 = 241; vst = 242; S_K5, S_K6 = S_T5, S_T6
    P(f"s_cmp_lg_u32 s{S_W}, 7")
    P("s_cbranch_scc1 LF_not7b")
    P.cond_begin()
    P(f"s_lshr_b32 s{S_T0}, s{S_J}, 1")
    P(f"s_lshl_b32 s{S_T1}, s{S_T0}, 4")
    P(f"v_and_b32 v{t0}, 15, v{lane}")
    P(f"v_add_u32 v{t1}, s{S_T1}, v{t0}")
    P(f"v_mul_u32_u24 v{vx16}, {X_STRIDE}, v{t1}")
    P(f"v_lshrrev_b32 v{t1}, 4, v{lane}")
    P(f"v_lshl_add_u32 v{vx16}, v{t1}, 4, v{vx16}")
    P(f"v_lshlrev_b32 v{vw16}, 8, v{t1}")
    P(f"v_lshl_add_u32 v{vw16}, v{t0}, 3, v{vw16}")
    P(f"v_add_u32 v{vw16}, 0x{WKV_L:x}, v{vw16}")
    P(f"s_and_b32 s{S_K6}, s{S_J}, 1")
    P(f"s_cmp_eq_u32 s{S_K6}, 0")
    P(f"s_cselect_b32 s{S_T3}, 9, 8")
    P(f"s_cselect_b32 s{S_T4}, 8, 9")
    P(f"s_cselect_b32 s{S_K5}, 0x{WS_KF:x}, 0x{WS_VF:x}")
    P(f"v_lshlrev_b32 v{vst}, 4, v{t0}")
    P(f"v_lshrrev_b32 v{t0}, 1, v{t1}")
    P(f"v_lshl_add_u32 v{vst}, v{t0}, 3, v{vst}")
    P(f"v_and_b32 v{t0}, 1, v{t1}")
    P(f"v_lshlrev_b32 v{t0}, s{S_T3}, v{t0}")
    P(f"v_add_u32 v{vst}, v{vst}, v{t0}")
    P(f"s_and_b32 s{S_T1}, s{S_T0}, 1")
    P(f"s_lshl_b32 s{S_T1}, s{S_T1}, s{S_T4}")
    P(f"s_add_u32 s{S_K5}, s{S_K5}, s{S_T1}")
    P(f"s_lshr_b32 s{S_T0}, s{S_T0}, 1")
    P(f"s_lshl_b32 s{S_T1}, s{S_G}, 1")
    P(f"s_add_u32 s{S_T0}, s{S_T0}, s{S_T1}")
    P(f"s_lshl_b32 s{S_T0}, s{S_T0}, 10")
    P(f"s_add_u32 s{S_K5}, s{S_K5}, s{S_T0}")
    P("s_waitcnt vmcnt(0)")
    P(f"buffer_load_dword v{vn}, v{vz}, s[{S_DBG}:{S_DBG+3}], 0 offen sc1")
    def kv16(which):
        d = KT
        xb = [(KT+16) + 4 * i for i in range(4)]; wb = [(KT+32) + 4 * i for i in range(4)]
        def ld(ks):
            P(f"ds_read_b128 {vr(xb[ks%4],4)}, v{vx16} offset:{ks*64}")
            P(f"ds_read_b64_tr_b16 {vr(wb[ks%4],2)}, v{vw16} offset:{ks*1024}")
            P(f"ds_read_b64_tr_b16 {vr(wb[ks%4]+2,2)}, v{vw16} offset:{ks*1024+128}")
        for ks in range(3): ld(ks)
        for ks in range(16):
            a, b = (wb[ks%4], xb[ks%4]) if which == 0 else (xb[ks%4], wb[ks%4])
            P(f"v_mfma_f32_16x16x32_bf16 {vr(d,4)}, {vr(a,4)}, {vr(b,4)}, {vr(d,4) if ks else 0}")
            if ks + 3 < 16: ld(ks + 3)
        if which == 0:
            P(f"s_mov_b32 s{S_T0}, {hexf(QK_SCALE)}")
            for r in range(4): P(f"v_mul_f32 v{d+r}, s{S_T0}, v{d+r}")
    P(f"s_cmp_eq_u32 s{S_K6}, 1")
    P("s_cbranch_scc1 LF_vch")
    P.cond_begin(); kv16(0); P.cond_end()
    P("s_branch LF_kvj")
    P("LF_vch:")
    P.cond_begin(); kv16(1); P.cond_end()
    P("LF_kvj:")
    for r in range(2): P(f"v_cvt_pk_bf16_f32 v{KT+4+r}, v{KT+2*r}, v{KT+2*r+1}")
    P(f"buffer_store_dwordx2 {vr(KT+4,2)}, v{vst}, {WSR}, s{S_K5} offen sc1")
    FB2 = OPT.get("fb2", 0)
    def w7flag():
        P(f"s_lshl_b32 s{S_T0}, s{S_G}, 3")
        P(f"s_add_u32 s{S_T0}, s{S_T0}, s{S_J}")
        P(f"s_lshl_b32 s{S_T0}, s{S_T0}, 2")
        P(f"s_add_u32 s{S_T0}, s{S_T0}, 0x{FL_KV:x}")
        P("s_waitcnt vmcnt(0)")
        nonce_check(P, SL, vn, vz)
        flag_store(P, vz, t0, S_T0)
    if not FB2: w7flag()
    def pf7():
        P(f"v_lshrrev_b32 v{t0}, 4, v{lane}")
        P(f"v_mul_u32_u24 v{vx16}, 2752, v{t0}")
        P(f"v_and_b32 v{t0}, 15, v{lane}")
        P(f"v_lshl_add_u32 v{vx16}, v{t0}, 7, v{vx16}")
        P(f"v_cmp_gt_u32 vcc, 12, v{t0}")
        P(f"v_mov_b32 v{t1}, 0x{OOB:x}")
        P(f"v_cndmask_b32 v{vx16}, v{t1}, v{vx16}, vcc")
        P(f"s_lshr_b32 s{S_T0}, s2, 3")
        P(f"s_mul_i32 s{S_T0}, s{S_T0}, {4*2752}")
        P(f"s_and_b32 s{S_T1}, s2, 1")
        P(f"s_mul_i32 s{S_T1}, s{S_T1}, {44*32}")
        P(f"s_add_u32 s{S_T0}, s{S_T0}, s{S_T1}")
        for m in range(2):
            mk_srd(P, S_WKV, 16 + 2 * m, SZ["wg"])
            P(f"buffer_load_dword v{fx[0][0]+m}, v{vx16}, s[{S_WKV}:{S_WKV+3}], s{S_T0} offen")
    if OPT.get("pf7", 0) == 1: pf7()
    stamp(P, 1)
    P("s_barrier")
    stamp(P, 2)
    if OPT.get("pf7", 0) == 2: pf7()
    if FB2 == 1: w7flag()
    P("s_barrier")
    if FB2 == 2: w7flag()
    P.cond_end(nowait=True)
    P("s_branch LF_light")
    P("LF_not7b:")
    P(f"s_cmp_lg_u32 s{S_KH}, 0")
    P("s_cbranch_scc1 LF_l0")

    def sigstamp(it, k):
        if OPT.get("sig"):
            P(f"s_memtime s[98:99]"); P("s_waitcnt lgkmcnt(0)"); P(f"v_writelane_b32 v{vsig}, s98, {2*it+k}")
    vsig = V.alloc("vsig") if OPT.get("sig") else None

    P.cond_begin()
    emit(H_PRE)
    stamp(P, 15)
    P("s_barrier")
    stamp(P, 0)
    LOADS["f"]("h")
    stamp(P, 1)
    if PF & 4: pf(0, True)
    P.wait_tag("q")
    P("s_barrier")
    stamp(P, 2)
    if PF & 2: pf(0, True)
    QD = 6
    xb = [acc[1][0] + 4 * i for i in range(QD)]; wb = [acc[2][0] + 4 * i for i in range(QD)]
    assert acc[1][1] == acc[1][0] + 16 and acc[2][1] == acc[2][0] + 16
    def q_loads(ks):
        o = SLOT[ks // 12] - SLOT[0] + (ks % 12) * 2048
        P(f"ds_read_b128 {vr(xb[ks%QD],4)}, v{vxa} offset:{ks*32}")
        P(f"ds_read_b64_tr_b16 {vr(wb[ks%QD],2)}, v{vtn} offset:{o}")
        P(f"ds_read_b64_tr_b16 {vr(wb[ks%QD]+2,2)}, v{vtn} offset:{o+512}")
    for ks in range(QD - 1): q_loads(ks)
    for ks in range(32):
        P(mfma(acc[0][0], wb[ks%QD], xb[ks%QD], acc[0][0] if ks else None))
        if ks in (11, 23):
            stamp(P, 11 if ks == 11 else 13)
            P("s_barrier")
        if ks + QD - 1 in (12, 24): P("s_barrier")
        if ks + QD - 1 < 32: q_loads(ks + QD - 1)
        nf = -(-len(H_MID) // 28)
        emit(H_MID[ks * nf:(ks + 1) * nf])
        if ks == OPT.get("pk", 24):
            P(f"s_mov_b32 s{S_T5}, 0x{FL_KV:x}")
            P(f"buffer_load_dword v{vn}, v{vz}, s[{S_DBG}:{S_DBG+3}], 0 offen sc1")
            P(flag_load(vfl, 4, l16, f"s{S_T5}"))
    for r in range(8): P(f"v_cvt_pk_bf16_f32 v{qf+r}, v{acc[0][0]+2*r}, v{acc[0][0]+2*r+1}")
    P(f"ds_write_b128 v{vq}, {vr(qf,4)}")
    P(f"ds_write_b128 v{vq}, {vr(qf+4,4)} offset:1024")
    nonce_check(P, SL, vn, vz)
    spin_check(P, SL, [flag_load(vfl, 4, l16, f"s{S_T5}")], flag_cmp(vfl, 4, t0), sleep=OPT.get("ksl", 6))
    kv_dma(P, l16, 0)
    P(f"s_add_u32 s{S_T2}, s{S_T2}, 32768")
    dma(P, l16, S_WS, f"s{S_T2}", (S_KVLDS, 4096), tag="kv0", mods=SC1)
    def gu_reads(ks):
        s, kk = ks // 2, ks % 2
        so = SLOT[s % 3] - SLOT[0] + kk * 6144
        L = [f"ds_read_b128 {vr(fx[ks%2][0],4)}, v{vx0} offset:{ks*32}"]
        for i in range(3):
            f = fw[ks % 2][i]
            L += [f"ds_read_b64_tr_b16 {vr(f,2)}, v{wtr[i]} offset:{so}", f"ds_read_b64_tr_b16 {vr(f+2,2)}, v{wtr[i]} offset:{so+1536}"]
            if i == 0: L.append(f"ds_read_b128 {vr(fx[ks%2][1],4)}, v{vx0} offset:{ks*32 + 32*X_STRIDE}")
        return L
    def gu_groups(ks, late=False):
        R = gu_reads(ks + 1) if ks < 31 else []
        if OPT.get("abl_hds") and ks >= 2 * NP - 1: R = []
        G = []
        for m in range(6):
            i, t = m // 2, m % 2
            mm = [mfma(acc[i][t], fw[ks % 2][i], fx[ks % 2][t], acc[i][t] if ks else None)]
            if OPT.get("abl_hm") and ks >= 2 * NP - 1: mm = []
            G.append(mm + (R[2 * m: 2 * m + 2] if not late else ([] if m < 3 else R[3 * (m - 3): 3 * (m - 3) + 3])))
        return G
    P.wait_lgkm_all()
    stamp(P, 14)
    P("s_barrier")
    stamp(P, 3)
    for x in gu_reads(0): P(x)
    poison()
    PFI = OPT.get("pfi", 0)
    for ks in range(2 * NP - 1):
        if ks % 2 == 1:
            P.wait_lgkm_all(); P("s_barrier")
        for g in gu_groups(ks):
            for x in g: P(x)
    P.wait_tag("kv0"); P.wait_lgkm_all(); P("s_barrier")
    stamp(P, 4)
    gq = []
    tmp = fx[0][0]; cst = fx[1][0]
    assert fx[0][1] == fx[0][0] + 4
    gel = []
    def load_window(k):
        n = 2 * (NP + k) - 1
        assert not gq
        gq.extend(gu_groups(n, late=(k > 0 and OPT.get("sb", 0))))
        if n < 31: gq.extend(gu_groups(n + 1))
    def hookH(it, x, pos):
        if pos == "sync?": return 1 <= it <= JIT
        if pos == "pre0": sigstamp(it, 0); return
        if pos == "pre": sigstamp(it, 1); return
        if pos == "start": load_window(0); return
        midprio(it, x, pos)
        if pos in ("qk", "pv1") and H_LATE: emit(H_LATE.pop(0))
        if pos == "pv2" and x == 1 and PF & 1:
            if it == PFI: pf(1, True)
            if it == PFI + 2: pf(2, True)
            if it == PFI + 5: pf(3, True)
        if pos == "pv2" and x == 1 and OPT.get("wpf", 1) and it in (7, 8, 9, 10):
            k = it - 7
            P(f"s_cmp_lg_u32 s{S_W}, {k}")
            P(f"s_cbranch_scc1 LF_wp{k}")
            P(f"buffer_load_dword v{vpd}, v{vpw}, s[{S_PFS}:{S_PFS+3}], 0 offen")
            P.I[-1].kind = "salu"; P.I[-1].vw = set()
            P(f"LF_wp{k}:")
        if pos == "pv1" and x == 0 and 1 <= it <= JIT: load_window(it)
        if pos in ("g1", "g2", "g3", "g4", "g5", "g6"):
            if gq and not (it == 0 and pos in ("g1", "g3", "g5") and False):
                for t in gq.pop(0): P(t)
                if not gq and it == JIT and x == 1:
                    L = [f"v_mov_b32 v{cst}, {hexf(GELU_C1)}", f"v_mov_b32 v{cst+1}, {hexf(GELU_C1)}",
                         f"v_mov_b32 v{cst+2}, {hexf(GELU_C2)}", f"v_mov_b32 v{cst+3}, {hexf(GELU_C2)}"]
                    k = 0
                    for i in range(3):
                        for t in range(2):
                            d = fw[k % 2][k // 2]; k += 1
                            L += gelu_tile_pk(acc[i][t], d, tmp, cst)
                            if t == 1: L.append(f"s_add_u32 s{SH[i]}, s{SH[i]}, {118*1024}")
                            L.append(f"buffer_store_dwordx4 {vr(d,4)}, v{l16}, {WSR}, s{SH[i]} offen sc1")
                    ns = 3 + 12 * (UNI - JIT - 1)
                    n = (len(L) + ns - 1) // ns
                    gel.extend(L[i:i + n] for i in range(0, len(L), n))
            elif gel:
                for t in gel.pop(0): P(t, tag="hst" if "store" in t else None)
    PM = OPT.get("pm", 5)
    def prioH(it, x):
        if PM == 1: return 3 if (it == 0 and x == 0) else None
        if PM == 3: return 3 - 2 * x
        if PM == 5: return (3 - 2 * x) if it < JIT else 3
        if PM == 6: return 3 if it >= JIT else None
        return None
    def prioL(it, x):
        if PM in (2, 6): return 1 if (it == 0 and x == 0) else None
        if PM == 3: return 3 - 2 * x
        if PM == 5: return (3 - 2 * x) if it < JIT else 0
        return None
    def midprio(it, x, pos):
        if PM in (3, 5) and pos == "pv2" and (PM == 3 or it <= JIT): P(f"s_setprio {2 * x}")
    attention(P, A, l16, range(0, UNI), hookH, prioH, kvf=lambda c: None)
    nsb = A["sb"].n; A["sb"].n = 0
    assert not gq and not gel, (len(gq), len(gel))
    P.cond_end(keep=True)
    P("s_branch LF_join")
    for n in ("vx0", "vtn", "wtr0", "wtr1", "wtr2", "vpf", "vpw"): V.release(n)

    P("LF_l0:")
    P.cond_begin()
    P("s_barrier")
    LOADS["f"]("l")
    stamp(P, 1)
    P("s_waitcnt vmcnt(8)")
    P("s_barrier")
    stamp(P, 2)
    P(f"s_cmp_eq_u32 s{S_W}, 6")
    P("s_cbranch_scc1 LF_l6")
    P(f"s_add_u32 s{S_T3}, s{S_T3}, 24")
    wq_pieces(P, vsl, S_T3, 8, "LF_ldq3", 1)
    P("s_waitcnt vmcnt(8)")
    P("s_branch LF_l6j")
    P("LF_l6:")
    P("s_waitcnt vmcnt(0)")
    P("LF_l6j:")
    P("s_barrier")
    P("LF_light:")
    emit(C_EARLY)

    pats = w_patterns(P, V, lane, t0, t1)
    P(f"s_lshl_b32 s{S_T0}, s{S_HP}, 1")
    P(f"s_mul_i32 s{S_WOFF}, s{S_T0}, {8*2752}")
    P(f"s_lshl_b32 s{S_T1}, s{S_U0}, 5")
    P(f"s_add_u32 s{S_WOFF}, s{S_WOFF}, s{S_T1}")
    P(f"s_mul_i32 s{S_WLDS}, s{S_T0}, 3072")
    P(f"s_mul_i32 s{S_T1}, s{S_TT}, {UP_OFF}")
    P(f"s_add_u32 s{S_WLDS}, s{S_WLDS}, s{S_T1}")
    inattn = dict(on=False)
    P(f"s_add_u32 s{S_WOFF}, s{S_WOFF}, 0")
    P(f"v_subrev_u32 v{pats[1]}, 1024, v{pats[1]}")
    P(f"v_subrev_u32 v{pats[2]}, 2048, v{pats[2]}")
    def w_dma1(s, k):
        g, i = k // 3, k % 3
        solo = not OPT.get("wm0", 1) or inattn["on"]
        if i == 0 or solo:
            dma(P, pats[i], S_WM, f"s{S_T3}", (S_WLDS, SLOT[s % 3] + 3072 * g), offset=1024 * i, tag=f"w{s}",
                pre=[f"s_add_u32 s{S_T3}, s{S_WOFF}, 0x{(32*s + 8*g)*2752:x}"] if i == 0 else None)
        else:
            P(f"buffer_load_dwordx4 v{pats[i]}, s[{S_WM}:{S_WM+3}], s{S_T3} offen offset:{1024*i} lds", tag=f"w{s}")
    def w_dma6(s):
        for k in range(6): w_dma1(s, k)
    stamp(P, 11)
    P("s_barrier")
    w_dma6(0)
    P("s_waitcnt vmcnt(6)"); P.I[-1].kind = "salu"
    P("s_barrier")
    h = len(C_LATE) // 4
    emit(C_LATE[:h])
    stamp(P, 13)
    P("s_barrier")
    w_dma6(1)
    emit(C_LATE[h:])
    dma(P, l16, S_GW, "0", (None, GWL), tag="gw")
    vgw = acc[0][1]
    P(f"v_lshrrev_b32 v{t0}, 5, v{lane}")
    P(f"v_lshlrev_b32 v{vgw}, 4, v{t0}")
    P(f"s_lshl_b32 s{S_T0}, s{S_HP}, 9")
    P(f"v_add_u32 v{vxa}, s{S_T0}, v{vxa}")
    P(f"s_add_u32 s{S_T0}, s{S_T0}, 0x{GWL:x}")
    P(f"v_add_u32 v{vgw}, s{S_T0}, v{vgw}")
    P(f"s_lshl_b32 s{S_T0}, s{S_W}, 8")
    P(f"s_add_u32 s{S_T0}, s{S_T0}, 0x{ONES - 1024:x}")
    P(f"v_lshlrev_b32 v{t0}, 2, v{lane}")
    P(f"v_add_u32 v{t0}, s{S_T0}, v{t0}")
    P(f"v_mov_b32 v{t1}, 0x3f803f80")
    P(f"v_lshrrev_b32 v1, 2, v{lane}")
    P(f"v_and_b32 v1, 11, v1")
    P(f"v_cmp_eq_u32 vcc, 0, v1")
    P(f"v_cndmask_b32 v{t1}, 0, v{t1}, vcc")
    P(f"ds_write_b32 v{t0}, v{t1}")
    P(f"ds_write_b32 v{t0}, v{t1} offset:1024")
    poison()
    za = acc[0][0]; zx = [acc[1][0] + 4 * i for i in range(4)]; zg = [acc[2][0] + 4 * i for i in range(4)]
    def zjob():
        for r in range(4): P(f"v_mov_b32 v{za+r}, 0")
        def zld(k):
            P(f"ds_read_b128 {vr(zx[k%4],4)}, v{vxa} offset:{k*32}")
            P(f"ds_read_b128 {vr(zg[k%4],4)}, v{vgw} offset:{k*32}")
        for k in range(3): zld(k)
        for k in range(16):
            for r in range(4): P(f"v_dot2c_f32_bf16 v{za+r}, v{zx[k%4]+r}, v{zg[k%4]+r}")
            if k + 3 < 16: zld(k + 3)
        P("s_nop 2")
        P(f"v_add_f32 v{za}, v{za}, v{za+1}")
        P(f"v_add_f32 v{za+2}, v{za+2}, v{za+3}")
        P(f"v_add_f32 v{za}, v{za}, v{za+2}")
        P(f"s_and_b32 s{S_T0}, s{S_W}, 3")
        P(f"s_lshl_b32 s{S_T0}, s{S_T0}, 8")
        P(f"s_add_u32 s{S_T0}, s{S_T0}, 0x{MISC:x}")
        P(f"v_lshlrev_b32 v{t0}, 2, v{lane}")
        P(f"v_add_u32 v{t0}, s{S_T0}, v{t0}")
        P(f"ds_write_b32 v{t0}, v{za}")
    P(f"s_mov_b32 s{S_T6}, 0x{FL_KV:x}")
    def kv_both(c):
        kv_dma(P, l16, c)
        dma(P, l16, S_WS, f"s{S_T2}", (S_KVLDS, (8192 * (c & 1) - 4096) & 0xffffffff), tag=f"kv{c}", mods=SC1, pre=[f"s_sub_u32 s{S_T2}, s{S_T2}, 32768"])
    def poll_issue():
        P(f"buffer_load_dword v{vn}, v{vz}, s[{S_DBG}:{S_DBG+3}], 0 offen sc1")
        P(flag_load(vfl, 4, l16, f"s{S_T6}"))
    for s in range(0, NP + 1):
        P.wait_tag(f"w{s}")
        P.wait_lgkm_all()
        if s == 0: stamp(P, 14)
        P("s_barrier")
        if s == 0:
            stamp(P, 3)
            P(f"ds_read_b128 {vr(qf,4)}, v{vq} offset:1024")
            P(f"ds_read_b128 {vr(qf+4,4)}, v{vq}")
        if s == NP: kv_both(1)
        if s < NP: w_dma6(s + 2)
        if s == 0:
            P(f"buffer_load_dword v{vn}, v{vz}, s[{S_DBG}:{S_DBG+3}], 0 offen sc1")
            P.wait_tag("gw")
            zjob()
    assert NP >= 1
    stamp(P, 4)
    dq = []
    def hookL(it, x, pos):
        if pos == "sync?": return 1 <= it <= JIT
        if pos == "pre0": sigstamp(it, 0); return
        if pos == "pre":
            if NP + it < 16: P.wait_tag(f"w{NP+it}")
            sigstamp(it, 1); return
        if (pos == "start" or pos == "chk") and NP + it + 2 < 16:
            assert not dq
            for k in range(0 if OPT.get("abl_ldma") else 6): dq.append(lambda s=NP + it + 2, k=k: w_dma1(s, k))
        midprio(it, x, pos)
        if (pos in ("pv2", "qk", "pv1") or (pos == "g5" and x == 1 and OPT.get("sb", 0))) and dq: dq.pop(0)()
    attention(P, A, l16, range(0, UNI), hookL, prioL, kvf=kv_both)
    assert A["sb"].n == nsb
    assert not dq
    P.cond_end(keep=True)
    P("LF_join:")
    P.join()
    for n in ["wpat0", "wpat1", "wpat2", "vxa", "vq"] + [f"acc{i}{t}" for i in range(3) for t in range(2)] + \
             [f"fx{b}{t}" for b in range(2) for t in range(2)] + [f"fw{b}{i}" for b in range(2) for i in range(3)]: V.release(n)
    stamp(P, 5)

    facc = V.alloc("facc", 16); facc1 = V.alloc("facc1", 16); fa = V.alloc("ffa", 8)
    NB = OPT.get("nb", 6)
    hb = [V.alloc(f"hb{i}", 4) for i in range(NB)]; fb = hb[0]
    vl4 = V.alloc("vl4"); vg = V.alloc("vg"); zt = V.alloc("zt", 2)
    va0 = tr_slice_addr(P, V, "fa0", lane, t0, t1, 0, S_KH, 4)
    vA = [[va0, V.alloc("fa0h")], [V.alloc("fa1"), V.alloc("fa1h")]]
    P(f"s_lshl_b32 s{S_T1}, s{S_HP}, 5")
    P(f"v_xor_b32 v{va0}, s{S_T1}, v{va0}")
    P(f"s_lshr_b32 s{S_T0}, s{S_W}, 1")
    P(f"s_lshl_b32 s{S_T1}, s{S_T0}, 11")
    P(f"v_add_u32 v{va0}, s{S_T1}, v{va0}")
    P(f"v_xor_b32 v{vA[1][0]}, 64, v{va0}")
    P(f"v_add_u32 v{vA[0][1]}, 0x10000, v{va0}")
    P(f"v_add_u32 v{vA[1][1]}, 0x10000, v{vA[1][0]}")
    P(f"s_mul_i32 s{S_FB}, s{S_TILE}, 118")
    P(f"s_add_u32 s{S_FB}, s{S_FB}, s{S_T0}")
    P(f"s_lshl_b32 s{S_FB}, s{S_FB}, 10")
    P(f"s_add_u32 s{S_FB}, s{S_FB}, 0x{WS_OH:x}")
    P(f"v_lshlrev_b32 v{vl4}, 2, v{lane}")
    vhf = V.alloc("vhf")
    P(f"v_lshrrev_b32 v{t0}, 3, v{lane}")
    P(f"v_mul_u32_u24 v{t0}, 96, v{t0}")
    P(f"v_add_u32 v{vhf}, v{t0}, v{vl4}")
    P(f"s_lshl_b32 s{S_T0}, s{S_TT}, 8")
    P(f"s_add_u32 s{S_T0}, s{S_T0}, 0x{MISC:x}")
    P(f"v_add_u32 v{t0}, s{S_T0}, v{vl4}")
    P(f"ds_read_b32 v{zt}, v{t0}")
    P(f"ds_read_b32 v{zt+1}, v{t0} offset:512")
    P(f"v_add_f32 v{zt}, v{zt}, v{zt+1}")
    P(f"v_mov_b32 v{zt+1}, v{zt}")
    P(f"v_permlane32_swap_b32 v{zt}, v{zt+1}")
    P(f"v_add_f32 v{zt}, v{zt}, v{zt+1}")
    P(f"v_mul_f32 v{t0}, {hexf(-LOG2E)}, v{zt}")
    P(f"v_exp_f32 v{t0}, v{t0}")
    P(f"v_add_f32 v{t0}, 1.0, v{t0}")
    P(f"v_rcp_f32 v{vg}, v{t0}")
    V.release("zt")
    vw = [V.alloc(f"vw{i}") for i in range(3)]; vrd = V.alloc("vrd"); vo = V.alloc("vo")
    def sbase(dst, w):
        P(f"s_mul_i32 s{S_T1}, s{w}, 6144")
        P(f"v_add_u32 v{dst}, s{S_T1}, v{l16}")
    sbase(vrd, S_W)
    for b in range(1, 4):
        P(f"s_xor_b32 s{S_T0}, s{S_W}, {b << 1}")
        sbase(vw[b - 1], S_T0)
    P(f"v_and_b32 v{vo}, 31, v{lane}")
    P(f"v_lshlrev_b32 v{vo}, 10, v{vo}")
    P(f"v_lshrrev_b32 v{t1}, 5, v{lane}")
    P(f"v_lshl_add_u32 v{vo}, v{t1}, 4, v{vo}")
    P(f"s_lshl_b32 s{S_OO}, s{S_TILE}, 15")
    P(f"s_lshl_b32 s{S_T1}, s{S_J}, 7")
    P(f"s_add_u32 s{S_OO}, s{S_OO}, s{S_T1}")
    P(f"s_lshl_b32 s{S_T1}, s{S_KH}, 6")
    P(f"s_add_u32 s{S_OO}, s{S_OO}, s{S_T1}")
    P(f"s_lshl_b32 s{S_T1}, s{S_HP}, 5")
    P(f"s_add_u32 s{S_OO}, s{S_OO}, s{S_T1}")
    vp = V.alloc("vp"); vpa = V.alloc("vpa")
    P(f"v_lshlrev_b32 v{vpa}, 10, v{lane}")
    vt0 = V.alloc("vt0"); vt1 = V.alloc("vt1")
    P(f"s_lshr_b32 s{S_T1}, s{S_W}, 1")
    P(f"s_mul_i32 s{S_T1}, s{S_T1}, {16384 - 2048}")
    P(f"s_add_u32 s{S_T1}, s{S_T1}, {3*16384}")
    P(f"v_add_u32 v{vt0}, s{S_T1}, v{vA[0][0]}")
    P(f"v_add_u32 v{vt1}, s{S_T1}, v{vA[1][0]}")
    va = V.alloc("cva"); vb = V.alloc("cvb"); fb = V.alloc("cvon")
    P(f"s_mul_i32 s{S_T0}, s{S_W}, 3072")
    P(f"s_add_u32 s{S_T0}, s{S_T0}, 114688")
    P(f"v_add_u32 v{va}, s{S_T0}, v{l16}")
    P(f"s_xor_b32 s{S_T0}, s{S_W}, 4")
    P(f"s_mul_i32 s{S_T0}, s{S_T0}, 3072")
    P(f"s_add_u32 s{S_T0}, s{S_T0}, 114688")
    P(f"v_add_u32 v{vb}, s{S_T0}, v{l16}")
    P(f"s_add_u32 s{S_OL2}, s{S_OL}, 4096")
    BSLOT = lambda b: ((b % 8) if b < 11 else (b - 8)) * 16384
    def a_reads(r, d):
        o = (4 * r % 64) * 2048; hi = o >> 16; o &= 0xffff
        assert r // 2 in vis, (r, vis)
        rd_done[r // 2] = rd_done.get(r // 2, 0) + 1
        if OPT.get("abl_uds"): return
        P(f"ds_read_b64_tr_b16 {vr(fa+4*d,2)}, v{vA[d][hi]} offset:{o}")
        P(f"ds_read_b64_tr_b16 {vr(fa+4*d+2,2)}, v{vA[d][hi]} offset:{o+1024}")
    def h_load(r):
        if OPT.get("abl_uh"): return
        P(f"s_add_u32 s{S_T2}, s{S_FB}, {4096*r}")
        if r == 21:
            P(f"s_cmp_lt_u32 s{S_W}, 4")
            P(f"s_cselect_b32 s{S_T2}, s{S_T2}, 0x{OOB:x}")
        P(f"buffer_load_dwordx4 {vr(hb[r%NB],4)}, v{l16}, {WSR}, s{S_T2} offen sc1")
    pend = {}
    dq = []; vis = set(); issued = {}; rd_done = {}; nxt = dict(b=0, r=0, d=0, pre=False)
    def qW(b):
        def f(i):
            if not OPT.get("abl_uw"): fin_dma_w1(P, vsl, b, BSLOT(b), f"fw{b}", i)
            issued[b] = issued.get(b, 0) + 1
        for i in range(2): dq.append(lambda i=i: f(i))
    CH = OPT.get("ch", HF + 3); R0 = OPT.get("r0", 2 * (CH + 2))
    DBL = OPT.get("dbl", 64)
    def mstep():
        r, d = nxt["r"], nxt["d"]
        if r >= 22: return
        if not nxt["pre"]:
            a_reads(0, 0); a_reads(0, 1); nxt["pre"] = True; return
        if not OPT.get("abl_um"): P(mfma([facc, facc1][d], fa + 4 * d, hb[r % NB], [facc, facc1][d] if r else None))
        if r + 1 < 22: a_reads(r + 1, d)
        if d == 1 and r + NB < 22: dq.insert(0, lambda r=r: h_load(r + NB))
        nxt["d"] = 1 - d; nxt["r"] = r + d
    def hookU(it, x, pos):
        sig = (x == 0 and (it & 1)); ph = 2 * it + x
        if pos == "sync?": return False
        if pos == "pre0": sigstamp(it, 0); return
        if pos == "pre":
            if it == HF: P.wait_vm_all()
            need = [b for b in issued if issued[b] == 2 and b not in vis and (it == 29 or b <= (max(0, ph + 8 - R0) * (2 if ph + 6 >= DBL else 1)) // 2) and b <= 10]
            if need: P.wait_tag(*[f"fw{b}" for b in need])
            pend["vis"] = need; pend["free"] = {b for b in rd_done if rd_done[b] >= 4}
            sigstamp(it, 1); return
        if pos == "pv1" and sig and it == HF:
            nonce_check(P, SL, vn, vz)
            flag_store(P, vz, t0, S_FS)
        if pos == "chk":
            vis.update(pend["vis"])
            while it >= HF and nxt["b"] < 15:
                b = nxt["b"]; prev = {8: 0, 9: 1, 10: 2, 11: 3, 12: 4, 13: 5, 14: 6}.get(b)
                if prev is not None and prev not in pend["free"]: break
                qW(b); nxt["b"] += 1
            return
        if pos == "pv2" and x == 0 and it == CH - 1: P(flag_load(vfl, 1, vhf, f"s{S_FP}"))
        if pos == "pv2" and x == 0 and it == CH:
            spin_check(P, SL, [flag_load(vfl, 1, vhf, f"s{S_FP}")], flag_cmp(vfl, 1, t0), sleep=OPT.get("hsl", 4))
            for r in range(NB): dq.insert(r, lambda r=r: h_load(r))
        elif dq and (pos in ("pv2", "qk") or (pos in ("g2", "g5") and it in (CH, CH + 1)) or (pos == "g5" and OPT.get("d3"))): dq.pop(0)()
        if nxt["r"] >= 22 - OPT.get("tr", 5) and nxt["d"] == 0: pass
        elif (pos in ("g1", "g4") and ph >= R0) or (pos == "g4" and ph == R0 - 1) or (pos in ("g3", "g6") and ph >= DBL): mstep()
        if pos == "g6" and it == 31 and x == 1:
            assert nxt["b"] == 15, nxt
            print("rounds left for tail:", 22 - nxt["r"])
    def prioU(it, x):
        if not OPT.get("prio", 1): return None
        return 3 - (2 * ((it + 1) & 1) + x)
    attention(P, A, l16, range(UNI, 32), hookU, prioU)
    assert not dq
    stamp(P, 6)
    if OPT.get("sig"):
        P(f"s_lshl_b32 s98, s2, 11")
        P(f"s_lshl_b32 s99, s{S_W}, 8")
        P(f"s_add_u32 s98, s98, s99")
        P(f"s_add_u32 s98, s98, 0x{WS_STAMP + (1<<20):x}")
        P(f"buffer_store_dword v{vsig}, v{vl4}, {WSR}, s98 offen")
    P("s_setprio 0")
    P(f"v_mov_b32 v{O[1]+7}, v{O[1]}")
    for i in range(3): P(f"ds_write_b128 v{va}, {vr(O[1]+4+4*i,4)} offset:{1024*i}")
    P.wait_tag(*[f"fw{b}" for b in range(8, 15)]); P.wait_lgkm_all()
    P("s_barrier")
    vis.update(range(11))
    for i in range(3): P(f"ds_read_b128 {vr(O[1]+4+4*i,4)}, v{vb} offset:{1024*i}")
    P(f"v_add_f32 v{O[0]}, v{O[0]}, v{O[1]+7}")
    for r in range(8, 16): P(f"v_add_f32 v{O[0]+r}, v{O[0]+r}, v{O[1]+r}")
    P(f"v_mov_b32 v{t1}, 0x207")
    P(f"v_cmp_nle_f32 vcc, {hexf(2.0**-90)}, v{O[0]}")
    P(f"v_cmp_nge_f32 s[{S_PM}:{S_PM+1}], {'s' + str(S_T0)}, v{O[0]}".replace(f"s{S_T0}", f"s{S_C1}"))
    P(f"s_or_b64 vcc, vcc, s[{S_PM}:{S_PM+1}]")
    P(f"v_add3_u32 v{t0}, v{O[0]+8}, 0, 0".replace("v_add3_u32", "v_add_f32").replace(", 0, 0", f", v{O[0]+9}"))
    for r in range(10, 16): P(f"v_add_f32 v{t0}, v{t0}, v{O[0]+r}")
    P(f"v_cmp_class_f32 s[{S_PM}:{S_PM+1}], v{t0}, v{t1}")
    P(f"s_or_b64 vcc, vcc, s[{S_PM}:{S_PM+1}]")
    if OPT.get("forcefb"): P("s_mov_b64 vcc, -1")
    P("s_cmp_lg_u64 vcc, 0")
    P("s_cbranch_scc1 LF_fb")
    P("LF_fbr:")
    P(f"v_rcp_f32 v{t0}, v{O[0]}")
    P(f"v_mul_f32 v{t0}, v{t0}, v{vg}")
    for r in range(8, 16): P(f"v_mul_f32 v{O[0]+r}, v{O[0]+r}, v{t0}")
    for r in range(4): P(f"v_cvt_pk_bf16_f32 v{O[1]+r}, v{O[0]+8+2*r}, v{O[0]+9+2*r}")
    for r in range(4): P(f"v_min_u32 v{O[1]+r}, 0xfffffffe, v{O[1]+r}")
    P(f"buffer_store_dwordx4 {vr(O[1],4)}, v{l16}, {WSR}, s{S_OD} offen sc1", tag="ost")
    stamp(P, 7)
    K4, V8, ON, CM = A["fk"], A["fv"][0], fb, O[1]
    assert A["fv"][1] == V8 + 4
    nl = "\n    "
    fbk = f"""LF_fb:
    s_waitcnt vmcnt(0) lgkmcnt(0)
    v_mov_b32 v{t0}, 0xff800000
    s_mov_b32 s{S_T0}, 0x{WS_KF:x}
LF_fb1:
    buffer_load_dwordx4 {vr(K4,4)}, v{l16}, {WSR}, s{S_T0} offen sc1
    s_waitcnt vmcnt(0)
    {mfma(S[0], K4, qf)}
    s_nop 15
    {nl.join(f"v_max3_f32 v{t0}, v{S[0]+2*r}, v{S[0]+2*r+1}, v{t0}" for r in range(8))}
    s_add_u32 s{S_T0}, s{S_T0}, 1024
    s_cmp_lt_u32 s{S_T0}, 0x{WS_KF + 65536:x}
    s_cbranch_scc1 LF_fb1
    v_mov_b32 v{t1}, v{t0}
    s_nop 1
    v_permlane32_swap_b32 v{t0}, v{t1}
    s_nop 1
    v_max_f32 v{t0}, v{t0}, v{t1}
    {nl.join(f"v_sub_f32 v{CM+r}, 0, v{t0}" for r in range(16))}
    {nl.join(f"v_mov_b32 v{O[0]+r}, 0" for r in range(16))}
    v_lshrrev_b32 v{t0}, 5, v{lane}
    v_lshlrev_b32 v{t0}, 8, v{t0}
    v_and_b32 v{t1}, 15, v{lane}
    v_lshl_add_u32 v{t0}, v{t1}, 4, v{t0}
    v_and_b32 v{t1}, 16, v{lane}
    v_cmp_eq_u32 vcc, 0, v{t1}
    v_mov_b32 v{t1}, 0x{OOB:x}
    s_nop 1
    v_cndmask_b32 v{t0}, v{t0}, v{t1}, vcc
    v_and_b32 v{t1}, 27, v{lane}
    v_cmp_eq_u32 vcc, 0, v{t1}
    v_mov_b32 v{ON}, 0x3f803f80
    s_nop 1
    v_cndmask_b32 v{ON}, 0, v{ON}, vcc
    s_mov_b32 s{S_T0}, 0x{WS_KF:x}
LF_fb2:
    s_add_u32 s{S_T1}, s{S_T0}, 0x{WS_VF - WS_KF:x}
    buffer_load_dwordx4 {vr(K4,4)}, v{l16}, {WSR}, s{S_T0} offen sc1
    buffer_load_dwordx4 {vr(V8,4)}, v{t0}, {WSR}, s{S_T1} offen sc1
    buffer_load_dwordx4 {vr(V8+4,4)}, v{t0}, {WSR}, s{S_T1} offen offset:512 sc1
    s_waitcnt vmcnt(0)
    {mfma(S[0], K4, qf, CM)}
    {nl.join(f"v_or_b32 v{V8+r}, v{V8+r}, v{ON}" for r in range(8))}
    s_nop 7
    {nl.join(f"v_exp_f32 v{S[0]+r}, v{S[0]+r}" for r in range(16))}
    s_nop 1
    {nl.join(f"v_cvt_pk_bf16_f32 v{S[1]+r}, v{S[0]+2*r}, v{S[0]+2*r+1}" for r in range(8))}
    s_nop 1
    {mfma(O[0], V8, S[1], O[0])}
    {mfma(O[0], V8+4, S[1]+4, O[0])}
    s_add_u32 s{S_T0}, s{S_T0}, 1024
    s_cmp_lt_u32 s{S_T0}, 0x{WS_KF + 65536:x}
    s_cbranch_scc1 LF_fb2
    s_nop 15
    s_branch LF_fbr
"""
    SL.add(fbk)
    for n in ("Sa", "Sb", "Oa", "qf", "fk", "fv1", "fv2"): V.release(n)
    ob = V.alloc("ob", 32); wa = [V.alloc(f"wa{u}", 8) for u in range(8)]
    def oloads(g): return [f"buffer_load_dwordx4 {vr(ob+16*g+4*u,4)}, v{l16}, {WSR}, s{[S_OL,S_OL2][g]} offen offset:{1024*u} sc1" for u in range(4)]
    def ocheck(g):
        b = ob + 16 * g
        L = [f"v_max3_u32 v{t0}, v{b}, v{b+1}, v{b+2}"]
        for k in range(3, 15, 2): L.append(f"v_max3_u32 v{t0}, v{b+k}, v{b+k+1}, v{t0}")
        L += [f"v_max_u32 v{t0}, v{b+15}, v{t0}", f"v_cmp_eq_u32 vcc, -1, v{t0}"]
        return L
    fa2 = V.alloc("ffa2", 8)
    wr = []
    for u in range(8):
        for d, v in ((0, vt0), (1, vt1)):
            wr.append([f"ds_read_b64_tr_b16 {vr(wa[u]+4*d,2)}, v{v} offset:{u*2048}", f"ds_read_b64_tr_b16 {vr(wa[u]+4*d+2,2)}, v{v} offset:{u*2048+1024}"])
    r0 = nxt["r"]; assert nxt["d"] == 0 and not dq
    def tr_reads(r, d):
        o = (4 * r % 64) * 2048; hi = o >> 16; o &= 0xffff; f = [fa, fa2][(r - r0) % 2] + 4 * d
        P(f"ds_read_b64_tr_b16 {vr(f,2)}, v{vA[d][hi]} offset:{o}")
        P(f"ds_read_b64_tr_b16 {vr(f+2,2)}, v{vA[d][hi]} offset:{o+1024}")
    if r0 + 1 < 22: tr_reads(r0 + 1, 0); tr_reads(r0 + 1, 1)
    OL = min(r0 + OPT.get("ol", 99), 22)
    for r in range(r0, 22):
        if r == OL:
            for g in range(2):
                for x in oloads(g): P(x)
        for d in range(2):
            P(mfma([facc, facc1][d], [fa, fa2][(r - r0) % 2] + 4 * d, hb[r % NB], [facc, facc1][d]))
            if r + 2 < 22: tr_reads(r + 2, d)
            elif wr:
                for g in wr[:4]:
                    for x in g: P(x)
                del wr[:4]
    for g in wr:
        for x in g: P(x)
    assert 22 - r0 <= NB and r0 >= 16
    if OPT.get("oab", 1): P.wait_lgkm_all(); P("s_barrier")
    if OL == 22:
        for g in range(2):
            for x in oloads(g): P(x)
    P(f"v_sub_f32 v{t1}, 1.0, v{vg}")
    P(f"v_mov_b32 v{t0}, v{t1}")
    assert t1 == t0 + 1 and t0 % 2 == 0
    for r in range(0, 16, 2): P(f"v_pk_mul_f32 v[{facc+r}:{facc+r+1}], v[{facc+r}:{facc+r+1}], v[{t0}:{t1}]")
    for r in range(0, 16, 2): P(f"v_pk_mul_f32 v[{facc1+r}:{facc1+r+1}], v[{facc1+r}:{facc1+r+1}], v[{t0}:{t1}]")
    if not OPT.get("oab", 1): P.wait_lgkm_all(); P("s_barrier")
    stamp(P, 8)
    nl = "\n    "
    for g in range(2):
        k = SL.n; SL.n += 1
        for x in ocheck(g): P(x)
        P(f"s_cbranch_vccnz LS{k}")
        P(f"LR{k}:")
        SL.add(f"""LS{k}:
    s_mov_b32 s{S_T7}, 0
LS{k}_p:
    s_sleep {OPT.get("osl", 2)}
    s_mov_b64 exec, 0xf
    buffer_load_dword v{vp}, v{vpa}, {WSR}, s{[S_OL,S_OL2][g]} offen offset:1020 sc1
    s_waitcnt vmcnt(0)
    v_cmp_eq_u32 vcc, -1, v{vp}
    s_mov_b64 exec, -1
    s_add_u32 s{S_T7}, s{S_T7}, 1
    s_cmp_ge_u32 s{S_T7}, 0x{SPIN_MAX:x}
    s_cbranch_scc1 LR{k}
    s_cbranch_vccnz LS{k}_p
    {nl.join(oloads(g))}
    s_waitcnt vmcnt(0)
    {nl.join(ocheck(g))}
    s_cbranch_vccnz LS{k}_p
    s_nop 1
    s_branch LR{k}
""")
        for u in range(4 * g, 4 * g + 4):
            P(mfma(facc1, wa[u] + 4, ob + 4 * u, facc1))
    W1 = [f"ds_write_b128 v{vw[b-1]}, {vr(src+4*i,4)} offset:{2048*(b-1) + 1024*i}" for b, src in ((2, facc1), (3, facc1 + 8)) for i in range(2)]
    for u in range(8):
        P(mfma(facc, wa[u], ob + 4 * u, facc))
        if u >= 3 and W1:
            if u == 3: P("s_nop 7")
            P(W1.pop(0))
    stamp(P, 9)
    for b, src in ((1, facc + 8),):
        for i in range(2): P(f"ds_write_b128 v{vw[b-1]}, {vr(src+4*i,4)} offset:{2048*(b-1) + 1024*i}")
    P.wait_lgkm_all()
    P("s_barrier")
    for i in range(6): P(f"ds_read_b128 {vr(ob+4*i,4)}, v{vrd} offset:{1024*i}")
    for b in range(3):
        for r in range(8): P(f"v_add_f32 v{facc+r}, v{facc+r}, v{ob+8*b+r}")
    for r in range(4): P(f"v_cvt_pk_bf16_f32 v{facc1+r}, v{facc+2*r}, v{facc+2*r+1}")
    P(f"v_permlane32_swap_b32 v{facc1}, v{facc1+2}")
    P(f"v_permlane32_swap_b32 v{facc1+1}, v{facc1+3}")
    P(f"buffer_store_dwordx4 {vr(facc1,4)}, v{vo}, s[{S_OUT}:{S_OUT+3}], s{S_OO} offen")
    if STAMP["on"]:
        P.wait_vm_all(); stamp(P, 10); stamp_dump(P, lane)
        if OPT.get("dbgst") is not None:
            P(f"s_cmp_lg_u32 s2, {OPT['dbgst']}")
            P("s_cbranch_scc1 LF_end")
            P(f"s_cmp_lg_u32 s{S_W}, {OPT.get('dbgw', 0)}")
            P("s_cbranch_scc1 LF_end")
            P(f"v_subrev_u32 v{VSTAMP}, s100, v{VSTAMP}")
            P("s_mov_b64 exec, 0x7fff")
            P(f"buffer_store_dword v{VSTAMP}, v1, s[{S_DBG}:{S_DBG+3}], 0 offen offset:4")
    P("LF_end:")
    P("s_endpgm")
    name = NAME + "_kernel"
    body, I = finalize(P)
    txt = f".text\n.globl {name}\n.p2align 8\n.type {name},@function\n{name}:\n" + body + "".join(SL.txt) + "LF_last:\n    s_endpgm\n"
    vg_ = 256 if STAMP["on"] else max(V.hi, 8)
    txt += KD.format(name=name, vgpr=vg_, sgpr=102 if STAMP['on'] else 96, accum=(vg_ + 3) // 4 * 4)
    return txt, I, vg_


if __name__ == "__main__":
    out = sys.argv[1]
    STAMP["on"] = "stamp" in sys.argv
    for a in sys.argv[2:]:
        if "=" in a: k, v = a.split("="); OPT[k] = int(v)
        else: OPT[a] = True
    import asmlib; asmlib.MERGE_D = OPT.get("md", 9)
    t, I, vg_ = kernel_F()
    hdr = HEADER + f"; @launch grid=(256,1,1) block=(512,1,1) lds={LDS_BYTES}\n" + '.amdgcn_target "amdgcn-amd-amdhsa--gfx950"\n'
    open(out, "w").write(hdr + t)
    import subprocess
    r = subprocess.run(["clang", "-x", "assembler", "-target", "amdgcn-amd-amdhsa", "-mcpu=gfx950", "-c", out, "-o", "_chk.o"], capture_output=True, text=True)
    if r.returncode: print("ASM ERROR", r.stderr[:500])
    print("insts", len(I), "vgpr", vg_, "nops", sum(1 for x in I if x.kind == "nop"))
```

```python
import sys, re
from parts import *
OPT = {}
S_NONCE = 93
S_HP, S_KH = 30, 31
SH = [4, 5, 6]
S_FS, S_FP, S_OD, S_OL = 7, 8, 9, 10
S_FW, S_FB, S_FL, S_FL2 = 12, 13, 14, 15
S_OO, S_OL2 = 11, 18
S_VM = 28
S_PM = 16
FL_KV, FL_H = WS_FLAG, WS_FLAG + 8192
WKV_L = KV_RING
QSCR = KV_RING + 8192
FSLOT = [0, 32768, 65536, 98304]
WO_CH = [98304, 114688, 0, 32768]
SC1 = " sc1"
SPIN_MAX = 1 << 22
WSR = f"s[{S_WS}:{S_WS+3}]"


class Slow:
    def __init__(self): self.txt = []; self.n = 0
    def add(self, t): self.txt.append(t)


LOADS = {}
def wq_pieces(P, vsl, s_first, n, label, rot):
    P(f"s_and_b32 s{S_T6}, s{S_G}, 7")
    if rot > 1: P(f"s_mul_i32 s{S_T6}, s{S_T6}, {rot}")
    P(f"s_add_u32 s{S_T5}, s{S_T6}, {n}")
    P(f"s_lshl_b32 s{S_T7}, s{S_J}, 7")
    P(f"{label}:")
    P(f"s_and_b32 s{S_T4}, s{S_T6}, {n-1}")
    P(f"s_add_u32 s{S_T4}, s{S_T4}, s{s_first}")
    P(f"s_mul_i32 s{S_T0}, s{S_T4}, 171")
    P(f"s_lshr_b32 s{S_T0}, s{S_T0}, 12")
    P(f"s_lshl_b32 s{S_T1}, s{S_T4}, 2")
    P(f"s_add_u32 s{S_T0}, s{S_T0}, s{S_T1}")
    P(f"s_lshl_b32 s{S_T0}, s{S_T0}, 8")
    P(f"s_add_u32 m0, s{S_T0}, 0x{SLOT[0]:x}")
    P(f"s_lshl_b32 s{S_T2}, s{S_T4}, 13")
    P(f"s_add_u32 s{S_T2}, s{S_T2}, s{S_T7}")
    P(f"s_add_u32 s{S_T6}, s{S_T6}, 1")
    P(f"buffer_load_dwordx4 v{vsl}, s[{S_WQ}:{S_WQ+3}], s{S_T2} offen lds")
    P.I[-1].kind = "salu"
    P(f"s_cmp_lg_u32 s{S_T6}, s{S_T5}")
    P(f"s_cbranch_scc1 {label}")


def emit_loads(P, l16, vsl, sfx):
    if sfx == "h":
        P(f"s_lshr_b32 s{S_T4}, s{S_J}, 1")
        P(f"s_lshl_b32 s{S_T4}, s{S_T4}, 4")
        P(f"s_mul_i32 s{S_T1}, s{S_W}, 12")
        P(f"s_add_u32 s{S_T4}, s{S_T4}, s{S_T1}")
        P(f"s_add_u32 s{S_T4}, s{S_T4}, 16")
        P(f"s_lshl_b32 s{S_T0}, s{S_G}, 16")
        P(f"s_and_b32 s{S_T6}, s{S_J}, 3")
        P(f"s_mul_i32 s{S_T6}, s{S_T6}, 3")
        P(f"s_mov_b32 s{S_T5}, 12")
        mk_srd(P, S_X, 4, SZ["x"])
        P("LF_ldx1:")
        P(f"s_add_u32 s{S_T1}, s{S_T6}, s{S_T4}")
        P(f"s_and_b32 s{S_T1}, s{S_T1}, 63")
        P(f"s_mul_i32 m0, s{S_T1}, {X_STRIDE}")
        P(f"s_lshl_b32 s{S_T2}, s{S_T1}, 10")
        P(f"s_add_u32 s{S_T2}, s{S_T2}, s{S_T0}")
        P(f"s_add_u32 s{S_T6}, s{S_T6}, 1")
        P(f"s_cmp_eq_u32 s{S_T6}, 12")
        P(f"s_cselect_b32 s{S_T6}, 0, s{S_T6}")
        P(f"buffer_load_dwordx4 v{l16}, s[{S_X}:{S_X+3}], s{S_T2} offen lds", tag="q")
        P(f"s_sub_u32 s{S_T5}, s{S_T5}, 1")
        P(f"s_cmp_lg_u32 s{S_T5}, 0")
        P("s_cbranch_scc1 LF_ldx1")
    else:
        mk_srd(P, S_WQ, 6, SZ["wq"])
        P(f"s_and_b32 s{S_T3}, s{S_W}, 3")
        P(f"s_lshl_b32 s{S_T3}, s{S_T3}, 3")
        wq_pieces(P, vsl, S_T3, 8, "LF_ldq1", 1)
        P(f"s_add_u32 s{S_T3}, s{S_T3}, 24")
        wq_pieces(P, vsl, S_T3, 8, "LF_ldq2", 1)


def prologue_f(P, V, endlabel):
    if STAMP["on"]: P("s_memrealtime s[100:101]")
    P("s_cmp_ge_u32 s2, 256")
    P(f"s_cbranch_scc1 {endlabel}")
    P("s_load_dwordx16 s[4:19], s[0:1], 0")
    P("s_load_dwordx8 s[20:27], s[0:1], 64")
    P("s_load_dwordx2 s[28:29], s[0:1], 96")
    lane = V.alloc("lane"); l16 = V.alloc("l16")
    P(f"v_lshrrev_b32 v1, 6, v0")
    P(f"v_and_b32 v{lane}, 63, v0")
    P(f"v_readfirstlane_b32 s{S_W}, v1")
    P(f"v_lshlrev_b32 v{l16}, 4, v{lane}")
    P(f"s_lshr_b32 s{S_T0}, s2, 3")
    if OPT.get("jrot"): P(f"s_add_u32 s{S_J}, s{S_T0}, {OPT['jrot']}"); P(f"s_and_b32 s{S_J}, s{S_J}, 3")
    else: P(f"s_and_b32 s{S_J}, s{S_T0}, 3")
    P(f"s_and_b32 s{S_T1}, s2, 1")
    P(f"s_lshl_b32 s{S_T1}, s{S_T1}, 2")
    P(f"s_add_u32 s{S_J}, s{S_J}, s{S_T1}")
    P(f"s_and_b32 s{S_G}, s2, 6")
    P(f"s_lshl_b32 s{S_G}, s{S_G}, 2")
    P(f"s_lshr_b32 s{S_T0}, s{S_T0}, 2")
    P(f"s_add_u32 s{S_G}, s{S_G}, s{S_T0}")
    t0 = V.alloc("t0"); t1 = V.alloc("t1")
    vsl = slice_pattern(P, V, lane, t0)
    LOADS["f"] = lambda sfx: emit_loads(P, l16, vsl, sfx)
    P(f"s_and_b32 s{S_TT}, s{S_W}, 1")
    P(f"s_lshl_b32 s{S_TILE}, s{S_G}, 1")
    P(f"s_add_u32 s{S_TILE}, s{S_TILE}, s{S_TT}")
    P(f"s_lshr_b32 s{S_HP}, s{S_W}, 1")
    P(f"s_and_b32 s{S_HP}, s{S_HP}, 1")
    P(f"s_lshr_b32 s{S_KH}, s{S_W}, 2")
    assert all((p * 171) >> 12 == p // 24 for p in range(64)) and SLOT_SZ == 3 * 8192 + 256
    return lane, l16, t0, t1, vsl


def rest_srds(P):
    P(f"s_cmp_eq_u32 s{S_TT}, 0")
    P(f"s_cselect_b32 s{S_WM}, s16, s18")
    P(f"s_cselect_b32 s{S_WM+1}, s17, s19")
    P(f"s_and_b32 s{S_WM+1}, s{S_WM+1}, 0xffff")
    P(f"s_mov_b32 s{S_WM+2}, 0x{SZ['wg']:x}")
    P(f"s_mov_b32 s{S_WM+3}, 0x20000")
    mk_srd(P, S_OUT, 24, SZ["out"])
    mk_srd(P, S_WO, 12, SZ["wo"])
    mk_srd(P, S_WD, 20, SZ["wd"])


def nonce_check(P, SL, vn, vz):
    k = SL.n; SL.n += 1
    P(f"v_readfirstlane_b32 s{S_NONCE}, v{vn}")
    P(f"s_cmp_eq_u32 s{S_NONCE}, 0")
    P(f"s_cbranch_scc1 LS{k}")
    P(f"LR{k}:")
    SL.add(f"""LS{k}:
    s_mov_b32 s{S_T7}, 0
LS{k}_l:
    s_sleep 2
    buffer_load_dword v{vn}, v{vz}, s[{S_DBG}:{S_DBG+3}], 0 offen sc1
    s_waitcnt vmcnt(0)
    v_readfirstlane_b32 s{S_NONCE}, v{vn}
    s_add_u32 s{S_T7}, s{S_T7}, 1
    s_cmp_ge_u32 s{S_T7}, 0x{SPIN_MAX:x}
    s_cbranch_scc1 LR{k}
    s_cmp_eq_u32 s{S_NONCE}, 0
    s_cbranch_scc1 LS{k}_l
    s_branch LR{k}
""")


def flag_load(vf, n, vaddr, soff):
    op = {1: "buffer_load_dword", 4: "buffer_load_dwordx4"}[n]
    return f"{op} {vr(vf,n)}, v{vaddr}, {WSR}, {soff} offen sc1"


def flag_cmp(vf, n, t):
    L = [f"v_xor_b32 v{t}, s{S_NONCE}, v{vf}"]
    for i in range(1, n):
        L += [f"v_xor_b32 v{vf+i}, s{S_NONCE}, v{vf+i}", f"v_or_b32 v{t}, v{t}, v{vf+i}"]
    L += [f"v_cmp_ne_u32 vcc, 0, v{t}"]
    return L


def spin_check(P, SL, loads, cmps, sleep=1):
    k = SL.n; SL.n += 1
    for x in cmps: P(x)
    P(f"s_cbranch_vccnz LS{k}")
    P(f"LR{k}:")
    nl = "\n    "
    SL.add(f"""LS{k}:
    s_mov_b32 s{S_T7}, 0
LS{k}_l:
    {f"s_sleep {sleep}" if sleep else "s_nop 0"}
    {nl.join(loads)}
    s_waitcnt vmcnt(0)
    {nl.join(cmps)}
    s_add_u32 s{S_T7}, s{S_T7}, 1
    s_cmp_ge_u32 s{S_T7}, 0x{SPIN_MAX:x}
    s_cbranch_scc1 LR{k}
    s_cbranch_vccnz LS{k}_l
    s_nop 1
    s_branch LR{k}
""")


def flag_store(P, vz, t, soff):
    P(f"v_mov_b32 v{t}, s{S_NONCE}")
    P("s_mov_b64 exec, 1")
    P(f"buffer_store_dword v{t}, v{vz}, {WSR}, s{soff} offen sc1", tag="flag")
    P("s_mov_b64 exec, -1")


PROG = MISC + 1024
class SplitBar:
    def __init__(self, P, V, SL, lane, t0):
        self.P, self.SL, self.n = P, SL, 0
        self.va = V.alloc("sba"); self.vr = V.alloc("sbr"); self.one = V.alloc("sb1"); self.vg = V.alloc("sbg")
        P(f"s_lshl_b32 s{S_T0}, s{S_W}, 8")
        P(f"s_add_u32 s{S_T0}, s{S_T0}, 0x{PROG:x}")
        P(f"v_lshlrev_b32 v{t0}, 2, v{lane}")
        P(f"v_add_u32 v{self.va}, s{S_T0}, v{t0}")
        P(f"v_and_b32 v{t0}, 7, v{lane}")
        P(f"v_mul_u32_u24 v{t0}, 260, v{t0}")
        P(f"v_add_u32 v{self.vr}, 0x{PROG:x}, v{t0}")
        P(f"v_mov_b32 v{self.one}, 0")
        P(f"ds_write_b32 v{self.va}, v{self.one}")
        P(f"v_mov_b32 v{self.one}, 1")
    def arrive(self):
        self.n += 1
        self.P(f"ds_add_u32 v{self.va}, v{self.one}")
    def peek(self): self.P(f"ds_read_b32 v{self.vg}, v{self.vr}")
    def check(self):
        k = self.SL.n; self.SL.n += 1
        self.P(f"v_cmp_gt_u32 vcc, {self.n}, v{self.vg}")
        self.P(f"s_cbranch_vccz LR{k}")
        self.P(f"LS{k}:")
        for t in ([f"s_sleep {OPT['ssl']}"] if OPT.get("ssl") else []) + [f"ds_read_b32 v{self.vg}, v{self.vr}", "s_waitcnt lgkmcnt(0)", f"v_cmp_gt_u32 vcc, {self.n}, v{self.vg}", f"s_cbranch_vccnz LS{k}"]:
            self.P(t); self.P.I[-1].kind = "salu"; self.P.I[-1].vw = set(); self.P.I[-1].vr = set()
        self.P(f"LR{k}:")


def attn_setup(P, V, lane, l16, t0, t1):
    A = {}
    P(f"s_lshl_b32 s{S_T1}, s{S_KH}, 12")
    vk = V.alloc("vk"); vv = [V.alloc("vv0"), V.alloc("vv1")]
    P(f"s_add_u32 s{S_T1}, s{S_T1}, 0x{KV_RING:x}")
    P(f"v_add_u32 v{vk}, s{S_T1}, v{l16}")
    P(f"v_lshrrev_b32 v{t0}, 5, v{lane}")
    P(f"v_lshlrev_b32 v{t0}, 8, v{t0}")
    P(f"v_and_b32 v{t1}, 15, v{lane}")
    P(f"v_lshl_add_u32 v{t0}, v{t1}, 4, v{t0}")
    P(f"v_and_b32 v{t1}, 16, v{lane}")
    P(f"v_cmp_eq_u32 vcc, 0, v{t1}")
    P(f"s_add_u32 s{S_T1}, s{S_T1}, 2048")
    for s in range(2):
        P(f"v_mov_b32 v{t1}, s{S_T1}")
        P(f"v_add_u32 v{t1}, {8192*s}, v{t1}")
        P(f"v_mov_b32 v{vv[s]}, 0x{ONES:x}")
        P(f"v_cndmask_b32 v{vv[s]}, v{t1}, v{vv[s]}, vcc")
        P(f"v_add_u32 v{vv[s]}, v{vv[s]}, v{t0}")
    P(f"s_lshl_b32 s{S_KVOFF}, s{S_KH}, 15")
    P(f"s_lshl_b32 s{S_T1}, s{S_HP}, 16")
    P(f"s_add_u32 s{S_KVOFF}, s{S_KVOFF}, s{S_T1}")
    P(f"s_lshl_b32 s{S_T1}, s{S_TT}, 10")
    P(f"s_add_u32 s{S_KVOFF}, s{S_KVOFF}, s{S_T1}")
    P(f"s_lshl_b32 s{S_KVLDS}, s{S_W}, 10")
    P(f"s_add_u32 s{S_KVLDS}, s{S_KVLDS}, 0x{KV_RING:x}")
    A.update(vk=vk, vv=vv)
    A["S"] = [V.alloc("Sa", 16), V.alloc("Sb", 16)]
    A["O"] = [V.alloc("Oa", 16), V.alloc("Ob", 16)]
    A["fk"] = V.alloc("fk", 4); A["fv"] = [V.alloc("fv1", 4), V.alloc("fv2", 4)]
    A["q"] = V.alloc("qf", 8)
    return A


def kv_dma(P, l16, c):
    dma(P, l16, S_WS, f"s{S_T2}", (S_KVLDS, 8192 * (c & 1)), tag=f"kv{c}", mods=SC1, pre=[f"s_add_u32 s{S_T2}, s{S_KVOFF}, {2048*c}"])


def attention(P, A, l16, its, hook, prio, kvf=None):
    S, O, fk, fv = A["S"], A["O"], A["fk"], A["fv"]
    SB = OPT.get("sb", 0)
    q = [A["q"], A["q"] + 4]
    def rdK(it): P(f"ds_read_b128 {vr(fk,4)}, v{A['vk']} offset:{((it>>1)&1)*8192 + (it&1)*1024}")
    def rdV(it, half):
        m = OPT.get("vmask", 1) and it > 0
        if m: P(f"s_mov_b64 exec, s[{S_VM}:{S_VM+1}]")
        P(f"ds_read_b128 {vr(fv[half],4)}, v{A['vv'][(it>>1)&1]} offset:{(it&1)*1024 + half*512}")
        if m: P("s_mov_b64 exec, -1")
    E = lambda x, i: P(f"v_exp_f32 v{S[x]+i}, v{S[x]+i}")
    def C(x, i):
        b = S[x] + (8 if i >= 4 else 0); k = i & 3
        P(f"v_cvt_pk_bf16_f32 v{b+k}, v{b+2*k}, v{b+2*k+1}")
    for it in its:
        if it == 0:
            if OPT.get("vmask", 1): P(f"s_mov_b32 s{S_VM}, 0xffff0000"); P(f"s_mov_b32 s{S_VM+1}, 0xffff0000")
            rdK(0); rdV(0, 0)
            hook(0, 0, "start")
            P(mfma(S[0], fk, q[0]))
        for x in range(2):
            H = lambda pos: hook(it, x, pos)
            E(x, 0); E(x, 1)
            if x == 0:
                if it > 0: P(mfma(O[1], fv[1], S[1] + 8, O[1]))
                rdV(it, 1)
            else:
                P(mfma(O[0], fv[1], S[0] + 8, O[0]))
                if SB and A["syn"]:
                    A["sb"].check(); after_sync()
            H("pv2")
            E(x, 2); E(x, 3); H("g1")
            E(x, 4); E(x, 5); H("g2")
            E(x, 6); E(x, 7)
            if x == 0: P(mfma(S[1], fk, q[1]))
            elif it < 31: P(mfma(S[0], fk, q[0]))
            H("qk")
            sig = (x == 0 and (it & 1) and it < 31)
            syn = sig or (x == 0 and hook(it, x, "sync?"))
            ORD = OPT.get("ord", 2) if syn else 0
            for i in range(4): C(x, i)
            if ORD == 0: H("g3")
            E(x, 8); E(x, 9)
            if ORD == 2: P(mfma(O[x], fv[0], S[x], None if it == 0 else O[x]))
            if ORD: H("g3")
            if syn:
                H("pre0")
                if sig: P.wait_tag(f"kv{(it>>1)+1}")
                H("pre")
                if not OPT.get("nolg"): P.wait_lgkm_all()
                if SB: A["sb"].arrive()
                elif not OPT.get("nobar"): P("s_barrier")
                for _ in range(OPT.get("pad", 0)): P("s_nop 15")
            if ORD == 1: E(x, 10); E(x, 11)
            if ORD != 2: P(mfma(O[x], fv[0], S[x], None if it == 0 else O[x]))
            p = prio(it, x)
            if p is not None: P(f"s_setprio {p}")
            def after_sync():
                if it < 31: rdK(it + 1)
                if (it & 1) and (it >> 1) + 2 < 16: (kvf or (lambda c: kv_dma(P, l16, c)))((it >> 1) + 2)
                if A["syn"]: hook(it, 0, "chk")
            if x == 0:
                A["syn"] = syn
                if not (SB and syn): after_sync()
            else:
                if it < 31: rdV(it + 1, 0)
            H("pv1")
            if ORD != 1: E(x, 10); E(x, 11)
            else: E(x, 12)
            H("g4")
            if ORD != 1: E(x, 12)
            E(x, 13); H("g5")
            E(x, 14); E(x, 15); H("g6")
            if x == 0 and SB and A["syn"]: A["sb"].peek()
            for i in range(4, 8): C(x, i)
        if it == 31: P(mfma(O[1], fv[1], S[1] + 8, O[1]))


def fin_dma_w1(P, vsl, st, slot, tag, i):
    srd, u0 = (S_WD, 8 * st) if st < 11 else (S_WO, 8 * (st - 11))
    dma(P, vsl, srd, f"s{S_T2}", (S_FL2, slot + 1024 * i), tag=tag, pre=[f"s_add_u32 s{S_T2}, s{S_FW}, 0x{(16*u0 + 8*i)*1024:x}"])


def fin_dma_w2(P, vsl, st, slot, tag, i, other):
    dma(P, vsl, S_WD, f"s{S_T2}", (S_FL2, (slot + 1024 * i - 8192 * other) & 0xffffffff), tag=tag,
        pre=[f"s_add_u32 s{S_T2}, s{S_FW}, 0x{((128*st + 8*i)*1024 - 65536*other) & 0xffffffff:x}"])


def fin_dma_b1(P, l16, st, slot, tag, t):
    P(f"s_add_u32 s{S_T2}, s{S_FB}, 0x{(t*118 + 8*st)*1024:x}")
    if st == 10:
        P(f"s_cmp_lt_u32 s{S_W}, 6")
        P(f"s_cselect_b32 s{S_T2}, s{S_T2}, 0x{OOB:x}")
    dma(P, l16, S_WS, f"s{S_T2}", (S_FL, slot + 16384 + 8192 * t), tag=tag, mods=SC1)


def kernel_F():
    P = Prog(); V = Regs(2, 255, "v"); SL = Slow()
    NP = OPT.get("np", 1)
    JIT = 16 - NP
    GPP = OPT.get("gpp", 2)
    UNI = OPT.get("uni", JIT + 2)
    HF = OPT.get("hf", UNI | 1)
    lane, l16, t0, t1, vsl = prologue_f(P, V, "LF_end")
    vz = V.alloc("vz")
    P(f"s_cmp_lg_u32 s{S_W}, 7")
    P("s_cbranch_scc1 LF_not7")
    P(f"s_lshr_b32 s{S_T4}, s{S_J}, 1")
    P(f"s_lshl_b32 s{S_T0}, s{S_G}, 16")
    P(f"s_lshl_b32 s{S_T2}, s{S_T4}, 14")
    P(f"s_add_u32 s{S_T2}, s{S_T2}, s{S_T0}")
    P(f"s_mul_i32 m0, s{S_T4}, {16*X_STRIDE}")
    P(f"s_and_b32 s{S_T3}, s{S_J}, 1")
    P(f"s_mov_b32 s{S_T5}, 0")
    P("s_waitcnt lgkmcnt(0)")
    mk_srd(P, S_X, 4, SZ["x"])
    if OPT.get("u7", 1):
        P(f"s_sub_u32 s{S_X}, s{S_X}, 64")
        P(f"s_subb_u32 s{S_X+1}, s{S_X+1}, 0")
        P(f"s_mov_b32 s{S_X+2}, 0x{SZ['x'] + 64:x}")
        P(f"s_add_u32 s{S_T2}, s{S_T2}, 64")
        for g in range(4):
            for k in range(4):
                if k == 0:
                    if g: P(f"s_add_u32 m0, m0, {4*X_STRIDE}"); P(f"s_add_u32 s{S_T2}, s{S_T2}, {4096 + 48}")
                else: P(f"s_sub_u32 s{S_T2}, s{S_T2}, 16")
                P(f"buffer_load_dwordx4 v{l16}, s[{S_X}:{S_X+3}], s{S_T2} offen offset:{X_STRIDE*k} lds", tag="c")
    else:
        P("LF_ldx7:")
        P(f"buffer_load_dwordx4 v{l16}, s[{S_X}:{S_X+3}], s{S_T2} offen lds", tag="c")
        P(f"s_add_u32 m0, m0, {X_STRIDE}")
        P(f"s_add_u32 s{S_T2}, s{S_T2}, 1024")
        P(f"s_add_u32 s{S_T5}, s{S_T5}, 1")
        P(f"s_cmp_lg_u32 s{S_T5}, 16")
        P("s_cbranch_scc1 LF_ldx7")
    P(f"s_cmp_eq_u32 s{S_T3}, 0")
    P(f"s_cselect_b32 s{S_WKV}, s8, s10")
    P(f"s_cselect_b32 s{S_WKV+1}, s9, s11")
    P(f"s_and_b32 s{S_WKV+1}, s{S_WKV+1}, 0xffff")
    P(f"s_mov_b32 s{S_WKV+2}, 0x{SZ['wk']:x}")
    P(f"s_mov_b32 s{S_WKV+3}, 0x20000")
    P(f"s_mov_b32 m0, 0x{WKV_L:x}")
    P(f"s_mov_b32 s{S_T5}, 0")
    P("LF_ldw7:")
    for i in range(4):
        P(f"buffer_load_dwordx4 v{l16}, s[{S_WKV}:{S_WKV+3}], s{S_T5} offen offset:{1024*i} lds")
        P.I[-1].kind = "salu"
    P(f"s_add_u32 m0, m0, 4096")
    P(f"s_add_u32 s{S_T5}, s{S_T5}, 4096")
    P(f"s_cmp_lg_u32 s{S_T5}, 16384")
    P("s_cbranch_scc1 LF_ldw7")
    stamp(P, 15)
    P("s_barrier")
    P("LF_not7:")
    P("s_waitcnt lgkmcnt(0)")
    if OPT.get("cpf", 1):
        c = V.alloc("cpf")
        P(f"s_getpc_b64 s[{S_EX}:{S_EX+1}]")
        P("LF_pc0:")
        P(f"s_lshr_b32 s{S_T3}, s2, 3")
        P(f"s_lshl_b32 s{S_T3}, s{S_T3}, 3")
        P(f"s_add_u32 s{S_T3}, s{S_T3}, s{S_W}")
        P(f"s_lshl_b32 s{S_T3}, s{S_T3}, 8")
        P(f"v_lshlrev_b32 v{c}, 7, v{lane}")
        P(f"v_add_u32 v{c}, s{S_T3}, v{c}")
        P(f"v_min_u32 v{c}, LF_last-LF_pc0, v{c}")
        P("s_mov_b64 exec, 3")
        P(f"global_load_dword v{c}, v{c}, s[{S_EX}:{S_EX+1}]", tag="cpf")
        P("s_mov_b64 exec, -1")
    P(f"v_mov_b32 v{vz}, 0")
    mk_srd(P, S_WS, 28, SZ["ws"])
    mk_srd(P, S_DBG, 26, SZ["dbg"])
    vn = V.alloc("vn")
    P(f"s_or_b32 s{S_T0}, s2, s{S_W}")
    P(f"s_cmp_lg_u32 s{S_T0}, 0")
    P("s_cbranch_scc1 LF_non")
    P.cond_begin()
    P(f"s_memrealtime s[{S_EX}:{S_EX+1}]")
    P("s_waitcnt lgkmcnt(0)")
    P(f"s_mul_i32 s{S_EX+1}, s{S_EX+1}, 0x9e3779b1")
    P(f"s_xor_b32 s{S_EX}, s{S_EX}, s{S_EX+1}")
    P(f"s_or_b32 s{S_EX}, s{S_EX}, 1")
    P(f"v_mov_b32 v{t0}, s{S_EX}")
    P("s_mov_b64 exec, 1")
    P(f"buffer_store_dword v{t0}, v{vz}, s[{S_DBG}:{S_DBG+3}], 0 offen sc1")
    P("s_mov_b64 exec, -1")
    P.cond_end()
    P("LF_non:")
    P_main = P; P = Prog()
    rest_srds(P)
    mk_srd(P, S_GW, 22, SZ["gw"])
    P(f"s_mov_b32 s{S_C1}, {hexf(2.0**120)}")
    A = attn_setup(P, V, lane, l16, t0, t1)
    qf = A["q"]; O = A["O"]; S = A["S"]
    A["sb"] = SplitBar(P, V, SL, lane, t0) if OPT.get("sb", 0) else type("X", (), dict(n=0))()
    vfl = V.alloc("vfl", 4)
    P(f"s_lshl_b32 s{S_T0}, s{S_HP}, 1")
    P(f"s_add_u32 s{S_T0}, s{S_T0}, s{S_KH}")
    P(f"s_lshl_b32 s{S_T1}, s{S_J}, 2")
    P(f"s_add_u32 s{S_T0}, s{S_T0}, s{S_T1}")
    P(f"s_mul_i32 s{S_T1}, s{S_TILE}, 118")
    P(f"s_add_u32 s{S_T0}, s{S_T0}, s{S_T1}")
    P(f"s_lshl_b32 s{S_T0}, s{S_T0}, 10")
    P(f"s_add_u32 s{S_OD}, s{S_T0}, 0x{WS_OH + 86*1024:x}")
    def poison():
        for r in range(4): P(f"v_mov_b32 v{O[0]+r}, -1")
        P(f"buffer_store_dwordx4 {vr(O[0],4)}, v{l16}, {WSR}, s{S_OD} offen sc1", tag="poison")
    P(f"s_lshr_b32 s{S_T0}, s{S_W}, 1")
    P(f"s_lshl_b32 s{S_T0}, s{S_T0}, 3")
    P(f"s_add_u32 s{S_T0}, s{S_T0}, s{S_T1}")
    P(f"s_lshl_b32 s{S_T0}, s{S_T0}, 10")
    P(f"s_add_u32 s{S_OL}, s{S_T0}, 0x{WS_OH + 86*1024:x}")
    P(f"s_lshl_b32 s{S_FP}, s{S_G}, 10")
    P(f"s_lshl_b32 s{S_FS}, s{S_J}, 5")
    P(f"s_add_u32 s{S_FS}, s{S_FS}, s{S_W}")
    P(f"s_lshl_b32 s{S_FS}, s{S_FS}, 2")
    P(f"s_add_u32 s{S_FS}, s{S_FS}, s{S_FP}")
    P(f"s_add_u32 s{S_FS}, s{S_FS}, 0x{FL_H:x}")
    P(f"s_add_u32 s{S_FP}, s{S_FP}, 0x{FL_H:x}")
    P(f"s_lshl_b32 s{S_FW}, s{S_W}, 14")
    P(f"s_lshl_b32 s{S_T1}, s{S_J}, 7")
    P(f"s_add_u32 s{S_FW}, s{S_FW}, s{S_T1}")
    P(f"s_lshl_b32 s{S_FL2}, s{S_W}, 11")
    P(f"s_mul_i32 s{S_U0}, s{S_J}, 11")
    P(f"s_min_u32 s{S_U0}, s{S_U0}, 76")
    P(f"s_cmp_ge_u32 s{S_J}, 6")
    P(f"s_cselect_b32 s{S_NU}, 10, 11")
    vxa = xfrag_addr(P, V, "vxa", lane, t0, S_TT)
    vq = V.alloc("vq")
    P(f"s_and_b32 s{S_T0}, s{S_W}, 3")
    P(f"s_lshl_b32 s{S_T1}, s{S_T0}, 11")
    P(f"s_add_u32 s{S_T1}, s{S_T1}, 0x{QSCR:x}")
    P(f"v_add_u32 v{vq}, s{S_T1}, v{l16}")
    COMMON = P.I; P = P_main
    def emit(L):
        for x in L: P(x.text, tag=x.tag)
    iw = next(i for i, x in enumerate(COMMON) if x.text.startswith(f"s_mov_b32 s{S_WM+3},")) + 1
    iu = next(i for i, x in enumerate(COMMON) if x.text.startswith(f"s_mul_i32 s{S_U0},"))
    C_EARLY = COMMON[:iw] + COMMON[iu:iu + 4]; C_LATE = COMMON[iw:iu] + COMMON[iu + 4:]
    acc = [[V.alloc(f"acc{i}{t}", 16) for t in range(2)] for i in range(3)]
    fx = [[V.alloc(f"fx{b}{t}", 4) for t in range(2)] for b in range(2)]
    fw = [[V.alloc(f"fw{b}{i}", 4) for i in range(3)] for b in range(2)]
    S_PFB = 19
    def capture(f):
        nonlocal P
        P0 = P; P = Prog(); f(); L = P.I; P = P0
        return L
    R = {}
    def f1():
        vtn = tr_slice_addr(P, V, "vtn", lane, t0, t1, SLOT[0], S_HP, 8)
        vpf = V.alloc("vpf"); vpd = V.alloc("vpd"); vpw = V.alloc("vpw")
        P(f"v_bfe_u32 v{t0}, v{lane}, 4, 1")
        P(f"v_lshrrev_b32 v{t1}, 5, v{lane}")
        P(f"v_lshl_add_u32 v{t0}, v{t1}, 7, v{t0}")
        P(f"v_mul_u32_u24 v{vpf}, 2752, v{t0}")
        P(f"v_and_b32 v{t0}, 15, v{lane}")
        P(f"v_lshl_add_u32 v{vpf}, v{t0}, 7, v{vpf}")
        P(f"v_cmp_gt_u32 vcc, 12, v{t0}")
        P(f"v_mov_b32 v{t1}, 0x{OOB:x}")
        P(f"v_cndmask_b32 v{vpf}, v{t1}, v{vpf}, vcc")
        P(f"s_lshr_b32 s{S_T0}, s2, 3")
        P(f"s_lshl_b32 s{S_T0}, s{S_T0}, 1")
        P(f"s_add_u32 s{S_T0}, s{S_T0}, s{S_HP}")
        P(f"s_mul_i32 s{S_T0}, s{S_T0}, {2*2752}")
        P(f"s_and_b32 s{S_T1}, s2, 1")
        P(f"s_mul_i32 s{S_T1}, s{S_T1}, {44*32}")
        P(f"s_add_u32 s{S_PFB}, s{S_T0}, s{S_T1}")
        R.update(vtn=vtn, vpf=vpf, vpd=vpd, vpw=vpw)
    def f2():
        vx0 = V.alloc("vx0")
        P(f"s_mul_i32 s{S_T0}, s{S_TT}, {32*X_STRIDE}")
        P(f"v_subrev_u32 v{vx0}, s{S_T0}, v{vxa}")
        P(f"s_lshl_b32 s{S_T4}, s{S_W}, 1")
        wtr = w_tr_addrs(P, V, lane, t0, t1, s_w=S_T4)
        R.update(vx0=vx0, wtr=wtr)
    def f3():
        P(f"s_mul_i32 s{S_T0}, s{S_W}, 3")
        P(f"s_mul_i32 s{S_T1}, s{S_G}, 236")
        P(f"s_add_u32 s{S_T1}, s{S_T1}, s{S_U0}")
        for i in range(3):
            P(f"s_add_u32 s{S_T2}, s{S_T0}, {i}")
            P(f"s_add_u32 s{SH[i]}, s{S_T1}, s{S_T2}")
            P(f"s_lshl_b32 s{SH[i]}, s{SH[i]}, 10")
            P(f"s_add_u32 s{SH[i]}, s{SH[i]}, 0x{WS_OH:x}")
            P(f"s_cmp_lt_u32 s{S_T2}, s{S_NU}")
            P(f"s_cselect_b32 s{SH[i]}, s{SH[i]}, 0x{OOB:x}")
    def f4():
        vpw = R["vpw"]
        S_PFS = S_WKV
        P(f"s_lshr_b32 s{S_T0}, s2, 3")
        P(f"s_lshl_b32 s{S_T0}, s{S_T0}, 2")
        P(f"s_add_u32 s{S_T0}, s{S_T0}, s{S_W}")
        P(f"s_cmp_lt_u32 s{S_T0}, 86")
        P(f"s_cselect_b32 s{S_PFS}, s{S_WD}, s{S_WO}")
        P(f"s_cselect_b32 s{S_PFS+1}, s{S_WD+1}, s{S_WO+1}")
        P(f"s_cselect_b32 s{S_PFS+2}, s{S_WD+2}, s{S_WO+2}")
        P(f"s_cselect_b32 s{S_T1}, 0, 86")
        P(f"s_mov_b32 s{S_PFS+3}, 0x20000")
        P(f"s_sub_u32 s{S_T0}, s{S_T0}, s{S_T1}")
        P(f"s_lshl_b32 s{S_T0}, s{S_T0}, 14")
        P(f"s_and_b32 s{S_T1}, s2, 1")
        P(f"s_lshl_b32 s{S_T1}, s{S_T1}, 9")
        P(f"s_add_u32 s{S_T0}, s{S_T0}, s{S_T1}")
        P(f"v_lshrrev_b32 v{t0}, 2, v{lane}")
        P(f"v_lshlrev_b32 v{t0}, 10, v{t0}")
        P(f"v_and_b32 v{t1}, 3, v{lane}")
        P(f"v_lshl_add_u32 v{t0}, v{t1}, 7, v{t0}")
        P(f"v_add_u32 v{vpw}, s{S_T0}, v{t0}")
    ix = next(i for i, x in enumerate(COMMON) if x.text.startswith(f"v_and_b32 v{t0}, 31, v{lane}"))
    ia = next(i for i, x in enumerate(COMMON) if x.text.startswith(f"s_mov_b32 s{S_C1},")) + 1
    io = next(i for i, x in enumerate(COMMON) if x.text.startswith(f"s_lshl_b32 s{S_T0}, s{S_HP}, 1"))
    ifl = next(i for i, x in enumerate(COMMON) if x.text.startswith(f"s_lshl_b32 s{S_FP},"))
    H_PRE = COMMON[ix:ix + 6] + COMMON[:iw] + capture(f1)
    H_MID = COMMON[ia:io] + COMMON[ix + 6:] + capture(f2) + COMMON[io:ifl]
    H_LATE = [COMMON[iw:iw + 8], COMMON[iw + 8:ia], COMMON[ifl:iu], COMMON[iu:iu + 4]]
    sh = capture(f3); H_LATE += [sh[:9], sh[9:15], sh[15:]]
    wp = capture(f4); H_LATE += [wp[:14], wp[14:]]
    vtn, vpf, vpd, vpw, vx0, wtr = (R[k] for k in ("vtn", "vpf", "vpd", "vpw", "vx0", "wtr"))
    S_PFS = S_WKV
    def pf(blk, half):
        P(f"s_add_u32 s{S_T4}, s{S_PFB}, {128*2752*blk}")
        if half: P("s_mov_b64 exec, 0xffffffff")
        P(f"buffer_load_dword v{vpd}, v{vpf}, s[{S_WM}:{S_WM+3}], s{S_T4} offen", tag="pf")
        P.I[-1].vw = set()
        if half: P("s_mov_b64 exec, -1")
    PF = OPT.get("pf", 1)
    KT = 192; vx16 = 240; vw16 = 241; vst = 242; S_K5, S_K6 = S_T5, S_T6
    P(f"s_cmp_lg_u32 s{S_W}, 7")
    P("s_cbranch_scc1 LF_not7b")
    P.cond_begin()
    P(f"s_lshr_b32 s{S_T0}, s{S_J}, 1")
    P(f"s_lshl_b32 s{S_T1}, s{S_T0}, 4")
    P(f"v_and_b32 v{t0}, 15, v{lane}")
    P(f"v_add_u32 v{t1}, s{S_T1}, v{t0}")
    P(f"v_mul_u32_u24 v{vx16}, {X_STRIDE}, v{t1}")
    P(f"v_lshrrev_b32 v{t1}, 4, v{lane}")
    P(f"v_lshl_add_u32 v{vx16}, v{t1}, 4, v{vx16}")
    P(f"v_lshlrev_b32 v{vw16}, 8, v{t1}")
    P(f"v_lshl_add_u32 v{vw16}, v{t0}, 3, v{vw16}")
    P(f"v_add_u32 v{vw16}, 0x{WKV_L:x}, v{vw16}")
    P(f"s_and_b32 s{S_K6}, s{S_J}, 1")
    P(f"s_cmp_eq_u32 s{S_K6}, 0")
    P(f"s_cselect_b32 s{S_T3}, 9, 8")
    P(f"s_cselect_b32 s{S_T4}, 8, 9")
    P(f"s_cselect_b32 s{S_K5}, 0x{WS_KF:x}, 0x{WS_VF:x}")
    P(f"v_lshlrev_b32 v{vst}, 4, v{t0}")
    P(f"v_lshrrev_b32 v{t0}, 1, v{t1}")
    P(f"v_lshl_add_u32 v{vst}, v{t0}, 3, v{vst}")
    P(f"v_and_b32 v{t0}, 1, v{t1}")
    P(f"v_lshlrev_b32 v{t0}, s{S_T3}, v{t0}")
    P(f"v_add_u32 v{vst}, v{vst}, v{t0}")
    P(f"s_and_b32 s{S_T1}, s{S_T0}, 1")
    P(f"s_lshl_b32 s{S_T1}, s{S_T1}, s{S_T4}")
    P(f"s_add_u32 s{S_K5}, s{S_K5}, s{S_T1}")
    P(f"s_lshr_b32 s{S_T0}, s{S_T0}, 1")
    P(f"s_lshl_b32 s{S_T1}, s{S_G}, 1")
    P(f"s_add_u32 s{S_T0}, s{S_T0}, s{S_T1}")
    P(f"s_lshl_b32 s{S_T0}, s{S_T0}, 10")
    P(f"s_add_u32 s{S_K5}, s{S_K5}, s{S_T0}")
    P("s_waitcnt vmcnt(0)")
    P(f"buffer_load_dword v{vn}, v{vz}, s[{S_DBG}:{S_DBG+3}], 0 offen sc1")
    def kv16(which):
        d = KT
        xb = [(KT+16) + 4 * i for i in range(4)]; wb = [(KT+32) + 4 * i for i in range(4)]
        def ld(ks):
            P(f"ds_read_b128 {vr(xb[ks%4],4)}, v{vx16} offset:{ks*64}")
            P(f"ds_read_b64_tr_b16 {vr(wb[ks%4],2)}, v{vw16} offset:{ks*1024}")
            P(f"ds_read_b64_tr_b16 {vr(wb[ks%4]+2,2)}, v{vw16} offset:{ks*1024+128}")
        for ks in range(3): ld(ks)
        for ks in range(16):
            a, b = (wb[ks%4], xb[ks%4]) if which == 0 else (xb[ks%4], wb[ks%4])
            P(f"v_mfma_f32_16x16x32_bf16 {vr(d,4)}, {vr(a,4)}, {vr(b,4)}, {vr(d,4) if ks else 0}")
            if ks + 3 < 16: ld(ks + 3)
        if which == 0:
            P(f"s_mov_b32 s{S_T0}, {hexf(QK_SCALE)}")
            for r in range(4): P(f"v_mul_f32 v{d+r}, s{S_T0}, v{d+r}")
    P(f"s_cmp_eq_u32 s{S_K6}, 1")
    P("s_cbranch_scc1 LF_vch")
    P.cond_begin(); kv16(0); P.cond_end()
    P("s_branch LF_kvj")
    P("LF_vch:")
    P.cond_begin(); kv16(1); P.cond_end()
    P("LF_kvj:")
    for r in range(2): P(f"v_cvt_pk_bf16_f32 v{KT+4+r}, v{KT+2*r}, v{KT+2*r+1}")
    P(f"buffer_store_dwordx2 {vr(KT+4,2)}, v{vst}, {WSR}, s{S_K5} offen sc1")
    FB2 = OPT.get("fb2", 0)
    def w7flag():
        P(f"s_lshl_b32 s{S_T0}, s{S_G}, 3")
        P(f"s_add_u32 s{S_T0}, s{S_T0}, s{S_J}")
        P(f"s_lshl_b32 s{S_T0}, s{S_T0}, 2")
        P(f"s_add_u32 s{S_T0}, s{S_T0}, 0x{FL_KV:x}")
        P("s_waitcnt vmcnt(0)")
        nonce_check(P, SL, vn, vz)
        flag_store(P, vz, t0, S_T0)
    if not FB2: w7flag()
    def pf7():
        P(f"v_lshrrev_b32 v{t0}, 4, v{lane}")
        P(f"v_mul_u32_u24 v{vx16}, 2752, v{t0}")
        P(f"v_and_b32 v{t0}, 15, v{lane}")
        P(f"v_lshl_add_u32 v{vx16}, v{t0}, 7, v{vx16}")
        P(f"v_cmp_gt_u32 vcc, 12, v{t0}")
        P(f"v_mov_b32 v{t1}, 0x{OOB:x}")
        P(f"v_cndmask_b32 v{vx16}, v{t1}, v{vx16}, vcc")
        P(f"s_lshr_b32 s{S_T0}, s2, 3")
        P(f"s_mul_i32 s{S_T0}, s{S_T0}, {4*2752}")
        P(f"s_and_b32 s{S_T1}, s2, 1")
        P(f"s_mul_i32 s{S_T1}, s{S_T1}, {44*32}")
        P(f"s_add_u32 s{S_T0}, s{S_T0}, s{S_T1}")
        for m in range(2):
            mk_srd(P, S_WKV, 16 + 2 * m, SZ["wg"])
            P(f"buffer_load_dword v{fx[0][0]+m}, v{vx16}, s[{S_WKV}:{S_WKV+3}], s{S_T0} offen")
    if OPT.get("pf7", 1) == 1: pf7()
    stamp(P, 1)
    P("s_barrier")
    stamp(P, 2)
    if OPT.get("pf7", 1) == 2: pf7()
    if FB2 == 1: w7flag()
    P("s_barrier")
    if FB2 == 2: w7flag()
    P.cond_end(nowait=True)
    P("s_branch LF_light")
    P("LF_not7b:")
    P(f"s_cmp_lg_u32 s{S_KH}, 0")
    P("s_cbranch_scc1 LF_l0")

    def sigstamp(it, k):
        if OPT.get("sig"):
            P(f"s_memtime s[98:99]"); P("s_waitcnt lgkmcnt(0)"); P(f"v_writelane_b32 v{vsig}, s98, {2*it+k}")
    vsig = V.alloc("vsig") if OPT.get("sig") else None

    P.cond_begin()
    emit(H_PRE)
    stamp(P, 15)
    P("s_barrier")
    stamp(P, 0)
    LOADS["f"]("h")
    stamp(P, 1)
    if PF & 4: pf(0, True)
    P.wait_tag("q")
    P("s_barrier")
    stamp(P, 2)
    if PF & 2: pf(0, True)
    QD = 6
    xb = [acc[1][0] + 4 * i for i in range(QD)]; wb = [acc[2][0] + 4 * i for i in range(QD)]
    assert acc[1][1] == acc[1][0] + 16 and acc[2][1] == acc[2][0] + 16
    def q_loads(ks):
        o = SLOT[ks // 12] - SLOT[0] + (ks % 12) * 2048
        P(f"ds_read_b128 {vr(xb[ks%QD],4)}, v{vxa} offset:{ks*32}")
        P(f"ds_read_b64_tr_b16 {vr(wb[ks%QD],2)}, v{vtn} offset:{o}")
        P(f"ds_read_b64_tr_b16 {vr(wb[ks%QD]+2,2)}, v{vtn} offset:{o+512}")
    for ks in range(QD - 1): q_loads(ks)
    for ks in range(32):
        P(mfma(acc[0][0], wb[ks%QD], xb[ks%QD], acc[0][0] if ks else None))
        if ks in (11, 23):
            stamp(P, 11 if ks == 11 else 13)
            P("s_barrier")
        if ks + QD - 1 in (12, 24): P("s_barrier")
        if ks + QD - 1 < 32: q_loads(ks + QD - 1)
        nf = -(-len(H_MID) // 28)
        emit(H_MID[ks * nf:(ks + 1) * nf])
        if ks == OPT.get("pk", 24):
            P(f"s_mov_b32 s{S_T5}, 0x{FL_KV:x}")
            P(f"buffer_load_dword v{vn}, v{vz}, s[{S_DBG}:{S_DBG+3}], 0 offen sc1")
            P(flag_load(vfl, 4, l16, f"s{S_T5}"))
    for r in range(8): P(f"v_cvt_pk_bf16_f32 v{qf+r}, v{acc[0][0]+2*r}, v{acc[0][0]+2*r+1}")
    P(f"ds_write_b128 v{vq}, {vr(qf,4)}")
    P(f"ds_write_b128 v{vq}, {vr(qf+4,4)} offset:1024")
    nonce_check(P, SL, vn, vz)
    spin_check(P, SL, [flag_load(vfl, 4, l16, f"s{S_T5}")], flag_cmp(vfl, 4, t0), sleep=OPT.get("ksl", 6))
    kv_dma(P, l16, 0)
    P(f"s_add_u32 s{S_T2}, s{S_T2}, 32768")
    dma(P, l16, S_WS, f"s{S_T2}", (S_KVLDS, 4096), tag="kv0", mods=SC1)
    def gu_reads(ks):
        s, kk = ks // 2, ks % 2
        so = SLOT[s % 3] - SLOT[0] + kk * 6144
        L = [f"ds_read_b128 {vr(fx[ks%2][0],4)}, v{vx0} offset:{ks*32}"]
        for i in range(3):
            f = fw[ks % 2][i]
            L += [f"ds_read_b64_tr_b16 {vr(f,2)}, v{wtr[i]} offset:{so}", f"ds_read_b64_tr_b16 {vr(f+2,2)}, v{wtr[i]} offset:{so+1536}"]
            if i == 0: L.append(f"ds_read_b128 {vr(fx[ks%2][1],4)}, v{vx0} offset:{ks*32 + 32*X_STRIDE}")
        return L
    def gu_groups(ks, late=False):
        R = gu_reads(ks + 1) if ks < 31 else []
        if OPT.get("abl_hds") and ks >= 2 * NP - 1: R = []
        G = []
        for m in range(6):
            i, t = m // 2, m % 2
            mm = [mfma(acc[i][t], fw[ks % 2][i], fx[ks % 2][t], acc[i][t] if ks else None)]
            if OPT.get("abl_hm") and ks >= 2 * NP - 1: mm = []
            G.append(mm + (R[2 * m: 2 * m + 2] if not late else ([] if m < 3 else R[3 * (m - 3): 3 * (m - 3) + 3])))
        return G
    P.wait_lgkm_all()
    stamp(P, 14)
    P("s_barrier")
    stamp(P, 3)
    for x in gu_reads(0): P(x)
    poison()
    PFI = OPT.get("pfi", 0)
    for ks in range(2 * NP - 1):
        if ks % 2 == 1:
            P.wait_lgkm_all(); P("s_barrier")
        for g in gu_groups(ks):
            for x in g: P(x)
    P.wait_tag("kv0"); P.wait_lgkm_all(); P("s_barrier")
    stamp(P, 4)
    gq = []
    tmp = fx[0][0]; cst = fx[1][0]
    assert fx[0][1] == fx[0][0] + 4
    gel = []
    def load_window(k):
        n = 2 * (NP + k) - 1
        assert not gq
        gq.extend(gu_groups(n, late=(k > 0 and OPT.get("sb", 0))))
        if n < 31: gq.extend(gu_groups(n + 1))
    def hookH(it, x, pos):
        if pos == "sync?": return 1 <= it <= JIT
        if pos == "pre0": sigstamp(it, 0); return
        if pos == "pre": sigstamp(it, 1); return
        if pos == "start": load_window(0); return
        midprio(it, x, pos, PH)
        if pos in ("qk", "pv1") and H_LATE: emit(H_LATE.pop(0))
        if pos == "pv2" and x == 1 and PF & 1:
            if it == PFI: pf(1, True)
            if it == PFI + 2: pf(2, True)
            if it == PFI + 5: pf(3, True)
        if pos == "pv2" and x == 1 and OPT.get("wpf", 1) and it in (7, 8, 9, 10):
            k = it - 7
            P(f"s_cmp_lg_u32 s{S_W}, {k}")
            P(f"s_cbranch_scc1 LF_wp{k}")
            P(f"buffer_load_dword v{vpd}, v{vpw}, s[{S_PFS}:{S_PFS+3}], 0 offen")
            P.I[-1].kind = "salu"; P.I[-1].vw = set()
            P(f"LF_wp{k}:")
        if pos == "pv1" and x == 0 and 1 <= it <= JIT: load_window(it)
        if pos in ("g1", "g2", "g3", "g4", "g5", "g6"):
            cnt = int(str(OPT.get("gm", 111111))[int(pos[1]) - 1]) if gq else 1
            cnt = 0 if cnt == 9 else cnt
            if gq and cnt == 0: pass
            elif gq:
                for _ in range(cnt):
                    if gq:
                        for t in gq.pop(0): P(t)
                if not gq and it == JIT and x == 1:
                    L = [f"v_mov_b32 v{cst}, {hexf(GELU_C1)}", f"v_mov_b32 v{cst+1}, {hexf(GELU_C1)}",
                         f"v_mov_b32 v{cst+2}, {hexf(GELU_C2)}", f"v_mov_b32 v{cst+3}, {hexf(GELU_C2)}"]
                    k = 0
                    for i in range(3):
                        for t in range(2):
                            d = fw[k % 2][k // 2]; k += 1
                            L += gelu_tile_pk(acc[i][t], d, tmp, cst)
                            if t == 1: L.append(f"s_add_u32 s{SH[i]}, s{SH[i]}, {118*1024}")
                            L.append(f"buffer_store_dwordx4 {vr(d,4)}, v{l16}, {WSR}, s{SH[i]} offen sc1")
                    ns = 3 + 12 * (UNI - JIT - 1)
                    n = (len(L) + ns - 1) // ns
                    gel.extend(L[i:i + n] for i in range(0, len(L), n))
            elif gel:
                for t in gel.pop(0): P(t, tag="hst" if "store" in t else None)
    PM = OPT.get("pm", 9)
    PH = [int(c) for c in str(OPT.get("ph", 3321)).zfill(4)]; PL = [int(c) for c in str(OPT.get("pl", 3210)).zfill(4)]
    def prioH(it, x):
        if PM == 9: return PH[2 * x] if it < JIT else 3
        if PM == 1: return 3 if (it == 0 and x == 0) else None
        if PM == 3: return 3 - 2 * x
        if PM == 5: return (3 - 2 * x) if it < JIT else 3
        if PM == 6: return 3 if it >= JIT else None
        return None
    def prioL(it, x):
        if PM == 9: return PL[2 * x] if it < JIT else 0
        if PM in (2, 6): return 1 if (it == 0 and x == 0) else None
        if PM == 3: return 3 - 2 * x
        if PM == 5: return (3 - 2 * x) if it < JIT else 0
        return None
    def midprio(it, x, pos, T=None):
        if PM == 9 and pos == "pv2" and it <= JIT: P(f"s_setprio {T[1] if x else T[3]}")
        if PM in (3, 5) and pos == "pv2" and (PM == 3 or it <= JIT): P(f"s_setprio {2 * x}")
    attention(P, A, l16, range(0, UNI), hookH, prioH, kvf=lambda c: None)
    nsb = A["sb"].n; A["sb"].n = 0
    assert not gq and not gel, (len(gq), len(gel))
    P.cond_end(keep=True)
    P("s_branch LF_join")
    for n in ("vx0", "vtn", "wtr0", "wtr1", "wtr2", "vpf", "vpw"): V.release(n)

    P("LF_l0:")
    P.cond_begin()
    P("s_barrier")
    LOADS["f"]("l")
    stamp(P, 1)
    P("s_waitcnt vmcnt(8)")
    P("s_barrier")
    stamp(P, 2)
    P(f"s_cmp_eq_u32 s{S_W}, 6")
    P("s_cbranch_scc1 LF_l6")
    P(f"s_add_u32 s{S_T3}, s{S_T3}, 24")
    wq_pieces(P, vsl, S_T3, 8, "LF_ldq3", 1)
    P("s_waitcnt vmcnt(8)")
    P("s_branch LF_l6j")
    P("LF_l6:")
    P("s_waitcnt vmcnt(0)")
    P("LF_l6j:")
    P("s_barrier")
    P("LF_light:")
    emit(C_EARLY)

    pats = w_patterns(P, V, lane, t0, t1)
    P(f"s_lshl_b32 s{S_T0}, s{S_HP}, 1")
    P(f"s_mul_i32 s{S_WOFF}, s{S_T0}, {8*2752}")
    P(f"s_lshl_b32 s{S_T1}, s{S_U0}, 5")
    P(f"s_add_u32 s{S_WOFF}, s{S_WOFF}, s{S_T1}")
    P(f"s_mul_i32 s{S_WLDS}, s{S_T0}, 3072")
    P(f"s_mul_i32 s{S_T1}, s{S_TT}, {UP_OFF}")
    P(f"s_add_u32 s{S_WLDS}, s{S_WLDS}, s{S_T1}")
    inattn = dict(on=False)
    P(f"s_add_u32 s{S_WOFF}, s{S_WOFF}, 0")
    P(f"v_subrev_u32 v{pats[1]}, 1024, v{pats[1]}")
    P(f"v_subrev_u32 v{pats[2]}, 2048, v{pats[2]}")
    def w_dma1(s, k):
        g, i = k // 3, k % 3
        solo = not OPT.get("wm0", 1) or inattn["on"]
        if i == 0 or solo:
            dma(P, pats[i], S_WM, f"s{S_T3}", (S_WLDS, SLOT[s % 3] + 3072 * g), offset=1024 * i, tag=f"w{s}",
                pre=[f"s_add_u32 s{S_T3}, s{S_WOFF}, 0x{(32*s + 8*g)*2752:x}"] if i == 0 else None)
        else:
            P(f"buffer_load_dwordx4 v{pats[i]}, s[{S_WM}:{S_WM+3}], s{S_T3} offen offset:{1024*i} lds", tag=f"w{s}")
    def w_dma6(s):
        for k in range(6): w_dma1(s, k)
    stamp(P, 11)
    P("s_barrier")
    w_dma6(0)
    P("s_waitcnt vmcnt(6)"); P.I[-1].kind = "salu"
    P("s_barrier")
    h = len(C_LATE) // 4
    emit(C_LATE[:h])
    stamp(P, 13)
    P("s_barrier")
    w_dma6(1)
    emit(C_LATE[h:])
    dma(P, l16, S_GW, "0", (None, GWL), tag="gw")
    vgw = acc[0][1]
    P(f"v_lshrrev_b32 v{t0}, 5, v{lane}")
    P(f"v_lshlrev_b32 v{vgw}, 4, v{t0}")
    P(f"s_lshl_b32 s{S_T0}, s{S_HP}, 9")
    P(f"v_add_u32 v{vxa}, s{S_T0}, v{vxa}")
    P(f"s_add_u32 s{S_T0}, s{S_T0}, 0x{GWL:x}")
    P(f"v_add_u32 v{vgw}, s{S_T0}, v{vgw}")
    P(f"s_lshl_b32 s{S_T0}, s{S_W}, 8")
    P(f"s_add_u32 s{S_T0}, s{S_T0}, 0x{ONES - 1024:x}")
    P(f"v_lshlrev_b32 v{t0}, 2, v{lane}")
    P(f"v_add_u32 v{t0}, s{S_T0}, v{t0}")
    P(f"v_mov_b32 v{t1}, 0x3f803f80")
    P(f"v_lshrrev_b32 v1, 2, v{lane}")
    P(f"v_and_b32 v1, 11, v1")
    P(f"v_cmp_eq_u32 vcc, 0, v1")
    P(f"v_cndmask_b32 v{t1}, 0, v{t1}, vcc")
    P(f"ds_write_b32 v{t0}, v{t1}")
    P(f"ds_write_b32 v{t0}, v{t1} offset:1024")
    poison()
    za = acc[0][0]; zx = [acc[1][0] + 4 * i for i in range(4)]; zg = [acc[2][0] + 4 * i for i in range(4)]
    def zjob():
        for r in range(4): P(f"v_mov_b32 v{za+r}, 0")
        def zld(k):
            P(f"ds_read_b128 {vr(zx[k%4],4)}, v{vxa} offset:{k*32}")
            P(f"ds_read_b128 {vr(zg[k%4],4)}, v{vgw} offset:{k*32}")
        for k in range(3): zld(k)
        for k in range(16):
            for r in range(4): P(f"v_dot2c_f32_bf16 v{za+r}, v{zx[k%4]+r}, v{zg[k%4]+r}")
            if k + 3 < 16: zld(k + 3)
        P("s_nop 2")
        P(f"v_add_f32 v{za}, v{za}, v{za+1}")
        P(f"v_add_f32 v{za+2}, v{za+2}, v{za+3}")
        P(f"v_add_f32 v{za}, v{za}, v{za+2}")
        P(f"s_and_b32 s{S_T0}, s{S_W}, 3")
        P(f"s_lshl_b32 s{S_T0}, s{S_T0}, 8")
        P(f"s_add_u32 s{S_T0}, s{S_T0}, 0x{MISC:x}")
        P(f"v_lshlrev_b32 v{t0}, 2, v{lane}")
        P(f"v_add_u32 v{t0}, s{S_T0}, v{t0}")
        P(f"ds_write_b32 v{t0}, v{za}")
    P(f"s_mov_b32 s{S_T6}, 0x{FL_KV:x}")
    def kv_both(c):
        kv_dma(P, l16, c)
        dma(P, l16, S_WS, f"s{S_T2}", (S_KVLDS, (8192 * (c & 1) - 4096) & 0xffffffff), tag=f"kv{c}", mods=SC1, pre=[f"s_sub_u32 s{S_T2}, s{S_T2}, 32768"])
    def poll_issue():
        P(f"buffer_load_dword v{vn}, v{vz}, s[{S_DBG}:{S_DBG+3}], 0 offen sc1")
        P(flag_load(vfl, 4, l16, f"s{S_T6}"))
    for s in range(0, NP + 1):
        P.wait_tag(f"w{s}")
        P.wait_lgkm_all()
        if s == 0: stamp(P, 14)
        P("s_barrier")
        if s == 0:
            stamp(P, 3)
            P(f"ds_read_b128 {vr(qf,4)}, v{vq} offset:1024")
            P(f"ds_read_b128 {vr(qf+4,4)}, v{vq}")
        if s == NP: kv_both(1)
        if s < NP: w_dma6(s + 2)
        if s == 0:
            P(f"buffer_load_dword v{vn}, v{vz}, s[{S_DBG}:{S_DBG+3}], 0 offen sc1")
            P.wait_tag("gw")
            zjob()
    assert NP >= 1
    stamp(P, 4)
    dq = []; wq2 = []
    def hookL(it, x, pos):
        if pos == "sync?": return 1 <= it <= JIT
        if pos == "pre0": sigstamp(it, 0); return
        if pos == "pre":
            if NP + it < 16: P.wait_tag(f"w{NP+it}")
            sigstamp(it, 1); return
        if (pos == "start" or pos == "chk") and NP + it + 2 < 16:
            assert not dq
            for k in range(0 if OPT.get("abl_ldma") else 6): dq.append(lambda s=NP + it + 2, k=k: w_dma1(s, k))
        midprio(it, x, pos, PL)
        LW = OPT.get("lw", 4)
        if pos == "chk" and it == JIT:
            for b in range(LW):
                for o in range(2):
                    for i in range(2): wq2.append(lambda b=b, o=o, i=i: fin_dma_w2(P, vsl, b, b * 16384, f"fw{b}", i, o))
        if wq2 and pos not in ("pre", "pre0", "chk", "start"):
            wq2.pop(0)()
            if it == UNI - 1 and x == 1 and pos == "g6":
                while wq2: wq2.pop(0)()
        if (pos in ("pv2", "qk", "pv1") or (pos == "g5" and x == 1 and OPT.get("sb", 0))) and dq: dq.pop(0)()
    attention(P, A, l16, range(0, UNI), hookL, prioL, kvf=kv_both)
    assert A["sb"].n == nsb
    assert not dq
    P.cond_end(keep=True)
    P("LF_join:")
    P.join()
    for n in ["wpat0", "wpat1", "wpat2", "vxa", "vq"] + [f"acc{i}{t}" for i in range(3) for t in range(2)] + \
             [f"fx{b}{t}" for b in range(2) for t in range(2)] + [f"fw{b}{i}" for b in range(2) for i in range(3)]: V.release(n)
    stamp(P, 5)

    facc = V.alloc("facc", 16); facc1 = V.alloc("facc1", 16); fa = V.alloc("ffa", 8)
    NB = OPT.get("nb", 6)
    hb = [V.alloc(f"hb{i}", 4) for i in range(NB)]; fb = hb[0]
    vl4 = V.alloc("vl4"); vg = V.alloc("vg"); zt = V.alloc("zt", 2)
    va0 = tr_slice_addr(P, V, "fa0", lane, t0, t1, 0, S_KH, 4)
    vA = [[va0, V.alloc("fa0h")], [V.alloc("fa1"), V.alloc("fa1h")]]
    P(f"s_lshl_b32 s{S_T1}, s{S_HP}, 5")
    P(f"v_xor_b32 v{va0}, s{S_T1}, v{va0}")
    P(f"s_lshr_b32 s{S_T0}, s{S_W}, 1")
    P(f"s_lshl_b32 s{S_T1}, s{S_T0}, 11")
    P(f"v_add_u32 v{va0}, s{S_T1}, v{va0}")
    P(f"v_xor_b32 v{vA[1][0]}, 64, v{va0}")
    P(f"v_add_u32 v{vA[0][1]}, 0x10000, v{va0}")
    P(f"v_add_u32 v{vA[1][1]}, 0x10000, v{vA[1][0]}")
    P(f"s_mul_i32 s{S_FB}, s{S_TILE}, 118")
    P(f"s_add_u32 s{S_FB}, s{S_FB}, s{S_T0}")
    P(f"s_lshl_b32 s{S_FB}, s{S_FB}, 10")
    P(f"s_add_u32 s{S_FB}, s{S_FB}, 0x{WS_OH:x}")
    P(f"v_lshlrev_b32 v{vl4}, 2, v{lane}")
    vhf = V.alloc("vhf")
    P(f"v_lshrrev_b32 v{t0}, 3, v{lane}")
    P(f"v_mul_u32_u24 v{t0}, 96, v{t0}")
    P(f"v_add_u32 v{vhf}, v{t0}, v{vl4}")
    P(f"s_lshl_b32 s{S_T0}, s{S_TT}, 8")
    P(f"s_add_u32 s{S_T0}, s{S_T0}, 0x{MISC:x}")
    P(f"v_add_u32 v{t0}, s{S_T0}, v{vl4}")
    P(f"ds_read_b32 v{zt}, v{t0}")
    P(f"ds_read_b32 v{zt+1}, v{t0} offset:512")
    P(f"v_add_f32 v{zt}, v{zt}, v{zt+1}")
    P(f"v_mov_b32 v{zt+1}, v{zt}")
    P(f"v_permlane32_swap_b32 v{zt}, v{zt+1}")
    P(f"v_add_f32 v{zt}, v{zt}, v{zt+1}")
    P(f"v_mul_f32 v{t0}, {hexf(-LOG2E)}, v{zt}")
    P(f"v_exp_f32 v{t0}, v{t0}")
    P(f"v_add_f32 v{t0}, 1.0, v{t0}")
    P(f"v_rcp_f32 v{vg}, v{t0}")
    V.release("zt")
    vw = [V.alloc(f"vw{i}") for i in range(3)]; vrd = V.alloc("vrd"); vo = V.alloc("vo")
    def sbase(dst, w):
        P(f"s_mul_i32 s{S_T1}, s{w}, 6144")
        P(f"v_add_u32 v{dst}, s{S_T1}, v{l16}")
    sbase(vrd, S_W)
    for b in range(1, 4):
        P(f"s_xor_b32 s{S_T0}, s{S_W}, {b << 1}")
        sbase(vw[b - 1], S_T0)
    P(f"v_and_b32 v{vo}, 31, v{lane}")
    P(f"v_lshlrev_b32 v{vo}, 10, v{vo}")
    P(f"v_lshrrev_b32 v{t1}, 5, v{lane}")
    P(f"v_lshl_add_u32 v{vo}, v{t1}, 4, v{vo}")
    P(f"s_lshl_b32 s{S_OO}, s{S_TILE}, 15")
    P(f"s_lshl_b32 s{S_T1}, s{S_J}, 7")
    P(f"s_add_u32 s{S_OO}, s{S_OO}, s{S_T1}")
    P(f"s_lshl_b32 s{S_T1}, s{S_KH}, 6")
    P(f"s_add_u32 s{S_OO}, s{S_OO}, s{S_T1}")
    P(f"s_lshl_b32 s{S_T1}, s{S_HP}, 5")
    P(f"s_add_u32 s{S_OO}, s{S_OO}, s{S_T1}")
    vp = V.alloc("vp"); vpa = V.alloc("vpa")
    P(f"v_lshlrev_b32 v{vpa}, 10, v{lane}")
    vt0 = V.alloc("vt0"); vt1 = V.alloc("vt1")
    P(f"s_lshr_b32 s{S_T1}, s{S_W}, 1")
    P(f"s_mul_i32 s{S_T1}, s{S_T1}, {16384 - 2048}")
    P(f"s_add_u32 s{S_T1}, s{S_T1}, {3*16384}")
    P(f"v_add_u32 v{vt0}, s{S_T1}, v{vA[0][0]}")
    P(f"v_add_u32 v{vt1}, s{S_T1}, v{vA[1][0]}")
    va = V.alloc("cva"); vb = V.alloc("cvb"); fb = V.alloc("cvon")
    P(f"s_mul_i32 s{S_T0}, s{S_W}, 3072")
    P(f"s_add_u32 s{S_T0}, s{S_T0}, 114688")
    P(f"v_add_u32 v{va}, s{S_T0}, v{l16}")
    P(f"s_xor_b32 s{S_T0}, s{S_W}, 4")
    P(f"s_mul_i32 s{S_T0}, s{S_T0}, 3072")
    P(f"s_add_u32 s{S_T0}, s{S_T0}, 114688")
    P(f"v_add_u32 v{vb}, s{S_T0}, v{l16}")
    P(f"s_add_u32 s{S_OL2}, s{S_OL}, 4096")
    BSLOT = lambda b: ((b % 8) if b < 11 else (b - 8)) * 16384
    def a_reads(r, d):
        o = (4 * r % 64) * 2048; hi = o >> 16; o &= 0xffff
        assert r // 2 in vis, (r, vis)
        rd_done[r // 2] = rd_done.get(r // 2, 0) + 1
        if OPT.get("abl_uds"): return
        P(f"ds_read_b64_tr_b16 {vr(fa+4*d,2)}, v{vA[d][hi]} offset:{o}")
        P(f"ds_read_b64_tr_b16 {vr(fa+4*d+2,2)}, v{vA[d][hi]} offset:{o+1024}")
    def h_load(r):
        if OPT.get("abl_uh"): return
        P(f"s_add_u32 s{S_T2}, s{S_FB}, {4096*r}")
        if r == 21:
            P(f"s_cmp_lt_u32 s{S_W}, 4")
            P(f"s_cselect_b32 s{S_T2}, s{S_T2}, 0x{OOB:x}")
        P(f"buffer_load_dwordx4 {vr(hb[r%NB],4)}, v{l16}, {WSR}, s{S_T2} offen sc1")
    pend = {}
    LW = OPT.get("lw", 4)
    dq = []; vis = set(); issued = {}; rd_done = {}; nxt = dict(b=LW, r=0, d=0, pre=False)
    def qW(b):
        def f(i):
            if not OPT.get("abl_uw"): fin_dma_w1(P, vsl, b, BSLOT(b), f"fw{b}", i)
            issued[b] = issued.get(b, 0) + 1
        for i in range(2): dq.append(lambda i=i: f(i))
    CH = OPT.get("ch", HF + 3); R0 = OPT.get("r0", 2 * (CH + 2))
    DBL = OPT.get("dbl", 64)
    def mstep():
        r, d = nxt["r"], nxt["d"]
        if r >= 22: return
        if not nxt["pre"]:
            a_reads(0, 0); a_reads(0, 1); nxt["pre"] = True; return
        if not OPT.get("abl_um"): P(mfma([facc, facc1][d], fa + 4 * d, hb[r % NB], [facc, facc1][d] if r else None))
        if r + 1 < 22: a_reads(r + 1, d)
        if d == 1 and r + NB < 22: dq.insert(0, lambda r=r: h_load(r + NB))
        nxt["d"] = 1 - d; nxt["r"] = r + d
    def hookU(it, x, pos):
        sig = (x == 0 and (it & 1)); ph = 2 * it + x
        if pos == "sync?": return False
        if pos == "pre0": sigstamp(it, 0); return
        if pos == "pre":
            if it == HF: P.wait_vm_all()
            need = [b for b in issued if issued[b] == 2 and b not in vis and (it == 29 or b <= (max(0, ph + 8 - R0) * (2 if ph + 6 >= DBL else 1)) // 2) and b <= 10]
            if need: P.wait_tag(*[f"fw{b}" for b in need])
            if it == HF: need = need + list(range(LW))
            pend["vis"] = need; pend["free"] = {b for b in rd_done if rd_done[b] >= 4}
            sigstamp(it, 1); return
        if pos == "pv1" and sig and it == HF:
            nonce_check(P, SL, vn, vz)
            flag_store(P, vz, t0, S_FS)
        if pos == "chk":
            vis.update(pend["vis"])
            while it >= HF and nxt["b"] < 15:
                b = nxt["b"]; prev = {8: 0, 9: 1, 10: 2, 11: 3, 12: 4, 13: 5, 14: 6}.get(b)
                if prev is not None and prev not in pend["free"]: break
                qW(b); nxt["b"] += 1
            return
        if pos == "pv2" and x == 0 and it == CH - 1: P(flag_load(vfl, 1, vhf, f"s{S_FP}"))
        if pos == "pv2" and x == 0 and it == CH:
            spin_check(P, SL, [flag_load(vfl, 1, vhf, f"s{S_FP}")], flag_cmp(vfl, 1, t0), sleep=OPT.get("hsl", 4))
            for r in range(NB): dq.insert(r, lambda r=r: h_load(r))
        elif dq and (pos in ("pv2", "qk") or (pos in ("g2", "g5") and it in (CH, CH + 1)) or (pos == "g5" and OPT.get("d3"))): dq.pop(0)()
        if nxt["r"] >= 22 - OPT.get("tr", 5) and nxt["d"] == 0: pass
        elif (pos in ("g1", "g4") and ph >= R0) or (pos == "g4" and ph == R0 - 1) or (pos in ("g3", "g6") and ph >= DBL): mstep()
        if pos == "g6" and it == 31 and x == 1:
            assert nxt["b"] == 15, nxt
            print("rounds left for tail:", 22 - nxt["r"])
    def prioU(it, x):
        if not OPT.get("prio", 1): return None
        k = 2 * ((it + 1) & 1) + x
        return int(str(OPT.get("pu", 3210)).zfill(4)[k])
    attention(P, A, l16, range(UNI, 32), hookU, prioU)
    assert not dq
    stamp(P, 6)
    if OPT.get("sig"):
        P(f"s_lshl_b32 s98, s2, 11")
        P(f"s_lshl_b32 s99, s{S_W}, 8")
        P(f"s_add_u32 s98, s98, s99")
        P(f"s_add_u32 s98, s98, 0x{WS_STAMP + (1<<20):x}")
        P(f"buffer_store_dword v{vsig}, v{vl4}, {WSR}, s98 offen")
    P("s_setprio 0")
    P(f"v_mov_b32 v{O[1]+7}, v{O[1]}")
    for i in range(3): P(f"ds_write_b128 v{va}, {vr(O[1]+4+4*i,4)} offset:{1024*i}")
    P.wait_tag(*[f"fw{b}" for b in range(8, 15)]); P.wait_lgkm_all()
    P("s_barrier")
    vis.update(range(11))
    for i in range(3): P(f"ds_read_b128 {vr(O[1]+4+4*i,4)}, v{vb} offset:{1024*i}")
    P(f"v_add_f32 v{O[0]}, v{O[0]}, v{O[1]+7}")
    for r in range(8, 16): P(f"v_add_f32 v{O[0]+r}, v{O[0]+r}, v{O[1]+r}")
    P(f"v_mov_b32 v{t1}, 0x207")
    P(f"v_cmp_nle_f32 vcc, {hexf(2.0**-90)}, v{O[0]}")
    P(f"v_cmp_nge_f32 s[{S_PM}:{S_PM+1}], {'s' + str(S_T0)}, v{O[0]}".replace(f"s{S_T0}", f"s{S_C1}"))
    P(f"s_or_b64 vcc, vcc, s[{S_PM}:{S_PM+1}]")
    P(f"v_add3_u32 v{t0}, v{O[0]+8}, 0, 0".replace("v_add3_u32", "v_add_f32").replace(", 0, 0", f", v{O[0]+9}"))
    for r in range(10, 16): P(f"v_add_f32 v{t0}, v{t0}, v{O[0]+r}")
    P(f"v_cmp_class_f32 s[{S_PM}:{S_PM+1}], v{t0}, v{t1}")
    P(f"s_or_b64 vcc, vcc, s[{S_PM}:{S_PM+1}]")
    if OPT.get("forcefb"): P("s_mov_b64 vcc, -1")
    P("s_cmp_lg_u64 vcc, 0")
    P("s_cbranch_scc1 LF_fb")
    P("LF_fbr:")
    P(f"v_rcp_f32 v{t0}, v{O[0]}")
    P(f"v_mul_f32 v{t0}, v{t0}, v{vg}")
    for r in range(8, 16): P(f"v_mul_f32 v{O[0]+r}, v{O[0]+r}, v{t0}")
    for r in range(4): P(f"v_cvt_pk_bf16_f32 v{O[1]+r}, v{O[0]+8+2*r}, v{O[0]+9+2*r}")
    for r in range(4): P(f"v_min_u32 v{O[1]+r}, 0xfffffffe, v{O[1]+r}")
    P(f"buffer_store_dwordx4 {vr(O[1],4)}, v{l16}, {WSR}, s{S_OD} offen sc1", tag="ost")
    stamp(P, 7)
    K4, V8, ON, CM = A["fk"], A["fv"][0], fb, O[1]
    assert A["fv"][1] == V8 + 4
    nl = "\n    "
    fbk = f"""LF_fb:
    s_waitcnt vmcnt(0) lgkmcnt(0)
    v_mov_b32 v{t0}, 0xff800000
    s_mov_b32 s{S_T0}, 0x{WS_KF:x}
LF_fb1:
    buffer_load_dwordx4 {vr(K4,4)}, v{l16}, {WSR}, s{S_T0} offen sc1
    s_waitcnt vmcnt(0)
    {mfma(S[0], K4, qf)}
    s_nop 15
    {nl.join(f"v_max3_f32 v{t0}, v{S[0]+2*r}, v{S[0]+2*r+1}, v{t0}" for r in range(8))}
    s_add_u32 s{S_T0}, s{S_T0}, 1024
    s_cmp_lt_u32 s{S_T0}, 0x{WS_KF + 65536:x}
    s_cbranch_scc1 LF_fb1
    v_mov_b32 v{t1}, v{t0}
    s_nop 1
    v_permlane32_swap_b32 v{t0}, v{t1}
    s_nop 1
    v_max_f32 v{t0}, v{t0}, v{t1}
    {nl.join(f"v_sub_f32 v{CM+r}, 0, v{t0}" for r in range(16))}
    {nl.join(f"v_mov_b32 v{O[0]+r}, 0" for r in range(16))}
    v_lshrrev_b32 v{t0}, 5, v{lane}
    v_lshlrev_b32 v{t0}, 8, v{t0}
    v_and_b32 v{t1}, 15, v{lane}
    v_lshl_add_u32 v{t0}, v{t1}, 4, v{t0}
    v_and_b32 v{t1}, 16, v{lane}
    v_cmp_eq_u32 vcc, 0, v{t1}
    v_mov_b32 v{t1}, 0x{OOB:x}
    s_nop 1
    v_cndmask_b32 v{t0}, v{t0}, v{t1}, vcc
    v_and_b32 v{t1}, 27, v{lane}
    v_cmp_eq_u32 vcc, 0, v{t1}
    v_mov_b32 v{ON}, 0x3f803f80
    s_nop 1
    v_cndmask_b32 v{ON}, 0, v{ON}, vcc
    s_mov_b32 s{S_T0}, 0x{WS_KF:x}
LF_fb2:
    s_add_u32 s{S_T1}, s{S_T0}, 0x{WS_VF - WS_KF:x}
    buffer_load_dwordx4 {vr(K4,4)}, v{l16}, {WSR}, s{S_T0} offen sc1
    buffer_load_dwordx4 {vr(V8,4)}, v{t0}, {WSR}, s{S_T1} offen sc1
    buffer_load_dwordx4 {vr(V8+4,4)}, v{t0}, {WSR}, s{S_T1} offen offset:512 sc1
    s_waitcnt vmcnt(0)
    {mfma(S[0], K4, qf, CM)}
    {nl.join(f"v_or_b32 v{V8+r}, v{V8+r}, v{ON}" for r in range(8))}
    s_nop 7
    {nl.join(f"v_exp_f32 v{S[0]+r}, v{S[0]+r}" for r in range(16))}
    s_nop 1
    {nl.join(f"v_cvt_pk_bf16_f32 v{S[1]+r}, v{S[0]+2*r}, v{S[0]+2*r+1}" for r in range(8))}
    s_nop 1
    {mfma(O[0], V8, S[1], O[0])}
    {mfma(O[0], V8+4, S[1]+4, O[0])}
    s_add_u32 s{S_T0}, s{S_T0}, 1024
    s_cmp_lt_u32 s{S_T0}, 0x{WS_KF + 65536:x}
    s_cbranch_scc1 LF_fb2
    s_nop 15
    s_branch LF_fbr
"""
    SL.add(fbk)
    for n in ("Sa", "Sb", "Oa", "qf", "fk", "fv1", "fv2"): V.release(n)
    ob = V.alloc("ob", 32); wa = [V.alloc(f"wa{u}", 8) for u in range(8)]
    def oloads(g): return [f"buffer_load_dwordx4 {vr(ob+16*g+4*u,4)}, v{l16}, {WSR}, s{[S_OL,S_OL2][g]} offen offset:{1024*u} sc1" for u in range(4)]
    def ocheck(g):
        b = ob + 16 * g
        L = [f"v_max3_u32 v{t0}, v{b}, v{b+1}, v{b+2}"]
        for k in range(3, 15, 2): L.append(f"v_max3_u32 v{t0}, v{b+k}, v{b+k+1}, v{t0}")
        L += [f"v_max_u32 v{t0}, v{b+15}, v{t0}", f"v_cmp_eq_u32 vcc, -1, v{t0}"]
        return L
    fa2 = V.alloc("ffa2", 8)
    wr = []
    for u in range(8):
        for d, v in ((0, vt0), (1, vt1)):
            wr.append([f"ds_read_b64_tr_b16 {vr(wa[u]+4*d,2)}, v{v} offset:{u*2048}", f"ds_read_b64_tr_b16 {vr(wa[u]+4*d+2,2)}, v{v} offset:{u*2048+1024}"])
    r0 = nxt["r"]; assert nxt["d"] == 0 and not dq
    def tr_reads(r, d):
        o = (4 * r % 64) * 2048; hi = o >> 16; o &= 0xffff; f = [fa, fa2][(r - r0) % 2] + 4 * d
        P(f"ds_read_b64_tr_b16 {vr(f,2)}, v{vA[d][hi]} offset:{o}")
        P(f"ds_read_b64_tr_b16 {vr(f+2,2)}, v{vA[d][hi]} offset:{o+1024}")
    if r0 + 1 < 22: tr_reads(r0 + 1, 0); tr_reads(r0 + 1, 1)
    OL = min(r0 + OPT.get("ol", 99), 22)
    for r in range(r0, 22):
        if r == OL:
            for g in range(2):
                for x in oloads(g): P(x)
        for d in range(2):
            P(mfma([facc, facc1][d], [fa, fa2][(r - r0) % 2] + 4 * d, hb[r % NB], [facc, facc1][d]))
            if r + 2 < 22: tr_reads(r + 2, d)
            elif wr:
                for g in wr[:4]:
                    for x in g: P(x)
                del wr[:4]
    for g in wr:
        for x in g: P(x)
    assert 22 - r0 <= NB and r0 >= 16
    if OPT.get("oab", 1): P.wait_lgkm_all(); P("s_barrier")
    if OL == 22:
        for g in range(2):
            for x in oloads(g): P(x)
    P(f"v_sub_f32 v{t1}, 1.0, v{vg}")
    P(f"v_mov_b32 v{t0}, v{t1}")
    assert t1 == t0 + 1 and t0 % 2 == 0
    for r in range(0, 16, 2): P(f"v_pk_mul_f32 v[{facc+r}:{facc+r+1}], v[{facc+r}:{facc+r+1}], v[{t0}:{t1}]")
    for r in range(0, 16, 2): P(f"v_pk_mul_f32 v[{facc1+r}:{facc1+r+1}], v[{facc1+r}:{facc1+r+1}], v[{t0}:{t1}]")
    if not OPT.get("oab", 1): P.wait_lgkm_all(); P("s_barrier")
    stamp(P, 8)
    nl = "\n    "
    for g in range(2):
        k = SL.n; SL.n += 1
        for x in ocheck(g): P(x)
        P(f"s_cbranch_vccnz LS{k}")
        P(f"LR{k}:")
        SL.add(f"""LS{k}:
    s_mov_b32 s{S_T7}, 0
LS{k}_p:
    s_sleep {OPT.get("osl", 2)}
    s_mov_b64 exec, 0xf
    buffer_load_dword v{vp}, v{vpa}, {WSR}, s{[S_OL,S_OL2][g]} offen offset:1020 sc1
    s_waitcnt vmcnt(0)
    v_cmp_eq_u32 vcc, -1, v{vp}
    s_mov_b64 exec, -1
    s_add_u32 s{S_T7}, s{S_T7}, 1
    s_cmp_ge_u32 s{S_T7}, 0x{SPIN_MAX:x}
    s_cbranch_scc1 LR{k}
    s_cbranch_vccnz LS{k}_p
    {nl.join(oloads(g))}
    s_waitcnt vmcnt(0)
    {nl.join(ocheck(g))}
    s_cbranch_vccnz LS{k}_p
    s_nop 1
    s_branch LR{k}
""")
        for u in range(4 * g, 4 * g + 4):
            P(mfma(facc1, wa[u] + 4, ob + 4 * u, facc1))
    W1 = [f"ds_write_b128 v{vw[b-1]}, {vr(src+4*i,4)} offset:{2048*(b-1) + 1024*i}" for b, src in ((2, facc1), (3, facc1 + 8)) for i in range(2)]
    for u in range(8):
        P(mfma(facc, wa[u], ob + 4 * u, facc))
        if u >= 3 and W1:
            if u == 3: P("s_nop 7")
            P(W1.pop(0))
    stamp(P, 9)
    for b, src in ((1, facc + 8),):
        for i in range(2): P(f"ds_write_b128 v{vw[b-1]}, {vr(src+4*i,4)} offset:{2048*(b-1) + 1024*i}")
    P.wait_lgkm_all()
    P("s_barrier")
    for i in range(6): P(f"ds_read_b128 {vr(ob+4*i,4)}, v{vrd} offset:{1024*i}")
    for b in range(3):
        for r in range(8): P(f"v_add_f32 v{facc+r}, v{facc+r}, v{ob+8*b+r}")
    for r in range(4): P(f"v_cvt_pk_bf16_f32 v{facc1+r}, v{facc+2*r}, v{facc+2*r+1}")
    P(f"v_permlane32_swap_b32 v{facc1}, v{facc1+2}")
    P(f"v_permlane32_swap_b32 v{facc1+1}, v{facc1+3}")
    P(f"buffer_store_dwordx4 {vr(facc1,4)}, v{vo}, s[{S_OUT}:{S_OUT+3}], s{S_OO} offen")
    if STAMP["on"]:
        P.wait_vm_all(); stamp(P, 10); stamp_dump(P, lane)
        if OPT.get("dbgst") is not None:
            P(f"s_cmp_lg_u32 s2, {OPT['dbgst']}")
            P("s_cbranch_scc1 LF_end")
            P(f"s_cmp_lg_u32 s{S_W}, {OPT.get('dbgw', 0)}")
            P("s_cbranch_scc1 LF_end")
            P(f"v_subrev_u32 v{VSTAMP}, s100, v{VSTAMP}")
            P("s_mov_b64 exec, 0x7fff")
            P(f"buffer_store_dword v{VSTAMP}, v1, s[{S_DBG}:{S_DBG+3}], 0 offen offset:4")
    P("LF_end:")
    P("s_endpgm")
    name = NAME + "_kernel"
    body, I = finalize(P)
    txt = f".text\n.globl {name}\n.p2align 8\n.type {name},@function\n{name}:\n" + body + "".join(SL.txt) + "LF_last:\n    s_endpgm\n"
    vg_ = 256 if STAMP["on"] else max(V.hi, 8)
    txt += KD.format(name=name, vgpr=vg_, sgpr=102 if STAMP['on'] else 96, accum=(vg_ + 3) // 4 * 4)
    return txt, I, vg_


if __name__ == "__main__":
    out = sys.argv[1]
    STAMP["on"] = "stamp" in sys.argv
    for a in sys.argv[2:]:
        if "=" in a: k, v = a.split("="); OPT[k] = int(v)
        else: OPT[a] = True
    import asmlib; asmlib.MERGE_D = OPT.get("md", 9)
    t, I, vg_ = kernel_F()
    hdr = HEADER + f"; @launch grid=(256,1,1) block=(512,1,1) lds={LDS_BYTES}\n" + '.amdgcn_target "amdgcn-amd-amdhsa--gfx950"\n'
    open(out, "w").write(hdr + t)
    import subprocess
    r = subprocess.run(["clang", "-x", "assembler", "-target", "amdgcn-amd-amdhsa", "-mcpu=gfx950", "-c", out, "-o", "_chk.o"], capture_output=True, text=True)
    if r.returncode: print("ASM ERROR", r.stderr[:500])
    print("insts", len(I), "vgpr", vg_, "nops", sum(1 for x in I if x.kind == "nop"))
```

```python
import sys, re
from parts import *
OPT = {}
S_NONCE = 93
S_HP, S_KH = 30, 31
SH = [4, 5, 6]
S_FS, S_FP, S_OD, S_OL = 7, 8, 9, 10
S_FW, S_FB, S_FL, S_FL2 = 12, 13, 14, 15
S_OO, S_OL2 = 11, 18
S_VM = 28
S_PM = 16
FL_KV, FL_H = WS_FLAG, WS_FLAG + 8192
WKV_L = KV_RING
QSCR = KV_RING + 8192
FSLOT = [0, 32768, 65536, 98304]
WO_CH = [98304, 114688, 0, 32768]
SC1 = " sc1"
SPIN_MAX = 1 << 22
WSR = f"s[{S_WS}:{S_WS+3}]"


class Slow:
    def __init__(self): self.txt = []; self.n = 0
    def add(self, t): self.txt.append(t)


LOADS = {}
def wq_pieces(P, vsl, s_first, n, label, rot):
    P(f"s_and_b32 s{S_T6}, s{S_G}, 7")
    if rot > 1: P(f"s_mul_i32 s{S_T6}, s{S_T6}, {rot}")
    P(f"s_add_u32 s{S_T5}, s{S_T6}, {n}")
    P(f"s_lshl_b32 s{S_T7}, s{S_J}, 7")
    P(f"{label}:")
    P(f"s_and_b32 s{S_T4}, s{S_T6}, {n-1}")
    P(f"s_add_u32 s{S_T4}, s{S_T4}, s{s_first}")
    P(f"s_mul_i32 s{S_T0}, s{S_T4}, 171")
    P(f"s_lshr_b32 s{S_T0}, s{S_T0}, 12")
    P(f"s_lshl_b32 s{S_T1}, s{S_T4}, 2")
    P(f"s_add_u32 s{S_T0}, s{S_T0}, s{S_T1}")
    P(f"s_lshl_b32 s{S_T0}, s{S_T0}, 8")
    P(f"s_add_u32 m0, s{S_T0}, 0x{SLOT[0]:x}")
    P(f"s_lshl_b32 s{S_T2}, s{S_T4}, 13")
    P(f"s_add_u32 s{S_T2}, s{S_T2}, s{S_T7}")
    P(f"s_add_u32 s{S_T6}, s{S_T6}, 1")
    P(f"buffer_load_dwordx4 v{vsl}, s[{S_WQ}:{S_WQ+3}], s{S_T2} offen lds")
    P.I[-1].kind = "salu"
    P(f"s_cmp_lg_u32 s{S_T6}, s{S_T5}")
    P(f"s_cbranch_scc1 {label}")


def emit_loads(P, l16, vsl, sfx):
    if sfx == "h":
        P(f"s_lshr_b32 s{S_T4}, s{S_J}, 1")
        P(f"s_lshl_b32 s{S_T4}, s{S_T4}, 4")
        P(f"s_mul_i32 s{S_T1}, s{S_W}, 12")
        P(f"s_add_u32 s{S_T4}, s{S_T4}, s{S_T1}")
        P(f"s_add_u32 s{S_T4}, s{S_T4}, 16")
        P(f"s_lshl_b32 s{S_T0}, s{S_G}, 16")
        P(f"s_and_b32 s{S_T6}, s{S_J}, 3")
        P(f"s_mul_i32 s{S_T6}, s{S_T6}, 3")
        P(f"s_mov_b32 s{S_T5}, 12")
        mk_srd(P, S_X, 4, SZ["x"])
        P("LF_ldx1:")
        P(f"s_add_u32 s{S_T1}, s{S_T6}, s{S_T4}")
        P(f"s_and_b32 s{S_T1}, s{S_T1}, 63")
        P(f"s_mul_i32 m0, s{S_T1}, {X_STRIDE}")
        P(f"s_lshl_b32 s{S_T2}, s{S_T1}, 10")
        P(f"s_add_u32 s{S_T2}, s{S_T2}, s{S_T0}")
        P(f"s_add_u32 s{S_T6}, s{S_T6}, 1")
        P(f"s_cmp_eq_u32 s{S_T6}, 12")
        P(f"s_cselect_b32 s{S_T6}, 0, s{S_T6}")
        P(f"buffer_load_dwordx4 v{l16}, s[{S_X}:{S_X+3}], s{S_T2} offen lds", tag="q")
        P(f"s_sub_u32 s{S_T5}, s{S_T5}, 1")
        P(f"s_cmp_lg_u32 s{S_T5}, 0")
        P("s_cbranch_scc1 LF_ldx1")
    else:
        mk_srd(P, S_WQ, 6, SZ["wq"])
        P(f"s_and_b32 s{S_T3}, s{S_W}, 3")
        P(f"s_lshl_b32 s{S_T3}, s{S_T3}, 3")
        wq_pieces(P, vsl, S_T3, 8, "LF_ldq1", 1)
        P(f"s_add_u32 s{S_T3}, s{S_T3}, 24")
        wq_pieces(P, vsl, S_T3, 8, "LF_ldq2", 1)


def prologue_f(P, V, endlabel):
    if STAMP["on"]: P("s_memrealtime s[100:101]")
    P("s_cmp_ge_u32 s2, 256")
    P(f"s_cbranch_scc1 {endlabel}")
    P("s_load_dwordx16 s[4:19], s[0:1], 0")
    P("s_load_dwordx8 s[20:27], s[0:1], 64")
    P("s_load_dwordx2 s[28:29], s[0:1], 96")
    lane = V.alloc("lane"); l16 = V.alloc("l16")
    P(f"v_lshrrev_b32 v1, 6, v0")
    P(f"v_and_b32 v{lane}, 63, v0")
    P(f"v_readfirstlane_b32 s{S_W}, v1")
    P(f"v_lshlrev_b32 v{l16}, 4, v{lane}")
    P(f"s_lshr_b32 s{S_T0}, s2, 3")
    if OPT.get("jrot"): P(f"s_add_u32 s{S_J}, s{S_T0}, {OPT['jrot']}"); P(f"s_and_b32 s{S_J}, s{S_J}, 3")
    else: P(f"s_and_b32 s{S_J}, s{S_T0}, 3")
    P(f"s_and_b32 s{S_T1}, s2, 1")
    P(f"s_lshl_b32 s{S_T1}, s{S_T1}, 2")
    P(f"s_add_u32 s{S_J}, s{S_J}, s{S_T1}")
    P(f"s_and_b32 s{S_G}, s2, 6")
    P(f"s_lshl_b32 s{S_G}, s{S_G}, 2")
    P(f"s_lshr_b32 s{S_T0}, s{S_T0}, 2")
    P(f"s_add_u32 s{S_G}, s{S_G}, s{S_T0}")
    t0 = V.alloc("t0"); t1 = V.alloc("t1")
    vsl = slice_pattern(P, V, lane, t0)
    LOADS["f"] = lambda sfx: emit_loads(P, l16, vsl, sfx)
    P(f"s_and_b32 s{S_TT}, s{S_W}, 1")
    P(f"s_lshl_b32 s{S_TILE}, s{S_G}, 1")
    P(f"s_add_u32 s{S_TILE}, s{S_TILE}, s{S_TT}")
    P(f"s_lshr_b32 s{S_HP}, s{S_W}, 1")
    P(f"s_and_b32 s{S_HP}, s{S_HP}, 1")
    P(f"s_lshr_b32 s{S_KH}, s{S_W}, 2")
    assert all((p * 171) >> 12 == p // 24 for p in range(64)) and SLOT_SZ == 3 * 8192 + 256
    return lane, l16, t0, t1, vsl


def rest_srds(P):
    P(f"s_cmp_eq_u32 s{S_TT}, 0")
    P(f"s_cselect_b32 s{S_WM}, s16, s18")
    P(f"s_cselect_b32 s{S_WM+1}, s17, s19")
    P(f"s_and_b32 s{S_WM+1}, s{S_WM+1}, 0xffff")
    P(f"s_mov_b32 s{S_WM+2}, 0x{SZ['wg']:x}")
    P(f"s_mov_b32 s{S_WM+3}, 0x20000")
    mk_srd(P, S_OUT, 24, SZ["out"])
    mk_srd(P, S_WO, 12, SZ["wo"])
    mk_srd(P, S_WD, 20, SZ["wd"])


def nonce_check(P, SL, vn, vz):
    k = SL.n; SL.n += 1
    P(f"v_readfirstlane_b32 s{S_NONCE}, v{vn}")
    P(f"s_cmp_eq_u32 s{S_NONCE}, 0")
    P(f"s_cbranch_scc1 LS{k}")
    P(f"LR{k}:")
    SL.add(f"""LS{k}:
    s_mov_b32 s{S_T7}, 0
LS{k}_l:
    s_sleep 2
    buffer_load_dword v{vn}, v{vz}, s[{S_DBG}:{S_DBG+3}], 0 offen sc1
    s_waitcnt vmcnt(0)
    v_readfirstlane_b32 s{S_NONCE}, v{vn}
    s_add_u32 s{S_T7}, s{S_T7}, 1
    s_cmp_ge_u32 s{S_T7}, 0x{SPIN_MAX:x}
    s_cbranch_scc1 LR{k}
    s_cmp_eq_u32 s{S_NONCE}, 0
    s_cbranch_scc1 LS{k}_l
    s_branch LR{k}
""")


def flag_load(vf, n, vaddr, soff):
    op = {1: "buffer_load_dword", 4: "buffer_load_dwordx4"}[n]
    return f"{op} {vr(vf,n)}, v{vaddr}, {WSR}, {soff} offen sc1"


def flag_cmp(vf, n, t):
    L = [f"v_xor_b32 v{t}, s{S_NONCE}, v{vf}"]
    for i in range(1, n):
        L += [f"v_xor_b32 v{vf+i}, s{S_NONCE}, v{vf+i}", f"v_or_b32 v{t}, v{t}, v{vf+i}"]
    L += [f"v_cmp_ne_u32 vcc, 0, v{t}"]
    return L


def spin_check(P, SL, loads, cmps, sleep=1):
    k = SL.n; SL.n += 1
    for x in cmps: P(x)
    P(f"s_cbranch_vccnz LS{k}")
    P(f"LR{k}:")
    nl = "\n    "
    SL.add(f"""LS{k}:
    s_mov_b32 s{S_T7}, 0
LS{k}_l:
    {f"s_sleep {sleep}" if sleep else "s_nop 0"}
    {nl.join(loads)}
    s_waitcnt vmcnt(0)
    {nl.join(cmps)}
    s_add_u32 s{S_T7}, s{S_T7}, 1
    s_cmp_ge_u32 s{S_T7}, 0x{SPIN_MAX:x}
    s_cbranch_scc1 LR{k}
    s_cbranch_vccnz LS{k}_l
    s_nop 1
    s_branch LR{k}
""")


def flag_store(P, vz, t, soff):
    P(f"v_mov_b32 v{t}, s{S_NONCE}")
    P("s_mov_b64 exec, 1")
    P(f"buffer_store_dword v{t}, v{vz}, {WSR}, s{soff} offen sc1", tag="flag")
    P("s_mov_b64 exec, -1")


PROG = MISC + 1024
class SplitBar:
    def __init__(self, P, V, SL, lane, t0):
        self.P, self.SL, self.n = P, SL, 0
        self.va = V.alloc("sba"); self.vr = V.alloc("sbr"); self.one = V.alloc("sb1"); self.vg = V.alloc("sbg")
        P(f"s_lshl_b32 s{S_T0}, s{S_W}, 8")
        P(f"s_add_u32 s{S_T0}, s{S_T0}, 0x{PROG:x}")
        P(f"v_lshlrev_b32 v{t0}, 2, v{lane}")
        P(f"v_add_u32 v{self.va}, s{S_T0}, v{t0}")
        P(f"v_and_b32 v{t0}, 7, v{lane}")
        P(f"v_mul_u32_u24 v{t0}, 260, v{t0}")
        P(f"v_add_u32 v{self.vr}, 0x{PROG:x}, v{t0}")
        P(f"v_mov_b32 v{self.one}, 0")
        P(f"ds_write_b32 v{self.va}, v{self.one}")
        P(f"v_mov_b32 v{self.one}, 1")
    def arrive(self):
        self.n += 1
        self.P(f"ds_add_u32 v{self.va}, v{self.one}")
    def peek(self): self.P(f"ds_read_b32 v{self.vg}, v{self.vr}")
    def check(self):
        k = self.SL.n; self.SL.n += 1
        self.P(f"v_cmp_gt_u32 vcc, {self.n}, v{self.vg}")
        self.P(f"s_cbranch_vccz LR{k}")
        self.P(f"LS{k}:")
        for t in ([f"s_sleep {OPT['ssl']}"] if OPT.get("ssl") else []) + [f"ds_read_b32 v{self.vg}, v{self.vr}", "s_waitcnt lgkmcnt(0)", f"v_cmp_gt_u32 vcc, {self.n}, v{self.vg}", f"s_cbranch_vccnz LS{k}"]:
            self.P(t); self.P.I[-1].kind = "salu"; self.P.I[-1].vw = set(); self.P.I[-1].vr = set()
        self.P(f"LR{k}:")


def attn_setup(P, V, lane, l16, t0, t1):
    A = {}
    P(f"s_lshl_b32 s{S_T1}, s{S_KH}, 12")
    vk = V.alloc("vk"); vv = [V.alloc("vv0"), V.alloc("vv1")]
    P(f"s_add_u32 s{S_T1}, s{S_T1}, 0x{KV_RING:x}")
    P(f"v_add_u32 v{vk}, s{S_T1}, v{l16}")
    P(f"v_lshrrev_b32 v{t0}, 5, v{lane}")
    P(f"v_lshlrev_b32 v{t0}, 8, v{t0}")
    P(f"v_and_b32 v{t1}, 15, v{lane}")
    P(f"v_lshl_add_u32 v{t0}, v{t1}, 4, v{t0}")
    P(f"v_and_b32 v{t1}, 16, v{lane}")
    P(f"v_cmp_eq_u32 vcc, 0, v{t1}")
    P(f"s_add_u32 s{S_T1}, s{S_T1}, 2048")
    for s in range(2):
        P(f"v_mov_b32 v{t1}, s{S_T1}")
        P(f"v_add_u32 v{t1}, {8192*s}, v{t1}")
        P(f"v_mov_b32 v{vv[s]}, 0x{ONES:x}")
        P(f"v_cndmask_b32 v{vv[s]}, v{t1}, v{vv[s]}, vcc")
        P(f"v_add_u32 v{vv[s]}, v{vv[s]}, v{t0}")
    P(f"s_lshl_b32 s{S_KVOFF}, s{S_KH}, 15")
    P(f"s_lshl_b32 s{S_T1}, s{S_HP}, 16")
    P(f"s_add_u32 s{S_KVOFF}, s{S_KVOFF}, s{S_T1}")
    P(f"s_lshl_b32 s{S_T1}, s{S_TT}, 10")
    P(f"s_add_u32 s{S_KVOFF}, s{S_KVOFF}, s{S_T1}")
    P(f"s_lshl_b32 s{S_KVLDS}, s{S_W}, 10")
    P(f"s_add_u32 s{S_KVLDS}, s{S_KVLDS}, 0x{KV_RING:x}")
    A.update(vk=vk, vv=vv)
    A["S"] = [V.alloc("Sa", 16), V.alloc("Sb", 16)]
    A["O"] = [V.alloc("Oa", 16), V.alloc("Ob", 16)]
    A["fk"] = V.alloc("fk", 4); A["fv"] = [V.alloc("fv1", 4), V.alloc("fv2", 4)]
    A["q"] = V.alloc("qf", 8)
    return A


def kv_dma(P, l16, c):
    dma(P, l16, S_WS, f"s{S_T2}", (S_KVLDS, 8192 * (c & 1)), tag=f"kv{c}", mods=SC1, pre=[f"s_add_u32 s{S_T2}, s{S_KVOFF}, {2048*c}"])


def attention(P, A, l16, its, hook, prio, kvf=None, bb=1):
    S, O, fk, fv = A["S"], A["O"], A["fk"], A["fv"]
    SB = OPT.get("sb", 0)
    q = [A["q"], A["q"] + 4]
    def rdK(it): P(f"ds_read_b128 {vr(fk,4)}, v{A['vk']} offset:{((it>>1)&1)*8192 + (it&1)*1024}")
    def rdV(it, half):
        m = OPT.get("vmask", 1) and it > 0
        if m: P(f"s_mov_b64 exec, s[{S_VM}:{S_VM+1}]")
        P(f"ds_read_b128 {vr(fv[half],4)}, v{A['vv'][(it>>1)&1]} offset:{(it&1)*1024 + half*512}")
        if m: P("s_mov_b64 exec, -1")
    E = lambda x, i: P(f"v_exp_f32 v{S[x]+i}, v{S[x]+i}")
    def C(x, i):
        b = S[x] + (8 if i >= 4 else 0); k = i & 3
        P(f"v_cvt_pk_bf16_f32 v{b+k}, v{b+2*k}, v{b+2*k+1}")
    for it in its:
        if it == 0:
            if OPT.get("vmask", 1): P(f"s_mov_b32 s{S_VM}, 0xffff0000"); P(f"s_mov_b32 s{S_VM+1}, 0xffff0000")
            rdK(0); rdV(0, 0)
            hook(0, 0, "start")
            P(mfma(S[0], fk, q[0]))
        for x in range(2):
            H = lambda pos: hook(it, x, pos)
            E(x, 0); E(x, 1)
            if x == 0:
                if it > 0: P(mfma(O[1], fv[1], S[1] + 8, O[1]))
                rdV(it, 1)
            else:
                P(mfma(O[0], fv[1], S[0] + 8, O[0]))
            H("pv2")
            E(x, 2); E(x, 3); H("g1")
            E(x, 4); E(x, 5); H("g2")
            E(x, 6); E(x, 7)
            if bb:
                H("g3")
                for i in range(4): C(x, i)
            if x == 0: P(mfma(S[1], fk, q[1]))
            elif it < 31: P(mfma(S[0], fk, q[0]))
            H("qk")
            sig = (x == 0 and (it & 1) and it < 31)
            syn = sig or (x == 0 and hook(it, x, "sync?"))
            ORD = OPT.get("ord", 2) if syn else 0
            if bb:
                E(x, 8); E(x, 9); H("g4")
                E(x, 10); E(x, 11)
                if ORD == 2: P(mfma(O[x], fv[0], S[x], None if it == 0 else O[x]))
            else:
                for i in range(4): C(x, i)
                if ORD == 0: H("g3")
                E(x, 8); E(x, 9)
                if ORD == 2: P(mfma(O[x], fv[0], S[x], None if it == 0 else O[x])); H("g3")
            if syn:
                H("pre0")
                if sig: P.wait_tag(f"kv{(it>>1)+1}")
                H("pre")
                P.wait_lgkm_all()
                P("s_barrier")
            if ORD != 2: P(mfma(O[x], fv[0], S[x], None if it == 0 else O[x]))
            p = prio(it, x)
            if p is not None: P(f"s_setprio {p}")
            if x == 0:
                if it < 31: rdK(it + 1)
                if (it & 1) and (it >> 1) + 2 < 16: (kvf or (lambda c: kv_dma(P, l16, c)))((it >> 1) + 2)
                if syn: hook(it, 0, "chk")
            else:
                if it < 31: rdV(it + 1, 0)
            H("pv1")
            if not bb: E(x, 10); E(x, 11); H("g4")
            E(x, 12); E(x, 13); H("g5")
            E(x, 14); E(x, 15); H("g6")
            for i in range(4, 8): C(x, i)
        if it == 31: P(mfma(O[1], fv[1], S[1] + 8, O[1]))


def fin_dma_w1(P, vsl, st, slot, tag, i):
    srd, u0 = (S_WD, 8 * st) if st < 11 else (S_WO, 8 * (st - 11))
    dma(P, vsl, srd, f"s{S_T2}", (S_FL2, slot + 1024 * i), tag=tag, pre=[f"s_add_u32 s{S_T2}, s{S_FW}, 0x{(16*u0 + 8*i)*1024:x}"])


def fin_dma_w2(P, vsl, st, slot, tag, i, other):
    dma(P, vsl, S_WD, f"s{S_T2}", (S_FL2, (slot + 1024 * i - 8192 * other) & 0xffffffff), tag=tag,
        pre=[f"s_add_u32 s{S_T2}, s{S_FW}, 0x{((128*st + 8*i)*1024 - 65536*other) & 0xffffffff:x}"])


def fin_dma_b1(P, l16, st, slot, tag, t):
    P(f"s_add_u32 s{S_T2}, s{S_FB}, 0x{(t*118 + 8*st)*1024:x}")
    if st == 10:
        P(f"s_cmp_lt_u32 s{S_W}, 6")
        P(f"s_cselect_b32 s{S_T2}, s{S_T2}, 0x{OOB:x}")
    dma(P, l16, S_WS, f"s{S_T2}", (S_FL, slot + 16384 + 8192 * t), tag=tag, mods=SC1)


def kernel_F():
    P = Prog(); V = Regs(2, 255, "v"); SL = Slow()
    NP = OPT.get("np", 1)
    JIT = 16 - NP
    GPP = OPT.get("gpp", 2)
    UNI = OPT.get("uni", JIT + 2)
    HF = OPT.get("hf", UNI | 1)
    lane, l16, t0, t1, vsl = prologue_f(P, V, "LF_end")
    vz = V.alloc("vz")
    P(f"s_cmp_lg_u32 s{S_W}, 7")
    P("s_cbranch_scc1 LF_not7")
    P(f"s_lshr_b32 s{S_T4}, s{S_J}, 1")
    P(f"s_lshl_b32 s{S_T0}, s{S_G}, 16")
    P(f"s_lshl_b32 s{S_T2}, s{S_T4}, 14")
    P(f"s_add_u32 s{S_T2}, s{S_T2}, s{S_T0}")
    P(f"s_mul_i32 m0, s{S_T4}, {16*X_STRIDE}")
    P(f"s_and_b32 s{S_T3}, s{S_J}, 1")
    P(f"s_mov_b32 s{S_T5}, 0")
    P("s_waitcnt lgkmcnt(0)")
    mk_srd(P, S_X, 4, SZ["x"])
    if OPT.get("u7", 1):
        P(f"s_sub_u32 s{S_X}, s{S_X}, 64")
        P(f"s_subb_u32 s{S_X+1}, s{S_X+1}, 0")
        P(f"s_mov_b32 s{S_X+2}, 0x{SZ['x'] + 64:x}")
        P(f"s_add_u32 s{S_T2}, s{S_T2}, 64")
        for g in range(4):
            for k in range(4):
                if k == 0:
                    if g: P(f"s_add_u32 m0, m0, {4*X_STRIDE}"); P(f"s_add_u32 s{S_T2}, s{S_T2}, {4096 + 48}")
                else: P(f"s_sub_u32 s{S_T2}, s{S_T2}, 16")
                P(f"buffer_load_dwordx4 v{l16}, s[{S_X}:{S_X+3}], s{S_T2} offen offset:{X_STRIDE*k} lds", tag="c")
    else:
        P("LF_ldx7:")
        P(f"buffer_load_dwordx4 v{l16}, s[{S_X}:{S_X+3}], s{S_T2} offen lds", tag="c")
        P(f"s_add_u32 m0, m0, {X_STRIDE}")
        P(f"s_add_u32 s{S_T2}, s{S_T2}, 1024")
        P(f"s_add_u32 s{S_T5}, s{S_T5}, 1")
        P(f"s_cmp_lg_u32 s{S_T5}, 16")
        P("s_cbranch_scc1 LF_ldx7")
    P(f"s_cmp_eq_u32 s{S_T3}, 0")
    P(f"s_cselect_b32 s{S_WKV}, s8, s10")
    P(f"s_cselect_b32 s{S_WKV+1}, s9, s11")
    P(f"s_and_b32 s{S_WKV+1}, s{S_WKV+1}, 0xffff")
    P(f"s_mov_b32 s{S_WKV+2}, 0x{SZ['wk']:x}")
    P(f"s_mov_b32 s{S_WKV+3}, 0x20000")
    P(f"s_mov_b32 m0, 0x{WKV_L:x}")
    P(f"s_mov_b32 s{S_T5}, 0")
    P("LF_ldw7:")
    for i in range(4):
        P(f"buffer_load_dwordx4 v{l16}, s[{S_WKV}:{S_WKV+3}], s{S_T5} offen offset:{1024*i} lds")
        P.I[-1].kind = "salu"
    P(f"s_add_u32 m0, m0, 4096")
    P(f"s_add_u32 s{S_T5}, s{S_T5}, 4096")
    P(f"s_cmp_lg_u32 s{S_T5}, 16384")
    P("s_cbranch_scc1 LF_ldw7")
    stamp(P, 15)
    P("s_barrier")
    P("LF_not7:")
    P("s_waitcnt lgkmcnt(0)")
    if OPT.get("cpf", 1):
        c = V.alloc("cpf")
        P(f"s_getpc_b64 s[{S_EX}:{S_EX+1}]")
        P("LF_pc0:")
        P(f"s_lshr_b32 s{S_T3}, s2, 3")
        P(f"s_lshl_b32 s{S_T3}, s{S_T3}, 3")
        P(f"s_add_u32 s{S_T3}, s{S_T3}, s{S_W}")
        P(f"s_lshl_b32 s{S_T3}, s{S_T3}, 8")
        P(f"v_lshlrev_b32 v{c}, 7, v{lane}")
        P(f"v_add_u32 v{c}, s{S_T3}, v{c}")
        P(f"v_min_u32 v{c}, LF_last-LF_pc0, v{c}")
        P("s_mov_b64 exec, 3")
        P(f"global_load_dword v{c}, v{c}, s[{S_EX}:{S_EX+1}]", tag="cpf")
        P("s_mov_b64 exec, -1")
    P(f"v_mov_b32 v{vz}, 0")
    mk_srd(P, S_WS, 28, SZ["ws"])
    mk_srd(P, S_DBG, 26, SZ["dbg"])
    vn = V.alloc("vn")
    P(f"s_or_b32 s{S_T0}, s2, s{S_W}")
    P(f"s_cmp_lg_u32 s{S_T0}, 0")
    P("s_cbranch_scc1 LF_non")
    P.cond_begin()
    P(f"s_memrealtime s[{S_EX}:{S_EX+1}]")
    P("s_waitcnt lgkmcnt(0)")
    P(f"s_mul_i32 s{S_EX+1}, s{S_EX+1}, 0x9e3779b1")
    P(f"s_xor_b32 s{S_EX}, s{S_EX}, s{S_EX+1}")
    P(f"s_or_b32 s{S_EX}, s{S_EX}, 1")
    P(f"v_mov_b32 v{t0}, s{S_EX}")
    P("s_mov_b64 exec, 1")
    P(f"buffer_store_dword v{t0}, v{vz}, s[{S_DBG}:{S_DBG+3}], 0 offen sc1")
    P("s_mov_b64 exec, -1")
    P.cond_end()
    P("LF_non:")
    P_main = P; P = Prog()
    rest_srds(P)
    mk_srd(P, S_GW, 22, SZ["gw"])
    P(f"s_mov_b32 s{S_C1}, {hexf(2.0**120)}")
    A = attn_setup(P, V, lane, l16, t0, t1)
    qf = A["q"]; O = A["O"]; S = A["S"]
    A["sb"] = SplitBar(P, V, SL, lane, t0) if OPT.get("sb", 0) else type("X", (), dict(n=0))()
    vfl = V.alloc("vfl", 4)
    P(f"s_lshl_b32 s{S_T0}, s{S_HP}, 1")
    P(f"s_add_u32 s{S_T0}, s{S_T0}, s{S_KH}")
    P(f"s_lshl_b32 s{S_T1}, s{S_J}, 2")
    P(f"s_add_u32 s{S_T0}, s{S_T0}, s{S_T1}")
    P(f"s_mul_i32 s{S_T1}, s{S_TILE}, 118")
    P(f"s_add_u32 s{S_T0}, s{S_T0}, s{S_T1}")
    P(f"s_lshl_b32 s{S_T0}, s{S_T0}, 10")
    P(f"s_add_u32 s{S_OD}, s{S_T0}, 0x{WS_OH + 86*1024:x}")
    def poison():
        for r in range(4): P(f"v_mov_b32 v{O[0]+r}, -1")
        P(f"buffer_store_dwordx4 {vr(O[0],4)}, v{l16}, {WSR}, s{S_OD} offen sc1", tag="poison")
    P(f"s_lshr_b32 s{S_T0}, s{S_W}, 1")
    P(f"s_lshl_b32 s{S_T0}, s{S_T0}, 3")
    P(f"s_add_u32 s{S_T0}, s{S_T0}, s{S_T1}")
    P(f"s_lshl_b32 s{S_T0}, s{S_T0}, 10")
    P(f"s_add_u32 s{S_OL}, s{S_T0}, 0x{WS_OH + 86*1024:x}")
    P(f"s_lshl_b32 s{S_FP}, s{S_G}, 10")
    P(f"s_lshl_b32 s{S_FS}, s{S_J}, 5")
    P(f"s_add_u32 s{S_FS}, s{S_FS}, s{S_W}")
    P(f"s_lshl_b32 s{S_FS}, s{S_FS}, 2")
    P(f"s_add_u32 s{S_FS}, s{S_FS}, s{S_FP}")
    P(f"s_add_u32 s{S_FS}, s{S_FS}, 0x{FL_H:x}")
    P(f"s_add_u32 s{S_FP}, s{S_FP}, 0x{FL_H:x}")
    P(f"s_lshl_b32 s{S_FW}, s{S_W}, 14")
    P(f"s_lshl_b32 s{S_T1}, s{S_J}, 7")
    P(f"s_add_u32 s{S_FW}, s{S_FW}, s{S_T1}")
    P(f"s_lshl_b32 s{S_FL2}, s{S_W}, 11")
    P(f"s_mul_i32 s{S_U0}, s{S_J}, 11")
    P(f"s_min_u32 s{S_U0}, s{S_U0}, 76")
    P(f"s_cmp_ge_u32 s{S_J}, 6")
    P(f"s_cselect_b32 s{S_NU}, 10, 11")
    vxa = xfrag_addr(P, V, "vxa", lane, t0, S_TT)
    vq = V.alloc("vq")
    P(f"s_and_b32 s{S_T0}, s{S_W}, 3")
    P(f"s_lshl_b32 s{S_T1}, s{S_T0}, 11")
    P(f"s_add_u32 s{S_T1}, s{S_T1}, 0x{QSCR:x}")
    P(f"v_add_u32 v{vq}, s{S_T1}, v{l16}")
    COMMON = P.I; P = P_main
    def emit(L):
        for x in L: P(x.text, tag=x.tag)
    iw = next(i for i, x in enumerate(COMMON) if x.text.startswith(f"s_mov_b32 s{S_WM+3},")) + 1
    iu = next(i for i, x in enumerate(COMMON) if x.text.startswith(f"s_mul_i32 s{S_U0},"))
    C_EARLY = COMMON[:iw] + COMMON[iu:iu + 4]; C_LATE = COMMON[iw:iu] + COMMON[iu + 4:]
    acc = [[V.alloc(f"acc{i}{t}", 16) for t in range(2)] for i in range(3)]
    fx = [[V.alloc(f"fx{b}{t}", 4) for t in range(2)] for b in range(2)]
    fw = [[V.alloc(f"fw{b}{i}", 4) for i in range(3)] for b in range(2)]
    S_PFB = 19
    def capture(f):
        nonlocal P
        P0 = P; P = Prog(); f(); L = P.I; P = P0
        return L
    R = {}
    def f1():
        vtn = tr_slice_addr(P, V, "vtn", lane, t0, t1, SLOT[0], S_HP, 8)
        vpf = V.alloc("vpf"); vpd = V.alloc("vpd"); vpw = V.alloc("vpw")
        P(f"v_bfe_u32 v{t0}, v{lane}, 4, 1")
        P(f"v_lshrrev_b32 v{t1}, 5, v{lane}")
        P(f"v_lshl_add_u32 v{t0}, v{t1}, 7, v{t0}")
        P(f"v_mul_u32_u24 v{vpf}, 2752, v{t0}")
        P(f"v_and_b32 v{t0}, 15, v{lane}")
        P(f"v_lshl_add_u32 v{vpf}, v{t0}, 7, v{vpf}")
        P(f"v_cmp_gt_u32 vcc, 12, v{t0}")
        P(f"v_mov_b32 v{t1}, 0x{OOB:x}")
        P(f"v_cndmask_b32 v{vpf}, v{t1}, v{vpf}, vcc")
        P(f"s_lshr_b32 s{S_T0}, s2, 3")
        P(f"s_lshl_b32 s{S_T0}, s{S_T0}, 1")
        P(f"s_add_u32 s{S_T0}, s{S_T0}, s{S_HP}")
        P(f"s_mul_i32 s{S_T0}, s{S_T0}, {2*2752}")
        P(f"s_and_b32 s{S_T1}, s2, 1")
        P(f"s_mul_i32 s{S_T1}, s{S_T1}, {44*32}")
        P(f"s_add_u32 s{S_PFB}, s{S_T0}, s{S_T1}")
        R.update(vtn=vtn, vpf=vpf, vpd=vpd, vpw=vpw)
    def f2():
        vx0 = V.alloc("vx0")
        P(f"s_mul_i32 s{S_T0}, s{S_TT}, {32*X_STRIDE}")
        P(f"v_subrev_u32 v{vx0}, s{S_T0}, v{vxa}")
        P(f"s_lshl_b32 s{S_T4}, s{S_W}, 1")
        wtr = w_tr_addrs(P, V, lane, t0, t1, s_w=S_T4)
        R.update(vx0=vx0, wtr=wtr)
    def f3():
        P(f"s_mul_i32 s{S_T0}, s{S_W}, 3")
        P(f"s_mul_i32 s{S_T1}, s{S_G}, 236")
        P(f"s_add_u32 s{S_T1}, s{S_T1}, s{S_U0}")
        for i in range(3):
            P(f"s_add_u32 s{S_T2}, s{S_T0}, {i}")
            P(f"s_add_u32 s{SH[i]}, s{S_T1}, s{S_T2}")
            P(f"s_lshl_b32 s{SH[i]}, s{SH[i]}, 10")
            P(f"s_add_u32 s{SH[i]}, s{SH[i]}, 0x{WS_OH:x}")
            P(f"s_cmp_lt_u32 s{S_T2}, s{S_NU}")
            P(f"s_cselect_b32 s{SH[i]}, s{SH[i]}, 0x{OOB:x}")
    def f4():
        vpw = R["vpw"]
        S_PFS = S_WKV
        P(f"s_lshr_b32 s{S_T0}, s2, 3")
        P(f"s_lshl_b32 s{S_T0}, s{S_T0}, 2")
        P(f"s_add_u32 s{S_T0}, s{S_T0}, s{S_W}")
        P(f"s_cmp_lt_u32 s{S_T0}, 86")
        P(f"s_cselect_b32 s{S_PFS}, s{S_WD}, s{S_WO}")
        P(f"s_cselect_b32 s{S_PFS+1}, s{S_WD+1}, s{S_WO+1}")
        P(f"s_cselect_b32 s{S_PFS+2}, s{S_WD+2}, s{S_WO+2}")
        P(f"s_cselect_b32 s{S_T1}, 0, 86")
        P(f"s_mov_b32 s{S_PFS+3}, 0x20000")
        P(f"s_sub_u32 s{S_T0}, s{S_T0}, s{S_T1}")
        P(f"s_lshl_b32 s{S_T0}, s{S_T0}, 14")
        P(f"s_and_b32 s{S_T1}, s2, 1")
        P(f"s_lshl_b32 s{S_T1}, s{S_T1}, 9")
        P(f"s_add_u32 s{S_T0}, s{S_T0}, s{S_T1}")
        P(f"v_lshrrev_b32 v{t0}, 2, v{lane}")
        P(f"v_lshlrev_b32 v{t0}, 10, v{t0}")
        P(f"v_and_b32 v{t1}, 3, v{lane}")
        P(f"v_lshl_add_u32 v{t0}, v{t1}, 7, v{t0}")
        P(f"v_add_u32 v{vpw}, s{S_T0}, v{t0}")
    ix = next(i for i, x in enumerate(COMMON) if x.text.startswith(f"v_and_b32 v{t0}, 31, v{lane}"))
    ia = next(i for i, x in enumerate(COMMON) if x.text.startswith(f"s_mov_b32 s{S_C1},")) + 1
    io = next(i for i, x in enumerate(COMMON) if x.text.startswith(f"s_lshl_b32 s{S_T0}, s{S_HP}, 1"))
    ifl = next(i for i, x in enumerate(COMMON) if x.text.startswith(f"s_lshl_b32 s{S_FP},"))
    H_PRE = COMMON[ix:ix + 6] + COMMON[:iw] + capture(f1)
    H_MID = COMMON[ia:io] + COMMON[ix + 6:] + capture(f2) + COMMON[io:ifl]
    H_LATE = [COMMON[iw:iw + 8], COMMON[iw + 8:ia], COMMON[ifl:iu], COMMON[iu:iu + 4]]
    sh = capture(f3); H_LATE += [sh[:9], sh[9:15], sh[15:]]
    wp = capture(f4); H_LATE += [wp[:14], wp[14:]]
    vtn, vpf, vpd, vpw, vx0, wtr = (R[k] for k in ("vtn", "vpf", "vpd", "vpw", "vx0", "wtr"))
    S_PFS = S_WKV
    def pf(blk, half):
        P(f"s_add_u32 s{S_T4}, s{S_PFB}, {128*2752*blk}")
        if half: P("s_mov_b64 exec, 0xffffffff")
        P(f"buffer_load_dword v{vpd}, v{vpf}, s[{S_WM}:{S_WM+3}], s{S_T4} offen", tag="pf")
        P.I[-1].vw = set()
        if half: P("s_mov_b64 exec, -1")
    PF = OPT.get("pf", 1)
    KT = 192; vx16 = 240; vw16 = 241; vst = 242; S_K5, S_K6 = S_T5, S_T6
    P(f"s_cmp_lg_u32 s{S_W}, 7")
    P("s_cbranch_scc1 LF_not7b")
    P.cond_begin()
    P(f"s_lshr_b32 s{S_T0}, s{S_J}, 1")
    P(f"s_lshl_b32 s{S_T1}, s{S_T0}, 4")
    P(f"v_and_b32 v{t0}, 15, v{lane}")
    P(f"v_add_u32 v{t1}, s{S_T1}, v{t0}")
    P(f"v_mul_u32_u24 v{vx16}, {X_STRIDE}, v{t1}")
    P(f"v_lshrrev_b32 v{t1}, 4, v{lane}")
    P(f"v_lshl_add_u32 v{vx16}, v{t1}, 4, v{vx16}")
    P(f"v_lshlrev_b32 v{vw16}, 8, v{t1}")
    P(f"v_lshl_add_u32 v{vw16}, v{t0}, 3, v{vw16}")
    P(f"v_add_u32 v{vw16}, 0x{WKV_L:x}, v{vw16}")
    P(f"s_and_b32 s{S_K6}, s{S_J}, 1")
    P(f"s_cmp_eq_u32 s{S_K6}, 0")
    P(f"s_cselect_b32 s{S_T3}, 9, 8")
    P(f"s_cselect_b32 s{S_T4}, 8, 9")
    P(f"s_cselect_b32 s{S_K5}, 0x{WS_KF:x}, 0x{WS_VF:x}")
    P(f"v_lshlrev_b32 v{vst}, 4, v{t0}")
    P(f"v_lshrrev_b32 v{t0}, 1, v{t1}")
    P(f"v_lshl_add_u32 v{vst}, v{t0}, 3, v{vst}")
    P(f"v_and_b32 v{t0}, 1, v{t1}")
    P(f"v_lshlrev_b32 v{t0}, s{S_T3}, v{t0}")
    P(f"v_add_u32 v{vst}, v{vst}, v{t0}")
    P(f"s_and_b32 s{S_T1}, s{S_T0}, 1")
    P(f"s_lshl_b32 s{S_T1}, s{S_T1}, s{S_T4}")
    P(f"s_add_u32 s{S_K5}, s{S_K5}, s{S_T1}")
    P(f"s_lshr_b32 s{S_T0}, s{S_T0}, 1")
    P(f"s_lshl_b32 s{S_T1}, s{S_G}, 1")
    P(f"s_add_u32 s{S_T0}, s{S_T0}, s{S_T1}")
    P(f"s_lshl_b32 s{S_T0}, s{S_T0}, 10")
    P(f"s_add_u32 s{S_K5}, s{S_K5}, s{S_T0}")
    P("s_waitcnt vmcnt(0)")
    P(f"buffer_load_dword v{vn}, v{vz}, s[{S_DBG}:{S_DBG+3}], 0 offen sc1")
    def kv16(which):
        d = KT
        xb = [(KT+16) + 4 * i for i in range(4)]; wb = [(KT+32) + 4 * i for i in range(4)]
        def ld(ks):
            P(f"ds_read_b128 {vr(xb[ks%4],4)}, v{vx16} offset:{ks*64}")
            P(f"ds_read_b64_tr_b16 {vr(wb[ks%4],2)}, v{vw16} offset:{ks*1024}")
            P(f"ds_read_b64_tr_b16 {vr(wb[ks%4]+2,2)}, v{vw16} offset:{ks*1024+128}")
        for ks in range(3): ld(ks)
        for ks in range(16):
            a, b = (wb[ks%4], xb[ks%4]) if which == 0 else (xb[ks%4], wb[ks%4])
            P(f"v_mfma_f32_16x16x32_bf16 {vr(d,4)}, {vr(a,4)}, {vr(b,4)}, {vr(d,4) if ks else 0}")
            if ks + 3 < 16: ld(ks + 3)
        if which == 0:
            P(f"s_mov_b32 s{S_T0}, {hexf(QK_SCALE)}")
            for r in range(4): P(f"v_mul_f32 v{d+r}, s{S_T0}, v{d+r}")
    P(f"s_cmp_eq_u32 s{S_K6}, 1")
    P("s_cbranch_scc1 LF_vch")
    P.cond_begin(); kv16(0); P.cond_end()
    P("s_branch LF_kvj")
    P("LF_vch:")
    P.cond_begin(); kv16(1); P.cond_end()
    P("LF_kvj:")
    for r in range(2): P(f"v_cvt_pk_bf16_f32 v{KT+4+r}, v{KT+2*r}, v{KT+2*r+1}")
    P(f"buffer_store_dwordx2 {vr(KT+4,2)}, v{vst}, {WSR}, s{S_K5} offen sc1")
    FB2 = OPT.get("fb2", 0)
    def w7flag():
        P(f"s_lshl_b32 s{S_T0}, s{S_G}, 3")
        P(f"s_add_u32 s{S_T0}, s{S_T0}, s{S_J}")
        P(f"s_lshl_b32 s{S_T0}, s{S_T0}, 2")
        P(f"s_add_u32 s{S_T0}, s{S_T0}, 0x{FL_KV:x}")
        P("s_waitcnt vmcnt(0)")
        nonce_check(P, SL, vn, vz)
        flag_store(P, vz, t0, S_T0)
    if not FB2: w7flag()
    def pf7():
        P(f"v_lshrrev_b32 v{t0}, 4, v{lane}")
        P(f"v_mul_u32_u24 v{vx16}, 2752, v{t0}")
        P(f"v_and_b32 v{t0}, 15, v{lane}")
        P(f"v_lshl_add_u32 v{vx16}, v{t0}, 7, v{vx16}")
        P(f"v_cmp_gt_u32 vcc, 12, v{t0}")
        P(f"v_mov_b32 v{t1}, 0x{OOB:x}")
        P(f"v_cndmask_b32 v{vx16}, v{t1}, v{vx16}, vcc")
        P(f"s_lshr_b32 s{S_T0}, s2, 3")
        P(f"s_mul_i32 s{S_T0}, s{S_T0}, {4*2752}")
        P(f"s_and_b32 s{S_T1}, s2, 1")
        P(f"s_mul_i32 s{S_T1}, s{S_T1}, {44*32}")
        P(f"s_add_u32 s{S_T0}, s{S_T0}, s{S_T1}")
        for m in range(2):
            mk_srd(P, S_WKV, 16 + 2 * m, SZ["wg"])
            P(f"buffer_load_dword v{fx[0][0]+m}, v{vx16}, s[{S_WKV}:{S_WKV+3}], s{S_T0} offen")
    if OPT.get("pf7", 1) == 1: pf7()
    stamp(P, 1)
    P("s_barrier")
    stamp(P, 2)
    if OPT.get("pf7", 1) == 2: pf7()
    if FB2 == 1: w7flag()
    P("s_barrier")
    if FB2 == 2: w7flag()
    P.cond_end(nowait=True)
    P("s_branch LF_light")
    P("LF_not7b:")
    P(f"s_cmp_lg_u32 s{S_KH}, 0")
    P("s_cbranch_scc1 LF_l0")

    def sigstamp(it, k):
        if OPT.get("sig"):
            P(f"s_memtime s[98:99]"); P("s_waitcnt lgkmcnt(0)"); P(f"v_writelane_b32 v{vsig}, s98, {2*it+k}")
    vsig = V.alloc("vsig") if OPT.get("sig") else None

    P.cond_begin()
    emit(H_PRE)
    stamp(P, 15)
    P("s_barrier")
    stamp(P, 0)
    LOADS["f"]("h")
    stamp(P, 1)
    if PF & 4: pf(0, True)
    P.wait_tag("q")
    P("s_barrier")
    stamp(P, 2)
    if PF & 2: pf(0, True)
    QD = 6
    xb = [acc[1][0] + 4 * i for i in range(QD)]; wb = [acc[2][0] + 4 * i for i in range(QD)]
    assert acc[1][1] == acc[1][0] + 16 and acc[2][1] == acc[2][0] + 16
    def q_loads(ks):
        o = SLOT[ks // 12] - SLOT[0] + (ks % 12) * 2048
        P(f"ds_read_b128 {vr(xb[ks%QD],4)}, v{vxa} offset:{ks*32}")
        P(f"ds_read_b64_tr_b16 {vr(wb[ks%QD],2)}, v{vtn} offset:{o}")
        P(f"ds_read_b64_tr_b16 {vr(wb[ks%QD]+2,2)}, v{vtn} offset:{o+512}")
    for ks in range(QD - 1): q_loads(ks)
    for ks in range(32):
        P(mfma(acc[0][0], wb[ks%QD], xb[ks%QD], acc[0][0] if ks else None))
        if ks in (11, 23):
            stamp(P, 11 if ks == 11 else 13)
            P("s_barrier")
        if ks + QD - 1 in (12, 24): P("s_barrier")
        if ks + QD - 1 < 32: q_loads(ks + QD - 1)
        nf = -(-len(H_MID) // 28)
        emit(H_MID[ks * nf:(ks + 1) * nf])
        if ks == OPT.get("pk", 24):
            P(f"s_mov_b32 s{S_T5}, 0x{FL_KV:x}")
            P(f"buffer_load_dword v{vn}, v{vz}, s[{S_DBG}:{S_DBG+3}], 0 offen sc1")
            P(flag_load(vfl, 4, l16, f"s{S_T5}"))
    for r in range(8): P(f"v_cvt_pk_bf16_f32 v{qf+r}, v{acc[0][0]+2*r}, v{acc[0][0]+2*r+1}")
    P(f"ds_write_b128 v{vq}, {vr(qf,4)}")
    P(f"ds_write_b128 v{vq}, {vr(qf+4,4)} offset:1024")
    nonce_check(P, SL, vn, vz)
    spin_check(P, SL, [flag_load(vfl, 4, l16, f"s{S_T5}")], flag_cmp(vfl, 4, t0), sleep=OPT.get("ksl", 6))
    kv_dma(P, l16, 0)
    P(f"s_add_u32 s{S_T2}, s{S_T2}, 32768")
    dma(P, l16, S_WS, f"s{S_T2}", (S_KVLDS, 4096), tag="kv0", mods=SC1)
    def gu_reads(ks):
        s, kk = ks // 2, ks % 2
        so = SLOT[s % 3] - SLOT[0] + kk * 6144
        L = [f"ds_read_b128 {vr(fx[ks%2][0],4)}, v{vx0} offset:{ks*32}"]
        for i in range(3):
            f = fw[ks % 2][i]
            L += [f"ds_read_b64_tr_b16 {vr(f,2)}, v{wtr[i]} offset:{so}", f"ds_read_b64_tr_b16 {vr(f+2,2)}, v{wtr[i]} offset:{so+1536}"]
            if i == 0: L.append(f"ds_read_b128 {vr(fx[ks%2][1],4)}, v{vx0} offset:{ks*32 + 32*X_STRIDE}")
        return L
    def gu_groups(ks, late=False):
        R = gu_reads(ks + 1) if ks < 31 else []
        if OPT.get("abl_hds") and ks >= 2 * NP - 1: R = []
        G = []
        for m in range(6):
            i, t = m // 2, m % 2
            mm = [mfma(acc[i][t], fw[ks % 2][i], fx[ks % 2][t], acc[i][t] if ks else None)]
            if OPT.get("abl_hm") and ks >= 2 * NP - 1: mm = []
            G.append(mm + (R[2 * m: 2 * m + 2] if not late else ([] if m < 3 else R[3 * (m - 3): 3 * (m - 3) + 3])))
        return G
    P.wait_lgkm_all()
    stamp(P, 14)
    P("s_barrier")
    stamp(P, 3)
    for x in gu_reads(0): P(x)
    poison()
    PFI = OPT.get("pfi", 0)
    for ks in range(2 * NP - 1):
        if ks % 2 == 1:
            P.wait_lgkm_all(); P("s_barrier")
        for g in gu_groups(ks):
            for x in g: P(x)
    P.wait_tag("kv0"); P.wait_lgkm_all(); P("s_barrier")
    stamp(P, 4)
    gq = []
    tmp = fx[0][0]; cst = fx[1][0]
    assert fx[0][1] == fx[0][0] + 4
    gel = []
    def load_window(k):
        n = 2 * (NP + k) - 1
        assert not gq
        gq.extend(gu_groups(n, late=(k > 0 and OPT.get("sb", 0))))
        if n < 31: gq.extend(gu_groups(n + 1))
    def hookH(it, x, pos):
        if pos == "sync?": return 1 <= it <= JIT
        if pos == "pre0": sigstamp(it, 0); return
        if pos == "pre": sigstamp(it, 1); return
        if pos == "start": load_window(0); return
        midprio(it, x, pos, PH)
        if pos in ("qk", "pv1") and H_LATE: emit(H_LATE.pop(0))
        if pos == "pv2" and x == 1 and PF & 1:
            if it == PFI: pf(1, True)
            if it == PFI + 2: pf(2, True)
            if it == PFI + 5: pf(3, True)
        if pos == "pv2" and x == 1 and OPT.get("wpf", 1) and it in (7, 8, 9, 10):
            k = it - 7
            P(f"s_cmp_lg_u32 s{S_W}, {k}")
            P(f"s_cbranch_scc1 LF_wp{k}")
            P(f"buffer_load_dword v{vpd}, v{vpw}, s[{S_PFS}:{S_PFS+3}], 0 offen")
            P.I[-1].kind = "salu"; P.I[-1].vw = set()
            P(f"LF_wp{k}:")
        if pos == "pv1" and x == 0 and 1 <= it <= JIT: load_window(it)
        if pos in ("g1", "g2", "g3", "g4", "g5", "g6"):
            cnt = int(str(OPT.get("gm", 111111))[int(pos[1]) - 1]) if gq else 1
            cnt = 0 if cnt == 9 else cnt
            if gq and cnt == 0: pass
            elif gq:
                for _ in range(cnt):
                    if gq:
                        for t in gq.pop(0): P(t)
                if not gq and it == JIT and x == 1:
                    L = [f"v_mov_b32 v{cst}, {hexf(GELU_C1)}", f"v_mov_b32 v{cst+1}, {hexf(GELU_C1)}",
                         f"v_mov_b32 v{cst+2}, {hexf(GELU_C2)}", f"v_mov_b32 v{cst+3}, {hexf(GELU_C2)}"]
                    k = 0
                    for i in range(3):
                        for t in range(2):
                            d = fw[k % 2][k // 2]; k += 1
                            L += gelu_tile_pk(acc[i][t], d, tmp, cst)
                            if t == 1: L.append(f"s_add_u32 s{SH[i]}, s{SH[i]}, {118*1024}")
                            L.append(f"buffer_store_dwordx4 {vr(d,4)}, v{l16}, {WSR}, s{SH[i]} offen sc1")
                    ns = (2 if OPT.get("bbh", 0) else 3) + 12 * (UNI - JIT - 1)
                    n = (len(L) + ns - 1) // ns
                    gel.extend(L[i:i + n] for i in range(0, len(L), n))
            elif gel:
                for t in gel.pop(0): P(t, tag="hst" if "store" in t else None)
    PM = OPT.get("pm", 9)
    PH = [int(c) for c in str(OPT.get("ph", 3321)).zfill(4)]; PL = [int(c) for c in str(OPT.get("pl", 3210)).zfill(4)]
    def prioH(it, x):
        if PM == 9: return PH[2 * x] if it < JIT else 3
        if PM == 1: return 3 if (it == 0 and x == 0) else None
        if PM == 3: return 3 - 2 * x
        if PM == 5: return (3 - 2 * x) if it < JIT else 3
        if PM == 6: return 3 if it >= JIT else None
        return None
    def prioL(it, x):
        if PM == 9: return PL[2 * x] if it < JIT else 0
        if PM in (2, 6): return 1 if (it == 0 and x == 0) else None
        if PM == 3: return 3 - 2 * x
        if PM == 5: return (3 - 2 * x) if it < JIT else 0
        return None
    def midprio(it, x, pos, T=None):
        if PM == 9 and pos == "pv2" and it <= JIT: P(f"s_setprio {T[1] if x else T[3]}")
        if PM in (3, 5) and pos == "pv2" and (PM == 3 or it <= JIT): P(f"s_setprio {2 * x}")
    attention(P, A, l16, range(0, UNI), hookH, prioH, kvf=lambda c: None, bb=OPT.get("bbh", 0))
    nsb = A["sb"].n; A["sb"].n = 0
    assert not gq and not gel, (len(gq), len(gel))
    P.cond_end(keep=True)
    P("s_branch LF_join")
    for n in ("vx0", "vtn", "wtr0", "wtr1", "wtr2", "vpf", "vpw"): V.release(n)

    P("LF_l0:")
    P.cond_begin()
    P("s_barrier")
    LOADS["f"]("l")
    stamp(P, 1)
    P("s_waitcnt vmcnt(8)")
    P("s_barrier")
    stamp(P, 2)
    P(f"s_cmp_eq_u32 s{S_W}, 6")
    P("s_cbranch_scc1 LF_l6")
    P(f"s_add_u32 s{S_T3}, s{S_T3}, 24")
    wq_pieces(P, vsl, S_T3, 8, "LF_ldq3", 1)
    P("s_waitcnt vmcnt(8)")
    P("s_branch LF_l6j")
    P("LF_l6:")
    P("s_waitcnt vmcnt(0)")
    P("LF_l6j:")
    P("s_barrier")
    P("LF_light:")
    emit(C_EARLY)

    pats = w_patterns(P, V, lane, t0, t1)
    P(f"s_lshl_b32 s{S_T0}, s{S_HP}, 1")
    P(f"s_mul_i32 s{S_WOFF}, s{S_T0}, {8*2752}")
    P(f"s_lshl_b32 s{S_T1}, s{S_U0}, 5")
    P(f"s_add_u32 s{S_WOFF}, s{S_WOFF}, s{S_T1}")
    P(f"s_mul_i32 s{S_WLDS}, s{S_T0}, 3072")
    P(f"s_mul_i32 s{S_T1}, s{S_TT}, {UP_OFF}")
    P(f"s_add_u32 s{S_WLDS}, s{S_WLDS}, s{S_T1}")
    inattn = dict(on=False)
    P(f"s_add_u32 s{S_WOFF}, s{S_WOFF}, 0")
    P(f"v_subrev_u32 v{pats[1]}, 1024, v{pats[1]}")
    P(f"v_subrev_u32 v{pats[2]}, 2048, v{pats[2]}")
    def w_dma1(s, k):
        g, i = k // 3, k % 3
        solo = not OPT.get("wm0", 1) or inattn["on"]
        if i == 0 or solo:
            dma(P, pats[i], S_WM, f"s{S_T3}", (S_WLDS, SLOT[s % 3] + 3072 * g), offset=1024 * i, tag=f"w{s}",
                pre=[f"s_add_u32 s{S_T3}, s{S_WOFF}, 0x{(32*s + 8*g)*2752:x}"] if i == 0 else None)
        else:
            P(f"buffer_load_dwordx4 v{pats[i]}, s[{S_WM}:{S_WM+3}], s{S_T3} offen offset:{1024*i} lds", tag=f"w{s}")
    def w_dma6(s):
        for k in range(6): w_dma1(s, k)
    stamp(P, 11)
    P("s_barrier")
    w_dma6(0)
    P("s_waitcnt vmcnt(6)"); P.I[-1].kind = "salu"
    P("s_barrier")
    h = len(C_LATE) // 4
    emit(C_LATE[:h])
    stamp(P, 13)
    P("s_barrier")
    w_dma6(1)
    emit(C_LATE[h:])
    dma(P, l16, S_GW, "0", (None, GWL), tag="gw")
    vgw = acc[0][1]
    P(f"v_lshrrev_b32 v{t0}, 5, v{lane}")
    P(f"v_lshlrev_b32 v{vgw}, 4, v{t0}")
    P(f"s_lshl_b32 s{S_T0}, s{S_HP}, 9")
    P(f"v_add_u32 v{vxa}, s{S_T0}, v{vxa}")
    P(f"s_add_u32 s{S_T0}, s{S_T0}, 0x{GWL:x}")
    P(f"v_add_u32 v{vgw}, s{S_T0}, v{vgw}")
    P(f"s_lshl_b32 s{S_T0}, s{S_W}, 8")
    P(f"s_add_u32 s{S_T0}, s{S_T0}, 0x{ONES - 1024:x}")
    P(f"v_lshlrev_b32 v{t0}, 2, v{lane}")
    P(f"v_add_u32 v{t0}, s{S_T0}, v{t0}")
    P(f"v_mov_b32 v{t1}, 0x3f803f80")
    P(f"v_lshrrev_b32 v1, 2, v{lane}")
    P(f"v_and_b32 v1, 11, v1")
    P(f"v_cmp_eq_u32 vcc, 0, v1")
    P(f"v_cndmask_b32 v{t1}, 0, v{t1}, vcc")
    P(f"ds_write_b32 v{t0}, v{t1}")
    P(f"ds_write_b32 v{t0}, v{t1} offset:1024")
    poison()
    za = acc[0][0]; zx = [acc[1][0] + 4 * i for i in range(4)]; zg = [acc[2][0] + 4 * i for i in range(4)]
    def zjob():
        for r in range(4): P(f"v_mov_b32 v{za+r}, 0")
        def zld(k):
            P(f"ds_read_b128 {vr(zx[k%4],4)}, v{vxa} offset:{k*32}")
            P(f"ds_read_b128 {vr(zg[k%4],4)}, v{vgw} offset:{k*32}")
        for k in range(3): zld(k)
        for k in range(16):
            for r in range(4): P(f"v_dot2c_f32_bf16 v{za+r}, v{zx[k%4]+r}, v{zg[k%4]+r}")
            if k + 3 < 16: zld(k + 3)
        P("s_nop 2")
        P(f"v_add_f32 v{za}, v{za}, v{za+1}")
        P(f"v_add_f32 v{za+2}, v{za+2}, v{za+3}")
        P(f"v_add_f32 v{za}, v{za}, v{za+2}")
        P(f"s_and_b32 s{S_T0}, s{S_W}, 3")
        P(f"s_lshl_b32 s{S_T0}, s{S_T0}, 8")
        P(f"s_add_u32 s{S_T0}, s{S_T0}, 0x{MISC:x}")
        P(f"v_lshlrev_b32 v{t0}, 2, v{lane}")
        P(f"v_add_u32 v{t0}, s{S_T0}, v{t0}")
        P(f"ds_write_b32 v{t0}, v{za}")
    P(f"s_mov_b32 s{S_T6}, 0x{FL_KV:x}")
    def kv_both(c):
        kv_dma(P, l16, c)
        dma(P, l16, S_WS, f"s{S_T2}", (S_KVLDS, (8192 * (c & 1) - 4096) & 0xffffffff), tag=f"kv{c}", mods=SC1, pre=[f"s_sub_u32 s{S_T2}, s{S_T2}, 32768"])
    def poll_issue():
        P(f"buffer_load_dword v{vn}, v{vz}, s[{S_DBG}:{S_DBG+3}], 0 offen sc1")
        P(flag_load(vfl, 4, l16, f"s{S_T6}"))
    for s in range(0, NP + 1):
        P.wait_tag(f"w{s}")
        P.wait_lgkm_all()
        if s == 0: stamp(P, 14)
        P("s_barrier")
        if s == 0:
            stamp(P, 3)
            P(f"ds_read_b128 {vr(qf,4)}, v{vq} offset:1024")
            P(f"ds_read_b128 {vr(qf+4,4)}, v{vq}")
        if s == NP: kv_both(1)
        if s < NP: w_dma6(s + 2)
        if s == 0:
            P(f"buffer_load_dword v{vn}, v{vz}, s[{S_DBG}:{S_DBG+3}], 0 offen sc1")
            P.wait_tag("gw")
            zjob()
    assert NP >= 1
    stamp(P, 4)
    dq = []; wq2 = []
    def hookL(it, x, pos):
        if pos == "sync?": return 1 <= it <= JIT
        if pos == "pre0": sigstamp(it, 0); return
        if pos == "pre":
            if NP + it < 16: P.wait_tag(f"w{NP+it}")
            sigstamp(it, 1); return
        if (pos == "start" or pos == "chk") and NP + it + 2 < 16:
            assert not dq
            for k in range(0 if OPT.get("abl_ldma") else 6): dq.append(lambda s=NP + it + 2, k=k: w_dma1(s, k))
        midprio(it, x, pos, PL)
        LW = OPT.get("lw", 4)
        if pos == "chk" and it == JIT:
            for b in range(LW):
                for o in range(2):
                    for i in range(2): wq2.append(lambda b=b, o=o, i=i: fin_dma_w2(P, vsl, b, b * 16384, f"fw{b}", i, o))
        if wq2 and pos not in ("pre", "pre0", "chk", "start"):
            wq2.pop(0)()
            if it == UNI - 1 and x == 1 and pos == "g6":
                while wq2: wq2.pop(0)()
        LS = [("pv2", "qk", "pv1"), ("g1", "g3", "g5"), ("g2", "g4", "g6"), ("pv1", "g4", "g5", "g6", "pv2", "g1", "g2"), ("pv2", "pv1")][OPT.get("ls", 3)]
        if pos in LS and dq:
            dq.pop(0)()
            if OPT.get("ls", 3) == 4 and dq and len(dq) % 3 != 0: dq.pop(0)(); (dq.pop(0)() if pos == "pv1" and len(dq) % 3 else None)
    attention(P, A, l16, range(0, UNI), hookL, prioL, kvf=kv_both, bb=OPT.get("bbl", 0))
    assert A["sb"].n == nsb
    assert not dq
    P.cond_end(keep=True)
    P("LF_join:")
    P.join()
    for n in ["wpat0", "wpat1", "wpat2", "vxa", "vq"] + [f"acc{i}{t}" for i in range(3) for t in range(2)] + \
             [f"fx{b}{t}" for b in range(2) for t in range(2)] + [f"fw{b}{i}" for b in range(2) for i in range(3)]: V.release(n)
    stamp(P, 5)

    facc = V.alloc("facc", 16); facc1 = V.alloc("facc1", 16); fa = V.alloc("ffa", 8)
    NB = OPT.get("nb", 6)
    hb = [V.alloc(f"hb{i}", 4) for i in range(NB)]; fb = hb[0]
    vl4 = V.alloc("vl4"); vg = V.alloc("vg"); zt = V.alloc("zt", 2)
    va0 = tr_slice_addr(P, V, "fa0", lane, t0, t1, 0, S_KH, 4)
    vA = [[va0, V.alloc("fa0h")], [V.alloc("fa1"), V.alloc("fa1h")]]
    P(f"s_lshl_b32 s{S_T1}, s{S_HP}, 5")
    P(f"v_xor_b32 v{va0}, s{S_T1}, v{va0}")
    P(f"s_lshr_b32 s{S_T0}, s{S_W}, 1")
    P(f"s_lshl_b32 s{S_T1}, s{S_T0}, 11")
    P(f"v_add_u32 v{va0}, s{S_T1}, v{va0}")
    P(f"v_xor_b32 v{vA[1][0]}, 64, v{va0}")
    P(f"v_add_u32 v{vA[0][1]}, 0x10000, v{va0}")
    P(f"v_add_u32 v{vA[1][1]}, 0x10000, v{vA[1][0]}")
    P(f"s_mul_i32 s{S_FB}, s{S_TILE}, 118")
    P(f"s_add_u32 s{S_FB}, s{S_FB}, s{S_T0}")
    P(f"s_lshl_b32 s{S_FB}, s{S_FB}, 10")
    P(f"s_add_u32 s{S_FB}, s{S_FB}, 0x{WS_OH:x}")
    P(f"v_lshlrev_b32 v{vl4}, 2, v{lane}")
    vhf = V.alloc("vhf")
    P(f"v_lshrrev_b32 v{t0}, 3, v{lane}")
    P(f"v_mul_u32_u24 v{t0}, 96, v{t0}")
    P(f"v_add_u32 v{vhf}, v{t0}, v{vl4}")
    P(f"s_lshl_b32 s{S_T0}, s{S_TT}, 8")
    P(f"s_add_u32 s{S_T0}, s{S_T0}, 0x{MISC:x}")
    P(f"v_add_u32 v{t0}, s{S_T0}, v{vl4}")
    P(f"ds_read_b32 v{zt}, v{t0}")
    P(f"ds_read_b32 v{zt+1}, v{t0} offset:512")
    P(f"v_add_f32 v{zt}, v{zt}, v{zt+1}")
    P(f"v_mov_b32 v{zt+1}, v{zt}")
    P(f"v_permlane32_swap_b32 v{zt}, v{zt+1}")
    P(f"v_add_f32 v{zt}, v{zt}, v{zt+1}")
    P(f"v_mul_f32 v{t0}, {hexf(-LOG2E)}, v{zt}")
    P(f"v_exp_f32 v{t0}, v{t0}")
    P(f"v_add_f32 v{t0}, 1.0, v{t0}")
    P(f"v_rcp_f32 v{vg}, v{t0}")
    V.release("zt")
    vw = [V.alloc(f"vw{i}") for i in range(3)]; vrd = V.alloc("vrd"); vo = V.alloc("vo")
    def sbase(dst, w):
        P(f"s_mul_i32 s{S_T1}, s{w}, 6144")
        P(f"v_add_u32 v{dst}, s{S_T1}, v{l16}")
    sbase(vrd, S_W)
    for b in range(1, 4):
        P(f"s_xor_b32 s{S_T0}, s{S_W}, {b << 1}")
        sbase(vw[b - 1], S_T0)
    P(f"v_and_b32 v{vo}, 31, v{lane}")
    P(f"v_lshlrev_b32 v{vo}, 10, v{vo}")
    P(f"v_lshrrev_b32 v{t1}, 5, v{lane}")
    P(f"v_lshl_add_u32 v{vo}, v{t1}, 4, v{vo}")
    P(f"s_lshl_b32 s{S_OO}, s{S_TILE}, 15")
    P(f"s_lshl_b32 s{S_T1}, s{S_J}, 7")
    P(f"s_add_u32 s{S_OO}, s{S_OO}, s{S_T1}")
    P(f"s_lshl_b32 s{S_T1}, s{S_KH}, 6")
    P(f"s_add_u32 s{S_OO}, s{S_OO}, s{S_T1}")
    P(f"s_lshl_b32 s{S_T1}, s{S_HP}, 5")
    P(f"s_add_u32 s{S_OO}, s{S_OO}, s{S_T1}")
    vp = V.alloc("vp"); vpa = V.alloc("vpa")
    P(f"v_lshlrev_b32 v{vpa}, 10, v{lane}")
    vt0 = V.alloc("vt0"); vt1 = V.alloc("vt1")
    P(f"s_lshr_b32 s{S_T1}, s{S_W}, 1")
    P(f"s_mul_i32 s{S_T1}, s{S_T1}, {16384 - 2048}")
    P(f"s_add_u32 s{S_T1}, s{S_T1}, {3*16384}")
    P(f"v_add_u32 v{vt0}, s{S_T1}, v{vA[0][0]}")
    P(f"v_add_u32 v{vt1}, s{S_T1}, v{vA[1][0]}")
    va = V.alloc("cva"); vb = V.alloc("cvb"); fb = V.alloc("cvon")
    P(f"s_mul_i32 s{S_T0}, s{S_W}, 3072")
    P(f"s_add_u32 s{S_T0}, s{S_T0}, 114688")
    P(f"v_add_u32 v{va}, s{S_T0}, v{l16}")
    P(f"s_xor_b32 s{S_T0}, s{S_W}, 4")
    P(f"s_mul_i32 s{S_T0}, s{S_T0}, 3072")
    P(f"s_add_u32 s{S_T0}, s{S_T0}, 114688")
    P(f"v_add_u32 v{vb}, s{S_T0}, v{l16}")
    P(f"s_add_u32 s{S_OL2}, s{S_OL}, 4096")
    BSLOT = lambda b: ((b % 8) if b < 11 else (b - 8)) * 16384
    def a_reads(r, d):
        o = (4 * r % 64) * 2048; hi = o >> 16; o &= 0xffff
        assert r // 2 in vis, (r, vis)
        rd_done[r // 2] = rd_done.get(r // 2, 0) + 1
        if OPT.get("abl_uds"): return
        P(f"ds_read_b64_tr_b16 {vr(fa+4*d,2)}, v{vA[d][hi]} offset:{o}")
        P(f"ds_read_b64_tr_b16 {vr(fa+4*d+2,2)}, v{vA[d][hi]} offset:{o+1024}")
    def h_load(r):
        if OPT.get("abl_uh"): return
        P(f"s_add_u32 s{S_T2}, s{S_FB}, {4096*r}")
        if r == 21:
            P(f"s_cmp_lt_u32 s{S_W}, 4")
            P(f"s_cselect_b32 s{S_T2}, s{S_T2}, 0x{OOB:x}")
        P(f"buffer_load_dwordx4 {vr(hb[r%NB],4)}, v{l16}, {WSR}, s{S_T2} offen sc1")
    pend = {}
    LW = OPT.get("lw", 4)
    dq = []; vis = set(); issued = {}; rd_done = {}; nxt = dict(b=LW, r=0, d=0, pre=False)
    def qW(b):
        def f(i):
            if not OPT.get("abl_uw"): fin_dma_w1(P, vsl, b, BSLOT(b), f"fw{b}", i)
            issued[b] = issued.get(b, 0) + 1
        for i in range(2): dq.append(lambda i=i: f(i))
    CH = OPT.get("ch", HF + 3); R0 = OPT.get("r0", 2 * (CH + 2))
    DBL = OPT.get("dbl", 64)
    def mstep():
        r, d = nxt["r"], nxt["d"]
        if r >= 22: return
        if not nxt["pre"]:
            a_reads(0, 0); a_reads(0, 1); nxt["pre"] = True; return
        if not OPT.get("abl_um"): P(mfma([facc, facc1][d], fa + 4 * d, hb[r % NB], [facc, facc1][d] if r else None))
        if r + 1 < 22: a_reads(r + 1, d)
        if d == 1 and r + NB < 22: dq.insert(0, lambda r=r: h_load(r + NB))
        nxt["d"] = 1 - d; nxt["r"] = r + d
    US = [("g1", "g4"), ("g2", "g5"), ("g1", "g5"), ("g2", "g6"), ("g3", "g6")][OPT.get("us", 3)]
    VS = [("pv2", "qk"), ("qk", "pv1"), ("pv2", "pv1"), ("g3", "g6"), ("qk", "g6")][OPT.get("vs", 0)]
    def hookU(it, x, pos):
        sig = (x == 0 and (it & 1)); ph = 2 * it + x
        if pos == "sync?": return False
        if pos == "pre0": sigstamp(it, 0); return
        if pos == "pre":
            if it == HF: P.wait_vm_all()
            need = [b for b in issued if issued[b] == 2 and b not in vis and (it == 29 or b <= (max(0, ph + 8 - R0) * (2 if ph + 6 >= DBL else 1)) // 2) and b <= 10]
            if need: P.wait_tag(*[f"fw{b}" for b in need])
            if it == HF: need = need + list(range(LW))
            pend["vis"] = need; pend["free"] = {b for b in rd_done if rd_done[b] >= 4}
            sigstamp(it, 1); return
        if pos == "pv1" and sig and it == HF:
            nonce_check(P, SL, vn, vz)
            flag_store(P, vz, t0, S_FS)
        if pos == "chk":
            vis.update(pend["vis"])
            while it >= HF and nxt["b"] < 15:
                b = nxt["b"]; prev = {8: 0, 9: 1, 10: 2, 11: 3, 12: 4, 13: 5, 14: 6}.get(b)
                if prev is not None and prev not in pend["free"]: break
                qW(b); nxt["b"] += 1
            return
        if pos == "pv2" and x == 0 and it == CH - 1: P(flag_load(vfl, 1, vhf, f"s{S_FP}"))
        if pos == "pv2" and x == 0 and it == CH:
            spin_check(P, SL, [flag_load(vfl, 1, vhf, f"s{S_FP}")], flag_cmp(vfl, 1, t0), sleep=OPT.get("hsl", 4))
            for r in range(NB): dq.insert(r, lambda r=r: h_load(r))
        elif dq and (pos in VS or (pos in ("g2", "g5") and it in (CH, CH + 1)) or (pos == "g5" and OPT.get("d3"))): dq.pop(0)()
        if nxt["r"] >= 22 - OPT.get("tr", 5) and nxt["d"] == 0: pass
        elif (pos in US and ph >= R0) or (pos == US[1] and ph == R0 - 1) or (pos in ("g3", "g6") and ph >= DBL): mstep()
        if pos == "g6" and it == 31 and x == 1:
            assert nxt["b"] == 15, nxt
            print("rounds left for tail:", 22 - nxt["r"])
    def prioU(it, x):
        if not OPT.get("prio", 1): return None
        k = 2 * ((it + 1) & 1) + x
        return int(str(OPT.get("pu", 3210)).zfill(4)[k])
    attention(P, A, l16, range(UNI, 32), hookU, prioU)
    assert not dq
    stamp(P, 6)
    if OPT.get("sig"):
        P(f"s_lshl_b32 s98, s2, 11")
        P(f"s_lshl_b32 s99, s{S_W}, 8")
        P(f"s_add_u32 s98, s98, s99")
        P(f"s_add_u32 s98, s98, 0x{WS_STAMP + (1<<20):x}")
        P(f"buffer_store_dword v{vsig}, v{vl4}, {WSR}, s98 offen")
    P("s_setprio 0")
    P(f"v_mov_b32 v{O[1]+7}, v{O[1]}")
    for i in range(3): P(f"ds_write_b128 v{va}, {vr(O[1]+4+4*i,4)} offset:{1024*i}")
    P.wait_tag(*[f"fw{b}" for b in range(8, 15)]); P.wait_lgkm_all()
    P("s_barrier")
    vis.update(range(11))
    for i in range(3): P(f"ds_read_b128 {vr(O[1]+4+4*i,4)}, v{vb} offset:{1024*i}")
    P(f"v_add_f32 v{O[0]}, v{O[0]}, v{O[1]+7}")
    for r in range(8, 16): P(f"v_add_f32 v{O[0]+r}, v{O[0]+r}, v{O[1]+r}")
    P(f"v_mov_b32 v{t1}, 0x207")
    P(f"v_cmp_nle_f32 vcc, {hexf(2.0**-90)}, v{O[0]}")
    P(f"v_cmp_nge_f32 s[{S_PM}:{S_PM+1}], {'s' + str(S_T0)}, v{O[0]}".replace(f"s{S_T0}", f"s{S_C1}"))
    P(f"s_or_b64 vcc, vcc, s[{S_PM}:{S_PM+1}]")
    P(f"v_add3_u32 v{t0}, v{O[0]+8}, 0, 0".replace("v_add3_u32", "v_add_f32").replace(", 0, 0", f", v{O[0]+9}"))
    for r in range(10, 16): P(f"v_add_f32 v{t0}, v{t0}, v{O[0]+r}")
    P(f"v_cmp_class_f32 s[{S_PM}:{S_PM+1}], v{t0}, v{t1}")
    P(f"s_or_b64 vcc, vcc, s[{S_PM}:{S_PM+1}]")
    if OPT.get("forcefb"): P("s_mov_b64 vcc, -1")
    P("s_cmp_lg_u64 vcc, 0")
    P("s_cbranch_scc1 LF_fb")
    P("LF_fbr:")
    P(f"v_rcp_f32 v{t0}, v{O[0]}")
    P(f"v_mul_f32 v{t0}, v{t0}, v{vg}")
    for r in range(8, 16): P(f"v_mul_f32 v{O[0]+r}, v{O[0]+r}, v{t0}")
    for r in range(4): P(f"v_cvt_pk_bf16_f32 v{O[1]+r}, v{O[0]+8+2*r}, v{O[0]+9+2*r}")
    for r in range(4): P(f"v_min_u32 v{O[1]+r}, 0xfffffffe, v{O[1]+r}")
    P(f"buffer_store_dwordx4 {vr(O[1],4)}, v{l16}, {WSR}, s{S_OD} offen sc1", tag="ost")
    stamp(P, 7)
    K4, V8, ON, CM = A["fk"], A["fv"][0], fb, O[1]
    assert A["fv"][1] == V8 + 4
    nl = "\n    "
    fbk = f"""LF_fb:
    s_waitcnt vmcnt(0) lgkmcnt(0)
    v_mov_b32 v{t0}, 0xff800000
    s_mov_b32 s{S_T0}, 0x{WS_KF:x}
LF_fb1:
    buffer_load_dwordx4 {vr(K4,4)}, v{l16}, {WSR}, s{S_T0} offen sc1
    s_waitcnt vmcnt(0)
    {mfma(S[0], K4, qf)}
    s_nop 15
    {nl.join(f"v_max3_f32 v{t0}, v{S[0]+2*r}, v{S[0]+2*r+1}, v{t0}" for r in range(8))}
    s_add_u32 s{S_T0}, s{S_T0}, 1024
    s_cmp_lt_u32 s{S_T0}, 0x{WS_KF + 65536:x}
    s_cbranch_scc1 LF_fb1
    v_mov_b32 v{t1}, v{t0}
    s_nop 1
    v_permlane32_swap_b32 v{t0}, v{t1}
    s_nop 1
    v_max_f32 v{t0}, v{t0}, v{t1}
    {nl.join(f"v_sub_f32 v{CM+r}, 0, v{t0}" for r in range(16))}
    {nl.join(f"v_mov_b32 v{O[0]+r}, 0" for r in range(16))}
    v_lshrrev_b32 v{t0}, 5, v{lane}
    v_lshlrev_b32 v{t0}, 8, v{t0}
    v_and_b32 v{t1}, 15, v{lane}
    v_lshl_add_u32 v{t0}, v{t1}, 4, v{t0}
    v_and_b32 v{t1}, 16, v{lane}
    v_cmp_eq_u32 vcc, 0, v{t1}
    v_mov_b32 v{t1}, 0x{OOB:x}
    s_nop 1
    v_cndmask_b32 v{t0}, v{t0}, v{t1}, vcc
    v_and_b32 v{t1}, 27, v{lane}
    v_cmp_eq_u32 vcc, 0, v{t1}
    v_mov_b32 v{ON}, 0x3f803f80
    s_nop 1
    v_cndmask_b32 v{ON}, 0, v{ON}, vcc
    s_mov_b32 s{S_T0}, 0x{WS_KF:x}
LF_fb2:
    s_add_u32 s{S_T1}, s{S_T0}, 0x{WS_VF - WS_KF:x}
    buffer_load_dwordx4 {vr(K4,4)}, v{l16}, {WSR}, s{S_T0} offen sc1
    buffer_load_dwordx4 {vr(V8,4)}, v{t0}, {WSR}, s{S_T1} offen sc1
    buffer_load_dwordx4 {vr(V8+4,4)}, v{t0}, {WSR}, s{S_T1} offen offset:512 sc1
    s_waitcnt vmcnt(0)
    {mfma(S[0], K4, qf, CM)}
    {nl.join(f"v_or_b32 v{V8+r}, v{V8+r}, v{ON}" for r in range(8))}
    s_nop 7
    {nl.join(f"v_exp_f32 v{S[0]+r}, v{S[0]+r}" for r in range(16))}
    s_nop 1
    {nl.join(f"v_cvt_pk_bf16_f32 v{S[1]+r}, v{S[0]+2*r}, v{S[0]+2*r+1}" for r in range(8))}
    s_nop 1
    {mfma(O[0], V8, S[1], O[0])}
    {mfma(O[0], V8+4, S[1]+4, O[0])}
    s_add_u32 s{S_T0}, s{S_T0}, 1024
    s_cmp_lt_u32 s{S_T0}, 0x{WS_KF + 65536:x}
    s_cbranch_scc1 LF_fb2
    s_nop 15
    s_branch LF_fbr
"""
    SL.add(fbk)
    for n in ("Sa", "Sb", "Oa", "qf", "fk", "fv1", "fv2"): V.release(n)
    ob = V.alloc("ob", 32); wa = [V.alloc(f"wa{u}", 8) for u in range(8)]
    def oloads(g): return [f"buffer_load_dwordx4 {vr(ob+16*g+4*u,4)}, v{l16}, {WSR}, s{[S_OL,S_OL2][g]} offen offset:{1024*u} sc1" for u in range(4)]
    def ocheck(g):
        b = ob + 16 * g
        L = [f"v_max3_u32 v{t0}, v{b}, v{b+1}, v{b+2}"]
        for k in range(3, 15, 2): L.append(f"v_max3_u32 v{t0}, v{b+k}, v{b+k+1}, v{t0}")
        L += [f"v_max_u32 v{t0}, v{b+15}, v{t0}", f"v_cmp_eq_u32 vcc, -1, v{t0}"]
        return L
    fa2 = V.alloc("ffa2", 8)
    wr = []
    for u in range(8):
        for d, v in ((0, vt0), (1, vt1)):
            wr.append([f"ds_read_b64_tr_b16 {vr(wa[u]+4*d,2)}, v{v} offset:{u*2048}", f"ds_read_b64_tr_b16 {vr(wa[u]+4*d+2,2)}, v{v} offset:{u*2048+1024}"])
    r0 = nxt["r"]; assert nxt["d"] == 0 and not dq
    def tr_reads(r, d):
        o = (4 * r % 64) * 2048; hi = o >> 16; o &= 0xffff; f = [fa, fa2][(r - r0) % 2] + 4 * d
        P(f"ds_read_b64_tr_b16 {vr(f,2)}, v{vA[d][hi]} offset:{o}")
        P(f"ds_read_b64_tr_b16 {vr(f+2,2)}, v{vA[d][hi]} offset:{o+1024}")
    if r0 + 1 < 22: tr_reads(r0 + 1, 0); tr_reads(r0 + 1, 1)
    OL = min(r0 + OPT.get("ol", 99), 22)
    for r in range(r0, 22):
        if r == OL:
            for g in range(2):
                for x in oloads(g): P(x)
        for d in range(2):
            P(mfma([facc, facc1][d], [fa, fa2][(r - r0) % 2] + 4 * d, hb[r % NB], [facc, facc1][d]))
            if r + 2 < 22: tr_reads(r + 2, d)
            elif wr:
                for g in wr[:4]:
                    for x in g: P(x)
                del wr[:4]
    for g in wr:
        for x in g: P(x)
    assert 22 - r0 <= NB and r0 >= 16
    if OPT.get("oab", 1): P.wait_lgkm_all(); P("s_barrier")
    if OL == 22:
        for g in range(2):
            for x in oloads(g): P(x)
    P(f"v_sub_f32 v{t1}, 1.0, v{vg}")
    P(f"v_mov_b32 v{t0}, v{t1}")
    assert t1 == t0 + 1 and t0 % 2 == 0
    for r in range(0, 16, 2): P(f"v_pk_mul_f32 v[{facc+r}:{facc+r+1}], v[{facc+r}:{facc+r+1}], v[{t0}:{t1}]")
    for r in range(0, 16, 2): P(f"v_pk_mul_f32 v[{facc1+r}:{facc1+r+1}], v[{facc1+r}:{facc1+r+1}], v[{t0}:{t1}]")
    if not OPT.get("oab", 1): P.wait_lgkm_all(); P("s_barrier")
    stamp(P, 8)
    nl = "\n    "
    for g in range(2):
        k = SL.n; SL.n += 1
        for x in ocheck(g): P(x)
        P(f"s_cbranch_vccnz LS{k}")
        P(f"LR{k}:")
        SL.add(f"""LS{k}:
    s_mov_b32 s{S_T7}, 0
LS{k}_p:
    s_sleep {OPT.get("osl", 2)}
    s_mov_b64 exec, 0xf
    buffer_load_dword v{vp}, v{vpa}, {WSR}, s{[S_OL,S_OL2][g]} offen offset:1020 sc1
    s_waitcnt vmcnt(0)
    v_cmp_eq_u32 vcc, -1, v{vp}
    s_mov_b64 exec, -1
    s_add_u32 s{S_T7}, s{S_T7}, 1
    s_cmp_ge_u32 s{S_T7}, 0x{SPIN_MAX:x}
    s_cbranch_scc1 LR{k}
    s_cbranch_vccnz LS{k}_p
    {nl.join(oloads(g))}
    s_waitcnt vmcnt(0)
    {nl.join(ocheck(g))}
    s_cbranch_vccnz LS{k}_p
    s_nop 1
    s_branch LR{k}
""")
        for u in range(4 * g, 4 * g + 4):
            P(mfma(facc1, wa[u] + 4, ob + 4 * u, facc1))
    W1 = [f"ds_write_b128 v{vw[b-1]}, {vr(src+4*i,4)} offset:{2048*(b-1) + 1024*i}" for b, src in ((2, facc1), (3, facc1 + 8)) for i in range(2)]
    for u in range(8):
        P(mfma(facc, wa[u], ob + 4 * u, facc))
        if u >= 3 and W1:
            if u == 3: P("s_nop 7")
            P(W1.pop(0))
    stamp(P, 9)
    for b, src in ((1, facc + 8),):
        for i in range(2): P(f"ds_write_b128 v{vw[b-1]}, {vr(src+4*i,4)} offset:{2048*(b-1) + 1024*i}")
    P.wait_lgkm_all()
    P("s_barrier")
    for i in range(6): P(f"ds_read_b128 {vr(ob+4*i,4)}, v{vrd} offset:{1024*i}")
    for b in range(3):
        for r in range(8): P(f"v_add_f32 v{facc+r}, v{facc+r}, v{ob+8*b+r}")
    for r in range(4): P(f"v_cvt_pk_bf16_f32 v{facc1+r}, v{facc+2*r}, v{facc+2*r+1}")
    P(f"v_permlane32_swap_b32 v{facc1}, v{facc1+2}")
    P(f"v_permlane32_swap_b32 v{facc1+1}, v{facc1+3}")
    P(f"buffer_store_dwordx4 {vr(facc1,4)}, v{vo}, s[{S_OUT}:{S_OUT+3}], s{S_OO} offen")
    if STAMP["on"]:
        P.wait_vm_all(); stamp(P, 10); stamp_dump(P, lane)
        if OPT.get("dbgst") is not None:
            P(f"s_cmp_lg_u32 s2, {OPT['dbgst']}")
            P("s_cbranch_scc1 LF_end")
            P(f"s_cmp_lg_u32 s{S_W}, {OPT.get('dbgw', 0)}")
            P("s_cbranch_scc1 LF_end")
            P(f"v_subrev_u32 v{VSTAMP}, s100, v{VSTAMP}")
            P("s_mov_b64 exec, 0x7fff")
            P(f"buffer_store_dword v{VSTAMP}, v1, s[{S_DBG}:{S_DBG+3}], 0 offen offset:4")
    P("LF_end:")
    P("s_endpgm")
    name = NAME + "_kernel"
    body, I = finalize(P)
    txt = f".text\n.globl {name}\n.p2align 8\n.type {name},@function\n{name}:\n" + body + "".join(SL.txt) + "LF_last:\n    s_endpgm\n"
    vg_ = 256 if STAMP["on"] else max(V.hi, 8)
    txt += KD.format(name=name, vgpr=vg_, sgpr=102 if STAMP['on'] else 96, accum=(vg_ + 3) // 4 * 4)
    return txt, I, vg_


if __name__ == "__main__":
    out = sys.argv[1]
    STAMP["on"] = "stamp" in sys.argv
    for a in sys.argv[2:]:
        if "=" in a: k, v = a.split("="); OPT[k] = int(v)
        else: OPT[a] = True
    import asmlib; asmlib.MERGE_D = OPT.get("md", 9)
    t, I, vg_ = kernel_F()
    DOC = """; One fused kernel, 256 workgroups x 8 waves, one per CU (all co-resident).  Workgroup = (64-token group G, slice j).
;  start : K/V projection of 16 tokens (wave 7) -> d_ws + flag ; Q projection of 4 heads (waves 0-3) ; gate logit
;          true row maximum (LF_fb) whenever that could have overflowed or underflowed.
;  end   : o exchanged through d_ws (words preset to all-ones mean 'not written yet'), output projection, gated mix.
;  Hand-offs: write-through stores, vmcnt, then flags tagged with a per-launch nonce published through d_debug[0].
"""
    hdr = HEADER + DOC + f"; @launch grid=(256,1,1) block=(512,1,1) lds={LDS_BYTES}\n" + '.amdgcn_target "amdgcn-amd-amdhsa--gfx950"\n'
    open(out, "w").write(hdr + t)
    import subprocess
    r = subprocess.run(["clang", "-x", "assembler", "-target", "amdgcn-amd-amdhsa", "-mcpu=gfx950", "-c", out, "-o", "_chk.o"], capture_output=True, text=True)
    if r.returncode: print("ASM ERROR", r.stderr[:500])
    print("insts", len(I), "vgpr", vg_, "nops", sum(1 for x in I if x.kind == "nop"))
```

```python
import sys, re
from parts import *
OPT = {}
S_NONCE = 93
S_HP, S_KH = 30, 31
SH = [4, 5, 6]
S_FS, S_FP, S_OD, S_OL = 7, 8, 9, 10
S_FW, S_FB, S_FL, S_FL2 = 12, 13, 14, 15
S_OO, S_OL2 = 11, 18
S_VM = 28
S_PM = 16
FL_KV, FL_H = WS_FLAG, WS_FLAG + 8192
WKV_L = KV_RING
QSCR = KV_RING + 8192
FSLOT = [0, 32768, 65536, 98304]
WO_CH = [98304, 114688, 0, 32768]
SC1 = " sc1"
SPIN_MAX = 1 << 22
WSR = f"s[{S_WS}:{S_WS+3}]"


def cnt(k):
    if not OPT.get("cnt"): return ""
    return f"""    v_mov_b32 v1, 1
    v_mov_b32 v0, {4*k}
    s_mov_b64 exec, 1
    buffer_atomic_add v1, v0, s[{S_DBG}:{S_DBG+3}], 0 offen
    s_mov_b64 exec, -1
"""


class Slow:
    def __init__(self): self.txt = []; self.n = 0
    def add(self, t): self.txt.append(t)


LOADS = {}
def wq_pieces(P, vsl, s_first, n, label, rot):
    P(f"s_and_b32 s{S_T6}, s{S_G}, 7")
    if rot > 1: P(f"s_mul_i32 s{S_T6}, s{S_T6}, {rot}")
    P(f"s_add_u32 s{S_T5}, s{S_T6}, {n}")
    P(f"s_lshl_b32 s{S_T7}, s{S_J}, 7")
    P(f"{label}:")
    P(f"s_and_b32 s{S_T4}, s{S_T6}, {n-1}")
    P(f"s_add_u32 s{S_T4}, s{S_T4}, s{s_first}")
    P(f"s_mul_i32 s{S_T0}, s{S_T4}, 171")
    P(f"s_lshr_b32 s{S_T0}, s{S_T0}, 12")
    P(f"s_lshl_b32 s{S_T1}, s{S_T4}, 2")
    P(f"s_add_u32 s{S_T0}, s{S_T0}, s{S_T1}")
    P(f"s_lshl_b32 s{S_T0}, s{S_T0}, 8")
    P(f"s_add_u32 m0, s{S_T0}, 0x{SLOT[0]:x}")
    P(f"s_lshl_b32 s{S_T2}, s{S_T4}, 13")
    P(f"s_add_u32 s{S_T2}, s{S_T2}, s{S_T7}")
    P(f"s_add_u32 s{S_T6}, s{S_T6}, 1")
    P(f"buffer_load_dwordx4 v{vsl}, s[{S_WQ}:{S_WQ+3}], s{S_T2} offen lds")
    P.I[-1].kind = "salu"
    P(f"s_cmp_lg_u32 s{S_T6}, s{S_T5}")
    P(f"s_cbranch_scc1 {label}")


def emit_loads(P, l16, vsl, sfx):
    if sfx == "h":
        P(f"s_lshr_b32 s{S_T4}, s{S_J}, 1")
        P(f"s_lshl_b32 s{S_T4}, s{S_T4}, 4")
        P(f"s_mul_i32 s{S_T1}, s{S_W}, 12")
        P(f"s_add_u32 s{S_T4}, s{S_T4}, s{S_T1}")
        P(f"s_add_u32 s{S_T4}, s{S_T4}, 16")
        P(f"s_lshl_b32 s{S_T0}, s{S_G}, 16")
        P(f"s_and_b32 s{S_T6}, s{S_J}, 3")
        P(f"s_mul_i32 s{S_T6}, s{S_T6}, 3")
        P(f"s_mov_b32 s{S_T5}, 12")
        mk_srd(P, S_X, 4, SZ["x"])
        P("LF_ldx1:")
        P(f"s_add_u32 s{S_T1}, s{S_T6}, s{S_T4}")
        P(f"s_and_b32 s{S_T1}, s{S_T1}, 63")
        P(f"s_mul_i32 m0, s{S_T1}, {X_STRIDE}")
        P(f"s_lshl_b32 s{S_T2}, s{S_T1}, 10")
        P(f"s_add_u32 s{S_T2}, s{S_T2}, s{S_T0}")
        P(f"s_add_u32 s{S_T6}, s{S_T6}, 1")
        P(f"s_cmp_eq_u32 s{S_T6}, 12")
        P(f"s_cselect_b32 s{S_T6}, 0, s{S_T6}")
        P(f"buffer_load_dwordx4 v{l16}, s[{S_X}:{S_X+3}], s{S_T2} offen lds", tag="q")
        P(f"s_sub_u32 s{S_T5}, s{S_T5}, 1")
        P(f"s_cmp_lg_u32 s{S_T5}, 0")
        P("s_cbranch_scc1 LF_ldx1")
    else:
        mk_srd(P, S_WQ, 6, SZ["wq"])
        P(f"s_and_b32 s{S_T3}, s{S_W}, 3")
        P(f"s_lshl_b32 s{S_T3}, s{S_T3}, 3")
        wq_pieces(P, vsl, S_T3, 8, "LF_ldq1", 1)
        P(f"s_add_u32 s{S_T3}, s{S_T3}, 24")
        wq_pieces(P, vsl, S_T3, 8, "LF_ldq2", 1)


def prologue_f(P, V, endlabel):
    if STAMP["on"]: P("s_memrealtime s[100:101]")
    P("s_cmp_ge_u32 s2, 256")
    P(f"s_cbranch_scc1 {endlabel}")
    P("s_load_dwordx16 s[4:19], s[0:1], 0")
    P("s_load_dwordx8 s[20:27], s[0:1], 64")
    P("s_load_dwordx2 s[28:29], s[0:1], 96")
    lane = V.alloc("lane"); l16 = V.alloc("l16")
    P(f"v_lshrrev_b32 v1, 6, v0")
    P(f"v_and_b32 v{lane}, 63, v0")
    P(f"v_readfirstlane_b32 s{S_W}, v1")
    P(f"v_lshlrev_b32 v{l16}, 4, v{lane}")
    P(f"s_lshr_b32 s{S_T0}, s2, 3")
    if OPT.get("jrot"): P(f"s_add_u32 s{S_J}, s{S_T0}, {OPT['jrot']}"); P(f"s_and_b32 s{S_J}, s{S_J}, 3")
    else: P(f"s_and_b32 s{S_J}, s{S_T0}, 3")
    P(f"s_and_b32 s{S_T1}, s2, 1")
    P(f"s_lshl_b32 s{S_T1}, s{S_T1}, 2")
    P(f"s_add_u32 s{S_J}, s{S_J}, s{S_T1}")
    P(f"s_and_b32 s{S_G}, s2, 6")
    P(f"s_lshl_b32 s{S_G}, s{S_G}, 2")
    P(f"s_lshr_b32 s{S_T0}, s{S_T0}, 2")
    P(f"s_add_u32 s{S_G}, s{S_G}, s{S_T0}")
    t0 = V.alloc("t0"); t1 = V.alloc("t1")
    vsl = slice_pattern(P, V, lane, t0)
    LOADS["f"] = lambda sfx: emit_loads(P, l16, vsl, sfx)
    P(f"s_and_b32 s{S_TT}, s{S_W}, 1")
    P(f"s_lshl_b32 s{S_TILE}, s{S_G}, 1")
    P(f"s_add_u32 s{S_TILE}, s{S_TILE}, s{S_TT}")
    P(f"s_lshr_b32 s{S_HP}, s{S_W}, 1")
    P(f"s_and_b32 s{S_HP}, s{S_HP}, 1")
    P(f"s_lshr_b32 s{S_KH}, s{S_W}, 2")
    assert all((p * 171) >> 12 == p // 24 for p in range(64)) and SLOT_SZ == 3 * 8192 + 256
    return lane, l16, t0, t1, vsl


def rest_srds(P):
    P(f"s_cmp_eq_u32 s{S_TT}, 0")
    P(f"s_cselect_b32 s{S_WM}, s16, s18")
    P(f"s_cselect_b32 s{S_WM+1}, s17, s19")
    P(f"s_and_b32 s{S_WM+1}, s{S_WM+1}, 0xffff")
    P(f"s_mov_b32 s{S_WM+2}, 0x{SZ['wg']:x}")
    P(f"s_mov_b32 s{S_WM+3}, 0x20000")
    mk_srd(P, S_OUT, 24, SZ["out"])
    mk_srd(P, S_WO, 12, SZ["wo"])
    mk_srd(P, S_WD, 20, SZ["wd"])


def nonce_check(P, SL, vn, vz):
    k = SL.n; SL.n += 1
    P(f"v_readfirstlane_b32 s{S_NONCE}, v{vn}")
    P(f"s_cmp_eq_u32 s{S_NONCE}, 0")
    P(f"s_cbranch_scc1 LS{k}")
    P(f"LR{k}:")
    SL.add(f"""LS{k}:
{cnt(1+k)}    s_mov_b32 s{S_T7}, 0
LS{k}_l:
    s_sleep 2
    buffer_load_dword v{vn}, v{vz}, s[{S_DBG}:{S_DBG+3}], 0 offen sc1
    s_waitcnt vmcnt(0)
    v_readfirstlane_b32 s{S_NONCE}, v{vn}
    s_add_u32 s{S_T7}, s{S_T7}, 1
    s_cmp_ge_u32 s{S_T7}, 0x{SPIN_MAX:x}
    s_cbranch_scc1 LR{k}
    s_cmp_eq_u32 s{S_NONCE}, 0
    s_cbranch_scc1 LS{k}_l
    s_branch LR{k}
""")


def flag_load(vf, n, vaddr, soff):
    op = {1: "buffer_load_dword", 4: "buffer_load_dwordx4"}[n]
    return f"{op} {vr(vf,n)}, v{vaddr}, {WSR}, {soff} offen sc1"


def flag_cmp(vf, n, t):
    L = [f"v_xor_b32 v{t}, s{S_NONCE}, v{vf}"]
    for i in range(1, n):
        L += [f"v_xor_b32 v{vf+i}, s{S_NONCE}, v{vf+i}", f"v_or_b32 v{t}, v{t}, v{vf+i}"]
    L += [f"v_cmp_ne_u32 vcc, 0, v{t}"]
    return L


def spin_check(P, SL, loads, cmps, sleep=1):
    k = SL.n; SL.n += 1
    for x in cmps: P(x)
    P(f"s_cbranch_vccnz LS{k}")
    P(f"LR{k}:")
    nl = "\n    "
    SL.add(f"""LS{k}:
{cnt(1+k)}    s_mov_b32 s{S_T7}, 0
LS{k}_l:
    {f"s_sleep {sleep}" if sleep else "s_nop 0"}
    {nl.join(loads)}
    s_waitcnt vmcnt(0)
    {nl.join(cmps)}
    s_add_u32 s{S_T7}, s{S_T7}, 1
    s_cmp_ge_u32 s{S_T7}, 0x{SPIN_MAX:x}
    s_cbranch_scc1 LR{k}
    s_cbranch_vccnz LS{k}_l
    s_nop 1
    s_branch LR{k}
""")


def flag_store(P, vz, t, soff):
    P(f"v_mov_b32 v{t}, s{S_NONCE}")
    P("s_mov_b64 exec, 1")
    P(f"buffer_store_dword v{t}, v{vz}, {WSR}, s{soff} offen sc1", tag="flag")
    P("s_mov_b64 exec, -1")


PROG = MISC + 1024
class SplitBar:
    def __init__(self, P, V, SL, lane, t0):
        self.P, self.SL, self.n = P, SL, 0
        self.va = V.alloc("sba"); self.vr = V.alloc("sbr"); self.one = V.alloc("sb1"); self.vg = V.alloc("sbg")
        P(f"s_lshl_b32 s{S_T0}, s{S_W}, 8")
        P(f"s_add_u32 s{S_T0}, s{S_T0}, 0x{PROG:x}")
        P(f"v_lshlrev_b32 v{t0}, 2, v{lane}")
        P(f"v_add_u32 v{self.va}, s{S_T0}, v{t0}")
        P(f"v_and_b32 v{t0}, 7, v{lane}")
        P(f"v_mul_u32_u24 v{t0}, 260, v{t0}")
        P(f"v_add_u32 v{self.vr}, 0x{PROG:x}, v{t0}")
        P(f"v_mov_b32 v{self.one}, 0")
        P(f"ds_write_b32 v{self.va}, v{self.one}")
        P(f"v_mov_b32 v{self.one}, 1")
    def arrive(self):
        self.n += 1
        self.P(f"ds_add_u32 v{self.va}, v{self.one}")
    def peek(self): self.P(f"ds_read_b32 v{self.vg}, v{self.vr}")
    def check(self):
        k = self.SL.n; self.SL.n += 1
        self.P(f"v_cmp_gt_u32 vcc, {self.n}, v{self.vg}")
        self.P(f"s_cbranch_vccz LR{k}")
        self.P(f"LS{k}:")
        for t in ([f"s_sleep {OPT['ssl']}"] if OPT.get("ssl") else []) + [f"ds_read_b32 v{self.vg}, v{self.vr}", "s_waitcnt lgkmcnt(0)", f"v_cmp_gt_u32 vcc, {self.n}, v{self.vg}", f"s_cbranch_vccnz LS{k}"]:
            self.P(t); self.P.I[-1].kind = "salu"; self.P.I[-1].vw = set(); self.P.I[-1].vr = set()
        self.P(f"LR{k}:")


def attn_setup(P, V, lane, l16, t0, t1):
    A = {}
    P(f"s_lshl_b32 s{S_T1}, s{S_KH}, 12")
    vk = V.alloc("vk"); vv = [V.alloc("vv0"), V.alloc("vv1")]
    P(f"s_add_u32 s{S_T1}, s{S_T1}, 0x{KV_RING:x}")
    P(f"v_add_u32 v{vk}, s{S_T1}, v{l16}")
    P(f"v_lshrrev_b32 v{t0}, 5, v{lane}")
    P(f"v_lshlrev_b32 v{t0}, 8, v{t0}")
    P(f"v_and_b32 v{t1}, 15, v{lane}")
    P(f"v_lshl_add_u32 v{t0}, v{t1}, 4, v{t0}")
    P(f"v_and_b32 v{t1}, 16, v{lane}")
    P(f"v_cmp_eq_u32 vcc, 0, v{t1}")
    P(f"s_add_u32 s{S_T1}, s{S_T1}, 2048")
    for s in range(2):
        P(f"v_mov_b32 v{t1}, s{S_T1}")
        P(f"v_add_u32 v{t1}, {8192*s}, v{t1}")
        P(f"v_mov_b32 v{vv[s]}, 0x{ONES:x}")
        P(f"v_cndmask_b32 v{vv[s]}, v{t1}, v{vv[s]}, vcc")
        P(f"v_add_u32 v{vv[s]}, v{vv[s]}, v{t0}")
    P(f"s_lshl_b32 s{S_KVOFF}, s{S_KH}, 15")
    P(f"s_lshl_b32 s{S_T1}, s{S_HP}, 16")
    P(f"s_add_u32 s{S_KVOFF}, s{S_KVOFF}, s{S_T1}")
    P(f"s_lshl_b32 s{S_T1}, s{S_TT}, 10")
    P(f"s_add_u32 s{S_KVOFF}, s{S_KVOFF}, s{S_T1}")
    P(f"s_lshl_b32 s{S_KVLDS}, s{S_W}, 10")
    P(f"s_add_u32 s{S_KVLDS}, s{S_KVLDS}, 0x{KV_RING:x}")
    A.update(vk=vk, vv=vv)
    A["S"] = [V.alloc("Sa", 16), V.alloc("Sb", 16)]
    A["O"] = [V.alloc("Oa", 16), V.alloc("Ob", 16)]
    A["fk"] = V.alloc("fk", 4); A["fv"] = [V.alloc("fv1", 4), V.alloc("fv2", 4)]
    A["q"] = V.alloc("qf", 8)
    return A


def kv_dma(P, l16, c):
    dma(P, l16, S_WS, f"s{S_T2}", (S_KVLDS, 8192 * (c & 1)), tag=f"kv{c}", mods=SC1, pre=[f"s_add_u32 s{S_T2}, s{S_KVOFF}, {2048*c}"])


def attention(P, A, l16, its, hook, prio, kvf=None, bb=1):
    S, O, fk, fv = A["S"], A["O"], A["fk"], A["fv"]
    SB = OPT.get("sb", 0)
    q = [A["q"], A["q"] + 4]
    def rdK(it): P(f"ds_read_b128 {vr(fk,4)}, v{A['vk']} offset:{((it>>1)&1)*8192 + (it&1)*1024}")
    def rdV(it, half):
        m = OPT.get("vmask", 1) and it > 0
        if m: P(f"s_mov_b64 exec, s[{S_VM}:{S_VM+1}]")
        P(f"ds_read_b128 {vr(fv[half],4)}, v{A['vv'][(it>>1)&1]} offset:{(it&1)*1024 + half*512}")
        if m: P("s_mov_b64 exec, -1")
    E = lambda x, i: P(f"v_exp_f32 v{S[x]+i}, v{S[x]+i}")
    def C(x, i):
        b = S[x] + (8 if i >= 4 else 0); k = i & 3
        P(f"v_cvt_pk_bf16_f32 v{b+k}, v{b+2*k}, v{b+2*k+1}")
    for it in its:
        if it == 0:
            if OPT.get("vmask", 1): P(f"s_mov_b32 s{S_VM}, 0xffff0000"); P(f"s_mov_b32 s{S_VM+1}, 0xffff0000")
            rdK(0); rdV(0, 0)
            hook(0, 0, "start")
            P(mfma(S[0], fk, q[0]))
        for x in range(2):
            H = lambda pos: hook(it, x, pos)
            E(x, 0); E(x, 1)
            if x == 0:
                if it > 0: P(mfma(O[1], fv[1], S[1] + 8, O[1]))
                rdV(it, 1)
            else:
                P(mfma(O[0], fv[1], S[0] + 8, O[0]))
            H("pv2")
            E(x, 2); E(x, 3); H("g1")
            E(x, 4); E(x, 5); H("g2")
            E(x, 6); E(x, 7)
            if bb:
                H("g3")
                for i in range(4): C(x, i)
            if x == 0: P(mfma(S[1], fk, q[1]))
            elif it < 31: P(mfma(S[0], fk, q[0]))
            H("qk")
            sig = (x == 0 and (it & 1) and it < 31)
            syn = sig or (x == 0 and hook(it, x, "sync?"))
            ORD = OPT.get("ord", 2) if syn else 0
            if bb:
                E(x, 8); E(x, 9); H("g4")
                E(x, 10); E(x, 11)
                if ORD == 2: P(mfma(O[x], fv[0], S[x], None if it == 0 else O[x]))
            else:
                for i in range(4): C(x, i)
                if ORD == 0: H("g3")
                E(x, 8); E(x, 9)
                if ORD == 2: P(mfma(O[x], fv[0], S[x], None if it == 0 else O[x])); H("g3")
            if syn:
                H("pre0")
                if sig: P.wait_tag(f"kv{(it>>1)+1}")
                H("pre")
                P.wait_lgkm_all()
                P("s_barrier")
            if ORD != 2: P(mfma(O[x], fv[0], S[x], None if it == 0 else O[x]))
            p = prio(it, x)
            if p is not None: P(f"s_setprio {p}")
            if x == 0:
                if it < 31: rdK(it + 1)
                if (it & 1) and (it >> 1) + 2 < 16: (kvf or (lambda c: kv_dma(P, l16, c)))((it >> 1) + 2)
                if syn: hook(it, 0, "chk")
            else:
                if it < 31: rdV(it + 1, 0)
            H("pv1")
            if not bb: E(x, 10); E(x, 11); H("g4")
            E(x, 12); E(x, 13); H("g5")
            E(x, 14); E(x, 15); H("g6")
            for i in range(4, 8): C(x, i)
        if it == 31: P(mfma(O[1], fv[1], S[1] + 8, O[1]))


def fin_dma_w1(P, vsl, st, slot, tag, i):
    srd, u0 = (S_WD, 8 * st) if st < 11 else (S_WO, 8 * (st - 11))
    dma(P, vsl, srd, f"s{S_T2}", (S_FL2, slot + 1024 * i), tag=tag, pre=[f"s_add_u32 s{S_T2}, s{S_FW}, 0x{(16*u0 + 8*i)*1024:x}"])


def fin_dma_w2(P, vsl, st, slot, tag, i, other):
    dma(P, vsl, S_WD, f"s{S_T2}", (S_FL2, (slot + 1024 * i - 8192 * other) & 0xffffffff), tag=tag,
        pre=[f"s_add_u32 s{S_T2}, s{S_FW}, 0x{((128*st + 8*i)*1024 - 65536*other) & 0xffffffff:x}"])


def fin_dma_b1(P, l16, st, slot, tag, t):
    P(f"s_add_u32 s{S_T2}, s{S_FB}, 0x{(t*118 + 8*st)*1024:x}")
    if st == 10:
        P(f"s_cmp_lt_u32 s{S_W}, 6")
        P(f"s_cselect_b32 s{S_T2}, s{S_T2}, 0x{OOB:x}")
    dma(P, l16, S_WS, f"s{S_T2}", (S_FL, slot + 16384 + 8192 * t), tag=tag, mods=SC1)


def kernel_F():
    P = Prog(); V = Regs(2, 255, "v"); SL = Slow()
    NP = OPT.get("np", 1)
    JIT = 16 - NP
    GPP = OPT.get("gpp", 2)
    UNI = OPT.get("uni", JIT + 2)
    HF = OPT.get("hf", UNI | 1)
    lane, l16, t0, t1, vsl = prologue_f(P, V, "LF_end")
    vz = V.alloc("vz")
    P(f"s_cmp_lg_u32 s{S_W}, 7")
    P("s_cbranch_scc1 LF_not7")
    P(f"s_lshr_b32 s{S_T4}, s{S_J}, 1")
    P(f"s_lshl_b32 s{S_T0}, s{S_G}, 16")
    P(f"s_lshl_b32 s{S_T2}, s{S_T4}, 14")
    P(f"s_add_u32 s{S_T2}, s{S_T2}, s{S_T0}")
    P(f"s_mul_i32 m0, s{S_T4}, {16*X_STRIDE}")
    P(f"s_and_b32 s{S_T3}, s{S_J}, 1")
    P(f"s_mov_b32 s{S_T5}, 0")
    P("s_waitcnt lgkmcnt(0)")
    mk_srd(P, S_X, 4, SZ["x"])
    if OPT.get("u7", 1):
        P(f"s_sub_u32 s{S_X}, s{S_X}, 64")
        P(f"s_subb_u32 s{S_X+1}, s{S_X+1}, 0")
        P(f"s_mov_b32 s{S_X+2}, 0x{SZ['x'] + 64:x}")
        P(f"s_add_u32 s{S_T2}, s{S_T2}, 64")
        for g in range(4):
            for k in range(4):
                if k == 0:
                    if g: P(f"s_add_u32 m0, m0, {4*X_STRIDE}"); P(f"s_add_u32 s{S_T2}, s{S_T2}, {4096 + 48}")
                else: P(f"s_sub_u32 s{S_T2}, s{S_T2}, 16")
                P(f"buffer_load_dwordx4 v{l16}, s[{S_X}:{S_X+3}], s{S_T2} offen offset:{X_STRIDE*k} lds", tag="c")
    else:
        P("LF_ldx7:")
        P(f"buffer_load_dwordx4 v{l16}, s[{S_X}:{S_X+3}], s{S_T2} offen lds", tag="c")
        P(f"s_add_u32 m0, m0, {X_STRIDE}")
        P(f"s_add_u32 s{S_T2}, s{S_T2}, 1024")
        P(f"s_add_u32 s{S_T5}, s{S_T5}, 1")
        P(f"s_cmp_lg_u32 s{S_T5}, 16")
        P("s_cbranch_scc1 LF_ldx7")
    P(f"s_cmp_eq_u32 s{S_T3}, 0")
    P(f"s_cselect_b32 s{S_WKV}, s8, s10")
    P(f"s_cselect_b32 s{S_WKV+1}, s9, s11")
    P(f"s_and_b32 s{S_WKV+1}, s{S_WKV+1}, 0xffff")
    P(f"s_mov_b32 s{S_WKV+2}, 0x{SZ['wk']:x}")
    P(f"s_mov_b32 s{S_WKV+3}, 0x20000")
    P(f"s_mov_b32 m0, 0x{WKV_L:x}")
    P(f"s_mov_b32 s{S_T5}, 0")
    P("LF_ldw7:")
    for i in range(4):
        P(f"buffer_load_dwordx4 v{l16}, s[{S_WKV}:{S_WKV+3}], s{S_T5} offen offset:{1024*i} lds")
        P.I[-1].kind = "salu"
    P(f"s_add_u32 m0, m0, 4096")
    P(f"s_add_u32 s{S_T5}, s{S_T5}, 4096")
    P(f"s_cmp_lg_u32 s{S_T5}, 16384")
    P("s_cbranch_scc1 LF_ldw7")
    stamp(P, 15)
    P("s_barrier")
    P("LF_not7:")
    P("s_waitcnt lgkmcnt(0)")
    if OPT.get("cpf", 1):
        c = V.alloc("cpf")
        P(f"s_getpc_b64 s[{S_EX}:{S_EX+1}]")
        P("LF_pc0:")
        P(f"s_lshr_b32 s{S_T3}, s2, 3")
        P(f"s_lshl_b32 s{S_T3}, s{S_T3}, 3")
        P(f"s_add_u32 s{S_T3}, s{S_T3}, s{S_W}")
        P(f"s_lshl_b32 s{S_T3}, s{S_T3}, 8")
        P(f"v_lshlrev_b32 v{c}, 7, v{lane}")
        P(f"v_add_u32 v{c}, s{S_T3}, v{c}")
        P(f"v_min_u32 v{c}, LF_last-LF_pc0, v{c}")
        P("s_mov_b64 exec, 3")
        P(f"global_load_dword v{c}, v{c}, s[{S_EX}:{S_EX+1}]", tag="cpf")
        P("s_mov_b64 exec, -1")
    P(f"v_mov_b32 v{vz}, 0")
    mk_srd(P, S_WS, 28, SZ["ws"])
    mk_srd(P, S_DBG, 26, SZ["dbg"])
    vn = V.alloc("vn")
    P(f"s_or_b32 s{S_T0}, s2, s{S_W}")
    P(f"s_cmp_lg_u32 s{S_T0}, 0")
    P("s_cbranch_scc1 LF_non")
    P.cond_begin()
    P(f"s_memrealtime s[{S_EX}:{S_EX+1}]")
    P("s_waitcnt lgkmcnt(0)")
    P(f"s_mul_i32 s{S_EX+1}, s{S_EX+1}, 0x9e3779b1")
    P(f"s_xor_b32 s{S_EX}, s{S_EX}, s{S_EX+1}")
    P(f"s_or_b32 s{S_EX}, s{S_EX}, 1")
    P(f"v_mov_b32 v{t0}, s{S_EX}")
    P("s_mov_b64 exec, 1")
    P(f"buffer_store_dword v{t0}, v{vz}, s[{S_DBG}:{S_DBG+3}], 0 offen sc1")
    P("s_mov_b64 exec, -1")
    P.cond_end()
    P("LF_non:")
    P_main = P; P = Prog()
    rest_srds(P)
    mk_srd(P, S_GW, 22, SZ["gw"])
    P(f"s_mov_b32 s{S_C1}, {hexf(2.0**120)}")
    A = attn_setup(P, V, lane, l16, t0, t1)
    qf = A["q"]; O = A["O"]; S = A["S"]
    A["sb"] = SplitBar(P, V, SL, lane, t0) if OPT.get("sb", 0) else type("X", (), dict(n=0))()
    vfl = V.alloc("vfl", 4)
    P(f"s_lshl_b32 s{S_T0}, s{S_HP}, 1")
    P(f"s_add_u32 s{S_T0}, s{S_T0}, s{S_KH}")
    P(f"s_lshl_b32 s{S_T1}, s{S_J}, 2")
    P(f"s_add_u32 s{S_T0}, s{S_T0}, s{S_T1}")
    P(f"s_mul_i32 s{S_T1}, s{S_TILE}, 118")
    P(f"s_add_u32 s{S_T0}, s{S_T0}, s{S_T1}")
    P(f"s_lshl_b32 s{S_T0}, s{S_T0}, 10")
    P(f"s_add_u32 s{S_OD}, s{S_T0}, 0x{WS_OH + 86*1024:x}")
    def poison():
        for r in range(4): P(f"v_mov_b32 v{O[0]+r}, -1")
        P(f"buffer_store_dwordx4 {vr(O[0],4)}, v{l16}, {WSR}, s{S_OD} offen sc1", tag="poison")
    P(f"s_lshr_b32 s{S_T0}, s{S_W}, 1")
    P(f"s_lshl_b32 s{S_T0}, s{S_T0}, 3")
    P(f"s_add_u32 s{S_T0}, s{S_T0}, s{S_T1}")
    P(f"s_lshl_b32 s{S_T0}, s{S_T0}, 10")
    P(f"s_add_u32 s{S_OL}, s{S_T0}, 0x{WS_OH + 86*1024:x}")
    P(f"s_lshl_b32 s{S_FP}, s{S_G}, 10")
    P(f"s_lshl_b32 s{S_FS}, s{S_J}, 5")
    P(f"s_add_u32 s{S_FS}, s{S_FS}, s{S_W}")
    P(f"s_lshl_b32 s{S_FS}, s{S_FS}, 2")
    P(f"s_add_u32 s{S_FS}, s{S_FS}, s{S_FP}")
    P(f"s_add_u32 s{S_FS}, s{S_FS}, 0x{FL_H:x}")
    P(f"s_add_u32 s{S_FP}, s{S_FP}, 0x{FL_H:x}")
    P(f"s_lshl_b32 s{S_FW}, s{S_W}, 14")
    P(f"s_lshl_b32 s{S_T1}, s{S_J}, 7")
    P(f"s_add_u32 s{S_FW}, s{S_FW}, s{S_T1}")
    P(f"s_lshl_b32 s{S_FL2}, s{S_W}, 11")
    P(f"s_mul_i32 s{S_U0}, s{S_J}, 11")
    P(f"s_min_u32 s{S_U0}, s{S_U0}, 76")
    P(f"s_cmp_ge_u32 s{S_J}, 6")
    P(f"s_cselect_b32 s{S_NU}, 10, 11")
    vxa = xfrag_addr(P, V, "vxa", lane, t0, S_TT)
    vq = V.alloc("vq")
    P(f"s_and_b32 s{S_T0}, s{S_W}, 3")
    P(f"s_lshl_b32 s{S_T1}, s{S_T0}, 11")
    P(f"s_add_u32 s{S_T1}, s{S_T1}, 0x{QSCR:x}")
    P(f"v_add_u32 v{vq}, s{S_T1}, v{l16}")
    COMMON = P.I; P = P_main
    def emit(L):
        for x in L: P(x.text, tag=x.tag)
    iw = next(i for i, x in enumerate(COMMON) if x.text.startswith(f"s_mov_b32 s{S_WM+3},")) + 1
    iu = next(i for i, x in enumerate(COMMON) if x.text.startswith(f"s_mul_i32 s{S_U0},"))
    C_EARLY = COMMON[:iw] + COMMON[iu:iu + 4]; C_LATE = COMMON[iw:iu] + COMMON[iu + 4:]
    acc = [[V.alloc(f"acc{i}{t}", 16) for t in range(2)] for i in range(3)]
    fx = [[V.alloc(f"fx{b}{t}", 4) for t in range(2)] for b in range(2)]
    fw = [[V.alloc(f"fw{b}{i}", 4) for i in range(3)] for b in range(2)]
    S_PFB = 19
    def capture(f):
        nonlocal P
        P0 = P; P = Prog(); f(); L = P.I; P = P0
        return L
    R = {}
    def f1():
        vtn = tr_slice_addr(P, V, "vtn", lane, t0, t1, SLOT[0], S_HP, 8)
        vpf = V.alloc("vpf"); vpd = V.alloc("vpd"); vpw = V.alloc("vpw")
        P(f"v_bfe_u32 v{t0}, v{lane}, 4, 1")
        P(f"v_lshrrev_b32 v{t1}, 5, v{lane}")
        P(f"v_lshl_add_u32 v{t0}, v{t1}, 7, v{t0}")
        P(f"v_mul_u32_u24 v{vpf}, 2752, v{t0}")
        P(f"v_and_b32 v{t0}, 15, v{lane}")
        P(f"v_lshl_add_u32 v{vpf}, v{t0}, 7, v{vpf}")
        P(f"v_cmp_gt_u32 vcc, 12, v{t0}")
        P(f"v_mov_b32 v{t1}, 0x{OOB:x}")
        P(f"v_cndmask_b32 v{vpf}, v{t1}, v{vpf}, vcc")
        P(f"s_lshr_b32 s{S_T0}, s2, 3")
        P(f"s_lshl_b32 s{S_T0}, s{S_T0}, 1")
        P(f"s_add_u32 s{S_T0}, s{S_T0}, s{S_HP}")
        P(f"s_mul_i32 s{S_T0}, s{S_T0}, {2*2752}")
        P(f"s_and_b32 s{S_T1}, s2, 1")
        P(f"s_mul_i32 s{S_T1}, s{S_T1}, {44*32}")
        P(f"s_add_u32 s{S_PFB}, s{S_T0}, s{S_T1}")
        R.update(vtn=vtn, vpf=vpf, vpd=vpd, vpw=vpw)
    def f2():
        vx0 = V.alloc("vx0")
        P(f"s_mul_i32 s{S_T0}, s{S_TT}, {32*X_STRIDE}")
        P(f"v_subrev_u32 v{vx0}, s{S_T0}, v{vxa}")
        P(f"s_lshl_b32 s{S_T4}, s{S_W}, 1")
        wtr = w_tr_addrs(P, V, lane, t0, t1, s_w=S_T4)
        R.update(vx0=vx0, wtr=wtr)
    def f3():
        P(f"s_mul_i32 s{S_T0}, s{S_W}, 3")
        P(f"s_mul_i32 s{S_T1}, s{S_G}, 236")
        P(f"s_add_u32 s{S_T1}, s{S_T1}, s{S_U0}")
        for i in range(3):
            P(f"s_add_u32 s{S_T2}, s{S_T0}, {i}")
            P(f"s_add_u32 s{SH[i]}, s{S_T1}, s{S_T2}")
            P(f"s_lshl_b32 s{SH[i]}, s{SH[i]}, 10")
            P(f"s_add_u32 s{SH[i]}, s{SH[i]}, 0x{WS_OH:x}")
            P(f"s_cmp_lt_u32 s{S_T2}, s{S_NU}")
            P(f"s_cselect_b32 s{SH[i]}, s{SH[i]}, 0x{OOB:x}")
    def f4():
        vpw = R["vpw"]
        S_PFS = S_WKV
        P(f"s_lshr_b32 s{S_T0}, s2, 3")
        P(f"s_lshl_b32 s{S_T0}, s{S_T0}, 2")
        P(f"s_add_u32 s{S_T0}, s{S_T0}, s{S_W}")
        P(f"s_cmp_lt_u32 s{S_T0}, 86")
        P(f"s_cselect_b32 s{S_PFS}, s{S_WD}, s{S_WO}")
        P(f"s_cselect_b32 s{S_PFS+1}, s{S_WD+1}, s{S_WO+1}")
        P(f"s_cselect_b32 s{S_PFS+2}, s{S_WD+2}, s{S_WO+2}")
        P(f"s_cselect_b32 s{S_T1}, 0, 86")
        P(f"s_mov_b32 s{S_PFS+3}, 0x20000")
        P(f"s_sub_u32 s{S_T0}, s{S_T0}, s{S_T1}")
        P(f"s_lshl_b32 s{S_T0}, s{S_T0}, 14")
        P(f"s_and_b32 s{S_T1}, s2, 1")
        P(f"s_lshl_b32 s{S_T1}, s{S_T1}, 9")
        P(f"s_add_u32 s{S_T0}, s{S_T0}, s{S_T1}")
        P(f"v_lshrrev_b32 v{t0}, 2, v{lane}")
        P(f"v_lshlrev_b32 v{t0}, 10, v{t0}")
        P(f"v_and_b32 v{t1}, 3, v{lane}")
        P(f"v_lshl_add_u32 v{t0}, v{t1}, 7, v{t0}")
        P(f"v_add_u32 v{vpw}, s{S_T0}, v{t0}")
    ix = next(i for i, x in enumerate(COMMON) if x.text.startswith(f"v_and_b32 v{t0}, 31, v{lane}"))
    ia = next(i for i, x in enumerate(COMMON) if x.text.startswith(f"s_mov_b32 s{S_C1},")) + 1
    io = next(i for i, x in enumerate(COMMON) if x.text.startswith(f"s_lshl_b32 s{S_T0}, s{S_HP}, 1"))
    ifl = next(i for i, x in enumerate(COMMON) if x.text.startswith(f"s_lshl_b32 s{S_FP},"))
    H_PRE = COMMON[ix:ix + 6] + COMMON[:iw] + capture(f1)
    H_MID = COMMON[ia:io] + COMMON[ix + 6:] + capture(f2) + COMMON[io:ifl]
    H_LATE = [COMMON[iw:iw + 8], COMMON[iw + 8:ia], COMMON[ifl:iu], COMMON[iu:iu + 4]]
    sh = capture(f3); H_LATE += [sh[:9], sh[9:15], sh[15:]]
    wp = capture(f4); H_LATE += [wp[:14], wp[14:]]
    vtn, vpf, vpd, vpw, vx0, wtr = (R[k] for k in ("vtn", "vpf", "vpd", "vpw", "vx0", "wtr"))
    S_PFS = S_WKV
    def pf(blk, half):
        P(f"s_add_u32 s{S_T4}, s{S_PFB}, {128*2752*blk}")
        if half: P("s_mov_b64 exec, 0xffffffff")
        P(f"buffer_load_dword v{vpd}, v{vpf}, s[{S_WM}:{S_WM+3}], s{S_T4} offen", tag="pf")
        P.I[-1].vw = set()
        if half: P("s_mov_b64 exec, -1")
    PF = OPT.get("pf", 1)
    KT = 192; vx16 = 240; vw16 = 241; vst = 242; S_K5, S_K6 = S_T5, S_T6
    P(f"s_cmp_lg_u32 s{S_W}, 7")
    P("s_cbranch_scc1 LF_not7b")
    P.cond_begin()
    P(f"s_lshr_b32 s{S_T0}, s{S_J}, 1")
    P(f"s_lshl_b32 s{S_T1}, s{S_T0}, 4")
    P(f"v_and_b32 v{t0}, 15, v{lane}")
    P(f"v_add_u32 v{t1}, s{S_T1}, v{t0}")
    P(f"v_mul_u32_u24 v{vx16}, {X_STRIDE}, v{t1}")
    P(f"v_lshrrev_b32 v{t1}, 4, v{lane}")
    P(f"v_lshl_add_u32 v{vx16}, v{t1}, 4, v{vx16}")
    P(f"v_lshlrev_b32 v{vw16}, 8, v{t1}")
    P(f"v_lshl_add_u32 v{vw16}, v{t0}, 3, v{vw16}")
    P(f"v_add_u32 v{vw16}, 0x{WKV_L:x}, v{vw16}")
    P(f"s_and_b32 s{S_K6}, s{S_J}, 1")
    P(f"s_cmp_eq_u32 s{S_K6}, 0")
    P(f"s_cselect_b32 s{S_T3}, 9, 8")
    P(f"s_cselect_b32 s{S_T4}, 8, 9")
    P(f"s_cselect_b32 s{S_K5}, 0x{WS_KF:x}, 0x{WS_VF:x}")
    P(f"v_lshlrev_b32 v{vst}, 4, v{t0}")
    P(f"v_lshrrev_b32 v{t0}, 1, v{t1}")
    P(f"v_lshl_add_u32 v{vst}, v{t0}, 3, v{vst}")
    P(f"v_and_b32 v{t0}, 1, v{t1}")
    P(f"v_lshlrev_b32 v{t0}, s{S_T3}, v{t0}")
    P(f"v_add_u32 v{vst}, v{vst}, v{t0}")
    P(f"s_and_b32 s{S_T1}, s{S_T0}, 1")
    P(f"s_lshl_b32 s{S_T1}, s{S_T1}, s{S_T4}")
    P(f"s_add_u32 s{S_K5}, s{S_K5}, s{S_T1}")
    P(f"s_lshr_b32 s{S_T0}, s{S_T0}, 1")
    P(f"s_lshl_b32 s{S_T1}, s{S_G}, 1")
    P(f"s_add_u32 s{S_T0}, s{S_T0}, s{S_T1}")
    P(f"s_lshl_b32 s{S_T0}, s{S_T0}, 10")
    P(f"s_add_u32 s{S_K5}, s{S_K5}, s{S_T0}")
    P("s_waitcnt vmcnt(0)")
    P(f"buffer_load_dword v{vn}, v{vz}, s[{S_DBG}:{S_DBG+3}], 0 offen sc1")
    def kv16(which):
        d = KT
        xb = [(KT+16) + 4 * i for i in range(4)]; wb = [(KT+32) + 4 * i for i in range(4)]
        def ld(ks):
            P(f"ds_read_b128 {vr(xb[ks%4],4)}, v{vx16} offset:{ks*64}")
            P(f"ds_read_b64_tr_b16 {vr(wb[ks%4],2)}, v{vw16} offset:{ks*1024}")
            P(f"ds_read_b64_tr_b16 {vr(wb[ks%4]+2,2)}, v{vw16} offset:{ks*1024+128}")
        for ks in range(3): ld(ks)
        for ks in range(16):
            a, b = (wb[ks%4], xb[ks%4]) if which == 0 else (xb[ks%4], wb[ks%4])
            P(f"v_mfma_f32_16x16x32_bf16 {vr(d,4)}, {vr(a,4)}, {vr(b,4)}, {vr(d,4) if ks else 0}")
            if ks + 3 < 16: ld(ks + 3)
        if which == 0:
            P(f"s_mov_b32 s{S_T0}, {hexf(QK_SCALE)}")
            for r in range(4): P(f"v_mul_f32 v{d+r}, s{S_T0}, v{d+r}")
    P(f"s_cmp_eq_u32 s{S_K6}, 1")
    P("s_cbranch_scc1 LF_vch")
    P.cond_begin(); kv16(0); P.cond_end()
    P("s_branch LF_kvj")
    P("LF_vch:")
    P.cond_begin(); kv16(1); P.cond_end()
    P("LF_kvj:")
    for r in range(2): P(f"v_cvt_pk_bf16_f32 v{KT+4+r}, v{KT+2*r}, v{KT+2*r+1}")
    P(f"buffer_store_dwordx2 {vr(KT+4,2)}, v{vst}, {WSR}, s{S_K5} offen sc1")
    FB2 = OPT.get("fb2", 0)
    def w7flag():
        P(f"s_lshl_b32 s{S_T0}, s{S_G}, 3")
        P(f"s_add_u32 s{S_T0}, s{S_T0}, s{S_J}")
        P(f"s_lshl_b32 s{S_T0}, s{S_T0}, 2")
        P(f"s_add_u32 s{S_T0}, s{S_T0}, 0x{FL_KV:x}")
        P("s_waitcnt vmcnt(0)")
        nonce_check(P, SL, vn, vz)
        flag_store(P, vz, t0, S_T0)
    if not FB2: w7flag()
    def pf7():
        P(f"v_lshrrev_b32 v{t0}, 4, v{lane}")
        P(f"v_mul_u32_u24 v{vx16}, 2752, v{t0}")
        P(f"v_and_b32 v{t0}, 15, v{lane}")
        P(f"v_lshl_add_u32 v{vx16}, v{t0}, 7, v{vx16}")
        P(f"v_cmp_gt_u32 vcc, 12, v{t0}")
        P(f"v_mov_b32 v{t1}, 0x{OOB:x}")
        P(f"v_cndmask_b32 v{vx16}, v{t1}, v{vx16}, vcc")
        P(f"s_lshr_b32 s{S_T0}, s2, 3")
        P(f"s_mul_i32 s{S_T0}, s{S_T0}, {4*2752}")
        P(f"s_and_b32 s{S_T1}, s2, 1")
        P(f"s_mul_i32 s{S_T1}, s{S_T1}, {44*32}")
        P(f"s_add_u32 s{S_T0}, s{S_T0}, s{S_T1}")
        for m in range(2):
            mk_srd(P, S_WKV, 16 + 2 * m, SZ["wg"])
            P(f"buffer_load_dword v{fx[0][0]+m}, v{vx16}, s[{S_WKV}:{S_WKV+3}], s{S_T0} offen")
    if OPT.get("pf7", 1) == 1: pf7()
    stamp(P, 1)
    P("s_barrier")
    stamp(P, 2)
    if OPT.get("pf7", 1) == 2: pf7()
    if FB2 == 1: w7flag()
    P("s_barrier")
    if FB2 == 2: w7flag()
    P.cond_end(nowait=True)
    P("s_branch LF_light")
    P("LF_not7b:")
    P(f"s_cmp_lg_u32 s{S_KH}, 0")
    P("s_cbranch_scc1 LF_l0")

    def sigstamp(it, k):
        if OPT.get("sig"):
            P(f"s_memtime s[98:99]"); P("s_waitcnt lgkmcnt(0)"); P(f"v_writelane_b32 v{vsig}, s98, {2*it+k}")
    vsig = V.alloc("vsig") if OPT.get("sig") else None

    P.cond_begin()
    emit(H_PRE)
    stamp(P, 15)
    P("s_barrier")
    stamp(P, 0)
    LOADS["f"]("h")
    stamp(P, 1)
    if PF & 4: pf(0, True)
    P.wait_tag("q")
    P("s_barrier")
    stamp(P, 2)
    if PF & 2: pf(0, True)
    QD = 6
    xb = [acc[1][0] + 4 * i for i in range(QD)]; wb = [acc[2][0] + 4 * i for i in range(QD)]
    assert acc[1][1] == acc[1][0] + 16 and acc[2][1] == acc[2][0] + 16
    def q_loads(ks):
        o = SLOT[ks // 12] - SLOT[0] + (ks % 12) * 2048
        P(f"ds_read_b128 {vr(xb[ks%QD],4)}, v{vxa} offset:{ks*32}")
        P(f"ds_read_b64_tr_b16 {vr(wb[ks%QD],2)}, v{vtn} offset:{o}")
        P(f"ds_read_b64_tr_b16 {vr(wb[ks%QD]+2,2)}, v{vtn} offset:{o+512}")
    for ks in range(QD - 1): q_loads(ks)
    for ks in range(32):
        P(mfma(acc[0][0], wb[ks%QD], xb[ks%QD], acc[0][0] if ks else None))
        if ks in (11, 23):
            stamp(P, 11 if ks == 11 else 13)
            P("s_barrier")
        if ks + QD - 1 in (12, 24): P("s_barrier")
        if ks + QD - 1 < 32: q_loads(ks + QD - 1)
        nf = -(-len(H_MID) // 28)
        emit(H_MID[ks * nf:(ks + 1) * nf])
        if ks == OPT.get("pk", 24):
            P(f"s_mov_b32 s{S_T5}, 0x{FL_KV:x}")
            P(f"buffer_load_dword v{vn}, v{vz}, s[{S_DBG}:{S_DBG+3}], 0 offen sc1")
            P(flag_load(vfl, 4, l16, f"s{S_T5}"))
    for r in range(8): P(f"v_cvt_pk_bf16_f32 v{qf+r}, v{acc[0][0]+2*r}, v{acc[0][0]+2*r+1}")
    P(f"ds_write_b128 v{vq}, {vr(qf,4)}")
    P(f"ds_write_b128 v{vq}, {vr(qf+4,4)} offset:1024")
    nonce_check(P, SL, vn, vz)
    spin_check(P, SL, [flag_load(vfl, 4, l16, f"s{S_T5}")], flag_cmp(vfl, 4, t0), sleep=OPT.get("ksl", 6))
    kv_dma(P, l16, 0)
    P(f"s_add_u32 s{S_T2}, s{S_T2}, 32768")
    dma(P, l16, S_WS, f"s{S_T2}", (S_KVLDS, 4096), tag="kv0", mods=SC1)
    def gu_reads(ks):
        s, kk = ks // 2, ks % 2
        so = SLOT[s % 3] - SLOT[0] + kk * 6144
        L = [f"ds_read_b128 {vr(fx[ks%2][0],4)}, v{vx0} offset:{ks*32}"]
        for i in range(3):
            f = fw[ks % 2][i]
            L += [f"ds_read_b64_tr_b16 {vr(f,2)}, v{wtr[i]} offset:{so}", f"ds_read_b64_tr_b16 {vr(f+2,2)}, v{wtr[i]} offset:{so+1536}"]
            if i == 0: L.append(f"ds_read_b128 {vr(fx[ks%2][1],4)}, v{vx0} offset:{ks*32 + 32*X_STRIDE}")
        return L
    def gu_groups(ks, late=False):
        R = gu_reads(ks + 1) if ks < 31 else []
        if OPT.get("abl_hds") and ks >= 2 * NP - 1: R = []
        G = []
        for m in range(6):
            i, t = m // 2, m % 2
            mm = [mfma(acc[i][t], fw[ks % 2][i], fx[ks % 2][t], acc[i][t] if ks else None)]
            if OPT.get("abl_hm") and ks >= 2 * NP - 1: mm = []
            G.append(mm + (R[2 * m: 2 * m + 2] if not late else ([] if m < 3 else R[3 * (m - 3): 3 * (m - 3) + 3])))
        return G
    P.wait_lgkm_all()
    stamp(P, 14)
    P("s_barrier")
    stamp(P, 3)
    for x in gu_reads(0): P(x)
    poison()
    PFI = OPT.get("pfi", 0)
    for ks in range(2 * NP - 1):
        if ks % 2 == 1:
            P.wait_lgkm_all(); P("s_barrier")
        for g in gu_groups(ks):
            for x in g: P(x)
    P.wait_tag("kv0"); P.wait_lgkm_all(); P("s_barrier")
    stamp(P, 4)
    gq = []
    tmp = fx[0][0]; cst = fx[1][0]
    assert fx[0][1] == fx[0][0] + 4
    gel = []
    def load_window(k):
        n = 2 * (NP + k) - 1
        assert not gq
        gq.extend(gu_groups(n, late=(k > 0 and OPT.get("sb", 0))))
        if n < 31: gq.extend(gu_groups(n + 1))
    def hookH(it, x, pos):
        if pos == "sync?": return 1 <= it <= JIT
        if pos == "pre0": sigstamp(it, 0); return
        if pos == "pre": sigstamp(it, 1); return
        if pos == "start": load_window(0); return
        midprio(it, x, pos, PH)
        if pos in ("qk", "pv1") and H_LATE: emit(H_LATE.pop(0))
        if pos == "pv2" and x == 1 and PF & 1:
            if it == PFI: pf(1, True)
            if it == PFI + 2: pf(2, True)
            if it == PFI + 5: pf(3, True)
        if pos == "pv2" and x == 1 and OPT.get("wpf", 1) and it in (7, 8, 9, 10):
            k = it - 7
            P(f"s_cmp_lg_u32 s{S_W}, {k}")
            P(f"s_cbranch_scc1 LF_wp{k}")
            P(f"buffer_load_dword v{vpd}, v{vpw}, s[{S_PFS}:{S_PFS+3}], 0 offen")
            P.I[-1].kind = "salu"; P.I[-1].vw = set()
            P(f"LF_wp{k}:")
        if pos == "pv1" and x == 0 and 1 <= it <= JIT: load_window(it)
        if pos in ("g1", "g2", "g3", "g4", "g5", "g6"):
            cnt = int(str(OPT.get("gm", 111111))[int(pos[1]) - 1]) if gq else 1
            cnt = 0 if cnt == 9 else cnt
            if gq and cnt == 0: pass
            elif gq:
                for _ in range(cnt):
                    if gq:
                        for t in gq.pop(0): P(t)
                if not gq and it == JIT and x == 1:
                    L = [f"v_mov_b32 v{cst}, {hexf(GELU_C1)}", f"v_mov_b32 v{cst+1}, {hexf(GELU_C1)}",
                         f"v_mov_b32 v{cst+2}, {hexf(GELU_C2)}", f"v_mov_b32 v{cst+3}, {hexf(GELU_C2)}"]
                    k = 0
                    for i in range(3):
                        for t in range(2):
                            d = fw[k % 2][k // 2]; k += 1
                            L += gelu_tile_pk(acc[i][t], d, tmp, cst)
                            if t == 1: L.append(f"s_add_u32 s{SH[i]}, s{SH[i]}, {118*1024}")
                            L.append(f"buffer_store_dwordx4 {vr(d,4)}, v{l16}, {WSR}, s{SH[i]} offen sc1")
                    ns = (2 if OPT.get("bbh", 0) else 3) + 12 * (UNI - JIT - 1)
                    n = (len(L) + ns - 1) // ns
                    gel.extend(L[i:i + n] for i in range(0, len(L), n))
            elif gel:
                for t in gel.pop(0): P(t, tag="hst" if "store" in t else None)
    PM = OPT.get("pm", 9)
    PH = [int(c) for c in str(OPT.get("ph", 3321)).zfill(4)]; PL = [int(c) for c in str(OPT.get("pl", 3210)).zfill(4)]
    def prioH(it, x):
        if PM == 9: return PH[2 * x] if it < JIT else 3
        if PM == 1: return 3 if (it == 0 and x == 0) else None
        if PM == 3: return 3 - 2 * x
        if PM == 5: return (3 - 2 * x) if it < JIT else 3
        if PM == 6: return 3 if it >= JIT else None
        return None
    def prioL(it, x):
        if PM == 9: return PL[2 * x] if it < JIT else 0
        if PM in (2, 6): return 1 if (it == 0 and x == 0) else None
        if PM == 3: return 3 - 2 * x
        if PM == 5: return (3 - 2 * x) if it < JIT else 0
        return None
    def midprio(it, x, pos, T=None):
        if PM == 9 and pos == "pv2" and it <= JIT: P(f"s_setprio {T[1] if x else T[3]}")
        if PM in (3, 5) and pos == "pv2" and (PM == 3 or it <= JIT): P(f"s_setprio {2 * x}")
    attention(P, A, l16, range(0, UNI), hookH, prioH, kvf=lambda c: None, bb=OPT.get("bbh", 0))
    nsb = A["sb"].n; A["sb"].n = 0
    assert not gq and not gel, (len(gq), len(gel))
    P.cond_end(keep=True)
    P("s_branch LF_join")
    for n in ("vx0", "vtn", "wtr0", "wtr1", "wtr2", "vpf", "vpw"): V.release(n)

    P("LF_l0:")
    P.cond_begin()
    P("s_barrier")
    LOADS["f"]("l")
    stamp(P, 1)
    P("s_waitcnt vmcnt(8)")
    P("s_barrier")
    stamp(P, 2)
    P(f"s_cmp_eq_u32 s{S_W}, 6")
    P("s_cbranch_scc1 LF_l6")
    P(f"s_add_u32 s{S_T3}, s{S_T3}, 24")
    wq_pieces(P, vsl, S_T3, 8, "LF_ldq3", 1)
    P("s_waitcnt vmcnt(8)")
    P("s_branch LF_l6j")
    P("LF_l6:")
    P("s_waitcnt vmcnt(0)")
    P("LF_l6j:")
    P("s_barrier")
    P("LF_light:")
    emit(C_EARLY)

    pats = w_patterns(P, V, lane, t0, t1)
    P(f"s_lshl_b32 s{S_T0}, s{S_HP}, 1")
    P(f"s_mul_i32 s{S_WOFF}, s{S_T0}, {8*2752}")
    P(f"s_lshl_b32 s{S_T1}, s{S_U0}, 5")
    P(f"s_add_u32 s{S_WOFF}, s{S_WOFF}, s{S_T1}")
    P(f"s_mul_i32 s{S_WLDS}, s{S_T0}, 3072")
    P(f"s_mul_i32 s{S_T1}, s{S_TT}, {UP_OFF}")
    P(f"s_add_u32 s{S_WLDS}, s{S_WLDS}, s{S_T1}")
    inattn = dict(on=False)
    P(f"s_add_u32 s{S_WOFF}, s{S_WOFF}, 0")
    P(f"v_subrev_u32 v{pats[1]}, 1024, v{pats[1]}")
    P(f"v_subrev_u32 v{pats[2]}, 2048, v{pats[2]}")
    def w_dma1(s, k):
        g, i = k // 3, k % 3
        solo = not OPT.get("wm0", 1) or inattn["on"]
        if i == 0 or solo:
            dma(P, pats[i], S_WM, f"s{S_T3}", (S_WLDS, SLOT[s % 3] + 3072 * g), offset=1024 * i, tag=f"w{s}",
                pre=[f"s_add_u32 s{S_T3}, s{S_WOFF}, 0x{(32*s + 8*g)*2752:x}"] if i == 0 else None)
        else:
            P(f"buffer_load_dwordx4 v{pats[i]}, s[{S_WM}:{S_WM+3}], s{S_T3} offen offset:{1024*i} lds", tag=f"w{s}")
    def w_dma6(s):
        for k in range(6): w_dma1(s, k)
    stamp(P, 11)
    P("s_barrier")
    w_dma6(0)
    P("s_waitcnt vmcnt(6)"); P.I[-1].kind = "salu"
    P("s_barrier")
    h = len(C_LATE) // 4
    emit(C_LATE[:h])
    stamp(P, 13)
    P("s_barrier")
    w_dma6(1)
    emit(C_LATE[h:])
    dma(P, l16, S_GW, "0", (None, GWL), tag="gw")
    vgw = acc[0][1]
    P(f"v_lshrrev_b32 v{t0}, 5, v{lane}")
    P(f"v_lshlrev_b32 v{vgw}, 4, v{t0}")
    P(f"s_lshl_b32 s{S_T0}, s{S_HP}, 9")
    P(f"v_add_u32 v{vxa}, s{S_T0}, v{vxa}")
    P(f"s_add_u32 s{S_T0}, s{S_T0}, 0x{GWL:x}")
    P(f"v_add_u32 v{vgw}, s{S_T0}, v{vgw}")
    P(f"s_lshl_b32 s{S_T0}, s{S_W}, 8")
    P(f"s_add_u32 s{S_T0}, s{S_T0}, 0x{ONES - 1024:x}")
    P(f"v_lshlrev_b32 v{t0}, 2, v{lane}")
    P(f"v_add_u32 v{t0}, s{S_T0}, v{t0}")
    P(f"v_mov_b32 v{t1}, 0x3f803f80")
    P(f"v_lshrrev_b32 v1, 2, v{lane}")
    P(f"v_and_b32 v1, 11, v1")
    P(f"v_cmp_eq_u32 vcc, 0, v1")
    P(f"v_cndmask_b32 v{t1}, 0, v{t1}, vcc")
    P(f"ds_write_b32 v{t0}, v{t1}")
    P(f"ds_write_b32 v{t0}, v{t1} offset:1024")
    poison()
    za = acc[0][0]; zx = [acc[1][0] + 4 * i for i in range(4)]; zg = [acc[2][0] + 4 * i for i in range(4)]
    def zjob():
        for r in range(4): P(f"v_mov_b32 v{za+r}, 0")
        def zld(k):
            P(f"ds_read_b128 {vr(zx[k%4],4)}, v{vxa} offset:{k*32}")
            P(f"ds_read_b128 {vr(zg[k%4],4)}, v{vgw} offset:{k*32}")
        for k in range(3): zld(k)
        for k in range(16):
            for r in range(4): P(f"v_dot2c_f32_bf16 v{za+r}, v{zx[k%4]+r}, v{zg[k%4]+r}")
            if k + 3 < 16: zld(k + 3)
        P("s_nop 2")
        P(f"v_add_f32 v{za}, v{za}, v{za+1}")
        P(f"v_add_f32 v{za+2}, v{za+2}, v{za+3}")
        P(f"v_add_f32 v{za}, v{za}, v{za+2}")
        P(f"s_and_b32 s{S_T0}, s{S_W}, 3")
        P(f"s_lshl_b32 s{S_T0}, s{S_T0}, 8")
        P(f"s_add_u32 s{S_T0}, s{S_T0}, 0x{MISC:x}")
        P(f"v_lshlrev_b32 v{t0}, 2, v{lane}")
        P(f"v_add_u32 v{t0}, s{S_T0}, v{t0}")
        P(f"ds_write_b32 v{t0}, v{za}")
    P(f"s_mov_b32 s{S_T6}, 0x{FL_KV:x}")
    def kv_both(c):
        kv_dma(P, l16, c)
        dma(P, l16, S_WS, f"s{S_T2}", (S_KVLDS, (8192 * (c & 1) - 4096) & 0xffffffff), tag=f"kv{c}", mods=SC1, pre=[f"s_sub_u32 s{S_T2}, s{S_T2}, 32768"])
    def poll_issue():
        P(f"buffer_load_dword v{vn}, v{vz}, s[{S_DBG}:{S_DBG+3}], 0 offen sc1")
        P(flag_load(vfl, 4, l16, f"s{S_T6}"))
    for s in range(0, NP + 1):
        P.wait_tag(f"w{s}")
        P.wait_lgkm_all()
        if s == 0: stamp(P, 14)
        P("s_barrier")
        if s == 0:
            stamp(P, 3)
            P(f"ds_read_b128 {vr(qf,4)}, v{vq} offset:1024")
            P(f"ds_read_b128 {vr(qf+4,4)}, v{vq}")
        if s == NP: kv_both(1)
        if s < NP: w_dma6(s + 2)
        if s == 0:
            P(f"buffer_load_dword v{vn}, v{vz}, s[{S_DBG}:{S_DBG+3}], 0 offen sc1")
            P.wait_tag("gw")
            zjob()
    assert NP >= 1
    stamp(P, 4)
    dq = []; wq2 = []
    def hookL(it, x, pos):
        if pos == "sync?": return 1 <= it <= JIT
        if pos == "pre0": sigstamp(it, 0); return
        if pos == "pre":
            if NP + it < 16: P.wait_tag(f"w{NP+it}")
            sigstamp(it, 1); return
        if (pos == "start" or pos == "chk") and NP + it + 2 < 16:
            assert not dq
            for k in range(0 if OPT.get("abl_ldma") else 6): dq.append(lambda s=NP + it + 2, k=k: w_dma1(s, k))
        midprio(it, x, pos, PL)
        LW = OPT.get("lw", 4)
        if pos == "chk" and it == JIT:
            for b in range(LW):
                for o in range(2):
                    for i in range(2): wq2.append(lambda b=b, o=o, i=i: fin_dma_w2(P, vsl, b, b * 16384, f"fw{b}", i, o))
        if wq2 and pos not in ("pre", "pre0", "chk", "start"):
            wq2.pop(0)()
            if it == UNI - 1 and x == 1 and pos == "g6":
                while wq2: wq2.pop(0)()
        LS = [("pv2", "qk", "pv1"), ("g1", "g3", "g5"), ("g2", "g4", "g6"), ("pv1", "g4", "g5", "g6", "pv2", "g1", "g2"), ("pv2", "pv1")][OPT.get("ls", 3)]
        if pos in LS and dq:
            dq.pop(0)()
            if OPT.get("ls", 3) == 4 and dq and len(dq) % 3 != 0: dq.pop(0)(); (dq.pop(0)() if pos == "pv1" and len(dq) % 3 else None)
    attention(P, A, l16, range(0, UNI), hookL, prioL, kvf=kv_both, bb=OPT.get("bbl", 0))
    assert A["sb"].n == nsb
    assert not dq
    P.cond_end(keep=True)
    P("LF_join:")
    P.join()
    for n in ["wpat0", "wpat1", "wpat2", "vxa", "vq"] + [f"acc{i}{t}" for i in range(3) for t in range(2)] + \
             [f"fx{b}{t}" for b in range(2) for t in range(2)] + [f"fw{b}{i}" for b in range(2) for i in range(3)]: V.release(n)
    stamp(P, 5)

    facc = V.alloc("facc", 16); facc1 = V.alloc("facc1", 16); fa = V.alloc("ffa", 8)
    NB = OPT.get("nb", 6)
    hb = [V.alloc(f"hb{i}", 4) for i in range(NB)]; fb = hb[0]
    vl4 = V.alloc("vl4"); vg = V.alloc("vg"); zt = V.alloc("zt", 2)
    va0 = tr_slice_addr(P, V, "fa0", lane, t0, t1, 0, S_KH, 4)
    vA = [[va0, V.alloc("fa0h")], [V.alloc("fa1"), V.alloc("fa1h")]]
    P(f"s_lshl_b32 s{S_T1}, s{S_HP}, 5")
    P(f"v_xor_b32 v{va0}, s{S_T1}, v{va0}")
    P(f"s_lshr_b32 s{S_T0}, s{S_W}, 1")
    P(f"s_lshl_b32 s{S_T1}, s{S_T0}, 11")
    P(f"v_add_u32 v{va0}, s{S_T1}, v{va0}")
    P(f"v_xor_b32 v{vA[1][0]}, 64, v{va0}")
    P(f"v_add_u32 v{vA[0][1]}, 0x10000, v{va0}")
    P(f"v_add_u32 v{vA[1][1]}, 0x10000, v{vA[1][0]}")
    P(f"s_mul_i32 s{S_FB}, s{S_TILE}, 118")
    P(f"s_add_u32 s{S_FB}, s{S_FB}, s{S_T0}")
    P(f"s_lshl_b32 s{S_FB}, s{S_FB}, 10")
    P(f"s_add_u32 s{S_FB}, s{S_FB}, 0x{WS_OH:x}")
    P(f"v_lshlrev_b32 v{vl4}, 2, v{lane}")
    vhf = V.alloc("vhf")
    P(f"v_lshrrev_b32 v{t0}, 3, v{lane}")
    P(f"v_mul_u32_u24 v{t0}, 96, v{t0}")
    P(f"v_add_u32 v{vhf}, v{t0}, v{vl4}")
    P(f"s_lshl_b32 s{S_T0}, s{S_TT}, 8")
    P(f"s_add_u32 s{S_T0}, s{S_T0}, 0x{MISC:x}")
    P(f"v_add_u32 v{t0}, s{S_T0}, v{vl4}")
    P(f"ds_read_b32 v{zt}, v{t0}")
    P(f"ds_read_b32 v{zt+1}, v{t0} offset:512")
    P(f"v_add_f32 v{zt}, v{zt}, v{zt+1}")
    P(f"v_mov_b32 v{zt+1}, v{zt}")
    P(f"v_permlane32_swap_b32 v{zt}, v{zt+1}")
    P(f"v_add_f32 v{zt}, v{zt}, v{zt+1}")
    P(f"v_mul_f32 v{t0}, {hexf(-LOG2E)}, v{zt}")
    P(f"v_exp_f32 v{t0}, v{t0}")
    P(f"v_add_f32 v{t0}, 1.0, v{t0}")
    P(f"v_rcp_f32 v{vg}, v{t0}")
    V.release("zt")
    vw = [V.alloc(f"vw{i}") for i in range(3)]; vrd = V.alloc("vrd"); vo = V.alloc("vo")
    def sbase(dst, w):
        P(f"s_mul_i32 s{S_T1}, s{w}, 6144")
        P(f"v_add_u32 v{dst}, s{S_T1}, v{l16}")
    sbase(vrd, S_W)
    for b in range(1, 4):
        P(f"s_xor_b32 s{S_T0}, s{S_W}, {b << 1}")
        sbase(vw[b - 1], S_T0)
    P(f"v_and_b32 v{vo}, 31, v{lane}")
    P(f"v_lshlrev_b32 v{vo}, 10, v{vo}")
    P(f"v_lshrrev_b32 v{t1}, 5, v{lane}")
    P(f"v_lshl_add_u32 v{vo}, v{t1}, 4, v{vo}")
    P(f"s_lshl_b32 s{S_OO}, s{S_TILE}, 15")
    P(f"s_lshl_b32 s{S_T1}, s{S_J}, 7")
    P(f"s_add_u32 s{S_OO}, s{S_OO}, s{S_T1}")
    P(f"s_lshl_b32 s{S_T1}, s{S_KH}, 6")
    P(f"s_add_u32 s{S_OO}, s{S_OO}, s{S_T1}")
    P(f"s_lshl_b32 s{S_T1}, s{S_HP}, 5")
    P(f"s_add_u32 s{S_OO}, s{S_OO}, s{S_T1}")
    vp = V.alloc("vp"); vpa = V.alloc("vpa")
    P(f"v_lshlrev_b32 v{vpa}, 10, v{lane}")
    vt0 = V.alloc("vt0"); vt1 = V.alloc("vt1")
    P(f"s_lshr_b32 s{S_T1}, s{S_W}, 1")
    P(f"s_mul_i32 s{S_T1}, s{S_T1}, {16384 - 2048}")
    P(f"s_add_u32 s{S_T1}, s{S_T1}, {3*16384}")
    P(f"v_add_u32 v{vt0}, s{S_T1}, v{vA[0][0]}")
    P(f"v_add_u32 v{vt1}, s{S_T1}, v{vA[1][0]}")
    va = V.alloc("cva"); vb = V.alloc("cvb"); fb = V.alloc("cvon")
    P(f"s_mul_i32 s{S_T0}, s{S_W}, 3072")
    P(f"s_add_u32 s{S_T0}, s{S_T0}, 114688")
    P(f"v_add_u32 v{va}, s{S_T0}, v{l16}")
    P(f"s_xor_b32 s{S_T0}, s{S_W}, 4")
    P(f"s_mul_i32 s{S_T0}, s{S_T0}, 3072")
    P(f"s_add_u32 s{S_T0}, s{S_T0}, 114688")
    P(f"v_add_u32 v{vb}, s{S_T0}, v{l16}")
    P(f"s_add_u32 s{S_OL2}, s{S_OL}, 4096")
    BSLOT = lambda b: ((b % 8) if b < 11 else (b - 8)) * 16384
    def a_reads(r, d):
        o = (4 * r % 64) * 2048; hi = o >> 16; o &= 0xffff
        assert r // 2 in vis, (r, vis)
        rd_done[r // 2] = rd_done.get(r // 2, 0) + 1
        if OPT.get("abl_uds"): return
        P(f"ds_read_b64_tr_b16 {vr(fa+4*d,2)}, v{vA[d][hi]} offset:{o}")
        P(f"ds_read_b64_tr_b16 {vr(fa+4*d+2,2)}, v{vA[d][hi]} offset:{o+1024}")
    def h_load(r):
        if OPT.get("abl_uh"): return
        P(f"s_add_u32 s{S_T2}, s{S_FB}, {4096*r}")
        if r == 21:
            P(f"s_cmp_lt_u32 s{S_W}, 4")
            P(f"s_cselect_b32 s{S_T2}, s{S_T2}, 0x{OOB:x}")
        P(f"buffer_load_dwordx4 {vr(hb[r%NB],4)}, v{l16}, {WSR}, s{S_T2} offen sc1")
    pend = {}
    LW = OPT.get("lw", 4)
    dq = []; vis = set(); issued = {}; rd_done = {}; nxt = dict(b=LW, r=0, d=0, pre=False)
    def qW(b):
        def f(i):
            if not OPT.get("abl_uw"): fin_dma_w1(P, vsl, b, BSLOT(b), f"fw{b}", i)
            issued[b] = issued.get(b, 0) + 1
        for i in range(2): dq.append(lambda i=i: f(i))
    CH = OPT.get("ch", HF + 3); R0 = OPT.get("r0", 2 * (CH + 2))
    DBL = OPT.get("dbl", 64)
    def mstep():
        r, d = nxt["r"], nxt["d"]
        if r >= 22: return
        if not nxt["pre"]:
            a_reads(0, 0); a_reads(0, 1); nxt["pre"] = True; return
        if not OPT.get("abl_um"): P(mfma([facc, facc1][d], fa + 4 * d, hb[r % NB], [facc, facc1][d] if r else None))
        if r + 1 < 22: a_reads(r + 1, d)
        if d == 1 and r + NB < 22: dq.insert(0, lambda r=r: h_load(r + NB))
        nxt["d"] = 1 - d; nxt["r"] = r + d
    US = [("g1", "g4"), ("g2", "g5"), ("g1", "g5"), ("g2", "g6"), ("g3", "g6")][OPT.get("us", 3)]
    VS = [("pv2", "qk"), ("qk", "pv1"), ("pv2", "pv1"), ("g3", "g6"), ("qk", "g6")][OPT.get("vs", 0)]
    def hookU(it, x, pos):
        sig = (x == 0 and (it & 1)); ph = 2 * it + x
        if pos == "sync?": return False
        if pos == "pre0": sigstamp(it, 0); return
        if pos == "pre":
            if it == HF: P.wait_vm_all()
            need = [b for b in issued if issued[b] == 2 and b not in vis and (it == 29 or b <= (max(0, ph + 8 - R0) * (2 if ph + 6 >= DBL else 1)) // 2) and b <= 10]
            if need: P.wait_tag(*[f"fw{b}" for b in need])
            if it == HF: need = need + list(range(LW))
            pend["vis"] = need; pend["free"] = {b for b in rd_done if rd_done[b] >= 4}
            sigstamp(it, 1); return
        if pos == "pv1" and sig and it == HF:
            nonce_check(P, SL, vn, vz)
            flag_store(P, vz, t0, S_FS)
        if pos == "chk":
            vis.update(pend["vis"])
            while it >= HF and nxt["b"] < 15:
                b = nxt["b"]; prev = {8: 0, 9: 1, 10: 2, 11: 3, 12: 4, 13: 5, 14: 6}.get(b)
                if prev is not None and prev not in pend["free"]: break
                qW(b); nxt["b"] += 1
            return
        if pos == "pv2" and x == 0 and it == CH - 1: P(flag_load(vfl, 1, vhf, f"s{S_FP}"))
        if pos == "pv2" and x == 0 and it == CH:
            spin_check(P, SL, [flag_load(vfl, 1, vhf, f"s{S_FP}")], flag_cmp(vfl, 1, t0), sleep=OPT.get("hsl", 4))
            for r in range(NB): dq.insert(r, lambda r=r: h_load(r))
        elif dq and (pos in VS or (pos in ("g2", "g5") and it in (CH, CH + 1)) or (pos == "g5" and OPT.get("d3"))): dq.pop(0)()
        if nxt["r"] >= 22 - OPT.get("tr", 5) and nxt["d"] == 0: pass
        elif (pos in US and ph >= R0) or (pos == US[1] and ph == R0 - 1) or (pos in ("g3", "g6") and ph >= DBL): mstep()
        if pos == "g6" and it == 31 and x == 1:
            assert nxt["b"] == 15, nxt
            print("rounds left for tail:", 22 - nxt["r"])
    def prioU(it, x):
        if not OPT.get("prio", 1): return None
        k = 2 * ((it + 1) & 1) + x
        return int(str(OPT.get("pu", 3210)).zfill(4)[k])
    attention(P, A, l16, range(UNI, 32), hookU, prioU)
    assert not dq
    stamp(P, 6)
    if OPT.get("sig"):
        P(f"s_lshl_b32 s98, s2, 11")
        P(f"s_lshl_b32 s99, s{S_W}, 8")
        P(f"s_add_u32 s98, s98, s99")
        P(f"s_add_u32 s98, s98, 0x{WS_STAMP + (1<<20):x}")
        P(f"buffer_store_dword v{vsig}, v{vl4}, {WSR}, s98 offen")
    P("s_setprio 0")
    P(f"v_mov_b32 v{O[1]+7}, v{O[1]}")
    for i in range(3): P(f"ds_write_b128 v{va}, {vr(O[1]+4+4*i,4)} offset:{1024*i}")
    P.wait_tag(*[f"fw{b}" for b in range(8, 15)]); P.wait_lgkm_all()
    P("s_barrier")
    vis.update(range(11))
    for i in range(3): P(f"ds_read_b128 {vr(O[1]+4+4*i,4)}, v{vb} offset:{1024*i}")
    P(f"v_add_f32 v{O[0]}, v{O[0]}, v{O[1]+7}")
    for r in range(8, 16): P(f"v_add_f32 v{O[0]+r}, v{O[0]+r}, v{O[1]+r}")
    P(f"v_mov_b32 v{t1}, 0x207")
    P(f"v_cmp_nle_f32 vcc, {hexf(2.0**-90)}, v{O[0]}")
    P(f"v_cmp_nge_f32 s[{S_PM}:{S_PM+1}], {'s' + str(S_T0)}, v{O[0]}".replace(f"s{S_T0}", f"s{S_C1}"))
    P(f"s_or_b64 vcc, vcc, s[{S_PM}:{S_PM+1}]")
    P(f"v_add3_u32 v{t0}, v{O[0]+8}, 0, 0".replace("v_add3_u32", "v_add_f32").replace(", 0, 0", f", v{O[0]+9}"))
    for r in range(10, 16): P(f"v_add_f32 v{t0}, v{t0}, v{O[0]+r}")
    P(f"v_cmp_class_f32 s[{S_PM}:{S_PM+1}], v{t0}, v{t1}")
    P(f"s_or_b64 vcc, vcc, s[{S_PM}:{S_PM+1}]")
    if OPT.get("forcefb"): P("s_mov_b64 vcc, -1")
    P("s_cmp_lg_u64 vcc, 0")
    P("s_cbranch_scc1 LF_fb")
    P("LF_fbr:")
    P(f"v_rcp_f32 v{t0}, v{O[0]}")
    P(f"v_mul_f32 v{t0}, v{t0}, v{vg}")
    for r in range(8, 16): P(f"v_mul_f32 v{O[0]+r}, v{O[0]+r}, v{t0}")
    for r in range(4): P(f"v_cvt_pk_bf16_f32 v{O[1]+r}, v{O[0]+8+2*r}, v{O[0]+9+2*r}")
    for r in range(4): P(f"v_min_u32 v{O[1]+r}, 0xfffffffe, v{O[1]+r}")
    P(f"buffer_store_dwordx4 {vr(O[1],4)}, v{l16}, {WSR}, s{S_OD} offen sc1", tag="ost")
    stamp(P, 7)
    K4, V8, ON, CM = A["fk"], A["fv"][0], fb, O[1]
    assert A["fv"][1] == V8 + 4
    nl = "\n    "
    fbk = f"""LF_fb:
    s_waitcnt vmcnt(0) lgkmcnt(0)
    v_mov_b32 v{t0}, 0xff800000
    s_mov_b32 s{S_T0}, 0x{WS_KF:x}
LF_fb1:
    buffer_load_dwordx4 {vr(K4,4)}, v{l16}, {WSR}, s{S_T0} offen sc1
    s_waitcnt vmcnt(0)
    {mfma(S[0], K4, qf)}
    s_nop 15
    {nl.join(f"v_max3_f32 v{t0}, v{S[0]+2*r}, v{S[0]+2*r+1}, v{t0}" for r in range(8))}
    s_add_u32 s{S_T0}, s{S_T0}, 1024
    s_cmp_lt_u32 s{S_T0}, 0x{WS_KF + 65536:x}
    s_cbranch_scc1 LF_fb1
    v_mov_b32 v{t1}, v{t0}
    s_nop 1
    v_permlane32_swap_b32 v{t0}, v{t1}
    s_nop 1
    v_max_f32 v{t0}, v{t0}, v{t1}
    {nl.join(f"v_sub_f32 v{CM+r}, 0, v{t0}" for r in range(16))}
    {nl.join(f"v_mov_b32 v{O[0]+r}, 0" for r in range(16))}
    v_lshrrev_b32 v{t0}, 5, v{lane}
    v_lshlrev_b32 v{t0}, 8, v{t0}
    v_and_b32 v{t1}, 15, v{lane}
    v_lshl_add_u32 v{t0}, v{t1}, 4, v{t0}
    v_and_b32 v{t1}, 16, v{lane}
    v_cmp_eq_u32 vcc, 0, v{t1}
    v_mov_b32 v{t1}, 0x{OOB:x}
    s_nop 1
    v_cndmask_b32 v{t0}, v{t0}, v{t1}, vcc
    v_and_b32 v{t1}, 27, v{lane}
    v_cmp_eq_u32 vcc, 0, v{t1}
    v_mov_b32 v{ON}, 0x3f803f80
    s_nop 1
    v_cndmask_b32 v{ON}, 0, v{ON}, vcc
    s_mov_b32 s{S_T0}, 0x{WS_KF:x}
LF_fb2:
    s_add_u32 s{S_T1}, s{S_T0}, 0x{WS_VF - WS_KF:x}
    buffer_load_dwordx4 {vr(K4,4)}, v{l16}, {WSR}, s{S_T0} offen sc1
    buffer_load_dwordx4 {vr(V8,4)}, v{t0}, {WSR}, s{S_T1} offen sc1
    buffer_load_dwordx4 {vr(V8+4,4)}, v{t0}, {WSR}, s{S_T1} offen offset:512 sc1
    s_waitcnt vmcnt(0)
    {mfma(S[0], K4, qf, CM)}
    {nl.join(f"v_or_b32 v{V8+r}, v{V8+r}, v{ON}" for r in range(8))}
    s_nop 7
    {nl.join(f"v_exp_f32 v{S[0]+r}, v{S[0]+r}" for r in range(16))}
    s_nop 1
    {nl.join(f"v_cvt_pk_bf16_f32 v{S[1]+r}, v{S[0]+2*r}, v{S[0]+2*r+1}" for r in range(8))}
    s_nop 1
    {mfma(O[0], V8, S[1], O[0])}
    {mfma(O[0], V8+4, S[1]+4, O[0])}
    s_add_u32 s{S_T0}, s{S_T0}, 1024
    s_cmp_lt_u32 s{S_T0}, 0x{WS_KF + 65536:x}
    s_cbranch_scc1 LF_fb2
    s_nop 15
    s_branch LF_fbr
"""
    SL.add(fbk)
    for n in ("Sa", "Sb", "Oa", "qf", "fk", "fv1", "fv2"): V.release(n)
    ob = V.alloc("ob", 32); wa = [V.alloc(f"wa{u}", 8) for u in range(8)]
    def oloads(g): return [f"buffer_load_dwordx4 {vr(ob+16*g+4*u,4)}, v{l16}, {WSR}, s{[S_OL,S_OL2][g]} offen offset:{1024*u} sc1" for u in range(4)]
    def ocheck(g):
        b = ob + 16 * g
        L = [f"v_max3_u32 v{t0}, v{b}, v{b+1}, v{b+2}"]
        for k in range(3, 15, 2): L.append(f"v_max3_u32 v{t0}, v{b+k}, v{b+k+1}, v{t0}")
        L += [f"v_max_u32 v{t0}, v{b+15}, v{t0}", f"v_cmp_eq_u32 vcc, -1, v{t0}"]
        return L
    fa2 = V.alloc("ffa2", 8)
    wr = []
    for u in range(8):
        for d, v in ((0, vt0), (1, vt1)):
            wr.append([f"ds_read_b64_tr_b16 {vr(wa[u]+4*d,2)}, v{v} offset:{u*2048}", f"ds_read_b64_tr_b16 {vr(wa[u]+4*d+2,2)}, v{v} offset:{u*2048+1024}"])
    r0 = nxt["r"]; assert nxt["d"] == 0 and not dq
    def tr_reads(r, d):
        o = (4 * r % 64) * 2048; hi = o >> 16; o &= 0xffff; f = [fa, fa2][(r - r0) % 2] + 4 * d
        P(f"ds_read_b64_tr_b16 {vr(f,2)}, v{vA[d][hi]} offset:{o}")
        P(f"ds_read_b64_tr_b16 {vr(f+2,2)}, v{vA[d][hi]} offset:{o+1024}")
    if r0 + 1 < 22: tr_reads(r0 + 1, 0); tr_reads(r0 + 1, 1)
    OL = min(r0 + OPT.get("ol", 99), 22)
    for r in range(r0, 22):
        if r == OL:
            for g in range(2):
                for x in oloads(g): P(x)
        for d in range(2):
            P(mfma([facc, facc1][d], [fa, fa2][(r - r0) % 2] + 4 * d, hb[r % NB], [facc, facc1][d]))
            if r + 2 < 22: tr_reads(r + 2, d)
            elif wr:
                for g in wr[:4]:
                    for x in g: P(x)
                del wr[:4]
    for g in wr:
        for x in g: P(x)
    assert 22 - r0 <= NB and r0 >= 16
    if OPT.get("oab", 1): P.wait_lgkm_all(); P("s_barrier")
    if OL == 22:
        for g in range(2):
            for x in oloads(g): P(x)
    P(f"v_sub_f32 v{t1}, 1.0, v{vg}")
    P(f"v_mov_b32 v{t0}, v{t1}")
    assert t1 == t0 + 1 and t0 % 2 == 0
    for r in range(0, 16, 2): P(f"v_pk_mul_f32 v[{facc+r}:{facc+r+1}], v[{facc+r}:{facc+r+1}], v[{t0}:{t1}]")
    for r in range(0, 16, 2): P(f"v_pk_mul_f32 v[{facc1+r}:{facc1+r+1}], v[{facc1+r}:{facc1+r+1}], v[{t0}:{t1}]")
    if not OPT.get("oab", 1): P.wait_lgkm_all(); P("s_barrier")
    stamp(P, 8)
    nl = "\n    "
    for g in range(2):
        k = SL.n; SL.n += 1
        for x in ocheck(g): P(x)
        P(f"s_cbranch_vccnz LS{k}")
        P(f"LR{k}:")
        SL.add(f"""LS{k}:
{cnt(1+k)}    s_mov_b32 s{S_T7}, 0
LS{k}_p:
    s_sleep {OPT.get("osl", 2)}
    s_mov_b64 exec, 0xf
    buffer_load_dword v{vp}, v{vpa}, {WSR}, s{[S_OL,S_OL2][g]} offen offset:1020 sc1
    s_waitcnt vmcnt(0)
    v_cmp_eq_u32 vcc, -1, v{vp}
    s_mov_b64 exec, -1
    s_add_u32 s{S_T7}, s{S_T7}, 1
    s_cmp_ge_u32 s{S_T7}, 0x{SPIN_MAX:x}
    s_cbranch_scc1 LR{k}
    s_cbranch_vccnz LS{k}_p
    {nl.join(oloads(g))}
    s_waitcnt vmcnt(0)
    {nl.join(ocheck(g))}
    s_cbranch_vccnz LS{k}_p
    s_nop 1
    s_branch LR{k}
""")
        for u in range(4 * g, 4 * g + 4):
            P(mfma(facc1, wa[u] + 4, ob + 4 * u, facc1))
    W1 = [f"ds_write_b128 v{vw[b-1]}, {vr(src+4*i,4)} offset:{2048*(b-1) + 1024*i}" for b, src in ((2, facc1), (3, facc1 + 8)) for i in range(2)]
    for u in range(8):
        P(mfma(facc, wa[u], ob + 4 * u, facc))
        if u >= 3 and W1:
            if u == 3: P("s_nop 7")
            P(W1.pop(0))
    stamp(P, 9)
    for b, src in ((1, facc + 8),):
        for i in range(2): P(f"ds_write_b128 v{vw[b-1]}, {vr(src+4*i,4)} offset:{2048*(b-1) + 1024*i}")
    P.wait_lgkm_all()
    P("s_barrier")
    for i in range(6): P(f"ds_read_b128 {vr(ob+4*i,4)}, v{vrd} offset:{1024*i}")
    for b in range(3):
        for r in range(8): P(f"v_add_f32 v{facc+r}, v{facc+r}, v{ob+8*b+r}")
    for r in range(4): P(f"v_cvt_pk_bf16_f32 v{facc1+r}, v{facc+2*r}, v{facc+2*r+1}")
    P(f"v_permlane32_swap_b32 v{facc1}, v{facc1+2}")
    P(f"v_permlane32_swap_b32 v{facc1+1}, v{facc1+3}")
    P(f"buffer_store_dwordx4 {vr(facc1,4)}, v{vo}, s[{S_OUT}:{S_OUT+3}], s{S_OO} offen")
    if STAMP["on"]:
        P.wait_vm_all(); stamp(P, 10); stamp_dump(P, lane)
        if OPT.get("dbgst") is not None:
            P(f"s_cmp_lg_u32 s2, {OPT['dbgst']}")
            P("s_cbranch_scc1 LF_end")
            P(f"s_cmp_lg_u32 s{S_W}, {OPT.get('dbgw', 0)}")
            P("s_cbranch_scc1 LF_end")
            P(f"v_subrev_u32 v{VSTAMP}, s100, v{VSTAMP}")
            P("s_mov_b64 exec, 0x7fff")
            P(f"buffer_store_dword v{VSTAMP}, v1, s[{S_DBG}:{S_DBG+3}], 0 offen offset:4")
    P("LF_end:")
    P("s_endpgm")
    name = NAME + "_kernel"
    body, I = finalize(P)
    txt = f".text\n.globl {name}\n.p2align 8\n.type {name},@function\n{name}:\n" + body + "".join(SL.txt) + "LF_last:\n    s_endpgm\n"
    vg_ = 256 if STAMP["on"] else max(V.hi, 8)
    txt += KD.format(name=name, vgpr=vg_, sgpr=102 if STAMP['on'] else 96, accum=(vg_ + 3) // 4 * 4)
    return txt, I, vg_


if __name__ == "__main__":
    out = sys.argv[1]
    STAMP["on"] = "stamp" in sys.argv
    for a in sys.argv[2:]:
        if "=" in a: k, v = a.split("="); OPT[k] = int(v)
        else: OPT[a] = True
    import asmlib; asmlib.MERGE_D = OPT.get("md", 9)
    t, I, vg_ = kernel_F()
    DOC = """; One fused kernel, 256 workgroups x 8 waves, one per CU (all co-resident).  Workgroup = (64-token group G, slice j).
;  start : K/V projection of 16 tokens (wave 7) -> d_ws + flag ; Q projection of 4 heads (waves 0-3) ; gate logit
;          true row maximum (LF_fb) whenever that could have overflowed or underflowed.
;  end   : o exchanged through d_ws (words preset to all-ones mean 'not written yet'), output projection, gated mix.
;  Hand-offs: write-through stores, vmcnt, then flags tagged with a per-launch nonce published through d_debug[0].
"""
    hdr = HEADER + DOC + f"; @launch grid=(256,1,1) block=(512,1,1) lds={LDS_BYTES}\n" + '.amdgcn_target "amdgcn-amd-amdhsa--gfx950"\n'
    open(out, "w").write(hdr + t)
    import subprocess
    r = subprocess.run(["clang", "-x", "assembler", "-target", "amdgcn-amd-amdhsa", "-mcpu=gfx950", "-c", out, "-o", "_chk.o"], capture_output=True, text=True)
    if r.returncode: print("ASM ERROR", r.stderr[:500])
    print("insts", len(I), "vgpr", vg_, "nops", sum(1 for x in I if x.kind == "nop"))
```

```python
import sys, re
from parts import *
OPT = {}
S_NONCE = 93
S_HP, S_KH = 30, 31
SH = [4, 5, 6]
S_FS, S_FP, S_OD, S_OL = 7, 8, 9, 10
S_FW, S_FB, S_FL, S_FL2 = 12, 13, 14, 15
S_OO, S_OL2 = 11, 18
S_VM = 28
S_PM = 16
FL_KV, FL_H = WS_FLAG, WS_FLAG + 8192
WKV_L = KV_RING
QSCR = KV_RING + 8192
FSLOT = [0, 32768, 65536, 98304]
WO_CH = [98304, 114688, 0, 32768]
SC1 = " sc1"
SPIN_MAX = 1 << 22
WSR = f"s[{S_WS}:{S_WS+3}]"


def cnt(k):
    if not OPT.get("cnt"): return ""
    return f"""    v_mov_b32 v1, 1
    v_mov_b32 v0, {4*k}
    s_mov_b64 exec, 1
    buffer_atomic_add v1, v0, s[{S_DBG}:{S_DBG+3}], 0 offen
    s_mov_b64 exec, -1
"""


class Slow:
    def __init__(self): self.txt = []; self.n = 0
    def add(self, t): self.txt.append(t)


LOADS = {}
def wq_pieces(P, vsl, s_first, n, label, rot):
    P(f"s_and_b32 s{S_T6}, s{S_G}, 7")
    if rot > 1: P(f"s_mul_i32 s{S_T6}, s{S_T6}, {rot}")
    P(f"s_add_u32 s{S_T5}, s{S_T6}, {n}")
    P(f"s_lshl_b32 s{S_T7}, s{S_J}, 7")
    P(f"{label}:")
    P(f"s_and_b32 s{S_T4}, s{S_T6}, {n-1}")
    P(f"s_add_u32 s{S_T4}, s{S_T4}, s{s_first}")
    P(f"s_mul_i32 s{S_T0}, s{S_T4}, 171")
    P(f"s_lshr_b32 s{S_T0}, s{S_T0}, 12")
    P(f"s_lshl_b32 s{S_T1}, s{S_T4}, 2")
    P(f"s_add_u32 s{S_T0}, s{S_T0}, s{S_T1}")
    P(f"s_lshl_b32 s{S_T0}, s{S_T0}, 8")
    P(f"s_add_u32 m0, s{S_T0}, 0x{SLOT[0]:x}")
    P(f"s_lshl_b32 s{S_T2}, s{S_T4}, 13")
    P(f"s_add_u32 s{S_T2}, s{S_T2}, s{S_T7}")
    P(f"s_add_u32 s{S_T6}, s{S_T6}, 1")
    P(f"buffer_load_dwordx4 v{vsl}, s[{S_WQ}:{S_WQ+3}], s{S_T2} offen lds")
    P.I[-1].kind = "salu"
    P(f"s_cmp_lg_u32 s{S_T6}, s{S_T5}")
    P(f"s_cbranch_scc1 {label}")


def emit_loads(P, l16, vsl, sfx):
    if sfx == "h":
        P(f"s_lshr_b32 s{S_T4}, s{S_J}, 1")
        P(f"s_lshl_b32 s{S_T4}, s{S_T4}, 4")
        P(f"s_mul_i32 s{S_T1}, s{S_W}, 12")
        P(f"s_add_u32 s{S_T4}, s{S_T4}, s{S_T1}")
        P(f"s_add_u32 s{S_T4}, s{S_T4}, 16")
        P(f"s_lshl_b32 s{S_T0}, s{S_G}, 16")
        P(f"s_and_b32 s{S_T6}, s{S_J}, 3")
        P(f"s_mul_i32 s{S_T6}, s{S_T6}, 3")
        P(f"s_mov_b32 s{S_T5}, 12")
        mk_srd(P, S_X, 4, SZ["x"])
        P("LF_ldx1:")
        P(f"s_add_u32 s{S_T1}, s{S_T6}, s{S_T4}")
        P(f"s_and_b32 s{S_T1}, s{S_T1}, 63")
        P(f"s_mul_i32 m0, s{S_T1}, {X_STRIDE}")
        P(f"s_lshl_b32 s{S_T2}, s{S_T1}, 10")
        P(f"s_add_u32 s{S_T2}, s{S_T2}, s{S_T0}")
        P(f"s_add_u32 s{S_T6}, s{S_T6}, 1")
        P(f"s_cmp_eq_u32 s{S_T6}, 12")
        P(f"s_cselect_b32 s{S_T6}, 0, s{S_T6}")
        P(f"buffer_load_dwordx4 v{l16}, s[{S_X}:{S_X+3}], s{S_T2} offen lds", tag="q")
        P(f"s_sub_u32 s{S_T5}, s{S_T5}, 1")
        P(f"s_cmp_lg_u32 s{S_T5}, 0")
        P("s_cbranch_scc1 LF_ldx1")
    else:
        mk_srd(P, S_WQ, 6, SZ["wq"])
        P(f"s_and_b32 s{S_T3}, s{S_W}, 3")
        P(f"s_lshl_b32 s{S_T3}, s{S_T3}, 3")
        wq_pieces(P, vsl, S_T3, 8, "LF_ldq1", 1)
        P(f"s_add_u32 s{S_T3}, s{S_T3}, 24")
        wq_pieces(P, vsl, S_T3, 8, "LF_ldq2", 1)


def prologue_f(P, V, endlabel):
    if STAMP["on"]: P("s_memrealtime s[100:101]")
    P("s_cmp_ge_u32 s2, 256")
    P(f"s_cbranch_scc1 {endlabel}")
    P("s_load_dwordx16 s[4:19], s[0:1], 0")
    P("s_load_dwordx8 s[20:27], s[0:1], 64")
    P("s_load_dwordx2 s[28:29], s[0:1], 96")
    lane = V.alloc("lane"); l16 = V.alloc("l16")
    P(f"v_lshrrev_b32 v1, 6, v0")
    P(f"v_and_b32 v{lane}, 63, v0")
    P(f"v_readfirstlane_b32 s{S_W}, v1")
    P(f"v_lshlrev_b32 v{l16}, 4, v{lane}")
    P(f"s_lshr_b32 s{S_T0}, s2, 3")
    if OPT.get("jrot"): P(f"s_add_u32 s{S_J}, s{S_T0}, {OPT['jrot']}"); P(f"s_and_b32 s{S_J}, s{S_J}, 3")
    else: P(f"s_and_b32 s{S_J}, s{S_T0}, 3")
    P(f"s_and_b32 s{S_T1}, s2, 1")
    P(f"s_lshl_b32 s{S_T1}, s{S_T1}, 2")
    P(f"s_add_u32 s{S_J}, s{S_J}, s{S_T1}")
    P(f"s_and_b32 s{S_G}, s2, 6")
    P(f"s_lshl_b32 s{S_G}, s{S_G}, 2")
    P(f"s_lshr_b32 s{S_T0}, s{S_T0}, 2")
    P(f"s_add_u32 s{S_G}, s{S_G}, s{S_T0}")
    t0 = V.alloc("t0"); t1 = V.alloc("t1")
    vsl = slice_pattern(P, V, lane, t0)
    LOADS["f"] = lambda sfx: emit_loads(P, l16, vsl, sfx)
    P(f"s_and_b32 s{S_TT}, s{S_W}, 1")
    P(f"s_lshl_b32 s{S_TILE}, s{S_G}, 1")
    P(f"s_add_u32 s{S_TILE}, s{S_TILE}, s{S_TT}")
    P(f"s_lshr_b32 s{S_HP}, s{S_W}, 1")
    P(f"s_and_b32 s{S_HP}, s{S_HP}, 1")
    P(f"s_lshr_b32 s{S_KH}, s{S_W}, 2")
    assert all((p * 171) >> 12 == p // 24 for p in range(64)) and SLOT_SZ == 3 * 8192 + 256
    return lane, l16, t0, t1, vsl


def rest_srds(P):
    P(f"s_cmp_eq_u32 s{S_TT}, 0")
    P(f"s_cselect_b32 s{S_WM}, s16, s18")
    P(f"s_cselect_b32 s{S_WM+1}, s17, s19")
    P(f"s_and_b32 s{S_WM+1}, s{S_WM+1}, 0xffff")
    P(f"s_mov_b32 s{S_WM+2}, 0x{SZ['wg']:x}")
    P(f"s_mov_b32 s{S_WM+3}, 0x20000")
    mk_srd(P, S_OUT, 24, SZ["out"])
    mk_srd(P, S_WO, 12, SZ["wo"])
    mk_srd(P, S_WD, 20, SZ["wd"])


def nonce_check(P, SL, vn, vz):
    k = SL.n; SL.n += 1
    P(f"v_readfirstlane_b32 s{S_NONCE}, v{vn}")
    P(f"s_cmp_eq_u32 s{S_NONCE}, 0")
    P(f"s_cbranch_scc1 LS{k}")
    P(f"LR{k}:")
    SL.add(f"""LS{k}:
{cnt(1+k)}    s_mov_b32 s{S_T7}, 0
LS{k}_l:
    s_sleep 2
    buffer_load_dword v{vn}, v{vz}, s[{S_DBG}:{S_DBG+3}], 0 offen sc1
    s_waitcnt vmcnt(0)
    v_readfirstlane_b32 s{S_NONCE}, v{vn}
    s_add_u32 s{S_T7}, s{S_T7}, 1
    s_cmp_ge_u32 s{S_T7}, 0x{SPIN_MAX:x}
    s_cbranch_scc1 LR{k}
    s_cmp_eq_u32 s{S_NONCE}, 0
    s_cbranch_scc1 LS{k}_l
    s_branch LR{k}
""")


def flag_load(vf, n, vaddr, soff):
    op = {1: "buffer_load_dword", 4: "buffer_load_dwordx4"}[n]
    return f"{op} {vr(vf,n)}, v{vaddr}, {WSR}, {soff} offen sc1"


def flag_cmp(vf, n, t):
    L = [f"v_xor_b32 v{t}, s{S_NONCE}, v{vf}"]
    for i in range(1, n):
        L += [f"v_xor_b32 v{vf+i}, s{S_NONCE}, v{vf+i}", f"v_or_b32 v{t}, v{t}, v{vf+i}"]
    L += [f"v_cmp_ne_u32 vcc, 0, v{t}"]
    return L


def spin_check(P, SL, loads, cmps, sleep=1):
    k = SL.n; SL.n += 1
    for x in cmps: P(x)
    P(f"s_cbranch_vccnz LS{k}")
    P(f"LR{k}:")
    nl = "\n    "
    SL.add(f"""LS{k}:
{cnt(1+k)}    s_mov_b32 s{S_T7}, 0
LS{k}_l:
    {f"s_sleep {sleep}" if sleep else "s_nop 0"}
    {nl.join(loads)}
    s_waitcnt vmcnt(0)
    {nl.join(cmps)}
    s_add_u32 s{S_T7}, s{S_T7}, 1
    s_cmp_ge_u32 s{S_T7}, 0x{SPIN_MAX:x}
    s_cbranch_scc1 LR{k}
    s_cbranch_vccnz LS{k}_l
    s_nop 1
    s_branch LR{k}
""")


def flag_store(P, vz, t, soff):
    P(f"v_mov_b32 v{t}, s{S_NONCE}")
    P("s_mov_b64 exec, 1")
    P(f"buffer_store_dword v{t}, v{vz}, {WSR}, s{soff} offen sc1", tag="flag")
    P("s_mov_b64 exec, -1")


PROG = MISC + 1024
class SplitBar:
    def __init__(self, P, V, SL, lane, t0):
        self.P, self.SL, self.n = P, SL, 0
        self.va = V.alloc("sba"); self.vr = V.alloc("sbr"); self.one = V.alloc("sb1"); self.vg = V.alloc("sbg")
        P(f"s_lshl_b32 s{S_T0}, s{S_W}, 8")
        P(f"s_add_u32 s{S_T0}, s{S_T0}, 0x{PROG:x}")
        P(f"v_lshlrev_b32 v{t0}, 2, v{lane}")
        P(f"v_add_u32 v{self.va}, s{S_T0}, v{t0}")
        P(f"v_and_b32 v{t0}, 7, v{lane}")
        P(f"v_mul_u32_u24 v{t0}, 260, v{t0}")
        P(f"v_add_u32 v{self.vr}, 0x{PROG:x}, v{t0}")
        P(f"v_mov_b32 v{self.one}, 0")
        P(f"ds_write_b32 v{self.va}, v{self.one}")
        P(f"v_mov_b32 v{self.one}, 1")
    def arrive(self):
        self.n += 1
        self.P(f"ds_add_u32 v{self.va}, v{self.one}")
    def peek(self): self.P(f"ds_read_b32 v{self.vg}, v{self.vr}")
    def check(self):
        k = self.SL.n; self.SL.n += 1
        self.P(f"v_cmp_gt_u32 vcc, {self.n}, v{self.vg}")
        self.P(f"s_cbranch_vccz LR{k}")
        self.P(f"LS{k}:")
        for t in ([f"s_sleep {OPT['ssl']}"] if OPT.get("ssl") else []) + [f"ds_read_b32 v{self.vg}, v{self.vr}", "s_waitcnt lgkmcnt(0)", f"v_cmp_gt_u32 vcc, {self.n}, v{self.vg}", f"s_cbranch_vccnz LS{k}"]:
            self.P(t); self.P.I[-1].kind = "salu"; self.P.I[-1].vw = set(); self.P.I[-1].vr = set()
        self.P(f"LR{k}:")


def attn_setup(P, V, lane, l16, t0, t1):
    A = {}
    P(f"s_lshl_b32 s{S_T1}, s{S_KH}, 12")
    vk = V.alloc("vk"); vv = [V.alloc("vv0"), V.alloc("vv1")]
    P(f"s_add_u32 s{S_T1}, s{S_T1}, 0x{KV_RING:x}")
    P(f"v_add_u32 v{vk}, s{S_T1}, v{l16}")
    P(f"v_lshrrev_b32 v{t0}, 5, v{lane}")
    P(f"v_lshlrev_b32 v{t0}, 8, v{t0}")
    P(f"v_and_b32 v{t1}, 15, v{lane}")
    P(f"v_lshl_add_u32 v{t0}, v{t1}, 4, v{t0}")
    P(f"v_and_b32 v{t1}, 16, v{lane}")
    P(f"v_cmp_eq_u32 vcc, 0, v{t1}")
    P(f"s_add_u32 s{S_T1}, s{S_T1}, 2048")
    for s in range(2):
        P(f"v_mov_b32 v{t1}, s{S_T1}")
        P(f"v_add_u32 v{t1}, {8192*s}, v{t1}")
        P(f"v_mov_b32 v{vv[s]}, 0x{ONES:x}")
        P(f"v_cndmask_b32 v{vv[s]}, v{t1}, v{vv[s]}, vcc")
        P(f"v_add_u32 v{vv[s]}, v{vv[s]}, v{t0}")
    P(f"s_lshl_b32 s{S_KVOFF}, s{S_KH}, 15")
    P(f"s_lshl_b32 s{S_T1}, s{S_HP}, 16")
    P(f"s_add_u32 s{S_KVOFF}, s{S_KVOFF}, s{S_T1}")
    P(f"s_lshl_b32 s{S_T1}, s{S_TT}, 10")
    P(f"s_add_u32 s{S_KVOFF}, s{S_KVOFF}, s{S_T1}")
    P(f"s_lshl_b32 s{S_KVLDS}, s{S_W}, 10")
    P(f"s_add_u32 s{S_KVLDS}, s{S_KVLDS}, 0x{KV_RING:x}")
    A.update(vk=vk, vv=vv)
    A["S"] = [V.alloc("Sa", 16), V.alloc("Sb", 16)]
    A["O"] = [V.alloc("Oa", 16), V.alloc("Ob", 16)]
    A["fk"] = V.alloc("fk", 4); A["fv"] = [V.alloc("fv1", 4), V.alloc("fv2", 4)]
    A["q"] = V.alloc("qf", 8)
    return A


def kv_dma(P, l16, c):
    dma(P, l16, S_WS, f"s{S_T2}", (S_KVLDS, 8192 * (c & 1)), tag=f"kv{c}", mods=SC1, pre=[f"s_add_u32 s{S_T2}, s{S_KVOFF}, {2048*c}"])


def attention(P, A, l16, its, hook, prio, kvf=None, bb=1):
    S, O, fk, fv = A["S"], A["O"], A["fk"], A["fv"]
    SB = OPT.get("sb", 0)
    q = [A["q"], A["q"] + 4]
    def rdK(it): P(f"ds_read_b128 {vr(fk,4)}, v{A['vk']} offset:{((it>>1)&1)*8192 + (it&1)*1024}")
    def rdV(it, half):
        m = OPT.get("vmask", 1) and it > 0
        if m: P(f"s_mov_b64 exec, s[{S_VM}:{S_VM+1}]")
        P(f"ds_read_b128 {vr(fv[half],4)}, v{A['vv'][(it>>1)&1]} offset:{(it&1)*1024 + half*512}")
        if m: P("s_mov_b64 exec, -1")
    E = lambda x, i: P(f"v_exp_f32 v{S[x]+i}, v{S[x]+i}")
    def C(x, i):
        b = S[x] + (8 if i >= 4 else 0); k = i & 3
        P(f"v_cvt_pk_bf16_f32 v{b+k}, v{b+2*k}, v{b+2*k+1}")
    for it in its:
        if it == 0:
            if OPT.get("vmask", 1): P(f"s_mov_b32 s{S_VM}, 0xffff0000"); P(f"s_mov_b32 s{S_VM+1}, 0xffff0000")
            rdK(0); rdV(0, 0)
            hook(0, 0, "start")
            P(mfma(S[0], fk, q[0]))
        for x in range(2):
            H = lambda pos: hook(it, x, pos)
            E(x, 0); E(x, 1)
            if x == 0:
                if it > 0: P(mfma(O[1], fv[1], S[1] + 8, O[1]))
                rdV(it, 1)
            else:
                P(mfma(O[0], fv[1], S[0] + 8, O[0]))
            H("pv2")
            E(x, 2); E(x, 3); H("g1")
            E(x, 4); E(x, 5); H("g2")
            E(x, 6); E(x, 7)
            if bb:
                H("g3")
                for i in range(4): C(x, i)
            if x == 0: P(mfma(S[1], fk, q[1]))
            elif it < 31: P(mfma(S[0], fk, q[0]))
            H("qk")
            sig = (x == 0 and (it & 1) and it < 31)
            syn = sig or (x == 0 and hook(it, x, "sync?"))
            ORD = OPT.get("ord", 2) if syn else 0
            if bb:
                E(x, 8); E(x, 9); H("g4")
                E(x, 10); E(x, 11)
                if ORD == 2: P(mfma(O[x], fv[0], S[x], None if it == 0 else O[x]))
            else:
                for i in range(4): C(x, i)
                if ORD == 0: H("g3")
                E(x, 8); E(x, 9)
                if ORD == 2: P(mfma(O[x], fv[0], S[x], None if it == 0 else O[x])); H("g3")
            if syn:
                H("pre0")
                if sig: P.wait_tag(f"kv{(it>>1)+1}")
                H("pre")
                P.wait_lgkm_all()
                P("s_barrier")
            if ORD != 2: P(mfma(O[x], fv[0], S[x], None if it == 0 else O[x]))
            p = prio(it, x)
            if p is not None: P(f"s_setprio {p}")
            if x == 0:
                if it < 31: rdK(it + 1)
                if (it & 1) and (it >> 1) + 2 < 16: (kvf or (lambda c: kv_dma(P, l16, c)))((it >> 1) + 2)
                if syn: hook(it, 0, "chk")
            else:
                if it < 31: rdV(it + 1, 0)
            H("pv1")
            if not bb: E(x, 10); E(x, 11); H("g4")
            E(x, 12); E(x, 13); H("g5")
            E(x, 14); E(x, 15); H("g6")
            for i in range(4, 8): C(x, i)
        if it == 31: P(mfma(O[1], fv[1], S[1] + 8, O[1]))


def fin_dma_w1(P, vsl, st, slot, tag, i):
    srd, u0 = (S_WD, 8 * st) if st < 11 else (S_WO, 8 * (st - 11))
    dma(P, vsl, srd, f"s{S_T2}", (S_FL2, slot + 1024 * i), tag=tag, pre=[f"s_add_u32 s{S_T2}, s{S_FW}, 0x{(16*u0 + 8*i)*1024:x}"])


def fin_dma_w2(P, vsl, st, slot, tag, i, other):
    dma(P, vsl, S_WD, f"s{S_T2}", (S_FL2, (slot + 1024 * i - 8192 * other) & 0xffffffff), tag=tag,
        pre=[f"s_add_u32 s{S_T2}, s{S_FW}, 0x{((128*st + 8*i)*1024 - 65536*other) & 0xffffffff:x}"])


def fin_dma_b1(P, l16, st, slot, tag, t):
    P(f"s_add_u32 s{S_T2}, s{S_FB}, 0x{(t*118 + 8*st)*1024:x}")
    if st == 10:
        P(f"s_cmp_lt_u32 s{S_W}, 6")
        P(f"s_cselect_b32 s{S_T2}, s{S_T2}, 0x{OOB:x}")
    dma(P, l16, S_WS, f"s{S_T2}", (S_FL, slot + 16384 + 8192 * t), tag=tag, mods=SC1)


def kernel_F():
    P = Prog(); V = Regs(2, 255, "v"); SL = Slow()
    NP = OPT.get("np", 1)
    JIT = 16 - NP
    GPP = OPT.get("gpp", 2)
    UNI = OPT.get("uni", JIT + 2)
    HF = OPT.get("hf", UNI | 1)
    lane, l16, t0, t1, vsl = prologue_f(P, V, "LF_end")
    vz = V.alloc("vz")
    P(f"s_cmp_lg_u32 s{S_W}, 7")
    P("s_cbranch_scc1 LF_not7")
    P(f"s_lshr_b32 s{S_T4}, s{S_J}, 1")
    P(f"s_lshl_b32 s{S_T0}, s{S_G}, 16")
    P(f"s_lshl_b32 s{S_T2}, s{S_T4}, 14")
    P(f"s_add_u32 s{S_T2}, s{S_T2}, s{S_T0}")
    P(f"s_mul_i32 m0, s{S_T4}, {16*X_STRIDE}")
    P(f"s_and_b32 s{S_T3}, s{S_J}, 1")
    P(f"s_mov_b32 s{S_T5}, 0")
    P("s_waitcnt lgkmcnt(0)")
    mk_srd(P, S_X, 4, SZ["x"])
    if OPT.get("u7", 1):
        P(f"s_sub_u32 s{S_X}, s{S_X}, 64")
        P(f"s_subb_u32 s{S_X+1}, s{S_X+1}, 0")
        P(f"s_mov_b32 s{S_X+2}, 0x{SZ['x'] + 64:x}")
        P(f"s_add_u32 s{S_T2}, s{S_T2}, 64")
        for g in range(4):
            for k in range(4):
                if k == 0:
                    if g: P(f"s_add_u32 m0, m0, {4*X_STRIDE}"); P(f"s_add_u32 s{S_T2}, s{S_T2}, {4096 + 48}")
                else: P(f"s_sub_u32 s{S_T2}, s{S_T2}, 16")
                P(f"buffer_load_dwordx4 v{l16}, s[{S_X}:{S_X+3}], s{S_T2} offen offset:{X_STRIDE*k} lds", tag="c")
    else:
        P("LF_ldx7:")
        P(f"buffer_load_dwordx4 v{l16}, s[{S_X}:{S_X+3}], s{S_T2} offen lds", tag="c")
        P(f"s_add_u32 m0, m0, {X_STRIDE}")
        P(f"s_add_u32 s{S_T2}, s{S_T2}, 1024")
        P(f"s_add_u32 s{S_T5}, s{S_T5}, 1")
        P(f"s_cmp_lg_u32 s{S_T5}, 16")
        P("s_cbranch_scc1 LF_ldx7")
    P(f"s_cmp_eq_u32 s{S_T3}, 0")
    P(f"s_cselect_b32 s{S_WKV}, s8, s10")
    P(f"s_cselect_b32 s{S_WKV+1}, s9, s11")
    P(f"s_and_b32 s{S_WKV+1}, s{S_WKV+1}, 0xffff")
    P(f"s_mov_b32 s{S_WKV+2}, 0x{SZ['wk']:x}")
    P(f"s_mov_b32 s{S_WKV+3}, 0x20000")
    P(f"s_mov_b32 m0, 0x{WKV_L:x}")
    P(f"s_mov_b32 s{S_T5}, 0")
    P("LF_ldw7:")
    for i in range(4):
        P(f"buffer_load_dwordx4 v{l16}, s[{S_WKV}:{S_WKV+3}], s{S_T5} offen offset:{1024*i} lds")
        P.I[-1].kind = "salu"
    P(f"s_add_u32 m0, m0, 4096")
    P(f"s_add_u32 s{S_T5}, s{S_T5}, 4096")
    P(f"s_cmp_lg_u32 s{S_T5}, 16384")
    P("s_cbranch_scc1 LF_ldw7")
    stamp(P, 15)
    P("s_barrier")
    P("LF_not7:")
    P("s_waitcnt lgkmcnt(0)")
    if OPT.get("cpf", 1):
        c = V.alloc("cpf")
        P(f"s_getpc_b64 s[{S_EX}:{S_EX+1}]")
        P("LF_pc0:")
        P(f"s_lshr_b32 s{S_T3}, s2, 3")
        P(f"s_lshl_b32 s{S_T3}, s{S_T3}, 3")
        P(f"s_add_u32 s{S_T3}, s{S_T3}, s{S_W}")
        P(f"s_lshl_b32 s{S_T3}, s{S_T3}, 8")
        P(f"v_lshlrev_b32 v{c}, 7, v{lane}")
        P(f"v_add_u32 v{c}, s{S_T3}, v{c}")
        P(f"v_min_u32 v{c}, LF_last-LF_pc0, v{c}")
        P("s_mov_b64 exec, 3")
        P(f"global_load_dword v{c}, v{c}, s[{S_EX}:{S_EX+1}]", tag="cpf")
        P("s_mov_b64 exec, -1")
    P(f"v_mov_b32 v{vz}, 0")
    mk_srd(P, S_WS, 28, SZ["ws"])
    mk_srd(P, S_DBG, 26, SZ["dbg"])
    vn = V.alloc("vn")
    P(f"s_or_b32 s{S_T0}, s2, s{S_W}")
    P(f"s_cmp_lg_u32 s{S_T0}, 0")
    P("s_cbranch_scc1 LF_non")
    P.cond_begin()
    P(f"s_memrealtime s[{S_EX}:{S_EX+1}]")
    P("s_waitcnt lgkmcnt(0)")
    P(f"s_mul_i32 s{S_EX+1}, s{S_EX+1}, 0x9e3779b1")
    P(f"s_xor_b32 s{S_EX}, s{S_EX}, s{S_EX+1}")
    P(f"s_or_b32 s{S_EX}, s{S_EX}, 1")
    P(f"v_mov_b32 v{t0}, s{S_EX}")
    P("s_mov_b64 exec, 1")
    P(f"buffer_store_dword v{t0}, v{vz}, s[{S_DBG}:{S_DBG+3}], 0 offen sc1")
    P("s_mov_b64 exec, -1")
    P.cond_end()
    P("LF_non:")
    P_main = P; P = Prog()
    rest_srds(P)
    mk_srd(P, S_GW, 22, SZ["gw"])
    P(f"s_mov_b32 s{S_C1}, {hexf(2.0**120)}")
    A = attn_setup(P, V, lane, l16, t0, t1)
    qf = A["q"]; O = A["O"]; S = A["S"]
    A["sb"] = SplitBar(P, V, SL, lane, t0) if OPT.get("sb", 0) else type("X", (), dict(n=0))()
    vfl = V.alloc("vfl", 4)
    P(f"s_lshl_b32 s{S_T0}, s{S_HP}, 1")
    P(f"s_add_u32 s{S_T0}, s{S_T0}, s{S_KH}")
    P(f"s_lshl_b32 s{S_T1}, s{S_J}, 2")
    P(f"s_add_u32 s{S_T0}, s{S_T0}, s{S_T1}")
    P(f"s_mul_i32 s{S_T1}, s{S_TILE}, 118")
    P(f"s_add_u32 s{S_T0}, s{S_T0}, s{S_T1}")
    P(f"s_lshl_b32 s{S_T0}, s{S_T0}, 10")
    P(f"s_add_u32 s{S_OD}, s{S_T0}, 0x{WS_OH + 86*1024:x}")
    def poison():
        for r in range(4): P(f"v_mov_b32 v{O[0]+r}, -1")
        P(f"buffer_store_dwordx4 {vr(O[0],4)}, v{l16}, {WSR}, s{S_OD} offen sc1", tag="poison")
    P(f"s_lshr_b32 s{S_T0}, s{S_W}, 1")
    P(f"s_lshl_b32 s{S_T0}, s{S_T0}, 3")
    P(f"s_add_u32 s{S_T0}, s{S_T0}, s{S_T1}")
    P(f"s_lshl_b32 s{S_T0}, s{S_T0}, 10")
    P(f"s_add_u32 s{S_OL}, s{S_T0}, 0x{WS_OH + 86*1024:x}")
    P(f"s_lshl_b32 s{S_FP}, s{S_G}, 10")
    P(f"s_lshl_b32 s{S_FS}, s{S_J}, 5")
    P(f"s_add_u32 s{S_FS}, s{S_FS}, s{S_W}")
    P(f"s_lshl_b32 s{S_FS}, s{S_FS}, 2")
    P(f"s_add_u32 s{S_FS}, s{S_FS}, s{S_FP}")
    P(f"s_add_u32 s{S_FS}, s{S_FS}, 0x{FL_H:x}")
    P(f"s_add_u32 s{S_FP}, s{S_FP}, 0x{FL_H:x}")
    P(f"s_lshl_b32 s{S_FW}, s{S_W}, 14")
    P(f"s_lshl_b32 s{S_T1}, s{S_J}, 7")
    P(f"s_add_u32 s{S_FW}, s{S_FW}, s{S_T1}")
    P(f"s_lshl_b32 s{S_FL2}, s{S_W}, 11")
    P(f"s_mul_i32 s{S_U0}, s{S_J}, 11")
    P(f"s_min_u32 s{S_U0}, s{S_U0}, 76")
    P(f"s_cmp_ge_u32 s{S_J}, 6")
    P(f"s_cselect_b32 s{S_NU}, 10, 11")
    vxa = xfrag_addr(P, V, "vxa", lane, t0, S_TT)
    vq = V.alloc("vq")
    P(f"s_and_b32 s{S_T0}, s{S_W}, 3")
    P(f"s_lshl_b32 s{S_T1}, s{S_T0}, 11")
    P(f"s_add_u32 s{S_T1}, s{S_T1}, 0x{QSCR:x}")
    P(f"v_add_u32 v{vq}, s{S_T1}, v{l16}")
    COMMON = P.I; P = P_main
    def emit(L):
        for x in L: P(x.text, tag=x.tag)
    iw = next(i for i, x in enumerate(COMMON) if x.text.startswith(f"s_mov_b32 s{S_WM+3},")) + 1
    iu = next(i for i, x in enumerate(COMMON) if x.text.startswith(f"s_mul_i32 s{S_U0},"))
    C_EARLY = COMMON[:iw] + COMMON[iu:iu + 4]; C_LATE = COMMON[iw:iu] + COMMON[iu + 4:]
    acc = [[V.alloc(f"acc{i}{t}", 16) for t in range(2)] for i in range(3)]
    fx = [[V.alloc(f"fx{b}{t}", 4) for t in range(2)] for b in range(2)]
    fw = [[V.alloc(f"fw{b}{i}", 4) for i in range(3)] for b in range(2)]
    S_PFB = 19
    def capture(f):
        nonlocal P
        P0 = P; P = Prog(); f(); L = P.I; P = P0
        return L
    R = {}
    def f1():
        vtn = tr_slice_addr(P, V, "vtn", lane, t0, t1, SLOT[0], S_HP, 8)
        vpf = V.alloc("vpf"); vpd = V.alloc("vpd"); vpw = V.alloc("vpw")
        P(f"v_bfe_u32 v{t0}, v{lane}, 4, 1")
        P(f"v_lshrrev_b32 v{t1}, 5, v{lane}")
        P(f"v_lshl_add_u32 v{t0}, v{t1}, 7, v{t0}")
        P(f"v_mul_u32_u24 v{vpf}, 2752, v{t0}")
        P(f"v_and_b32 v{t0}, 15, v{lane}")
        P(f"v_lshl_add_u32 v{vpf}, v{t0}, 7, v{vpf}")
        P(f"v_cmp_gt_u32 vcc, 12, v{t0}")
        P(f"v_mov_b32 v{t1}, 0x{OOB:x}")
        P(f"v_cndmask_b32 v{vpf}, v{t1}, v{vpf}, vcc")
        P(f"s_lshr_b32 s{S_T0}, s2, 3")
        P(f"s_lshl_b32 s{S_T0}, s{S_T0}, 1")
        P(f"s_add_u32 s{S_T0}, s{S_T0}, s{S_HP}")
        P(f"s_mul_i32 s{S_T0}, s{S_T0}, {2*2752}")
        P(f"s_and_b32 s{S_T1}, s2, 1")
        P(f"s_mul_i32 s{S_T1}, s{S_T1}, {44*32}")
        P(f"s_add_u32 s{S_PFB}, s{S_T0}, s{S_T1}")
        R.update(vtn=vtn, vpf=vpf, vpd=vpd, vpw=vpw)
    def f2():
        vx0 = V.alloc("vx0")
        P(f"s_mul_i32 s{S_T0}, s{S_TT}, {32*X_STRIDE}")
        P(f"v_subrev_u32 v{vx0}, s{S_T0}, v{vxa}")
        P(f"s_lshl_b32 s{S_T4}, s{S_W}, 1")
        wtr = w_tr_addrs(P, V, lane, t0, t1, s_w=S_T4)
        R.update(vx0=vx0, wtr=wtr)
    def f3():
        P(f"s_mul_i32 s{S_T0}, s{S_W}, 3")
        P(f"s_mul_i32 s{S_T1}, s{S_G}, 236")
        P(f"s_add_u32 s{S_T1}, s{S_T1}, s{S_U0}")
        for i in range(3):
            P(f"s_add_u32 s{S_T2}, s{S_T0}, {i}")
            P(f"s_add_u32 s{SH[i]}, s{S_T1}, s{S_T2}")
            P(f"s_lshl_b32 s{SH[i]}, s{SH[i]}, 10")
            P(f"s_add_u32 s{SH[i]}, s{SH[i]}, 0x{WS_OH:x}")
            P(f"s_cmp_lt_u32 s{S_T2}, s{S_NU}")
            P(f"s_cselect_b32 s{SH[i]}, s{SH[i]}, 0x{OOB:x}")
    def f4():
        vpw = R["vpw"]
        S_PFS = S_WKV
        P(f"s_lshr_b32 s{S_T0}, s2, 3")
        P(f"s_lshl_b32 s{S_T0}, s{S_T0}, 2")
        P(f"s_add_u32 s{S_T0}, s{S_T0}, s{S_W}")
        P(f"s_cmp_lt_u32 s{S_T0}, 86")
        P(f"s_cselect_b32 s{S_PFS}, s{S_WD}, s{S_WO}")
        P(f"s_cselect_b32 s{S_PFS+1}, s{S_WD+1}, s{S_WO+1}")
        P(f"s_cselect_b32 s{S_PFS+2}, s{S_WD+2}, s{S_WO+2}")
        P(f"s_cselect_b32 s{S_T1}, 0, 86")
        P(f"s_mov_b32 s{S_PFS+3}, 0x20000")
        P(f"s_sub_u32 s{S_T0}, s{S_T0}, s{S_T1}")
        P(f"s_lshl_b32 s{S_T0}, s{S_T0}, 14")
        P(f"s_and_b32 s{S_T1}, s2, 1")
        P(f"s_lshl_b32 s{S_T1}, s{S_T1}, 9")
        P(f"s_add_u32 s{S_T0}, s{S_T0}, s{S_T1}")
        P(f"v_lshrrev_b32 v{t0}, 2, v{lane}")
        P(f"v_lshlrev_b32 v{t0}, 10, v{t0}")
        P(f"v_and_b32 v{t1}, 3, v{lane}")
        P(f"v_lshl_add_u32 v{t0}, v{t1}, 7, v{t0}")
        P(f"v_add_u32 v{vpw}, s{S_T0}, v{t0}")
    ix = next(i for i, x in enumerate(COMMON) if x.text.startswith(f"v_and_b32 v{t0}, 31, v{lane}"))
    ia = next(i for i, x in enumerate(COMMON) if x.text.startswith(f"s_mov_b32 s{S_C1},")) + 1
    io = next(i for i, x in enumerate(COMMON) if x.text.startswith(f"s_lshl_b32 s{S_T0}, s{S_HP}, 1"))
    ifl = next(i for i, x in enumerate(COMMON) if x.text.startswith(f"s_lshl_b32 s{S_FP},"))
    H_PRE = COMMON[ix:ix + 6] + COMMON[:iw] + capture(f1)
    H_MID = COMMON[ia:io] + COMMON[ix + 6:] + capture(f2) + COMMON[io:ifl]
    H_LATE = [COMMON[iw:iw + 8], COMMON[iw + 8:ia], COMMON[ifl:iu], COMMON[iu:iu + 4]]
    sh = capture(f3); H_LATE += [sh[:9], sh[9:15], sh[15:]]
    wp = capture(f4); H_LATE += [wp[:14], wp[14:]]
    vtn, vpf, vpd, vpw, vx0, wtr = (R[k] for k in ("vtn", "vpf", "vpd", "vpw", "vx0", "wtr"))
    S_PFS = S_WKV
    def pf(blk, half):
        P(f"s_add_u32 s{S_T4}, s{S_PFB}, {128*2752*blk}")
        if half: P("s_mov_b64 exec, 0xffffffff")
        P(f"buffer_load_dword v{vpd}, v{vpf}, s[{S_WM}:{S_WM+3}], s{S_T4} offen", tag="pf")
        P.I[-1].vw = set()
        if half: P("s_mov_b64 exec, -1")
    PF = OPT.get("pf", 1)
    KT = 192; vx16 = 240; vw16 = 241; vst = 242; S_K5, S_K6 = S_T5, S_T6
    P(f"s_cmp_lg_u32 s{S_W}, 7")
    P("s_cbranch_scc1 LF_not7b")
    P.cond_begin()
    P(f"s_lshr_b32 s{S_T0}, s{S_J}, 1")
    P(f"s_lshl_b32 s{S_T1}, s{S_T0}, 4")
    P(f"v_and_b32 v{t0}, 15, v{lane}")
    P(f"v_add_u32 v{t1}, s{S_T1}, v{t0}")
    P(f"v_mul_u32_u24 v{vx16}, {X_STRIDE}, v{t1}")
    P(f"v_lshrrev_b32 v{t1}, 4, v{lane}")
    P(f"v_lshl_add_u32 v{vx16}, v{t1}, 4, v{vx16}")
    P(f"v_lshlrev_b32 v{vw16}, 8, v{t1}")
    P(f"v_lshl_add_u32 v{vw16}, v{t0}, 3, v{vw16}")
    P(f"v_add_u32 v{vw16}, 0x{WKV_L:x}, v{vw16}")
    P(f"s_and_b32 s{S_K6}, s{S_J}, 1")
    P(f"s_cmp_eq_u32 s{S_K6}, 0")
    P(f"s_cselect_b32 s{S_T3}, 9, 8")
    P(f"s_cselect_b32 s{S_T4}, 8, 9")
    P(f"s_cselect_b32 s{S_K5}, 0x{WS_KF:x}, 0x{WS_VF:x}")
    P(f"v_lshlrev_b32 v{vst}, 4, v{t0}")
    P(f"v_lshrrev_b32 v{t0}, 1, v{t1}")
    P(f"v_lshl_add_u32 v{vst}, v{t0}, 3, v{vst}")
    P(f"v_and_b32 v{t0}, 1, v{t1}")
    P(f"v_lshlrev_b32 v{t0}, s{S_T3}, v{t0}")
    P(f"v_add_u32 v{vst}, v{vst}, v{t0}")
    P(f"s_and_b32 s{S_T1}, s{S_T0}, 1")
    P(f"s_lshl_b32 s{S_T1}, s{S_T1}, s{S_T4}")
    P(f"s_add_u32 s{S_K5}, s{S_K5}, s{S_T1}")
    P(f"s_lshr_b32 s{S_T0}, s{S_T0}, 1")
    P(f"s_lshl_b32 s{S_T1}, s{S_G}, 1")
    P(f"s_add_u32 s{S_T0}, s{S_T0}, s{S_T1}")
    P(f"s_lshl_b32 s{S_T0}, s{S_T0}, 10")
    P(f"s_add_u32 s{S_K5}, s{S_K5}, s{S_T0}")
    P("s_waitcnt vmcnt(0)")
    P(f"buffer_load_dword v{vn}, v{vz}, s[{S_DBG}:{S_DBG+3}], 0 offen sc1")
    def kv16(which):
        d = KT
        xb = [(KT+16) + 4 * i for i in range(4)]; wb = [(KT+32) + 4 * i for i in range(4)]
        def ld(ks):
            P(f"ds_read_b128 {vr(xb[ks%4],4)}, v{vx16} offset:{ks*64}")
            P(f"ds_read_b64_tr_b16 {vr(wb[ks%4],2)}, v{vw16} offset:{ks*1024}")
            P(f"ds_read_b64_tr_b16 {vr(wb[ks%4]+2,2)}, v{vw16} offset:{ks*1024+128}")
        for ks in range(3): ld(ks)
        for ks in range(16):
            a, b = (wb[ks%4], xb[ks%4]) if which == 0 else (xb[ks%4], wb[ks%4])
            P(f"v_mfma_f32_16x16x32_bf16 {vr(d,4)}, {vr(a,4)}, {vr(b,4)}, {vr(d,4) if ks else 0}")
            if ks + 3 < 16: ld(ks + 3)
        if which == 0:
            P(f"s_mov_b32 s{S_T0}, {hexf(QK_SCALE)}")
            for r in range(4): P(f"v_mul_f32 v{d+r}, s{S_T0}, v{d+r}")
    P(f"s_cmp_eq_u32 s{S_K6}, 1")
    P("s_cbranch_scc1 LF_vch")
    P.cond_begin(); kv16(0); P.cond_end()
    P("s_branch LF_kvj")
    P("LF_vch:")
    P.cond_begin(); kv16(1); P.cond_end()
    P("LF_kvj:")
    for r in range(2): P(f"v_cvt_pk_bf16_f32 v{KT+4+r}, v{KT+2*r}, v{KT+2*r+1}")
    P(f"buffer_store_dwordx2 {vr(KT+4,2)}, v{vst}, {WSR}, s{S_K5} offen sc1")
    FB2 = OPT.get("fb2", 0)
    def w7flag():
        P(f"s_lshl_b32 s{S_T0}, s{S_G}, 3")
        P(f"s_add_u32 s{S_T0}, s{S_T0}, s{S_J}")
        P(f"s_lshl_b32 s{S_T0}, s{S_T0}, 2")
        P(f"s_add_u32 s{S_T0}, s{S_T0}, 0x{FL_KV:x}")
        P("s_waitcnt vmcnt(0)")
        nonce_check(P, SL, vn, vz)
        flag_store(P, vz, t0, S_T0)
    if not FB2: w7flag()
    def pf7():
        P(f"v_lshrrev_b32 v{t0}, 4, v{lane}")
        P(f"v_mul_u32_u24 v{vx16}, 2752, v{t0}")
        P(f"v_and_b32 v{t0}, 15, v{lane}")
        P(f"v_lshl_add_u32 v{vx16}, v{t0}, 7, v{vx16}")
        P(f"v_cmp_gt_u32 vcc, 12, v{t0}")
        P(f"v_mov_b32 v{t1}, 0x{OOB:x}")
        P(f"v_cndmask_b32 v{vx16}, v{t1}, v{vx16}, vcc")
        P(f"s_lshr_b32 s{S_T0}, s2, 3")
        P(f"s_mul_i32 s{S_T0}, s{S_T0}, {4*2752}")
        P(f"s_and_b32 s{S_T1}, s2, 1")
        P(f"s_mul_i32 s{S_T1}, s{S_T1}, {44*32}")
        P(f"s_add_u32 s{S_T0}, s{S_T0}, s{S_T1}")
        for m in range(2):
            mk_srd(P, S_WKV, 16 + 2 * m, SZ["wg"])
            P(f"buffer_load_dword v{fx[0][0]+m}, v{vx16}, s[{S_WKV}:{S_WKV+3}], s{S_T0} offen")
    if OPT.get("pf7", 1) == 1: pf7()
    stamp(P, 1)
    P("s_barrier")
    stamp(P, 2)
    if OPT.get("pf7", 1) == 2: pf7()
    if FB2 == 1: w7flag()
    P("s_barrier")
    if FB2 == 2: w7flag()
    P.cond_end(nowait=True)
    P("s_branch LF_light")
    P("LF_not7b:")
    P(f"s_cmp_lg_u32 s{S_KH}, 0")
    P("s_cbranch_scc1 LF_l0")

    def sigstamp(it, k):
        if OPT.get("sig"):
            P(f"s_memtime s[98:99]"); P("s_waitcnt lgkmcnt(0)"); P(f"v_writelane_b32 v{vsig}, s98, {2*it+k}")
    vsig = V.alloc("vsig") if OPT.get("sig") else None

    P.cond_begin()
    emit(H_PRE)
    stamp(P, 15)
    P("s_barrier")
    stamp(P, 0)
    LOADS["f"]("h")
    stamp(P, 1)
    if PF & 4: pf(0, True)
    P.wait_tag("q")
    P("s_barrier")
    stamp(P, 2)
    if PF & 2: pf(0, True)
    QD = 6
    xb = [acc[1][0] + 4 * i for i in range(QD)]; wb = [acc[2][0] + 4 * i for i in range(QD)]
    assert acc[1][1] == acc[1][0] + 16 and acc[2][1] == acc[2][0] + 16
    def q_loads(ks):
        o = SLOT[ks // 12] - SLOT[0] + (ks % 12) * 2048
        P(f"ds_read_b128 {vr(xb[ks%QD],4)}, v{vxa} offset:{ks*32}")
        P(f"ds_read_b64_tr_b16 {vr(wb[ks%QD],2)}, v{vtn} offset:{o}")
        P(f"ds_read_b64_tr_b16 {vr(wb[ks%QD]+2,2)}, v{vtn} offset:{o+512}")
    for ks in range(QD - 1): q_loads(ks)
    for ks in range(32):
        P(mfma(acc[0][0], wb[ks%QD], xb[ks%QD], acc[0][0] if ks else None))
        if ks in (11, 23):
            stamp(P, 11 if ks == 11 else 13)
            P("s_barrier")
        if ks + QD - 1 in (12, 24): P("s_barrier")
        if ks + QD - 1 < 32: q_loads(ks + QD - 1)
        nf = -(-len(H_MID) // 28)
        emit(H_MID[ks * nf:(ks + 1) * nf])
        if ks == OPT.get("pk", 24):
            P(f"s_mov_b32 s{S_T5}, 0x{FL_KV:x}")
            P(f"buffer_load_dword v{vn}, v{vz}, s[{S_DBG}:{S_DBG+3}], 0 offen sc1")
            P(flag_load(vfl, 4, l16, f"s{S_T5}"))
    for r in range(8): P(f"v_cvt_pk_bf16_f32 v{qf+r}, v{acc[0][0]+2*r}, v{acc[0][0]+2*r+1}")
    P(f"ds_write_b128 v{vq}, {vr(qf,4)}")
    P(f"ds_write_b128 v{vq}, {vr(qf+4,4)} offset:1024")
    nonce_check(P, SL, vn, vz)
    spin_check(P, SL, [flag_load(vfl, 4, l16, f"s{S_T5}")], flag_cmp(vfl, 4, t0), sleep=OPT.get("ksl", 6))
    kv_dma(P, l16, 0)
    P(f"s_add_u32 s{S_T2}, s{S_T2}, 32768")
    dma(P, l16, S_WS, f"s{S_T2}", (S_KVLDS, 4096), tag="kv0", mods=SC1)
    def gu_reads(ks):
        s, kk = ks // 2, ks % 2
        so = SLOT[s % 3] - SLOT[0] + kk * 6144
        L = [f"ds_read_b128 {vr(fx[ks%2][0],4)}, v{vx0} offset:{ks*32}"]
        for i in range(3):
            f = fw[ks % 2][i]
            L += [f"ds_read_b64_tr_b16 {vr(f,2)}, v{wtr[i]} offset:{so}", f"ds_read_b64_tr_b16 {vr(f+2,2)}, v{wtr[i]} offset:{so+1536}"]
            if i == 0: L.append(f"ds_read_b128 {vr(fx[ks%2][1],4)}, v{vx0} offset:{ks*32 + 32*X_STRIDE}")
        return L
    def gu_groups(ks, late=False):
        R = gu_reads(ks + 1) if ks < 31 else []
        if OPT.get("abl_hds") and ks >= 2 * NP - 1: R = []
        G = []
        for m in range(6):
            i, t = m // 2, m % 2
            mm = [mfma(acc[i][t], fw[ks % 2][i], fx[ks % 2][t], acc[i][t] if ks else None)]
            if OPT.get("abl_hm") and ks >= 2 * NP - 1: mm = []
            G.append(mm + (R[2 * m: 2 * m + 2] if not late else ([] if m < 3 else R[3 * (m - 3): 3 * (m - 3) + 3])))
        return G
    P.wait_lgkm_all()
    stamp(P, 14)
    P("s_barrier")
    stamp(P, 3)
    for x in gu_reads(0): P(x)
    poison()
    PFI = OPT.get("pfi", 0)
    for ks in range(2 * NP - 1):
        if ks % 2 == 1:
            P.wait_lgkm_all(); P("s_barrier")
        for g in gu_groups(ks):
            for x in g: P(x)
    P.wait_tag("kv0"); P.wait_lgkm_all(); P("s_barrier")
    stamp(P, 4)
    gq = []
    tmp = fx[0][0]; cst = fx[1][0]
    assert fx[0][1] == fx[0][0] + 4
    gel = []
    def load_window(k):
        n = 2 * (NP + k) - 1
        assert not gq
        gq.extend(gu_groups(n, late=(k > 0 and OPT.get("sb", 0))))
        if n < 31: gq.extend(gu_groups(n + 1))
    def hookH(it, x, pos):
        if pos == "sync?": return 1 <= it <= JIT
        if pos == "pre0": sigstamp(it, 0); return
        if pos == "pre": sigstamp(it, 1); return
        if pos == "start": load_window(0); return
        midprio(it, x, pos, PH)
        if pos in ("qk", "pv1") and H_LATE: emit(H_LATE.pop(0))
        if pos == "pv2" and x == 1 and PF & 1:
            if it == PFI: pf(1, True)
            if it == PFI + 2: pf(2, True)
            if it == PFI + 5: pf(3, True)
        if pos == "pv2" and x == 1 and OPT.get("wpf", 1) and it in (7, 8, 9, 10):
            k = it - 7
            P(f"s_cmp_lg_u32 s{S_W}, {k}")
            P(f"s_cbranch_scc1 LF_wp{k}")
            P(f"buffer_load_dword v{vpd}, v{vpw}, s[{S_PFS}:{S_PFS+3}], 0 offen")
            P.I[-1].kind = "salu"; P.I[-1].vw = set()
            P(f"LF_wp{k}:")
        if pos == "pv1" and x == 0 and 1 <= it <= JIT: load_window(it)
        if pos in ("g1", "g2", "g3", "g4", "g5", "g6"):
            cnt = int(str(OPT.get("gm", 111111))[int(pos[1]) - 1]) if gq else 1
            cnt = 0 if cnt == 9 else cnt
            if gq and cnt == 0: pass
            elif gq:
                for _ in range(cnt):
                    if gq:
                        for t in gq.pop(0): P(t)
                if not gq and it == JIT and x == 1:
                    L = [f"v_mov_b32 v{cst}, {hexf(GELU_C1)}", f"v_mov_b32 v{cst+1}, {hexf(GELU_C1)}",
                         f"v_mov_b32 v{cst+2}, {hexf(GELU_C2)}", f"v_mov_b32 v{cst+3}, {hexf(GELU_C2)}"]
                    k = 0
                    for i in range(3):
                        for t in range(2):
                            d = fw[k % 2][k // 2]; k += 1
                            L += gelu_tile_pk(acc[i][t], d, tmp, cst)
                            if t == 1: L.append(f"s_add_u32 s{SH[i]}, s{SH[i]}, {118*1024}")
                            L.append(f"buffer_store_dwordx4 {vr(d,4)}, v{l16}, {WSR}, s{SH[i]} offen sc1")
                    ns = (2 if OPT.get("bbh", 0) else 3) + 12 * (UNI - JIT - 1)
                    n = (len(L) + ns - 1) // ns
                    gel.extend(L[i:i + n] for i in range(0, len(L), n))
            elif gel:
                for t in gel.pop(0): P(t, tag="hst" if "store" in t else None)
    PM = OPT.get("pm", 9)
    PH = [int(c) for c in str(OPT.get("ph", 3321)).zfill(4)]; PL = [int(c) for c in str(OPT.get("pl", 3210)).zfill(4)]
    def prioH(it, x):
        if PM == 9: return PH[2 * x] if it < JIT else 3
        if PM == 1: return 3 if (it == 0 and x == 0) else None
        if PM == 3: return 3 - 2 * x
        if PM == 5: return (3 - 2 * x) if it < JIT else 3
        if PM == 6: return 3 if it >= JIT else None
        return None
    def prioL(it, x):
        if PM == 9: return PL[2 * x] if it < JIT else 0
        if PM in (2, 6): return 1 if (it == 0 and x == 0) else None
        if PM == 3: return 3 - 2 * x
        if PM == 5: return (3 - 2 * x) if it < JIT else 0
        return None
    def midprio(it, x, pos, T=None):
        if PM == 9 and pos == "pv2" and it <= JIT: P(f"s_setprio {T[1] if x else T[3]}")
        if PM in (3, 5) and pos == "pv2" and (PM == 3 or it <= JIT): P(f"s_setprio {2 * x}")
    attention(P, A, l16, range(0, UNI), hookH, prioH, kvf=lambda c: None, bb=OPT.get("bbh", 0))
    nsb = A["sb"].n; A["sb"].n = 0
    assert not gq and not gel, (len(gq), len(gel))
    P.cond_end(keep=True)
    P("s_branch LF_join")
    for n in ("vx0", "vtn", "wtr0", "wtr1", "wtr2", "vpf", "vpw"): V.release(n)

    P("LF_l0:")
    P.cond_begin()
    P("s_barrier")
    LOADS["f"]("l")
    stamp(P, 1)
    P("s_waitcnt vmcnt(8)")
    P("s_barrier")
    stamp(P, 2)
    P(f"s_cmp_eq_u32 s{S_W}, 6")
    P("s_cbranch_scc1 LF_l6")
    P(f"s_add_u32 s{S_T3}, s{S_T3}, 24")
    wq_pieces(P, vsl, S_T3, 8, "LF_ldq3", 1)
    P("s_waitcnt vmcnt(8)")
    P("s_branch LF_l6j")
    P("LF_l6:")
    P("s_waitcnt vmcnt(0)")
    P("LF_l6j:")
    P("s_barrier")
    P("LF_light:")
    emit(C_EARLY)

    pats = w_patterns(P, V, lane, t0, t1)
    P(f"s_lshl_b32 s{S_T0}, s{S_HP}, 1")
    P(f"s_mul_i32 s{S_WOFF}, s{S_T0}, {8*2752}")
    P(f"s_lshl_b32 s{S_T1}, s{S_U0}, 5")
    P(f"s_add_u32 s{S_WOFF}, s{S_WOFF}, s{S_T1}")
    P(f"s_mul_i32 s{S_WLDS}, s{S_T0}, 3072")
    P(f"s_mul_i32 s{S_T1}, s{S_TT}, {UP_OFF}")
    P(f"s_add_u32 s{S_WLDS}, s{S_WLDS}, s{S_T1}")
    inattn = dict(on=False)
    P(f"s_add_u32 s{S_WOFF}, s{S_WOFF}, 0")
    P(f"v_subrev_u32 v{pats[1]}, 1024, v{pats[1]}")
    P(f"v_subrev_u32 v{pats[2]}, 2048, v{pats[2]}")
    def w_dma1(s, k):
        g, i = k // 3, k % 3
        solo = not OPT.get("wm0", 1) or inattn["on"]
        if i == 0 or solo:
            dma(P, pats[i], S_WM, f"s{S_T3}", (S_WLDS, SLOT[s % 3] + 3072 * g), offset=1024 * i, tag=f"w{s}",
                pre=[f"s_add_u32 s{S_T3}, s{S_WOFF}, 0x{(32*s + 8*g)*2752:x}"] if i == 0 else None)
        else:
            P(f"buffer_load_dwordx4 v{pats[i]}, s[{S_WM}:{S_WM+3}], s{S_T3} offen offset:{1024*i} lds", tag=f"w{s}")
    def w_dma6(s):
        for k in range(6): w_dma1(s, k)
    stamp(P, 11)
    P("s_barrier")
    w_dma6(0)
    P("s_waitcnt vmcnt(6)"); P.I[-1].kind = "salu"
    P("s_barrier")
    h = len(C_LATE) // 4
    emit(C_LATE[:h])
    stamp(P, 13)
    P("s_barrier")
    w_dma6(1)
    emit(C_LATE[h:])
    dma(P, l16, S_GW, "0", (None, GWL), tag="gw")
    vgw = acc[0][1]
    P(f"v_lshrrev_b32 v{t0}, 5, v{lane}")
    P(f"v_lshlrev_b32 v{vgw}, 4, v{t0}")
    P(f"s_lshl_b32 s{S_T0}, s{S_HP}, 9")
    P(f"v_add_u32 v{vxa}, s{S_T0}, v{vxa}")
    P(f"s_add_u32 s{S_T0}, s{S_T0}, 0x{GWL:x}")
    P(f"v_add_u32 v{vgw}, s{S_T0}, v{vgw}")
    P(f"s_lshl_b32 s{S_T0}, s{S_W}, 8")
    P(f"s_add_u32 s{S_T0}, s{S_T0}, 0x{ONES - 1024:x}")
    P(f"v_lshlrev_b32 v{t0}, 2, v{lane}")
    P(f"v_add_u32 v{t0}, s{S_T0}, v{t0}")
    P(f"v_mov_b32 v{t1}, 0x3f803f80")
    P(f"v_lshrrev_b32 v1, 2, v{lane}")
    P(f"v_and_b32 v1, 11, v1")
    P(f"v_cmp_eq_u32 vcc, 0, v1")
    P(f"v_cndmask_b32 v{t1}, 0, v{t1}, vcc")
    P(f"ds_write_b32 v{t0}, v{t1}")
    P(f"ds_write_b32 v{t0}, v{t1} offset:1024")
    poison()
    za = acc[0][0]; zx = [acc[1][0] + 4 * i for i in range(4)]; zg = [acc[2][0] + 4 * i for i in range(4)]
    def zjob():
        for r in range(4): P(f"v_mov_b32 v{za+r}, 0")
        def zld(k):
            P(f"ds_read_b128 {vr(zx[k%4],4)}, v{vxa} offset:{k*32}")
            P(f"ds_read_b128 {vr(zg[k%4],4)}, v{vgw} offset:{k*32}")
        for k in range(3): zld(k)
        for k in range(16):
            for r in range(4): P(f"v_dot2c_f32_bf16 v{za+r}, v{zx[k%4]+r}, v{zg[k%4]+r}")
            if k + 3 < 16: zld(k + 3)
        P("s_nop 2")
        P(f"v_add_f32 v{za}, v{za}, v{za+1}")
        P(f"v_add_f32 v{za+2}, v{za+2}, v{za+3}")
        P(f"v_add_f32 v{za}, v{za}, v{za+2}")
        P(f"s_and_b32 s{S_T0}, s{S_W}, 3")
        P(f"s_lshl_b32 s{S_T0}, s{S_T0}, 8")
        P(f"s_add_u32 s{S_T0}, s{S_T0}, 0x{MISC:x}")
        P(f"v_lshlrev_b32 v{t0}, 2, v{lane}")
        P(f"v_add_u32 v{t0}, s{S_T0}, v{t0}")
        P(f"ds_write_b32 v{t0}, v{za}")
    P(f"s_mov_b32 s{S_T6}, 0x{FL_KV:x}")
    def kv_both(c):
        kv_dma(P, l16, c)
        dma(P, l16, S_WS, f"s{S_T2}", (S_KVLDS, (8192 * (c & 1) - 4096) & 0xffffffff), tag=f"kv{c}", mods=SC1, pre=[f"s_sub_u32 s{S_T2}, s{S_T2}, 32768"])
    def poll_issue():
        P(f"buffer_load_dword v{vn}, v{vz}, s[{S_DBG}:{S_DBG+3}], 0 offen sc1")
        P(flag_load(vfl, 4, l16, f"s{S_T6}"))
    for s in range(0, NP + 1):
        P.wait_tag(f"w{s}")
        P.wait_lgkm_all()
        if s == 0: stamp(P, 14)
        P("s_barrier")
        if s == 0:
            stamp(P, 3)
            P(f"ds_read_b128 {vr(qf,4)}, v{vq} offset:1024")
            P(f"ds_read_b128 {vr(qf+4,4)}, v{vq}")
        if s == NP: kv_both(1)
        if s < NP: w_dma6(s + 2)
        if s == 0:
            P(f"buffer_load_dword v{vn}, v{vz}, s[{S_DBG}:{S_DBG+3}], 0 offen sc1")
            P.wait_tag("gw")
            zjob()
    assert NP >= 1
    stamp(P, 4)
    dq = []; wq2 = []
    def hookL(it, x, pos):
        if pos == "sync?": return 1 <= it <= JIT
        if pos == "pre0": sigstamp(it, 0); return
        if pos == "pre":
            if NP + it < 16: P.wait_tag(f"w{NP+it}")
            sigstamp(it, 1); return
        if (pos == "start" or pos == "chk") and NP + it + 2 < 16:
            assert not dq
            for k in range(0 if OPT.get("abl_ldma") else 6): dq.append(lambda s=NP + it + 2, k=k: w_dma1(s, k))
        midprio(it, x, pos, PL)
        LW = OPT.get("lw", 4)
        if pos == "chk" and it == JIT:
            for b in range(LW):
                for o in range(2):
                    for i in range(2): wq2.append(lambda b=b, o=o, i=i: fin_dma_w2(P, vsl, b, b * 16384, f"fw{b}", i, o))
        if wq2 and pos not in ("pre", "pre0", "chk", "start"):
            wq2.pop(0)()
            if it == UNI - 1 and x == 1 and pos == "g6":
                while wq2: wq2.pop(0)()
        LS = [("pv2", "qk", "pv1"), ("g1", "g3", "g5"), ("g2", "g4", "g6"), ("pv1", "g4", "g5", "g6", "pv2", "g1", "g2"), ("pv2", "pv1")][OPT.get("ls", 3)]
        if pos in LS and dq:
            dq.pop(0)()
            if OPT.get("ls", 3) == 4 and dq and len(dq) % 3 != 0: dq.pop(0)(); (dq.pop(0)() if pos == "pv1" and len(dq) % 3 else None)
    attention(P, A, l16, range(0, UNI), hookL, prioL, kvf=kv_both, bb=OPT.get("bbl", 0))
    assert A["sb"].n == nsb
    assert not dq
    P.cond_end(keep=True)
    P("LF_join:")
    P.join()
    for n in ["wpat0", "wpat1", "wpat2", "vxa", "vq"] + [f"acc{i}{t}" for i in range(3) for t in range(2)] + \
             [f"fx{b}{t}" for b in range(2) for t in range(2)] + [f"fw{b}{i}" for b in range(2) for i in range(3)]: V.release(n)
    stamp(P, 5)

    facc = V.alloc("facc", 16); facc1 = V.alloc("facc1", 16); fa = V.alloc("ffa", 8)
    NB = OPT.get("nb", 6)
    hb = [V.alloc(f"hb{i}", 4) for i in range(NB)]; fb = hb[0]
    vl4 = V.alloc("vl4"); vg = V.alloc("vg"); zt = V.alloc("zt", 2)
    va0 = tr_slice_addr(P, V, "fa0", lane, t0, t1, 0, S_KH, 4)
    vA = [[va0, V.alloc("fa0h")], [V.alloc("fa1"), V.alloc("fa1h")]]
    P(f"s_lshl_b32 s{S_T1}, s{S_HP}, 5")
    P(f"v_xor_b32 v{va0}, s{S_T1}, v{va0}")
    P(f"s_lshr_b32 s{S_T0}, s{S_W}, 1")
    P(f"s_lshl_b32 s{S_T1}, s{S_T0}, 11")
    P(f"v_add_u32 v{va0}, s{S_T1}, v{va0}")
    P(f"v_xor_b32 v{vA[1][0]}, 64, v{va0}")
    P(f"v_add_u32 v{vA[0][1]}, 0x10000, v{va0}")
    P(f"v_add_u32 v{vA[1][1]}, 0x10000, v{vA[1][0]}")
    P(f"s_mul_i32 s{S_FB}, s{S_TILE}, 118")
    P(f"s_add_u32 s{S_FB}, s{S_FB}, s{S_T0}")
    P(f"s_lshl_b32 s{S_FB}, s{S_FB}, 10")
    P(f"s_add_u32 s{S_FB}, s{S_FB}, 0x{WS_OH:x}")
    P(f"v_lshlrev_b32 v{vl4}, 2, v{lane}")
    vhf = V.alloc("vhf")
    P(f"v_lshrrev_b32 v{t0}, 3, v{lane}")
    P(f"v_mul_u32_u24 v{t0}, 96, v{t0}")
    P(f"v_add_u32 v{vhf}, v{t0}, v{vl4}")
    P(f"s_lshl_b32 s{S_T0}, s{S_TT}, 8")
    P(f"s_add_u32 s{S_T0}, s{S_T0}, 0x{MISC:x}")
    P(f"v_add_u32 v{t0}, s{S_T0}, v{vl4}")
    P(f"ds_read_b32 v{zt}, v{t0}")
    P(f"ds_read_b32 v{zt+1}, v{t0} offset:512")
    P(f"v_add_f32 v{zt}, v{zt}, v{zt+1}")
    P(f"v_mov_b32 v{zt+1}, v{zt}")
    P(f"v_permlane32_swap_b32 v{zt}, v{zt+1}")
    P(f"v_add_f32 v{zt}, v{zt}, v{zt+1}")
    P(f"v_mul_f32 v{t0}, {hexf(-LOG2E)}, v{zt}")
    P(f"v_exp_f32 v{t0}, v{t0}")
    P(f"v_add_f32 v{t0}, 1.0, v{t0}")
    P(f"v_rcp_f32 v{vg}, v{t0}")
    V.release("zt")
    vw = [V.alloc(f"vw{i}") for i in range(3)]; vrd = V.alloc("vrd"); vo = V.alloc("vo")
    def sbase(dst, w):
        P(f"s_mul_i32 s{S_T1}, s{w}, 6144")
        P(f"v_add_u32 v{dst}, s{S_T1}, v{l16}")
    sbase(vrd, S_W)
    for b in range(1, 4):
        P(f"s_xor_b32 s{S_T0}, s{S_W}, {b << 1}")
        sbase(vw[b - 1], S_T0)
    P(f"v_and_b32 v{vo}, 31, v{lane}")
    P(f"v_lshlrev_b32 v{vo}, 10, v{vo}")
    P(f"v_lshrrev_b32 v{t1}, 5, v{lane}")
    P(f"v_lshl_add_u32 v{vo}, v{t1}, 4, v{vo}")
    P(f"s_lshl_b32 s{S_OO}, s{S_TILE}, 15")
    P(f"s_lshl_b32 s{S_T1}, s{S_J}, 7")
    P(f"s_add_u32 s{S_OO}, s{S_OO}, s{S_T1}")
    P(f"s_lshl_b32 s{S_T1}, s{S_KH}, 6")
    P(f"s_add_u32 s{S_OO}, s{S_OO}, s{S_T1}")
    P(f"s_lshl_b32 s{S_T1}, s{S_HP}, 5")
    P(f"s_add_u32 s{S_OO}, s{S_OO}, s{S_T1}")
    vp = V.alloc("vp"); vpa = V.alloc("vpa")
    P(f"v_lshlrev_b32 v{vpa}, 10, v{lane}")
    vt0 = V.alloc("vt0"); vt1 = V.alloc("vt1")
    P(f"s_lshr_b32 s{S_T1}, s{S_W}, 1")
    P(f"s_mul_i32 s{S_T1}, s{S_T1}, {16384 - 2048}")
    P(f"s_add_u32 s{S_T1}, s{S_T1}, {3*16384}")
    P(f"v_add_u32 v{vt0}, s{S_T1}, v{vA[0][0]}")
    P(f"v_add_u32 v{vt1}, s{S_T1}, v{vA[1][0]}")
    va = V.alloc("cva"); vb = V.alloc("cvb"); fb = V.alloc("cvon")
    P(f"s_mul_i32 s{S_T0}, s{S_W}, 3072")
    P(f"s_add_u32 s{S_T0}, s{S_T0}, 114688")
    P(f"v_add_u32 v{va}, s{S_T0}, v{l16}")
    P(f"s_xor_b32 s{S_T0}, s{S_W}, 4")
    P(f"s_mul_i32 s{S_T0}, s{S_T0}, 3072")
    P(f"s_add_u32 s{S_T0}, s{S_T0}, 114688")
    P(f"v_add_u32 v{vb}, s{S_T0}, v{l16}")
    P(f"s_add_u32 s{S_OL2}, s{S_OL}, 4096")
    BSLOT = lambda b: ((b % 8) if b < 11 else (b - 8)) * 16384
    def a_reads(r, d):
        o = (4 * r % 64) * 2048; hi = o >> 16; o &= 0xffff
        assert r // 2 in vis, (r, vis)
        rd_done[r // 2] = rd_done.get(r // 2, 0) + 1
        if OPT.get("abl_uds"): return
        P(f"ds_read_b64_tr_b16 {vr(fa+4*d,2)}, v{vA[d][hi]} offset:{o}")
        P(f"ds_read_b64_tr_b16 {vr(fa+4*d+2,2)}, v{vA[d][hi]} offset:{o+1024}")
    def h_load(r):
        if OPT.get("abl_uh"): return
        P(f"s_add_u32 s{S_T2}, s{S_FB}, {4096*r}")
        if r == 21:
            P(f"s_cmp_lt_u32 s{S_W}, 4")
            P(f"s_cselect_b32 s{S_T2}, s{S_T2}, 0x{OOB:x}")
        P(f"buffer_load_dwordx4 {vr(hb[r%NB],4)}, v{l16}, {WSR}, s{S_T2} offen sc1")
    pend = {}
    LW = OPT.get("lw", 4)
    dq = []; vis = set(); issued = {}; rd_done = {}; nxt = dict(b=LW, r=0, d=0, pre=False)
    def qW(b):
        def f(i):
            if not OPT.get("abl_uw"): fin_dma_w1(P, vsl, b, BSLOT(b), f"fw{b}", i)
            issued[b] = issued.get(b, 0) + 1
        for i in range(2): dq.append(lambda i=i: f(i))
    CH = OPT.get("ch", HF + 3); R0 = OPT.get("r0", 2 * (CH + 2))
    DBL = OPT.get("dbl", 64)
    def mstep():
        r, d = nxt["r"], nxt["d"]
        if r >= 22: return
        if not nxt["pre"]:
            a_reads(0, 0); a_reads(0, 1); nxt["pre"] = True; return
        if not OPT.get("abl_um"): P(mfma([facc, facc1][d], fa + 4 * d, hb[r % NB], [facc, facc1][d] if r else None))
        if r + 1 < 22: a_reads(r + 1, d)
        if d == 1 and r + NB < 22: dq.insert(0, lambda r=r: h_load(r + NB))
        nxt["d"] = 1 - d; nxt["r"] = r + d
    US = [("g1", "g4"), ("g2", "g5"), ("g1", "g5"), ("g2", "g6"), ("g3", "g6")][OPT.get("us", 3)]
    VS = [("pv2", "qk"), ("qk", "pv1"), ("pv2", "pv1"), ("g3", "g6"), ("qk", "g6")][OPT.get("vs", 0)]
    def hookU(it, x, pos):
        sig = (x == 0 and (it & 1)); ph = 2 * it + x
        if pos == "sync?": return False
        if pos == "pre0": sigstamp(it, 0); return
        if pos == "pre":
            if it == HF: P.wait_vm_all()
            need = [b for b in issued if issued[b] == 2 and b not in vis and (it == 29 or b <= (max(0, ph + 8 - R0) * (2 if ph + 6 >= DBL else 1)) // 2) and b <= 10]
            if need: P.wait_tag(*[f"fw{b}" for b in need])
            if it == HF: need = need + list(range(LW))
            pend["vis"] = need; pend["free"] = {b for b in rd_done if rd_done[b] >= 4}
            sigstamp(it, 1); return
        if pos == "pv1" and sig and it == HF and OPT.get("ef", -1) < 0:
            nonce_check(P, SL, vn, vz)
            flag_store(P, vz, t0, S_FS)
        if pos == "chk":
            vis.update(pend["vis"])
            while it >= HF and nxt["b"] < 15:
                b = nxt["b"]; prev = {8: 0, 9: 1, 10: 2, 11: 3, 12: 4, 13: 5, 14: 6}.get(b)
                if prev is not None and prev not in pend["free"]: break
                qW(b); nxt["b"] += 1
            return
        PP = OPT.get("pp", 0)
        if (PP == 0 and pos == "pv2" and x == 0 and it == CH - 1) or (PP == 1 and pos == "g1" and x == 1 and it == CH - 1) or \
           (PP == 2 and pos == "pv1" and x == 1 and it == CH - 1): P(flag_load(vfl, 1, vhf, f"s{S_FP}"))
        EF = OPT.get("ef", -1)
        if ph == EF and pos == "g4":
            P.wait_vm_all(); nonce_check(P, SL, vn, vz); flag_store(P, vz, t0, S_FS)
        if pos == "pv2" and x == 0 and it == CH:
            spin_check(P, SL, [flag_load(vfl, 1, vhf, f"s{S_FP}")], flag_cmp(vfl, 1, t0), sleep=OPT.get("hsl", 4))
            for r in range(NB): dq.insert(r, lambda r=r: h_load(r))
        elif dq and (pos in VS or (pos in ("g2", "g5") and it in (CH, CH + 1)) or (pos == "g5" and OPT.get("d3"))): dq.pop(0)()
        if nxt["r"] >= 22 - OPT.get("tr", 5) and nxt["d"] == 0: pass
        elif (pos in US and ph >= R0) or (pos == US[1] and ph == R0 - 1) or (pos in ("g3", "g6") and ph >= DBL): mstep()
        if pos == "g6" and it == 31 and x == 1:
            assert nxt["b"] == 15, nxt
            print("rounds left for tail:", 22 - nxt["r"])
    def prioU(it, x):
        if not OPT.get("prio", 1): return None
        k = 2 * ((it + 1) & 1) + x
        return int(str(OPT.get("pu", 3210)).zfill(4)[k])
    attention(P, A, l16, range(UNI, 32), hookU, prioU)
    assert not dq
    stamp(P, 6)
    if OPT.get("sig"):
        P(f"s_lshl_b32 s98, s2, 11")
        P(f"s_lshl_b32 s99, s{S_W}, 8")
        P(f"s_add_u32 s98, s98, s99")
        P(f"s_add_u32 s98, s98, 0x{WS_STAMP + (1<<20):x}")
        P(f"buffer_store_dword v{vsig}, v{vl4}, {WSR}, s98 offen")
    P("s_setprio 0")
    P(f"v_mov_b32 v{O[1]+7}, v{O[1]}")
    for i in range(3): P(f"ds_write_b128 v{va}, {vr(O[1]+4+4*i,4)} offset:{1024*i}")
    P.wait_tag(*[f"fw{b}" for b in range(8, 15)]); P.wait_lgkm_all()
    P("s_barrier")
    vis.update(range(11))
    for i in range(3): P(f"ds_read_b128 {vr(O[1]+4+4*i,4)}, v{vb} offset:{1024*i}")
    P(f"v_add_f32 v{O[0]}, v{O[0]}, v{O[1]+7}")
    for r in range(8, 16): P(f"v_add_f32 v{O[0]+r}, v{O[0]+r}, v{O[1]+r}")
    P(f"v_mov_b32 v{t1}, 0x207")
    P(f"v_cmp_nle_f32 vcc, {hexf(2.0**-90)}, v{O[0]}")
    P(f"v_cmp_nge_f32 s[{S_PM}:{S_PM+1}], {'s' + str(S_T0)}, v{O[0]}".replace(f"s{S_T0}", f"s{S_C1}"))
    P(f"s_or_b64 vcc, vcc, s[{S_PM}:{S_PM+1}]")
    P(f"v_add3_u32 v{t0}, v{O[0]+8}, 0, 0".replace("v_add3_u32", "v_add_f32").replace(", 0, 0", f", v{O[0]+9}"))
    for r in range(10, 16): P(f"v_add_f32 v{t0}, v{t0}, v{O[0]+r}")
    P(f"v_cmp_class_f32 s[{S_PM}:{S_PM+1}], v{t0}, v{t1}")
    P(f"s_or_b64 vcc, vcc, s[{S_PM}:{S_PM+1}]")
    if OPT.get("forcefb"): P("s_mov_b64 vcc, -1")
    P("s_cmp_lg_u64 vcc, 0")
    P("s_cbranch_scc1 LF_fb")
    P("LF_fbr:")
    P(f"v_rcp_f32 v{t0}, v{O[0]}")
    P(f"v_mul_f32 v{t0}, v{t0}, v{vg}")
    for r in range(8, 16): P(f"v_mul_f32 v{O[0]+r}, v{O[0]+r}, v{t0}")
    for r in range(4): P(f"v_cvt_pk_bf16_f32 v{O[1]+r}, v{O[0]+8+2*r}, v{O[0]+9+2*r}")
    for r in range(4): P(f"v_min_u32 v{O[1]+r}, 0xfffffffe, v{O[1]+r}")
    P(f"buffer_store_dwordx4 {vr(O[1],4)}, v{l16}, {WSR}, s{S_OD} offen sc1", tag="ost")
    stamp(P, 7)
    K4, V8, ON, CM = A["fk"], A["fv"][0], fb, O[1]
    assert A["fv"][1] == V8 + 4
    nl = "\n    "
    fbk = f"""LF_fb:
    s_waitcnt vmcnt(0) lgkmcnt(0)
    v_mov_b32 v{t0}, 0xff800000
    s_mov_b32 s{S_T0}, 0x{WS_KF:x}
LF_fb1:
    buffer_load_dwordx4 {vr(K4,4)}, v{l16}, {WSR}, s{S_T0} offen sc1
    s_waitcnt vmcnt(0)
    {mfma(S[0], K4, qf)}
    s_nop 15
    {nl.join(f"v_max3_f32 v{t0}, v{S[0]+2*r}, v{S[0]+2*r+1}, v{t0}" for r in range(8))}
    s_add_u32 s{S_T0}, s{S_T0}, 1024
    s_cmp_lt_u32 s{S_T0}, 0x{WS_KF + 65536:x}
    s_cbranch_scc1 LF_fb1
    v_mov_b32 v{t1}, v{t0}
    s_nop 1
    v_permlane32_swap_b32 v{t0}, v{t1}
    s_nop 1
    v_max_f32 v{t0}, v{t0}, v{t1}
    {nl.join(f"v_sub_f32 v{CM+r}, 0, v{t0}" for r in range(16))}
    {nl.join(f"v_mov_b32 v{O[0]+r}, 0" for r in range(16))}
    v_lshrrev_b32 v{t0}, 5, v{lane}
    v_lshlrev_b32 v{t0}, 8, v{t0}
    v_and_b32 v{t1}, 15, v{lane}
    v_lshl_add_u32 v{t0}, v{t1}, 4, v{t0}
    v_and_b32 v{t1}, 16, v{lane}
    v_cmp_eq_u32 vcc, 0, v{t1}
    v_mov_b32 v{t1}, 0x{OOB:x}
    s_nop 1
    v_cndmask_b32 v{t0}, v{t0}, v{t1}, vcc
    v_and_b32 v{t1}, 27, v{lane}
    v_cmp_eq_u32 vcc, 0, v{t1}
    v_mov_b32 v{ON}, 0x3f803f80
    s_nop 1
    v_cndmask_b32 v{ON}, 0, v{ON}, vcc
    s_mov_b32 s{S_T0}, 0x{WS_KF:x}
LF_fb2:
    s_add_u32 s{S_T1}, s{S_T0}, 0x{WS_VF - WS_KF:x}
    buffer_load_dwordx4 {vr(K4,4)}, v{l16}, {WSR}, s{S_T0} offen sc1
    buffer_load_dwordx4 {vr(V8,4)}, v{t0}, {WSR}, s{S_T1} offen sc1
    buffer_load_dwordx4 {vr(V8+4,4)}, v{t0}, {WSR}, s{S_T1} offen offset:512 sc1
    s_waitcnt vmcnt(0)
    {mfma(S[0], K4, qf, CM)}
    {nl.join(f"v_or_b32 v{V8+r}, v{V8+r}, v{ON}" for r in range(8))}
    s_nop 7
    {nl.join(f"v_exp_f32 v{S[0]+r}, v{S[0]+r}" for r in range(16))}
    s_nop 1
    {nl.join(f"v_cvt_pk_bf16_f32 v{S[1]+r}, v{S[0]+2*r}, v{S[0]+2*r+1}" for r in range(8))}
    s_nop 1
    {mfma(O[0], V8, S[1], O[0])}
    {mfma(O[0], V8+4, S[1]+4, O[0])}
    s_add_u32 s{S_T0}, s{S_T0}, 1024
    s_cmp_lt_u32 s{S_T0}, 0x{WS_KF + 65536:x}
    s_cbranch_scc1 LF_fb2
    s_nop 15
    s_branch LF_fbr
"""
    SL.add(fbk)
    for n in ("Sa", "Sb", "Oa", "qf", "fk", "fv1", "fv2"): V.release(n)
    ob = V.alloc("ob", 32); wa = [V.alloc(f"wa{u}", 8) for u in range(8)]
    def oloads(g): return [f"buffer_load_dwordx4 {vr(ob+16*g+4*u,4)}, v{l16}, {WSR}, s{[S_OL,S_OL2][g]} offen offset:{1024*u} sc1" for u in range(4)]
    def ocheck(g):
        b = ob + 16 * g
        L = [f"v_max3_u32 v{t0}, v{b}, v{b+1}, v{b+2}"]
        for k in range(3, 15, 2): L.append(f"v_max3_u32 v{t0}, v{b+k}, v{b+k+1}, v{t0}")
        L += [f"v_max_u32 v{t0}, v{b+15}, v{t0}", f"v_cmp_eq_u32 vcc, -1, v{t0}"]
        return L
    fa2 = V.alloc("ffa2", 8)
    wr = []
    for u in range(8):
        for d, v in ((0, vt0), (1, vt1)):
            wr.append([f"ds_read_b64_tr_b16 {vr(wa[u]+4*d,2)}, v{v} offset:{u*2048}", f"ds_read_b64_tr_b16 {vr(wa[u]+4*d+2,2)}, v{v} offset:{u*2048+1024}"])
    r0 = nxt["r"]; assert nxt["d"] == 0 and not dq
    def tr_reads(r, d):
        o = (4 * r % 64) * 2048; hi = o >> 16; o &= 0xffff; f = [fa, fa2][(r - r0) % 2] + 4 * d
        P(f"ds_read_b64_tr_b16 {vr(f,2)}, v{vA[d][hi]} offset:{o}")
        P(f"ds_read_b64_tr_b16 {vr(f+2,2)}, v{vA[d][hi]} offset:{o+1024}")
    if r0 + 1 < 22: tr_reads(r0 + 1, 0); tr_reads(r0 + 1, 1)
    OL = min(r0 + OPT.get("ol", 99), 22)
    for r in range(r0, 22):
        if r == OL:
            for g in range(2):
                for x in oloads(g): P(x)
        for d in range(2):
            P(mfma([facc, facc1][d], [fa, fa2][(r - r0) % 2] + 4 * d, hb[r % NB], [facc, facc1][d]))
            if r + 2 < 22: tr_reads(r + 2, d)
            elif wr:
                for g in wr[:4]:
                    for x in g: P(x)
                del wr[:4]
    for g in wr:
        for x in g: P(x)
    assert 22 - r0 <= NB and r0 >= 16
    if OPT.get("oab", 1): P.wait_lgkm_all(); P("s_barrier")
    if OL == 22:
        for g in range(2):
            for x in oloads(g): P(x)
    P(f"v_sub_f32 v{t1}, 1.0, v{vg}")
    P(f"v_mov_b32 v{t0}, v{t1}")
    assert t1 == t0 + 1 and t0 % 2 == 0
    for r in range(0, 16, 2): P(f"v_pk_mul_f32 v[{facc+r}:{facc+r+1}], v[{facc+r}:{facc+r+1}], v[{t0}:{t1}]")
    for r in range(0, 16, 2): P(f"v_pk_mul_f32 v[{facc1+r}:{facc1+r+1}], v[{facc1+r}:{facc1+r+1}], v[{t0}:{t1}]")
    if not OPT.get("oab", 1): P.wait_lgkm_all(); P("s_barrier")
    stamp(P, 8)
    nl = "\n    "
    for g in range(2):
        k = SL.n; SL.n += 1
        for x in ocheck(g): P(x)
        P(f"s_cbranch_vccnz LS{k}")
        P(f"LR{k}:")
        SL.add(f"""LS{k}:
{cnt(1+k)}    s_mov_b32 s{S_T7}, 0
LS{k}_p:
    s_sleep {OPT.get("osl", 2)}
    s_mov_b64 exec, 0xf
    buffer_load_dword v{vp}, v{vpa}, {WSR}, s{[S_OL,S_OL2][g]} offen offset:1020 sc1
    s_waitcnt vmcnt(0)
    v_cmp_eq_u32 vcc, -1, v{vp}
    s_mov_b64 exec, -1
    s_add_u32 s{S_T7}, s{S_T7}, 1
    s_cmp_ge_u32 s{S_T7}, 0x{SPIN_MAX:x}
    s_cbranch_scc1 LR{k}
    s_cbranch_vccnz LS{k}_p
    {nl.join(oloads(g))}
    s_waitcnt vmcnt(0)
    {nl.join(ocheck(g))}
    s_cbranch_vccnz LS{k}_p
    s_nop 1
    s_branch LR{k}
""")
        for u in range(4 * g, 4 * g + 4):
            P(mfma(facc1, wa[u] + 4, ob + 4 * u, facc1))
    W1 = [f"ds_write_b128 v{vw[b-1]}, {vr(src+4*i,4)} offset:{2048*(b-1) + 1024*i}" for b, src in ((2, facc1), (3, facc1 + 8)) for i in range(2)]
    for u in range(8):
        P(mfma(facc, wa[u], ob + 4 * u, facc))
        if u >= 3 and W1:
            if u == 3: P("s_nop 7")
            P(W1.pop(0))
    stamp(P, 9)
    for b, src in ((1, facc + 8),):
        for i in range(2): P(f"ds_write_b128 v{vw[b-1]}, {vr(src+4*i,4)} offset:{2048*(b-1) + 1024*i}")
    P.wait_lgkm_all()
    P("s_barrier")
    for i in range(6): P(f"ds_read_b128 {vr(ob+4*i,4)}, v{vrd} offset:{1024*i}")
    for b in range(3):
        for r in range(8): P(f"v_add_f32 v{facc+r}, v{facc+r}, v{ob+8*b+r}")
    for r in range(4): P(f"v_cvt_pk_bf16_f32 v{facc1+r}, v{facc+2*r}, v{facc+2*r+1}")
    P(f"v_permlane32_swap_b32 v{facc1}, v{facc1+2}")
    P(f"v_permlane32_swap_b32 v{facc1+1}, v{facc1+3}")
    P(f"buffer_store_dwordx4 {vr(facc1,4)}, v{vo}, s[{S_OUT}:{S_OUT+3}], s{S_OO} offen")
    if STAMP["on"]:
        P.wait_vm_all(); stamp(P, 10); stamp_dump(P, lane)
        if OPT.get("dbgst") is not None:
            P(f"s_cmp_lg_u32 s2, {OPT['dbgst']}")
            P("s_cbranch_scc1 LF_end")
            P(f"s_cmp_lg_u32 s{S_W}, {OPT.get('dbgw', 0)}")
            P("s_cbranch_scc1 LF_end")
            P(f"v_subrev_u32 v{VSTAMP}, s100, v{VSTAMP}")
            P("s_mov_b64 exec, 0x7fff")
            P(f"buffer_store_dword v{VSTAMP}, v1, s[{S_DBG}:{S_DBG+3}], 0 offen offset:4")
    P("LF_end:")
    P("s_endpgm")
    name = NAME + "_kernel"
    body, I = finalize(P)
    txt = f".text\n.globl {name}\n.p2align 8\n.type {name},@function\n{name}:\n" + body + "".join(SL.txt) + "LF_last:\n    s_endpgm\n"
    vg_ = 256 if STAMP["on"] else max(V.hi, 8)
    txt += KD.format(name=name, vgpr=vg_, sgpr=102 if STAMP['on'] else 96, accum=(vg_ + 3) // 4 * 4)
    return txt, I, vg_


if __name__ == "__main__":
    out = sys.argv[1]
    STAMP["on"] = "stamp" in sys.argv
    for a in sys.argv[2:]:
        if "=" in a: k, v = a.split("="); OPT[k] = int(v)
        else: OPT[a] = True
    import asmlib; asmlib.MERGE_D = OPT.get("md", 9)
    t, I, vg_ = kernel_F()
    DOC = """; One fused kernel, 256 workgroups x 8 waves, one per CU (all co-resident).  Workgroup = (64-token group G, slice j).
;  start : K/V projection of 16 tokens (wave 7) -> d_ws + flag ; Q projection of 4 heads (waves 0-3) ; gate logit
;          true row maximum (LF_fb) whenever that could have overflowed or underflowed.
;  end   : o exchanged through d_ws (words preset to all-ones mean 'not written yet'), output projection, gated mix.
;  Hand-offs: write-through stores, vmcnt, then flags tagged with a per-launch nonce published through d_debug[0].
"""
    hdr = HEADER + DOC + f"; @launch grid=(256,1,1) block=(512,1,1) lds={LDS_BYTES}\n" + '.amdgcn_target "amdgcn-amd-amdhsa--gfx950"\n'
    open(out, "w").write(hdr + t)
    import subprocess
    r = subprocess.run(["clang", "-x", "assembler", "-target", "amdgcn-amd-amdhsa", "-mcpu=gfx950", "-c", out, "-o", "_chk.o"], capture_output=True, text=True)
    if r.returncode: print("ASM ERROR", r.stderr[:500])
    print("insts", len(I), "vgpr", vg_, "nops", sum(1 for x in I if x.kind == "nop"))
```

```python
import sys, re
from parts import *
OPT = {}
S_NONCE = 93
S_HP, S_KH = 30, 31
SH = [4, 5, 6]
S_FS, S_FP, S_OD, S_OL = 7, 8, 9, 10
S_FW, S_FB, S_FL, S_FL2 = 12, 13, 14, 15
S_OO, S_OL2 = 11, 18
S_VM = 28
S_PM = 16
FL_KV, FL_H = WS_FLAG, WS_FLAG + 8192
WKV_L = KV_RING
QSCR = KV_RING + 8192
FSLOT = [0, 32768, 65536, 98304]
WO_CH = [98304, 114688, 0, 32768]
SC1 = " sc1"
SPIN_MAX = 1 << 22
WSR = f"s[{S_WS}:{S_WS+3}]"


def cnt(k):
    if not OPT.get("cnt"): return ""
    return f"""    v_mov_b32 v1, 1
    v_mov_b32 v0, {4*k}
    s_mov_b64 exec, 1
    buffer_atomic_add v1, v0, s[{S_DBG}:{S_DBG+3}], 0 offen
    s_mov_b64 exec, -1
"""


def raw(P, text):
    for line in text.split("\n"):
        line = line.strip()
        if not line: continue
        P(line)
        x = P.I[-1]
        if x.kind not in ("label",):
            x.kind = "salu"; x.vr = set(); x.vw = set(); x.sr = set(); x.sw = set(); x.mf = None; x.meta = dict(skip=True)


class Slow:
    def __init__(self): self.txt = []; self.n = 0
    def add(self, t): self.txt.append(t)


LOADS = {}
def wq_pieces(P, vsl, s_first, n, label, rot):
    P(f"s_and_b32 s{S_T6}, s{S_G}, 7")
    if rot > 1: P(f"s_mul_i32 s{S_T6}, s{S_T6}, {rot}")
    P(f"s_add_u32 s{S_T5}, s{S_T6}, {n}")
    P(f"s_lshl_b32 s{S_T7}, s{S_J}, 7")
    P(f"{label}:")
    P(f"s_and_b32 s{S_T4}, s{S_T6}, {n-1}")
    P(f"s_add_u32 s{S_T4}, s{S_T4}, s{s_first}")
    P(f"s_mul_i32 s{S_T0}, s{S_T4}, 171")
    P(f"s_lshr_b32 s{S_T0}, s{S_T0}, 12")
    P(f"s_lshl_b32 s{S_T1}, s{S_T4}, 2")
    P(f"s_add_u32 s{S_T0}, s{S_T0}, s{S_T1}")
    P(f"s_lshl_b32 s{S_T0}, s{S_T0}, 8")
    P(f"s_add_u32 m0, s{S_T0}, 0x{SLOT[0]:x}")
    P(f"s_lshl_b32 s{S_T2}, s{S_T4}, 13")
    P(f"s_add_u32 s{S_T2}, s{S_T2}, s{S_T7}")
    P(f"s_add_u32 s{S_T6}, s{S_T6}, 1")
    P(f"buffer_load_dwordx4 v{vsl}, s[{S_WQ}:{S_WQ+3}], s{S_T2} offen lds")
    P.I[-1].kind = "salu"
    P(f"s_cmp_lg_u32 s{S_T6}, s{S_T5}")
    P(f"s_cbranch_scc1 {label}")


def emit_loads(P, l16, vsl, sfx):
    if sfx == "h":
        P(f"s_lshr_b32 s{S_T4}, s{S_J}, 1")
        P(f"s_lshl_b32 s{S_T4}, s{S_T4}, 4")
        P(f"s_mul_i32 s{S_T1}, s{S_W}, 12")
        P(f"s_add_u32 s{S_T4}, s{S_T4}, s{S_T1}")
        P(f"s_add_u32 s{S_T4}, s{S_T4}, 16")
        P(f"s_lshl_b32 s{S_T0}, s{S_G}, 16")
        P(f"s_and_b32 s{S_T6}, s{S_J}, 3")
        P(f"s_mul_i32 s{S_T6}, s{S_T6}, 3")
        P(f"s_mov_b32 s{S_T5}, 12")
        mk_srd(P, S_X, 4, SZ["x"])
        P("LF_ldx1:")
        P(f"s_add_u32 s{S_T1}, s{S_T6}, s{S_T4}")
        P(f"s_and_b32 s{S_T1}, s{S_T1}, 63")
        P(f"s_mul_i32 m0, s{S_T1}, {X_STRIDE}")
        P(f"s_lshl_b32 s{S_T2}, s{S_T1}, 10")
        P(f"s_add_u32 s{S_T2}, s{S_T2}, s{S_T0}")
        P(f"s_add_u32 s{S_T6}, s{S_T6}, 1")
        P(f"s_cmp_eq_u32 s{S_T6}, 12")
        P(f"s_cselect_b32 s{S_T6}, 0, s{S_T6}")
        P(f"buffer_load_dwordx4 v{l16}, s[{S_X}:{S_X+3}], s{S_T2} offen lds", tag="q")
        P(f"s_sub_u32 s{S_T5}, s{S_T5}, 1")
        P(f"s_cmp_lg_u32 s{S_T5}, 0")
        P("s_cbranch_scc1 LF_ldx1")
    else:
        mk_srd(P, S_WQ, 6, SZ["wq"])
        P(f"s_and_b32 s{S_T3}, s{S_W}, 3")
        P(f"s_lshl_b32 s{S_T3}, s{S_T3}, 3")
        wq_pieces(P, vsl, S_T3, 8, "LF_ldq1", 1)
        P(f"s_add_u32 s{S_T3}, s{S_T3}, 24")
        wq_pieces(P, vsl, S_T3, 8, "LF_ldq2", 1)


def prologue_f(P, V, endlabel):
    if STAMP["on"]: P("s_memrealtime s[100:101]")
    P("s_cmp_ge_u32 s2, 256")
    P(f"s_cbranch_scc1 {endlabel}")
    P("s_load_dwordx16 s[4:19], s[0:1], 0")
    P("s_load_dwordx8 s[20:27], s[0:1], 64")
    P("s_load_dwordx2 s[28:29], s[0:1], 96")
    lane = V.alloc("lane"); l16 = V.alloc("l16")
    P(f"v_lshrrev_b32 v1, 6, v0")
    P(f"v_and_b32 v{lane}, 63, v0")
    P(f"v_readfirstlane_b32 s{S_W}, v1")
    P(f"v_lshlrev_b32 v{l16}, 4, v{lane}")
    P(f"s_lshr_b32 s{S_T0}, s2, 3")
    if OPT.get("jrot"): P(f"s_add_u32 s{S_J}, s{S_T0}, {OPT['jrot']}"); P(f"s_and_b32 s{S_J}, s{S_J}, 3")
    else: P(f"s_and_b32 s{S_J}, s{S_T0}, 3")
    P(f"s_and_b32 s{S_T1}, s2, 1")
    P(f"s_lshl_b32 s{S_T1}, s{S_T1}, 2")
    P(f"s_add_u32 s{S_J}, s{S_J}, s{S_T1}")
    P(f"s_and_b32 s{S_G}, s2, 6")
    P(f"s_lshl_b32 s{S_G}, s{S_G}, 2")
    P(f"s_lshr_b32 s{S_T0}, s{S_T0}, 2")
    P(f"s_add_u32 s{S_G}, s{S_G}, s{S_T0}")
    t0 = V.alloc("t0"); t1 = V.alloc("t1")
    vsl = slice_pattern(P, V, lane, t0)
    LOADS["f"] = lambda sfx: emit_loads(P, l16, vsl, sfx)
    P(f"s_and_b32 s{S_TT}, s{S_W}, 1")
    P(f"s_lshl_b32 s{S_TILE}, s{S_G}, 1")
    P(f"s_add_u32 s{S_TILE}, s{S_TILE}, s{S_TT}")
    P(f"s_lshr_b32 s{S_HP}, s{S_W}, 1")
    P(f"s_and_b32 s{S_HP}, s{S_HP}, 1")
    P(f"s_lshr_b32 s{S_KH}, s{S_W}, 2")
    assert all((p * 171) >> 12 == p // 24 for p in range(64)) and SLOT_SZ == 3 * 8192 + 256
    return lane, l16, t0, t1, vsl


def rest_srds(P):
    P(f"s_cmp_eq_u32 s{S_TT}, 0")
    P(f"s_cselect_b32 s{S_WM}, s16, s18")
    P(f"s_cselect_b32 s{S_WM+1}, s17, s19")
    P(f"s_and_b32 s{S_WM+1}, s{S_WM+1}, 0xffff")
    P(f"s_mov_b32 s{S_WM+2}, 0x{SZ['wg']:x}")
    P(f"s_mov_b32 s{S_WM+3}, 0x20000")
    mk_srd(P, S_OUT, 24, SZ["out"])
    mk_srd(P, S_WO, 12, SZ["wo"])
    mk_srd(P, S_WD, 20, SZ["wd"])


def nonce_check(P, SL, vn, vz):
    k = SL.n; SL.n += 1
    P(f"v_readfirstlane_b32 s{S_NONCE}, v{vn}")
    P(f"s_cmp_lg_u32 s{S_NONCE}, 0")
    P(f"s_cbranch_scc1 LR{k}")
    raw(P, f"""{cnt(1+k)}    s_mov_b32 s{S_T7}, 0
LS{k}_l:
    s_sleep 2
    buffer_load_dword v{vn}, v{vz}, s[{S_DBG}:{S_DBG+3}], 0 offen sc1
    s_waitcnt vmcnt(0)
    v_readfirstlane_b32 s{S_NONCE}, v{vn}
    s_add_u32 s{S_T7}, s{S_T7}, 1
    s_cmp_ge_u32 s{S_T7}, 0x{SPIN_MAX:x}
    s_cbranch_scc1 LR{k}
    s_cmp_eq_u32 s{S_NONCE}, 0
    s_cbranch_scc1 LS{k}_l
""")
    P(f"LR{k}:")
    P("s_nop 0")


def flag_load(vf, n, vaddr, soff):
    op = {1: "buffer_load_dword", 4: "buffer_load_dwordx4"}[n]
    return f"{op} {vr(vf,n)}, v{vaddr}, {WSR}, {soff} offen sc1"


def flag_cmp(vf, n, t):
    L = [f"v_xor_b32 v{t}, s{S_NONCE}, v{vf}"]
    for i in range(1, n):
        L += [f"v_xor_b32 v{vf+i}, s{S_NONCE}, v{vf+i}", f"v_or_b32 v{t}, v{t}, v{vf+i}"]
    L += [f"v_cmp_ne_u32 vcc, 0, v{t}"]
    return L


def spin_check(P, SL, loads, cmps, sleep=1):
    k = SL.n; SL.n += 1
    for x in cmps: P(x)
    P(f"s_cbranch_vccz LR{k}")
    nl = "\n    "
    raw(P, f"""{cnt(1+k)}    s_mov_b32 s{S_T7}, 0
LS{k}_l:
    {f"s_sleep {sleep}" if sleep else "s_nop 0"}
    {nl.join(loads)}
    s_waitcnt vmcnt(0)
    {nl.join(cmps)}
    s_add_u32 s{S_T7}, s{S_T7}, 1
    s_cmp_ge_u32 s{S_T7}, 0x{SPIN_MAX:x}
    s_cbranch_scc1 LR{k}
    s_cbranch_vccnz LS{k}_l
""")
    P(f"LR{k}:")


def flag_store(P, vz, t, soff):
    P(f"v_mov_b32 v{t}, s{S_NONCE}")
    P("s_mov_b64 exec, 1")
    P(f"buffer_store_dword v{t}, v{vz}, {WSR}, s{soff} offen sc1", tag="flag")
    P("s_mov_b64 exec, -1")


PROG = MISC + 1024
class SplitBar:
    def __init__(self, P, V, SL, lane, t0):
        self.P, self.SL, self.n = P, SL, 0
        self.va = V.alloc("sba"); self.vr = V.alloc("sbr"); self.one = V.alloc("sb1"); self.vg = V.alloc("sbg")
        P(f"s_lshl_b32 s{S_T0}, s{S_W}, 8")
        P(f"s_add_u32 s{S_T0}, s{S_T0}, 0x{PROG:x}")
        P(f"v_lshlrev_b32 v{t0}, 2, v{lane}")
        P(f"v_add_u32 v{self.va}, s{S_T0}, v{t0}")
        P(f"v_and_b32 v{t0}, 7, v{lane}")
        P(f"v_mul_u32_u24 v{t0}, 260, v{t0}")
        P(f"v_add_u32 v{self.vr}, 0x{PROG:x}, v{t0}")
        P(f"v_mov_b32 v{self.one}, 0")
        P(f"ds_write_b32 v{self.va}, v{self.one}")
        P(f"v_mov_b32 v{self.one}, 1")
    def arrive(self):
        self.n += 1
        self.P(f"ds_add_u32 v{self.va}, v{self.one}")
    def peek(self): self.P(f"ds_read_b32 v{self.vg}, v{self.vr}")
    def check(self):
        k = self.SL.n; self.SL.n += 1
        self.P(f"v_cmp_gt_u32 vcc, {self.n}, v{self.vg}")
        self.P(f"s_cbranch_vccz LR{k}")
        self.P(f"LS{k}:")
        for t in ([f"s_sleep {OPT['ssl']}"] if OPT.get("ssl") else []) + [f"ds_read_b32 v{self.vg}, v{self.vr}", "s_waitcnt lgkmcnt(0)", f"v_cmp_gt_u32 vcc, {self.n}, v{self.vg}", f"s_cbranch_vccnz LS{k}"]:
            self.P(t); self.P.I[-1].kind = "salu"; self.P.I[-1].vw = set(); self.P.I[-1].vr = set()
        self.P(f"LR{k}:")


def attn_setup(P, V, lane, l16, t0, t1):
    A = {}
    P(f"s_lshl_b32 s{S_T1}, s{S_KH}, 12")
    vk = V.alloc("vk"); vv = [V.alloc("vv0"), V.alloc("vv1")]
    P(f"s_add_u32 s{S_T1}, s{S_T1}, 0x{KV_RING:x}")
    P(f"v_add_u32 v{vk}, s{S_T1}, v{l16}")
    P(f"v_lshrrev_b32 v{t0}, 5, v{lane}")
    P(f"v_lshlrev_b32 v{t0}, 8, v{t0}")
    P(f"v_and_b32 v{t1}, 15, v{lane}")
    P(f"v_lshl_add_u32 v{t0}, v{t1}, 4, v{t0}")
    P(f"v_and_b32 v{t1}, 16, v{lane}")
    P(f"v_cmp_eq_u32 vcc, 0, v{t1}")
    P(f"s_add_u32 s{S_T1}, s{S_T1}, 2048")
    for s in range(2):
        P(f"v_mov_b32 v{t1}, s{S_T1}")
        P(f"v_add_u32 v{t1}, {8192*s}, v{t1}")
        P(f"v_mov_b32 v{vv[s]}, 0x{ONES:x}")
        P(f"v_cndmask_b32 v{vv[s]}, v{t1}, v{vv[s]}, vcc")
        P(f"v_add_u32 v{vv[s]}, v{vv[s]}, v{t0}")
    P(f"s_lshl_b32 s{S_KVOFF}, s{S_KH}, 15")
    P(f"s_lshl_b32 s{S_T1}, s{S_HP}, 16")
    P(f"s_add_u32 s{S_KVOFF}, s{S_KVOFF}, s{S_T1}")
    P(f"s_lshl_b32 s{S_T1}, s{S_TT}, 10")
    P(f"s_add_u32 s{S_KVOFF}, s{S_KVOFF}, s{S_T1}")
    P(f"s_lshl_b32 s{S_KVLDS}, s{S_W}, 10")
    P(f"s_add_u32 s{S_KVLDS}, s{S_KVLDS}, 0x{KV_RING:x}")
    A.update(vk=vk, vv=vv)
    A["S"] = [V.alloc("Sa", 16), V.alloc("Sb", 16)]
    A["O"] = [V.alloc("Oa", 16), V.alloc("Ob", 16)]
    A["fk"] = V.alloc("fk", 4); A["fv"] = [V.alloc("fv1", 4), V.alloc("fv2", 4)]
    A["q"] = V.alloc("qf", 8)
    return A


def kv_dma(P, l16, c):
    dma(P, l16, S_WS, f"s{S_T2}", (S_KVLDS, 8192 * (c & 1)), tag=f"kv{c}", mods=SC1, pre=[f"s_add_u32 s{S_T2}, s{S_KVOFF}, {2048*c}"])


def attention(P, A, l16, its, hook, prio, kvf=None, bb=1):
    S, O, fk, fv = A["S"], A["O"], A["fk"], A["fv"]
    SB = OPT.get("sb", 0)
    q = [A["q"], A["q"] + 4]
    def rdK(it): P(f"ds_read_b128 {vr(fk,4)}, v{A['vk']} offset:{((it>>1)&1)*8192 + (it&1)*1024}")
    def rdV(it, half):
        m = OPT.get("vmask", 1) and it > 0
        if m: P(f"s_mov_b64 exec, s[{S_VM}:{S_VM+1}]")
        P(f"ds_read_b128 {vr(fv[half],4)}, v{A['vv'][(it>>1)&1]} offset:{(it&1)*1024 + half*512}")
        if m: P("s_mov_b64 exec, -1")
    E = lambda x, i: P(f"v_exp_f32 v{S[x]+i}, v{S[x]+i}")
    def C(x, i):
        b = S[x] + (8 if i >= 4 else 0); k = i & 3
        P(f"v_cvt_pk_bf16_f32 v{b+k}, v{b+2*k}, v{b+2*k+1}")
    for it in its:
        if it == 0:
            if OPT.get("vmask", 1): P(f"s_mov_b32 s{S_VM}, 0xffff0000"); P(f"s_mov_b32 s{S_VM+1}, 0xffff0000")
            rdK(0); rdV(0, 0)
            hook(0, 0, "start")
            P(mfma(S[0], fk, q[0]))
        for x in range(2):
            H = lambda pos: hook(it, x, pos)
            E(x, 0); E(x, 1)
            if x == 0:
                if it > 0: P(mfma(O[1], fv[1], S[1] + 8, O[1]))
                rdV(it, 1)
            else:
                P(mfma(O[0], fv[1], S[0] + 8, O[0]))
            H("pv2")
            E(x, 2); E(x, 3); H("g1")
            E(x, 4); E(x, 5); H("g2")
            E(x, 6); E(x, 7)
            if bb:
                H("g3")
                for i in range(4): C(x, i)
            if x == 0: P(mfma(S[1], fk, q[1]))
            elif it < 31: P(mfma(S[0], fk, q[0]))
            H("qk")
            sig = (x == 0 and (it & 1) and it < 31)
            syn = sig or (x == 0 and hook(it, x, "sync?"))
            ORD = OPT.get("ord", 2) if syn else 0
            if bb:
                E(x, 8); E(x, 9); H("g4")
                E(x, 10); E(x, 11)
                if ORD == 2: P(mfma(O[x], fv[0], S[x], None if it == 0 else O[x]))
            else:
                for i in range(4): C(x, i)
                if ORD == 0: H("g3")
                E(x, 8); E(x, 9)
                if ORD == 2: P(mfma(O[x], fv[0], S[x], None if it == 0 else O[x])); H("g3")
            if syn:
                H("pre0")
                if sig: P.wait_tag(f"kv{(it>>1)+1}")
                H("pre")
                P.wait_lgkm_all()
                P("s_barrier")
            if ORD != 2: P(mfma(O[x], fv[0], S[x], None if it == 0 else O[x]))
            p = prio(it, x)
            if p is not None: P(f"s_setprio {p}")
            if x == 0:
                if it < 31: rdK(it + 1)
                if (it & 1) and (it >> 1) + 2 < 16: (kvf or (lambda c: kv_dma(P, l16, c)))((it >> 1) + 2)
                if syn: hook(it, 0, "chk")
            else:
                if it < 31: rdV(it + 1, 0)
            H("pv1")
            if not bb: E(x, 10); E(x, 11); H("g4")
            E(x, 12); E(x, 13); H("g5")
            E(x, 14); E(x, 15); H("g6")
            for i in range(4, 8): C(x, i)
        if it == 31: P(mfma(O[1], fv[1], S[1] + 8, O[1]))


def fin_dma_w1(P, vsl, st, slot, tag, i):
    srd, u0 = (S_WD, 8 * st) if st < 11 else (S_WO, 8 * (st - 11))
    dma(P, vsl, srd, f"s{S_T2}", (S_FL2, slot + 1024 * i), tag=tag, pre=[f"s_add_u32 s{S_T2}, s{S_FW}, 0x{(16*u0 + 8*i)*1024:x}"])


def fin_dma_w2(P, vsl, st, slot, tag, i, other):
    dma(P, vsl, S_WD, f"s{S_T2}", (S_FL2, (slot + 1024 * i - 8192 * other) & 0xffffffff), tag=tag,
        pre=[f"s_add_u32 s{S_T2}, s{S_FW}, 0x{((128*st + 8*i)*1024 - 65536*other) & 0xffffffff:x}"])


def fin_dma_b1(P, l16, st, slot, tag, t):
    P(f"s_add_u32 s{S_T2}, s{S_FB}, 0x{(t*118 + 8*st)*1024:x}")
    if st == 10:
        P(f"s_cmp_lt_u32 s{S_W}, 6")
        P(f"s_cselect_b32 s{S_T2}, s{S_T2}, 0x{OOB:x}")
    dma(P, l16, S_WS, f"s{S_T2}", (S_FL, slot + 16384 + 8192 * t), tag=tag, mods=SC1)


def kernel_F():
    P = Prog(); V = Regs(2, 255, "v"); SL = Slow()
    NP = OPT.get("np", 1)
    JIT = 16 - NP
    GPP = OPT.get("gpp", 2)
    UNI = OPT.get("uni", JIT + 2)
    HF = OPT.get("hf", UNI | 1)
    lane, l16, t0, t1, vsl = prologue_f(P, V, "LF_end")
    vz = V.alloc("vz")
    P(f"s_cmp_lg_u32 s{S_W}, 7")
    P("s_cbranch_scc1 LF_not7")
    P(f"s_lshr_b32 s{S_T4}, s{S_J}, 1")
    P(f"s_lshl_b32 s{S_T0}, s{S_G}, 16")
    P(f"s_lshl_b32 s{S_T2}, s{S_T4}, 14")
    P(f"s_add_u32 s{S_T2}, s{S_T2}, s{S_T0}")
    P(f"s_mul_i32 m0, s{S_T4}, {16*X_STRIDE}")
    P(f"s_and_b32 s{S_T3}, s{S_J}, 1")
    P(f"s_mov_b32 s{S_T5}, 0")
    P("s_waitcnt lgkmcnt(0)")
    mk_srd(P, S_X, 4, SZ["x"])
    if OPT.get("u7", 1):
        P(f"s_sub_u32 s{S_X}, s{S_X}, 64")
        P(f"s_subb_u32 s{S_X+1}, s{S_X+1}, 0")
        P(f"s_mov_b32 s{S_X+2}, 0x{SZ['x'] + 64:x}")
        P(f"s_add_u32 s{S_T2}, s{S_T2}, 64")
        for g in range(4):
            for k in range(4):
                if k == 0:
                    if g: P(f"s_add_u32 m0, m0, {4*X_STRIDE}"); P(f"s_add_u32 s{S_T2}, s{S_T2}, {4096 + 48}")
                else: P(f"s_sub_u32 s{S_T2}, s{S_T2}, 16")
                P(f"buffer_load_dwordx4 v{l16}, s[{S_X}:{S_X+3}], s{S_T2} offen offset:{X_STRIDE*k} lds", tag="c")
    else:
        P("LF_ldx7:")
        P(f"buffer_load_dwordx4 v{l16}, s[{S_X}:{S_X+3}], s{S_T2} offen lds", tag="c")
        P(f"s_add_u32 m0, m0, {X_STRIDE}")
        P(f"s_add_u32 s{S_T2}, s{S_T2}, 1024")
        P(f"s_add_u32 s{S_T5}, s{S_T5}, 1")
        P(f"s_cmp_lg_u32 s{S_T5}, 16")
        P("s_cbranch_scc1 LF_ldx7")
    P(f"s_cmp_eq_u32 s{S_T3}, 0")
    P(f"s_cselect_b32 s{S_WKV}, s8, s10")
    P(f"s_cselect_b32 s{S_WKV+1}, s9, s11")
    P(f"s_and_b32 s{S_WKV+1}, s{S_WKV+1}, 0xffff")
    P(f"s_mov_b32 s{S_WKV+2}, 0x{SZ['wk']:x}")
    P(f"s_mov_b32 s{S_WKV+3}, 0x20000")
    P(f"s_mov_b32 m0, 0x{WKV_L:x}")
    P(f"s_mov_b32 s{S_T5}, 0")
    P("LF_ldw7:")
    for i in range(4):
        P(f"buffer_load_dwordx4 v{l16}, s[{S_WKV}:{S_WKV+3}], s{S_T5} offen offset:{1024*i} lds")
        P.I[-1].kind = "salu"
    P(f"s_add_u32 m0, m0, 4096")
    P(f"s_add_u32 s{S_T5}, s{S_T5}, 4096")
    P(f"s_cmp_lg_u32 s{S_T5}, 16384")
    P("s_cbranch_scc1 LF_ldw7")
    stamp(P, 15)
    P("s_barrier")
    P("LF_not7:")
    P("s_waitcnt lgkmcnt(0)")
    if OPT.get("cpf", 1):
        c = V.alloc("cpf")
        P(f"s_getpc_b64 s[{S_EX}:{S_EX+1}]")
        P("LF_pc0:")
        P(f"s_lshr_b32 s{S_T3}, s2, 3")
        P(f"s_lshl_b32 s{S_T3}, s{S_T3}, 3")
        P(f"s_add_u32 s{S_T3}, s{S_T3}, s{S_W}")
        P(f"s_lshl_b32 s{S_T3}, s{S_T3}, 8")
        P(f"v_lshlrev_b32 v{c}, 7, v{lane}")
        P(f"v_add_u32 v{c}, s{S_T3}, v{c}")
        P(f"v_min_u32 v{c}, LF_last-LF_pc0, v{c}")
        P("s_mov_b64 exec, 3")
        P(f"global_load_dword v{c}, v{c}, s[{S_EX}:{S_EX+1}]", tag="cpf")
        P("s_mov_b64 exec, -1")
    P(f"v_mov_b32 v{vz}, 0")
    mk_srd(P, S_WS, 28, SZ["ws"])
    mk_srd(P, S_DBG, 26, SZ["dbg"])
    vn = V.alloc("vn")
    P(f"s_or_b32 s{S_T0}, s2, s{S_W}")
    P(f"s_cmp_lg_u32 s{S_T0}, 0")
    P("s_cbranch_scc1 LF_non")
    P.cond_begin()
    P(f"s_memrealtime s[{S_EX}:{S_EX+1}]")
    P("s_waitcnt lgkmcnt(0)")
    P(f"s_mul_i32 s{S_EX+1}, s{S_EX+1}, 0x9e3779b1")
    P(f"s_xor_b32 s{S_EX}, s{S_EX}, s{S_EX+1}")
    P(f"s_or_b32 s{S_EX}, s{S_EX}, 1")
    P(f"v_mov_b32 v{t0}, s{S_EX}")
    P("s_mov_b64 exec, 1")
    P(f"buffer_store_dword v{t0}, v{vz}, s[{S_DBG}:{S_DBG+3}], 0 offen sc1")
    P("s_mov_b64 exec, -1")
    P.cond_end()
    P("LF_non:")
    P_main = P; P = Prog()
    rest_srds(P)
    mk_srd(P, S_GW, 22, SZ["gw"])
    P(f"s_mov_b32 s{S_C1}, {hexf(2.0**120)}")
    A = attn_setup(P, V, lane, l16, t0, t1)
    qf = A["q"]; O = A["O"]; S = A["S"]
    A["sb"] = SplitBar(P, V, SL, lane, t0) if OPT.get("sb", 0) else type("X", (), dict(n=0))()
    vfl = V.alloc("vfl", 4)
    P(f"s_lshl_b32 s{S_T0}, s{S_HP}, 1")
    P(f"s_add_u32 s{S_T0}, s{S_T0}, s{S_KH}")
    P(f"s_lshl_b32 s{S_T1}, s{S_J}, 2")
    P(f"s_add_u32 s{S_T0}, s{S_T0}, s{S_T1}")
    P(f"s_mul_i32 s{S_T1}, s{S_TILE}, 118")
    P(f"s_add_u32 s{S_T0}, s{S_T0}, s{S_T1}")
    P(f"s_lshl_b32 s{S_T0}, s{S_T0}, 10")
    P(f"s_add_u32 s{S_OD}, s{S_T0}, 0x{WS_OH + 86*1024:x}")
    def poison():
        for r in range(4): P(f"v_mov_b32 v{O[0]+r}, -1")
        P(f"buffer_store_dwordx4 {vr(O[0],4)}, v{l16}, {WSR}, s{S_OD} offen sc1", tag="poison")
    P(f"s_lshr_b32 s{S_T0}, s{S_W}, 1")
    P(f"s_lshl_b32 s{S_T0}, s{S_T0}, 3")
    P(f"s_add_u32 s{S_T0}, s{S_T0}, s{S_T1}")
    P(f"s_lshl_b32 s{S_T0}, s{S_T0}, 10")
    P(f"s_add_u32 s{S_OL}, s{S_T0}, 0x{WS_OH + 86*1024:x}")
    P(f"s_lshl_b32 s{S_FP}, s{S_G}, 10")
    P(f"s_lshl_b32 s{S_FS}, s{S_J}, 5")
    P(f"s_add_u32 s{S_FS}, s{S_FS}, s{S_W}")
    P(f"s_lshl_b32 s{S_FS}, s{S_FS}, 2")
    P(f"s_add_u32 s{S_FS}, s{S_FS}, s{S_FP}")
    P(f"s_add_u32 s{S_FS}, s{S_FS}, 0x{FL_H:x}")
    P(f"s_add_u32 s{S_FP}, s{S_FP}, 0x{FL_H:x}")
    P(f"s_lshl_b32 s{S_FW}, s{S_W}, 14")
    P(f"s_lshl_b32 s{S_T1}, s{S_J}, 7")
    P(f"s_add_u32 s{S_FW}, s{S_FW}, s{S_T1}")
    P(f"s_lshl_b32 s{S_FL2}, s{S_W}, 11")
    P(f"s_mul_i32 s{S_U0}, s{S_J}, 11")
    P(f"s_min_u32 s{S_U0}, s{S_U0}, 76")
    P(f"s_cmp_ge_u32 s{S_J}, 6")
    P(f"s_cselect_b32 s{S_NU}, 10, 11")
    vxa = xfrag_addr(P, V, "vxa", lane, t0, S_TT)
    vq = V.alloc("vq")
    P(f"s_and_b32 s{S_T0}, s{S_W}, 3")
    P(f"s_lshl_b32 s{S_T1}, s{S_T0}, 11")
    P(f"s_add_u32 s{S_T1}, s{S_T1}, 0x{QSCR:x}")
    P(f"v_add_u32 v{vq}, s{S_T1}, v{l16}")
    COMMON = P.I; P = P_main
    def emit(L):
        for x in L: P(x.text, tag=x.tag)
    iw = next(i for i, x in enumerate(COMMON) if x.text.startswith(f"s_mov_b32 s{S_WM+3},")) + 1
    iu = next(i for i, x in enumerate(COMMON) if x.text.startswith(f"s_mul_i32 s{S_U0},"))
    C_EARLY = COMMON[:iw] + COMMON[iu:iu + 4]; C_LATE = COMMON[iw:iu] + COMMON[iu + 4:]
    acc = [[V.alloc(f"acc{i}{t}", 16) for t in range(2)] for i in range(3)]
    fx = [[V.alloc(f"fx{b}{t}", 4) for t in range(2)] for b in range(2)]
    fw = [[V.alloc(f"fw{b}{i}", 4) for i in range(3)] for b in range(2)]
    S_PFB = 19
    def capture(f):
        nonlocal P
        P0 = P; P = Prog(); f(); L = P.I; P = P0
        return L
    R = {}
    def f1():
        vtn = tr_slice_addr(P, V, "vtn", lane, t0, t1, SLOT[0], S_HP, 8)
        vpf = V.alloc("vpf"); vpd = V.alloc("vpd"); vpw = V.alloc("vpw")
        P(f"v_bfe_u32 v{t0}, v{lane}, 4, 1")
        P(f"v_lshrrev_b32 v{t1}, 5, v{lane}")
        P(f"v_lshl_add_u32 v{t0}, v{t1}, 7, v{t0}")
        P(f"v_mul_u32_u24 v{vpf}, 2752, v{t0}")
        P(f"v_and_b32 v{t0}, 15, v{lane}")
        P(f"v_lshl_add_u32 v{vpf}, v{t0}, 7, v{vpf}")
        P(f"v_cmp_gt_u32 vcc, 12, v{t0}")
        P(f"v_mov_b32 v{t1}, 0x{OOB:x}")
        P(f"v_cndmask_b32 v{vpf}, v{t1}, v{vpf}, vcc")
        P(f"s_lshr_b32 s{S_T0}, s2, 3")
        P(f"s_lshl_b32 s{S_T0}, s{S_T0}, 1")
        P(f"s_add_u32 s{S_T0}, s{S_T0}, s{S_HP}")
        P(f"s_mul_i32 s{S_T0}, s{S_T0}, {2*2752}")
        P(f"s_and_b32 s{S_T1}, s2, 1")
        P(f"s_mul_i32 s{S_T1}, s{S_T1}, {44*32}")
        P(f"s_add_u32 s{S_PFB}, s{S_T0}, s{S_T1}")
        R.update(vtn=vtn, vpf=vpf, vpd=vpd, vpw=vpw)
    def f2():
        vx0 = V.alloc("vx0")
        P(f"s_mul_i32 s{S_T0}, s{S_TT}, {32*X_STRIDE}")
        P(f"v_subrev_u32 v{vx0}, s{S_T0}, v{vxa}")
        P(f"s_lshl_b32 s{S_T4}, s{S_W}, 1")
        wtr = w_tr_addrs(P, V, lane, t0, t1, s_w=S_T4)
        R.update(vx0=vx0, wtr=wtr)
    def f3():
        P(f"s_mul_i32 s{S_T0}, s{S_W}, 3")
        P(f"s_mul_i32 s{S_T1}, s{S_G}, 236")
        P(f"s_add_u32 s{S_T1}, s{S_T1}, s{S_U0}")
        for i in range(3):
            P(f"s_add_u32 s{S_T2}, s{S_T0}, {i}")
            P(f"s_add_u32 s{SH[i]}, s{S_T1}, s{S_T2}")
            P(f"s_lshl_b32 s{SH[i]}, s{SH[i]}, 10")
            P(f"s_add_u32 s{SH[i]}, s{SH[i]}, 0x{WS_OH:x}")
            P(f"s_cmp_lt_u32 s{S_T2}, s{S_NU}")
            P(f"s_cselect_b32 s{SH[i]}, s{SH[i]}, 0x{OOB:x}")
    def f4():
        vpw = R["vpw"]
        S_PFS = S_WKV
        P(f"s_lshr_b32 s{S_T0}, s2, 3")
        P(f"s_lshl_b32 s{S_T0}, s{S_T0}, 2")
        P(f"s_add_u32 s{S_T0}, s{S_T0}, s{S_W}")
        P(f"s_cmp_lt_u32 s{S_T0}, 86")
        P(f"s_cselect_b32 s{S_PFS}, s{S_WD}, s{S_WO}")
        P(f"s_cselect_b32 s{S_PFS+1}, s{S_WD+1}, s{S_WO+1}")
        P(f"s_cselect_b32 s{S_PFS+2}, s{S_WD+2}, s{S_WO+2}")
        P(f"s_cselect_b32 s{S_T1}, 0, 86")
        P(f"s_mov_b32 s{S_PFS+3}, 0x20000")
        P(f"s_sub_u32 s{S_T0}, s{S_T0}, s{S_T1}")
        P(f"s_lshl_b32 s{S_T0}, s{S_T0}, 14")
        P(f"s_and_b32 s{S_T1}, s2, 1")
        P(f"s_lshl_b32 s{S_T1}, s{S_T1}, 9")
        P(f"s_add_u32 s{S_T0}, s{S_T0}, s{S_T1}")
        P(f"v_lshrrev_b32 v{t0}, 2, v{lane}")
        P(f"v_lshlrev_b32 v{t0}, 10, v{t0}")
        P(f"v_and_b32 v{t1}, 3, v{lane}")
        P(f"v_lshl_add_u32 v{t0}, v{t1}, 7, v{t0}")
        P(f"v_add_u32 v{vpw}, s{S_T0}, v{t0}")
    ix = next(i for i, x in enumerate(COMMON) if x.text.startswith(f"v_and_b32 v{t0}, 31, v{lane}"))
    ia = next(i for i, x in enumerate(COMMON) if x.text.startswith(f"s_mov_b32 s{S_C1},")) + 1
    io = next(i for i, x in enumerate(COMMON) if x.text.startswith(f"s_lshl_b32 s{S_T0}, s{S_HP}, 1"))
    ifl = next(i for i, x in enumerate(COMMON) if x.text.startswith(f"s_lshl_b32 s{S_FP},"))
    H_PRE = COMMON[ix:ix + 6] + COMMON[:iw] + capture(f1)
    H_MID = COMMON[ia:io] + COMMON[ix + 6:] + capture(f2) + COMMON[io:ifl]
    H_LATE = [COMMON[iw:iw + 8], COMMON[iw + 8:ia], COMMON[ifl:iu], COMMON[iu:iu + 4]]
    sh = capture(f3); H_LATE += [sh[:9], sh[9:15], sh[15:]]
    wp = capture(f4); H_LATE += [wp[:14], wp[14:]]
    vtn, vpf, vpd, vpw, vx0, wtr = (R[k] for k in ("vtn", "vpf", "vpd", "vpw", "vx0", "wtr"))
    S_PFS = S_WKV
    def pf(blk, half):
        P(f"s_add_u32 s{S_T4}, s{S_PFB}, {128*2752*blk}")
        if half: P("s_mov_b64 exec, 0xffffffff")
        P(f"buffer_load_dword v{vpd}, v{vpf}, s[{S_WM}:{S_WM+3}], s{S_T4} offen", tag="pf")
        P.I[-1].vw = set()
        if half: P("s_mov_b64 exec, -1")
    PF = OPT.get("pf", 1)
    KT = 192; vx16 = 240; vw16 = 241; vst = 242; S_K5, S_K6 = S_T5, S_T6
    P(f"s_cmp_lg_u32 s{S_W}, 7")
    P("s_cbranch_scc1 LF_not7b")
    P.cond_begin()
    P(f"s_lshr_b32 s{S_T0}, s{S_J}, 1")
    P(f"s_lshl_b32 s{S_T1}, s{S_T0}, 4")
    P(f"v_and_b32 v{t0}, 15, v{lane}")
    P(f"v_add_u32 v{t1}, s{S_T1}, v{t0}")
    P(f"v_mul_u32_u24 v{vx16}, {X_STRIDE}, v{t1}")
    P(f"v_lshrrev_b32 v{t1}, 4, v{lane}")
    P(f"v_lshl_add_u32 v{vx16}, v{t1}, 4, v{vx16}")
    P(f"v_lshlrev_b32 v{vw16}, 8, v{t1}")
    P(f"v_lshl_add_u32 v{vw16}, v{t0}, 3, v{vw16}")
    P(f"v_add_u32 v{vw16}, 0x{WKV_L:x}, v{vw16}")
    P(f"s_and_b32 s{S_K6}, s{S_J}, 1")
    P(f"s_cmp_eq_u32 s{S_K6}, 0")
    P(f"s_cselect_b32 s{S_T3}, 9, 8")
    P(f"s_cselect_b32 s{S_T4}, 8, 9")
    P(f"s_cselect_b32 s{S_K5}, 0x{WS_KF:x}, 0x{WS_VF:x}")
    P(f"v_lshlrev_b32 v{vst}, 4, v{t0}")
    P(f"v_lshrrev_b32 v{t0}, 1, v{t1}")
    P(f"v_lshl_add_u32 v{vst}, v{t0}, 3, v{vst}")
    P(f"v_and_b32 v{t0}, 1, v{t1}")
    P(f"v_lshlrev_b32 v{t0}, s{S_T3}, v{t0}")
    P(f"v_add_u32 v{vst}, v{vst}, v{t0}")
    P(f"s_and_b32 s{S_T1}, s{S_T0}, 1")
    P(f"s_lshl_b32 s{S_T1}, s{S_T1}, s{S_T4}")
    P(f"s_add_u32 s{S_K5}, s{S_K5}, s{S_T1}")
    P(f"s_lshr_b32 s{S_T0}, s{S_T0}, 1")
    P(f"s_lshl_b32 s{S_T1}, s{S_G}, 1")
    P(f"s_add_u32 s{S_T0}, s{S_T0}, s{S_T1}")
    P(f"s_lshl_b32 s{S_T0}, s{S_T0}, 10")
    P(f"s_add_u32 s{S_K5}, s{S_K5}, s{S_T0}")
    P("s_waitcnt vmcnt(0)")
    P(f"buffer_load_dword v{vn}, v{vz}, s[{S_DBG}:{S_DBG+3}], 0 offen sc1")
    def kv16(which):
        d = KT
        xb = [(KT+16) + 4 * i for i in range(4)]; wb = [(KT+32) + 4 * i for i in range(4)]
        def ld(ks):
            P(f"ds_read_b128 {vr(xb[ks%4],4)}, v{vx16} offset:{ks*64}")
            P(f"ds_read_b64_tr_b16 {vr(wb[ks%4],2)}, v{vw16} offset:{ks*1024}")
            P(f"ds_read_b64_tr_b16 {vr(wb[ks%4]+2,2)}, v{vw16} offset:{ks*1024+128}")
        for ks in range(3): ld(ks)
        for ks in range(16):
            a, b = (wb[ks%4], xb[ks%4]) if which == 0 else (xb[ks%4], wb[ks%4])
            P(f"v_mfma_f32_16x16x32_bf16 {vr(d,4)}, {vr(a,4)}, {vr(b,4)}, {vr(d,4) if ks else 0}")
            if ks + 3 < 16: ld(ks + 3)
        if which == 0:
            P(f"s_mov_b32 s{S_T0}, {hexf(QK_SCALE)}")
            for r in range(4): P(f"v_mul_f32 v{d+r}, s{S_T0}, v{d+r}")
    P(f"s_cmp_eq_u32 s{S_K6}, 1")
    P("s_cbranch_scc1 LF_vch")
    P.cond_begin(); kv16(0); P.cond_end()
    P("s_branch LF_kvj")
    P("LF_vch:")
    P.cond_begin(); kv16(1); P.cond_end()
    P("LF_kvj:")
    for r in range(2): P(f"v_cvt_pk_bf16_f32 v{KT+4+r}, v{KT+2*r}, v{KT+2*r+1}")
    P(f"buffer_store_dwordx2 {vr(KT+4,2)}, v{vst}, {WSR}, s{S_K5} offen sc1")
    FB2 = OPT.get("fb2", 0)
    def w7flag():
        P(f"s_lshl_b32 s{S_T0}, s{S_G}, 3")
        P(f"s_add_u32 s{S_T0}, s{S_T0}, s{S_J}")
        P(f"s_lshl_b32 s{S_T0}, s{S_T0}, 2")
        P(f"s_add_u32 s{S_T0}, s{S_T0}, 0x{FL_KV:x}")
        P("s_waitcnt vmcnt(0)")
        nonce_check(P, SL, vn, vz)
        flag_store(P, vz, t0, S_T0)
    if not FB2: w7flag()
    def pf7():
        P(f"v_lshrrev_b32 v{t0}, 4, v{lane}")
        P(f"v_mul_u32_u24 v{vx16}, 2752, v{t0}")
        P(f"v_and_b32 v{t0}, 15, v{lane}")
        P(f"v_lshl_add_u32 v{vx16}, v{t0}, 7, v{vx16}")
        P(f"v_cmp_gt_u32 vcc, 12, v{t0}")
        P(f"v_mov_b32 v{t1}, 0x{OOB:x}")
        P(f"v_cndmask_b32 v{vx16}, v{t1}, v{vx16}, vcc")
        P(f"s_lshr_b32 s{S_T0}, s2, 3")
        P(f"s_mul_i32 s{S_T0}, s{S_T0}, {4*2752}")
        P(f"s_and_b32 s{S_T1}, s2, 1")
        P(f"s_mul_i32 s{S_T1}, s{S_T1}, {44*32}")
        P(f"s_add_u32 s{S_T0}, s{S_T0}, s{S_T1}")
        for m in range(2):
            mk_srd(P, S_WKV, 16 + 2 * m, SZ["wg"])
            P(f"buffer_load_dword v{fx[0][0]+m}, v{vx16}, s[{S_WKV}:{S_WKV+3}], s{S_T0} offen")
    if OPT.get("pf7", 1) == 1: pf7()
    stamp(P, 1)
    P("s_barrier")
    stamp(P, 2)
    if OPT.get("pf7", 1) == 2: pf7()
    if FB2 == 1: w7flag()
    P("s_barrier")
    if FB2 == 2: w7flag()
    P.cond_end(nowait=True)
    P("s_branch LF_light")
    P("LF_not7b:")
    P(f"s_cmp_lg_u32 s{S_KH}, 0")
    P("s_cbranch_scc1 LF_l0")

    def sigstamp(it, k):
        if OPT.get("sig"):
            P(f"s_memtime s[98:99]"); P("s_waitcnt lgkmcnt(0)"); P(f"v_writelane_b32 v{vsig}, s98, {2*it+k}")
    vsig = V.alloc("vsig") if OPT.get("sig") else None

    P.cond_begin()
    emit(H_PRE)
    stamp(P, 15)
    P("s_barrier")
    stamp(P, 0)
    LOADS["f"]("h")
    stamp(P, 1)
    if PF & 4: pf(0, True)
    P.wait_tag("q")
    P("s_barrier")
    stamp(P, 2)
    if PF & 2: pf(0, True)
    QD = 6
    xb = [acc[1][0] + 4 * i for i in range(QD)]; wb = [acc[2][0] + 4 * i for i in range(QD)]
    assert acc[1][1] == acc[1][0] + 16 and acc[2][1] == acc[2][0] + 16
    def q_loads(ks):
        o = SLOT[ks // 12] - SLOT[0] + (ks % 12) * 2048
        P(f"ds_read_b128 {vr(xb[ks%QD],4)}, v{vxa} offset:{ks*32}")
        P(f"ds_read_b64_tr_b16 {vr(wb[ks%QD],2)}, v{vtn} offset:{o}")
        P(f"ds_read_b64_tr_b16 {vr(wb[ks%QD]+2,2)}, v{vtn} offset:{o+512}")
    for ks in range(QD - 1): q_loads(ks)
    for ks in range(32):
        P(mfma(acc[0][0], wb[ks%QD], xb[ks%QD], acc[0][0] if ks else None))
        if ks in (11, 23):
            stamp(P, 11 if ks == 11 else 13)
            P("s_barrier")
        if ks + QD - 1 in (12, 24): P("s_barrier")
        if ks + QD - 1 < 32: q_loads(ks + QD - 1)
        nf = -(-len(H_MID) // 28)
        emit(H_MID[ks * nf:(ks + 1) * nf])
        if ks == OPT.get("pk", 24):
            P(f"s_mov_b32 s{S_T5}, 0x{FL_KV:x}")
            P(f"buffer_load_dword v{vn}, v{vz}, s[{S_DBG}:{S_DBG+3}], 0 offen sc1")
            P(flag_load(vfl, 4, l16, f"s{S_T5}"))
    for r in range(8): P(f"v_cvt_pk_bf16_f32 v{qf+r}, v{acc[0][0]+2*r}, v{acc[0][0]+2*r+1}")
    P(f"ds_write_b128 v{vq}, {vr(qf,4)}")
    P(f"ds_write_b128 v{vq}, {vr(qf+4,4)} offset:1024")
    def kv_check():
        nonce_check(P, SL, vn, vz)
        spin_check(P, SL, [flag_load(vfl, 4, l16, f"s{S_T5}")], flag_cmp(vfl, 4, t0), sleep=OPT.get("ksl", 6))
        kv_dma(P, l16, 0)
        dma(P, l16, S_WS, f"s{S_T2}", (S_KVLDS, 4096), tag="kv0", mods=SC1, pre=[f"s_add_u32 s{S_T2}, s{S_T2}, 32768"])
    if not OPT.get("kl"): kv_check()
    def gu_reads(ks):
        s, kk = ks // 2, ks % 2
        so = SLOT[s % 3] - SLOT[0] + kk * 6144
        L = [f"ds_read_b128 {vr(fx[ks%2][0],4)}, v{vx0} offset:{ks*32}"]
        for i in range(3):
            f = fw[ks % 2][i]
            L += [f"ds_read_b64_tr_b16 {vr(f,2)}, v{wtr[i]} offset:{so}", f"ds_read_b64_tr_b16 {vr(f+2,2)}, v{wtr[i]} offset:{so+1536}"]
            if i == 0: L.append(f"ds_read_b128 {vr(fx[ks%2][1],4)}, v{vx0} offset:{ks*32 + 32*X_STRIDE}")
        return L
    def gu_groups(ks, late=False):
        R = gu_reads(ks + 1) if ks < 31 else []
        if OPT.get("abl_hds") and ks >= 2 * NP - 1: R = []
        G = []
        for m in range(6):
            i, t = m // 2, m % 2
            mm = [mfma(acc[i][t], fw[ks % 2][i], fx[ks % 2][t], acc[i][t] if ks else None)]
            if OPT.get("abl_hm") and ks >= 2 * NP - 1: mm = []
            G.append(mm + (R[2 * m: 2 * m + 2] if not late else ([] if m < 3 else R[3 * (m - 3): 3 * (m - 3) + 3])))
        return G
    P.wait_lgkm_all()
    stamp(P, 14)
    P("s_barrier")
    stamp(P, 3)
    for x in gu_reads(0): P(x)
    if OPT.get("kl"): kv_check()
    poison()
    PFI = OPT.get("pfi", 0)
    for ks in range(2 * NP - 1):
        if ks % 2 == 1:
            P.wait_lgkm_all(); P("s_barrier")
        for g in gu_groups(ks):
            for x in g: P(x)
    P.wait_tag("kv0"); P.wait_lgkm_all(); P("s_barrier")
    stamp(P, 4)
    gq = []
    tmp = fx[0][0]; cst = fx[1][0]
    assert fx[0][1] == fx[0][0] + 4
    gel = []
    def load_window(k):
        n = 2 * (NP + k) - 1
        assert not gq
        gq.extend(gu_groups(n, late=(k > 0 and OPT.get("sb", 0))))
        if n < 31: gq.extend(gu_groups(n + 1))
    def hookH(it, x, pos):
        if pos == "sync?": return 1 <= it <= JIT
        if pos == "pre0": sigstamp(it, 0); return
        if pos == "pre": sigstamp(it, 1); return
        if pos == "start": load_window(0); return
        midprio(it, x, pos, PH)
        if pos in ("qk", "pv1") and H_LATE: emit(H_LATE.pop(0))
        if pos == "pv2" and x == 1 and PF & 1:
            if it == PFI: pf(1, True)
            if it == PFI + 2: pf(2, True)
            if it == PFI + 5: pf(3, True)
        if pos == "pv2" and x == 1 and OPT.get("wpf", 1) and it in (7, 8, 9, 10):
            k = it - 7
            P(f"s_cmp_lg_u32 s{S_W}, {k}")
            P(f"s_cbranch_scc1 LF_wp{k}")
            P(f"buffer_load_dword v{vpd}, v{vpw}, s[{S_PFS}:{S_PFS+3}], 0 offen")
            P.I[-1].kind = "salu"; P.I[-1].vw = set()
            P(f"LF_wp{k}:")
        if pos == "pv1" and x == 0 and 1 <= it <= JIT: load_window(it)
        if pos in ("g1", "g2", "g3", "g4", "g5", "g6"):
            cnt = int(str(OPT.get("gm", 111111))[int(pos[1]) - 1]) if gq else 1
            cnt = 0 if cnt == 9 else cnt
            if gq and cnt == 0: pass
            elif gq:
                for _ in range(cnt):
                    if gq:
                        for t in gq.pop(0): P(t)
                if not gq and it == JIT and x == 1:
                    L = [f"v_mov_b32 v{cst}, {hexf(GELU_C1)}", f"v_mov_b32 v{cst+1}, {hexf(GELU_C1)}",
                         f"v_mov_b32 v{cst+2}, {hexf(GELU_C2)}", f"v_mov_b32 v{cst+3}, {hexf(GELU_C2)}"]
                    k = 0
                    for i in range(3):
                        for t in range(2):
                            d = fw[k % 2][k // 2]; k += 1
                            L += gelu_tile_pk(acc[i][t], d, tmp, cst)
                            if t == 1: L.append(f"s_add_u32 s{SH[i]}, s{SH[i]}, {118*1024}")
                            L.append(f"buffer_store_dwordx4 {vr(d,4)}, v{l16}, {WSR}, s{SH[i]} offen sc1")
                    ns = (2 if OPT.get("bbh", 0) else 3) + 12 * (UNI - JIT - 1)
                    n = (len(L) + ns - 1) // ns
                    gel.extend(L[i:i + n] for i in range(0, len(L), n))
            elif gel:
                for t in gel.pop(0): P(t, tag="hst" if "store" in t else None)
    PM = OPT.get("pm", 9)
    PH = [int(c) for c in str(OPT.get("ph", 3321)).zfill(4)]; PL = [int(c) for c in str(OPT.get("pl", 3210)).zfill(4)]
    def prioH(it, x):
        if PM == 9: return PH[2 * x] if it < JIT else 3
        if PM == 1: return 3 if (it == 0 and x == 0) else None
        if PM == 3: return 3 - 2 * x
        if PM == 5: return (3 - 2 * x) if it < JIT else 3
        if PM == 6: return 3 if it >= JIT else None
        return None
    def prioL(it, x):
        if PM == 9: return PL[2 * x] if it < JIT else 0
        if PM in (2, 6): return 1 if (it == 0 and x == 0) else None
        if PM == 3: return 3 - 2 * x
        if PM == 5: return (3 - 2 * x) if it < JIT else 0
        return None
    def midprio(it, x, pos, T=None):
        if PM == 9 and pos == "pv2" and it <= JIT: P(f"s_setprio {T[1] if x else T[3]}")
        if PM in (3, 5) and pos == "pv2" and (PM == 3 or it <= JIT): P(f"s_setprio {2 * x}")
    attention(P, A, l16, range(0, UNI), hookH, prioH, kvf=lambda c: None, bb=OPT.get("bbh", 0))
    nsb = A["sb"].n; A["sb"].n = 0
    assert not gq and not gel, (len(gq), len(gel))
    P.cond_end(keep=True)
    P("s_branch LF_join")
    for n in ("vx0", "vtn", "wtr0", "wtr1", "wtr2", "vpf", "vpw"): V.release(n)

    P("LF_l0:")
    P.cond_begin()
    P("s_barrier")
    LOADS["f"]("l")
    stamp(P, 1)
    P("s_waitcnt vmcnt(8)")
    P("s_barrier")
    stamp(P, 2)
    P(f"s_cmp_eq_u32 s{S_W}, 6")
    P("s_cbranch_scc1 LF_l6")
    P(f"s_add_u32 s{S_T3}, s{S_T3}, 24")
    wq_pieces(P, vsl, S_T3, 8, "LF_ldq3", 1)
    P("s_waitcnt vmcnt(8)")
    P("s_branch LF_l6j")
    P("LF_l6:")
    P("s_waitcnt vmcnt(0)")
    P("LF_l6j:")
    P("s_barrier")
    P("LF_light:")
    emit(C_EARLY)

    pats = w_patterns(P, V, lane, t0, t1)
    P(f"s_lshl_b32 s{S_T0}, s{S_HP}, 1")
    P(f"s_mul_i32 s{S_WOFF}, s{S_T0}, {8*2752}")
    P(f"s_lshl_b32 s{S_T1}, s{S_U0}, 5")
    P(f"s_add_u32 s{S_WOFF}, s{S_WOFF}, s{S_T1}")
    P(f"s_mul_i32 s{S_WLDS}, s{S_T0}, 3072")
    P(f"s_mul_i32 s{S_T1}, s{S_TT}, {UP_OFF}")
    P(f"s_add_u32 s{S_WLDS}, s{S_WLDS}, s{S_T1}")
    inattn = dict(on=False)
    P(f"s_add_u32 s{S_WOFF}, s{S_WOFF}, 0")
    P(f"v_subrev_u32 v{pats[1]}, 1024, v{pats[1]}")
    P(f"v_subrev_u32 v{pats[2]}, 2048, v{pats[2]}")
    def w_dma1(s, k):
        g, i = k // 3, k % 3
        solo = not OPT.get("wm0", 1) or inattn["on"]
        if i == 0 or solo:
            dma(P, pats[i], S_WM, f"s{S_T3}", (S_WLDS, SLOT[s % 3] + 3072 * g), offset=1024 * i, tag=f"w{s}",
                pre=[f"s_add_u32 s{S_T3}, s{S_WOFF}, 0x{(32*s + 8*g)*2752:x}"] if i == 0 else None)
        else:
            P(f"buffer_load_dwordx4 v{pats[i]}, s[{S_WM}:{S_WM+3}], s{S_T3} offen offset:{1024*i} lds", tag=f"w{s}")
    def w_dma6(s):
        for k in range(6): w_dma1(s, k)
    stamp(P, 11)
    P("s_barrier")
    w_dma6(0)
    P("s_waitcnt vmcnt(6)"); P.I[-1].kind = "salu"
    P("s_barrier")
    h = len(C_LATE) // 4
    emit(C_LATE[:h])
    stamp(P, 13)
    P("s_barrier")
    w_dma6(1)
    emit(C_LATE[h:])
    dma(P, l16, S_GW, "0", (None, GWL), tag="gw")
    vgw = acc[0][1]
    P(f"v_lshrrev_b32 v{t0}, 5, v{lane}")
    P(f"v_lshlrev_b32 v{vgw}, 4, v{t0}")
    P(f"s_lshl_b32 s{S_T0}, s{S_HP}, 9")
    P(f"v_add_u32 v{vxa}, s{S_T0}, v{vxa}")
    P(f"s_add_u32 s{S_T0}, s{S_T0}, 0x{GWL:x}")
    P(f"v_add_u32 v{vgw}, s{S_T0}, v{vgw}")
    P(f"s_lshl_b32 s{S_T0}, s{S_W}, 8")
    P(f"s_add_u32 s{S_T0}, s{S_T0}, 0x{ONES - 1024:x}")
    P(f"v_lshlrev_b32 v{t0}, 2, v{lane}")
    P(f"v_add_u32 v{t0}, s{S_T0}, v{t0}")
    P(f"v_mov_b32 v{t1}, 0x3f803f80")
    P(f"v_lshrrev_b32 v1, 2, v{lane}")
    P(f"v_and_b32 v1, 11, v1")
    P(f"v_cmp_eq_u32 vcc, 0, v1")
    P(f"v_cndmask_b32 v{t1}, 0, v{t1}, vcc")
    P(f"ds_write_b32 v{t0}, v{t1}")
    P(f"ds_write_b32 v{t0}, v{t1} offset:1024")
    poison()
    za = acc[0][0]; zx = [acc[1][0] + 4 * i for i in range(4)]; zg = [acc[2][0] + 4 * i for i in range(4)]
    def zjob():
        for r in range(4): P(f"v_mov_b32 v{za+r}, 0")
        def zld(k):
            P(f"ds_read_b128 {vr(zx[k%4],4)}, v{vxa} offset:{k*32}")
            P(f"ds_read_b128 {vr(zg[k%4],4)}, v{vgw} offset:{k*32}")
        for k in range(3): zld(k)
        for k in range(16):
            for r in range(4): P(f"v_dot2c_f32_bf16 v{za+r}, v{zx[k%4]+r}, v{zg[k%4]+r}")
            if k + 3 < 16: zld(k + 3)
        P("s_nop 2")
        P(f"v_add_f32 v{za}, v{za}, v{za+1}")
        P(f"v_add_f32 v{za+2}, v{za+2}, v{za+3}")
        P(f"v_add_f32 v{za}, v{za}, v{za+2}")
        P(f"s_and_b32 s{S_T0}, s{S_W}, 3")
        P(f"s_lshl_b32 s{S_T0}, s{S_T0}, 8")
        P(f"s_add_u32 s{S_T0}, s{S_T0}, 0x{MISC:x}")
        P(f"v_lshlrev_b32 v{t0}, 2, v{lane}")
        P(f"v_add_u32 v{t0}, s{S_T0}, v{t0}")
        P(f"ds_write_b32 v{t0}, v{za}")
    P(f"s_mov_b32 s{S_T6}, 0x{FL_KV:x}")
    def kv_both(c):
        kv_dma(P, l16, c)
        dma(P, l16, S_WS, f"s{S_T2}", (S_KVLDS, (8192 * (c & 1) - 4096) & 0xffffffff), tag=f"kv{c}", mods=SC1, pre=[f"s_sub_u32 s{S_T2}, s{S_T2}, 32768"])
    def poll_issue():
        P(f"buffer_load_dword v{vn}, v{vz}, s[{S_DBG}:{S_DBG+3}], 0 offen sc1")
        P(flag_load(vfl, 4, l16, f"s{S_T6}"))
    for s in range(0, NP + 1):
        P.wait_tag(f"w{s}")
        P.wait_lgkm_all()
        if s == 0: stamp(P, 14)
        P("s_barrier")
        if s == 0:
            stamp(P, 3)
            P(f"ds_read_b128 {vr(qf,4)}, v{vq} offset:1024")
            P(f"ds_read_b128 {vr(qf+4,4)}, v{vq}")
        if s == NP: kv_both(1)
        if s < NP: w_dma6(s + 2)
        if s == 0:
            P(f"buffer_load_dword v{vn}, v{vz}, s[{S_DBG}:{S_DBG+3}], 0 offen sc1")
            P.wait_tag("gw")
            zjob()
    assert NP >= 1
    stamp(P, 4)
    dq = []; wq2 = []
    def hookL(it, x, pos):
        if pos == "sync?": return 1 <= it <= JIT
        if pos == "pre0": sigstamp(it, 0); return
        if pos == "pre":
            if NP + it < 16: P.wait_tag(f"w{NP+it}")
            sigstamp(it, 1); return
        if (pos == "start" or pos == "chk") and NP + it + 2 < 16:
            assert not dq
            for k in range(0 if OPT.get("abl_ldma") else 6): dq.append(lambda s=NP + it + 2, k=k: w_dma1(s, k))
        midprio(it, x, pos, PL)
        LW = OPT.get("lw", 4)
        if pos == "chk" and it == JIT:
            for b in range(LW):
                for o in range(2):
                    for i in range(2): wq2.append(lambda b=b, o=o, i=i: fin_dma_w2(P, vsl, b, b * 16384, f"fw{b}", i, o))
        if wq2 and pos not in ("pre", "pre0", "chk", "start"):
            wq2.pop(0)()
            if it == UNI - 1 and x == 1 and pos == "g6":
                while wq2: wq2.pop(0)()
        LS = [("pv2", "qk", "pv1"), ("g1", "g3", "g5"), ("g2", "g4", "g6"), ("pv1", "g4", "g5", "g6", "pv2", "g1", "g2"), ("pv2", "pv1")][OPT.get("ls", 3)]
        if pos in LS and dq:
            dq.pop(0)()
            if OPT.get("ls", 3) == 4 and dq and len(dq) % 3 != 0: dq.pop(0)(); (dq.pop(0)() if pos == "pv1" and len(dq) % 3 else None)
    attention(P, A, l16, range(0, UNI), hookL, prioL, kvf=kv_both, bb=OPT.get("bbl", 0))
    assert A["sb"].n == nsb
    assert not dq
    P.cond_end(keep=True)
    P("LF_join:")
    P.join()
    for n in ["wpat0", "wpat1", "wpat2", "vxa", "vq"] + [f"acc{i}{t}" for i in range(3) for t in range(2)] + \
             [f"fx{b}{t}" for b in range(2) for t in range(2)] + [f"fw{b}{i}" for b in range(2) for i in range(3)]: V.release(n)
    stamp(P, 5)

    facc = V.alloc("facc", 16); facc1 = V.alloc("facc1", 16); fa = V.alloc("ffa", 8)
    NB = OPT.get("nb", 6)
    hb = [V.alloc(f"hb{i}", 4) for i in range(NB)]; fb = hb[0]
    vl4 = V.alloc("vl4"); vg = V.alloc("vg"); zt = V.alloc("zt", 2)
    va0 = tr_slice_addr(P, V, "fa0", lane, t0, t1, 0, S_KH, 4)
    vA = [[va0, V.alloc("fa0h")], [V.alloc("fa1"), V.alloc("fa1h")]]
    P(f"s_lshl_b32 s{S_T1}, s{S_HP}, 5")
    P(f"v_xor_b32 v{va0}, s{S_T1}, v{va0}")
    P(f"s_lshr_b32 s{S_T0}, s{S_W}, 1")
    P(f"s_lshl_b32 s{S_T1}, s{S_T0}, 11")
    P(f"v_add_u32 v{va0}, s{S_T1}, v{va0}")
    P(f"v_xor_b32 v{vA[1][0]}, 64, v{va0}")
    P(f"v_add_u32 v{vA[0][1]}, 0x10000, v{va0}")
    P(f"v_add_u32 v{vA[1][1]}, 0x10000, v{vA[1][0]}")
    P(f"s_mul_i32 s{S_FB}, s{S_TILE}, 118")
    P(f"s_add_u32 s{S_FB}, s{S_FB}, s{S_T0}")
    P(f"s_lshl_b32 s{S_FB}, s{S_FB}, 10")
    P(f"s_add_u32 s{S_FB}, s{S_FB}, 0x{WS_OH:x}")
    P(f"v_lshlrev_b32 v{vl4}, 2, v{lane}")
    vhf = V.alloc("vhf")
    P(f"v_lshrrev_b32 v{t0}, 3, v{lane}")
    P(f"v_mul_u32_u24 v{t0}, 96, v{t0}")
    P(f"v_add_u32 v{vhf}, v{t0}, v{vl4}")
    P(f"s_lshl_b32 s{S_T0}, s{S_TT}, 8")
    P(f"s_add_u32 s{S_T0}, s{S_T0}, 0x{MISC:x}")
    P(f"v_add_u32 v{t0}, s{S_T0}, v{vl4}")
    P(f"ds_read_b32 v{zt}, v{t0}")
    P(f"ds_read_b32 v{zt+1}, v{t0} offset:512")
    P(f"v_add_f32 v{zt}, v{zt}, v{zt+1}")
    P(f"v_mov_b32 v{zt+1}, v{zt}")
    P(f"v_permlane32_swap_b32 v{zt}, v{zt+1}")
    P(f"v_add_f32 v{zt}, v{zt}, v{zt+1}")
    P(f"v_mul_f32 v{t0}, {hexf(-LOG2E)}, v{zt}")
    P(f"v_exp_f32 v{t0}, v{t0}")
    P(f"v_add_f32 v{t0}, 1.0, v{t0}")
    P(f"v_rcp_f32 v{vg}, v{t0}")
    V.release("zt")
    vw = [V.alloc(f"vw{i}") for i in range(3)]; vrd = V.alloc("vrd"); vo = V.alloc("vo")
    def sbase(dst, w):
        P(f"s_mul_i32 s{S_T1}, s{w}, 6144")
        P(f"v_add_u32 v{dst}, s{S_T1}, v{l16}")
    sbase(vrd, S_W)
    for b in range(1, 4):
        P(f"s_xor_b32 s{S_T0}, s{S_W}, {b << 1}")
        sbase(vw[b - 1], S_T0)
    P(f"v_and_b32 v{vo}, 31, v{lane}")
    P(f"v_lshlrev_b32 v{vo}, 10, v{vo}")
    P(f"v_lshrrev_b32 v{t1}, 5, v{lane}")
    P(f"v_lshl_add_u32 v{vo}, v{t1}, 4, v{vo}")
    P(f"s_lshl_b32 s{S_OO}, s{S_TILE}, 15")
    P(f"s_lshl_b32 s{S_T1}, s{S_J}, 7")
    P(f"s_add_u32 s{S_OO}, s{S_OO}, s{S_T1}")
    P(f"s_lshl_b32 s{S_T1}, s{S_KH}, 6")
    P(f"s_add_u32 s{S_OO}, s{S_OO}, s{S_T1}")
    P(f"s_lshl_b32 s{S_T1}, s{S_HP}, 5")
    P(f"s_add_u32 s{S_OO}, s{S_OO}, s{S_T1}")
    vp = V.alloc("vp"); vpa = V.alloc("vpa")
    P(f"v_lshlrev_b32 v{vpa}, 10, v{lane}")
    vt0 = V.alloc("vt0"); vt1 = V.alloc("vt1")
    P(f"s_lshr_b32 s{S_T1}, s{S_W}, 1")
    P(f"s_mul_i32 s{S_T1}, s{S_T1}, {16384 - 2048}")
    P(f"s_add_u32 s{S_T1}, s{S_T1}, {3*16384}")
    P(f"v_add_u32 v{vt0}, s{S_T1}, v{vA[0][0]}")
    P(f"v_add_u32 v{vt1}, s{S_T1}, v{vA[1][0]}")
    va = V.alloc("cva"); vb = V.alloc("cvb"); fb = V.alloc("cvon")
    P(f"s_mul_i32 s{S_T0}, s{S_W}, 3072")
    P(f"s_add_u32 s{S_T0}, s{S_T0}, 114688")
    P(f"v_add_u32 v{va}, s{S_T0}, v{l16}")
    P(f"s_xor_b32 s{S_T0}, s{S_W}, 4")
    P(f"s_mul_i32 s{S_T0}, s{S_T0}, 3072")
    P(f"s_add_u32 s{S_T0}, s{S_T0}, 114688")
    P(f"v_add_u32 v{vb}, s{S_T0}, v{l16}")
    P(f"s_add_u32 s{S_OL2}, s{S_OL}, 4096")
    BSLOT = lambda b: ((b % 8) if b < 11 else (b - 8)) * 16384
    def a_reads(r, d):
        o = (4 * r % 64) * 2048; hi = o >> 16; o &= 0xffff
        assert r // 2 in vis, (r, vis)
        rd_done[r // 2] = rd_done.get(r // 2, 0) + 1
        if OPT.get("abl_uds"): return
        P(f"ds_read_b64_tr_b16 {vr(fa+4*d,2)}, v{vA[d][hi]} offset:{o}")
        P(f"ds_read_b64_tr_b16 {vr(fa+4*d+2,2)}, v{vA[d][hi]} offset:{o+1024}")
    def h_load(r):
        if OPT.get("abl_uh"): return
        P(f"s_add_u32 s{S_T2}, s{S_FB}, {4096*r}")
        if r == 21:
            P(f"s_cmp_lt_u32 s{S_W}, 4")
            P(f"s_cselect_b32 s{S_T2}, s{S_T2}, 0x{OOB:x}")
        P(f"buffer_load_dwordx4 {vr(hb[r%NB],4)}, v{l16}, {WSR}, s{S_T2} offen sc1")
    pend = {}
    LW = OPT.get("lw", 4)
    dq = []; vis = set(); issued = {}; rd_done = {}; nxt = dict(b=LW, r=0, d=0, pre=False)
    def qW(b):
        def f(i):
            if not OPT.get("abl_uw"): fin_dma_w1(P, vsl, b, BSLOT(b), f"fw{b}", i)
            issued[b] = issued.get(b, 0) + 1
        for i in range(2): dq.append(lambda i=i: f(i))
    CH = OPT.get("ch", HF + 4); R0 = OPT.get("r0", 2 * (CH + 1))
    DBL = OPT.get("dbl", 64)
    def mstep():
        r, d = nxt["r"], nxt["d"]
        if r >= 22: return
        if not nxt["pre"]:
            a_reads(0, 0); a_reads(0, 1); nxt["pre"] = True; return
        if not OPT.get("abl_um"): P(mfma([facc, facc1][d], fa + 4 * d, hb[r % NB], [facc, facc1][d] if r else None))
        if r + 1 < 22: a_reads(r + 1, d)
        if d == 1 and r + NB < 22: dq.insert(0, lambda r=r: h_load(r + NB))
        nxt["d"] = 1 - d; nxt["r"] = r + d
    US = [("g1", "g4"), ("g2", "g5"), ("g1", "g5"), ("g2", "g6"), ("g3", "g6")][OPT.get("us", 3)]
    VS = [("pv2", "qk"), ("qk", "pv1"), ("pv2", "pv1"), ("g3", "g6"), ("qk", "g6")][OPT.get("vs", 0)]
    def hookU(it, x, pos):
        sig = (x == 0 and (it & 1)); ph = 2 * it + x
        if pos == "sync?": return False
        if pos == "pre0": sigstamp(it, 0); return
        if pos == "pre":
            if it == HF: P.wait_vm_all()
            need = [b for b in issued if issued[b] == 2 and b not in vis and (it == 29 or b <= (max(0, ph + 8 - R0) * (2 if ph + 6 >= DBL else 1)) // 2) and b <= 10]
            if need: P.wait_tag(*[f"fw{b}" for b in need])
            if it == HF: need = need + list(range(LW))
            pend["vis"] = need; pend["free"] = {b for b in rd_done if rd_done[b] >= 4}
            sigstamp(it, 1); return
        if pos == "pv1" and sig and it == HF and OPT.get("ef", -1) < 0:
            nonce_check(P, SL, vn, vz)
            flag_store(P, vz, t0, S_FS)
        if pos == "chk":
            vis.update(pend["vis"])
            while it >= HF and nxt["b"] < 15:
                b = nxt["b"]; prev = {8: 0, 9: 1, 10: 2, 11: 3, 12: 4, 13: 5, 14: 6}.get(b)
                if prev is not None and prev not in pend["free"]: break
                qW(b); nxt["b"] += 1
            return
        PP = OPT.get("pp", 2)
        if (PP == 0 and pos == "pv2" and x == 0 and it == CH - 1) or (PP == 1 and pos == "g1" and x == 1 and it == CH - 1) or \
           (PP == 2 and pos == "pv1" and x == 1 and it == CH - 1): P(flag_load(vfl, 1, vhf, f"s{S_FP}"))
        EF = OPT.get("ef", -1)
        if ph == EF and pos == "g4":
            P.wait_vm_all(); nonce_check(P, SL, vn, vz); flag_store(P, vz, t0, S_FS)
        if pos == "pv2" and x == 0 and it == CH:
            spin_check(P, SL, [flag_load(vfl, 1, vhf, f"s{S_FP}")], flag_cmp(vfl, 1, t0), sleep=OPT.get("hsl", 4))
            for r in range(NB): dq.insert(r, lambda r=r: h_load(r))
        elif dq and (pos in VS or (pos in ("g2", "g5") and it in (CH, CH + 1)) or (pos == "g5" and OPT.get("d3"))): dq.pop(0)()
        if nxt["r"] >= 22 - OPT.get("tr", 5) and nxt["d"] == 0: pass
        elif (pos in US and ph >= R0) or (pos == US[1] and ph == R0 - 1) or (pos in ("g3", "g6") and ph >= DBL): mstep()
        if pos == "g6" and it == 31 and x == 1:
            assert nxt["b"] == 15, nxt
            print("rounds left for tail:", 22 - nxt["r"])
    def prioU(it, x):
        if not OPT.get("prio", 1): return None
        k = 2 * ((it + 1) & 1) + x
        return int(str(OPT.get("pu", 3210)).zfill(4)[k])
    attention(P, A, l16, range(UNI, 32), hookU, prioU)
    assert not dq
    stamp(P, 6)
    if OPT.get("sig"):
        P(f"s_lshl_b32 s98, s2, 11")
        P(f"s_lshl_b32 s99, s{S_W}, 8")
        P(f"s_add_u32 s98, s98, s99")
        P(f"s_add_u32 s98, s98, 0x{WS_STAMP + (1<<20):x}")
        P(f"buffer_store_dword v{vsig}, v{vl4}, {WSR}, s98 offen")
    P("s_setprio 0")
    P(f"v_mov_b32 v{O[1]+7}, v{O[1]}")
    for i in range(3): P(f"ds_write_b128 v{va}, {vr(O[1]+4+4*i,4)} offset:{1024*i}")
    P.wait_tag(*[f"fw{b}" for b in range(8, 15)]); P.wait_lgkm_all()
    P("s_barrier")
    vis.update(range(11))
    for i in range(3): P(f"ds_read_b128 {vr(O[1]+4+4*i,4)}, v{vb} offset:{1024*i}")
    P(f"v_add_f32 v{O[0]}, v{O[0]}, v{O[1]+7}")
    for r in range(8, 16): P(f"v_add_f32 v{O[0]+r}, v{O[0]+r}, v{O[1]+r}")
    P(f"v_mov_b32 v{t1}, 0x207")
    P(f"v_cmp_nle_f32 vcc, {hexf(2.0**-90)}, v{O[0]}")
    P(f"v_cmp_nge_f32 s[{S_PM}:{S_PM+1}], {'s' + str(S_T0)}, v{O[0]}".replace(f"s{S_T0}", f"s{S_C1}"))
    P(f"s_or_b64 vcc, vcc, s[{S_PM}:{S_PM+1}]")
    P(f"v_add3_u32 v{t0}, v{O[0]+8}, 0, 0".replace("v_add3_u32", "v_add_f32").replace(", 0, 0", f", v{O[0]+9}"))
    for r in range(10, 16): P(f"v_add_f32 v{t0}, v{t0}, v{O[0]+r}")
    P(f"v_cmp_class_f32 s[{S_PM}:{S_PM+1}], v{t0}, v{t1}")
    P(f"s_or_b64 vcc, vcc, s[{S_PM}:{S_PM+1}]")
    if OPT.get("forcefb"): P("s_mov_b64 vcc, -1")
    P("s_cmp_lg_u64 vcc, 0")
    P("s_cbranch_scc1 LF_fb")
    P("LF_fbr:")
    P(f"v_rcp_f32 v{t0}, v{O[0]}")
    P(f"v_mul_f32 v{t0}, v{t0}, v{vg}")
    for r in range(8, 16): P(f"v_mul_f32 v{O[0]+r}, v{O[0]+r}, v{t0}")
    for r in range(4): P(f"v_cvt_pk_bf16_f32 v{O[1]+r}, v{O[0]+8+2*r}, v{O[0]+9+2*r}")
    for r in range(4): P(f"v_min_u32 v{O[1]+r}, 0xfffffffe, v{O[1]+r}")
    P(f"buffer_store_dwordx4 {vr(O[1],4)}, v{l16}, {WSR}, s{S_OD} offen sc1", tag="ost")
    stamp(P, 7)
    K4, V8, ON, CM = A["fk"], A["fv"][0], fb, O[1]
    assert A["fv"][1] == V8 + 4
    nl = "\n    "
    fbk = f"""LF_fb:
    s_waitcnt vmcnt(0) lgkmcnt(0)
    v_mov_b32 v{t0}, 0xff800000
    s_mov_b32 s{S_T0}, 0x{WS_KF:x}
LF_fb1:
    buffer_load_dwordx4 {vr(K4,4)}, v{l16}, {WSR}, s{S_T0} offen sc1
    s_waitcnt vmcnt(0)
    {mfma(S[0], K4, qf)}
    s_nop 15
    {nl.join(f"v_max3_f32 v{t0}, v{S[0]+2*r}, v{S[0]+2*r+1}, v{t0}" for r in range(8))}
    s_add_u32 s{S_T0}, s{S_T0}, 1024
    s_cmp_lt_u32 s{S_T0}, 0x{WS_KF + 65536:x}
    s_cbranch_scc1 LF_fb1
    v_mov_b32 v{t1}, v{t0}
    s_nop 1
    v_permlane32_swap_b32 v{t0}, v{t1}
    s_nop 1
    v_max_f32 v{t0}, v{t0}, v{t1}
    {nl.join(f"v_sub_f32 v{CM+r}, 0, v{t0}" for r in range(16))}
    {nl.join(f"v_mov_b32 v{O[0]+r}, 0" for r in range(16))}
    v_lshrrev_b32 v{t0}, 5, v{lane}
    v_lshlrev_b32 v{t0}, 8, v{t0}
    v_and_b32 v{t1}, 15, v{lane}
    v_lshl_add_u32 v{t0}, v{t1}, 4, v{t0}
    v_and_b32 v{t1}, 16, v{lane}
    v_cmp_eq_u32 vcc, 0, v{t1}
    v_mov_b32 v{t1}, 0x{OOB:x}
    s_nop 1
    v_cndmask_b32 v{t0}, v{t0}, v{t1}, vcc
    v_and_b32 v{t1}, 27, v{lane}
    v_cmp_eq_u32 vcc, 0, v{t1}
    v_mov_b32 v{ON}, 0x3f803f80
    s_nop 1
    v_cndmask_b32 v{ON}, 0, v{ON}, vcc
    s_mov_b32 s{S_T0}, 0x{WS_KF:x}
LF_fb2:
    s_add_u32 s{S_T1}, s{S_T0}, 0x{WS_VF - WS_KF:x}
    buffer_load_dwordx4 {vr(K4,4)}, v{l16}, {WSR}, s{S_T0} offen sc1
    buffer_load_dwordx4 {vr(V8,4)}, v{t0}, {WSR}, s{S_T1} offen sc1
    buffer_load_dwordx4 {vr(V8+4,4)}, v{t0}, {WSR}, s{S_T1} offen offset:512 sc1
    s_waitcnt vmcnt(0)
    {mfma(S[0], K4, qf, CM)}
    {nl.join(f"v_or_b32 v{V8+r}, v{V8+r}, v{ON}" for r in range(8))}
    s_nop 7
    {nl.join(f"v_exp_f32 v{S[0]+r}, v{S[0]+r}" for r in range(16))}
    s_nop 1
    {nl.join(f"v_cvt_pk_bf16_f32 v{S[1]+r}, v{S[0]+2*r}, v{S[0]+2*r+1}" for r in range(8))}
    s_nop 1
    {mfma(O[0], V8, S[1], O[0])}
    {mfma(O[0], V8+4, S[1]+4, O[0])}
    s_add_u32 s{S_T0}, s{S_T0}, 1024
    s_cmp_lt_u32 s{S_T0}, 0x{WS_KF + 65536:x}
    s_cbranch_scc1 LF_fb2
    s_nop 15
    s_branch LF_fbr
"""
    SL.add(fbk)
    for n in ("Sa", "Sb", "Oa", "qf", "fk", "fv1", "fv2"): V.release(n)
    ob = V.alloc("ob", 32); wa = [V.alloc(f"wa{u}", 8) for u in range(8)]
    def oloads(g): return [f"buffer_load_dwordx4 {vr(ob+16*g+4*u,4)}, v{l16}, {WSR}, s{[S_OL,S_OL2][g]} offen offset:{1024*u} sc1" for u in range(4)]
    def ocheck(g):
        b = ob + 16 * g
        L = [f"v_max3_u32 v{t0}, v{b}, v{b+1}, v{b+2}"]
        for k in range(3, 15, 2): L.append(f"v_max3_u32 v{t0}, v{b+k}, v{b+k+1}, v{t0}")
        L += [f"v_max_u32 v{t0}, v{b+15}, v{t0}", f"v_cmp_eq_u32 vcc, -1, v{t0}"]
        return L
    fa2 = V.alloc("ffa2", 8)
    wr = []
    for u in range(8):
        for d, v in ((0, vt0), (1, vt1)):
            wr.append([f"ds_read_b64_tr_b16 {vr(wa[u]+4*d,2)}, v{v} offset:{u*2048}", f"ds_read_b64_tr_b16 {vr(wa[u]+4*d+2,2)}, v{v} offset:{u*2048+1024}"])
    r0 = nxt["r"]; assert nxt["d"] == 0 and not dq
    def tr_reads(r, d):
        o = (4 * r % 64) * 2048; hi = o >> 16; o &= 0xffff; f = [fa, fa2][(r - r0) % 2] + 4 * d
        P(f"ds_read_b64_tr_b16 {vr(f,2)}, v{vA[d][hi]} offset:{o}")
        P(f"ds_read_b64_tr_b16 {vr(f+2,2)}, v{vA[d][hi]} offset:{o+1024}")
    if r0 + 1 < 22: tr_reads(r0 + 1, 0); tr_reads(r0 + 1, 1)
    OL = min(r0 + OPT.get("ol", 99), 22)
    for r in range(r0, 22):
        if r == OL:
            for g in range(2):
                for x in oloads(g): P(x)
        for d in range(2):
            P(mfma([facc, facc1][d], [fa, fa2][(r - r0) % 2] + 4 * d, hb[r % NB], [facc, facc1][d]))
            if r + 2 < 22: tr_reads(r + 2, d)
            elif wr:
                for g in wr[:4]:
                    for x in g: P(x)
                del wr[:4]
    for g in wr:
        for x in g: P(x)
    assert 22 - r0 <= NB and r0 >= 16
    if OPT.get("oab", 1): P.wait_lgkm_all(); P("s_barrier")
    if OL == 22:
        for g in range(2):
            for x in oloads(g): P(x)
    P(f"v_sub_f32 v{t1}, 1.0, v{vg}")
    P(f"v_mov_b32 v{t0}, v{t1}")
    assert t1 == t0 + 1 and t0 % 2 == 0
    for r in range(0, 16, 2): P(f"v_pk_mul_f32 v[{facc+r}:{facc+r+1}], v[{facc+r}:{facc+r+1}], v[{t0}:{t1}]")
    for r in range(0, 16, 2): P(f"v_pk_mul_f32 v[{facc1+r}:{facc1+r+1}], v[{facc1+r}:{facc1+r+1}], v[{t0}:{t1}]")
    if not OPT.get("oab", 1): P.wait_lgkm_all(); P("s_barrier")
    stamp(P, 8)
    nl = "\n    "
    for g in range(2):
        k = SL.n; SL.n += 1
        for x in ocheck(g): P(x)
        P(f"s_cbranch_vccz LR{k}")
        raw(P, f"""{cnt(1+k)}    s_mov_b32 s{S_T7}, 0
LS{k}_p:
    s_sleep {OPT.get("osl", 2)}
    s_mov_b64 exec, 0xf
    buffer_load_dword v{vp}, v{vpa}, {WSR}, s{[S_OL,S_OL2][g]} offen offset:1020 sc1
    s_waitcnt vmcnt(0)
    v_cmp_eq_u32 vcc, -1, v{vp}
    s_mov_b64 exec, -1
    s_add_u32 s{S_T7}, s{S_T7}, 1
    s_cmp_ge_u32 s{S_T7}, 0x{SPIN_MAX:x}
    s_cbranch_scc1 LR{k}
    s_cbranch_vccnz LS{k}_p
    {nl.join(oloads(g))}
    s_waitcnt vmcnt(0)
    {nl.join(ocheck(g))}
    s_cbranch_vccnz LS{k}_p
""")
        P(f"LR{k}:")
        for u in range(4 * g, 4 * g + 4):
            P(mfma(facc1, wa[u] + 4, ob + 4 * u, facc1))
    W1 = [f"ds_write_b128 v{vw[b-1]}, {vr(src+4*i,4)} offset:{2048*(b-1) + 1024*i}" for b, src in ((2, facc1), (3, facc1 + 8)) for i in range(2)]
    for u in range(8):
        P(mfma(facc, wa[u], ob + 4 * u, facc))
        if u >= 3 and W1:
            if u == 3: P("s_nop 7")
            P(W1.pop(0))
    stamp(P, 9)
    for b, src in ((1, facc + 8),):
        for i in range(2): P(f"ds_write_b128 v{vw[b-1]}, {vr(src+4*i,4)} offset:{2048*(b-1) + 1024*i}")
    P.wait_lgkm_all()
    P("s_barrier")
    for i in range(6): P(f"ds_read_b128 {vr(ob+4*i,4)}, v{vrd} offset:{1024*i}")
    for b in range(3):
        for r in range(8): P(f"v_add_f32 v{facc+r}, v{facc+r}, v{ob+8*b+r}")
    for r in range(4): P(f"v_cvt_pk_bf16_f32 v{facc1+r}, v{facc+2*r}, v{facc+2*r+1}")
    P(f"v_permlane32_swap_b32 v{facc1}, v{facc1+2}")
    P(f"v_permlane32_swap_b32 v{facc1+1}, v{facc1+3}")
    P(f"buffer_store_dwordx4 {vr(facc1,4)}, v{vo}, s[{S_OUT}:{S_OUT+3}], s{S_OO} offen")
    if STAMP["on"]:
        P.wait_vm_all(); stamp(P, 10); stamp_dump(P, lane)
        if OPT.get("dbgst") is not None:
            P(f"s_cmp_lg_u32 s2, {OPT['dbgst']}")
            P("s_cbranch_scc1 LF_end")
            P(f"s_cmp_lg_u32 s{S_W}, {OPT.get('dbgw', 0)}")
            P("s_cbranch_scc1 LF_end")
            P(f"v_subrev_u32 v{VSTAMP}, s100, v{VSTAMP}")
            P("s_mov_b64 exec, 0x7fff")
            P(f"buffer_store_dword v{VSTAMP}, v1, s[{S_DBG}:{S_DBG+3}], 0 offen offset:4")
    P("LF_end:")
    P("s_endpgm")
    name = NAME + "_kernel"
    body, I = finalize(P)
    txt = f".text\n.globl {name}\n.p2align 8\n.type {name},@function\n{name}:\n" + body + "".join(SL.txt) + "LF_last:\n    s_endpgm\n"
    vg_ = 256 if STAMP["on"] else max(V.hi, 8)
    txt += KD.format(name=name, vgpr=vg_, sgpr=102 if STAMP['on'] else 96, accum=(vg_ + 3) // 4 * 4)
    return txt, I, vg_


if __name__ == "__main__":
    out = sys.argv[1]
    STAMP["on"] = "stamp" in sys.argv
    for a in sys.argv[2:]:
        if "=" in a: k, v = a.split("="); OPT[k] = int(v)
        else: OPT[a] = True
    import asmlib; asmlib.MERGE_D = OPT.get("md", 9)
    t, I, vg_ = kernel_F()
    DOC = """; One fused kernel, 256 workgroups x 8 waves, one per CU (all co-resident).  Workgroup = (64-token group G, slice j).
;  start : K/V projection of 16 tokens (wave 7) -> d_ws + flag ; Q projection of 4 heads (waves 0-3) ; gate logit
;          true row maximum (LF_fb) whenever that could have overflowed or underflowed.
;  end   : o exchanged through d_ws (words preset to all-ones mean 'not written yet'), output projection, gated mix.
;  Hand-offs: write-through stores, vmcnt, then flags tagged with a per-launch nonce published through d_debug[0].
"""
    hdr = HEADER + DOC + f"; @launch grid=(256,1,1) block=(512,1,1) lds={LDS_BYTES}\n" + '.amdgcn_target "amdgcn-amd-amdhsa--gfx950"\n'
    open(out, "w").write(hdr + t)
    import subprocess
    r = subprocess.run(["clang", "-x", "assembler", "-target", "amdgcn-amd-amdhsa", "-mcpu=gfx950", "-c", out, "-o", "_chk.o"], capture_output=True, text=True)
    if r.returncode: print("ASM ERROR", r.stderr[:500])
    print("insts", len(I), "vgpr", vg_, "nops", sum(1 for x in I if x.kind == "nop"))
```

```python
import sys, re
from parts import *
OPT = {}
S_NONCE = 93
S_HP, S_KH = 30, 31
SH = [4, 5, 6]
S_FS, S_FP, S_OD, S_OL = 7, 8, 9, 10
S_FW, S_FB, S_FL, S_FL2 = 12, 13, 14, 15
S_OO, S_OL2 = 11, 18
S_VM = 28
S_PM = 16
FL_KV, FL_H = WS_FLAG, WS_FLAG + 8192
WKV_L = KV_RING
QSCR = KV_RING + 8192
FSLOT = [0, 32768, 65536, 98304]
WO_CH = [98304, 114688, 0, 32768]
SC1 = " sc1"
SPIN_MAX = 1 << 22
WSR = f"s[{S_WS}:{S_WS+3}]"


def cnt(k):
    if not OPT.get("cnt"): return ""
    return f"    s_bitset1_b32 s85, {k}\n"


def raw(P, text):
    for line in text.split("\n"):
        line = line.strip()
        if not line: continue
        P(line)
        x = P.I[-1]
        if x.kind not in ("label",):
            x.kind = "salu"; x.vr = set(); x.vw = set(); x.sr = set(); x.sw = set(); x.mf = None; x.meta = dict(skip=True)


class Slow:
    def __init__(self): self.txt = []; self.n = 0
    def add(self, t): self.txt.append(t)


LOADS = {}
def wq_pieces(P, vsl, s_first, n, label, rot):
    P(f"s_and_b32 s{S_T6}, s{S_G}, 7")
    if rot > 1: P(f"s_mul_i32 s{S_T6}, s{S_T6}, {rot}")
    P(f"s_add_u32 s{S_T5}, s{S_T6}, {n}")
    P(f"s_lshl_b32 s{S_T7}, s{S_J}, 7")
    P(f"{label}:")
    P(f"s_and_b32 s{S_T4}, s{S_T6}, {n-1}")
    P(f"s_add_u32 s{S_T4}, s{S_T4}, s{s_first}")
    P(f"s_mul_i32 s{S_T0}, s{S_T4}, 171")
    P(f"s_lshr_b32 s{S_T0}, s{S_T0}, 12")
    P(f"s_lshl_b32 s{S_T1}, s{S_T4}, 2")
    P(f"s_add_u32 s{S_T0}, s{S_T0}, s{S_T1}")
    P(f"s_lshl_b32 s{S_T0}, s{S_T0}, 8")
    P(f"s_add_u32 m0, s{S_T0}, 0x{SLOT[0]:x}")
    P(f"s_lshl_b32 s{S_T2}, s{S_T4}, 13")
    P(f"s_add_u32 s{S_T2}, s{S_T2}, s{S_T7}")
    P(f"s_add_u32 s{S_T6}, s{S_T6}, 1")
    P(f"buffer_load_dwordx4 v{vsl}, s[{S_WQ}:{S_WQ+3}], s{S_T2} offen lds")
    P.I[-1].kind = "salu"
    P(f"s_cmp_lg_u32 s{S_T6}, s{S_T5}")
    P(f"s_cbranch_scc1 {label}")


def emit_loads(P, l16, vsl, sfx):
    if sfx == "h":
        P(f"s_lshr_b32 s{S_T4}, s{S_J}, 1")
        P(f"s_lshl_b32 s{S_T4}, s{S_T4}, 4")
        P(f"s_mul_i32 s{S_T1}, s{S_W}, 12")
        P(f"s_add_u32 s{S_T4}, s{S_T4}, s{S_T1}")
        P(f"s_add_u32 s{S_T4}, s{S_T4}, 16")
        P(f"s_lshl_b32 s{S_T0}, s{S_G}, 16")
        P(f"s_and_b32 s{S_T6}, s{S_J}, 3")
        P(f"s_mul_i32 s{S_T6}, s{S_T6}, 3")
        P(f"s_mov_b32 s{S_T5}, 12")
        mk_srd(P, S_X, 4, SZ["x"])
        P("LF_ldx1:")
        P(f"s_add_u32 s{S_T1}, s{S_T6}, s{S_T4}")
        P(f"s_and_b32 s{S_T1}, s{S_T1}, 63")
        P(f"s_mul_i32 m0, s{S_T1}, {X_STRIDE}")
        P(f"s_lshl_b32 s{S_T2}, s{S_T1}, 10")
        P(f"s_add_u32 s{S_T2}, s{S_T2}, s{S_T0}")
        P(f"s_add_u32 s{S_T6}, s{S_T6}, 1")
        P(f"s_cmp_eq_u32 s{S_T6}, 12")
        P(f"s_cselect_b32 s{S_T6}, 0, s{S_T6}")
        P(f"buffer_load_dwordx4 v{l16}, s[{S_X}:{S_X+3}], s{S_T2} offen lds", tag="q")
        P(f"s_sub_u32 s{S_T5}, s{S_T5}, 1")
        P(f"s_cmp_lg_u32 s{S_T5}, 0")
        P("s_cbranch_scc1 LF_ldx1")
    else:
        mk_srd(P, S_WQ, 6, SZ["wq"])
        P(f"s_and_b32 s{S_T3}, s{S_W}, 3")
        P(f"s_lshl_b32 s{S_T3}, s{S_T3}, 3")
        wq_pieces(P, vsl, S_T3, 8, "LF_ldq1", 1)
        P(f"s_add_u32 s{S_T3}, s{S_T3}, 24")
        wq_pieces(P, vsl, S_T3, 8, "LF_ldq2", 1)


def prologue_f(P, V, endlabel):
    if STAMP["on"]: P("s_memrealtime s[100:101]")
    P("s_cmp_ge_u32 s2, 256")
    P(f"s_cbranch_scc1 {endlabel}")
    P("s_load_dwordx16 s[4:19], s[0:1], 0")
    P("s_load_dwordx8 s[20:27], s[0:1], 64")
    P("s_load_dwordx2 s[28:29], s[0:1], 96")
    lane = V.alloc("lane"); l16 = V.alloc("l16")
    P(f"v_lshrrev_b32 v1, 6, v0")
    P(f"v_and_b32 v{lane}, 63, v0")
    P(f"v_readfirstlane_b32 s{S_W}, v1")
    P(f"v_lshlrev_b32 v{l16}, 4, v{lane}")
    P(f"s_lshr_b32 s{S_T0}, s2, 3")
    if OPT.get("jrot"): P(f"s_add_u32 s{S_J}, s{S_T0}, {OPT['jrot']}"); P(f"s_and_b32 s{S_J}, s{S_J}, 3")
    else: P(f"s_and_b32 s{S_J}, s{S_T0}, 3")
    P(f"s_and_b32 s{S_T1}, s2, 1")
    P(f"s_lshl_b32 s{S_T1}, s{S_T1}, 2")
    P(f"s_add_u32 s{S_J}, s{S_J}, s{S_T1}")
    P(f"s_and_b32 s{S_G}, s2, 6")
    P(f"s_lshl_b32 s{S_G}, s{S_G}, 2")
    P(f"s_lshr_b32 s{S_T0}, s{S_T0}, 2")
    P(f"s_add_u32 s{S_G}, s{S_G}, s{S_T0}")
    t0 = V.alloc("t0"); t1 = V.alloc("t1")
    vsl = slice_pattern(P, V, lane, t0)
    LOADS["f"] = lambda sfx: emit_loads(P, l16, vsl, sfx)
    P(f"s_and_b32 s{S_TT}, s{S_W}, 1")
    P(f"s_lshl_b32 s{S_TILE}, s{S_G}, 1")
    P(f"s_add_u32 s{S_TILE}, s{S_TILE}, s{S_TT}")
    P(f"s_lshr_b32 s{S_HP}, s{S_W}, 1")
    P(f"s_and_b32 s{S_HP}, s{S_HP}, 1")
    P(f"s_lshr_b32 s{S_KH}, s{S_W}, 2")
    assert all((p * 171) >> 12 == p // 24 for p in range(64)) and SLOT_SZ == 3 * 8192 + 256
    return lane, l16, t0, t1, vsl


def rest_srds(P):
    P(f"s_cmp_eq_u32 s{S_TT}, 0")
    P(f"s_cselect_b32 s{S_WM}, s16, s18")
    P(f"s_cselect_b32 s{S_WM+1}, s17, s19")
    P(f"s_and_b32 s{S_WM+1}, s{S_WM+1}, 0xffff")
    P(f"s_mov_b32 s{S_WM+2}, 0x{SZ['wg']:x}")
    P(f"s_mov_b32 s{S_WM+3}, 0x20000")
    mk_srd(P, S_OUT, 24, SZ["out"])
    mk_srd(P, S_WO, 12, SZ["wo"])
    mk_srd(P, S_WD, 20, SZ["wd"])


def nonce_check(P, SL, vn, vz):
    k = SL.n; SL.n += 1
    P(f"v_readfirstlane_b32 s{S_NONCE}, v{vn}")
    P(f"s_cmp_lg_u32 s{S_NONCE}, 0")
    P(f"s_cbranch_scc1 LR{k}")
    raw(P, f"""{cnt(1+k)}    s_mov_b32 s{S_T7}, 0
LS{k}_l:
    s_sleep 2
    buffer_load_dword v{vn}, v{vz}, s[{S_DBG}:{S_DBG+3}], 0 offen sc1
    s_waitcnt vmcnt(0)
    v_readfirstlane_b32 s{S_NONCE}, v{vn}
    s_add_u32 s{S_T7}, s{S_T7}, 1
    s_cmp_ge_u32 s{S_T7}, 0x{SPIN_MAX:x}
    s_cbranch_scc1 LR{k}
    s_cmp_eq_u32 s{S_NONCE}, 0
    s_cbranch_scc1 LS{k}_l
""")
    P(f"LR{k}:")
    P("s_nop 0")


def flag_load(vf, n, vaddr, soff):
    op = {1: "buffer_load_dword", 4: "buffer_load_dwordx4"}[n]
    return f"{op} {vr(vf,n)}, v{vaddr}, {WSR}, {soff} offen sc1"


def flag_cmp(vf, n, t):
    L = [f"v_xor_b32 v{t}, s{S_NONCE}, v{vf}"]
    for i in range(1, n):
        L += [f"v_xor_b32 v{vf+i}, s{S_NONCE}, v{vf+i}", f"v_or_b32 v{t}, v{t}, v{vf+i}"]
    L += [f"v_cmp_ne_u32 vcc, 0, v{t}"]
    return L


def spin_check(P, SL, loads, cmps, sleep=1):
    k = SL.n; SL.n += 1
    for x in cmps: P(x)
    P(f"s_cbranch_vccz LR{k}")
    nl = "\n    "
    raw(P, f"""{cnt(1+k)}    s_mov_b32 s{S_T7}, 0
LS{k}_l:
    {f"s_sleep {sleep}" if sleep else "s_nop 0"}
    {nl.join(loads)}
    s_waitcnt vmcnt(0)
    {nl.join(cmps)}
    s_add_u32 s{S_T7}, s{S_T7}, 1
    s_cmp_ge_u32 s{S_T7}, 0x{SPIN_MAX:x}
    s_cbranch_scc1 LR{k}
    s_cbranch_vccnz LS{k}_l
""")
    P(f"LR{k}:")


def flag_store(P, vz, t, soff):
    P(f"v_mov_b32 v{t}, s{S_NONCE}")
    P("s_mov_b64 exec, 1")
    P(f"buffer_store_dword v{t}, v{vz}, {WSR}, s{soff} offen sc1", tag="flag")
    P("s_mov_b64 exec, -1")


PROG = MISC + 1024
class SplitBar:
    def __init__(self, P, V, SL, lane, t0):
        self.P, self.SL, self.n = P, SL, 0
        self.va = V.alloc("sba"); self.vr = V.alloc("sbr"); self.one = V.alloc("sb1"); self.vg = V.alloc("sbg")
        P(f"s_lshl_b32 s{S_T0}, s{S_W}, 8")
        P(f"s_add_u32 s{S_T0}, s{S_T0}, 0x{PROG:x}")
        P(f"v_lshlrev_b32 v{t0}, 2, v{lane}")
        P(f"v_add_u32 v{self.va}, s{S_T0}, v{t0}")
        P(f"v_and_b32 v{t0}, 7, v{lane}")
        P(f"v_mul_u32_u24 v{t0}, 260, v{t0}")
        P(f"v_add_u32 v{self.vr}, 0x{PROG:x}, v{t0}")
        P(f"v_mov_b32 v{self.one}, 0")
        P(f"ds_write_b32 v{self.va}, v{self.one}")
        P(f"v_mov_b32 v{self.one}, 1")
    def arrive(self):
        self.n += 1
        self.P(f"ds_add_u32 v{self.va}, v{self.one}")
    def peek(self): self.P(f"ds_read_b32 v{self.vg}, v{self.vr}")
    def check(self):
        k = self.SL.n; self.SL.n += 1
        self.P(f"v_cmp_gt_u32 vcc, {self.n}, v{self.vg}")
        self.P(f"s_cbranch_vccz LR{k}")
        self.P(f"LS{k}:")
        for t in ([f"s_sleep {OPT['ssl']}"] if OPT.get("ssl") else []) + [f"ds_read_b32 v{self.vg}, v{self.vr}", "s_waitcnt lgkmcnt(0)", f"v_cmp_gt_u32 vcc, {self.n}, v{self.vg}", f"s_cbranch_vccnz LS{k}"]:
            self.P(t); self.P.I[-1].kind = "salu"; self.P.I[-1].vw = set(); self.P.I[-1].vr = set()
        self.P(f"LR{k}:")


def attn_setup(P, V, lane, l16, t0, t1):
    A = {}
    P(f"s_lshl_b32 s{S_T1}, s{S_KH}, 12")
    vk = V.alloc("vk"); vv = [V.alloc("vv0"), V.alloc("vv1")]
    P(f"s_add_u32 s{S_T1}, s{S_T1}, 0x{KV_RING:x}")
    P(f"v_add_u32 v{vk}, s{S_T1}, v{l16}")
    P(f"v_lshrrev_b32 v{t0}, 5, v{lane}")
    P(f"v_lshlrev_b32 v{t0}, 8, v{t0}")
    P(f"v_and_b32 v{t1}, 15, v{lane}")
    P(f"v_lshl_add_u32 v{t0}, v{t1}, 4, v{t0}")
    P(f"v_and_b32 v{t1}, 16, v{lane}")
    P(f"v_cmp_eq_u32 vcc, 0, v{t1}")
    P(f"s_add_u32 s{S_T1}, s{S_T1}, 2048")
    for s in range(2):
        P(f"v_mov_b32 v{t1}, s{S_T1}")
        P(f"v_add_u32 v{t1}, {8192*s}, v{t1}")
        P(f"v_mov_b32 v{vv[s]}, 0x{ONES:x}")
        P(f"v_cndmask_b32 v{vv[s]}, v{t1}, v{vv[s]}, vcc")
        P(f"v_add_u32 v{vv[s]}, v{vv[s]}, v{t0}")
    P(f"s_lshl_b32 s{S_KVOFF}, s{S_KH}, 15")
    P(f"s_lshl_b32 s{S_T1}, s{S_HP}, 16")
    P(f"s_add_u32 s{S_KVOFF}, s{S_KVOFF}, s{S_T1}")
    P(f"s_lshl_b32 s{S_T1}, s{S_TT}, 10")
    P(f"s_add_u32 s{S_KVOFF}, s{S_KVOFF}, s{S_T1}")
    P(f"s_lshl_b32 s{S_KVLDS}, s{S_W}, 10")
    P(f"s_add_u32 s{S_KVLDS}, s{S_KVLDS}, 0x{KV_RING:x}")
    A.update(vk=vk, vv=vv)
    A["S"] = [V.alloc("Sa", 16), V.alloc("Sb", 16)]
    A["O"] = [V.alloc("Oa", 16), V.alloc("Ob", 16)]
    A["fk"] = V.alloc("fk", 4); A["fv"] = [V.alloc("fv1", 4), V.alloc("fv2", 4)]
    A["q"] = V.alloc("qf", 8)
    return A


def kv_dma(P, l16, c):
    dma(P, l16, S_WS, f"s{S_T2}", (S_KVLDS, 8192 * (c & 1)), tag=f"kv{c}", mods=SC1, pre=[f"s_add_u32 s{S_T2}, s{S_KVOFF}, {2048*c}"])


def attention(P, A, l16, its, hook, prio, kvf=None, bb=1):
    S, O, fk, fv = A["S"], A["O"], A["fk"], A["fv"]
    SB = OPT.get("sb", 0)
    q = [A["q"], A["q"] + 4]
    def rdK(it): P(f"ds_read_b128 {vr(fk,4)}, v{A['vk']} offset:{((it>>1)&1)*8192 + (it&1)*1024}")
    def rdV(it, half):
        m = OPT.get("vmask", 1) and it > 0
        if m: P(f"s_mov_b64 exec, s[{S_VM}:{S_VM+1}]")
        P(f"ds_read_b128 {vr(fv[half],4)}, v{A['vv'][(it>>1)&1]} offset:{(it&1)*1024 + half*512}")
        if m: P("s_mov_b64 exec, -1")
    E = lambda x, i: P(f"v_exp_f32 v{S[x]+i}, v{S[x]+i}")
    def C(x, i):
        b = S[x] + (8 if i >= 4 else 0); k = i & 3
        P(f"v_cvt_pk_bf16_f32 v{b+k}, v{b+2*k}, v{b+2*k+1}")
    for it in its:
        if it == 0:
            if OPT.get("vmask", 1): P(f"s_mov_b32 s{S_VM}, 0xffff0000"); P(f"s_mov_b32 s{S_VM+1}, 0xffff0000")
            rdK(0); rdV(0, 0)
            hook(0, 0, "start")
            P(mfma(S[0], fk, q[0]))
        for x in range(2):
            H = lambda pos: hook(it, x, pos)
            E(x, 0); E(x, 1)
            if x == 0:
                if it > 0: P(mfma(O[1], fv[1], S[1] + 8, O[1]))
                rdV(it, 1)
            else:
                P(mfma(O[0], fv[1], S[0] + 8, O[0]))
            H("pv2")
            E(x, 2); E(x, 3); H("g1")
            E(x, 4); E(x, 5); H("g2")
            E(x, 6); E(x, 7)
            if bb:
                H("g3")
                for i in range(4): C(x, i)
            if x == 0: P(mfma(S[1], fk, q[1]))
            elif it < 31: P(mfma(S[0], fk, q[0]))
            H("qk")
            sig = (x == 0 and (it & 1) and it < 31)
            syn = sig or (x == 0 and hook(it, x, "sync?"))
            ORD = OPT.get("ord", 2) if syn else 0
            if bb:
                E(x, 8); E(x, 9); H("g4")
                E(x, 10); E(x, 11)
                if ORD == 2: P(mfma(O[x], fv[0], S[x], None if it == 0 else O[x]))
            else:
                for i in range(4): C(x, i)
                if ORD == 0: H("g3")
                E(x, 8); E(x, 9)
                if ORD == 2: P(mfma(O[x], fv[0], S[x], None if it == 0 else O[x])); H("g3")
            if syn:
                H("pre0")
                if sig: P.wait_tag(f"kv{(it>>1)+1}")
                H("pre")
                P.wait_lgkm_all()
                P("s_barrier")
            if ORD != 2: P(mfma(O[x], fv[0], S[x], None if it == 0 else O[x]))
            p = prio(it, x)
            if p is not None: P(f"s_setprio {p}")
            if x == 0:
                if it < 31: rdK(it + 1)
                if (it & 1) and (it >> 1) + 2 < 16: (kvf or (lambda c: kv_dma(P, l16, c)))((it >> 1) + 2)
                if syn: hook(it, 0, "chk")
            else:
                if it < 31: rdV(it + 1, 0)
            H("pv1")
            if not bb: E(x, 10); E(x, 11); H("g4")
            E(x, 12); E(x, 13); H("g5")
            E(x, 14); E(x, 15); H("g6")
            for i in range(4, 8): C(x, i)
        if it == 31: P(mfma(O[1], fv[1], S[1] + 8, O[1]))


def fin_dma_w1(P, vsl, st, slot, tag, i):
    srd, u0 = (S_WD, 8 * st) if st < 11 else (S_WO, 8 * (st - 11))
    dma(P, vsl, srd, f"s{S_T2}", (S_FL2, slot + 1024 * i), tag=tag, pre=[f"s_add_u32 s{S_T2}, s{S_FW}, 0x{(16*u0 + 8*i)*1024:x}"])


def fin_dma_w2(P, vsl, st, slot, tag, i, other):
    dma(P, vsl, S_WD, f"s{S_T2}", (S_FL2, (slot + 1024 * i - 8192 * other) & 0xffffffff), tag=tag,
        pre=[f"s_add_u32 s{S_T2}, s{S_FW}, 0x{((128*st + 8*i)*1024 - 65536*other) & 0xffffffff:x}"])


def fin_dma_b1(P, l16, st, slot, tag, t):
    P(f"s_add_u32 s{S_T2}, s{S_FB}, 0x{(t*118 + 8*st)*1024:x}")
    if st == 10:
        P(f"s_cmp_lt_u32 s{S_W}, 6")
        P(f"s_cselect_b32 s{S_T2}, s{S_T2}, 0x{OOB:x}")
    dma(P, l16, S_WS, f"s{S_T2}", (S_FL, slot + 16384 + 8192 * t), tag=tag, mods=SC1)


def kernel_F():
    P = Prog(); V = Regs(2, 255, "v"); SL = Slow()
    NP = OPT.get("np", 1)
    JIT = 16 - NP
    GPP = OPT.get("gpp", 2)
    UNI = OPT.get("uni", JIT + 2)
    HF = OPT.get("hf", UNI | 1)
    lane, l16, t0, t1, vsl = prologue_f(P, V, "LF_end")
    vz = V.alloc("vz")
    P(f"s_cmp_lg_u32 s{S_W}, 7")
    P("s_cbranch_scc1 LF_not7")
    P(f"s_lshr_b32 s{S_T4}, s{S_J}, 1")
    P(f"s_lshl_b32 s{S_T0}, s{S_G}, 16")
    P(f"s_lshl_b32 s{S_T2}, s{S_T4}, 14")
    P(f"s_add_u32 s{S_T2}, s{S_T2}, s{S_T0}")
    P(f"s_mul_i32 m0, s{S_T4}, {16*X_STRIDE}")
    P(f"s_and_b32 s{S_T3}, s{S_J}, 1")
    P(f"s_mov_b32 s{S_T5}, 0")
    P("s_waitcnt lgkmcnt(0)")
    mk_srd(P, S_X, 4, SZ["x"])
    if OPT.get("u7", 1):
        P(f"s_sub_u32 s{S_X}, s{S_X}, 64")
        P(f"s_subb_u32 s{S_X+1}, s{S_X+1}, 0")
        P(f"s_mov_b32 s{S_X+2}, 0x{SZ['x'] + 64:x}")
        P(f"s_add_u32 s{S_T2}, s{S_T2}, 64")
        for g in range(4):
            for k in range(4):
                if k == 0:
                    if g: P(f"s_add_u32 m0, m0, {4*X_STRIDE}"); P(f"s_add_u32 s{S_T2}, s{S_T2}, {4096 + 48}")
                else: P(f"s_sub_u32 s{S_T2}, s{S_T2}, 16")
                P(f"buffer_load_dwordx4 v{l16}, s[{S_X}:{S_X+3}], s{S_T2} offen offset:{X_STRIDE*k} lds", tag="c")
    else:
        P("LF_ldx7:")
        P(f"buffer_load_dwordx4 v{l16}, s[{S_X}:{S_X+3}], s{S_T2} offen lds", tag="c")
        P(f"s_add_u32 m0, m0, {X_STRIDE}")
        P(f"s_add_u32 s{S_T2}, s{S_T2}, 1024")
        P(f"s_add_u32 s{S_T5}, s{S_T5}, 1")
        P(f"s_cmp_lg_u32 s{S_T5}, 16")
        P("s_cbranch_scc1 LF_ldx7")
    P(f"s_cmp_eq_u32 s{S_T3}, 0")
    P(f"s_cselect_b32 s{S_WKV}, s8, s10")
    P(f"s_cselect_b32 s{S_WKV+1}, s9, s11")
    P(f"s_and_b32 s{S_WKV+1}, s{S_WKV+1}, 0xffff")
    P(f"s_mov_b32 s{S_WKV+2}, 0x{SZ['wk']:x}")
    P(f"s_mov_b32 s{S_WKV+3}, 0x20000")
    P(f"s_mov_b32 m0, 0x{WKV_L:x}")
    P(f"s_mov_b32 s{S_T5}, 0")
    P("LF_ldw7:")
    for i in range(4):
        P(f"buffer_load_dwordx4 v{l16}, s[{S_WKV}:{S_WKV+3}], s{S_T5} offen offset:{1024*i} lds")
        P.I[-1].kind = "salu"
    P(f"s_add_u32 m0, m0, 4096")
    P(f"s_add_u32 s{S_T5}, s{S_T5}, 4096")
    P(f"s_cmp_lg_u32 s{S_T5}, 16384")
    P("s_cbranch_scc1 LF_ldw7")
    stamp(P, 15)
    P("s_barrier")
    P("LF_not7:")
    P("s_waitcnt lgkmcnt(0)")
    if OPT.get("cpf", 1):
        c = V.alloc("cpf")
        P(f"s_getpc_b64 s[{S_EX}:{S_EX+1}]")
        P("LF_pc0:")
        P(f"s_lshr_b32 s{S_T3}, s2, 3")
        P(f"s_lshl_b32 s{S_T3}, s{S_T3}, 3")
        P(f"s_add_u32 s{S_T3}, s{S_T3}, s{S_W}")
        P(f"s_lshl_b32 s{S_T3}, s{S_T3}, 8")
        P(f"v_lshlrev_b32 v{c}, 7, v{lane}")
        P(f"v_add_u32 v{c}, s{S_T3}, v{c}")
        P(f"v_min_u32 v{c}, LF_last-LF_pc0, v{c}")
        P("s_mov_b64 exec, 3")
        P(f"global_load_dword v{c}, v{c}, s[{S_EX}:{S_EX+1}]", tag="cpf")
        P("s_mov_b64 exec, -1")
    P(f"v_mov_b32 v{vz}, 0")
    if OPT.get("cnt"): P("s_mov_b32 s85, 0")
    mk_srd(P, S_WS, 28, SZ["ws"])
    mk_srd(P, S_DBG, 26, SZ["dbg"])
    vn = V.alloc("vn")
    P(f"s_or_b32 s{S_T0}, s2, s{S_W}")
    P(f"s_cmp_lg_u32 s{S_T0}, 0")
    P("s_cbranch_scc1 LF_non")
    P.cond_begin()
    P(f"s_memrealtime s[{S_EX}:{S_EX+1}]")
    P("s_waitcnt lgkmcnt(0)")
    P(f"s_mul_i32 s{S_EX+1}, s{S_EX+1}, 0x9e3779b1")
    P(f"s_xor_b32 s{S_EX}, s{S_EX}, s{S_EX+1}")
    P(f"s_or_b32 s{S_EX}, s{S_EX}, 1")
    P(f"v_mov_b32 v{t0}, s{S_EX}")
    P("s_mov_b64 exec, 1")
    P(f"buffer_store_dword v{t0}, v{vz}, s[{S_DBG}:{S_DBG+3}], 0 offen sc1")
    P("s_mov_b64 exec, -1")
    P.cond_end()
    P("LF_non:")
    P_main = P; P = Prog()
    rest_srds(P)
    mk_srd(P, S_GW, 22, SZ["gw"])
    P(f"s_mov_b32 s{S_C1}, {hexf(2.0**120)}")
    A = attn_setup(P, V, lane, l16, t0, t1)
    qf = A["q"]; O = A["O"]; S = A["S"]
    A["sb"] = SplitBar(P, V, SL, lane, t0) if OPT.get("sb", 0) else type("X", (), dict(n=0))()
    vfl = V.alloc("vfl", 4)
    P(f"s_lshl_b32 s{S_T0}, s{S_HP}, 1")
    P(f"s_add_u32 s{S_T0}, s{S_T0}, s{S_KH}")
    P(f"s_lshl_b32 s{S_T1}, s{S_J}, 2")
    P(f"s_add_u32 s{S_T0}, s{S_T0}, s{S_T1}")
    P(f"s_mul_i32 s{S_T1}, s{S_TILE}, 118")
    P(f"s_add_u32 s{S_T0}, s{S_T0}, s{S_T1}")
    P(f"s_lshl_b32 s{S_T0}, s{S_T0}, 10")
    P(f"s_add_u32 s{S_OD}, s{S_T0}, 0x{WS_OH + 86*1024:x}")
    def poison():
        for r in range(4): P(f"v_mov_b32 v{O[0]+r}, -1")
        P(f"buffer_store_dwordx4 {vr(O[0],4)}, v{l16}, {WSR}, s{S_OD} offen sc1", tag="poison")
    P(f"s_lshr_b32 s{S_T0}, s{S_W}, 1")
    P(f"s_lshl_b32 s{S_T0}, s{S_T0}, 3")
    P(f"s_add_u32 s{S_T0}, s{S_T0}, s{S_T1}")
    P(f"s_lshl_b32 s{S_T0}, s{S_T0}, 10")
    P(f"s_add_u32 s{S_OL}, s{S_T0}, 0x{WS_OH + 86*1024:x}")
    P(f"s_lshl_b32 s{S_FP}, s{S_G}, 10")
    P(f"s_lshl_b32 s{S_FS}, s{S_J}, 5")
    P(f"s_add_u32 s{S_FS}, s{S_FS}, s{S_W}")
    P(f"s_lshl_b32 s{S_FS}, s{S_FS}, 2")
    P(f"s_add_u32 s{S_FS}, s{S_FS}, s{S_FP}")
    P(f"s_add_u32 s{S_FS}, s{S_FS}, 0x{FL_H:x}")
    P(f"s_add_u32 s{S_FP}, s{S_FP}, 0x{FL_H:x}")
    P(f"s_lshl_b32 s{S_FW}, s{S_W}, 14")
    P(f"s_lshl_b32 s{S_T1}, s{S_J}, 7")
    P(f"s_add_u32 s{S_FW}, s{S_FW}, s{S_T1}")
    P(f"s_lshl_b32 s{S_FL2}, s{S_W}, 11")
    P(f"s_mul_i32 s{S_U0}, s{S_J}, 11")
    P(f"s_min_u32 s{S_U0}, s{S_U0}, 76")
    P(f"s_cmp_ge_u32 s{S_J}, 6")
    P(f"s_cselect_b32 s{S_NU}, 10, 11")
    vxa = xfrag_addr(P, V, "vxa", lane, t0, S_TT)
    vq = V.alloc("vq")
    P(f"s_and_b32 s{S_T0}, s{S_W}, 3")
    P(f"s_lshl_b32 s{S_T1}, s{S_T0}, 11")
    P(f"s_add_u32 s{S_T1}, s{S_T1}, 0x{QSCR:x}")
    P(f"v_add_u32 v{vq}, s{S_T1}, v{l16}")
    COMMON = P.I; P = P_main
    def emit(L):
        for x in L: P(x.text, tag=x.tag)
    iw = next(i for i, x in enumerate(COMMON) if x.text.startswith(f"s_mov_b32 s{S_WM+3},")) + 1
    iu = next(i for i, x in enumerate(COMMON) if x.text.startswith(f"s_mul_i32 s{S_U0},"))
    C_EARLY = COMMON[:iw] + COMMON[iu:iu + 4]; C_LATE = COMMON[iw:iu] + COMMON[iu + 4:]
    acc = [[V.alloc(f"acc{i}{t}", 16) for t in range(2)] for i in range(3)]
    fx = [[V.alloc(f"fx{b}{t}", 4) for t in range(2)] for b in range(2)]
    fw = [[V.alloc(f"fw{b}{i}", 4) for i in range(3)] for b in range(2)]
    S_PFB = 19
    def capture(f):
        nonlocal P
        P0 = P; P = Prog(); f(); L = P.I; P = P0
        return L
    R = {}
    def f1():
        vtn = tr_slice_addr(P, V, "vtn", lane, t0, t1, SLOT[0], S_HP, 8)
        vpf = V.alloc("vpf"); vpd = V.alloc("vpd"); vpw = V.alloc("vpw")
        P(f"v_bfe_u32 v{t0}, v{lane}, 4, 1")
        P(f"v_lshrrev_b32 v{t1}, 5, v{lane}")
        P(f"v_lshl_add_u32 v{t0}, v{t1}, 7, v{t0}")
        P(f"v_mul_u32_u24 v{vpf}, 2752, v{t0}")
        P(f"v_and_b32 v{t0}, 15, v{lane}")
        P(f"v_lshl_add_u32 v{vpf}, v{t0}, 7, v{vpf}")
        P(f"v_cmp_gt_u32 vcc, 12, v{t0}")
        P(f"v_mov_b32 v{t1}, 0x{OOB:x}")
        P(f"v_cndmask_b32 v{vpf}, v{t1}, v{vpf}, vcc")
        P(f"s_lshr_b32 s{S_T0}, s2, 3")
        P(f"s_lshl_b32 s{S_T0}, s{S_T0}, 1")
        P(f"s_add_u32 s{S_T0}, s{S_T0}, s{S_HP}")
        P(f"s_mul_i32 s{S_T0}, s{S_T0}, {2*2752}")
        P(f"s_and_b32 s{S_T1}, s2, 1")
        P(f"s_mul_i32 s{S_T1}, s{S_T1}, {44*32}")
        P(f"s_add_u32 s{S_PFB}, s{S_T0}, s{S_T1}")
        R.update(vtn=vtn, vpf=vpf, vpd=vpd, vpw=vpw)
    def f2():
        vx0 = V.alloc("vx0")
        P(f"s_mul_i32 s{S_T0}, s{S_TT}, {32*X_STRIDE}")
        P(f"v_subrev_u32 v{vx0}, s{S_T0}, v{vxa}")
        P(f"s_lshl_b32 s{S_T4}, s{S_W}, 1")
        wtr = w_tr_addrs(P, V, lane, t0, t1, s_w=S_T4)
        R.update(vx0=vx0, wtr=wtr)
    def f3():
        P(f"s_mul_i32 s{S_T0}, s{S_W}, 3")
        P(f"s_mul_i32 s{S_T1}, s{S_G}, 236")
        P(f"s_add_u32 s{S_T1}, s{S_T1}, s{S_U0}")
        for i in range(3):
            P(f"s_add_u32 s{S_T2}, s{S_T0}, {i}")
            P(f"s_add_u32 s{SH[i]}, s{S_T1}, s{S_T2}")
            P(f"s_lshl_b32 s{SH[i]}, s{SH[i]}, 10")
            P(f"s_add_u32 s{SH[i]}, s{SH[i]}, 0x{WS_OH:x}")
            P(f"s_cmp_lt_u32 s{S_T2}, s{S_NU}")
            P(f"s_cselect_b32 s{SH[i]}, s{SH[i]}, 0x{OOB:x}")
    def f4():
        vpw = R["vpw"]
        S_PFS = S_WKV
        P(f"s_lshr_b32 s{S_T0}, s2, 3")
        P(f"s_lshl_b32 s{S_T0}, s{S_T0}, 2")
        P(f"s_add_u32 s{S_T0}, s{S_T0}, s{S_W}")
        P(f"s_cmp_lt_u32 s{S_T0}, 86")
        P(f"s_cselect_b32 s{S_PFS}, s{S_WD}, s{S_WO}")
        P(f"s_cselect_b32 s{S_PFS+1}, s{S_WD+1}, s{S_WO+1}")
        P(f"s_cselect_b32 s{S_PFS+2}, s{S_WD+2}, s{S_WO+2}")
        P(f"s_cselect_b32 s{S_T1}, 0, 86")
        P(f"s_mov_b32 s{S_PFS+3}, 0x20000")
        P(f"s_sub_u32 s{S_T0}, s{S_T0}, s{S_T1}")
        P(f"s_lshl_b32 s{S_T0}, s{S_T0}, 14")
        P(f"s_and_b32 s{S_T1}, s2, 1")
        P(f"s_lshl_b32 s{S_T1}, s{S_T1}, 9")
        P(f"s_add_u32 s{S_T0}, s{S_T0}, s{S_T1}")
        P(f"v_lshrrev_b32 v{t0}, 2, v{lane}")
        P(f"v_lshlrev_b32 v{t0}, 10, v{t0}")
        P(f"v_and_b32 v{t1}, 3, v{lane}")
        P(f"v_lshl_add_u32 v{t0}, v{t1}, 7, v{t0}")
        P(f"v_add_u32 v{vpw}, s{S_T0}, v{t0}")
    ix = next(i for i, x in enumerate(COMMON) if x.text.startswith(f"v_and_b32 v{t0}, 31, v{lane}"))
    ia = next(i for i, x in enumerate(COMMON) if x.text.startswith(f"s_mov_b32 s{S_C1},")) + 1
    io = next(i for i, x in enumerate(COMMON) if x.text.startswith(f"s_lshl_b32 s{S_T0}, s{S_HP}, 1"))
    ifl = next(i for i, x in enumerate(COMMON) if x.text.startswith(f"s_lshl_b32 s{S_FP},"))
    H_PRE = COMMON[ix:ix + 6] + COMMON[:iw] + capture(f1)
    H_MID = COMMON[ia:io] + COMMON[ix + 6:] + capture(f2) + COMMON[io:ifl]
    H_LATE = [COMMON[iw:iw + 8], COMMON[iw + 8:ia], COMMON[ifl:iu], COMMON[iu:iu + 4]]
    sh = capture(f3); H_LATE += [sh[:9], sh[9:15], sh[15:]]
    wp = capture(f4); H_LATE += [wp[:14], wp[14:]]
    vtn, vpf, vpd, vpw, vx0, wtr = (R[k] for k in ("vtn", "vpf", "vpd", "vpw", "vx0", "wtr"))
    S_PFS = S_WKV
    def pf(blk, half):
        P(f"s_add_u32 s{S_T4}, s{S_PFB}, {128*2752*blk}")
        if half: P("s_mov_b64 exec, 0xffffffff")
        P(f"buffer_load_dword v{vpd}, v{vpf}, s[{S_WM}:{S_WM+3}], s{S_T4} offen", tag="pf")
        P.I[-1].vw = set()
        if half: P("s_mov_b64 exec, -1")
    PF = OPT.get("pf", 1)
    KT = 192; vx16 = 240; vw16 = 241; vst = 242; S_K5, S_K6 = S_T5, S_T6
    P(f"s_cmp_lg_u32 s{S_W}, 7")
    P("s_cbranch_scc1 LF_not7b")
    P.cond_begin()
    P(f"s_lshr_b32 s{S_T0}, s{S_J}, 1")
    P(f"s_lshl_b32 s{S_T1}, s{S_T0}, 4")
    P(f"v_and_b32 v{t0}, 15, v{lane}")
    P(f"v_add_u32 v{t1}, s{S_T1}, v{t0}")
    P(f"v_mul_u32_u24 v{vx16}, {X_STRIDE}, v{t1}")
    P(f"v_lshrrev_b32 v{t1}, 4, v{lane}")
    P(f"v_lshl_add_u32 v{vx16}, v{t1}, 4, v{vx16}")
    P(f"v_lshlrev_b32 v{vw16}, 8, v{t1}")
    P(f"v_lshl_add_u32 v{vw16}, v{t0}, 3, v{vw16}")
    P(f"v_add_u32 v{vw16}, 0x{WKV_L:x}, v{vw16}")
    P(f"s_and_b32 s{S_K6}, s{S_J}, 1")
    P(f"s_cmp_eq_u32 s{S_K6}, 0")
    P(f"s_cselect_b32 s{S_T3}, 9, 8")
    P(f"s_cselect_b32 s{S_T4}, 8, 9")
    P(f"s_cselect_b32 s{S_K5}, 0x{WS_KF:x}, 0x{WS_VF:x}")
    P(f"v_lshlrev_b32 v{vst}, 4, v{t0}")
    P(f"v_lshrrev_b32 v{t0}, 1, v{t1}")
    P(f"v_lshl_add_u32 v{vst}, v{t0}, 3, v{vst}")
    P(f"v_and_b32 v{t0}, 1, v{t1}")
    P(f"v_lshlrev_b32 v{t0}, s{S_T3}, v{t0}")
    P(f"v_add_u32 v{vst}, v{vst}, v{t0}")
    P(f"s_and_b32 s{S_T1}, s{S_T0}, 1")
    P(f"s_lshl_b32 s{S_T1}, s{S_T1}, s{S_T4}")
    P(f"s_add_u32 s{S_K5}, s{S_K5}, s{S_T1}")
    P(f"s_lshr_b32 s{S_T0}, s{S_T0}, 1")
    P(f"s_lshl_b32 s{S_T1}, s{S_G}, 1")
    P(f"s_add_u32 s{S_T0}, s{S_T0}, s{S_T1}")
    P(f"s_lshl_b32 s{S_T0}, s{S_T0}, 10")
    P(f"s_add_u32 s{S_K5}, s{S_K5}, s{S_T0}")
    P("s_waitcnt vmcnt(0)")
    P(f"buffer_load_dword v{vn}, v{vz}, s[{S_DBG}:{S_DBG+3}], 0 offen sc1")
    def kv16(which):
        d = KT
        xb = [(KT+16) + 4 * i for i in range(4)]; wb = [(KT+32) + 4 * i for i in range(4)]
        def ld(ks):
            P(f"ds_read_b128 {vr(xb[ks%4],4)}, v{vx16} offset:{ks*64}")
            P(f"ds_read_b64_tr_b16 {vr(wb[ks%4],2)}, v{vw16} offset:{ks*1024}")
            P(f"ds_read_b64_tr_b16 {vr(wb[ks%4]+2,2)}, v{vw16} offset:{ks*1024+128}")
        for ks in range(3): ld(ks)
        for ks in range(16):
            a, b = (wb[ks%4], xb[ks%4]) if which == 0 else (xb[ks%4], wb[ks%4])
            P(f"v_mfma_f32_16x16x32_bf16 {vr(d,4)}, {vr(a,4)}, {vr(b,4)}, {vr(d,4) if ks else 0}")
            if ks + 3 < 16: ld(ks + 3)
        if which == 0:
            P(f"s_mov_b32 s{S_T0}, {hexf(QK_SCALE)}")
            for r in range(4): P(f"v_mul_f32 v{d+r}, s{S_T0}, v{d+r}")
    P(f"s_cmp_eq_u32 s{S_K6}, 1")
    P("s_cbranch_scc1 LF_vch")
    P.cond_begin(); kv16(0); P.cond_end()
    P("s_branch LF_kvj")
    P("LF_vch:")
    P.cond_begin(); kv16(1); P.cond_end()
    P("LF_kvj:")
    for r in range(2): P(f"v_cvt_pk_bf16_f32 v{KT+4+r}, v{KT+2*r}, v{KT+2*r+1}")
    P(f"buffer_store_dwordx2 {vr(KT+4,2)}, v{vst}, {WSR}, s{S_K5} offen sc1")
    FB2 = OPT.get("fb2", 0)
    def w7flag():
        P(f"s_lshl_b32 s{S_T0}, s{S_G}, 3")
        P(f"s_add_u32 s{S_T0}, s{S_T0}, s{S_J}")
        P(f"s_lshl_b32 s{S_T0}, s{S_T0}, 2")
        P(f"s_add_u32 s{S_T0}, s{S_T0}, 0x{FL_KV:x}")
        P("s_waitcnt vmcnt(0)")
        nonce_check(P, SL, vn, vz)
        flag_store(P, vz, t0, S_T0)
    if not FB2: w7flag()
    def pf7():
        P(f"v_lshrrev_b32 v{t0}, 4, v{lane}")
        P(f"v_mul_u32_u24 v{vx16}, 2752, v{t0}")
        P(f"v_and_b32 v{t0}, 15, v{lane}")
        P(f"v_lshl_add_u32 v{vx16}, v{t0}, 7, v{vx16}")
        P(f"v_cmp_gt_u32 vcc, 12, v{t0}")
        P(f"v_mov_b32 v{t1}, 0x{OOB:x}")
        P(f"v_cndmask_b32 v{vx16}, v{t1}, v{vx16}, vcc")
        P(f"s_lshr_b32 s{S_T0}, s2, 3")
        P(f"s_mul_i32 s{S_T0}, s{S_T0}, {4*2752}")
        P(f"s_and_b32 s{S_T1}, s2, 1")
        P(f"s_mul_i32 s{S_T1}, s{S_T1}, {44*32}")
        P(f"s_add_u32 s{S_T0}, s{S_T0}, s{S_T1}")
        for m in range(2):
            mk_srd(P, S_WKV, 16 + 2 * m, SZ["wg"])
            P(f"buffer_load_dword v{fx[0][0]+m}, v{vx16}, s[{S_WKV}:{S_WKV+3}], s{S_T0} offen")
    if OPT.get("pf7", 1) == 1: pf7()
    stamp(P, 1)
    P("s_barrier")
    stamp(P, 2)
    if OPT.get("pf7", 1) == 2: pf7()
    if FB2 == 1: w7flag()
    P("s_barrier")
    if FB2 == 2: w7flag()
    P.cond_end(nowait=True)
    P("s_branch LF_light")
    P("LF_not7b:")
    P(f"s_cmp_lg_u32 s{S_KH}, 0")
    P("s_cbranch_scc1 LF_l0")

    def sigstamp(it, k):
        if OPT.get("sig"):
            P(f"s_memtime s[98:99]"); P("s_waitcnt lgkmcnt(0)"); P(f"v_writelane_b32 v{vsig}, s98, {2*it+k}")
    vsig = V.alloc("vsig") if OPT.get("sig") else None

    P.cond_begin()
    emit(H_PRE)
    stamp(P, 15)
    P("s_barrier")
    stamp(P, 0)
    LOADS["f"]("h")
    stamp(P, 1)
    if PF & 4: pf(0, True)
    P.wait_tag("q")
    P("s_barrier")
    stamp(P, 2)
    if PF & 2: pf(0, True)
    QD = 6
    xb = [acc[1][0] + 4 * i for i in range(QD)]; wb = [acc[2][0] + 4 * i for i in range(QD)]
    assert acc[1][1] == acc[1][0] + 16 and acc[2][1] == acc[2][0] + 16
    def q_loads(ks):
        o = SLOT[ks // 12] - SLOT[0] + (ks % 12) * 2048
        P(f"ds_read_b128 {vr(xb[ks%QD],4)}, v{vxa} offset:{ks*32}")
        P(f"ds_read_b64_tr_b16 {vr(wb[ks%QD],2)}, v{vtn} offset:{o}")
        P(f"ds_read_b64_tr_b16 {vr(wb[ks%QD]+2,2)}, v{vtn} offset:{o+512}")
    for ks in range(QD - 1): q_loads(ks)
    for ks in range(32):
        P(mfma(acc[0][0], wb[ks%QD], xb[ks%QD], acc[0][0] if ks else None))
        if ks in (11, 23):
            stamp(P, 11 if ks == 11 else 13)
            P("s_barrier")
        if ks + QD - 1 in (12, 24): P("s_barrier")
        if ks + QD - 1 < 32: q_loads(ks + QD - 1)
        nf = -(-len(H_MID) // 28)
        emit(H_MID[ks * nf:(ks + 1) * nf])
        if ks == OPT.get("pk", 24):
            P(f"s_mov_b32 s{S_T5}, 0x{FL_KV:x}")
            P(f"buffer_load_dword v{vn}, v{vz}, s[{S_DBG}:{S_DBG+3}], 0 offen sc1")
            P(flag_load(vfl, 4, l16, f"s{S_T5}"))
    for r in range(8): P(f"v_cvt_pk_bf16_f32 v{qf+r}, v{acc[0][0]+2*r}, v{acc[0][0]+2*r+1}")
    P(f"ds_write_b128 v{vq}, {vr(qf,4)}")
    P(f"ds_write_b128 v{vq}, {vr(qf+4,4)} offset:1024")
    def kv_check():
        nonce_check(P, SL, vn, vz)
        spin_check(P, SL, [flag_load(vfl, 4, l16, f"s{S_T5}")], flag_cmp(vfl, 4, t0), sleep=OPT.get("ksl", 6))
        kv_dma(P, l16, 0)
        dma(P, l16, S_WS, f"s{S_T2}", (S_KVLDS, 4096), tag="kv0", mods=SC1, pre=[f"s_add_u32 s{S_T2}, s{S_T2}, 32768"])
    if not OPT.get("kl"): kv_check()
    def gu_reads(ks):
        s, kk = ks // 2, ks % 2
        so = SLOT[s % 3] - SLOT[0] + kk * 6144
        L = [f"ds_read_b128 {vr(fx[ks%2][0],4)}, v{vx0} offset:{ks*32}"]
        for i in range(3):
            f = fw[ks % 2][i]
            L += [f"ds_read_b64_tr_b16 {vr(f,2)}, v{wtr[i]} offset:{so}", f"ds_read_b64_tr_b16 {vr(f+2,2)}, v{wtr[i]} offset:{so+1536}"]
            if i == 0: L.append(f"ds_read_b128 {vr(fx[ks%2][1],4)}, v{vx0} offset:{ks*32 + 32*X_STRIDE}")
        return L
    def gu_groups(ks, late=False):
        R = gu_reads(ks + 1) if ks < 31 else []
        if OPT.get("abl_hds") and ks >= 2 * NP - 1: R = []
        G = []
        for m in range(6):
            i, t = m // 2, m % 2
            mm = [mfma(acc[i][t], fw[ks % 2][i], fx[ks % 2][t], acc[i][t] if ks else None)]
            if OPT.get("abl_hm") and ks >= 2 * NP - 1: mm = []
            G.append(mm + (R[2 * m: 2 * m + 2] if not late else ([] if m < 3 else R[3 * (m - 3): 3 * (m - 3) + 3])))
        return G
    P.wait_lgkm_all()
    stamp(P, 14)
    P("s_barrier")
    stamp(P, 3)
    for x in gu_reads(0): P(x)
    if OPT.get("kl"): kv_check()
    poison()
    PFI = OPT.get("pfi", 0)
    for ks in range(2 * NP - 1):
        if ks % 2 == 1:
            P.wait_lgkm_all(); P("s_barrier")
        for g in gu_groups(ks):
            for x in g: P(x)
    P.wait_tag("kv0"); P.wait_lgkm_all(); P("s_barrier")
    stamp(P, 4)
    gq = []
    tmp = fx[0][0]; cst = fx[1][0]
    assert fx[0][1] == fx[0][0] + 4
    gel = []
    def load_window(k):
        n = 2 * (NP + k) - 1
        assert not gq
        gq.extend(gu_groups(n, late=(k > 0 and OPT.get("sb", 0))))
        if n < 31: gq.extend(gu_groups(n + 1))
    def hookH(it, x, pos):
        if pos == "sync?": return 1 <= it <= JIT
        if pos == "pre0": sigstamp(it, 0); return
        if pos == "pre": sigstamp(it, 1); return
        if pos == "start": load_window(0); return
        midprio(it, x, pos, PH)
        if pos in ("qk", "pv1") and H_LATE: emit(H_LATE.pop(0))
        if pos == "pv2" and x == 1 and PF & 1:
            if it == PFI: pf(1, True)
            if it == PFI + 2: pf(2, True)
            if it == PFI + 5: pf(3, True)
        if pos == "pv2" and x == 1 and OPT.get("wpf", 1) and it in (7, 8, 9, 10):
            k = it - 7
            P(f"s_cmp_lg_u32 s{S_W}, {k}")
            P(f"s_cbranch_scc1 LF_wp{k}")
            P(f"buffer_load_dword v{vpd}, v{vpw}, s[{S_PFS}:{S_PFS+3}], 0 offen")
            P.I[-1].kind = "salu"; P.I[-1].vw = set()
            P(f"LF_wp{k}:")
        if pos == "pv1" and x == 0 and 1 <= it <= JIT: load_window(it)
        if pos in ("g1", "g2", "g3", "g4", "g5", "g6"):
            cnt = int(str(OPT.get("gm", 111111))[int(pos[1]) - 1]) if gq else 1
            cnt = 0 if cnt == 9 else cnt
            if gq and cnt == 0: pass
            elif gq:
                for _ in range(cnt):
                    if gq:
                        for t in gq.pop(0): P(t)
                if not gq and it == JIT and x == 1:
                    L = [f"v_mov_b32 v{cst}, {hexf(GELU_C1)}", f"v_mov_b32 v{cst+1}, {hexf(GELU_C1)}",
                         f"v_mov_b32 v{cst+2}, {hexf(GELU_C2)}", f"v_mov_b32 v{cst+3}, {hexf(GELU_C2)}"]
                    k = 0
                    for i in range(3):
                        for t in range(2):
                            d = fw[k % 2][k // 2]; k += 1
                            L += gelu_tile_pk(acc[i][t], d, tmp, cst)
                            if t == 1: L.append(f"s_add_u32 s{SH[i]}, s{SH[i]}, {118*1024}")
                            L.append(f"buffer_store_dwordx4 {vr(d,4)}, v{l16}, {WSR}, s{SH[i]} offen sc1")
                    ns = (2 if OPT.get("bbh", 0) else 3) + 12 * (UNI - JIT - 1)
                    n = (len(L) + ns - 1) // ns
                    gel.extend(L[i:i + n] for i in range(0, len(L), n))
            elif gel:
                for t in gel.pop(0): P(t, tag="hst" if "store" in t else None)
    PM = OPT.get("pm", 9)
    PH = [int(c) for c in str(OPT.get("ph", 3321)).zfill(4)]; PL = [int(c) for c in str(OPT.get("pl", 3210)).zfill(4)]
    def prioH(it, x):
        if PM == 9: return PH[2 * x] if it < JIT else 3
        if PM == 1: return 3 if (it == 0 and x == 0) else None
        if PM == 3: return 3 - 2 * x
        if PM == 5: return (3 - 2 * x) if it < JIT else 3
        if PM == 6: return 3 if it >= JIT else None
        return None
    def prioL(it, x):
        if PM == 9: return PL[2 * x] if it < JIT else 0
        if PM in (2, 6): return 1 if (it == 0 and x == 0) else None
        if PM == 3: return 3 - 2 * x
        if PM == 5: return (3 - 2 * x) if it < JIT else 0
        return None
    def midprio(it, x, pos, T=None):
        if PM == 9 and pos == "pv2" and it <= JIT: P(f"s_setprio {T[1] if x else T[3]}")
        if PM in (3, 5) and pos == "pv2" and (PM == 3 or it <= JIT): P(f"s_setprio {2 * x}")
    attention(P, A, l16, range(0, UNI), hookH, prioH, kvf=lambda c: None, bb=OPT.get("bbh", 0))
    nsb = A["sb"].n; A["sb"].n = 0
    assert not gq and not gel, (len(gq), len(gel))
    P.cond_end(keep=True)
    P("s_branch LF_join")
    for n in ("vx0", "vtn", "wtr0", "wtr1", "wtr2", "vpf", "vpw"): V.release(n)

    P("LF_l0:")
    P.cond_begin()
    P("s_barrier")
    LOADS["f"]("l")
    stamp(P, 1)
    P("s_waitcnt vmcnt(8)")
    P("s_barrier")
    stamp(P, 2)
    P(f"s_cmp_eq_u32 s{S_W}, 6")
    P("s_cbranch_scc1 LF_l6")
    P(f"s_add_u32 s{S_T3}, s{S_T3}, 24")
    wq_pieces(P, vsl, S_T3, 8, "LF_ldq3", 1)
    P("s_waitcnt vmcnt(8)")
    P("s_branch LF_l6j")
    P("LF_l6:")
    P("s_waitcnt vmcnt(0)")
    P("LF_l6j:")
    P("s_barrier")
    P("LF_light:")
    emit(C_EARLY)

    pats = w_patterns(P, V, lane, t0, t1)
    P(f"s_lshl_b32 s{S_T0}, s{S_HP}, 1")
    P(f"s_mul_i32 s{S_WOFF}, s{S_T0}, {8*2752}")
    P(f"s_lshl_b32 s{S_T1}, s{S_U0}, 5")
    P(f"s_add_u32 s{S_WOFF}, s{S_WOFF}, s{S_T1}")
    P(f"s_mul_i32 s{S_WLDS}, s{S_T0}, 3072")
    P(f"s_mul_i32 s{S_T1}, s{S_TT}, {UP_OFF}")
    P(f"s_add_u32 s{S_WLDS}, s{S_WLDS}, s{S_T1}")
    inattn = dict(on=False)
    P(f"s_add_u32 s{S_WOFF}, s{S_WOFF}, 0")
    P(f"v_subrev_u32 v{pats[1]}, 1024, v{pats[1]}")
    P(f"v_subrev_u32 v{pats[2]}, 2048, v{pats[2]}")
    def w_dma1(s, k):
        g, i = k // 3, k % 3
        solo = not OPT.get("wm0", 1) or inattn["on"]
        if i == 0 or solo:
            dma(P, pats[i], S_WM, f"s{S_T3}", (S_WLDS, SLOT[s % 3] + 3072 * g), offset=1024 * i, tag=f"w{s}",
                pre=[f"s_add_u32 s{S_T3}, s{S_WOFF}, 0x{(32*s + 8*g)*2752:x}"] if i == 0 else None)
        else:
            P(f"buffer_load_dwordx4 v{pats[i]}, s[{S_WM}:{S_WM+3}], s{S_T3} offen offset:{1024*i} lds", tag=f"w{s}")
    def w_dma6(s):
        for k in range(6): w_dma1(s, k)
    stamp(P, 11)
    P("s_barrier")
    w_dma6(0)
    P("s_waitcnt vmcnt(6)"); P.I[-1].kind = "salu"
    P("s_barrier")
    h = len(C_LATE) // 4
    emit(C_LATE[:h])
    stamp(P, 13)
    P("s_barrier")
    w_dma6(1)
    emit(C_LATE[h:])
    dma(P, l16, S_GW, "0", (None, GWL), tag="gw")
    vgw = acc[0][1]
    P(f"v_lshrrev_b32 v{t0}, 5, v{lane}")
    P(f"v_lshlrev_b32 v{vgw}, 4, v{t0}")
    P(f"s_lshl_b32 s{S_T0}, s{S_HP}, 9")
    P(f"v_add_u32 v{vxa}, s{S_T0}, v{vxa}")
    P(f"s_add_u32 s{S_T0}, s{S_T0}, 0x{GWL:x}")
    P(f"v_add_u32 v{vgw}, s{S_T0}, v{vgw}")
    P(f"s_lshl_b32 s{S_T0}, s{S_W}, 8")
    P(f"s_add_u32 s{S_T0}, s{S_T0}, 0x{ONES - 1024:x}")
    P(f"v_lshlrev_b32 v{t0}, 2, v{lane}")
    P(f"v_add_u32 v{t0}, s{S_T0}, v{t0}")
    P(f"v_mov_b32 v{t1}, 0x3f803f80")
    P(f"v_lshrrev_b32 v1, 2, v{lane}")
    P(f"v_and_b32 v1, 11, v1")
    P(f"v_cmp_eq_u32 vcc, 0, v1")
    P(f"v_cndmask_b32 v{t1}, 0, v{t1}, vcc")
    P(f"ds_write_b32 v{t0}, v{t1}")
    P(f"ds_write_b32 v{t0}, v{t1} offset:1024")
    poison()
    za = acc[0][0]; zx = [acc[1][0] + 4 * i for i in range(4)]; zg = [acc[2][0] + 4 * i for i in range(4)]
    def zjob():
        for r in range(4): P(f"v_mov_b32 v{za+r}, 0")
        def zld(k):
            P(f"ds_read_b128 {vr(zx[k%4],4)}, v{vxa} offset:{k*32}")
            P(f"ds_read_b128 {vr(zg[k%4],4)}, v{vgw} offset:{k*32}")
        for k in range(3): zld(k)
        for k in range(16):
            for r in range(4): P(f"v_dot2c_f32_bf16 v{za+r}, v{zx[k%4]+r}, v{zg[k%4]+r}")
            if k + 3 < 16: zld(k + 3)
        P("s_nop 2")
        P(f"v_add_f32 v{za}, v{za}, v{za+1}")
        P(f"v_add_f32 v{za+2}, v{za+2}, v{za+3}")
        P(f"v_add_f32 v{za}, v{za}, v{za+2}")
        P(f"s_and_b32 s{S_T0}, s{S_W}, 3")
        P(f"s_lshl_b32 s{S_T0}, s{S_T0}, 8")
        P(f"s_add_u32 s{S_T0}, s{S_T0}, 0x{MISC:x}")
        P(f"v_lshlrev_b32 v{t0}, 2, v{lane}")
        P(f"v_add_u32 v{t0}, s{S_T0}, v{t0}")
        P(f"ds_write_b32 v{t0}, v{za}")
    P(f"s_mov_b32 s{S_T6}, 0x{FL_KV:x}")
    def kv_both(c):
        kv_dma(P, l16, c)
        dma(P, l16, S_WS, f"s{S_T2}", (S_KVLDS, (8192 * (c & 1) - 4096) & 0xffffffff), tag=f"kv{c}", mods=SC1, pre=[f"s_sub_u32 s{S_T2}, s{S_T2}, 32768"])
    def poll_issue():
        P(f"buffer_load_dword v{vn}, v{vz}, s[{S_DBG}:{S_DBG+3}], 0 offen sc1")
        P(flag_load(vfl, 4, l16, f"s{S_T6}"))
    for s in range(0, NP + 1):
        P.wait_tag(f"w{s}")
        P.wait_lgkm_all()
        if s == 0: stamp(P, 14)
        P("s_barrier")
        if s == 0:
            stamp(P, 3)
            P(f"ds_read_b128 {vr(qf,4)}, v{vq} offset:1024")
            P(f"ds_read_b128 {vr(qf+4,4)}, v{vq}")
        if s == NP: kv_both(1)
        if s < NP: w_dma6(s + 2)
        if s == 0:
            P(f"buffer_load_dword v{vn}, v{vz}, s[{S_DBG}:{S_DBG+3}], 0 offen sc1")
            P.wait_tag("gw")
            zjob()
    assert NP >= 1
    stamp(P, 4)
    dq = []; wq2 = []
    def hookL(it, x, pos):
        if pos == "sync?": return 1 <= it <= JIT
        if pos == "pre0": sigstamp(it, 0); return
        if pos == "pre":
            if NP + it < 16: P.wait_tag(f"w{NP+it}")
            sigstamp(it, 1); return
        if (pos == "start" or pos == "chk") and NP + it + 2 < 16:
            assert not dq
            for k in range(0 if OPT.get("abl_ldma") else 6): dq.append(lambda s=NP + it + 2, k=k: w_dma1(s, k))
        midprio(it, x, pos, PL)
        LW = OPT.get("lw", 4)
        if pos == "chk" and it == JIT:
            for b in range(LW):
                for o in range(2):
                    for i in range(2): wq2.append(lambda b=b, o=o, i=i: fin_dma_w2(P, vsl, b, b * 16384, f"fw{b}", i, o))
        if wq2 and pos not in ("pre", "pre0", "chk", "start"):
            wq2.pop(0)()
            if it == UNI - 1 and x == 1 and pos == "g6":
                while wq2: wq2.pop(0)()
        LS = [("pv2", "qk", "pv1"), ("g1", "g3", "g5"), ("g2", "g4", "g6"), ("pv1", "g4", "g5", "g6", "pv2", "g1", "g2"), ("pv2", "pv1")][OPT.get("ls", 3)]
        if pos in LS and dq:
            dq.pop(0)()
            if OPT.get("ls", 3) == 4 and dq and len(dq) % 3 != 0: dq.pop(0)(); (dq.pop(0)() if pos == "pv1" and len(dq) % 3 else None)
    attention(P, A, l16, range(0, UNI), hookL, prioL, kvf=kv_both, bb=OPT.get("bbl", 0))
    assert A["sb"].n == nsb
    assert not dq
    P.cond_end(keep=True)
    P("LF_join:")
    P.join()
    for n in ["wpat0", "wpat1", "wpat2", "vxa", "vq"] + [f"acc{i}{t}" for i in range(3) for t in range(2)] + \
             [f"fx{b}{t}" for b in range(2) for t in range(2)] + [f"fw{b}{i}" for b in range(2) for i in range(3)]: V.release(n)
    stamp(P, 5)

    facc = V.alloc("facc", 16); facc1 = V.alloc("facc1", 16); fa = V.alloc("ffa", 8)
    NB = OPT.get("nb", 6)
    hb = [V.alloc(f"hb{i}", 4) for i in range(NB)]; fb = hb[0]
    vl4 = V.alloc("vl4"); vg = V.alloc("vg"); zt = V.alloc("zt", 2)
    va0 = tr_slice_addr(P, V, "fa0", lane, t0, t1, 0, S_KH, 4)
    vA = [[va0, V.alloc("fa0h")], [V.alloc("fa1"), V.alloc("fa1h")]]
    P(f"s_lshl_b32 s{S_T1}, s{S_HP}, 5")
    P(f"v_xor_b32 v{va0}, s{S_T1}, v{va0}")
    P(f"s_lshr_b32 s{S_T0}, s{S_W}, 1")
    P(f"s_lshl_b32 s{S_T1}, s{S_T0}, 11")
    P(f"v_add_u32 v{va0}, s{S_T1}, v{va0}")
    P(f"v_xor_b32 v{vA[1][0]}, 64, v{va0}")
    P(f"v_add_u32 v{vA[0][1]}, 0x10000, v{va0}")
    P(f"v_add_u32 v{vA[1][1]}, 0x10000, v{vA[1][0]}")
    P(f"s_mul_i32 s{S_FB}, s{S_TILE}, 118")
    P(f"s_add_u32 s{S_FB}, s{S_FB}, s{S_T0}")
    P(f"s_lshl_b32 s{S_FB}, s{S_FB}, 10")
    P(f"s_add_u32 s{S_FB}, s{S_FB}, 0x{WS_OH:x}")
    P(f"v_lshlrev_b32 v{vl4}, 2, v{lane}")
    vhf = V.alloc("vhf")
    P(f"v_lshrrev_b32 v{t0}, 3, v{lane}")
    P(f"v_mul_u32_u24 v{t0}, 96, v{t0}")
    P(f"v_add_u32 v{vhf}, v{t0}, v{vl4}")
    P(f"s_lshl_b32 s{S_T0}, s{S_TT}, 8")
    P(f"s_add_u32 s{S_T0}, s{S_T0}, 0x{MISC:x}")
    P(f"v_add_u32 v{t0}, s{S_T0}, v{vl4}")
    P(f"ds_read_b32 v{zt}, v{t0}")
    P(f"ds_read_b32 v{zt+1}, v{t0} offset:512")
    P(f"v_add_f32 v{zt}, v{zt}, v{zt+1}")
    P(f"v_mov_b32 v{zt+1}, v{zt}")
    P(f"v_permlane32_swap_b32 v{zt}, v{zt+1}")
    P(f"v_add_f32 v{zt}, v{zt}, v{zt+1}")
    P(f"v_mul_f32 v{t0}, {hexf(-LOG2E)}, v{zt}")
    P(f"v_exp_f32 v{t0}, v{t0}")
    P(f"v_add_f32 v{t0}, 1.0, v{t0}")
    P(f"v_rcp_f32 v{vg}, v{t0}")
    V.release("zt")
    vw = [V.alloc(f"vw{i}") for i in range(3)]; vrd = V.alloc("vrd"); vo = V.alloc("vo")
    def sbase(dst, w):
        P(f"s_mul_i32 s{S_T1}, s{w}, 6144")
        P(f"v_add_u32 v{dst}, s{S_T1}, v{l16}")
    sbase(vrd, S_W)
    for b in range(1, 4):
        P(f"s_xor_b32 s{S_T0}, s{S_W}, {b << 1}")
        sbase(vw[b - 1], S_T0)
    P(f"v_and_b32 v{vo}, 31, v{lane}")
    P(f"v_lshlrev_b32 v{vo}, 10, v{vo}")
    P(f"v_lshrrev_b32 v{t1}, 5, v{lane}")
    P(f"v_lshl_add_u32 v{vo}, v{t1}, 4, v{vo}")
    P(f"s_lshl_b32 s{S_OO}, s{S_TILE}, 15")
    P(f"s_lshl_b32 s{S_T1}, s{S_J}, 7")
    P(f"s_add_u32 s{S_OO}, s{S_OO}, s{S_T1}")
    P(f"s_lshl_b32 s{S_T1}, s{S_KH}, 6")
    P(f"s_add_u32 s{S_OO}, s{S_OO}, s{S_T1}")
    P(f"s_lshl_b32 s{S_T1}, s{S_HP}, 5")
    P(f"s_add_u32 s{S_OO}, s{S_OO}, s{S_T1}")
    vp = V.alloc("vp"); vpa = V.alloc("vpa")
    P(f"v_lshlrev_b32 v{vpa}, 10, v{lane}")
    vt0 = V.alloc("vt0"); vt1 = V.alloc("vt1")
    P(f"s_lshr_b32 s{S_T1}, s{S_W}, 1")
    P(f"s_mul_i32 s{S_T1}, s{S_T1}, {16384 - 2048}")
    P(f"s_add_u32 s{S_T1}, s{S_T1}, {3*16384}")
    P(f"v_add_u32 v{vt0}, s{S_T1}, v{vA[0][0]}")
    P(f"v_add_u32 v{vt1}, s{S_T1}, v{vA[1][0]}")
    va = V.alloc("cva"); vb = V.alloc("cvb"); fb = V.alloc("cvon")
    P(f"s_mul_i32 s{S_T0}, s{S_W}, 3072")
    P(f"s_add_u32 s{S_T0}, s{S_T0}, 114688")
    P(f"v_add_u32 v{va}, s{S_T0}, v{l16}")
    P(f"s_xor_b32 s{S_T0}, s{S_W}, 4")
    P(f"s_mul_i32 s{S_T0}, s{S_T0}, 3072")
    P(f"s_add_u32 s{S_T0}, s{S_T0}, 114688")
    P(f"v_add_u32 v{vb}, s{S_T0}, v{l16}")
    P(f"s_add_u32 s{S_OL2}, s{S_OL}, 4096")
    BSLOT = lambda b: ((b % 8) if b < 11 else (b - 8)) * 16384
    def a_reads(r, d):
        o = (4 * r % 64) * 2048; hi = o >> 16; o &= 0xffff
        assert r // 2 in vis, (r, vis)
        rd_done[r // 2] = rd_done.get(r // 2, 0) + 1
        if OPT.get("abl_uds"): return
        P(f"ds_read_b64_tr_b16 {vr(fa+4*d,2)}, v{vA[d][hi]} offset:{o}")
        P(f"ds_read_b64_tr_b16 {vr(fa+4*d+2,2)}, v{vA[d][hi]} offset:{o+1024}")
    def h_load(r):
        if OPT.get("abl_uh"): return
        P(f"s_add_u32 s{S_T2}, s{S_FB}, {4096*r}")
        if r == 21:
            P(f"s_cmp_lt_u32 s{S_W}, 4")
            P(f"s_cselect_b32 s{S_T2}, s{S_T2}, 0x{OOB:x}")
        P(f"buffer_load_dwordx4 {vr(hb[r%NB],4)}, v{l16}, {WSR}, s{S_T2} offen sc1")
    pend = {}
    LW = OPT.get("lw", 4)
    dq = []; vis = set(); issued = {}; rd_done = {}; nxt = dict(b=LW, r=0, d=0, pre=False)
    def qW(b):
        def f(i):
            if not OPT.get("abl_uw"): fin_dma_w1(P, vsl, b, BSLOT(b), f"fw{b}", i)
            issued[b] = issued.get(b, 0) + 1
        for i in range(2): dq.append(lambda i=i: f(i))
    CH = OPT.get("ch", HF + 4); R0 = OPT.get("r0", 2 * (CH + 1))
    DBL = OPT.get("dbl", 64)
    def mstep():
        r, d = nxt["r"], nxt["d"]
        if r >= 22: return
        if not nxt["pre"]:
            a_reads(0, 0); a_reads(0, 1); nxt["pre"] = True; return
        if not OPT.get("abl_um"): P(mfma([facc, facc1][d], fa + 4 * d, hb[r % NB], [facc, facc1][d] if r else None))
        if r + 1 < 22: a_reads(r + 1, d)
        if d == 1 and r + NB < 22: dq.insert(0, lambda r=r: h_load(r + NB))
        nxt["d"] = 1 - d; nxt["r"] = r + d
    US = [("g1", "g4"), ("g2", "g5"), ("g1", "g5"), ("g2", "g6"), ("g3", "g6")][OPT.get("us", 3)]
    VS = [("pv2", "qk"), ("qk", "pv1"), ("pv2", "pv1"), ("g3", "g6"), ("qk", "g6")][OPT.get("vs", 0)]
    def hookU(it, x, pos):
        sig = (x == 0 and (it & 1)); ph = 2 * it + x
        if pos == "sync?": return False
        if pos == "pre0": sigstamp(it, 0); return
        if pos == "pre":
            if it == HF: P.wait_vm_all()
            need = [b for b in issued if issued[b] == 2 and b not in vis and (it == 29 or b <= (max(0, ph + 8 - R0) * (2 if ph + 6 >= DBL else 1)) // 2) and b <= 10]
            if need: P.wait_tag(*[f"fw{b}" for b in need])
            if it == HF: need = need + list(range(LW))
            pend["vis"] = need; pend["free"] = {b for b in rd_done if rd_done[b] >= 4}
            sigstamp(it, 1); return
        if pos == "pv1" and sig and it == HF and OPT.get("ef", -1) < 0:
            nonce_check(P, SL, vn, vz)
            flag_store(P, vz, t0, S_FS)
        if pos == "chk":
            vis.update(pend["vis"])
            while it >= HF and nxt["b"] < 15:
                b = nxt["b"]; prev = {8: 0, 9: 1, 10: 2, 11: 3, 12: 4, 13: 5, 14: 6}.get(b)
                if prev is not None and prev not in pend["free"]: break
                qW(b); nxt["b"] += 1
            return
        PP = OPT.get("pp", 2)
        if (PP == 0 and pos == "pv2" and x == 0 and it == CH - 1) or (PP == 1 and pos == "g1" and x == 1 and it == CH - 1) or \
           (PP == 2 and pos == "pv1" and x == 1 and it == CH - 1): P(flag_load(vfl, 1, vhf, f"s{S_FP}"))
        EF = OPT.get("ef", -1)
        if ph == EF and pos == "g4":
            P.wait_vm_all(); nonce_check(P, SL, vn, vz); flag_store(P, vz, t0, S_FS)
        if pos == "pv2" and x == 0 and it == CH:
            spin_check(P, SL, [flag_load(vfl, 1, vhf, f"s{S_FP}")], flag_cmp(vfl, 1, t0), sleep=OPT.get("hsl", 4))
            for r in range(NB): dq.insert(r, lambda r=r: h_load(r))
        elif dq and (pos in VS or (pos in ("g2", "g5") and it in (CH, CH + 1)) or (pos == "g5" and OPT.get("d3"))): dq.pop(0)()
        if nxt["r"] >= 22 - OPT.get("tr", 5) and nxt["d"] == 0: pass
        elif (pos in US and ph >= R0) or (pos == US[1] and ph == R0 - 1) or (pos in ("g3", "g6") and ph >= DBL): mstep()
        if pos == "g6" and it == 31 and x == 1:
            assert nxt["b"] == 15, nxt
            print("rounds left for tail:", 22 - nxt["r"])
    def prioU(it, x):
        if not OPT.get("prio", 1): return None
        k = 2 * ((it + 1) & 1) + x
        return int(str(OPT.get("pu", 3210)).zfill(4)[k])
    attention(P, A, l16, range(UNI, 32), hookU, prioU)
    assert not dq
    stamp(P, 6)
    if OPT.get("sig"):
        P(f"s_lshl_b32 s98, s2, 11")
        P(f"s_lshl_b32 s99, s{S_W}, 8")
        P(f"s_add_u32 s98, s98, s99")
        P(f"s_add_u32 s98, s98, 0x{WS_STAMP + (1<<20):x}")
        P(f"buffer_store_dword v{vsig}, v{vl4}, {WSR}, s98 offen")
    P("s_setprio 0")
    P(f"v_mov_b32 v{O[1]+7}, v{O[1]}")
    for i in range(3): P(f"ds_write_b128 v{va}, {vr(O[1]+4+4*i,4)} offset:{1024*i}")
    P.wait_tag(*[f"fw{b}" for b in range(8, 15)]); P.wait_lgkm_all()
    P("s_barrier")
    vis.update(range(11))
    for i in range(3): P(f"ds_read_b128 {vr(O[1]+4+4*i,4)}, v{vb} offset:{1024*i}")
    P(f"v_add_f32 v{O[0]}, v{O[0]}, v{O[1]+7}")
    for r in range(8, 16): P(f"v_add_f32 v{O[0]+r}, v{O[0]+r}, v{O[1]+r}")
    P(f"v_mov_b32 v{t1}, 0x207")
    P(f"v_cmp_nle_f32 vcc, {hexf(2.0**-90)}, v{O[0]}")
    P(f"v_cmp_nge_f32 s[{S_PM}:{S_PM+1}], {'s' + str(S_T0)}, v{O[0]}".replace(f"s{S_T0}", f"s{S_C1}"))
    P(f"s_or_b64 vcc, vcc, s[{S_PM}:{S_PM+1}]")
    P(f"v_add3_u32 v{t0}, v{O[0]+8}, 0, 0".replace("v_add3_u32", "v_add_f32").replace(", 0, 0", f", v{O[0]+9}"))
    for r in range(10, 16): P(f"v_add_f32 v{t0}, v{t0}, v{O[0]+r}")
    P(f"v_cmp_class_f32 s[{S_PM}:{S_PM+1}], v{t0}, v{t1}")
    P(f"s_or_b64 vcc, vcc, s[{S_PM}:{S_PM+1}]")
    if OPT.get("forcefb"): P("s_mov_b64 vcc, -1")
    P("s_cmp_lg_u64 vcc, 0")
    P("s_cbranch_scc1 LF_fb")
    P("LF_fbr:")
    P(f"v_rcp_f32 v{t0}, v{O[0]}")
    P(f"v_mul_f32 v{t0}, v{t0}, v{vg}")
    for r in range(8, 16): P(f"v_mul_f32 v{O[0]+r}, v{O[0]+r}, v{t0}")
    for r in range(4): P(f"v_cvt_pk_bf16_f32 v{O[1]+r}, v{O[0]+8+2*r}, v{O[0]+9+2*r}")
    for r in range(4): P(f"v_min_u32 v{O[1]+r}, 0xfffffffe, v{O[1]+r}")
    P(f"buffer_store_dwordx4 {vr(O[1],4)}, v{l16}, {WSR}, s{S_OD} offen sc1", tag="ost")
    stamp(P, 7)
    K4, V8, ON, CM = A["fk"], A["fv"][0], fb, O[1]
    assert A["fv"][1] == V8 + 4
    nl = "\n    "
    fbk = f"""LF_fb:
    s_waitcnt vmcnt(0) lgkmcnt(0)
    v_mov_b32 v{t0}, 0xff800000
    s_mov_b32 s{S_T0}, 0x{WS_KF:x}
LF_fb1:
    buffer_load_dwordx4 {vr(K4,4)}, v{l16}, {WSR}, s{S_T0} offen sc1
    s_waitcnt vmcnt(0)
    {mfma(S[0], K4, qf)}
    s_nop 15
    {nl.join(f"v_max3_f32 v{t0}, v{S[0]+2*r}, v{S[0]+2*r+1}, v{t0}" for r in range(8))}
    s_add_u32 s{S_T0}, s{S_T0}, 1024
    s_cmp_lt_u32 s{S_T0}, 0x{WS_KF + 65536:x}
    s_cbranch_scc1 LF_fb1
    v_mov_b32 v{t1}, v{t0}
    s_nop 1
    v_permlane32_swap_b32 v{t0}, v{t1}
    s_nop 1
    v_max_f32 v{t0}, v{t0}, v{t1}
    {nl.join(f"v_sub_f32 v{CM+r}, 0, v{t0}" for r in range(16))}
    {nl.join(f"v_mov_b32 v{O[0]+r}, 0" for r in range(16))}
    v_lshrrev_b32 v{t0}, 5, v{lane}
    v_lshlrev_b32 v{t0}, 8, v{t0}
    v_and_b32 v{t1}, 15, v{lane}
    v_lshl_add_u32 v{t0}, v{t1}, 4, v{t0}
    v_and_b32 v{t1}, 16, v{lane}
    v_cmp_eq_u32 vcc, 0, v{t1}
    v_mov_b32 v{t1}, 0x{OOB:x}
    s_nop 1
    v_cndmask_b32 v{t0}, v{t0}, v{t1}, vcc
    v_and_b32 v{t1}, 27, v{lane}
    v_cmp_eq_u32 vcc, 0, v{t1}
    v_mov_b32 v{ON}, 0x3f803f80
    s_nop 1
    v_cndmask_b32 v{ON}, 0, v{ON}, vcc
    s_mov_b32 s{S_T0}, 0x{WS_KF:x}
LF_fb2:
    s_add_u32 s{S_T1}, s{S_T0}, 0x{WS_VF - WS_KF:x}
    buffer_load_dwordx4 {vr(K4,4)}, v{l16}, {WSR}, s{S_T0} offen sc1
    buffer_load_dwordx4 {vr(V8,4)}, v{t0}, {WSR}, s{S_T1} offen sc1
    buffer_load_dwordx4 {vr(V8+4,4)}, v{t0}, {WSR}, s{S_T1} offen offset:512 sc1
    s_waitcnt vmcnt(0)
    {mfma(S[0], K4, qf, CM)}
    {nl.join(f"v_or_b32 v{V8+r}, v{V8+r}, v{ON}" for r in range(8))}
    s_nop 7
    {nl.join(f"v_exp_f32 v{S[0]+r}, v{S[0]+r}" for r in range(16))}
    s_nop 1
    {nl.join(f"v_cvt_pk_bf16_f32 v{S[1]+r}, v{S[0]+2*r}, v{S[0]+2*r+1}" for r in range(8))}
    s_nop 1
    {mfma(O[0], V8, S[1], O[0])}
    {mfma(O[0], V8+4, S[1]+4, O[0])}
    s_add_u32 s{S_T0}, s{S_T0}, 1024
    s_cmp_lt_u32 s{S_T0}, 0x{WS_KF + 65536:x}
    s_cbranch_scc1 LF_fb2
    s_nop 15
    s_branch LF_fbr
"""
    SL.add(fbk)
    for n in ("Sa", "Sb", "Oa", "qf", "fk", "fv1", "fv2"): V.release(n)
    ob = V.alloc("ob", 32); wa = [V.alloc(f"wa{u}", 8) for u in range(8)]
    def oloads(g): return [f"buffer_load_dwordx4 {vr(ob+16*g+4*u,4)}, v{l16}, {WSR}, s{[S_OL,S_OL2][g]} offen offset:{1024*u} sc1" for u in range(4)]
    def ocheck(g):
        b = ob + 16 * g
        L = [f"v_max3_u32 v{t0}, v{b}, v{b+1}, v{b+2}"]
        for k in range(3, 15, 2): L.append(f"v_max3_u32 v{t0}, v{b+k}, v{b+k+1}, v{t0}")
        L += [f"v_max_u32 v{t0}, v{b+15}, v{t0}", f"v_cmp_eq_u32 vcc, -1, v{t0}"]
        return L
    fa2 = V.alloc("ffa2", 8)
    wr = []
    for u in range(8):
        for d, v in ((0, vt0), (1, vt1)):
            wr.append([f"ds_read_b64_tr_b16 {vr(wa[u]+4*d,2)}, v{v} offset:{u*2048}", f"ds_read_b64_tr_b16 {vr(wa[u]+4*d+2,2)}, v{v} offset:{u*2048+1024}"])
    r0 = nxt["r"]; assert nxt["d"] == 0 and not dq
    def tr_reads(r, d):
        o = (4 * r % 64) * 2048; hi = o >> 16; o &= 0xffff; f = [fa, fa2][(r - r0) % 2] + 4 * d
        P(f"ds_read_b64_tr_b16 {vr(f,2)}, v{vA[d][hi]} offset:{o}")
        P(f"ds_read_b64_tr_b16 {vr(f+2,2)}, v{vA[d][hi]} offset:{o+1024}")
    if r0 + 1 < 22: tr_reads(r0 + 1, 0); tr_reads(r0 + 1, 1)
    OL = min(r0 + OPT.get("ol", 99), 22)
    for r in range(r0, 22):
        if r == OL:
            for g in range(2):
                for x in oloads(g): P(x)
        for d in range(2):
            P(mfma([facc, facc1][d], [fa, fa2][(r - r0) % 2] + 4 * d, hb[r % NB], [facc, facc1][d]))
            if r + 2 < 22: tr_reads(r + 2, d)
            elif wr:
                for g in wr[:4]:
                    for x in g: P(x)
                del wr[:4]
    for g in wr:
        for x in g: P(x)
    assert 22 - r0 <= NB and r0 >= 16
    if OPT.get("oab", 1): P.wait_lgkm_all(); P("s_barrier")
    if OL == 22:
        for g in range(2):
            for x in oloads(g): P(x)
    P(f"v_sub_f32 v{t1}, 1.0, v{vg}")
    P(f"v_mov_b32 v{t0}, v{t1}")
    assert t1 == t0 + 1 and t0 % 2 == 0
    for r in range(0, 16, 2): P(f"v_pk_mul_f32 v[{facc+r}:{facc+r+1}], v[{facc+r}:{facc+r+1}], v[{t0}:{t1}]")
    for r in range(0, 16, 2): P(f"v_pk_mul_f32 v[{facc1+r}:{facc1+r+1}], v[{facc1+r}:{facc1+r+1}], v[{t0}:{t1}]")
    if not OPT.get("oab", 1): P.wait_lgkm_all(); P("s_barrier")
    stamp(P, 8)
    nl = "\n    "
    PROBE = lambda g: f"""s_mov_b64 exec, 0xf
    buffer_load_dword v{vp}, v{vpa}, {WSR}, s{[S_OL,S_OL2][g]} offen offset:1020 sc1
    s_waitcnt vmcnt(0)
    v_cmp_eq_u32 vcc, -1, v{vp}
    s_mov_b64 exec, -1"""
    for g in range(2):
        k = SL.n; SL.n += 1
        for x in ocheck(g): P(x)
        P(f"s_cbranch_vccz LR{k}")
        raw(P, f"""{cnt(1+k)}    s_mov_b32 s{S_T7}, 0
LS{k}_p:
    {f"s_sleep {OPT.get('osl', 1)}" if OPT.get('osl', 1) else "s_nop 0"}
    {"" if OPT.get("odir") else PROBE(g)}
    s_add_u32 s{S_T7}, s{S_T7}, 1
    s_cmp_ge_u32 s{S_T7}, 0x{SPIN_MAX:x}
    s_cbranch_scc1 LR{k}
    {"" if OPT.get("odir") else f"s_cbranch_vccnz LS{k}_p"}
    {nl.join(oloads(g))}
    s_waitcnt vmcnt(0)
    {nl.join(ocheck(g))}
    s_cbranch_vccnz LS{k}_p
""")
        P(f"LR{k}:")
        for u in range(4 * g, 4 * g + 4):
            P(mfma(facc1, wa[u] + 4, ob + 4 * u, facc1))
    W1 = [f"ds_write_b128 v{vw[b-1]}, {vr(src+4*i,4)} offset:{2048*(b-1) + 1024*i}" for b, src in ((2, facc1), (3, facc1 + 8)) for i in range(2)]
    for u in range(8):
        P(mfma(facc, wa[u], ob + 4 * u, facc))
        if u >= 3 and W1:
            if u == 3: P("s_nop 7")
            P(W1.pop(0))
    stamp(P, 9)
    for b, src in ((1, facc + 8),):
        for i in range(2): P(f"ds_write_b128 v{vw[b-1]}, {vr(src+4*i,4)} offset:{2048*(b-1) + 1024*i}")
    P.wait_lgkm_all()
    P("s_barrier")
    for i in range(6): P(f"ds_read_b128 {vr(ob+4*i,4)}, v{vrd} offset:{1024*i}")
    for b in range(3):
        for r in range(8): P(f"v_add_f32 v{facc+r}, v{facc+r}, v{ob+8*b+r}")
    for r in range(4): P(f"v_cvt_pk_bf16_f32 v{facc1+r}, v{facc+2*r}, v{facc+2*r+1}")
    P(f"v_permlane32_swap_b32 v{facc1}, v{facc1+2}")
    P(f"v_permlane32_swap_b32 v{facc1+1}, v{facc1+3}")
    P(f"buffer_store_dwordx4 {vr(facc1,4)}, v{vo}, s[{S_OUT}:{S_OUT+3}], s{S_OO} offen")
    if OPT.get("cnt"):
        P(f"v_lshrrev_b32 v1, v{lane}, s85".replace(f"v{lane}, s85", f"v{lane}, v0") if False else f"v_mov_b32 v0, s85")
        P(f"v_lshrrev_b32 v1, v{lane}, v0")
        P(f"v_and_b32 v1, 1, v1")
        P(f"v_lshlrev_b32 v0, 2, v{lane}")
        P("s_mov_b64 exec, 0xfe")
        P(f"buffer_atomic_add v1, v0, s[{S_DBG}:{S_DBG+3}], 0 offen")
    if STAMP["on"]:
        P.wait_vm_all(); stamp(P, 10); stamp_dump(P, lane)
        if OPT.get("dbgst") is not None:
            P(f"s_cmp_lg_u32 s2, {OPT['dbgst']}")
            P("s_cbranch_scc1 LF_end")
            P(f"s_cmp_lg_u32 s{S_W}, {OPT.get('dbgw', 0)}")
            P("s_cbranch_scc1 LF_end")
            P(f"v_subrev_u32 v{VSTAMP}, s100, v{VSTAMP}")
            P("s_mov_b64 exec, 0x7fff")
            P(f"buffer_store_dword v{VSTAMP}, v1, s[{S_DBG}:{S_DBG+3}], 0 offen offset:4")
    P("LF_end:")
    P("s_endpgm")
    name = NAME + "_kernel"
    body, I = finalize(P)
    txt = f".text\n.globl {name}\n.p2align 8\n.type {name},@function\n{name}:\n" + body + "".join(SL.txt) + "LF_last:\n    s_endpgm\n"
    vg_ = 256 if STAMP["on"] else max(V.hi, 8)
    txt += KD.format(name=name, vgpr=vg_, sgpr=102 if STAMP['on'] else 96, accum=(vg_ + 3) // 4 * 4)
    return txt, I, vg_


if __name__ == "__main__":
    out = sys.argv[1]
    STAMP["on"] = "stamp" in sys.argv
    for a in sys.argv[2:]:
        if "=" in a: k, v = a.split("="); OPT[k] = int(v)
        else: OPT[a] = True
    import asmlib; asmlib.MERGE_D = OPT.get("md", 9)
    t, I, vg_ = kernel_F()
    DOC = """; One fused kernel, 256 workgroups x 8 waves, one per CU (all co-resident).  Workgroup = (64-token group G, slice j).
;  start : K/V projection of 16 tokens (wave 7) -> d_ws + flag ; Q projection of 4 heads (waves 0-3) ; gate logit
;          true row maximum (LF_fb) whenever that could have overflowed or underflowed.
;  end   : o exchanged through d_ws (words preset to all-ones mean 'not written yet'), output projection, gated mix.
;  Hand-offs: write-through stores, vmcnt, then flags tagged with a per-launch nonce published through d_debug[0].
"""
    hdr = HEADER + DOC + f"; @launch grid=(256,1,1) block=(512,1,1) lds={LDS_BYTES}\n" + '.amdgcn_target "amdgcn-amd-amdhsa--gfx950"\n'
    open(out, "w").write(hdr + t)
    import subprocess
    r = subprocess.run(["clang", "-x", "assembler", "-target", "amdgcn-amd-amdhsa", "-mcpu=gfx950", "-c", out, "-o", "_chk.o"], capture_output=True, text=True)
    if r.returncode: print("ASM ERROR", r.stderr[:500])
    print("insts", len(I), "vgpr", vg_, "nops", sum(1 for x in I if x.kind == "nop"))
```

```python
import sys, re
from parts import *
OPT = {}
S_NONCE = 93
S_HP, S_KH = 30, 31
SH = [4, 5, 6]
S_FS, S_FP, S_OD, S_OL = 7, 8, 9, 10
S_FW, S_FB, S_FL, S_FL2 = 12, 13, 14, 15
S_OO, S_OL2 = 11, 18
S_VM = 28
S_PM = 16
FL_KV, FL_H = WS_FLAG, WS_FLAG + 8192
WKV_L = KV_RING
QSCR = KV_RING + 8192
FSLOT = [0, 32768, 65536, 98304]
WO_CH = [98304, 114688, 0, 32768]
SC1 = " sc1"
SPIN_MAX = 1 << 22
WSR = f"s[{S_WS}:{S_WS+3}]"


def cnt(k):
    if not OPT.get("cnt"): return ""
    return f"    s_bitset1_b32 s85, {k}\n"


def raw(P, text):
    for line in text.split("\n"):
        line = line.strip()
        if not line: continue
        P(line)
        x = P.I[-1]
        if x.kind not in ("label",):
            x.kind = "salu"; x.vr = set(); x.vw = set(); x.sr = set(); x.sw = set(); x.mf = None; x.meta = dict(skip=True)


class Slow:
    def __init__(self): self.txt = []; self.n = 0
    def add(self, t): self.txt.append(t)


LOADS = {}
def wq_pieces(P, vsl, s_first, n, label, rot):
    P(f"s_and_b32 s{S_T6}, s{S_G}, 7")
    if rot > 1: P(f"s_mul_i32 s{S_T6}, s{S_T6}, {rot}")
    P(f"s_add_u32 s{S_T5}, s{S_T6}, {n}")
    P(f"s_lshl_b32 s{S_T7}, s{S_J}, 7")
    P(f"{label}:")
    P(f"s_and_b32 s{S_T4}, s{S_T6}, {n-1}")
    P(f"s_add_u32 s{S_T4}, s{S_T4}, s{s_first}")
    P(f"s_mul_i32 s{S_T0}, s{S_T4}, 171")
    P(f"s_lshr_b32 s{S_T0}, s{S_T0}, 12")
    P(f"s_lshl_b32 s{S_T1}, s{S_T4}, 2")
    P(f"s_add_u32 s{S_T0}, s{S_T0}, s{S_T1}")
    P(f"s_lshl_b32 s{S_T0}, s{S_T0}, 8")
    P(f"s_add_u32 m0, s{S_T0}, 0x{SLOT[0]:x}")
    P(f"s_lshl_b32 s{S_T2}, s{S_T4}, 13")
    P(f"s_add_u32 s{S_T2}, s{S_T2}, s{S_T7}")
    P(f"s_add_u32 s{S_T6}, s{S_T6}, 1")
    P(f"buffer_load_dwordx4 v{vsl}, s[{S_WQ}:{S_WQ+3}], s{S_T2} offen lds")
    P.I[-1].kind = "salu"
    P(f"s_cmp_lg_u32 s{S_T6}, s{S_T5}")
    P(f"s_cbranch_scc1 {label}")


def emit_loads(P, l16, vsl, sfx):
    if sfx == "h":
        P(f"s_lshr_b32 s{S_T4}, s{S_J}, 1")
        P(f"s_lshl_b32 s{S_T4}, s{S_T4}, 4")
        P(f"s_mul_i32 s{S_T1}, s{S_W}, 12")
        P(f"s_add_u32 s{S_T4}, s{S_T4}, s{S_T1}")
        P(f"s_add_u32 s{S_T4}, s{S_T4}, 16")
        P(f"s_lshl_b32 s{S_T0}, s{S_G}, 16")
        P(f"s_and_b32 s{S_T6}, s{S_J}, 3")
        P(f"s_mul_i32 s{S_T6}, s{S_T6}, 3")
        P(f"s_mov_b32 s{S_T5}, 12")
        mk_srd(P, S_X, 4, SZ["x"])
        P("LF_ldx1:")
        P(f"s_add_u32 s{S_T1}, s{S_T6}, s{S_T4}")
        P(f"s_and_b32 s{S_T1}, s{S_T1}, 63")
        P(f"s_mul_i32 m0, s{S_T1}, {X_STRIDE}")
        P(f"s_lshl_b32 s{S_T2}, s{S_T1}, 10")
        P(f"s_add_u32 s{S_T2}, s{S_T2}, s{S_T0}")
        P(f"s_add_u32 s{S_T6}, s{S_T6}, 1")
        P(f"s_cmp_eq_u32 s{S_T6}, 12")
        P(f"s_cselect_b32 s{S_T6}, 0, s{S_T6}")
        P(f"buffer_load_dwordx4 v{l16}, s[{S_X}:{S_X+3}], s{S_T2} offen lds", tag="q")
        P(f"s_sub_u32 s{S_T5}, s{S_T5}, 1")
        P(f"s_cmp_lg_u32 s{S_T5}, 0")
        P("s_cbranch_scc1 LF_ldx1")
    else:
        mk_srd(P, S_WQ, 6, SZ["wq"])
        P(f"s_and_b32 s{S_T3}, s{S_W}, 3")
        P(f"s_lshl_b32 s{S_T3}, s{S_T3}, 3")
        wq_pieces(P, vsl, S_T3, 8, "LF_ldq1", 1)
        P(f"s_add_u32 s{S_T3}, s{S_T3}, 24")
        wq_pieces(P, vsl, S_T3, 8, "LF_ldq2", 1)


def prologue_f(P, V, endlabel):
    if STAMP["on"]: P("s_memrealtime s[100:101]")
    P("s_cmp_ge_u32 s2, 256")
    P(f"s_cbranch_scc1 {endlabel}")
    P("s_load_dwordx16 s[4:19], s[0:1], 0")
    P("s_load_dwordx8 s[20:27], s[0:1], 64")
    P("s_load_dwordx2 s[28:29], s[0:1], 96")
    lane = V.alloc("lane"); l16 = V.alloc("l16")
    P(f"v_lshrrev_b32 v1, 6, v0")
    P(f"v_and_b32 v{lane}, 63, v0")
    P(f"v_readfirstlane_b32 s{S_W}, v1")
    P(f"v_lshlrev_b32 v{l16}, 4, v{lane}")
    P(f"s_lshr_b32 s{S_T0}, s2, 3")
    if OPT.get("jrot"): P(f"s_add_u32 s{S_J}, s{S_T0}, {OPT['jrot']}"); P(f"s_and_b32 s{S_J}, s{S_J}, 3")
    else: P(f"s_and_b32 s{S_J}, s{S_T0}, 3")
    P(f"s_and_b32 s{S_T1}, s2, 1")
    P(f"s_lshl_b32 s{S_T1}, s{S_T1}, 2")
    P(f"s_add_u32 s{S_J}, s{S_J}, s{S_T1}")
    P(f"s_and_b32 s{S_G}, s2, 6")
    P(f"s_lshl_b32 s{S_G}, s{S_G}, 2")
    P(f"s_lshr_b32 s{S_T0}, s{S_T0}, 2")
    P(f"s_add_u32 s{S_G}, s{S_G}, s{S_T0}")
    t0 = V.alloc("t0"); t1 = V.alloc("t1")
    vsl = slice_pattern(P, V, lane, t0)
    LOADS["f"] = lambda sfx: emit_loads(P, l16, vsl, sfx)
    P(f"s_and_b32 s{S_TT}, s{S_W}, 1")
    P(f"s_lshl_b32 s{S_TILE}, s{S_G}, 1")
    P(f"s_add_u32 s{S_TILE}, s{S_TILE}, s{S_TT}")
    P(f"s_lshr_b32 s{S_HP}, s{S_W}, 1")
    P(f"s_and_b32 s{S_HP}, s{S_HP}, 1")
    P(f"s_lshr_b32 s{S_KH}, s{S_W}, 2")
    assert all((p * 171) >> 12 == p // 24 for p in range(64)) and SLOT_SZ == 3 * 8192 + 256
    return lane, l16, t0, t1, vsl


def rest_srds(P):
    P(f"s_cmp_eq_u32 s{S_TT}, 0")
    P(f"s_cselect_b32 s{S_WM}, s16, s18")
    P(f"s_cselect_b32 s{S_WM+1}, s17, s19")
    P(f"s_and_b32 s{S_WM+1}, s{S_WM+1}, 0xffff")
    P(f"s_mov_b32 s{S_WM+2}, 0x{SZ['wg']:x}")
    P(f"s_mov_b32 s{S_WM+3}, 0x20000")
    mk_srd(P, S_OUT, 24, SZ["out"])
    mk_srd(P, S_WO, 12, SZ["wo"])
    mk_srd(P, S_WD, 20, SZ["wd"])


def nonce_check(P, SL, vn, vz):
    k = SL.n; SL.n += 1
    P(f"v_readfirstlane_b32 s{S_NONCE}, v{vn}")
    P(f"s_cmp_lg_u32 s{S_NONCE}, 0")
    P(f"s_cbranch_scc1 LR{k}")
    raw(P, f"""{cnt(1+k)}    s_mov_b32 s{S_T7}, 0
LS{k}_l:
    s_sleep 2
    buffer_load_dword v{vn}, v{vz}, s[{S_DBG}:{S_DBG+3}], 0 offen sc1
    s_waitcnt vmcnt(0)
    v_readfirstlane_b32 s{S_NONCE}, v{vn}
    s_add_u32 s{S_T7}, s{S_T7}, 1
    s_cmp_ge_u32 s{S_T7}, 0x{SPIN_MAX:x}
    s_cbranch_scc1 LR{k}
    s_cmp_eq_u32 s{S_NONCE}, 0
    s_cbranch_scc1 LS{k}_l
""")
    P(f"LR{k}:")
    P("s_nop 0")


def flag_load(vf, n, vaddr, soff):
    op = {1: "buffer_load_dword", 4: "buffer_load_dwordx4"}[n]
    return f"{op} {vr(vf,n)}, v{vaddr}, {WSR}, {soff} offen sc1"


def flag_cmp(vf, n, t):
    L = [f"v_xor_b32 v{t}, s{S_NONCE}, v{vf}"]
    for i in range(1, n):
        L += [f"v_xor_b32 v{vf+i}, s{S_NONCE}, v{vf+i}", f"v_or_b32 v{t}, v{t}, v{vf+i}"]
    L += [f"v_cmp_ne_u32 vcc, 0, v{t}"]
    return L


def spin_check(P, SL, loads, cmps, sleep=1):
    k = SL.n; SL.n += 1
    for x in cmps: P(x)
    P(f"s_cbranch_vccz LR{k}")
    nl = "\n    "
    raw(P, f"""{cnt(1+k)}    s_mov_b32 s{S_T7}, 0
LS{k}_l:
    {f"s_sleep {sleep}" if sleep else "s_nop 0"}
    {nl.join(loads)}
    s_waitcnt vmcnt(0)
    {nl.join(cmps)}
    s_add_u32 s{S_T7}, s{S_T7}, 1
    s_cmp_ge_u32 s{S_T7}, 0x{SPIN_MAX:x}
    s_cbranch_scc1 LR{k}
    s_cbranch_vccnz LS{k}_l
""")
    P(f"LR{k}:")


def flag_store(P, vz, t, soff):
    P(f"v_mov_b32 v{t}, s{S_NONCE}")
    P("s_mov_b64 exec, 1")
    P(f"buffer_store_dword v{t}, v{vz}, {WSR}, s{soff} offen sc1", tag="flag")
    P("s_mov_b64 exec, -1")


PROG = MISC + 1024
class SplitBar:
    def __init__(self, P, V, SL, lane, t0):
        self.P, self.SL, self.n = P, SL, 0
        self.va = V.alloc("sba"); self.vr = V.alloc("sbr"); self.one = V.alloc("sb1"); self.vg = V.alloc("sbg")
        P(f"s_lshl_b32 s{S_T0}, s{S_W}, 8")
        P(f"s_add_u32 s{S_T0}, s{S_T0}, 0x{PROG:x}")
        P(f"v_lshlrev_b32 v{t0}, 2, v{lane}")
        P(f"v_add_u32 v{self.va}, s{S_T0}, v{t0}")
        P(f"v_and_b32 v{t0}, 7, v{lane}")
        P(f"v_mul_u32_u24 v{t0}, 260, v{t0}")
        P(f"v_add_u32 v{self.vr}, 0x{PROG:x}, v{t0}")
        P(f"v_mov_b32 v{self.one}, 0")
        P(f"ds_write_b32 v{self.va}, v{self.one}")
        P(f"v_mov_b32 v{self.one}, 1")
    def arrive(self):
        self.n += 1
        self.P(f"ds_add_u32 v{self.va}, v{self.one}")
    def peek(self): self.P(f"ds_read_b32 v{self.vg}, v{self.vr}")
    def check(self):
        k = self.SL.n; self.SL.n += 1
        self.P(f"v_cmp_gt_u32 vcc, {self.n}, v{self.vg}")
        self.P(f"s_cbranch_vccz LR{k}")
        self.P(f"LS{k}:")
        for t in ([f"s_sleep {OPT['ssl']}"] if OPT.get("ssl") else []) + [f"ds_read_b32 v{self.vg}, v{self.vr}", "s_waitcnt lgkmcnt(0)", f"v_cmp_gt_u32 vcc, {self.n}, v{self.vg}", f"s_cbranch_vccnz LS{k}"]:
            self.P(t); self.P.I[-1].kind = "salu"; self.P.I[-1].vw = set(); self.P.I[-1].vr = set()
        self.P(f"LR{k}:")


def attn_setup(P, V, lane, l16, t0, t1):
    A = {}
    P(f"s_lshl_b32 s{S_T1}, s{S_KH}, 12")
    vk = V.alloc("vk"); vv = [V.alloc("vv0"), V.alloc("vv1")]
    P(f"s_add_u32 s{S_T1}, s{S_T1}, 0x{KV_RING:x}")
    P(f"v_add_u32 v{vk}, s{S_T1}, v{l16}")
    P(f"v_lshrrev_b32 v{t0}, 5, v{lane}")
    P(f"v_lshlrev_b32 v{t0}, 8, v{t0}")
    P(f"v_and_b32 v{t1}, 15, v{lane}")
    P(f"v_lshl_add_u32 v{t0}, v{t1}, 4, v{t0}")
    P(f"v_and_b32 v{t1}, 16, v{lane}")
    P(f"v_cmp_eq_u32 vcc, 0, v{t1}")
    P(f"s_add_u32 s{S_T1}, s{S_T1}, 2048")
    for s in range(2):
        P(f"v_mov_b32 v{t1}, s{S_T1}")
        P(f"v_add_u32 v{t1}, {8192*s}, v{t1}")
        P(f"v_mov_b32 v{vv[s]}, 0x{ONES:x}")
        P(f"v_cndmask_b32 v{vv[s]}, v{t1}, v{vv[s]}, vcc")
        P(f"v_add_u32 v{vv[s]}, v{vv[s]}, v{t0}")
    P(f"s_lshl_b32 s{S_KVOFF}, s{S_KH}, 15")
    P(f"s_lshl_b32 s{S_T1}, s{S_HP}, 16")
    P(f"s_add_u32 s{S_KVOFF}, s{S_KVOFF}, s{S_T1}")
    P(f"s_lshl_b32 s{S_T1}, s{S_TT}, 10")
    P(f"s_add_u32 s{S_KVOFF}, s{S_KVOFF}, s{S_T1}")
    P(f"s_lshl_b32 s{S_KVLDS}, s{S_W}, 10")
    P(f"s_add_u32 s{S_KVLDS}, s{S_KVLDS}, 0x{KV_RING:x}")
    A.update(vk=vk, vv=vv)
    A["S"] = [V.alloc("Sa", 16), V.alloc("Sb", 16)]
    A["O"] = [V.alloc("Oa", 16), V.alloc("Ob", 16)]
    A["fk"] = V.alloc("fk", 4); A["fv"] = [V.alloc("fv1", 4), V.alloc("fv2", 4)]
    A["q"] = V.alloc("qf", 8)
    return A


def kv_dma(P, l16, c):
    dma(P, l16, S_WS, f"s{S_T2}", (S_KVLDS, 8192 * (c & 1)), tag=f"kv{c}", mods=SC1, pre=[f"s_add_u32 s{S_T2}, s{S_KVOFF}, {2048*c}"])


def attention(P, A, l16, its, hook, prio, kvf=None, bb=1):
    S, O, fk, fv = A["S"], A["O"], A["fk"], A["fv"]
    SB = OPT.get("sb", 0)
    q = [A["q"], A["q"] + 4]
    def rdK(it): P(f"ds_read_b128 {vr(fk,4)}, v{A['vk']} offset:{((it>>1)&1)*8192 + (it&1)*1024}")
    def rdV(it, half):
        m = OPT.get("vmask", 1) and it > 0
        if m: P(f"s_mov_b64 exec, s[{S_VM}:{S_VM+1}]")
        P(f"ds_read_b128 {vr(fv[half],4)}, v{A['vv'][(it>>1)&1]} offset:{(it&1)*1024 + half*512}")
        if m: P("s_mov_b64 exec, -1")
    E = lambda x, i: P(f"v_exp_f32 v{S[x]+i}, v{S[x]+i}")
    def C(x, i):
        b = S[x] + (8 if i >= 4 else 0); k = i & 3
        P(f"v_cvt_pk_bf16_f32 v{b+k}, v{b+2*k}, v{b+2*k+1}")
    for it in its:
        if it == 0:
            if OPT.get("vmask", 1): P(f"s_mov_b32 s{S_VM}, 0xffff0000"); P(f"s_mov_b32 s{S_VM+1}, 0xffff0000")
            rdK(0); rdV(0, 0)
            hook(0, 0, "start")
            P(mfma(S[0], fk, q[0]))
        for x in range(2):
            H = lambda pos: hook(it, x, pos)
            E(x, 0); E(x, 1)
            if x == 0:
                if it > 0: P(mfma(O[1], fv[1], S[1] + 8, O[1]))
                rdV(it, 1)
            else:
                P(mfma(O[0], fv[1], S[0] + 8, O[0]))
            H("pv2")
            E(x, 2); E(x, 3); H("g1")
            E(x, 4); E(x, 5); H("g2")
            E(x, 6); E(x, 7)
            if bb:
                H("g3")
                for i in range(4): C(x, i)
            if x == 0: P(mfma(S[1], fk, q[1]))
            elif it < 31: P(mfma(S[0], fk, q[0]))
            H("qk")
            sig = (x == 0 and (it & 1) and it < 31)
            syn = sig or (x == 0 and hook(it, x, "sync?"))
            ORD = OPT.get("ord", 2) if syn else 0
            if bb:
                E(x, 8); E(x, 9); H("g4")
                E(x, 10); E(x, 11)
                if ORD == 2: P(mfma(O[x], fv[0], S[x], None if it == 0 else O[x]))
            else:
                for i in range(4): C(x, i)
                if ORD == 0: H("g3")
                E(x, 8); E(x, 9)
                if ORD == 2: P(mfma(O[x], fv[0], S[x], None if it == 0 else O[x])); H("g3")
            if syn:
                H("pre0")
                if sig: P.wait_tag(f"kv{(it>>1)+1}")
                H("pre")
                P.wait_lgkm_all()
                P("s_barrier")
            if ORD != 2: P(mfma(O[x], fv[0], S[x], None if it == 0 else O[x]))
            p = prio(it, x)
            if p is not None: P(f"s_setprio {p}")
            if x == 0:
                if it < 31: rdK(it + 1)
                if (it & 1) and (it >> 1) + 2 < 16: (kvf or (lambda c: kv_dma(P, l16, c)))((it >> 1) + 2)
                if syn: hook(it, 0, "chk")
            else:
                if it < 31: rdV(it + 1, 0)
            H("pv1")
            if not bb: E(x, 10); E(x, 11); H("g4")
            E(x, 12); E(x, 13); H("g5")
            E(x, 14); E(x, 15); H("g6")
            for i in range(4, 8): C(x, i)
        if it == 31: P(mfma(O[1], fv[1], S[1] + 8, O[1]))


def fin_dma_w1(P, vsl, st, slot, tag, i):
    srd, u0 = (S_WD, 8 * st) if st < 11 else (S_WO, 8 * (st - 11))
    dma(P, vsl, srd, f"s{S_T2}", (S_FL2, slot + 1024 * i), tag=tag, pre=[f"s_add_u32 s{S_T2}, s{S_FW}, 0x{(16*u0 + 8*i)*1024:x}"])


def fin_dma_w2(P, vsl, st, slot, tag, i, other):
    dma(P, vsl, S_WD, f"s{S_T2}", (S_FL2, (slot + 1024 * i - 8192 * other) & 0xffffffff), tag=tag,
        pre=[f"s_add_u32 s{S_T2}, s{S_FW}, 0x{((128*st + 8*i)*1024 - 65536*other) & 0xffffffff:x}"])


def fin_dma_b1(P, l16, st, slot, tag, t):
    P(f"s_add_u32 s{S_T2}, s{S_FB}, 0x{(t*118 + 8*st)*1024:x}")
    if st == 10:
        P(f"s_cmp_lt_u32 s{S_W}, 6")
        P(f"s_cselect_b32 s{S_T2}, s{S_T2}, 0x{OOB:x}")
    dma(P, l16, S_WS, f"s{S_T2}", (S_FL, slot + 16384 + 8192 * t), tag=tag, mods=SC1)


def kernel_F():
    P = Prog(); V = Regs(2, 255, "v"); SL = Slow()
    NP = OPT.get("np", 1)
    JIT = 16 - NP
    GPP = OPT.get("gpp", 2)
    UNI = OPT.get("uni", JIT + 2)
    HF = OPT.get("hf", UNI | 1)
    lane, l16, t0, t1, vsl = prologue_f(P, V, "LF_end")
    vz = V.alloc("vz")
    P(f"s_cmp_lg_u32 s{S_W}, 7")
    P("s_cbranch_scc1 LF_not7")
    P(f"s_lshr_b32 s{S_T4}, s{S_J}, 1")
    P(f"s_lshl_b32 s{S_T0}, s{S_G}, 16")
    P(f"s_lshl_b32 s{S_T2}, s{S_T4}, 14")
    P(f"s_add_u32 s{S_T2}, s{S_T2}, s{S_T0}")
    P(f"s_mul_i32 m0, s{S_T4}, {16*X_STRIDE}")
    P(f"s_and_b32 s{S_T3}, s{S_J}, 1")
    P(f"s_mov_b32 s{S_T5}, 0")
    P("s_waitcnt lgkmcnt(0)")
    mk_srd(P, S_X, 4, SZ["x"])
    if OPT.get("u7", 1):
        P(f"s_sub_u32 s{S_X}, s{S_X}, 64")
        P(f"s_subb_u32 s{S_X+1}, s{S_X+1}, 0")
        P(f"s_mov_b32 s{S_X+2}, 0x{SZ['x'] + 64:x}")
        P(f"s_add_u32 s{S_T2}, s{S_T2}, 64")
        for g in range(4):
            for k in range(4):
                if k == 0:
                    if g: P(f"s_add_u32 m0, m0, {4*X_STRIDE}"); P(f"s_add_u32 s{S_T2}, s{S_T2}, {4096 + 48}")
                else: P(f"s_sub_u32 s{S_T2}, s{S_T2}, 16")
                P(f"buffer_load_dwordx4 v{l16}, s[{S_X}:{S_X+3}], s{S_T2} offen offset:{X_STRIDE*k} lds", tag="c")
    else:
        P("LF_ldx7:")
        P(f"buffer_load_dwordx4 v{l16}, s[{S_X}:{S_X+3}], s{S_T2} offen lds", tag="c")
        P(f"s_add_u32 m0, m0, {X_STRIDE}")
        P(f"s_add_u32 s{S_T2}, s{S_T2}, 1024")
        P(f"s_add_u32 s{S_T5}, s{S_T5}, 1")
        P(f"s_cmp_lg_u32 s{S_T5}, 16")
        P("s_cbranch_scc1 LF_ldx7")
    P(f"s_cmp_eq_u32 s{S_T3}, 0")
    P(f"s_cselect_b32 s{S_WKV}, s8, s10")
    P(f"s_cselect_b32 s{S_WKV+1}, s9, s11")
    P(f"s_and_b32 s{S_WKV+1}, s{S_WKV+1}, 0xffff")
    P(f"s_mov_b32 s{S_WKV+2}, 0x{SZ['wk']:x}")
    P(f"s_mov_b32 s{S_WKV+3}, 0x20000")
    P(f"s_mov_b32 m0, 0x{WKV_L:x}")
    P(f"s_mov_b32 s{S_T5}, 0")
    P("LF_ldw7:")
    for i in range(4):
        P(f"buffer_load_dwordx4 v{l16}, s[{S_WKV}:{S_WKV+3}], s{S_T5} offen offset:{1024*i} lds")
        P.I[-1].kind = "salu"
    P(f"s_add_u32 m0, m0, 4096")
    P(f"s_add_u32 s{S_T5}, s{S_T5}, 4096")
    P(f"s_cmp_lg_u32 s{S_T5}, 16384")
    P("s_cbranch_scc1 LF_ldw7")
    stamp(P, 15)
    P("s_barrier")
    P("LF_not7:")
    P("s_waitcnt lgkmcnt(0)")
    if OPT.get("cpf", 1):
        c = V.alloc("cpf")
        P(f"s_getpc_b64 s[{S_EX}:{S_EX+1}]")
        P("LF_pc0:")
        P(f"s_lshr_b32 s{S_T3}, s2, 3")
        P(f"s_lshl_b32 s{S_T3}, s{S_T3}, 3")
        P(f"s_add_u32 s{S_T3}, s{S_T3}, s{S_W}")
        P(f"s_lshl_b32 s{S_T3}, s{S_T3}, 8")
        P(f"v_lshlrev_b32 v{c}, 7, v{lane}")
        P(f"v_add_u32 v{c}, s{S_T3}, v{c}")
        P(f"v_min_u32 v{c}, LF_last-LF_pc0, v{c}")
        P("s_mov_b64 exec, 3")
        P(f"global_load_dword v{c}, v{c}, s[{S_EX}:{S_EX+1}]", tag="cpf")
        P("s_mov_b64 exec, -1")
    P(f"v_mov_b32 v{vz}, 0")
    if OPT.get("cnt"): P("s_mov_b32 s85, 0")
    mk_srd(P, S_WS, 28, SZ["ws"])
    mk_srd(P, S_DBG, 26, SZ["dbg"])
    vn = V.alloc("vn")
    P(f"s_or_b32 s{S_T0}, s2, s{S_W}")
    P(f"s_cmp_lg_u32 s{S_T0}, 0")
    P("s_cbranch_scc1 LF_non")
    P.cond_begin()
    P(f"s_memrealtime s[{S_EX}:{S_EX+1}]")
    P("s_waitcnt lgkmcnt(0)")
    P(f"s_mul_i32 s{S_EX+1}, s{S_EX+1}, 0x9e3779b1")
    P(f"s_xor_b32 s{S_EX}, s{S_EX}, s{S_EX+1}")
    P(f"s_or_b32 s{S_EX}, s{S_EX}, 1")
    P(f"v_mov_b32 v{t0}, s{S_EX}")
    P("s_mov_b64 exec, 1")
    P(f"buffer_store_dword v{t0}, v{vz}, s[{S_DBG}:{S_DBG+3}], 0 offen sc1")
    P("s_mov_b64 exec, -1")
    P.cond_end()
    P("LF_non:")
    P_main = P; P = Prog()
    rest_srds(P)
    mk_srd(P, S_GW, 22, SZ["gw"])
    P(f"s_mov_b32 s{S_C1}, {hexf(2.0**120)}")
    A = attn_setup(P, V, lane, l16, t0, t1)
    qf = A["q"]; O = A["O"]; S = A["S"]
    A["sb"] = SplitBar(P, V, SL, lane, t0) if OPT.get("sb", 0) else type("X", (), dict(n=0))()
    vfl = V.alloc("vfl", 4)
    P(f"s_lshl_b32 s{S_T0}, s{S_HP}, 1")
    P(f"s_add_u32 s{S_T0}, s{S_T0}, s{S_KH}")
    P(f"s_lshl_b32 s{S_T1}, s{S_J}, 2")
    P(f"s_add_u32 s{S_T0}, s{S_T0}, s{S_T1}")
    P(f"s_mul_i32 s{S_T1}, s{S_TILE}, 118")
    P(f"s_add_u32 s{S_T0}, s{S_T0}, s{S_T1}")
    P(f"s_lshl_b32 s{S_T0}, s{S_T0}, 10")
    P(f"s_add_u32 s{S_OD}, s{S_T0}, 0x{WS_OH + 86*1024:x}")
    def poison():
        return
        for r in range(4): P(f"v_mov_b32 v{O[0]+r}, -1")
        P(f"buffer_store_dwordx4 {vr(O[0],4)}, v{l16}, {WSR}, s{S_OD} offen sc1", tag="poison")
    P(f"s_lshr_b32 s{S_T0}, s{S_W}, 1")
    P(f"s_lshl_b32 s{S_T0}, s{S_T0}, 3")
    P(f"s_add_u32 s{S_T0}, s{S_T0}, s{S_T1}")
    P(f"s_lshl_b32 s{S_T0}, s{S_T0}, 10")
    P(f"s_add_u32 s{S_OL}, s{S_T0}, 0x{WS_OH + 86*1024:x}")
    P(f"s_lshl_b32 s{S_FP}, s{S_G}, 10")
    P(f"s_lshl_b32 s{S_FS}, s{S_J}, 5")
    P(f"s_add_u32 s{S_FS}, s{S_FS}, s{S_W}")
    P(f"s_lshl_b32 s{S_FS}, s{S_FS}, 2")
    P(f"s_add_u32 s{S_FS}, s{S_FS}, s{S_FP}")
    P(f"s_add_u32 s{S_FS}, s{S_FS}, 0x{FL_H:x}")
    P(f"s_add_u32 s{S_FP}, s{S_FP}, 0x{FL_H:x}")
    P(f"s_lshl_b32 s{S_FW}, s{S_W}, 14")
    P(f"s_lshl_b32 s{S_T1}, s{S_J}, 7")
    P(f"s_add_u32 s{S_FW}, s{S_FW}, s{S_T1}")
    P(f"s_lshl_b32 s{S_FL2}, s{S_W}, 11")
    P(f"s_mul_i32 s{S_U0}, s{S_J}, 11")
    P(f"s_min_u32 s{S_U0}, s{S_U0}, 76")
    P(f"s_cmp_ge_u32 s{S_J}, 6")
    P(f"s_cselect_b32 s{S_NU}, 10, 11")
    vxa = xfrag_addr(P, V, "vxa", lane, t0, S_TT)
    vq = V.alloc("vq")
    P(f"s_and_b32 s{S_T0}, s{S_W}, 3")
    P(f"s_lshl_b32 s{S_T1}, s{S_T0}, 11")
    P(f"s_add_u32 s{S_T1}, s{S_T1}, 0x{QSCR:x}")
    P(f"v_add_u32 v{vq}, s{S_T1}, v{l16}")
    COMMON = P.I; P = P_main
    def emit(L):
        for x in L: P(x.text, tag=x.tag)
    iw = next(i for i, x in enumerate(COMMON) if x.text.startswith(f"s_mov_b32 s{S_WM+3},")) + 1
    iu = next(i for i, x in enumerate(COMMON) if x.text.startswith(f"s_mul_i32 s{S_U0},"))
    C_EARLY = COMMON[:iw] + COMMON[iu:iu + 4]; C_LATE = COMMON[iw:iu] + COMMON[iu + 4:]
    acc = [[V.alloc(f"acc{i}{t}", 16) for t in range(2)] for i in range(3)]
    fx = [[V.alloc(f"fx{b}{t}", 4) for t in range(2)] for b in range(2)]
    fw = [[V.alloc(f"fw{b}{i}", 4) for i in range(3)] for b in range(2)]
    S_PFB = 19
    def capture(f):
        nonlocal P
        P0 = P; P = Prog(); f(); L = P.I; P = P0
        return L
    R = {}
    def f1():
        vtn = tr_slice_addr(P, V, "vtn", lane, t0, t1, SLOT[0], S_HP, 8)
        vpf = V.alloc("vpf"); vpd = V.alloc("vpd"); vpw = V.alloc("vpw")
        P(f"v_bfe_u32 v{t0}, v{lane}, 4, 1")
        P(f"v_lshrrev_b32 v{t1}, 5, v{lane}")
        P(f"v_lshl_add_u32 v{t0}, v{t1}, 7, v{t0}")
        P(f"v_mul_u32_u24 v{vpf}, 2752, v{t0}")
        P(f"v_and_b32 v{t0}, 15, v{lane}")
        P(f"v_lshl_add_u32 v{vpf}, v{t0}, 7, v{vpf}")
        P(f"v_cmp_gt_u32 vcc, 12, v{t0}")
        P(f"v_mov_b32 v{t1}, 0x{OOB:x}")
        P(f"v_cndmask_b32 v{vpf}, v{t1}, v{vpf}, vcc")
        P(f"s_lshr_b32 s{S_T0}, s2, 3")
        P(f"s_lshl_b32 s{S_T0}, s{S_T0}, 1")
        P(f"s_add_u32 s{S_T0}, s{S_T0}, s{S_HP}")
        P(f"s_mul_i32 s{S_T0}, s{S_T0}, {2*2752}")
        P(f"s_and_b32 s{S_T1}, s2, 1")
        P(f"s_mul_i32 s{S_T1}, s{S_T1}, {44*32}")
        P(f"s_add_u32 s{S_PFB}, s{S_T0}, s{S_T1}")
        R.update(vtn=vtn, vpf=vpf, vpd=vpd, vpw=vpw)
    def f2():
        vx0 = V.alloc("vx0")
        P(f"s_mul_i32 s{S_T0}, s{S_TT}, {32*X_STRIDE}")
        P(f"v_subrev_u32 v{vx0}, s{S_T0}, v{vxa}")
        P(f"s_lshl_b32 s{S_T4}, s{S_W}, 1")
        wtr = w_tr_addrs(P, V, lane, t0, t1, s_w=S_T4)
        R.update(vx0=vx0, wtr=wtr)
    def f3():
        P(f"s_mul_i32 s{S_T0}, s{S_W}, 3")
        P(f"s_mul_i32 s{S_T1}, s{S_G}, 236")
        P(f"s_add_u32 s{S_T1}, s{S_T1}, s{S_U0}")
        for i in range(3):
            P(f"s_add_u32 s{S_T2}, s{S_T0}, {i}")
            P(f"s_add_u32 s{SH[i]}, s{S_T1}, s{S_T2}")
            P(f"s_lshl_b32 s{SH[i]}, s{SH[i]}, 10")
            P(f"s_add_u32 s{SH[i]}, s{SH[i]}, 0x{WS_OH:x}")
            P(f"s_cmp_lt_u32 s{S_T2}, s{S_NU}")
            P(f"s_cselect_b32 s{SH[i]}, s{SH[i]}, 0x{OOB:x}")
    def f4():
        vpw = R["vpw"]
        S_PFS = S_WKV
        P(f"s_lshr_b32 s{S_T0}, s2, 3")
        P(f"s_lshl_b32 s{S_T0}, s{S_T0}, 2")
        P(f"s_add_u32 s{S_T0}, s{S_T0}, s{S_W}")
        P(f"s_cmp_lt_u32 s{S_T0}, 86")
        P(f"s_cselect_b32 s{S_PFS}, s{S_WD}, s{S_WO}")
        P(f"s_cselect_b32 s{S_PFS+1}, s{S_WD+1}, s{S_WO+1}")
        P(f"s_cselect_b32 s{S_PFS+2}, s{S_WD+2}, s{S_WO+2}")
        P(f"s_cselect_b32 s{S_T1}, 0, 86")
        P(f"s_mov_b32 s{S_PFS+3}, 0x20000")
        P(f"s_sub_u32 s{S_T0}, s{S_T0}, s{S_T1}")
        P(f"s_lshl_b32 s{S_T0}, s{S_T0}, 14")
        P(f"s_and_b32 s{S_T1}, s2, 1")
        P(f"s_lshl_b32 s{S_T1}, s{S_T1}, 9")
        P(f"s_add_u32 s{S_T0}, s{S_T0}, s{S_T1}")
        P(f"v_lshrrev_b32 v{t0}, 2, v{lane}")
        P(f"v_lshlrev_b32 v{t0}, 10, v{t0}")
        P(f"v_and_b32 v{t1}, 3, v{lane}")
        P(f"v_lshl_add_u32 v{t0}, v{t1}, 7, v{t0}")
        P(f"v_add_u32 v{vpw}, s{S_T0}, v{t0}")
    ix = next(i for i, x in enumerate(COMMON) if x.text.startswith(f"v_and_b32 v{t0}, 31, v{lane}"))
    ia = next(i for i, x in enumerate(COMMON) if x.text.startswith(f"s_mov_b32 s{S_C1},")) + 1
    io = next(i for i, x in enumerate(COMMON) if x.text.startswith(f"s_lshl_b32 s{S_T0}, s{S_HP}, 1"))
    ifl = next(i for i, x in enumerate(COMMON) if x.text.startswith(f"s_lshl_b32 s{S_FP},"))
    H_PRE = COMMON[ix:ix + 6] + COMMON[:iw] + capture(f1)
    H_MID = COMMON[ia:io] + COMMON[ix + 6:] + capture(f2) + COMMON[io:ifl]
    H_LATE = [COMMON[iw:iw + 8], COMMON[iw + 8:ia], COMMON[ifl:iu], COMMON[iu:iu + 4]]
    sh = capture(f3); H_LATE += [sh[:9], sh[9:15], sh[15:]]
    wp = capture(f4); H_LATE += [wp[:14], wp[14:]]
    vtn, vpf, vpd, vpw, vx0, wtr = (R[k] for k in ("vtn", "vpf", "vpd", "vpw", "vx0", "wtr"))
    S_PFS = S_WKV
    def pf(blk, half):
        P(f"s_add_u32 s{S_T4}, s{S_PFB}, {128*2752*blk}")
        if half: P("s_mov_b64 exec, 0xffffffff")
        P(f"buffer_load_dword v{vpd}, v{vpf}, s[{S_WM}:{S_WM+3}], s{S_T4} offen", tag="pf")
        P.I[-1].vw = set()
        if half: P("s_mov_b64 exec, -1")
    PF = OPT.get("pf", 1)
    KT = 192; vx16 = 240; vw16 = 241; vst = 242; S_K5, S_K6 = S_T5, S_T6
    P(f"s_cmp_lg_u32 s{S_W}, 7")
    P("s_cbranch_scc1 LF_not7b")
    P.cond_begin()
    P(f"s_lshr_b32 s{S_T0}, s{S_J}, 1")
    P(f"s_lshl_b32 s{S_T1}, s{S_T0}, 4")
    P(f"v_and_b32 v{t0}, 15, v{lane}")
    P(f"v_add_u32 v{t1}, s{S_T1}, v{t0}")
    P(f"v_mul_u32_u24 v{vx16}, {X_STRIDE}, v{t1}")
    P(f"v_lshrrev_b32 v{t1}, 4, v{lane}")
    P(f"v_lshl_add_u32 v{vx16}, v{t1}, 4, v{vx16}")
    P(f"v_lshlrev_b32 v{vw16}, 8, v{t1}")
    P(f"v_lshl_add_u32 v{vw16}, v{t0}, 3, v{vw16}")
    P(f"v_add_u32 v{vw16}, 0x{WKV_L:x}, v{vw16}")
    P(f"s_and_b32 s{S_K6}, s{S_J}, 1")
    P(f"s_cmp_eq_u32 s{S_K6}, 0")
    P(f"s_cselect_b32 s{S_T3}, 9, 8")
    P(f"s_cselect_b32 s{S_T4}, 8, 9")
    P(f"s_cselect_b32 s{S_K5}, 0x{WS_KF:x}, 0x{WS_VF:x}")
    P(f"v_lshlrev_b32 v{vst}, 4, v{t0}")
    P(f"v_lshrrev_b32 v{t0}, 1, v{t1}")
    P(f"v_lshl_add_u32 v{vst}, v{t0}, 3, v{vst}")
    P(f"v_and_b32 v{t0}, 1, v{t1}")
    P(f"v_lshlrev_b32 v{t0}, s{S_T3}, v{t0}")
    P(f"v_add_u32 v{vst}, v{vst}, v{t0}")
    P(f"s_and_b32 s{S_T1}, s{S_T0}, 1")
    P(f"s_lshl_b32 s{S_T1}, s{S_T1}, s{S_T4}")
    P(f"s_add_u32 s{S_K5}, s{S_K5}, s{S_T1}")
    P(f"s_lshr_b32 s{S_T0}, s{S_T0}, 1")
    P(f"s_lshl_b32 s{S_T1}, s{S_G}, 1")
    P(f"s_add_u32 s{S_T0}, s{S_T0}, s{S_T1}")
    P(f"s_lshl_b32 s{S_T0}, s{S_T0}, 10")
    P(f"s_add_u32 s{S_K5}, s{S_K5}, s{S_T0}")
    P("s_waitcnt vmcnt(0)")
    P(f"buffer_load_dword v{vn}, v{vz}, s[{S_DBG}:{S_DBG+3}], 0 offen sc1")
    def kv16(which):
        d = KT
        xb = [(KT+16) + 4 * i for i in range(4)]; wb = [(KT+32) + 4 * i for i in range(4)]
        def ld(ks):
            P(f"ds_read_b128 {vr(xb[ks%4],4)}, v{vx16} offset:{ks*64}")
            P(f"ds_read_b64_tr_b16 {vr(wb[ks%4],2)}, v{vw16} offset:{ks*1024}")
            P(f"ds_read_b64_tr_b16 {vr(wb[ks%4]+2,2)}, v{vw16} offset:{ks*1024+128}")
        for ks in range(3): ld(ks)
        for ks in range(16):
            a, b = (wb[ks%4], xb[ks%4]) if which == 0 else (xb[ks%4], wb[ks%4])
            P(f"v_mfma_f32_16x16x32_bf16 {vr(d,4)}, {vr(a,4)}, {vr(b,4)}, {vr(d,4) if ks else 0}")
            if ks + 3 < 16: ld(ks + 3)
        if which == 0:
            P(f"s_mov_b32 s{S_T0}, {hexf(QK_SCALE)}")
            for r in range(4): P(f"v_mul_f32 v{d+r}, s{S_T0}, v{d+r}")
    P(f"s_cmp_eq_u32 s{S_K6}, 1")
    P("s_cbranch_scc1 LF_vch")
    P.cond_begin(); kv16(0); P.cond_end()
    P("s_branch LF_kvj")
    P("LF_vch:")
    P.cond_begin(); kv16(1); P.cond_end()
    P("LF_kvj:")
    for r in range(2): P(f"v_cvt_pk_bf16_f32 v{KT+4+r}, v{KT+2*r}, v{KT+2*r+1}")
    P(f"buffer_store_dwordx2 {vr(KT+4,2)}, v{vst}, {WSR}, s{S_K5} offen sc1")
    FB2 = OPT.get("fb2", 0)
    def w7flag():
        P(f"s_lshl_b32 s{S_T0}, s{S_G}, 3")
        P(f"s_add_u32 s{S_T0}, s{S_T0}, s{S_J}")
        P(f"s_lshl_b32 s{S_T0}, s{S_T0}, 2")
        P(f"s_add_u32 s{S_T0}, s{S_T0}, 0x{FL_KV:x}")
        P("s_waitcnt vmcnt(0)")
        nonce_check(P, SL, vn, vz)
        flag_store(P, vz, t0, S_T0)
    if not FB2: w7flag()
    def pf7():
        P(f"v_lshrrev_b32 v{t0}, 4, v{lane}")
        P(f"v_mul_u32_u24 v{vx16}, 2752, v{t0}")
        P(f"v_and_b32 v{t0}, 15, v{lane}")
        P(f"v_lshl_add_u32 v{vx16}, v{t0}, 7, v{vx16}")
        P(f"v_cmp_gt_u32 vcc, 12, v{t0}")
        P(f"v_mov_b32 v{t1}, 0x{OOB:x}")
        P(f"v_cndmask_b32 v{vx16}, v{t1}, v{vx16}, vcc")
        P(f"s_lshr_b32 s{S_T0}, s2, 3")
        P(f"s_mul_i32 s{S_T0}, s{S_T0}, {4*2752}")
        P(f"s_and_b32 s{S_T1}, s2, 1")
        P(f"s_mul_i32 s{S_T1}, s{S_T1}, {44*32}")
        P(f"s_add_u32 s{S_T0}, s{S_T0}, s{S_T1}")
        for m in range(2):
            mk_srd(P, S_WKV, 16 + 2 * m, SZ["wg"])
            P(f"buffer_load_dword v{fx[0][0]+m}, v{vx16}, s[{S_WKV}:{S_WKV+3}], s{S_T0} offen")
    if OPT.get("pf7", 1) == 1: pf7()
    stamp(P, 1)
    P("s_barrier")
    stamp(P, 2)
    if OPT.get("pf7", 1) == 2: pf7()
    if FB2 == 1: w7flag()
    P("s_barrier")
    if FB2 == 2: w7flag()
    P.cond_end(nowait=True)
    P("s_branch LF_light")
    P("LF_not7b:")
    P(f"s_cmp_lg_u32 s{S_KH}, 0")
    P("s_cbranch_scc1 LF_l0")

    def sigstamp(it, k):
        if OPT.get("sig"):
            P(f"s_memtime s[98:99]"); P("s_waitcnt lgkmcnt(0)"); P(f"v_writelane_b32 v{vsig}, s98, {2*it+k}")
    vsig = V.alloc("vsig") if OPT.get("sig") else None

    P.cond_begin()
    emit(H_PRE)
    stamp(P, 15)
    P("s_barrier")
    stamp(P, 0)
    LOADS["f"]("h")
    stamp(P, 1)
    if PF & 4: pf(0, True)
    P.wait_tag("q")
    P("s_barrier")
    stamp(P, 2)
    if PF & 2: pf(0, True)
    QD = 6
    xb = [acc[1][0] + 4 * i for i in range(QD)]; wb = [acc[2][0] + 4 * i for i in range(QD)]
    assert acc[1][1] == acc[1][0] + 16 and acc[2][1] == acc[2][0] + 16
    def q_loads(ks):
        o = SLOT[ks // 12] - SLOT[0] + (ks % 12) * 2048
        P(f"ds_read_b128 {vr(xb[ks%QD],4)}, v{vxa} offset:{ks*32}")
        P(f"ds_read_b64_tr_b16 {vr(wb[ks%QD],2)}, v{vtn} offset:{o}")
        P(f"ds_read_b64_tr_b16 {vr(wb[ks%QD]+2,2)}, v{vtn} offset:{o+512}")
    for ks in range(QD - 1): q_loads(ks)
    for ks in range(32):
        P(mfma(acc[0][0], wb[ks%QD], xb[ks%QD], acc[0][0] if ks else None))
        if ks in (11, 23):
            stamp(P, 11 if ks == 11 else 13)
            P("s_barrier")
        if ks + QD - 1 in (12, 24): P("s_barrier")
        if ks + QD - 1 < 32: q_loads(ks + QD - 1)
        nf = -(-len(H_MID) // 28)
        emit(H_MID[ks * nf:(ks + 1) * nf])
        if ks == OPT.get("pk", 30):
            P(f"s_mov_b32 s{S_T5}, 0x{FL_KV:x}")
            P(f"buffer_load_dword v{vn}, v{vz}, s[{S_DBG}:{S_DBG+3}], 0 offen sc1")
            P(flag_load(vfl, 4, l16, f"s{S_T5}"))
    for r in range(8): P(f"v_cvt_pk_bf16_f32 v{qf+r}, v{acc[0][0]+2*r}, v{acc[0][0]+2*r+1}")
    P(f"ds_write_b128 v{vq}, {vr(qf,4)}")
    P(f"ds_write_b128 v{vq}, {vr(qf+4,4)} offset:1024")
    def kv_check():
        nonce_check(P, SL, vn, vz)
        spin_check(P, SL, [flag_load(vfl, 4, l16, f"s{S_T5}")], flag_cmp(vfl, 4, t0), sleep=OPT.get("ksl", 6))
        kv_dma(P, l16, 0)
        dma(P, l16, S_WS, f"s{S_T2}", (S_KVLDS, 4096), tag="kv0", mods=SC1, pre=[f"s_add_u32 s{S_T2}, s{S_T2}, 32768"])
    if not OPT.get("kl", 1): kv_check()
    def gu_reads(ks):
        s, kk = ks // 2, ks % 2
        so = SLOT[s % 3] - SLOT[0] + kk * 6144
        L = [f"ds_read_b128 {vr(fx[ks%2][0],4)}, v{vx0} offset:{ks*32}"]
        for i in range(3):
            f = fw[ks % 2][i]
            L += [f"ds_read_b64_tr_b16 {vr(f,2)}, v{wtr[i]} offset:{so}", f"ds_read_b64_tr_b16 {vr(f+2,2)}, v{wtr[i]} offset:{so+1536}"]
            if i == 0: L.append(f"ds_read_b128 {vr(fx[ks%2][1],4)}, v{vx0} offset:{ks*32 + 32*X_STRIDE}")
        return L
    def gu_groups(ks, late=False):
        R = gu_reads(ks + 1) if ks < 31 else []
        if OPT.get("abl_hds") and ks >= 2 * NP - 1: R = []
        G = []
        for m in range(6):
            i, t = m // 2, m % 2
            mm = [mfma(acc[i][t], fw[ks % 2][i], fx[ks % 2][t], acc[i][t] if ks else None)]
            if OPT.get("abl_hm") and ks >= 2 * NP - 1: mm = []
            G.append(mm + (R[2 * m: 2 * m + 2] if not late else ([] if m < 3 else R[3 * (m - 3): 3 * (m - 3) + 3])))
        return G
    P.wait_lgkm_all()
    stamp(P, 14)
    P("s_barrier")
    stamp(P, 3)
    for x in gu_reads(0): P(x)
    if OPT.get("kl", 1): kv_check()
    poison()
    PFI = OPT.get("pfi", 0)
    for ks in range(2 * NP - 1):
        if ks % 2 == 1:
            P.wait_lgkm_all(); P("s_barrier")
        for g in gu_groups(ks):
            for x in g: P(x)
    P.wait_tag("kv0"); P.wait_lgkm_all(); P("s_barrier")
    stamp(P, 4)
    gq = []
    tmp = fx[0][0]; cst = fx[1][0]
    assert fx[0][1] == fx[0][0] + 4
    gel = []
    def load_window(k):
        n = 2 * (NP + k) - 1
        assert not gq
        gq.extend(gu_groups(n, late=(k > 0 and OPT.get("sb", 0))))
        if n < 31: gq.extend(gu_groups(n + 1))
    def hookH(it, x, pos):
        if pos == "sync?": return 1 <= it <= JIT
        if pos == "pre0": sigstamp(it, 0); return
        if pos == "pre": sigstamp(it, 1); return
        if pos == "start": load_window(0); return
        midprio(it, x, pos, PH)
        if pos in ("qk", "pv1") and H_LATE: emit(H_LATE.pop(0))
        if pos == "pv2" and x == 1 and PF & 1:
            if it == PFI: pf(1, True)
            if it == PFI + 2: pf(2, True)
            if it == PFI + 5: pf(3, True)
        if pos == "pv2" and x == 1 and OPT.get("wpf", 1) and it in (7, 8, 9, 10):
            k = it - 7
            P(f"s_cmp_lg_u32 s{S_W}, {k}")
            P(f"s_cbranch_scc1 LF_wp{k}")
            P(f"buffer_load_dword v{vpd}, v{vpw}, s[{S_PFS}:{S_PFS+3}], 0 offen")
            P.I[-1].kind = "salu"; P.I[-1].vw = set()
            P(f"LF_wp{k}:")
        if pos == "pv1" and x == 0 and 1 <= it <= JIT: load_window(it)
        if pos in ("g1", "g2", "g3", "g4", "g5", "g6"):
            cnt = int(str(OPT.get("gm", 111111))[int(pos[1]) - 1]) if gq else 1
            cnt = 0 if cnt == 9 else cnt
            if gq and cnt == 0: pass
            elif gq:
                for _ in range(cnt):
                    if gq:
                        for t in gq.pop(0): P(t)
                if not gq and it == JIT and x == 1:
                    L = [f"v_mov_b32 v{cst}, {hexf(GELU_C1)}", f"v_mov_b32 v{cst+1}, {hexf(GELU_C1)}",
                         f"v_mov_b32 v{cst+2}, {hexf(GELU_C2)}", f"v_mov_b32 v{cst+3}, {hexf(GELU_C2)}"]
                    k = 0
                    for i in range(3):
                        for t in range(2):
                            d = fw[k % 2][k // 2]; k += 1
                            L += gelu_tile_pk(acc[i][t], d, tmp, cst)
                            if t == 1: L.append(f"s_add_u32 s{SH[i]}, s{SH[i]}, {118*1024}")
                            L.append(f"buffer_store_dwordx4 {vr(d,4)}, v{l16}, {WSR}, s{SH[i]} offen sc1")
                    ns = (2 if OPT.get("bbh", 0) else 3) + 12 * (UNI - JIT - 1)
                    n = (len(L) + ns - 1) // ns
                    gel.extend(L[i:i + n] for i in range(0, len(L), n))
            elif gel:
                for t in gel.pop(0): P(t, tag="hst" if "store" in t else None)
    PM = OPT.get("pm", 9)
    PH = [int(c) for c in str(OPT.get("ph", 3321)).zfill(4)]; PL = [int(c) for c in str(OPT.get("pl", 3210)).zfill(4)]
    def prioH(it, x):
        if PM == 9: return PH[2 * x] if it < JIT else 3
        if PM == 1: return 3 if (it == 0 and x == 0) else None
        if PM == 3: return 3 - 2 * x
        if PM == 5: return (3 - 2 * x) if it < JIT else 3
        if PM == 6: return 3 if it >= JIT else None
        return None
    def prioL(it, x):
        if PM == 9: return PL[2 * x] if it < JIT else 0
        if PM in (2, 6): return 1 if (it == 0 and x == 0) else None
        if PM == 3: return 3 - 2 * x
        if PM == 5: return (3 - 2 * x) if it < JIT else 0
        return None
    def midprio(it, x, pos, T=None):
        if PM == 9 and pos == "pv2" and it <= JIT: P(f"s_setprio {T[1] if x else T[3]}")
        if PM in (3, 5) and pos == "pv2" and (PM == 3 or it <= JIT): P(f"s_setprio {2 * x}")
    attention(P, A, l16, range(0, UNI), hookH, prioH, kvf=lambda c: None, bb=OPT.get("bbh", 0))
    nsb = A["sb"].n; A["sb"].n = 0
    assert not gq and not gel, (len(gq), len(gel))
    P.cond_end(keep=True)
    P("s_branch LF_join")
    for n in ("vx0", "vtn", "wtr0", "wtr1", "wtr2", "vpf", "vpw"): V.release(n)

    P("LF_l0:")
    P.cond_begin()
    P("s_barrier")
    LOADS["f"]("l")
    stamp(P, 1)
    P("s_waitcnt vmcnt(8)")
    P("s_barrier")
    stamp(P, 2)
    P(f"s_cmp_eq_u32 s{S_W}, 6")
    P("s_cbranch_scc1 LF_l6")
    P(f"s_add_u32 s{S_T3}, s{S_T3}, 24")
    wq_pieces(P, vsl, S_T3, 8, "LF_ldq3", 1)
    P("s_waitcnt vmcnt(8)")
    P("s_branch LF_l6j")
    P("LF_l6:")
    P("s_waitcnt vmcnt(0)")
    P("LF_l6j:")
    P("s_barrier")
    P("LF_light:")
    emit(C_EARLY)

    pats = w_patterns(P, V, lane, t0, t1)
    P(f"s_lshl_b32 s{S_T0}, s{S_HP}, 1")
    P(f"s_mul_i32 s{S_WOFF}, s{S_T0}, {8*2752}")
    P(f"s_lshl_b32 s{S_T1}, s{S_U0}, 5")
    P(f"s_add_u32 s{S_WOFF}, s{S_WOFF}, s{S_T1}")
    P(f"s_mul_i32 s{S_WLDS}, s{S_T0}, 3072")
    P(f"s_mul_i32 s{S_T1}, s{S_TT}, {UP_OFF}")
    P(f"s_add_u32 s{S_WLDS}, s{S_WLDS}, s{S_T1}")
    inattn = dict(on=False)
    P(f"s_add_u32 s{S_WOFF}, s{S_WOFF}, 0")
    P(f"v_subrev_u32 v{pats[1]}, 1024, v{pats[1]}")
    P(f"v_subrev_u32 v{pats[2]}, 2048, v{pats[2]}")
    def w_dma1(s, k):
        g, i = k // 3, k % 3
        solo = not OPT.get("wm0", 1) or inattn["on"]
        if i == 0 or solo:
            dma(P, pats[i], S_WM, f"s{S_T3}", (S_WLDS, SLOT[s % 3] + 3072 * g), offset=1024 * i, tag=f"w{s}",
                pre=[f"s_add_u32 s{S_T3}, s{S_WOFF}, 0x{(32*s + 8*g)*2752:x}"] if i == 0 else None)
        else:
            P(f"buffer_load_dwordx4 v{pats[i]}, s[{S_WM}:{S_WM+3}], s{S_T3} offen offset:{1024*i} lds", tag=f"w{s}")
    def w_dma6(s):
        for k in range(6): w_dma1(s, k)
    stamp(P, 11)
    P("s_barrier")
    w_dma6(0)
    P("s_waitcnt vmcnt(6)"); P.I[-1].kind = "salu"
    P("s_barrier")
    h = len(C_LATE) // 4
    emit(C_LATE[:h])
    stamp(P, 13)
    P("s_barrier")
    w_dma6(1)
    emit(C_LATE[h:])
    dma(P, l16, S_GW, "0", (None, GWL), tag="gw")
    vgw = acc[0][1]
    P(f"v_lshrrev_b32 v{t0}, 5, v{lane}")
    P(f"v_lshlrev_b32 v{vgw}, 4, v{t0}")
    P(f"s_lshl_b32 s{S_T0}, s{S_HP}, 9")
    P(f"v_add_u32 v{vxa}, s{S_T0}, v{vxa}")
    P(f"s_add_u32 s{S_T0}, s{S_T0}, 0x{GWL:x}")
    P(f"v_add_u32 v{vgw}, s{S_T0}, v{vgw}")
    P(f"s_lshl_b32 s{S_T0}, s{S_W}, 8")
    P(f"s_add_u32 s{S_T0}, s{S_T0}, 0x{ONES - 1024:x}")
    P(f"v_lshlrev_b32 v{t0}, 2, v{lane}")
    P(f"v_add_u32 v{t0}, s{S_T0}, v{t0}")
    P(f"v_mov_b32 v{t1}, 0x3f803f80")
    P(f"v_lshrrev_b32 v1, 2, v{lane}")
    P(f"v_and_b32 v1, 11, v1")
    P(f"v_cmp_eq_u32 vcc, 0, v1")
    P(f"v_cndmask_b32 v{t1}, 0, v{t1}, vcc")
    P(f"ds_write_b32 v{t0}, v{t1}")
    P(f"ds_write_b32 v{t0}, v{t1} offset:1024")
    poison()
    za = acc[0][0]; zx = [acc[1][0] + 4 * i for i in range(4)]; zg = [acc[2][0] + 4 * i for i in range(4)]
    def zjob():
        for r in range(4): P(f"v_mov_b32 v{za+r}, 0")
        def zld(k):
            P(f"ds_read_b128 {vr(zx[k%4],4)}, v{vxa} offset:{k*32}")
            P(f"ds_read_b128 {vr(zg[k%4],4)}, v{vgw} offset:{k*32}")
        for k in range(3): zld(k)
        for k in range(16):
            for r in range(4): P(f"v_dot2c_f32_bf16 v{za+r}, v{zx[k%4]+r}, v{zg[k%4]+r}")
            if k + 3 < 16: zld(k + 3)
        P("s_nop 2")
        P(f"v_add_f32 v{za}, v{za}, v{za+1}")
        P(f"v_add_f32 v{za+2}, v{za+2}, v{za+3}")
        P(f"v_add_f32 v{za}, v{za}, v{za+2}")
        P(f"s_and_b32 s{S_T0}, s{S_W}, 3")
        P(f"s_lshl_b32 s{S_T0}, s{S_T0}, 8")
        P(f"s_add_u32 s{S_T0}, s{S_T0}, 0x{MISC:x}")
        P(f"v_lshlrev_b32 v{t0}, 2, v{lane}")
        P(f"v_add_u32 v{t0}, s{S_T0}, v{t0}")
        P(f"ds_write_b32 v{t0}, v{za}")
    P(f"s_mov_b32 s{S_T6}, 0x{FL_KV:x}")
    def kv_both(c):
        kv_dma(P, l16, c)
        dma(P, l16, S_WS, f"s{S_T2}", (S_KVLDS, (8192 * (c & 1) - 4096) & 0xffffffff), tag=f"kv{c}", mods=SC1, pre=[f"s_sub_u32 s{S_T2}, s{S_T2}, 32768"])
    def poll_issue():
        P(f"buffer_load_dword v{vn}, v{vz}, s[{S_DBG}:{S_DBG+3}], 0 offen sc1")
        P(flag_load(vfl, 4, l16, f"s{S_T6}"))
    for s in range(0, NP + 1):
        P.wait_tag(f"w{s}")
        P.wait_lgkm_all()
        if s == 0: stamp(P, 14)
        P("s_barrier")
        if s == 0:
            stamp(P, 3)
            P(f"ds_read_b128 {vr(qf,4)}, v{vq} offset:1024")
            P(f"ds_read_b128 {vr(qf+4,4)}, v{vq}")
        if s == NP: kv_both(1)
        if s < NP: w_dma6(s + 2)
        if s == 0:
            P(f"buffer_load_dword v{vn}, v{vz}, s[{S_DBG}:{S_DBG+3}], 0 offen sc1")
            P.wait_tag("gw")
            zjob()
    assert NP >= 1
    stamp(P, 4)
    dq = []; wq2 = []
    def hookL(it, x, pos):
        if pos == "sync?": return 1 <= it <= JIT
        if pos == "pre0": sigstamp(it, 0); return
        if pos == "pre":
            if NP + it < 16: P.wait_tag(f"w{NP+it}")
            sigstamp(it, 1); return
        if (pos == "start" or pos == "chk") and NP + it + 2 < 16:
            assert not dq
            for k in range(0 if OPT.get("abl_ldma") else 6): dq.append(lambda s=NP + it + 2, k=k: w_dma1(s, k))
        midprio(it, x, pos, PL)
        LW = OPT.get("lw", 4)
        if pos == "chk" and it == JIT:
            for b in range(LW):
                for o in range(2):
                    for i in range(2): wq2.append(lambda b=b, o=o, i=i: fin_dma_w2(P, vsl, b, b * 16384, f"fw{b}", i, o))
        if wq2 and pos not in ("pre", "pre0", "chk", "start"):
            wq2.pop(0)()
            if it == UNI - 1 and x == 1 and pos == "g6":
                while wq2: wq2.pop(0)()
        LS = [("pv2", "qk", "pv1"), ("g1", "g3", "g5"), ("g2", "g4", "g6"), ("pv1", "g4", "g5", "g6", "pv2", "g1", "g2"), ("pv2", "pv1")][OPT.get("ls", 3)]
        if pos in LS and dq:
            dq.pop(0)()
            if OPT.get("ls", 3) == 4 and dq and len(dq) % 3 != 0: dq.pop(0)(); (dq.pop(0)() if pos == "pv1" and len(dq) % 3 else None)
    attention(P, A, l16, range(0, UNI), hookL, prioL, kvf=kv_both, bb=OPT.get("bbl", 0))
    assert A["sb"].n == nsb
    assert not dq
    P.cond_end(keep=True)
    P("LF_join:")
    P.join()
    for n in ["wpat0", "wpat1", "wpat2", "vxa", "vq"] + [f"acc{i}{t}" for i in range(3) for t in range(2)] + \
             [f"fx{b}{t}" for b in range(2) for t in range(2)] + [f"fw{b}{i}" for b in range(2) for i in range(3)]: V.release(n)
    stamp(P, 5)

    facc = V.alloc("facc", 16); facc1 = V.alloc("facc1", 16); fa = V.alloc("ffa", 8)
    NB = OPT.get("nb", 6)
    hb = [V.alloc(f"hb{i}", 4) for i in range(NB)]; fb = hb[0]
    vl4 = V.alloc("vl4"); vg = V.alloc("vg"); zt = V.alloc("zt", 2)
    va0 = tr_slice_addr(P, V, "fa0", lane, t0, t1, 0, S_KH, 4)
    vA = [[va0, V.alloc("fa0h")], [V.alloc("fa1"), V.alloc("fa1h")]]
    P(f"s_lshl_b32 s{S_T1}, s{S_HP}, 5")
    P(f"v_xor_b32 v{va0}, s{S_T1}, v{va0}")
    P(f"s_lshr_b32 s{S_T0}, s{S_W}, 1")
    P(f"s_lshl_b32 s{S_T1}, s{S_T0}, 11")
    P(f"v_add_u32 v{va0}, s{S_T1}, v{va0}")
    P(f"v_xor_b32 v{vA[1][0]}, 64, v{va0}")
    P(f"v_add_u32 v{vA[0][1]}, 0x10000, v{va0}")
    P(f"v_add_u32 v{vA[1][1]}, 0x10000, v{vA[1][0]}")
    P(f"s_mul_i32 s{S_FB}, s{S_TILE}, 118")
    P(f"s_add_u32 s{S_FB}, s{S_FB}, s{S_T0}")
    P(f"s_lshl_b32 s{S_FB}, s{S_FB}, 10")
    P(f"s_add_u32 s{S_FB}, s{S_FB}, 0x{WS_OH:x}")
    P(f"v_lshlrev_b32 v{vl4}, 2, v{lane}")
    vhf = V.alloc("vhf")
    P(f"v_lshrrev_b32 v{t0}, 3, v{lane}")
    P(f"v_mul_u32_u24 v{t0}, 96, v{t0}")
    P(f"v_add_u32 v{vhf}, v{t0}, v{vl4}")
    P(f"s_lshl_b32 s{S_T0}, s{S_TT}, 8")
    P(f"s_add_u32 s{S_T0}, s{S_T0}, 0x{MISC:x}")
    P(f"v_add_u32 v{t0}, s{S_T0}, v{vl4}")
    P(f"ds_read_b32 v{zt}, v{t0}")
    P(f"ds_read_b32 v{zt+1}, v{t0} offset:512")
    P(f"v_add_f32 v{zt}, v{zt}, v{zt+1}")
    P(f"v_mov_b32 v{zt+1}, v{zt}")
    P(f"v_permlane32_swap_b32 v{zt}, v{zt+1}")
    P(f"v_add_f32 v{zt}, v{zt}, v{zt+1}")
    P(f"v_mul_f32 v{t0}, {hexf(-LOG2E)}, v{zt}")
    P(f"v_exp_f32 v{t0}, v{t0}")
    P(f"v_add_f32 v{t0}, 1.0, v{t0}")
    P(f"v_rcp_f32 v{vg}, v{t0}")
    V.release("zt")
    vw = [V.alloc(f"vw{i}") for i in range(3)]; vrd = V.alloc("vrd"); vo = V.alloc("vo")
    def sbase(dst, w):
        P(f"s_mul_i32 s{S_T1}, s{w}, 6144")
        P(f"v_add_u32 v{dst}, s{S_T1}, v{l16}")
    sbase(vrd, S_W)
    for b in range(1, 4):
        P(f"s_xor_b32 s{S_T0}, s{S_W}, {b << 1}")
        sbase(vw[b - 1], S_T0)
    P(f"v_and_b32 v{vo}, 31, v{lane}")
    P(f"v_lshlrev_b32 v{vo}, 10, v{vo}")
    P(f"v_lshrrev_b32 v{t1}, 5, v{lane}")
    P(f"v_lshl_add_u32 v{vo}, v{t1}, 4, v{vo}")
    P(f"s_lshl_b32 s{S_OO}, s{S_TILE}, 15")
    P(f"s_lshl_b32 s{S_T1}, s{S_J}, 7")
    P(f"s_add_u32 s{S_OO}, s{S_OO}, s{S_T1}")
    P(f"s_lshl_b32 s{S_T1}, s{S_KH}, 6")
    P(f"s_add_u32 s{S_OO}, s{S_OO}, s{S_T1}")
    P(f"s_lshl_b32 s{S_T1}, s{S_HP}, 5")
    P(f"s_add_u32 s{S_OO}, s{S_OO}, s{S_T1}")
    vp = V.alloc("vp"); vpa = V.alloc("vpa")
    P(f"v_lshlrev_b32 v{vpa}, 10, v{lane}")
    vt0 = V.alloc("vt0"); vt1 = V.alloc("vt1")
    P(f"s_lshr_b32 s{S_T1}, s{S_W}, 1")
    P(f"s_mul_i32 s{S_T1}, s{S_T1}, {16384 - 2048}")
    P(f"s_add_u32 s{S_T1}, s{S_T1}, {3*16384}")
    P(f"v_add_u32 v{vt0}, s{S_T1}, v{vA[0][0]}")
    P(f"v_add_u32 v{vt1}, s{S_T1}, v{vA[1][0]}")
    va = V.alloc("cva"); vb = V.alloc("cvb"); fb = V.alloc("cvon")
    P(f"s_mul_i32 s{S_T0}, s{S_W}, 3072")
    P(f"s_add_u32 s{S_T0}, s{S_T0}, 114688")
    P(f"v_add_u32 v{va}, s{S_T0}, v{l16}")
    P(f"s_xor_b32 s{S_T0}, s{S_W}, 4")
    P(f"s_mul_i32 s{S_T0}, s{S_T0}, 3072")
    P(f"s_add_u32 s{S_T0}, s{S_T0}, 114688")
    P(f"v_add_u32 v{vb}, s{S_T0}, v{l16}")
    P(f"s_add_u32 s{S_OL2}, s{S_OL}, 4096")
    BSLOT = lambda b: ((b % 8) if b < 11 else (b - 8)) * 16384
    def a_reads(r, d):
        o = (4 * r % 64) * 2048; hi = o >> 16; o &= 0xffff
        assert r // 2 in vis, (r, vis)
        rd_done[r // 2] = rd_done.get(r // 2, 0) + 1
        if OPT.get("abl_uds"): return
        P(f"ds_read_b64_tr_b16 {vr(fa+4*d,2)}, v{vA[d][hi]} offset:{o}")
        P(f"ds_read_b64_tr_b16 {vr(fa+4*d+2,2)}, v{vA[d][hi]} offset:{o+1024}")
    def h_load(r):
        if OPT.get("abl_uh"): return
        P(f"s_add_u32 s{S_T2}, s{S_FB}, {4096*r}")
        if r == 21:
            P(f"s_cmp_lt_u32 s{S_W}, 4")
            P(f"s_cselect_b32 s{S_T2}, s{S_T2}, 0x{OOB:x}")
        P(f"buffer_load_dwordx4 {vr(hb[r%NB],4)}, v{l16}, {WSR}, s{S_T2} offen sc1")
    pend = {}
    LW = OPT.get("lw", 4)
    dq = []; vis = set(); issued = {}; rd_done = {}; nxt = dict(b=LW, r=0, d=0, pre=False)
    def qW(b):
        def f(i):
            if not OPT.get("abl_uw"): fin_dma_w1(P, vsl, b, BSLOT(b), f"fw{b}", i)
            issued[b] = issued.get(b, 0) + 1
        for i in range(2): dq.append(lambda i=i: f(i))
    CH = OPT.get("ch", HF + 4); R0 = OPT.get("r0", 2 * (CH + 1))
    DBL = OPT.get("dbl", 64)
    def mstep():
        r, d = nxt["r"], nxt["d"]
        if r >= 22: return
        if not nxt["pre"]:
            a_reads(0, 0); a_reads(0, 1); nxt["pre"] = True; return
        if not OPT.get("abl_um"): P(mfma([facc, facc1][d], fa + 4 * d, hb[r % NB], [facc, facc1][d] if r else None))
        if r + 1 < 22: a_reads(r + 1, d)
        if d == 1 and r + NB < 22: dq.insert(0, lambda r=r: h_load(r + NB))
        nxt["d"] = 1 - d; nxt["r"] = r + d
    US = [("g1", "g4"), ("g2", "g5"), ("g1", "g5"), ("g2", "g6"), ("g3", "g6")][OPT.get("us", 3)]
    VS = [("pv2", "qk"), ("qk", "pv1"), ("pv2", "pv1"), ("g3", "g6"), ("qk", "g6")][OPT.get("vs", 0)]
    def hookU(it, x, pos):
        sig = (x == 0 and (it & 1)); ph = 2 * it + x
        if pos == "sync?": return False
        if pos == "pre0": sigstamp(it, 0); return
        if pos == "pre":
            if it == HF: P.wait_vm_all()
            need = [b for b in issued if issued[b] == 2 and b not in vis and (it == 29 or b <= (max(0, ph + 8 - R0) * (2 if ph + 6 >= DBL else 1)) // 2) and b <= 10]
            if need: P.wait_tag(*[f"fw{b}" for b in need])
            if it == HF: need = need + list(range(LW))
            pend["vis"] = need; pend["free"] = {b for b in rd_done if rd_done[b] >= 4}
            sigstamp(it, 1); return
        if pos == "pv1" and sig and it == HF and OPT.get("ef", -1) < 0:
            nonce_check(P, SL, vn, vz)
            flag_store(P, vz, t0, S_FS)
        if pos == "chk":
            vis.update(pend["vis"])
            while it >= HF and nxt["b"] < 15:
                b = nxt["b"]; prev = {8: 0, 9: 1, 10: 2, 11: 3, 12: 4, 13: 5, 14: 6}.get(b)
                if prev is not None and prev not in pend["free"]: break
                qW(b); nxt["b"] += 1
            return
        PP = OPT.get("pp", 2)
        if (PP == 0 and pos == "pv2" and x == 0 and it == CH - 1) or (PP == 1 and pos == "g1" and x == 1 and it == CH - 1) or \
           (PP == 2 and pos == "pv1" and x == 1 and it == CH - 1): P(flag_load(vfl, 1, vhf, f"s{S_FP}"))
        EF = OPT.get("ef", -1)
        if ph == EF and pos == "g4":
            P.wait_vm_all(); nonce_check(P, SL, vn, vz); flag_store(P, vz, t0, S_FS)
        if pos == "pv2" and x == 0 and it == CH:
            spin_check(P, SL, [flag_load(vfl, 1, vhf, f"s{S_FP}")], flag_cmp(vfl, 1, t0), sleep=OPT.get("hsl", 4))
            for r in range(NB): dq.insert(r, lambda r=r: h_load(r))
        elif dq and (pos in VS or (pos in ("g2", "g5") and it in (CH, CH + 1)) or (pos == "g5" and OPT.get("d3"))): dq.pop(0)()
        if nxt["r"] >= 22 - OPT.get("tr", 6) and nxt["d"] == 0: pass
        elif (pos in US and ph >= R0) or (pos == US[1] and ph == R0 - 1) or (pos in ("g3", "g6") and ph >= DBL): mstep()
        if pos == "g6" and it == 31 and x == 1:
            assert nxt["b"] == 15, nxt
            print("rounds left for tail:", 22 - nxt["r"])
    def prioU(it, x):
        if not OPT.get("prio", 1): return None
        k = 2 * ((it + 1) & 1) + x
        return int(str(OPT.get("pu", 3210)).zfill(4)[k])
    attention(P, A, l16, range(UNI, 32), hookU, prioU)
    assert not dq
    stamp(P, 6)
    if OPT.get("sig"):
        P(f"s_lshl_b32 s98, s2, 11")
        P(f"s_lshl_b32 s99, s{S_W}, 8")
        P(f"s_add_u32 s98, s98, s99")
        P(f"s_add_u32 s98, s98, 0x{WS_STAMP + (1<<20):x}")
        P(f"buffer_store_dword v{vsig}, v{vl4}, {WSR}, s98 offen")
    P("s_setprio 0")
    P(f"v_mov_b32 v{O[1]+7}, v{O[1]}")
    for i in range(3): P(f"ds_write_b128 v{va}, {vr(O[1]+4+4*i,4)} offset:{1024*i}")
    P.wait_tag(*[f"fw{b}" for b in range(8, 15)]); P.wait_lgkm_all()
    P("s_barrier")
    vis.update(range(11))
    for i in range(3): P(f"ds_read_b128 {vr(O[1]+4+4*i,4)}, v{vb} offset:{1024*i}")
    P(f"v_add_f32 v{O[0]}, v{O[0]}, v{O[1]+7}")
    for r in range(8, 16): P(f"v_add_f32 v{O[0]+r}, v{O[0]+r}, v{O[1]+r}")
    P(f"v_mov_b32 v{t1}, 0x207")
    P(f"v_cmp_nle_f32 vcc, {hexf(2.0**-90)}, v{O[0]}")
    P(f"v_cmp_nge_f32 s[{S_PM}:{S_PM+1}], {'s' + str(S_T0)}, v{O[0]}".replace(f"s{S_T0}", f"s{S_C1}"))
    P(f"s_or_b64 vcc, vcc, s[{S_PM}:{S_PM+1}]")
    P(f"v_add3_u32 v{t0}, v{O[0]+8}, 0, 0".replace("v_add3_u32", "v_add_f32").replace(", 0, 0", f", v{O[0]+9}"))
    for r in range(10, 16): P(f"v_add_f32 v{t0}, v{t0}, v{O[0]+r}")
    P(f"v_cmp_class_f32 s[{S_PM}:{S_PM+1}], v{t0}, v{t1}")
    P(f"s_or_b64 vcc, vcc, s[{S_PM}:{S_PM+1}]")
    if OPT.get("forcefb"): P("s_mov_b64 vcc, -1")
    P("s_cmp_lg_u64 vcc, 0")
    P("s_cbranch_scc1 LF_fb")
    P("LF_fbr:")
    P(f"v_rcp_f32 v{t0}, v{O[0]}")
    P(f"v_mul_f32 v{t0}, v{t0}, v{vg}")
    for r in range(8, 16): P(f"v_mul_f32 v{O[0]+r}, v{O[0]+r}, v{t0}")
    for r in range(4): P(f"v_cvt_pk_bf16_f32 v{O[1]+r}, v{O[0]+8+2*r}, v{O[0]+9+2*r}")
    P(f"buffer_store_dwordx4 {vr(O[1],4)}, v{l16}, {WSR}, s{S_OD} offen sc1", tag="ost")
    stamp(P, 7)
    K4, V8, ON, CM = A["fk"], A["fv"][0], fb, O[1]
    assert A["fv"][1] == V8 + 4
    nl = "\n    "
    fbk = f"""LF_fb:
    s_waitcnt vmcnt(0) lgkmcnt(0)
    v_mov_b32 v{t0}, 0xff800000
    s_mov_b32 s{S_T0}, 0x{WS_KF:x}
LF_fb1:
    buffer_load_dwordx4 {vr(K4,4)}, v{l16}, {WSR}, s{S_T0} offen sc1
    s_waitcnt vmcnt(0)
    {mfma(S[0], K4, qf)}
    s_nop 15
    {nl.join(f"v_max3_f32 v{t0}, v{S[0]+2*r}, v{S[0]+2*r+1}, v{t0}" for r in range(8))}
    s_add_u32 s{S_T0}, s{S_T0}, 1024
    s_cmp_lt_u32 s{S_T0}, 0x{WS_KF + 65536:x}
    s_cbranch_scc1 LF_fb1
    v_mov_b32 v{t1}, v{t0}
    s_nop 1
    v_permlane32_swap_b32 v{t0}, v{t1}
    s_nop 1
    v_max_f32 v{t0}, v{t0}, v{t1}
    {nl.join(f"v_sub_f32 v{CM+r}, 0, v{t0}" for r in range(16))}
    {nl.join(f"v_mov_b32 v{O[0]+r}, 0" for r in range(16))}
    v_lshrrev_b32 v{t0}, 5, v{lane}
    v_lshlrev_b32 v{t0}, 8, v{t0}
    v_and_b32 v{t1}, 15, v{lane}
    v_lshl_add_u32 v{t0}, v{t1}, 4, v{t0}
    v_and_b32 v{t1}, 16, v{lane}
    v_cmp_eq_u32 vcc, 0, v{t1}
    v_mov_b32 v{t1}, 0x{OOB:x}
    s_nop 1
    v_cndmask_b32 v{t0}, v{t0}, v{t1}, vcc
    v_and_b32 v{t1}, 27, v{lane}
    v_cmp_eq_u32 vcc, 0, v{t1}
    v_mov_b32 v{ON}, 0x3f803f80
    s_nop 1
    v_cndmask_b32 v{ON}, 0, v{ON}, vcc
    s_mov_b32 s{S_T0}, 0x{WS_KF:x}
LF_fb2:
    s_add_u32 s{S_T1}, s{S_T0}, 0x{WS_VF - WS_KF:x}
    buffer_load_dwordx4 {vr(K4,4)}, v{l16}, {WSR}, s{S_T0} offen sc1
    buffer_load_dwordx4 {vr(V8,4)}, v{t0}, {WSR}, s{S_T1} offen sc1
    buffer_load_dwordx4 {vr(V8+4,4)}, v{t0}, {WSR}, s{S_T1} offen offset:512 sc1
    s_waitcnt vmcnt(0)
    {mfma(S[0], K4, qf, CM)}
    {nl.join(f"v_or_b32 v{V8+r}, v{V8+r}, v{ON}" for r in range(8))}
    s_nop 7
    {nl.join(f"v_exp_f32 v{S[0]+r}, v{S[0]+r}" for r in range(16))}
    s_nop 1
    {nl.join(f"v_cvt_pk_bf16_f32 v{S[1]+r}, v{S[0]+2*r}, v{S[0]+2*r+1}" for r in range(8))}
    s_nop 1
    {mfma(O[0], V8, S[1], O[0])}
    {mfma(O[0], V8+4, S[1]+4, O[0])}
    s_add_u32 s{S_T0}, s{S_T0}, 1024
    s_cmp_lt_u32 s{S_T0}, 0x{WS_KF + 65536:x}
    s_cbranch_scc1 LF_fb2
    s_nop 15
    s_branch LF_fbr
"""
    SL.add(fbk)
    for n in ("Sa", "Sb", "Oa", "qf", "fk", "fv1", "fv2"): V.release(n)
    ob = V.alloc("ob", 32); wa = [V.alloc(f"wa{u}", 8) for u in range(8)]
    def oloads(g): return [f"buffer_load_dwordx4 {vr(ob+16*g+4*u,4)}, v{l16}, {WSR}, s{[S_OL,S_OL2][g]} offen offset:{1024*u} sc1" for u in range(4)]
    def ocheck(g):
        b = ob + 16 * g
        L = [f"v_max3_u32 v{t0}, v{b}, v{b+1}, v{b+2}"]
        for k in range(3, 15, 2): L.append(f"v_max3_u32 v{t0}, v{b+k}, v{b+k+1}, v{t0}")
        L += [f"v_max_u32 v{t0}, v{b+15}, v{t0}", f"v_cmp_eq_u32 vcc, -1, v{t0}"]
        return L
    fa2 = V.alloc("ffa2", 8)
    wr = []
    for u in range(8):
        for d, v in ((0, vt0), (1, vt1)):
            wr.append([f"ds_read_b64_tr_b16 {vr(wa[u]+4*d,2)}, v{v} offset:{u*2048}", f"ds_read_b64_tr_b16 {vr(wa[u]+4*d+2,2)}, v{v} offset:{u*2048+1024}"])
    r0 = nxt["r"]; assert nxt["d"] == 0 and not dq
    def tr_reads(r, d):
        o = (4 * r % 64) * 2048; hi = o >> 16; o &= 0xffff; f = [fa, fa2][(r - r0) % 2] + 4 * d
        P(f"ds_read_b64_tr_b16 {vr(f,2)}, v{vA[d][hi]} offset:{o}")
        P(f"ds_read_b64_tr_b16 {vr(f+2,2)}, v{vA[d][hi]} offset:{o+1024}")
    if r0 + 1 < 22: tr_reads(r0 + 1, 0); tr_reads(r0 + 1, 1)
    OL = min(r0 + OPT.get("ol", 99), 22)
    OFL = OPT.get("ofl", 3)
    P(f"s_add_u32 s{S_FS}, s{S_FS}, 32768")
    P(f"s_lshr_b32 s{S_T1}, s{S_W}, 1")
    P(f"s_lshl_b32 s{S_T1}, s{S_T1}, 8")
    P(f"s_add_u32 s{S_FP}, s{S_FP}, s{S_T1}")
    P(f"s_add_u32 s{S_FP}, s{S_FP}, 32768")
    for r in range(r0, 22):
        if r == r0 + OFL:
            P.wait_vm_all()
            if OPT.get("of1", 0):
                P("s_barrier")
                P(f"s_cmp_lg_u32 s{S_W}, 0")
                P("s_cbranch_scc1 LF_of1")
                P.cond_begin(); flag_store(P, vz, t0, S_FS); P.cond_end()
                P("LF_of1:")
            else: flag_store(P, vz, t0, S_FS)
        if r == OL:
            for g in range(2):
                for x in oloads(g): P(x)
        for d in range(2):
            P(mfma([facc, facc1][d], [fa, fa2][(r - r0) % 2] + 4 * d, hb[r % NB], [facc, facc1][d]))
            if r + 2 < 22: tr_reads(r + 2, d)
            elif wr:
                for g in wr[:4]:
                    for x in g: P(x)
                del wr[:4]
    for g in wr:
        for x in g: P(x)
    assert 22 - r0 <= NB and r0 >= 16
    EM = "0x101" if OPT.get("of1", 0) else "0xffff"
    fl = [f"s_mov_b64 exec, {EM}", flag_load(vp, 1, vhf, f"s{S_FP}"), "s_mov_b64 exec, -1"]
    fc = [f"s_mov_b64 exec, {EM}", f"v_cmp_ne_u32 vcc, s{S_NONCE}, v{vp}", "s_mov_b64 exec, -1"]
    if OPT.get("ofp", 1) == 0:
        for x in fl: P(x)
    P.wait_lgkm_all(); P("s_barrier")
    if OPT.get("ofp", 1) == 1:
        for x in fl: P(x)
    spin_check(P, SL, fl, fc, sleep=OPT.get("osl", 1))
    if OL == 22:
        for g in range(2):
            for x in oloads(g): P(x)
    P(f"v_sub_f32 v{t1}, 1.0, v{vg}")
    P(f"v_mov_b32 v{t0}, v{t1}")
    assert t1 == t0 + 1 and t0 % 2 == 0
    for r in range(0, 16, 2): P(f"v_pk_mul_f32 v[{facc+r}:{facc+r+1}], v[{facc+r}:{facc+r+1}], v[{t0}:{t1}]")
    for r in range(0, 16, 2): P(f"v_pk_mul_f32 v[{facc1+r}:{facc1+r+1}], v[{facc1+r}:{facc1+r+1}], v[{t0}:{t1}]")
    if not OPT.get("oab", 1): P.wait_lgkm_all(); P("s_barrier")
    stamp(P, 8)
    for g in range(2):
        for u in range(4 * g, 4 * g + 4):
            P(mfma(facc1, wa[u] + 4, ob + 4 * u, facc1))
    W1 = [f"ds_write_b128 v{vw[b-1]}, {vr(src+4*i,4)} offset:{2048*(b-1) + 1024*i}" for b, src in ((2, facc1), (3, facc1 + 8)) for i in range(2)]
    for u in range(8):
        P(mfma(facc, wa[u], ob + 4 * u, facc))
        if u >= 3 and W1:
            if u == 3: P("s_nop 7")
            P(W1.pop(0))
    stamp(P, 9)
    for b, src in ((1, facc + 8),):
        for i in range(2): P(f"ds_write_b128 v{vw[b-1]}, {vr(src+4*i,4)} offset:{2048*(b-1) + 1024*i}")
    P.wait_lgkm_all()
    P("s_barrier")
    for i in range(6): P(f"ds_read_b128 {vr(ob+4*i,4)}, v{vrd} offset:{1024*i}")
    for b in range(3):
        for r in range(8): P(f"v_add_f32 v{facc+r}, v{facc+r}, v{ob+8*b+r}")
    for r in range(4): P(f"v_cvt_pk_bf16_f32 v{facc1+r}, v{facc+2*r}, v{facc+2*r+1}")
    P(f"v_permlane32_swap_b32 v{facc1}, v{facc1+2}")
    P(f"v_permlane32_swap_b32 v{facc1+1}, v{facc1+3}")
    P(f"buffer_store_dwordx4 {vr(facc1,4)}, v{vo}, s[{S_OUT}:{S_OUT+3}], s{S_OO} offen")
    if OPT.get("cnt"):
        P(f"v_lshrrev_b32 v1, v{lane}, s85".replace(f"v{lane}, s85", f"v{lane}, v0") if False else f"v_mov_b32 v0, s85")
        P(f"v_lshrrev_b32 v1, v{lane}, v0")
        P(f"v_and_b32 v1, 1, v1")
        P(f"v_lshlrev_b32 v0, 2, v{lane}")
        P("s_mov_b64 exec, 0xfe")
        P(f"buffer_atomic_add v1, v0, s[{S_DBG}:{S_DBG+3}], 0 offen")
    if STAMP["on"]:
        P.wait_vm_all(); stamp(P, 10); stamp_dump(P, lane)
        if OPT.get("dbgst") is not None:
            P(f"s_cmp_lg_u32 s2, {OPT['dbgst']}")
            P("s_cbranch_scc1 LF_end")
            P(f"s_cmp_lg_u32 s{S_W}, {OPT.get('dbgw', 0)}")
            P("s_cbranch_scc1 LF_end")
            P(f"v_subrev_u32 v{VSTAMP}, s100, v{VSTAMP}")
            P("s_mov_b64 exec, 0x7fff")
            P(f"buffer_store_dword v{VSTAMP}, v1, s[{S_DBG}:{S_DBG+3}], 0 offen offset:4")
    P("LF_end:")
    P("s_endpgm")
    name = NAME + "_kernel"
    body, I = finalize(P)
    txt = f".text\n.globl {name}\n.p2align 8\n.type {name},@function\n{name}:\n" + body + "".join(SL.txt) + "LF_last:\n    s_endpgm\n"
    vg_ = 256 if STAMP["on"] else max(V.hi, 8)
    txt += KD.format(name=name, vgpr=vg_, sgpr=102 if STAMP['on'] else 96, accum=(vg_ + 3) // 4 * 4)
    return txt, I, vg_


if __name__ == "__main__":
    out = sys.argv[1]
    STAMP["on"] = "stamp" in sys.argv
    for a in sys.argv[2:]:
        if "=" in a: k, v = a.split("="); OPT[k] = int(v)
        else: OPT[a] = True
    import asmlib; asmlib.MERGE_D = OPT.get("md", 9)
    t, I, vg_ = kernel_F()
    DOC = """; One fused kernel, 256 workgroups x 8 waves, one per CU (all co-resident).  Workgroup = (64-token group G, slice j).
;  start : K/V projection of 16 tokens (wave 7) -> d_ws + flag ; Q projection of 4 heads (waves 0-3) ; gate logit
;          true row maximum (LF_fb) whenever that could have overflowed or underflowed.
;  Hand-offs: write-through stores, vmcnt, then flags tagged with a per-launch nonce published through d_debug[0].
"""
    hdr = HEADER + DOC + f"; @launch grid=(256,1,1) block=(512,1,1) lds={LDS_BYTES}\n" + '.amdgcn_target "amdgcn-amd-amdhsa--gfx950"\n'
    open(out, "w").write(hdr + t)
    import subprocess
    r = subprocess.run(["clang", "-x", "assembler", "-target", "amdgcn-amd-amdhsa", "-mcpu=gfx950", "-c", out, "-o", "_chk.o"], capture_output=True, text=True)
    if r.returncode: print("ASM ERROR", r.stderr[:500])
    print("insts", len(I), "vgpr", vg_, "nops", sum(1 for x in I if x.kind == "nop"))
```

```python
import sys, re
from parts import *
OPT = {}
S_NONCE = 93
S_HP, S_KH = 30, 31
SH = [4, 5, 6]
S_FS, S_FP, S_OD, S_OL = 7, 8, 9, 10
S_FW, S_FB, S_FL, S_FL2 = 12, 13, 14, 15
S_OO, S_OL2 = 11, 18
S_VM = 28
S_PM = 16
FL_KV, FL_H = WS_FLAG, WS_FLAG + 8192
WKV_L = KV_RING
QSCR = KV_RING + 8192
FSLOT = [0, 32768, 65536, 98304]
WO_CH = [98304, 114688, 0, 32768]
SC1 = " sc1"
SPIN_MAX = 1 << 22
WSR = f"s[{S_WS}:{S_WS+3}]"


def cnt(k):
    if not OPT.get("cnt"): return ""
    return f"    s_bitset1_b32 s85, {k}\n"


def raw(P, text):
    for line in text.split("\n"):
        line = line.strip()
        if not line: continue
        P(line)
        x = P.I[-1]
        if x.kind not in ("label",):
            x.kind = "salu"; x.vr = set(); x.vw = set(); x.sr = set(); x.sw = set(); x.mf = None; x.meta = dict(skip=True)


class Slow:
    def __init__(self): self.txt = []; self.n = 0
    def add(self, t): self.txt.append(t)


LOADS = {}
def wq_pieces(P, vsl, s_first, n, label, rot):
    P(f"s_and_b32 s{S_T6}, s{S_G}, 7")
    if rot > 1: P(f"s_mul_i32 s{S_T6}, s{S_T6}, {rot}")
    P(f"s_add_u32 s{S_T5}, s{S_T6}, {n}")
    P(f"s_lshl_b32 s{S_T7}, s{S_J}, 7")
    P(f"{label}:")
    P(f"s_and_b32 s{S_T4}, s{S_T6}, {n-1}")
    P(f"s_add_u32 s{S_T4}, s{S_T4}, s{s_first}")
    P(f"s_mul_i32 s{S_T0}, s{S_T4}, 171")
    P(f"s_lshr_b32 s{S_T0}, s{S_T0}, 12")
    P(f"s_lshl_b32 s{S_T1}, s{S_T4}, 2")
    P(f"s_add_u32 s{S_T0}, s{S_T0}, s{S_T1}")
    P(f"s_lshl_b32 s{S_T0}, s{S_T0}, 8")
    P(f"s_add_u32 m0, s{S_T0}, 0x{SLOT[0]:x}")
    P(f"s_lshl_b32 s{S_T2}, s{S_T4}, 13")
    P(f"s_add_u32 s{S_T2}, s{S_T2}, s{S_T7}")
    P(f"s_add_u32 s{S_T6}, s{S_T6}, 1")
    P(f"buffer_load_dwordx4 v{vsl}, s[{S_WQ}:{S_WQ+3}], s{S_T2} offen lds")
    P.I[-1].kind = "salu"
    P(f"s_cmp_lg_u32 s{S_T6}, s{S_T5}")
    P(f"s_cbranch_scc1 {label}")


def emit_loads(P, l16, vsl, sfx):
    if sfx == "h":
        P(f"s_lshr_b32 s{S_T4}, s{S_J}, 1")
        P(f"s_lshl_b32 s{S_T4}, s{S_T4}, 4")
        P(f"s_mul_i32 s{S_T1}, s{S_W}, 12")
        P(f"s_add_u32 s{S_T4}, s{S_T4}, s{S_T1}")
        P(f"s_add_u32 s{S_T4}, s{S_T4}, 16")
        P(f"s_lshl_b32 s{S_T0}, s{S_G}, 16")
        P(f"s_and_b32 s{S_T6}, s{S_J}, 3")
        P(f"s_mul_i32 s{S_T6}, s{S_T6}, 3")
        P(f"s_mov_b32 s{S_T5}, 12")
        mk_srd(P, S_X, 4, SZ["x"])
        P("LF_ldx1:")
        P(f"s_add_u32 s{S_T1}, s{S_T6}, s{S_T4}")
        P(f"s_and_b32 s{S_T1}, s{S_T1}, 63")
        P(f"s_mul_i32 m0, s{S_T1}, {X_STRIDE}")
        P(f"s_lshl_b32 s{S_T2}, s{S_T1}, 10")
        P(f"s_add_u32 s{S_T2}, s{S_T2}, s{S_T0}")
        P(f"s_add_u32 s{S_T6}, s{S_T6}, 1")
        P(f"s_cmp_eq_u32 s{S_T6}, 12")
        P(f"s_cselect_b32 s{S_T6}, 0, s{S_T6}")
        P(f"buffer_load_dwordx4 v{l16}, s[{S_X}:{S_X+3}], s{S_T2} offen lds", tag="q")
        P(f"s_sub_u32 s{S_T5}, s{S_T5}, 1")
        P(f"s_cmp_lg_u32 s{S_T5}, 0")
        P("s_cbranch_scc1 LF_ldx1")
    else:
        mk_srd(P, S_WQ, 6, SZ["wq"])
        P(f"s_and_b32 s{S_T3}, s{S_W}, 3")
        P(f"s_lshl_b32 s{S_T3}, s{S_T3}, 3")
        wq_pieces(P, vsl, S_T3, 8, "LF_ldq1", 1)
        P(f"s_add_u32 s{S_T3}, s{S_T3}, 24")
        wq_pieces(P, vsl, S_T3, 8, "LF_ldq2", 1)


def prologue_f(P, V, endlabel):
    if STAMP["on"]: P("s_memrealtime s[100:101]")
    P("s_cmp_ge_u32 s2, 256")
    P(f"s_cbranch_scc1 {endlabel}")
    P("s_load_dwordx16 s[4:19], s[0:1], 0")
    P("s_load_dwordx8 s[20:27], s[0:1], 64")
    P("s_load_dwordx2 s[28:29], s[0:1], 96")
    lane = V.alloc("lane"); l16 = V.alloc("l16")
    P(f"v_lshrrev_b32 v1, 6, v0")
    P(f"v_and_b32 v{lane}, 63, v0")
    P(f"v_readfirstlane_b32 s{S_W}, v1")
    P(f"v_lshlrev_b32 v{l16}, 4, v{lane}")
    P(f"s_lshr_b32 s{S_T0}, s2, 3")
    if OPT.get("jrot"): P(f"s_add_u32 s{S_J}, s{S_T0}, {OPT['jrot']}"); P(f"s_and_b32 s{S_J}, s{S_J}, 3")
    else: P(f"s_and_b32 s{S_J}, s{S_T0}, 3")
    P(f"s_and_b32 s{S_T1}, s2, 1")
    P(f"s_lshl_b32 s{S_T1}, s{S_T1}, 2")
    P(f"s_add_u32 s{S_J}, s{S_J}, s{S_T1}")
    P(f"s_and_b32 s{S_G}, s2, 6")
    P(f"s_lshl_b32 s{S_G}, s{S_G}, 2")
    P(f"s_lshr_b32 s{S_T0}, s{S_T0}, 2")
    P(f"s_add_u32 s{S_G}, s{S_G}, s{S_T0}")
    t0 = V.alloc("t0"); t1 = V.alloc("t1")
    vsl = slice_pattern(P, V, lane, t0)
    LOADS["f"] = lambda sfx: emit_loads(P, l16, vsl, sfx)
    P(f"s_and_b32 s{S_TT}, s{S_W}, 1")
    P(f"s_lshl_b32 s{S_TILE}, s{S_G}, 1")
    P(f"s_add_u32 s{S_TILE}, s{S_TILE}, s{S_TT}")
    P(f"s_lshr_b32 s{S_HP}, s{S_W}, 1")
    P(f"s_and_b32 s{S_HP}, s{S_HP}, 1")
    P(f"s_lshr_b32 s{S_KH}, s{S_W}, 2")
    assert all((p * 171) >> 12 == p // 24 for p in range(64)) and SLOT_SZ == 3 * 8192 + 256
    return lane, l16, t0, t1, vsl


def rest_srds(P):
    P(f"s_cmp_eq_u32 s{S_TT}, 0")
    P(f"s_cselect_b32 s{S_WM}, s16, s18")
    P(f"s_cselect_b32 s{S_WM+1}, s17, s19")
    P(f"s_and_b32 s{S_WM+1}, s{S_WM+1}, 0xffff")
    P(f"s_mov_b32 s{S_WM+2}, 0x{SZ['wg']:x}")
    P(f"s_mov_b32 s{S_WM+3}, 0x20000")
    mk_srd(P, S_OUT, 24, SZ["out"])
    mk_srd(P, S_WO, 12, SZ["wo"])
    mk_srd(P, S_WD, 20, SZ["wd"])


def nonce_check(P, SL, vn, vz):
    k = SL.n; SL.n += 1
    P(f"v_readfirstlane_b32 s{S_NONCE}, v{vn}")
    P(f"s_cmp_lg_u32 s{S_NONCE}, 0")
    P(f"s_cbranch_scc1 LR{k}")
    raw(P, f"""{cnt(1+k)}    s_mov_b32 s{S_T7}, 0
LS{k}_l:
    s_sleep 2
    buffer_load_dword v{vn}, v{vz}, s[{S_DBG}:{S_DBG+3}], 0 offen sc1
    s_waitcnt vmcnt(0)
    v_readfirstlane_b32 s{S_NONCE}, v{vn}
    s_add_u32 s{S_T7}, s{S_T7}, 1
    s_cmp_ge_u32 s{S_T7}, 0x{SPIN_MAX:x}
    s_cbranch_scc1 LR{k}
    s_cmp_eq_u32 s{S_NONCE}, 0
    s_cbranch_scc1 LS{k}_l
""")
    P(f"LR{k}:")
    P("s_nop 0")


def flag_load(vf, n, vaddr, soff):
    op = {1: "buffer_load_dword", 4: "buffer_load_dwordx4"}[n]
    return f"{op} {vr(vf,n)}, v{vaddr}, {WSR}, {soff} offen sc1"


def flag_cmp(vf, n, t):
    L = [f"v_xor_b32 v{t}, s{S_NONCE}, v{vf}"]
    for i in range(1, n):
        L += [f"v_xor_b32 v{vf+i}, s{S_NONCE}, v{vf+i}", f"v_or_b32 v{t}, v{t}, v{vf+i}"]
    L += [f"v_cmp_ne_u32 vcc, 0, v{t}"]
    return L


def spin_check(P, SL, loads, cmps, sleep=1):
    k = SL.n; SL.n += 1
    for x in cmps: P(x)
    P(f"s_cbranch_vccz LR{k}")
    nl = "\n    "
    raw(P, f"""{cnt(1+k)}    s_mov_b32 s{S_T7}, 0
LS{k}_l:
    {f"s_sleep {sleep}" if sleep else "s_nop 0"}
    {nl.join(loads)}
    s_waitcnt vmcnt(0)
    {nl.join(cmps)}
    s_add_u32 s{S_T7}, s{S_T7}, 1
    s_cmp_ge_u32 s{S_T7}, 0x{SPIN_MAX:x}
    s_cbranch_scc1 LR{k}
    s_cbranch_vccnz LS{k}_l
""")
    P(f"LR{k}:")


def flag_store(P, vz, t, soff):
    P(f"v_mov_b32 v{t}, s{S_NONCE}")
    P("s_mov_b64 exec, 1")
    P(f"buffer_store_dword v{t}, v{vz}, {WSR}, s{soff} offen sc1", tag="flag")
    P("s_mov_b64 exec, -1")


PROG = MISC + 1024
class SplitBar:
    def __init__(self, P, V, SL, lane, t0):
        self.P, self.SL, self.n = P, SL, 0
        self.va = V.alloc("sba"); self.vr = V.alloc("sbr"); self.one = V.alloc("sb1"); self.vg = V.alloc("sbg")
        P(f"s_lshl_b32 s{S_T0}, s{S_W}, 8")
        P(f"s_add_u32 s{S_T0}, s{S_T0}, 0x{PROG:x}")
        P(f"v_lshlrev_b32 v{t0}, 2, v{lane}")
        P(f"v_add_u32 v{self.va}, s{S_T0}, v{t0}")
        P(f"v_and_b32 v{t0}, 7, v{lane}")
        P(f"v_mul_u32_u24 v{t0}, 260, v{t0}")
        P(f"v_add_u32 v{self.vr}, 0x{PROG:x}, v{t0}")
        P(f"v_mov_b32 v{self.one}, 0")
        P(f"ds_write_b32 v{self.va}, v{self.one}")
        P(f"v_mov_b32 v{self.one}, 1")
    def arrive(self):
        self.n += 1
        self.P(f"ds_add_u32 v{self.va}, v{self.one}")
    def peek(self): self.P(f"ds_read_b32 v{self.vg}, v{self.vr}")
    def check(self):
        k = self.SL.n; self.SL.n += 1
        self.P(f"v_cmp_gt_u32 vcc, {self.n}, v{self.vg}")
        self.P(f"s_cbranch_vccz LR{k}")
        self.P(f"LS{k}:")
        for t in ([f"s_sleep {OPT['ssl']}"] if OPT.get("ssl") else []) + [f"ds_read_b32 v{self.vg}, v{self.vr}", "s_waitcnt lgkmcnt(0)", f"v_cmp_gt_u32 vcc, {self.n}, v{self.vg}", f"s_cbranch_vccnz LS{k}"]:
            self.P(t); self.P.I[-1].kind = "salu"; self.P.I[-1].vw = set(); self.P.I[-1].vr = set()
        self.P(f"LR{k}:")


def attn_setup(P, V, lane, l16, t0, t1):
    A = {}
    P(f"s_lshl_b32 s{S_T1}, s{S_KH}, 12")
    vk = V.alloc("vk"); vv = [V.alloc("vv0"), V.alloc("vv1")]
    P(f"s_add_u32 s{S_T1}, s{S_T1}, 0x{KV_RING:x}")
    P(f"v_add_u32 v{vk}, s{S_T1}, v{l16}")
    P(f"v_lshrrev_b32 v{t0}, 5, v{lane}")
    P(f"v_lshlrev_b32 v{t0}, 8, v{t0}")
    P(f"v_and_b32 v{t1}, 15, v{lane}")
    P(f"v_lshl_add_u32 v{t0}, v{t1}, 4, v{t0}")
    P(f"v_and_b32 v{t1}, 16, v{lane}")
    P(f"v_cmp_eq_u32 vcc, 0, v{t1}")
    P(f"s_add_u32 s{S_T1}, s{S_T1}, 2048")
    for s in range(2):
        P(f"v_mov_b32 v{t1}, s{S_T1}")
        P(f"v_add_u32 v{t1}, {8192*s}, v{t1}")
        P(f"v_mov_b32 v{vv[s]}, 0x{ONES:x}")
        P(f"v_cndmask_b32 v{vv[s]}, v{t1}, v{vv[s]}, vcc")
        P(f"v_add_u32 v{vv[s]}, v{vv[s]}, v{t0}")
    P(f"s_lshl_b32 s{S_KVOFF}, s{S_KH}, 15")
    P(f"s_lshl_b32 s{S_T1}, s{S_HP}, 16")
    P(f"s_add_u32 s{S_KVOFF}, s{S_KVOFF}, s{S_T1}")
    P(f"s_lshl_b32 s{S_T1}, s{S_TT}, 10")
    P(f"s_add_u32 s{S_KVOFF}, s{S_KVOFF}, s{S_T1}")
    P(f"s_lshl_b32 s{S_KVLDS}, s{S_W}, 10")
    P(f"s_add_u32 s{S_KVLDS}, s{S_KVLDS}, 0x{KV_RING:x}")
    A.update(vk=vk, vv=vv)
    A["S"] = [V.alloc("Sa", 16), V.alloc("Sb", 16)]
    A["O"] = [V.alloc("Oa", 16), V.alloc("Ob", 16)]
    A["fk"] = V.alloc("fk", 4); A["fv"] = [V.alloc("fv1", 4), V.alloc("fv2", 4)]
    A["q"] = V.alloc("qf", 8)
    return A


def kv_dma(P, l16, c):
    dma(P, l16, S_WS, f"s{S_T2}", (S_KVLDS, 8192 * (c & 1)), tag=f"kv{c}", mods=SC1, pre=[f"s_add_u32 s{S_T2}, s{S_KVOFF}, {2048*c}"])


def attention(P, A, l16, its, hook, prio, kvf=None, bb=1):
    S, O, fk, fv = A["S"], A["O"], A["fk"], A["fv"]
    SB = OPT.get("sb", 0)
    q = [A["q"], A["q"] + 4]
    def rdK(it): P(f"ds_read_b128 {vr(fk,4)}, v{A['vk']} offset:{((it>>1)&1)*8192 + (it&1)*1024}")
    def rdV(it, half):
        m = OPT.get("vmask", 1) and it > 0
        if m: P(f"s_mov_b64 exec, s[{S_VM}:{S_VM+1}]")
        P(f"ds_read_b128 {vr(fv[half],4)}, v{A['vv'][(it>>1)&1]} offset:{(it&1)*1024 + half*512}")
        if m: P("s_mov_b64 exec, -1")
    E = lambda x, i: P(f"v_exp_f32 v{S[x]+i}, v{S[x]+i}")
    def C(x, i):
        b = S[x] + (8 if i >= 4 else 0); k = i & 3
        P(f"v_cvt_pk_bf16_f32 v{b+k}, v{b+2*k}, v{b+2*k+1}")
    for it in its:
        if it == 0:
            if OPT.get("vmask", 1): P(f"s_mov_b32 s{S_VM}, 0xffff0000"); P(f"s_mov_b32 s{S_VM+1}, 0xffff0000")
            rdK(0); rdV(0, 0)
            hook(0, 0, "start")
            P(mfma(S[0], fk, q[0]))
        for x in range(2):
            H = lambda pos: hook(it, x, pos)
            E(x, 0); E(x, 1)
            if x == 0:
                if it > 0: P(mfma(O[1], fv[1], S[1] + 8, O[1]))
                rdV(it, 1)
            else:
                P(mfma(O[0], fv[1], S[0] + 8, O[0]))
            H("pv2")
            E(x, 2); E(x, 3); H("g1")
            E(x, 4); E(x, 5); H("g2")
            E(x, 6); E(x, 7)
            if bb:
                H("g3")
                for i in range(4): C(x, i)
            if x == 0: P(mfma(S[1], fk, q[1]))
            elif it < 31: P(mfma(S[0], fk, q[0]))
            H("qk")
            sig = (x == 0 and (it & 1) and it < 31)
            syn = sig or (x == 0 and hook(it, x, "sync?"))
            ORD = OPT.get("ord", 2) if syn else 0
            if bb:
                E(x, 8); E(x, 9); H("g4")
                E(x, 10); E(x, 11)
                if ORD == 2: P(mfma(O[x], fv[0], S[x], None if it == 0 else O[x]))
            else:
                for i in range(4): C(x, i)
                if ORD == 0: H("g3")
                E(x, 8); E(x, 9)
                if ORD == 2: P(mfma(O[x], fv[0], S[x], None if it == 0 else O[x])); H("g3")
            if syn:
                H("pre0")
                if sig: P.wait_tag(f"kv{(it>>1)+1}")
                H("pre")
                P.wait_lgkm_all()
                P("s_barrier")
            if ORD != 2: P(mfma(O[x], fv[0], S[x], None if it == 0 else O[x]))
            p = prio(it, x)
            if p is not None: P(f"s_setprio {p}")
            if x == 0:
                if it < 31: rdK(it + 1)
                if (it & 1) and (it >> 1) + 2 < 16: (kvf or (lambda c: kv_dma(P, l16, c)))((it >> 1) + 2)
                if syn: hook(it, 0, "chk")
            else:
                if it < 31: rdV(it + 1, 0)
            H("pv1")
            if not bb: E(x, 10); E(x, 11); H("g4")
            E(x, 12); E(x, 13); H("g5")
            E(x, 14); E(x, 15); H("g6")
            for i in range(4, 8): C(x, i)
        if it == 31: P(mfma(O[1], fv[1], S[1] + 8, O[1]))


def fin_dma_w1(P, vsl, st, slot, tag, i):
    srd, u0 = (S_WD, 8 * st) if st < 11 else (S_WO, 8 * (st - 11))
    dma(P, vsl, srd, f"s{S_T2}", (S_FL2, slot + 1024 * i), tag=tag, pre=[f"s_add_u32 s{S_T2}, s{S_FW}, 0x{(16*u0 + 8*i)*1024:x}"])


def fin_dma_w2(P, vsl, st, slot, tag, i, other):
    dma(P, vsl, S_WD, f"s{S_T2}", (S_FL2, (slot + 1024 * i - 8192 * other) & 0xffffffff), tag=tag,
        pre=[f"s_add_u32 s{S_T2}, s{S_FW}, 0x{((128*st + 8*i)*1024 - 65536*other) & 0xffffffff:x}"])


def fin_dma_b1(P, l16, st, slot, tag, t):
    P(f"s_add_u32 s{S_T2}, s{S_FB}, 0x{(t*118 + 8*st)*1024:x}")
    if st == 10:
        P(f"s_cmp_lt_u32 s{S_W}, 6")
        P(f"s_cselect_b32 s{S_T2}, s{S_T2}, 0x{OOB:x}")
    dma(P, l16, S_WS, f"s{S_T2}", (S_FL, slot + 16384 + 8192 * t), tag=tag, mods=SC1)


def kernel_F():
    P = Prog(); V = Regs(2, 255, "v"); SL = Slow()
    NP = OPT.get("np", 1)
    JIT = 16 - NP
    GPP = OPT.get("gpp", 2)
    UNI = OPT.get("uni", JIT + 2)
    HF = OPT.get("hf", UNI | 1)
    lane, l16, t0, t1, vsl = prologue_f(P, V, "LF_end")
    vz = V.alloc("vz")
    P(f"s_cmp_lg_u32 s{S_W}, 7")
    P("s_cbranch_scc1 LF_not7")
    P(f"s_lshr_b32 s{S_T4}, s{S_J}, 1")
    P(f"s_lshl_b32 s{S_T0}, s{S_G}, 16")
    P(f"s_lshl_b32 s{S_T2}, s{S_T4}, 14")
    P(f"s_add_u32 s{S_T2}, s{S_T2}, s{S_T0}")
    P(f"s_mul_i32 m0, s{S_T4}, {16*X_STRIDE}")
    P(f"s_and_b32 s{S_T3}, s{S_J}, 1")
    P(f"s_mov_b32 s{S_T5}, 0")
    P("s_waitcnt lgkmcnt(0)")
    mk_srd(P, S_X, 4, SZ["x"])
    if OPT.get("u7", 1):
        P(f"s_sub_u32 s{S_X}, s{S_X}, 64")
        P(f"s_subb_u32 s{S_X+1}, s{S_X+1}, 0")
        P(f"s_mov_b32 s{S_X+2}, 0x{SZ['x'] + 64:x}")
        P(f"s_add_u32 s{S_T2}, s{S_T2}, 64")
        for g in range(4):
            for k in range(4):
                if k == 0:
                    if g: P(f"s_add_u32 m0, m0, {4*X_STRIDE}"); P(f"s_add_u32 s{S_T2}, s{S_T2}, {4096 + 48}")
                else: P(f"s_sub_u32 s{S_T2}, s{S_T2}, 16")
                P(f"buffer_load_dwordx4 v{l16}, s[{S_X}:{S_X+3}], s{S_T2} offen offset:{X_STRIDE*k} lds", tag="c")
    else:
        P("LF_ldx7:")
        P(f"buffer_load_dwordx4 v{l16}, s[{S_X}:{S_X+3}], s{S_T2} offen lds", tag="c")
        P(f"s_add_u32 m0, m0, {X_STRIDE}")
        P(f"s_add_u32 s{S_T2}, s{S_T2}, 1024")
        P(f"s_add_u32 s{S_T5}, s{S_T5}, 1")
        P(f"s_cmp_lg_u32 s{S_T5}, 16")
        P("s_cbranch_scc1 LF_ldx7")
    P(f"s_cmp_eq_u32 s{S_T3}, 0")
    P(f"s_cselect_b32 s{S_WKV}, s8, s10")
    P(f"s_cselect_b32 s{S_WKV+1}, s9, s11")
    P(f"s_and_b32 s{S_WKV+1}, s{S_WKV+1}, 0xffff")
    P(f"s_mov_b32 s{S_WKV+2}, 0x{SZ['wk']:x}")
    P(f"s_mov_b32 s{S_WKV+3}, 0x20000")
    P(f"s_mov_b32 m0, 0x{WKV_L:x}")
    P(f"s_mov_b32 s{S_T5}, 0")
    P("LF_ldw7:")
    for i in range(4):
        P(f"buffer_load_dwordx4 v{l16}, s[{S_WKV}:{S_WKV+3}], s{S_T5} offen offset:{1024*i} lds")
        P.I[-1].kind = "salu"
    P(f"s_add_u32 m0, m0, 4096")
    P(f"s_add_u32 s{S_T5}, s{S_T5}, 4096")
    P(f"s_cmp_lg_u32 s{S_T5}, 16384")
    P("s_cbranch_scc1 LF_ldw7")
    stamp(P, 15)
    P("s_barrier")
    P("LF_not7:")
    P("s_waitcnt lgkmcnt(0)")
    if OPT.get("cpf", 1):
        c = V.alloc("cpf")
        P(f"s_getpc_b64 s[{S_EX}:{S_EX+1}]")
        P("LF_pc0:")
        P(f"s_lshr_b32 s{S_T3}, s2, 3")
        P(f"s_lshl_b32 s{S_T3}, s{S_T3}, 3")
        P(f"s_add_u32 s{S_T3}, s{S_T3}, s{S_W}")
        P(f"s_lshl_b32 s{S_T3}, s{S_T3}, 8")
        P(f"v_lshlrev_b32 v{c}, 7, v{lane}")
        P(f"v_add_u32 v{c}, s{S_T3}, v{c}")
        P(f"v_min_u32 v{c}, LF_last-LF_pc0, v{c}")
        P("s_mov_b64 exec, 3")
        P(f"global_load_dword v{c}, v{c}, s[{S_EX}:{S_EX+1}]", tag="cpf")
        P("s_mov_b64 exec, -1")
    P(f"v_mov_b32 v{vz}, 0")
    if OPT.get("cnt"): P("s_mov_b32 s85, 0")
    mk_srd(P, S_WS, 28, SZ["ws"])
    mk_srd(P, S_DBG, 26, SZ["dbg"])
    vn = V.alloc("vn")
    P(f"s_or_b32 s{S_T0}, s2, s{S_W}")
    P(f"s_cmp_lg_u32 s{S_T0}, 0")
    P("s_cbranch_scc1 LF_non")
    P.cond_begin()
    P(f"s_memrealtime s[{S_EX}:{S_EX+1}]")
    P("s_waitcnt lgkmcnt(0)")
    P(f"s_mul_i32 s{S_EX+1}, s{S_EX+1}, 0x9e3779b1")
    P(f"s_xor_b32 s{S_EX}, s{S_EX}, s{S_EX+1}")
    P(f"s_or_b32 s{S_EX}, s{S_EX}, 1")
    P(f"v_mov_b32 v{t0}, s{S_EX}")
    P("s_mov_b64 exec, 1")
    P(f"buffer_store_dword v{t0}, v{vz}, s[{S_DBG}:{S_DBG+3}], 0 offen sc1")
    P("s_mov_b64 exec, -1")
    P.cond_end()
    P("LF_non:")
    P_main = P; P = Prog()
    rest_srds(P)
    mk_srd(P, S_GW, 22, SZ["gw"])
    P(f"s_mov_b32 s{S_C1}, {hexf(2.0**120)}")
    A = attn_setup(P, V, lane, l16, t0, t1)
    qf = A["q"]; O = A["O"]; S = A["S"]
    A["sb"] = SplitBar(P, V, SL, lane, t0) if OPT.get("sb", 0) else type("X", (), dict(n=0))()
    vfl = V.alloc("vfl", 4)
    P(f"s_lshl_b32 s{S_T0}, s{S_HP}, 1")
    P(f"s_add_u32 s{S_T0}, s{S_T0}, s{S_KH}")
    P(f"s_lshl_b32 s{S_T1}, s{S_J}, 2")
    P(f"s_add_u32 s{S_T0}, s{S_T0}, s{S_T1}")
    P(f"s_mul_i32 s{S_T1}, s{S_TILE}, 118")
    P(f"s_add_u32 s{S_T0}, s{S_T0}, s{S_T1}")
    P(f"s_lshl_b32 s{S_T0}, s{S_T0}, 10")
    P(f"s_add_u32 s{S_OD}, s{S_T0}, 0x{WS_OH + 86*1024:x}")
    def poison():
        for r in range(4): P(f"v_mov_b32 v{O[0]+r}, -1")
        P(f"buffer_store_dwordx4 {vr(O[0],4)}, v{l16}, {WSR}, s{S_OD} offen sc1", tag="poison")
    P(f"s_lshr_b32 s{S_T0}, s{S_W}, 1")
    P(f"s_lshl_b32 s{S_T0}, s{S_T0}, 3")
    P(f"s_add_u32 s{S_T0}, s{S_T0}, s{S_T1}")
    P(f"s_lshl_b32 s{S_T0}, s{S_T0}, 10")
    P(f"s_add_u32 s{S_OL}, s{S_T0}, 0x{WS_OH + 86*1024:x}")
    P(f"s_lshl_b32 s{S_FP}, s{S_G}, 10")
    P(f"s_lshl_b32 s{S_FS}, s{S_J}, 5")
    P(f"s_add_u32 s{S_FS}, s{S_FS}, s{S_W}")
    P(f"s_lshl_b32 s{S_FS}, s{S_FS}, 2")
    P(f"s_add_u32 s{S_FS}, s{S_FS}, s{S_FP}")
    P(f"s_add_u32 s{S_FS}, s{S_FS}, 0x{FL_H:x}")
    P(f"s_add_u32 s{S_FP}, s{S_FP}, 0x{FL_H:x}")
    P(f"s_lshl_b32 s{S_FW}, s{S_W}, 14")
    P(f"s_lshl_b32 s{S_T1}, s{S_J}, 7")
    P(f"s_add_u32 s{S_FW}, s{S_FW}, s{S_T1}")
    P(f"s_lshl_b32 s{S_FL2}, s{S_W}, 11")
    P(f"s_mul_i32 s{S_U0}, s{S_J}, 11")
    P(f"s_min_u32 s{S_U0}, s{S_U0}, 76")
    P(f"s_cmp_ge_u32 s{S_J}, 6")
    P(f"s_cselect_b32 s{S_NU}, 10, 11")
    vxa = xfrag_addr(P, V, "vxa", lane, t0, S_TT)
    vq = V.alloc("vq")
    P(f"s_and_b32 s{S_T0}, s{S_W}, 3")
    P(f"s_lshl_b32 s{S_T1}, s{S_T0}, 11")
    P(f"s_add_u32 s{S_T1}, s{S_T1}, 0x{QSCR:x}")
    P(f"v_add_u32 v{vq}, s{S_T1}, v{l16}")
    COMMON = P.I; P = P_main
    def emit(L):
        for x in L: P(x.text, tag=x.tag)
    iw = next(i for i, x in enumerate(COMMON) if x.text.startswith(f"s_mov_b32 s{S_WM+3},")) + 1
    iu = next(i for i, x in enumerate(COMMON) if x.text.startswith(f"s_mul_i32 s{S_U0},"))
    C_EARLY = COMMON[:iw] + COMMON[iu:iu + 4]; C_LATE = COMMON[iw:iu] + COMMON[iu + 4:]
    acc = [[V.alloc(f"acc{i}{t}", 16) for t in range(2)] for i in range(3)]
    fx = [[V.alloc(f"fx{b}{t}", 4) for t in range(2)] for b in range(2)]
    fw = [[V.alloc(f"fw{b}{i}", 4) for i in range(3)] for b in range(2)]
    S_PFB = 19
    def capture(f):
        nonlocal P
        P0 = P; P = Prog(); f(); L = P.I; P = P0
        return L
    R = {}
    def f1():
        vtn = tr_slice_addr(P, V, "vtn", lane, t0, t1, SLOT[0], S_HP, 8)
        vpf = V.alloc("vpf"); vpd = V.alloc("vpd"); vpw = V.alloc("vpw")
        P(f"v_bfe_u32 v{t0}, v{lane}, 4, 1")
        P(f"v_lshrrev_b32 v{t1}, 5, v{lane}")
        P(f"v_lshl_add_u32 v{t0}, v{t1}, 7, v{t0}")
        P(f"v_mul_u32_u24 v{vpf}, 2752, v{t0}")
        P(f"v_and_b32 v{t0}, 15, v{lane}")
        P(f"v_lshl_add_u32 v{vpf}, v{t0}, 7, v{vpf}")
        P(f"v_cmp_gt_u32 vcc, 12, v{t0}")
        P(f"v_mov_b32 v{t1}, 0x{OOB:x}")
        P(f"v_cndmask_b32 v{vpf}, v{t1}, v{vpf}, vcc")
        P(f"s_lshr_b32 s{S_T0}, s2, 3")
        P(f"s_lshl_b32 s{S_T0}, s{S_T0}, 1")
        P(f"s_add_u32 s{S_T0}, s{S_T0}, s{S_HP}")
        P(f"s_mul_i32 s{S_T0}, s{S_T0}, {2*2752}")
        P(f"s_and_b32 s{S_T1}, s2, 1")
        P(f"s_mul_i32 s{S_T1}, s{S_T1}, {44*32}")
        P(f"s_add_u32 s{S_PFB}, s{S_T0}, s{S_T1}")
        R.update(vtn=vtn, vpf=vpf, vpd=vpd, vpw=vpw)
    def f2():
        vx0 = V.alloc("vx0")
        P(f"s_mul_i32 s{S_T0}, s{S_TT}, {32*X_STRIDE}")
        P(f"v_subrev_u32 v{vx0}, s{S_T0}, v{vxa}")
        P(f"s_lshl_b32 s{S_T4}, s{S_W}, 1")
        wtr = w_tr_addrs(P, V, lane, t0, t1, s_w=S_T4)
        R.update(vx0=vx0, wtr=wtr)
    def f3():
        P(f"s_mul_i32 s{S_T0}, s{S_W}, 3")
        P(f"s_mul_i32 s{S_T1}, s{S_G}, 236")
        P(f"s_add_u32 s{S_T1}, s{S_T1}, s{S_U0}")
        for i in range(3):
            P(f"s_add_u32 s{S_T2}, s{S_T0}, {i}")
            P(f"s_add_u32 s{SH[i]}, s{S_T1}, s{S_T2}")
            P(f"s_lshl_b32 s{SH[i]}, s{SH[i]}, 10")
            P(f"s_add_u32 s{SH[i]}, s{SH[i]}, 0x{WS_OH:x}")
            P(f"s_cmp_lt_u32 s{S_T2}, s{S_NU}")
            P(f"s_cselect_b32 s{SH[i]}, s{SH[i]}, 0x{OOB:x}")
    def f4():
        vpw = R["vpw"]
        S_PFS = S_WKV
        P(f"s_lshr_b32 s{S_T0}, s2, 3")
        P(f"s_lshl_b32 s{S_T0}, s{S_T0}, 2")
        P(f"s_add_u32 s{S_T0}, s{S_T0}, s{S_W}")
        P(f"s_cmp_lt_u32 s{S_T0}, 86")
        P(f"s_cselect_b32 s{S_PFS}, s{S_WD}, s{S_WO}")
        P(f"s_cselect_b32 s{S_PFS+1}, s{S_WD+1}, s{S_WO+1}")
        P(f"s_cselect_b32 s{S_PFS+2}, s{S_WD+2}, s{S_WO+2}")
        P(f"s_cselect_b32 s{S_T1}, 0, 86")
        P(f"s_mov_b32 s{S_PFS+3}, 0x20000")
        P(f"s_sub_u32 s{S_T0}, s{S_T0}, s{S_T1}")
        P(f"s_lshl_b32 s{S_T0}, s{S_T0}, 14")
        P(f"s_and_b32 s{S_T1}, s2, 1")
        P(f"s_lshl_b32 s{S_T1}, s{S_T1}, 9")
        P(f"s_add_u32 s{S_T0}, s{S_T0}, s{S_T1}")
        P(f"v_lshrrev_b32 v{t0}, 2, v{lane}")
        P(f"v_lshlrev_b32 v{t0}, 10, v{t0}")
        P(f"v_and_b32 v{t1}, 3, v{lane}")
        P(f"v_lshl_add_u32 v{t0}, v{t1}, 7, v{t0}")
        P(f"v_add_u32 v{vpw}, s{S_T0}, v{t0}")
    ix = next(i for i, x in enumerate(COMMON) if x.text.startswith(f"v_and_b32 v{t0}, 31, v{lane}"))
    ia = next(i for i, x in enumerate(COMMON) if x.text.startswith(f"s_mov_b32 s{S_C1},")) + 1
    io = next(i for i, x in enumerate(COMMON) if x.text.startswith(f"s_lshl_b32 s{S_T0}, s{S_HP}, 1"))
    ifl = next(i for i, x in enumerate(COMMON) if x.text.startswith(f"s_lshl_b32 s{S_FP},"))
    H_PRE = COMMON[ix:ix + 6] + COMMON[:iw] + capture(f1)
    H_MID = COMMON[ia:io] + COMMON[ix + 6:] + capture(f2) + COMMON[io:ifl]
    H_LATE = [COMMON[iw:iw + 8], COMMON[iw + 8:ia], COMMON[ifl:iu], COMMON[iu:iu + 4]]
    sh = capture(f3); H_LATE += [sh[:9], sh[9:15], sh[15:]]
    wp = capture(f4); H_LATE += [wp[:14], wp[14:]]
    vtn, vpf, vpd, vpw, vx0, wtr = (R[k] for k in ("vtn", "vpf", "vpd", "vpw", "vx0", "wtr"))
    S_PFS = S_WKV
    def pf(blk, half):
        P(f"s_add_u32 s{S_T4}, s{S_PFB}, {128*2752*blk}")
        if half: P("s_mov_b64 exec, 0xffffffff")
        P(f"buffer_load_dword v{vpd}, v{vpf}, s[{S_WM}:{S_WM+3}], s{S_T4} offen", tag="pf")
        P.I[-1].vw = set()
        if half: P("s_mov_b64 exec, -1")
    PF = OPT.get("pf", 1)
    KT = 192; vx16 = 240; vw16 = 241; vst = 242; S_K5, S_K6 = S_T5, S_T6
    P(f"s_cmp_lg_u32 s{S_W}, 7")
    P("s_cbranch_scc1 LF_not7b")
    P.cond_begin()
    P(f"s_lshr_b32 s{S_T0}, s{S_J}, 1")
    P(f"s_lshl_b32 s{S_T1}, s{S_T0}, 4")
    P(f"v_and_b32 v{t0}, 15, v{lane}")
    P(f"v_add_u32 v{t1}, s{S_T1}, v{t0}")
    P(f"v_mul_u32_u24 v{vx16}, {X_STRIDE}, v{t1}")
    P(f"v_lshrrev_b32 v{t1}, 4, v{lane}")
    P(f"v_lshl_add_u32 v{vx16}, v{t1}, 4, v{vx16}")
    P(f"v_lshlrev_b32 v{vw16}, 8, v{t1}")
    P(f"v_lshl_add_u32 v{vw16}, v{t0}, 3, v{vw16}")
    P(f"v_add_u32 v{vw16}, 0x{WKV_L:x}, v{vw16}")
    P(f"s_and_b32 s{S_K6}, s{S_J}, 1")
    P(f"s_cmp_eq_u32 s{S_K6}, 0")
    P(f"s_cselect_b32 s{S_T3}, 9, 8")
    P(f"s_cselect_b32 s{S_T4}, 8, 9")
    P(f"s_cselect_b32 s{S_K5}, 0x{WS_KF:x}, 0x{WS_VF:x}")
    P(f"v_lshlrev_b32 v{vst}, 4, v{t0}")
    P(f"v_lshrrev_b32 v{t0}, 1, v{t1}")
    P(f"v_lshl_add_u32 v{vst}, v{t0}, 3, v{vst}")
    P(f"v_and_b32 v{t0}, 1, v{t1}")
    P(f"v_lshlrev_b32 v{t0}, s{S_T3}, v{t0}")
    P(f"v_add_u32 v{vst}, v{vst}, v{t0}")
    P(f"s_and_b32 s{S_T1}, s{S_T0}, 1")
    P(f"s_lshl_b32 s{S_T1}, s{S_T1}, s{S_T4}")
    P(f"s_add_u32 s{S_K5}, s{S_K5}, s{S_T1}")
    P(f"s_lshr_b32 s{S_T0}, s{S_T0}, 1")
    P(f"s_lshl_b32 s{S_T1}, s{S_G}, 1")
    P(f"s_add_u32 s{S_T0}, s{S_T0}, s{S_T1}")
    P(f"s_lshl_b32 s{S_T0}, s{S_T0}, 10")
    P(f"s_add_u32 s{S_K5}, s{S_K5}, s{S_T0}")
    P("s_waitcnt vmcnt(0)")
    P(f"buffer_load_dword v{vn}, v{vz}, s[{S_DBG}:{S_DBG+3}], 0 offen sc1")
    def kv16(which):
        d = KT
        xb = [(KT+16) + 4 * i for i in range(4)]; wb = [(KT+32) + 4 * i for i in range(4)]
        def ld(ks):
            P(f"ds_read_b128 {vr(xb[ks%4],4)}, v{vx16} offset:{ks*64}")
            P(f"ds_read_b64_tr_b16 {vr(wb[ks%4],2)}, v{vw16} offset:{ks*1024}")
            P(f"ds_read_b64_tr_b16 {vr(wb[ks%4]+2,2)}, v{vw16} offset:{ks*1024+128}")
        for ks in range(3): ld(ks)
        for ks in range(16):
            a, b = (wb[ks%4], xb[ks%4]) if which == 0 else (xb[ks%4], wb[ks%4])
            P(f"v_mfma_f32_16x16x32_bf16 {vr(d,4)}, {vr(a,4)}, {vr(b,4)}, {vr(d,4) if ks else 0}")
            if ks + 3 < 16: ld(ks + 3)
        if which == 0:
            P(f"s_mov_b32 s{S_T0}, {hexf(QK_SCALE)}")
            for r in range(4): P(f"v_mul_f32 v{d+r}, s{S_T0}, v{d+r}")
    P(f"s_cmp_eq_u32 s{S_K6}, 1")
    P("s_cbranch_scc1 LF_vch")
    P.cond_begin(); kv16(0); P.cond_end()
    P("s_branch LF_kvj")
    P("LF_vch:")
    P.cond_begin(); kv16(1); P.cond_end()
    P("LF_kvj:")
    for r in range(2): P(f"v_cvt_pk_bf16_f32 v{KT+4+r}, v{KT+2*r}, v{KT+2*r+1}")
    P(f"buffer_store_dwordx2 {vr(KT+4,2)}, v{vst}, {WSR}, s{S_K5} offen sc1")
    FB2 = OPT.get("fb2", 0)
    def w7flag():
        P(f"s_lshl_b32 s{S_T0}, s{S_G}, 3")
        P(f"s_add_u32 s{S_T0}, s{S_T0}, s{S_J}")
        P(f"s_lshl_b32 s{S_T0}, s{S_T0}, 2")
        P(f"s_add_u32 s{S_T0}, s{S_T0}, 0x{FL_KV:x}")
        P("s_waitcnt vmcnt(0)")
        nonce_check(P, SL, vn, vz)
        flag_store(P, vz, t0, S_T0)
    if not FB2: w7flag()
    def pf7():
        P(f"v_lshrrev_b32 v{t0}, 4, v{lane}")
        P(f"v_mul_u32_u24 v{vx16}, 2752, v{t0}")
        P(f"v_and_b32 v{t0}, 15, v{lane}")
        P(f"v_lshl_add_u32 v{vx16}, v{t0}, 7, v{vx16}")
        P(f"v_cmp_gt_u32 vcc, 12, v{t0}")
        P(f"v_mov_b32 v{t1}, 0x{OOB:x}")
        P(f"v_cndmask_b32 v{vx16}, v{t1}, v{vx16}, vcc")
        P(f"s_lshr_b32 s{S_T0}, s2, 3")
        P(f"s_mul_i32 s{S_T0}, s{S_T0}, {4*2752}")
        P(f"s_and_b32 s{S_T1}, s2, 1")
        P(f"s_mul_i32 s{S_T1}, s{S_T1}, {44*32}")
        P(f"s_add_u32 s{S_T0}, s{S_T0}, s{S_T1}")
        for m in range(2):
            mk_srd(P, S_WKV, 16 + 2 * m, SZ["wg"])
            P(f"buffer_load_dword v{fx[0][0]+m}, v{vx16}, s[{S_WKV}:{S_WKV+3}], s{S_T0} offen")
    if OPT.get("pf7", 1) == 1: pf7()
    stamp(P, 1)
    P("s_barrier")
    stamp(P, 2)
    if OPT.get("pf7", 1) == 2: pf7()
    if FB2 == 1: w7flag()
    P("s_barrier")
    if FB2 == 2: w7flag()
    P.cond_end(nowait=True)
    P("s_branch LF_light")
    P("LF_not7b:")
    P(f"s_cmp_lg_u32 s{S_KH}, 0")
    P("s_cbranch_scc1 LF_l0")

    def sigstamp(it, k):
        if OPT.get("sig"):
            P(f"s_memtime s[98:99]"); P("s_waitcnt lgkmcnt(0)"); P(f"v_writelane_b32 v{vsig}, s98, {2*it+k}")
    vsig = V.alloc("vsig") if OPT.get("sig") else None

    P.cond_begin()
    emit(H_PRE)
    stamp(P, 15)
    P("s_barrier")
    stamp(P, 0)
    LOADS["f"]("h")
    stamp(P, 1)
    if PF & 4: pf(0, True)
    P.wait_tag("q")
    P("s_barrier")
    stamp(P, 2)
    if PF & 2: pf(0, True)
    QD = 6
    xb = [acc[1][0] + 4 * i for i in range(QD)]; wb = [acc[2][0] + 4 * i for i in range(QD)]
    assert acc[1][1] == acc[1][0] + 16 and acc[2][1] == acc[2][0] + 16
    def q_loads(ks):
        o = SLOT[ks // 12] - SLOT[0] + (ks % 12) * 2048
        P(f"ds_read_b128 {vr(xb[ks%QD],4)}, v{vxa} offset:{ks*32}")
        P(f"ds_read_b64_tr_b16 {vr(wb[ks%QD],2)}, v{vtn} offset:{o}")
        P(f"ds_read_b64_tr_b16 {vr(wb[ks%QD]+2,2)}, v{vtn} offset:{o+512}")
    for ks in range(QD - 1): q_loads(ks)
    for ks in range(32):
        P(mfma(acc[0][0], wb[ks%QD], xb[ks%QD], acc[0][0] if ks else None))
        if ks in (11, 23):
            stamp(P, 11 if ks == 11 else 13)
            P("s_barrier")
        if ks + QD - 1 in (12, 24): P("s_barrier")
        if ks + QD - 1 < 32: q_loads(ks + QD - 1)
        nf = -(-len(H_MID) // 28)
        emit(H_MID[ks * nf:(ks + 1) * nf])
        if ks == OPT.get("pk", 30):
            P(f"s_mov_b32 s{S_T5}, 0x{FL_KV:x}")
            P(f"buffer_load_dword v{vn}, v{vz}, s[{S_DBG}:{S_DBG+3}], 0 offen sc1")
            P(flag_load(vfl, 4, l16, f"s{S_T5}"))
    for r in range(8): P(f"v_cvt_pk_bf16_f32 v{qf+r}, v{acc[0][0]+2*r}, v{acc[0][0]+2*r+1}")
    P(f"ds_write_b128 v{vq}, {vr(qf,4)}")
    P(f"ds_write_b128 v{vq}, {vr(qf+4,4)} offset:1024")
    def kv_check():
        nonce_check(P, SL, vn, vz)
        spin_check(P, SL, [flag_load(vfl, 4, l16, f"s{S_T5}")], flag_cmp(vfl, 4, t0), sleep=OPT.get("ksl", 6))
        kv_dma(P, l16, 0)
        dma(P, l16, S_WS, f"s{S_T2}", (S_KVLDS, 4096), tag="kv0", mods=SC1, pre=[f"s_add_u32 s{S_T2}, s{S_T2}, 32768"])
    if not OPT.get("kl", 1): kv_check()
    def gu_reads(ks):
        s, kk = ks // 2, ks % 2
        so = SLOT[s % 3] - SLOT[0] + kk * 6144
        L = [f"ds_read_b128 {vr(fx[ks%2][0],4)}, v{vx0} offset:{ks*32}"]
        for i in range(3):
            f = fw[ks % 2][i]
            L += [f"ds_read_b64_tr_b16 {vr(f,2)}, v{wtr[i]} offset:{so}", f"ds_read_b64_tr_b16 {vr(f+2,2)}, v{wtr[i]} offset:{so+1536}"]
            if i == 0: L.append(f"ds_read_b128 {vr(fx[ks%2][1],4)}, v{vx0} offset:{ks*32 + 32*X_STRIDE}")
        return L
    def gu_groups(ks, late=False):
        R = gu_reads(ks + 1) if ks < 31 else []
        if OPT.get("abl_hds") and ks >= 2 * NP - 1: R = []
        G = []
        for m in range(6):
            i, t = m // 2, m % 2
            mm = [mfma(acc[i][t], fw[ks % 2][i], fx[ks % 2][t], acc[i][t] if ks else None)]
            if OPT.get("abl_hm") and ks >= 2 * NP - 1: mm = []
            G.append(mm + (R[2 * m: 2 * m + 2] if not late else ([] if m < 3 else R[3 * (m - 3): 3 * (m - 3) + 3])))
        return G
    P.wait_lgkm_all()
    stamp(P, 14)
    P("s_barrier")
    stamp(P, 3)
    for x in gu_reads(0): P(x)
    if OPT.get("kl", 1): kv_check()
    PFI = OPT.get("pfi", 0)
    for ks in range(2 * NP - 1):
        if ks % 2 == 1:
            P.wait_lgkm_all(); P("s_barrier")
        for g in gu_groups(ks):
            for x in g: P(x)
    P.wait_tag("kv0"); P.wait_lgkm_all(); P("s_barrier")
    stamp(P, 4)
    gq = []
    tmp = fx[0][0]; cst = fx[1][0]
    assert fx[0][1] == fx[0][0] + 4
    gel = []
    def load_window(k):
        n = 2 * (NP + k) - 1
        assert not gq
        gq.extend(gu_groups(n, late=(k > 0 and OPT.get("sb", 0))))
        if n < 31: gq.extend(gu_groups(n + 1))
    def hookH(it, x, pos):
        if pos == "sync?": return 1 <= it <= JIT
        if pos == "pre0": sigstamp(it, 0); return
        if pos == "pre": sigstamp(it, 1); return
        if pos == "start": load_window(0); return
        if pos == "qk" and it == 3 and x == 0:
            for r in range(4): P(f"v_mov_b32 v{vfl+r}, -1")
            P(f"buffer_store_dwordx4 {vr(vfl,4)}, v{l16}, {WSR}, s{S_OD} offen sc1", tag="poison")
        if pos == "qk" and it == 4 and x == 0:
            P(f"buffer_store_dwordx4 {vr(vfl,4)}, v{l16}, {WSR}, s{S_OD} offen offset:1024 sc1", tag="poison")
        midprio(it, x, pos, PH)
        if pos in ("qk", "pv1") and H_LATE: emit(H_LATE.pop(0))
        if pos == "pv2" and x == 1 and PF & 1:
            if it == PFI: pf(1, True)
            if it == PFI + 2: pf(2, True)
            if it == PFI + 5: pf(3, True)
        if pos == "pv2" and x == 1 and OPT.get("wpf", 1) and it in (7, 8, 9, 10):
            k = it - 7
            P(f"s_cmp_lg_u32 s{S_W}, {k}")
            P(f"s_cbranch_scc1 LF_wp{k}")
            P(f"buffer_load_dword v{vpd}, v{vpw}, s[{S_PFS}:{S_PFS+3}], 0 offen")
            P.I[-1].kind = "salu"; P.I[-1].vw = set()
            P(f"LF_wp{k}:")
        if pos == "pv1" and x == 0 and 1 <= it <= JIT: load_window(it)
        if pos in ("g1", "g2", "g3", "g4", "g5", "g6"):
            cnt = int(str(OPT.get("gm", 111111))[int(pos[1]) - 1]) if gq else 1
            cnt = 0 if cnt == 9 else cnt
            if gq and cnt == 0: pass
            elif gq:
                for _ in range(cnt):
                    if gq:
                        for t in gq.pop(0): P(t)
                if not gq and it == JIT and x == 1:
                    L = [f"v_mov_b32 v{cst}, {hexf(GELU_C1)}", f"v_mov_b32 v{cst+1}, {hexf(GELU_C1)}",
                         f"v_mov_b32 v{cst+2}, {hexf(GELU_C2)}", f"v_mov_b32 v{cst+3}, {hexf(GELU_C2)}"]
                    k = 0
                    for i in range(3):
                        for t in range(2):
                            d = fw[k % 2][k // 2]; k += 1
                            L += gelu_tile_pk(acc[i][t], d, tmp, cst)
                            if t == 1: L.append(f"s_add_u32 s{SH[i]}, s{SH[i]}, {118*1024}")
                            L.append(f"buffer_store_dwordx4 {vr(d,4)}, v{l16}, {WSR}, s{SH[i]} offen sc1")
                    ns = (2 if OPT.get("bbh", 0) else 3) + 12 * (UNI - JIT - 1)
                    n = (len(L) + ns - 1) // ns
                    gel.extend(L[i:i + n] for i in range(0, len(L), n))
            elif gel:
                for t in gel.pop(0): P(t, tag="hst" if "store" in t else None)
    PM = OPT.get("pm", 9)
    PH = [int(c) for c in str(OPT.get("ph", 3321)).zfill(4)]; PL = [int(c) for c in str(OPT.get("pl", 3210)).zfill(4)]
    def prioH(it, x):
        if PM == 9: return PH[2 * x] if it < JIT else 3
        if PM == 1: return 3 if (it == 0 and x == 0) else None
        if PM == 3: return 3 - 2 * x
        if PM == 5: return (3 - 2 * x) if it < JIT else 3
        if PM == 6: return 3 if it >= JIT else None
        return None
    def prioL(it, x):
        if PM == 9: return PL[2 * x] if it < JIT else 0
        if PM in (2, 6): return 1 if (it == 0 and x == 0) else None
        if PM == 3: return 3 - 2 * x
        if PM == 5: return (3 - 2 * x) if it < JIT else 0
        return None
    def midprio(it, x, pos, T=None):
        if PM == 9 and pos == "pv2" and it <= JIT: P(f"s_setprio {T[1] if x else T[3]}")
        if PM in (3, 5) and pos == "pv2" and (PM == 3 or it <= JIT): P(f"s_setprio {2 * x}")
    attention(P, A, l16, range(0, UNI), hookH, prioH, kvf=lambda c: None, bb=OPT.get("bbh", 0))
    nsb = A["sb"].n; A["sb"].n = 0
    assert not gq and not gel, (len(gq), len(gel))
    P.cond_end(keep=True)
    P("s_branch LF_join")
    for n in ("vx0", "vtn", "wtr0", "wtr1", "wtr2", "vpf", "vpw"): V.release(n)

    P("LF_l0:")
    P.cond_begin()
    P("s_barrier")
    LOADS["f"]("l")
    stamp(P, 1)
    P("s_waitcnt vmcnt(8)")
    P("s_barrier")
    stamp(P, 2)
    P(f"s_cmp_eq_u32 s{S_W}, 6")
    P("s_cbranch_scc1 LF_l6")
    P(f"s_add_u32 s{S_T3}, s{S_T3}, 24")
    wq_pieces(P, vsl, S_T3, 8, "LF_ldq3", 1)
    P("s_waitcnt vmcnt(8)")
    P("s_branch LF_l6j")
    P("LF_l6:")
    P("s_waitcnt vmcnt(0)")
    P("LF_l6j:")
    P("s_barrier")
    P("LF_light:")
    emit(C_EARLY)

    pats = w_patterns(P, V, lane, t0, t1)
    P(f"s_lshl_b32 s{S_T0}, s{S_HP}, 1")
    P(f"s_mul_i32 s{S_WOFF}, s{S_T0}, {8*2752}")
    P(f"s_lshl_b32 s{S_T1}, s{S_U0}, 5")
    P(f"s_add_u32 s{S_WOFF}, s{S_WOFF}, s{S_T1}")
    P(f"s_mul_i32 s{S_WLDS}, s{S_T0}, 3072")
    P(f"s_mul_i32 s{S_T1}, s{S_TT}, {UP_OFF}")
    P(f"s_add_u32 s{S_WLDS}, s{S_WLDS}, s{S_T1}")
    inattn = dict(on=False)
    P(f"s_add_u32 s{S_WOFF}, s{S_WOFF}, 0")
    P(f"v_subrev_u32 v{pats[1]}, 1024, v{pats[1]}")
    P(f"v_subrev_u32 v{pats[2]}, 2048, v{pats[2]}")
    def w_dma1(s, k):
        g, i = k // 3, k % 3
        solo = not OPT.get("wm0", 1) or inattn["on"]
        if i == 0 or solo:
            dma(P, pats[i], S_WM, f"s{S_T3}", (S_WLDS, SLOT[s % 3] + 3072 * g), offset=1024 * i, tag=f"w{s}",
                pre=[f"s_add_u32 s{S_T3}, s{S_WOFF}, 0x{(32*s + 8*g)*2752:x}"] if i == 0 else None)
        else:
            P(f"buffer_load_dwordx4 v{pats[i]}, s[{S_WM}:{S_WM+3}], s{S_T3} offen offset:{1024*i} lds", tag=f"w{s}")
    def w_dma6(s):
        for k in range(6): w_dma1(s, k)
    stamp(P, 11)
    P("s_barrier")
    w_dma6(0)
    P("s_waitcnt vmcnt(6)"); P.I[-1].kind = "salu"
    P("s_barrier")
    h = len(C_LATE) // 4
    emit(C_LATE[:h])
    stamp(P, 13)
    P("s_barrier")
    w_dma6(1)
    emit(C_LATE[h:])
    dma(P, l16, S_GW, "0", (None, GWL), tag="gw")
    vgw = acc[0][1]
    P(f"v_lshrrev_b32 v{t0}, 5, v{lane}")
    P(f"v_lshlrev_b32 v{vgw}, 4, v{t0}")
    P(f"s_lshl_b32 s{S_T0}, s{S_HP}, 9")
    P(f"v_add_u32 v{vxa}, s{S_T0}, v{vxa}")
    P(f"s_add_u32 s{S_T0}, s{S_T0}, 0x{GWL:x}")
    P(f"v_add_u32 v{vgw}, s{S_T0}, v{vgw}")
    P(f"s_lshl_b32 s{S_T0}, s{S_W}, 8")
    P(f"s_add_u32 s{S_T0}, s{S_T0}, 0x{ONES - 1024:x}")
    P(f"v_lshlrev_b32 v{t0}, 2, v{lane}")
    P(f"v_add_u32 v{t0}, s{S_T0}, v{t0}")
    P(f"v_mov_b32 v{t1}, 0x3f803f80")
    P(f"v_lshrrev_b32 v1, 2, v{lane}")
    P(f"v_and_b32 v1, 11, v1")
    P(f"v_cmp_eq_u32 vcc, 0, v1")
    P(f"v_cndmask_b32 v{t1}, 0, v{t1}, vcc")
    P(f"ds_write_b32 v{t0}, v{t1}")
    P(f"ds_write_b32 v{t0}, v{t1} offset:1024")
    za = acc[0][0]; zx = [acc[1][0] + 4 * i for i in range(4)]; zg = [acc[2][0] + 4 * i for i in range(4)]
    def zjob():
        for r in range(4): P(f"v_mov_b32 v{za+r}, 0")
        def zld(k):
            P(f"ds_read_b128 {vr(zx[k%4],4)}, v{vxa} offset:{k*32}")
            P(f"ds_read_b128 {vr(zg[k%4],4)}, v{vgw} offset:{k*32}")
        for k in range(3): zld(k)
        for k in range(16):
            for r in range(4): P(f"v_dot2c_f32_bf16 v{za+r}, v{zx[k%4]+r}, v{zg[k%4]+r}")
            if k + 3 < 16: zld(k + 3)
        P("s_nop 2")
        P(f"v_add_f32 v{za}, v{za}, v{za+1}")
        P(f"v_add_f32 v{za+2}, v{za+2}, v{za+3}")
        P(f"v_add_f32 v{za}, v{za}, v{za+2}")
        P(f"s_and_b32 s{S_T0}, s{S_W}, 3")
        P(f"s_lshl_b32 s{S_T0}, s{S_T0}, 8")
        P(f"s_add_u32 s{S_T0}, s{S_T0}, 0x{MISC:x}")
        P(f"v_lshlrev_b32 v{t0}, 2, v{lane}")
        P(f"v_add_u32 v{t0}, s{S_T0}, v{t0}")
        P(f"ds_write_b32 v{t0}, v{za}")
    P(f"s_mov_b32 s{S_T6}, 0x{FL_KV:x}")
    def kv_both(c):
        kv_dma(P, l16, c)
        dma(P, l16, S_WS, f"s{S_T2}", (S_KVLDS, (8192 * (c & 1) - 4096) & 0xffffffff), tag=f"kv{c}", mods=SC1, pre=[f"s_sub_u32 s{S_T2}, s{S_T2}, 32768"])
    def poll_issue():
        P(f"buffer_load_dword v{vn}, v{vz}, s[{S_DBG}:{S_DBG+3}], 0 offen sc1")
        P(flag_load(vfl, 4, l16, f"s{S_T6}"))
    for s in range(0, NP + 1):
        P.wait_tag(f"w{s}")
        P.wait_lgkm_all()
        if s == 0: stamp(P, 14)
        P("s_barrier")
        if s == 0:
            stamp(P, 3)
            P(f"ds_read_b128 {vr(qf,4)}, v{vq} offset:1024")
            P(f"ds_read_b128 {vr(qf+4,4)}, v{vq}")
        if s == NP: kv_both(1)
        if s < NP: w_dma6(s + 2)
        if s == 0:
            P(f"buffer_load_dword v{vn}, v{vz}, s[{S_DBG}:{S_DBG+3}], 0 offen sc1")
            P.wait_tag("gw")
            zjob()
    assert NP >= 1
    stamp(P, 4)
    dq = []; wq2 = []
    def hookL(it, x, pos):
        if pos == "sync?": return 1 <= it <= JIT
        if pos == "pre0": sigstamp(it, 0); return
        if pos == "pre":
            if NP + it < 16: P.wait_tag(f"w{NP+it}")
            sigstamp(it, 1); return
        if (pos == "start" or pos == "chk") and NP + it + 2 < 16:
            assert not dq
            for k in range(0 if OPT.get("abl_ldma") else 6): dq.append(lambda s=NP + it + 2, k=k: w_dma1(s, k))
        midprio(it, x, pos, PL)
        LW = OPT.get("lw", 4)
        if pos == "chk" and it == JIT:
            for b in range(LW):
                for o in range(2):
                    for i in range(2): wq2.append(lambda b=b, o=o, i=i: fin_dma_w2(P, vsl, b, b * 16384, f"fw{b}", i, o))
        if wq2 and pos not in ("pre", "pre0", "chk", "start"):
            wq2.pop(0)()
            if it == UNI - 1 and x == 1 and pos == "g6":
                while wq2: wq2.pop(0)()
        LS = [("pv2", "qk", "pv1"), ("g1", "g3", "g5"), ("g2", "g4", "g6"), ("pv1", "g4", "g5", "g6", "pv2", "g1", "g2"), ("pv2", "pv1")][OPT.get("ls", 3)]
        if pos in LS and dq:
            dq.pop(0)()
            if OPT.get("ls", 3) == 4 and dq and len(dq) % 3 != 0: dq.pop(0)(); (dq.pop(0)() if pos == "pv1" and len(dq) % 3 else None)
    attention(P, A, l16, range(0, UNI), hookL, prioL, kvf=kv_both, bb=OPT.get("bbl", 0))
    assert A["sb"].n == nsb
    assert not dq
    P.cond_end(keep=True)
    P("LF_join:")
    P.join()
    for n in ["wpat0", "wpat1", "wpat2", "vxa", "vq"] + [f"acc{i}{t}" for i in range(3) for t in range(2)] + \
             [f"fx{b}{t}" for b in range(2) for t in range(2)] + [f"fw{b}{i}" for b in range(2) for i in range(3)]: V.release(n)
    stamp(P, 5)

    facc = V.alloc("facc", 16); facc1 = V.alloc("facc1", 16); fa = V.alloc("ffa", 8)
    NB = OPT.get("nb", 6)
    hb = [V.alloc(f"hb{i}", 4) for i in range(NB)]; fb = hb[0]
    vl4 = V.alloc("vl4"); vg = V.alloc("vg"); zt = V.alloc("zt", 2)
    va0 = tr_slice_addr(P, V, "fa0", lane, t0, t1, 0, S_KH, 4)
    vA = [[va0, V.alloc("fa0h")], [V.alloc("fa1"), V.alloc("fa1h")]]
    P(f"s_lshl_b32 s{S_T1}, s{S_HP}, 5")
    P(f"v_xor_b32 v{va0}, s{S_T1}, v{va0}")
    P(f"s_lshr_b32 s{S_T0}, s{S_W}, 1")
    P(f"s_lshl_b32 s{S_T1}, s{S_T0}, 11")
    P(f"v_add_u32 v{va0}, s{S_T1}, v{va0}")
    P(f"v_xor_b32 v{vA[1][0]}, 64, v{va0}")
    P(f"v_add_u32 v{vA[0][1]}, 0x10000, v{va0}")
    P(f"v_add_u32 v{vA[1][1]}, 0x10000, v{vA[1][0]}")
    P(f"s_mul_i32 s{S_FB}, s{S_TILE}, 118")
    P(f"s_add_u32 s{S_FB}, s{S_FB}, s{S_T0}")
    P(f"s_lshl_b32 s{S_FB}, s{S_FB}, 10")
    P(f"s_add_u32 s{S_FB}, s{S_FB}, 0x{WS_OH:x}")
    P(f"v_lshlrev_b32 v{vl4}, 2, v{lane}")
    vhf = V.alloc("vhf")
    P(f"v_lshrrev_b32 v{t0}, 3, v{lane}")
    P(f"v_mul_u32_u24 v{t0}, 96, v{t0}")
    P(f"v_add_u32 v{vhf}, v{t0}, v{vl4}")
    P(f"s_lshl_b32 s{S_T0}, s{S_TT}, 8")
    P(f"s_add_u32 s{S_T0}, s{S_T0}, 0x{MISC:x}")
    P(f"v_add_u32 v{t0}, s{S_T0}, v{vl4}")
    P(f"ds_read_b32 v{zt}, v{t0}")
    P(f"ds_read_b32 v{zt+1}, v{t0} offset:512")
    P(f"v_add_f32 v{zt}, v{zt}, v{zt+1}")
    P(f"v_mov_b32 v{zt+1}, v{zt}")
    P(f"v_permlane32_swap_b32 v{zt}, v{zt+1}")
    P(f"v_add_f32 v{zt}, v{zt}, v{zt+1}")
    P(f"v_mul_f32 v{t0}, {hexf(-LOG2E)}, v{zt}")
    P(f"v_exp_f32 v{t0}, v{t0}")
    P(f"v_add_f32 v{t0}, 1.0, v{t0}")
    P(f"v_rcp_f32 v{vg}, v{t0}")
    V.release("zt")
    vw = [V.alloc(f"vw{i}") for i in range(3)]; vrd = V.alloc("vrd"); vo = V.alloc("vo")
    def sbase(dst, w):
        P(f"s_mul_i32 s{S_T1}, s{w}, 6144")
        P(f"v_add_u32 v{dst}, s{S_T1}, v{l16}")
    sbase(vrd, S_W)
    for b in range(1, 4):
        P(f"s_xor_b32 s{S_T0}, s{S_W}, {b << 1}")
        sbase(vw[b - 1], S_T0)
    P(f"v_and_b32 v{vo}, 31, v{lane}")
    P(f"v_lshlrev_b32 v{vo}, 10, v{vo}")
    P(f"v_lshrrev_b32 v{t1}, 5, v{lane}")
    P(f"v_lshl_add_u32 v{vo}, v{t1}, 4, v{vo}")
    P(f"s_lshl_b32 s{S_OO}, s{S_TILE}, 15")
    P(f"s_lshl_b32 s{S_T1}, s{S_J}, 7")
    P(f"s_add_u32 s{S_OO}, s{S_OO}, s{S_T1}")
    P(f"s_lshl_b32 s{S_T1}, s{S_KH}, 6")
    P(f"s_add_u32 s{S_OO}, s{S_OO}, s{S_T1}")
    P(f"s_lshl_b32 s{S_T1}, s{S_HP}, 5")
    P(f"s_add_u32 s{S_OO}, s{S_OO}, s{S_T1}")
    vp = V.alloc("vp"); vpa = V.alloc("vpa")
    P(f"v_lshlrev_b32 v{vpa}, 10, v{lane}")
    vt0 = V.alloc("vt0"); vt1 = V.alloc("vt1")
    P(f"s_lshr_b32 s{S_T1}, s{S_W}, 1")
    P(f"s_mul_i32 s{S_T1}, s{S_T1}, {16384 - 2048}")
    P(f"s_add_u32 s{S_T1}, s{S_T1}, {3*16384}")
    P(f"v_add_u32 v{vt0}, s{S_T1}, v{vA[0][0]}")
    P(f"v_add_u32 v{vt1}, s{S_T1}, v{vA[1][0]}")
    va = V.alloc("cva"); vb = V.alloc("cvb"); fb = V.alloc("cvon")
    P(f"s_mul_i32 s{S_T0}, s{S_W}, 3072")
    P(f"s_add_u32 s{S_T0}, s{S_T0}, 114688")
    P(f"v_add_u32 v{va}, s{S_T0}, v{l16}")
    P(f"s_xor_b32 s{S_T0}, s{S_W}, 4")
    P(f"s_mul_i32 s{S_T0}, s{S_T0}, 3072")
    P(f"s_add_u32 s{S_T0}, s{S_T0}, 114688")
    P(f"v_add_u32 v{vb}, s{S_T0}, v{l16}")
    P(f"s_add_u32 s{S_OL2}, s{S_OL}, 4096")
    BSLOT = lambda b: ((b % 8) if b < 11 else (b - 8)) * 16384
    def a_reads(r, d):
        o = (4 * r % 64) * 2048; hi = o >> 16; o &= 0xffff
        assert r // 2 in vis, (r, vis)
        rd_done[r // 2] = rd_done.get(r // 2, 0) + 1
        if OPT.get("abl_uds"): return
        P(f"ds_read_b64_tr_b16 {vr(fa+4*d,2)}, v{vA[d][hi]} offset:{o}")
        P(f"ds_read_b64_tr_b16 {vr(fa+4*d+2,2)}, v{vA[d][hi]} offset:{o+1024}")
    def h_load(r):
        if OPT.get("abl_uh"): return
        P(f"s_add_u32 s{S_T2}, s{S_FB}, {4096*r}")
        if r == 21:
            P(f"s_cmp_lt_u32 s{S_W}, 4")
            P(f"s_cselect_b32 s{S_T2}, s{S_T2}, 0x{OOB:x}")
        P(f"buffer_load_dwordx4 {vr(hb[r%NB],4)}, v{l16}, {WSR}, s{S_T2} offen sc1")
    pend = {}
    LW = OPT.get("lw", 4)
    dq = []; vis = set(); issued = {}; rd_done = {}; nxt = dict(b=LW, r=0, d=0, pre=False)
    def qW(b):
        def f(i):
            if not OPT.get("abl_uw"): fin_dma_w1(P, vsl, b, BSLOT(b), f"fw{b}", i)
            issued[b] = issued.get(b, 0) + 1
        for i in range(2): dq.append(lambda i=i: f(i))
    CH = OPT.get("ch", HF + 4); R0 = OPT.get("r0", 2 * (CH + 1))
    DBL = OPT.get("dbl", 64)
    def mstep():
        r, d = nxt["r"], nxt["d"]
        if r >= 22: return
        if not nxt["pre"]:
            a_reads(0, 0); a_reads(0, 1); nxt["pre"] = True; return
        if not OPT.get("abl_um"): P(mfma([facc, facc1][d], fa + 4 * d, hb[r % NB], [facc, facc1][d] if r else None))
        if r + 1 < 22: a_reads(r + 1, d)
        if d == 1 and r + NB < 22: dq.insert(0, lambda r=r: h_load(r + NB))
        nxt["d"] = 1 - d; nxt["r"] = r + d
    US = [("g1", "g4"), ("g2", "g5"), ("g1", "g5"), ("g2", "g6"), ("g3", "g6")][OPT.get("us", 3)]
    VS = [("pv2", "qk"), ("qk", "pv1"), ("pv2", "pv1"), ("g3", "g6"), ("qk", "g6")][OPT.get("vs", 0)]
    def hookU(it, x, pos):
        sig = (x == 0 and (it & 1)); ph = 2 * it + x
        if pos == "sync?": return False
        if pos == "pre0": sigstamp(it, 0); return
        if pos == "pre":
            if it == HF: P.wait_vm_all()
            need = [b for b in issued if issued[b] == 2 and b not in vis and (it == 29 or b <= (max(0, ph + 8 - R0) * (2 if ph + 6 >= DBL else 1)) // 2) and b <= 10]
            if need: P.wait_tag(*[f"fw{b}" for b in need])
            if it == HF: need = need + list(range(LW))
            pend["vis"] = need; pend["free"] = {b for b in rd_done if rd_done[b] >= 4}
            sigstamp(it, 1); return
        if pos == "pv1" and sig and it == HF and OPT.get("ef", -1) < 0:
            nonce_check(P, SL, vn, vz)
            flag_store(P, vz, t0, S_FS)
        if pos == "chk":
            vis.update(pend["vis"])
            while it >= HF and nxt["b"] < 15:
                b = nxt["b"]; prev = {8: 0, 9: 1, 10: 2, 11: 3, 12: 4, 13: 5, 14: 6}.get(b)
                if prev is not None and prev not in pend["free"]: break
                qW(b); nxt["b"] += 1
            return
        PP = OPT.get("pp", 2)
        if (PP == 0 and pos == "pv2" and x == 0 and it == CH - 1) or (PP == 1 and pos == "g1" and x == 1 and it == CH - 1) or \
           (PP == 2 and pos == "pv1" and x == 1 and it == CH - 1): P(flag_load(vfl, 1, vhf, f"s{S_FP}"))
        EF = OPT.get("ef", -1)
        if ph == EF and pos == "g4":
            P.wait_vm_all(); nonce_check(P, SL, vn, vz); flag_store(P, vz, t0, S_FS)
        if pos == "pv2" and x == 0 and it == CH:
            spin_check(P, SL, [flag_load(vfl, 1, vhf, f"s{S_FP}")], flag_cmp(vfl, 1, t0), sleep=OPT.get("hsl", 4))
            for r in range(NB): dq.insert(r, lambda r=r: h_load(r))
        elif dq and (pos in VS or (pos in ("g2", "g5") and it in (CH, CH + 1)) or (pos == "g5" and OPT.get("d3"))): dq.pop(0)()
        if nxt["r"] >= 22 - OPT.get("tr", 5) and nxt["d"] == 0: pass
        elif (pos in US and ph >= R0) or (pos == US[1] and ph == R0 - 1) or (pos in ("g3", "g6") and ph >= DBL): mstep()
        if pos == "g6" and it == 31 and x == 1:
            assert nxt["b"] == 15, nxt
            print("rounds left for tail:", 22 - nxt["r"])
    def prioU(it, x):
        if not OPT.get("prio", 1): return None
        k = 2 * ((it + 1) & 1) + x
        return int(str(OPT.get("pu", 3210)).zfill(4)[k])
    attention(P, A, l16, range(UNI, 32), hookU, prioU)
    assert not dq
    stamp(P, 6)
    if OPT.get("sig"):
        P(f"s_lshl_b32 s98, s2, 11")
        P(f"s_lshl_b32 s99, s{S_W}, 8")
        P(f"s_add_u32 s98, s98, s99")
        P(f"s_add_u32 s98, s98, 0x{WS_STAMP + (1<<20):x}")
        P(f"buffer_store_dword v{vsig}, v{vl4}, {WSR}, s98 offen")
    P("s_setprio 0")
    P(f"v_mov_b32 v{O[1]+7}, v{O[1]}")
    for i in range(3): P(f"ds_write_b128 v{va}, {vr(O[1]+4+4*i,4)} offset:{1024*i}")
    P.wait_tag(*[f"fw{b}" for b in range(8, 15)]); P.wait_lgkm_all()
    P("s_barrier")
    vis.update(range(11))
    for i in range(3): P(f"ds_read_b128 {vr(O[1]+4+4*i,4)}, v{vb} offset:{1024*i}")
    P(f"v_add_f32 v{O[0]}, v{O[0]}, v{O[1]+7}")
    for r in range(8, 16): P(f"v_add_f32 v{O[0]+r}, v{O[0]+r}, v{O[1]+r}")
    P(f"v_mov_b32 v{t1}, 0x207")
    P(f"v_cmp_nle_f32 vcc, {hexf(2.0**-90)}, v{O[0]}")
    P(f"v_cmp_nge_f32 s[{S_PM}:{S_PM+1}], {'s' + str(S_T0)}, v{O[0]}".replace(f"s{S_T0}", f"s{S_C1}"))
    P(f"s_or_b64 vcc, vcc, s[{S_PM}:{S_PM+1}]")
    P(f"v_add3_u32 v{t0}, v{O[0]+8}, 0, 0".replace("v_add3_u32", "v_add_f32").replace(", 0, 0", f", v{O[0]+9}"))
    for r in range(10, 16): P(f"v_add_f32 v{t0}, v{t0}, v{O[0]+r}")
    P(f"v_cmp_class_f32 s[{S_PM}:{S_PM+1}], v{t0}, v{t1}")
    P(f"s_or_b64 vcc, vcc, s[{S_PM}:{S_PM+1}]")
    if OPT.get("forcefb"): P("s_mov_b64 vcc, -1")
    P("s_cmp_lg_u64 vcc, 0")
    P("s_cbranch_scc1 LF_fb")
    P("LF_fbr:")
    P(f"v_rcp_f32 v{t0}, v{O[0]}")
    P(f"v_mul_f32 v{t0}, v{t0}, v{vg}")
    for r in range(8, 16): P(f"v_mul_f32 v{O[0]+r}, v{O[0]+r}, v{t0}")
    for r in range(4): P(f"v_cvt_pk_bf16_f32 v{O[1]+r}, v{O[0]+8+2*r}, v{O[0]+9+2*r}")
    for r in range(4): P(f"v_min_u32 v{O[1]+r}, 0xfffffffe, v{O[1]+r}")
    P(f"buffer_store_dwordx4 {vr(O[1],4)}, v{l16}, {WSR}, s{S_OD} offen sc1", tag="ost")
    P(f"s_add_u32 s{S_FS}, s{S_FS}, 32768")
    flag_store(P, vz, t0, S_FS)
    P(f"s_lshr_b32 s{S_T1}, s{S_W}, 1")
    P(f"s_lshl_b32 s{S_T1}, s{S_T1}, 8")
    P(f"s_add_u32 s{S_FP}, s{S_FP}, s{S_T1}")
    P(f"s_add_u32 s{S_FP}, s{S_FP}, 32768")
    stamp(P, 7)
    K4, V8, ON, CM = A["fk"], A["fv"][0], fb, O[1]
    assert A["fv"][1] == V8 + 4
    nl = "\n    "
    fbk = f"""LF_fb:
    s_waitcnt vmcnt(0) lgkmcnt(0)
    v_mov_b32 v{t0}, 0xff800000
    s_mov_b32 s{S_T0}, 0x{WS_KF:x}
LF_fb1:
    buffer_load_dwordx4 {vr(K4,4)}, v{l16}, {WSR}, s{S_T0} offen sc1
    s_waitcnt vmcnt(0)
    {mfma(S[0], K4, qf)}
    s_nop 15
    {nl.join(f"v_max3_f32 v{t0}, v{S[0]+2*r}, v{S[0]+2*r+1}, v{t0}" for r in range(8))}
    s_add_u32 s{S_T0}, s{S_T0}, 1024
    s_cmp_lt_u32 s{S_T0}, 0x{WS_KF + 65536:x}
    s_cbranch_scc1 LF_fb1
    v_mov_b32 v{t1}, v{t0}
    s_nop 1
    v_permlane32_swap_b32 v{t0}, v{t1}
    s_nop 1
    v_max_f32 v{t0}, v{t0}, v{t1}
    {nl.join(f"v_sub_f32 v{CM+r}, 0, v{t0}" for r in range(16))}
    {nl.join(f"v_mov_b32 v{O[0]+r}, 0" for r in range(16))}
    v_lshrrev_b32 v{t0}, 5, v{lane}
    v_lshlrev_b32 v{t0}, 8, v{t0}
    v_and_b32 v{t1}, 15, v{lane}
    v_lshl_add_u32 v{t0}, v{t1}, 4, v{t0}
    v_and_b32 v{t1}, 16, v{lane}
    v_cmp_eq_u32 vcc, 0, v{t1}
    v_mov_b32 v{t1}, 0x{OOB:x}
    s_nop 1
    v_cndmask_b32 v{t0}, v{t0}, v{t1}, vcc
    v_and_b32 v{t1}, 27, v{lane}
    v_cmp_eq_u32 vcc, 0, v{t1}
    v_mov_b32 v{ON}, 0x3f803f80
    s_nop 1
    v_cndmask_b32 v{ON}, 0, v{ON}, vcc
    s_mov_b32 s{S_T0}, 0x{WS_KF:x}
LF_fb2:
    s_add_u32 s{S_T1}, s{S_T0}, 0x{WS_VF - WS_KF:x}
    buffer_load_dwordx4 {vr(K4,4)}, v{l16}, {WSR}, s{S_T0} offen sc1
    buffer_load_dwordx4 {vr(V8,4)}, v{t0}, {WSR}, s{S_T1} offen sc1
    buffer_load_dwordx4 {vr(V8+4,4)}, v{t0}, {WSR}, s{S_T1} offen offset:512 sc1
    s_waitcnt vmcnt(0)
    {mfma(S[0], K4, qf, CM)}
    {nl.join(f"v_or_b32 v{V8+r}, v{V8+r}, v{ON}" for r in range(8))}
    s_nop 7
    {nl.join(f"v_exp_f32 v{S[0]+r}, v{S[0]+r}" for r in range(16))}
    s_nop 1
    {nl.join(f"v_cvt_pk_bf16_f32 v{S[1]+r}, v{S[0]+2*r}, v{S[0]+2*r+1}" for r in range(8))}
    s_nop 1
    {mfma(O[0], V8, S[1], O[0])}
    {mfma(O[0], V8+4, S[1]+4, O[0])}
    s_add_u32 s{S_T0}, s{S_T0}, 1024
    s_cmp_lt_u32 s{S_T0}, 0x{WS_KF + 65536:x}
    s_cbranch_scc1 LF_fb2
    s_nop 15
    s_branch LF_fbr
"""
    SL.add(fbk)
    for n in ("Sa", "Sb", "Oa", "qf", "fk", "fv1", "fv2"): V.release(n)
    ob = V.alloc("ob", 32); wa = [V.alloc(f"wa{u}", 8) for u in range(8)]
    def oloads(g): return [f"buffer_load_dwordx4 {vr(ob+16*g+4*u,4)}, v{l16}, {WSR}, s{[S_OL,S_OL2][g]} offen offset:{1024*u} sc1" for u in range(4)]
    def ocheck(g):
        b = ob + 16 * g
        L = [f"v_max3_u32 v{t0}, v{b}, v{b+1}, v{b+2}"]
        for k in range(3, 15, 2): L.append(f"v_max3_u32 v{t0}, v{b+k}, v{b+k+1}, v{t0}")
        L += [f"v_max_u32 v{t0}, v{b+15}, v{t0}", f"v_cmp_eq_u32 vcc, -1, v{t0}"]
        return L
    fa2 = V.alloc("ffa2", 8)
    wr = []
    for u in range(8):
        for d, v in ((0, vt0), (1, vt1)):
            wr.append([f"ds_read_b64_tr_b16 {vr(wa[u]+4*d,2)}, v{v} offset:{u*2048}", f"ds_read_b64_tr_b16 {vr(wa[u]+4*d+2,2)}, v{v} offset:{u*2048+1024}"])
    r0 = nxt["r"]; assert nxt["d"] == 0 and not dq
    def tr_reads(r, d):
        o = (4 * r % 64) * 2048; hi = o >> 16; o &= 0xffff; f = [fa, fa2][(r - r0) % 2] + 4 * d
        P(f"ds_read_b64_tr_b16 {vr(f,2)}, v{vA[d][hi]} offset:{o}")
        P(f"ds_read_b64_tr_b16 {vr(f+2,2)}, v{vA[d][hi]} offset:{o+1024}")
    if r0 + 1 < 22: tr_reads(r0 + 1, 0); tr_reads(r0 + 1, 1)
    OL = min(r0 + OPT.get("ol", 99), 22)
    for r in range(r0, 22):
        if OPT.get("ofp", 0) == 2 and r == 21:
            for x in ["s_mov_b64 exec, 0xffff", flag_load(vp, 1, vhf, f"s{S_FP}"), "s_mov_b64 exec, -1"]: P(x)
        if r == OL:
            for g in range(2):
                for x in oloads(g): P(x)
        for d in range(2):
            P(mfma([facc, facc1][d], [fa, fa2][(r - r0) % 2] + 4 * d, hb[r % NB], [facc, facc1][d]))
            if r + 2 < 22: tr_reads(r + 2, d)
            elif wr:
                for g in wr[:4]:
                    for x in g: P(x)
                del wr[:4]
    for g in wr:
        for x in g: P(x)
    assert 22 - r0 <= NB and r0 >= 16
    fl = ["s_mov_b64 exec, 0xffff", flag_load(vp, 1, vhf, f"s{S_FP}"), "s_mov_b64 exec, -1"]
    fc = ["s_mov_b64 exec, 0xffff", f"v_cmp_ne_u32 vcc, s{S_NONCE}, v{vp}", "s_mov_b64 exec, -1"]
    if OPT.get("ofp", 0) == 0:
        for x in fl: P(x)
    P.wait_lgkm_all(); P("s_barrier")
    if OPT.get("ofp", 0) == 1:
        for x in fl: P(x)
    spin_check(P, SL, fl, fc, sleep=OPT.get("fsl", 1))
    if OL == 22:
        for g in range(2):
            for x in oloads(g): P(x)
    P(f"v_sub_f32 v{t1}, 1.0, v{vg}")
    P(f"v_mov_b32 v{t0}, v{t1}")
    assert t1 == t0 + 1 and t0 % 2 == 0
    for r in range(0, 16, 2): P(f"v_pk_mul_f32 v[{facc+r}:{facc+r+1}], v[{facc+r}:{facc+r+1}], v[{t0}:{t1}]")
    for r in range(0, 16, 2): P(f"v_pk_mul_f32 v[{facc1+r}:{facc1+r+1}], v[{facc1+r}:{facc1+r+1}], v[{t0}:{t1}]")
    if not OPT.get("oab", 1): P.wait_lgkm_all(); P("s_barrier")
    stamp(P, 8)
    nl = "\n    "
    PROBE = lambda g: f"""s_mov_b64 exec, 0xf
    buffer_load_dword v{vp}, v{vpa}, {WSR}, s{[S_OL,S_OL2][g]} offen offset:1020 sc1
    s_waitcnt vmcnt(0)
    v_cmp_eq_u32 vcc, -1, v{vp}
    s_mov_b64 exec, -1"""
    for g in range(2):
        k = SL.n; SL.n += 1
        for x in ocheck(g): P(x)
        P(f"s_cbranch_vccz LR{k}")
        raw(P, f"""{cnt(1+k)}    s_mov_b32 s{S_T7}, 0
LS{k}_p:
    {f"s_sleep {OPT.get('osl', 1)}" if OPT.get('osl', 1) else "s_nop 0"}
    {"" if OPT.get("odir") else PROBE(g)}
    s_add_u32 s{S_T7}, s{S_T7}, 1
    s_cmp_ge_u32 s{S_T7}, 0x{SPIN_MAX:x}
    s_cbranch_scc1 LR{k}
    {"" if OPT.get("odir") else f"s_cbranch_vccnz LS{k}_p"}
    {nl.join(oloads(g))}
    s_waitcnt vmcnt(0)
    {nl.join(ocheck(g))}
    s_cbranch_vccnz LS{k}_p
""")
        P(f"LR{k}:")
        for u in range(4 * g, 4 * g + 4):
            P(mfma(facc1, wa[u] + 4, ob + 4 * u, facc1))
    W1 = [f"ds_write_b128 v{vw[b-1]}, {vr(src+4*i,4)} offset:{2048*(b-1) + 1024*i}" for b, src in ((2, facc1), (3, facc1 + 8)) for i in range(2)]
    for u in range(8):
        P(mfma(facc, wa[u], ob + 4 * u, facc))
        if u >= 3 and W1:
            if u == 3: P("s_nop 7")
            P(W1.pop(0))
    stamp(P, 9)
    for b, src in ((1, facc + 8),):
        for i in range(2): P(f"ds_write_b128 v{vw[b-1]}, {vr(src+4*i,4)} offset:{2048*(b-1) + 1024*i}")
    P.wait_lgkm_all()
    P("s_barrier")
    for i in range(6): P(f"ds_read_b128 {vr(ob+4*i,4)}, v{vrd} offset:{1024*i}")
    for b in range(3):
        for r in range(8): P(f"v_add_f32 v{facc+r}, v{facc+r}, v{ob+8*b+r}")
    for r in range(4): P(f"v_cvt_pk_bf16_f32 v{facc1+r}, v{facc+2*r}, v{facc+2*r+1}")
    P(f"v_permlane32_swap_b32 v{facc1}, v{facc1+2}")
    P(f"v_permlane32_swap_b32 v{facc1+1}, v{facc1+3}")
    P(f"buffer_store_dwordx4 {vr(facc1,4)}, v{vo}, s[{S_OUT}:{S_OUT+3}], s{S_OO} offen")
    if OPT.get("cnt"):
        P(f"v_lshrrev_b32 v1, v{lane}, s85".replace(f"v{lane}, s85", f"v{lane}, v0") if False else f"v_mov_b32 v0, s85")
        P(f"v_lshrrev_b32 v1, v{lane}, v0")
        P(f"v_and_b32 v1, 1, v1")
        P(f"v_lshlrev_b32 v0, 2, v{lane}")
        P("s_mov_b64 exec, 0xfe")
        P(f"buffer_atomic_add v1, v0, s[{S_DBG}:{S_DBG+3}], 0 offen")
    if STAMP["on"]:
        P.wait_vm_all(); stamp(P, 10); stamp_dump(P, lane)
        if OPT.get("dbgst") is not None:
            P(f"s_cmp_lg_u32 s2, {OPT['dbgst']}")
            P("s_cbranch_scc1 LF_end")
            P(f"s_cmp_lg_u32 s{S_W}, {OPT.get('dbgw', 0)}")
            P("s_cbranch_scc1 LF_end")
            P(f"v_subrev_u32 v{VSTAMP}, s100, v{VSTAMP}")
            P("s_mov_b64 exec, 0x7fff")
            P(f"buffer_store_dword v{VSTAMP}, v1, s[{S_DBG}:{S_DBG+3}], 0 offen offset:4")
    P("LF_end:")
    P("s_endpgm")
    name = NAME + "_kernel"
    body, I = finalize(P)
    txt = f".text\n.globl {name}\n.p2align 8\n.type {name},@function\n{name}:\n" + body + "".join(SL.txt) + "LF_last:\n    s_endpgm\n"
    vg_ = 256 if STAMP["on"] else max(V.hi, 8)
    txt += KD.format(name=name, vgpr=vg_, sgpr=102 if STAMP['on'] else 96, accum=(vg_ + 3) // 4 * 4)
    return txt, I, vg_


if __name__ == "__main__":
    out = sys.argv[1]
    STAMP["on"] = "stamp" in sys.argv
    for a in sys.argv[2:]:
        if "=" in a: k, v = a.split("="); OPT[k] = int(v)
        else: OPT[a] = True
    import asmlib; asmlib.MERGE_D = OPT.get("md", 9)
    t, I, vg_ = kernel_F()
    DOC = """; One fused kernel, 256 workgroups x 8 waves, one per CU (all co-resident).  Workgroup = (64-token group G, slice j).
;  start : K/V projection of 16 tokens (wave 7) -> d_ws + flag ; Q projection of 4 heads (waves 0-3) ; gate logit
;          true row maximum (LF_fb) whenever that could have overflowed or underflowed.
;  end   : o exchanged through d_ws (words preset to all-ones mean 'not written yet'), output projection, gated mix.
;  Hand-offs: write-through stores, vmcnt, then flags tagged with a per-launch nonce published through d_debug[0].
"""
    hdr = HEADER + DOC + f"; @launch grid=(256,1,1) block=(512,1,1) lds={LDS_BYTES}\n" + '.amdgcn_target "amdgcn-amd-amdhsa--gfx950"\n'
    open(out, "w").write(hdr + t)
    import subprocess
    r = subprocess.run(["clang", "-x", "assembler", "-target", "amdgcn-amd-amdhsa", "-mcpu=gfx950", "-c", out, "-o", "_chk.o"], capture_output=True, text=True)
    if r.returncode: print("ASM ERROR", r.stderr[:500])
    print("insts", len(I), "vgpr", vg_, "nops", sum(1 for x in I if x.kind == "nop"))
```

```python
import sys, re
from parts import *
OPT = {}
S_NONCE = 93
S_HP, S_KH = 30, 31
SH = [4, 5, 6]
S_FS, S_FP, S_OD, S_OL = 7, 8, 9, 10
S_FW, S_FB, S_FL, S_FL2 = 12, 13, 14, 15
S_OO, S_OL2 = 11, 18
S_VM = 28
S_PM = 16
FL_KV, FL_H = WS_FLAG, WS_FLAG + 8192
WKV_L = KV_RING
QSCR = KV_RING + 8192
FSLOT = [0, 32768, 65536, 98304]
WO_CH = [98304, 114688, 0, 32768]
SC1 = " sc1"
SPIN_MAX = 1 << 22
WSR = f"s[{S_WS}:{S_WS+3}]"


def cnt(k):
    if not OPT.get("cnt"): return ""
    return f"    s_bitset1_b32 s85, {k}\n"


def raw(P, text):
    for line in text.split("\n"):
        line = line.strip()
        if not line: continue
        P(line)
        x = P.I[-1]
        if x.kind not in ("label",):
            x.kind = "salu"; x.vr = set(); x.vw = set(); x.sr = set(); x.sw = set(); x.mf = None; x.meta = dict(skip=True)


class Slow:
    def __init__(self): self.txt = []; self.n = 0
    def add(self, t): self.txt.append(t)


LOADS = {}
def wq_pieces(P, vsl, s_first, n, label, rot):
    P(f"s_and_b32 s{S_T6}, s{S_G}, 7")
    if rot > 1: P(f"s_mul_i32 s{S_T6}, s{S_T6}, {rot}")
    P(f"s_add_u32 s{S_T5}, s{S_T6}, {n}")
    P(f"s_lshl_b32 s{S_T7}, s{S_J}, 7")
    P(f"{label}:")
    P(f"s_and_b32 s{S_T4}, s{S_T6}, {n-1}")
    P(f"s_add_u32 s{S_T4}, s{S_T4}, s{s_first}")
    P(f"s_mul_i32 s{S_T0}, s{S_T4}, 171")
    P(f"s_lshr_b32 s{S_T0}, s{S_T0}, 12")
    P(f"s_lshl_b32 s{S_T1}, s{S_T4}, 2")
    P(f"s_add_u32 s{S_T0}, s{S_T0}, s{S_T1}")
    P(f"s_lshl_b32 s{S_T0}, s{S_T0}, 8")
    P(f"s_add_u32 m0, s{S_T0}, 0x{SLOT[0]:x}")
    P(f"s_lshl_b32 s{S_T2}, s{S_T4}, 13")
    P(f"s_add_u32 s{S_T2}, s{S_T2}, s{S_T7}")
    P(f"s_add_u32 s{S_T6}, s{S_T6}, 1")
    P(f"buffer_load_dwordx4 v{vsl}, s[{S_WQ}:{S_WQ+3}], s{S_T2} offen lds")
    P.I[-1].kind = "salu"
    P(f"s_cmp_lg_u32 s{S_T6}, s{S_T5}")
    P(f"s_cbranch_scc1 {label}")


def emit_loads(P, l16, vsl, sfx):
    if sfx == "h":
        P(f"s_lshr_b32 s{S_T4}, s{S_J}, 1")
        P(f"s_lshl_b32 s{S_T4}, s{S_T4}, 4")
        P(f"s_mul_i32 s{S_T1}, s{S_W}, 12")
        P(f"s_add_u32 s{S_T4}, s{S_T4}, s{S_T1}")
        P(f"s_add_u32 s{S_T4}, s{S_T4}, 16")
        P(f"s_lshl_b32 s{S_T0}, s{S_G}, 16")
        P(f"s_and_b32 s{S_T6}, s{S_J}, 3")
        P(f"s_mul_i32 s{S_T6}, s{S_T6}, 3")
        P(f"s_mov_b32 s{S_T5}, 12")
        mk_srd(P, S_X, 4, SZ["x"])
        P("LF_ldx1:")
        P(f"s_add_u32 s{S_T1}, s{S_T6}, s{S_T4}")
        P(f"s_and_b32 s{S_T1}, s{S_T1}, 63")
        P(f"s_mul_i32 m0, s{S_T1}, {X_STRIDE}")
        P(f"s_lshl_b32 s{S_T2}, s{S_T1}, 10")
        P(f"s_add_u32 s{S_T2}, s{S_T2}, s{S_T0}")
        P(f"s_add_u32 s{S_T6}, s{S_T6}, 1")
        P(f"s_cmp_eq_u32 s{S_T6}, 12")
        P(f"s_cselect_b32 s{S_T6}, 0, s{S_T6}")
        P(f"buffer_load_dwordx4 v{l16}, s[{S_X}:{S_X+3}], s{S_T2} offen lds", tag="q")
        P(f"s_sub_u32 s{S_T5}, s{S_T5}, 1")
        P(f"s_cmp_lg_u32 s{S_T5}, 0")
        P("s_cbranch_scc1 LF_ldx1")
    else:
        mk_srd(P, S_WQ, 6, SZ["wq"])
        P(f"s_and_b32 s{S_T3}, s{S_W}, 3")
        P(f"s_lshl_b32 s{S_T3}, s{S_T3}, 3")
        wq_pieces(P, vsl, S_T3, 8, "LF_ldq1", 1)
        P(f"s_add_u32 s{S_T3}, s{S_T3}, 24")
        wq_pieces(P, vsl, S_T3, 8, "LF_ldq2", 1)


def prologue_f(P, V, endlabel):
    if STAMP["on"]: P("s_memrealtime s[100:101]")
    P("s_cmp_ge_u32 s2, 256")
    P(f"s_cbranch_scc1 {endlabel}")
    P("s_load_dwordx16 s[4:19], s[0:1], 0")
    P("s_load_dwordx8 s[20:27], s[0:1], 64")
    P("s_load_dwordx2 s[28:29], s[0:1], 96")
    lane = V.alloc("lane"); l16 = V.alloc("l16")
    if OPT.get("cpf", 1):
        c = V.alloc("cpf", 2)
        P(f"s_getpc_b64 s[{S_EX}:{S_EX+1}]")
        P("LF_pc0:")
        if OPT.get("cpf", 1) == 1:
            P(f"s_lshr_b32 s{S_T3}, s2, 3")
            P(f"s_lshl_b32 s{S_T3}, s{S_T3}, 11")
            P(f"v_lshrrev_b32 v{c}, 5, v0")
            P(f"v_lshlrev_b32 v{c}, 7, v{c}")
            P(f"v_add_u32 v{c}, s{S_T3}, v{c}")
            P(f"v_min_u32 v{c}, LF_last-LF_pc0, v{c}")
            P("s_mov_b32 exec_lo, 1"); P("s_mov_b32 exec_hi, 1")
        else:
            P(f"s_lshr_b32 s{S_T3}, s2, 3")
            P(f"s_and_b32 s{S_T3}, s{S_T3}, 15")
            P(f"s_lshl_b32 s{S_T3}, s{S_T3}, 12")
            P(f"v_lshrrev_b32 v{c}, 4, v0")
            P(f"v_lshlrev_b32 v{c}, 7, v{c}")
            P(f"v_add_u32 v{c}, s{S_T3}, v{c}")
            P(f"v_min_u32 v{c}, LF_last-LF_pc0, v{c}")
            P("s_mov_b32 exec_lo, 0x00010001")
            P("s_mov_b32 exec_hi, 0x00010001")
        P(f"global_load_dword v{c}, v{c}, s[{S_EX}:{S_EX+1}]", tag="cpf")
        P("s_mov_b64 exec, -1")
    P(f"v_lshrrev_b32 v1, 6, v0")
    P(f"v_and_b32 v{lane}, 63, v0")
    P(f"v_readfirstlane_b32 s{S_W}, v1")
    P(f"v_lshlrev_b32 v{l16}, 4, v{lane}")
    P(f"s_lshr_b32 s{S_T0}, s2, 3")
    if OPT.get("jrot"): P(f"s_add_u32 s{S_J}, s{S_T0}, {OPT['jrot']}"); P(f"s_and_b32 s{S_J}, s{S_J}, 3")
    else: P(f"s_and_b32 s{S_J}, s{S_T0}, 3")
    P(f"s_and_b32 s{S_T1}, s2, 1")
    P(f"s_lshl_b32 s{S_T1}, s{S_T1}, 2")
    P(f"s_add_u32 s{S_J}, s{S_J}, s{S_T1}")
    P(f"s_and_b32 s{S_G}, s2, 6")
    P(f"s_lshl_b32 s{S_G}, s{S_G}, 2")
    P(f"s_lshr_b32 s{S_T0}, s{S_T0}, 2")
    P(f"s_add_u32 s{S_G}, s{S_G}, s{S_T0}")
    t0 = V.alloc("t0"); t1 = V.alloc("t1")
    vsl = slice_pattern(P, V, lane, t0)
    LOADS["f"] = lambda sfx: emit_loads(P, l16, vsl, sfx)
    P(f"s_and_b32 s{S_TT}, s{S_W}, 1")
    P(f"s_lshl_b32 s{S_TILE}, s{S_G}, 1")
    P(f"s_add_u32 s{S_TILE}, s{S_TILE}, s{S_TT}")
    P(f"s_lshr_b32 s{S_HP}, s{S_W}, 1")
    P(f"s_and_b32 s{S_HP}, s{S_HP}, 1")
    P(f"s_lshr_b32 s{S_KH}, s{S_W}, 2")
    assert all((p * 171) >> 12 == p // 24 for p in range(64)) and SLOT_SZ == 3 * 8192 + 256
    return lane, l16, t0, t1, vsl


def rest_srds(P):
    P(f"s_cmp_eq_u32 s{S_TT}, 0")
    P(f"s_cselect_b32 s{S_WM}, s16, s18")
    P(f"s_cselect_b32 s{S_WM+1}, s17, s19")
    P(f"s_and_b32 s{S_WM+1}, s{S_WM+1}, 0xffff")
    P(f"s_mov_b32 s{S_WM+2}, 0x{SZ['wg']:x}")
    P(f"s_mov_b32 s{S_WM+3}, 0x20000")
    mk_srd(P, S_OUT, 24, SZ["out"])
    mk_srd(P, S_WO, 12, SZ["wo"])
    mk_srd(P, S_WD, 20, SZ["wd"])


def nonce_check(P, SL, vn, vz):
    k = SL.n; SL.n += 1
    P(f"v_readfirstlane_b32 s{S_NONCE}, v{vn}")
    P(f"s_cmp_lg_u32 s{S_NONCE}, 0")
    P(f"s_cbranch_scc1 LR{k}")
    raw(P, f"""{cnt(1+k)}    s_mov_b32 s{S_T7}, 0
LS{k}_l:
    s_sleep 2
    buffer_load_dword v{vn}, v{vz}, s[{S_DBG}:{S_DBG+3}], 0 offen sc1
    s_waitcnt vmcnt(0)
    v_readfirstlane_b32 s{S_NONCE}, v{vn}
    s_add_u32 s{S_T7}, s{S_T7}, 1
    s_cmp_ge_u32 s{S_T7}, 0x{SPIN_MAX:x}
    s_cbranch_scc1 LR{k}
    s_cmp_eq_u32 s{S_NONCE}, 0
    s_cbranch_scc1 LS{k}_l
""")
    P(f"LR{k}:")
    P("s_nop 0")


def flag_load(vf, n, vaddr, soff):
    op = {1: "buffer_load_dword", 4: "buffer_load_dwordx4"}[n]
    return f"{op} {vr(vf,n)}, v{vaddr}, {WSR}, {soff} offen sc1"


def flag_cmp(vf, n, t):
    L = [f"v_xor_b32 v{t}, s{S_NONCE}, v{vf}"]
    for i in range(1, n):
        L += [f"v_xor_b32 v{vf+i}, s{S_NONCE}, v{vf+i}", f"v_or_b32 v{t}, v{t}, v{vf+i}"]
    L += [f"v_cmp_ne_u32 vcc, 0, v{t}"]
    return L


def spin_check(P, SL, loads, cmps, sleep=1):
    k = SL.n; SL.n += 1
    for x in cmps: P(x)
    P(f"s_cbranch_vccz LR{k}")
    nl = "\n    "
    raw(P, f"""{cnt(1+k)}    s_mov_b32 s{S_T7}, 0
LS{k}_l:
    {f"s_sleep {sleep}" if sleep else "s_nop 0"}
    {nl.join(loads)}
    s_waitcnt vmcnt(0)
    {nl.join(cmps)}
    s_add_u32 s{S_T7}, s{S_T7}, 1
    s_cmp_ge_u32 s{S_T7}, 0x{SPIN_MAX:x}
    s_cbranch_scc1 LR{k}
    s_cbranch_vccnz LS{k}_l
""")
    P(f"LR{k}:")


def flag_store(P, vz, t, soff):
    P(f"v_mov_b32 v{t}, s{S_NONCE}")
    P("s_mov_b64 exec, 1")
    P(f"buffer_store_dword v{t}, v{vz}, {WSR}, s{soff} offen sc1", tag="flag")
    P("s_mov_b64 exec, -1")


PROG = MISC + 1024
class SplitBar:
    def __init__(self, P, V, SL, lane, t0):
        self.P, self.SL, self.n = P, SL, 0
        self.va = V.alloc("sba"); self.vr = V.alloc("sbr"); self.one = V.alloc("sb1"); self.vg = V.alloc("sbg")
        P(f"s_lshl_b32 s{S_T0}, s{S_W}, 8")
        P(f"s_add_u32 s{S_T0}, s{S_T0}, 0x{PROG:x}")
        P(f"v_lshlrev_b32 v{t0}, 2, v{lane}")
        P(f"v_add_u32 v{self.va}, s{S_T0}, v{t0}")
        P(f"v_and_b32 v{t0}, 7, v{lane}")
        P(f"v_mul_u32_u24 v{t0}, 260, v{t0}")
        P(f"v_add_u32 v{self.vr}, 0x{PROG:x}, v{t0}")
        P(f"v_mov_b32 v{self.one}, 0")
        P(f"ds_write_b32 v{self.va}, v{self.one}")
        P(f"v_mov_b32 v{self.one}, 1")
    def arrive(self):
        self.n += 1
        self.P(f"ds_add_u32 v{self.va}, v{self.one}")
    def peek(self): self.P(f"ds_read_b32 v{self.vg}, v{self.vr}")
    def check(self):
        k = self.SL.n; self.SL.n += 1
        self.P(f"v_cmp_gt_u32 vcc, {self.n}, v{self.vg}")
        self.P(f"s_cbranch_vccz LR{k}")
        self.P(f"LS{k}:")
        for t in ([f"s_sleep {OPT['ssl']}"] if OPT.get("ssl") else []) + [f"ds_read_b32 v{self.vg}, v{self.vr}", "s_waitcnt lgkmcnt(0)", f"v_cmp_gt_u32 vcc, {self.n}, v{self.vg}", f"s_cbranch_vccnz LS{k}"]:
            self.P(t); self.P.I[-1].kind = "salu"; self.P.I[-1].vw = set(); self.P.I[-1].vr = set()
        self.P(f"LR{k}:")


def attn_setup(P, V, lane, l16, t0, t1):
    A = {}
    P(f"s_lshl_b32 s{S_T1}, s{S_KH}, 12")
    vk = V.alloc("vk"); vv = [V.alloc("vv0"), V.alloc("vv1")]
    P(f"s_add_u32 s{S_T1}, s{S_T1}, 0x{KV_RING:x}")
    P(f"v_add_u32 v{vk}, s{S_T1}, v{l16}")
    P(f"v_lshrrev_b32 v{t0}, 5, v{lane}")
    P(f"v_lshlrev_b32 v{t0}, 8, v{t0}")
    P(f"v_and_b32 v{t1}, 15, v{lane}")
    P(f"v_lshl_add_u32 v{t0}, v{t1}, 4, v{t0}")
    P(f"v_and_b32 v{t1}, 16, v{lane}")
    P(f"v_cmp_eq_u32 vcc, 0, v{t1}")
    P(f"s_add_u32 s{S_T1}, s{S_T1}, 2048")
    for s in range(2):
        P(f"v_mov_b32 v{t1}, s{S_T1}")
        P(f"v_add_u32 v{t1}, {8192*s}, v{t1}")
        P(f"v_mov_b32 v{vv[s]}, 0x{ONES:x}")
        P(f"v_cndmask_b32 v{vv[s]}, v{t1}, v{vv[s]}, vcc")
        P(f"v_add_u32 v{vv[s]}, v{vv[s]}, v{t0}")
    P(f"s_lshl_b32 s{S_KVOFF}, s{S_KH}, 15")
    P(f"s_lshl_b32 s{S_T1}, s{S_HP}, 16")
    P(f"s_add_u32 s{S_KVOFF}, s{S_KVOFF}, s{S_T1}")
    P(f"s_lshl_b32 s{S_T1}, s{S_TT}, 10")
    P(f"s_add_u32 s{S_KVOFF}, s{S_KVOFF}, s{S_T1}")
    P(f"s_lshl_b32 s{S_KVLDS}, s{S_W}, 10")
    P(f"s_add_u32 s{S_KVLDS}, s{S_KVLDS}, 0x{KV_RING:x}")
    A.update(vk=vk, vv=vv)
    A["S"] = [V.alloc("Sa", 16), V.alloc("Sb", 16)]
    A["O"] = [V.alloc("Oa", 16), V.alloc("Ob", 16)]
    A["fk"] = V.alloc("fk", 4); A["fv"] = [V.alloc("fv1", 4), V.alloc("fv2", 4)]
    A["q"] = V.alloc("qf", 8)
    return A


def kv_dma(P, l16, c):
    dma(P, l16, S_WS, f"s{S_T2}", (S_KVLDS, 8192 * (c & 1)), tag=f"kv{c}", mods=SC1, pre=[f"s_add_u32 s{S_T2}, s{S_KVOFF}, {2048*c}"])


def attention(P, A, l16, its, hook, prio, kvf=None, bb=1):
    S, O, fk, fv = A["S"], A["O"], A["fk"], A["fv"]
    SB = OPT.get("sb", 0)
    q = [A["q"], A["q"] + 4]
    def rdK(it): P(f"ds_read_b128 {vr(fk,4)}, v{A['vk']} offset:{((it>>1)&1)*8192 + (it&1)*1024}")
    def rdV(it, half):
        m = OPT.get("vmask", 1) and it > 0
        if m: P(f"s_mov_b64 exec, s[{S_VM}:{S_VM+1}]")
        P(f"ds_read_b128 {vr(fv[half],4)}, v{A['vv'][(it>>1)&1]} offset:{(it&1)*1024 + half*512}")
        if m: P("s_mov_b64 exec, -1")
    E = lambda x, i: P(f"v_exp_f32 v{S[x]+i}, v{S[x]+i}")
    def C(x, i):
        b = S[x] + (8 if i >= 4 else 0); k = i & 3
        P(f"v_cvt_pk_bf16_f32 v{b+k}, v{b+2*k}, v{b+2*k+1}")
    for it in its:
        if it == 0:
            if OPT.get("vmask", 1): P(f"s_mov_b32 s{S_VM}, 0xffff0000"); P(f"s_mov_b32 s{S_VM+1}, 0xffff0000")
            rdK(0); rdV(0, 0)
            hook(0, 0, "start")
            P(mfma(S[0], fk, q[0]))
        for x in range(2):
            H = lambda pos: hook(it, x, pos)
            E(x, 0); E(x, 1)
            if x == 0:
                if it > 0: P(mfma(O[1], fv[1], S[1] + 8, O[1]))
                rdV(it, 1)
            else:
                P(mfma(O[0], fv[1], S[0] + 8, O[0]))
            H("pv2")
            E(x, 2); E(x, 3); H("g1")
            E(x, 4); E(x, 5); H("g2")
            E(x, 6); E(x, 7)
            if bb:
                H("g3")
                for i in range(4): C(x, i)
            if x == 0: P(mfma(S[1], fk, q[1]))
            elif it < 31: P(mfma(S[0], fk, q[0]))
            H("qk")
            sig = (x == 0 and (it & 1) and it < 31)
            syn = sig or (x == 0 and hook(it, x, "sync?"))
            ORD = OPT.get("ord", 2) if syn else 0
            if bb:
                E(x, 8); E(x, 9); H("g4")
                E(x, 10); E(x, 11)
                if ORD == 2: P(mfma(O[x], fv[0], S[x], None if it == 0 else O[x]))
            else:
                for i in range(4): C(x, i)
                if ORD == 0: H("g3")
                E(x, 8); E(x, 9)
                if ORD == 2: P(mfma(O[x], fv[0], S[x], None if it == 0 else O[x])); H("g3")
            if syn:
                H("pre0")
                if sig: P.wait_tag(f"kv{(it>>1)+1}")
                H("pre")
                P.wait_lgkm_all()
                P("s_barrier")
            if ORD != 2: P(mfma(O[x], fv[0], S[x], None if it == 0 else O[x]))
            p = prio(it, x)
            if p is not None: P(f"s_setprio {p}")
            if x == 0:
                if it < 31: rdK(it + 1)
                if (it & 1) and (it >> 1) + 2 < 16: (kvf or (lambda c: kv_dma(P, l16, c)))((it >> 1) + 2)
                if syn: hook(it, 0, "chk")
            else:
                if it < 31: rdV(it + 1, 0)
            H("pv1")
            if not bb: E(x, 10); E(x, 11); H("g4")
            E(x, 12); E(x, 13); H("g5")
            E(x, 14); E(x, 15); H("g6")
            for i in range(4, 8): C(x, i)
        if it == 31: P(mfma(O[1], fv[1], S[1] + 8, O[1]))


def fin_dma_w1(P, vsl, st, slot, tag, i):
    srd, u0 = (S_WD, 8 * st) if st < 11 else (S_WO, 8 * (st - 11))
    dma(P, vsl, srd, f"s{S_T2}", (S_FL2, slot + 1024 * i), tag=tag, pre=[f"s_add_u32 s{S_T2}, s{S_FW}, 0x{(16*u0 + 8*i)*1024:x}"])


def fin_dma_w2(P, vsl, st, slot, tag, i, other):
    dma(P, vsl, S_WD, f"s{S_T2}", (S_FL2, (slot + 1024 * i - 8192 * other) & 0xffffffff), tag=tag,
        pre=[f"s_add_u32 s{S_T2}, s{S_FW}, 0x{((128*st + 8*i)*1024 - 65536*other) & 0xffffffff:x}"])


def fin_dma_b1(P, l16, st, slot, tag, t):
    P(f"s_add_u32 s{S_T2}, s{S_FB}, 0x{(t*118 + 8*st)*1024:x}")
    if st == 10:
        P(f"s_cmp_lt_u32 s{S_W}, 6")
        P(f"s_cselect_b32 s{S_T2}, s{S_T2}, 0x{OOB:x}")
    dma(P, l16, S_WS, f"s{S_T2}", (S_FL, slot + 16384 + 8192 * t), tag=tag, mods=SC1)


def kernel_F():
    P = Prog(); V = Regs(2, 255, "v"); SL = Slow()
    NP = OPT.get("np", 1)
    JIT = 16 - NP
    GPP = OPT.get("gpp", 2)
    UNI = OPT.get("uni", JIT + 2)
    HF = OPT.get("hf", UNI | 1)
    lane, l16, t0, t1, vsl = prologue_f(P, V, "LF_end")
    vz = V.alloc("vz")
    P(f"s_cmp_lg_u32 s{S_W}, 7")
    P("s_cbranch_scc1 LF_not7")
    P(f"s_lshr_b32 s{S_T4}, s{S_J}, 1")
    P(f"s_lshl_b32 s{S_T0}, s{S_G}, 16")
    P(f"s_lshl_b32 s{S_T2}, s{S_T4}, 14")
    P(f"s_add_u32 s{S_T2}, s{S_T2}, s{S_T0}")
    P(f"s_mul_i32 m0, s{S_T4}, {16*X_STRIDE}")
    P(f"s_and_b32 s{S_T3}, s{S_J}, 1")
    P(f"s_mov_b32 s{S_T5}, 0")
    P("s_waitcnt lgkmcnt(0)")
    mk_srd(P, S_X, 4, SZ["x"])
    if OPT.get("u7", 1):
        P(f"s_sub_u32 s{S_X}, s{S_X}, 64")
        P(f"s_subb_u32 s{S_X+1}, s{S_X+1}, 0")
        P(f"s_mov_b32 s{S_X+2}, 0x{SZ['x'] + 64:x}")
        P(f"s_add_u32 s{S_T2}, s{S_T2}, 64")
        for g in range(4):
            for k in range(4):
                if k == 0:
                    if g: P(f"s_add_u32 m0, m0, {4*X_STRIDE}"); P(f"s_add_u32 s{S_T2}, s{S_T2}, {4096 + 48}")
                else: P(f"s_sub_u32 s{S_T2}, s{S_T2}, 16")
                P(f"buffer_load_dwordx4 v{l16}, s[{S_X}:{S_X+3}], s{S_T2} offen offset:{X_STRIDE*k} lds", tag="c")
    else:
        P("LF_ldx7:")
        P(f"buffer_load_dwordx4 v{l16}, s[{S_X}:{S_X+3}], s{S_T2} offen lds", tag="c")
        P(f"s_add_u32 m0, m0, {X_STRIDE}")
        P(f"s_add_u32 s{S_T2}, s{S_T2}, 1024")
        P(f"s_add_u32 s{S_T5}, s{S_T5}, 1")
        P(f"s_cmp_lg_u32 s{S_T5}, 16")
        P("s_cbranch_scc1 LF_ldx7")
    P(f"s_cmp_eq_u32 s{S_T3}, 0")
    P(f"s_cselect_b32 s{S_WKV}, s8, s10")
    P(f"s_cselect_b32 s{S_WKV+1}, s9, s11")
    P(f"s_and_b32 s{S_WKV+1}, s{S_WKV+1}, 0xffff")
    P(f"s_mov_b32 s{S_WKV+2}, 0x{SZ['wk']:x}")
    P(f"s_mov_b32 s{S_WKV+3}, 0x20000")
    P(f"s_mov_b32 m0, 0x{WKV_L:x}")
    P(f"s_mov_b32 s{S_T5}, 0")
    P("LF_ldw7:")
    for i in range(4):
        P(f"buffer_load_dwordx4 v{l16}, s[{S_WKV}:{S_WKV+3}], s{S_T5} offen offset:{1024*i} lds")
        P.I[-1].kind = "salu"
    P(f"s_add_u32 m0, m0, 4096")
    P(f"s_add_u32 s{S_T5}, s{S_T5}, 4096")
    P(f"s_cmp_lg_u32 s{S_T5}, 16384")
    P("s_cbranch_scc1 LF_ldw7")
    stamp(P, 15)
    P("s_barrier")
    P("LF_not7:")
    P("s_waitcnt lgkmcnt(0)")
    P(f"v_mov_b32 v{vz}, 0")
    if OPT.get("cnt"): P("s_mov_b32 s85, 0")
    mk_srd(P, S_WS, 28, SZ["ws"])
    mk_srd(P, S_DBG, 26, SZ["dbg"])
    vn = V.alloc("vn")
    P(f"s_or_b32 s{S_T0}, s2, s{S_W}")
    P(f"s_cmp_lg_u32 s{S_T0}, 0")
    P("s_cbranch_scc1 LF_non")
    P.cond_begin()
    P(f"s_memrealtime s[{S_EX}:{S_EX+1}]")
    P("s_waitcnt lgkmcnt(0)")
    P(f"s_mul_i32 s{S_EX+1}, s{S_EX+1}, 0x9e3779b1")
    P(f"s_xor_b32 s{S_EX}, s{S_EX}, s{S_EX+1}")
    P(f"s_or_b32 s{S_EX}, s{S_EX}, 1")
    P(f"v_mov_b32 v{t0}, s{S_EX}")
    P("s_mov_b64 exec, 1")
    P(f"buffer_store_dword v{t0}, v{vz}, s[{S_DBG}:{S_DBG+3}], 0 offen sc1")
    P("s_mov_b64 exec, -1")
    P.cond_end()
    P("LF_non:")
    P_main = P; P = Prog()
    rest_srds(P)
    mk_srd(P, S_GW, 22, SZ["gw"])
    P(f"s_mov_b32 s{S_C1}, {hexf(2.0**120)}")
    A = attn_setup(P, V, lane, l16, t0, t1)
    qf = A["q"]; O = A["O"]; S = A["S"]
    A["sb"] = SplitBar(P, V, SL, lane, t0) if OPT.get("sb", 0) else type("X", (), dict(n=0))()
    vfl = V.alloc("vfl", 4)
    P(f"s_lshl_b32 s{S_T0}, s{S_HP}, 1")
    P(f"s_add_u32 s{S_T0}, s{S_T0}, s{S_KH}")
    P(f"s_lshl_b32 s{S_T1}, s{S_J}, 2")
    P(f"s_add_u32 s{S_T0}, s{S_T0}, s{S_T1}")
    P(f"s_mul_i32 s{S_T1}, s{S_TILE}, 118")
    P(f"s_add_u32 s{S_T0}, s{S_T0}, s{S_T1}")
    P(f"s_lshl_b32 s{S_T0}, s{S_T0}, 10")
    P(f"s_add_u32 s{S_OD}, s{S_T0}, 0x{WS_OH + 86*1024:x}")
    def poison():
        for r in range(4): P(f"v_mov_b32 v{O[0]+r}, -1")
        P(f"buffer_store_dwordx4 {vr(O[0],4)}, v{l16}, {WSR}, s{S_OD} offen sc1", tag="poison")
    P(f"s_lshr_b32 s{S_T0}, s{S_W}, 1")
    P(f"s_lshl_b32 s{S_T0}, s{S_T0}, 3")
    P(f"s_add_u32 s{S_T0}, s{S_T0}, s{S_T1}")
    P(f"s_lshl_b32 s{S_T0}, s{S_T0}, 10")
    P(f"s_add_u32 s{S_OL}, s{S_T0}, 0x{WS_OH + 86*1024:x}")
    P(f"s_lshl_b32 s{S_FP}, s{S_G}, 10")
    P(f"s_lshl_b32 s{S_FS}, s{S_J}, 5")
    P(f"s_add_u32 s{S_FS}, s{S_FS}, s{S_W}")
    P(f"s_lshl_b32 s{S_FS}, s{S_FS}, 2")
    P(f"s_add_u32 s{S_FS}, s{S_FS}, s{S_FP}")
    P(f"s_add_u32 s{S_FS}, s{S_FS}, 0x{FL_H:x}")
    P(f"s_add_u32 s{S_FP}, s{S_FP}, 0x{FL_H:x}")
    P(f"s_lshl_b32 s{S_FW}, s{S_W}, 14")
    P(f"s_lshl_b32 s{S_T1}, s{S_J}, 7")
    P(f"s_add_u32 s{S_FW}, s{S_FW}, s{S_T1}")
    P(f"s_lshl_b32 s{S_FL2}, s{S_W}, 11")
    P(f"s_mul_i32 s{S_U0}, s{S_J}, 11")
    P(f"s_min_u32 s{S_U0}, s{S_U0}, 76")
    P(f"s_cmp_ge_u32 s{S_J}, 6")
    P(f"s_cselect_b32 s{S_NU}, 10, 11")
    vxa = xfrag_addr(P, V, "vxa", lane, t0, S_TT)
    vq = V.alloc("vq")
    P(f"s_and_b32 s{S_T0}, s{S_W}, 3")
    P(f"s_lshl_b32 s{S_T1}, s{S_T0}, 11")
    P(f"s_add_u32 s{S_T1}, s{S_T1}, 0x{QSCR:x}")
    P(f"v_add_u32 v{vq}, s{S_T1}, v{l16}")
    COMMON = P.I; P = P_main
    def emit(L):
        for x in L: P(x.text, tag=x.tag)
    iw = next(i for i, x in enumerate(COMMON) if x.text.startswith(f"s_mov_b32 s{S_WM+3},")) + 1
    iu = next(i for i, x in enumerate(COMMON) if x.text.startswith(f"s_mul_i32 s{S_U0},"))
    C_EARLY = COMMON[:iw] + COMMON[iu:iu + 4]; C_LATE = COMMON[iw:iu] + COMMON[iu + 4:]
    acc = [[V.alloc(f"acc{i}{t}", 16) for t in range(2)] for i in range(3)]
    fx = [[V.alloc(f"fx{b}{t}", 4) for t in range(2)] for b in range(2)]
    fw = [[V.alloc(f"fw{b}{i}", 4) for i in range(3)] for b in range(2)]
    S_PFB = 19
    def capture(f):
        nonlocal P
        P0 = P; P = Prog(); f(); L = P.I; P = P0
        return L
    R = {}
    def f1():
        vtn = tr_slice_addr(P, V, "vtn", lane, t0, t1, SLOT[0], S_HP, 8)
        vpf = V.alloc("vpf"); vpd = V.alloc("vpd"); vpw = V.alloc("vpw")
        P(f"v_bfe_u32 v{t0}, v{lane}, 4, 1")
        P(f"v_lshrrev_b32 v{t1}, 5, v{lane}")
        P(f"v_lshl_add_u32 v{t0}, v{t1}, 7, v{t0}")
        P(f"v_mul_u32_u24 v{vpf}, 2752, v{t0}")
        P(f"v_and_b32 v{t0}, 15, v{lane}")
        P(f"v_lshl_add_u32 v{vpf}, v{t0}, 7, v{vpf}")
        P(f"v_cmp_gt_u32 vcc, 12, v{t0}")
        P(f"v_mov_b32 v{t1}, 0x{OOB:x}")
        P(f"v_cndmask_b32 v{vpf}, v{t1}, v{vpf}, vcc")
        P(f"s_lshr_b32 s{S_T0}, s2, 3")
        P(f"s_lshl_b32 s{S_T0}, s{S_T0}, 1")
        P(f"s_add_u32 s{S_T0}, s{S_T0}, s{S_HP}")
        P(f"s_mul_i32 s{S_T0}, s{S_T0}, {2*2752}")
        P(f"s_and_b32 s{S_T1}, s2, 1")
        P(f"s_mul_i32 s{S_T1}, s{S_T1}, {44*32}")
        P(f"s_add_u32 s{S_PFB}, s{S_T0}, s{S_T1}")
        R.update(vtn=vtn, vpf=vpf, vpd=vpd, vpw=vpw)
    def f2():
        vx0 = V.alloc("vx0")
        P(f"s_mul_i32 s{S_T0}, s{S_TT}, {32*X_STRIDE}")
        P(f"v_subrev_u32 v{vx0}, s{S_T0}, v{vxa}")
        P(f"s_lshl_b32 s{S_T4}, s{S_W}, 1")
        wtr = w_tr_addrs(P, V, lane, t0, t1, s_w=S_T4)
        R.update(vx0=vx0, wtr=wtr)
    def f3():
        P(f"s_mul_i32 s{S_T0}, s{S_W}, 3")
        P(f"s_mul_i32 s{S_T1}, s{S_G}, 236")
        P(f"s_add_u32 s{S_T1}, s{S_T1}, s{S_U0}")
        for i in range(3):
            P(f"s_add_u32 s{S_T2}, s{S_T0}, {i}")
            P(f"s_add_u32 s{SH[i]}, s{S_T1}, s{S_T2}")
            P(f"s_lshl_b32 s{SH[i]}, s{SH[i]}, 10")
            P(f"s_add_u32 s{SH[i]}, s{SH[i]}, 0x{WS_OH:x}")
            P(f"s_cmp_lt_u32 s{S_T2}, s{S_NU}")
            P(f"s_cselect_b32 s{SH[i]}, s{SH[i]}, 0x{OOB:x}")
    def f4():
        vpw = R["vpw"]
        S_PFS = S_WKV
        P(f"s_lshr_b32 s{S_T0}, s2, 3")
        P(f"s_lshl_b32 s{S_T0}, s{S_T0}, 2")
        P(f"s_add_u32 s{S_T0}, s{S_T0}, s{S_W}")
        P(f"s_cmp_lt_u32 s{S_T0}, 86")
        P(f"s_cselect_b32 s{S_PFS}, s{S_WD}, s{S_WO}")
        P(f"s_cselect_b32 s{S_PFS+1}, s{S_WD+1}, s{S_WO+1}")
        P(f"s_cselect_b32 s{S_PFS+2}, s{S_WD+2}, s{S_WO+2}")
        P(f"s_cselect_b32 s{S_T1}, 0, 86")
        P(f"s_mov_b32 s{S_PFS+3}, 0x20000")
        P(f"s_sub_u32 s{S_T0}, s{S_T0}, s{S_T1}")
        P(f"s_lshl_b32 s{S_T0}, s{S_T0}, 14")
        P(f"s_and_b32 s{S_T1}, s2, 1")
        P(f"s_lshl_b32 s{S_T1}, s{S_T1}, 9")
        P(f"s_add_u32 s{S_T0}, s{S_T0}, s{S_T1}")
        P(f"v_lshrrev_b32 v{t0}, 2, v{lane}")
        P(f"v_lshlrev_b32 v{t0}, 10, v{t0}")
        P(f"v_and_b32 v{t1}, 3, v{lane}")
        P(f"v_lshl_add_u32 v{t0}, v{t1}, 7, v{t0}")
        P(f"v_add_u32 v{vpw}, s{S_T0}, v{t0}")
    ix = next(i for i, x in enumerate(COMMON) if x.text.startswith(f"v_and_b32 v{t0}, 31, v{lane}"))
    ia = next(i for i, x in enumerate(COMMON) if x.text.startswith(f"s_mov_b32 s{S_C1},")) + 1
    io = next(i for i, x in enumerate(COMMON) if x.text.startswith(f"s_lshl_b32 s{S_T0}, s{S_HP}, 1"))
    ifl = next(i for i, x in enumerate(COMMON) if x.text.startswith(f"s_lshl_b32 s{S_FP},"))
    H_PRE = COMMON[ix:ix + 6] + COMMON[:iw] + capture(f1)
    H_MID = COMMON[ia:io] + COMMON[ix + 6:] + capture(f2) + COMMON[io:ifl]
    H_LATE = [COMMON[iw:iw + 8], COMMON[iw + 8:ia], COMMON[ifl:iu], COMMON[iu:iu + 4]]
    sh = capture(f3); H_LATE += [sh[:9], sh[9:15], sh[15:]]
    wp = capture(f4); H_LATE += [wp[:14], wp[14:]]
    vtn, vpf, vpd, vpw, vx0, wtr = (R[k] for k in ("vtn", "vpf", "vpd", "vpw", "vx0", "wtr"))
    S_PFS = S_WKV
    def pf(blk, half):
        P(f"s_add_u32 s{S_T4}, s{S_PFB}, {128*2752*blk}")
        if half: P("s_mov_b64 exec, 0xffffffff")
        P(f"buffer_load_dword v{vpd}, v{vpf}, s[{S_WM}:{S_WM+3}], s{S_T4} offen", tag="pf")
        P.I[-1].vw = set()
        if half: P("s_mov_b64 exec, -1")
    PF = OPT.get("pf", 1)
    KT = 192; vx16 = 240; vw16 = 241; vst = 242; S_K5, S_K6 = S_T5, S_T6
    P(f"s_cmp_lg_u32 s{S_W}, 7")
    P("s_cbranch_scc1 LF_not7b")
    P.cond_begin()
    P(f"s_lshr_b32 s{S_T0}, s{S_J}, 1")
    P(f"s_lshl_b32 s{S_T1}, s{S_T0}, 4")
    P(f"v_and_b32 v{t0}, 15, v{lane}")
    P(f"v_add_u32 v{t1}, s{S_T1}, v{t0}")
    P(f"v_mul_u32_u24 v{vx16}, {X_STRIDE}, v{t1}")
    P(f"v_lshrrev_b32 v{t1}, 4, v{lane}")
    P(f"v_lshl_add_u32 v{vx16}, v{t1}, 4, v{vx16}")
    P(f"v_lshlrev_b32 v{vw16}, 8, v{t1}")
    P(f"v_lshl_add_u32 v{vw16}, v{t0}, 3, v{vw16}")
    P(f"v_add_u32 v{vw16}, 0x{WKV_L:x}, v{vw16}")
    P(f"s_and_b32 s{S_K6}, s{S_J}, 1")
    P(f"s_cmp_eq_u32 s{S_K6}, 0")
    P(f"s_cselect_b32 s{S_T3}, 9, 8")
    P(f"s_cselect_b32 s{S_T4}, 8, 9")
    P(f"s_cselect_b32 s{S_K5}, 0x{WS_KF:x}, 0x{WS_VF:x}")
    P(f"v_lshlrev_b32 v{vst}, 4, v{t0}")
    P(f"v_lshrrev_b32 v{t0}, 1, v{t1}")
    P(f"v_lshl_add_u32 v{vst}, v{t0}, 3, v{vst}")
    P(f"v_and_b32 v{t0}, 1, v{t1}")
    P(f"v_lshlrev_b32 v{t0}, s{S_T3}, v{t0}")
    P(f"v_add_u32 v{vst}, v{vst}, v{t0}")
    P(f"s_and_b32 s{S_T1}, s{S_T0}, 1")
    P(f"s_lshl_b32 s{S_T1}, s{S_T1}, s{S_T4}")
    P(f"s_add_u32 s{S_K5}, s{S_K5}, s{S_T1}")
    P(f"s_lshr_b32 s{S_T0}, s{S_T0}, 1")
    P(f"s_lshl_b32 s{S_T1}, s{S_G}, 1")
    P(f"s_add_u32 s{S_T0}, s{S_T0}, s{S_T1}")
    P(f"s_lshl_b32 s{S_T0}, s{S_T0}, 10")
    P(f"s_add_u32 s{S_K5}, s{S_K5}, s{S_T0}")
    P("s_waitcnt vmcnt(0)")
    P(f"buffer_load_dword v{vn}, v{vz}, s[{S_DBG}:{S_DBG+3}], 0 offen sc1")
    def kv16(which):
        d = KT
        xb = [(KT+16) + 4 * i for i in range(4)]; wb = [(KT+32) + 4 * i for i in range(4)]
        def ld(ks):
            P(f"ds_read_b128 {vr(xb[ks%4],4)}, v{vx16} offset:{ks*64}")
            P(f"ds_read_b64_tr_b16 {vr(wb[ks%4],2)}, v{vw16} offset:{ks*1024}")
            P(f"ds_read_b64_tr_b16 {vr(wb[ks%4]+2,2)}, v{vw16} offset:{ks*1024+128}")
        for ks in range(3): ld(ks)
        for ks in range(16):
            a, b = (wb[ks%4], xb[ks%4]) if which == 0 else (xb[ks%4], wb[ks%4])
            P(f"v_mfma_f32_16x16x32_bf16 {vr(d,4)}, {vr(a,4)}, {vr(b,4)}, {vr(d,4) if ks else 0}")
            if ks + 3 < 16: ld(ks + 3)
        if which == 0:
            P(f"s_mov_b32 s{S_T0}, {hexf(QK_SCALE)}")
            for r in range(4): P(f"v_mul_f32 v{d+r}, s{S_T0}, v{d+r}")
    P(f"s_cmp_eq_u32 s{S_K6}, 1")
    P("s_cbranch_scc1 LF_vch")
    P.cond_begin(); kv16(0); P.cond_end()
    P("s_branch LF_kvj")
    P("LF_vch:")
    P.cond_begin(); kv16(1); P.cond_end()
    P("LF_kvj:")
    for r in range(2): P(f"v_cvt_pk_bf16_f32 v{KT+4+r}, v{KT+2*r}, v{KT+2*r+1}")
    P(f"buffer_store_dwordx2 {vr(KT+4,2)}, v{vst}, {WSR}, s{S_K5} offen sc1")
    FB2 = OPT.get("fb2", 0)
    def w7flag():
        P(f"s_lshl_b32 s{S_T0}, s{S_G}, 3")
        P(f"s_add_u32 s{S_T0}, s{S_T0}, s{S_J}")
        P(f"s_lshl_b32 s{S_T0}, s{S_T0}, 2")
        P(f"s_add_u32 s{S_T0}, s{S_T0}, 0x{FL_KV:x}")
        P("s_waitcnt vmcnt(0)")
        nonce_check(P, SL, vn, vz)
        flag_store(P, vz, t0, S_T0)
    if not FB2: w7flag()
    def pf7():
        P(f"v_lshrrev_b32 v{t0}, 4, v{lane}")
        P(f"v_mul_u32_u24 v{vx16}, 2752, v{t0}")
        P(f"v_and_b32 v{t0}, 15, v{lane}")
        P(f"v_lshl_add_u32 v{vx16}, v{t0}, 7, v{vx16}")
        P(f"v_cmp_gt_u32 vcc, 12, v{t0}")
        P(f"v_mov_b32 v{t1}, 0x{OOB:x}")
        P(f"v_cndmask_b32 v{vx16}, v{t1}, v{vx16}, vcc")
        P(f"s_lshr_b32 s{S_T0}, s2, 3")
        P(f"s_mul_i32 s{S_T0}, s{S_T0}, {4*2752}")
        P(f"s_and_b32 s{S_T1}, s2, 1")
        P(f"s_mul_i32 s{S_T1}, s{S_T1}, {44*32}")
        P(f"s_add_u32 s{S_T0}, s{S_T0}, s{S_T1}")
        for m in range(2):
            mk_srd(P, S_WKV, 16 + 2 * m, SZ["wg"])
            P(f"buffer_load_dword v{fx[0][0]+m}, v{vx16}, s[{S_WKV}:{S_WKV+3}], s{S_T0} offen")
    if OPT.get("pf7", 1) == 1: pf7()
    stamp(P, 1)
    P("s_barrier")
    stamp(P, 2)
    if OPT.get("pf7", 1) == 2: pf7()
    if FB2 == 1: w7flag()
    P("s_barrier")
    if FB2 == 2: w7flag()
    P.cond_end(nowait=True)
    P("s_branch LF_light")
    P("LF_not7b:")
    P(f"s_cmp_lg_u32 s{S_KH}, 0")
    P("s_cbranch_scc1 LF_l0")

    def sigstamp(it, k):
        if OPT.get("sig"):
            P(f"s_memtime s[98:99]"); P("s_waitcnt lgkmcnt(0)"); P(f"v_writelane_b32 v{vsig}, s98, {2*it+k}")
    vsig = V.alloc("vsig") if OPT.get("sig") else None

    P.cond_begin()
    emit(H_PRE)
    stamp(P, 15)
    P("s_barrier")
    stamp(P, 0)
    LOADS["f"]("h")
    stamp(P, 1)
    if PF & 4: pf(0, True)
    P.wait_tag("q")
    P("s_barrier")
    stamp(P, 2)
    if PF & 2: pf(0, True)
    QD = 6
    xb = [acc[1][0] + 4 * i for i in range(QD)]; wb = [acc[2][0] + 4 * i for i in range(QD)]
    assert acc[1][1] == acc[1][0] + 16 and acc[2][1] == acc[2][0] + 16
    def q_loads(ks):
        o = SLOT[ks // 12] - SLOT[0] + (ks % 12) * 2048
        P(f"ds_read_b128 {vr(xb[ks%QD],4)}, v{vxa} offset:{ks*32}")
        P(f"ds_read_b64_tr_b16 {vr(wb[ks%QD],2)}, v{vtn} offset:{o}")
        P(f"ds_read_b64_tr_b16 {vr(wb[ks%QD]+2,2)}, v{vtn} offset:{o+512}")
    for ks in range(QD - 1): q_loads(ks)
    for ks in range(32):
        P(mfma(acc[0][0], wb[ks%QD], xb[ks%QD], acc[0][0] if ks else None))
        if ks in (11, 23):
            stamp(P, 11 if ks == 11 else 13)
            P("s_barrier")
        if ks + QD - 1 in (12, 24): P("s_barrier")
        if ks + QD - 1 < 32: q_loads(ks + QD - 1)
        nf = -(-len(H_MID) // 28)
        emit(H_MID[ks * nf:(ks + 1) * nf])
        if ks == OPT.get("pk", 30):
            P(f"s_mov_b32 s{S_T5}, 0x{FL_KV:x}")
            P(f"buffer_load_dword v{vn}, v{vz}, s[{S_DBG}:{S_DBG+3}], 0 offen sc1")
            P(flag_load(vfl, 4, l16, f"s{S_T5}"))
    for r in range(8): P(f"v_cvt_pk_bf16_f32 v{qf+r}, v{acc[0][0]+2*r}, v{acc[0][0]+2*r+1}")
    P(f"ds_write_b128 v{vq}, {vr(qf,4)}")
    P(f"ds_write_b128 v{vq}, {vr(qf+4,4)} offset:1024")
    def kv_check():
        nonce_check(P, SL, vn, vz)
        spin_check(P, SL, [flag_load(vfl, 4, l16, f"s{S_T5}")], flag_cmp(vfl, 4, t0), sleep=OPT.get("ksl", 6))
        kv_dma(P, l16, 0)
        dma(P, l16, S_WS, f"s{S_T2}", (S_KVLDS, 4096), tag="kv0", mods=SC1, pre=[f"s_add_u32 s{S_T2}, s{S_T2}, 32768"])
    if not OPT.get("kl", 1): kv_check()
    def gu_reads(ks):
        s, kk = ks // 2, ks % 2
        so = SLOT[s % 3] - SLOT[0] + kk * 6144
        L = [f"ds_read_b128 {vr(fx[ks%2][0],4)}, v{vx0} offset:{ks*32}"]
        for i in range(3):
            f = fw[ks % 2][i]
            L += [f"ds_read_b64_tr_b16 {vr(f,2)}, v{wtr[i]} offset:{so}", f"ds_read_b64_tr_b16 {vr(f+2,2)}, v{wtr[i]} offset:{so+1536}"]
            if i == 0: L.append(f"ds_read_b128 {vr(fx[ks%2][1],4)}, v{vx0} offset:{ks*32 + 32*X_STRIDE}")
        return L
    def gu_groups(ks, late=False):
        R = gu_reads(ks + 1) if ks < 31 else []
        if OPT.get("abl_hds") and ks >= 2 * NP - 1: R = []
        G = []
        for m in range(6):
            i, t = m // 2, m % 2
            mm = [mfma(acc[i][t], fw[ks % 2][i], fx[ks % 2][t], acc[i][t] if ks else None)]
            if OPT.get("abl_hm") and ks >= 2 * NP - 1: mm = []
            G.append(mm + (R[2 * m: 2 * m + 2] if not late else ([] if m < 3 else R[3 * (m - 3): 3 * (m - 3) + 3])))
        return G
    P.wait_lgkm_all()
    stamp(P, 14)
    P("s_barrier")
    stamp(P, 3)
    for x in gu_reads(0): P(x)
    if OPT.get("kl", 1): kv_check()
    PFI = OPT.get("pfi", 0)
    for ks in range(2 * NP - 1):
        if ks % 2 == 1:
            P.wait_lgkm_all(); P("s_barrier")
        for g in gu_groups(ks):
            for x in g: P(x)
    P.wait_tag("kv0"); P.wait_lgkm_all(); P("s_barrier")
    stamp(P, 4)
    gq = []
    tmp = fx[0][0]; cst = fx[1][0]
    assert fx[0][1] == fx[0][0] + 4
    gel = []
    def load_window(k):
        n = 2 * (NP + k) - 1
        assert not gq
        gq.extend(gu_groups(n, late=(k > 0 and OPT.get("sb", 0))))
        if n < 31: gq.extend(gu_groups(n + 1))
    def hookH(it, x, pos):
        if pos == "sync?": return 1 <= it <= JIT
        if pos == "pre0": sigstamp(it, 0); return
        if pos == "pre": sigstamp(it, 1); return
        if pos == "start": load_window(0); return
        if pos == "qk" and it == 3 and x == 0:
            for r in range(4): P(f"v_mov_b32 v{vfl+r}, -1")
            P(f"buffer_store_dwordx4 {vr(vfl,4)}, v{l16}, {WSR}, s{S_OD} offen sc1", tag="poison")
        if pos == "qk" and it == 4 and x == 0:
            P(f"buffer_store_dwordx4 {vr(vfl,4)}, v{l16}, {WSR}, s{S_OD} offen offset:1024 sc1", tag="poison")
        midprio(it, x, pos, PH)
        if pos in ("qk", "pv1") and H_LATE: emit(H_LATE.pop(0))
        if pos == "pv2" and x == 1 and PF & 1:
            if it == PFI: pf(1, True)
            if it == PFI + 2: pf(2, True)
            if it == PFI + 5: pf(3, True)
        if pos == "pv2" and x == 1 and OPT.get("wpf", 1) and it in (7, 8, 9, 10):
            k = it - 7
            P(f"s_cmp_lg_u32 s{S_W}, {k}")
            P(f"s_cbranch_scc1 LF_wp{k}")
            P(f"buffer_load_dword v{vpd}, v{vpw}, s[{S_PFS}:{S_PFS+3}], 0 offen")
            P.I[-1].kind = "salu"; P.I[-1].vw = set()
            P(f"LF_wp{k}:")
        if pos == "pv1" and x == 0 and 1 <= it <= JIT: load_window(it)
        if pos in ("g1", "g2", "g3", "g4", "g5", "g6"):
            cnt = int(str(OPT.get("gm", 111111))[int(pos[1]) - 1]) if gq else 1
            cnt = 0 if cnt == 9 else cnt
            if gq and cnt == 0: pass
            elif gq:
                for _ in range(cnt):
                    if gq:
                        for t in gq.pop(0): P(t)
                if not gq and it == JIT and x == 1:
                    L = [f"v_mov_b32 v{cst}, {hexf(GELU_C1)}", f"v_mov_b32 v{cst+1}, {hexf(GELU_C1)}",
                         f"v_mov_b32 v{cst+2}, {hexf(GELU_C2)}", f"v_mov_b32 v{cst+3}, {hexf(GELU_C2)}"]
                    k = 0
                    for i in range(3):
                        for t in range(2):
                            d = fw[k % 2][k // 2]; k += 1
                            L += gelu_tile_pk(acc[i][t], d, tmp, cst)
                            if t == 1: L.append(f"s_add_u32 s{SH[i]}, s{SH[i]}, {118*1024}")
                            L.append(f"buffer_store_dwordx4 {vr(d,4)}, v{l16}, {WSR}, s{SH[i]} offen sc1")
                    ns = (2 if OPT.get("bbh", 0) else 3) + 12 * (UNI - JIT - 1)
                    n = (len(L) + ns - 1) // ns
                    gel.extend(L[i:i + n] for i in range(0, len(L), n))
            elif gel:
                for t in gel.pop(0): P(t, tag="hst" if "store" in t else None)
    PM = OPT.get("pm", 9)
    PH = [int(c) for c in str(OPT.get("ph", 3321)).zfill(4)]; PL = [int(c) for c in str(OPT.get("pl", 3210)).zfill(4)]
    def prioH(it, x):
        if PM == 9: return PH[2 * x] if it < JIT else 3
        if PM == 1: return 3 if (it == 0 and x == 0) else None
        if PM == 3: return 3 - 2 * x
        if PM == 5: return (3 - 2 * x) if it < JIT else 3
        if PM == 6: return 3 if it >= JIT else None
        return None
    def prioL(it, x):
        if PM == 9: return PL[2 * x] if it < JIT else 0
        if PM in (2, 6): return 1 if (it == 0 and x == 0) else None
        if PM == 3: return 3 - 2 * x
        if PM == 5: return (3 - 2 * x) if it < JIT else 0
        return None
    def midprio(it, x, pos, T=None):
        if PM == 9 and pos == "pv2" and it <= JIT: P(f"s_setprio {T[1] if x else T[3]}")
        if PM in (3, 5) and pos == "pv2" and (PM == 3 or it <= JIT): P(f"s_setprio {2 * x}")
    attention(P, A, l16, range(0, UNI), hookH, prioH, kvf=lambda c: None, bb=OPT.get("bbh", 0))
    nsb = A["sb"].n; A["sb"].n = 0
    assert not gq and not gel, (len(gq), len(gel))
    P.cond_end(keep=True)
    P("s_branch LF_join")
    for n in ("vx0", "vtn", "wtr0", "wtr1", "wtr2", "vpf", "vpw"): V.release(n)

    P("LF_l0:")
    P.cond_begin()
    P("s_barrier")
    LOADS["f"]("l")
    stamp(P, 1)
    P("s_waitcnt vmcnt(8)")
    P("s_barrier")
    stamp(P, 2)
    P(f"s_cmp_eq_u32 s{S_W}, 6")
    P("s_cbranch_scc1 LF_l6")
    P(f"s_add_u32 s{S_T3}, s{S_T3}, 24")
    wq_pieces(P, vsl, S_T3, 8, "LF_ldq3", 1)
    P("s_waitcnt vmcnt(8)")
    P("s_branch LF_l6j")
    P("LF_l6:")
    P("s_waitcnt vmcnt(0)")
    P("LF_l6j:")
    P("s_barrier")
    P("LF_light:")
    emit(C_EARLY)

    pats = w_patterns(P, V, lane, t0, t1)
    P(f"s_lshl_b32 s{S_T0}, s{S_HP}, 1")
    P(f"s_mul_i32 s{S_WOFF}, s{S_T0}, {8*2752}")
    P(f"s_lshl_b32 s{S_T1}, s{S_U0}, 5")
    P(f"s_add_u32 s{S_WOFF}, s{S_WOFF}, s{S_T1}")
    P(f"s_mul_i32 s{S_WLDS}, s{S_T0}, 3072")
    P(f"s_mul_i32 s{S_T1}, s{S_TT}, {UP_OFF}")
    P(f"s_add_u32 s{S_WLDS}, s{S_WLDS}, s{S_T1}")
    inattn = dict(on=False)
    P(f"s_add_u32 s{S_WOFF}, s{S_WOFF}, 0")
    P(f"v_subrev_u32 v{pats[1]}, 1024, v{pats[1]}")
    P(f"v_subrev_u32 v{pats[2]}, 2048, v{pats[2]}")
    def w_dma1(s, k):
        g, i = k // 3, k % 3
        solo = not OPT.get("wm0", 1) or inattn["on"]
        if i == 0 or solo:
            dma(P, pats[i], S_WM, f"s{S_T3}", (S_WLDS, SLOT[s % 3] + 3072 * g), offset=1024 * i, tag=f"w{s}",
                pre=[f"s_add_u32 s{S_T3}, s{S_WOFF}, 0x{(32*s + 8*g)*2752:x}"] if i == 0 else None)
        else:
            P(f"buffer_load_dwordx4 v{pats[i]}, s[{S_WM}:{S_WM+3}], s{S_T3} offen offset:{1024*i} lds", tag=f"w{s}")
    def w_dma6(s):
        for k in range(6): w_dma1(s, k)
    stamp(P, 11)
    P("s_barrier")
    w_dma6(0)
    P("s_waitcnt vmcnt(6)"); P.I[-1].kind = "salu"
    P("s_barrier")
    h = len(C_LATE) // 4
    emit(C_LATE[:h])
    stamp(P, 13)
    P("s_barrier")
    w_dma6(1)
    emit(C_LATE[h:])
    dma(P, l16, S_GW, "0", (None, GWL), tag="gw")
    vgw = acc[0][1]
    P(f"v_lshrrev_b32 v{t0}, 5, v{lane}")
    P(f"v_lshlrev_b32 v{vgw}, 4, v{t0}")
    P(f"s_lshl_b32 s{S_T0}, s{S_HP}, 9")
    P(f"v_add_u32 v{vxa}, s{S_T0}, v{vxa}")
    P(f"s_add_u32 s{S_T0}, s{S_T0}, 0x{GWL:x}")
    P(f"v_add_u32 v{vgw}, s{S_T0}, v{vgw}")
    P(f"s_lshl_b32 s{S_T0}, s{S_W}, 8")
    P(f"s_add_u32 s{S_T0}, s{S_T0}, 0x{ONES - 1024:x}")
    P(f"v_lshlrev_b32 v{t0}, 2, v{lane}")
    P(f"v_add_u32 v{t0}, s{S_T0}, v{t0}")
    P(f"v_mov_b32 v{t1}, 0x3f803f80")
    P(f"v_lshrrev_b32 v1, 2, v{lane}")
    P(f"v_and_b32 v1, 11, v1")
    P(f"v_cmp_eq_u32 vcc, 0, v1")
    P(f"v_cndmask_b32 v{t1}, 0, v{t1}, vcc")
    P(f"ds_write_b32 v{t0}, v{t1}")
    P(f"ds_write_b32 v{t0}, v{t1} offset:1024")
    za = acc[0][0]; zx = [acc[1][0] + 4 * i for i in range(4)]; zg = [acc[2][0] + 4 * i for i in range(4)]
    def zjob():
        for r in range(4): P(f"v_mov_b32 v{za+r}, 0")
        def zld(k):
            P(f"ds_read_b128 {vr(zx[k%4],4)}, v{vxa} offset:{k*32}")
            P(f"ds_read_b128 {vr(zg[k%4],4)}, v{vgw} offset:{k*32}")
        for k in range(3): zld(k)
        for k in range(16):
            for r in range(4): P(f"v_dot2c_f32_bf16 v{za+r}, v{zx[k%4]+r}, v{zg[k%4]+r}")
            if k + 3 < 16: zld(k + 3)
        P("s_nop 2")
        P(f"v_add_f32 v{za}, v{za}, v{za+1}")
        P(f"v_add_f32 v{za+2}, v{za+2}, v{za+3}")
        P(f"v_add_f32 v{za}, v{za}, v{za+2}")
        P(f"s_and_b32 s{S_T0}, s{S_W}, 3")
        P(f"s_lshl_b32 s{S_T0}, s{S_T0}, 8")
        P(f"s_add_u32 s{S_T0}, s{S_T0}, 0x{MISC:x}")
        P(f"v_lshlrev_b32 v{t0}, 2, v{lane}")
        P(f"v_add_u32 v{t0}, s{S_T0}, v{t0}")
        P(f"ds_write_b32 v{t0}, v{za}")
    P(f"s_mov_b32 s{S_T6}, 0x{FL_KV:x}")
    def kv_both(c):
        kv_dma(P, l16, c)
        dma(P, l16, S_WS, f"s{S_T2}", (S_KVLDS, (8192 * (c & 1) - 4096) & 0xffffffff), tag=f"kv{c}", mods=SC1, pre=[f"s_sub_u32 s{S_T2}, s{S_T2}, 32768"])
    def poll_issue():
        P(f"buffer_load_dword v{vn}, v{vz}, s[{S_DBG}:{S_DBG+3}], 0 offen sc1")
        P(flag_load(vfl, 4, l16, f"s{S_T6}"))
    for s in range(0, NP + 1):
        P.wait_tag(f"w{s}")
        P.wait_lgkm_all()
        if s == 0: stamp(P, 14)
        P("s_barrier")
        if s == 0:
            stamp(P, 3)
            P(f"ds_read_b128 {vr(qf,4)}, v{vq} offset:1024")
            P(f"ds_read_b128 {vr(qf+4,4)}, v{vq}")
        if s == NP: kv_both(1)
        if s < NP: w_dma6(s + 2)
        if s == 0:
            P(f"buffer_load_dword v{vn}, v{vz}, s[{S_DBG}:{S_DBG+3}], 0 offen sc1")
            P.wait_tag("gw")
            zjob()
    assert NP >= 1
    stamp(P, 4)
    dq = []; wq2 = []
    def hookL(it, x, pos):
        if pos == "sync?": return 1 <= it <= JIT
        if pos == "pre0": sigstamp(it, 0); return
        if pos == "pre":
            if NP + it < 16: P.wait_tag(f"w{NP+it}")
            sigstamp(it, 1); return
        if (pos == "start" or pos == "chk") and NP + it + 2 < 16:
            assert not dq
            for k in range(0 if OPT.get("abl_ldma") else 6): dq.append(lambda s=NP + it + 2, k=k: w_dma1(s, k))
        midprio(it, x, pos, PL)
        LW = OPT.get("lw", 4)
        if pos == "chk" and it == JIT:
            for b in range(LW):
                for o in range(2):
                    for i in range(2): wq2.append(lambda b=b, o=o, i=i: fin_dma_w2(P, vsl, b, b * 16384, f"fw{b}", i, o))
        if wq2 and pos not in ("pre", "pre0", "chk", "start"):
            wq2.pop(0)()
            if it == UNI - 1 and x == 1 and pos == "g6":
                while wq2: wq2.pop(0)()
        LS = [("pv2", "qk", "pv1"), ("g1", "g3", "g5"), ("g2", "g4", "g6"), ("pv1", "g4", "g5", "g6", "pv2", "g1", "g2"), ("pv2", "pv1")][OPT.get("ls", 3)]
        if pos in LS and dq:
            dq.pop(0)()
            if OPT.get("ls", 3) == 4 and dq and len(dq) % 3 != 0: dq.pop(0)(); (dq.pop(0)() if pos == "pv1" and len(dq) % 3 else None)
    attention(P, A, l16, range(0, UNI), hookL, prioL, kvf=kv_both, bb=OPT.get("bbl", 0))
    assert A["sb"].n == nsb
    assert not dq
    P.cond_end(keep=True)
    P("LF_join:")
    P.join()
    for n in ["wpat0", "wpat1", "wpat2", "vxa", "vq"] + [f"acc{i}{t}" for i in range(3) for t in range(2)] + \
             [f"fx{b}{t}" for b in range(2) for t in range(2)] + [f"fw{b}{i}" for b in range(2) for i in range(3)]: V.release(n)
    stamp(P, 5)

    facc = V.alloc("facc", 16); facc1 = V.alloc("facc1", 16); fa = V.alloc("ffa", 8)
    NB = OPT.get("nb", 6)
    hb = [V.alloc(f"hb{i}", 4) for i in range(NB)]; fb = hb[0]
    vl4 = V.alloc("vl4"); vg = V.alloc("vg"); zt = V.alloc("zt", 2)
    va0 = tr_slice_addr(P, V, "fa0", lane, t0, t1, 0, S_KH, 4)
    vA = [[va0, V.alloc("fa0h")], [V.alloc("fa1"), V.alloc("fa1h")]]
    P(f"s_lshl_b32 s{S_T1}, s{S_HP}, 5")
    P(f"v_xor_b32 v{va0}, s{S_T1}, v{va0}")
    P(f"s_lshr_b32 s{S_T0}, s{S_W}, 1")
    P(f"s_lshl_b32 s{S_T1}, s{S_T0}, 11")
    P(f"v_add_u32 v{va0}, s{S_T1}, v{va0}")
    P(f"v_xor_b32 v{vA[1][0]}, 64, v{va0}")
    P(f"v_add_u32 v{vA[0][1]}, 0x10000, v{va0}")
    P(f"v_add_u32 v{vA[1][1]}, 0x10000, v{vA[1][0]}")
    P(f"s_mul_i32 s{S_FB}, s{S_TILE}, 118")
    P(f"s_add_u32 s{S_FB}, s{S_FB}, s{S_T0}")
    P(f"s_lshl_b32 s{S_FB}, s{S_FB}, 10")
    P(f"s_add_u32 s{S_FB}, s{S_FB}, 0x{WS_OH:x}")
    P(f"v_lshlrev_b32 v{vl4}, 2, v{lane}")
    vhf = V.alloc("vhf")
    P(f"v_lshrrev_b32 v{t0}, 3, v{lane}")
    P(f"v_mul_u32_u24 v{t0}, 96, v{t0}")
    P(f"v_add_u32 v{vhf}, v{t0}, v{vl4}")
    P(f"s_lshl_b32 s{S_T0}, s{S_TT}, 8")
    P(f"s_add_u32 s{S_T0}, s{S_T0}, 0x{MISC:x}")
    P(f"v_add_u32 v{t0}, s{S_T0}, v{vl4}")
    P(f"ds_read_b32 v{zt}, v{t0}")
    P(f"ds_read_b32 v{zt+1}, v{t0} offset:512")
    P(f"v_add_f32 v{zt}, v{zt}, v{zt+1}")
    P(f"v_mov_b32 v{zt+1}, v{zt}")
    P(f"v_permlane32_swap_b32 v{zt}, v{zt+1}")
    P(f"v_add_f32 v{zt}, v{zt}, v{zt+1}")
    P(f"v_mul_f32 v{t0}, {hexf(-LOG2E)}, v{zt}")
    P(f"v_exp_f32 v{t0}, v{t0}")
    P(f"v_add_f32 v{t0}, 1.0, v{t0}")
    P(f"v_rcp_f32 v{vg}, v{t0}")
    V.release("zt")
    vw = [V.alloc(f"vw{i}") for i in range(3)]; vrd = V.alloc("vrd"); vo = V.alloc("vo")
    def sbase(dst, w):
        P(f"s_mul_i32 s{S_T1}, s{w}, 6144")
        P(f"v_add_u32 v{dst}, s{S_T1}, v{l16}")
    sbase(vrd, S_W)
    for b in range(1, 4):
        P(f"s_xor_b32 s{S_T0}, s{S_W}, {b << 1}")
        sbase(vw[b - 1], S_T0)
    P(f"v_and_b32 v{vo}, 31, v{lane}")
    P(f"v_lshlrev_b32 v{vo}, 10, v{vo}")
    P(f"v_lshrrev_b32 v{t1}, 5, v{lane}")
    P(f"v_lshl_add_u32 v{vo}, v{t1}, 4, v{vo}")
    P(f"s_lshl_b32 s{S_OO}, s{S_TILE}, 15")
    P(f"s_lshl_b32 s{S_T1}, s{S_J}, 7")
    P(f"s_add_u32 s{S_OO}, s{S_OO}, s{S_T1}")
    P(f"s_lshl_b32 s{S_T1}, s{S_KH}, 6")
    P(f"s_add_u32 s{S_OO}, s{S_OO}, s{S_T1}")
    P(f"s_lshl_b32 s{S_T1}, s{S_HP}, 5")
    P(f"s_add_u32 s{S_OO}, s{S_OO}, s{S_T1}")
    vp = V.alloc("vp"); vpa = V.alloc("vpa")
    P(f"v_lshlrev_b32 v{vpa}, 10, v{lane}")
    vt0 = V.alloc("vt0"); vt1 = V.alloc("vt1")
    P(f"s_lshr_b32 s{S_T1}, s{S_W}, 1")
    P(f"s_mul_i32 s{S_T1}, s{S_T1}, {16384 - 2048}")
    P(f"s_add_u32 s{S_T1}, s{S_T1}, {3*16384}")
    P(f"v_add_u32 v{vt0}, s{S_T1}, v{vA[0][0]}")
    P(f"v_add_u32 v{vt1}, s{S_T1}, v{vA[1][0]}")
    va = V.alloc("cva"); vb = V.alloc("cvb"); fb = V.alloc("cvon")
    P(f"s_mul_i32 s{S_T0}, s{S_W}, 3072")
    P(f"s_add_u32 s{S_T0}, s{S_T0}, 114688")
    P(f"v_add_u32 v{va}, s{S_T0}, v{l16}")
    P(f"s_xor_b32 s{S_T0}, s{S_W}, 4")
    P(f"s_mul_i32 s{S_T0}, s{S_T0}, 3072")
    P(f"s_add_u32 s{S_T0}, s{S_T0}, 114688")
    P(f"v_add_u32 v{vb}, s{S_T0}, v{l16}")
    P(f"s_add_u32 s{S_OL2}, s{S_OL}, 4096")
    BSLOT = lambda b: ((b % 8) if b < 11 else (b - 8)) * 16384
    def a_reads(r, d):
        o = (4 * r % 64) * 2048; hi = o >> 16; o &= 0xffff
        assert r // 2 in vis, (r, vis)
        rd_done[r // 2] = rd_done.get(r // 2, 0) + 1
        if OPT.get("abl_uds"): return
        P(f"ds_read_b64_tr_b16 {vr(fa+4*d,2)}, v{vA[d][hi]} offset:{o}")
        P(f"ds_read_b64_tr_b16 {vr(fa+4*d+2,2)}, v{vA[d][hi]} offset:{o+1024}")
    def h_load(r):
        if OPT.get("abl_uh"): return
        P(f"s_add_u32 s{S_T2}, s{S_FB}, {4096*r}")
        if r == 21:
            P(f"s_cmp_lt_u32 s{S_W}, 4")
            P(f"s_cselect_b32 s{S_T2}, s{S_T2}, 0x{OOB:x}")
        P(f"buffer_load_dwordx4 {vr(hb[r%NB],4)}, v{l16}, {WSR}, s{S_T2} offen sc1")
    pend = {}
    LW = OPT.get("lw", 4)
    dq = []; vis = set(); issued = {}; rd_done = {}; nxt = dict(b=LW, r=0, d=0, pre=False)
    def qW(b):
        def f(i):
            if not OPT.get("abl_uw"): fin_dma_w1(P, vsl, b, BSLOT(b), f"fw{b}", i)
            issued[b] = issued.get(b, 0) + 1
        for i in range(2): dq.append(lambda i=i: f(i))
    CH = OPT.get("ch", HF + 4); R0 = OPT.get("r0", 2 * (CH + 1))
    DBL = OPT.get("dbl", 64)
    def mstep():
        r, d = nxt["r"], nxt["d"]
        if r >= 22: return
        if not nxt["pre"]:
            a_reads(0, 0); a_reads(0, 1); nxt["pre"] = True; return
        if not OPT.get("abl_um"): P(mfma([facc, facc1][d], fa + 4 * d, hb[r % NB], [facc, facc1][d] if r else None))
        if r + 1 < 22: a_reads(r + 1, d)
        if d == 1 and r + NB < 22: dq.insert(0, lambda r=r: h_load(r + NB))
        nxt["d"] = 1 - d; nxt["r"] = r + d
    US = [("g1", "g4"), ("g2", "g5"), ("g1", "g5"), ("g2", "g6"), ("g3", "g6")][OPT.get("us", 3)]
    VS = [("pv2", "qk"), ("qk", "pv1"), ("pv2", "pv1"), ("g3", "g6"), ("qk", "g6")][OPT.get("vs", 0)]
    def hookU(it, x, pos):
        sig = (x == 0 and (it & 1)); ph = 2 * it + x
        if pos == "sync?": return False
        if pos == "pre0": sigstamp(it, 0); return
        if pos == "pre":
            if it == HF: P.wait_vm_all()
            need = [b for b in issued if issued[b] == 2 and b not in vis and (it == 29 or b <= (max(0, ph + 8 - R0) * (2 if ph + 6 >= DBL else 1)) // 2) and b <= 10]
            if need: P.wait_tag(*[f"fw{b}" for b in need])
            if it == HF: need = need + list(range(LW))
            pend["vis"] = need; pend["free"] = {b for b in rd_done if rd_done[b] >= 4}
            sigstamp(it, 1); return
        if pos == "pv1" and sig and it == HF and OPT.get("ef", -1) < 0:
            nonce_check(P, SL, vn, vz)
            flag_store(P, vz, t0, S_FS)
        if pos == "chk":
            vis.update(pend["vis"])
            while it >= HF and nxt["b"] < 15:
                b = nxt["b"]; prev = {8: 0, 9: 1, 10: 2, 11: 3, 12: 4, 13: 5, 14: 6}.get(b)
                if prev is not None and prev not in pend["free"]: break
                qW(b); nxt["b"] += 1
            return
        PP = OPT.get("pp", 2)
        if (PP == 0 and pos == "pv2" and x == 0 and it == CH - 1) or (PP == 1 and pos == "g1" and x == 1 and it == CH - 1) or \
           (PP == 2 and pos == "pv1" and x == 1 and it == CH - 1): P(flag_load(vfl, 1, vhf, f"s{S_FP}"))
        EF = OPT.get("ef", -1)
        if ph == EF and pos == "g4":
            P.wait_vm_all(); nonce_check(P, SL, vn, vz); flag_store(P, vz, t0, S_FS)
        if pos == "pv2" and x == 0 and it == CH:
            spin_check(P, SL, [flag_load(vfl, 1, vhf, f"s{S_FP}")], flag_cmp(vfl, 1, t0), sleep=OPT.get("hsl", 4))
            for r in range(NB): dq.insert(r, lambda r=r: h_load(r))
        elif dq and (pos in VS or (pos in ("g2", "g5") and it in (CH, CH + 1)) or (pos == "g5" and OPT.get("d3"))): dq.pop(0)()
        if nxt["r"] >= 22 - OPT.get("tr", 5) and nxt["d"] == 0: pass
        elif (pos in US and ph >= R0) or (pos == US[1] and ph == R0 - 1) or (pos in ("g3", "g6") and ph >= DBL): mstep()
        if pos == "g6" and it == 31 and x == 1:
            assert nxt["b"] == 15, nxt
            print("rounds left for tail:", 22 - nxt["r"])
    def prioU(it, x):
        if not OPT.get("prio", 1): return None
        k = 2 * ((it + 1) & 1) + x
        return int(str(OPT.get("pu", 3210)).zfill(4)[k])
    attention(P, A, l16, range(UNI, 32), hookU, prioU)
    assert not dq
    stamp(P, 6)
    if OPT.get("sig"):
        P(f"s_lshl_b32 s98, s2, 11")
        P(f"s_lshl_b32 s99, s{S_W}, 8")
        P(f"s_add_u32 s98, s98, s99")
        P(f"s_add_u32 s98, s98, 0x{WS_STAMP + (1<<20):x}")
        P(f"buffer_store_dword v{vsig}, v{vl4}, {WSR}, s98 offen")
    P("s_setprio 0")
    P(f"v_mov_b32 v{O[1]+7}, v{O[1]}")
    for i in range(3): P(f"ds_write_b128 v{va}, {vr(O[1]+4+4*i,4)} offset:{1024*i}")
    P.wait_tag(*[f"fw{b}" for b in range(8, 15)]); P.wait_lgkm_all()
    P("s_barrier")
    vis.update(range(11))
    for i in range(3): P(f"ds_read_b128 {vr(O[1]+4+4*i,4)}, v{vb} offset:{1024*i}")
    P(f"v_add_f32 v{O[0]}, v{O[0]}, v{O[1]+7}")
    for r in range(8, 16): P(f"v_add_f32 v{O[0]+r}, v{O[0]+r}, v{O[1]+r}")
    P(f"v_mov_b32 v{t1}, 0x207")
    P(f"v_cmp_nle_f32 vcc, {hexf(2.0**-90)}, v{O[0]}")
    P(f"v_cmp_nge_f32 s[{S_PM}:{S_PM+1}], {'s' + str(S_T0)}, v{O[0]}".replace(f"s{S_T0}", f"s{S_C1}"))
    P(f"s_or_b64 vcc, vcc, s[{S_PM}:{S_PM+1}]")
    P(f"v_add3_u32 v{t0}, v{O[0]+8}, 0, 0".replace("v_add3_u32", "v_add_f32").replace(", 0, 0", f", v{O[0]+9}"))
    for r in range(10, 16): P(f"v_add_f32 v{t0}, v{t0}, v{O[0]+r}")
    P(f"v_cmp_class_f32 s[{S_PM}:{S_PM+1}], v{t0}, v{t1}")
    P(f"s_or_b64 vcc, vcc, s[{S_PM}:{S_PM+1}]")
    if OPT.get("forcefb"): P("s_mov_b64 vcc, -1")
    P("s_cmp_lg_u64 vcc, 0")
    P("s_cbranch_scc1 LF_fb")
    P("LF_fbr:")
    P(f"v_rcp_f32 v{t0}, v{O[0]}")
    P(f"v_mul_f32 v{t0}, v{t0}, v{vg}")
    for r in range(8, 16): P(f"v_mul_f32 v{O[0]+r}, v{O[0]+r}, v{t0}")
    for r in range(4): P(f"v_cvt_pk_bf16_f32 v{O[1]+r}, v{O[0]+8+2*r}, v{O[0]+9+2*r}")
    for r in range(4): P(f"v_min_u32 v{O[1]+r}, 0xfffffffe, v{O[1]+r}")
    P(f"buffer_store_dwordx4 {vr(O[1],4)}, v{l16}, {WSR}, s{S_OD} offen sc1", tag="ost")
    P(f"s_add_u32 s{S_FS}, s{S_FS}, 32768")
    flag_store(P, vz, t0, S_FS)
    P(f"s_lshr_b32 s{S_T1}, s{S_W}, 1")
    P(f"s_lshl_b32 s{S_T1}, s{S_T1}, 8")
    P(f"s_add_u32 s{S_FP}, s{S_FP}, s{S_T1}")
    P(f"s_add_u32 s{S_FP}, s{S_FP}, 32768")
    stamp(P, 7)
    K4, V8, ON, CM = A["fk"], A["fv"][0], fb, O[1]
    assert A["fv"][1] == V8 + 4
    nl = "\n    "
    fbk = f"""LF_fb:
    s_waitcnt vmcnt(0) lgkmcnt(0)
    v_mov_b32 v{t0}, 0xff800000
    s_mov_b32 s{S_T0}, 0x{WS_KF:x}
LF_fb1:
    buffer_load_dwordx4 {vr(K4,4)}, v{l16}, {WSR}, s{S_T0} offen sc1
    s_waitcnt vmcnt(0)
    {mfma(S[0], K4, qf)}
    s_nop 15
    {nl.join(f"v_max3_f32 v{t0}, v{S[0]+2*r}, v{S[0]+2*r+1}, v{t0}" for r in range(8))}
    s_add_u32 s{S_T0}, s{S_T0}, 1024
    s_cmp_lt_u32 s{S_T0}, 0x{WS_KF + 65536:x}
    s_cbranch_scc1 LF_fb1
    v_mov_b32 v{t1}, v{t0}
    s_nop 1
    v_permlane32_swap_b32 v{t0}, v{t1}
    s_nop 1
    v_max_f32 v{t0}, v{t0}, v{t1}
    {nl.join(f"v_sub_f32 v{CM+r}, 0, v{t0}" for r in range(16))}
    {nl.join(f"v_mov_b32 v{O[0]+r}, 0" for r in range(16))}
    v_lshrrev_b32 v{t0}, 5, v{lane}
    v_lshlrev_b32 v{t0}, 8, v{t0}
    v_and_b32 v{t1}, 15, v{lane}
    v_lshl_add_u32 v{t0}, v{t1}, 4, v{t0}
    v_and_b32 v{t1}, 16, v{lane}
    v_cmp_eq_u32 vcc, 0, v{t1}
    v_mov_b32 v{t1}, 0x{OOB:x}
    s_nop 1
    v_cndmask_b32 v{t0}, v{t0}, v{t1}, vcc
    v_and_b32 v{t1}, 27, v{lane}
    v_cmp_eq_u32 vcc, 0, v{t1}
    v_mov_b32 v{ON}, 0x3f803f80
    s_nop 1
    v_cndmask_b32 v{ON}, 0, v{ON}, vcc
    s_mov_b32 s{S_T0}, 0x{WS_KF:x}
LF_fb2:
    s_add_u32 s{S_T1}, s{S_T0}, 0x{WS_VF - WS_KF:x}
    buffer_load_dwordx4 {vr(K4,4)}, v{l16}, {WSR}, s{S_T0} offen sc1
    buffer_load_dwordx4 {vr(V8,4)}, v{t0}, {WSR}, s{S_T1} offen sc1
    buffer_load_dwordx4 {vr(V8+4,4)}, v{t0}, {WSR}, s{S_T1} offen offset:512 sc1
    s_waitcnt vmcnt(0)
    {mfma(S[0], K4, qf, CM)}
    {nl.join(f"v_or_b32 v{V8+r}, v{V8+r}, v{ON}" for r in range(8))}
    s_nop 7
    {nl.join(f"v_exp_f32 v{S[0]+r}, v{S[0]+r}" for r in range(16))}
    s_nop 1
    {nl.join(f"v_cvt_pk_bf16_f32 v{S[1]+r}, v{S[0]+2*r}, v{S[0]+2*r+1}" for r in range(8))}
    s_nop 1
    {mfma(O[0], V8, S[1], O[0])}
    {mfma(O[0], V8+4, S[1]+4, O[0])}
    s_add_u32 s{S_T0}, s{S_T0}, 1024
    s_cmp_lt_u32 s{S_T0}, 0x{WS_KF + 65536:x}
    s_cbranch_scc1 LF_fb2
    s_nop 15
    s_branch LF_fbr
"""
    SL.add(fbk)
    for n in ("Sa", "Sb", "Oa", "qf", "fk", "fv1", "fv2"): V.release(n)
    ob = V.alloc("ob", 32); wa = [V.alloc(f"wa{u}", 8) for u in range(8)]
    def oloads(g): return [f"buffer_load_dwordx4 {vr(ob+16*g+4*u,4)}, v{l16}, {WSR}, s{[S_OL,S_OL2][g]} offen offset:{1024*u} sc1" for u in range(4)]
    def ocheck(g):
        b = ob + 16 * g
        L = [f"v_max3_u32 v{t0}, v{b}, v{b+1}, v{b+2}"]
        for k in range(3, 15, 2): L.append(f"v_max3_u32 v{t0}, v{b+k}, v{b+k+1}, v{t0}")
        L += [f"v_max_u32 v{t0}, v{b+15}, v{t0}", f"v_cmp_eq_u32 vcc, -1, v{t0}"]
        return L
    fa2 = V.alloc("ffa2", 8)
    wr = []
    for u in range(8):
        for d, v in ((0, vt0), (1, vt1)):
            wr.append([f"ds_read_b64_tr_b16 {vr(wa[u]+4*d,2)}, v{v} offset:{u*2048}", f"ds_read_b64_tr_b16 {vr(wa[u]+4*d+2,2)}, v{v} offset:{u*2048+1024}"])
    r0 = nxt["r"]; assert nxt["d"] == 0 and not dq
    def tr_reads(r, d):
        o = (4 * r % 64) * 2048; hi = o >> 16; o &= 0xffff; f = [fa, fa2][(r - r0) % 2] + 4 * d
        P(f"ds_read_b64_tr_b16 {vr(f,2)}, v{vA[d][hi]} offset:{o}")
        P(f"ds_read_b64_tr_b16 {vr(f+2,2)}, v{vA[d][hi]} offset:{o+1024}")
    if r0 + 1 < 22: tr_reads(r0 + 1, 0); tr_reads(r0 + 1, 1)
    OL = min(r0 + OPT.get("ol", 99), 22)
    for r in range(r0, 22):
        if OPT.get("ofp", 0) == 2 and r == 21:
            for x in ["s_mov_b64 exec, 0xffff", flag_load(vp, 1, vhf, f"s{S_FP}"), "s_mov_b64 exec, -1"]: P(x)
        if r == OL:
            for g in range(2):
                for x in oloads(g): P(x)
        for d in range(2):
            P(mfma([facc, facc1][d], [fa, fa2][(r - r0) % 2] + 4 * d, hb[r % NB], [facc, facc1][d]))
            if r + 2 < 22: tr_reads(r + 2, d)
            elif wr:
                for g in wr[:4]:
                    for x in g: P(x)
                del wr[:4]
    for g in wr:
        for x in g: P(x)
    assert 22 - r0 <= NB and r0 >= 16
    fl = ["s_mov_b64 exec, 0xffff", flag_load(vp, 1, vhf, f"s{S_FP}"), "s_mov_b64 exec, -1"]
    fc = ["s_mov_b64 exec, 0xffff", f"v_cmp_ne_u32 vcc, s{S_NONCE}, v{vp}", "s_mov_b64 exec, -1"]
    if OPT.get("ofp", 0) == 0:
        for x in fl: P(x)
    P.wait_lgkm_all(); P("s_barrier")
    if OPT.get("ofp", 0) == 1:
        for x in fl: P(x)
    spin_check(P, SL, fl, fc, sleep=OPT.get("fsl", 1))
    if OL == 22:
        for g in range(2):
            for x in oloads(g): P(x)
    P(f"v_sub_f32 v{t1}, 1.0, v{vg}")
    P(f"v_mov_b32 v{t0}, v{t1}")
    assert t1 == t0 + 1 and t0 % 2 == 0
    for r in range(0, 16, 2): P(f"v_pk_mul_f32 v[{facc+r}:{facc+r+1}], v[{facc+r}:{facc+r+1}], v[{t0}:{t1}]")
    for r in range(0, 16, 2): P(f"v_pk_mul_f32 v[{facc1+r}:{facc1+r+1}], v[{facc1+r}:{facc1+r+1}], v[{t0}:{t1}]")
    if not OPT.get("oab", 1): P.wait_lgkm_all(); P("s_barrier")
    stamp(P, 8)
    nl = "\n    "
    PROBE = lambda g: f"""s_mov_b64 exec, 0xf
    buffer_load_dword v{vp}, v{vpa}, {WSR}, s{[S_OL,S_OL2][g]} offen offset:1020 sc1
    s_waitcnt vmcnt(0)
    v_cmp_eq_u32 vcc, -1, v{vp}
    s_mov_b64 exec, -1"""
    for g in range(2):
        k = SL.n; SL.n += 1
        for x in ocheck(g): P(x)
        P(f"s_cbranch_vccz LR{k}")
        raw(P, f"""{cnt(1+k)}    s_mov_b32 s{S_T7}, 0
LS{k}_p:
    {f"s_sleep {OPT.get('osl', 1)}" if OPT.get('osl', 1) else "s_nop 0"}
    {"" if OPT.get("odir") else PROBE(g)}
    s_add_u32 s{S_T7}, s{S_T7}, 1
    s_cmp_ge_u32 s{S_T7}, 0x{SPIN_MAX:x}
    s_cbranch_scc1 LR{k}
    {"" if OPT.get("odir") else f"s_cbranch_vccnz LS{k}_p"}
    {nl.join(oloads(g))}
    s_waitcnt vmcnt(0)
    {nl.join(ocheck(g))}
    s_cbranch_vccnz LS{k}_p
""")
        P(f"LR{k}:")
        for u in range(4 * g, 4 * g + 4):
            P(mfma(facc1, wa[u] + 4, ob + 4 * u, facc1))
    W1 = [f"ds_write_b128 v{vw[b-1]}, {vr(src+4*i,4)} offset:{2048*(b-1) + 1024*i}" for b, src in ((2, facc1), (3, facc1 + 8)) for i in range(2)]
    for u in range(8):
        P(mfma(facc, wa[u], ob + 4 * u, facc))
        if u >= 3 and W1:
            if u == 3: P("s_nop 7")
            P(W1.pop(0))
    stamp(P, 9)
    for b, src in ((1, facc + 8),):
        for i in range(2): P(f"ds_write_b128 v{vw[b-1]}, {vr(src+4*i,4)} offset:{2048*(b-1) + 1024*i}")
    P.wait_lgkm_all()
    P("s_barrier")
    for i in range(6): P(f"ds_read_b128 {vr(ob+4*i,4)}, v{vrd} offset:{1024*i}")
    for b in range(3):
        for r in range(8): P(f"v_add_f32 v{facc+r}, v{facc+r}, v{ob+8*b+r}")
    for r in range(4): P(f"v_cvt_pk_bf16_f32 v{facc1+r}, v{facc+2*r}, v{facc+2*r+1}")
    P(f"v_permlane32_swap_b32 v{facc1}, v{facc1+2}")
    P(f"v_permlane32_swap_b32 v{facc1+1}, v{facc1+3}")
    P(f"buffer_store_dwordx4 {vr(facc1,4)}, v{vo}, s[{S_OUT}:{S_OUT+3}], s{S_OO} offen")
    if OPT.get("cnt"):
        P(f"v_lshrrev_b32 v1, v{lane}, s85".replace(f"v{lane}, s85", f"v{lane}, v0") if False else f"v_mov_b32 v0, s85")
        P(f"v_lshrrev_b32 v1, v{lane}, v0")
        P(f"v_and_b32 v1, 1, v1")
        P(f"v_lshlrev_b32 v0, 2, v{lane}")
        P("s_mov_b64 exec, 0xfe")
        P(f"buffer_atomic_add v1, v0, s[{S_DBG}:{S_DBG+3}], 0 offen")
    if STAMP["on"]:
        P.wait_vm_all(); stamp(P, 10); stamp_dump(P, lane)
        if OPT.get("dbgst") is not None:
            P(f"s_cmp_lg_u32 s2, {OPT['dbgst']}")
            P("s_cbranch_scc1 LF_end")
            P(f"s_cmp_lg_u32 s{S_W}, {OPT.get('dbgw', 0)}")
            P("s_cbranch_scc1 LF_end")
            P(f"v_subrev_u32 v{VSTAMP}, s100, v{VSTAMP}")
            P("s_mov_b64 exec, 0x7fff")
            P(f"buffer_store_dword v{VSTAMP}, v1, s[{S_DBG}:{S_DBG+3}], 0 offen offset:4")
    P("LF_end:")
    P("s_endpgm")
    name = NAME + "_kernel"
    body, I = finalize(P)
    txt = f".text\n.globl {name}\n.p2align 8\n.type {name},@function\n{name}:\n" + body + "".join(SL.txt) + "LF_last:\n    s_endpgm\n"
    vg_ = 256 if STAMP["on"] else max(V.hi, 8)
    txt += KD.format(name=name, vgpr=vg_, sgpr=102 if STAMP['on'] else 96, accum=(vg_ + 3) // 4 * 4)
    return txt, I, vg_


if __name__ == "__main__":
    out = sys.argv[1]
    STAMP["on"] = "stamp" in sys.argv
    for a in sys.argv[2:]:
        if "=" in a: k, v = a.split("="); OPT[k] = int(v)
        else: OPT[a] = True
    import asmlib; asmlib.MERGE_D = OPT.get("md", 9)
    t, I, vg_ = kernel_F()
    DOC = """; One fused kernel, 256 workgroups x 8 waves, one per CU (all co-resident).  Workgroup = (64-token group G, slice j).
;  start : K/V projection of 16 tokens (wave 7) -> d_ws + flag ; Q projection of 4 heads (waves 0-3) ; gate logit
;          true row maximum (LF_fb) whenever that could have overflowed or underflowed.
;  end   : o exchanged through d_ws (words preset to all-ones mean 'not written yet'), output projection, gated mix.
;  Hand-offs: write-through stores, vmcnt, then flags tagged with a per-launch nonce published through d_debug[0].
"""
    hdr = HEADER + DOC + f"; @launch grid=(256,1,1) block=(512,1,1) lds={LDS_BYTES}\n" + '.amdgcn_target "amdgcn-amd-amdhsa--gfx950"\n'
    open(out, "w").write(hdr + t)
    import subprocess
    r = subprocess.run(["clang", "-x", "assembler", "-target", "amdgcn-amd-amdhsa", "-mcpu=gfx950", "-c", out, "-o", "_chk.o"], capture_output=True, text=True)
    if r.returncode: print("ASM ERROR", r.stderr[:500])
    print("insts", len(I), "vgpr", vg_, "nops", sum(1 for x in I if x.kind == "nop"))
```

```python
import sys, re
from parts import *
OPT = {}
S_NONCE = 93
S_HP, S_KH = 30, 31
SH = [4, 5, 6]
S_FS, S_FP, S_OD, S_OL = 7, 8, 9, 10
S_FW, S_FB, S_FL, S_FL2 = 12, 13, 14, 15
S_OO, S_OL2 = 11, 18
S_VM = 28
S_PM = 16
FL_KV, FL_H = WS_FLAG, WS_FLAG + 8192
WKV_L = KV_RING
QSCR = KV_RING + 8192
FSLOT = [0, 32768, 65536, 98304]
WO_CH = [98304, 114688, 0, 32768]
SC1 = " sc1"
SPIN_MAX = 1 << 22
WSR = f"s[{S_WS}:{S_WS+3}]"


def cnt(k):
    if not OPT.get("cnt"): return ""
    return f"    s_bitset1_b32 s85, {k}\n"


def raw(P, text):
    for line in text.split("\n"):
        line = line.strip()
        if not line: continue
        P(line)
        x = P.I[-1]
        if x.kind not in ("label",):
            x.kind = "salu"; x.vr = set(); x.vw = set(); x.sr = set(); x.sw = set(); x.mf = None; x.meta = dict(skip=True)


class Slow:
    def __init__(self): self.txt = []; self.n = 0
    def add(self, t): self.txt.append(t)


LOADS = {}
def wq_pieces(P, vsl, s_first, n, label, rot):
    P(f"s_and_b32 s{S_T6}, s{S_G}, 7")
    if rot > 1: P(f"s_mul_i32 s{S_T6}, s{S_T6}, {rot}")
    P(f"s_add_u32 s{S_T5}, s{S_T6}, {n}")
    P(f"s_lshl_b32 s{S_T7}, s{S_J}, 7")
    P(f"{label}:")
    P(f"s_and_b32 s{S_T4}, s{S_T6}, {n-1}")
    P(f"s_add_u32 s{S_T4}, s{S_T4}, s{s_first}")
    P(f"s_mul_i32 s{S_T0}, s{S_T4}, 171")
    P(f"s_lshr_b32 s{S_T0}, s{S_T0}, 12")
    P(f"s_lshl_b32 s{S_T1}, s{S_T4}, 2")
    P(f"s_add_u32 s{S_T0}, s{S_T0}, s{S_T1}")
    P(f"s_lshl_b32 s{S_T0}, s{S_T0}, 8")
    P(f"s_add_u32 m0, s{S_T0}, 0x{SLOT[0]:x}")
    P(f"s_lshl_b32 s{S_T2}, s{S_T4}, 13")
    P(f"s_add_u32 s{S_T2}, s{S_T2}, s{S_T7}")
    P(f"s_add_u32 s{S_T6}, s{S_T6}, 1")
    P(f"buffer_load_dwordx4 v{vsl}, s[{S_WQ}:{S_WQ+3}], s{S_T2} offen lds")
    P.I[-1].kind = "salu"
    P(f"s_cmp_lg_u32 s{S_T6}, s{S_T5}")
    P(f"s_cbranch_scc1 {label}")


def emit_loads(P, l16, vsl, sfx):
    if sfx == "h":
        P(f"s_lshr_b32 s{S_T4}, s{S_J}, 1")
        P(f"s_lshl_b32 s{S_T4}, s{S_T4}, 4")
        P(f"s_mul_i32 s{S_T1}, s{S_W}, 12")
        P(f"s_add_u32 s{S_T4}, s{S_T4}, s{S_T1}")
        P(f"s_add_u32 s{S_T4}, s{S_T4}, 16")
        P(f"s_lshl_b32 s{S_T0}, s{S_G}, 16")
        P(f"s_and_b32 s{S_T6}, s{S_J}, 3")
        P(f"s_mul_i32 s{S_T6}, s{S_T6}, 3")
        P(f"s_mov_b32 s{S_T5}, 12")
        mk_srd(P, S_X, 4, SZ["x"])
        P("LF_ldx1:")
        P(f"s_add_u32 s{S_T1}, s{S_T6}, s{S_T4}")
        P(f"s_and_b32 s{S_T1}, s{S_T1}, 63")
        P(f"s_mul_i32 m0, s{S_T1}, {X_STRIDE}")
        P(f"s_lshl_b32 s{S_T2}, s{S_T1}, 10")
        P(f"s_add_u32 s{S_T2}, s{S_T2}, s{S_T0}")
        P(f"s_add_u32 s{S_T6}, s{S_T6}, 1")
        P(f"s_cmp_eq_u32 s{S_T6}, 12")
        P(f"s_cselect_b32 s{S_T6}, 0, s{S_T6}")
        P(f"buffer_load_dwordx4 v{l16}, s[{S_X}:{S_X+3}], s{S_T2} offen lds", tag="q")
        P(f"s_sub_u32 s{S_T5}, s{S_T5}, 1")
        P(f"s_cmp_lg_u32 s{S_T5}, 0")
        P("s_cbranch_scc1 LF_ldx1")
    else:
        mk_srd(P, S_WQ, 6, SZ["wq"])
        P(f"s_and_b32 s{S_T3}, s{S_W}, 3")
        P(f"s_lshl_b32 s{S_T3}, s{S_T3}, 3")
        wq_pieces(P, vsl, S_T3, 8, "LF_ldq1", 1)
        P(f"s_add_u32 s{S_T3}, s{S_T3}, 24")
        wq_pieces(P, vsl, S_T3, 8, "LF_ldq2", 1)


def prologue_f(P, V, endlabel):
    if STAMP["on"]: P("s_memrealtime s[100:101]")
    P("s_cmp_ge_u32 s2, 256")
    P(f"s_cbranch_scc1 {endlabel}")
    P("s_load_dwordx16 s[4:19], s[0:1], 0")
    P("s_load_dwordx8 s[20:27], s[0:1], 64")
    P("s_load_dwordx2 s[28:29], s[0:1], 96")
    lane = V.alloc("lane"); l16 = V.alloc("l16")
    if OPT.get("cpf", 1):
        c = V.alloc("cpf", 2)
        P(f"s_getpc_b64 s[{S_EX}:{S_EX+1}]")
        P("LF_pc0:")
        if OPT.get("cpf", 1) == 1:
            P(f"s_lshr_b32 s{S_T3}, s2, 3")
            P(f"s_lshl_b32 s{S_T3}, s{S_T3}, 11")
            P(f"v_lshrrev_b32 v{c}, 5, v0")
            P(f"v_lshlrev_b32 v{c}, 7, v{c}")
            P(f"v_add_u32 v{c}, s{S_T3}, v{c}")
            P(f"v_min_u32 v{c}, LF_last-LF_pc0, v{c}")
            P("s_mov_b32 exec_lo, 1"); P("s_mov_b32 exec_hi, 1")
        else:
            P(f"s_lshr_b32 s{S_T3}, s2, 3")
            P(f"s_and_b32 s{S_T3}, s{S_T3}, 15")
            P(f"s_lshl_b32 s{S_T3}, s{S_T3}, 12")
            P(f"v_lshrrev_b32 v{c}, 4, v0")
            P(f"v_lshlrev_b32 v{c}, 7, v{c}")
            P(f"v_add_u32 v{c}, s{S_T3}, v{c}")
            P(f"v_min_u32 v{c}, LF_last-LF_pc0, v{c}")
            P("s_mov_b32 exec_lo, 0x00010001")
            P("s_mov_b32 exec_hi, 0x00010001")
        P(f"global_load_dword v{c}, v{c}, s[{S_EX}:{S_EX+1}]", tag="cpf")
        P("s_mov_b64 exec, -1")
    P(f"v_lshrrev_b32 v1, 6, v0")
    P(f"v_and_b32 v{lane}, 63, v0")
    P(f"v_readfirstlane_b32 s{S_W}, v1")
    P(f"v_lshlrev_b32 v{l16}, 4, v{lane}")
    P(f"s_lshr_b32 s{S_T0}, s2, 3")
    if OPT.get("jrot"): P(f"s_add_u32 s{S_J}, s{S_T0}, {OPT['jrot']}"); P(f"s_and_b32 s{S_J}, s{S_J}, 3")
    else: P(f"s_and_b32 s{S_J}, s{S_T0}, 3")
    P(f"s_and_b32 s{S_T1}, s2, 1")
    P(f"s_lshl_b32 s{S_T1}, s{S_T1}, 2")
    P(f"s_add_u32 s{S_J}, s{S_J}, s{S_T1}")
    P(f"s_and_b32 s{S_G}, s2, 6")
    P(f"s_lshl_b32 s{S_G}, s{S_G}, 2")
    P(f"s_lshr_b32 s{S_T0}, s{S_T0}, 2")
    P(f"s_add_u32 s{S_G}, s{S_G}, s{S_T0}")
    t0 = V.alloc("t0"); t1 = V.alloc("t1")
    vsl = slice_pattern(P, V, lane, t0)
    LOADS["f"] = lambda sfx: emit_loads(P, l16, vsl, sfx)
    P(f"s_and_b32 s{S_TT}, s{S_W}, 1")
    P(f"s_lshl_b32 s{S_TILE}, s{S_G}, 1")
    P(f"s_add_u32 s{S_TILE}, s{S_TILE}, s{S_TT}")
    P(f"s_lshr_b32 s{S_HP}, s{S_W}, 1")
    P(f"s_and_b32 s{S_HP}, s{S_HP}, 1")
    P(f"s_lshr_b32 s{S_KH}, s{S_W}, 2")
    assert all((p * 171) >> 12 == p // 24 for p in range(64)) and SLOT_SZ == 3 * 8192 + 256
    return lane, l16, t0, t1, vsl


def rest_srds(P):
    P(f"s_cmp_eq_u32 s{S_TT}, 0")
    P(f"s_cselect_b32 s{S_WM}, s16, s18")
    P(f"s_cselect_b32 s{S_WM+1}, s17, s19")
    P(f"s_and_b32 s{S_WM+1}, s{S_WM+1}, 0xffff")
    P(f"s_mov_b32 s{S_WM+2}, 0x{SZ['wg']:x}")
    P(f"s_mov_b32 s{S_WM+3}, 0x20000")
    mk_srd(P, S_OUT, 24, SZ["out"])
    mk_srd(P, S_WO, 12, SZ["wo"])
    mk_srd(P, S_WD, 20, SZ["wd"])


def nonce_check(P, SL, vn, vz):
    k = SL.n; SL.n += 1
    P(f"v_readfirstlane_b32 s{S_NONCE}, v{vn}")
    P(f"s_cmp_lg_u32 s{S_NONCE}, 0")
    P(f"s_cbranch_scc1 LR{k}")
    raw(P, f"""{cnt(1+k)}    s_mov_b32 s{S_T7}, 0
LS{k}_l:
    s_sleep 2
    buffer_load_dword v{vn}, v{vz}, s[{S_DBG}:{S_DBG+3}], 0 offen sc1
    s_waitcnt vmcnt(0)
    v_readfirstlane_b32 s{S_NONCE}, v{vn}
    s_add_u32 s{S_T7}, s{S_T7}, 1
    s_cmp_ge_u32 s{S_T7}, 0x{SPIN_MAX:x}
    s_cbranch_scc1 LR{k}
    s_cmp_eq_u32 s{S_NONCE}, 0
    s_cbranch_scc1 LS{k}_l
""")
    P(f"LR{k}:")
    P("s_nop 0")


def flag_load(vf, n, vaddr, soff):
    op = {1: "buffer_load_dword", 4: "buffer_load_dwordx4"}[n]
    return f"{op} {vr(vf,n)}, v{vaddr}, {WSR}, {soff} offen sc1"


def flag_cmp(vf, n, t):
    L = [f"v_xor_b32 v{t}, s{S_NONCE}, v{vf}"]
    for i in range(1, n):
        L += [f"v_xor_b32 v{vf+i}, s{S_NONCE}, v{vf+i}", f"v_or_b32 v{t}, v{t}, v{vf+i}"]
    L += [f"v_cmp_ne_u32 vcc, 0, v{t}"]
    return L


def spin_check(P, SL, loads, cmps, sleep=1):
    k = SL.n; SL.n += 1
    for x in cmps: P(x)
    P(f"s_cbranch_vccz LR{k}")
    nl = "\n    "
    raw(P, f"""{cnt(1+k)}    s_mov_b32 s{S_T7}, 0
LS{k}_l:
    {f"s_sleep {sleep}" if sleep else "s_nop 0"}
    {nl.join(loads)}
    s_waitcnt vmcnt(0)
    {nl.join(cmps)}
    s_add_u32 s{S_T7}, s{S_T7}, 1
    s_cmp_ge_u32 s{S_T7}, 0x{SPIN_MAX:x}
    s_cbranch_scc1 LR{k}
    s_cbranch_vccnz LS{k}_l
""")
    P(f"LR{k}:")


def flag_store(P, vz, t, soff):
    P(f"v_mov_b32 v{t}, s{S_NONCE}")
    P("s_mov_b64 exec, 1")
    P(f"buffer_store_dword v{t}, v{vz}, {WSR}, s{soff} offen sc1", tag="flag")
    P("s_mov_b64 exec, -1")


PROG = MISC + 1024
class SplitBar:
    def __init__(self, P, V, SL, lane, t0):
        self.P, self.SL, self.n = P, SL, 0
        self.va = V.alloc("sba"); self.vr = V.alloc("sbr"); self.one = V.alloc("sb1"); self.vg = V.alloc("sbg")
        P(f"s_lshl_b32 s{S_T0}, s{S_W}, 8")
        P(f"s_add_u32 s{S_T0}, s{S_T0}, 0x{PROG:x}")
        P(f"v_lshlrev_b32 v{t0}, 2, v{lane}")
        P(f"v_add_u32 v{self.va}, s{S_T0}, v{t0}")
        P(f"v_and_b32 v{t0}, 7, v{lane}")
        P(f"v_mul_u32_u24 v{t0}, 260, v{t0}")
        P(f"v_add_u32 v{self.vr}, 0x{PROG:x}, v{t0}")
        P(f"v_mov_b32 v{self.one}, 0")
        P(f"ds_write_b32 v{self.va}, v{self.one}")
        P(f"v_mov_b32 v{self.one}, 1")
    def arrive(self):
        self.n += 1
        self.P(f"ds_add_u32 v{self.va}, v{self.one}")
    def peek(self): self.P(f"ds_read_b32 v{self.vg}, v{self.vr}")
    def check(self):
        k = self.SL.n; self.SL.n += 1
        self.P(f"v_cmp_gt_u32 vcc, {self.n}, v{self.vg}")
        self.P(f"s_cbranch_vccz LR{k}")
        self.P(f"LS{k}:")
        for t in ([f"s_sleep {OPT['ssl']}"] if OPT.get("ssl") else []) + [f"ds_read_b32 v{self.vg}, v{self.vr}", "s_waitcnt lgkmcnt(0)", f"v_cmp_gt_u32 vcc, {self.n}, v{self.vg}", f"s_cbranch_vccnz LS{k}"]:
            self.P(t); self.P.I[-1].kind = "salu"; self.P.I[-1].vw = set(); self.P.I[-1].vr = set()
        self.P(f"LR{k}:")


def attn_setup(P, V, lane, l16, t0, t1):
    A = {}
    P(f"s_lshl_b32 s{S_T1}, s{S_KH}, 12")
    vk = V.alloc("vk"); vv = [V.alloc("vv0"), V.alloc("vv1")]
    P(f"s_add_u32 s{S_T1}, s{S_T1}, 0x{KV_RING:x}")
    P(f"v_add_u32 v{vk}, s{S_T1}, v{l16}")
    P(f"v_lshrrev_b32 v{t0}, 5, v{lane}")
    P(f"v_lshlrev_b32 v{t0}, 8, v{t0}")
    P(f"v_and_b32 v{t1}, 15, v{lane}")
    P(f"v_lshl_add_u32 v{t0}, v{t1}, 4, v{t0}")
    P(f"v_and_b32 v{t1}, 16, v{lane}")
    P(f"v_cmp_eq_u32 vcc, 0, v{t1}")
    P(f"s_add_u32 s{S_T1}, s{S_T1}, 2048")
    for s in range(2):
        P(f"v_mov_b32 v{t1}, s{S_T1}")
        P(f"v_add_u32 v{t1}, {8192*s}, v{t1}")
        P(f"v_mov_b32 v{vv[s]}, 0x{ONES:x}")
        P(f"v_cndmask_b32 v{vv[s]}, v{t1}, v{vv[s]}, vcc")
        P(f"v_add_u32 v{vv[s]}, v{vv[s]}, v{t0}")
    P(f"s_lshl_b32 s{S_KVOFF}, s{S_KH}, 15")
    P(f"s_lshl_b32 s{S_T1}, s{S_HP}, 16")
    P(f"s_add_u32 s{S_KVOFF}, s{S_KVOFF}, s{S_T1}")
    P(f"s_lshl_b32 s{S_T1}, s{S_TT}, 10")
    P(f"s_add_u32 s{S_KVOFF}, s{S_KVOFF}, s{S_T1}")
    P(f"s_lshl_b32 s{S_KVLDS}, s{S_W}, 10")
    P(f"s_add_u32 s{S_KVLDS}, s{S_KVLDS}, 0x{KV_RING:x}")
    A.update(vk=vk, vv=vv)
    A["S"] = [V.alloc("Sa", 16), V.alloc("Sb", 16)]
    A["O"] = [V.alloc("Oa", 16), V.alloc("Ob", 16)]
    A["fk"] = V.alloc("fk", 4); A["fv"] = [V.alloc("fv1", 4), V.alloc("fv2", 4)]
    A["q"] = V.alloc("qf", 8)
    return A


def kv_dma(P, l16, c):
    dma(P, l16, S_WS, f"s{S_T2}", (S_KVLDS, 8192 * (c & 1)), tag=f"kv{c}", mods=SC1, pre=[f"s_add_u32 s{S_T2}, s{S_KVOFF}, {2048*c}"])


def attention(P, A, l16, its, hook, prio, kvf=None, bb=1):
    S, O, fk, fv = A["S"], A["O"], A["fk"], A["fv"]
    SB = OPT.get("sb", 0)
    q = [A["q"], A["q"] + 4]
    def rdK(it): P(f"ds_read_b128 {vr(fk,4)}, v{A['vk']} offset:{((it>>1)&1)*8192 + (it&1)*1024}")
    def rdV(it, half):
        m = OPT.get("vmask", 1) and it > 0
        if m: P(f"s_mov_b64 exec, s[{S_VM}:{S_VM+1}]")
        P(f"ds_read_b128 {vr(fv[half],4)}, v{A['vv'][(it>>1)&1]} offset:{(it&1)*1024 + half*512}")
        if m: P("s_mov_b64 exec, -1")
    E = lambda x, i: P(f"v_exp_f32 v{S[x]+i}, v{S[x]+i}")
    def C(x, i):
        b = S[x] + (8 if i >= 4 else 0); k = i & 3
        P(f"v_cvt_pk_bf16_f32 v{b+k}, v{b+2*k}, v{b+2*k+1}")
    for it in its:
        if it == 0:
            if OPT.get("vmask", 1): P(f"s_mov_b32 s{S_VM}, 0xffff0000"); P(f"s_mov_b32 s{S_VM+1}, 0xffff0000")
            rdK(0); rdV(0, 0)
            hook(0, 0, "start")
            P(mfma(S[0], fk, q[0]))
        for x in range(2):
            H = lambda pos: hook(it, x, pos)
            E(x, 0); E(x, 1)
            if x == 0:
                if it > 0: P(mfma(O[1], fv[1], S[1] + 8, O[1]))
                rdV(it, 1)
            else:
                P(mfma(O[0], fv[1], S[0] + 8, O[0]))
            H("pv2")
            E(x, 2); E(x, 3); H("g1")
            E(x, 4); E(x, 5); H("g2")
            E(x, 6); E(x, 7)
            if bb:
                H("g3")
                for i in range(4): C(x, i)
            if x == 0: P(mfma(S[1], fk, q[1]))
            elif it < 31: P(mfma(S[0], fk, q[0]))
            H("qk")
            sig = (x == 0 and (it & 1) and it < 31)
            syn = sig or (x == 0 and hook(it, x, "sync?"))
            ORD = OPT.get("ord", 2) if syn else 0
            if bb:
                E(x, 8); E(x, 9); H("g4")
                E(x, 10); E(x, 11)
                if ORD == 2: P(mfma(O[x], fv[0], S[x], None if it == 0 else O[x]))
            else:
                for i in range(4): C(x, i)
                if ORD == 0: H("g3")
                E(x, 8); E(x, 9)
                if ORD == 2: P(mfma(O[x], fv[0], S[x], None if it == 0 else O[x])); H("g3")
            if syn:
                H("pre0")
                if sig: P.wait_tag(f"kv{(it>>1)+1}")
                H("pre")
                P.wait_lgkm_all()
                P("s_barrier")
            if ORD != 2: P(mfma(O[x], fv[0], S[x], None if it == 0 else O[x]))
            p = prio(it, x)
            if p is not None: P(f"s_setprio {p}")
            if x == 0:
                if it < 31: rdK(it + 1)
                if (it & 1) and (it >> 1) + 2 < 16: (kvf or (lambda c: kv_dma(P, l16, c)))((it >> 1) + 2)
                if syn: hook(it, 0, "chk")
            else:
                if it < 31: rdV(it + 1, 0)
            H("pv1")
            if not bb: E(x, 10); E(x, 11); H("g4")
            E(x, 12); E(x, 13); H("g5")
            E(x, 14); E(x, 15); H("g6")
            for i in range(4, 8): C(x, i)
        if it == 31: P(mfma(O[1], fv[1], S[1] + 8, O[1]))


def fin_dma_w1(P, vsl, st, slot, tag, i):
    srd, u0 = (S_WD, 8 * st) if st < 11 else (S_WO, 8 * (st - 11))
    dma(P, vsl, srd, f"s{S_T2}", (S_FL2, slot + 1024 * i), tag=tag, pre=[f"s_add_u32 s{S_T2}, s{S_FW}, 0x{(16*u0 + 8*i)*1024:x}"])


def fin_dma_w2(P, vsl, st, slot, tag, i, other):
    dma(P, vsl, S_WD, f"s{S_T2}", (S_FL2, (slot + 1024 * i - 8192 * other) & 0xffffffff), tag=tag,
        pre=[f"s_add_u32 s{S_T2}, s{S_FW}, 0x{((128*st + 8*i)*1024 - 65536*other) & 0xffffffff:x}"])


def fin_dma_b1(P, l16, st, slot, tag, t):
    P(f"s_add_u32 s{S_T2}, s{S_FB}, 0x{(t*118 + 8*st)*1024:x}")
    if st == 10:
        P(f"s_cmp_lt_u32 s{S_W}, 6")
        P(f"s_cselect_b32 s{S_T2}, s{S_T2}, 0x{OOB:x}")
    dma(P, l16, S_WS, f"s{S_T2}", (S_FL, slot + 16384 + 8192 * t), tag=tag, mods=SC1)


def kernel_F():
    P = Prog(); V = Regs(2, 255, "v"); SL = Slow()
    NP = OPT.get("np", 1)
    JIT = 16 - NP
    GPP = OPT.get("gpp", 2)
    UNI = OPT.get("uni", JIT + 2)
    HF = OPT.get("hf", UNI | 1)
    lane, l16, t0, t1, vsl = prologue_f(P, V, "LF_end")
    vz = V.alloc("vz")
    P(f"s_cmp_lg_u32 s{S_W}, 7")
    P("s_cbranch_scc1 LF_not7")
    if OPT.get("p7", 1): P("s_setprio 3")
    P(f"s_lshr_b32 s{S_T4}, s{S_J}, 1")
    P(f"s_lshl_b32 s{S_T0}, s{S_G}, 16")
    P(f"s_lshl_b32 s{S_T2}, s{S_T4}, 14")
    P(f"s_add_u32 s{S_T2}, s{S_T2}, s{S_T0}")
    P(f"s_mul_i32 m0, s{S_T4}, {16*X_STRIDE}")
    P(f"s_and_b32 s{S_T3}, s{S_J}, 1")
    P(f"s_mov_b32 s{S_T5}, 0")
    P("s_waitcnt lgkmcnt(0)")
    mk_srd(P, S_X, 4, SZ["x"])
    if OPT.get("u7", 1):
        P(f"s_sub_u32 s{S_X}, s{S_X}, 64")
        P(f"s_subb_u32 s{S_X+1}, s{S_X+1}, 0")
        P(f"s_mov_b32 s{S_X+2}, 0x{SZ['x'] + 64:x}")
        P(f"s_add_u32 s{S_T2}, s{S_T2}, 64")
        for g in range(4):
            for k in range(4):
                if k == 0:
                    if g: P(f"s_add_u32 m0, m0, {4*X_STRIDE}"); P(f"s_add_u32 s{S_T2}, s{S_T2}, {4096 + 48}")
                else: P(f"s_sub_u32 s{S_T2}, s{S_T2}, 16")
                P(f"buffer_load_dwordx4 v{l16}, s[{S_X}:{S_X+3}], s{S_T2} offen offset:{X_STRIDE*k} lds", tag="c")
    else:
        P("LF_ldx7:")
        P(f"buffer_load_dwordx4 v{l16}, s[{S_X}:{S_X+3}], s{S_T2} offen lds", tag="c")
        P(f"s_add_u32 m0, m0, {X_STRIDE}")
        P(f"s_add_u32 s{S_T2}, s{S_T2}, 1024")
        P(f"s_add_u32 s{S_T5}, s{S_T5}, 1")
        P(f"s_cmp_lg_u32 s{S_T5}, 16")
        P("s_cbranch_scc1 LF_ldx7")
    P(f"s_cmp_eq_u32 s{S_T3}, 0")
    P(f"s_cselect_b32 s{S_WKV}, s8, s10")
    P(f"s_cselect_b32 s{S_WKV+1}, s9, s11")
    P(f"s_and_b32 s{S_WKV+1}, s{S_WKV+1}, 0xffff")
    P(f"s_mov_b32 s{S_WKV+2}, 0x{SZ['wk']:x}")
    P(f"s_mov_b32 s{S_WKV+3}, 0x20000")
    P(f"s_mov_b32 m0, 0x{WKV_L:x}")
    P(f"s_mov_b32 s{S_T5}, 0")
    P("LF_ldw7:")
    for i in range(4):
        P(f"buffer_load_dwordx4 v{l16}, s[{S_WKV}:{S_WKV+3}], s{S_T5} offen offset:{1024*i} lds")
        P.I[-1].kind = "salu"
    P(f"s_add_u32 m0, m0, 4096")
    P(f"s_add_u32 s{S_T5}, s{S_T5}, 4096")
    P(f"s_cmp_lg_u32 s{S_T5}, 16384")
    P("s_cbranch_scc1 LF_ldw7")
    stamp(P, 15)
    P("s_barrier")
    P("LF_not7:")
    P("s_waitcnt lgkmcnt(0)")
    P(f"v_mov_b32 v{vz}, 0")
    if OPT.get("cnt"): P("s_mov_b32 s85, 0")
    mk_srd(P, S_WS, 28, SZ["ws"])
    mk_srd(P, S_DBG, 26, SZ["dbg"])
    vn = V.alloc("vn")
    P(f"s_or_b32 s{S_T0}, s2, s{S_W}")
    P(f"s_cmp_lg_u32 s{S_T0}, 0")
    P("s_cbranch_scc1 LF_non")
    P.cond_begin()
    P(f"s_memrealtime s[{S_EX}:{S_EX+1}]")
    P("s_waitcnt lgkmcnt(0)")
    P(f"s_mul_i32 s{S_EX+1}, s{S_EX+1}, 0x9e3779b1")
    if OPT.get("amp0") != 99: P(f"s_xor_b32 s{S_EX}, s{S_EX}, s{S_EX+1}")
    P(f"s_or_b32 s{S_EX}, s{S_EX}, 1")
    P(f"v_mov_b32 v{t0}, s{S_EX}")
    P("s_mov_b64 exec, 1")
    P(f"buffer_store_dword v{t0}, v{vz}, s[{S_DBG}:{S_DBG+3}], 0 offen sc1")
    P("s_mov_b64 exec, -1")
    P.cond_end()
    P("LF_non:")
    P_main = P; P = Prog()
    rest_srds(P)
    mk_srd(P, S_GW, 22, SZ["gw"])
    P(f"s_mov_b32 s{S_C1}, {hexf(2.0**120)}")
    A = attn_setup(P, V, lane, l16, t0, t1)
    qf = A["q"]; O = A["O"]; S = A["S"]
    A["sb"] = SplitBar(P, V, SL, lane, t0) if OPT.get("sb", 0) else type("X", (), dict(n=0))()
    vfl = V.alloc("vfl", 4)
    P(f"s_lshl_b32 s{S_T0}, s{S_HP}, 1")
    P(f"s_add_u32 s{S_T0}, s{S_T0}, s{S_KH}")
    P(f"s_lshl_b32 s{S_T1}, s{S_J}, 2")
    P(f"s_add_u32 s{S_T0}, s{S_T0}, s{S_T1}")
    P(f"s_mul_i32 s{S_T1}, s{S_TILE}, 118")
    P(f"s_add_u32 s{S_T0}, s{S_T0}, s{S_T1}")
    P(f"s_lshl_b32 s{S_T0}, s{S_T0}, 10")
    P(f"s_add_u32 s{S_OD}, s{S_T0}, 0x{WS_OH + 86*1024:x}")
    def poison():
        for r in range(4): P(f"v_mov_b32 v{O[0]+r}, -1")
        P(f"buffer_store_dwordx4 {vr(O[0],4)}, v{l16}, {WSR}, s{S_OD} offen sc1", tag="poison")
    P(f"s_lshr_b32 s{S_T0}, s{S_W}, 1")
    P(f"s_lshl_b32 s{S_T0}, s{S_T0}, 3")
    P(f"s_add_u32 s{S_T0}, s{S_T0}, s{S_T1}")
    P(f"s_lshl_b32 s{S_T0}, s{S_T0}, 10")
    P(f"s_add_u32 s{S_OL}, s{S_T0}, 0x{WS_OH + 86*1024:x}")
    P(f"s_lshl_b32 s{S_FP}, s{S_G}, 10")
    P(f"s_lshl_b32 s{S_FS}, s{S_J}, 5")
    P(f"s_add_u32 s{S_FS}, s{S_FS}, s{S_W}")
    P(f"s_lshl_b32 s{S_FS}, s{S_FS}, 2")
    P(f"s_add_u32 s{S_FS}, s{S_FS}, s{S_FP}")
    P(f"s_add_u32 s{S_FS}, s{S_FS}, 0x{FL_H:x}")
    P(f"s_add_u32 s{S_FP}, s{S_FP}, 0x{FL_H:x}")
    P(f"s_lshl_b32 s{S_FW}, s{S_W}, 14")
    P(f"s_lshl_b32 s{S_T1}, s{S_J}, 7")
    P(f"s_add_u32 s{S_FW}, s{S_FW}, s{S_T1}")
    P(f"s_lshl_b32 s{S_FL2}, s{S_W}, 11")
    P(f"s_mul_i32 s{S_U0}, s{S_J}, 11")
    P(f"s_min_u32 s{S_U0}, s{S_U0}, 76")
    P(f"s_cmp_ge_u32 s{S_J}, 6")
    P(f"s_cselect_b32 s{S_NU}, 10, 11")
    vxa = xfrag_addr(P, V, "vxa", lane, t0, S_TT)
    vq = V.alloc("vq")
    P(f"s_and_b32 s{S_T0}, s{S_W}, 3")
    P(f"s_lshl_b32 s{S_T1}, s{S_T0}, 11")
    P(f"s_add_u32 s{S_T1}, s{S_T1}, 0x{QSCR:x}")
    P(f"v_add_u32 v{vq}, s{S_T1}, v{l16}")
    COMMON = P.I; P = P_main
    def emit(L):
        for x in L: P(x.text, tag=x.tag)
    iw = next(i for i, x in enumerate(COMMON) if x.text.startswith(f"s_mov_b32 s{S_WM+3},")) + 1
    iu = next(i for i, x in enumerate(COMMON) if x.text.startswith(f"s_mul_i32 s{S_U0},"))
    C_EARLY = COMMON[:iw] + COMMON[iu:iu + 4]; C_LATE = COMMON[iw:iu] + COMMON[iu + 4:]
    acc = [[V.alloc(f"acc{i}{t}", 16) for t in range(2)] for i in range(3)]
    fx = [[V.alloc(f"fx{b}{t}", 4) for t in range(2)] for b in range(2)]
    fw = [[V.alloc(f"fw{b}{i}", 4) for i in range(3)] for b in range(2)]
    S_PFB = 19
    def capture(f):
        nonlocal P
        P0 = P; P = Prog(); f(); L = P.I; P = P0
        return L
    R = {}
    def f1():
        vtn = tr_slice_addr(P, V, "vtn", lane, t0, t1, SLOT[0], S_HP, 8)
        vpf = V.alloc("vpf"); vpd = V.alloc("vpd"); vpw = V.alloc("vpw")
        P(f"v_bfe_u32 v{t0}, v{lane}, 4, 1")
        P(f"v_lshrrev_b32 v{t1}, 5, v{lane}")
        P(f"v_lshl_add_u32 v{t0}, v{t1}, 7, v{t0}")
        P(f"v_mul_u32_u24 v{vpf}, 2752, v{t0}")
        P(f"v_and_b32 v{t0}, 15, v{lane}")
        P(f"v_lshl_add_u32 v{vpf}, v{t0}, 7, v{vpf}")
        P(f"v_cmp_gt_u32 vcc, 12, v{t0}")
        P(f"v_mov_b32 v{t1}, 0x{OOB:x}")
        P(f"v_cndmask_b32 v{vpf}, v{t1}, v{vpf}, vcc")
        P(f"s_lshr_b32 s{S_T0}, s2, 3")
        P(f"s_lshl_b32 s{S_T0}, s{S_T0}, 1")
        P(f"s_add_u32 s{S_T0}, s{S_T0}, s{S_HP}")
        P(f"s_mul_i32 s{S_T0}, s{S_T0}, {2*2752}")
        P(f"s_and_b32 s{S_T1}, s2, 1")
        P(f"s_mul_i32 s{S_T1}, s{S_T1}, {44*32}")
        P(f"s_add_u32 s{S_PFB}, s{S_T0}, s{S_T1}")
        R.update(vtn=vtn, vpf=vpf, vpd=vpd, vpw=vpw)
    def f2():
        vx0 = V.alloc("vx0")
        P(f"s_mul_i32 s{S_T0}, s{S_TT}, {32*X_STRIDE}")
        P(f"v_subrev_u32 v{vx0}, s{S_T0}, v{vxa}")
        P(f"s_lshl_b32 s{S_T4}, s{S_W}, 1")
        wtr = w_tr_addrs(P, V, lane, t0, t1, s_w=S_T4)
        R.update(vx0=vx0, wtr=wtr)
    def f3():
        P(f"s_mul_i32 s{S_T0}, s{S_W}, 3")
        P(f"s_mul_i32 s{S_T1}, s{S_G}, 236")
        P(f"s_add_u32 s{S_T1}, s{S_T1}, s{S_U0}")
        for i in range(3):
            P(f"s_add_u32 s{S_T2}, s{S_T0}, {i}")
            P(f"s_add_u32 s{SH[i]}, s{S_T1}, s{S_T2}")
            P(f"s_lshl_b32 s{SH[i]}, s{SH[i]}, 10")
            P(f"s_add_u32 s{SH[i]}, s{SH[i]}, 0x{WS_OH:x}")
            P(f"s_cmp_lt_u32 s{S_T2}, s{S_NU}")
            P(f"s_cselect_b32 s{SH[i]}, s{SH[i]}, 0x{OOB:x}")
    def f4():
        vpw = R["vpw"]
        S_PFS = S_WKV
        P(f"s_lshr_b32 s{S_T0}, s2, 3")
        P(f"s_lshl_b32 s{S_T0}, s{S_T0}, 2")
        P(f"s_add_u32 s{S_T0}, s{S_T0}, s{S_W}")
        P(f"s_cmp_lt_u32 s{S_T0}, 86")
        P(f"s_cselect_b32 s{S_PFS}, s{S_WD}, s{S_WO}")
        P(f"s_cselect_b32 s{S_PFS+1}, s{S_WD+1}, s{S_WO+1}")
        P(f"s_cselect_b32 s{S_PFS+2}, s{S_WD+2}, s{S_WO+2}")
        P(f"s_cselect_b32 s{S_T1}, 0, 86")
        P(f"s_mov_b32 s{S_PFS+3}, 0x20000")
        P(f"s_sub_u32 s{S_T0}, s{S_T0}, s{S_T1}")
        P(f"s_lshl_b32 s{S_T0}, s{S_T0}, 14")
        P(f"s_and_b32 s{S_T1}, s2, 1")
        P(f"s_lshl_b32 s{S_T1}, s{S_T1}, 9")
        P(f"s_add_u32 s{S_T0}, s{S_T0}, s{S_T1}")
        P(f"v_lshrrev_b32 v{t0}, 2, v{lane}")
        P(f"v_lshlrev_b32 v{t0}, 10, v{t0}")
        P(f"v_and_b32 v{t1}, 3, v{lane}")
        P(f"v_lshl_add_u32 v{t0}, v{t1}, 7, v{t0}")
        P(f"v_add_u32 v{vpw}, s{S_T0}, v{t0}")
    ix = next(i for i, x in enumerate(COMMON) if x.text.startswith(f"v_and_b32 v{t0}, 31, v{lane}"))
    ia = next(i for i, x in enumerate(COMMON) if x.text.startswith(f"s_mov_b32 s{S_C1},")) + 1
    io = next(i for i, x in enumerate(COMMON) if x.text.startswith(f"s_lshl_b32 s{S_T0}, s{S_HP}, 1"))
    ifl = next(i for i, x in enumerate(COMMON) if x.text.startswith(f"s_lshl_b32 s{S_FP},"))
    H_PRE = COMMON[ix:ix + 6] + COMMON[:iw] + capture(f1)
    H_MID = COMMON[ia:io] + COMMON[ix + 6:] + capture(f2) + COMMON[io:ifl]
    H_LATE = [COMMON[iw:iw + 8], COMMON[iw + 8:ia], COMMON[ifl:iu], COMMON[iu:iu + 4]]
    sh = capture(f3); H_LATE += [sh[:9], sh[9:15], sh[15:]]
    wp = capture(f4); H_LATE += [wp[:14], wp[14:]]
    vtn, vpf, vpd, vpw, vx0, wtr = (R[k] for k in ("vtn", "vpf", "vpd", "vpw", "vx0", "wtr"))
    S_PFS = S_WKV
    def pf(blk, half):
        P(f"s_add_u32 s{S_T4}, s{S_PFB}, {128*2752*blk}")
        if half: P("s_mov_b64 exec, 0xffffffff")
        P(f"buffer_load_dword v{vpd}, v{vpf}, s[{S_WM}:{S_WM+3}], s{S_T4} offen", tag="pf")
        P.I[-1].vw = set()
        if half: P("s_mov_b64 exec, -1")
    PF = OPT.get("pf", 1)
    KT = 192; vx16 = 240; vw16 = 241; vst = 242; S_K5, S_K6 = S_T5, S_T6
    P(f"s_cmp_lg_u32 s{S_W}, 7")
    P("s_cbranch_scc1 LF_not7b")
    P.cond_begin()
    P(f"s_lshr_b32 s{S_T0}, s{S_J}, 1")
    P(f"s_lshl_b32 s{S_T1}, s{S_T0}, 4")
    P(f"v_and_b32 v{t0}, 15, v{lane}")
    P(f"v_add_u32 v{t1}, s{S_T1}, v{t0}")
    P(f"v_mul_u32_u24 v{vx16}, {X_STRIDE}, v{t1}")
    P(f"v_lshrrev_b32 v{t1}, 4, v{lane}")
    P(f"v_lshl_add_u32 v{vx16}, v{t1}, 4, v{vx16}")
    P(f"v_lshlrev_b32 v{vw16}, 8, v{t1}")
    P(f"v_lshl_add_u32 v{vw16}, v{t0}, 3, v{vw16}")
    P(f"v_add_u32 v{vw16}, 0x{WKV_L:x}, v{vw16}")
    P(f"s_and_b32 s{S_K6}, s{S_J}, 1")
    P(f"s_cmp_eq_u32 s{S_K6}, 0")
    P(f"s_cselect_b32 s{S_T3}, 9, 8")
    P(f"s_cselect_b32 s{S_T4}, 8, 9")
    P(f"s_cselect_b32 s{S_K5}, 0x{WS_KF:x}, 0x{WS_VF:x}")
    P(f"v_lshlrev_b32 v{vst}, 4, v{t0}")
    P(f"v_lshrrev_b32 v{t0}, 1, v{t1}")
    P(f"v_lshl_add_u32 v{vst}, v{t0}, 3, v{vst}")
    P(f"v_and_b32 v{t0}, 1, v{t1}")
    P(f"v_lshlrev_b32 v{t0}, s{S_T3}, v{t0}")
    P(f"v_add_u32 v{vst}, v{vst}, v{t0}")
    P(f"s_and_b32 s{S_T1}, s{S_T0}, 1")
    P(f"s_lshl_b32 s{S_T1}, s{S_T1}, s{S_T4}")
    P(f"s_add_u32 s{S_K5}, s{S_K5}, s{S_T1}")
    P(f"s_lshr_b32 s{S_T0}, s{S_T0}, 1")
    P(f"s_lshl_b32 s{S_T1}, s{S_G}, 1")
    P(f"s_add_u32 s{S_T0}, s{S_T0}, s{S_T1}")
    P(f"s_lshl_b32 s{S_T0}, s{S_T0}, 10")
    P(f"s_add_u32 s{S_K5}, s{S_K5}, s{S_T0}")
    P("s_waitcnt vmcnt(0)")
    P(f"buffer_load_dword v{vn}, v{vz}, s[{S_DBG}:{S_DBG+3}], 0 offen sc1")
    def kv16(which):
        d = KT
        xb = [(KT+16) + 4 * i for i in range(4)]; wb = [(KT+32) + 4 * i for i in range(4)]
        def ld(ks):
            P(f"ds_read_b128 {vr(xb[ks%4],4)}, v{vx16} offset:{ks*64}")
            P(f"ds_read_b64_tr_b16 {vr(wb[ks%4],2)}, v{vw16} offset:{ks*1024}")
            P(f"ds_read_b64_tr_b16 {vr(wb[ks%4]+2,2)}, v{vw16} offset:{ks*1024+128}")
        for ks in range(3): ld(ks)
        for ks in range(16):
            a, b = (wb[ks%4], xb[ks%4]) if which == 0 else (xb[ks%4], wb[ks%4])
            P(f"v_mfma_f32_16x16x32_bf16 {vr(d,4)}, {vr(a,4)}, {vr(b,4)}, {vr(d,4) if ks else 0}")
            if ks + 3 < 16: ld(ks + 3)
        if which == 0:
            P(f"s_mov_b32 s{S_T0}, {hexf(QK_SCALE)}")
            for r in range(4): P(f"v_mul_f32 v{d+r}, s{S_T0}, v{d+r}")
    P(f"s_cmp_eq_u32 s{S_K6}, 1")
    P("s_cbranch_scc1 LF_vch")
    P.cond_begin(); kv16(0); P.cond_end()
    P("s_branch LF_kvj")
    P("LF_vch:")
    P.cond_begin(); kv16(1); P.cond_end()
    P("LF_kvj:")
    for r in range(2): P(f"v_cvt_pk_bf16_f32 v{KT+4+r}, v{KT+2*r}, v{KT+2*r+1}")
    P(f"buffer_store_dwordx2 {vr(KT+4,2)}, v{vst}, {WSR}, s{S_K5} offen sc1")
    FB2 = OPT.get("fb2", 0)
    def w7flag():
        P(f"s_lshl_b32 s{S_T0}, s{S_G}, 3")
        P(f"s_add_u32 s{S_T0}, s{S_T0}, s{S_J}")
        P(f"s_lshl_b32 s{S_T0}, s{S_T0}, 2")
        P(f"s_add_u32 s{S_T0}, s{S_T0}, 0x{FL_KV:x}")
        P("s_waitcnt vmcnt(0)")
        nonce_check(P, SL, vn, vz)
        flag_store(P, vz, t0, S_T0)
    if not FB2: w7flag()
    def pf7():
        P(f"v_lshrrev_b32 v{t0}, 4, v{lane}")
        P(f"v_mul_u32_u24 v{vx16}, 2752, v{t0}")
        P(f"v_and_b32 v{t0}, 15, v{lane}")
        P(f"v_lshl_add_u32 v{vx16}, v{t0}, 7, v{vx16}")
        P(f"v_cmp_gt_u32 vcc, 12, v{t0}")
        P(f"v_mov_b32 v{t1}, 0x{OOB:x}")
        P(f"v_cndmask_b32 v{vx16}, v{t1}, v{vx16}, vcc")
        P(f"s_lshr_b32 s{S_T0}, s2, 3")
        P(f"s_mul_i32 s{S_T0}, s{S_T0}, {4*2752}")
        P(f"s_and_b32 s{S_T1}, s2, 1")
        P(f"s_mul_i32 s{S_T1}, s{S_T1}, {44*32}")
        P(f"s_add_u32 s{S_T0}, s{S_T0}, s{S_T1}")
        for m in range(2):
            mk_srd(P, S_WKV, 16 + 2 * m, SZ["wg"])
            P(f"buffer_load_dword v{fx[0][0]+m}, v{vx16}, s[{S_WKV}:{S_WKV+3}], s{S_T0} offen")
    if OPT.get("pf7", 1) == 1: pf7()
    stamp(P, 1)
    P("s_barrier")
    stamp(P, 2)
    if OPT.get("pf7", 1) == 2: pf7()
    if FB2 == 1: w7flag()
    P("s_barrier")
    if FB2 == 2: w7flag()
    P.cond_end(nowait=True)
    P("s_branch LF_light")
    P("LF_not7b:")
    P(f"s_cmp_lg_u32 s{S_KH}, 0")
    P("s_cbranch_scc1 LF_l0")

    def sigstamp(it, k):
        if OPT.get("sig"):
            P(f"s_memtime s[98:99]"); P("s_waitcnt lgkmcnt(0)"); P(f"v_writelane_b32 v{vsig}, s98, {2*it+k}")
    vsig = V.alloc("vsig") if OPT.get("sig") else None

    P.cond_begin()
    emit(H_PRE)
    stamp(P, 15)
    P("s_barrier")
    stamp(P, 0)
    LOADS["f"]("h")
    stamp(P, 1)
    if PF & 4: pf(0, True)
    P.wait_tag("q")
    P("s_barrier")
    stamp(P, 2)
    if PF & 2: pf(0, True)
    QD = 6
    xb = [acc[1][0] + 4 * i for i in range(QD)]; wb = [acc[2][0] + 4 * i for i in range(QD)]
    assert acc[1][1] == acc[1][0] + 16 and acc[2][1] == acc[2][0] + 16
    def q_loads(ks):
        o = SLOT[ks // 12] - SLOT[0] + (ks % 12) * 2048
        P(f"ds_read_b128 {vr(xb[ks%QD],4)}, v{vxa} offset:{ks*32}")
        P(f"ds_read_b64_tr_b16 {vr(wb[ks%QD],2)}, v{vtn} offset:{o}")
        P(f"ds_read_b64_tr_b16 {vr(wb[ks%QD]+2,2)}, v{vtn} offset:{o+512}")
    for ks in range(QD - 1): q_loads(ks)
    for ks in range(32):
        P(mfma(acc[0][0], wb[ks%QD], xb[ks%QD], acc[0][0] if ks else None))
        if ks in (11, 23):
            stamp(P, 11 if ks == 11 else 13)
            P("s_barrier")
        if ks + QD - 1 in (12, 24): P("s_barrier")
        if ks + QD - 1 < 32: q_loads(ks + QD - 1)
        nf = -(-len(H_MID) // 28)
        emit(H_MID[ks * nf:(ks + 1) * nf])
        if ks == OPT.get("pk", 30):
            P(f"s_mov_b32 s{S_T5}, 0x{FL_KV:x}")
            P(f"buffer_load_dword v{vn}, v{vz}, s[{S_DBG}:{S_DBG+3}], 0 offen sc1")
            P(flag_load(vfl, 4, l16, f"s{S_T5}"))
    for r in range(8): P(f"v_cvt_pk_bf16_f32 v{qf+r}, v{acc[0][0]+2*r}, v{acc[0][0]+2*r+1}")
    P(f"ds_write_b128 v{vq}, {vr(qf,4)}")
    P(f"ds_write_b128 v{vq}, {vr(qf+4,4)} offset:1024")
    def kv_check():
        nonce_check(P, SL, vn, vz)
        spin_check(P, SL, [flag_load(vfl, 4, l16, f"s{S_T5}")], flag_cmp(vfl, 4, t0), sleep=OPT.get("ksl", 6))
        kv_dma(P, l16, 0)
        dma(P, l16, S_WS, f"s{S_T2}", (S_KVLDS, 4096), tag="kv0", mods=SC1, pre=[f"s_add_u32 s{S_T2}, s{S_T2}, 32768"])
    if not OPT.get("kl", 1): kv_check()
    def gu_reads(ks):
        s, kk = ks // 2, ks % 2
        so = SLOT[s % 3] - SLOT[0] + kk * 6144
        L = [f"ds_read_b128 {vr(fx[ks%2][0],4)}, v{vx0} offset:{ks*32}"]
        for i in range(3):
            f = fw[ks % 2][i]
            L += [f"ds_read_b64_tr_b16 {vr(f,2)}, v{wtr[i]} offset:{so}", f"ds_read_b64_tr_b16 {vr(f+2,2)}, v{wtr[i]} offset:{so+1536}"]
            if i == 0: L.append(f"ds_read_b128 {vr(fx[ks%2][1],4)}, v{vx0} offset:{ks*32 + 32*X_STRIDE}")
        return L
    def gu_groups(ks, late=False):
        R = gu_reads(ks + 1) if ks < 31 else []
        if OPT.get("abl_hds") and ks >= 2 * NP - 1: R = []
        G = []
        for m in range(6):
            i, t = m // 2, m % 2
            mm = [mfma(acc[i][t], fw[ks % 2][i], fx[ks % 2][t], acc[i][t] if ks else None)]
            if OPT.get("abl_hm") and ks >= 2 * NP - 1: mm = []
            G.append(mm + (R[2 * m: 2 * m + 2] if not late else ([] if m < 3 else R[3 * (m - 3): 3 * (m - 3) + 3])))
        return G
    P.wait_lgkm_all()
    stamp(P, 14)
    P("s_barrier")
    stamp(P, 3)
    for x in gu_reads(0): P(x)
    if OPT.get("kl", 1): kv_check()
    PFI = OPT.get("pfi", 0)
    for ks in range(2 * NP - 1):
        if ks % 2 == 1:
            P.wait_lgkm_all(); P("s_barrier")
        for g in gu_groups(ks):
            for x in g: P(x)
    P.wait_tag("kv0"); P.wait_lgkm_all(); P("s_barrier")
    stamp(P, 4)
    gq = []
    tmp = fx[0][0]; cst = fx[1][0]
    assert fx[0][1] == fx[0][0] + 4
    gel = []
    def load_window(k):
        n = 2 * (NP + k) - 1
        assert not gq
        gq.extend(gu_groups(n, late=(k > 0 and OPT.get("sb", 0))))
        if n < 31: gq.extend(gu_groups(n + 1))
    def hookH(it, x, pos):
        if pos == "sync?": return 1 <= it <= JIT
        if pos == "pre0": sigstamp(it, 0); return
        if pos == "pre": sigstamp(it, 1); return
        if pos == "start": load_window(0); return
        if pos == "qk" and it == 3 and x == 0:
            for r in range(4): P(f"v_mov_b32 v{vfl+r}, -1")
            P(f"buffer_store_dwordx4 {vr(vfl,4)}, v{l16}, {WSR}, s{S_OD} offen sc1", tag="poison")
        if pos == "qk" and it == 4 and x == 0:
            P(f"buffer_store_dwordx4 {vr(vfl,4)}, v{l16}, {WSR}, s{S_OD} offen offset:1024 sc1", tag="poison")
        midprio(it, x, pos, PH)
        if pos in ("qk", "pv1") and H_LATE: emit(H_LATE.pop(0))
        if pos == "pv2" and x == 1 and PF & 1:
            if it == PFI: pf(1, True)
            if it == PFI + 2: pf(2, True)
            if it == PFI + 5: pf(3, True)
        if pos == "pv2" and x == 1 and OPT.get("wpf", 1) and it in (7, 8, 9, 10):
            k = it - 7
            P(f"s_cmp_lg_u32 s{S_W}, {k}")
            P(f"s_cbranch_scc1 LF_wp{k}")
            P(f"buffer_load_dword v{vpd}, v{vpw}, s[{S_PFS}:{S_PFS+3}], 0 offen")
            P.I[-1].kind = "salu"; P.I[-1].vw = set()
            P(f"LF_wp{k}:")
        if pos == "pv1" and x == 0 and 1 <= it <= JIT: load_window(it)
        if pos in ("g1", "g2", "g3", "g4", "g5", "g6"):
            cnt = int(str(OPT.get("gm", 111111))[int(pos[1]) - 1]) if gq else 1
            cnt = 0 if cnt == 9 else cnt
            if gq and cnt == 0: pass
            elif gq:
                for _ in range(cnt):
                    if gq:
                        for t in gq.pop(0): P(t)
                if not gq and it == JIT and x == 1:
                    L = [f"v_mov_b32 v{cst}, {hexf(GELU_C1)}", f"v_mov_b32 v{cst+1}, {hexf(GELU_C1)}",
                         f"v_mov_b32 v{cst+2}, {hexf(GELU_C2)}", f"v_mov_b32 v{cst+3}, {hexf(GELU_C2)}"]
                    k = 0
                    for i in range(3):
                        for t in range(2):
                            d = fw[k % 2][k // 2]; k += 1
                            L += gelu_tile_pk(acc[i][t], d, tmp, cst)
                            if t == 1: L.append(f"s_add_u32 s{SH[i]}, s{SH[i]}, {118*1024}")
                            L.append(f"buffer_store_dwordx4 {vr(d,4)}, v{l16}, {WSR}, s{SH[i]} offen sc1")
                    ns = (2 if OPT.get("bbh", 0) else 3) + 12 * (UNI - JIT - 1)
                    n = (len(L) + ns - 1) // ns
                    gel.extend(L[i:i + n] for i in range(0, len(L), n))
            elif gel:
                for t in gel.pop(0): P(t, tag="hst" if "store" in t else None)
    PM = OPT.get("pm", 9)
    PH = [int(c) for c in str(OPT.get("ph", 3321)).zfill(4)]; PL = [int(c) for c in str(OPT.get("pl", 3210)).zfill(4)]
    def prioH(it, x):
        if PM == 9: return PH[2 * x] if it < JIT else 3
        if PM == 1: return 3 if (it == 0 and x == 0) else None
        if PM == 3: return 3 - 2 * x
        if PM == 5: return (3 - 2 * x) if it < JIT else 3
        if PM == 6: return 3 if it >= JIT else None
        return None
    def prioL(it, x):
        if PM == 9: return PL[2 * x] if it < JIT else 0
        if PM in (2, 6): return 1 if (it == 0 and x == 0) else None
        if PM == 3: return 3 - 2 * x
        if PM == 5: return (3 - 2 * x) if it < JIT else 0
        return None
    def midprio(it, x, pos, T=None):
        if PM == 9 and pos == "pv2" and it <= JIT: P(f"s_setprio {T[1] if x else T[3]}")
        if PM in (3, 5) and pos == "pv2" and (PM == 3 or it <= JIT): P(f"s_setprio {2 * x}")
    attention(P, A, l16, range(0, UNI), hookH, prioH, kvf=lambda c: None, bb=OPT.get("bbh", 0))
    nsb = A["sb"].n; A["sb"].n = 0
    assert not gq and not gel, (len(gq), len(gel))
    P.cond_end(keep=True)
    P("s_branch LF_join")
    for n in ("vx0", "vtn", "wtr0", "wtr1", "wtr2", "vpf", "vpw"): V.release(n)

    P("LF_l0:")
    P.cond_begin()
    P("s_barrier")
    LOADS["f"]("l")
    stamp(P, 1)
    if OPT.get("t3e", 1):
        P(f"s_cmp_eq_u32 s{S_W}, 6")
        P("s_cbranch_scc1 LF_l6")
        P(f"s_add_u32 s{S_T3}, s{S_T3}, 24")
        wq_pieces(P, vsl, S_T3, 8, "LF_ldq3", 1)
        P("s_waitcnt vmcnt(16)")
        P("s_barrier")
        stamp(P, 2)
        P("s_waitcnt vmcnt(8)")
        P("s_branch LF_l6j")
        P("LF_l6:")
        P("s_waitcnt vmcnt(8)")
        P("s_barrier")
        stamp(P, 2)
        P("s_waitcnt vmcnt(0)")
        P("LF_l6j:")
        P("s_barrier")
    else:
        P("s_waitcnt vmcnt(8)")
        P("s_barrier")
        stamp(P, 2)
        P(f"s_cmp_eq_u32 s{S_W}, 6")
        P("s_cbranch_scc1 LF_l6")
        P(f"s_add_u32 s{S_T3}, s{S_T3}, 24")
        wq_pieces(P, vsl, S_T3, 8, "LF_ldq3", 1)
        P("s_waitcnt vmcnt(8)")
        P("s_branch LF_l6j")
        P("LF_l6:")
        P("s_waitcnt vmcnt(0)")
        P("LF_l6j:")
        P("s_barrier")
    P("LF_light:")
    if OPT.get("p7", 1): P("s_setprio 0")
    emit(C_EARLY)

    pats = w_patterns(P, V, lane, t0, t1)
    P(f"s_lshl_b32 s{S_T0}, s{S_HP}, 1")
    P(f"s_mul_i32 s{S_WOFF}, s{S_T0}, {8*2752}")
    P(f"s_lshl_b32 s{S_T1}, s{S_U0}, 5")
    P(f"s_add_u32 s{S_WOFF}, s{S_WOFF}, s{S_T1}")
    P(f"s_mul_i32 s{S_WLDS}, s{S_T0}, 3072")
    P(f"s_mul_i32 s{S_T1}, s{S_TT}, {UP_OFF}")
    P(f"s_add_u32 s{S_WLDS}, s{S_WLDS}, s{S_T1}")
    inattn = dict(on=False)
    P(f"s_add_u32 s{S_WOFF}, s{S_WOFF}, 0")
    P(f"v_subrev_u32 v{pats[1]}, 1024, v{pats[1]}")
    P(f"v_subrev_u32 v{pats[2]}, 2048, v{pats[2]}")
    def w_dma1(s, k):
        g, i = k // 3, k % 3
        solo = not OPT.get("wm0", 1) or inattn["on"]
        if i == 0 or solo:
            dma(P, pats[i], S_WM, f"s{S_T3}", (S_WLDS, SLOT[s % 3] + 3072 * g), offset=1024 * i, tag=f"w{s}",
                pre=[f"s_add_u32 s{S_T3}, s{S_WOFF}, 0x{(32*s + 8*g)*2752:x}"] if i == 0 else None)
        else:
            P(f"buffer_load_dwordx4 v{pats[i]}, s[{S_WM}:{S_WM+3}], s{S_T3} offen offset:{1024*i} lds", tag=f"w{s}")
    def w_dma6(s):
        for k in range(6): w_dma1(s, k)
    stamp(P, 11)
    P("s_barrier")
    w_dma6(0)
    P("s_waitcnt vmcnt(6)"); P.I[-1].kind = "salu"
    P("s_barrier")
    h = len(C_LATE) // 4
    emit(C_LATE[:h])
    stamp(P, 13)
    P("s_barrier")
    w_dma6(1)
    emit(C_LATE[h:])
    dma(P, l16, S_GW, "0", (None, GWL), tag="gw")
    vgw = acc[0][1]
    P(f"v_lshrrev_b32 v{t0}, 5, v{lane}")
    P(f"v_lshlrev_b32 v{vgw}, 4, v{t0}")
    P(f"s_lshl_b32 s{S_T0}, s{S_HP}, 9")
    P(f"v_add_u32 v{vxa}, s{S_T0}, v{vxa}")
    P(f"s_add_u32 s{S_T0}, s{S_T0}, 0x{GWL:x}")
    P(f"v_add_u32 v{vgw}, s{S_T0}, v{vgw}")
    P(f"s_lshl_b32 s{S_T0}, s{S_W}, 8")
    P(f"s_add_u32 s{S_T0}, s{S_T0}, 0x{ONES - 1024:x}")
    P(f"v_lshlrev_b32 v{t0}, 2, v{lane}")
    P(f"v_add_u32 v{t0}, s{S_T0}, v{t0}")
    P(f"v_mov_b32 v{t1}, 0x3f803f80")
    P(f"v_lshrrev_b32 v1, 2, v{lane}")
    P(f"v_and_b32 v1, 11, v1")
    P(f"v_cmp_eq_u32 vcc, 0, v1")
    P(f"v_cndmask_b32 v{t1}, 0, v{t1}, vcc")
    P(f"ds_write_b32 v{t0}, v{t1}")
    P(f"ds_write_b32 v{t0}, v{t1} offset:1024")
    za = acc[0][0]; zx = [acc[1][0] + 4 * i for i in range(4)]; zg = [acc[2][0] + 4 * i for i in range(4)]
    def zjob():
        for r in range(4): P(f"v_mov_b32 v{za+r}, 0")
        def zld(k):
            P(f"ds_read_b128 {vr(zx[k%4],4)}, v{vxa} offset:{k*32}")
            P(f"ds_read_b128 {vr(zg[k%4],4)}, v{vgw} offset:{k*32}")
        for k in range(3): zld(k)
        for k in range(16):
            for r in range(4): P(f"v_dot2c_f32_bf16 v{za+r}, v{zx[k%4]+r}, v{zg[k%4]+r}")
            if k + 3 < 16: zld(k + 3)
        P("s_nop 2")
        P(f"v_add_f32 v{za}, v{za}, v{za+1}")
        P(f"v_add_f32 v{za+2}, v{za+2}, v{za+3}")
        P(f"v_add_f32 v{za}, v{za}, v{za+2}")
        P(f"s_and_b32 s{S_T0}, s{S_W}, 3")
        P(f"s_lshl_b32 s{S_T0}, s{S_T0}, 8")
        P(f"s_add_u32 s{S_T0}, s{S_T0}, 0x{MISC:x}")
        P(f"v_lshlrev_b32 v{t0}, 2, v{lane}")
        P(f"v_add_u32 v{t0}, s{S_T0}, v{t0}")
        P(f"ds_write_b32 v{t0}, v{za}")
    P(f"s_mov_b32 s{S_T6}, 0x{FL_KV:x}")
    def kv_both(c):
        kv_dma(P, l16, c)
        dma(P, l16, S_WS, f"s{S_T2}", (S_KVLDS, (8192 * (c & 1) - 4096) & 0xffffffff), tag=f"kv{c}", mods=SC1, pre=[f"s_sub_u32 s{S_T2}, s{S_T2}, 32768"])
    def poll_issue():
        P(f"buffer_load_dword v{vn}, v{vz}, s[{S_DBG}:{S_DBG+3}], 0 offen sc1")
        P(flag_load(vfl, 4, l16, f"s{S_T6}"))
    for s in range(0, NP + 1):
        P.wait_tag(f"w{s}")
        P.wait_lgkm_all()
        if s == 0: stamp(P, 14)
        P("s_barrier")
        if s == 0:
            stamp(P, 3)
            P(f"ds_read_b128 {vr(qf,4)}, v{vq} offset:1024")
            P(f"ds_read_b128 {vr(qf+4,4)}, v{vq}")
        if s == NP: kv_both(1)
        if s < NP: w_dma6(s + 2)
        if s == 0:
            P(f"buffer_load_dword v{vn}, v{vz}, s[{S_DBG}:{S_DBG+3}], 0 offen sc1")
            P.wait_tag("gw")
            zjob()
    assert NP >= 1
    stamp(P, 4)
    dq = []; wq2 = []
    def hookL(it, x, pos):
        if pos == "sync?": return 1 <= it <= JIT
        if pos == "pre0": sigstamp(it, 0); return
        if pos == "pre":
            if NP + it < 16: P.wait_tag(f"w{NP+it}")
            sigstamp(it, 1); return
        if (pos == "start" or pos == "chk") and NP + it + 2 < 16:
            assert not dq
            for k in range(0 if OPT.get("abl_ldma") else 6): dq.append(lambda s=NP + it + 2, k=k: w_dma1(s, k))
        midprio(it, x, pos, PL)
        LW = OPT.get("lw", 4)
        if pos == "chk" and it == JIT:
            for b in range(LW):
                for o in range(2):
                    for i in range(2): wq2.append(lambda b=b, o=o, i=i: fin_dma_w2(P, vsl, b, b * 16384, f"fw{b}", i, o))
        if wq2 and pos not in ("pre", "pre0", "chk", "start"):
            wq2.pop(0)()
            if it == UNI - 1 and x == 1 and pos == "g6":
                while wq2: wq2.pop(0)()
        LS = [("pv2", "qk", "pv1"), ("g1", "g3", "g5"), ("g2", "g4", "g6"), ("pv1", "g4", "g5", "g6", "pv2", "g1", "g2"), ("pv2", "pv1")][OPT.get("ls", 3)]
        if pos in LS and dq:
            dq.pop(0)()
            if OPT.get("ls", 3) == 4 and dq and len(dq) % 3 != 0: dq.pop(0)(); (dq.pop(0)() if pos == "pv1" and len(dq) % 3 else None)
    attention(P, A, l16, range(0, UNI), hookL, prioL, kvf=kv_both, bb=OPT.get("bbl", 0))
    assert A["sb"].n == nsb
    assert not dq
    P.cond_end(keep=True)
    P("LF_join:")
    P.join()
    for n in ["wpat0", "wpat1", "wpat2", "vxa", "vq"] + [f"acc{i}{t}" for i in range(3) for t in range(2)] + \
             [f"fx{b}{t}" for b in range(2) for t in range(2)] + [f"fw{b}{i}" for b in range(2) for i in range(3)]: V.release(n)
    stamp(P, 5)

    facc = V.alloc("facc", 16); facc1 = V.alloc("facc1", 16); fa = V.alloc("ffa", 8)
    NB = OPT.get("nb", 6)
    hb = [V.alloc(f"hb{i}", 4) for i in range(NB)]; fb = hb[0]
    vl4 = V.alloc("vl4"); vg = V.alloc("vg"); zt = V.alloc("zt", 2)
    va0 = tr_slice_addr(P, V, "fa0", lane, t0, t1, 0, S_KH, 4)
    vA = [[va0, V.alloc("fa0h")], [V.alloc("fa1"), V.alloc("fa1h")]]
    P(f"s_lshl_b32 s{S_T1}, s{S_HP}, 5")
    P(f"v_xor_b32 v{va0}, s{S_T1}, v{va0}")
    P(f"s_lshr_b32 s{S_T0}, s{S_W}, 1")
    P(f"s_lshl_b32 s{S_T1}, s{S_T0}, 11")
    P(f"v_add_u32 v{va0}, s{S_T1}, v{va0}")
    P(f"v_xor_b32 v{vA[1][0]}, 64, v{va0}")
    P(f"v_add_u32 v{vA[0][1]}, 0x10000, v{va0}")
    P(f"v_add_u32 v{vA[1][1]}, 0x10000, v{vA[1][0]}")
    P(f"s_mul_i32 s{S_FB}, s{S_TILE}, 118")
    P(f"s_add_u32 s{S_FB}, s{S_FB}, s{S_T0}")
    P(f"s_lshl_b32 s{S_FB}, s{S_FB}, 10")
    P(f"s_add_u32 s{S_FB}, s{S_FB}, 0x{WS_OH:x}")
    P(f"v_lshlrev_b32 v{vl4}, 2, v{lane}")
    vhf = V.alloc("vhf")
    P(f"v_lshrrev_b32 v{t0}, 3, v{lane}")
    P(f"v_mul_u32_u24 v{t0}, 96, v{t0}")
    P(f"v_add_u32 v{vhf}, v{t0}, v{vl4}")
    P(f"s_lshl_b32 s{S_T0}, s{S_TT}, 8")
    P(f"s_add_u32 s{S_T0}, s{S_T0}, 0x{MISC:x}")
    P(f"v_add_u32 v{t0}, s{S_T0}, v{vl4}")
    P(f"ds_read_b32 v{zt}, v{t0}")
    P(f"ds_read_b32 v{zt+1}, v{t0} offset:512")
    P(f"v_add_f32 v{zt}, v{zt}, v{zt+1}")
    P(f"v_mov_b32 v{zt+1}, v{zt}")
    P(f"v_permlane32_swap_b32 v{zt}, v{zt+1}")
    P(f"v_add_f32 v{zt}, v{zt}, v{zt+1}")
    P(f"v_mul_f32 v{t0}, {hexf(-LOG2E)}, v{zt}")
    P(f"v_exp_f32 v{t0}, v{t0}")
    P(f"v_add_f32 v{t0}, 1.0, v{t0}")
    P(f"v_rcp_f32 v{vg}, v{t0}")
    V.release("zt")
    vw = [V.alloc(f"vw{i}") for i in range(3)]; vrd = V.alloc("vrd"); vo = V.alloc("vo")
    def sbase(dst, w):
        P(f"s_mul_i32 s{S_T1}, s{w}, 6144")
        P(f"v_add_u32 v{dst}, s{S_T1}, v{l16}")
    sbase(vrd, S_W)
    for b in range(1, 4):
        P(f"s_xor_b32 s{S_T0}, s{S_W}, {b << 1}")
        sbase(vw[b - 1], S_T0)
    P(f"v_and_b32 v{vo}, 31, v{lane}")
    P(f"v_lshlrev_b32 v{vo}, 10, v{vo}")
    P(f"v_lshrrev_b32 v{t1}, 5, v{lane}")
    P(f"v_lshl_add_u32 v{vo}, v{t1}, 4, v{vo}")
    P(f"s_lshl_b32 s{S_OO}, s{S_TILE}, 15")
    P(f"s_lshl_b32 s{S_T1}, s{S_J}, 7")
    P(f"s_add_u32 s{S_OO}, s{S_OO}, s{S_T1}")
    P(f"s_lshl_b32 s{S_T1}, s{S_KH}, 6")
    P(f"s_add_u32 s{S_OO}, s{S_OO}, s{S_T1}")
    P(f"s_lshl_b32 s{S_T1}, s{S_HP}, 5")
    P(f"s_add_u32 s{S_OO}, s{S_OO}, s{S_T1}")
    vp = V.alloc("vp"); vpa = V.alloc("vpa")
    P(f"v_lshlrev_b32 v{vpa}, 10, v{lane}")
    vt0 = V.alloc("vt0"); vt1 = V.alloc("vt1")
    P(f"s_lshr_b32 s{S_T1}, s{S_W}, 1")
    P(f"s_mul_i32 s{S_T1}, s{S_T1}, {16384 - 2048}")
    P(f"s_add_u32 s{S_T1}, s{S_T1}, {3*16384}")
    P(f"v_add_u32 v{vt0}, s{S_T1}, v{vA[0][0]}")
    P(f"v_add_u32 v{vt1}, s{S_T1}, v{vA[1][0]}")
    va = V.alloc("cva"); vb = V.alloc("cvb"); fb = V.alloc("cvon")
    P(f"s_mul_i32 s{S_T0}, s{S_W}, 3072")
    P(f"s_add_u32 s{S_T0}, s{S_T0}, 114688")
    P(f"v_add_u32 v{va}, s{S_T0}, v{l16}")
    P(f"s_xor_b32 s{S_T0}, s{S_W}, 4")
    P(f"s_mul_i32 s{S_T0}, s{S_T0}, 3072")
    P(f"s_add_u32 s{S_T0}, s{S_T0}, 114688")
    P(f"v_add_u32 v{vb}, s{S_T0}, v{l16}")
    P(f"s_add_u32 s{S_OL2}, s{S_OL}, 4096")
    BSLOT = lambda b: ((b % 8) if b < 11 else (b - 8)) * 16384
    def a_reads(r, d):
        o = (4 * r % 64) * 2048; hi = o >> 16; o &= 0xffff
        assert r // 2 in vis, (r, vis)
        rd_done[r // 2] = rd_done.get(r // 2, 0) + 1
        if OPT.get("abl_uds"): return
        P(f"ds_read_b64_tr_b16 {vr(fa+4*d,2)}, v{vA[d][hi]} offset:{o}")
        P(f"ds_read_b64_tr_b16 {vr(fa+4*d+2,2)}, v{vA[d][hi]} offset:{o+1024}")
    def h_load(r):
        if OPT.get("abl_uh"): return
        P(f"s_add_u32 s{S_T2}, s{S_FB}, {4096*r}")
        if r == 21:
            P(f"s_cmp_lt_u32 s{S_W}, 4")
            P(f"s_cselect_b32 s{S_T2}, s{S_T2}, 0x{OOB:x}")
        P(f"buffer_load_dwordx4 {vr(hb[r%NB],4)}, v{l16}, {WSR}, s{S_T2} offen sc1")
    pend = {}
    LW = OPT.get("lw", 4)
    dq = []; vis = set(); issued = {}; rd_done = {}; nxt = dict(b=LW, r=0, d=0, pre=False)
    def qW(b):
        def f(i):
            if not OPT.get("abl_uw"): fin_dma_w1(P, vsl, b, BSLOT(b), f"fw{b}", i)
            issued[b] = issued.get(b, 0) + 1
        for i in range(2): dq.append(lambda i=i: f(i))
    CH = OPT.get("ch", HF + 4); R0 = OPT.get("r0", 2 * (CH + 1))
    DBL = OPT.get("dbl", 64)
    def mstep():
        r, d = nxt["r"], nxt["d"]
        if r >= 22: return
        if not nxt["pre"]:
            a_reads(0, 0); a_reads(0, 1); nxt["pre"] = True; return
        if not OPT.get("abl_um"): P(mfma([facc, facc1][d], fa + 4 * d, hb[r % NB], [facc, facc1][d] if r else None))
        if r + 1 < 22: a_reads(r + 1, d)
        if d == 1 and r + NB < 22: dq.insert(0, lambda r=r: h_load(r + NB))
        nxt["d"] = 1 - d; nxt["r"] = r + d
    US = [("g1", "g4"), ("g2", "g5"), ("g1", "g5"), ("g2", "g6"), ("g3", "g6")][OPT.get("us", 3)]
    VS = [("pv2", "qk"), ("qk", "pv1"), ("pv2", "pv1"), ("g3", "g6"), ("qk", "g6")][OPT.get("vs", 0)]
    def hookU(it, x, pos):
        sig = (x == 0 and (it & 1)); ph = 2 * it + x
        if pos == "sync?": return False
        if pos == "pre0": sigstamp(it, 0); return
        if pos == "pre":
            if it == HF: P.wait_vm_all()
            need = [b for b in issued if issued[b] == 2 and b not in vis and (it == 29 or b <= (max(0, ph + 8 - R0) * (2 if ph + 6 >= DBL else 1)) // 2) and b <= 10]
            if need: P.wait_tag(*[f"fw{b}" for b in need])
            if it == HF: need = need + list(range(LW))
            pend["vis"] = need; pend["free"] = {b for b in rd_done if rd_done[b] >= 4}
            sigstamp(it, 1); return
        if pos == "pv1" and sig and it == HF and OPT.get("ef", -1) < 0:
            nonce_check(P, SL, vn, vz)
            flag_store(P, vz, t0, S_FS)
        if pos == "chk":
            vis.update(pend["vis"])
            while it >= HF and nxt["b"] < 15:
                b = nxt["b"]; prev = {8: 0, 9: 1, 10: 2, 11: 3, 12: 4, 13: 5, 14: 6}.get(b)
                if prev is not None and prev not in pend["free"]: break
                qW(b); nxt["b"] += 1
            return
        PP = OPT.get("pp", 2)
        if (PP == 0 and pos == "pv2" and x == 0 and it == CH - 1) or (PP == 1 and pos == "g1" and x == 1 and it == CH - 1) or \
           (PP == 2 and pos == "pv1" and x == 1 and it == CH - 1): P(flag_load(vfl, 1, vhf, f"s{S_FP}"))
        EF = OPT.get("ef", -1)
        if ph == EF and pos == "g4":
            P.wait_vm_all(); nonce_check(P, SL, vn, vz); flag_store(P, vz, t0, S_FS)
        if pos == "pv2" and x == 0 and it == CH:
            spin_check(P, SL, [flag_load(vfl, 1, vhf, f"s{S_FP}")], flag_cmp(vfl, 1, t0), sleep=OPT.get("hsl", 4))
            for r in range(NB): dq.insert(r, lambda r=r: h_load(r))
        elif dq and (pos in VS or (pos in ("g2", "g5") and it in (CH, CH + 1)) or (pos == "g5" and OPT.get("d3"))): dq.pop(0)()
        if nxt["r"] >= 22 - OPT.get("tr", 5) and nxt["d"] == 0: pass
        elif (pos in US and ph >= R0) or (pos == US[1] and ph == R0 - 1) or (pos in ("g3", "g6") and ph >= DBL): mstep()
        if pos == "g6" and it == 31 and x == 1:
            assert nxt["b"] == 15, nxt
            print("rounds left for tail:", 22 - nxt["r"])
    def prioU(it, x):
        if not OPT.get("prio", 1): return None
        k = 2 * ((it + 1) & 1) + x
        return int(str(OPT.get("pu", 3210)).zfill(4)[k])
    attention(P, A, l16, range(UNI, 32), hookU, prioU)
    assert not dq
    stamp(P, 6)
    if OPT.get("sig"):
        P(f"s_lshl_b32 s98, s2, 11")
        P(f"s_lshl_b32 s99, s{S_W}, 8")
        P(f"s_add_u32 s98, s98, s99")
        P(f"s_add_u32 s98, s98, 0x{WS_STAMP + (1<<20):x}")
        P(f"buffer_store_dword v{vsig}, v{vl4}, {WSR}, s98 offen")
    P("s_setprio 0")
    P(f"v_mov_b32 v{O[1]+7}, v{O[1]}")
    for i in range(3): P(f"ds_write_b128 v{va}, {vr(O[1]+4+4*i,4)} offset:{1024*i}")
    P.wait_tag(*[f"fw{b}" for b in range(8, 15)]); P.wait_lgkm_all()
    P("s_barrier")
    vis.update(range(11))
    for i in range(3): P(f"ds_read_b128 {vr(O[1]+4+4*i,4)}, v{vb} offset:{1024*i}")
    P(f"v_add_f32 v{O[0]}, v{O[0]}, v{O[1]+7}")
    for r in range(8, 16): P(f"v_add_f32 v{O[0]+r}, v{O[0]+r}, v{O[1]+r}")
    P(f"v_mov_b32 v{t1}, 0x207")
    P(f"v_cmp_nle_f32 vcc, {hexf(2.0**-90)}, v{O[0]}")
    P(f"v_cmp_nge_f32 s[{S_PM}:{S_PM+1}], {'s' + str(S_T0)}, v{O[0]}".replace(f"s{S_T0}", f"s{S_C1}"))
    P(f"s_or_b64 vcc, vcc, s[{S_PM}:{S_PM+1}]")
    P(f"v_add3_u32 v{t0}, v{O[0]+8}, 0, 0".replace("v_add3_u32", "v_add_f32").replace(", 0, 0", f", v{O[0]+9}"))
    for r in range(10, 16): P(f"v_add_f32 v{t0}, v{t0}, v{O[0]+r}")
    P(f"v_cmp_class_f32 s[{S_PM}:{S_PM+1}], v{t0}, v{t1}")
    P(f"s_or_b64 vcc, vcc, s[{S_PM}:{S_PM+1}]")
    if OPT.get("forcefb"): P("s_mov_b64 vcc, -1")
    P("s_cmp_lg_u64 vcc, 0")
    P("s_cbranch_scc1 LF_fb")
    P("LF_fbr:")
    P(f"v_rcp_f32 v{t0}, v{O[0]}")
    P(f"v_mul_f32 v{t0}, v{t0}, v{vg}")
    for r in range(8, 16): P(f"v_mul_f32 v{O[0]+r}, v{O[0]+r}, v{t0}")
    for r in range(4): P(f"v_cvt_pk_bf16_f32 v{O[1]+r}, v{O[0]+8+2*r}, v{O[0]+9+2*r}")
    for r in range(4): P(f"v_min_u32 v{O[1]+r}, 0xfffffffe, v{O[1]+r}")
    P(f"buffer_store_dwordx4 {vr(O[1],4)}, v{l16}, {WSR}, s{S_OD} offen sc1", tag="ost")
    P(f"s_add_u32 s{S_FS}, s{S_FS}, 32768")
    flag_store(P, vz, t0, S_FS)
    P(f"s_lshr_b32 s{S_T1}, s{S_W}, 1")
    P(f"s_lshl_b32 s{S_T1}, s{S_T1}, 8")
    P(f"s_add_u32 s{S_FP}, s{S_FP}, s{S_T1}")
    P(f"s_add_u32 s{S_FP}, s{S_FP}, 32768")
    stamp(P, 7)
    K4, V8, ON, CM = A["fk"], A["fv"][0], fb, O[1]
    assert A["fv"][1] == V8 + 4
    nl = "\n    "
    fbk = f"""LF_fb:
    s_waitcnt vmcnt(0) lgkmcnt(0)
    v_mov_b32 v{t0}, 0xff800000
    s_mov_b32 s{S_T0}, 0x{WS_KF:x}
LF_fb1:
    buffer_load_dwordx4 {vr(K4,4)}, v{l16}, {WSR}, s{S_T0} offen sc1
    s_waitcnt vmcnt(0)
    {mfma(S[0], K4, qf)}
    s_nop 15
    {nl.join(f"v_max3_f32 v{t0}, v{S[0]+2*r}, v{S[0]+2*r+1}, v{t0}" for r in range(8))}
    s_add_u32 s{S_T0}, s{S_T0}, 1024
    s_cmp_lt_u32 s{S_T0}, 0x{WS_KF + 65536:x}
    s_cbranch_scc1 LF_fb1
    v_mov_b32 v{t1}, v{t0}
    s_nop 1
    v_permlane32_swap_b32 v{t0}, v{t1}
    s_nop 1
    v_max_f32 v{t0}, v{t0}, v{t1}
    {nl.join(f"v_sub_f32 v{CM+r}, 0, v{t0}" for r in range(16))}
    {nl.join(f"v_mov_b32 v{O[0]+r}, 0" for r in range(16))}
    v_lshrrev_b32 v{t0}, 5, v{lane}
    v_lshlrev_b32 v{t0}, 8, v{t0}
    v_and_b32 v{t1}, 15, v{lane}
    v_lshl_add_u32 v{t0}, v{t1}, 4, v{t0}
    v_and_b32 v{t1}, 16, v{lane}
    v_cmp_eq_u32 vcc, 0, v{t1}
    v_mov_b32 v{t1}, 0x{OOB:x}
    s_nop 1
    v_cndmask_b32 v{t0}, v{t0}, v{t1}, vcc
    v_and_b32 v{t1}, 27, v{lane}
    v_cmp_eq_u32 vcc, 0, v{t1}
    v_mov_b32 v{ON}, 0x3f803f80
    s_nop 1
    v_cndmask_b32 v{ON}, 0, v{ON}, vcc
    s_mov_b32 s{S_T0}, 0x{WS_KF:x}
LF_fb2:
    s_add_u32 s{S_T1}, s{S_T0}, 0x{WS_VF - WS_KF:x}
    buffer_load_dwordx4 {vr(K4,4)}, v{l16}, {WSR}, s{S_T0} offen sc1
    buffer_load_dwordx4 {vr(V8,4)}, v{t0}, {WSR}, s{S_T1} offen sc1
    buffer_load_dwordx4 {vr(V8+4,4)}, v{t0}, {WSR}, s{S_T1} offen offset:512 sc1
    s_waitcnt vmcnt(0)
    {mfma(S[0], K4, qf, CM)}
    {nl.join(f"v_or_b32 v{V8+r}, v{V8+r}, v{ON}" for r in range(8))}
    s_nop 7
    {nl.join(f"v_exp_f32 v{S[0]+r}, v{S[0]+r}" for r in range(16))}
    s_nop 1
    {nl.join(f"v_cvt_pk_bf16_f32 v{S[1]+r}, v{S[0]+2*r}, v{S[0]+2*r+1}" for r in range(8))}
    s_nop 1
    {mfma(O[0], V8, S[1], O[0])}
    {mfma(O[0], V8+4, S[1]+4, O[0])}
    s_add_u32 s{S_T0}, s{S_T0}, 1024
    s_cmp_lt_u32 s{S_T0}, 0x{WS_KF + 65536:x}
    s_cbranch_scc1 LF_fb2
    s_nop 15
    s_branch LF_fbr
"""
    SL.add(fbk)
    for n in ("Sa", "Sb", "Oa", "qf", "fk", "fv1", "fv2"): V.release(n)
    ob = V.alloc("ob", 32); wa = [V.alloc(f"wa{u}", 8) for u in range(8)]
    def oloads(g): return [f"buffer_load_dwordx4 {vr(ob+16*g+4*u,4)}, v{l16}, {WSR}, s{[S_OL,S_OL2][g]} offen offset:{1024*u} sc1" for u in range(4)]
    def ocheck(g):
        b = ob + 16 * g
        L = [f"v_max3_u32 v{t0}, v{b}, v{b+1}, v{b+2}"]
        for k in range(3, 15, 2): L.append(f"v_max3_u32 v{t0}, v{b+k}, v{b+k+1}, v{t0}")
        L += [f"v_max_u32 v{t0}, v{b+15}, v{t0}", f"v_cmp_eq_u32 vcc, -1, v{t0}"]
        return L
    fa2 = V.alloc("ffa2", 8)
    wr = []
    for u in range(8):
        for d, v in ((0, vt0), (1, vt1)):
            wr.append([f"ds_read_b64_tr_b16 {vr(wa[u]+4*d,2)}, v{v} offset:{u*2048}", f"ds_read_b64_tr_b16 {vr(wa[u]+4*d+2,2)}, v{v} offset:{u*2048+1024}"])
    r0 = nxt["r"]; assert nxt["d"] == 0 and not dq
    def tr_reads(r, d):
        o = (4 * r % 64) * 2048; hi = o >> 16; o &= 0xffff; f = [fa, fa2][(r - r0) % 2] + 4 * d
        P(f"ds_read_b64_tr_b16 {vr(f,2)}, v{vA[d][hi]} offset:{o}")
        P(f"ds_read_b64_tr_b16 {vr(f+2,2)}, v{vA[d][hi]} offset:{o+1024}")
    if r0 + 1 < 22: tr_reads(r0 + 1, 0); tr_reads(r0 + 1, 1)
    OL = min(r0 + OPT.get("ol", 99), 22)
    for r in range(r0, 22):
        if OPT.get("ofp", 0) == 2 and r == 21:
            for x in ["s_mov_b64 exec, 0xffff", flag_load(vp, 1, vhf, f"s{S_FP}"), "s_mov_b64 exec, -1"]: P(x)
        if r == OL:
            for g in range(2):
                for x in oloads(g): P(x)
        for d in range(2):
            P(mfma([facc, facc1][d], [fa, fa2][(r - r0) % 2] + 4 * d, hb[r % NB], [facc, facc1][d]))
            if r + 2 < 22: tr_reads(r + 2, d)
            elif wr:
                for g in wr[:4]:
                    for x in g: P(x)
                del wr[:4]
    for g in wr:
        for x in g: P(x)
    assert 22 - r0 <= NB and r0 >= 16
    fl = ["s_mov_b64 exec, 0xffff", flag_load(vp, 1, vhf, f"s{S_FP}"), "s_mov_b64 exec, -1"]
    fc = ["s_mov_b64 exec, 0xffff", f"v_cmp_ne_u32 vcc, s{S_NONCE}, v{vp}", "s_mov_b64 exec, -1"]
    if OPT.get("ofp", 0) == 0:
        for x in fl: P(x)
    P.wait_lgkm_all(); P("s_barrier")
    if OPT.get("ofp", 0) == 1:
        for x in fl: P(x)
    spin_check(P, SL, fl, fc, sleep=OPT.get("fsl", 1))
    if OL == 22:
        for g in range(2):
            for x in oloads(g): P(x)
    P(f"v_sub_f32 v{t1}, 1.0, v{vg}")
    P(f"v_mov_b32 v{t0}, v{t1}")
    assert t1 == t0 + 1 and t0 % 2 == 0
    for r in range(0, 16, 2): P(f"v_pk_mul_f32 v[{facc+r}:{facc+r+1}], v[{facc+r}:{facc+r+1}], v[{t0}:{t1}]")
    for r in range(0, 16, 2): P(f"v_pk_mul_f32 v[{facc1+r}:{facc1+r+1}], v[{facc1+r}:{facc1+r+1}], v[{t0}:{t1}]")
    if not OPT.get("oab", 1): P.wait_lgkm_all(); P("s_barrier")
    stamp(P, 8)
    nl = "\n    "
    PROBE = lambda g: f"""s_mov_b64 exec, 0xf
    buffer_load_dword v{vp}, v{vpa}, {WSR}, s{[S_OL,S_OL2][g]} offen offset:1020 sc1
    s_waitcnt vmcnt(0)
    v_cmp_eq_u32 vcc, -1, v{vp}
    s_mov_b64 exec, -1"""
    for g in range(2):
        k = SL.n; SL.n += 1
        for x in ocheck(g): P(x)
        P(f"s_cbranch_vccz LR{k}")
        raw(P, f"""{cnt(1+k)}    s_mov_b32 s{S_T7}, 0
LS{k}_p:
    {f"s_sleep {OPT.get('osl', 1)}" if OPT.get('osl', 1) else "s_nop 0"}
    {"" if OPT.get("odir") else PROBE(g)}
    s_add_u32 s{S_T7}, s{S_T7}, 1
    s_cmp_ge_u32 s{S_T7}, 0x{SPIN_MAX:x}
    s_cbranch_scc1 LR{k}
    {"" if OPT.get("odir") else f"s_cbranch_vccnz LS{k}_p"}
    {nl.join(oloads(g))}
    s_waitcnt vmcnt(0)
    {nl.join(ocheck(g))}
    s_cbranch_vccnz LS{k}_p
""")
        P(f"LR{k}:")
        for u in range(4 * g, 4 * g + 4):
            P(mfma(facc1, wa[u] + 4, ob + 4 * u, facc1))
    W1 = [f"ds_write_b128 v{vw[b-1]}, {vr(src+4*i,4)} offset:{2048*(b-1) + 1024*i}" for b, src in ((2, facc1), (3, facc1 + 8)) for i in range(2)]
    for u in range(8):
        P(mfma(facc, wa[u], ob + 4 * u, facc))
        if u >= 3 and W1:
            if u == 3: P("s_nop 7")
            P(W1.pop(0))
    stamp(P, 9)
    for b, src in ((1, facc + 8),):
        for i in range(2): P(f"ds_write_b128 v{vw[b-1]}, {vr(src+4*i,4)} offset:{2048*(b-1) + 1024*i}")
    P.wait_lgkm_all()
    P("s_barrier")
    for i in range(6): P(f"ds_read_b128 {vr(ob+4*i,4)}, v{vrd} offset:{1024*i}")
    for b in range(3):
        for r in range(8): P(f"v_add_f32 v{facc+r}, v{facc+r}, v{ob+8*b+r}")
    for r in range(4): P(f"v_cvt_pk_bf16_f32 v{facc1+r}, v{facc+2*r}, v{facc+2*r+1}")
    P(f"v_permlane32_swap_b32 v{facc1}, v{facc1+2}")
    P(f"v_permlane32_swap_b32 v{facc1+1}, v{facc1+3}")
    P(f"buffer_store_dwordx4 {vr(facc1,4)}, v{vo}, s[{S_OUT}:{S_OUT+3}], s{S_OO} offen")
    if OPT.get("cnt"):
        P(f"v_lshrrev_b32 v1, v{lane}, s85".replace(f"v{lane}, s85", f"v{lane}, v0") if False else f"v_mov_b32 v0, s85")
        P(f"v_lshrrev_b32 v1, v{lane}, v0")
        P(f"v_and_b32 v1, 1, v1")
        P(f"v_lshlrev_b32 v0, 2, v{lane}")
        P("s_mov_b64 exec, 0xfe")
        P(f"buffer_atomic_add v1, v0, s[{S_DBG}:{S_DBG+3}], 0 offen")
    if STAMP["on"]:
        P.wait_vm_all(); stamp(P, 10); stamp_dump(P, lane)
        if OPT.get("amp") is not None:
            q, q0 = OPT["amp"], OPT.get("amp0", 12)
            if OPT.get("ampwg") is not None:
                P(f"s_cmp_lg_u32 s2, {OPT['ampwg']}"); P("s_cbranch_scc1 LF_end")
            P(f"s_cmp_lg_u32 s{S_W}, {OPT.get('ampw', 0)}"); P("s_cbranch_scc1 LF_end")
            P(f"v_readlane_b32 s96, v{VSTAMP}, {q}")
            if q0 == 99: P(f"s_mov_b32 s97, s{S_NONCE}")
            else: P(f"v_readlane_b32 s97, v{VSTAMP}, {q0}")
            P("s_nop 4")
            P("s_sub_u32 s96, s96, s97")
            if q0 == 99: P("s_add_u32 s96, s96, 200")
            P("s_min_u32 s96, s96, 3000")
            P("s_mul_i32 s96, s96, 10")
            P("s_memrealtime s[98:99]"); P("s_waitcnt lgkmcnt(0)")
            P("s_add_u32 s96, s96, s98")
            P("LF_amp:")
            P("s_sleep 8")
            P("s_memrealtime s[98:99]"); P("s_waitcnt lgkmcnt(0)")
            P("s_sub_u32 s97, s98, s96")
            P("s_cmp_lt_i32 s97, 0")
            P("s_cbranch_scc1 LF_amp")
        if OPT.get("dbgst") is not None:
            P(f"s_cmp_lg_u32 s2, {OPT['dbgst']}")
            P("s_cbranch_scc1 LF_end")
            P(f"s_cmp_lg_u32 s{S_W}, {OPT.get('dbgw', 0)}")
            P("s_cbranch_scc1 LF_end")
            P(f"v_subrev_u32 v{VSTAMP}, s100, v{VSTAMP}")
            P("s_mov_b64 exec, 0x7fff")
            P(f"buffer_store_dword v{VSTAMP}, v1, s[{S_DBG}:{S_DBG+3}], 0 offen offset:4")
    P("LF_end:")
    P("s_endpgm")
    name = NAME + "_kernel"
    body, I = finalize(P)
    txt = f".text\n.globl {name}\n.p2align 8\n.type {name},@function\n{name}:\n" + body + "".join(SL.txt) + "LF_last:\n    s_endpgm\n"
    vg_ = 256 if STAMP["on"] else max(V.hi, 8)
    txt += KD.format(name=name, vgpr=vg_, sgpr=102 if STAMP['on'] else 96, accum=(vg_ + 3) // 4 * 4)
    return txt, I, vg_


if __name__ == "__main__":
    out = sys.argv[1]
    STAMP["on"] = "stamp" in sys.argv
    for a in sys.argv[2:]:
        if "=" in a: k, v = a.split("="); OPT[k] = int(v)
        else: OPT[a] = True
    import asmlib; asmlib.MERGE_D = OPT.get("md", 9)
    t, I, vg_ = kernel_F()
    DOC = """; One fused kernel, 256 workgroups x 8 waves, one per CU (all co-resident).  Workgroup = (64-token group G, slice j).
;  start : K/V projection of 16 tokens (wave 7) -> d_ws + flag ; Q projection of 4 heads (waves 0-3) ; gate logit
;          true row maximum (LF_fb) whenever that could have overflowed or underflowed.
;  end   : o exchanged through d_ws (words preset to all-ones mean 'not written yet'), output projection, gated mix.
;  Hand-offs: write-through stores, vmcnt, then flags tagged with a per-launch nonce published through d_debug[0].
"""
    hdr = HEADER + DOC + f"; @launch grid=(256,1,1) block=(512,1,1) lds={LDS_BYTES}\n" + '.amdgcn_target "amdgcn-amd-amdhsa--gfx950"\n'
    open(out, "w").write(hdr + t)
    import subprocess
    r = subprocess.run(["clang", "-x", "assembler", "-target", "amdgcn-amd-amdhsa", "-mcpu=gfx950", "-c", out, "-o", "_chk.o"], capture_output=True, text=True)
    if r.returncode: print("ASM ERROR", r.stderr[:500])
    print("insts", len(I), "vgpr", vg_, "nops", sum(1 for x in I if x.kind == "nop"))
```

```python
import sys, re
from parts import *
OPT = {}
S_NONCE = 93
S_HP, S_KH = 30, 31
SH = [4, 5, 6]
S_FS, S_FP, S_OD, S_OL = 7, 8, 9, 10
S_FW, S_FB, S_FL, S_FL2 = 12, 13, 14, 15
S_OO, S_OL2 = 11, 18
S_VM = 28
S_PM = 16
FL_KV, FL_H = WS_FLAG, WS_FLAG + 8192
WKV_L = KV_RING
QSCR = KV_RING + 8192
FSLOT = [0, 32768, 65536, 98304]
WO_CH = [98304, 114688, 0, 32768]
SC1 = " sc1"
SPIN_MAX = 1 << 22
WSR = f"s[{S_WS}:{S_WS+3}]"


def cnt(k):
    if not OPT.get("cnt"): return ""
    return f"    s_bitset1_b32 s85, {k}\n"


def raw(P, text):
    for line in text.split("\n"):
        line = line.strip()
        if not line: continue
        P(line)
        x = P.I[-1]
        if x.kind not in ("label",):
            x.kind = "salu"; x.vr = set(); x.vw = set(); x.sr = set(); x.sw = set(); x.mf = None; x.meta = dict(skip=True)


class Slow:
    def __init__(self): self.txt = []; self.n = 0
    def add(self, t): self.txt.append(t)


LOADS = {}
def wq_pieces(P, vsl, s_first, n, label, rot):
    P(f"s_and_b32 s{S_T6}, s{S_G}, 7")
    if rot > 1: P(f"s_mul_i32 s{S_T6}, s{S_T6}, {rot}")
    P(f"s_add_u32 s{S_T5}, s{S_T6}, {n}")
    P(f"s_lshl_b32 s{S_T7}, s{S_J}, 7")
    P(f"{label}:")
    P(f"s_and_b32 s{S_T4}, s{S_T6}, {n-1}")
    P(f"s_add_u32 s{S_T4}, s{S_T4}, s{s_first}")
    P(f"s_mul_i32 s{S_T0}, s{S_T4}, 171")
    P(f"s_lshr_b32 s{S_T0}, s{S_T0}, 12")
    P(f"s_lshl_b32 s{S_T1}, s{S_T4}, 2")
    P(f"s_add_u32 s{S_T0}, s{S_T0}, s{S_T1}")
    P(f"s_lshl_b32 s{S_T0}, s{S_T0}, 8")
    P(f"s_add_u32 m0, s{S_T0}, 0x{SLOT[0]:x}")
    P(f"s_lshl_b32 s{S_T2}, s{S_T4}, 13")
    P(f"s_add_u32 s{S_T2}, s{S_T2}, s{S_T7}")
    P(f"s_add_u32 s{S_T6}, s{S_T6}, 1")
    P(f"buffer_load_dwordx4 v{vsl}, s[{S_WQ}:{S_WQ+3}], s{S_T2} offen lds")
    P.I[-1].kind = "salu"
    P(f"s_cmp_lg_u32 s{S_T6}, s{S_T5}")
    P(f"s_cbranch_scc1 {label}")


def emit_loads(P, l16, vsl, sfx):
    if sfx == "h":
        P(f"s_lshr_b32 s{S_T4}, s{S_J}, 1")
        P(f"s_lshl_b32 s{S_T4}, s{S_T4}, 4")
        P(f"s_mul_i32 s{S_T1}, s{S_W}, 12")
        P(f"s_add_u32 s{S_T4}, s{S_T4}, s{S_T1}")
        P(f"s_add_u32 s{S_T4}, s{S_T4}, 16")
        P(f"s_lshl_b32 s{S_T0}, s{S_G}, 16")
        P(f"s_and_b32 s{S_T6}, s{S_J}, 3")
        P(f"s_mul_i32 s{S_T6}, s{S_T6}, 3")
        P(f"s_mov_b32 s{S_T5}, 12")
        mk_srd(P, S_X, 4, SZ["x"])
        P("LF_ldx1:")
        P(f"s_add_u32 s{S_T1}, s{S_T6}, s{S_T4}")
        P(f"s_and_b32 s{S_T1}, s{S_T1}, 63")
        P(f"s_mul_i32 m0, s{S_T1}, {X_STRIDE}")
        P(f"s_lshl_b32 s{S_T2}, s{S_T1}, 10")
        P(f"s_add_u32 s{S_T2}, s{S_T2}, s{S_T0}")
        P(f"s_add_u32 s{S_T6}, s{S_T6}, 1")
        P(f"s_cmp_eq_u32 s{S_T6}, 12")
        P(f"s_cselect_b32 s{S_T6}, 0, s{S_T6}")
        P(f"buffer_load_dwordx4 v{l16}, s[{S_X}:{S_X+3}], s{S_T2} offen lds", tag="q")
        P(f"s_sub_u32 s{S_T5}, s{S_T5}, 1")
        P(f"s_cmp_lg_u32 s{S_T5}, 0")
        P("s_cbranch_scc1 LF_ldx1")
    else:
        mk_srd(P, S_WQ, 6, SZ["wq"])
        P(f"s_and_b32 s{S_T3}, s{S_W}, 3")
        P(f"s_lshl_b32 s{S_T3}, s{S_T3}, 3")
        wq_pieces(P, vsl, S_T3, 8, "LF_ldq1", 1)
        P(f"s_add_u32 s{S_T3}, s{S_T3}, 24")
        wq_pieces(P, vsl, S_T3, 8, "LF_ldq2", 1)


def prologue_f(P, V, endlabel):
    if STAMP["on"]: P("s_memrealtime s[100:101]")
    P("s_cmp_ge_u32 s2, 256")
    P(f"s_cbranch_scc1 {endlabel}")
    P("s_load_dwordx16 s[4:19], s[0:1], 0")
    P("s_load_dwordx8 s[20:27], s[0:1], 64")
    P("s_load_dwordx2 s[28:29], s[0:1], 96")
    lane = V.alloc("lane"); l16 = V.alloc("l16")
    if OPT.get("cpf", 1):
        c = V.alloc("cpf", 2)
        P(f"s_getpc_b64 s[{S_EX}:{S_EX+1}]")
        P("LF_pc0:")
        if OPT.get("cpf", 1) == 1:
            P(f"s_lshr_b32 s{S_T3}, s2, 3")
            P(f"s_lshl_b32 s{S_T3}, s{S_T3}, 11")
            P(f"v_lshrrev_b32 v{c}, 5, v0")
            P(f"v_lshlrev_b32 v{c}, 7, v{c}")
            P(f"v_add_u32 v{c}, s{S_T3}, v{c}")
            P(f"v_min_u32 v{c}, LF_last-LF_pc0, v{c}")
            P("s_mov_b32 exec_lo, 1"); P("s_mov_b32 exec_hi, 1")
        else:
            P(f"s_lshr_b32 s{S_T3}, s2, 3")
            P(f"s_and_b32 s{S_T3}, s{S_T3}, 15")
            P(f"s_lshl_b32 s{S_T3}, s{S_T3}, 12")
            P(f"v_lshrrev_b32 v{c}, 4, v0")
            P(f"v_lshlrev_b32 v{c}, 7, v{c}")
            P(f"v_add_u32 v{c}, s{S_T3}, v{c}")
            P(f"v_min_u32 v{c}, LF_last-LF_pc0, v{c}")
            P("s_mov_b32 exec_lo, 0x00010001")
            P("s_mov_b32 exec_hi, 0x00010001")
        P(f"global_load_dword v{c}, v{c}, s[{S_EX}:{S_EX+1}]", tag="cpf")
        P("s_mov_b64 exec, -1")
    P(f"v_lshrrev_b32 v1, 6, v0")
    P(f"v_and_b32 v{lane}, 63, v0")
    P(f"v_readfirstlane_b32 s{S_W}, v1")
    P(f"v_lshlrev_b32 v{l16}, 4, v{lane}")
    P(f"s_lshr_b32 s{S_T0}, s2, 3")
    if OPT.get("jrot"): P(f"s_add_u32 s{S_J}, s{S_T0}, {OPT['jrot']}"); P(f"s_and_b32 s{S_J}, s{S_J}, 3")
    else: P(f"s_and_b32 s{S_J}, s{S_T0}, 3")
    P(f"s_and_b32 s{S_T1}, s2, 1")
    P(f"s_lshl_b32 s{S_T1}, s{S_T1}, 2")
    P(f"s_add_u32 s{S_J}, s{S_J}, s{S_T1}")
    P(f"s_and_b32 s{S_G}, s2, 6")
    P(f"s_lshl_b32 s{S_G}, s{S_G}, 2")
    P(f"s_lshr_b32 s{S_T0}, s{S_T0}, 2")
    P(f"s_add_u32 s{S_G}, s{S_G}, s{S_T0}")
    t0 = V.alloc("t0"); t1 = V.alloc("t1")
    vsl = slice_pattern(P, V, lane, t0)
    LOADS["f"] = lambda sfx: emit_loads(P, l16, vsl, sfx)
    P(f"s_and_b32 s{S_TT}, s{S_W}, 1")
    P(f"s_lshl_b32 s{S_TILE}, s{S_G}, 1")
    P(f"s_add_u32 s{S_TILE}, s{S_TILE}, s{S_TT}")
    P(f"s_lshr_b32 s{S_HP}, s{S_W}, 1")
    P(f"s_and_b32 s{S_HP}, s{S_HP}, 1")
    P(f"s_lshr_b32 s{S_KH}, s{S_W}, 2")
    assert all((p * 171) >> 12 == p // 24 for p in range(64)) and SLOT_SZ == 3 * 8192 + 256
    return lane, l16, t0, t1, vsl


def rest_srds(P):
    P(f"s_cmp_eq_u32 s{S_TT}, 0")
    P(f"s_cselect_b32 s{S_WM}, s16, s18")
    P(f"s_cselect_b32 s{S_WM+1}, s17, s19")
    P(f"s_and_b32 s{S_WM+1}, s{S_WM+1}, 0xffff")
    P(f"s_mov_b32 s{S_WM+2}, 0x{SZ['wg']:x}")
    P(f"s_mov_b32 s{S_WM+3}, 0x20000")
    mk_srd(P, S_OUT, 24, SZ["out"])
    mk_srd(P, S_WO, 12, SZ["wo"])
    mk_srd(P, S_WD, 20, SZ["wd"])


def nonce_check(P, SL, vn, vz):
    k = SL.n; SL.n += 1
    P(f"v_readfirstlane_b32 s{S_NONCE}, v{vn}")
    P(f"s_cmp_lg_u32 s{S_NONCE}, 0")
    P(f"s_cbranch_scc1 LR{k}")
    raw(P, f"""{cnt(1+k)}    s_mov_b32 s{S_T7}, 0
LS{k}_l:
    s_sleep 2
    buffer_load_dword v{vn}, v{vz}, s[{S_DBG}:{S_DBG+3}], 0 offen sc1
    s_waitcnt vmcnt(0)
    v_readfirstlane_b32 s{S_NONCE}, v{vn}
    s_add_u32 s{S_T7}, s{S_T7}, 1
    s_cmp_ge_u32 s{S_T7}, 0x{SPIN_MAX:x}
    s_cbranch_scc1 LR{k}
    s_cmp_eq_u32 s{S_NONCE}, 0
    s_cbranch_scc1 LS{k}_l
""")
    P(f"LR{k}:")
    P("s_nop 0")


def flag_load(vf, n, vaddr, soff):
    op = {1: "buffer_load_dword", 4: "buffer_load_dwordx4"}[n]
    return f"{op} {vr(vf,n)}, v{vaddr}, {WSR}, {soff} offen sc1"


def flag_cmp(vf, n, t):
    L = [f"v_xor_b32 v{t}, s{S_NONCE}, v{vf}"]
    for i in range(1, n):
        L += [f"v_xor_b32 v{vf+i}, s{S_NONCE}, v{vf+i}", f"v_or_b32 v{t}, v{t}, v{vf+i}"]
    L += [f"v_cmp_ne_u32 vcc, 0, v{t}"]
    return L


def spin_check(P, SL, loads, cmps, sleep=1):
    k = SL.n; SL.n += 1
    for x in cmps: P(x)
    P(f"s_cbranch_vccz LR{k}")
    nl = "\n    "
    raw(P, f"""{cnt(1+k)}    s_mov_b32 s{S_T7}, 0
LS{k}_l:
    {f"s_sleep {sleep}" if sleep else "s_nop 0"}
    {nl.join(loads)}
    s_waitcnt vmcnt(0)
    {nl.join(cmps)}
    s_add_u32 s{S_T7}, s{S_T7}, 1
    s_cmp_ge_u32 s{S_T7}, 0x{SPIN_MAX:x}
    s_cbranch_scc1 LR{k}
    s_cbranch_vccnz LS{k}_l
""")
    P(f"LR{k}:")


def flag_store(P, vz, t, soff):
    P(f"v_mov_b32 v{t}, s{S_NONCE}")
    P("s_mov_b64 exec, 1")
    P(f"buffer_store_dword v{t}, v{vz}, {WSR}, s{soff} offen sc1", tag="flag")
    P("s_mov_b64 exec, -1")


PROG = MISC + 1024
class SplitBar:
    def __init__(self, P, V, SL, lane, t0):
        self.P, self.SL, self.n = P, SL, 0
        self.va = V.alloc("sba"); self.vr = V.alloc("sbr"); self.one = V.alloc("sb1"); self.vg = V.alloc("sbg")
        P(f"s_lshl_b32 s{S_T0}, s{S_W}, 8")
        P(f"s_add_u32 s{S_T0}, s{S_T0}, 0x{PROG:x}")
        P(f"v_lshlrev_b32 v{t0}, 2, v{lane}")
        P(f"v_add_u32 v{self.va}, s{S_T0}, v{t0}")
        P(f"v_and_b32 v{t0}, 7, v{lane}")
        P(f"v_mul_u32_u24 v{t0}, 260, v{t0}")
        P(f"v_add_u32 v{self.vr}, 0x{PROG:x}, v{t0}")
        P(f"v_mov_b32 v{self.one}, 0")
        P(f"ds_write_b32 v{self.va}, v{self.one}")
        P(f"v_mov_b32 v{self.one}, 1")
    def arrive(self):
        self.n += 1
        self.P(f"ds_add_u32 v{self.va}, v{self.one}")
    def peek(self): self.P(f"ds_read_b32 v{self.vg}, v{self.vr}")
    def check(self):
        k = self.SL.n; self.SL.n += 1
        self.P(f"v_cmp_gt_u32 vcc, {self.n}, v{self.vg}")
        self.P(f"s_cbranch_vccz LR{k}")
        self.P(f"LS{k}:")
        for t in ([f"s_sleep {OPT['ssl']}"] if OPT.get("ssl") else []) + [f"ds_read_b32 v{self.vg}, v{self.vr}", "s_waitcnt lgkmcnt(0)", f"v_cmp_gt_u32 vcc, {self.n}, v{self.vg}", f"s_cbranch_vccnz LS{k}"]:
            self.P(t); self.P.I[-1].kind = "salu"; self.P.I[-1].vw = set(); self.P.I[-1].vr = set()
        self.P(f"LR{k}:")


def attn_setup(P, V, lane, l16, t0, t1):
    A = {}
    P(f"s_lshl_b32 s{S_T1}, s{S_KH}, 12")
    vk = V.alloc("vk"); vv = [V.alloc("vv0"), V.alloc("vv1")]
    P(f"s_add_u32 s{S_T1}, s{S_T1}, 0x{KV_RING:x}")
    P(f"v_add_u32 v{vk}, s{S_T1}, v{l16}")
    P(f"v_lshrrev_b32 v{t0}, 5, v{lane}")
    P(f"v_lshlrev_b32 v{t0}, 8, v{t0}")
    P(f"v_and_b32 v{t1}, 15, v{lane}")
    P(f"v_lshl_add_u32 v{t0}, v{t1}, 4, v{t0}")
    P(f"v_and_b32 v{t1}, 16, v{lane}")
    P(f"v_cmp_eq_u32 vcc, 0, v{t1}")
    P(f"s_add_u32 s{S_T1}, s{S_T1}, 2048")
    for s in range(2):
        P(f"v_mov_b32 v{t1}, s{S_T1}")
        P(f"v_add_u32 v{t1}, {8192*s}, v{t1}")
        P(f"v_mov_b32 v{vv[s]}, 0x{ONES:x}")
        P(f"v_cndmask_b32 v{vv[s]}, v{t1}, v{vv[s]}, vcc")
        P(f"v_add_u32 v{vv[s]}, v{vv[s]}, v{t0}")
    P(f"s_lshl_b32 s{S_KVOFF}, s{S_KH}, 15")
    P(f"s_lshl_b32 s{S_T1}, s{S_HP}, 16")
    P(f"s_add_u32 s{S_KVOFF}, s{S_KVOFF}, s{S_T1}")
    P(f"s_lshl_b32 s{S_T1}, s{S_TT}, 10")
    P(f"s_add_u32 s{S_KVOFF}, s{S_KVOFF}, s{S_T1}")
    P(f"s_lshl_b32 s{S_KVLDS}, s{S_W}, 10")
    P(f"s_add_u32 s{S_KVLDS}, s{S_KVLDS}, 0x{KV_RING:x}")
    A.update(vk=vk, vv=vv)
    A["S"] = [V.alloc("Sa", 16), V.alloc("Sb", 16)]
    A["O"] = [V.alloc("Oa", 16), V.alloc("Ob", 16)]
    A["fk"] = V.alloc("fk", 4); A["fv"] = [V.alloc("fv1", 4), V.alloc("fv2", 4)]
    A["q"] = V.alloc("qf", 8)
    return A


def kv_dma(P, l16, c):
    dma(P, l16, S_WS, f"s{S_T2}", (S_KVLDS, 8192 * (c & 1)), tag=f"kv{c}", mods=SC1, pre=[f"s_add_u32 s{S_T2}, s{S_KVOFF}, {2048*c}"])


def attention(P, A, l16, its, hook, prio, kvf=None, bb=1):
    S, O, fk, fv = A["S"], A["O"], A["fk"], A["fv"]
    SB = OPT.get("sb", 0)
    q = [A["q"], A["q"] + 4]
    def rdK(it): P(f"ds_read_b128 {vr(fk,4)}, v{A['vk']} offset:{((it>>1)&1)*8192 + (it&1)*1024}")
    def rdV(it, half):
        m = OPT.get("vmask", 1) and it > 0
        if m: P(f"s_mov_b64 exec, s[{S_VM}:{S_VM+1}]")
        P(f"ds_read_b128 {vr(fv[half],4)}, v{A['vv'][(it>>1)&1]} offset:{(it&1)*1024 + half*512}")
        if m: P("s_mov_b64 exec, -1")
    E = lambda x, i: P(f"v_exp_f32 v{S[x]+i}, v{S[x]+i}")
    def C(x, i):
        b = S[x] + (8 if i >= 4 else 0); k = i & 3
        P(f"v_cvt_pk_bf16_f32 v{b+k}, v{b+2*k}, v{b+2*k+1}")
    for it in its:
        if it == 0:
            if OPT.get("vmask", 1): P(f"s_mov_b32 s{S_VM}, 0xffff0000"); P(f"s_mov_b32 s{S_VM+1}, 0xffff0000")
            rdK(0); rdV(0, 0)
            hook(0, 0, "start")
            P(mfma(S[0], fk, q[0]))
        for x in range(2):
            H = lambda pos: hook(it, x, pos)
            E(x, 0); E(x, 1)
            if x == 0:
                if it > 0: P(mfma(O[1], fv[1], S[1] + 8, O[1]))
                rdV(it, 1)
            else:
                P(mfma(O[0], fv[1], S[0] + 8, O[0]))
            H("pv2")
            E(x, 2); E(x, 3); H("g1")
            E(x, 4); E(x, 5); H("g2")
            E(x, 6); E(x, 7)
            if bb:
                H("g3")
                for i in range(4): C(x, i)
            if x == 0: P(mfma(S[1], fk, q[1]))
            elif it < 31: P(mfma(S[0], fk, q[0]))
            H("qk")
            sig = (x == 0 and (it & 1) and it < 31)
            syn = sig or (x == 0 and hook(it, x, "sync?"))
            ORD = OPT.get("ord", 2) if syn else 0
            if bb:
                E(x, 8); E(x, 9); H("g4")
                E(x, 10); E(x, 11)
                if ORD == 2: P(mfma(O[x], fv[0], S[x], None if it == 0 else O[x]))
            else:
                for i in range(4): C(x, i)
                if ORD == 0: H("g3")
                E(x, 8); E(x, 9)
                if ORD == 2: P(mfma(O[x], fv[0], S[x], None if it == 0 else O[x])); H("g3")
            if syn:
                H("pre0")
                if sig: P.wait_tag(f"kv{(it>>1)+1}")
                H("pre")
                P.wait_lgkm_all()
                P("s_barrier")
            if ORD != 2: P(mfma(O[x], fv[0], S[x], None if it == 0 else O[x]))
            p = prio(it, x)
            if p is not None: P(f"s_setprio {p}")
            if x == 0:
                if it < 31: rdK(it + 1)
                if (it & 1) and (it >> 1) + 2 < 16: (kvf or (lambda c: kv_dma(P, l16, c)))((it >> 1) + 2)
                if syn: hook(it, 0, "chk")
            else:
                if it < 31: rdV(it + 1, 0)
            H("pv1")
            if not bb: E(x, 10); E(x, 11); H("g4")
            E(x, 12); E(x, 13); H("g5")
            E(x, 14); E(x, 15); H("g6")
            for i in range(4, 8): C(x, i)
        if it == 31: P(mfma(O[1], fv[1], S[1] + 8, O[1]))


def fin_dma_w1(P, vsl, st, slot, tag, i):
    srd, u0 = (S_WD, 8 * st) if st < 11 else (S_WO, 8 * (st - 11))
    dma(P, vsl, srd, f"s{S_T2}", (S_FL2, slot + 1024 * i), tag=tag, pre=[f"s_add_u32 s{S_T2}, s{S_FW}, 0x{(16*u0 + 8*i)*1024:x}"])


def fin_dma_w2(P, vsl, st, slot, tag, i, other):
    dma(P, vsl, S_WD, f"s{S_T2}", (S_FL2, (slot + 1024 * i - 8192 * other) & 0xffffffff), tag=tag,
        pre=[f"s_add_u32 s{S_T2}, s{S_FW}, 0x{((128*st + 8*i)*1024 - 65536*other) & 0xffffffff:x}"])


def fin_dma_b1(P, l16, st, slot, tag, t):
    P(f"s_add_u32 s{S_T2}, s{S_FB}, 0x{(t*118 + 8*st)*1024:x}")
    if st == 10:
        P(f"s_cmp_lt_u32 s{S_W}, 6")
        P(f"s_cselect_b32 s{S_T2}, s{S_T2}, 0x{OOB:x}")
    dma(P, l16, S_WS, f"s{S_T2}", (S_FL, slot + 16384 + 8192 * t), tag=tag, mods=SC1)


def kernel_F():
    P = Prog(); V = Regs(2, 255, "v"); SL = Slow()
    NP = OPT.get("np", 1)
    JIT = 16 - NP
    GPP = OPT.get("gpp", 2)
    UNI = OPT.get("uni", JIT + 2)
    HF = OPT.get("hf", UNI | 1)
    lane, l16, t0, t1, vsl = prologue_f(P, V, "LF_end")
    vz = V.alloc("vz")
    P(f"s_cmp_lg_u32 s{S_W}, 7")
    P("s_cbranch_scc1 LF_not7")
    if OPT.get("p7", 1): P("s_setprio 3")
    P(f"s_lshr_b32 s{S_T4}, s{S_J}, 1")
    P(f"s_lshl_b32 s{S_T0}, s{S_G}, 16")
    P(f"s_lshl_b32 s{S_T2}, s{S_T4}, 14")
    P(f"s_add_u32 s{S_T2}, s{S_T2}, s{S_T0}")
    P(f"s_mul_i32 m0, s{S_T4}, {16*X_STRIDE}")
    P(f"s_and_b32 s{S_T3}, s{S_J}, 1")
    P(f"s_mov_b32 s{S_T5}, 0")
    P("s_waitcnt lgkmcnt(0)")
    mk_srd(P, S_X, 4, SZ["x"])
    if OPT.get("u7", 1):
        P(f"s_sub_u32 s{S_X}, s{S_X}, 64")
        P(f"s_subb_u32 s{S_X+1}, s{S_X+1}, 0")
        P(f"s_mov_b32 s{S_X+2}, 0x{SZ['x'] + 64:x}")
        P(f"s_add_u32 s{S_T2}, s{S_T2}, 64")
        for g in range(4):
            for k in range(4):
                if k == 0:
                    if g: P(f"s_add_u32 m0, m0, {4*X_STRIDE}"); P(f"s_add_u32 s{S_T2}, s{S_T2}, {4096 + 48}")
                else: P(f"s_sub_u32 s{S_T2}, s{S_T2}, 16")
                P(f"buffer_load_dwordx4 v{l16}, s[{S_X}:{S_X+3}], s{S_T2} offen offset:{X_STRIDE*k} lds", tag="c")
    else:
        P("LF_ldx7:")
        P(f"buffer_load_dwordx4 v{l16}, s[{S_X}:{S_X+3}], s{S_T2} offen lds", tag="c")
        P(f"s_add_u32 m0, m0, {X_STRIDE}")
        P(f"s_add_u32 s{S_T2}, s{S_T2}, 1024")
        P(f"s_add_u32 s{S_T5}, s{S_T5}, 1")
        P(f"s_cmp_lg_u32 s{S_T5}, 16")
        P("s_cbranch_scc1 LF_ldx7")
    P(f"s_cmp_eq_u32 s{S_T3}, 0")
    P(f"s_cselect_b32 s{S_WKV}, s8, s10")
    P(f"s_cselect_b32 s{S_WKV+1}, s9, s11")
    P(f"s_and_b32 s{S_WKV+1}, s{S_WKV+1}, 0xffff")
    P(f"s_mov_b32 s{S_WKV+2}, 0x{SZ['wk']:x}")
    P(f"s_mov_b32 s{S_WKV+3}, 0x20000")
    P(f"s_mov_b32 m0, 0x{WKV_L:x}")
    P(f"s_mov_b32 s{S_T5}, 0")
    P("LF_ldw7:")
    for i in range(4):
        P(f"buffer_load_dwordx4 v{l16}, s[{S_WKV}:{S_WKV+3}], s{S_T5} offen offset:{1024*i} lds")
        P.I[-1].kind = "salu"
    P(f"s_add_u32 m0, m0, 4096")
    P(f"s_add_u32 s{S_T5}, s{S_T5}, 4096")
    P(f"s_cmp_lg_u32 s{S_T5}, 16384")
    P("s_cbranch_scc1 LF_ldw7")
    stamp(P, 15)
    P("s_barrier")
    P("LF_not7:")
    P("s_waitcnt lgkmcnt(0)")
    P(f"v_mov_b32 v{vz}, 0")
    if OPT.get("cnt"): P("s_mov_b32 s85, 0")
    mk_srd(P, S_WS, 28, SZ["ws"])
    mk_srd(P, S_DBG, 26, SZ["dbg"])
    vn = V.alloc("vn")
    P(f"s_or_b32 s{S_T0}, s2, s{S_W}")
    P(f"s_cmp_lg_u32 s{S_T0}, 0")
    P("s_cbranch_scc1 LF_non")
    P.cond_begin()
    P(f"s_memrealtime s[{S_EX}:{S_EX+1}]")
    P("s_waitcnt lgkmcnt(0)")
    P(f"s_mul_i32 s{S_EX+1}, s{S_EX+1}, 0x9e3779b1")
    if OPT.get("amp0") != 99: P(f"s_xor_b32 s{S_EX}, s{S_EX}, s{S_EX+1}")
    P(f"s_or_b32 s{S_EX}, s{S_EX}, 1")
    P(f"v_mov_b32 v{t0}, s{S_EX}")
    P("s_mov_b64 exec, 1")
    P(f"buffer_store_dword v{t0}, v{vz}, s[{S_DBG}:{S_DBG+3}], 0 offen sc1")
    P("s_mov_b64 exec, -1")
    P.cond_end()
    P("LF_non:")
    P_main = P; P = Prog()
    rest_srds(P)
    mk_srd(P, S_GW, 22, SZ["gw"])
    P(f"s_mov_b32 s{S_C1}, {hexf(2.0**120)}")
    A = attn_setup(P, V, lane, l16, t0, t1)
    qf = A["q"]; O = A["O"]; S = A["S"]
    A["sb"] = SplitBar(P, V, SL, lane, t0) if OPT.get("sb", 0) else type("X", (), dict(n=0))()
    vfl = V.alloc("vfl", 4)
    P(f"s_lshl_b32 s{S_T0}, s{S_HP}, 1")
    P(f"s_add_u32 s{S_T0}, s{S_T0}, s{S_KH}")
    P(f"s_lshl_b32 s{S_T1}, s{S_J}, 2")
    P(f"s_add_u32 s{S_T0}, s{S_T0}, s{S_T1}")
    P(f"s_mul_i32 s{S_T1}, s{S_TILE}, 118")
    P(f"s_add_u32 s{S_T0}, s{S_T0}, s{S_T1}")
    P(f"s_lshl_b32 s{S_T0}, s{S_T0}, 10")
    P(f"s_add_u32 s{S_OD}, s{S_T0}, 0x{WS_OH + 86*1024:x}")
    def poison():
        for r in range(4): P(f"v_mov_b32 v{O[0]+r}, -1")
        P(f"buffer_store_dwordx4 {vr(O[0],4)}, v{l16}, {WSR}, s{S_OD} offen sc1", tag="poison")
    P(f"s_lshr_b32 s{S_T0}, s{S_W}, 1")
    P(f"s_lshl_b32 s{S_T0}, s{S_T0}, 3")
    P(f"s_add_u32 s{S_T0}, s{S_T0}, s{S_T1}")
    P(f"s_lshl_b32 s{S_T0}, s{S_T0}, 10")
    P(f"s_add_u32 s{S_OL}, s{S_T0}, 0x{WS_OH + 86*1024:x}")
    P(f"s_lshl_b32 s{S_FP}, s{S_G}, 10")
    P(f"s_lshl_b32 s{S_FS}, s{S_J}, 5")
    P(f"s_add_u32 s{S_FS}, s{S_FS}, s{S_W}")
    P(f"s_lshl_b32 s{S_FS}, s{S_FS}, 2")
    P(f"s_add_u32 s{S_FS}, s{S_FS}, s{S_FP}")
    P(f"s_add_u32 s{S_FS}, s{S_FS}, 0x{FL_H:x}")
    P(f"s_add_u32 s{S_FP}, s{S_FP}, 0x{FL_H:x}")
    P(f"s_lshl_b32 s{S_FW}, s{S_W}, 14")
    P(f"s_lshl_b32 s{S_T1}, s{S_J}, 7")
    P(f"s_add_u32 s{S_FW}, s{S_FW}, s{S_T1}")
    P(f"s_lshl_b32 s{S_FL2}, s{S_W}, 11")
    P(f"s_mul_i32 s{S_U0}, s{S_J}, 11")
    P(f"s_min_u32 s{S_U0}, s{S_U0}, 76")
    P(f"s_cmp_ge_u32 s{S_J}, 6")
    P(f"s_cselect_b32 s{S_NU}, 10, 11")
    vxa = xfrag_addr(P, V, "vxa", lane, t0, S_TT)
    vq = V.alloc("vq")
    P(f"s_and_b32 s{S_T0}, s{S_W}, 3")
    P(f"s_lshl_b32 s{S_T1}, s{S_T0}, 11")
    P(f"s_add_u32 s{S_T1}, s{S_T1}, 0x{QSCR:x}")
    P(f"v_add_u32 v{vq}, s{S_T1}, v{l16}")
    COMMON = P.I; P = P_main
    def emit(L):
        for x in L: P(x.text, tag=x.tag)
    iw = next(i for i, x in enumerate(COMMON) if x.text.startswith(f"s_mov_b32 s{S_WM+3},")) + 1
    iu = next(i for i, x in enumerate(COMMON) if x.text.startswith(f"s_mul_i32 s{S_U0},"))
    C_EARLY = COMMON[:iw] + COMMON[iu:iu + 4]; C_LATE = COMMON[iw:iu] + COMMON[iu + 4:]
    acc = [[V.alloc(f"acc{i}{t}", 16) for t in range(2)] for i in range(3)]
    fx = [[V.alloc(f"fx{b}{t}", 4) for t in range(2)] for b in range(2)]
    fw = [[V.alloc(f"fw{b}{i}", 4) for i in range(3)] for b in range(2)]
    S_PFB = 19
    def capture(f):
        nonlocal P
        P0 = P; P = Prog(); f(); L = P.I; P = P0
        return L
    R = {}
    def f1():
        vtn = tr_slice_addr(P, V, "vtn", lane, t0, t1, SLOT[0], S_HP, 8)
        vpf = V.alloc("vpf"); vpd = V.alloc("vpd"); vpw = V.alloc("vpw")
        P(f"v_bfe_u32 v{t0}, v{lane}, 4, 1")
        P(f"v_lshrrev_b32 v{t1}, 5, v{lane}")
        P(f"v_lshl_add_u32 v{t0}, v{t1}, 7, v{t0}")
        P(f"v_mul_u32_u24 v{vpf}, 2752, v{t0}")
        P(f"v_and_b32 v{t0}, 15, v{lane}")
        P(f"v_lshl_add_u32 v{vpf}, v{t0}, 7, v{vpf}")
        P(f"v_cmp_gt_u32 vcc, 12, v{t0}")
        P(f"v_mov_b32 v{t1}, 0x{OOB:x}")
        P(f"v_cndmask_b32 v{vpf}, v{t1}, v{vpf}, vcc")
        P(f"s_lshr_b32 s{S_T0}, s2, 3")
        P(f"s_lshl_b32 s{S_T0}, s{S_T0}, 1")
        P(f"s_add_u32 s{S_T0}, s{S_T0}, s{S_HP}")
        P(f"s_mul_i32 s{S_T0}, s{S_T0}, {2*2752}")
        P(f"s_and_b32 s{S_T1}, s2, 1")
        P(f"s_mul_i32 s{S_T1}, s{S_T1}, {44*32}")
        P(f"s_add_u32 s{S_PFB}, s{S_T0}, s{S_T1}")
        R.update(vtn=vtn, vpf=vpf, vpd=vpd, vpw=vpw)
    def f2():
        vx0 = V.alloc("vx0")
        P(f"s_mul_i32 s{S_T0}, s{S_TT}, {32*X_STRIDE}")
        P(f"v_subrev_u32 v{vx0}, s{S_T0}, v{vxa}")
        P(f"s_lshl_b32 s{S_T4}, s{S_W}, 1")
        wtr = w_tr_addrs(P, V, lane, t0, t1, s_w=S_T4)
        R.update(vx0=vx0, wtr=wtr)
    def f3():
        P(f"s_mul_i32 s{S_T0}, s{S_W}, 3")
        P(f"s_mul_i32 s{S_T1}, s{S_G}, 236")
        P(f"s_add_u32 s{S_T1}, s{S_T1}, s{S_U0}")
        for i in range(3):
            P(f"s_add_u32 s{S_T2}, s{S_T0}, {i}")
            P(f"s_add_u32 s{SH[i]}, s{S_T1}, s{S_T2}")
            P(f"s_lshl_b32 s{SH[i]}, s{SH[i]}, 10")
            P(f"s_add_u32 s{SH[i]}, s{SH[i]}, 0x{WS_OH:x}")
            P(f"s_cmp_lt_u32 s{S_T2}, s{S_NU}")
            P(f"s_cselect_b32 s{SH[i]}, s{SH[i]}, 0x{OOB:x}")
    def f4():
        vpw = R["vpw"]
        S_PFS = S_WKV
        P(f"s_lshr_b32 s{S_T0}, s2, 3")
        P(f"s_lshl_b32 s{S_T0}, s{S_T0}, 2")
        P(f"s_add_u32 s{S_T0}, s{S_T0}, s{S_W}")
        P(f"s_cmp_lt_u32 s{S_T0}, 86")
        P(f"s_cselect_b32 s{S_PFS}, s{S_WD}, s{S_WO}")
        P(f"s_cselect_b32 s{S_PFS+1}, s{S_WD+1}, s{S_WO+1}")
        P(f"s_cselect_b32 s{S_PFS+2}, s{S_WD+2}, s{S_WO+2}")
        P(f"s_cselect_b32 s{S_T1}, 0, 86")
        P(f"s_mov_b32 s{S_PFS+3}, 0x20000")
        P(f"s_sub_u32 s{S_T0}, s{S_T0}, s{S_T1}")
        P(f"s_lshl_b32 s{S_T0}, s{S_T0}, 14")
        P(f"s_and_b32 s{S_T1}, s2, 1")
        P(f"s_lshl_b32 s{S_T1}, s{S_T1}, 9")
        P(f"s_add_u32 s{S_T0}, s{S_T0}, s{S_T1}")
        P(f"v_lshrrev_b32 v{t0}, 2, v{lane}")
        P(f"v_lshlrev_b32 v{t0}, 10, v{t0}")
        P(f"v_and_b32 v{t1}, 3, v{lane}")
        P(f"v_lshl_add_u32 v{t0}, v{t1}, 7, v{t0}")
        P(f"v_add_u32 v{vpw}, s{S_T0}, v{t0}")
    ix = next(i for i, x in enumerate(COMMON) if x.text.startswith(f"v_and_b32 v{t0}, 31, v{lane}"))
    ia = next(i for i, x in enumerate(COMMON) if x.text.startswith(f"s_mov_b32 s{S_C1},")) + 1
    io = next(i for i, x in enumerate(COMMON) if x.text.startswith(f"s_lshl_b32 s{S_T0}, s{S_HP}, 1"))
    ifl = next(i for i, x in enumerate(COMMON) if x.text.startswith(f"s_lshl_b32 s{S_FP},"))
    H_PRE = COMMON[ix:ix + 6] + COMMON[:iw] + capture(f1)
    H_MID = COMMON[ia:io] + COMMON[ix + 6:] + capture(f2) + COMMON[io:ifl]
    H_LATE = [COMMON[iw:iw + 8], COMMON[iw + 8:ia], COMMON[ifl:iu], COMMON[iu:iu + 4]]
    sh = capture(f3); H_LATE += [sh[:9], sh[9:15], sh[15:]]
    wp = capture(f4); H_LATE += [wp[:14], wp[14:]]
    vtn, vpf, vpd, vpw, vx0, wtr = (R[k] for k in ("vtn", "vpf", "vpd", "vpw", "vx0", "wtr"))
    S_PFS = S_WKV
    def pf(blk, half):
        P(f"s_add_u32 s{S_T4}, s{S_PFB}, {128*2752*blk}")
        if half: P("s_mov_b64 exec, 0xffffffff")
        P(f"buffer_load_dword v{vpd}, v{vpf}, s[{S_WM}:{S_WM+3}], s{S_T4} offen", tag="pf")
        P.I[-1].vw = set()
        if half: P("s_mov_b64 exec, -1")
    PF = OPT.get("pf", 1)
    KT = 192; vx16 = 240; vw16 = 241; vst = 242; S_K5, S_K6 = S_T5, S_T6
    P(f"s_cmp_lg_u32 s{S_W}, 7")
    P("s_cbranch_scc1 LF_not7b")
    P.cond_begin()
    P(f"s_lshr_b32 s{S_T0}, s{S_J}, 1")
    P(f"s_lshl_b32 s{S_T1}, s{S_T0}, 4")
    P(f"v_and_b32 v{t0}, 15, v{lane}")
    P(f"v_add_u32 v{t1}, s{S_T1}, v{t0}")
    P(f"v_mul_u32_u24 v{vx16}, {X_STRIDE}, v{t1}")
    P(f"v_lshrrev_b32 v{t1}, 4, v{lane}")
    P(f"v_lshl_add_u32 v{vx16}, v{t1}, 4, v{vx16}")
    P(f"v_lshlrev_b32 v{vw16}, 8, v{t1}")
    P(f"v_lshl_add_u32 v{vw16}, v{t0}, 3, v{vw16}")
    P(f"v_add_u32 v{vw16}, 0x{WKV_L:x}, v{vw16}")
    P(f"s_and_b32 s{S_K6}, s{S_J}, 1")
    P(f"s_cmp_eq_u32 s{S_K6}, 0")
    P(f"s_cselect_b32 s{S_T3}, 9, 8")
    P(f"s_cselect_b32 s{S_T4}, 8, 9")
    P(f"s_cselect_b32 s{S_K5}, 0x{WS_KF:x}, 0x{WS_VF:x}")
    P(f"v_lshlrev_b32 v{vst}, 4, v{t0}")
    P(f"v_lshrrev_b32 v{t0}, 1, v{t1}")
    P(f"v_lshl_add_u32 v{vst}, v{t0}, 3, v{vst}")
    P(f"v_and_b32 v{t0}, 1, v{t1}")
    P(f"v_lshlrev_b32 v{t0}, s{S_T3}, v{t0}")
    P(f"v_add_u32 v{vst}, v{vst}, v{t0}")
    P(f"s_and_b32 s{S_T1}, s{S_T0}, 1")
    P(f"s_lshl_b32 s{S_T1}, s{S_T1}, s{S_T4}")
    P(f"s_add_u32 s{S_K5}, s{S_K5}, s{S_T1}")
    P(f"s_lshr_b32 s{S_T0}, s{S_T0}, 1")
    P(f"s_lshl_b32 s{S_T1}, s{S_G}, 1")
    P(f"s_add_u32 s{S_T0}, s{S_T0}, s{S_T1}")
    P(f"s_lshl_b32 s{S_T0}, s{S_T0}, 10")
    P(f"s_add_u32 s{S_K5}, s{S_K5}, s{S_T0}")
    P("s_waitcnt vmcnt(0)")
    P(f"buffer_load_dword v{vn}, v{vz}, s[{S_DBG}:{S_DBG+3}], 0 offen sc1")
    def kv16(which):
        d = KT
        xb = [(KT+16) + 4 * i for i in range(4)]; wb = [(KT+32) + 4 * i for i in range(4)]
        def ld(ks):
            P(f"ds_read_b128 {vr(xb[ks%4],4)}, v{vx16} offset:{ks*64}")
            P(f"ds_read_b64_tr_b16 {vr(wb[ks%4],2)}, v{vw16} offset:{ks*1024}")
            P(f"ds_read_b64_tr_b16 {vr(wb[ks%4]+2,2)}, v{vw16} offset:{ks*1024+128}")
        for ks in range(3): ld(ks)
        for ks in range(16):
            a, b = (wb[ks%4], xb[ks%4]) if which == 0 else (xb[ks%4], wb[ks%4])
            P(f"v_mfma_f32_16x16x32_bf16 {vr(d,4)}, {vr(a,4)}, {vr(b,4)}, {vr(d,4) if ks else 0}")
            if ks + 3 < 16: ld(ks + 3)
        if which == 0:
            P(f"s_mov_b32 s{S_T0}, {hexf(QK_SCALE)}")
            for r in range(4): P(f"v_mul_f32 v{d+r}, s{S_T0}, v{d+r}")
    P(f"s_cmp_eq_u32 s{S_K6}, 1")
    P("s_cbranch_scc1 LF_vch")
    P.cond_begin(); kv16(0); P.cond_end()
    P("s_branch LF_kvj")
    P("LF_vch:")
    P.cond_begin(); kv16(1); P.cond_end()
    P("LF_kvj:")
    for r in range(2): P(f"v_cvt_pk_bf16_f32 v{KT+4+r}, v{KT+2*r}, v{KT+2*r+1}")
    P(f"buffer_store_dwordx2 {vr(KT+4,2)}, v{vst}, {WSR}, s{S_K5} offen sc1")
    FB2 = OPT.get("fb2", 0)
    def w7flag():
        P(f"s_lshl_b32 s{S_T0}, s{S_G}, 3")
        P(f"s_add_u32 s{S_T0}, s{S_T0}, s{S_J}")
        P(f"s_lshl_b32 s{S_T0}, s{S_T0}, 2")
        P(f"s_add_u32 s{S_T0}, s{S_T0}, 0x{FL_KV:x}")
        P("s_waitcnt vmcnt(0)")
        nonce_check(P, SL, vn, vz)
        flag_store(P, vz, t0, S_T0)
    if not FB2: w7flag()
    def pf7():
        P(f"v_lshrrev_b32 v{t0}, 4, v{lane}")
        P(f"v_mul_u32_u24 v{vx16}, 2752, v{t0}")
        P(f"v_and_b32 v{t0}, 15, v{lane}")
        P(f"v_lshl_add_u32 v{vx16}, v{t0}, 7, v{vx16}")
        P(f"v_cmp_gt_u32 vcc, 12, v{t0}")
        P(f"v_mov_b32 v{t1}, 0x{OOB:x}")
        P(f"v_cndmask_b32 v{vx16}, v{t1}, v{vx16}, vcc")
        P(f"s_lshr_b32 s{S_T0}, s2, 3")
        P(f"s_mul_i32 s{S_T0}, s{S_T0}, {4*2752}")
        P(f"s_and_b32 s{S_T1}, s2, 1")
        P(f"s_mul_i32 s{S_T1}, s{S_T1}, {44*32}")
        P(f"s_add_u32 s{S_T0}, s{S_T0}, s{S_T1}")
        for m in range(2):
            mk_srd(P, S_WKV, 16 + 2 * m, SZ["wg"])
            P(f"buffer_load_dword v{fx[0][0]+m}, v{vx16}, s[{S_WKV}:{S_WKV+3}], s{S_T0} offen")
    if OPT.get("pf7", 1) == 1: pf7()
    stamp(P, 1)
    P("s_barrier")
    stamp(P, 2)
    if OPT.get("pf7", 1) == 2: pf7()
    if FB2 == 1: w7flag()
    P("s_barrier")
    if FB2 == 2: w7flag()
    P.cond_end(nowait=True)
    P("s_branch LF_light")
    P("LF_not7b:")
    P(f"s_cmp_lg_u32 s{S_KH}, 0")
    P("s_cbranch_scc1 LF_l0")

    def sigstamp(it, k):
        if OPT.get("sig"):
            P(f"s_memtime s[98:99]"); P("s_waitcnt lgkmcnt(0)"); P(f"v_writelane_b32 v{vsig}, s98, {2*it+k}")
    vsig = V.alloc("vsig") if OPT.get("sig") else None

    P.cond_begin()
    emit(H_PRE)
    stamp(P, 15)
    P("s_barrier")
    stamp(P, 0)
    LOADS["f"]("h")
    stamp(P, 1)
    if PF & 4: pf(0, True)
    P.wait_tag("q")
    P("s_barrier")
    stamp(P, 2)
    if PF & 2: pf(0, True)
    QD = 6
    xb = [acc[1][0] + 4 * i for i in range(QD)]; wb = [acc[2][0] + 4 * i for i in range(QD)]
    assert acc[1][1] == acc[1][0] + 16 and acc[2][1] == acc[2][0] + 16
    def q_loads(ks):
        o = SLOT[ks // 12] - SLOT[0] + (ks % 12) * 2048
        P(f"ds_read_b128 {vr(xb[ks%QD],4)}, v{vxa} offset:{ks*32}")
        P(f"ds_read_b64_tr_b16 {vr(wb[ks%QD],2)}, v{vtn} offset:{o}")
        P(f"ds_read_b64_tr_b16 {vr(wb[ks%QD]+2,2)}, v{vtn} offset:{o+512}")
    for ks in range(QD - 1): q_loads(ks)
    for ks in range(32):
        P(mfma(acc[0][0], wb[ks%QD], xb[ks%QD], acc[0][0] if ks else None))
        if ks in (11, 23):
            stamp(P, 11 if ks == 11 else 13)
            P("s_barrier")
        if ks + QD - 1 in (12, 24): P("s_barrier")
        if ks + QD - 1 < 32: q_loads(ks + QD - 1)
        nf = -(-len(H_MID) // 28)
        emit(H_MID[ks * nf:(ks + 1) * nf])
        if ks == OPT.get("pk", 30) and OPT.get("kl", 2) != 2:
            P(f"s_mov_b32 s{S_T5}, 0x{FL_KV:x}")
            P(f"buffer_load_dword v{vn}, v{vz}, s[{S_DBG}:{S_DBG+3}], 0 offen sc1")
            P(flag_load(vfl, 4, l16, f"s{S_T5}"))
    for r in range(8): P(f"v_cvt_pk_bf16_f32 v{qf+r}, v{acc[0][0]+2*r}, v{acc[0][0]+2*r+1}")
    P(f"ds_write_b128 v{vq}, {vr(qf,4)}")
    P(f"ds_write_b128 v{vq}, {vr(qf+4,4)} offset:1024")
    def kv_check():
        nonce_check(P, SL, vn, vz)
        spin_check(P, SL, [flag_load(vfl, 4, l16, f"s{S_T5}")], flag_cmp(vfl, 4, t0), sleep=OPT.get("ksl", 6))
        kv_dma(P, l16, 0)
        dma(P, l16, S_WS, f"s{S_T2}", (S_KVLDS, 4096), tag="kv0", mods=SC1, pre=[f"s_add_u32 s{S_T2}, s{S_T2}, 32768"])
    if not OPT.get("kl", 2): kv_check()
    def gu_reads(ks):
        s, kk = ks // 2, ks % 2
        so = SLOT[s % 3] - SLOT[0] + kk * 6144
        L = [f"ds_read_b128 {vr(fx[ks%2][0],4)}, v{vx0} offset:{ks*32}"]
        for i in range(3):
            f = fw[ks % 2][i]
            L += [f"ds_read_b64_tr_b16 {vr(f,2)}, v{wtr[i]} offset:{so}", f"ds_read_b64_tr_b16 {vr(f+2,2)}, v{wtr[i]} offset:{so+1536}"]
            if i == 0: L.append(f"ds_read_b128 {vr(fx[ks%2][1],4)}, v{vx0} offset:{ks*32 + 32*X_STRIDE}")
        return L
    def gu_groups(ks, late=False):
        R = gu_reads(ks + 1) if ks < 31 else []
        if OPT.get("abl_hds") and ks >= 2 * NP - 1: R = []
        G = []
        for m in range(6):
            i, t = m // 2, m % 2
            mm = [mfma(acc[i][t], fw[ks % 2][i], fx[ks % 2][t], acc[i][t] if ks else None)]
            if OPT.get("abl_hm") and ks >= 2 * NP - 1: mm = []
            G.append(mm + (R[2 * m: 2 * m + 2] if not late else ([] if m < 3 else R[3 * (m - 3): 3 * (m - 3) + 3])))
        return G
    P.wait_lgkm_all()
    stamp(P, 14)
    P("s_barrier")
    stamp(P, 3)
    for x in gu_reads(0): P(x)
    if OPT.get("kl", 2) == 1: kv_check()
    if OPT.get("kl", 2) == 2:
        P(f"s_mov_b32 s{S_T5}, 0x{FL_KV:x}")
        P(f"buffer_load_dword v{vn}, v{vz}, s[{S_DBG}:{S_DBG+3}], 0 offen sc1")
        P(flag_load(vfl, 4, l16, f"s{S_T5}"))
    PFI = OPT.get("pfi", 0)
    for ks in range(2 * NP - 1):
        if ks % 2 == 1:
            P.wait_lgkm_all(); P("s_barrier")
        for g in gu_groups(ks):
            for x in g: P(x)
        if ks == 0 and OPT.get("kl", 2) == 2: kv_check()
    P.wait_tag("kv0"); P.wait_lgkm_all(); P("s_barrier")
    stamp(P, 4)
    gq = []
    tmp = fx[0][0]; cst = fx[1][0]
    assert fx[0][1] == fx[0][0] + 4
    gel = []
    def load_window(k):
        n = 2 * (NP + k) - 1
        assert not gq
        gq.extend(gu_groups(n, late=(k > 0 and OPT.get("sb", 0))))
        if n < 31: gq.extend(gu_groups(n + 1))
    def hookH(it, x, pos):
        if pos == "sync?": return 1 <= it <= JIT
        if pos == "pre0": sigstamp(it, 0); return
        if pos == "pre": sigstamp(it, 1); return
        if pos == "start": load_window(0); return
        if pos == "qk" and it == 3 and x == 0:
            for r in range(4): P(f"v_mov_b32 v{vfl+r}, -1")
            P(f"buffer_store_dwordx4 {vr(vfl,4)}, v{l16}, {WSR}, s{S_OD} offen sc1", tag="poison")
        if pos == "qk" and it == 4 and x == 0:
            P(f"buffer_store_dwordx4 {vr(vfl,4)}, v{l16}, {WSR}, s{S_OD} offen offset:1024 sc1", tag="poison")
        midprio(it, x, pos, PH)
        if pos in ("qk", "pv1") and H_LATE: emit(H_LATE.pop(0))
        if pos == "pv2" and x == 1 and PF & 1:
            if it == PFI: pf(1, True)
            if it == PFI + 2: pf(2, True)
            if it == PFI + 5: pf(3, True)
        if pos == "pv2" and x == 1 and OPT.get("wpf", 1) and it in (7, 8, 9, 10):
            k = it - 7
            P(f"s_cmp_lg_u32 s{S_W}, {k}")
            P(f"s_cbranch_scc1 LF_wp{k}")
            P(f"buffer_load_dword v{vpd}, v{vpw}, s[{S_PFS}:{S_PFS+3}], 0 offen")
            P.I[-1].kind = "salu"; P.I[-1].vw = set()
            P(f"LF_wp{k}:")
        if pos == "pv1" and x == 0 and 1 <= it <= JIT: load_window(it)
        if pos in ("g1", "g2", "g3", "g4", "g5", "g6"):
            cnt = int(str(OPT.get("gm", 111111))[int(pos[1]) - 1]) if gq else 1
            cnt = 0 if cnt == 9 else cnt
            if gq and cnt == 0: pass
            elif gq:
                for _ in range(cnt):
                    if gq:
                        for t in gq.pop(0): P(t)
                if not gq and it == JIT and x == 1:
                    L = [f"v_mov_b32 v{cst}, {hexf(GELU_C1)}", f"v_mov_b32 v{cst+1}, {hexf(GELU_C1)}",
                         f"v_mov_b32 v{cst+2}, {hexf(GELU_C2)}", f"v_mov_b32 v{cst+3}, {hexf(GELU_C2)}"]
                    k = 0
                    for i in range(3):
                        for t in range(2):
                            d = fw[k % 2][k // 2]; k += 1
                            L += gelu_tile_pk(acc[i][t], d, tmp, cst)
                            if t == 1: L.append(f"s_add_u32 s{SH[i]}, s{SH[i]}, {118*1024}")
                            L.append(f"buffer_store_dwordx4 {vr(d,4)}, v{l16}, {WSR}, s{SH[i]} offen sc1")
                    ns = (2 if OPT.get("bbh", 0) else 3) + 12 * (UNI - JIT - 1)
                    n = (len(L) + ns - 1) // ns
                    gel.extend(L[i:i + n] for i in range(0, len(L), n))
            elif gel:
                for t in gel.pop(0): P(t, tag="hst" if "store" in t else None)
    PM = OPT.get("pm", 9)
    PH = [int(c) for c in str(OPT.get("ph", 3321)).zfill(4)]; PL = [int(c) for c in str(OPT.get("pl", 3210)).zfill(4)]
    def prioH(it, x):
        if PM == 9: return PH[2 * x] if it < JIT else 3
        if PM == 1: return 3 if (it == 0 and x == 0) else None
        if PM == 3: return 3 - 2 * x
        if PM == 5: return (3 - 2 * x) if it < JIT else 3
        if PM == 6: return 3 if it >= JIT else None
        return None
    def prioL(it, x):
        if PM == 9: return PL[2 * x] if it < JIT else 0
        if PM in (2, 6): return 1 if (it == 0 and x == 0) else None
        if PM == 3: return 3 - 2 * x
        if PM == 5: return (3 - 2 * x) if it < JIT else 0
        return None
    def midprio(it, x, pos, T=None):
        if PM == 9 and pos == "pv2" and it <= JIT: P(f"s_setprio {T[1] if x else T[3]}")
        if PM in (3, 5) and pos == "pv2" and (PM == 3 or it <= JIT): P(f"s_setprio {2 * x}")
    attention(P, A, l16, range(0, UNI), hookH, prioH, kvf=lambda c: None, bb=OPT.get("bbh", 0))
    nsb = A["sb"].n; A["sb"].n = 0
    assert not gq and not gel, (len(gq), len(gel))
    P.cond_end(keep=True)
    P("s_branch LF_join")
    for n in ("vx0", "vtn", "wtr0", "wtr1", "wtr2", "vpf", "vpw"): V.release(n)

    P("LF_l0:")
    P.cond_begin()
    P("s_barrier")
    LOADS["f"]("l")
    stamp(P, 1)
    if OPT.get("t3e", 1):
        P(f"s_cmp_eq_u32 s{S_W}, 6")
        P("s_cbranch_scc1 LF_l6")
        P(f"s_add_u32 s{S_T3}, s{S_T3}, 24")
        wq_pieces(P, vsl, S_T3, 8, "LF_ldq3", 1)
        P("s_waitcnt vmcnt(16)")
        P("s_barrier")
        stamp(P, 2)
        P("s_waitcnt vmcnt(8)")
        P("s_branch LF_l6j")
        P("LF_l6:")
        P("s_waitcnt vmcnt(8)")
        P("s_barrier")
        stamp(P, 2)
        P("s_waitcnt vmcnt(0)")
        P("LF_l6j:")
        P("s_barrier")
    else:
        P("s_waitcnt vmcnt(8)")
        P("s_barrier")
        stamp(P, 2)
        P(f"s_cmp_eq_u32 s{S_W}, 6")
        P("s_cbranch_scc1 LF_l6")
        P(f"s_add_u32 s{S_T3}, s{S_T3}, 24")
        wq_pieces(P, vsl, S_T3, 8, "LF_ldq3", 1)
        P("s_waitcnt vmcnt(8)")
        P("s_branch LF_l6j")
        P("LF_l6:")
        P("s_waitcnt vmcnt(0)")
        P("LF_l6j:")
        P("s_barrier")
    P("LF_light:")
    if OPT.get("p7", 1): P("s_setprio 0")
    mk_srd(P, S_GW, 22, SZ["gw"])
    dma(P, l16, S_GW, "0", (None, GWL), tag="gw")
    emit(C_EARLY)

    pats = w_patterns(P, V, lane, t0, t1)
    P(f"s_lshl_b32 s{S_T0}, s{S_HP}, 1")
    P(f"s_mul_i32 s{S_WOFF}, s{S_T0}, {8*2752}")
    P(f"s_lshl_b32 s{S_T1}, s{S_U0}, 5")
    P(f"s_add_u32 s{S_WOFF}, s{S_WOFF}, s{S_T1}")
    P(f"s_mul_i32 s{S_WLDS}, s{S_T0}, 3072")
    P(f"s_mul_i32 s{S_T1}, s{S_TT}, {UP_OFF}")
    P(f"s_add_u32 s{S_WLDS}, s{S_WLDS}, s{S_T1}")
    inattn = dict(on=False)
    P(f"s_add_u32 s{S_WOFF}, s{S_WOFF}, 0")
    P(f"v_subrev_u32 v{pats[1]}, 1024, v{pats[1]}")
    P(f"v_subrev_u32 v{pats[2]}, 2048, v{pats[2]}")
    def w_dma1(s, k):
        g, i = k // 3, k % 3
        solo = not OPT.get("wm0", 1) or inattn["on"]
        if i == 0 or solo:
            dma(P, pats[i], S_WM, f"s{S_T3}", (S_WLDS, SLOT[s % 3] + 3072 * g), offset=1024 * i, tag=f"w{s}",
                pre=[f"s_add_u32 s{S_T3}, s{S_WOFF}, 0x{(32*s + 8*g)*2752:x}"] if i == 0 else None)
        else:
            P(f"buffer_load_dwordx4 v{pats[i]}, s[{S_WM}:{S_WM+3}], s{S_T3} offen offset:{1024*i} lds", tag=f"w{s}")
    def w_dma6(s):
        for k in range(6): w_dma1(s, k)
    stamp(P, 11)
    P("s_barrier")
    w_dma6(0)
    P("s_waitcnt vmcnt(6)"); P.I[-1].kind = "salu"
    P("s_barrier")
    h = len(C_LATE) // 4
    emit(C_LATE[:h])
    stamp(P, 13)
    P("s_barrier")
    w_dma6(1)
    emit(C_LATE[h:])
    vgw = acc[0][1]
    P(f"v_lshrrev_b32 v{t0}, 5, v{lane}")
    P(f"v_lshlrev_b32 v{vgw}, 4, v{t0}")
    P(f"s_lshl_b32 s{S_T0}, s{S_HP}, 9")
    P(f"v_add_u32 v{vxa}, s{S_T0}, v{vxa}")
    P(f"s_add_u32 s{S_T0}, s{S_T0}, 0x{GWL:x}")
    P(f"v_add_u32 v{vgw}, s{S_T0}, v{vgw}")
    P(f"s_lshl_b32 s{S_T0}, s{S_W}, 8")
    P(f"s_add_u32 s{S_T0}, s{S_T0}, 0x{ONES - 1024:x}")
    P(f"v_lshlrev_b32 v{t0}, 2, v{lane}")
    P(f"v_add_u32 v{t0}, s{S_T0}, v{t0}")
    P(f"v_mov_b32 v{t1}, 0x3f803f80")
    P(f"v_lshrrev_b32 v1, 2, v{lane}")
    P(f"v_and_b32 v1, 11, v1")
    P(f"v_cmp_eq_u32 vcc, 0, v1")
    P(f"v_cndmask_b32 v{t1}, 0, v{t1}, vcc")
    P(f"ds_write_b32 v{t0}, v{t1}")
    P(f"ds_write_b32 v{t0}, v{t1} offset:1024")
    za = acc[0][0]; zx = [acc[1][0] + 4 * i for i in range(4)]; zg = [acc[2][0] + 4 * i for i in range(4)]
    def zjob():
        for r in range(4): P(f"v_mov_b32 v{za+r}, 0")
        def zld(k):
            P(f"ds_read_b128 {vr(zx[k%4],4)}, v{vxa} offset:{k*32}")
            P(f"ds_read_b128 {vr(zg[k%4],4)}, v{vgw} offset:{k*32}")
        for k in range(3): zld(k)
        for k in range(16):
            for r in range(4): P(f"v_dot2c_f32_bf16 v{za+r}, v{zx[k%4]+r}, v{zg[k%4]+r}")
            if k + 3 < 16: zld(k + 3)
        P("s_nop 2")
        P(f"v_add_f32 v{za}, v{za}, v{za+1}")
        P(f"v_add_f32 v{za+2}, v{za+2}, v{za+3}")
        P(f"v_add_f32 v{za}, v{za}, v{za+2}")
        P(f"s_and_b32 s{S_T0}, s{S_W}, 3")
        P(f"s_lshl_b32 s{S_T0}, s{S_T0}, 8")
        P(f"s_add_u32 s{S_T0}, s{S_T0}, 0x{MISC:x}")
        P(f"v_lshlrev_b32 v{t0}, 2, v{lane}")
        P(f"v_add_u32 v{t0}, s{S_T0}, v{t0}")
        P(f"ds_write_b32 v{t0}, v{za}")
    P(f"s_mov_b32 s{S_T6}, 0x{FL_KV:x}")
    def kv_both(c):
        kv_dma(P, l16, c)
        dma(P, l16, S_WS, f"s{S_T2}", (S_KVLDS, (8192 * (c & 1) - 4096) & 0xffffffff), tag=f"kv{c}", mods=SC1, pre=[f"s_sub_u32 s{S_T2}, s{S_T2}, 32768"])
    def poll_issue():
        P(f"buffer_load_dword v{vn}, v{vz}, s[{S_DBG}:{S_DBG+3}], 0 offen sc1")
        P(flag_load(vfl, 4, l16, f"s{S_T6}"))
    if OPT.get("zpre"): P.wait_tag("gw"); zjob()
    for s in range(0, NP + 1):
        P.wait_tag(f"w{s}")
        P.wait_lgkm_all()
        if s == 0: stamp(P, 14)
        P("s_barrier")
        if s == 0:
            stamp(P, 3)
            P(f"ds_read_b128 {vr(qf,4)}, v{vq} offset:1024")
            P(f"ds_read_b128 {vr(qf+4,4)}, v{vq}")
        if s == NP: kv_both(1)
        if s < NP: w_dma6(s + 2)
        if s == 0:
            P(f"buffer_load_dword v{vn}, v{vz}, s[{S_DBG}:{S_DBG+3}], 0 offen sc1")
            if not OPT.get("zpre"): zjob()
    assert NP >= 1
    stamp(P, 4)
    dq = []; wq2 = []
    def hookL(it, x, pos):
        if pos == "sync?": return 1 <= it <= JIT
        if pos == "pre0": sigstamp(it, 0); return
        if pos == "pre":
            if NP + it < 16: P.wait_tag(f"w{NP+it}")
            sigstamp(it, 1); return
        if (pos == "start" or pos == "chk") and NP + it + 2 < 16:
            assert not dq
            for k in range(0 if OPT.get("abl_ldma") else 6): dq.append(lambda s=NP + it + 2, k=k: w_dma1(s, k))
        midprio(it, x, pos, PL)
        LW = OPT.get("lw", 4)
        if pos == "chk" and it == JIT:
            for b in range(LW):
                for o in range(2):
                    for i in range(2): wq2.append(lambda b=b, o=o, i=i: fin_dma_w2(P, vsl, b, b * 16384, f"fw{b}", i, o))
        if wq2 and pos not in ("pre", "pre0", "chk", "start"):
            wq2.pop(0)()
            if it == UNI - 1 and x == 1 and pos == "g6":
                while wq2: wq2.pop(0)()
        LS = [("pv2", "qk", "pv1"), ("g1", "g3", "g5"), ("g2", "g4", "g6"), ("pv1", "g4", "g5", "g6", "pv2", "g1", "g2"), ("pv2", "pv1")][OPT.get("ls", 3)]
        if pos in LS and dq:
            dq.pop(0)()
            if OPT.get("ls", 3) == 4 and dq and len(dq) % 3 != 0: dq.pop(0)(); (dq.pop(0)() if pos == "pv1" and len(dq) % 3 else None)
    attention(P, A, l16, range(0, UNI), hookL, prioL, kvf=kv_both, bb=OPT.get("bbl", 0))
    assert A["sb"].n == nsb
    assert not dq
    P.cond_end(keep=True)
    P("LF_join:")
    P.join()
    for n in ["wpat0", "wpat1", "wpat2", "vxa", "vq"] + [f"acc{i}{t}" for i in range(3) for t in range(2)] + \
             [f"fx{b}{t}" for b in range(2) for t in range(2)] + [f"fw{b}{i}" for b in range(2) for i in range(3)]: V.release(n)
    stamp(P, 5)

    facc = V.alloc("facc", 16); facc1 = V.alloc("facc1", 16); fa = V.alloc("ffa", 8)
    NB = OPT.get("nb", 6)
    hb = [V.alloc(f"hb{i}", 4) for i in range(NB)]; fb = hb[0]
    vl4 = V.alloc("vl4"); vg = V.alloc("vg"); zt = V.alloc("zt", 2)
    va0 = tr_slice_addr(P, V, "fa0", lane, t0, t1, 0, S_KH, 4)
    vA = [[va0, V.alloc("fa0h")], [V.alloc("fa1"), V.alloc("fa1h")]]
    P(f"s_lshl_b32 s{S_T1}, s{S_HP}, 5")
    P(f"v_xor_b32 v{va0}, s{S_T1}, v{va0}")
    P(f"s_lshr_b32 s{S_T0}, s{S_W}, 1")
    P(f"s_lshl_b32 s{S_T1}, s{S_T0}, 11")
    P(f"v_add_u32 v{va0}, s{S_T1}, v{va0}")
    P(f"v_xor_b32 v{vA[1][0]}, 64, v{va0}")
    P(f"v_add_u32 v{vA[0][1]}, 0x10000, v{va0}")
    P(f"v_add_u32 v{vA[1][1]}, 0x10000, v{vA[1][0]}")
    P(f"s_mul_i32 s{S_FB}, s{S_TILE}, 118")
    P(f"s_add_u32 s{S_FB}, s{S_FB}, s{S_T0}")
    P(f"s_lshl_b32 s{S_FB}, s{S_FB}, 10")
    P(f"s_add_u32 s{S_FB}, s{S_FB}, 0x{WS_OH:x}")
    P(f"v_lshlrev_b32 v{vl4}, 2, v{lane}")
    vhf = V.alloc("vhf")
    P(f"v_lshrrev_b32 v{t0}, 3, v{lane}")
    P(f"v_mul_u32_u24 v{t0}, 96, v{t0}")
    P(f"v_add_u32 v{vhf}, v{t0}, v{vl4}")
    P(f"s_lshl_b32 s{S_T0}, s{S_TT}, 8")
    P(f"s_add_u32 s{S_T0}, s{S_T0}, 0x{MISC:x}")
    P(f"v_add_u32 v{t0}, s{S_T0}, v{vl4}")
    P(f"ds_read_b32 v{zt}, v{t0}")
    P(f"ds_read_b32 v{zt+1}, v{t0} offset:512")
    P(f"v_add_f32 v{zt}, v{zt}, v{zt+1}")
    P(f"v_mov_b32 v{zt+1}, v{zt}")
    P(f"v_permlane32_swap_b32 v{zt}, v{zt+1}")
    P(f"v_add_f32 v{zt}, v{zt}, v{zt+1}")
    P(f"v_mul_f32 v{t0}, {hexf(-LOG2E)}, v{zt}")
    P(f"v_exp_f32 v{t0}, v{t0}")
    P(f"v_add_f32 v{t0}, 1.0, v{t0}")
    P(f"v_rcp_f32 v{vg}, v{t0}")
    V.release("zt")
    vw = [V.alloc(f"vw{i}") for i in range(3)]; vrd = V.alloc("vrd"); vo = V.alloc("vo")
    def sbase(dst, w):
        P(f"s_mul_i32 s{S_T1}, s{w}, 6144")
        P(f"v_add_u32 v{dst}, s{S_T1}, v{l16}")
    sbase(vrd, S_W)
    for b in range(1, 4):
        P(f"s_xor_b32 s{S_T0}, s{S_W}, {b << 1}")
        sbase(vw[b - 1], S_T0)
    P(f"v_and_b32 v{vo}, 31, v{lane}")
    P(f"v_lshlrev_b32 v{vo}, 10, v{vo}")
    P(f"v_lshrrev_b32 v{t1}, 5, v{lane}")
    P(f"v_lshl_add_u32 v{vo}, v{t1}, 4, v{vo}")
    P(f"s_lshl_b32 s{S_OO}, s{S_TILE}, 15")
    P(f"s_lshl_b32 s{S_T1}, s{S_J}, 7")
    P(f"s_add_u32 s{S_OO}, s{S_OO}, s{S_T1}")
    P(f"s_lshl_b32 s{S_T1}, s{S_KH}, 6")
    P(f"s_add_u32 s{S_OO}, s{S_OO}, s{S_T1}")
    P(f"s_lshl_b32 s{S_T1}, s{S_HP}, 5")
    P(f"s_add_u32 s{S_OO}, s{S_OO}, s{S_T1}")
    vp = V.alloc("vp"); vpa = V.alloc("vpa")
    P(f"v_lshlrev_b32 v{vpa}, 10, v{lane}")
    vt0 = V.alloc("vt0"); vt1 = V.alloc("vt1")
    P(f"s_lshr_b32 s{S_T1}, s{S_W}, 1")
    P(f"s_mul_i32 s{S_T1}, s{S_T1}, {16384 - 2048}")
    P(f"s_add_u32 s{S_T1}, s{S_T1}, {3*16384}")
    P(f"v_add_u32 v{vt0}, s{S_T1}, v{vA[0][0]}")
    P(f"v_add_u32 v{vt1}, s{S_T1}, v{vA[1][0]}")
    va = V.alloc("cva"); vb = V.alloc("cvb"); fb = V.alloc("cvon")
    P(f"s_mul_i32 s{S_T0}, s{S_W}, 3072")
    P(f"s_add_u32 s{S_T0}, s{S_T0}, 114688")
    P(f"v_add_u32 v{va}, s{S_T0}, v{l16}")
    P(f"s_xor_b32 s{S_T0}, s{S_W}, 4")
    P(f"s_mul_i32 s{S_T0}, s{S_T0}, 3072")
    P(f"s_add_u32 s{S_T0}, s{S_T0}, 114688")
    P(f"v_add_u32 v{vb}, s{S_T0}, v{l16}")
    P(f"s_add_u32 s{S_OL2}, s{S_OL}, 4096")
    BSLOT = lambda b: ((b % 8) if b < 11 else (b - 8)) * 16384
    def a_reads(r, d):
        o = (4 * r % 64) * 2048; hi = o >> 16; o &= 0xffff
        assert r // 2 in vis, (r, vis)
        rd_done[r // 2] = rd_done.get(r // 2, 0) + 1
        if OPT.get("abl_uds"): return
        P(f"ds_read_b64_tr_b16 {vr(fa+4*d,2)}, v{vA[d][hi]} offset:{o}")
        P(f"ds_read_b64_tr_b16 {vr(fa+4*d+2,2)}, v{vA[d][hi]} offset:{o+1024}")
    def h_load(r):
        if OPT.get("abl_uh"): return
        P(f"s_add_u32 s{S_T2}, s{S_FB}, {4096*r}")
        if r == 21:
            P(f"s_cmp_lt_u32 s{S_W}, 4")
            P(f"s_cselect_b32 s{S_T2}, s{S_T2}, 0x{OOB:x}")
        P(f"buffer_load_dwordx4 {vr(hb[r%NB],4)}, v{l16}, {WSR}, s{S_T2} offen sc1")
    pend = {}
    LW = OPT.get("lw", 4)
    dq = []; vis = set(); issued = {}; rd_done = {}; nxt = dict(b=LW, r=0, d=0, pre=False)
    def qW(b):
        def f(i):
            if not OPT.get("abl_uw"): fin_dma_w1(P, vsl, b, BSLOT(b), f"fw{b}", i)
            issued[b] = issued.get(b, 0) + 1
        for i in range(2): dq.append(lambda i=i: f(i))
    CH = OPT.get("ch", HF + 4); R0 = OPT.get("r0", 2 * (CH + 1))
    DBL = OPT.get("dbl", 64)
    def mstep():
        r, d = nxt["r"], nxt["d"]
        if r >= 22: return
        if not nxt["pre"]:
            a_reads(0, 0); a_reads(0, 1); nxt["pre"] = True; return
        if not OPT.get("abl_um"): P(mfma([facc, facc1][d], fa + 4 * d, hb[r % NB], [facc, facc1][d] if r else None))
        if r + 1 < 22: a_reads(r + 1, d)
        if d == 1 and r + NB < 22: dq.insert(0, lambda r=r: h_load(r + NB))
        nxt["d"] = 1 - d; nxt["r"] = r + d
    US = [("g1", "g4"), ("g2", "g5"), ("g1", "g5"), ("g2", "g6"), ("g3", "g6")][OPT.get("us", 3)]
    VS = [("pv2", "qk"), ("qk", "pv1"), ("pv2", "pv1"), ("g3", "g6"), ("qk", "g6")][OPT.get("vs", 0)]
    def hookU(it, x, pos):
        sig = (x == 0 and (it & 1)); ph = 2 * it + x
        if pos == "sync?": return False
        if pos == "pre0": sigstamp(it, 0); return
        if pos == "pre":
            if it == HF: P.wait_vm_all()
            need = [b for b in issued if issued[b] == 2 and b not in vis and (it == 29 or b <= (max(0, ph + 8 - R0) * (2 if ph + 6 >= DBL else 1)) // 2) and b <= 10]
            if need: P.wait_tag(*[f"fw{b}" for b in need])
            if it == HF: need = need + list(range(LW))
            pend["vis"] = need; pend["free"] = {b for b in rd_done if rd_done[b] >= 4}
            sigstamp(it, 1); return
        if pos == "pv1" and sig and it == HF and OPT.get("ef", -1) < 0:
            nonce_check(P, SL, vn, vz)
            flag_store(P, vz, t0, S_FS)
        if pos == "chk":
            vis.update(pend["vis"])
            while it >= HF and nxt["b"] < 15:
                b = nxt["b"]; prev = {8: 0, 9: 1, 10: 2, 11: 3, 12: 4, 13: 5, 14: 6}.get(b)
                if prev is not None and prev not in pend["free"]: break
                qW(b); nxt["b"] += 1
            return
        PP = OPT.get("pp", 2)
        if (PP == 0 and pos == "pv2" and x == 0 and it == CH - 1) or (PP == 1 and pos == "g1" and x == 1 and it == CH - 1) or \
           (PP == 2 and pos == "pv1" and x == 1 and it == CH - 1): P(flag_load(vfl, 1, vhf, f"s{S_FP}"))
        EF = OPT.get("ef", -1)
        if ph == EF and pos == "g4":
            P.wait_vm_all(); nonce_check(P, SL, vn, vz); flag_store(P, vz, t0, S_FS)
        if pos == "pv2" and x == 0 and it == CH:
            spin_check(P, SL, [flag_load(vfl, 1, vhf, f"s{S_FP}")], flag_cmp(vfl, 1, t0), sleep=OPT.get("hsl", 4))
            for r in range(NB): dq.insert(r, lambda r=r: h_load(r))
        elif dq and (pos in VS or (pos in ("g2", "g5") and it in (CH, CH + 1)) or (pos == "g5" and OPT.get("d3"))): dq.pop(0)()
        if nxt["r"] >= 22 - OPT.get("tr", 5) and nxt["d"] == 0: pass
        elif (pos in US and ph >= R0) or (pos == US[1] and ph == R0 - 1) or (pos in ("g3", "g6") and ph >= DBL): mstep()
        if pos == "g6" and it == 31 and x == 1:
            assert nxt["b"] == 15, nxt
            print("rounds left for tail:", 22 - nxt["r"])
    def prioU(it, x):
        if not OPT.get("prio", 1): return None
        k = 2 * ((it + 1) & 1) + x
        return int(str(OPT.get("pu", 3210)).zfill(4)[k])
    attention(P, A, l16, range(UNI, 32), hookU, prioU)
    assert not dq
    stamp(P, 6)
    if OPT.get("sig"):
        P(f"s_lshl_b32 s98, s2, 11")
        P(f"s_lshl_b32 s99, s{S_W}, 8")
        P(f"s_add_u32 s98, s98, s99")
        P(f"s_add_u32 s98, s98, 0x{WS_STAMP + (1<<20):x}")
        P(f"buffer_store_dword v{vsig}, v{vl4}, {WSR}, s98 offen")
    P("s_setprio 0")
    P(f"v_mov_b32 v{O[1]+7}, v{O[1]}")
    for i in range(3): P(f"ds_write_b128 v{va}, {vr(O[1]+4+4*i,4)} offset:{1024*i}")
    P.wait_tag(*[f"fw{b}" for b in range(8, 15)]); P.wait_lgkm_all()
    P("s_barrier")
    vis.update(range(11))
    for i in range(3): P(f"ds_read_b128 {vr(O[1]+4+4*i,4)}, v{vb} offset:{1024*i}")
    P(f"v_add_f32 v{O[0]}, v{O[0]}, v{O[1]+7}")
    for r in range(8, 16): P(f"v_add_f32 v{O[0]+r}, v{O[0]+r}, v{O[1]+r}")
    P(f"v_mov_b32 v{t1}, 0x207")
    P(f"v_cmp_nle_f32 vcc, {hexf(2.0**-90)}, v{O[0]}")
    P(f"v_cmp_nge_f32 s[{S_PM}:{S_PM+1}], {'s' + str(S_T0)}, v{O[0]}".replace(f"s{S_T0}", f"s{S_C1}"))
    P(f"s_or_b64 vcc, vcc, s[{S_PM}:{S_PM+1}]")
    P(f"v_add3_u32 v{t0}, v{O[0]+8}, 0, 0".replace("v_add3_u32", "v_add_f32").replace(", 0, 0", f", v{O[0]+9}"))
    for r in range(10, 16): P(f"v_add_f32 v{t0}, v{t0}, v{O[0]+r}")
    P(f"v_cmp_class_f32 s[{S_PM}:{S_PM+1}], v{t0}, v{t1}")
    P(f"s_or_b64 vcc, vcc, s[{S_PM}:{S_PM+1}]")
    if OPT.get("forcefb"): P("s_mov_b64 vcc, -1")
    P("s_cmp_lg_u64 vcc, 0")
    P("s_cbranch_scc1 LF_fb")
    P("LF_fbr:")
    P(f"v_rcp_f32 v{t0}, v{O[0]}")
    P(f"v_mul_f32 v{t0}, v{t0}, v{vg}")
    for r in range(8, 16): P(f"v_mul_f32 v{O[0]+r}, v{O[0]+r}, v{t0}")
    for r in range(4): P(f"v_cvt_pk_bf16_f32 v{O[1]+r}, v{O[0]+8+2*r}, v{O[0]+9+2*r}")
    for r in range(4): P(f"v_min_u32 v{O[1]+r}, 0xfffffffe, v{O[1]+r}")
    P(f"buffer_store_dwordx4 {vr(O[1],4)}, v{l16}, {WSR}, s{S_OD} offen sc1", tag="ost")
    P(f"s_add_u32 s{S_FS}, s{S_FS}, 32768")
    flag_store(P, vz, t0, S_FS)
    P(f"s_lshr_b32 s{S_T1}, s{S_W}, 1")
    P(f"s_lshl_b32 s{S_T1}, s{S_T1}, 8")
    P(f"s_add_u32 s{S_FP}, s{S_FP}, s{S_T1}")
    P(f"s_add_u32 s{S_FP}, s{S_FP}, 32768")
    stamp(P, 7)
    K4, V8, ON, CM = A["fk"], A["fv"][0], fb, O[1]
    assert A["fv"][1] == V8 + 4
    nl = "\n    "
    fbk = f"""LF_fb:
    s_waitcnt vmcnt(0) lgkmcnt(0)
    v_mov_b32 v{t0}, 0xff800000
    s_mov_b32 s{S_T0}, 0x{WS_KF:x}
LF_fb1:
    buffer_load_dwordx4 {vr(K4,4)}, v{l16}, {WSR}, s{S_T0} offen sc1
    s_waitcnt vmcnt(0)
    {mfma(S[0], K4, qf)}
    s_nop 15
    {nl.join(f"v_max3_f32 v{t0}, v{S[0]+2*r}, v{S[0]+2*r+1}, v{t0}" for r in range(8))}
    s_add_u32 s{S_T0}, s{S_T0}, 1024
    s_cmp_lt_u32 s{S_T0}, 0x{WS_KF + 65536:x}
    s_cbranch_scc1 LF_fb1
    v_mov_b32 v{t1}, v{t0}
    s_nop 1
    v_permlane32_swap_b32 v{t0}, v{t1}
    s_nop 1
    v_max_f32 v{t0}, v{t0}, v{t1}
    {nl.join(f"v_sub_f32 v{CM+r}, 0, v{t0}" for r in range(16))}
    {nl.join(f"v_mov_b32 v{O[0]+r}, 0" for r in range(16))}
    v_lshrrev_b32 v{t0}, 5, v{lane}
    v_lshlrev_b32 v{t0}, 8, v{t0}
    v_and_b32 v{t1}, 15, v{lane}
    v_lshl_add_u32 v{t0}, v{t1}, 4, v{t0}
    v_and_b32 v{t1}, 16, v{lane}
    v_cmp_eq_u32 vcc, 0, v{t1}
    v_mov_b32 v{t1}, 0x{OOB:x}
    s_nop 1
    v_cndmask_b32 v{t0}, v{t0}, v{t1}, vcc
    v_and_b32 v{t1}, 27, v{lane}
    v_cmp_eq_u32 vcc, 0, v{t1}
    v_mov_b32 v{ON}, 0x3f803f80
    s_nop 1
    v_cndmask_b32 v{ON}, 0, v{ON}, vcc
    s_mov_b32 s{S_T0}, 0x{WS_KF:x}
LF_fb2:
    s_add_u32 s{S_T1}, s{S_T0}, 0x{WS_VF - WS_KF:x}
    buffer_load_dwordx4 {vr(K4,4)}, v{l16}, {WSR}, s{S_T0} offen sc1
    buffer_load_dwordx4 {vr(V8,4)}, v{t0}, {WSR}, s{S_T1} offen sc1
    buffer_load_dwordx4 {vr(V8+4,4)}, v{t0}, {WSR}, s{S_T1} offen offset:512 sc1
    s_waitcnt vmcnt(0)
    {mfma(S[0], K4, qf, CM)}
    {nl.join(f"v_or_b32 v{V8+r}, v{V8+r}, v{ON}" for r in range(8))}
    s_nop 7
    {nl.join(f"v_exp_f32 v{S[0]+r}, v{S[0]+r}" for r in range(16))}
    s_nop 1
    {nl.join(f"v_cvt_pk_bf16_f32 v{S[1]+r}, v{S[0]+2*r}, v{S[0]+2*r+1}" for r in range(8))}
    s_nop 1
    {mfma(O[0], V8, S[1], O[0])}
    {mfma(O[0], V8+4, S[1]+4, O[0])}
    s_add_u32 s{S_T0}, s{S_T0}, 1024
    s_cmp_lt_u32 s{S_T0}, 0x{WS_KF + 65536:x}
    s_cbranch_scc1 LF_fb2
    s_nop 15
    s_branch LF_fbr
"""
    SL.add(fbk)
    for n in ("Sa", "Sb", "Oa", "qf", "fk", "fv1", "fv2"): V.release(n)
    ob = V.alloc("ob", 32); wa = [V.alloc(f"wa{u}", 8) for u in range(8)]
    def oloads(g): return [f"buffer_load_dwordx4 {vr(ob+16*g+4*u,4)}, v{l16}, {WSR}, s{[S_OL,S_OL2][g]} offen offset:{1024*u} sc1" for u in range(4)]
    def ocheck(g):
        b = ob + 16 * g
        L = [f"v_max3_u32 v{t0}, v{b}, v{b+1}, v{b+2}"]
        for k in range(3, 15, 2): L.append(f"v_max3_u32 v{t0}, v{b+k}, v{b+k+1}, v{t0}")
        L += [f"v_max_u32 v{t0}, v{b+15}, v{t0}", f"v_cmp_eq_u32 vcc, -1, v{t0}"]
        return L
    fa2 = V.alloc("ffa2", 8)
    wr = []
    for u in range(8):
        for d, v in ((0, vt0), (1, vt1)):
            wr.append([f"ds_read_b64_tr_b16 {vr(wa[u]+4*d,2)}, v{v} offset:{u*2048}", f"ds_read_b64_tr_b16 {vr(wa[u]+4*d+2,2)}, v{v} offset:{u*2048+1024}"])
    r0 = nxt["r"]; assert nxt["d"] == 0 and not dq
    def tr_reads(r, d):
        o = (4 * r % 64) * 2048; hi = o >> 16; o &= 0xffff; f = [fa, fa2][(r - r0) % 2] + 4 * d
        P(f"ds_read_b64_tr_b16 {vr(f,2)}, v{vA[d][hi]} offset:{o}")
        P(f"ds_read_b64_tr_b16 {vr(f+2,2)}, v{vA[d][hi]} offset:{o+1024}")
    if r0 + 1 < 22: tr_reads(r0 + 1, 0); tr_reads(r0 + 1, 1)
    OL = min(r0 + OPT.get("ol", 99), 22)
    for r in range(r0, 22):
        if OPT.get("ofp", 0) == 2 and r == 21:
            for x in ["s_mov_b64 exec, 0xffff", flag_load(vp, 1, vhf, f"s{S_FP}"), "s_mov_b64 exec, -1"]: P(x)
        if r == OL:
            for g in range(2):
                for x in oloads(g): P(x)
        for d in range(2):
            P(mfma([facc, facc1][d], [fa, fa2][(r - r0) % 2] + 4 * d, hb[r % NB], [facc, facc1][d]))
            if r + 2 < 22: tr_reads(r + 2, d)
            elif wr:
                for g in wr[:4]:
                    for x in g: P(x)
                del wr[:4]
    for g in wr:
        for x in g: P(x)
    assert 22 - r0 <= NB and r0 >= 16
    fl = ["s_mov_b64 exec, 0xffff", flag_load(vp, 1, vhf, f"s{S_FP}"), "s_mov_b64 exec, -1"]
    fc = ["s_mov_b64 exec, 0xffff", f"v_cmp_ne_u32 vcc, s{S_NONCE}, v{vp}", "s_mov_b64 exec, -1"]
    if OPT.get("ofp", 0) == 0:
        for x in fl: P(x)
    P.wait_lgkm_all(); P("s_barrier")
    if OPT.get("ofp", 0) == 1:
        for x in fl: P(x)
    spin_check(P, SL, fl, fc, sleep=OPT.get("fsl", 1))
    if OL == 22:
        for g in range(2):
            for x in oloads(g): P(x)
    P(f"v_sub_f32 v{t1}, 1.0, v{vg}")
    P(f"v_mov_b32 v{t0}, v{t1}")
    assert t1 == t0 + 1 and t0 % 2 == 0
    for r in range(0, 16, 2): P(f"v_pk_mul_f32 v[{facc+r}:{facc+r+1}], v[{facc+r}:{facc+r+1}], v[{t0}:{t1}]")
    for r in range(0, 16, 2): P(f"v_pk_mul_f32 v[{facc1+r}:{facc1+r+1}], v[{facc1+r}:{facc1+r+1}], v[{t0}:{t1}]")
    if not OPT.get("oab", 1): P.wait_lgkm_all(); P("s_barrier")
    stamp(P, 8)
    nl = "\n    "
    PROBE = lambda g: f"""s_mov_b64 exec, 0xf
    buffer_load_dword v{vp}, v{vpa}, {WSR}, s{[S_OL,S_OL2][g]} offen offset:1020 sc1
    s_waitcnt vmcnt(0)
    v_cmp_eq_u32 vcc, -1, v{vp}
    s_mov_b64 exec, -1"""
    for g in range(2):
        k = SL.n; SL.n += 1
        for x in ocheck(g): P(x)
        P(f"s_cbranch_vccz LR{k}")
        raw(P, f"""{cnt(1+k)}    s_mov_b32 s{S_T7}, 0
LS{k}_p:
    {f"s_sleep {OPT.get('osl', 1)}" if OPT.get('osl', 1) else "s_nop 0"}
    {"" if OPT.get("odir") else PROBE(g)}
    s_add_u32 s{S_T7}, s{S_T7}, 1
    s_cmp_ge_u32 s{S_T7}, 0x{SPIN_MAX:x}
    s_cbranch_scc1 LR{k}
    {"" if OPT.get("odir") else f"s_cbranch_vccnz LS{k}_p"}
    {nl.join(oloads(g))}
    s_waitcnt vmcnt(0)
    {nl.join(ocheck(g))}
    s_cbranch_vccnz LS{k}_p
""")
        P(f"LR{k}:")
        for u in range(4 * g, 4 * g + 4):
            P(mfma(facc1, wa[u] + 4, ob + 4 * u, facc1))
    W1 = [f"ds_write_b128 v{vw[b-1]}, {vr(src+4*i,4)} offset:{2048*(b-1) + 1024*i}" for b, src in ((2, facc1), (3, facc1 + 8)) for i in range(2)]
    for u in range(8):
        P(mfma(facc, wa[u], ob + 4 * u, facc))
        if u >= 3 and W1:
            if u == 3: P("s_nop 7")
            P(W1.pop(0))
    stamp(P, 9)
    for b, src in ((1, facc + 8),):
        for i in range(2): P(f"ds_write_b128 v{vw[b-1]}, {vr(src+4*i,4)} offset:{2048*(b-1) + 1024*i}")
    P.wait_lgkm_all()
    P("s_barrier")
    for i in range(6): P(f"ds_read_b128 {vr(ob+4*i,4)}, v{vrd} offset:{1024*i}")
    for b in range(3):
        for r in range(8): P(f"v_add_f32 v{facc+r}, v{facc+r}, v{ob+8*b+r}")
    for r in range(4): P(f"v_cvt_pk_bf16_f32 v{facc1+r}, v{facc+2*r}, v{facc+2*r+1}")
    P(f"v_permlane32_swap_b32 v{facc1}, v{facc1+2}")
    P(f"v_permlane32_swap_b32 v{facc1+1}, v{facc1+3}")
    P(f"buffer_store_dwordx4 {vr(facc1,4)}, v{vo}, s[{S_OUT}:{S_OUT+3}], s{S_OO} offen")
    if OPT.get("cnt"):
        P(f"v_lshrrev_b32 v1, v{lane}, s85".replace(f"v{lane}, s85", f"v{lane}, v0") if False else f"v_mov_b32 v0, s85")
        P(f"v_lshrrev_b32 v1, v{lane}, v0")
        P(f"v_and_b32 v1, 1, v1")
        P(f"v_lshlrev_b32 v0, 2, v{lane}")
        P("s_mov_b64 exec, 0xfe")
        P(f"buffer_atomic_add v1, v0, s[{S_DBG}:{S_DBG+3}], 0 offen")
    if STAMP["on"]:
        P.wait_vm_all(); stamp(P, 10); stamp_dump(P, lane)
        if OPT.get("amp") is not None:
            q, q0 = OPT["amp"], OPT.get("amp0", 12)
            if OPT.get("ampwg") is not None:
                P(f"s_cmp_lg_u32 s2, {OPT['ampwg']}"); P("s_cbranch_scc1 LF_end")
            P(f"s_cmp_lg_u32 s{S_W}, {OPT.get('ampw', 0)}"); P("s_cbranch_scc1 LF_end")
            P(f"v_readlane_b32 s96, v{VSTAMP}, {q}")
            if q0 == 99: P(f"s_mov_b32 s97, s{S_NONCE}")
            else: P(f"v_readlane_b32 s97, v{VSTAMP}, {q0}")
            P("s_nop 4")
            P("s_sub_u32 s96, s96, s97")
            if q0 == 99: P("s_add_u32 s96, s96, 200")
            P("s_min_u32 s96, s96, 3000")
            P("s_mul_i32 s96, s96, 10")
            P("s_memrealtime s[98:99]"); P("s_waitcnt lgkmcnt(0)")
            P("s_add_u32 s96, s96, s98")
            P("LF_amp:")
            P("s_sleep 8")
            P("s_memrealtime s[98:99]"); P("s_waitcnt lgkmcnt(0)")
            P("s_sub_u32 s97, s98, s96")
            P("s_cmp_lt_i32 s97, 0")
            P("s_cbranch_scc1 LF_amp")
        if OPT.get("dbgst") is not None:
            P(f"s_cmp_lg_u32 s2, {OPT['dbgst']}")
            P("s_cbranch_scc1 LF_end")
            P(f"s_cmp_lg_u32 s{S_W}, {OPT.get('dbgw', 0)}")
            P("s_cbranch_scc1 LF_end")
            P(f"v_subrev_u32 v{VSTAMP}, s100, v{VSTAMP}")
            P("s_mov_b64 exec, 0x7fff")
            P(f"buffer_store_dword v{VSTAMP}, v1, s[{S_DBG}:{S_DBG+3}], 0 offen offset:4")
    P("LF_end:")
    P("s_endpgm")
    name = NAME + "_kernel"
    body, I = finalize(P)
    txt = f".text\n.globl {name}\n.p2align 8\n.type {name},@function\n{name}:\n" + body + "".join(SL.txt) + "LF_last:\n    s_endpgm\n"
    vg_ = 256 if STAMP["on"] else max(V.hi, 8)
    txt += KD.format(name=name, vgpr=vg_, sgpr=102 if STAMP['on'] else 96, accum=(vg_ + 3) // 4 * 4)
    return txt, I, vg_


if __name__ == "__main__":
    out = sys.argv[1]
    STAMP["on"] = "stamp" in sys.argv or "mst" in sys.argv
    if "mst" in sys.argv: STAMP["min"] = (4, 6, 10)
    if "hamp" in sys.argv: STAMP["on"] = True; STAMP["min"] = (10,); OPT["amp"] = 10
    for a in sys.argv[2:]:
        if "=" in a: k, v = a.split("="); OPT[k] = int(v)
        else: OPT[a] = True
    import asmlib; asmlib.MERGE_D = OPT.get("md", 9)
    t, I, vg_ = kernel_F()
    DOC = """; One fused kernel, 256 workgroups x 8 waves, one per CU (all co-resident).  Workgroup = (64-token group G, slice j).
;  start : K/V projection of 16 tokens (wave 7) -> d_ws + flag ; Q projection of 4 heads (waves 0-3) ; gate logit
;          true row maximum (LF_fb) whenever that could have overflowed or underflowed.
;  end   : o exchanged through d_ws (words preset to all-ones mean 'not written yet'), output projection, gated mix.
;  Hand-offs: write-through stores, vmcnt, then flags tagged with a per-launch nonce published through d_debug[0].
"""
    hdr = HEADER + DOC + f"; @launch grid=(256,1,1) block=(512,1,1) lds={LDS_BYTES}\n" + '.amdgcn_target "amdgcn-amd-amdhsa--gfx950"\n'
    open(out, "w").write(hdr + t)
    import subprocess
    r = subprocess.run(["clang", "-x", "assembler", "-target", "amdgcn-amd-amdhsa", "-mcpu=gfx950", "-c", out, "-o", "_chk.o"], capture_output=True, text=True)
    if r.returncode: print("ASM ERROR", r.stderr[:500])
    print("insts", len(I), "vgpr", vg_, "nops", sum(1 for x in I if x.kind == "nop"))
```

```python
import sys, re
from parts import *
OPT = {}
S_NONCE = 93
S_HP, S_KH = 30, 31
SH = [4, 5, 6]
S_FS, S_FP, S_OD, S_OL = 7, 8, 9, 10
S_FW, S_FB, S_FL, S_FL2 = 12, 13, 14, 15
S_OO, S_OL2 = 11, 18
S_VM = 28
S_PM = 16
FL_KV, FL_H = WS_FLAG, WS_FLAG + 8192
WKV_L = KV_RING
QSCR = KV_RING + 8192
FSLOT = [0, 32768, 65536, 98304]
WO_CH = [98304, 114688, 0, 32768]
SC1 = " sc1"
SPIN_MAX = 1 << 22
WSR = f"s[{S_WS}:{S_WS+3}]"


def cnt(k):
    if not OPT.get("cnt"): return ""
    return f"    s_bitset1_b32 s85, {k}\n"


def raw(P, text):
    for line in text.split("\n"):
        line = line.strip()
        if not line: continue
        P(line)
        x = P.I[-1]
        if x.kind not in ("label",):
            x.kind = "salu"; x.vr = set(); x.vw = set(); x.sr = set(); x.sw = set(); x.mf = None; x.meta = dict(skip=True)


class Slow:
    def __init__(self): self.txt = []; self.n = 0
    def add(self, t): self.txt.append(t)


LOADS = {}
def wq_pieces(P, vsl, s_first, n, label, rot):
    P(f"s_and_b32 s{S_T6}, s{S_G}, 7")
    if rot > 1: P(f"s_mul_i32 s{S_T6}, s{S_T6}, {rot}")
    P(f"s_add_u32 s{S_T5}, s{S_T6}, {n}")
    P(f"s_lshl_b32 s{S_T7}, s{S_J}, 7")
    P(f"{label}:")
    P(f"s_and_b32 s{S_T4}, s{S_T6}, {n-1}")
    P(f"s_add_u32 s{S_T4}, s{S_T4}, s{s_first}")
    P(f"s_mul_i32 s{S_T0}, s{S_T4}, 171")
    P(f"s_lshr_b32 s{S_T0}, s{S_T0}, 12")
    P(f"s_lshl_b32 s{S_T1}, s{S_T4}, 2")
    P(f"s_add_u32 s{S_T0}, s{S_T0}, s{S_T1}")
    P(f"s_lshl_b32 s{S_T0}, s{S_T0}, 8")
    P(f"s_add_u32 m0, s{S_T0}, 0x{SLOT[0]:x}")
    P(f"s_lshl_b32 s{S_T2}, s{S_T4}, 13")
    P(f"s_add_u32 s{S_T2}, s{S_T2}, s{S_T7}")
    P(f"s_add_u32 s{S_T6}, s{S_T6}, 1")
    P(f"buffer_load_dwordx4 v{vsl}, s[{S_WQ}:{S_WQ+3}], s{S_T2} offen lds")
    P.I[-1].kind = "salu"
    P(f"s_cmp_lg_u32 s{S_T6}, s{S_T5}")
    P(f"s_cbranch_scc1 {label}")


def emit_loads(P, l16, vsl, sfx):
    if sfx == "h":
        P(f"s_lshr_b32 s{S_T4}, s{S_J}, 1")
        P(f"s_lshl_b32 s{S_T4}, s{S_T4}, 4")
        P(f"s_mul_i32 s{S_T1}, s{S_W}, 12")
        P(f"s_add_u32 s{S_T4}, s{S_T4}, s{S_T1}")
        P(f"s_add_u32 s{S_T4}, s{S_T4}, 16")
        P(f"s_lshl_b32 s{S_T0}, s{S_G}, 16")
        P(f"s_and_b32 s{S_T6}, s{S_J}, 3")
        P(f"s_mul_i32 s{S_T6}, s{S_T6}, 3")
        P(f"s_mov_b32 s{S_T5}, 12")
        mk_srd(P, S_X, 4, SZ["x"])
        P("LF_ldx1:")
        P(f"s_add_u32 s{S_T1}, s{S_T6}, s{S_T4}")
        P(f"s_and_b32 s{S_T1}, s{S_T1}, 63")
        P(f"s_mul_i32 m0, s{S_T1}, {X_STRIDE}")
        P(f"s_lshl_b32 s{S_T2}, s{S_T1}, 10")
        P(f"s_add_u32 s{S_T2}, s{S_T2}, s{S_T0}")
        P(f"s_add_u32 s{S_T6}, s{S_T6}, 1")
        P(f"s_cmp_eq_u32 s{S_T6}, 12")
        P(f"s_cselect_b32 s{S_T6}, 0, s{S_T6}")
        P(f"buffer_load_dwordx4 v{l16}, s[{S_X}:{S_X+3}], s{S_T2} offen lds", tag="q")
        P(f"s_sub_u32 s{S_T5}, s{S_T5}, 1")
        P(f"s_cmp_lg_u32 s{S_T5}, 0")
        P("s_cbranch_scc1 LF_ldx1")
    else:
        mk_srd(P, S_WQ, 6, SZ["wq"])
        P(f"s_and_b32 s{S_T3}, s{S_W}, 3")
        P(f"s_lshl_b32 s{S_T3}, s{S_T3}, 3")
        wq_pieces(P, vsl, S_T3, 8, "LF_ldq1", 1)
        P(f"s_add_u32 s{S_T3}, s{S_T3}, 24")
        wq_pieces(P, vsl, S_T3, 8, "LF_ldq2", 1)


def prologue_f(P, V, endlabel):
    if STAMP["on"]: P("s_memrealtime s[100:101]")
    P("s_cmp_ge_u32 s2, 256")
    P(f"s_cbranch_scc1 {endlabel}")
    P("s_load_dwordx16 s[4:19], s[0:1], 0")
    P("s_load_dwordx8 s[20:27], s[0:1], 64")
    P("s_load_dwordx2 s[28:29], s[0:1], 96")
    lane = V.alloc("lane"); l16 = V.alloc("l16")
    if OPT.get("cpf", 1):
        c = V.alloc("cpf", 2)
        P(f"s_getpc_b64 s[{S_EX}:{S_EX+1}]")
        P("LF_pc0:")
        if OPT.get("cpf", 1) == 1:
            P(f"s_lshr_b32 s{S_T3}, s2, 3")
            P(f"s_lshl_b32 s{S_T3}, s{S_T3}, 11")
            P(f"v_lshrrev_b32 v{c}, 5, v0")
            P(f"v_lshlrev_b32 v{c}, 7, v{c}")
            P(f"v_add_u32 v{c}, s{S_T3}, v{c}")
            P(f"v_min_u32 v{c}, LF_last-LF_pc0, v{c}")
            P("s_mov_b32 exec_lo, 1"); P("s_mov_b32 exec_hi, 1")
        else:
            P(f"s_lshr_b32 s{S_T3}, s2, 3")
            P(f"s_and_b32 s{S_T3}, s{S_T3}, 15")
            P(f"s_lshl_b32 s{S_T3}, s{S_T3}, 12")
            P(f"v_lshrrev_b32 v{c}, 4, v0")
            P(f"v_lshlrev_b32 v{c}, 7, v{c}")
            P(f"v_add_u32 v{c}, s{S_T3}, v{c}")
            P(f"v_min_u32 v{c}, LF_last-LF_pc0, v{c}")
            P("s_mov_b32 exec_lo, 0x00010001")
            P("s_mov_b32 exec_hi, 0x00010001")
        P(f"global_load_dword v{c}, v{c}, s[{S_EX}:{S_EX+1}]", tag="cpf")
        P("s_mov_b64 exec, -1")
    P(f"v_lshrrev_b32 v1, 6, v0")
    P(f"v_and_b32 v{lane}, 63, v0")
    P(f"v_readfirstlane_b32 s{S_W}, v1")
    P(f"v_lshlrev_b32 v{l16}, 4, v{lane}")
    P(f"s_lshr_b32 s{S_T0}, s2, 3")
    if OPT.get("jrot"): P(f"s_add_u32 s{S_J}, s{S_T0}, {OPT['jrot']}"); P(f"s_and_b32 s{S_J}, s{S_J}, 3")
    else: P(f"s_and_b32 s{S_J}, s{S_T0}, 3")
    P(f"s_and_b32 s{S_T1}, s2, 1")
    P(f"s_lshl_b32 s{S_T1}, s{S_T1}, 2")
    P(f"s_add_u32 s{S_J}, s{S_J}, s{S_T1}")
    P(f"s_and_b32 s{S_G}, s2, 6")
    P(f"s_lshl_b32 s{S_G}, s{S_G}, 2")
    P(f"s_lshr_b32 s{S_T0}, s{S_T0}, 2")
    P(f"s_add_u32 s{S_G}, s{S_G}, s{S_T0}")
    t0 = V.alloc("t0"); t1 = V.alloc("t1")
    vsl = slice_pattern(P, V, lane, t0)
    LOADS["f"] = lambda sfx: emit_loads(P, l16, vsl, sfx)
    P(f"s_and_b32 s{S_TT}, s{S_W}, 1")
    P(f"s_lshl_b32 s{S_TILE}, s{S_G}, 1")
    P(f"s_add_u32 s{S_TILE}, s{S_TILE}, s{S_TT}")
    P(f"s_lshr_b32 s{S_HP}, s{S_W}, 1")
    P(f"s_and_b32 s{S_HP}, s{S_HP}, 1")
    P(f"s_lshr_b32 s{S_KH}, s{S_W}, 2")
    assert all((p * 171) >> 12 == p // 24 for p in range(64)) and SLOT_SZ == 3 * 8192 + 256
    return lane, l16, t0, t1, vsl


def rest_srds(P):
    P(f"s_cmp_eq_u32 s{S_TT}, 0")
    P(f"s_cselect_b32 s{S_WM}, s16, s18")
    P(f"s_cselect_b32 s{S_WM+1}, s17, s19")
    P(f"s_and_b32 s{S_WM+1}, s{S_WM+1}, 0xffff")
    P(f"s_mov_b32 s{S_WM+2}, 0x{SZ['wg']:x}")
    P(f"s_mov_b32 s{S_WM+3}, 0x20000")
    mk_srd(P, S_OUT, 24, SZ["out"])
    mk_srd(P, S_WO, 12, SZ["wo"])
    mk_srd(P, S_WD, 20, SZ["wd"])


def nonce_check(P, SL, vn, vz):
    k = SL.n; SL.n += 1
    P(f"v_readfirstlane_b32 s{S_NONCE}, v{vn}")
    P(f"s_cmp_lg_u32 s{S_NONCE}, 0")
    P(f"s_cbranch_scc1 LR{k}")
    raw(P, f"""{cnt(1+k)}    s_mov_b32 s{S_T7}, 0
LS{k}_l:
    s_sleep 2
    buffer_load_dword v{vn}, v{vz}, s[{S_DBG}:{S_DBG+3}], 0 offen sc1
    s_waitcnt vmcnt(0)
    v_readfirstlane_b32 s{S_NONCE}, v{vn}
    s_add_u32 s{S_T7}, s{S_T7}, 1
    s_cmp_ge_u32 s{S_T7}, 0x{SPIN_MAX:x}
    s_cbranch_scc1 LR{k}
    s_cmp_eq_u32 s{S_NONCE}, 0
    s_cbranch_scc1 LS{k}_l
""")
    P(f"LR{k}:")
    P("s_nop 0")


def flag_load(vf, n, vaddr, soff):
    op = {1: "buffer_load_dword", 4: "buffer_load_dwordx4"}[n]
    return f"{op} {vr(vf,n)}, v{vaddr}, {WSR}, {soff} offen sc1"


def flag_cmp(vf, n, t):
    L = [f"v_xor_b32 v{t}, s{S_NONCE}, v{vf}"]
    for i in range(1, n):
        L += [f"v_xor_b32 v{vf+i}, s{S_NONCE}, v{vf+i}", f"v_or_b32 v{t}, v{t}, v{vf+i}"]
    L += [f"v_cmp_ne_u32 vcc, 0, v{t}"]
    return L


def spin_check(P, SL, loads, cmps, sleep=1):
    k = SL.n; SL.n += 1
    for x in cmps: P(x)
    P(f"s_cbranch_vccz LR{k}")
    nl = "\n    "
    raw(P, f"""{cnt(1+k)}    s_mov_b32 s{S_T7}, 0
LS{k}_l:
    {f"s_sleep {sleep}" if sleep else "s_nop 0"}
    {nl.join(loads)}
    s_waitcnt vmcnt(0)
    {nl.join(cmps)}
    s_add_u32 s{S_T7}, s{S_T7}, 1
    s_cmp_ge_u32 s{S_T7}, 0x{SPIN_MAX:x}
    s_cbranch_scc1 LR{k}
    s_cbranch_vccnz LS{k}_l
""")
    P(f"LR{k}:")


def flag_store(P, vz, t, soff):
    P(f"v_mov_b32 v{t}, s{S_NONCE}")
    P("s_mov_b64 exec, 1")
    P(f"buffer_store_dword v{t}, v{vz}, {WSR}, s{soff} offen sc1", tag="flag")
    P("s_mov_b64 exec, -1")


PROG = MISC + 1024
class SplitBar:
    def __init__(self, P, V, SL, lane, t0):
        self.P, self.SL, self.n = P, SL, 0
        self.va = V.alloc("sba"); self.vr = V.alloc("sbr"); self.one = V.alloc("sb1"); self.vg = V.alloc("sbg")
        P(f"s_lshl_b32 s{S_T0}, s{S_W}, 8")
        P(f"s_add_u32 s{S_T0}, s{S_T0}, 0x{PROG:x}")
        P(f"v_lshlrev_b32 v{t0}, 2, v{lane}")
        P(f"v_add_u32 v{self.va}, s{S_T0}, v{t0}")
        P(f"v_and_b32 v{t0}, 7, v{lane}")
        P(f"v_mul_u32_u24 v{t0}, 260, v{t0}")
        P(f"v_add_u32 v{self.vr}, 0x{PROG:x}, v{t0}")
        P(f"v_mov_b32 v{self.one}, 0")
        P(f"ds_write_b32 v{self.va}, v{self.one}")
        P(f"v_mov_b32 v{self.one}, 1")
    def arrive(self):
        self.n += 1
        self.P(f"ds_add_u32 v{self.va}, v{self.one}")
    def peek(self): self.P(f"ds_read_b32 v{self.vg}, v{self.vr}")
    def check(self):
        k = self.SL.n; self.SL.n += 1
        self.P(f"v_cmp_gt_u32 vcc, {self.n}, v{self.vg}")
        self.P(f"s_cbranch_vccz LR{k}")
        self.P(f"LS{k}:")
        for t in ([f"s_sleep {OPT['ssl']}"] if OPT.get("ssl") else []) + [f"ds_read_b32 v{self.vg}, v{self.vr}", "s_waitcnt lgkmcnt(0)", f"v_cmp_gt_u32 vcc, {self.n}, v{self.vg}", f"s_cbranch_vccnz LS{k}"]:
            self.P(t); self.P.I[-1].kind = "salu"; self.P.I[-1].vw = set(); self.P.I[-1].vr = set()
        self.P(f"LR{k}:")


def attn_setup(P, V, lane, l16, t0, t1):
    A = {}
    P(f"s_lshl_b32 s{S_T1}, s{S_KH}, 12")
    vk = V.alloc("vk"); vv = [V.alloc("vv0"), V.alloc("vv1")]
    P(f"s_add_u32 s{S_T1}, s{S_T1}, 0x{KV_RING:x}")
    P(f"v_add_u32 v{vk}, s{S_T1}, v{l16}")
    P(f"v_lshrrev_b32 v{t0}, 5, v{lane}")
    P(f"v_lshlrev_b32 v{t0}, 8, v{t0}")
    P(f"v_and_b32 v{t1}, 15, v{lane}")
    P(f"v_lshl_add_u32 v{t0}, v{t1}, 4, v{t0}")
    P(f"v_and_b32 v{t1}, 16, v{lane}")
    P(f"v_cmp_eq_u32 vcc, 0, v{t1}")
    P(f"s_add_u32 s{S_T1}, s{S_T1}, 2048")
    for s in range(2):
        P(f"v_mov_b32 v{t1}, s{S_T1}")
        P(f"v_add_u32 v{t1}, {8192*s}, v{t1}")
        P(f"v_mov_b32 v{vv[s]}, 0x{ONES:x}")
        P(f"v_cndmask_b32 v{vv[s]}, v{t1}, v{vv[s]}, vcc")
        P(f"v_add_u32 v{vv[s]}, v{vv[s]}, v{t0}")
    P(f"s_lshl_b32 s{S_KVOFF}, s{S_KH}, 15")
    P(f"s_lshl_b32 s{S_T1}, s{S_HP}, 16")
    P(f"s_add_u32 s{S_KVOFF}, s{S_KVOFF}, s{S_T1}")
    P(f"s_lshl_b32 s{S_T1}, s{S_TT}, 10")
    P(f"s_add_u32 s{S_KVOFF}, s{S_KVOFF}, s{S_T1}")
    P(f"s_lshl_b32 s{S_KVLDS}, s{S_W}, 10")
    P(f"s_add_u32 s{S_KVLDS}, s{S_KVLDS}, 0x{KV_RING:x}")
    A.update(vk=vk, vv=vv)
    A["S"] = [V.alloc("Sa", 16), V.alloc("Sb", 16)]
    A["O"] = [V.alloc("Oa", 16), V.alloc("Ob", 16)]
    A["fk"] = V.alloc("fk", 4); A["fv"] = [V.alloc("fv1", 4), V.alloc("fv2", 4)]
    A["q"] = V.alloc("qf", 8)
    return A


def kv_dma(P, l16, c):
    dma(P, l16, S_WS, f"s{S_T2}", (S_KVLDS, 8192 * (c & 1)), tag=f"kv{c}", mods=SC1, pre=[f"s_add_u32 s{S_T2}, s{S_KVOFF}, {2048*c}"])


def attention(P, A, l16, its, hook, prio, kvf=None, bb=1):
    S, O, fk, fv = A["S"], A["O"], A["fk"], A["fv"]
    SB = OPT.get("sb", 0)
    q = [A["q"], A["q"] + 4]
    def rdK(it): P(f"ds_read_b128 {vr(fk,4)}, v{A['vk']} offset:{((it>>1)&1)*8192 + (it&1)*1024}")
    def rdV(it, half):
        m = OPT.get("vmask", 1) and it > 0
        if m: P(f"s_mov_b64 exec, s[{S_VM}:{S_VM+1}]")
        P(f"ds_read_b128 {vr(fv[half],4)}, v{A['vv'][(it>>1)&1]} offset:{(it&1)*1024 + half*512}")
        if m: P("s_mov_b64 exec, -1")
    E = lambda x, i: P(f"v_exp_f32 v{S[x]+i}, v{S[x]+i}")
    def C(x, i):
        b = S[x] + (8 if i >= 4 else 0); k = i & 3
        P(f"v_cvt_pk_bf16_f32 v{b+k}, v{b+2*k}, v{b+2*k+1}")
    for it in its:
        if it == 0:
            if OPT.get("vmask", 1): P(f"s_mov_b32 s{S_VM}, 0xffff0000"); P(f"s_mov_b32 s{S_VM+1}, 0xffff0000")
            rdK(0); rdV(0, 0)
            hook(0, 0, "start")
            P(mfma(S[0], fk, q[0]))
        for x in range(2):
            H = lambda pos: hook(it, x, pos)
            E(x, 0); E(x, 1)
            if x == 0:
                if it > 0: P(mfma(O[1], fv[1], S[1] + 8, O[1]))
                rdV(it, 1)
            else:
                P(mfma(O[0], fv[1], S[0] + 8, O[0]))
            H("pv2")
            E(x, 2); E(x, 3); H("g1")
            E(x, 4); E(x, 5); H("g2")
            E(x, 6); E(x, 7)
            if bb:
                H("g3")
                for i in range(4): C(x, i)
            if x == 0: P(mfma(S[1], fk, q[1]))
            elif it < 31: P(mfma(S[0], fk, q[0]))
            H("qk")
            sig = (x == 0 and (it & 1) and it < 31)
            syn = sig or (x == 0 and hook(it, x, "sync?"))
            ORD = OPT.get("ord", 2) if syn else 0
            if bb:
                E(x, 8); E(x, 9); H("g4")
                E(x, 10); E(x, 11)
                if ORD == 2: P(mfma(O[x], fv[0], S[x], None if it == 0 else O[x]))
            else:
                for i in range(4): C(x, i)
                if ORD == 0: H("g3")
                E(x, 8); E(x, 9)
                if ORD == 2: P(mfma(O[x], fv[0], S[x], None if it == 0 else O[x])); H("g3")
            if syn:
                H("pre0")
                if sig: P.wait_tag(f"kv{(it>>1)+1}")
                H("pre")
                P.wait_lgkm_all()
                P("s_barrier")
            if ORD != 2: P(mfma(O[x], fv[0], S[x], None if it == 0 else O[x]))
            p = prio(it, x)
            if p is not None: P(f"s_setprio {p}")
            if x == 0:
                if it < 31: rdK(it + 1)
                if (it & 1) and (it >> 1) + 2 < 16: (kvf or (lambda c: kv_dma(P, l16, c)))((it >> 1) + 2)
                if syn: hook(it, 0, "chk")
            else:
                if it < 31: rdV(it + 1, 0)
            H("pv1")
            if not bb: E(x, 10); E(x, 11); H("g4")
            E(x, 12); E(x, 13); H("g5")
            E(x, 14); E(x, 15); H("g6")
            for i in range(4, 8): C(x, i)
        if it == 31: P(mfma(O[1], fv[1], S[1] + 8, O[1]))


def fin_dma_w1(P, vsl, st, slot, tag, i):
    srd, u0 = (S_WD, 8 * st) if st < 11 else (S_WO, 8 * (st - 11))
    dma(P, vsl, srd, f"s{S_T2}", (S_FL2, slot + 1024 * i), tag=tag, pre=[f"s_add_u32 s{S_T2}, s{S_FW}, 0x{(16*u0 + 8*i)*1024:x}"])


def fin_dma_w2(P, vsl, st, slot, tag, i, other):
    dma(P, vsl, S_WD, f"s{S_T2}", (S_FL2, (slot + 1024 * i - 8192 * other) & 0xffffffff), tag=tag,
        pre=[f"s_add_u32 s{S_T2}, s{S_FW}, 0x{((128*st + 8*i)*1024 - 65536*other) & 0xffffffff:x}"])


def fin_dma_b1(P, l16, st, slot, tag, t):
    P(f"s_add_u32 s{S_T2}, s{S_FB}, 0x{(t*118 + 8*st)*1024:x}")
    if st == 10:
        P(f"s_cmp_lt_u32 s{S_W}, 6")
        P(f"s_cselect_b32 s{S_T2}, s{S_T2}, 0x{OOB:x}")
    dma(P, l16, S_WS, f"s{S_T2}", (S_FL, slot + 16384 + 8192 * t), tag=tag, mods=SC1)


def kernel_F():
    P = Prog(); V = Regs(2, 255, "v"); SL = Slow()
    NP = OPT.get("np", 2)
    JIT = 16 - NP
    GPP = OPT.get("gpp", 2)
    UNI = OPT.get("uni", JIT + 2)
    HF = OPT.get("hf", UNI | 1)
    lane, l16, t0, t1, vsl = prologue_f(P, V, "LF_end")
    vz = V.alloc("vz")
    P(f"s_cmp_lg_u32 s{S_W}, 7")
    P("s_cbranch_scc1 LF_not7")
    if OPT.get("p7", 1): P("s_setprio 3")
    P(f"s_lshr_b32 s{S_T4}, s{S_J}, 1")
    P(f"s_lshl_b32 s{S_T0}, s{S_G}, 16")
    P(f"s_lshl_b32 s{S_T2}, s{S_T4}, 14")
    P(f"s_add_u32 s{S_T2}, s{S_T2}, s{S_T0}")
    P(f"s_mul_i32 m0, s{S_T4}, {16*X_STRIDE}")
    P(f"s_and_b32 s{S_T3}, s{S_J}, 1")
    P(f"s_mov_b32 s{S_T5}, 0")
    P("s_waitcnt lgkmcnt(0)")
    mk_srd(P, S_X, 4, SZ["x"])
    if OPT.get("u7", 1):
        P(f"s_sub_u32 s{S_X}, s{S_X}, 64")
        P(f"s_subb_u32 s{S_X+1}, s{S_X+1}, 0")
        P(f"s_mov_b32 s{S_X+2}, 0x{SZ['x'] + 64:x}")
        P(f"s_add_u32 s{S_T2}, s{S_T2}, 64")
        for g in range(4):
            for k in range(4):
                if k == 0:
                    if g: P(f"s_add_u32 m0, m0, {4*X_STRIDE}"); P(f"s_add_u32 s{S_T2}, s{S_T2}, {4096 + 48}")
                else: P(f"s_sub_u32 s{S_T2}, s{S_T2}, 16")
                P(f"buffer_load_dwordx4 v{l16}, s[{S_X}:{S_X+3}], s{S_T2} offen offset:{X_STRIDE*k} lds", tag="c")
    else:
        P("LF_ldx7:")
        P(f"buffer_load_dwordx4 v{l16}, s[{S_X}:{S_X+3}], s{S_T2} offen lds", tag="c")
        P(f"s_add_u32 m0, m0, {X_STRIDE}")
        P(f"s_add_u32 s{S_T2}, s{S_T2}, 1024")
        P(f"s_add_u32 s{S_T5}, s{S_T5}, 1")
        P(f"s_cmp_lg_u32 s{S_T5}, 16")
        P("s_cbranch_scc1 LF_ldx7")
    P(f"s_cmp_eq_u32 s{S_T3}, 0")
    P(f"s_cselect_b32 s{S_WKV}, s8, s10")
    P(f"s_cselect_b32 s{S_WKV+1}, s9, s11")
    P(f"s_and_b32 s{S_WKV+1}, s{S_WKV+1}, 0xffff")
    P(f"s_mov_b32 s{S_WKV+2}, 0x{SZ['wk']:x}")
    P(f"s_mov_b32 s{S_WKV+3}, 0x20000")
    P(f"s_mov_b32 m0, 0x{WKV_L:x}")
    P(f"s_mov_b32 s{S_T5}, 0")
    P("LF_ldw7:")
    for i in range(4):
        P(f"buffer_load_dwordx4 v{l16}, s[{S_WKV}:{S_WKV+3}], s{S_T5} offen offset:{1024*i} lds")
        P.I[-1].kind = "salu"
    P(f"s_add_u32 m0, m0, 4096")
    P(f"s_add_u32 s{S_T5}, s{S_T5}, 4096")
    P(f"s_cmp_lg_u32 s{S_T5}, 16384")
    P("s_cbranch_scc1 LF_ldw7")
    stamp(P, 15)
    P("s_barrier")
    P("LF_not7:")
    P("s_waitcnt lgkmcnt(0)")
    P(f"v_mov_b32 v{vz}, 0")
    if OPT.get("cnt"): P("s_mov_b32 s85, 0")
    mk_srd(P, S_WS, 28, SZ["ws"])
    mk_srd(P, S_DBG, 26, SZ["dbg"])
    vn = V.alloc("vn")
    P(f"s_or_b32 s{S_T0}, s2, s{S_W}")
    P(f"s_cmp_lg_u32 s{S_T0}, 0")
    P("s_cbranch_scc1 LF_non")
    P.cond_begin()
    P(f"s_memrealtime s[{S_EX}:{S_EX+1}]")
    P("s_waitcnt lgkmcnt(0)")
    P(f"s_mul_i32 s{S_EX+1}, s{S_EX+1}, 0x9e3779b1")
    if OPT.get("amp0") != 99: P(f"s_xor_b32 s{S_EX}, s{S_EX}, s{S_EX+1}")
    P(f"s_or_b32 s{S_EX}, s{S_EX}, 1")
    P(f"v_mov_b32 v{t0}, s{S_EX}")
    P("s_mov_b64 exec, 1")
    P(f"buffer_store_dword v{t0}, v{vz}, s[{S_DBG}:{S_DBG+3}], 0 offen sc1")
    P("s_mov_b64 exec, -1")
    P.cond_end()
    P("LF_non:")
    P_main = P; P = Prog()
    rest_srds(P)
    mk_srd(P, S_GW, 22, SZ["gw"])
    P(f"s_mov_b32 s{S_C1}, {hexf(2.0**120)}")
    A = attn_setup(P, V, lane, l16, t0, t1)
    qf = A["q"]; O = A["O"]; S = A["S"]
    A["sb"] = SplitBar(P, V, SL, lane, t0) if OPT.get("sb", 0) else type("X", (), dict(n=0))()
    vfl = V.alloc("vfl", 4)
    P(f"s_lshl_b32 s{S_T0}, s{S_HP}, 1")
    P(f"s_add_u32 s{S_T0}, s{S_T0}, s{S_KH}")
    P(f"s_lshl_b32 s{S_T1}, s{S_J}, 2")
    P(f"s_add_u32 s{S_T0}, s{S_T0}, s{S_T1}")
    P(f"s_mul_i32 s{S_T1}, s{S_TILE}, 118")
    P(f"s_add_u32 s{S_T0}, s{S_T0}, s{S_T1}")
    P(f"s_lshl_b32 s{S_T0}, s{S_T0}, 10")
    P(f"s_add_u32 s{S_OD}, s{S_T0}, 0x{WS_OH + 86*1024:x}")
    def poison():
        for r in range(4): P(f"v_mov_b32 v{O[0]+r}, -1")
        P(f"buffer_store_dwordx4 {vr(O[0],4)}, v{l16}, {WSR}, s{S_OD} offen sc1", tag="poison")
    P(f"s_lshr_b32 s{S_T0}, s{S_W}, 1")
    P(f"s_lshl_b32 s{S_T0}, s{S_T0}, 3")
    P(f"s_add_u32 s{S_T0}, s{S_T0}, s{S_T1}")
    P(f"s_lshl_b32 s{S_T0}, s{S_T0}, 10")
    P(f"s_add_u32 s{S_OL}, s{S_T0}, 0x{WS_OH + 86*1024:x}")
    P(f"s_lshl_b32 s{S_FP}, s{S_G}, 10")
    P(f"s_lshl_b32 s{S_FS}, s{S_J}, 5")
    P(f"s_add_u32 s{S_FS}, s{S_FS}, s{S_W}")
    P(f"s_lshl_b32 s{S_FS}, s{S_FS}, 2")
    P(f"s_add_u32 s{S_FS}, s{S_FS}, s{S_FP}")
    P(f"s_add_u32 s{S_FS}, s{S_FS}, 0x{FL_H:x}")
    P(f"s_add_u32 s{S_FP}, s{S_FP}, 0x{FL_H:x}")
    P(f"s_lshl_b32 s{S_FW}, s{S_W}, 14")
    P(f"s_lshl_b32 s{S_T1}, s{S_J}, 7")
    P(f"s_add_u32 s{S_FW}, s{S_FW}, s{S_T1}")
    P(f"s_lshl_b32 s{S_FL2}, s{S_W}, 11")
    P(f"s_mul_i32 s{S_U0}, s{S_J}, 11")
    P(f"s_min_u32 s{S_U0}, s{S_U0}, 76")
    P(f"s_cmp_ge_u32 s{S_J}, 6")
    P(f"s_cselect_b32 s{S_NU}, 10, 11")
    vxa = xfrag_addr(P, V, "vxa", lane, t0, S_TT)
    vq = V.alloc("vq")
    P(f"s_and_b32 s{S_T0}, s{S_W}, 3")
    P(f"s_lshl_b32 s{S_T1}, s{S_T0}, 11")
    P(f"s_add_u32 s{S_T1}, s{S_T1}, 0x{QSCR:x}")
    P(f"v_add_u32 v{vq}, s{S_T1}, v{l16}")
    COMMON = P.I; P = P_main
    def emit(L):
        for x in L: P(x.text, tag=x.tag)
    iw = next(i for i, x in enumerate(COMMON) if x.text.startswith(f"s_mov_b32 s{S_WM+3},")) + 1
    iu = next(i for i, x in enumerate(COMMON) if x.text.startswith(f"s_mul_i32 s{S_U0},"))
    C_EARLY = COMMON[:iw] + COMMON[iu:iu + 4]; C_LATE = COMMON[iw:iu] + COMMON[iu + 4:]
    acc = [[V.alloc(f"acc{i}{t}", 16) for t in range(2)] for i in range(3)]
    fx = [[V.alloc(f"fx{b}{t}", 4) for t in range(2)] for b in range(2)]
    fw = [[V.alloc(f"fw{b}{i}", 4) for i in range(3)] for b in range(2)]
    S_PFB = 19
    def capture(f):
        nonlocal P
        P0 = P; P = Prog(); f(); L = P.I; P = P0
        return L
    R = {}
    def f1():
        vtn = tr_slice_addr(P, V, "vtn", lane, t0, t1, SLOT[0], S_HP, 8)
        vpf = V.alloc("vpf"); vpd = V.alloc("vpd"); vpw = V.alloc("vpw")
        P(f"v_bfe_u32 v{t0}, v{lane}, 4, 1")
        P(f"v_lshrrev_b32 v{t1}, 5, v{lane}")
        P(f"v_lshl_add_u32 v{t0}, v{t1}, 7, v{t0}")
        P(f"v_mul_u32_u24 v{vpf}, 2752, v{t0}")
        P(f"v_and_b32 v{t0}, 15, v{lane}")
        P(f"v_lshl_add_u32 v{vpf}, v{t0}, 7, v{vpf}")
        P(f"v_cmp_gt_u32 vcc, 12, v{t0}")
        P(f"v_mov_b32 v{t1}, 0x{OOB:x}")
        P(f"v_cndmask_b32 v{vpf}, v{t1}, v{vpf}, vcc")
        P(f"s_lshr_b32 s{S_T0}, s2, 3")
        P(f"s_lshl_b32 s{S_T0}, s{S_T0}, 1")
        P(f"s_add_u32 s{S_T0}, s{S_T0}, s{S_HP}")
        P(f"s_mul_i32 s{S_T0}, s{S_T0}, {2*2752}")
        P(f"s_and_b32 s{S_T1}, s2, 1")
        P(f"s_mul_i32 s{S_T1}, s{S_T1}, {44*32}")
        P(f"s_add_u32 s{S_PFB}, s{S_T0}, s{S_T1}")
        R.update(vtn=vtn, vpf=vpf, vpd=vpd, vpw=vpw)
    def f2():
        vx0 = V.alloc("vx0")
        P(f"s_mul_i32 s{S_T0}, s{S_TT}, {32*X_STRIDE}")
        P(f"v_subrev_u32 v{vx0}, s{S_T0}, v{vxa}")
        P(f"s_lshl_b32 s{S_T4}, s{S_W}, 1")
        wtr = w_tr_addrs(P, V, lane, t0, t1, s_w=S_T4)
        R.update(vx0=vx0, wtr=wtr)
    def f3():
        P(f"s_mul_i32 s{S_T0}, s{S_W}, 3")
        P(f"s_mul_i32 s{S_T1}, s{S_G}, 236")
        P(f"s_add_u32 s{S_T1}, s{S_T1}, s{S_U0}")
        for i in range(3):
            P(f"s_add_u32 s{S_T2}, s{S_T0}, {i}")
            P(f"s_add_u32 s{SH[i]}, s{S_T1}, s{S_T2}")
            P(f"s_lshl_b32 s{SH[i]}, s{SH[i]}, 10")
            P(f"s_add_u32 s{SH[i]}, s{SH[i]}, 0x{WS_OH:x}")
            P(f"s_cmp_lt_u32 s{S_T2}, s{S_NU}")
            P(f"s_cselect_b32 s{SH[i]}, s{SH[i]}, 0x{OOB:x}")
    def f4():
        vpw = R["vpw"]
        S_PFS = S_WKV
        P(f"s_lshr_b32 s{S_T0}, s2, 3")
        P(f"s_lshl_b32 s{S_T0}, s{S_T0}, 2")
        P(f"s_add_u32 s{S_T0}, s{S_T0}, s{S_W}")
        P(f"s_cmp_lt_u32 s{S_T0}, 86")
        P(f"s_cselect_b32 s{S_PFS}, s{S_WD}, s{S_WO}")
        P(f"s_cselect_b32 s{S_PFS+1}, s{S_WD+1}, s{S_WO+1}")
        P(f"s_cselect_b32 s{S_PFS+2}, s{S_WD+2}, s{S_WO+2}")
        P(f"s_cselect_b32 s{S_T1}, 0, 86")
        P(f"s_mov_b32 s{S_PFS+3}, 0x20000")
        P(f"s_sub_u32 s{S_T0}, s{S_T0}, s{S_T1}")
        P(f"s_lshl_b32 s{S_T0}, s{S_T0}, 14")
        P(f"s_and_b32 s{S_T1}, s2, 1")
        P(f"s_lshl_b32 s{S_T1}, s{S_T1}, 9")
        P(f"s_add_u32 s{S_T0}, s{S_T0}, s{S_T1}")
        P(f"v_lshrrev_b32 v{t0}, 2, v{lane}")
        P(f"v_lshlrev_b32 v{t0}, 10, v{t0}")
        P(f"v_and_b32 v{t1}, 3, v{lane}")
        P(f"v_lshl_add_u32 v{t0}, v{t1}, 7, v{t0}")
        P(f"v_add_u32 v{vpw}, s{S_T0}, v{t0}")
    ix = next(i for i, x in enumerate(COMMON) if x.text.startswith(f"v_and_b32 v{t0}, 31, v{lane}"))
    ia = next(i for i, x in enumerate(COMMON) if x.text.startswith(f"s_mov_b32 s{S_C1},")) + 1
    io = next(i for i, x in enumerate(COMMON) if x.text.startswith(f"s_lshl_b32 s{S_T0}, s{S_HP}, 1"))
    ifl = next(i for i, x in enumerate(COMMON) if x.text.startswith(f"s_lshl_b32 s{S_FP},"))
    H_PRE = COMMON[ix:ix + 6] + COMMON[:iw] + capture(f1)
    H_MID = COMMON[ia:io] + COMMON[ix + 6:] + capture(f2) + COMMON[io:ifl]
    H_LATE = [COMMON[iw:iw + 8], COMMON[iw + 8:ia], COMMON[ifl:iu], COMMON[iu:iu + 4]]
    sh = capture(f3); H_LATE += [sh[:9], sh[9:15], sh[15:]]
    wp = capture(f4); H_LATE += [wp[:14], wp[14:]]
    vtn, vpf, vpd, vpw, vx0, wtr = (R[k] for k in ("vtn", "vpf", "vpd", "vpw", "vx0", "wtr"))
    S_PFS = S_WKV
    def pf(blk, half):
        P(f"s_add_u32 s{S_T4}, s{S_PFB}, {128*2752*blk}")
        if half: P("s_mov_b64 exec, 0xffffffff")
        P(f"buffer_load_dword v{vpd}, v{vpf}, s[{S_WM}:{S_WM+3}], s{S_T4} offen", tag="pf")
        P.I[-1].vw = set()
        if half: P("s_mov_b64 exec, -1")
    PF = OPT.get("pf", 0)
    KT = 192; vx16 = 240; vw16 = 241; vst = 242; S_K5, S_K6 = S_T5, S_T6
    P(f"s_cmp_lg_u32 s{S_W}, 7")
    P("s_cbranch_scc1 LF_not7b")
    P.cond_begin()
    P(f"s_lshr_b32 s{S_T0}, s{S_J}, 1")
    P(f"s_lshl_b32 s{S_T1}, s{S_T0}, 4")
    P(f"v_and_b32 v{t0}, 15, v{lane}")
    P(f"v_add_u32 v{t1}, s{S_T1}, v{t0}")
    P(f"v_mul_u32_u24 v{vx16}, {X_STRIDE}, v{t1}")
    P(f"v_lshrrev_b32 v{t1}, 4, v{lane}")
    P(f"v_lshl_add_u32 v{vx16}, v{t1}, 4, v{vx16}")
    P(f"v_lshlrev_b32 v{vw16}, 8, v{t1}")
    P(f"v_lshl_add_u32 v{vw16}, v{t0}, 3, v{vw16}")
    P(f"v_add_u32 v{vw16}, 0x{WKV_L:x}, v{vw16}")
    P(f"s_and_b32 s{S_K6}, s{S_J}, 1")
    P(f"s_cmp_eq_u32 s{S_K6}, 0")
    P(f"s_cselect_b32 s{S_T3}, 9, 8")
    P(f"s_cselect_b32 s{S_T4}, 8, 9")
    P(f"s_cselect_b32 s{S_K5}, 0x{WS_KF:x}, 0x{WS_VF:x}")
    P(f"v_lshlrev_b32 v{vst}, 4, v{t0}")
    P(f"v_lshrrev_b32 v{t0}, 1, v{t1}")
    P(f"v_lshl_add_u32 v{vst}, v{t0}, 3, v{vst}")
    P(f"v_and_b32 v{t0}, 1, v{t1}")
    P(f"v_lshlrev_b32 v{t0}, s{S_T3}, v{t0}")
    P(f"v_add_u32 v{vst}, v{vst}, v{t0}")
    P(f"s_and_b32 s{S_T1}, s{S_T0}, 1")
    P(f"s_lshl_b32 s{S_T1}, s{S_T1}, s{S_T4}")
    P(f"s_add_u32 s{S_K5}, s{S_K5}, s{S_T1}")
    P(f"s_lshr_b32 s{S_T0}, s{S_T0}, 1")
    P(f"s_lshl_b32 s{S_T1}, s{S_G}, 1")
    P(f"s_add_u32 s{S_T0}, s{S_T0}, s{S_T1}")
    P(f"s_lshl_b32 s{S_T0}, s{S_T0}, 10")
    P(f"s_add_u32 s{S_K5}, s{S_K5}, s{S_T0}")
    P("s_waitcnt vmcnt(0)")
    P(f"buffer_load_dword v{vn}, v{vz}, s[{S_DBG}:{S_DBG+3}], 0 offen sc1")
    def kv16(which):
        d = KT
        xb = [(KT+16) + 4 * i for i in range(4)]; wb = [(KT+32) + 4 * i for i in range(4)]
        def ld(ks):
            P(f"ds_read_b128 {vr(xb[ks%4],4)}, v{vx16} offset:{ks*64}")
            P(f"ds_read_b64_tr_b16 {vr(wb[ks%4],2)}, v{vw16} offset:{ks*1024}")
            P(f"ds_read_b64_tr_b16 {vr(wb[ks%4]+2,2)}, v{vw16} offset:{ks*1024+128}")
        for ks in range(3): ld(ks)
        for ks in range(16):
            a, b = (wb[ks%4], xb[ks%4]) if which == 0 else (xb[ks%4], wb[ks%4])
            P(f"v_mfma_f32_16x16x32_bf16 {vr(d,4)}, {vr(a,4)}, {vr(b,4)}, {vr(d,4) if ks else 0}")
            if ks + 3 < 16: ld(ks + 3)
        if which == 0:
            P(f"s_mov_b32 s{S_T0}, {hexf(QK_SCALE)}")
            for r in range(4): P(f"v_mul_f32 v{d+r}, s{S_T0}, v{d+r}")
    P(f"s_cmp_eq_u32 s{S_K6}, 1")
    P("s_cbranch_scc1 LF_vch")
    P.cond_begin(); kv16(0); P.cond_end()
    P("s_branch LF_kvj")
    P("LF_vch:")
    P.cond_begin(); kv16(1); P.cond_end()
    P("LF_kvj:")
    for r in range(2): P(f"v_cvt_pk_bf16_f32 v{KT+4+r}, v{KT+2*r}, v{KT+2*r+1}")
    P(f"buffer_store_dwordx2 {vr(KT+4,2)}, v{vst}, {WSR}, s{S_K5} offen sc1")
    FB2 = OPT.get("fb2", 0)
    def w7flag():
        P(f"s_lshl_b32 s{S_T0}, s{S_G}, 3")
        P(f"s_add_u32 s{S_T0}, s{S_T0}, s{S_J}")
        P(f"s_lshl_b32 s{S_T0}, s{S_T0}, 2")
        P(f"s_add_u32 s{S_T0}, s{S_T0}, 0x{FL_KV:x}")
        P("s_waitcnt vmcnt(0)")
        nonce_check(P, SL, vn, vz)
        flag_store(P, vz, t0, S_T0)
    if not FB2: w7flag()
    def pf7():
        P(f"v_lshrrev_b32 v{t0}, 4, v{lane}")
        P(f"v_mul_u32_u24 v{vx16}, 2752, v{t0}")
        P(f"v_and_b32 v{t0}, 15, v{lane}")
        P(f"v_lshl_add_u32 v{vx16}, v{t0}, 7, v{vx16}")
        P(f"v_cmp_gt_u32 vcc, 12, v{t0}")
        P(f"v_mov_b32 v{t1}, 0x{OOB:x}")
        P(f"v_cndmask_b32 v{vx16}, v{t1}, v{vx16}, vcc")
        P(f"s_lshr_b32 s{S_T0}, s2, 3")
        P(f"s_mul_i32 s{S_T0}, s{S_T0}, {4*2752}")
        P(f"s_and_b32 s{S_T1}, s2, 1")
        P(f"s_mul_i32 s{S_T1}, s{S_T1}, {44*32}")
        P(f"s_add_u32 s{S_T0}, s{S_T0}, s{S_T1}")
        for m in range(2):
            mk_srd(P, S_WKV, 16 + 2 * m, SZ["wg"])
            P(f"buffer_load_dword v{fx[0][0]+m}, v{vx16}, s[{S_WKV}:{S_WKV+3}], s{S_T0} offen")
    if OPT.get("pf7", 0) == 1: pf7()
    stamp(P, 1)
    P("s_barrier")
    stamp(P, 2)
    if OPT.get("pf7", 0) == 2: pf7()
    if FB2 == 1: w7flag()
    P("s_barrier")
    if FB2 == 2: w7flag()
    P.cond_end(nowait=True)
    P("s_branch LF_light")
    P("LF_not7b:")
    P(f"s_cmp_lg_u32 s{S_KH}, 0")
    P("s_cbranch_scc1 LF_l0")

    def sigstamp(it, k):
        if OPT.get("sig"):
            P(f"s_memtime s[98:99]"); P("s_waitcnt lgkmcnt(0)"); P(f"v_writelane_b32 v{vsig}, s98, {2*it+k}")
    vsig = V.alloc("vsig") if OPT.get("sig") else None

    P.cond_begin()
    emit(H_PRE)
    stamp(P, 15)
    P("s_barrier")
    stamp(P, 0)
    LOADS["f"]("h")
    stamp(P, 1)
    if PF & 4: pf(0, True)
    P.wait_tag("q")
    P("s_barrier")
    stamp(P, 2)
    if PF & 2: pf(0, True)
    QD = 6
    xb = [acc[1][0] + 4 * i for i in range(QD)]; wb = [acc[2][0] + 4 * i for i in range(QD)]
    assert acc[1][1] == acc[1][0] + 16 and acc[2][1] == acc[2][0] + 16
    def q_loads(ks):
        o = SLOT[ks // 12] - SLOT[0] + (ks % 12) * 2048
        P(f"ds_read_b128 {vr(xb[ks%QD],4)}, v{vxa} offset:{ks*32}")
        P(f"ds_read_b64_tr_b16 {vr(wb[ks%QD],2)}, v{vtn} offset:{o}")
        P(f"ds_read_b64_tr_b16 {vr(wb[ks%QD]+2,2)}, v{vtn} offset:{o+512}")
    for ks in range(QD - 1): q_loads(ks)
    for ks in range(32):
        P(mfma(acc[0][0], wb[ks%QD], xb[ks%QD], acc[0][0] if ks else None))
        if ks in (11, 23):
            stamp(P, 11 if ks == 11 else 13)
            P("s_barrier")
        if ks + QD - 1 in (12, 24): P("s_barrier")
        if ks + QD - 1 < 32: q_loads(ks + QD - 1)
        nf = -(-len(H_MID) // 28)
        emit(H_MID[ks * nf:(ks + 1) * nf])
        if ks == OPT.get("pk", 30) and OPT.get("kl", 2) != 2:
            P(f"s_mov_b32 s{S_T5}, 0x{FL_KV:x}")
            P(f"buffer_load_dword v{vn}, v{vz}, s[{S_DBG}:{S_DBG+3}], 0 offen sc1")
            P(flag_load(vfl, 4, l16, f"s{S_T5}"))
    for r in range(8): P(f"v_cvt_pk_bf16_f32 v{qf+r}, v{acc[0][0]+2*r}, v{acc[0][0]+2*r+1}")
    P(f"ds_write_b128 v{vq}, {vr(qf,4)}")
    P(f"ds_write_b128 v{vq}, {vr(qf+4,4)} offset:1024")
    def kv_check():
        nonce_check(P, SL, vn, vz)
        spin_check(P, SL, [flag_load(vfl, 4, l16, f"s{S_T5}")], flag_cmp(vfl, 4, t0), sleep=OPT.get("ksl", 6))
        kv_dma(P, l16, 0)
        dma(P, l16, S_WS, f"s{S_T2}", (S_KVLDS, 4096), tag="kv0", mods=SC1, pre=[f"s_add_u32 s{S_T2}, s{S_T2}, 32768"])
    if not OPT.get("kl", 2): kv_check()
    def gu_reads(ks):
        s, kk = ks // 2, ks % 2
        so = SLOT[s % 3] - SLOT[0] + kk * 6144
        L = [f"ds_read_b128 {vr(fx[ks%2][0],4)}, v{vx0} offset:{ks*32}"]
        for i in range(3):
            f = fw[ks % 2][i]
            L += [f"ds_read_b64_tr_b16 {vr(f,2)}, v{wtr[i]} offset:{so}", f"ds_read_b64_tr_b16 {vr(f+2,2)}, v{wtr[i]} offset:{so+1536}"]
            if i == 0: L.append(f"ds_read_b128 {vr(fx[ks%2][1],4)}, v{vx0} offset:{ks*32 + 32*X_STRIDE}")
        return L
    def gu_groups(ks, late=False):
        R = gu_reads(ks + 1) if ks < 31 else []
        if OPT.get("abl_hds") and ks >= 2 * NP - 1: R = []
        G = []
        for m in range(6):
            i, t = m // 2, m % 2
            mm = [mfma(acc[i][t], fw[ks % 2][i], fx[ks % 2][t], acc[i][t] if ks else None)]
            if OPT.get("abl_hm") and ks >= 2 * NP - 1: mm = []
            G.append(mm + (R[2 * m: 2 * m + 2] if not late else ([] if m < 3 else R[3 * (m - 3): 3 * (m - 3) + 3])))
        return G
    P.wait_lgkm_all()
    stamp(P, 14)
    P("s_barrier")
    stamp(P, 3)
    for x in gu_reads(0): P(x)
    if OPT.get("kl", 2) == 1: kv_check()
    if OPT.get("kl", 2) == 2:
        P(f"s_mov_b32 s{S_T5}, 0x{FL_KV:x}")
        P(f"buffer_load_dword v{vn}, v{vz}, s[{S_DBG}:{S_DBG+3}], 0 offen sc1")
        P(flag_load(vfl, 4, l16, f"s{S_T5}"))
    PFI = OPT.get("pfi", 0)
    for ks in range(2 * NP - 1):
        if ks % 2 == 1:
            P.wait_lgkm_all(); P("s_barrier")
        for g in gu_groups(ks):
            for x in g: P(x)
        if ks == 0 and OPT.get("kl", 2) == 2: kv_check()
    P.wait_tag("kv0"); P.wait_lgkm_all(); P("s_barrier")
    stamp(P, 4)
    gq = []
    tmp = fx[0][0]; cst = fx[1][0]
    assert fx[0][1] == fx[0][0] + 4
    gel = []
    def load_window(k):
        n = 2 * (NP + k) - 1
        assert not gq
        gq.extend(gu_groups(n, late=(k > 0 and OPT.get("sb", 0))))
        if n < 31: gq.extend(gu_groups(n + 1))
    def hookH(it, x, pos):
        if pos == "sync?": return 1 <= it <= JIT
        if pos == "pre0": sigstamp(it, 0); return
        if pos == "pre": sigstamp(it, 1); return
        if pos == "start": load_window(0); return
        if pos == "qk" and it == 3 and x == 0:
            for r in range(4): P(f"v_mov_b32 v{vfl+r}, -1")
            P(f"buffer_store_dwordx4 {vr(vfl,4)}, v{l16}, {WSR}, s{S_OD} offen sc1", tag="poison")
        if pos == "qk" and it == 4 and x == 0:
            P(f"buffer_store_dwordx4 {vr(vfl,4)}, v{l16}, {WSR}, s{S_OD} offen offset:1024 sc1", tag="poison")
        midprio(it, x, pos, PH)
        if pos in ("qk", "pv1") and H_LATE: emit(H_LATE.pop(0))
        if pos == "pv2" and x == 1 and PF & 1:
            if it == PFI: pf(1, True)
            if it == PFI + 2: pf(2, True)
            if it == PFI + 5: pf(3, True)
        if pos == "pv2" and x == 1 and OPT.get("wpf", 1) and it in range(OPT.get("wi", 7), OPT.get("wi", 7) + 4):
            k = it - OPT.get("wi", 7)
            P(f"s_cmp_lg_u32 s{S_W}, {k}")
            P(f"s_cbranch_scc1 LF_wp{k}")
            P(f"buffer_load_dword v{vpd}, v{vpw}, s[{S_PFS}:{S_PFS+3}], 0 offen")
            P.I[-1].kind = "salu"; P.I[-1].vw = set()
            P(f"LF_wp{k}:")
        if pos == "pv1" and x == 0 and 1 <= it <= JIT: load_window(it)
        if pos in ("g1", "g2", "g3", "g4", "g5", "g6"):
            cnt = int(str(OPT.get("gm", 111111))[int(pos[1]) - 1]) if gq else 1
            cnt = 0 if cnt == 9 else cnt
            if gq and cnt == 0: pass
            elif gq:
                for _ in range(cnt):
                    if gq:
                        for t in gq.pop(0): P(t)
                if not gq and it == JIT and x == 1:
                    L = [f"v_mov_b32 v{cst}, {hexf(GELU_C1)}", f"v_mov_b32 v{cst+1}, {hexf(GELU_C1)}",
                         f"v_mov_b32 v{cst+2}, {hexf(GELU_C2)}", f"v_mov_b32 v{cst+3}, {hexf(GELU_C2)}"]
                    k = 0
                    for i in range(3):
                        for t in range(2):
                            d = fw[k % 2][k // 2]; k += 1
                            L += gelu_tile_pk(acc[i][t], d, tmp, cst)
                            if t == 1: L.append(f"s_add_u32 s{SH[i]}, s{SH[i]}, {118*1024}")
                            L.append(f"buffer_store_dwordx4 {vr(d,4)}, v{l16}, {WSR}, s{SH[i]} offen sc1")
                    ns = (2 if OPT.get("bbh", 0) else 3) + 12 * (UNI - JIT - 1)
                    n = (len(L) + ns - 1) // ns
                    gel.extend(L[i:i + n] for i in range(0, len(L), n))
            elif gel:
                for t in gel.pop(0): P(t, tag="hst" if "store" in t else None)
    PM = OPT.get("pm", 9)
    PH = [int(c) for c in str(OPT.get("ph", 3321)).zfill(4)]; PL = [int(c) for c in str(OPT.get("pl", 3210)).zfill(4)]
    def prioH(it, x):
        if PM == 9: return PH[2 * x] if it < JIT else 3
        if PM == 1: return 3 if (it == 0 and x == 0) else None
        if PM == 3: return 3 - 2 * x
        if PM == 5: return (3 - 2 * x) if it < JIT else 3
        if PM == 6: return 3 if it >= JIT else None
        return None
    def prioL(it, x):
        if PM == 9: return PL[2 * x] if it < JIT else 0
        if PM in (2, 6): return 1 if (it == 0 and x == 0) else None
        if PM == 3: return 3 - 2 * x
        if PM == 5: return (3 - 2 * x) if it < JIT else 0
        return None
    def midprio(it, x, pos, T=None):
        if PM == 9 and pos == "pv2" and it <= JIT: P(f"s_setprio {T[1] if x else T[3]}")
        if PM in (3, 5) and pos == "pv2" and (PM == 3 or it <= JIT): P(f"s_setprio {2 * x}")
    attention(P, A, l16, range(0, UNI), hookH, prioH, kvf=lambda c: None, bb=OPT.get("bbh", 0))
    nsb = A["sb"].n; A["sb"].n = 0
    assert not gq and not gel, (len(gq), len(gel))
    P.cond_end(keep=True)
    P("s_branch LF_join")
    for n in ("vx0", "vtn", "wtr0", "wtr1", "wtr2", "vpf"): V.release(n)

    P("LF_l0:")
    P.cond_begin()
    P("s_barrier")
    LOADS["f"]("l")
    stamp(P, 1)
    if OPT.get("t3e", 1):
        P(f"s_cmp_eq_u32 s{S_W}, 6")
        P("s_cbranch_scc1 LF_l6")
        P(f"s_add_u32 s{S_T3}, s{S_T3}, 24")
        wq_pieces(P, vsl, S_T3, 8, "LF_ldq3", 1)
        P("s_waitcnt vmcnt(16)")
        P("s_barrier")
        stamp(P, 2)
        P("s_waitcnt vmcnt(8)")
        P("s_branch LF_l6j")
        P("LF_l6:")
        P("s_waitcnt vmcnt(8)")
        P("s_barrier")
        stamp(P, 2)
        P("s_waitcnt vmcnt(0)")
        P("LF_l6j:")
        P("s_barrier")
    else:
        P("s_waitcnt vmcnt(8)")
        P("s_barrier")
        stamp(P, 2)
        P(f"s_cmp_eq_u32 s{S_W}, 6")
        P("s_cbranch_scc1 LF_l6")
        P(f"s_add_u32 s{S_T3}, s{S_T3}, 24")
        wq_pieces(P, vsl, S_T3, 8, "LF_ldq3", 1)
        P("s_waitcnt vmcnt(8)")
        P("s_branch LF_l6j")
        P("LF_l6:")
        P("s_waitcnt vmcnt(0)")
        P("LF_l6j:")
        P("s_barrier")
    P("LF_light:")
    if OPT.get("p7", 1): P("s_setprio 0")
    mk_srd(P, S_GW, 22, SZ["gw"])
    dma(P, l16, S_GW, "0", (None, GWL), tag="gw")
    emit(C_EARLY)

    pats = w_patterns(P, V, lane, t0, t1)
    P(f"s_lshl_b32 s{S_T0}, s{S_HP}, 1")
    P(f"s_mul_i32 s{S_WOFF}, s{S_T0}, {8*2752}")
    P(f"s_lshl_b32 s{S_T1}, s{S_U0}, 5")
    P(f"s_add_u32 s{S_WOFF}, s{S_WOFF}, s{S_T1}")
    P(f"s_mul_i32 s{S_WLDS}, s{S_T0}, 3072")
    P(f"s_mul_i32 s{S_T1}, s{S_TT}, {UP_OFF}")
    P(f"s_add_u32 s{S_WLDS}, s{S_WLDS}, s{S_T1}")
    inattn = dict(on=False)
    P(f"s_add_u32 s{S_WOFF}, s{S_WOFF}, 0")
    P(f"v_subrev_u32 v{pats[1]}, 1024, v{pats[1]}")
    P(f"v_subrev_u32 v{pats[2]}, 2048, v{pats[2]}")
    def w_dma1(s, k):
        g, i = k // 3, k % 3
        solo = not OPT.get("wm0", 1) or inattn["on"]
        if i == 0 or solo:
            dma(P, pats[i], S_WM, f"s{S_T3}", (S_WLDS, SLOT[s % 3] + 3072 * g), offset=1024 * i, tag=f"w{s}",
                pre=[f"s_add_u32 s{S_T3}, s{S_WOFF}, 0x{(32*s + 8*g)*2752:x}"] if i == 0 else None)
        else:
            P(f"buffer_load_dwordx4 v{pats[i]}, s[{S_WM}:{S_WM+3}], s{S_T3} offen offset:{1024*i} lds", tag=f"w{s}")
    def w_dma6(s):
        for k in range(6): w_dma1(s, k)
    stamp(P, 11)
    P("s_barrier")
    w_dma6(0)
    P("s_waitcnt vmcnt(6)"); P.I[-1].kind = "salu"
    P("s_barrier")
    h = len(C_LATE) // 4
    emit(C_LATE[:h])
    stamp(P, 13)
    P("s_barrier")
    w_dma6(1)
    emit(C_LATE[h:])
    vgw = acc[0][1]
    P(f"v_lshrrev_b32 v{t0}, 5, v{lane}")
    P(f"v_lshlrev_b32 v{vgw}, 4, v{t0}")
    P(f"s_lshl_b32 s{S_T0}, s{S_HP}, 9")
    P(f"v_add_u32 v{vxa}, s{S_T0}, v{vxa}")
    P(f"s_add_u32 s{S_T0}, s{S_T0}, 0x{GWL:x}")
    P(f"v_add_u32 v{vgw}, s{S_T0}, v{vgw}")
    P(f"s_lshl_b32 s{S_T0}, s{S_W}, 8")
    P(f"s_add_u32 s{S_T0}, s{S_T0}, 0x{ONES - 1024:x}")
    P(f"v_lshlrev_b32 v{t0}, 2, v{lane}")
    P(f"v_add_u32 v{t0}, s{S_T0}, v{t0}")
    P(f"v_mov_b32 v{t1}, 0x3f803f80")
    P(f"v_lshrrev_b32 v1, 2, v{lane}")
    P(f"v_and_b32 v1, 11, v1")
    P(f"v_cmp_eq_u32 vcc, 0, v1")
    P(f"v_cndmask_b32 v{t1}, 0, v{t1}, vcc")
    P(f"ds_write_b32 v{t0}, v{t1}")
    P(f"ds_write_b32 v{t0}, v{t1} offset:1024")
    za = acc[0][0]; zx = [acc[1][0] + 4 * i for i in range(4)]; zg = [acc[2][0] + 4 * i for i in range(4)]
    def zjob():
        for r in range(4): P(f"v_mov_b32 v{za+r}, 0")
        def zld(k):
            P(f"ds_read_b128 {vr(zx[k%4],4)}, v{vxa} offset:{k*32}")
            P(f"ds_read_b128 {vr(zg[k%4],4)}, v{vgw} offset:{k*32}")
        for k in range(3): zld(k)
        for k in range(16):
            for r in range(4): P(f"v_dot2c_f32_bf16 v{za+r}, v{zx[k%4]+r}, v{zg[k%4]+r}")
            if k + 3 < 16: zld(k + 3)
        P("s_nop 2")
        P(f"v_add_f32 v{za}, v{za}, v{za+1}")
        P(f"v_add_f32 v{za+2}, v{za+2}, v{za+3}")
        P(f"v_add_f32 v{za}, v{za}, v{za+2}")
        P(f"s_and_b32 s{S_T0}, s{S_W}, 3")
        P(f"s_lshl_b32 s{S_T0}, s{S_T0}, 8")
        P(f"s_add_u32 s{S_T0}, s{S_T0}, 0x{MISC:x}")
        P(f"v_lshlrev_b32 v{t0}, 2, v{lane}")
        P(f"v_add_u32 v{t0}, s{S_T0}, v{t0}")
        P(f"ds_write_b32 v{t0}, v{za}")
    P(f"s_mov_b32 s{S_T6}, 0x{FL_KV:x}")
    def kv_both(c):
        kv_dma(P, l16, c)
        dma(P, l16, S_WS, f"s{S_T2}", (S_KVLDS, (8192 * (c & 1) - 4096) & 0xffffffff), tag=f"kv{c}", mods=SC1, pre=[f"s_sub_u32 s{S_T2}, s{S_T2}, 32768"])
    def poll_issue():
        P(f"buffer_load_dword v{vn}, v{vz}, s[{S_DBG}:{S_DBG+3}], 0 offen sc1")
        P(flag_load(vfl, 4, l16, f"s{S_T6}"))
    if OPT.get("zpre"): P.wait_tag("gw"); zjob()
    for s in range(0, NP + 1):
        P.wait_tag(f"w{s}")
        P.wait_lgkm_all()
        if s == 0: stamp(P, 14)
        P("s_barrier")
        if s == 0:
            stamp(P, 3)
            P(f"ds_read_b128 {vr(qf,4)}, v{vq} offset:1024")
            P(f"ds_read_b128 {vr(qf+4,4)}, v{vq}")
        if s == NP: kv_both(1)
        if s < NP: w_dma6(s + 2)
        if s == 0:
            P(f"buffer_load_dword v{vn}, v{vz}, s[{S_DBG}:{S_DBG+3}], 0 offen sc1")
            if not OPT.get("zpre"): zjob()
    assert NP >= 1
    stamp(P, 4)
    dq = []; wq2 = []
    def hookL(it, x, pos):
        if pos == "sync?": return 1 <= it <= JIT
        if pos == "pre0": sigstamp(it, 0); return
        if pos == "pre":
            if NP + it < 16: P.wait_tag(f"w{NP+it}")
            sigstamp(it, 1); return
        if (pos == "start" or pos == "chk") and NP + it + 2 < 16:
            assert not dq
            for k in range(0 if OPT.get("abl_ldma") else 6): dq.append(lambda s=NP + it + 2, k=k: w_dma1(s, k))
        midprio(it, x, pos, PL)
        LW = OPT.get("lw", 4)
        if pos == "chk" and it == JIT:
            for b in range(LW):
                for o in range(2):
                    for i in range(2): wq2.append(lambda b=b, o=o, i=i: fin_dma_w2(P, vsl, b, b * 16384, f"fw{b}", i, o))
        if wq2 and pos not in ("pre", "pre0", "chk", "start"):
            wq2.pop(0)()
            if it == UNI - 1 and x == 1 and pos == "g6":
                while wq2: wq2.pop(0)()
        LS = [("pv2", "qk", "pv1"), ("g1", "g3", "g5"), ("g2", "g4", "g6"), ("pv1", "g4", "g5", "g6", "pv2", "g1", "g2"), ("pv2", "pv1")][OPT.get("ls", 3)]
        if pos in LS and dq:
            dq.pop(0)()
            if OPT.get("ls", 3) == 4 and dq and len(dq) % 3 != 0: dq.pop(0)(); (dq.pop(0)() if pos == "pv1" and len(dq) % 3 else None)
    attention(P, A, l16, range(0, UNI), hookL, prioL, kvf=kv_both, bb=OPT.get("bbl", 0))
    assert A["sb"].n == nsb
    assert not dq
    P.cond_end(keep=True)
    P("LF_join:")
    P.join()
    for n in ["wpat0", "wpat1", "wpat2", "vxa", "vq"] + [f"acc{i}{t}" for i in range(3) for t in range(2)] + \
             [f"fx{b}{t}" for b in range(2) for t in range(2)] + [f"fw{b}{i}" for b in range(2) for i in range(3)]: V.release(n)
    stamp(P, 5)

    facc = V.alloc("facc", 16); facc1 = V.alloc("facc1", 16); fa = V.alloc("ffa", 8)
    NB = OPT.get("nb", 6)
    hb = [V.alloc(f"hb{i}", 4) for i in range(NB)]; fb = hb[0]
    vl4 = V.alloc("vl4"); vg = V.alloc("vg"); zt = V.alloc("zt", 2)
    va0 = tr_slice_addr(P, V, "fa0", lane, t0, t1, 0, S_KH, 4)
    vA = [[va0, V.alloc("fa0h")], [V.alloc("fa1"), V.alloc("fa1h")]]
    P(f"s_lshl_b32 s{S_T1}, s{S_HP}, 5")
    P(f"v_xor_b32 v{va0}, s{S_T1}, v{va0}")
    P(f"s_lshr_b32 s{S_T0}, s{S_W}, 1")
    P(f"s_lshl_b32 s{S_T1}, s{S_T0}, 11")
    P(f"v_add_u32 v{va0}, s{S_T1}, v{va0}")
    P(f"v_xor_b32 v{vA[1][0]}, 64, v{va0}")
    P(f"v_add_u32 v{vA[0][1]}, 0x10000, v{va0}")
    P(f"v_add_u32 v{vA[1][1]}, 0x10000, v{vA[1][0]}")
    P(f"s_mul_i32 s{S_FB}, s{S_TILE}, 118")
    P(f"s_add_u32 s{S_FB}, s{S_FB}, s{S_T0}")
    P(f"s_lshl_b32 s{S_FB}, s{S_FB}, 10")
    P(f"s_add_u32 s{S_FB}, s{S_FB}, 0x{WS_OH:x}")
    P(f"v_lshlrev_b32 v{vl4}, 2, v{lane}")
    vhf = V.alloc("vhf")
    P(f"v_lshrrev_b32 v{t0}, 3, v{lane}")
    P(f"v_mul_u32_u24 v{t0}, 96, v{t0}")
    P(f"v_add_u32 v{vhf}, v{t0}, v{vl4}")
    P(f"s_lshl_b32 s{S_T0}, s{S_TT}, 8")
    P(f"s_add_u32 s{S_T0}, s{S_T0}, 0x{MISC:x}")
    P(f"v_add_u32 v{t0}, s{S_T0}, v{vl4}")
    P(f"ds_read_b32 v{zt}, v{t0}")
    P(f"ds_read_b32 v{zt+1}, v{t0} offset:512")
    P(f"v_add_f32 v{zt}, v{zt}, v{zt+1}")
    P(f"v_mov_b32 v{zt+1}, v{zt}")
    P(f"v_permlane32_swap_b32 v{zt}, v{zt+1}")
    P(f"v_add_f32 v{zt}, v{zt}, v{zt+1}")
    P(f"v_mul_f32 v{t0}, {hexf(-LOG2E)}, v{zt}")
    P(f"v_exp_f32 v{t0}, v{t0}")
    P(f"v_add_f32 v{t0}, 1.0, v{t0}")
    P(f"v_rcp_f32 v{vg}, v{t0}")
    V.release("zt")
    vw = [V.alloc(f"vw{i}") for i in range(3)]; vrd = V.alloc("vrd"); vo = V.alloc("vo")
    def sbase(dst, w):
        P(f"s_mul_i32 s{S_T1}, s{w}, 6144")
        P(f"v_add_u32 v{dst}, s{S_T1}, v{l16}")
    sbase(vrd, S_W)
    for b in range(1, 4):
        P(f"s_xor_b32 s{S_T0}, s{S_W}, {b << 1}")
        sbase(vw[b - 1], S_T0)
    P(f"v_and_b32 v{vo}, 31, v{lane}")
    P(f"v_lshlrev_b32 v{vo}, 10, v{vo}")
    P(f"v_lshrrev_b32 v{t1}, 5, v{lane}")
    P(f"v_lshl_add_u32 v{vo}, v{t1}, 4, v{vo}")
    P(f"s_lshl_b32 s{S_OO}, s{S_TILE}, 15")
    P(f"s_lshl_b32 s{S_T1}, s{S_J}, 7")
    P(f"s_add_u32 s{S_OO}, s{S_OO}, s{S_T1}")
    P(f"s_lshl_b32 s{S_T1}, s{S_KH}, 6")
    P(f"s_add_u32 s{S_OO}, s{S_OO}, s{S_T1}")
    P(f"s_lshl_b32 s{S_T1}, s{S_HP}, 5")
    P(f"s_add_u32 s{S_OO}, s{S_OO}, s{S_T1}")
    vp = V.alloc("vp"); vpa = V.alloc("vpa")
    P(f"v_lshlrev_b32 v{vpa}, 10, v{lane}")
    vt0 = V.alloc("vt0"); vt1 = V.alloc("vt1")
    P(f"s_lshr_b32 s{S_T1}, s{S_W}, 1")
    P(f"s_mul_i32 s{S_T1}, s{S_T1}, {16384 - 2048}")
    P(f"s_add_u32 s{S_T1}, s{S_T1}, {3*16384}")
    P(f"v_add_u32 v{vt0}, s{S_T1}, v{vA[0][0]}")
    P(f"v_add_u32 v{vt1}, s{S_T1}, v{vA[1][0]}")
    va = V.alloc("cva"); vb = V.alloc("cvb"); fb = V.alloc("cvon")
    P(f"s_mul_i32 s{S_T0}, s{S_W}, 3072")
    P(f"s_add_u32 s{S_T0}, s{S_T0}, 114688")
    P(f"v_add_u32 v{va}, s{S_T0}, v{l16}")
    P(f"s_xor_b32 s{S_T0}, s{S_W}, 4")
    P(f"s_mul_i32 s{S_T0}, s{S_T0}, 3072")
    P(f"s_add_u32 s{S_T0}, s{S_T0}, 114688")
    P(f"v_add_u32 v{vb}, s{S_T0}, v{l16}")
    P(f"s_add_u32 s{S_OL2}, s{S_OL}, 4096")
    BSLOT = lambda b: ((b % 8) if b < 11 else (b - 8)) * 16384
    def a_reads(r, d):
        o = (4 * r % 64) * 2048; hi = o >> 16; o &= 0xffff
        assert r // 2 in vis, (r, vis)
        rd_done[r // 2] = rd_done.get(r // 2, 0) + 1
        if OPT.get("abl_uds"): return
        P(f"ds_read_b64_tr_b16 {vr(fa+4*d,2)}, v{vA[d][hi]} offset:{o}")
        P(f"ds_read_b64_tr_b16 {vr(fa+4*d+2,2)}, v{vA[d][hi]} offset:{o+1024}")
    def h_load(r):
        if OPT.get("abl_uh"): return
        P(f"s_add_u32 s{S_T2}, s{S_FB}, {4096*r}")
        if r == 21:
            P(f"s_cmp_lt_u32 s{S_W}, 4")
            P(f"s_cselect_b32 s{S_T2}, s{S_T2}, 0x{OOB:x}")
        P(f"buffer_load_dwordx4 {vr(hb[r%NB],4)}, v{l16}, {WSR}, s{S_T2} offen sc1")
    pend = {}
    LW = OPT.get("lw", 4)
    dq = []; vis = set(); issued = {}; rd_done = {}; nxt = dict(b=LW, r=0, d=0, pre=False)
    def qW(b):
        def f(i):
            if not OPT.get("abl_uw"): fin_dma_w1(P, vsl, b, BSLOT(b), f"fw{b}", i)
            issued[b] = issued.get(b, 0) + 1
        for i in range(2): dq.append(lambda i=i: f(i))
    CH = OPT.get("ch", HF + 4); R0 = OPT.get("r0", 2 * (CH + 1))
    DBL = OPT.get("dbl", 64)
    def mstep():
        r, d = nxt["r"], nxt["d"]
        if r >= 22: return
        if not nxt["pre"]:
            a_reads(0, 0); a_reads(0, 1); nxt["pre"] = True; return
        if not OPT.get("abl_um"): P(mfma([facc, facc1][d], fa + 4 * d, hb[r % NB], [facc, facc1][d] if r else None))
        if r + 1 < 22: a_reads(r + 1, d)
        if d == 1 and r + NB < 22: dq.insert(0, lambda r=r: h_load(r + NB))
        nxt["d"] = 1 - d; nxt["r"] = r + d
    US = [("g1", "g4"), ("g2", "g5"), ("g1", "g5"), ("g2", "g6"), ("g3", "g6")][OPT.get("us", 3)]
    VS = [("pv2", "qk"), ("qk", "pv1"), ("pv2", "pv1"), ("g3", "g6"), ("qk", "g6")][OPT.get("vs", 0)]
    def hookU(it, x, pos):
        sig = (x == 0 and (it & 1)); ph = 2 * it + x
        if pos == "sync?": return False
        if pos == "pre0": sigstamp(it, 0); return
        if pos == "pre":
            if it == HF: P.wait_vm_all()
            need = [b for b in issued if issued[b] == 2 and b not in vis and (it == 29 or b <= (max(0, ph + 8 - R0) * (2 if ph + 6 >= DBL else 1)) // 2) and b <= 10]
            if need: P.wait_tag(*[f"fw{b}" for b in need])
            if it == HF: need = need + list(range(LW))
            pend["vis"] = need; pend["free"] = {b for b in rd_done if rd_done[b] >= 4}
            sigstamp(it, 1); return
        if pos == "pv1" and sig and it == HF and OPT.get("ef", -1) < 0:
            nonce_check(P, SL, vn, vz)
            flag_store(P, vz, t0, S_FS)
        if pos == "chk":
            vis.update(pend["vis"])
            while it >= HF and nxt["b"] < 15:
                b = nxt["b"]; prev = {8: 0, 9: 1, 10: 2, 11: 3, 12: 4, 13: 5, 14: 6}.get(b)
                if prev is not None and prev not in pend["free"]: break
                qW(b); nxt["b"] += 1
            return
        if OPT.get("wo2") and it == OPT["wo2"] and x == 0 and pos == "qk":
            P(f"v_lshrrev_b32 v{t0}, 2, v{lane}")
            P(f"v_lshlrev_b32 v{t0}, 10, v{t0}")
            P(f"v_and_b32 v{t1}, 3, v{lane}")
            P(f"v_lshl_add_u32 v{t0}, v{t1}, 7, v{t0}")
            P(f"s_lshr_b32 s{S_T0}, s2, 3")
            P(f"s_lshl_b32 s{S_T0}, s{S_T0}, 3")
            P(f"s_add_u32 s{S_T0}, s{S_T0}, s{S_W}")
            P(f"s_lshl_b32 s{S_T0}, s{S_T0}, 11")
            P(f"s_and_b32 s{S_T1}, s2, 1")
            P(f"s_lshl_b32 s{S_T1}, s{S_T1}, 9")
            P(f"s_add_u32 s{S_T0}, s{S_T0}, s{S_T1}")
            P("s_mov_b64 exec, 0xff")
            P(f"buffer_load_dword v{vpd}, v{t0}, s[{S_WO}:{S_WO+3}], s{S_T0} offen")
            P.I[-1].vw = set()
            P("s_mov_b64 exec, -1")
        PP = OPT.get("pp", 2)
        if (PP == 0 and pos == "pv2" and x == 0 and it == CH - 1) or (PP == 1 and pos == "g1" and x == 1 and it == CH - 1) or \
           (PP == 2 and pos == "pv1" and x == 1 and it == CH - 1): P(flag_load(vfl, 1, vhf, f"s{S_FP}"))
        EF = OPT.get("ef", -1)
        if ph == EF and pos == "g4":
            P.wait_vm_all(); nonce_check(P, SL, vn, vz); flag_store(P, vz, t0, S_FS)
        if pos == "pv2" and x == 0 and it == CH:
            spin_check(P, SL, [flag_load(vfl, 1, vhf, f"s{S_FP}")], flag_cmp(vfl, 1, t0), sleep=OPT.get("hsl", 4))
            for r in range(NB): dq.insert(r, lambda r=r: h_load(r))
        elif dq and (pos in VS or (pos in ("g2", "g5") and it in (CH, CH + 1)) or (pos == "g5" and OPT.get("d3"))): dq.pop(0)()
        if nxt["r"] >= 22 - OPT.get("tr", 5) and nxt["d"] == 0: pass
        elif (pos in US and ph >= R0) or (pos == US[1] and ph == R0 - 1) or (pos in ("g3", "g6") and ph >= DBL): mstep()
        if pos == "g6" and it == 31 and x == 1:
            assert nxt["b"] == 15, nxt
            print("rounds left for tail:", 22 - nxt["r"])
    def prioU(it, x):
        if not OPT.get("prio", 1): return None
        k = 2 * ((it + 1) & 1) + x
        return int(str(OPT.get("pu", 3210)).zfill(4)[k])
    attention(P, A, l16, range(UNI, 32), hookU, prioU)
    assert not dq
    stamp(P, 6)
    if OPT.get("sig"):
        P(f"s_lshl_b32 s98, s2, 11")
        P(f"s_lshl_b32 s99, s{S_W}, 8")
        P(f"s_add_u32 s98, s98, s99")
        P(f"s_add_u32 s98, s98, 0x{WS_STAMP + (1<<20):x}")
        P(f"buffer_store_dword v{vsig}, v{vl4}, {WSR}, s98 offen")
    P("s_setprio 0")
    P(f"v_mov_b32 v{O[1]+7}, v{O[1]}")
    for i in range(3): P(f"ds_write_b128 v{va}, {vr(O[1]+4+4*i,4)} offset:{1024*i}")
    P.wait_tag(*[f"fw{b}" for b in range(8, 15)]); P.wait_lgkm_all()
    P("s_barrier")
    vis.update(range(11))
    for i in range(3): P(f"ds_read_b128 {vr(O[1]+4+4*i,4)}, v{vb} offset:{1024*i}")
    P(f"v_add_f32 v{O[0]}, v{O[0]}, v{O[1]+7}")
    for r in range(8, 16): P(f"v_add_f32 v{O[0]+r}, v{O[0]+r}, v{O[1]+r}")
    P(f"v_mov_b32 v{t1}, 0x207")
    P(f"v_cmp_nle_f32 vcc, {hexf(2.0**-90)}, v{O[0]}")
    P(f"v_cmp_nge_f32 s[{S_PM}:{S_PM+1}], {'s' + str(S_T0)}, v{O[0]}".replace(f"s{S_T0}", f"s{S_C1}"))
    P(f"s_or_b64 vcc, vcc, s[{S_PM}:{S_PM+1}]")
    P(f"v_add3_u32 v{t0}, v{O[0]+8}, 0, 0".replace("v_add3_u32", "v_add_f32").replace(", 0, 0", f", v{O[0]+9}"))
    for r in range(10, 16): P(f"v_add_f32 v{t0}, v{t0}, v{O[0]+r}")
    P(f"v_cmp_class_f32 s[{S_PM}:{S_PM+1}], v{t0}, v{t1}")
    P(f"s_or_b64 vcc, vcc, s[{S_PM}:{S_PM+1}]")
    if OPT.get("forcefb"): P("s_mov_b64 vcc, -1")
    P("s_cmp_lg_u64 vcc, 0")
    P("s_cbranch_scc1 LF_fb")
    P("LF_fbr:")
    P(f"v_rcp_f32 v{t0}, v{O[0]}")
    P(f"v_mul_f32 v{t0}, v{t0}, v{vg}")
    for r in range(8, 16): P(f"v_mul_f32 v{O[0]+r}, v{O[0]+r}, v{t0}")
    for r in range(4): P(f"v_cvt_pk_bf16_f32 v{O[1]+r}, v{O[0]+8+2*r}, v{O[0]+9+2*r}")
    for r in range(4): P(f"v_min_u32 v{O[1]+r}, 0xfffffffe, v{O[1]+r}")
    P(f"buffer_store_dwordx4 {vr(O[1],4)}, v{l16}, {WSR}, s{S_OD} offen sc1", tag="ost")
    P(f"s_add_u32 s{S_FS}, s{S_FS}, 32768")
    flag_store(P, vz, t0, S_FS)
    P(f"s_lshr_b32 s{S_T1}, s{S_W}, 1")
    P(f"s_lshl_b32 s{S_T1}, s{S_T1}, 8")
    P(f"s_add_u32 s{S_FP}, s{S_FP}, s{S_T1}")
    P(f"s_add_u32 s{S_FP}, s{S_FP}, 32768")
    stamp(P, 7)
    K4, V8, ON, CM = A["fk"], A["fv"][0], fb, O[1]
    assert A["fv"][1] == V8 + 4
    nl = "\n    "
    fbk = f"""LF_fb:
    s_waitcnt vmcnt(0) lgkmcnt(0)
    v_mov_b32 v{t0}, 0xff800000
    s_mov_b32 s{S_T0}, 0x{WS_KF:x}
LF_fb1:
    buffer_load_dwordx4 {vr(K4,4)}, v{l16}, {WSR}, s{S_T0} offen sc1
    s_waitcnt vmcnt(0)
    {mfma(S[0], K4, qf)}
    s_nop 15
    {nl.join(f"v_max3_f32 v{t0}, v{S[0]+2*r}, v{S[0]+2*r+1}, v{t0}" for r in range(8))}
    s_add_u32 s{S_T0}, s{S_T0}, 1024
    s_cmp_lt_u32 s{S_T0}, 0x{WS_KF + 65536:x}
    s_cbranch_scc1 LF_fb1
    v_mov_b32 v{t1}, v{t0}
    s_nop 1
    v_permlane32_swap_b32 v{t0}, v{t1}
    s_nop 1
    v_max_f32 v{t0}, v{t0}, v{t1}
    {nl.join(f"v_sub_f32 v{CM+r}, 0, v{t0}" for r in range(16))}
    {nl.join(f"v_mov_b32 v{O[0]+r}, 0" for r in range(16))}
    v_lshrrev_b32 v{t0}, 5, v{lane}
    v_lshlrev_b32 v{t0}, 8, v{t0}
    v_and_b32 v{t1}, 15, v{lane}
    v_lshl_add_u32 v{t0}, v{t1}, 4, v{t0}
    v_and_b32 v{t1}, 16, v{lane}
    v_cmp_eq_u32 vcc, 0, v{t1}
    v_mov_b32 v{t1}, 0x{OOB:x}
    s_nop 1
    v_cndmask_b32 v{t0}, v{t0}, v{t1}, vcc
    v_and_b32 v{t1}, 27, v{lane}
    v_cmp_eq_u32 vcc, 0, v{t1}
    v_mov_b32 v{ON}, 0x3f803f80
    s_nop 1
    v_cndmask_b32 v{ON}, 0, v{ON}, vcc
    s_mov_b32 s{S_T0}, 0x{WS_KF:x}
LF_fb2:
    s_add_u32 s{S_T1}, s{S_T0}, 0x{WS_VF - WS_KF:x}
    buffer_load_dwordx4 {vr(K4,4)}, v{l16}, {WSR}, s{S_T0} offen sc1
    buffer_load_dwordx4 {vr(V8,4)}, v{t0}, {WSR}, s{S_T1} offen sc1
    buffer_load_dwordx4 {vr(V8+4,4)}, v{t0}, {WSR}, s{S_T1} offen offset:512 sc1
    s_waitcnt vmcnt(0)
    {mfma(S[0], K4, qf, CM)}
    {nl.join(f"v_or_b32 v{V8+r}, v{V8+r}, v{ON}" for r in range(8))}
    s_nop 7
    {nl.join(f"v_exp_f32 v{S[0]+r}, v{S[0]+r}" for r in range(16))}
    s_nop 1
    {nl.join(f"v_cvt_pk_bf16_f32 v{S[1]+r}, v{S[0]+2*r}, v{S[0]+2*r+1}" for r in range(8))}
    s_nop 1
    {mfma(O[0], V8, S[1], O[0])}
    {mfma(O[0], V8+4, S[1]+4, O[0])}
    s_add_u32 s{S_T0}, s{S_T0}, 1024
    s_cmp_lt_u32 s{S_T0}, 0x{WS_KF + 65536:x}
    s_cbranch_scc1 LF_fb2
    s_nop 15
    s_branch LF_fbr
"""
    SL.add(fbk)
    for n in ("Sa", "Sb", "Oa", "qf", "fk", "fv1", "fv2"): V.release(n)
    ob = V.alloc("ob", 32); wa = [V.alloc(f"wa{u}", 8) for u in range(8)]
    def oloads(g): return [f"buffer_load_dwordx4 {vr(ob+16*g+4*u,4)}, v{l16}, {WSR}, s{[S_OL,S_OL2][g]} offen offset:{1024*u} sc1" for u in range(4)]
    def ocheck(g):
        b = ob + 16 * g
        L = [f"v_max3_u32 v{t0}, v{b}, v{b+1}, v{b+2}"]
        for k in range(3, 15, 2): L.append(f"v_max3_u32 v{t0}, v{b+k}, v{b+k+1}, v{t0}")
        L += [f"v_max_u32 v{t0}, v{b+15}, v{t0}", f"v_cmp_eq_u32 vcc, -1, v{t0}"]
        return L
    fa2 = V.alloc("ffa2", 8)
    wr = []
    for u in range(8):
        for d, v in ((0, vt0), (1, vt1)):
            wr.append([f"ds_read_b64_tr_b16 {vr(wa[u]+4*d,2)}, v{v} offset:{u*2048}", f"ds_read_b64_tr_b16 {vr(wa[u]+4*d+2,2)}, v{v} offset:{u*2048+1024}"])
    r0 = nxt["r"]; assert nxt["d"] == 0 and not dq
    def tr_reads(r, d):
        o = (4 * r % 64) * 2048; hi = o >> 16; o &= 0xffff; f = [fa, fa2][(r - r0) % 2] + 4 * d
        P(f"ds_read_b64_tr_b16 {vr(f,2)}, v{vA[d][hi]} offset:{o}")
        P(f"ds_read_b64_tr_b16 {vr(f+2,2)}, v{vA[d][hi]} offset:{o+1024}")
    if r0 + 1 < 22: tr_reads(r0 + 1, 0); tr_reads(r0 + 1, 1)
    OL = min(r0 + OPT.get("ol", 99), 22)
    for r in range(r0, 22):
        if OPT.get("ofp", 0) == 2 and r == 21:
            for x in ["s_mov_b64 exec, 0xffff", flag_load(vp, 1, vhf, f"s{S_FP}"), "s_mov_b64 exec, -1"]: P(x)
        if r == OL:
            for g in range(2):
                for x in oloads(g): P(x)
        for d in range(2):
            P(mfma([facc, facc1][d], [fa, fa2][(r - r0) % 2] + 4 * d, hb[r % NB], [facc, facc1][d]))
            if r + 2 < 22: tr_reads(r + 2, d)
            elif wr:
                for g in wr[:4]:
                    for x in g: P(x)
                del wr[:4]
    for g in wr:
        for x in g: P(x)
    assert 22 - r0 <= NB and r0 >= 16
    fl = ["s_mov_b64 exec, 0xffff", flag_load(vp, 1, vhf, f"s{S_FP}"), "s_mov_b64 exec, -1"]
    fc = ["s_mov_b64 exec, 0xffff", f"v_cmp_ne_u32 vcc, s{S_NONCE}, v{vp}", "s_mov_b64 exec, -1"]
    if OPT.get("ofp", 0) == 0:
        for x in fl: P(x)
    P.wait_lgkm_all(); P("s_barrier")
    if OPT.get("ofp", 0) == 1:
        for x in fl: P(x)
    spin_check(P, SL, fl, fc, sleep=OPT.get("fsl", 1))
    if OL == 22:
        for g in range(2):
            for x in oloads(g): P(x)
    P(f"v_sub_f32 v{t1}, 1.0, v{vg}")
    P(f"v_mov_b32 v{t0}, v{t1}")
    assert t1 == t0 + 1 and t0 % 2 == 0
    for r in range(0, 16, 2): P(f"v_pk_mul_f32 v[{facc+r}:{facc+r+1}], v[{facc+r}:{facc+r+1}], v[{t0}:{t1}]")
    for r in range(0, 16, 2): P(f"v_pk_mul_f32 v[{facc1+r}:{facc1+r+1}], v[{facc1+r}:{facc1+r+1}], v[{t0}:{t1}]")
    if not OPT.get("oab", 1): P.wait_lgkm_all(); P("s_barrier")
    stamp(P, 8)
    nl = "\n    "
    PROBE = lambda g: f"""s_mov_b64 exec, 0xf
    buffer_load_dword v{vp}, v{vpa}, {WSR}, s{[S_OL,S_OL2][g]} offen offset:1020 sc1
    s_waitcnt vmcnt(0)
    v_cmp_eq_u32 vcc, -1, v{vp}
    s_mov_b64 exec, -1"""
    for g in range(2):
        k = SL.n; SL.n += 1
        for x in ocheck(g): P(x)
        P(f"s_cbranch_vccz LR{k}")
        raw(P, f"""{cnt(1+k)}    s_mov_b32 s{S_T7}, 0
LS{k}_p:
    {f"s_sleep {OPT.get('osl', 1)}" if OPT.get('osl', 1) else "s_nop 0"}
    {"" if OPT.get("odir") else PROBE(g)}
    s_add_u32 s{S_T7}, s{S_T7}, 1
    s_cmp_ge_u32 s{S_T7}, 0x{SPIN_MAX:x}
    s_cbranch_scc1 LR{k}
    {"" if OPT.get("odir") else f"s_cbranch_vccnz LS{k}_p"}
    {nl.join(oloads(g))}
    s_waitcnt vmcnt(0)
    {nl.join(ocheck(g))}
    s_cbranch_vccnz LS{k}_p
""")
        P(f"LR{k}:")
        for u in range(4 * g, 4 * g + 4):
            P(mfma(facc1, wa[u] + 4, ob + 4 * u, facc1))
    W1 = [f"ds_write_b128 v{vw[b-1]}, {vr(src+4*i,4)} offset:{2048*(b-1) + 1024*i}" for b, src in ((2, facc1), (3, facc1 + 8)) for i in range(2)]
    for u in range(8):
        P(mfma(facc, wa[u], ob + 4 * u, facc))
        if u >= 3 and W1:
            if u == 3: P("s_nop 7")
            P(W1.pop(0))
    stamp(P, 9)
    for b, src in ((1, facc + 8),):
        for i in range(2): P(f"ds_write_b128 v{vw[b-1]}, {vr(src+4*i,4)} offset:{2048*(b-1) + 1024*i}")
    P.wait_lgkm_all()
    P("s_barrier")
    for i in range(6): P(f"ds_read_b128 {vr(ob+4*i,4)}, v{vrd} offset:{1024*i}")
    for b in range(3):
        for r in range(8): P(f"v_add_f32 v{facc+r}, v{facc+r}, v{ob+8*b+r}")
    for r in range(4): P(f"v_cvt_pk_bf16_f32 v{facc1+r}, v{facc+2*r}, v{facc+2*r+1}")
    P(f"v_permlane32_swap_b32 v{facc1}, v{facc1+2}")
    P(f"v_permlane32_swap_b32 v{facc1+1}, v{facc1+3}")
    P(f"buffer_store_dwordx4 {vr(facc1,4)}, v{vo}, s[{S_OUT}:{S_OUT+3}], s{S_OO} offen")
    if OPT.get("cnt"):
        P(f"v_lshrrev_b32 v1, v{lane}, s85".replace(f"v{lane}, s85", f"v{lane}, v0") if False else f"v_mov_b32 v0, s85")
        P(f"v_lshrrev_b32 v1, v{lane}, v0")
        P(f"v_and_b32 v1, 1, v1")
        P(f"v_lshlrev_b32 v0, 2, v{lane}")
        P("s_mov_b64 exec, 0xfe")
        P(f"buffer_atomic_add v1, v0, s[{S_DBG}:{S_DBG+3}], 0 offen")
    if STAMP["on"]:
        P.wait_vm_all(); stamp(P, 10); stamp_dump(P, lane)
        if OPT.get("amp") is not None:
            q, q0 = OPT["amp"], OPT.get("amp0", 12)
            if OPT.get("ampwg") is not None:
                P(f"s_cmp_lg_u32 s2, {OPT['ampwg']}"); P("s_cbranch_scc1 LF_end")
            P(f"s_cmp_lg_u32 s{S_W}, {OPT.get('ampw', 0)}"); P("s_cbranch_scc1 LF_end")
            P(f"v_readlane_b32 s96, v{VSTAMP}, {q}")
            if q0 == 99: P(f"s_mov_b32 s97, s{S_NONCE}")
            else: P(f"v_readlane_b32 s97, v{VSTAMP}, {q0}")
            P("s_nop 4")
            P("s_sub_u32 s96, s96, s97")
            if q0 == 99: P("s_add_u32 s96, s96, 200")
            P("s_min_u32 s96, s96, 3000")
            P("s_mul_i32 s96, s96, 10")
            P("s_memrealtime s[98:99]"); P("s_waitcnt lgkmcnt(0)")
            P("s_add_u32 s96, s96, s98")
            P("LF_amp:")
            P("s_sleep 8")
            P("s_memrealtime s[98:99]"); P("s_waitcnt lgkmcnt(0)")
            P("s_sub_u32 s97, s98, s96")
            P("s_cmp_lt_i32 s97, 0")
            P("s_cbranch_scc1 LF_amp")
        if OPT.get("dbgst") is not None:
            P(f"s_cmp_lg_u32 s2, {OPT['dbgst']}")
            P("s_cbranch_scc1 LF_end")
            P(f"s_cmp_lg_u32 s{S_W}, {OPT.get('dbgw', 0)}")
            P("s_cbranch_scc1 LF_end")
            P(f"v_subrev_u32 v{VSTAMP}, s100, v{VSTAMP}")
            P("s_mov_b64 exec, 0x7fff")
            P(f"buffer_store_dword v{VSTAMP}, v1, s[{S_DBG}:{S_DBG+3}], 0 offen offset:4")
    P("LF_end:")
    P("s_endpgm")
    name = NAME + "_kernel"
    body, I = finalize(P)
    txt = f".text\n.globl {name}\n.p2align 8\n.type {name},@function\n{name}:\n" + body + "".join(SL.txt) + "LF_last:\n    s_endpgm\n"
    vg_ = 256 if STAMP["on"] else max(V.hi, 8)
    txt += KD.format(name=name, vgpr=vg_, sgpr=102 if STAMP['on'] else 96, accum=(vg_ + 3) // 4 * 4)
    return txt, I, vg_


if __name__ == "__main__":
    out = sys.argv[1]
    STAMP["on"] = "stamp" in sys.argv or "mst" in sys.argv
    if "mst" in sys.argv: STAMP["min"] = (4, 6, 10)
    if "hamp" in sys.argv: STAMP["on"] = True; STAMP["min"] = (10,); OPT["amp"] = 10
    for a in sys.argv[2:]:
        if "=" in a: k, v = a.split("="); OPT[k] = int(v)
        else: OPT[a] = True
    import asmlib; asmlib.MERGE_D = OPT.get("md", 9)
    t, I, vg_ = kernel_F()
    DOC = """; One fused kernel, 256 workgroups x 8 waves, one per CU (all co-resident).  Workgroup = (64-token group G, slice j).
;  start : K/V projection of 16 tokens (wave 7) -> d_ws + flag ; Q projection of 4 heads (waves 0-3) ; gate logit
;          exp is taken without a max; the row sum / output are range-checked afterwards and the tile is redone with the
;          true row maximum (LF_fb) whenever that could have overflowed or underflowed.
;  end   : o exchanged through d_ws (words preset to all-ones mean 'not written yet'), output projection, gated mix.
;  Hand-offs: write-through stores, vmcnt, then flags tagged with a per-launch nonce published through d_debug[0].
"""
    hdr = HEADER + DOC + f"; @launch grid=(256,1,1) block=(512,1,1) lds={LDS_BYTES}\n" + '.amdgcn_target "amdgcn-amd-amdhsa--gfx950"\n'
    open(out, "w").write(hdr + t)
    import subprocess
    r = subprocess.run(["clang", "-x", "assembler", "-target", "amdgcn-amd-amdhsa", "-mcpu=gfx950", "-c", out, "-o", "_chk.o"], capture_output=True, text=True)
    if r.returncode: print("ASM ERROR", r.stderr[:500])
    print("insts", len(I), "vgpr", vg_, "nops", sum(1 for x in I if x.kind == "nop"))
```

```python
import sys, re
from parts import *
OPT = {}
S_NONCE = 93
S_HP, S_KH = 30, 31
SH = [4, 5, 6]
S_FS, S_FP, S_OD, S_OL = 7, 8, 9, 10
S_FW, S_FB, S_FL, S_FL2 = 12, 13, 14, 15
S_OO, S_OL2 = 11, 18
S_VM = 28
S_PM = 16
FL_KV, FL_H = WS_FLAG, WS_FLAG + 8192
WKV_L = KV_RING
QSCR = KV_RING + 8192
FSLOT = [0, 32768, 65536, 98304]
WO_CH = [98304, 114688, 0, 32768]
SC1 = " sc1"
SPIN_MAX = 1 << 22
WSR = f"s[{S_WS}:{S_WS+3}]"


def cnt(k):
    if not OPT.get("cnt"): return ""
    return f"    s_bitset1_b32 s85, {k}\n"


def raw(P, text):
    for line in text.split("\n"):
        line = line.strip()
        if not line: continue
        P(line)
        x = P.I[-1]
        if x.kind not in ("label",):
            x.kind = "salu"; x.vr = set(); x.vw = set(); x.sr = set(); x.sw = set(); x.mf = None; x.meta = dict(skip=True)


class Slow:
    def __init__(self): self.txt = []; self.n = 0
    def add(self, t): self.txt.append(t)


LOADS = {}
def wq_pieces(P, vsl, s_first, n, label, rot):
    P(f"s_and_b32 s{S_T6}, s{S_G}, 7")
    if rot > 1: P(f"s_mul_i32 s{S_T6}, s{S_T6}, {rot}")
    P(f"s_add_u32 s{S_T5}, s{S_T6}, {n}")
    P(f"s_lshl_b32 s{S_T7}, s{S_J}, 7")
    P(f"{label}:")
    P(f"s_and_b32 s{S_T4}, s{S_T6}, {n-1}")
    P(f"s_add_u32 s{S_T4}, s{S_T4}, s{s_first}")
    P(f"s_mul_i32 s{S_T0}, s{S_T4}, 171")
    P(f"s_lshr_b32 s{S_T0}, s{S_T0}, 12")
    P(f"s_lshl_b32 s{S_T1}, s{S_T4}, 2")
    P(f"s_add_u32 s{S_T0}, s{S_T0}, s{S_T1}")
    P(f"s_lshl_b32 s{S_T0}, s{S_T0}, 8")
    P(f"s_add_u32 m0, s{S_T0}, 0x{SLOT[0]:x}")
    P(f"s_lshl_b32 s{S_T2}, s{S_T4}, 13")
    P(f"s_add_u32 s{S_T2}, s{S_T2}, s{S_T7}")
    P(f"s_add_u32 s{S_T6}, s{S_T6}, 1")
    P(f"buffer_load_dwordx4 v{vsl}, s[{S_WQ}:{S_WQ+3}], s{S_T2} offen lds")
    P.I[-1].kind = "salu"
    P(f"s_cmp_lg_u32 s{S_T6}, s{S_T5}")
    P(f"s_cbranch_scc1 {label}")


def emit_loads(P, l16, vsl, sfx):
    if sfx == "h":
        P(f"s_lshr_b32 s{S_T4}, s{S_J}, 1")
        P(f"s_lshl_b32 s{S_T4}, s{S_T4}, 4")
        P(f"s_mul_i32 s{S_T1}, s{S_W}, 12")
        P(f"s_add_u32 s{S_T4}, s{S_T4}, s{S_T1}")
        P(f"s_add_u32 s{S_T4}, s{S_T4}, 16")
        P(f"s_lshl_b32 s{S_T0}, s{S_G}, 16")
        P(f"s_and_b32 s{S_T6}, s{S_J}, 3")
        P(f"s_mul_i32 s{S_T6}, s{S_T6}, 3")
        P(f"s_mov_b32 s{S_T5}, 12")
        mk_srd(P, S_X, 4, SZ["x"])
        P("LF_ldx1:")
        P(f"s_add_u32 s{S_T1}, s{S_T6}, s{S_T4}")
        P(f"s_and_b32 s{S_T1}, s{S_T1}, 63")
        P(f"s_mul_i32 m0, s{S_T1}, {X_STRIDE}")
        P(f"s_lshl_b32 s{S_T2}, s{S_T1}, 10")
        P(f"s_add_u32 s{S_T2}, s{S_T2}, s{S_T0}")
        P(f"s_add_u32 s{S_T6}, s{S_T6}, 1")
        P(f"s_cmp_eq_u32 s{S_T6}, 12")
        P(f"s_cselect_b32 s{S_T6}, 0, s{S_T6}")
        P(f"buffer_load_dwordx4 v{l16}, s[{S_X}:{S_X+3}], s{S_T2} offen lds", tag="q")
        P(f"s_sub_u32 s{S_T5}, s{S_T5}, 1")
        P(f"s_cmp_lg_u32 s{S_T5}, 0")
        P("s_cbranch_scc1 LF_ldx1")
    else:
        mk_srd(P, S_WQ, 6, SZ["wq"])
        P(f"s_and_b32 s{S_T3}, s{S_W}, 3")
        P(f"s_lshl_b32 s{S_T3}, s{S_T3}, 3")
        wq_pieces(P, vsl, S_T3, 8, "LF_ldq1", 1)
        P(f"s_add_u32 s{S_T3}, s{S_T3}, 24")
        wq_pieces(P, vsl, S_T3, 8, "LF_ldq2", 1)


def prologue_f(P, V, endlabel):
    if STAMP["on"]: P("s_memrealtime s[100:101]")
    P("s_cmp_ge_u32 s2, 256")
    P(f"s_cbranch_scc1 {endlabel}")
    P("s_load_dwordx16 s[4:19], s[0:1], 0")
    P("s_load_dwordx8 s[20:27], s[0:1], 64")
    P("s_load_dwordx2 s[28:29], s[0:1], 96")
    lane = V.alloc("lane"); l16 = V.alloc("l16")
    if OPT.get("cpf", 1):
        c = V.alloc("cpf", 2)
        P(f"s_getpc_b64 s[{S_EX}:{S_EX+1}]")
        P("LF_pc0:")
        if OPT.get("cpf", 1) == 1:
            P(f"s_lshr_b32 s{S_T3}, s2, 3")
            P(f"s_lshl_b32 s{S_T3}, s{S_T3}, 11")
            P(f"v_lshrrev_b32 v{c}, 5, v0")
            P(f"v_lshlrev_b32 v{c}, 7, v{c}")
            P(f"v_add_u32 v{c}, s{S_T3}, v{c}")
            P(f"v_min_u32 v{c}, LF_last-LF_pc0, v{c}")
            P("s_mov_b32 exec_lo, 1"); P("s_mov_b32 exec_hi, 1")
        else:
            P(f"s_lshr_b32 s{S_T3}, s2, 3")
            P(f"s_and_b32 s{S_T3}, s{S_T3}, 15")
            P(f"s_lshl_b32 s{S_T3}, s{S_T3}, 12")
            P(f"v_lshrrev_b32 v{c}, 4, v0")
            P(f"v_lshlrev_b32 v{c}, 7, v{c}")
            P(f"v_add_u32 v{c}, s{S_T3}, v{c}")
            P(f"v_min_u32 v{c}, LF_last-LF_pc0, v{c}")
            P("s_mov_b32 exec_lo, 0x00010001")
            P("s_mov_b32 exec_hi, 0x00010001")
        P(f"global_load_dword v{c}, v{c}, s[{S_EX}:{S_EX+1}]", tag="cpf")
        P("s_mov_b64 exec, -1")
    P(f"v_lshrrev_b32 v1, 6, v0")
    P(f"v_and_b32 v{lane}, 63, v0")
    P(f"v_readfirstlane_b32 s{S_W}, v1")
    P(f"v_lshlrev_b32 v{l16}, 4, v{lane}")
    P(f"s_lshr_b32 s{S_T0}, s2, 3")
    if OPT.get("jrot"): P(f"s_add_u32 s{S_J}, s{S_T0}, {OPT['jrot']}"); P(f"s_and_b32 s{S_J}, s{S_J}, 3")
    else: P(f"s_and_b32 s{S_J}, s{S_T0}, 3")
    P(f"s_and_b32 s{S_T1}, s2, 1")
    P(f"s_lshl_b32 s{S_T1}, s{S_T1}, 2")
    P(f"s_add_u32 s{S_J}, s{S_J}, s{S_T1}")
    P(f"s_and_b32 s{S_G}, s2, 6")
    P(f"s_lshl_b32 s{S_G}, s{S_G}, 2")
    P(f"s_lshr_b32 s{S_T0}, s{S_T0}, 2")
    P(f"s_add_u32 s{S_G}, s{S_G}, s{S_T0}")
    t0 = V.alloc("t0"); t1 = V.alloc("t1")
    vsl = slice_pattern(P, V, lane, t0)
    LOADS["f"] = lambda sfx: emit_loads(P, l16, vsl, sfx)
    P(f"s_and_b32 s{S_TT}, s{S_W}, 1")
    P(f"s_lshl_b32 s{S_TILE}, s{S_G}, 1")
    P(f"s_add_u32 s{S_TILE}, s{S_TILE}, s{S_TT}")
    P(f"s_lshr_b32 s{S_HP}, s{S_W}, 1")
    P(f"s_and_b32 s{S_HP}, s{S_HP}, 1")
    P(f"s_lshr_b32 s{S_KH}, s{S_W}, 2")
    assert all((p * 171) >> 12 == p // 24 for p in range(64)) and SLOT_SZ == 3 * 8192 + 256
    return lane, l16, t0, t1, vsl


def rest_srds(P):
    P(f"s_cmp_eq_u32 s{S_TT}, 0")
    P(f"s_cselect_b32 s{S_WM}, s16, s18")
    P(f"s_cselect_b32 s{S_WM+1}, s17, s19")
    P(f"s_and_b32 s{S_WM+1}, s{S_WM+1}, 0xffff")
    P(f"s_mov_b32 s{S_WM+2}, 0x{SZ['wg']:x}")
    P(f"s_mov_b32 s{S_WM+3}, 0x20000")
    mk_srd(P, S_OUT, 24, SZ["out"])
    mk_srd(P, S_WO, 12, SZ["wo"])
    mk_srd(P, S_WD, 20, SZ["wd"])


def nonce_check(P, SL, vn, vz):
    k = SL.n; SL.n += 1
    P(f"v_readfirstlane_b32 s{S_NONCE}, v{vn}")
    P(f"s_cmp_lg_u32 s{S_NONCE}, 0")
    P(f"s_cbranch_scc1 LR{k}")
    raw(P, f"""{cnt(1+k)}    s_mov_b32 s{S_T7}, 0
LS{k}_l:
    s_sleep 2
    buffer_load_dword v{vn}, v{vz}, s[{S_DBG}:{S_DBG+3}], 0 offen sc1
    s_waitcnt vmcnt(0)
    v_readfirstlane_b32 s{S_NONCE}, v{vn}
    s_add_u32 s{S_T7}, s{S_T7}, 1
    s_cmp_ge_u32 s{S_T7}, 0x{SPIN_MAX:x}
    s_cbranch_scc1 LR{k}
    s_cmp_eq_u32 s{S_NONCE}, 0
    s_cbranch_scc1 LS{k}_l
""")
    P(f"LR{k}:")
    P("s_nop 0")


def flag_load(vf, n, vaddr, soff):
    op = {1: "buffer_load_dword", 4: "buffer_load_dwordx4"}[n]
    return f"{op} {vr(vf,n)}, v{vaddr}, {WSR}, {soff} offen sc1"


def flag_cmp(vf, n, t):
    L = [f"v_xor_b32 v{t}, s{S_NONCE}, v{vf}"]
    for i in range(1, n):
        L += [f"v_xor_b32 v{vf+i}, s{S_NONCE}, v{vf+i}", f"v_or_b32 v{t}, v{t}, v{vf+i}"]
    L += [f"v_cmp_ne_u32 vcc, 0, v{t}"]
    return L


def spin_check(P, SL, loads, cmps, sleep=1):
    k = SL.n; SL.n += 1
    for x in cmps: P(x)
    P(f"s_cbranch_vccz LR{k}")
    nl = "\n    "
    raw(P, f"""{cnt(1+k)}    s_mov_b32 s{S_T7}, 0
LS{k}_l:
    {f"s_sleep {sleep}" if sleep else "s_nop 0"}
    {nl.join(loads)}
    s_waitcnt vmcnt(0)
    {nl.join(cmps)}
    s_add_u32 s{S_T7}, s{S_T7}, 1
    s_cmp_ge_u32 s{S_T7}, 0x{SPIN_MAX:x}
    s_cbranch_scc1 LR{k}
    s_cbranch_vccnz LS{k}_l
""")
    P(f"LR{k}:")


def flag_store(P, vz, t, soff):
    P(f"v_mov_b32 v{t}, s{S_NONCE}")
    P("s_mov_b64 exec, 1")
    P(f"buffer_store_dword v{t}, v{vz}, {WSR}, s{soff} offen sc1", tag="flag")
    P("s_mov_b64 exec, -1")


PROG = MISC + 1024
class SplitBar:
    def __init__(self, P, V, SL, lane, t0):
        self.P, self.SL, self.n = P, SL, 0
        self.va = V.alloc("sba"); self.vr = V.alloc("sbr"); self.one = V.alloc("sb1"); self.vg = V.alloc("sbg")
        P(f"s_lshl_b32 s{S_T0}, s{S_W}, 8")
        P(f"s_add_u32 s{S_T0}, s{S_T0}, 0x{PROG:x}")
        P(f"v_lshlrev_b32 v{t0}, 2, v{lane}")
        P(f"v_add_u32 v{self.va}, s{S_T0}, v{t0}")
        P(f"v_and_b32 v{t0}, 7, v{lane}")
        P(f"v_mul_u32_u24 v{t0}, 260, v{t0}")
        P(f"v_add_u32 v{self.vr}, 0x{PROG:x}, v{t0}")
        P(f"v_mov_b32 v{self.one}, 0")
        P(f"ds_write_b32 v{self.va}, v{self.one}")
        P(f"v_mov_b32 v{self.one}, 1")
    def arrive(self):
        self.n += 1
        self.P(f"ds_add_u32 v{self.va}, v{self.one}")
    def peek(self): self.P(f"ds_read_b32 v{self.vg}, v{self.vr}")
    def check(self):
        k = self.SL.n; self.SL.n += 1
        self.P(f"v_cmp_gt_u32 vcc, {self.n}, v{self.vg}")
        self.P(f"s_cbranch_vccz LR{k}")
        self.P(f"LS{k}:")
        for t in ([f"s_sleep {OPT['ssl']}"] if OPT.get("ssl") else []) + [f"ds_read_b32 v{self.vg}, v{self.vr}", "s_waitcnt lgkmcnt(0)", f"v_cmp_gt_u32 vcc, {self.n}, v{self.vg}", f"s_cbranch_vccnz LS{k}"]:
            self.P(t); self.P.I[-1].kind = "salu"; self.P.I[-1].vw = set(); self.P.I[-1].vr = set()
        self.P(f"LR{k}:")


def attn_setup(P, V, lane, l16, t0, t1):
    A = {}
    P(f"s_lshl_b32 s{S_T1}, s{S_KH}, 12")
    vk = V.alloc("vk"); vv = [V.alloc("vv0"), V.alloc("vv1")]
    P(f"s_add_u32 s{S_T1}, s{S_T1}, 0x{KV_RING:x}")
    P(f"v_add_u32 v{vk}, s{S_T1}, v{l16}")
    P(f"v_lshrrev_b32 v{t0}, 5, v{lane}")
    P(f"v_lshlrev_b32 v{t0}, 8, v{t0}")
    P(f"v_and_b32 v{t1}, 15, v{lane}")
    P(f"v_lshl_add_u32 v{t0}, v{t1}, 4, v{t0}")
    P(f"v_and_b32 v{t1}, 16, v{lane}")
    P(f"v_cmp_eq_u32 vcc, 0, v{t1}")
    P(f"s_add_u32 s{S_T1}, s{S_T1}, 2048")
    for s in range(2):
        P(f"v_mov_b32 v{t1}, s{S_T1}")
        P(f"v_add_u32 v{t1}, {8192*s}, v{t1}")
        P(f"v_mov_b32 v{vv[s]}, 0x{ONES:x}")
        P(f"v_cndmask_b32 v{vv[s]}, v{t1}, v{vv[s]}, vcc")
        P(f"v_add_u32 v{vv[s]}, v{vv[s]}, v{t0}")
    P(f"s_lshl_b32 s{S_KVOFF}, s{S_KH}, 15")
    P(f"s_lshl_b32 s{S_T1}, s{S_HP}, 16")
    P(f"s_add_u32 s{S_KVOFF}, s{S_KVOFF}, s{S_T1}")
    P(f"s_lshl_b32 s{S_T1}, s{S_TT}, 10")
    P(f"s_add_u32 s{S_KVOFF}, s{S_KVOFF}, s{S_T1}")
    P(f"s_lshl_b32 s{S_KVLDS}, s{S_W}, 10")
    P(f"s_add_u32 s{S_KVLDS}, s{S_KVLDS}, 0x{KV_RING:x}")
    A.update(vk=vk, vv=vv)
    A["S"] = [V.alloc("Sa", 16), V.alloc("Sb", 16)]
    A["O"] = [V.alloc("Oa", 16), V.alloc("Ob", 16)]
    A["fk"] = V.alloc("fk", 4); A["fv"] = [V.alloc("fv1", 4), V.alloc("fv2", 4)]
    A["q"] = V.alloc("qf", 8)
    return A


def kv_dma(P, l16, c):
    dma(P, l16, S_WS, f"s{S_T2}", (S_KVLDS, 8192 * (c & 1)), tag=f"kv{c}", mods=SC1, pre=[f"s_add_u32 s{S_T2}, s{S_KVOFF}, {2048*c}"])


def attention(P, A, l16, its, hook, prio, kvf=None, bb=1):
    S, O, fk, fv = A["S"], A["O"], A["fk"], A["fv"]
    SB = OPT.get("sb", 0)
    q = [A["q"], A["q"] + 4]
    def rdK(it): P(f"ds_read_b128 {vr(fk,4)}, v{A['vk']} offset:{((it>>1)&1)*8192 + (it&1)*1024}")
    def rdV(it, half):
        m = OPT.get("vmask", 1) and it > 0
        if m: P(f"s_mov_b64 exec, s[{S_VM}:{S_VM+1}]")
        P(f"ds_read_b128 {vr(fv[half],4)}, v{A['vv'][(it>>1)&1]} offset:{(it&1)*1024 + half*512}")
        if m: P("s_mov_b64 exec, -1")
    E = lambda x, i: P(f"v_exp_f32 v{S[x]+i}, v{S[x]+i}")
    def C(x, i):
        b = S[x] + (8 if i >= 4 else 0); k = i & 3
        P(f"v_cvt_pk_bf16_f32 v{b+k}, v{b+2*k}, v{b+2*k+1}")
    for it in its:
        if it == 0:
            if OPT.get("vmask", 1): P(f"s_mov_b32 s{S_VM}, 0xffff0000"); P(f"s_mov_b32 s{S_VM+1}, 0xffff0000")
            rdK(0); rdV(0, 0)
            hook(0, 0, "start")
            P(mfma(S[0], fk, q[0]))
        for x in range(2):
            H = lambda pos: hook(it, x, pos)
            E(x, 0); E(x, 1)
            if x == 0:
                if it > 0: P(mfma(O[1], fv[1], S[1] + 8, O[1]))
                rdV(it, 1)
            else:
                P(mfma(O[0], fv[1], S[0] + 8, O[0]))
            H("pv2")
            E(x, 2); E(x, 3); H("g1")
            E(x, 4); E(x, 5); H("g2")
            E(x, 6); E(x, 7)
            if bb:
                H("g3")
                for i in range(4): C(x, i)
            if x == 0: P(mfma(S[1], fk, q[1]))
            elif it < 31: P(mfma(S[0], fk, q[0]))
            H("qk")
            sig = (x == 0 and (it & 1) and it < 31)
            syn = sig or (x == 0 and hook(it, x, "sync?"))
            ORD = OPT.get("ord", 2) if syn else 0
            if bb:
                E(x, 8); E(x, 9); H("g4")
                E(x, 10); E(x, 11)
                if ORD == 2: P(mfma(O[x], fv[0], S[x], None if it == 0 else O[x]))
            else:
                for i in range(4): C(x, i)
                if ORD == 0: H("g3")
                E(x, 8); E(x, 9)
                if ORD == 2: P(mfma(O[x], fv[0], S[x], None if it == 0 else O[x])); H("g3")
            if syn:
                H("pre0")
                if sig: P.wait_tag(f"kv{(it>>1)+1}")
                H("pre")
                P.wait_lgkm_all()
                P("s_barrier")
            if ORD != 2: P(mfma(O[x], fv[0], S[x], None if it == 0 else O[x]))
            p = prio(it, x)
            if p is not None: P(f"s_setprio {p}")
            if x == 0:
                if it < 31: rdK(it + 1)
                if (it & 1) and (it >> 1) + 2 < 16: (kvf or (lambda c: kv_dma(P, l16, c)))((it >> 1) + 2)
                if syn: hook(it, 0, "chk")
            else:
                if it < 31: rdV(it + 1, 0)
            H("pv1")
            if not bb: E(x, 10); E(x, 11); H("g4")
            E(x, 12); E(x, 13); H("g5")
            E(x, 14); E(x, 15); H("g6")
            for i in range(4, 8): C(x, i)
        if it == 31: P(mfma(O[1], fv[1], S[1] + 8, O[1]))


def fin_dma_w1(P, vsl, st, slot, tag, i):
    srd, u0 = (S_WD, 8 * st) if st < 11 else (S_WO, 8 * (st - 11))
    dma(P, vsl, srd, f"s{S_T2}", (S_FL2, slot + 1024 * i), tag=tag, pre=[f"s_add_u32 s{S_T2}, s{S_FW}, 0x{(16*u0 + 8*i)*1024:x}"])


def fin_dma_w2(P, vsl, st, slot, tag, i, other):
    dma(P, vsl, S_WD, f"s{S_T2}", (S_FL2, (slot + 1024 * i - 8192 * other) & 0xffffffff), tag=tag,
        pre=[f"s_add_u32 s{S_T2}, s{S_FW}, 0x{((128*st + 8*i)*1024 - 65536*other) & 0xffffffff:x}"])


def fin_dma_b1(P, l16, st, slot, tag, t):
    P(f"s_add_u32 s{S_T2}, s{S_FB}, 0x{(t*118 + 8*st)*1024:x}")
    if st == 10:
        P(f"s_cmp_lt_u32 s{S_W}, 6")
        P(f"s_cselect_b32 s{S_T2}, s{S_T2}, 0x{OOB:x}")
    dma(P, l16, S_WS, f"s{S_T2}", (S_FL, slot + 16384 + 8192 * t), tag=tag, mods=SC1)


def kernel_F():
    P = Prog(); V = Regs(2, 255, "v"); SL = Slow()
    NP = OPT.get("np", 2)
    JIT = 16 - NP
    GPP = OPT.get("gpp", 2)
    UNI = OPT.get("uni", JIT + 2)
    HF = OPT.get("hf", UNI | 1)
    lane, l16, t0, t1, vsl = prologue_f(P, V, "LF_end")
    vz = V.alloc("vz")
    P(f"s_cmp_lg_u32 s{S_W}, 7")
    P("s_cbranch_scc1 LF_not7")
    if OPT.get("p7", 1): P("s_setprio 3")
    P(f"s_lshr_b32 s{S_T4}, s{S_J}, 1")
    P(f"s_lshl_b32 s{S_T0}, s{S_G}, 16")
    P(f"s_lshl_b32 s{S_T2}, s{S_T4}, 14")
    P(f"s_add_u32 s{S_T2}, s{S_T2}, s{S_T0}")
    P(f"s_mul_i32 m0, s{S_T4}, {16*X_STRIDE}")
    P(f"s_and_b32 s{S_T3}, s{S_J}, 1")
    P(f"s_mov_b32 s{S_T5}, 0")
    P("s_waitcnt lgkmcnt(0)")
    mk_srd(P, S_X, 4, SZ["x"])
    if OPT.get("u7", 1):
        P(f"s_sub_u32 s{S_X}, s{S_X}, 64")
        P(f"s_subb_u32 s{S_X+1}, s{S_X+1}, 0")
        P(f"s_mov_b32 s{S_X+2}, 0x{SZ['x'] + 64:x}")
        P(f"s_add_u32 s{S_T2}, s{S_T2}, 64")
        for g in range(4):
            for k in range(4):
                if k == 0:
                    if g: P(f"s_add_u32 m0, m0, {4*X_STRIDE}"); P(f"s_add_u32 s{S_T2}, s{S_T2}, {4096 + 48}")
                else: P(f"s_sub_u32 s{S_T2}, s{S_T2}, 16")
                P(f"buffer_load_dwordx4 v{l16}, s[{S_X}:{S_X+3}], s{S_T2} offen offset:{X_STRIDE*k} lds", tag="c")
    else:
        P("LF_ldx7:")
        P(f"buffer_load_dwordx4 v{l16}, s[{S_X}:{S_X+3}], s{S_T2} offen lds", tag="c")
        P(f"s_add_u32 m0, m0, {X_STRIDE}")
        P(f"s_add_u32 s{S_T2}, s{S_T2}, 1024")
        P(f"s_add_u32 s{S_T5}, s{S_T5}, 1")
        P(f"s_cmp_lg_u32 s{S_T5}, 16")
        P("s_cbranch_scc1 LF_ldx7")
    P(f"s_cmp_eq_u32 s{S_T3}, 0")
    P(f"s_cselect_b32 s{S_WKV}, s8, s10")
    P(f"s_cselect_b32 s{S_WKV+1}, s9, s11")
    P(f"s_and_b32 s{S_WKV+1}, s{S_WKV+1}, 0xffff")
    P(f"s_mov_b32 s{S_WKV+2}, 0x{SZ['wk']:x}")
    P(f"s_mov_b32 s{S_WKV+3}, 0x20000")
    P(f"s_mov_b32 m0, 0x{WKV_L:x}")
    P(f"s_mov_b32 s{S_T5}, 0")
    P("LF_ldw7:")
    for i in range(4):
        P(f"buffer_load_dwordx4 v{l16}, s[{S_WKV}:{S_WKV+3}], s{S_T5} offen offset:{1024*i} lds")
        P.I[-1].kind = "salu"
    P(f"s_add_u32 m0, m0, 4096")
    P(f"s_add_u32 s{S_T5}, s{S_T5}, 4096")
    P(f"s_cmp_lg_u32 s{S_T5}, 16384")
    P("s_cbranch_scc1 LF_ldw7")
    stamp(P, 15)
    P("s_barrier")
    P("LF_not7:")
    P("s_waitcnt lgkmcnt(0)")
    P(f"v_mov_b32 v{vz}, 0")
    if OPT.get("cnt"): P("s_mov_b32 s85, 0")
    mk_srd(P, S_WS, 28, SZ["ws"])
    mk_srd(P, S_DBG, 26, SZ["dbg"])
    vn = V.alloc("vn")
    P(f"s_or_b32 s{S_T0}, s2, s{S_W}")
    P(f"s_cmp_lg_u32 s{S_T0}, 0")
    P("s_cbranch_scc1 LF_non")
    P.cond_begin()
    P(f"s_memrealtime s[{S_EX}:{S_EX+1}]")
    P("s_waitcnt lgkmcnt(0)")
    P(f"s_mul_i32 s{S_EX+1}, s{S_EX+1}, 0x9e3779b1")
    if OPT.get("amp0") != 99: P(f"s_xor_b32 s{S_EX}, s{S_EX}, s{S_EX+1}")
    P(f"s_or_b32 s{S_EX}, s{S_EX}, 1")
    P(f"v_mov_b32 v{t0}, s{S_EX}")
    P("s_mov_b64 exec, 1")
    P(f"buffer_store_dword v{t0}, v{vz}, s[{S_DBG}:{S_DBG+3}], 0 offen sc1")
    P("s_mov_b64 exec, -1")
    P.cond_end()
    P("LF_non:")
    P_main = P; P = Prog()
    rest_srds(P)
    mk_srd(P, S_GW, 22, SZ["gw"])
    P(f"s_mov_b32 s{S_C1}, {hexf(2.0**120)}")
    A = attn_setup(P, V, lane, l16, t0, t1)
    qf = A["q"]; O = A["O"]; S = A["S"]
    A["sb"] = SplitBar(P, V, SL, lane, t0) if OPT.get("sb", 0) else type("X", (), dict(n=0))()
    vfl = V.alloc("vfl", 4)
    P(f"s_lshl_b32 s{S_T0}, s{S_HP}, 1")
    P(f"s_add_u32 s{S_T0}, s{S_T0}, s{S_KH}")
    P(f"s_lshl_b32 s{S_T1}, s{S_J}, 2")
    P(f"s_add_u32 s{S_T0}, s{S_T0}, s{S_T1}")
    P(f"s_mul_i32 s{S_T1}, s{S_TILE}, 118")
    P(f"s_add_u32 s{S_T0}, s{S_T0}, s{S_T1}")
    P(f"s_lshl_b32 s{S_T0}, s{S_T0}, 10")
    P(f"s_add_u32 s{S_OD}, s{S_T0}, 0x{WS_OH + 86*1024:x}")
    def poison():
        for r in range(4): P(f"v_mov_b32 v{O[0]+r}, -1")
        P(f"buffer_store_dwordx4 {vr(O[0],4)}, v{l16}, {WSR}, s{S_OD} offen sc1", tag="poison")
    P(f"s_lshr_b32 s{S_T0}, s{S_W}, 1")
    P(f"s_lshl_b32 s{S_T0}, s{S_T0}, 3")
    P(f"s_add_u32 s{S_T0}, s{S_T0}, s{S_T1}")
    P(f"s_lshl_b32 s{S_T0}, s{S_T0}, 10")
    P(f"s_add_u32 s{S_OL}, s{S_T0}, 0x{WS_OH + 86*1024:x}")
    P(f"s_lshl_b32 s{S_FP}, s{S_G}, 10")
    P(f"s_lshl_b32 s{S_FS}, s{S_J}, 5")
    P(f"s_add_u32 s{S_FS}, s{S_FS}, s{S_W}")
    P(f"s_lshl_b32 s{S_FS}, s{S_FS}, 2")
    P(f"s_add_u32 s{S_FS}, s{S_FS}, s{S_FP}")
    P(f"s_add_u32 s{S_FS}, s{S_FS}, 0x{FL_H:x}")
    P(f"s_add_u32 s{S_FP}, s{S_FP}, 0x{FL_H:x}")
    P(f"s_lshl_b32 s{S_FW}, s{S_W}, 14")
    P(f"s_lshl_b32 s{S_T1}, s{S_J}, 7")
    P(f"s_add_u32 s{S_FW}, s{S_FW}, s{S_T1}")
    P(f"s_lshl_b32 s{S_FL2}, s{S_W}, 11")
    P(f"s_mul_i32 s{S_U0}, s{S_J}, 11")
    P(f"s_min_u32 s{S_U0}, s{S_U0}, 76")
    P(f"s_cmp_ge_u32 s{S_J}, 6")
    P(f"s_cselect_b32 s{S_NU}, 10, 11")
    vxa = xfrag_addr(P, V, "vxa", lane, t0, S_TT)
    vq = V.alloc("vq")
    P(f"s_and_b32 s{S_T0}, s{S_W}, 3")
    P(f"s_lshl_b32 s{S_T1}, s{S_T0}, 11")
    P(f"s_add_u32 s{S_T1}, s{S_T1}, 0x{QSCR:x}")
    P(f"v_add_u32 v{vq}, s{S_T1}, v{l16}")
    COMMON = P.I; P = P_main
    def emit(L):
        for x in L: P(x.text, tag=x.tag)
    iw = next(i for i, x in enumerate(COMMON) if x.text.startswith(f"s_mov_b32 s{S_WM+3},")) + 1
    iu = next(i for i, x in enumerate(COMMON) if x.text.startswith(f"s_mul_i32 s{S_U0},"))
    C_EARLY = COMMON[:iw] + COMMON[iu:iu + 4]; C_LATE = COMMON[iw:iu] + COMMON[iu + 4:]
    acc = [[V.alloc(f"acc{i}{t}", 16) for t in range(2)] for i in range(3)]
    fx = [[V.alloc(f"fx{b}{t}", 4) for t in range(2)] for b in range(2)]
    fw = [[V.alloc(f"fw{b}{i}", 4) for i in range(3)] for b in range(2)]
    S_PFB = 19
    def capture(f):
        nonlocal P
        P0 = P; P = Prog(); f(); L = P.I; P = P0
        return L
    R = {}
    def f1():
        vtn = tr_slice_addr(P, V, "vtn", lane, t0, t1, SLOT[0], S_HP, 8)
        vpf = V.alloc("vpf"); vpd = V.alloc("vpd"); vpw = V.alloc("vpw")
        P(f"v_bfe_u32 v{t0}, v{lane}, 4, 1")
        P(f"v_lshrrev_b32 v{t1}, 5, v{lane}")
        P(f"v_lshl_add_u32 v{t0}, v{t1}, 7, v{t0}")
        P(f"v_mul_u32_u24 v{vpf}, 2752, v{t0}")
        P(f"v_and_b32 v{t0}, 15, v{lane}")
        P(f"v_lshl_add_u32 v{vpf}, v{t0}, 7, v{vpf}")
        P(f"v_cmp_gt_u32 vcc, 12, v{t0}")
        P(f"v_mov_b32 v{t1}, 0x{OOB:x}")
        P(f"v_cndmask_b32 v{vpf}, v{t1}, v{vpf}, vcc")
        P(f"s_lshr_b32 s{S_T0}, s2, 3")
        P(f"s_lshl_b32 s{S_T0}, s{S_T0}, 1")
        P(f"s_add_u32 s{S_T0}, s{S_T0}, s{S_HP}")
        P(f"s_mul_i32 s{S_T0}, s{S_T0}, {2*2752}")
        P(f"s_and_b32 s{S_T1}, s2, 1")
        P(f"s_mul_i32 s{S_T1}, s{S_T1}, {44*32}")
        P(f"s_add_u32 s{S_PFB}, s{S_T0}, s{S_T1}")
        R.update(vtn=vtn, vpf=vpf, vpd=vpd, vpw=vpw)
    def f2():
        vx0 = V.alloc("vx0")
        P(f"s_mul_i32 s{S_T0}, s{S_TT}, {32*X_STRIDE}")
        P(f"v_subrev_u32 v{vx0}, s{S_T0}, v{vxa}")
        P(f"s_lshl_b32 s{S_T4}, s{S_W}, 1")
        wtr = w_tr_addrs(P, V, lane, t0, t1, s_w=S_T4)
        R.update(vx0=vx0, wtr=wtr)
    def f3():
        P(f"s_mul_i32 s{S_T0}, s{S_W}, 3")
        P(f"s_mul_i32 s{S_T1}, s{S_G}, 236")
        P(f"s_add_u32 s{S_T1}, s{S_T1}, s{S_U0}")
        for i in range(3):
            P(f"s_add_u32 s{S_T2}, s{S_T0}, {i}")
            P(f"s_add_u32 s{SH[i]}, s{S_T1}, s{S_T2}")
            P(f"s_lshl_b32 s{SH[i]}, s{SH[i]}, 10")
            P(f"s_add_u32 s{SH[i]}, s{SH[i]}, 0x{WS_OH:x}")
            P(f"s_cmp_lt_u32 s{S_T2}, s{S_NU}")
            P(f"s_cselect_b32 s{SH[i]}, s{SH[i]}, 0x{OOB:x}")
    def f4():
        vpw = R["vpw"]
        S_PFS = S_WKV
        P(f"s_lshr_b32 s{S_T0}, s2, 3")
        P(f"s_lshl_b32 s{S_T0}, s{S_T0}, 2")
        P(f"s_add_u32 s{S_T0}, s{S_T0}, s{S_W}")
        P(f"s_cmp_lt_u32 s{S_T0}, 86")
        P(f"s_cselect_b32 s{S_PFS}, s{S_WD}, s{S_WO}")
        P(f"s_cselect_b32 s{S_PFS+1}, s{S_WD+1}, s{S_WO+1}")
        P(f"s_cselect_b32 s{S_PFS+2}, s{S_WD+2}, s{S_WO+2}")
        P(f"s_cselect_b32 s{S_T1}, 0, 86")
        P(f"s_mov_b32 s{S_PFS+3}, 0x20000")
        P(f"s_sub_u32 s{S_T0}, s{S_T0}, s{S_T1}")
        P(f"s_lshl_b32 s{S_T0}, s{S_T0}, 14")
        P(f"s_and_b32 s{S_T1}, s2, 1")
        P(f"s_lshl_b32 s{S_T1}, s{S_T1}, 9")
        P(f"s_add_u32 s{S_T0}, s{S_T0}, s{S_T1}")
        P(f"v_lshrrev_b32 v{t0}, 2, v{lane}")
        P(f"v_lshlrev_b32 v{t0}, 10, v{t0}")
        P(f"v_and_b32 v{t1}, 3, v{lane}")
        P(f"v_lshl_add_u32 v{t0}, v{t1}, 7, v{t0}")
        P(f"v_add_u32 v{vpw}, s{S_T0}, v{t0}")
    ix = next(i for i, x in enumerate(COMMON) if x.text.startswith(f"v_and_b32 v{t0}, 31, v{lane}"))
    ia = next(i for i, x in enumerate(COMMON) if x.text.startswith(f"s_mov_b32 s{S_C1},")) + 1
    io = next(i for i, x in enumerate(COMMON) if x.text.startswith(f"s_lshl_b32 s{S_T0}, s{S_HP}, 1"))
    ifl = next(i for i, x in enumerate(COMMON) if x.text.startswith(f"s_lshl_b32 s{S_FP},"))
    H_PRE = COMMON[ix:ix + 6] + COMMON[:iw] + capture(f1)
    H_MID = COMMON[ia:io] + COMMON[ix + 6:] + capture(f2) + COMMON[io:ifl]
    H_LATE = [COMMON[iw:iw + 8], COMMON[iw + 8:ia], COMMON[ifl:iu], COMMON[iu:iu + 4]]
    sh = capture(f3); H_LATE += [sh[:9], sh[9:15], sh[15:]]
    wp = capture(f4); H_LATE += [wp[:14], wp[14:]]
    vtn, vpf, vpd, vpw, vx0, wtr = (R[k] for k in ("vtn", "vpf", "vpd", "vpw", "vx0", "wtr"))
    S_PFS = S_WKV
    def pf(blk, half):
        P(f"s_add_u32 s{S_T4}, s{S_PFB}, {128*2752*blk}")
        if half: P("s_mov_b64 exec, 0xffffffff")
        P(f"buffer_load_dword v{vpd}, v{vpf}, s[{S_WM}:{S_WM+3}], s{S_T4} offen", tag="pf")
        P.I[-1].vw = set()
        if half: P("s_mov_b64 exec, -1")
    PF = OPT.get("pf", 0)
    KT = 192; vx16 = 240; vw16 = 241; vst = 242; S_K5, S_K6 = S_T5, S_T6
    P(f"s_cmp_lg_u32 s{S_W}, 7")
    P("s_cbranch_scc1 LF_not7b")
    P.cond_begin()
    P(f"s_lshr_b32 s{S_T0}, s{S_J}, 1")
    P(f"s_lshl_b32 s{S_T1}, s{S_T0}, 4")
    P(f"v_and_b32 v{t0}, 15, v{lane}")
    P(f"v_add_u32 v{t1}, s{S_T1}, v{t0}")
    P(f"v_mul_u32_u24 v{vx16}, {X_STRIDE}, v{t1}")
    P(f"v_lshrrev_b32 v{t1}, 4, v{lane}")
    P(f"v_lshl_add_u32 v{vx16}, v{t1}, 4, v{vx16}")
    P(f"v_lshlrev_b32 v{vw16}, 8, v{t1}")
    P(f"v_lshl_add_u32 v{vw16}, v{t0}, 3, v{vw16}")
    P(f"v_add_u32 v{vw16}, 0x{WKV_L:x}, v{vw16}")
    P(f"s_and_b32 s{S_K6}, s{S_J}, 1")
    P(f"s_cmp_eq_u32 s{S_K6}, 0")
    P(f"s_cselect_b32 s{S_T3}, 9, 8")
    P(f"s_cselect_b32 s{S_T4}, 8, 9")
    P(f"s_cselect_b32 s{S_K5}, 0x{WS_KF:x}, 0x{WS_VF:x}")
    P(f"v_lshlrev_b32 v{vst}, 4, v{t0}")
    P(f"v_lshrrev_b32 v{t0}, 1, v{t1}")
    P(f"v_lshl_add_u32 v{vst}, v{t0}, 3, v{vst}")
    P(f"v_and_b32 v{t0}, 1, v{t1}")
    P(f"v_lshlrev_b32 v{t0}, s{S_T3}, v{t0}")
    P(f"v_add_u32 v{vst}, v{vst}, v{t0}")
    P(f"s_and_b32 s{S_T1}, s{S_T0}, 1")
    P(f"s_lshl_b32 s{S_T1}, s{S_T1}, s{S_T4}")
    P(f"s_add_u32 s{S_K5}, s{S_K5}, s{S_T1}")
    P(f"s_lshr_b32 s{S_T0}, s{S_T0}, 1")
    P(f"s_lshl_b32 s{S_T1}, s{S_G}, 1")
    P(f"s_add_u32 s{S_T0}, s{S_T0}, s{S_T1}")
    P(f"s_lshl_b32 s{S_T0}, s{S_T0}, 10")
    P(f"s_add_u32 s{S_K5}, s{S_K5}, s{S_T0}")
    P("s_waitcnt vmcnt(0)")
    P(f"buffer_load_dword v{vn}, v{vz}, s[{S_DBG}:{S_DBG+3}], 0 offen sc1")
    def kv16(which):
        d = KT
        xb = [(KT+16) + 4 * i for i in range(4)]; wb = [(KT+32) + 4 * i for i in range(4)]
        def ld(ks):
            P(f"ds_read_b128 {vr(xb[ks%4],4)}, v{vx16} offset:{ks*64}")
            P(f"ds_read_b64_tr_b16 {vr(wb[ks%4],2)}, v{vw16} offset:{ks*1024}")
            P(f"ds_read_b64_tr_b16 {vr(wb[ks%4]+2,2)}, v{vw16} offset:{ks*1024+128}")
        for ks in range(3): ld(ks)
        for ks in range(16):
            a, b = (wb[ks%4], xb[ks%4]) if which == 0 else (xb[ks%4], wb[ks%4])
            P(f"v_mfma_f32_16x16x32_bf16 {vr(d,4)}, {vr(a,4)}, {vr(b,4)}, {vr(d,4) if ks else 0}")
            if ks + 3 < 16: ld(ks + 3)
        if which == 0:
            P(f"s_mov_b32 s{S_T0}, {hexf(QK_SCALE)}")
            for r in range(4): P(f"v_mul_f32 v{d+r}, s{S_T0}, v{d+r}")
    P(f"s_cmp_eq_u32 s{S_K6}, 1")
    P("s_cbranch_scc1 LF_vch")
    P.cond_begin(); kv16(0); P.cond_end()
    P("s_branch LF_kvj")
    P("LF_vch:")
    P.cond_begin(); kv16(1); P.cond_end()
    P("LF_kvj:")
    for r in range(2): P(f"v_cvt_pk_bf16_f32 v{KT+4+r}, v{KT+2*r}, v{KT+2*r+1}")
    P(f"buffer_store_dwordx2 {vr(KT+4,2)}, v{vst}, {WSR}, s{S_K5} offen sc1")
    FB2 = OPT.get("fb2", 0)
    def w7flag():
        P(f"s_lshl_b32 s{S_T0}, s{S_G}, 3")
        P(f"s_add_u32 s{S_T0}, s{S_T0}, s{S_J}")
        P(f"s_lshl_b32 s{S_T0}, s{S_T0}, 2")
        P(f"s_add_u32 s{S_T0}, s{S_T0}, 0x{FL_KV:x}")
        P("s_waitcnt vmcnt(0)")
        nonce_check(P, SL, vn, vz)
        flag_store(P, vz, t0, S_T0)
    if not FB2: w7flag()
    def pf7():
        P(f"v_lshrrev_b32 v{t0}, 4, v{lane}")
        P(f"v_mul_u32_u24 v{vx16}, 2752, v{t0}")
        P(f"v_and_b32 v{t0}, 15, v{lane}")
        P(f"v_lshl_add_u32 v{vx16}, v{t0}, 7, v{vx16}")
        P(f"v_cmp_gt_u32 vcc, 12, v{t0}")
        P(f"v_mov_b32 v{t1}, 0x{OOB:x}")
        P(f"v_cndmask_b32 v{vx16}, v{t1}, v{vx16}, vcc")
        P(f"s_lshr_b32 s{S_T0}, s2, 3")
        P(f"s_mul_i32 s{S_T0}, s{S_T0}, {4*2752}")
        P(f"s_and_b32 s{S_T1}, s2, 1")
        P(f"s_mul_i32 s{S_T1}, s{S_T1}, {44*32}")
        P(f"s_add_u32 s{S_T0}, s{S_T0}, s{S_T1}")
        for m in range(2):
            mk_srd(P, S_WKV, 16 + 2 * m, SZ["wg"])
            P(f"buffer_load_dword v{fx[0][0]+m}, v{vx16}, s[{S_WKV}:{S_WKV+3}], s{S_T0} offen")
    if OPT.get("pf7", 0) == 1: pf7()
    stamp(P, 1)
    P("s_barrier")
    stamp(P, 2)
    if OPT.get("pf7", 0) == 2: pf7()
    if FB2 == 1: w7flag()
    P("s_barrier")
    if FB2 == 2: w7flag()
    P.cond_end(nowait=True)
    P("s_branch LF_light")
    P("LF_not7b:")
    P(f"s_cmp_lg_u32 s{S_KH}, 0")
    P("s_cbranch_scc1 LF_l0")

    def sigstamp(it, k):
        if OPT.get("sig"):
            P(f"s_memtime s[98:99]"); P("s_waitcnt lgkmcnt(0)"); P(f"v_writelane_b32 v{vsig}, s98, {2*it+k}")
    vsig = V.alloc("vsig") if OPT.get("sig") else None

    P.cond_begin()
    emit(H_PRE)
    stamp(P, 15)
    P("s_barrier")
    stamp(P, 0)
    LOADS["f"]("h")
    stamp(P, 1)
    if PF & 4: pf(0, True)
    P.wait_tag("q")
    P("s_barrier")
    stamp(P, 2)
    if PF & 2: pf(0, True)
    QD = 6
    xb = [acc[1][0] + 4 * i for i in range(QD)]; wb = [acc[2][0] + 4 * i for i in range(QD)]
    assert acc[1][1] == acc[1][0] + 16 and acc[2][1] == acc[2][0] + 16
    def q_loads(ks):
        o = SLOT[ks // 12] - SLOT[0] + (ks % 12) * 2048
        P(f"ds_read_b128 {vr(xb[ks%QD],4)}, v{vxa} offset:{ks*32}")
        P(f"ds_read_b64_tr_b16 {vr(wb[ks%QD],2)}, v{vtn} offset:{o}")
        P(f"ds_read_b64_tr_b16 {vr(wb[ks%QD]+2,2)}, v{vtn} offset:{o+512}")
    for ks in range(QD - 1): q_loads(ks)
    for ks in range(32):
        P(mfma(acc[0][0], wb[ks%QD], xb[ks%QD], acc[0][0] if ks else None))
        if ks in (11, 23):
            stamp(P, 11 if ks == 11 else 13)
            P("s_barrier")
        if ks + QD - 1 in (12, 24): P("s_barrier")
        if ks + QD - 1 < 32: q_loads(ks + QD - 1)
        nf = -(-len(H_MID) // 28)
        emit(H_MID[ks * nf:(ks + 1) * nf])
        if ks == OPT.get("pk", 30) and OPT.get("kl", 2) != 2:
            P(f"s_mov_b32 s{S_T5}, 0x{FL_KV:x}")
            P(f"buffer_load_dword v{vn}, v{vz}, s[{S_DBG}:{S_DBG+3}], 0 offen sc1")
            P(flag_load(vfl, 4, l16, f"s{S_T5}"))
    for r in range(8): P(f"v_cvt_pk_bf16_f32 v{qf+r}, v{acc[0][0]+2*r}, v{acc[0][0]+2*r+1}")
    P(f"ds_write_b128 v{vq}, {vr(qf,4)}")
    P(f"ds_write_b128 v{vq}, {vr(qf+4,4)} offset:1024")
    def kv_check():
        nonce_check(P, SL, vn, vz)
        spin_check(P, SL, [flag_load(vfl, 4, l16, f"s{S_T5}")], flag_cmp(vfl, 4, t0), sleep=OPT.get("ksl", 6))
        kv_dma(P, l16, 0)
        dma(P, l16, S_WS, f"s{S_T2}", (S_KVLDS, 4096), tag="kv0", mods=SC1, pre=[f"s_add_u32 s{S_T2}, s{S_T2}, 32768"])
    if not OPT.get("kl", 2): kv_check()
    def gu_reads(ks):
        s, kk = ks // 2, ks % 2
        so = SLOT[s % 3] - SLOT[0] + kk * 6144
        L = [f"ds_read_b128 {vr(fx[ks%2][0],4)}, v{vx0} offset:{ks*32}"]
        for i in range(3):
            f = fw[ks % 2][i]
            L += [f"ds_read_b64_tr_b16 {vr(f,2)}, v{wtr[i]} offset:{so}", f"ds_read_b64_tr_b16 {vr(f+2,2)}, v{wtr[i]} offset:{so+1536}"]
            if i == 0: L.append(f"ds_read_b128 {vr(fx[ks%2][1],4)}, v{vx0} offset:{ks*32 + 32*X_STRIDE}")
        return L
    def gu_groups(ks, late=False):
        R = gu_reads(ks + 1) if ks < 31 else []
        if OPT.get("abl_hds") and ks >= 2 * NP - 1: R = []
        G = []
        for m in range(6):
            i, t = m // 2, m % 2
            mm = [mfma(acc[i][t], fw[ks % 2][i], fx[ks % 2][t], acc[i][t] if ks else None)]
            if OPT.get("abl_hm") and ks >= 2 * NP - 1: mm = []
            G.append(mm + (R[2 * m: 2 * m + 2] if not late else ([] if m < 3 else R[3 * (m - 3): 3 * (m - 3) + 3])))
        return G
    P.wait_lgkm_all()
    stamp(P, 14)
    P("s_barrier")
    stamp(P, 3)
    for x in gu_reads(0): P(x)
    if OPT.get("kl", 2) == 1: kv_check()
    if OPT.get("kl", 2) == 2:
        P(f"s_mov_b32 s{S_T5}, 0x{FL_KV:x}")
        P(f"buffer_load_dword v{vn}, v{vz}, s[{S_DBG}:{S_DBG+3}], 0 offen sc1")
        P(flag_load(vfl, 4, l16, f"s{S_T5}"))
    PFI = OPT.get("pfi", 0)
    for ks in range(2 * NP - 1):
        if ks % 2 == 1:
            P.wait_lgkm_all(); P("s_barrier")
        for g in gu_groups(ks):
            for x in g: P(x)
        if ks == 0 and OPT.get("kl", 2) == 2: kv_check()
    P.wait_tag("kv0"); P.wait_lgkm_all(); P("s_barrier")
    stamp(P, 4)
    gq = []
    tmp = fx[0][0]; cst = fx[1][0]
    assert fx[0][1] == fx[0][0] + 4
    gel = []
    def load_window(k):
        n = 2 * (NP + k) - 1
        assert not gq
        gq.extend(gu_groups(n, late=(k > 0 and OPT.get("sb", 0))))
        if n < 31: gq.extend(gu_groups(n + 1))
    def hookH(it, x, pos):
        if pos == "sync?": return 1 <= it <= JIT
        if pos == "pre0": sigstamp(it, 0); return
        if pos == "pre": sigstamp(it, 1); return
        if pos == "start": load_window(0); return
        if pos == "qk" and it == 3 and x == 0:
            for r in range(4): P(f"v_mov_b32 v{vfl+r}, -1")
            P(f"buffer_store_dwordx4 {vr(vfl,4)}, v{l16}, {WSR}, s{S_OD} offen sc1", tag="poison")
        if pos == "qk" and it == 4 and x == 0:
            P(f"buffer_store_dwordx4 {vr(vfl,4)}, v{l16}, {WSR}, s{S_OD} offen offset:1024 sc1", tag="poison")
        midprio(it, x, pos, PH)
        if pos in ("qk", "pv1") and H_LATE: emit(H_LATE.pop(0))
        if pos == "pv2" and x == 1 and PF & 1:
            if it == PFI: pf(1, True)
            if it == PFI + 2: pf(2, True)
            if it == PFI + 5: pf(3, True)
        if pos == "pv2" and x == 1 and OPT.get("wpf", 1) and it in range(OPT.get("wi", 7), OPT.get("wi", 7) + 4):
            k = it - OPT.get("wi", 7)
            P(f"s_cmp_lg_u32 s{S_W}, {k}")
            P(f"s_cbranch_scc1 LF_wp{k}")
            P(f"buffer_load_dword v{vpd}, v{vpw}, s[{S_PFS}:{S_PFS+3}], 0 offen")
            P.I[-1].kind = "salu"; P.I[-1].vw = set()
            P(f"LF_wp{k}:")
        if pos == "pv1" and x == 0 and 1 <= it <= JIT: load_window(it)
        if pos in ("g1", "g2", "g3", "g4", "g5", "g6"):
            cnt = int(str(OPT.get("gm", 111111))[int(pos[1]) - 1]) if gq else 1
            cnt = 0 if cnt == 9 else cnt
            if gq and cnt == 0: pass
            elif gq:
                for _ in range(cnt):
                    if gq:
                        for t in gq.pop(0): P(t)
                if not gq and it == JIT and x == 1:
                    L = [f"v_mov_b32 v{cst}, {hexf(GELU_C1)}", f"v_mov_b32 v{cst+1}, {hexf(GELU_C1)}",
                         f"v_mov_b32 v{cst+2}, {hexf(GELU_C2)}", f"v_mov_b32 v{cst+3}, {hexf(GELU_C2)}"]
                    k = 0
                    for i in range(3):
                        for t in range(2):
                            d = fw[k % 2][k // 2]; k += 1
                            L += gelu_tile_pk(acc[i][t], d, tmp, cst)
                            if t == 1: L.append(f"s_add_u32 s{SH[i]}, s{SH[i]}, {118*1024}")
                            L.append(f"buffer_store_dwordx4 {vr(d,4)}, v{l16}, {WSR}, s{SH[i]} offen sc1")
                    ns = (2 if OPT.get("bbh", 0) else 3) + 12 * (UNI - JIT - 1)
                    n = (len(L) + ns - 1) // ns
                    gel.extend(L[i:i + n] for i in range(0, len(L), n))
            elif gel:
                for t in gel.pop(0): P(t, tag="hst" if "store" in t else None)
    PM = OPT.get("pm", 9)
    PH = [int(c) for c in str(OPT.get("ph", 3321)).zfill(4)]; PL = [int(c) for c in str(OPT.get("pl", 3210)).zfill(4)]
    def prioH(it, x):
        if PM == 9: return PH[2 * x] if it < JIT else 3
        if PM == 1: return 3 if (it == 0 and x == 0) else None
        if PM == 3: return 3 - 2 * x
        if PM == 5: return (3 - 2 * x) if it < JIT else 3
        if PM == 6: return 3 if it >= JIT else None
        return None
    def prioL(it, x):
        if PM == 9: return PL[2 * x] if it < JIT else 0
        if PM in (2, 6): return 1 if (it == 0 and x == 0) else None
        if PM == 3: return 3 - 2 * x
        if PM == 5: return (3 - 2 * x) if it < JIT else 0
        return None
    def midprio(it, x, pos, T=None):
        if PM == 9 and pos == "pv2" and it <= JIT: P(f"s_setprio {T[1] if x else T[3]}")
        if PM in (3, 5) and pos == "pv2" and (PM == 3 or it <= JIT): P(f"s_setprio {2 * x}")
    attention(P, A, l16, range(0, UNI), hookH, prioH, kvf=lambda c: None, bb=OPT.get("bbh", 0))
    nsb = A["sb"].n; A["sb"].n = 0
    assert not gq and not gel, (len(gq), len(gel))
    P.cond_end(keep=True)
    P("s_branch LF_join")
    for n in ("vx0", "vtn", "wtr0", "wtr1", "wtr2", "vpf"): V.release(n)

    P("LF_l0:")
    P.cond_begin()
    if OPT.get("q3", 0):
        P(f"s_cmp_lg_u32 s{S_W}, 4")
        P("s_cbranch_scc1 LF_q3")
        mk_srd(P, S_WQ, 6, SZ["wq"])
        P(f"v_lshlrev_b32 v{t0}, 10, v{lane}")
        P(f"s_lshr_b32 s{S_T0}, s2, 3")
        P(f"s_lshl_b32 s{S_T0}, s{S_T0}, 14")
        P(f"s_and_b32 s{S_T1}, s2, 1")
        P(f"s_lshl_b32 s{S_T1}, s{S_T1}, 9")
        P(f"s_add_u32 s{S_T0}, s{S_T0}, s{S_T1}")
        P("s_mov_b64 exec, 0xffff")
        raw(P, f"buffer_load_dword v{t1}, v{t0}, s[{S_WQ}:{S_WQ+3}], s{S_T0} offen offset:384")
        P("s_mov_b64 exec, -1")
        P("LF_q3:")
    P("s_barrier")
    LOADS["f"]("l")
    stamp(P, 1)
    if OPT.get("t3e", 1):
        P(f"s_cmp_eq_u32 s{S_W}, 6")
        P("s_cbranch_scc1 LF_l6")
        P(f"s_add_u32 s{S_T3}, s{S_T3}, 24")
        wq_pieces(P, vsl, S_T3, 8, "LF_ldq3", 1)
        P("s_waitcnt vmcnt(16)")
        P("s_barrier")
        stamp(P, 2)
        P("s_waitcnt vmcnt(8)")
        P("s_branch LF_l6j")
        P("LF_l6:")
        P("s_waitcnt vmcnt(8)")
        P("s_barrier")
        stamp(P, 2)
        P("s_waitcnt vmcnt(0)")
        P("LF_l6j:")
        P("s_barrier")
    else:
        P("s_waitcnt vmcnt(8)")
        P("s_barrier")
        stamp(P, 2)
        P(f"s_cmp_eq_u32 s{S_W}, 6")
        P("s_cbranch_scc1 LF_l6")
        P(f"s_add_u32 s{S_T3}, s{S_T3}, 24")
        wq_pieces(P, vsl, S_T3, 8, "LF_ldq3", 1)
        P("s_waitcnt vmcnt(8)")
        P("s_branch LF_l6j")
        P("LF_l6:")
        P("s_waitcnt vmcnt(0)")
        P("LF_l6j:")
        P("s_barrier")
    P("LF_light:")
    if OPT.get("p7", 1): P("s_setprio 0")
    mk_srd(P, S_GW, 22, SZ["gw"])
    dma(P, l16, S_GW, "0", (None, GWL), tag="gw")
    emit(C_EARLY)

    pats = w_patterns(P, V, lane, t0, t1)
    P(f"s_lshl_b32 s{S_T0}, s{S_HP}, 1")
    P(f"s_mul_i32 s{S_WOFF}, s{S_T0}, {8*2752}")
    P(f"s_lshl_b32 s{S_T1}, s{S_U0}, 5")
    P(f"s_add_u32 s{S_WOFF}, s{S_WOFF}, s{S_T1}")
    P(f"s_mul_i32 s{S_WLDS}, s{S_T0}, 3072")
    P(f"s_mul_i32 s{S_T1}, s{S_TT}, {UP_OFF}")
    P(f"s_add_u32 s{S_WLDS}, s{S_WLDS}, s{S_T1}")
    inattn = dict(on=False)
    P(f"s_add_u32 s{S_WOFF}, s{S_WOFF}, 0")
    P(f"v_subrev_u32 v{pats[1]}, 1024, v{pats[1]}")
    P(f"v_subrev_u32 v{pats[2]}, 2048, v{pats[2]}")
    def w_dma1(s, k):
        g, i = k // 3, k % 3
        solo = not OPT.get("wm0", 1) or inattn["on"]
        if i == 0 or solo:
            dma(P, pats[i], S_WM, f"s{S_T3}", (S_WLDS, SLOT[s % 3] + 3072 * g), offset=1024 * i, tag=f"w{s}",
                pre=[f"s_add_u32 s{S_T3}, s{S_WOFF}, 0x{(32*s + 8*g)*2752:x}"] if i == 0 else None)
        else:
            P(f"buffer_load_dwordx4 v{pats[i]}, s[{S_WM}:{S_WM+3}], s{S_T3} offen offset:{1024*i} lds", tag=f"w{s}")
    def w_dma6(s):
        for k in range(6): w_dma1(s, k)
    stamp(P, 11)
    P("s_barrier")
    w_dma6(0)
    P("s_waitcnt vmcnt(6)"); P.I[-1].kind = "salu"
    P("s_barrier")
    h = len(C_LATE) // 4
    emit(C_LATE[:h])
    stamp(P, 13)
    P("s_barrier")
    w_dma6(1)
    emit(C_LATE[h:])
    vgw = acc[0][1]
    P(f"v_lshrrev_b32 v{t0}, 5, v{lane}")
    P(f"v_lshlrev_b32 v{vgw}, 4, v{t0}")
    P(f"s_lshl_b32 s{S_T0}, s{S_HP}, 9")
    P(f"v_add_u32 v{vxa}, s{S_T0}, v{vxa}")
    P(f"s_add_u32 s{S_T0}, s{S_T0}, 0x{GWL:x}")
    P(f"v_add_u32 v{vgw}, s{S_T0}, v{vgw}")
    P(f"s_lshl_b32 s{S_T0}, s{S_W}, 8")
    P(f"s_add_u32 s{S_T0}, s{S_T0}, 0x{ONES - 1024:x}")
    P(f"v_lshlrev_b32 v{t0}, 2, v{lane}")
    P(f"v_add_u32 v{t0}, s{S_T0}, v{t0}")
    P(f"v_mov_b32 v{t1}, 0x3f803f80")
    P(f"v_lshrrev_b32 v1, 2, v{lane}")
    P(f"v_and_b32 v1, 11, v1")
    P(f"v_cmp_eq_u32 vcc, 0, v1")
    P(f"v_cndmask_b32 v{t1}, 0, v{t1}, vcc")
    P(f"ds_write_b32 v{t0}, v{t1}")
    P(f"ds_write_b32 v{t0}, v{t1} offset:1024")
    za = acc[0][0]; zx = [acc[1][0] + 4 * i for i in range(4)]; zg = [acc[2][0] + 4 * i for i in range(4)]
    def zjob():
        for r in range(4): P(f"v_mov_b32 v{za+r}, 0")
        def zld(k):
            P(f"ds_read_b128 {vr(zx[k%4],4)}, v{vxa} offset:{k*32}")
            P(f"ds_read_b128 {vr(zg[k%4],4)}, v{vgw} offset:{k*32}")
        for k in range(3): zld(k)
        for k in range(16):
            for r in range(4): P(f"v_dot2c_f32_bf16 v{za+r}, v{zx[k%4]+r}, v{zg[k%4]+r}")
            if k + 3 < 16: zld(k + 3)
        P("s_nop 2")
        P(f"v_add_f32 v{za}, v{za}, v{za+1}")
        P(f"v_add_f32 v{za+2}, v{za+2}, v{za+3}")
        P(f"v_add_f32 v{za}, v{za}, v{za+2}")
        P(f"s_and_b32 s{S_T0}, s{S_W}, 3")
        P(f"s_lshl_b32 s{S_T0}, s{S_T0}, 8")
        P(f"s_add_u32 s{S_T0}, s{S_T0}, 0x{MISC:x}")
        P(f"v_lshlrev_b32 v{t0}, 2, v{lane}")
        P(f"v_add_u32 v{t0}, s{S_T0}, v{t0}")
        P(f"ds_write_b32 v{t0}, v{za}")
    P(f"s_mov_b32 s{S_T6}, 0x{FL_KV:x}")
    def kv_both(c):
        kv_dma(P, l16, c)
        dma(P, l16, S_WS, f"s{S_T2}", (S_KVLDS, (8192 * (c & 1) - 4096) & 0xffffffff), tag=f"kv{c}", mods=SC1, pre=[f"s_sub_u32 s{S_T2}, s{S_T2}, 32768"])
    def poll_issue():
        P(f"buffer_load_dword v{vn}, v{vz}, s[{S_DBG}:{S_DBG+3}], 0 offen sc1")
        P(flag_load(vfl, 4, l16, f"s{S_T6}"))
    if OPT.get("zpre"): P.wait_tag("gw"); zjob()
    for s in range(0, NP + 1):
        P.wait_tag(f"w{s}")
        P.wait_lgkm_all()
        if s == 0: stamp(P, 14)
        P("s_barrier")
        if s == 0:
            stamp(P, 3)
            P(f"ds_read_b128 {vr(qf,4)}, v{vq} offset:1024")
            P(f"ds_read_b128 {vr(qf+4,4)}, v{vq}")
        if s == NP: kv_both(1)
        if s < NP: w_dma6(s + 2)
        if s == 0:
            P(f"buffer_load_dword v{vn}, v{vz}, s[{S_DBG}:{S_DBG+3}], 0 offen sc1")
            if not OPT.get("zpre"): zjob()
    assert NP >= 1
    stamp(P, 4)
    dq = []; wq2 = []
    def hookL(it, x, pos):
        if pos == "sync?": return 1 <= it <= JIT
        if pos == "pre0": sigstamp(it, 0); return
        if pos == "pre":
            if NP + it < 16: P.wait_tag(f"w{NP+it}")
            sigstamp(it, 1); return
        if (pos == "start" or pos == "chk") and NP + it + 2 < 16:
            assert not dq
            for k in range(0 if OPT.get("abl_ldma") else 6): dq.append(lambda s=NP + it + 2, k=k: w_dma1(s, k))
        midprio(it, x, pos, PL)
        LW = OPT.get("lw", 4)
        if pos == "chk" and it == JIT:
            for b in range(LW):
                for o in range(2):
                    for i in range(2): wq2.append(lambda b=b, o=o, i=i: fin_dma_w2(P, vsl, b, b * 16384, f"fw{b}", i, o))
        if wq2 and pos not in ("pre", "pre0", "chk", "start"):
            wq2.pop(0)()
            if it == UNI - 1 and x == 1 and pos == "g6":
                while wq2: wq2.pop(0)()
        LS = [("pv2", "qk", "pv1"), ("g1", "g3", "g5"), ("g2", "g4", "g6"), ("pv1", "g4", "g5", "g6", "pv2", "g1", "g2"), ("pv2", "pv1")][OPT.get("ls", 3)]
        if pos in LS and dq:
            dq.pop(0)()
            if OPT.get("ls", 3) == 4 and dq and len(dq) % 3 != 0: dq.pop(0)(); (dq.pop(0)() if pos == "pv1" and len(dq) % 3 else None)
    attention(P, A, l16, range(0, UNI), hookL, prioL, kvf=kv_both, bb=OPT.get("bbl", 0))
    assert A["sb"].n == nsb
    assert not dq
    P.cond_end(keep=True)
    P("LF_join:")
    P.join()
    for n in ["wpat0", "wpat1", "wpat2", "vxa", "vq"] + [f"acc{i}{t}" for i in range(3) for t in range(2)] + \
             [f"fx{b}{t}" for b in range(2) for t in range(2)] + [f"fw{b}{i}" for b in range(2) for i in range(3)]: V.release(n)
    stamp(P, 5)

    facc = V.alloc("facc", 16); facc1 = V.alloc("facc1", 16); fa = V.alloc("ffa", 8)
    NB = OPT.get("nb", 6)
    hb = [V.alloc(f"hb{i}", 4) for i in range(NB)]; fb = hb[0]
    vl4 = V.alloc("vl4"); vg = V.alloc("vg"); zt = V.alloc("zt", 2)
    va0 = tr_slice_addr(P, V, "fa0", lane, t0, t1, 0, S_KH, 4)
    vA = [[va0, V.alloc("fa0h")], [V.alloc("fa1"), V.alloc("fa1h")]]
    P(f"s_lshl_b32 s{S_T1}, s{S_HP}, 5")
    P(f"v_xor_b32 v{va0}, s{S_T1}, v{va0}")
    P(f"s_lshr_b32 s{S_T0}, s{S_W}, 1")
    P(f"s_lshl_b32 s{S_T1}, s{S_T0}, 11")
    P(f"v_add_u32 v{va0}, s{S_T1}, v{va0}")
    P(f"v_xor_b32 v{vA[1][0]}, 64, v{va0}")
    P(f"v_add_u32 v{vA[0][1]}, 0x10000, v{va0}")
    P(f"v_add_u32 v{vA[1][1]}, 0x10000, v{vA[1][0]}")
    P(f"s_mul_i32 s{S_FB}, s{S_TILE}, 118")
    P(f"s_add_u32 s{S_FB}, s{S_FB}, s{S_T0}")
    P(f"s_lshl_b32 s{S_FB}, s{S_FB}, 10")
    P(f"s_add_u32 s{S_FB}, s{S_FB}, 0x{WS_OH:x}")
    P(f"v_lshlrev_b32 v{vl4}, 2, v{lane}")
    vhf = V.alloc("vhf")
    P(f"v_lshrrev_b32 v{t0}, 3, v{lane}")
    P(f"v_mul_u32_u24 v{t0}, 96, v{t0}")
    P(f"v_add_u32 v{vhf}, v{t0}, v{vl4}")
    P(f"s_lshl_b32 s{S_T0}, s{S_TT}, 8")
    P(f"s_add_u32 s{S_T0}, s{S_T0}, 0x{MISC:x}")
    P(f"v_add_u32 v{t0}, s{S_T0}, v{vl4}")
    P(f"ds_read_b32 v{zt}, v{t0}")
    P(f"ds_read_b32 v{zt+1}, v{t0} offset:512")
    P(f"v_add_f32 v{zt}, v{zt}, v{zt+1}")
    P(f"v_mov_b32 v{zt+1}, v{zt}")
    P(f"v_permlane32_swap_b32 v{zt}, v{zt+1}")
    P(f"v_add_f32 v{zt}, v{zt}, v{zt+1}")
    P(f"v_mul_f32 v{t0}, {hexf(-LOG2E)}, v{zt}")
    P(f"v_exp_f32 v{t0}, v{t0}")
    P(f"v_add_f32 v{t0}, 1.0, v{t0}")
    P(f"v_rcp_f32 v{vg}, v{t0}")
    V.release("zt")
    vw = [V.alloc(f"vw{i}") for i in range(3)]; vrd = V.alloc("vrd"); vo = V.alloc("vo")
    def sbase(dst, w):
        P(f"s_mul_i32 s{S_T1}, s{w}, 6144")
        P(f"v_add_u32 v{dst}, s{S_T1}, v{l16}")
    sbase(vrd, S_W)
    for b in range(1, 4):
        P(f"s_xor_b32 s{S_T0}, s{S_W}, {b << 1}")
        sbase(vw[b - 1], S_T0)
    P(f"v_and_b32 v{vo}, 31, v{lane}")
    P(f"v_lshlrev_b32 v{vo}, 10, v{vo}")
    P(f"v_lshrrev_b32 v{t1}, 5, v{lane}")
    P(f"v_lshl_add_u32 v{vo}, v{t1}, 4, v{vo}")
    P(f"s_lshl_b32 s{S_OO}, s{S_TILE}, 15")
    P(f"s_lshl_b32 s{S_T1}, s{S_J}, 7")
    P(f"s_add_u32 s{S_OO}, s{S_OO}, s{S_T1}")
    P(f"s_lshl_b32 s{S_T1}, s{S_KH}, 6")
    P(f"s_add_u32 s{S_OO}, s{S_OO}, s{S_T1}")
    P(f"s_lshl_b32 s{S_T1}, s{S_HP}, 5")
    P(f"s_add_u32 s{S_OO}, s{S_OO}, s{S_T1}")
    vp = V.alloc("vp"); vpa = V.alloc("vpa")
    P(f"v_lshlrev_b32 v{vpa}, 10, v{lane}")
    vt0 = V.alloc("vt0"); vt1 = V.alloc("vt1")
    P(f"s_lshr_b32 s{S_T1}, s{S_W}, 1")
    P(f"s_mul_i32 s{S_T1}, s{S_T1}, {16384 - 2048}")
    P(f"s_add_u32 s{S_T1}, s{S_T1}, {3*16384}")
    P(f"v_add_u32 v{vt0}, s{S_T1}, v{vA[0][0]}")
    P(f"v_add_u32 v{vt1}, s{S_T1}, v{vA[1][0]}")
    va = V.alloc("cva"); vb = V.alloc("cvb"); fb = V.alloc("cvon")
    P(f"s_mul_i32 s{S_T0}, s{S_W}, 3072")
    P(f"s_add_u32 s{S_T0}, s{S_T0}, 114688")
    P(f"v_add_u32 v{va}, s{S_T0}, v{l16}")
    P(f"s_xor_b32 s{S_T0}, s{S_W}, 4")
    P(f"s_mul_i32 s{S_T0}, s{S_T0}, 3072")
    P(f"s_add_u32 s{S_T0}, s{S_T0}, 114688")
    P(f"v_add_u32 v{vb}, s{S_T0}, v{l16}")
    P(f"s_add_u32 s{S_OL2}, s{S_OL}, 4096")
    BSLOT = lambda b: ((b % 8) if b < 11 else (b - 8)) * 16384
    def a_reads(r, d):
        o = (4 * r % 64) * 2048; hi = o >> 16; o &= 0xffff
        assert r // 2 in vis, (r, vis)
        rd_done[r // 2] = rd_done.get(r // 2, 0) + 1
        if OPT.get("abl_uds"): return
        P(f"ds_read_b64_tr_b16 {vr(fa+4*d,2)}, v{vA[d][hi]} offset:{o}")
        P(f"ds_read_b64_tr_b16 {vr(fa+4*d+2,2)}, v{vA[d][hi]} offset:{o+1024}")
    def h_load(r):
        if OPT.get("abl_uh"): return
        P(f"s_add_u32 s{S_T2}, s{S_FB}, {4096*r}")
        if r == 21:
            P(f"s_cmp_lt_u32 s{S_W}, 4")
            P(f"s_cselect_b32 s{S_T2}, s{S_T2}, 0x{OOB:x}")
        P(f"buffer_load_dwordx4 {vr(hb[r%NB],4)}, v{l16}, {WSR}, s{S_T2} offen sc1")
    pend = {}
    LW = OPT.get("lw", 4)
    dq = []; vis = set(); issued = {}; rd_done = {}; nxt = dict(b=LW, r=0, d=0, pre=False)
    def qW(b):
        def f(i):
            if not OPT.get("abl_uw"): fin_dma_w1(P, vsl, b, BSLOT(b), f"fw{b}", i)
            issued[b] = issued.get(b, 0) + 1
        for i in range(2): dq.append(lambda i=i: f(i))
    CH = OPT.get("ch", HF + 4); R0 = OPT.get("r0", 2 * (CH + 1))
    DBL = OPT.get("dbl", 64)
    def mstep():
        r, d = nxt["r"], nxt["d"]
        if r >= 22: return
        if not nxt["pre"]:
            a_reads(0, 0); a_reads(0, 1); nxt["pre"] = True; return
        if not OPT.get("abl_um"): P(mfma([facc, facc1][d], fa + 4 * d, hb[r % NB], [facc, facc1][d] if r else None))
        if r + 1 < 22: a_reads(r + 1, d)
        if d == 1 and r + NB < 22: dq.insert(0, lambda r=r: h_load(r + NB))
        nxt["d"] = 1 - d; nxt["r"] = r + d
    US = [("g1", "g4"), ("g2", "g5"), ("g1", "g5"), ("g2", "g6"), ("g3", "g6")][OPT.get("us", 3)]
    VS = [("pv2", "qk"), ("qk", "pv1"), ("pv2", "pv1"), ("g3", "g6"), ("qk", "g6")][OPT.get("vs", 0)]
    def hookU(it, x, pos):
        sig = (x == 0 and (it & 1)); ph = 2 * it + x
        if pos == "sync?": return False
        if pos == "pre0": sigstamp(it, 0); return
        if pos == "pre":
            if it == HF: P.wait_vm_all()
            need = [b for b in issued if issued[b] == 2 and b not in vis and (it == 29 or b <= (max(0, ph + 8 - R0) * (2 if ph + 6 >= DBL else 1)) // 2) and b <= 10]
            if need: P.wait_tag(*[f"fw{b}" for b in need])
            if it == HF: need = need + list(range(LW))
            pend["vis"] = need; pend["free"] = {b for b in rd_done if rd_done[b] >= 4}
            sigstamp(it, 1); return
        if pos == "pv1" and sig and it == HF and OPT.get("ef", -1) < 0:
            nonce_check(P, SL, vn, vz)
            flag_store(P, vz, t0, S_FS)
        if pos == "chk":
            vis.update(pend["vis"])
            while it >= HF and nxt["b"] < 15:
                b = nxt["b"]; prev = {8: 0, 9: 1, 10: 2, 11: 3, 12: 4, 13: 5, 14: 6}.get(b)
                if prev is not None and prev not in pend["free"]: break
                qW(b); nxt["b"] += 1
            return
        if OPT.get("wo2") and it == OPT["wo2"] and x == 0 and pos == "qk":
            P(f"v_lshrrev_b32 v{t0}, 2, v{lane}")
            P(f"v_lshlrev_b32 v{t0}, 10, v{t0}")
            P(f"v_and_b32 v{t1}, 3, v{lane}")
            P(f"v_lshl_add_u32 v{t0}, v{t1}, 7, v{t0}")
            P(f"s_lshr_b32 s{S_T0}, s2, 3")
            P(f"s_lshl_b32 s{S_T0}, s{S_T0}, 3")
            P(f"s_add_u32 s{S_T0}, s{S_T0}, s{S_W}")
            P(f"s_lshl_b32 s{S_T0}, s{S_T0}, 11")
            P(f"s_and_b32 s{S_T1}, s2, 1")
            P(f"s_lshl_b32 s{S_T1}, s{S_T1}, 9")
            P(f"s_add_u32 s{S_T0}, s{S_T0}, s{S_T1}")
            P("s_mov_b64 exec, 0xff")
            P(f"buffer_load_dword v{vpd}, v{t0}, s[{S_WO}:{S_WO+3}], s{S_T0} offen")
            P.I[-1].vw = set()
            P("s_mov_b64 exec, -1")
        PP = OPT.get("pp", 2)
        if (PP == 0 and pos == "pv2" and x == 0 and it == CH - 1) or (PP == 1 and pos == "g1" and x == 1 and it == CH - 1) or \
           (PP == 2 and pos == "pv1" and x == 1 and it == CH - 1): P(flag_load(vfl, 1, vhf, f"s{S_FP}"))
        EF = OPT.get("ef", -1)
        if ph == EF and pos == "g4":
            P.wait_vm_all(); nonce_check(P, SL, vn, vz); flag_store(P, vz, t0, S_FS)
        if pos == "pv2" and x == 0 and it == CH:
            spin_check(P, SL, [flag_load(vfl, 1, vhf, f"s{S_FP}")], flag_cmp(vfl, 1, t0), sleep=OPT.get("hsl", 4))
            for r in range(NB): dq.insert(r, lambda r=r: h_load(r))
        elif dq and (pos in VS or (pos in ("g2", "g5") and it in (CH, CH + 1)) or (pos == "g5" and OPT.get("d3"))): dq.pop(0)()
        if nxt["r"] >= 22 - OPT.get("tr", 5) and nxt["d"] == 0: pass
        elif (pos in US and ph >= R0) or (pos == US[1] and ph == R0 - 1) or (pos in ("g3", "g6") and ph >= DBL): mstep()
        if pos == "g6" and it == 31 and x == 1:
            assert nxt["b"] == 15, nxt
            print("rounds left for tail:", 22 - nxt["r"])
    def prioU(it, x):
        if not OPT.get("prio", 1): return None
        k = 2 * ((it + 1) & 1) + x
        return int(str(OPT.get("pu", 3210)).zfill(4)[k])
    attention(P, A, l16, range(UNI, 32), hookU, prioU)
    assert not dq
    stamp(P, 6)
    if OPT.get("sig"):
        P(f"s_lshl_b32 s98, s2, 11")
        P(f"s_lshl_b32 s99, s{S_W}, 8")
        P(f"s_add_u32 s98, s98, s99")
        P(f"s_add_u32 s98, s98, 0x{WS_STAMP + (1<<20):x}")
        P(f"buffer_store_dword v{vsig}, v{vl4}, {WSR}, s98 offen")
    P("s_setprio 0")
    P(f"v_mov_b32 v{O[1]+7}, v{O[1]}")
    for i in range(3): P(f"ds_write_b128 v{va}, {vr(O[1]+4+4*i,4)} offset:{1024*i}")
    P.wait_tag(*[f"fw{b}" for b in range(8, 15)]); P.wait_lgkm_all()
    P("s_barrier")
    vis.update(range(11))
    for i in range(3): P(f"ds_read_b128 {vr(O[1]+4+4*i,4)}, v{vb} offset:{1024*i}")
    P(f"v_add_f32 v{O[0]}, v{O[0]}, v{O[1]+7}")
    for r in range(8, 16): P(f"v_add_f32 v{O[0]+r}, v{O[0]+r}, v{O[1]+r}")
    P(f"v_mov_b32 v{t1}, 0x207")
    P(f"v_cmp_nle_f32 vcc, {hexf(2.0**-90)}, v{O[0]}")
    P(f"v_cmp_nge_f32 s[{S_PM}:{S_PM+1}], {'s' + str(S_T0)}, v{O[0]}".replace(f"s{S_T0}", f"s{S_C1}"))
    P(f"s_or_b64 vcc, vcc, s[{S_PM}:{S_PM+1}]")
    P(f"v_add3_u32 v{t0}, v{O[0]+8}, 0, 0".replace("v_add3_u32", "v_add_f32").replace(", 0, 0", f", v{O[0]+9}"))
    for r in range(10, 16): P(f"v_add_f32 v{t0}, v{t0}, v{O[0]+r}")
    P(f"v_cmp_class_f32 s[{S_PM}:{S_PM+1}], v{t0}, v{t1}")
    P(f"s_or_b64 vcc, vcc, s[{S_PM}:{S_PM+1}]")
    if OPT.get("forcefb"): P("s_mov_b64 vcc, -1")
    P("s_cmp_lg_u64 vcc, 0")
    P("s_cbranch_scc1 LF_fb")
    P("LF_fbr:")
    P(f"v_rcp_f32 v{t0}, v{O[0]}")
    P(f"v_mul_f32 v{t0}, v{t0}, v{vg}")
    for r in range(8, 16): P(f"v_mul_f32 v{O[0]+r}, v{O[0]+r}, v{t0}")
    for r in range(4): P(f"v_cvt_pk_bf16_f32 v{O[1]+r}, v{O[0]+8+2*r}, v{O[0]+9+2*r}")
    for r in range(4): P(f"v_min_u32 v{O[1]+r}, 0xfffffffe, v{O[1]+r}")
    P(f"buffer_store_dwordx4 {vr(O[1],4)}, v{l16}, {WSR}, s{S_OD} offen sc1", tag="ost")
    P(f"s_add_u32 s{S_FS}, s{S_FS}, 32768")
    flag_store(P, vz, t0, S_FS)
    P(f"s_lshr_b32 s{S_T1}, s{S_W}, 1")
    P(f"s_lshl_b32 s{S_T1}, s{S_T1}, 8")
    P(f"s_add_u32 s{S_FP}, s{S_FP}, s{S_T1}")
    P(f"s_add_u32 s{S_FP}, s{S_FP}, 32768")
    stamp(P, 7)
    K4, V8, ON, CM = A["fk"], A["fv"][0], fb, O[1]
    assert A["fv"][1] == V8 + 4
    nl = "\n    "
    fbk = f"""LF_fb:
    s_waitcnt vmcnt(0) lgkmcnt(0)
    v_mov_b32 v{t0}, 0xff800000
    s_mov_b32 s{S_T0}, 0x{WS_KF:x}
LF_fb1:
    buffer_load_dwordx4 {vr(K4,4)}, v{l16}, {WSR}, s{S_T0} offen sc1
    s_waitcnt vmcnt(0)
    {mfma(S[0], K4, qf)}
    s_nop 15
    {nl.join(f"v_max3_f32 v{t0}, v{S[0]+2*r}, v{S[0]+2*r+1}, v{t0}" for r in range(8))}
    s_add_u32 s{S_T0}, s{S_T0}, 1024
    s_cmp_lt_u32 s{S_T0}, 0x{WS_KF + 65536:x}
    s_cbranch_scc1 LF_fb1
    v_mov_b32 v{t1}, v{t0}
    s_nop 1
    v_permlane32_swap_b32 v{t0}, v{t1}
    s_nop 1
    v_max_f32 v{t0}, v{t0}, v{t1}
    {nl.join(f"v_sub_f32 v{CM+r}, 0, v{t0}" for r in range(16))}
    {nl.join(f"v_mov_b32 v{O[0]+r}, 0" for r in range(16))}
    v_lshrrev_b32 v{t0}, 5, v{lane}
    v_lshlrev_b32 v{t0}, 8, v{t0}
    v_and_b32 v{t1}, 15, v{lane}
    v_lshl_add_u32 v{t0}, v{t1}, 4, v{t0}
    v_and_b32 v{t1}, 16, v{lane}
    v_cmp_eq_u32 vcc, 0, v{t1}
    v_mov_b32 v{t1}, 0x{OOB:x}
    s_nop 1
    v_cndmask_b32 v{t0}, v{t0}, v{t1}, vcc
    v_and_b32 v{t1}, 27, v{lane}
    v_cmp_eq_u32 vcc, 0, v{t1}
    v_mov_b32 v{ON}, 0x3f803f80
    s_nop 1
    v_cndmask_b32 v{ON}, 0, v{ON}, vcc
    s_mov_b32 s{S_T0}, 0x{WS_KF:x}
LF_fb2:
    s_add_u32 s{S_T1}, s{S_T0}, 0x{WS_VF - WS_KF:x}
    buffer_load_dwordx4 {vr(K4,4)}, v{l16}, {WSR}, s{S_T0} offen sc1
    buffer_load_dwordx4 {vr(V8,4)}, v{t0}, {WSR}, s{S_T1} offen sc1
    buffer_load_dwordx4 {vr(V8+4,4)}, v{t0}, {WSR}, s{S_T1} offen offset:512 sc1
    s_waitcnt vmcnt(0)
    {mfma(S[0], K4, qf, CM)}
    {nl.join(f"v_or_b32 v{V8+r}, v{V8+r}, v{ON}" for r in range(8))}
    s_nop 7
    {nl.join(f"v_exp_f32 v{S[0]+r}, v{S[0]+r}" for r in range(16))}
    s_nop 1
    {nl.join(f"v_cvt_pk_bf16_f32 v{S[1]+r}, v{S[0]+2*r}, v{S[0]+2*r+1}" for r in range(8))}
    s_nop 1
    {mfma(O[0], V8, S[1], O[0])}
    {mfma(O[0], V8+4, S[1]+4, O[0])}
    s_add_u32 s{S_T0}, s{S_T0}, 1024
    s_cmp_lt_u32 s{S_T0}, 0x{WS_KF + 65536:x}
    s_cbranch_scc1 LF_fb2
    s_nop 15
    s_branch LF_fbr
"""
    SL.add(fbk)
    for n in ("Sa", "Sb", "Oa", "qf", "fk", "fv1", "fv2"): V.release(n)
    ob = V.alloc("ob", 32); wa = [V.alloc(f"wa{u}", 8) for u in range(8)]
    def oloads(g): return [f"buffer_load_dwordx4 {vr(ob+16*g+4*u,4)}, v{l16}, {WSR}, s{[S_OL,S_OL2][g]} offen offset:{1024*u} sc1" for u in range(4)]
    def ocheck(g):
        b = ob + 16 * g
        L = [f"v_max3_u32 v{t0}, v{b}, v{b+1}, v{b+2}"]
        for k in range(3, 15, 2): L.append(f"v_max3_u32 v{t0}, v{b+k}, v{b+k+1}, v{t0}")
        L += [f"v_max_u32 v{t0}, v{b+15}, v{t0}", f"v_cmp_eq_u32 vcc, -1, v{t0}"]
        return L
    fa2 = V.alloc("ffa2", 8)
    wr = []
    for u in range(8):
        for d, v in ((0, vt0), (1, vt1)):
            wr.append([f"ds_read_b64_tr_b16 {vr(wa[u]+4*d,2)}, v{v} offset:{u*2048}", f"ds_read_b64_tr_b16 {vr(wa[u]+4*d+2,2)}, v{v} offset:{u*2048+1024}"])
    r0 = nxt["r"]; assert nxt["d"] == 0 and not dq
    def tr_reads(r, d):
        o = (4 * r % 64) * 2048; hi = o >> 16; o &= 0xffff; f = [fa, fa2][(r - r0) % 2] + 4 * d
        P(f"ds_read_b64_tr_b16 {vr(f,2)}, v{vA[d][hi]} offset:{o}")
        P(f"ds_read_b64_tr_b16 {vr(f+2,2)}, v{vA[d][hi]} offset:{o+1024}")
    if r0 + 1 < 22: tr_reads(r0 + 1, 0); tr_reads(r0 + 1, 1)
    OL = min(r0 + OPT.get("ol", 99), 22)
    for r in range(r0, 22):
        if OPT.get("ofp", 0) == 2 and r == 21:
            for x in ["s_mov_b64 exec, 0xffff", flag_load(vp, 1, vhf, f"s{S_FP}"), "s_mov_b64 exec, -1"]: P(x)
        if r == OL:
            for g in range(2):
                for x in oloads(g): P(x)
        for d in range(2):
            P(mfma([facc, facc1][d], [fa, fa2][(r - r0) % 2] + 4 * d, hb[r % NB], [facc, facc1][d]))
            if r + 2 < 22: tr_reads(r + 2, d)
            elif wr:
                for g in wr[:4]:
                    for x in g: P(x)
                del wr[:4]
    for g in wr:
        for x in g: P(x)
    assert 22 - r0 <= NB and r0 >= 16
    fl = ["s_mov_b64 exec, 0xffff", flag_load(vp, 1, vhf, f"s{S_FP}"), "s_mov_b64 exec, -1"]
    fc = ["s_mov_b64 exec, 0xffff", f"v_cmp_ne_u32 vcc, s{S_NONCE}, v{vp}", "s_mov_b64 exec, -1"]
    if OPT.get("ofp", 0) == 0:
        for x in fl: P(x)
    P.wait_lgkm_all(); P("s_barrier")
    if OPT.get("ofp", 0) == 1:
        for x in fl: P(x)
    spin_check(P, SL, fl, fc, sleep=OPT.get("fsl", 1))
    if OL == 22:
        for g in range(2):
            for x in oloads(g): P(x)
    P(f"v_sub_f32 v{t1}, 1.0, v{vg}")
    P(f"v_mov_b32 v{t0}, v{t1}")
    assert t1 == t0 + 1 and t0 % 2 == 0
    for r in range(0, 16, 2): P(f"v_pk_mul_f32 v[{facc+r}:{facc+r+1}], v[{facc+r}:{facc+r+1}], v[{t0}:{t1}]")
    for r in range(0, 16, 2): P(f"v_pk_mul_f32 v[{facc1+r}:{facc1+r+1}], v[{facc1+r}:{facc1+r+1}], v[{t0}:{t1}]")
    if not OPT.get("oab", 1): P.wait_lgkm_all(); P("s_barrier")
    stamp(P, 8)
    nl = "\n    "
    PROBE = lambda g: f"""s_mov_b64 exec, 0xf
    buffer_load_dword v{vp}, v{vpa}, {WSR}, s{[S_OL,S_OL2][g]} offen offset:1020 sc1
    s_waitcnt vmcnt(0)
    v_cmp_eq_u32 vcc, -1, v{vp}
    s_mov_b64 exec, -1"""
    for g in range(2):
        k = SL.n; SL.n += 1
        for x in ocheck(g): P(x)
        P(f"s_cbranch_vccz LR{k}")
        raw(P, f"""{cnt(1+k)}    s_mov_b32 s{S_T7}, 0
LS{k}_p:
    {f"s_sleep {OPT.get('osl', 1)}" if OPT.get('osl', 1) else "s_nop 0"}
    {"" if OPT.get("odir") else PROBE(g)}
    s_add_u32 s{S_T7}, s{S_T7}, 1
    s_cmp_ge_u32 s{S_T7}, 0x{SPIN_MAX:x}
    s_cbranch_scc1 LR{k}
    {"" if OPT.get("odir") else f"s_cbranch_vccnz LS{k}_p"}
    {nl.join(oloads(g))}
    s_waitcnt vmcnt(0)
    {nl.join(ocheck(g))}
    s_cbranch_vccnz LS{k}_p
""")
        P(f"LR{k}:")
        for u in range(4 * g, 4 * g + 4):
            P(mfma(facc1, wa[u] + 4, ob + 4 * u, facc1))
    W1 = [f"ds_write_b128 v{vw[b-1]}, {vr(src+4*i,4)} offset:{2048*(b-1) + 1024*i}" for b, src in ((2, facc1), (3, facc1 + 8)) for i in range(2)]
    for u in range(8):
        P(mfma(facc, wa[u], ob + 4 * u, facc))
        if u >= 3 and W1:
            if u == 3: P("s_nop 7")
            P(W1.pop(0))
    stamp(P, 9)
    for b, src in ((1, facc + 8),):
        for i in range(2): P(f"ds_write_b128 v{vw[b-1]}, {vr(src+4*i,4)} offset:{2048*(b-1) + 1024*i}")
    P.wait_lgkm_all()
    P("s_barrier")
    for i in range(6): P(f"ds_read_b128 {vr(ob+4*i,4)}, v{vrd} offset:{1024*i}")
    for b in range(3):
        for r in range(8): P(f"v_add_f32 v{facc+r}, v{facc+r}, v{ob+8*b+r}")
    for r in range(4): P(f"v_cvt_pk_bf16_f32 v{facc1+r}, v{facc+2*r}, v{facc+2*r+1}")
    P(f"v_permlane32_swap_b32 v{facc1}, v{facc1+2}")
    P(f"v_permlane32_swap_b32 v{facc1+1}, v{facc1+3}")
    P(f"buffer_store_dwordx4 {vr(facc1,4)}, v{vo}, s[{S_OUT}:{S_OUT+3}], s{S_OO} offen")
    if OPT.get("cnt"):
        P(f"v_lshrrev_b32 v1, v{lane}, s85".replace(f"v{lane}, s85", f"v{lane}, v0") if False else f"v_mov_b32 v0, s85")
        P(f"v_lshrrev_b32 v1, v{lane}, v0")
        P(f"v_and_b32 v1, 1, v1")
        P(f"v_lshlrev_b32 v0, 2, v{lane}")
        P("s_mov_b64 exec, 0xfe")
        P(f"buffer_atomic_add v1, v0, s[{S_DBG}:{S_DBG+3}], 0 offen")
    if STAMP["on"]:
        P.wait_vm_all(); stamp(P, 10); stamp_dump(P, lane)
        if OPT.get("amp") is not None:
            q, q0 = OPT["amp"], OPT.get("amp0", 12)
            if OPT.get("ampwg") is not None:
                P(f"s_cmp_lg_u32 s2, {OPT['ampwg']}"); P("s_cbranch_scc1 LF_end")
            P(f"s_cmp_lg_u32 s{S_W}, {OPT.get('ampw', 0)}"); P("s_cbranch_scc1 LF_end")
            P(f"v_readlane_b32 s96, v{VSTAMP}, {q}")
            if q0 == 99: P(f"s_mov_b32 s97, s{S_NONCE}")
            else: P(f"v_readlane_b32 s97, v{VSTAMP}, {q0}")
            P("s_nop 4")
            P("s_sub_u32 s96, s96, s97")
            if q0 == 99: P("s_add_u32 s96, s96, 200")
            P("s_min_u32 s96, s96, 4000")
            P("s_mul_i32 s96, s96, 10")
            P("s_memrealtime s[98:99]"); P("s_waitcnt lgkmcnt(0)")
            P("s_add_u32 s96, s96, s98")
            P("LF_amp:")
            P("s_sleep 8")
            P("s_memrealtime s[98:99]"); P("s_waitcnt lgkmcnt(0)")
            P("s_sub_u32 s97, s98, s96")
            P("s_cmp_lt_i32 s97, 0")
            P("s_cbranch_scc1 LF_amp")
        if OPT.get("dbgst") is not None:
            P(f"s_cmp_lg_u32 s2, {OPT['dbgst']}")
            P("s_cbranch_scc1 LF_end")
            P(f"s_cmp_lg_u32 s{S_W}, {OPT.get('dbgw', 0)}")
            P("s_cbranch_scc1 LF_end")
            P(f"v_subrev_u32 v{VSTAMP}, s100, v{VSTAMP}")
            P("s_mov_b64 exec, 0x7fff")
            P(f"buffer_store_dword v{VSTAMP}, v1, s[{S_DBG}:{S_DBG+3}], 0 offen offset:4")
    P("LF_end:")
    P("s_endpgm")
    name = NAME + "_kernel"
    body, I = finalize(P)
    txt = f".text\n.globl {name}\n.p2align 8\n.type {name},@function\n{name}:\n" + body + "".join(SL.txt) + "LF_last:\n    s_endpgm\n"
    vg_ = 256 if STAMP["on"] else max(V.hi, 8)
    txt += KD.format(name=name, vgpr=vg_, sgpr=102 if STAMP['on'] else 96, accum=(vg_ + 3) // 4 * 4)
    return txt, I, vg_


if __name__ == "__main__":
    out = sys.argv[1]
    STAMP["on"] = "stamp" in sys.argv or "mst" in sys.argv
    if "mst" in sys.argv: STAMP["min"] = (4, 6, 10)
    if "hamp" in sys.argv: STAMP["on"] = True; STAMP["min"] = (10,); OPT["amp"] = 10
    for a in sys.argv[2:]:
        if "=" in a: k, v = a.split("="); OPT[k] = int(v)
        else: OPT[a] = True
    import asmlib; asmlib.MERGE_D = OPT.get("md", 9)
    t, I, vg_ = kernel_F()
    DOC = """; One fused kernel, 256 workgroups x 8 waves, one per CU (all co-resident).  Workgroup = (64-token group G, slice j).
;  start : K/V projection of 16 tokens (wave 7) -> d_ws + flag ; Q projection of 4 heads (waves 0-3) ; gate logit
;          exp is taken without a max; the row sum / output are range-checked afterwards and the tile is redone with the
;          true row maximum (LF_fb) whenever that could have overflowed or underflowed.
;  end   : o exchanged through d_ws (hint flag; words preset to all-ones earlier in this launch mean 'not written yet' and
;  Hand-offs: write-through stores, vmcnt, then flags tagged with a per-launch nonce published through d_debug[0].
"""
    hdr = HEADER + DOC + f"; @launch grid=(256,1,1) block=(512,1,1) lds={LDS_BYTES}\n" + '.amdgcn_target "amdgcn-amd-amdhsa--gfx950"\n'
    open(out, "w").write(hdr + t)
    import subprocess
    r = subprocess.run(["clang", "-x", "assembler", "-target", "amdgcn-amd-amdhsa", "-mcpu=gfx950", "-c", out, "-o", "_chk.o"], capture_output=True, text=True)
    if r.returncode: print("ASM ERROR", r.stderr[:500])
    print("insts", len(I), "vgpr", vg_, "nops", sum(1 for x in I if x.kind == "nop"))
```

```python
import re

TRANS = ("v_exp_f32", "v_log_f32", "v_rcp_f32", "v_rsq_f32", "v_sqrt_f32", "v_sin_f32", "v_cos_f32", "v_exp_f16", "v_rcp_iflag_f32")

def _regs(tok, pfx):
    tok = tok.strip()
    tok = tok.lstrip("-")
    m = re.fullmatch(r"abs\((.*)\)", tok)
    if m: tok = m.group(1)
    m = re.fullmatch(r"\|(.*)\|", tok)
    if m: tok = m.group(1)
    m = re.fullmatch(pfx + r"(\d+)", tok)
    if m: return {int(m.group(1))}
    m = re.fullmatch(pfx + r"\[(\d+):(\d+)\]", tok)
    if m: return set(range(int(m.group(1)), int(m.group(2)) + 1))
    return set()

def _sregs(tok):
    tok = tok.strip()
    if tok == "vcc": return {"vcc"}
    if tok in ("vcc_lo", "vcc_hi"): return {"vcc"}
    if tok == "exec": return {"exec"}
    if tok == "m0": return {"m0"}
    return _regs(tok, "s")

class Inst:
    __slots__ = ("text", "op", "kind", "vr", "vw", "sr", "sw", "tag", "mf", "meta")
    def __init__(self, text, tag=None, meta=None):
        self.text = text; self.tag = tag; self.meta = meta
        self.vr = set(); self.vw = set(); self.sr = set(); self.sw = set(); self.mf = None
        t = text.split(";")[0].strip()
        if t.endswith(":") or t.startswith("."):
            self.op = t; self.kind = "label" if t.endswith(":") else "directive"; return
        if t.startswith("@"):
            self.op = t; self.kind = "pseudo"; return
        parts = t.split(None, 1)
        op = parts[0]; self.op = op
        rest = parts[1] if len(parts) > 1 else ""
        raw = [x.strip() for x in rest.split(",")] if rest else []
        ops = []; mods = []
        for i, x in enumerate(raw):
            pieces = x.split()
            if not pieces: continue
            ops.append(pieces[0]); mods += pieces[1:]
        V = lambda k: _regs(ops[k], "v") if k < len(ops) else set()
        S = lambda k: _sregs(ops[k]) if k < len(ops) else set()
        base = op.replace("_e32", "").replace("_e64", "")
        if op.startswith("v_smfmac"):
            self.kind = "mfma"
            self.vw = V(0); self.vr = V(0) | V(1) | V(2) | V(3)
            self.mf = dict(D=V(0), A=V(1), B=V(2) | V(3), C=V(0), passes=8 if "32x32x32" in op else 4)
        elif op.startswith("v_mfma"):
            self.kind = "mfma"
            self.vw = V(0); self.vr = V(1) | V(2) | V(3)
            passes = 8 if "32x32x16" in op else 4
            self.mf = dict(D=V(0), A=V(1), B=V(2), C=V(3), passes=passes)
        elif op.startswith("v_"):
            self.kind = "trans" if base in TRANS else "valu"
            if base.startswith("v_cmp"):
                self.sw = S(0)
                if base.startswith("v_cmpx"): self.sw |= {"exec"}
                for k in range(1, len(ops)): self.vr |= V(k); self.sr |= S(k)
            elif base in ("v_readfirstlane_b32", "v_readlane_b32"):
                self.sw = S(0); self.vr = V(1)
                for k in range(2, len(ops)): self.sr |= S(k)
            elif base.startswith("v_permlane") and "swap" in base:
                self.vw = V(0) | V(1); self.vr = V(0) | V(1)
            elif base in ("v_add_co_u32", "v_addc_co_u32", "v_sub_co_u32", "v_subb_co_u32"):
                self.vw = V(0); self.sw = S(1)
                for k in range(2, len(ops)): self.vr |= V(k); self.sr |= S(k)
            else:
                self.vw = V(0)
                for k in range(1, len(ops)): self.vr |= V(k); self.sr |= S(k)
                if base in ("v_fmac_f32", "v_writelane_b32", "v_pk_fmac_f16", "v_dot2c_f32_bf16") or "UNUSED_PRESERVE" in t:
                    self.vr |= V(0)
        elif op.startswith("ds_"):
            if op.startswith("ds_read") or op.startswith("ds_bpermute") or op.startswith("ds_swizzle") or op.startswith("ds_permute"):
                self.kind = "ds_rd"; self.vw = V(0)
                for k in range(1, len(ops)): self.vr |= V(k)
            else:
                self.kind = "ds_wr"
                for k in range(0, len(ops)): self.vr |= V(k)
        elif op.startswith("buffer_load") or op.startswith("global_load"):
            if "lds" in mods or op.startswith("global_load_lds"):
                self.kind = "dma"
                for k in range(0, len(ops)): self.vr |= V(k); self.sr |= S(k)
                self.sr |= {"m0"}
            else:
                self.kind = "vm_ld"; self.vw = V(0)
                for k in range(1, len(ops)): self.vr |= V(k); self.sr |= S(k)
        elif op.startswith("buffer_store") or op.startswith("global_store"):
            self.kind = "vm_st"
            for k in range(0, len(ops)): self.vr |= V(k); self.sr |= S(k)
            d = V(0) if op.startswith("buffer") else V(1)
            self.meta = dict(self.meta or {}, data=d, wide=("x4" in op or "x3" in op))
        elif op.startswith("buffer_atomic") or op.startswith("global_atomic"):
            self.kind = "vm_st"
            for k in range(0, len(ops)): self.vr |= V(k); self.sr |= S(k)
            self.meta = dict(self.meta or {}, data=set(), wide=False)
        elif op in ("buffer_inv", "buffer_wbl2"):
            self.kind = "vm_st"; self.meta = dict(data=set(), wide=False)
        elif op == "s_waitcnt": self.kind = "wait"
        elif op == "s_barrier": self.kind = "barrier"
        elif op == "s_nop": self.kind = "nop"
        elif op.startswith("s_load") or op.startswith("s_memtime") or op.startswith("s_memrealtime") or op.startswith("s_buffer_load"):
            self.kind = "smem"; self.sw = S(0)
            for k in range(1, len(ops)): self.sr |= S(k)
        elif op.startswith("s_cbranch") or op in ("s_branch", "s_endpgm", "s_setpc_b64"):
            self.kind = "branch"
        elif op.startswith("s_"):
            self.kind = "salu"
            if op.startswith("s_cmp") or op in ("s_setprio", "s_sleep"):
                for k in range(0, len(ops)): self.sr |= S(k)
            else:
                self.sw = S(0)
                for k in range(1, len(ops)): self.sr |= S(k)
                if "saveexec" in op: self.sw |= {"exec"}
        else:
            raise ValueError("unknown instr: " + text)

    def states(self):
        if self.kind in ("label", "directive", "pseudo"): return 0
        if self.meta and self.meta.get("skip"): return 0
        if self.kind == "nop": return int(self.text.split(";")[0].split()[1]) + 1
        return 1

class Prog:
    def __init__(self):
        self.I = []
    def e(self, text, tag=None):
        for line in text.split("\n"):
            line = line.strip()
            if not line or line.startswith(";"): continue
            self.I.append(Inst(line, tag=tag))
        return self
    __call__ = e
    def add(self, insts):
        self.I += insts
    def wait_tag(self, *tags): self.I.append(Inst("@wait_tag", meta=dict(tags=set(tags))))
    def wait_vm_all(self): self.I.append(Inst("@wait_vm_all"))
    def wait_lgkm_all(self): self.I.append(Inst("@wait_lgkm_all"))
    def cond_begin(self): self.I.append(Inst("@cond_begin"))
    def cond_end(self, keep=False, nowait=False): self.I.append(Inst("@cond_end", meta=dict(keep=keep, nowait=nowait)))
    def join(self): self.I.append(Inst("@join"))
    def opaque_begin(self): self.I.append(Inst("@opaque_begin"))
    def opaque_end(self): self.I.append(Inst("@opaque_end"))

MERGE_D = 0
def insert_waits(I):
    out = []; pos = {}
    lg = []
    vm = []
    cond_stack = []
    carry = []
    opaque = False
    def w(vmn=None, lgn=None):
        nonlocal lg, vm
        parts = []
        if vmn is not None and vmn < len(vm):
            parts.append(f"vmcnt({min(vmn,63)})"); vm = vm[len(vm) - min(vmn,63):] if min(vmn,63) else []
        if lgn is not None and lgn < len(lg):
            parts.append(f"lgkmcnt({min(lgn,15)})"); lg = lg[len(lg) - min(lgn,15):] if min(lgn,15) else []
        if parts: out.append(Inst("s_waitcnt " + " ".join(parts)))
    def flush_carry():
        idx = [k for k, x in enumerate(vm) if x.tag == "@carry"]
        if idx: w(vmn=len(vm) - 1 - max(idx))
        carry.clear()
    for ins in I:
        if ins.kind == "pseudo":
            if ins.op == "@opaque_begin":
                w(0, 0); opaque = True
            elif ins.op == "@opaque_end":
                opaque = False; lg = []; vm = []
            elif ins.op == "@wait_tag":
                if any(x.tag in ins.meta["tags"] for x in carry) and any(x.tag == "@carry" for x in vm): flush_carry()
                idx = [k for k, x in enumerate(vm) if x.tag in ins.meta["tags"]]
                if idx: w(vmn=len(vm) - 1 - max(idx))
            elif ins.op == "@join":
                vm = [Inst("buffer_inv", tag="@carry")]
            elif ins.op == "@wait_vm_all":
                if any(x.tag == "@carry" for x in vm): carry.clear()
                w(vmn=0)
            elif ins.op == "@wait_lgkm_all": w(lgn=0)
            elif ins.op == "@cond_begin":
                cond_stack.append((list(lg), list(vm)))
            elif ins.op == "@cond_end":
                lg0, vm0 = cond_stack.pop()
                if ins.meta and ins.meta.get("keep"):
                    w(lgn=0)
                    pend = [x for x in vm if x.kind in ("vm_ld", "dma")]
                    carry.extend(pend)
                    lg, vm = list(lg0), list(vm0)
                    out.append(Inst("@cond_end")); continue
                inb = [k for k, x in enumerate(vm) if all(x is not y for y in vm0) and x.kind in ("vm_ld", "dma")]
                if inb and not (ins.meta and ins.meta.get("nowait")): w(vmn=len(vm) - 1 - max(inb))
                if any(all(x is not y for y in lg0) for x in lg): w(lgn=0)
                lg, vm = lg0, vm0
                out.append(Inst("@cond_end"))
                continue
            out.append(ins); continue
        if opaque:
            out.append(ins); continue
        if ins.kind == "wait":
            m = re.search(r"vmcnt\((\d+)\)", ins.text)
            if m:
                n = int(m.group(1)); vm = vm[len(vm) - n:] if n and n < len(vm) else ([] if n == 0 else vm)
            m = re.search(r"lgkmcnt\((\d+)\)", ins.text)
            if m:
                n = int(m.group(1)); lg = lg[len(lg) - n:] if n and n < len(lg) else ([] if n == 0 else lg)
            out.append(ins); continue
        touch = ins.vr | ins.vw
        if any(x.vw & touch for x in carry) and any(x.tag == "@carry" for x in vm): flush_carry()
        lgn = None; vmn = None
        for k, x in enumerate(lg):
            if x.vw & touch: lgn = len(lg) - 1 - k
        for k, x in enumerate(vm):
            if x.vw & touch: vmn = len(vm) - 1 - k
        if lgn is not None and MERGE_D:
            old = [k for k, x in enumerate(lg) if len(out) - pos[id(x)] >= MERGE_D]
            if old: lgn = min(lgn, len(lg) - 1 - max(old))
        w(vmn, lgn)
        pos[id(ins)] = len(out)
        out.append(ins)
        if ins.kind in ("ds_rd", "ds_wr"): lg.append(ins)
        if ins.kind in ("vm_ld", "vm_st", "dma"): vm.append(ins)
        if ins.kind == "smem": pass
    return out

def need_states(p, c):
    n = 0
    pv = p.kind in ("valu", "trans")
    cv = c.kind in ("valu", "trans")
    cmem = c.kind in ("ds_rd", "ds_wr", "vm_ld", "vm_st", "dma")
    if pv and c.kind == "mfma" and (p.vw & c.vr): n = max(n, 2)
    if p.kind == "mfma":
        P = p.mf["passes"]; D = p.mf["D"]
        if c.kind == "mfma":
            if D & (c.mf["A"] | c.mf["B"]): n = max(n, P + 4)
            if D & c.mf["C"]:
                if not (c.mf["C"] == D and c.mf["passes"] == P): n = max(n, P + 2)
            elif D & c.mf["D"]:
                if c.mf["passes"] != P: n = max(n, P + 2)
        if (cv or cmem) and (D & (c.vr | c.vw)): n = max(n, P + 4)
        if cv and (p.mf["C"] & c.vw): n = max(n, P - 1)
        if cmem and (p.mf["C"] & c.vw): n = max(n, P - 1)
    if p.kind == "trans" and (c.kind in ("valu", "mfma") or cmem) and (p.vw & c.vr): n = max(n, 2 if c.kind == "mfma" else 1)
    if pv and p.sw:
        if cmem and (p.sw & c.sr): n = max(n, 5)
        if cv and (p.sw & c.sr): n = max(n, 4 if c.op.startswith(("v_readlane", "v_writelane")) else 2)
        if cv and "vcc" in p.sw and (c.op.startswith("v_cndmask") or c.op.startswith("v_addc") ): n = max(n, 2)
        if "exec" in p.sw and (c.kind == "mfma" or c.op.startswith(("v_readfirst", "v_readlane", "v_permlane"))): n = max(n, 4)
        if c.kind == "salu" and (p.sw & c.sr): n = max(n, 1)
        if c.kind == "branch" and "vcc" in p.sw: n = max(n, 5) if False else n
    if pv and c.op.startswith(("v_readfirstlane", "v_readlane")) and (p.vw & c.vr): n = max(n, 1)
    if pv and c.op.startswith("v_permlane") and (p.vw & c.vr): n = max(n, 2)
    if pv and cv and "dpp" in c.text and (p.vw & c.vr): n = max(n, 2)
    if pv and cv and (("sdwa" in p.text) or ("op_sel" in p.text)) and (p.vw & (c.vr | c.vw)): n = max(n, 1)
    if p.kind == "salu" and "m0" in p.sw and c.kind == "dma": n = max(n, 1)
    if p.kind == "vm_st" and p.meta and p.meta.get("wide") and (p.meta["data"] & c.vw): n = max(n, 2)
    return n

def insert_nops(I, window=24):
    out = []
    for c in I:
        if c.kind in ("label", "directive", "pseudo"):
            if c.kind == "pseudo" and c.op in ("@cond_end", "@opaque_begin", "@opaque_end", "@cond_begin"):
                dist = 0; need = 0
                for p in reversed(out):
                    if dist >= 13: break
                    if p.kind == "mfma": need = max(need, p.mf["passes"] + 4 - dist)
                    elif p.kind in ("valu", "trans"): need = max(need, 5 - dist)
                    elif p.kind in ("vm_st",): need = max(need, 2 - dist)
                    dist += p.states()
                while need > 0:
                    k = min(need, 16); out.append(Inst(f"s_nop {k-1}")); need -= k
            out.append(c); continue
        dist = 0; need = 0
        for p in reversed(out):
            if dist >= window: break
            if p.kind not in ("label", "directive", "pseudo"):
                need = max(need, need_states(p, c) - dist)
            dist += p.states()
        while need > 0:
            k = min(need, 16); out.append(Inst(f"s_nop {k-1}")); need -= k
        out.append(c)
    return out

def finalize(prog):
    I = insert_nops(insert_waits(prog.I))
    lines = []
    for x in I:
        if x.kind == "pseudo": continue
        lines.append(x.text if x.kind in ("label", "directive") else "    " + x.text)
    return "\n".join(lines) + "\n", I

class Regs:
    def __init__(self, start, limit, pfx):
        self.free = set(range(start, limit)); self.pfx = pfx; self.names = {}; self.hi = start
    def alloc(self, name, n=1, align=None):
        align = align or (1 if n == 1 else (2 if n == 2 else 4))
        lim = max(self.free) + 1 if self.free else 0
        for b in range(0, lim):
            if b % align: continue
            if all((b + k) in self.free for k in range(n)):
                for k in range(n): self.free.discard(b + k)
                self.names[name] = (b, n); self.hi = max(self.hi, b + n)
                return b
        raise RuntimeError(f"out of {self.pfx} regs allocating {name} ({n}); names={self.names}")
    def release(self, name):
        b, n = self.names.pop(name)
        for k in range(n): self.free.add(b + k)

def vr(b, n=1): return f"v{b}" if n == 1 else f"v[{b}:{b+n-1}]"
def sr(b, n=1): return f"s{b}" if n == 1 else f"s[{b}:{b+n-1}]"

KD = """.section .rodata,"a"
.p2align 6
.amdhsa_kernel {name}
  .amdhsa_next_free_vgpr {vgpr}
  .amdhsa_next_free_sgpr {sgpr}
  .amdhsa_accum_offset {accum}
  .amdhsa_group_segment_fixed_size 0
  .amdhsa_kernarg_size 104
  .amdhsa_user_sgpr_count 2
  .amdhsa_user_sgpr_kernarg_segment_ptr 1
  .amdhsa_system_sgpr_workgroup_id_x 1
.end_amdhsa_kernel
"""
```

```python
import sys, re
from parts import *
OPT = {}
S_NONCE = 93
S_HP, S_KH = 30, 31
SH = [4, 5, 6]
S_FS, S_FP, S_OD, S_OL = 7, 8, 9, 10
S_FW, S_FB, S_FL, S_FL2 = 12, 13, 14, 15
S_OO, S_OL2 = 11, 18
S_VM = 28
S_PM = 16
FL_KV, FL_H = WS_FLAG, WS_FLAG + 8192
WKV_L = KV_RING
QSCR = KV_RING + 8192
FSLOT = [0, 32768, 65536, 98304]
WO_CH = [98304, 114688, 0, 32768]
SC1 = " sc1"
SPIN_MAX = 1 << 22
WSR = f"s[{S_WS}:{S_WS+3}]"


def cnt(k):
    if not OPT.get("cnt"): return ""
    return f"    s_bitset1_b32 s85, {k}\n"


def raw(P, text):
    for line in text.split("\n"):
        line = line.strip()
        if not line: continue
        P(line)
        x = P.I[-1]
        if x.kind not in ("label",):
            x.kind = "salu"; x.vr = set(); x.vw = set(); x.sr = set(); x.sw = set(); x.mf = None; x.meta = dict(skip=True)


class Slow:
    def __init__(self): self.txt = []; self.n = 0
    def add(self, t): self.txt.append(t)


LOADS = {}
def wq_pieces(P, vsl, s_first, n, label, rot):
    P(f"s_and_b32 s{S_T6}, s{S_G}, 7")
    if rot > 1: P(f"s_mul_i32 s{S_T6}, s{S_T6}, {rot}")
    P(f"s_add_u32 s{S_T5}, s{S_T6}, {n}")
    P(f"s_lshl_b32 s{S_T7}, s{S_J}, 7")
    P(f"{label}:")
    P(f"s_and_b32 s{S_T4}, s{S_T6}, {n-1}")
    P(f"s_add_u32 s{S_T4}, s{S_T4}, s{s_first}")
    P(f"s_mul_i32 s{S_T0}, s{S_T4}, 171")
    P(f"s_lshr_b32 s{S_T0}, s{S_T0}, 12")
    P(f"s_lshl_b32 s{S_T1}, s{S_T4}, 2")
    P(f"s_add_u32 s{S_T0}, s{S_T0}, s{S_T1}")
    P(f"s_lshl_b32 s{S_T0}, s{S_T0}, 8")
    P(f"s_add_u32 m0, s{S_T0}, 0x{SLOT[0]:x}")
    P(f"s_lshl_b32 s{S_T2}, s{S_T4}, 13")
    P(f"s_add_u32 s{S_T2}, s{S_T2}, s{S_T7}")
    P(f"s_add_u32 s{S_T6}, s{S_T6}, 1")
    P(f"buffer_load_dwordx4 v{vsl}, s[{S_WQ}:{S_WQ+3}], s{S_T2} offen lds")
    P.I[-1].kind = "salu"
    P(f"s_cmp_lg_u32 s{S_T6}, s{S_T5}")
    P(f"s_cbranch_scc1 {label}")


def emit_loads(P, l16, vsl, sfx):
    if sfx == "h":
        P(f"s_lshr_b32 s{S_T4}, s{S_J}, 1")
        P(f"s_lshl_b32 s{S_T4}, s{S_T4}, 4")
        P(f"s_mul_i32 s{S_T1}, s{S_W}, 12")
        P(f"s_add_u32 s{S_T4}, s{S_T4}, s{S_T1}")
        P(f"s_add_u32 s{S_T4}, s{S_T4}, 16")
        P(f"s_lshl_b32 s{S_T0}, s{S_G}, 16")
        P(f"s_and_b32 s{S_T6}, s{S_J}, 3")
        P(f"s_mul_i32 s{S_T6}, s{S_T6}, 3")
        P(f"s_mov_b32 s{S_T5}, 12")
        mk_srd(P, S_X, 4, SZ["x"])
        P("LF_ldx1:")
        P(f"s_add_u32 s{S_T1}, s{S_T6}, s{S_T4}")
        P(f"s_and_b32 s{S_T1}, s{S_T1}, 63")
        P(f"s_mul_i32 m0, s{S_T1}, {X_STRIDE}")
        P(f"s_lshl_b32 s{S_T2}, s{S_T1}, 10")
        P(f"s_add_u32 s{S_T2}, s{S_T2}, s{S_T0}")
        P(f"s_add_u32 s{S_T6}, s{S_T6}, 1")
        P(f"s_cmp_eq_u32 s{S_T6}, 12")
        P(f"s_cselect_b32 s{S_T6}, 0, s{S_T6}")
        P(f"buffer_load_dwordx4 v{l16}, s[{S_X}:{S_X+3}], s{S_T2} offen lds", tag="q")
        P(f"s_sub_u32 s{S_T5}, s{S_T5}, 1")
        P(f"s_cmp_lg_u32 s{S_T5}, 0")
        P("s_cbranch_scc1 LF_ldx1")
    else:
        mk_srd(P, S_WQ, 6, SZ["wq"])
        P(f"s_and_b32 s{S_T3}, s{S_W}, 3")
        P(f"s_lshl_b32 s{S_T3}, s{S_T3}, 3")
        wq_pieces(P, vsl, S_T3, 8, "LF_ldq1", 1)
        P(f"s_add_u32 s{S_T3}, s{S_T3}, 24")
        wq_pieces(P, vsl, S_T3, 8, "LF_ldq2", 1)


def prologue_f(P, V, endlabel):
    if STAMP["on"]: P("s_memrealtime s[100:101]")
    P("s_cmp_ge_u32 s2, 256")
    P(f"s_cbranch_scc1 {endlabel}")
    P("s_load_dwordx16 s[4:19], s[0:1], 0")
    P("s_load_dwordx8 s[20:27], s[0:1], 64")
    P("s_load_dwordx2 s[28:29], s[0:1], 96")
    lane = V.alloc("lane"); l16 = V.alloc("l16")
    if OPT.get("cpf", 1):
        c = V.alloc("cpf", 2)
        P(f"s_getpc_b64 s[{S_EX}:{S_EX+1}]")
        P("LF_pc0:")
        if OPT.get("cpf", 1) == 1:
            P(f"s_lshr_b32 s{S_T3}, s2, 3")
            P(f"s_lshl_b32 s{S_T3}, s{S_T3}, 11")
            P(f"v_lshrrev_b32 v{c}, 5, v0")
            P(f"v_lshlrev_b32 v{c}, 7, v{c}")
            P(f"v_add_u32 v{c}, s{S_T3}, v{c}")
            P(f"v_min_u32 v{c}, LF_last-LF_pc0, v{c}")
            P("s_mov_b32 exec_lo, 1"); P("s_mov_b32 exec_hi, 1")
        else:
            P(f"s_lshr_b32 s{S_T3}, s2, 3")
            P(f"s_and_b32 s{S_T3}, s{S_T3}, 15")
            P(f"s_lshl_b32 s{S_T3}, s{S_T3}, 12")
            P(f"v_lshrrev_b32 v{c}, 4, v0")
            P(f"v_lshlrev_b32 v{c}, 7, v{c}")
            P(f"v_add_u32 v{c}, s{S_T3}, v{c}")
            P(f"v_min_u32 v{c}, LF_last-LF_pc0, v{c}")
            P("s_mov_b32 exec_lo, 0x00010001")
            P("s_mov_b32 exec_hi, 0x00010001")
        P(f"global_load_dword v{c}, v{c}, s[{S_EX}:{S_EX+1}]", tag="cpf")
        P("s_mov_b64 exec, -1")
    P(f"v_lshrrev_b32 v1, 6, v0")
    P(f"v_and_b32 v{lane}, 63, v0")
    P(f"v_readfirstlane_b32 s{S_W}, v1")
    P(f"v_lshlrev_b32 v{l16}, 4, v{lane}")
    P(f"s_lshr_b32 s{S_T0}, s2, 3")
    if OPT.get("jrot"): P(f"s_add_u32 s{S_J}, s{S_T0}, {OPT['jrot']}"); P(f"s_and_b32 s{S_J}, s{S_J}, 3")
    else: P(f"s_and_b32 s{S_J}, s{S_T0}, 3")
    P(f"s_and_b32 s{S_T1}, s2, 1")
    P(f"s_lshl_b32 s{S_T1}, s{S_T1}, 2")
    P(f"s_add_u32 s{S_J}, s{S_J}, s{S_T1}")
    P(f"s_and_b32 s{S_G}, s2, 6")
    P(f"s_lshl_b32 s{S_G}, s{S_G}, 2")
    P(f"s_lshr_b32 s{S_T0}, s{S_T0}, 2")
    P(f"s_add_u32 s{S_G}, s{S_G}, s{S_T0}")
    t0 = V.alloc("t0"); t1 = V.alloc("t1")
    vsl = slice_pattern(P, V, lane, t0)
    LOADS["f"] = lambda sfx: emit_loads(P, l16, vsl, sfx)
    P(f"s_and_b32 s{S_TT}, s{S_W}, 1")
    P(f"s_lshl_b32 s{S_TILE}, s{S_G}, 1")
    P(f"s_add_u32 s{S_TILE}, s{S_TILE}, s{S_TT}")
    P(f"s_lshr_b32 s{S_HP}, s{S_W}, 1")
    P(f"s_and_b32 s{S_HP}, s{S_HP}, 1")
    P(f"s_lshr_b32 s{S_KH}, s{S_W}, 2")
    assert all((p * 171) >> 12 == p // 24 for p in range(64)) and SLOT_SZ == 3 * 8192 + 256
    return lane, l16, t0, t1, vsl


def rest_srds(P):
    P(f"s_cmp_eq_u32 s{S_TT}, 0")
    P(f"s_cselect_b32 s{S_WM}, s16, s18")
    P(f"s_cselect_b32 s{S_WM+1}, s17, s19")
    P(f"s_and_b32 s{S_WM+1}, s{S_WM+1}, 0xffff")
    P(f"s_mov_b32 s{S_WM+2}, 0x{SZ['wg']:x}")
    P(f"s_mov_b32 s{S_WM+3}, 0x20000")
    mk_srd(P, S_OUT, 24, SZ["out"])
    mk_srd(P, S_WO, 12, SZ["wo"])
    mk_srd(P, S_WD, 20, SZ["wd"])


def nonce_check(P, SL, vn, vz):
    k = SL.n; SL.n += 1
    P(f"v_readfirstlane_b32 s{S_NONCE}, v{vn}")
    P(f"s_cmp_lg_u32 s{S_NONCE}, 0")
    P(f"s_cbranch_scc1 LR{k}")
    raw(P, f"""{cnt(1+k)}    s_mov_b32 s{S_T7}, 0
LS{k}_l:
    s_sleep 2
    buffer_load_dword v{vn}, v{vz}, s[{S_DBG}:{S_DBG+3}], 0 offen sc1
    s_waitcnt vmcnt(0)
    v_readfirstlane_b32 s{S_NONCE}, v{vn}
    s_add_u32 s{S_T7}, s{S_T7}, 1
    s_cmp_ge_u32 s{S_T7}, 0x{SPIN_MAX:x}
    s_cbranch_scc1 LR{k}
    s_cmp_eq_u32 s{S_NONCE}, 0
    s_cbranch_scc1 LS{k}_l
""")
    P(f"LR{k}:")
    P("s_nop 0")


def flag_load(vf, n, vaddr, soff):
    op = {1: "buffer_load_dword", 4: "buffer_load_dwordx4"}[n]
    return f"{op} {vr(vf,n)}, v{vaddr}, {WSR}, {soff} offen sc1"


def flag_cmp(vf, n, t):
    L = [f"v_xor_b32 v{t}, s{S_NONCE}, v{vf}"]
    for i in range(1, n):
        L += [f"v_xor_b32 v{vf+i}, s{S_NONCE}, v{vf+i}", f"v_or_b32 v{t}, v{t}, v{vf+i}"]
    L += [f"v_cmp_ne_u32 vcc, 0, v{t}"]
    return L


def spin_check(P, SL, loads, cmps, sleep=1):
    k = SL.n; SL.n += 1
    for x in cmps: P(x)
    P(f"s_cbranch_vccz LR{k}")
    nl = "\n    "
    raw(P, f"""{cnt(1+k)}    s_mov_b32 s{S_T7}, 0
LS{k}_l:
    {f"s_sleep {sleep}" if sleep else "s_nop 0"}
    {nl.join(loads)}
    s_waitcnt vmcnt(0)
    {nl.join(cmps)}
    s_add_u32 s{S_T7}, s{S_T7}, 1
    s_cmp_ge_u32 s{S_T7}, 0x{SPIN_MAX:x}
    s_cbranch_scc1 LR{k}
    s_cbranch_vccnz LS{k}_l
""")
    P(f"LR{k}:")


def flag_store(P, vz, t, soff):
    P(f"v_mov_b32 v{t}, s{S_NONCE}")
    P("s_mov_b64 exec, 1")
    P(f"buffer_store_dword v{t}, v{vz}, {WSR}, s{soff} offen sc1", tag="flag")
    P("s_mov_b64 exec, -1")


PROG = MISC + 1024
class SplitBar:
    def __init__(self, P, V, SL, lane, t0):
        self.P, self.SL, self.n = P, SL, 0
        self.va = V.alloc("sba"); self.vr = V.alloc("sbr"); self.one = V.alloc("sb1"); self.vg = V.alloc("sbg")
        P(f"s_lshl_b32 s{S_T0}, s{S_W}, 8")
        P(f"s_add_u32 s{S_T0}, s{S_T0}, 0x{PROG:x}")
        P(f"v_lshlrev_b32 v{t0}, 2, v{lane}")
        P(f"v_add_u32 v{self.va}, s{S_T0}, v{t0}")
        P(f"v_and_b32 v{t0}, 7, v{lane}")
        P(f"v_mul_u32_u24 v{t0}, 260, v{t0}")
        P(f"v_add_u32 v{self.vr}, 0x{PROG:x}, v{t0}")
        P(f"v_mov_b32 v{self.one}, 0")
        P(f"ds_write_b32 v{self.va}, v{self.one}")
        P(f"v_mov_b32 v{self.one}, 1")
    def arrive(self):
        self.n += 1
        self.P(f"ds_add_u32 v{self.va}, v{self.one}")
    def peek(self): self.P(f"ds_read_b32 v{self.vg}, v{self.vr}")
    def check(self):
        k = self.SL.n; self.SL.n += 1
        self.P(f"v_cmp_gt_u32 vcc, {self.n}, v{self.vg}")
        self.P(f"s_cbranch_vccz LR{k}")
        self.P(f"LS{k}:")
        for t in ([f"s_sleep {OPT['ssl']}"] if OPT.get("ssl") else []) + [f"ds_read_b32 v{self.vg}, v{self.vr}", "s_waitcnt lgkmcnt(0)", f"v_cmp_gt_u32 vcc, {self.n}, v{self.vg}", f"s_cbranch_vccnz LS{k}"]:
            self.P(t); self.P.I[-1].kind = "salu"; self.P.I[-1].vw = set(); self.P.I[-1].vr = set()
        self.P(f"LR{k}:")


def attn_setup(P, V, lane, l16, t0, t1):
    A = {}
    P(f"s_lshl_b32 s{S_T1}, s{S_KH}, 12")
    vk = V.alloc("vk"); vv = [V.alloc("vv0"), V.alloc("vv1")]
    P(f"s_add_u32 s{S_T1}, s{S_T1}, 0x{KV_RING:x}")
    P(f"v_add_u32 v{vk}, s{S_T1}, v{l16}")
    P(f"v_lshrrev_b32 v{t0}, 5, v{lane}")
    P(f"v_lshlrev_b32 v{t0}, 8, v{t0}")
    P(f"v_and_b32 v{t1}, 15, v{lane}")
    P(f"v_lshl_add_u32 v{t0}, v{t1}, 4, v{t0}")
    P(f"v_and_b32 v{t1}, 16, v{lane}")
    P(f"v_cmp_eq_u32 vcc, 0, v{t1}")
    P(f"s_add_u32 s{S_T1}, s{S_T1}, 2048")
    for s in range(2):
        P(f"v_mov_b32 v{t1}, s{S_T1}")
        P(f"v_add_u32 v{t1}, {8192*s}, v{t1}")
        P(f"v_mov_b32 v{vv[s]}, 0x{ONES:x}")
        P(f"v_cndmask_b32 v{vv[s]}, v{t1}, v{vv[s]}, vcc")
        P(f"v_add_u32 v{vv[s]}, v{vv[s]}, v{t0}")
    P(f"s_lshl_b32 s{S_KVOFF}, s{S_KH}, 15")
    P(f"s_lshl_b32 s{S_T1}, s{S_HP}, 16")
    P(f"s_add_u32 s{S_KVOFF}, s{S_KVOFF}, s{S_T1}")
    P(f"s_lshl_b32 s{S_T1}, s{S_TT}, 10")
    P(f"s_add_u32 s{S_KVOFF}, s{S_KVOFF}, s{S_T1}")
    P(f"s_lshl_b32 s{S_KVLDS}, s{S_W}, 10")
    P(f"s_add_u32 s{S_KVLDS}, s{S_KVLDS}, 0x{KV_RING:x}")
    A.update(vk=vk, vv=vv)
    A["S"] = [V.alloc("Sa", 16), V.alloc("Sb", 16)]
    A["O"] = [V.alloc("Oa", 16), V.alloc("Ob", 16)]
    A["fk"] = V.alloc("fk", 4); A["fv"] = [V.alloc("fv1", 4), V.alloc("fv2", 4)]
    A["q"] = V.alloc("qf", 8)
    A["ix"] = V.alloc("pvix")
    P(f"v_mov_b32 v{A['ix']}, 0xdddd")
    mk = lambda n: dict(zip(("pv2", "g1", "qk", "g2", "g3", "pv1", "g4", "g5", "g6"), [int(c, 16) for c in n]))
    PS = ["12468acdf", "1346 8acef".replace(" ", ""), "124689bdf", "12357acdf", "13579bcef", "12478acdf"]
    A["pos"] = [mk(PS[OPT.get("bp0", 0)]), mk(PS[OPT.get("bp1", 0)])]
    return A


def kv_dma(P, l16, c):
    dma(P, l16, S_WS, f"s{S_T2}", (S_KVLDS, 8192 * (c & 1)), tag=f"kv{c}", mods=SC1, pre=[f"s_add_u32 s{S_T2}, s{S_KVOFF}, {2048*c}"])


def pv(d, a, b, idx):
    return f"v_smfmac_f32_32x32x32_bf16 {vr(d,16)}, {vr(a,4)}, {vr(b,8)}, v{idx}"


def attention(P, A, l16, its, hook, prio, kvf=None, bb=1):
    S, O, fk, fv = A["S"], A["O"], A["fk"], A["fv"]
    SB = OPT.get("sb", 0)
    q = [A["q"], A["q"] + 4]; ix = A["ix"]
    def rdK(it): P(f"ds_read_b128 {vr(fk,4)}, v{A['vk']} offset:{((it>>1)&1)*8192 + (it&1)*1024}")
    def rdV(it, half):
        m = OPT.get("vmask", 1) and it > 0
        if m: P(f"s_mov_b64 exec, s[{S_VM}:{S_VM+1}]")
        P(f"ds_read_b128 {vr(fv[half],4)}, v{A['vv'][(it>>1)&1]} offset:{(it&1)*1024 + half*512}")
        if m: P("s_mov_b64 exec, -1")
    E = lambda x, i: P(f"v_exp_f32 v{S[x]+i}, v{S[x]+i}")
    def C(x, i):
        b = S[x] + (8 if i >= 4 else 0); k = i & 3
        P(f"v_cvt_pk_bf16_f32 v{b+k}, v{b+2*k}, v{b+2*k+1}")
    for it in its:
        if it == 0:
            if OPT.get("vmask", 1): P(f"s_mov_b32 s{S_VM}, 0xffff0000"); P(f"s_mov_b32 s{S_VM+1}, 0xffff0000")
            rdK(0); rdV(0, 0)
            for r in range(16): P(f"v_mov_b32 v{O[0]+r}, 0"); P(f"v_mov_b32 v{O[1]+r}, 0")
            hook(0, 0, "start")
            P(mfma(S[0], fk, q[0]))
        for x in range(2):
            H = lambda pos: hook(it, x, pos)
            POS = A["pos"][bb]
            sig = (x == 0 and (it & 1) and it < 31)
            syn = sig or (x == 0 and hook(it, x, "sync?"))
            for e in range(16):
                E(x, e)
                for pos in [k for k in ("pv2", "g1", "qk", "g2", "g3", "pv1", "g4", "g5", "g6") if POS[k] == e]:
                    if pos == "pv2":
                        if x == 0:
                            if it > 0: P(pv(O[1], fv[1], S[1] + 8, ix))
                            rdV(it, 1)
                        else: P(pv(O[0], fv[1], S[0] + 8, ix))
                    elif pos == "qk":
                        if x == 0: P(mfma(S[1], fk, q[1]))
                        elif it < 31: P(mfma(S[0], fk, q[0]))
                    elif pos == "pv1":
                        P(pv(O[x], fv[0], S[x], ix))
                        if syn:
                            H("pre0")
                            if sig: P.wait_tag(f"kv{(it>>1)+1}")
                            H("pre")
                            P.wait_lgkm_all()
                            P("s_barrier")
                        p = prio(it, x)
                        if p is not None: P(f"s_setprio {p}")
                        if x == 0:
                            if it < 31: rdK(it + 1)
                            if (it & 1) and (it >> 1) + 2 < 16: (kvf or (lambda c: kv_dma(P, l16, c)))((it >> 1) + 2)
                            if syn: hook(it, 0, "chk")
                        elif it < 31: rdV(it + 1, 0)
                    H(pos)
        if it == 31: P(pv(O[1], fv[1], S[1] + 8, ix))


def fin_dma_w1(P, vsl, st, slot, tag, i):
    srd, u0 = (S_WD, 8 * st) if st < 11 else (S_WO, 8 * (st - 11))
    dma(P, vsl, srd, f"s{S_T2}", (S_FL2, slot + 1024 * i), tag=tag, pre=[f"s_add_u32 s{S_T2}, s{S_FW}, 0x{(16*u0 + 8*i)*1024:x}"])


def fin_dma_w2(P, vsl, st, slot, tag, i, other):
    dma(P, vsl, S_WD, f"s{S_T2}", (S_FL2, (slot + 1024 * i - 8192 * other) & 0xffffffff), tag=tag,
        pre=[f"s_add_u32 s{S_T2}, s{S_FW}, 0x{((128*st + 8*i)*1024 - 65536*other) & 0xffffffff:x}"])


def fin_dma_b1(P, l16, st, slot, tag, t):
    P(f"s_add_u32 s{S_T2}, s{S_FB}, 0x{(t*118 + 8*st)*1024:x}")
    if st == 10:
        P(f"s_cmp_lt_u32 s{S_W}, 6")
        P(f"s_cselect_b32 s{S_T2}, s{S_T2}, 0x{OOB:x}")
    dma(P, l16, S_WS, f"s{S_T2}", (S_FL, slot + 16384 + 8192 * t), tag=tag, mods=SC1)


def kernel_F():
    P = Prog(); V = Regs(2, 255, "v"); SL = Slow()
    NP = OPT.get("np", 2)
    JIT = 16 - NP
    GPP = OPT.get("gpp", 2)
    UNI = OPT.get("uni", JIT + 2)
    HF = OPT.get("hf", UNI | 1)
    lane, l16, t0, t1, vsl = prologue_f(P, V, "LF_end")
    vz = V.alloc("vz")
    P(f"s_cmp_lg_u32 s{S_W}, 7")
    P("s_cbranch_scc1 LF_not7")
    if OPT.get("p7", 1): P("s_setprio 3")
    P(f"s_lshr_b32 s{S_T4}, s{S_J}, 1")
    P(f"s_lshl_b32 s{S_T0}, s{S_G}, 16")
    P(f"s_lshl_b32 s{S_T2}, s{S_T4}, 14")
    P(f"s_add_u32 s{S_T2}, s{S_T2}, s{S_T0}")
    P(f"s_mul_i32 m0, s{S_T4}, {16*X_STRIDE}")
    P(f"s_and_b32 s{S_T3}, s{S_J}, 1")
    P(f"s_mov_b32 s{S_T5}, 0")
    P("s_waitcnt lgkmcnt(0)")
    mk_srd(P, S_X, 4, SZ["x"])
    if OPT.get("u7", 1):
        P(f"s_sub_u32 s{S_X}, s{S_X}, 64")
        P(f"s_subb_u32 s{S_X+1}, s{S_X+1}, 0")
        P(f"s_mov_b32 s{S_X+2}, 0x{SZ['x'] + 64:x}")
        P(f"s_add_u32 s{S_T2}, s{S_T2}, 64")
        for g in range(4):
            for k in range(4):
                if k == 0:
                    if g: P(f"s_add_u32 m0, m0, {4*X_STRIDE}"); P(f"s_add_u32 s{S_T2}, s{S_T2}, {4096 + 48}")
                else: P(f"s_sub_u32 s{S_T2}, s{S_T2}, 16")
                P(f"buffer_load_dwordx4 v{l16}, s[{S_X}:{S_X+3}], s{S_T2} offen offset:{X_STRIDE*k} lds", tag="c")
    else:
        P("LF_ldx7:")
        P(f"buffer_load_dwordx4 v{l16}, s[{S_X}:{S_X+3}], s{S_T2} offen lds", tag="c")
        P(f"s_add_u32 m0, m0, {X_STRIDE}")
        P(f"s_add_u32 s{S_T2}, s{S_T2}, 1024")
        P(f"s_add_u32 s{S_T5}, s{S_T5}, 1")
        P(f"s_cmp_lg_u32 s{S_T5}, 16")
        P("s_cbranch_scc1 LF_ldx7")
    P(f"s_cmp_eq_u32 s{S_T3}, 0")
    P(f"s_cselect_b32 s{S_WKV}, s8, s10")
    P(f"s_cselect_b32 s{S_WKV+1}, s9, s11")
    P(f"s_and_b32 s{S_WKV+1}, s{S_WKV+1}, 0xffff")
    P(f"s_mov_b32 s{S_WKV+2}, 0x{SZ['wk']:x}")
    P(f"s_mov_b32 s{S_WKV+3}, 0x20000")
    P(f"s_mov_b32 m0, 0x{WKV_L:x}")
    P(f"s_mov_b32 s{S_T5}, 0")
    P("LF_ldw7:")
    for i in range(4):
        P(f"buffer_load_dwordx4 v{l16}, s[{S_WKV}:{S_WKV+3}], s{S_T5} offen offset:{1024*i} lds")
        P.I[-1].kind = "salu"
    P(f"s_add_u32 m0, m0, 4096")
    P(f"s_add_u32 s{S_T5}, s{S_T5}, 4096")
    P(f"s_cmp_lg_u32 s{S_T5}, 16384")
    P("s_cbranch_scc1 LF_ldw7")
    stamp(P, 15)
    P("s_barrier")
    P("LF_not7:")
    P("s_waitcnt lgkmcnt(0)")
    P(f"v_mov_b32 v{vz}, 0")
    if OPT.get("cnt"): P("s_mov_b32 s85, 0")
    mk_srd(P, S_WS, 28, SZ["ws"])
    mk_srd(P, S_DBG, 26, SZ["dbg"])
    vn = V.alloc("vn")
    P(f"s_or_b32 s{S_T0}, s2, s{S_W}")
    P(f"s_cmp_lg_u32 s{S_T0}, 0")
    P("s_cbranch_scc1 LF_non")
    P.cond_begin()
    P(f"s_memrealtime s[{S_EX}:{S_EX+1}]")
    P("s_waitcnt lgkmcnt(0)")
    P(f"s_mul_i32 s{S_EX+1}, s{S_EX+1}, 0x9e3779b1")
    if OPT.get("amp0") != 99: P(f"s_xor_b32 s{S_EX}, s{S_EX}, s{S_EX+1}")
    P(f"s_or_b32 s{S_EX}, s{S_EX}, 1")
    P(f"v_mov_b32 v{t0}, s{S_EX}")
    P("s_mov_b64 exec, 1")
    P(f"buffer_store_dword v{t0}, v{vz}, s[{S_DBG}:{S_DBG+3}], 0 offen sc1")
    P("s_mov_b64 exec, -1")
    P.cond_end()
    P("LF_non:")
    P_main = P; P = Prog()
    rest_srds(P)
    mk_srd(P, S_GW, 22, SZ["gw"])
    P(f"s_mov_b32 s{S_C1}, {hexf(2.0**120)}")
    A = attn_setup(P, V, lane, l16, t0, t1)
    qf = A["q"]; O = A["O"]; S = A["S"]
    A["sb"] = SplitBar(P, V, SL, lane, t0) if OPT.get("sb", 0) else type("X", (), dict(n=0))()
    vfl = V.alloc("vfl", 4)
    P(f"s_lshl_b32 s{S_T0}, s{S_HP}, 1")
    P(f"s_add_u32 s{S_T0}, s{S_T0}, s{S_KH}")
    P(f"s_lshl_b32 s{S_T1}, s{S_J}, 2")
    P(f"s_add_u32 s{S_T0}, s{S_T0}, s{S_T1}")
    P(f"s_mul_i32 s{S_T1}, s{S_TILE}, 118")
    P(f"s_add_u32 s{S_T0}, s{S_T0}, s{S_T1}")
    P(f"s_lshl_b32 s{S_T0}, s{S_T0}, 10")
    P(f"s_add_u32 s{S_OD}, s{S_T0}, 0x{WS_OH + 86*1024:x}")
    def poison():
        for r in range(4): P(f"v_mov_b32 v{O[0]+r}, -1")
        P(f"buffer_store_dwordx4 {vr(O[0],4)}, v{l16}, {WSR}, s{S_OD} offen sc1", tag="poison")
    P(f"s_lshr_b32 s{S_T0}, s{S_W}, 1")
    P(f"s_lshl_b32 s{S_T0}, s{S_T0}, 3")
    P(f"s_add_u32 s{S_T0}, s{S_T0}, s{S_T1}")
    P(f"s_lshl_b32 s{S_T0}, s{S_T0}, 10")
    P(f"s_add_u32 s{S_OL}, s{S_T0}, 0x{WS_OH + 86*1024:x}")
    P(f"s_lshl_b32 s{S_FP}, s{S_G}, 10")
    P(f"s_lshl_b32 s{S_FS}, s{S_J}, 5")
    P(f"s_add_u32 s{S_FS}, s{S_FS}, s{S_W}")
    P(f"s_lshl_b32 s{S_FS}, s{S_FS}, 2")
    P(f"s_add_u32 s{S_FS}, s{S_FS}, s{S_FP}")
    P(f"s_add_u32 s{S_FS}, s{S_FS}, 0x{FL_H:x}")
    P(f"s_add_u32 s{S_FP}, s{S_FP}, 0x{FL_H:x}")
    P(f"s_lshl_b32 s{S_FW}, s{S_W}, 14")
    P(f"s_lshl_b32 s{S_T1}, s{S_J}, 7")
    P(f"s_add_u32 s{S_FW}, s{S_FW}, s{S_T1}")
    P(f"s_lshl_b32 s{S_FL2}, s{S_W}, 11")
    P(f"s_mul_i32 s{S_U0}, s{S_J}, 11")
    P(f"s_min_u32 s{S_U0}, s{S_U0}, 76")
    P(f"s_cmp_ge_u32 s{S_J}, 6")
    P(f"s_cselect_b32 s{S_NU}, 10, 11")
    vxa = xfrag_addr(P, V, "vxa", lane, t0, S_TT)
    vq = V.alloc("vq")
    P(f"s_and_b32 s{S_T0}, s{S_W}, 3")
    P(f"s_lshl_b32 s{S_T1}, s{S_T0}, 11")
    P(f"s_add_u32 s{S_T1}, s{S_T1}, 0x{QSCR:x}")
    P(f"v_add_u32 v{vq}, s{S_T1}, v{l16}")
    COMMON = P.I; P = P_main
    def emit(L):
        for x in L: P(x.text, tag=x.tag)
    iw = next(i for i, x in enumerate(COMMON) if x.text.startswith(f"s_mov_b32 s{S_WM+3},")) + 1
    iu = next(i for i, x in enumerate(COMMON) if x.text.startswith(f"s_mul_i32 s{S_U0},"))
    C_EARLY = COMMON[:iw] + COMMON[iu:iu + 4]; C_LATE = COMMON[iw:iu] + COMMON[iu + 4:]
    acc = [[V.alloc(f"acc{i}{t}", 16) for t in range(2)] for i in range(3)]
    fx = [[V.alloc(f"fx{b}{t}", 4) for t in range(2)] for b in range(2)]
    fw = [[V.alloc(f"fw{b}{i}", 4) for i in range(3)] for b in range(2)]
    S_PFB = 19
    def capture(f):
        nonlocal P
        P0 = P; P = Prog(); f(); L = P.I; P = P0
        return L
    R = {}
    def f1():
        vtn = tr_slice_addr(P, V, "vtn", lane, t0, t1, SLOT[0], S_HP, 8)
        vpf = V.alloc("vpf"); vpd = V.alloc("vpd"); vpw = V.alloc("vpw")
        P(f"v_bfe_u32 v{t0}, v{lane}, 4, 1")
        P(f"v_lshrrev_b32 v{t1}, 5, v{lane}")
        P(f"v_lshl_add_u32 v{t0}, v{t1}, 7, v{t0}")
        P(f"v_mul_u32_u24 v{vpf}, 2752, v{t0}")
        P(f"v_and_b32 v{t0}, 15, v{lane}")
        P(f"v_lshl_add_u32 v{vpf}, v{t0}, 7, v{vpf}")
        P(f"v_cmp_gt_u32 vcc, 12, v{t0}")
        P(f"v_mov_b32 v{t1}, 0x{OOB:x}")
        P(f"v_cndmask_b32 v{vpf}, v{t1}, v{vpf}, vcc")
        P(f"s_lshr_b32 s{S_T0}, s2, 3")
        P(f"s_lshl_b32 s{S_T0}, s{S_T0}, 1")
        P(f"s_add_u32 s{S_T0}, s{S_T0}, s{S_HP}")
        P(f"s_mul_i32 s{S_T0}, s{S_T0}, {2*2752}")
        P(f"s_and_b32 s{S_T1}, s2, 1")
        P(f"s_mul_i32 s{S_T1}, s{S_T1}, {44*32}")
        P(f"s_add_u32 s{S_PFB}, s{S_T0}, s{S_T1}")
        R.update(vtn=vtn, vpf=vpf, vpd=vpd, vpw=vpw)
    def f2():
        vx0 = V.alloc("vx0")
        P(f"s_mul_i32 s{S_T0}, s{S_TT}, {32*X_STRIDE}")
        P(f"v_subrev_u32 v{vx0}, s{S_T0}, v{vxa}")
        P(f"s_lshl_b32 s{S_T4}, s{S_W}, 1")
        wtr = w_tr_addrs(P, V, lane, t0, t1, s_w=S_T4)
        R.update(vx0=vx0, wtr=wtr)
    def f3():
        P(f"s_mul_i32 s{S_T0}, s{S_W}, 3")
        P(f"s_mul_i32 s{S_T1}, s{S_G}, 236")
        P(f"s_add_u32 s{S_T1}, s{S_T1}, s{S_U0}")
        for i in range(3):
            P(f"s_add_u32 s{S_T2}, s{S_T0}, {i}")
            P(f"s_add_u32 s{SH[i]}, s{S_T1}, s{S_T2}")
            P(f"s_lshl_b32 s{SH[i]}, s{SH[i]}, 10")
            P(f"s_add_u32 s{SH[i]}, s{SH[i]}, 0x{WS_OH:x}")
            P(f"s_cmp_lt_u32 s{S_T2}, s{S_NU}")
            P(f"s_cselect_b32 s{SH[i]}, s{SH[i]}, 0x{OOB:x}")
    def f4():
        vpw = R["vpw"]
        S_PFS = S_WKV
        P(f"s_lshr_b32 s{S_T0}, s2, 3")
        P(f"s_lshl_b32 s{S_T0}, s{S_T0}, 2")
        P(f"s_add_u32 s{S_T0}, s{S_T0}, s{S_W}")
        P(f"s_cmp_lt_u32 s{S_T0}, 86")
        P(f"s_cselect_b32 s{S_PFS}, s{S_WD}, s{S_WO}")
        P(f"s_cselect_b32 s{S_PFS+1}, s{S_WD+1}, s{S_WO+1}")
        P(f"s_cselect_b32 s{S_PFS+2}, s{S_WD+2}, s{S_WO+2}")
        P(f"s_cselect_b32 s{S_T1}, 0, 86")
        P(f"s_mov_b32 s{S_PFS+3}, 0x20000")
        P(f"s_sub_u32 s{S_T0}, s{S_T0}, s{S_T1}")
        P(f"s_lshl_b32 s{S_T0}, s{S_T0}, 14")
        P(f"s_and_b32 s{S_T1}, s2, 1")
        P(f"s_lshl_b32 s{S_T1}, s{S_T1}, 9")
        P(f"s_add_u32 s{S_T0}, s{S_T0}, s{S_T1}")
        P(f"v_lshrrev_b32 v{t0}, 2, v{lane}")
        P(f"v_lshlrev_b32 v{t0}, 10, v{t0}")
        P(f"v_and_b32 v{t1}, 3, v{lane}")
        P(f"v_lshl_add_u32 v{t0}, v{t1}, 7, v{t0}")
        P(f"v_add_u32 v{vpw}, s{S_T0}, v{t0}")
    ix = next(i for i, x in enumerate(COMMON) if x.text.startswith(f"v_and_b32 v{t0}, 31, v{lane}"))
    ia = next(i for i, x in enumerate(COMMON) if x.text.startswith(f"s_mov_b32 s{S_C1},")) + 1
    io = next(i for i, x in enumerate(COMMON) if x.text.startswith(f"s_lshl_b32 s{S_T0}, s{S_HP}, 1"))
    ifl = next(i for i, x in enumerate(COMMON) if x.text.startswith(f"s_lshl_b32 s{S_FP},"))
    H_PRE = COMMON[ix:ix + 6] + COMMON[:iw] + capture(f1)
    H_MID = COMMON[ia:io] + COMMON[ix + 6:] + capture(f2) + COMMON[io:ifl]
    H_LATE = [COMMON[iw:iw + 8], COMMON[iw + 8:ia], COMMON[ifl:iu], COMMON[iu:iu + 4]]
    sh = capture(f3); H_LATE += [sh[:9], sh[9:15], sh[15:]]
    wp = capture(f4); H_LATE += [wp[:14], wp[14:]]
    vtn, vpf, vpd, vpw, vx0, wtr = (R[k] for k in ("vtn", "vpf", "vpd", "vpw", "vx0", "wtr"))
    S_PFS = S_WKV
    def pf(blk, half):
        P(f"s_add_u32 s{S_T4}, s{S_PFB}, {128*2752*blk}")
        if half: P("s_mov_b64 exec, 0xffffffff")
        P(f"buffer_load_dword v{vpd}, v{vpf}, s[{S_WM}:{S_WM+3}], s{S_T4} offen", tag="pf")
        P.I[-1].vw = set()
        if half: P("s_mov_b64 exec, -1")
    PF = OPT.get("pf", 0)
    KT = 192; vx16 = 240; vw16 = 241; vst = 242; S_K5, S_K6 = S_T5, S_T6
    P(f"s_cmp_lg_u32 s{S_W}, 7")
    P("s_cbranch_scc1 LF_not7b")
    P.cond_begin()
    P(f"s_lshr_b32 s{S_T0}, s{S_J}, 1")
    P(f"s_lshl_b32 s{S_T1}, s{S_T0}, 4")
    P(f"v_and_b32 v{t0}, 15, v{lane}")
    P(f"v_add_u32 v{t1}, s{S_T1}, v{t0}")
    P(f"v_mul_u32_u24 v{vx16}, {X_STRIDE}, v{t1}")
    P(f"v_lshrrev_b32 v{t1}, 4, v{lane}")
    P(f"v_lshl_add_u32 v{vx16}, v{t1}, 4, v{vx16}")
    P(f"v_lshlrev_b32 v{vw16}, 8, v{t1}")
    P(f"v_lshl_add_u32 v{vw16}, v{t0}, 3, v{vw16}")
    P(f"v_add_u32 v{vw16}, 0x{WKV_L:x}, v{vw16}")
    P(f"s_and_b32 s{S_K6}, s{S_J}, 1")
    P(f"s_cmp_eq_u32 s{S_K6}, 0")
    P(f"s_cselect_b32 s{S_T3}, 9, 8")
    P(f"s_cselect_b32 s{S_T4}, 8, 9")
    P(f"s_cselect_b32 s{S_K5}, 0x{WS_KF:x}, 0x{WS_VF:x}")
    P(f"v_lshlrev_b32 v{vst}, 4, v{t0}")
    P(f"s_xor_b32 s{S_T7}, s{S_K6}, 1")
    P(f"v_bfe_u32 v{t0}, v{t1}, s{S_T7}, 1")
    P(f"v_lshl_add_u32 v{vst}, v{t0}, 3, v{vst}")
    P(f"v_bfe_u32 v{t0}, v{t1}, s{S_K6}, 1")
    P(f"v_lshlrev_b32 v{t0}, s{S_T3}, v{t0}")
    P(f"v_add_u32 v{vst}, v{vst}, v{t0}")
    P(f"s_and_b32 s{S_T1}, s{S_T0}, 1")
    P(f"s_lshl_b32 s{S_T1}, s{S_T1}, s{S_T4}")
    P(f"s_add_u32 s{S_K5}, s{S_K5}, s{S_T1}")
    P(f"s_lshr_b32 s{S_T0}, s{S_T0}, 1")
    P(f"s_lshl_b32 s{S_T1}, s{S_G}, 1")
    P(f"s_add_u32 s{S_T0}, s{S_T0}, s{S_T1}")
    P(f"s_lshl_b32 s{S_T0}, s{S_T0}, 10")
    P(f"s_add_u32 s{S_K5}, s{S_K5}, s{S_T0}")
    P("s_waitcnt vmcnt(0)")
    P(f"buffer_load_dword v{vn}, v{vz}, s[{S_DBG}:{S_DBG+3}], 0 offen sc1")
    def kv16(which):
        d = KT
        xb = [(KT+16) + 4 * i for i in range(4)]; wb = [(KT+32) + 4 * i for i in range(4)]
        def ld(ks):
            P(f"ds_read_b128 {vr(xb[ks%4],4)}, v{vx16} offset:{ks*64}")
            P(f"ds_read_b64_tr_b16 {vr(wb[ks%4],2)}, v{vw16} offset:{ks*1024}")
            P(f"ds_read_b64_tr_b16 {vr(wb[ks%4]+2,2)}, v{vw16} offset:{ks*1024+128}")
        for ks in range(3): ld(ks)
        for ks in range(16):
            a, b = (wb[ks%4], xb[ks%4]) if which == 0 else (xb[ks%4], wb[ks%4])
            P(f"v_mfma_f32_16x16x32_bf16 {vr(d,4)}, {vr(a,4)}, {vr(b,4)}, {vr(d,4) if ks else 0}")
            if ks + 3 < 16: ld(ks + 3)
        if which == 0:
            P(f"s_mov_b32 s{S_T0}, {hexf(QK_SCALE)}")
            for r in range(4): P(f"v_mul_f32 v{d+r}, s{S_T0}, v{d+r}")
    P(f"s_cmp_eq_u32 s{S_K6}, 1")
    P("s_cbranch_scc1 LF_vch")
    P.cond_begin(); kv16(0); P.cond_end()
    P("s_branch LF_kvj")
    P("LF_vch:")
    P.cond_begin(); kv16(1); P.cond_end()
    P("LF_kvj:")
    for r in range(2): P(f"v_cvt_pk_bf16_f32 v{KT+4+r}, v{KT+2*r}, v{KT+2*r+1}")
    P(f"buffer_store_dwordx2 {vr(KT+4,2)}, v{vst}, {WSR}, s{S_K5} offen sc1")
    FB2 = OPT.get("fb2", 0)
    def w7flag():
        P(f"s_lshl_b32 s{S_T0}, s{S_G}, 3")
        P(f"s_add_u32 s{S_T0}, s{S_T0}, s{S_J}")
        P(f"s_lshl_b32 s{S_T0}, s{S_T0}, 2")
        P(f"s_add_u32 s{S_T0}, s{S_T0}, 0x{FL_KV:x}")
        P("s_waitcnt vmcnt(0)")
        nonce_check(P, SL, vn, vz)
        flag_store(P, vz, t0, S_T0)
    if not FB2: w7flag()
    def pf7():
        P(f"v_lshrrev_b32 v{t0}, 4, v{lane}")
        P(f"v_mul_u32_u24 v{vx16}, 2752, v{t0}")
        P(f"v_and_b32 v{t0}, 15, v{lane}")
        P(f"v_lshl_add_u32 v{vx16}, v{t0}, 7, v{vx16}")
        P(f"v_cmp_gt_u32 vcc, 12, v{t0}")
        P(f"v_mov_b32 v{t1}, 0x{OOB:x}")
        P(f"v_cndmask_b32 v{vx16}, v{t1}, v{vx16}, vcc")
        P(f"s_lshr_b32 s{S_T0}, s2, 3")
        P(f"s_mul_i32 s{S_T0}, s{S_T0}, {4*2752}")
        P(f"s_and_b32 s{S_T1}, s2, 1")
        P(f"s_mul_i32 s{S_T1}, s{S_T1}, {44*32}")
        P(f"s_add_u32 s{S_T0}, s{S_T0}, s{S_T1}")
        for m in range(2):
            mk_srd(P, S_WKV, 16 + 2 * m, SZ["wg"])
            P(f"buffer_load_dword v{fx[0][0]+m}, v{vx16}, s[{S_WKV}:{S_WKV+3}], s{S_T0} offen")
    if OPT.get("pf7", 0) == 1: pf7()
    stamp(P, 1)
    P("s_barrier")
    stamp(P, 2)
    if OPT.get("pf7", 0) == 2: pf7()
    if FB2 == 1: w7flag()
    P("s_barrier")
    if FB2 == 2: w7flag()
    P.cond_end(nowait=True)
    P("s_branch LF_light")
    P("LF_not7b:")
    P(f"s_cmp_lg_u32 s{S_KH}, 0")
    P("s_cbranch_scc1 LF_l0")

    def sigstamp(it, k):
        if OPT.get("sig"):
            P(f"s_memtime s[98:99]"); P("s_waitcnt lgkmcnt(0)"); P(f"v_writelane_b32 v{vsig}, s98, {2*it+k}")
    vsig = V.alloc("vsig") if OPT.get("sig") else None

    P.cond_begin()
    emit(H_PRE)
    stamp(P, 15)
    P("s_barrier")
    stamp(P, 0)
    LOADS["f"]("h")
    stamp(P, 1)
    if PF & 4: pf(0, True)
    P.wait_tag("q")
    P("s_barrier")
    stamp(P, 2)
    if PF & 2: pf(0, True)
    QD = 6
    xb = [acc[1][0] + 4 * i for i in range(QD)]; wb = [acc[2][0] + 4 * i for i in range(QD)]
    assert acc[1][1] == acc[1][0] + 16 and acc[2][1] == acc[2][0] + 16
    def q_loads(ks):
        o = SLOT[ks // 12] - SLOT[0] + (ks % 12) * 2048
        P(f"ds_read_b128 {vr(xb[ks%QD],4)}, v{vxa} offset:{ks*32}")
        P(f"ds_read_b64_tr_b16 {vr(wb[ks%QD],2)}, v{vtn} offset:{o}")
        P(f"ds_read_b64_tr_b16 {vr(wb[ks%QD]+2,2)}, v{vtn} offset:{o+512}")
    for ks in range(QD - 1): q_loads(ks)
    for ks in range(32):
        P(mfma(acc[0][0], wb[ks%QD], xb[ks%QD], acc[0][0] if ks else None))
        if ks in (11, 23):
            stamp(P, 11 if ks == 11 else 13)
            P("s_barrier")
        if ks + QD - 1 in (12, 24): P("s_barrier")
        if ks + QD - 1 < 32: q_loads(ks + QD - 1)
        nf = -(-len(H_MID) // 28)
        emit(H_MID[ks * nf:(ks + 1) * nf])
        if ks == OPT.get("pk", 30) and OPT.get("kl", 2) != 2:
            P(f"s_mov_b32 s{S_T5}, 0x{FL_KV:x}")
            P(f"buffer_load_dword v{vn}, v{vz}, s[{S_DBG}:{S_DBG+3}], 0 offen sc1")
            P(flag_load(vfl, 4, l16, f"s{S_T5}"))
    for r in range(8): P(f"v_cvt_pk_bf16_f32 v{qf+r}, v{acc[0][0]+2*r}, v{acc[0][0]+2*r+1}")
    P(f"ds_write_b128 v{vq}, {vr(qf,4)}")
    P(f"ds_write_b128 v{vq}, {vr(qf+4,4)} offset:1024")
    def kv_check():
        nonce_check(P, SL, vn, vz)
        spin_check(P, SL, [flag_load(vfl, 4, l16, f"s{S_T5}")], flag_cmp(vfl, 4, t0), sleep=OPT.get("ksl", 6))
        kv_dma(P, l16, 0)
        dma(P, l16, S_WS, f"s{S_T2}", (S_KVLDS, 4096), tag="kv0", mods=SC1, pre=[f"s_add_u32 s{S_T2}, s{S_T2}, 32768"])
    if not OPT.get("kl", 2): kv_check()
    def gu_reads(ks):
        s, kk = ks // 2, ks % 2
        so = SLOT[s % 3] - SLOT[0] + kk * 6144
        L = [f"ds_read_b128 {vr(fx[ks%2][0],4)}, v{vx0} offset:{ks*32}"]
        for i in range(3):
            f = fw[ks % 2][i]
            L += [f"ds_read_b64_tr_b16 {vr(f,2)}, v{wtr[i]} offset:{so}", f"ds_read_b64_tr_b16 {vr(f+2,2)}, v{wtr[i]} offset:{so+1536}"]
            if i == 0: L.append(f"ds_read_b128 {vr(fx[ks%2][1],4)}, v{vx0} offset:{ks*32 + 32*X_STRIDE}")
        return L
    def gu_groups(ks, late=False):
        R = gu_reads(ks + 1) if ks < 31 else []
        if OPT.get("abl_hds") and ks >= 2 * NP - 1: R = []
        G = []
        for m in range(6):
            i, t = m // 2, m % 2
            mm = [mfma(acc[i][t], fw[ks % 2][i], fx[ks % 2][t], acc[i][t] if ks else None)]
            if OPT.get("abl_hm") and ks >= 2 * NP - 1: mm = []
            G.append(mm + (R[2 * m: 2 * m + 2] if not late else ([] if m < 3 else R[3 * (m - 3): 3 * (m - 3) + 3])))
        return G
    P.wait_lgkm_all()
    stamp(P, 14)
    P("s_barrier")
    stamp(P, 3)
    for x in gu_reads(0): P(x)
    if OPT.get("kl", 2) == 1: kv_check()
    if OPT.get("kl", 2) == 2:
        P(f"s_mov_b32 s{S_T5}, 0x{FL_KV:x}")
        P(f"buffer_load_dword v{vn}, v{vz}, s[{S_DBG}:{S_DBG+3}], 0 offen sc1")
        P(flag_load(vfl, 4, l16, f"s{S_T5}"))
    PFI = OPT.get("pfi", 0)
    for ks in range(2 * NP - 1):
        if ks % 2 == 1:
            P.wait_lgkm_all(); P("s_barrier")
        for g in gu_groups(ks):
            for x in g: P(x)
        if ks == 0 and OPT.get("kl", 2) == 2: kv_check()
    P.wait_tag("kv0"); P.wait_lgkm_all(); P("s_barrier")
    stamp(P, 4)
    gq = []
    tmp = fx[0][0]; cst = fx[1][0]
    assert fx[0][1] == fx[0][0] + 4
    gel = []
    def load_window(k):
        n = 2 * (NP + k) - 1
        assert not gq
        gq.extend(gu_groups(n, late=(k > 0 and OPT.get("sb", 0))))
        if n < 31: gq.extend(gu_groups(n + 1))
    def hookH(it, x, pos):
        if pos == "sync?": return 1 <= it <= JIT
        if pos == "pre0": sigstamp(it, 0); return
        if pos == "pre": sigstamp(it, 1); return
        if pos == "start": load_window(0); return
        if pos == "qk" and it == 3 and x == 0:
            for r in range(4): P(f"v_mov_b32 v{vfl+r}, -1")
            P(f"buffer_store_dwordx4 {vr(vfl,4)}, v{l16}, {WSR}, s{S_OD} offen sc1", tag="poison")
        if pos == "qk" and it == 4 and x == 0:
            P(f"buffer_store_dwordx4 {vr(vfl,4)}, v{l16}, {WSR}, s{S_OD} offen offset:1024 sc1", tag="poison")
        midprio(it, x, pos, PH)
        if pos in ("qk", "pv1") and H_LATE: emit(H_LATE.pop(0))
        if pos == "pv2" and x == 1 and PF & 1:
            if it == PFI: pf(1, True)
            if it == PFI + 2: pf(2, True)
            if it == PFI + 5: pf(3, True)
        if pos == "pv2" and x == 1 and OPT.get("wpf", 1) and it in range(OPT.get("wi", 7), OPT.get("wi", 7) + 4):
            k = it - OPT.get("wi", 7)
            P(f"s_cmp_lg_u32 s{S_W}, {k}")
            P(f"s_cbranch_scc1 LF_wp{k}")
            P(f"buffer_load_dword v{vpd}, v{vpw}, s[{S_PFS}:{S_PFS+3}], 0 offen")
            P.I[-1].kind = "salu"; P.I[-1].vw = set()
            P(f"LF_wp{k}:")
        if pos == "pv1" and x == 0 and 1 <= it <= JIT: load_window(it)
        if pos in ("g1", "g2", "g3", "g4", "g5", "g6"):
            cnt = int(str(OPT.get("gm", 111111))[int(pos[1]) - 1]) if gq else 1
            cnt = 0 if cnt == 9 else cnt
            if gq and cnt == 0: pass
            elif gq:
                for _ in range(cnt):
                    if gq:
                        for t in gq.pop(0): P(t)
                if not gq and it == JIT and x == 1:
                    L = [f"v_mov_b32 v{cst}, {hexf(GELU_C1)}", f"v_mov_b32 v{cst+1}, {hexf(GELU_C1)}",
                         f"v_mov_b32 v{cst+2}, {hexf(GELU_C2)}", f"v_mov_b32 v{cst+3}, {hexf(GELU_C2)}"]
                    k = 0
                    for i in range(3):
                        for t in range(2):
                            d = fw[k % 2][k // 2]; k += 1
                            L += gelu_tile_pk(acc[i][t], d, tmp, cst)
                            if t == 1: L.append(f"s_add_u32 s{SH[i]}, s{SH[i]}, {118*1024}")
                            L.append(f"buffer_store_dwordx4 {vr(d,4)}, v{l16}, {WSR}, s{SH[i]} offen sc1")
                    ns = 3 + 12 * (UNI - JIT - 1)
                    n = (len(L) + ns - 1) // ns
                    gel.extend(L[i:i + n] for i in range(0, len(L), n))
            elif gel:
                for t in gel.pop(0): P(t, tag="hst" if "store" in t else None)
    PM = OPT.get("pm", 9)
    PH = [int(c) for c in str(OPT.get("ph", 3321)).zfill(4)]; PL = [int(c) for c in str(OPT.get("pl", 3210)).zfill(4)]
    def prioH(it, x):
        if PM == 9: return PH[2 * x] if it < JIT else 3
        if PM == 1: return 3 if (it == 0 and x == 0) else None
        if PM == 3: return 3 - 2 * x
        if PM == 5: return (3 - 2 * x) if it < JIT else 3
        if PM == 6: return 3 if it >= JIT else None
        return None
    def prioL(it, x):
        if PM == 9: return PL[2 * x] if it < JIT else 0
        if PM in (2, 6): return 1 if (it == 0 and x == 0) else None
        if PM == 3: return 3 - 2 * x
        if PM == 5: return (3 - 2 * x) if it < JIT else 0
        return None
    def midprio(it, x, pos, T=None):
        if PM == 9 and pos == "pv2" and it <= JIT: P(f"s_setprio {T[1] if x else T[3]}")
        if PM in (3, 5) and pos == "pv2" and (PM == 3 or it <= JIT): P(f"s_setprio {2 * x}")
    attention(P, A, l16, range(0, UNI), hookH, prioH, kvf=lambda c: None, bb=OPT.get("bbh", 0))
    nsb = A["sb"].n; A["sb"].n = 0
    assert not gq and not gel, (len(gq), len(gel))
    P.cond_end(keep=True)
    P("s_branch LF_join")
    for n in ("vx0", "vtn", "wtr0", "wtr1", "wtr2", "vpf"): V.release(n)

    P("LF_l0:")
    P.cond_begin()
    if OPT.get("q3", 0):
        P(f"s_cmp_lg_u32 s{S_W}, 4")
        P("s_cbranch_scc1 LF_q3")
        mk_srd(P, S_WQ, 6, SZ["wq"])
        P(f"v_lshlrev_b32 v{t0}, 10, v{lane}")
        P(f"s_lshr_b32 s{S_T0}, s2, 3")
        P(f"s_lshl_b32 s{S_T0}, s{S_T0}, 14")
        P(f"s_and_b32 s{S_T1}, s2, 1")
        P(f"s_lshl_b32 s{S_T1}, s{S_T1}, 9")
        P(f"s_add_u32 s{S_T0}, s{S_T0}, s{S_T1}")
        P("s_mov_b64 exec, 0xffff")
        raw(P, f"buffer_load_dword v{t1}, v{t0}, s[{S_WQ}:{S_WQ+3}], s{S_T0} offen offset:384")
        P("s_mov_b64 exec, -1")
        P("LF_q3:")
    P("s_barrier")
    LOADS["f"]("l")
    stamp(P, 1)
    if OPT.get("t3e", 1):
        P(f"s_cmp_eq_u32 s{S_W}, 6")
        P("s_cbranch_scc1 LF_l6")
        P(f"s_add_u32 s{S_T3}, s{S_T3}, 24")
        wq_pieces(P, vsl, S_T3, 8, "LF_ldq3", 1)
        P("s_waitcnt vmcnt(16)")
        P("s_barrier")
        stamp(P, 2)
        P("s_waitcnt vmcnt(8)")
        P("s_branch LF_l6j")
        P("LF_l6:")
        P("s_waitcnt vmcnt(8)")
        P("s_barrier")
        stamp(P, 2)
        P("s_waitcnt vmcnt(0)")
        P("LF_l6j:")
        P("s_barrier")
    else:
        P("s_waitcnt vmcnt(8)")
        P("s_barrier")
        stamp(P, 2)
        P(f"s_cmp_eq_u32 s{S_W}, 6")
        P("s_cbranch_scc1 LF_l6")
        P(f"s_add_u32 s{S_T3}, s{S_T3}, 24")
        wq_pieces(P, vsl, S_T3, 8, "LF_ldq3", 1)
        P("s_waitcnt vmcnt(8)")
        P("s_branch LF_l6j")
        P("LF_l6:")
        P("s_waitcnt vmcnt(0)")
        P("LF_l6j:")
        P("s_barrier")
    P("LF_light:")
    if OPT.get("p7", 1): P("s_setprio 0")
    mk_srd(P, S_GW, 22, SZ["gw"])
    dma(P, l16, S_GW, "0", (None, GWL), tag="gw")
    emit(C_EARLY)

    pats = w_patterns(P, V, lane, t0, t1)
    P(f"s_lshl_b32 s{S_T0}, s{S_HP}, 1")
    P(f"s_mul_i32 s{S_WOFF}, s{S_T0}, {8*2752}")
    P(f"s_lshl_b32 s{S_T1}, s{S_U0}, 5")
    P(f"s_add_u32 s{S_WOFF}, s{S_WOFF}, s{S_T1}")
    P(f"s_mul_i32 s{S_WLDS}, s{S_T0}, 3072")
    P(f"s_mul_i32 s{S_T1}, s{S_TT}, {UP_OFF}")
    P(f"s_add_u32 s{S_WLDS}, s{S_WLDS}, s{S_T1}")
    inattn = dict(on=False)
    P(f"s_add_u32 s{S_WOFF}, s{S_WOFF}, 0")
    P(f"v_subrev_u32 v{pats[1]}, 1024, v{pats[1]}")
    P(f"v_subrev_u32 v{pats[2]}, 2048, v{pats[2]}")
    def w_dma1(s, k):
        g, i = k // 3, k % 3
        solo = not OPT.get("wm0", 1) or inattn["on"]
        if i == 0 or solo:
            dma(P, pats[i], S_WM, f"s{S_T3}", (S_WLDS, SLOT[s % 3] + 3072 * g), offset=1024 * i, tag=f"w{s}",
                pre=[f"s_add_u32 s{S_T3}, s{S_WOFF}, 0x{(32*s + 8*g)*2752:x}"] if i == 0 else None)
        else:
            P(f"buffer_load_dwordx4 v{pats[i]}, s[{S_WM}:{S_WM+3}], s{S_T3} offen offset:{1024*i} lds", tag=f"w{s}")
    def w_dma6(s):
        for k in range(6): w_dma1(s, k)
    stamp(P, 11)
    P("s_barrier")
    w_dma6(0)
    P("s_waitcnt vmcnt(6)"); P.I[-1].kind = "salu"
    P("s_barrier")
    h = len(C_LATE) // 4
    emit(C_LATE[:h])
    stamp(P, 13)
    P("s_barrier")
    w_dma6(1)
    emit(C_LATE[h:])
    vgw = acc[0][1]
    P(f"v_lshrrev_b32 v{t0}, 5, v{lane}")
    P(f"v_lshlrev_b32 v{vgw}, 4, v{t0}")
    P(f"s_lshl_b32 s{S_T0}, s{S_HP}, 9")
    P(f"v_add_u32 v{vxa}, s{S_T0}, v{vxa}")
    P(f"s_add_u32 s{S_T0}, s{S_T0}, 0x{GWL:x}")
    P(f"v_add_u32 v{vgw}, s{S_T0}, v{vgw}")
    P(f"s_lshl_b32 s{S_T0}, s{S_W}, 8")
    P(f"s_add_u32 s{S_T0}, s{S_T0}, 0x{ONES - 1024:x}")
    P(f"v_lshlrev_b32 v{t0}, 2, v{lane}")
    P(f"v_add_u32 v{t0}, s{S_T0}, v{t0}")
    P(f"v_mov_b32 v{t1}, 0x3f803f80")
    P(f"v_lshrrev_b32 v1, 2, v{lane}")
    P(f"v_and_b32 v1, 11, v1")
    P(f"v_cmp_eq_u32 vcc, 0, v1")
    P(f"v_cndmask_b32 v{t1}, 0, v{t1}, vcc")
    P(f"ds_write_b32 v{t0}, v{t1}")
    P(f"ds_write_b32 v{t0}, v{t1} offset:1024")
    za = acc[0][0]; zx = [acc[1][0] + 4 * i for i in range(4)]; zg = [acc[2][0] + 4 * i for i in range(4)]
    def zjob():
        for r in range(4): P(f"v_mov_b32 v{za+r}, 0")
        def zld(k):
            P(f"ds_read_b128 {vr(zx[k%4],4)}, v{vxa} offset:{k*32}")
            P(f"ds_read_b128 {vr(zg[k%4],4)}, v{vgw} offset:{k*32}")
        for k in range(3): zld(k)
        for k in range(16):
            for r in range(4): P(f"v_dot2c_f32_bf16 v{za+r}, v{zx[k%4]+r}, v{zg[k%4]+r}")
            if k + 3 < 16: zld(k + 3)
        P("s_nop 2")
        P(f"v_add_f32 v{za}, v{za}, v{za+1}")
        P(f"v_add_f32 v{za+2}, v{za+2}, v{za+3}")
        P(f"v_add_f32 v{za}, v{za}, v{za+2}")
        P(f"s_and_b32 s{S_T0}, s{S_W}, 3")
        P(f"s_lshl_b32 s{S_T0}, s{S_T0}, 8")
        P(f"s_add_u32 s{S_T0}, s{S_T0}, 0x{MISC:x}")
        P(f"v_lshlrev_b32 v{t0}, 2, v{lane}")
        P(f"v_add_u32 v{t0}, s{S_T0}, v{t0}")
        P(f"ds_write_b32 v{t0}, v{za}")
    P(f"s_mov_b32 s{S_T6}, 0x{FL_KV:x}")
    def kv_both(c):
        kv_dma(P, l16, c)
        dma(P, l16, S_WS, f"s{S_T2}", (S_KVLDS, (8192 * (c & 1) - 4096) & 0xffffffff), tag=f"kv{c}", mods=SC1, pre=[f"s_sub_u32 s{S_T2}, s{S_T2}, 32768"])
    def poll_issue():
        P(f"buffer_load_dword v{vn}, v{vz}, s[{S_DBG}:{S_DBG+3}], 0 offen sc1")
        P(flag_load(vfl, 4, l16, f"s{S_T6}"))
    if OPT.get("zpre"): P.wait_tag("gw"); zjob()
    for s in range(0, NP + 1):
        P.wait_tag(f"w{s}")
        P.wait_lgkm_all()
        if s == 0: stamp(P, 14)
        P("s_barrier")
        if s == 0:
            stamp(P, 3)
            P(f"ds_read_b128 {vr(qf,4)}, v{vq} offset:1024")
            P(f"ds_read_b128 {vr(qf+4,4)}, v{vq}")
        if s == NP: kv_both(1)
        if s < NP: w_dma6(s + 2)
        if s == 0:
            P(f"buffer_load_dword v{vn}, v{vz}, s[{S_DBG}:{S_DBG+3}], 0 offen sc1")
            if not OPT.get("zpre"): zjob()
    assert NP >= 1
    stamp(P, 4)
    dq = []; wq2 = []
    def hookL(it, x, pos):
        if pos == "sync?": return 1 <= it <= JIT
        if pos == "pre0": sigstamp(it, 0); return
        if pos == "pre":
            if NP + it < 16: P.wait_tag(f"w{NP+it}")
            sigstamp(it, 1); return
        if (pos == "start" or pos == "chk") and NP + it + 2 < 16:
            assert not dq
            for k in range(0 if OPT.get("abl_ldma") else 6): dq.append(lambda s=NP + it + 2, k=k: w_dma1(s, k))
        midprio(it, x, pos, PL)
        LW = OPT.get("lw", 4)
        if pos == "chk" and it == JIT:
            for b in range(LW):
                for o in range(2):
                    for i in range(2): wq2.append(lambda b=b, o=o, i=i: fin_dma_w2(P, vsl, b, b * 16384, f"fw{b}", i, o))
        if wq2 and pos not in ("pre", "pre0", "chk", "start"):
            wq2.pop(0)()
            if it == UNI - 1 and x == 1 and pos == "g6":
                while wq2: wq2.pop(0)()
        LS = [("pv2", "qk", "pv1"), ("g1", "g3", "g5"), ("g2", "g4", "g6"), ("pv1", "g4", "g5", "g6", "pv2", "g1", "g2"), ("pv2", "pv1")][OPT.get("ls", 3)]
        if pos in LS and dq:
            dq.pop(0)()
            if OPT.get("ls", 3) == 4 and dq and len(dq) % 3 != 0: dq.pop(0)(); (dq.pop(0)() if pos == "pv1" and len(dq) % 3 else None)
    attention(P, A, l16, range(0, UNI), hookL, prioL, kvf=kv_both, bb=OPT.get("bbl", 0))
    assert A["sb"].n == nsb
    assert not dq
    P.cond_end(keep=True)
    P("LF_join:")
    P.join()
    for n in ["wpat0", "wpat1", "wpat2", "vxa", "vq"] + [f"acc{i}{t}" for i in range(3) for t in range(2)] + \
             [f"fx{b}{t}" for b in range(2) for t in range(2)] + [f"fw{b}{i}" for b in range(2) for i in range(3)]: V.release(n)
    stamp(P, 5)

    facc = V.alloc("facc", 16); facc1 = V.alloc("facc1", 16); fa = V.alloc("ffa", 8)
    NB = OPT.get("nb", 6)
    hb = [V.alloc(f"hb{i}", 4) for i in range(NB)]; fb = hb[0]
    vl4 = V.alloc("vl4"); vg = V.alloc("vg"); zt = V.alloc("zt", 2)
    va0 = tr_slice_addr(P, V, "fa0", lane, t0, t1, 0, S_KH, 4)
    vA = [[va0, V.alloc("fa0h")], [V.alloc("fa1"), V.alloc("fa1h")]]
    P(f"s_lshl_b32 s{S_T1}, s{S_HP}, 5")
    P(f"v_xor_b32 v{va0}, s{S_T1}, v{va0}")
    P(f"s_lshr_b32 s{S_T0}, s{S_W}, 1")
    P(f"s_lshl_b32 s{S_T1}, s{S_T0}, 11")
    P(f"v_add_u32 v{va0}, s{S_T1}, v{va0}")
    P(f"v_xor_b32 v{vA[1][0]}, 64, v{va0}")
    P(f"v_add_u32 v{vA[0][1]}, 0x10000, v{va0}")
    P(f"v_add_u32 v{vA[1][1]}, 0x10000, v{vA[1][0]}")
    P(f"s_mul_i32 s{S_FB}, s{S_TILE}, 118")
    P(f"s_add_u32 s{S_FB}, s{S_FB}, s{S_T0}")
    P(f"s_lshl_b32 s{S_FB}, s{S_FB}, 10")
    P(f"s_add_u32 s{S_FB}, s{S_FB}, 0x{WS_OH:x}")
    P(f"v_lshlrev_b32 v{vl4}, 2, v{lane}")
    vhf = V.alloc("vhf")
    P(f"v_lshrrev_b32 v{t0}, 3, v{lane}")
    P(f"v_mul_u32_u24 v{t0}, 96, v{t0}")
    P(f"v_add_u32 v{vhf}, v{t0}, v{vl4}")
    P(f"s_lshl_b32 s{S_T0}, s{S_TT}, 8")
    P(f"s_add_u32 s{S_T0}, s{S_T0}, 0x{MISC:x}")
    P(f"v_add_u32 v{t0}, s{S_T0}, v{vl4}")
    P(f"ds_read_b32 v{zt}, v{t0}")
    P(f"ds_read_b32 v{zt+1}, v{t0} offset:512")
    P(f"v_add_f32 v{zt}, v{zt}, v{zt+1}")
    P(f"v_mov_b32 v{zt+1}, v{zt}")
    P(f"v_permlane32_swap_b32 v{zt}, v{zt+1}")
    P(f"v_add_f32 v{zt}, v{zt}, v{zt+1}")
    P(f"v_mul_f32 v{t0}, {hexf(-LOG2E)}, v{zt}")
    P(f"v_exp_f32 v{t0}, v{t0}")
    P(f"v_add_f32 v{t0}, 1.0, v{t0}")
    P(f"v_rcp_f32 v{vg}, v{t0}")
    V.release("zt")
    vw = [V.alloc(f"vw{i}") for i in range(3)]; vrd = V.alloc("vrd"); vo = V.alloc("vo")
    def sbase(dst, w):
        P(f"s_mul_i32 s{S_T1}, s{w}, 6144")
        P(f"v_add_u32 v{dst}, s{S_T1}, v{l16}")
    sbase(vrd, S_W)
    for b in range(1, 4):
        P(f"s_xor_b32 s{S_T0}, s{S_W}, {b << 1}")
        sbase(vw[b - 1], S_T0)
    P(f"v_and_b32 v{vo}, 31, v{lane}")
    P(f"v_lshlrev_b32 v{vo}, 10, v{vo}")
    P(f"v_lshrrev_b32 v{t1}, 5, v{lane}")
    P(f"v_lshl_add_u32 v{vo}, v{t1}, 4, v{vo}")
    P(f"s_lshl_b32 s{S_OO}, s{S_TILE}, 15")
    P(f"s_lshl_b32 s{S_T1}, s{S_J}, 7")
    P(f"s_add_u32 s{S_OO}, s{S_OO}, s{S_T1}")
    P(f"s_lshl_b32 s{S_T1}, s{S_KH}, 6")
    P(f"s_add_u32 s{S_OO}, s{S_OO}, s{S_T1}")
    P(f"s_lshl_b32 s{S_T1}, s{S_HP}, 5")
    P(f"s_add_u32 s{S_OO}, s{S_OO}, s{S_T1}")
    vp = V.alloc("vp"); vpa = V.alloc("vpa")
    P(f"v_lshlrev_b32 v{vpa}, 10, v{lane}")
    vt0 = V.alloc("vt0"); vt1 = V.alloc("vt1")
    P(f"s_lshr_b32 s{S_T1}, s{S_W}, 1")
    P(f"s_mul_i32 s{S_T1}, s{S_T1}, {16384 - 2048}")
    P(f"s_add_u32 s{S_T1}, s{S_T1}, {3*16384}")
    P(f"v_add_u32 v{vt0}, s{S_T1}, v{vA[0][0]}")
    P(f"v_add_u32 v{vt1}, s{S_T1}, v{vA[1][0]}")
    va = V.alloc("cva"); vb = V.alloc("cvb"); fb = V.alloc("cvon")
    P(f"s_mul_i32 s{S_T0}, s{S_W}, 3072")
    P(f"s_add_u32 s{S_T0}, s{S_T0}, 114688")
    P(f"v_add_u32 v{va}, s{S_T0}, v{l16}")
    P(f"s_xor_b32 s{S_T0}, s{S_W}, 4")
    P(f"s_mul_i32 s{S_T0}, s{S_T0}, 3072")
    P(f"s_add_u32 s{S_T0}, s{S_T0}, 114688")
    P(f"v_add_u32 v{vb}, s{S_T0}, v{l16}")
    P(f"s_add_u32 s{S_OL2}, s{S_OL}, 4096")
    BSLOT = lambda b: ((b % 8) if b < 11 else (b - 8)) * 16384
    def a_reads(r, d):
        o = (4 * r % 64) * 2048; hi = o >> 16; o &= 0xffff
        assert r // 2 in vis, (r, vis)
        rd_done[r // 2] = rd_done.get(r // 2, 0) + 1
        if OPT.get("abl_uds"): return
        P(f"ds_read_b64_tr_b16 {vr(fa+4*d,2)}, v{vA[d][hi]} offset:{o}")
        P(f"ds_read_b64_tr_b16 {vr(fa+4*d+2,2)}, v{vA[d][hi]} offset:{o+1024}")
    def h_load(r):
        if OPT.get("abl_uh"): return
        P(f"s_add_u32 s{S_T2}, s{S_FB}, {4096*r}")
        if r == 21:
            P(f"s_cmp_lt_u32 s{S_W}, 4")
            P(f"s_cselect_b32 s{S_T2}, s{S_T2}, 0x{OOB:x}")
        P(f"buffer_load_dwordx4 {vr(hb[r%NB],4)}, v{l16}, {WSR}, s{S_T2} offen sc1")
    pend = {}
    LW = OPT.get("lw", 4)
    dq = []; vis = set(); issued = {}; rd_done = {}; nxt = dict(b=LW, r=0, d=0, pre=False)
    def qW(b):
        def f(i):
            if not OPT.get("abl_uw"): fin_dma_w1(P, vsl, b, BSLOT(b), f"fw{b}", i)
            issued[b] = issued.get(b, 0) + 1
        for i in range(2): dq.append(lambda i=i: f(i))
    CH = OPT.get("ch", HF + 4); R0 = OPT.get("r0", 2 * (CH + 1))
    DBL = OPT.get("dbl", 64)
    def mstep():
        r, d = nxt["r"], nxt["d"]
        if r >= 22: return
        if not nxt["pre"]:
            a_reads(0, 0); a_reads(0, 1); nxt["pre"] = True; return
        if not OPT.get("abl_um"): P(mfma([facc, facc1][d], fa + 4 * d, hb[r % NB], [facc, facc1][d] if r else None))
        if r + 1 < 22: a_reads(r + 1, d)
        if d == 1 and r + NB < 22: dq.insert(0, lambda r=r: h_load(r + NB))
        nxt["d"] = 1 - d; nxt["r"] = r + d
    US = [("g2", "g5"), ("g3", "g5"), ("g3", "g6"), ("g2", "g6"), ("g1", "g4")][OPT.get("us", 0)]
    VS = [("pv2", "qk"), ("qk", "pv1"), ("pv2", "pv1"), ("g3", "g6"), ("qk", "g6")][OPT.get("vs", 0)]
    def hookU(it, x, pos):
        sig = (x == 0 and (it & 1)); ph = 2 * it + x
        if pos == "sync?": return False
        if pos == "pre0": sigstamp(it, 0); return
        if pos == "pre":
            if it == HF: P.wait_vm_all()
            need = [b for b in issued if issued[b] == 2 and b not in vis and (it == 29 or b <= (max(0, ph + 8 - R0) * (2 if ph + 6 >= DBL else 1)) // 2) and b <= 10]
            if need: P.wait_tag(*[f"fw{b}" for b in need])
            if it == HF: need = need + list(range(LW))
            pend["vis"] = need; pend["free"] = {b for b in rd_done if rd_done[b] >= 4}
            sigstamp(it, 1); return
        if pos == "pv1" and sig and it == HF and OPT.get("ef", -1) < 0:
            nonce_check(P, SL, vn, vz)
            flag_store(P, vz, t0, S_FS)
        if pos == "chk":
            vis.update(pend["vis"])
            while it >= HF and nxt["b"] < 15:
                b = nxt["b"]; prev = {8: 0, 9: 1, 10: 2, 11: 3, 12: 4, 13: 5, 14: 6}.get(b)
                if prev is not None and prev not in pend["free"]: break
                qW(b); nxt["b"] += 1
            return
        if OPT.get("wo2") and it == OPT["wo2"] and x == 0 and pos == "qk":
            P(f"v_lshrrev_b32 v{t0}, 2, v{lane}")
            P(f"v_lshlrev_b32 v{t0}, 10, v{t0}")
            P(f"v_and_b32 v{t1}, 3, v{lane}")
            P(f"v_lshl_add_u32 v{t0}, v{t1}, 7, v{t0}")
            P(f"s_lshr_b32 s{S_T0}, s2, 3")
            P(f"s_lshl_b32 s{S_T0}, s{S_T0}, 3")
            P(f"s_add_u32 s{S_T0}, s{S_T0}, s{S_W}")
            P(f"s_lshl_b32 s{S_T0}, s{S_T0}, 11")
            P(f"s_and_b32 s{S_T1}, s2, 1")
            P(f"s_lshl_b32 s{S_T1}, s{S_T1}, 9")
            P(f"s_add_u32 s{S_T0}, s{S_T0}, s{S_T1}")
            P("s_mov_b64 exec, 0xff")
            P(f"buffer_load_dword v{vpd}, v{t0}, s[{S_WO}:{S_WO+3}], s{S_T0} offen")
            P.I[-1].vw = set()
            P("s_mov_b64 exec, -1")
        PP = OPT.get("pp", 2)
        if (PP == 0 and pos == "pv2" and x == 0 and it == CH - 1) or (PP == 1 and pos == "g1" and x == 1 and it == CH - 1) or \
           (PP == 2 and pos == "pv1" and x == 1 and it == CH - 1): P(flag_load(vfl, 1, vhf, f"s{S_FP}"))
        EF = OPT.get("ef", -1)
        if ph == EF and pos == "g4":
            P.wait_vm_all(); nonce_check(P, SL, vn, vz); flag_store(P, vz, t0, S_FS)
        if pos == ["pv2", "g3", "pv1"][OPT.get("cp", 0)] and x == 0 and it == CH:
            spin_check(P, SL, [flag_load(vfl, 1, vhf, f"s{S_FP}")], flag_cmp(vfl, 1, t0), sleep=OPT.get("hsl", 4))
            for r in range(NB): dq.insert(r, lambda r=r: h_load(r))
        elif dq and (pos in VS or (pos in ("g2", "g5") and it in (CH, CH + 1)) or (pos == "g5" and OPT.get("d3"))): dq.pop(0)()
        if nxt["r"] >= 22 - OPT.get("tr", 5) and nxt["d"] == 0: pass
        elif (pos in US and ph >= R0) or (pos == US[1] and ph == R0 - 1) or (pos in ("g3", "g6") and ph >= DBL): mstep()
        if pos == "g6" and it == 31 and x == 1:
            assert nxt["b"] == 15, nxt
            print("rounds left for tail:", 22 - nxt["r"])
    def prioU(it, x):
        if not OPT.get("prio", 1): return None
        k = 2 * ((it + 1) & 1) + x
        return int(str(OPT.get("pu", 3210)).zfill(4)[k])
    attention(P, A, l16, range(UNI, 32), hookU, prioU)
    assert not dq
    stamp(P, 6)
    if OPT.get("sig"):
        P(f"s_lshl_b32 s98, s2, 11")
        P(f"s_lshl_b32 s99, s{S_W}, 8")
        P(f"s_add_u32 s98, s98, s99")
        P(f"s_add_u32 s98, s98, 0x{WS_STAMP + (1<<20):x}")
        P(f"buffer_store_dword v{vsig}, v{vl4}, {WSR}, s98 offen")
    P("s_setprio 0")
    P(f"v_mov_b32 v{O[1]+7}, v{O[1]}")
    for i in range(3): P(f"ds_write_b128 v{va}, {vr(O[1]+4+4*i,4)} offset:{1024*i}")
    P.wait_tag(*[f"fw{b}" for b in range(8, 15)]); P.wait_lgkm_all()
    P("s_barrier")
    vis.update(range(11))
    for i in range(3): P(f"ds_read_b128 {vr(O[1]+4+4*i,4)}, v{vb} offset:{1024*i}")
    P(f"v_add_f32 v{O[0]}, v{O[0]}, v{O[1]+7}")
    for r in range(8, 16): P(f"v_add_f32 v{O[0]+r}, v{O[0]+r}, v{O[1]+r}")
    P(f"v_mov_b32 v{t1}, 0x207")
    P(f"v_cmp_nle_f32 vcc, {hexf(2.0**-90)}, v{O[0]}")
    P(f"v_cmp_nge_f32 s[{S_PM}:{S_PM+1}], {'s' + str(S_T0)}, v{O[0]}".replace(f"s{S_T0}", f"s{S_C1}"))
    P(f"s_or_b64 vcc, vcc, s[{S_PM}:{S_PM+1}]")
    P(f"v_add3_u32 v{t0}, v{O[0]+8}, 0, 0".replace("v_add3_u32", "v_add_f32").replace(", 0, 0", f", v{O[0]+9}"))
    for r in range(10, 16): P(f"v_add_f32 v{t0}, v{t0}, v{O[0]+r}")
    P(f"v_cmp_class_f32 s[{S_PM}:{S_PM+1}], v{t0}, v{t1}")
    P(f"s_or_b64 vcc, vcc, s[{S_PM}:{S_PM+1}]")
    if OPT.get("forcefb"): P("s_mov_b64 vcc, -1")
    P("s_cmp_lg_u64 vcc, 0")
    P("s_cbranch_scc1 LF_fb")
    P("LF_fbr:")
    P(f"v_rcp_f32 v{t0}, v{O[0]}")
    P(f"v_mul_f32 v{t0}, v{t0}, v{vg}")
    for r in range(8, 16): P(f"v_mul_f32 v{O[0]+r}, v{O[0]+r}, v{t0}")
    for r in range(4): P(f"v_cvt_pk_bf16_f32 v{O[1]+r}, v{O[0]+8+2*r}, v{O[0]+9+2*r}")
    for r in range(4): P(f"v_min_u32 v{O[1]+r}, 0xfffffffe, v{O[1]+r}")
    P(f"buffer_store_dwordx4 {vr(O[1],4)}, v{l16}, {WSR}, s{S_OD} offen sc1", tag="ost")
    P(f"s_add_u32 s{S_FS}, s{S_FS}, 32768")
    flag_store(P, vz, t0, S_FS)
    P(f"s_lshr_b32 s{S_T1}, s{S_W}, 1")
    P(f"s_lshl_b32 s{S_T1}, s{S_T1}, 8")
    P(f"s_add_u32 s{S_FP}, s{S_FP}, s{S_T1}")
    P(f"s_add_u32 s{S_FP}, s{S_FP}, 32768")
    stamp(P, 7)
    K4, V8, ON, CM = A["fk"], A["fv"][0], fb, O[1]
    assert A["fv"][1] == V8 + 4
    nl = "\n    "
    fbk = f"""LF_fb:
    s_waitcnt vmcnt(0) lgkmcnt(0)
    v_mov_b32 v{t0}, 0xff800000
    s_mov_b32 s{S_T0}, 0x{WS_KF:x}
LF_fb1:
    buffer_load_dwordx4 {vr(K4,4)}, v{l16}, {WSR}, s{S_T0} offen sc1
    s_waitcnt vmcnt(0)
    {mfma(S[0], K4, qf)}
    s_nop 15
    {nl.join(f"v_max3_f32 v{t0}, v{S[0]+2*r}, v{S[0]+2*r+1}, v{t0}" for r in range(8))}
    s_add_u32 s{S_T0}, s{S_T0}, 1024
    s_cmp_lt_u32 s{S_T0}, 0x{WS_KF + 65536:x}
    s_cbranch_scc1 LF_fb1
    v_mov_b32 v{t1}, v{t0}
    s_nop 1
    v_permlane32_swap_b32 v{t0}, v{t1}
    s_nop 1
    v_max_f32 v{t0}, v{t0}, v{t1}
    {nl.join(f"v_sub_f32 v{CM+r}, 0, v{t0}" for r in range(16))}
    {nl.join(f"v_mov_b32 v{O[0]+r}, 0" for r in range(16))}
    v_lshrrev_b32 v{t0}, 5, v{lane}
    v_lshlrev_b32 v{t0}, 8, v{t0}
    v_and_b32 v{t1}, 15, v{lane}
    v_lshl_add_u32 v{t0}, v{t1}, 4, v{t0}
    v_and_b32 v{t1}, 16, v{lane}
    v_cmp_eq_u32 vcc, 0, v{t1}
    v_mov_b32 v{t1}, 0x{OOB:x}
    s_nop 1
    v_cndmask_b32 v{t0}, v{t0}, v{t1}, vcc
    v_and_b32 v{t1}, 27, v{lane}
    v_cmp_eq_u32 vcc, 0, v{t1}
    v_mov_b32 v{ON}, 0x3f803f80
    s_nop 1
    v_cndmask_b32 v{ON}, 0, v{ON}, vcc
    s_mov_b32 s{S_T0}, 0x{WS_KF:x}
LF_fb2:
    s_add_u32 s{S_T1}, s{S_T0}, 0x{WS_VF - WS_KF:x}
    buffer_load_dwordx4 {vr(K4,4)}, v{l16}, {WSR}, s{S_T0} offen sc1
    buffer_load_dwordx4 {vr(V8,4)}, v{t0}, {WSR}, s{S_T1} offen sc1
    buffer_load_dwordx4 {vr(V8+4,4)}, v{t0}, {WSR}, s{S_T1} offen offset:512 sc1
    s_waitcnt vmcnt(0)
    {mfma(S[0], K4, qf, CM)}
    {nl.join(f"v_or_b32 v{V8+r}, v{V8+r}, v{ON}" for r in range(8))}
    s_nop 7
    {nl.join(f"v_exp_f32 v{S[0]+r}, v{S[0]+r}" for r in range(16))}
    s_nop 1
    {pv(O[0], V8, S[0], A["ix"])}
    {pv(O[0], V8+4, S[0]+8, A["ix"])}
    s_add_u32 s{S_T0}, s{S_T0}, 1024
    s_cmp_lt_u32 s{S_T0}, 0x{WS_KF + 65536:x}
    s_cbranch_scc1 LF_fb2
    s_nop 15
    s_branch LF_fbr
"""
    SL.add(fbk)
    for n in ("Sa", "Sb", "Oa", "qf", "fk", "fv1", "fv2"): V.release(n)
    ob = V.alloc("ob", 32); wa = [V.alloc(f"wa{u}", 8) for u in range(8)]
    def oloads(g): return [f"buffer_load_dwordx4 {vr(ob+16*g+4*u,4)}, v{l16}, {WSR}, s{[S_OL,S_OL2][g]} offen offset:{1024*u} sc1" for u in range(4)]
    def ocheck(g):
        b = ob + 16 * g
        L = [f"v_max3_u32 v{t0}, v{b}, v{b+1}, v{b+2}"]
        for k in range(3, 15, 2): L.append(f"v_max3_u32 v{t0}, v{b+k}, v{b+k+1}, v{t0}")
        L += [f"v_max_u32 v{t0}, v{b+15}, v{t0}", f"v_cmp_eq_u32 vcc, -1, v{t0}"]
        return L
    fa2 = V.alloc("ffa2", 8)
    wr = []
    for u in range(8):
        for d, v in ((0, vt0), (1, vt1)):
            wr.append([f"ds_read_b64_tr_b16 {vr(wa[u]+4*d,2)}, v{v} offset:{u*2048}", f"ds_read_b64_tr_b16 {vr(wa[u]+4*d+2,2)}, v{v} offset:{u*2048+1024}"])
    r0 = nxt["r"]; assert nxt["d"] == 0 and not dq
    def tr_reads(r, d):
        o = (4 * r % 64) * 2048; hi = o >> 16; o &= 0xffff; f = [fa, fa2][(r - r0) % 2] + 4 * d
        P(f"ds_read_b64_tr_b16 {vr(f,2)}, v{vA[d][hi]} offset:{o}")
        P(f"ds_read_b64_tr_b16 {vr(f+2,2)}, v{vA[d][hi]} offset:{o+1024}")
    if r0 + 1 < 22: tr_reads(r0 + 1, 0); tr_reads(r0 + 1, 1)
    OL = min(r0 + OPT.get("ol", 99), 22)
    for r in range(r0, 22):
        if OPT.get("ofp", 0) == 2 and r == 21:
            for x in ["s_mov_b64 exec, 0xffff", flag_load(vp, 1, vhf, f"s{S_FP}"), "s_mov_b64 exec, -1"]: P(x)
        if r == OL:
            for g in range(2):
                for x in oloads(g): P(x)
        for d in range(2):
            P(mfma([facc, facc1][d], [fa, fa2][(r - r0) % 2] + 4 * d, hb[r % NB], [facc, facc1][d]))
            if r + 2 < 22: tr_reads(r + 2, d)
            elif wr:
                for g in wr[:4]:
                    for x in g: P(x)
                del wr[:4]
    for g in wr:
        for x in g: P(x)
    assert 22 - r0 <= NB and r0 >= 16
    fl = ["s_mov_b64 exec, 0xffff", flag_load(vp, 1, vhf, f"s{S_FP}"), "s_mov_b64 exec, -1"]
    fc = ["s_mov_b64 exec, 0xffff", f"v_cmp_ne_u32 vcc, s{S_NONCE}, v{vp}", "s_mov_b64 exec, -1"]
    if OPT.get("ofp", 0) == 0:
        for x in fl: P(x)
    P.wait_lgkm_all(); P("s_barrier")
    if OPT.get("ofp", 0) == 1:
        for x in fl: P(x)
    spin_check(P, SL, fl, fc, sleep=OPT.get("fsl", 1))
    if OL == 22:
        for g in range(2):
            for x in oloads(g): P(x)
    P(f"v_sub_f32 v{t1}, 1.0, v{vg}")
    P(f"v_mov_b32 v{t0}, v{t1}")
    assert t1 == t0 + 1 and t0 % 2 == 0
    for r in range(0, 16, 2): P(f"v_pk_mul_f32 v[{facc+r}:{facc+r+1}], v[{facc+r}:{facc+r+1}], v[{t0}:{t1}]")
    for r in range(0, 16, 2): P(f"v_pk_mul_f32 v[{facc1+r}:{facc1+r+1}], v[{facc1+r}:{facc1+r+1}], v[{t0}:{t1}]")
    if not OPT.get("oab", 1): P.wait_lgkm_all(); P("s_barrier")
    stamp(P, 8)
    nl = "\n    "
    PROBE = lambda g: f"""s_mov_b64 exec, 0xf
    buffer_load_dword v{vp}, v{vpa}, {WSR}, s{[S_OL,S_OL2][g]} offen offset:1020 sc1
    s_waitcnt vmcnt(0)
    v_cmp_eq_u32 vcc, -1, v{vp}
    s_mov_b64 exec, -1"""
    for g in range(2):
        k = SL.n; SL.n += 1
        for x in ocheck(g): P(x)
        P(f"s_cbranch_vccz LR{k}")
        raw(P, f"""{cnt(1+k)}    s_mov_b32 s{S_T7}, 0
LS{k}_p:
    {f"s_sleep {OPT.get('osl', 1)}" if OPT.get('osl', 1) else "s_nop 0"}
    {"" if OPT.get("odir") else PROBE(g)}
    s_add_u32 s{S_T7}, s{S_T7}, 1
    s_cmp_ge_u32 s{S_T7}, 0x{SPIN_MAX:x}
    s_cbranch_scc1 LR{k}
    {"" if OPT.get("odir") else f"s_cbranch_vccnz LS{k}_p"}
    {nl.join(oloads(g))}
    s_waitcnt vmcnt(0)
    {nl.join(ocheck(g))}
    s_cbranch_vccnz LS{k}_p
""")
        P(f"LR{k}:")
        for u in range(4 * g, 4 * g + 4):
            P(mfma(facc1, wa[u] + 4, ob + 4 * u, facc1))
    W1 = [f"ds_write_b128 v{vw[b-1]}, {vr(src+4*i,4)} offset:{2048*(b-1) + 1024*i}" for b, src in ((2, facc1), (3, facc1 + 8)) for i in range(2)]
    for u in range(8):
        P(mfma(facc, wa[u], ob + 4 * u, facc))
        if u >= 3 and W1:
            if u == 3: P("s_nop 7")
            P(W1.pop(0))
    stamp(P, 9)
    for b, src in ((1, facc + 8),):
        for i in range(2): P(f"ds_write_b128 v{vw[b-1]}, {vr(src+4*i,4)} offset:{2048*(b-1) + 1024*i}")
    P.wait_lgkm_all()
    P("s_barrier")
    for i in range(6): P(f"ds_read_b128 {vr(ob+4*i,4)}, v{vrd} offset:{1024*i}")
    for b in range(3):
        for r in range(8): P(f"v_add_f32 v{facc+r}, v{facc+r}, v{ob+8*b+r}")
    for r in range(4): P(f"v_cvt_pk_bf16_f32 v{facc1+r}, v{facc+2*r}, v{facc+2*r+1}")
    P(f"v_permlane32_swap_b32 v{facc1}, v{facc1+2}")
    P(f"v_permlane32_swap_b32 v{facc1+1}, v{facc1+3}")
    P(f"buffer_store_dwordx4 {vr(facc1,4)}, v{vo}, s[{S_OUT}:{S_OUT+3}], s{S_OO} offen")
    if OPT.get("cnt"):
        P(f"v_lshrrev_b32 v1, v{lane}, s85".replace(f"v{lane}, s85", f"v{lane}, v0") if False else f"v_mov_b32 v0, s85")
        P(f"v_lshrrev_b32 v1, v{lane}, v0")
        P(f"v_and_b32 v1, 1, v1")
        P(f"v_lshlrev_b32 v0, 2, v{lane}")
        P("s_mov_b64 exec, 0xfe")
        P(f"buffer_atomic_add v1, v0, s[{S_DBG}:{S_DBG+3}], 0 offen")
    if STAMP["on"]:
        P.wait_vm_all(); stamp(P, 10); stamp_dump(P, lane)
        if OPT.get("amp") is not None:
            q, q0 = OPT["amp"], OPT.get("amp0", 12)
            if OPT.get("ampwg") is not None:
                P(f"s_cmp_lg_u32 s2, {OPT['ampwg']}"); P("s_cbranch_scc1 LF_end")
            P(f"s_cmp_lg_u32 s{S_W}, {OPT.get('ampw', 0)}"); P("s_cbranch_scc1 LF_end")
            P(f"v_readlane_b32 s96, v{VSTAMP}, {q}")
            if q0 == 99: P(f"s_mov_b32 s97, s{S_NONCE}")
            else: P(f"v_readlane_b32 s97, v{VSTAMP}, {q0}")
            P("s_nop 4")
            P("s_sub_u32 s96, s96, s97")
            if q0 == 99: P("s_add_u32 s96, s96, 200")
            P("s_min_u32 s96, s96, 4000")
            P("s_mul_i32 s96, s96, 10")
            P("s_memrealtime s[98:99]"); P("s_waitcnt lgkmcnt(0)")
            P("s_add_u32 s96, s96, s98")
            P("LF_amp:")
            P("s_sleep 8")
            P("s_memrealtime s[98:99]"); P("s_waitcnt lgkmcnt(0)")
            P("s_sub_u32 s97, s98, s96")
            P("s_cmp_lt_i32 s97, 0")
            P("s_cbranch_scc1 LF_amp")
        if OPT.get("dbgst") is not None:
            P(f"s_cmp_lg_u32 s2, {OPT['dbgst']}")
            P("s_cbranch_scc1 LF_end")
            P(f"s_cmp_lg_u32 s{S_W}, {OPT.get('dbgw', 0)}")
            P("s_cbranch_scc1 LF_end")
            P(f"v_subrev_u32 v{VSTAMP}, s100, v{VSTAMP}")
            P("s_mov_b64 exec, 0x7fff")
            P(f"buffer_store_dword v{VSTAMP}, v1, s[{S_DBG}:{S_DBG+3}], 0 offen offset:4")
    P("LF_end:")
    P("s_endpgm")
    name = NAME + "_kernel"
    body, I = finalize(P)
    txt = f".text\n.globl {name}\n.p2align 8\n.type {name},@function\n{name}:\n" + body + "".join(SL.txt) + "LF_last:\n    s_endpgm\n"
    vg_ = 256 if STAMP["on"] else max(V.hi, 8)
    txt += KD.format(name=name, vgpr=vg_, sgpr=102 if STAMP['on'] else 96, accum=(vg_ + 3) // 4 * 4)
    return txt, I, vg_


if __name__ == "__main__":
    out = sys.argv[1]
    STAMP["on"] = "stamp" in sys.argv or "mst" in sys.argv
    if "mst" in sys.argv: STAMP["min"] = (4, 6, 10)
    if "hamp" in sys.argv: STAMP["on"] = True; STAMP["min"] = (10,); OPT["amp"] = 10
    for a in sys.argv[2:]:
        if "=" in a: k, v = a.split("="); OPT[k] = int(v)
        else: OPT[a] = True
    import asmlib; asmlib.MERGE_D = OPT.get("md", 9)
    t, I, vg_ = kernel_F()
    DOC = """; One fused kernel, 256 workgroups x 8 waves, one per CU (all co-resident).  Workgroup = (64-token group G, slice j).
;  start : K/V projection of 16 tokens (wave 7) -> d_ws + flag ; Q projection of 4 heads (waves 0-3) ; gate logit
;          exp is taken without a max; the row sum / output are range-checked afterwards and the tile is redone with the
;          true row maximum (LF_fb) whenever that could have overflowed or underflowed.
;  end   : o exchanged through d_ws (hint flag; words preset to all-ones earlier in this launch mean 'not written yet' and
;  Hand-offs: write-through stores, vmcnt, then flags tagged with a per-launch nonce published through d_debug[0].
"""
    hdr = HEADER + DOC + f"; @launch grid=(256,1,1) block=(512,1,1) lds={LDS_BYTES}\n" + '.amdgcn_target "amdgcn-amd-amdhsa--gfx950"\n'
    open(out, "w").write(hdr + t)
    import subprocess
    r = subprocess.run(["clang", "-x", "assembler", "-target", "amdgcn-amd-amdhsa", "-mcpu=gfx950", "-c", out, "-o", "_chk.o"], capture_output=True, text=True)
    if r.returncode: print("ASM ERROR", r.stderr[:500])
    print("insts", len(I), "vgpr", vg_, "nops", sum(1 for x in I if x.kind == "nop"))
```
